```python
import torch

def _softmax(x, axis=-1):
    return torch.softmax(x, dim=axis)
def _gelu(x):
    return torch.nn.functional.gelu(x, approximate="tanh")
def _silu(x):
    return torch.nn.functional.silu(x)
def _sigmoid(x):
    return torch.sigmoid(x)
def _layernorm(x, axis=-1, eps=1e-5):
    m = x.mean(dim=axis, keepdim=True)
    v = x.var(dim=axis, keepdim=True, unbiased=False)
    return (x - m) / torch.sqrt(v + eps)
def _scatter_add(tgt, idx, src, axis=0):
    return tgt.clone().index_add_(axis, idx, src)
def _segment_sum(src, seg, n):
    out = torch.zeros((n,) + src.shape[1:], dtype=src.dtype)
    return out.index_add_(0, seg, src)
def _pad(x, pw):
    flat = tuple(v for pair in reversed(pw) for v in pair)
    return torch.nn.functional.pad(x, flat)

kernel_name = 'gated_mix__sliding_local_dilated__compressed_kv_cla__prompt'

def setup_inputs():

    _w = (lambda a: (lambda t: t.to(torch.bfloat16) if t.is_floating_point() else t)(torch.as_tensor(a)))
    def _A_setup():
        B, S, D = 1, 2048, 512
        return {
            "x": _w((lambda *s: torch.randn(*s, dtype=torch.bfloat16) * 0.05)(B, S, D)),
            "wqkv": _w((lambda *s: torch.randn(*s, dtype=torch.bfloat16) * 1.6)(D, 3 * D)),
            "wo": _w((lambda *s: torch.randn(*s, dtype=torch.bfloat16) * 0.05)(D, D)),
        }
    _A_in = _A_setup()

    def _B_setup():
        B, H, Sq, Sk, D, M = 1, 32, 2048, 2048, 128, 512
        Dc = 4 * D
        return {
            "x": _w((lambda *s: torch.randn(*s, dtype=torch.bfloat16) * 0.05)(B, Sq, M)),
            "c_kv": _w((lambda *s: torch.randn(*s, dtype=torch.bfloat16) * 1.6)(B, Sk, Dc)),
            "w_q": _w((lambda *s: torch.randn(*s, dtype=torch.bfloat16) * 6.4)(M, H, D) * (M ** -0.5)),
            "w_uk": _w((lambda *s: torch.randn(*s, dtype=torch.bfloat16) * 6.4)(Dc, H, D) * (Dc ** -0.5)),
            "w_uv": _w((lambda *s: torch.randn(*s, dtype=torch.bfloat16) * 1.6)(Dc, H, D) * (Dc ** -0.5)),
            "w_o": _w((lambda *s: torch.randn(*s, dtype=torch.bfloat16) * 1.6)(H, D, M) * ((H * D) ** -0.5)),
        }
    _B_in = _B_setup()

    return {
        "A_x": _A_in["x"],
        "A_wqkv": _A_in["wqkv"],
        "A_wo": _A_in["wo"],
        "B_x": _B_in["x"],
        "B_c_kv": _B_in["c_kv"],
        "B_w_q": _B_in["w_q"],
        "B_w_uk": _B_in["w_uk"],
        "B_w_uv": _B_in["w_uv"],
        "B_w_o": _B_in["w_o"],
        "gate_w": _w((lambda *s: torch.randn(*s, dtype=torch.bfloat16) * 0.05)(512) * 16.0),
    }

def reference(A_x, A_wqkv, A_wo, B_x, B_c_kv, B_w_q, B_w_uk, B_w_uv, B_w_o, gate_w):
    def _A_ref(x, wqkv, wo):
        B, S, D = x.shape
        H = 32; Dh = D // H
        W, dil = 8, 2
        qkv = (lambda x, *d: x.permute(*d))((x @ wqkv).reshape(B, S, 3, H, Dh), 2, 0, 3, 1, 4)
        q, k, v = qkv[0], qkv[1], qkv[2]
        scale = Dh ** -0.5
        pos = torch.arange(S)
        off = torch.arange(W) * dil
        idx = pos[:, None] - off[None, :]
        mask = idx >= 0
        idx_c = torch.where(mask, idx, 0).reshape(-1)
        kg = k[:, :, idx_c, :].reshape(B, H, S, W, Dh)
        vg = v[:, :, idx_c, :].reshape(B, H, S, W, Dh)
        logits = torch.einsum("bhsd,bhswd->bhsw", q, kg) * scale
        logits = torch.where(mask[None, None, :, :], logits, -1e9)
        attn = _softmax(logits, axis=-1)
        o = torch.einsum("bhsw,bhswd->bhsd", attn, vg)
        return (lambda x, *d: x.permute(*d))(o, 0, 2, 1, 3).reshape(B, S, D) @ wo

    def _B_ref(x, c_kv, w_q, w_uk, w_uv, w_o):
        B, Sq, M = x.shape[0], x.shape[1], x.shape[2]
        Sk = c_kv.shape[1]
        H, D = w_q.shape[1], w_q.shape[2]
        q = torch.einsum("bqm,mhd->bhqd", x, w_q)
        k = torch.einsum("bkc,chd->bhkd", c_kv, w_uk)
        v = torch.einsum("bkc,chd->bhkd", c_kv, w_uv)
        scores = torch.einsum("bhqd,bhkd->bhqk", q, k) * (D ** -0.5)
        off = Sk - Sq
        qi = torch.arange(Sq)[:, None]
        kj = torch.arange(Sk)[None, :]
        cmask = kj <= (qi + off)
        scores = torch.where(cmask[None, None], scores, -1e9)
        p = _softmax(scores, axis=-1)
        ctx = torch.einsum("bhqk,bhkd->bhqd", p, v)
        return torch.einsum("bhqd,hdm->bqm", ctx, w_o)

    x = A_x
    g = _sigmoid((x * gate_w).sum(-1, keepdims=True))
    a = _A_ref(x, A_wqkv, A_wo)
    b = _B_ref(x, B_c_kv, B_w_q, B_w_uk, B_w_uv, B_w_o)
    return g * a + (1 - g) * b
```

```python
class Asm:
    def __init__(self):
        self.lines = []
        self.launches = []
        self.kernels = []
        self.uid = 0
    def __call__(self, s):
        for ln in s.split("\n"):
            ln = ln.strip()
            if not ln: continue
            if ln.endswith(":") or ln.startswith("."):
                self.lines.append(ln)
            else:
                self.lines.append(" " + ln)
    def label(self, base):
        self.uid += 1
        return "L_%s_%d" % (base, self.uid)
    def begin_kernel(self, name):
        self(".globl %s\n.p2align 8\n.type %s,@function\n%s:" % (name, name, name))
    def add_kernel(self, name, vgpr, sgpr, accum):
        self.kernels.append((name, vgpr, sgpr, accum))
    def launch(self, name, grid, block, lds):
        self.launches.append("; @launch kernel=%s grid=(%d,1,1) block=(%d,1,1) lds=%d" % (name, grid, block, lds))
    def text(self, header="", kernarg=104):
        out = []
        if header: out.append(header.rstrip("\n"))
        out += self.launches
        out.append('.amdgcn_target "amdgcn-amd-amdhsa--gfx950"')
        out.append(".text")
        out += self.lines
        out.append('.section .rodata,"a"')
        for (name, vgpr, sgpr, accum) in self.kernels:
            out.append(".p2align 6")
            out.append(".amdhsa_kernel %s" % name)
            out.append("  .amdhsa_next_free_vgpr %d" % vgpr)
            out.append("  .amdhsa_next_free_sgpr %d" % sgpr)
            out.append("  .amdhsa_accum_offset %d" % accum)
            out.append("  .amdhsa_group_segment_fixed_size 0")
            out.append("  .amdhsa_kernarg_size %d" % kernarg)
            out.append("  .amdhsa_user_sgpr_count 2")
            out.append("  .amdhsa_user_sgpr_kernarg_segment_ptr 1")
            out.append("  .amdhsa_system_sgpr_workgroup_id_x 1")
            out.append(".end_amdhsa_kernel")
        return "\n".join(out) + "\n"

def vr(b, n=1):
    return "v%d" % b if n == 1 else "v[%d:%d]" % (b, b + n - 1)
def ar(b, n=1):
    return "a%d" % b if n == 1 else "a[%d:%d]" % (b, b + n - 1)
def sr(b, n=1):
    return "s%d" % b if n == 1 else "s[%d:%d]" % (b, b + n - 1)
```

```python
from asmlib import *
import math, struct
LOG2E = 1.4426950408889634
def fbits(x): return "0x%08x" % struct.unpack("<I", struct.pack("<f", x))[0]
WS_SIZE = 0x10000000
PH = 524288
OFF_A = 0
OFF_Q = 12 * PH
OFF_K = 44 * PH
OFF_V = 76 * PH
OFF_G = 108 * PH
OFF_C = 112 * PH
CROW = 288 * 1024
OFF_DUMMY = 160 * PH
MF32 = "v_mfma_f32_32x32x16_bf16"
def srd(a, d, b, size):
    a("s_mov_b32 s%d, s%d\ns_mov_b32 s%d, s%d\ns_mov_b32 s%d, 0x%x\ns_mov_b32 s%d, 0x20000" % (d, b, d + 1, b + 1, d + 2, size, d + 3))
def spread(n_items, lo, hi):
    return [lo + (k * (hi - lo)) // n_items for k in range(n_items)]
```

```python
from gen_common import *

def gen_p1(a, name="p1_kernel"):
    a.begin_kernel(name)
    done = a.label("p1done")
    SA, SW, SO, SG = 20, 24, 28, 32
    sCG, sRB, sU, sUE, sWV = 36, 37, 38, 39, 40
    sSTR, sDS, sDM, sST8 = 41, 42, 43, 44
    sOC, sOP, sSC, sSP, sWO = 45, 46, 47, 48, 49
    sT0, sT1, sT2, sOC2, sOP2, sBUF = 50, 51, 52, 53, 54, 55
    vL16, vROW, vCH, vWOFF, vT0, vT1 = 1, 2, 3, 4, 5, 6
    vXO = (7, 8); vXR = (9, 10, 11, 12); vTMP = 13
    ACC = 16
    FR = 80; NFR = 8
    PK = 112
    MT = 128
    PD = 4
    a("s_cmp_ge_u32 s2, 256\ns_cbranch_scc1 %s" % done)
    a("s_load_dwordx4 s[4:7], s[0:1], 0\ns_load_dwordx4 s[8:11], s[0:1], 32\ns_load_dwordx4 s[12:15], s[0:1], 48")
    a("s_load_dwordx2 s[16:17], s[0:1], 72\ns_load_dwordx2 s[18:19], s[0:1], 96")
    a("v_lshrrev_b32 v%d, 6, v0\nv_and_b32 v0, 63, v0\nv_readfirstlane_b32 s%d, v%d" % (vTMP, sWV, vTMP))
    a("s_and_b32 s%d, s2, 7\ns_lshl_b32 s%d, s%d, 2\ns_lshr_b32 s%d, s2, 6\ns_add_u32 s%d, s%d, s%d" % (sCG, sCG, sCG, sT0, sCG, sCG, sT0))
    a("s_lshr_b32 s%d, s2, 3\ns_and_b32 s%d, s%d, 7" % (sRB, sRB, sRB))
    a("s_cmp_lt_u32 s%d, 13" % sCG)
    a("s_cselect_b32 s%d, 0, 13\ns_cselect_b32 s%d, 10, 14\ns_cselect_b32 s%d, 0, 88" % (sT0, sT1, sT2))
    a("s_sub_u32 s%d, s%d, s%d" % (sT0, sCG, sT0))
    a("s_mul_i32 s%d, s%d, 7\ns_add_u32 s%d, s%d, s%d" % (sU, sT0, sU, sU, sT2))
    a("s_max_u32 s%d, s%d, s%d\ns_sub_u32 s%d, s%d, s%d\ns_sub_u32 s%d, s%d, s%d" % (sT2, sT0, sT1, sT2, sT2, sT1, sU, sU, sT2))
    a("s_cmp_lt_u32 s%d, s%d\ns_cselect_b32 s%d, 7, 6\ns_add_u32 s%d, s%d, s%d" % (sT0, sT1, sUE, sUE, sUE, sU))
    a("v_lshlrev_b32 v%d, 4, v0" % vL16)
    a("v_lshrrev_b32 v%d, 3, v0" % vROW)
    a("v_lshrrev_b32 v%d, 4, v0" % vTMP)
    a("v_and_b32 v14, 7, v0")
    a("v_and_b32 v15, 1, v%d\nv_lshlrev_b32 v15, 2, v15\nv_xor_b32 v15, v15, v14\nv_lshlrev_b32 v%d, 4, v15" % (vTMP, vCH))
    for n in range(2):
        a("v_add_u32 v15, %d, v%d\nv_xor_b32 v15, v15, v14\nv_lshlrev_b32 v15, 4, v15\nv_lshl_add_u32 v%d, v%d, 10, v15" % (4 * n, vTMP, vXO[n], vROW))
    a("v_and_b32 v14, 31, v0\nv_lshrrev_b32 v15, 1, v14\nv_and_b32 v15, 7, v15\nv_lshrrev_b32 v16, 5, v0\nv_xor_b32 v15, v15, v16\nv_lshlrev_b32 v15, 4, v15\nv_lshl_add_u32 v15, v14, 7, v15")
    a("s_mul_i32 s%d, s%d, 24576\ns_add_u32 s%d, s%d, 65536" % (sT2, sWV, sT2, sT2))
    for k in range(4):
        a("v_xor_b32 v%d, %d, v15\nv_add_u32 v%d, s%d, v%d" % (vXR[k], 32 * k, vXR[k], sT2, vXR[k]))
    a("v_lshrrev_b32 v14, 2, v0\nv_and_b32 v14, 3, v14")
    a("v_lshrrev_b32 v15, 5, v0\nv_lshl_add_u32 v15, v15, 3, v14\nv_lshlrev_b32 v15, 7, v15")
    a("v_lshrrev_b32 v16, 4, v0\nv_and_b32 v16, 1, v16\nv_lshlrev_b32 v16, 1, v16")
    a("v_lshrrev_b32 v17, 1, v0\nv_and_b32 v17, 1, v17\nv_add_u32 v16, v16, v17")
    a("v_lshrrev_b32 v17, 1, v14\nv_lshlrev_b32 v17, 2, v17\nv_xor_b32 v16, v16, v17")
    a("v_lshl_add_u32 v15, v16, 4, v15\nv_and_b32 v17, 1, v0\nv_lshl_add_u32 v%d, v17, 3, v15\nv_xor_b32 v%d, 64, v%d" % (vT0, vT1, vT0))
    a("s_waitcnt lgkmcnt(0)")
    a("s_cmp_lt_u32 s%d, 13\ns_cselect_b32 s%d, s4, s8\ns_cselect_b32 s%d, s5, s9\ns_mov_b32 s%d, 0x200000\ns_mov_b32 s%d, 0x20000" % (sCG, SA, SA + 1, SA + 2, SA + 3))
    srd(a, SO, 18, WS_SIZE); srd(a, SG, 16, 1024)
    a("s_mov_b32 s%d, 0x20000" % (SW + 3))
    a("s_lshl_b32 s%d, s%d, 2\ns_add_u32 s%d, s%d, s%d\ns_lshl_b32 s%d, s%d, 14" % (sWO, sRB, sWO, sWO, sWV, sWO, sWO))

    def wparams(u):
        L = []
        L.append("s_sub_u32 s%d, s%d, 24" % (sT0, u))
        L.append("s_and_b32 s%d, s%d, 63" % (sT1, sT0))
        L.append("s_cmp_lt_u32 s%d, 88" % u)
        L.append("s_cselect_b32 s%d, s10, s12" % SW); L.append("s_cselect_b32 s%d, s11, s13" % (SW + 1))
        L.append("s_cmp_lt_u32 s%d, 152" % u)
        L.append("s_cselect_b32 s%d, s%d, s14" % (SW, SW)); L.append("s_cselect_b32 s%d, s%d, s15" % (SW + 1, SW + 1))
        L.append("s_cmp_lt_u32 s%d, 24" % u)
        L.append("s_cselect_b32 s%d, s6, s%d" % (SW, SW)); L.append("s_cselect_b32 s%d, s7, s%d" % (SW + 1, SW + 1))
        L.append("s_cselect_b32 s%d, 3072, 8192" % sSTR) if False else None
        L.append("s_cselect_b32 s%d, s%d, s%d" % (sT1, u, sT1))
        L.append("s_cselect_b32 s%d, 3, 8" % sSTR)
        L.append("s_lshl_b32 s%d, s%d, 10" % (sSTR, sSTR))
        L.append("s_lshl_b32 s%d, s%d, 9" % (SW + 2, sSTR))
        L.append("s_cmp_lt_u32 s%d, s%d" % (u, sUE))
        L.append("s_cselect_b32 s%d, s%d, 0" % (SW + 2, SW + 2))
        L.append("s_lshl_b32 s%d, s%d, 3" % (sST8, sSTR))
        L.append("s_mul_i32 s%d, s%d, s%d" % (sDS, sST8, sWV))
        L.append("s_lshl_b32 s%d, s%d, 4" % (sDS, sDS))
        L.append("s_lshl_b32 s%d, s%d, 7" % (sT1, sT1))
        L.append("s_add_u32 s%d, s%d, s%d" % (sDS, sDS, sT1))
        L.append("v_mad_u32_u24 v%d, v%d, s%d, v%d" % (vWOFF, vROW, sSTR, vCH))
        return [x for x in L if x]
    def wdma(n):
        L = []
        if n == 0: L.append("s_mov_b32 m0, s%d" % sDM)
        else: L.append("s_add_u32 m0, s%d, %d" % (sDM, n * 1024))
        if n > 0: L.append("s_add_u32 s%d, s%d, s%d" % (sDS, sDS, sST8))
        else: L.append("s_nop 0")
        L.append("buffer_load_dwordx4 v%d, s[%d:%d], s%d offen lds" % (vWOFF, SW, SW + 3, sDS))
        return L
    def oparams():
        L = []
        L.append("s_lshr_b32 s%d, s%d, 1" % (sT0, sU)); L.append("s_lshl_b32 s%d, s%d, 19" % (sT0, sT0))
        L.append("s_and_b32 s%d, s%d, 1" % (sT1, sU)); L.append("s_lshl_b32 s%d, s%d, 12" % (sT1, sT1))
        L.append("s_add_u32 s%d, s%d, s%d" % (sOC, sT0, sT1)); L.append("s_add_u32 s%d, s%d, s%d" % (sOC, sOC, sWO))
        L.append("s_add_u32 s%d, s%d, 8192" % (sOC2, sOC))
        L.append("s_sub_u32 s%d, s%d, 24" % (sT0, sU))
        L.append("s_cmp_lt_u32 s%d, 64" % sT0)
        L.append("s_cselect_b32 s%d, %s, 1.0" % (sSC, fbits(LOG2E / math.sqrt(128.0))))
        L.append("s_cmp_lt_u32 s%d, 8" % sU)
        L.append("s_cselect_b32 s%d, %s, s%d" % (sSC, fbits(LOG2E * 0.25), sSC))
        return L
    a("s_lshl_b32 s%d, s%d, 14" % (sDM, sWV))
    for x in wparams(sU): a(x)
    for n in range(16):
        for x in wdma(n): a(x)
    sXS, sXM = sOP, sOP2
    a("s_lshl_b32 s%d, s%d, 2\ns_add_u32 s%d, s%d, s%d\ns_lshl_b32 s%d, s%d, 16" % (sXS, sRB, sXS, sXS, sWV, sXS, sXS))
    a("s_mul_i32 s%d, s%d, 24576\ns_add_u32 s%d, s%d, 65536" % (sXM, sWV, sXM, sXM))
    def xdma(c):
        for n in range(8):
            a("s_add_u32 m0, s%d, %d\ns_add_u32 s%d, s%d, %d" % (sXM, (c % 3) * 8192 + n * 1024, sT0, sXS, n * 8192 + c * 128))
            a("buffer_load_dwordx4 v%d, s[%d:%d], s%d offen lds" % (vXO[n % 2], SA, SA + 3, sT0))
    for c in range(3): xdma(c)
    for c in range(8):
        a("s_waitcnt vmcnt(%d)" % (8 * min(2, 7 - c)))
        for rb in range(2):
            for k in range(4):
                a("ds_read_b128 %s, v%d offset:%d" % (ar((rb * 32 + c * 4 + k) * 4, 4), vXR[k], (c % 3) * 8192 + rb * 4096))
        if c + 3 < 8:
            a("s_waitcnt lgkmcnt(0)")
            xdma(c + 3)
    a("s_mov_b32 s%d, 0x%x\ns_add_u32 s%d, s%d, s%d\ns_add_u32 s%d, s%d, 8192\ns_mov_b32 s%d, 1.0" % (sOP, OFF_DUMMY, sOP, sOP, sWO, sOP2, sOP, sSP))
    a("s_xor_b32 s%d, s%d, 65536" % (sDM, sDM))
    a("s_waitcnt lgkmcnt(0)\ns_barrier")
    def trread(f):
        cb, ks = (f % 64) // 32, f % 32
        r = FR + 4 * (f % NFR); v = (vT0, vT1)[cb]
        return ["ds_read_b64_tr_b16 %s, v%d offset:%d" % (vr(r, 2), v, ks * 2048),
                "ds_read_b64_tr_b16 %s, v%d offset:%d" % (vr(r + 2, 2), v, ks * 2048 + 512)]
    for f in range(PD):
        for x in trread(f): a(x)
    def epi(cb, scale, so, so2):
        G = []
        for rb in range(2):
            for e in range(2):
                src = ACC + (cb * 2 + rb) * 16 + e * 8
                pk = PK + 4 * (rb * 2 + e)
                for j in range(4):
                    if scale is not None:
                        t = MT + (2 * j + 8 * e) % 16
                        G.append(["v_mul_f32 v%d, s%d, v%d" % (t, scale, src + 2 * j)])
                        G.append(["v_mul_f32 v%d, s%d, v%d" % (t + 1, scale, src + 2 * j + 1)])
                        G.append(["v_cvt_pk_bf16_f32 v%d, v%d, v%d" % (pk + j, t, t + 1)])
                    else:
                        G.append(["v_cvt_pk_bf16_f32 v%d, v%d, v%d" % (pk + j, src + 2 * j, src + 2 * j + 1)])
                G.append(["buffer_store_dwordx4 %s, v%d, s[%d:%d], s%d offen offset:%d" % (vr(pk, 4), vL16, SO, SO + 3, so if rb == 0 else so2, cb * 2048 + e * 1024)])
        return G
    top = a.label("p1top"); lN = a.label("p1N"); lS = a.label("p1S"); lQ = a.label("p1Q"); nxt = a.label("p1next")
    def body(mode):
        sc_p = sSP if mode == "Q" else None
        sc_c = sSC if mode == "Q" else None
        fill = {m: [] for m in range(128)}
        pre = ["s_add_u32 s%d, s%d, 1" % (sT2, sU)] + wparams(sT2)
        for x, m in zip(pre, spread(len(pre), 0, 8)): fill[m].append(x)
        for n, m in enumerate(spread(16, 9, 57)): fill[m] += wdma(n)
        g1 = epi(1, sc_p, sOP, sOP2)
        for x, m in zip(g1, spread(len(g1), 8, 60)): fill[m] += x
        op = oparams()
        for x, m in zip(op, spread(len(op), 58, 66)): fill[m].append(x)
        g0 = epi(0, sc_c, sOC, sOC2)
        for x, m in zip(g0, spread(len(g0), 72, 116)): fill[m] += x
        for m in range(128):
            f, rb = m // 2, m % 2
            cb, ks = f // 32, f % 32
            if rb == 0:
                if f <= 64 - PD: out = min(f + PD - 1, 63) - f
                else: out = None
                if f == 65 - PD:
                    a("s_waitcnt vmcnt(4) lgkmcnt(0)\ns_barrier")
                    a("v_xor_b32 v%d, 0x10000, v%d\nv_xor_b32 v%d, 0x10000, v%d" % (vT0, vT0, vT1, vT1))
                elif out is not None:
                    a("s_waitcnt lgkmcnt(%d)" % (2 * out))
            acc = vr(ACC + (cb * 2 + rb) * 16, 16)
            w = vr(FR + 4 * (f % NFR), 4); x = ar((rb * 32 + ks) * 4, 4)
            A, B = (x, w) if mode == "S" else (w, x)
            a("%s %s, %s, %s, %s" % (MF32, acc, A, B, "0" if ks == 0 else acc))
            if f + PD < 64:
                a(trread(f + PD)[rb])
            elif f == 65 - PD:
                for x in trread(64 + rb): a(x)
            elif f > 65 - PD:
                a(trread(f + PD)[rb])
            for x in fill[m]: a(x)
        a("s_mov_b32 s%d, s%d\ns_mov_b32 s%d, s%d\ns_mov_b32 s%d, s%d\ns_xor_b32 s%d, s%d, 65536" % (sOP, sOC, sOP2, sOC2, sSP, sSC, sDM, sDM))
        a("s_add_u32 s%d, s%d, 1\ns_cmp_lt_u32 s%d, s%d\ns_cbranch_scc1 %s\ns_branch %s" % (sU, sU, sU, sUE, top, nxt))
    a(top + ":")
    a("s_cmp_ge_u32 s%d, 152\ns_cbranch_scc1 %s\ns_cmp_ge_u32 s%d, 88\ns_cbranch_scc1 %s" % (sU, lS, sU, lN))
    a("s_sub_u32 s%d, s%d, 16\ns_cmp_lt_u32 s%d, 8\ns_cbranch_scc1 %s" % (sT0, sU, sT0, lS))
    a(lQ + ":"); body("Q")
    a(lN + ":"); body("N")
    a(lS + ":"); body("S")
    a(nxt + ":")
    a("s_nop 7")
    for g in epi(1, sSP, sOP, sOP2):
        for x in g: a(x)
    a("s_cmp_lg_u32 s%d, 12\ns_cbranch_scc1 %s" % (sCG, done))
    a("s_waitcnt lgkmcnt(0)")
    a("v_lshrrev_b32 v14, 5, v0\nv_lshlrev_b32 v14, 4, v14")
    GF = 128
    for ks in range(32):
        a("buffer_load_dwordx4 %s, v14, s[%d:%d], 0 offen offset:%d" % (vr(GF + 4 * ks, 4), SG, SG + 3, ks * 32))
    for ks in range(32):
        a("s_waitcnt vmcnt(%d)" % (31 - ks))
        for rb in range(2):
            acc = vr(ACC + rb * 16, 16)
            a("%s %s, %s, %s, %s" % (MF32, acc, vr(GF + 4 * ks, 4), ar((rb * 32 + ks) * 4, 4), "0" if ks == 0 else acc))
    a("s_nop 15")
    a("v_cmp_gt_u32 vcc, 32, v0\ns_nop 1\nv_cndmask_b32 v14, v%d, v%d, vcc" % (ACC + 16, ACC))
    a("v_mul_f32 v14, %s, v14\nv_exp_f32 v14, v14\ns_nop 0\nv_add_f32 v14, 1.0, v14\nv_rcp_f32 v14, v14" % fbits(-LOG2E))
    a("s_lshl_b32 s%d, s%d, 2\ns_add_u32 s%d, s%d, s%d\ns_lshl_b32 s%d, s%d, 8\ns_add_u32 s%d, s%d, 0x%x" % (sT0, sRB, sT0, sT0, sWV, sT0, sT0, sT0, sT0, OFF_G))
    a("v_lshlrev_b32 v15, 2, v0")
    a("buffer_store_dword v14, v15, s[%d:%d], s%d offen" % (SO, SO + 3, sT0))
    a(done + ":\ns_endpgm")
    a.add_kernel(name, 512, 64, 256)
    a.launch(name, 256, 256, 163840)
```

```python
from gen_common import *

NEG = "0xff800000"
THRESH = fbits(2.0 ** 24)

def gen_p2(a, name="p2_kernel", tstamp=False):
    a.begin_kernel(name)
    done = a.label("p2done")
    SK, SV = 8, 12
    sWV, sI, sHD, sT = 16, 17, 18, 19
    sKO, sVO = 20, 21
    sW4, sW8 = 22, 23
    sT0, sT1, sT2, sDS = 24, 25, 26, 27
    sTH = 28
    sQL, sQS = 29, 30
    sM0, sM1, sM2 = 32, 34, 36
    sEND = 38
    vK, vV, vU, vGL, vGS = 1, 2, 3, 4, 5
    vL = (6, 7); vLT = (8, 9); vX = 10
    S = (16, 80); P = (144, 176); NM = 208; TM = 240
    O, Q, FR, NFR = 0, 128, 192, 16
    PD = 6
    a("s_cmp_ge_u32 s2, 256\ns_cbranch_scc1 %s" % done)
    a("s_load_dwordx2 s[4:5], s[0:1], 96")
    a("v_lshrrev_b32 v10, 6, v0\nv_and_b32 v0, 63, v0\nv_readfirstlane_b32 s%d, v10" % sWV)
    a("s_and_b32 s%d, s2, 7\ns_lshl_b32 s%d, s%d, 2\ns_lshr_b32 s%d, s2, 3\ns_and_b32 s%d, s%d, 3\ns_add_u32 s%d, s%d, s%d" % (sHD, sHD, sHD, sT0, sT0, sT0, sHD, sHD, sT0))
    a("s_lshr_b32 s%d, s2, 5" % sI)
    a("v_lshlrev_b32 v%d, 4, v0\nv_add_u32 v%d, 0x10000, v%d" % (vK, vV, vK))
    a("s_lshl_b32 s%d, s%d, 12\ns_lshl_b32 s%d, s%d, 13" % (sW4, sWV, sW8, sWV))
    a("s_lshl_b32 s%d, s%d, 19\ns_add_u32 s%d, s%d, 0x%x\ns_add_u32 s%d, s%d, 0x%x" % (sT0, sHD, sKO, sT0, OFF_K, sVO, sT0, OFF_V))
    a("s_lshl_b32 s%d, s%d, 2\ns_add_u32 s%d, s%d, s%d\ns_sub_u32 s%d, 60, s%d\ns_add_u32 s%d, s%d, s%d" % (sT1, sI, sQS, sT1, sWV, sQL, sT1, sQL, sQL, sWV))
    a("s_mov_b32 s%d, %s" % (sTH, THRESH))
    a("s_waitcnt lgkmcnt(0)")
    srd(a, SK, 4, WS_SIZE); srd(a, SV, 4, WS_SIZE)

    def dma(which, typ, par):
        so, sr_, base = (sKO, SK, 0) if which == "K" else (sVO, SV, 65536)
        sw = sW4 if typ == 1 else sW8
        G = []
        for q in range(typ):
            g = ["s_add_u32 m0, s%d, %d" % (sw, base + par * 32768 + q * 4096)]
            if q == 0: g.append("s_add_u32 s%d, s%d, s%d" % (sDS, so, sw))
            else: g.append("s_add_u32 s%d, s%d, 4096" % (sDS, sDS))
            G.append(g)
            for o in range(4):
                G.append(["buffer_load_dwordx4 v%d, s[%d:%d], s%d offen offset:%d lds" % (vK, sr_, sr_ + 3, sDS, o * 1024)])
        return G
    def adv(which, typ):
        so = sKO if which == "K" else sVO
        return ["s_add_u32 s%d, s%d, %d" % (so, so, 16384 * typ)]

    sRA, sHP, sA0, sA1 = 40, 41, 42, 43
    AQ, AKC, AKP, AV = 144, 152, 160, 168
    a("s_lshl_b32 s%d, s2, 2\ns_add_u32 s%d, s%d, s%d\ns_lshr_b32 s%d, s%d, 4\ns_and_b32 s%d, s%d, 15" % (sT0, sT0, sT0, sWV, sRA, sT0, sHP, sT0))
    a("s_lshr_b32 s%d, s%d, 2\ns_lshl_b32 s%d, s%d, 19\ns_and_b32 s%d, s%d, 3\ns_lshl_b32 s%d, s%d, 11\ns_add_u32 s%d, s%d, s%d" % (sT0, sHP, sT0, sT0, sT1, sHP, sT1, sT1, sT0, sT0, sT1))
    a("s_lshl_b32 s%d, s%d, 13\ns_add_u32 s%d, s%d, s%d" % (sT1, sRA, sA0, sT0, sT1))
    a("s_max_u32 s%d, s%d, 1\ns_sub_u32 s%d, s%d, 1\ns_lshl_b32 s%d, s%d, 13\ns_add_u32 s%d, s%d, s%d" % (sT1, sRA, sT1, sT1, sT1, sT1, sA1, sT0, sT1))
    def ld(dst, so, off): a("buffer_load_dwordx4 %s, v%d, s[%d:%d], s%d offen offset:%d" % (dst, vK, SV, SV + 3, so, off))
    ld(vr(AQ, 4), sA0, 0); ld(vr(AQ + 4, 4), sA0, 1024)
    a("s_add_u32 s%d, s%d, %d\ns_add_u32 s%d, s%d, %d" % (sA0, sA0, 4 * PH, sA1, sA1, 4 * PH))
    ld(vr(AKC, 4), sA0, 0); ld(vr(AKC + 4, 4), sA0, 1024); ld(vr(AKP, 4), sA1, 0); ld(vr(AKP + 4, 4), sA1, 1024)
    a("s_add_u32 s%d, s%d, %d\ns_add_u32 s%d, s%d, %d" % (sA0, sA0, 4 * PH, sA1, sA1, 4 * PH))
    ld(vr(AV, 4), sA1, 1024); ld(vr(AV + 4, 4), sA0, 0); ld(vr(AV + 8, 4), sA0, 1024)
    vGA = 248
    a("v_and_b32 v10, 31, v0\nv_lshlrev_b32 v10, 2, v10")
    for (dst, blk) in ((vGA, sRA), (vGL, sQL), (vGS, sQS)):
        a("s_lshl_b32 s%d, s%d, 7\ns_add_u32 s%d, s%d, 0x%x" % (sT0, blk, sT0, sT0, OFF_G))
        a("buffer_load_dword v%d, v10, s[%d:%d], s%d offen" % (dst, SV, SV + 3, sT0))
    for g in dma("K", 1, 0) + [adv("K", 1)]:
        for x in g: a(x)
    for rb, blk in ((0, sQL), (1, sQS)):
        a("s_lshl_b32 s%d, s%d, 19\ns_lshl_b32 s%d, s%d, 13\ns_add_u32 s%d, s%d, s%d\ns_add_u32 s%d, s%d, 0x%x" % (sT0, sHD, sT1, blk, sT0, sT0, sT1, sT0, sT0, OFF_Q))
        for s in range(8):
            if s == 4: a("s_add_u32 s%d, s%d, 4096" % (sT0, sT0))
            ld(ar(Q + rb * 32 + s * 4, 4), sT0, (s % 4) * 1024)
    for g in dma("K", 1, 1) + [adv("K", 1)]:
        for x in g: a(x)
    a("v_and_b32 v10, 31, v0\nv_lshrrev_b32 v11, 5, v0\nv_lshlrev_b32 v11, 2, v11\nv_sub_u32 v%d, v10, v11" % vU)
    for i in range(128): a("v_accvgpr_write_b32 a%d, 0" % (O + i))
    BC, BP = 80, 96
    vNEG = 249
    a("v_mov_b32 v%d, %s" % (vNEG, NEG))
    a("s_cmp_eq_u32 s%d, 0\ns_cselect_b32 s%d, 64, 32\nv_add_u32 v11, s%d, v%d" % (sRA, sT0, sT0, vU))
    items = [(BC + r, vU, 8 * (r // 4) + r % 4) for r in range(16)] + [(BP + r, 11, 8 * (r // 4) + r % 4) for r in range(8, 16)]
    ms = (sM0, sM1, sM2)
    for j in range(0, 24, 3):
        for q in range(3):
            d, u, key = items[j + q]
            a("v_subrev_u32 v%d, %d, v%d\nv_and_b32 v%d, -15, v%d\nv_cmp_eq_u32 s[%d:%d], 0, v%d" % (12 + q, key, u, 12 + q, 12 + q, ms[q], ms[q] + 1, 12 + q))
        for q in range(3):
            d = items[j + q][0]
            a("v_cndmask_b32 v%d, v%d, 0, s[%d:%d]" % (d, vNEG, ms[q], ms[q] + 1))
    for r in range(8): a("v_mov_b32 v%d, v%d" % (BP + r, vNEG))
    vPM = 250
    a("v_and_b32 v10, 1, v0\nv_lshlrev_b32 v10, 4, v10\nv_mov_b32 v11, 0xffff\nv_lshlrev_b32 v%d, v10, v11" % vPM)
    a("s_waitcnt vmcnt(24)")
    SC, SP = (16, 32), (48, 64)
    for e in range(2):
        a("%s %s, %s, %s, %s" % (MF32, vr(SC[e], 16), vr(AKC + 4 * e, 4), vr(AQ + 4 * e, 4), vr(BC, 16)))
        a("%s %s, %s, %s, %s" % (MF32, vr(SP[e], 16), vr(AKP + 4 * e, 4), vr(AQ + 4 * e, 4), vr(BP, 16)))
    a("s_nop 9")
    TT = (112, 124)
    PA = (184, 196)
    MX = (10, 12); SM_ = (14, 251)
    for e in range(2):
        for j in range(4): a("v_max_f32 v%d, v%d, v%d" % (TT[e] + j, SP[e] + 8 + 2 * j, SP[e] + 9 + 2 * j))
        for j in range(8): a("v_max_f32 v%d, v%d, v%d" % (TT[e] + 4 + j, SC[e] + 2 * j, SC[e] + 2 * j + 1))
    for e in range(2):
        t = TT[e]; m = MX[e]
        a("v_max3_f32 v%d, v%d, v%d, v%d" % (m, t, t + 1, t + 2))
        for j in range(3, 11, 2): a("v_max3_f32 v%d, v%d, v%d, v%d" % (m, m, t + j, t + j + 1))
        a("v_max_f32 v%d, v%d, v%d\nv_mov_b32 v%d, v%d" % (m, m, t + 11, m + 1, m))
    a("s_nop 1")
    for e in range(2): a("v_permlane32_swap_b32 v%d, v%d" % (MX[e], MX[e] + 1))
    for e in range(2): a("v_max_f32 v%d, v%d, v%d" % (MX[e], MX[e], MX[e] + 1))
    for e in range(2):
        for j in range(12): a("v_sub_f32 v%d, v%d, v%d" % (TT[e] + j, TT[e] + j, MX[e]))
        for j in range(12): a("v_exp_f32 v%d, v%d" % (TT[e] + j, TT[e] + j))
    for e in range(2):
        for j in range(12): a("v_cvt_pk_bf16_f32 v%d, v%d, v%d" % (PA[e] + j, TT[e] + j, TT[e] + j))
        for j in range(12): a("v_and_b32 v%d, v%d, v%d" % (PA[e] + j, vPM, PA[e] + j))
    for e in range(2):
        a("v_add_f32 v%d, v%d, v%d" % (MX[e], TT[e], TT[e] + 1))
        for j in range(2, 12): a("v_add_f32 v%d, v%d, v%d" % (MX[e], MX[e], TT[e] + j))
        a("v_mov_b32 v%d, v%d" % (MX[e] + 1, MX[e]))
        for g in range(3):
            a("%s %s, %s, %s, %s" % (MF32, vr(SC[e], 16), vr(AV + 4 * g, 4), vr(PA[e] + 4 * g, 4), "0" if g == 0 else vr(SC[e], 16)))
    for e in range(2): a("v_permlane32_swap_b32 v%d, v%d" % (MX[e], MX[e] + 1))
    for e in range(2): a("v_add_f32 v%d, v%d, v%d" % (MX[e], MX[e], MX[e] + 1))
    for e in range(2): a("v_rcp_f32 v%d, v%d" % (MX[e], MX[e]))
    a("s_nop 0")
    for e in range(2): a("v_mul_f32 v%d, v%d, v%d" % (MX[e], MX[e], vGA))
    a("s_mul_i32 s%d, s%d, %d\ns_lshl_b32 s%d, s%d, 11\ns_add_u32 s%d, s%d, s%d\ns_add_u32 s%d, s%d, 0x%x" % (sT0, sRA, CROW, sT1, sHP, sT0, sT0, sT1, sT0, sT0, OFF_C + 256 * 1024))
    a("s_nop 1")
    for e in range(2):
        src = SC[e] + 8 * e
        for j in range(8): a("v_mul_f32 v%d, v%d, v%d" % (src + j, MX[e], src + j))
        for j in range(4): a("v_cvt_pk_bf16_f32 v%d, v%d, v%d" % (PA[e] + j, src + 2 * j, src + 2 * j + 1))
        a("buffer_store_dwordx4 %s, v%d, s[%d:%d], s%d offen offset:%d" % (vr(PA[e], 4), vK, SV, SV + 3, sT0, e * 1024))
    a("v_sub_f32 v%d, 1.0, v%d\nv_sub_f32 v%d, 1.0, v%d\nv_mov_b32 v%d, 0\nv_mov_b32 v%d, 0" % (vGL, vGL, vGS, vGS, vL[0], vL[1]))

    def kfrag(p, idx):
        return ("K", p * 32768 + idx * 1024)
    def vfrag(p, g, db):
        return ("V", p * 32768 + (g // 2) * 8192 + db * 2048 + (g % 2) * 1024)
    def rd(slot, fr):
        return "ds_read_b128 %s, v%d offset:%d" % (ar(FR + 4 * (slot % NFR), 4), vK if fr[0] == "K" else vV, fr[1])
    def mf_list(p, pv, qk, c0=None):
        L = []
        Pp = P[1 - p]; Sn = S[1 - p]
        if pv == 1:
            for g in range(4):
                for db in range(4):
                    L.append((vfrag(1 - p, g, db), ["%s %s, {F}, %s, %s" % (MF32, ar(O + rb * 64 + db * 16, 16), vr(Pp + rb * 16 + g * 4, 4), ar(O + rb * 64 + db * 16, 16)) for rb in range(2)]))
        elif pv == 2:
            for g in range(8):
                for db in range(4):
                    L.append((vfrag(1 - p, g, db), ["%s %s, {F}, %s, %s" % (MF32, ar(O + db * 16, 16), vr(Pp + g * 4, 4), ar(O + db * 16, 16))]))
        if qk == 1:
            for kb in range(2):
                for s in range(8):
                    ms_ = []
                    for rb in range(2):
                        d = vr(Sn + rb * 32 + kb * 16, 16)
                        c = d if s else (c0 if c0 is not None else vr(NM + rb * 16, 16))
                        ms_.append("%s %s, {F}, %s, %s" % (MF32, d, ar(Q + rb * 32 + s * 4, 4), c))
                    L.append((kfrag(1 - p, kb * 8 + s), ms_))
        elif qk == 2:
            for kb in range(4):
                for s in range(8):
                    d = vr(Sn + kb * 16, 16)
                    L.append((kfrag(1 - p, kb * 8 + s), ["%s %s, {F}, %s, %s" % (MF32, d, ar(Q + s * 4, 4), d if s else vr(NM, 16))]))
        return L
    def sm_list(p, sm):
        Sc, Pc = S[p], P[p]
        order = [0, 2, 1, 3] if sm == 1 else [0, 1, 2, 3]
        els = [b * 16 + j for b in order for j in range(16)]
        V = []
        first = {0: True, 1: True}
        def tail(n):
            e = els[n]; u = TM + (n % 8); lt = vLT[e // 32]
            out = []
            if first[e // 32]:
                out.append((4, "v_add_f32 v%d, v%d, v%d" % (lt, u, u + 1))); first[e // 32] = False
            else:
                out.append((4, "v_add_f32 v%d, v%d, v%d" % (lt, lt, u)))
                out.append((4, "v_add_f32 v%d, v%d, v%d" % (lt, lt, u + 1)))
            out.append((4, "v_cvt_pk_bf16_f32 v%d, v%d, v%d" % (Pc + e // 2, u, u + 1)))
            return out
        for n in range(0, 64, 2):
            tl = tail(n - 2) if n >= 2 else []
            V.append((8, "v_exp_f32 v%d, v%d" % (TM + n % 8, Sc + els[n])))
            V += tl[:1]
            V.append((8, "v_exp_f32 v%d, v%d" % (TM + n % 8 + 1, Sc + els[n + 1])))
            V += tl[1:]
        V += tail(62)
        return V
    rare_blocks = []
    def step(p, pv, sm, qk, dK, dV, pre_in=True, pre_out=True, c0=None, extra_end=None, advK=True):
        L = mf_list(p, pv, qk, c0)
        nf = len(L)
        nxt = [vfrag(p, g, db) for g in range(2) for db in range(4)][:PD]
        M = [(f, t) for f, (fr, ts) in enumerate(L) for t in ts]
        nm = len(M)
        fill = [[] for _ in range(nm)]
        G = []
        if dV: G += dma("V", dV, p) + [adv("V", dV)]
        if dK: G += dma("K", dK, p) + ([adv("K", dK)] if advK else [])
        lim = max(len(G), (nm * 5) // 8)
        dslots = spread(len(G), 1, min(nm, lim + 1)) if G else []
        cost = [0] * nm
        for g, m in zip(G, dslots):
            fill[m] += g; cost[m] += 4 * len(g)
        firstm = {}
        for m, (f, t) in enumerate(M): firstm.setdefault(f, m)
        for f in range(nf): cost[firstm[f]] += 8
        V = sm_list(p, sm) if sm else []
        if V:
            V.append((4, "v_max_f32 v%d, v%d, v%d" % (vX, vLT[0], vLT[1])))
            V.append((4, "v_cmp_lt_f32 vcc, s%d, v%d" % (sTH, vX)))
            last = nm - 2
            tot = sum(c for c, _ in V) + sum(cost[:last])
            acc = 0; vi = 0
            for m in range(last):
                acc += cost[m]
                tgt = tot * (m + 1) / last
                while vi < len(V) and (acc + V[vi][0] / 2 <= tgt or m == last - 1):
                    fill[m].append(V[vi][1]); acc += V[vi][0]; vi += 1
        if not pre_in:
            for f in range(PD): a(rd(f, L[f][0]))
        barf = nf + 1 - PD
        for m, (f, t) in enumerate(M):
            if firstm[f] == m:
                if f == barf and pre_out:
                    a("s_waitcnt vmcnt(0) lgkmcnt(0)\ns_barrier")
                elif f < barf or not pre_out:
                    a("s_waitcnt lgkmcnt(%d)" % (min(f + PD - 1, nf - 1) - f))
            a(t.replace("{F}", ar(FR + 4 * (f % NFR), 4)))
            if firstm[f] == m:
                if f + PD < nf: a(rd(f + PD, L[f + PD][0]))
                elif pre_out and f == barf:
                    a(rd(nf, nxt[0])); a(rd(nf + 1, nxt[1]))
                elif pre_out and f > barf: a(rd(f + PD, nxt[f + PD - nf]))
            for x in fill[m]: a(x)
        assert nf % NFR == 0
        if sm:
            lr = a.label("rare"); lb = a.label("back")
            a("s_cbranch_vccnz %s\n%s:" % (lr, lb))
            rare_blocks.append((lr, lb, p, sm, qk))
            if sm == 1: a("v_add_f32 v%d, v%d, v%d\nv_add_f32 v%d, v%d, v%d" % (vL[0], vL[0], vLT[0], vL[1], vL[1], vLT[1]))
            else: a("v_add_f32 v%d, v%d, v%d\nv_add_f32 v%d, v%d, v%d" % (vL[0], vL[0], vLT[0], vL[0], vL[0], vLT[1]))
    def rowmax(dst, regs_):
        a("v_max3_f32 v%d, v%d, v%d, v%d" % (dst, regs_[0], regs_[1], regs_[2]))
        j = 3
        while j + 1 < len(regs_):
            a("v_max3_f32 v%d, v%d, v%d, v%d" % (dst, dst, regs_[j], regs_[j + 1])); j += 2
        if j < len(regs_): a("v_max_f32 v%d, v%d, v%d" % (dst, dst, regs_[j]))
        a("v_mov_b32 v%d, v%d\ns_nop 1\nv_permlane32_swap_b32 v%d, v%d\nv_max_f32 v%d, v%d, v%d" % (dst + 1, dst, dst, dst + 1, dst, dst, dst + 1))
    def mask(base, nblk, kb0):
        a("s_nop 7\ns_nop 3")
        for j in range(nblk):
            lf = a.label("mfull"); le = a.label("mend")
            kb = kb0 + j; r0 = base + 16 * j
            a("s_cmp_gt_u32 s%d, %d\ns_cbranch_scc1 %s" % (sWV, kb, le))
            if kb > 0: a("s_cmp_lt_u32 s%d, %d\ns_cbranch_scc1 %s" % (sWV, kb, lf))
            rr = list(range(16))
            for c in range(0, 16, 3):
                grp = rr[c:c + 3]
                for q, r in enumerate(grp): a("v_cmp_gt_i32 s[%d:%d], %d, v%d" % (ms[q], ms[q] + 1, 8 * (r // 4) + r % 4, vU))
                if len(grp) < 3: a("s_nop 1")
                for q, r in enumerate(grp): a("v_cndmask_b32 v%d, v%d, v%d, s[%d:%d]" % (r0 + r, r0 + r, vNEG, ms[q], ms[q] + 1))
            if kb > 0:
                a("s_branch %s\n%s:" % (le, lf))
                for r in range(16): a("v_mov_b32 v%d, v%d" % (r0 + r, vNEG))
            a(le + ":")

    a("s_waitcnt vmcnt(6)\ns_barrier")
    step(1, 0, 0, 1, 0, 0, pre_in=False, pre_out=False, c0="0")
    l0 = a.label("nomask0")
    a("s_cmp_lg_u32 s%d, 0\ns_cbranch_scc1 %s" % (sI, l0))
    mask(S[0] + 32, 2, 0)
    a(l0 + ":")
    a("s_nop 7\ns_nop 3")
    for rb in range(2):
        rowmax(vX + 2 * rb, [S[0] + rb * 32 + j for j in range(32)])
    for rb in range(2):
        for j in range(16): a("v_sub_f32 v%d, 0, v%d" % (NM + rb * 16 + j, vX + 2 * rb))
    for rb in range(2):
        for j in range(32): a("v_sub_f32 v%d, v%d, v%d" % (S[0] + rb * 32 + j, S[0] + rb * 32 + j, vX + 2 * rb))
    a("s_waitcnt vmcnt(0)\ns_barrier")
    step(0, 0, 1, 1, 2, 1, pre_in=False, advK=False)
    a("s_cmp_eq_u32 s%d, 0\ns_cselect_b32 s%d, 0x8000, 0x4000" % (sI, sT0) if False else "s_cmp_eq_u32 s%d, 0\ns_cselect_b32 s%d, 2, 1\ns_lshl_b32 s%d, s%d, 14\ns_add_u32 s%d, s%d, s%d" % (sI, sT0, sT0, sT0, sKO, sKO, sT0))
    lT0, lT1, lT2b, lL1, lL2, lT16, lE = [a.label(x) for x in ("T0", "T1", "T2b", "L1", "L2", "T16", "E17")]
    a("s_cmp_eq_u32 s%d, 0\ns_cbranch_scc1 %s" % (sI, lT1))
    a("s_mov_b32 s%d, s%d" % (sT, sI))
    a(".p2align 6\n" + lL1 + ":")
    step(1, 1, 1, 1, 1, 1)
    a("s_sub_u32 s%d, s%d, 1\ns_cmp_eq_u32 s%d, 0\ns_cbranch_scc1 %s" % (sT, sT, sT, lT0))
    step(0, 1, 1, 1, 1, 1)
    a("s_branch %s" % lL1)
    a(lT0 + ":")
    mask(S[0] + 32, 2, 0)
    step(0, 1, 1, 1, 2, 1)
    a(lT1 + ":")
    a("s_cmp_eq_u32 s%d, 7\ns_cselect_b32 s%d, 0, s%d" % (sI, SK + 2, SK + 2))
    mask(S[1] + 32, 2, 2)
    step(1, 1, 1, 2, 2, 1)
    a("s_cmp_eq_u32 s%d, 7\ns_cbranch_scc1 %s" % (sI, lT2b))
    step(0, 1, 2, 2, 2, 2)
    a("s_sub_u32 s%d, 7, s%d" % (sT, sI))
    a(".p2align 6\n" + lL2 + ":")
    a("s_cmp_eq_u32 s%d, 1\ns_cselect_b32 s%d, 0, s%d" % (sT, SK + 2, SK + 2))
    step(1, 2, 2, 2, 2, 2)
    a("s_sub_u32 s%d, s%d, 1\ns_cmp_eq_u32 s%d, 0\ns_cbranch_scc1 %s" % (sT, sT, sT, lT16))
    step(0, 2, 2, 2, 2, 2)
    a("s_branch %s" % lL2)
    a(lT2b + ":")
    mask(S[0], 4, 0)
    step(0, 1, 2, 0, 0, 2)
    a("s_branch %s" % lE)
    a(lT16 + ":")
    mask(S[0], 4, 0)
    step(0, 2, 2, 0, 0, 2)
    a(lE + ":")
    step(1, 2, 0, 0, 0, 0, pre_out=False)
    for rb in (1, 0):
        l = vL[rb]; g = (vGL, vGS)[rb]; blk = (sQL, sQS)[rb]
        a("v_mov_b32 v%d, v%d\ns_nop 1\nv_permlane32_swap_b32 v%d, v%d\nv_add_f32 v%d, v%d, v%d\nv_rcp_f32 v%d, v%d\ns_nop 0\nv_mul_f32 v%d, v%d, v%d" % (vX, l, l, vX, l, l, vX, l, l, l, l, g))
        a("s_mul_i32 s%d, s%d, %d\ns_lshl_b32 s%d, s%d, 13\ns_add_u32 s%d, s%d, s%d\ns_add_u32 s%d, s%d, 0x%x" % (sT0, blk, CROW, sT1, sHD, sT0, sT0, sT1, sT0, sT0, OFF_C))
        for c in range(8):
            t = 16 + rb * 64 + c * 8; pk = 144 + rb * 32 + c * 4
            for j in range(8): a("v_accvgpr_read_b32 v%d, a%d" % (t + j, O + rb * 64 + c * 8 + j))
            for j in range(8): a("v_mul_f32 v%d, v%d, v%d" % (t + j, l, t + j))
            for j in range(4): a("v_cvt_pk_bf16_f32 v%d, v%d, v%d" % (pk + j, t + 2 * j, t + 2 * j + 1))
            if c == 4: a("s_add_u32 s%d, s%d, 4096" % (sT0, sT0))
            a("buffer_store_dwordx4 %s, v%d, s[%d:%d], s%d offen offset:%d" % (vr(pk, 4), vK, SV, SV + 3, sT0, (c % 4) * 1024))
    a(done + ":\ns_endpgm")
    for (lr, lb, p, sm, qk) in rare_blocks:
        a(lr + ":")
        a("s_nop 7\ns_nop 7")
        Sc, Sn = S[p], S[1 - p]
        for rb in range(2 if sm == 1 else 1):
            cur = [Sc + rb * 32 + j for j in range(32)] if sm == 1 else [Sc + j for j in range(64)]
            d, f = vX, vX + 2
            rowmax(d, cur)
            a("v_max_f32 v%d, 0, v%d\nv_exp_f32 v%d, -v%d" % (d, d, f, d))
            for r in cur: a("v_sub_f32 v%d, v%d, v%d" % (r, r, d))
            for j in range(16): a("v_sub_f32 v%d, v%d, v%d" % (NM + rb * 16 + j, NM + rb * 16 + j, d))
            nx = []
            if qk == 1: nx = [Sn + rb * 32 + j for j in range(32)]
            elif qk == 2 and rb == 0: nx = [Sn + j for j in range(64)]
            for r in nx: a("v_sub_f32 v%d, v%d, v%d" % (r, r, d))
            a("v_mul_f32 v%d, v%d, v%d" % (vL[rb], vL[rb], f))
            for j in range(0, 64, 4):
                for q in range(4): a("v_accvgpr_read_b32 v%d, a%d" % (TM + q, O + rb * 64 + j + q))
                for q in range(4): a("v_mul_f32 v%d, v%d, v%d" % (TM + q, TM + q, f))
                for q in range(4): a("v_accvgpr_write_b32 a%d, v%d" % (O + rb * 64 + j + q, TM + q))
        for c, x in sm_list(p, sm): a(x)
        a("s_branch %s" % lb)
    a.add_kernel(name, 512, 64, 256)
    a.launch(name, 256, 256, 131072)
```

```python
from gen_common import *

def gen_p3(a, name="p3_kernel", DEPTH=4):
    a.begin_kernel(name)
    done = a.label("p3done")
    SC_, SW, SW2, SO = 12, 16, 20, 24
    sWV, sRB, sCB, sT0, sT1, sAO, sAO2, sWO, sLB = 28, 29, 30, 31, 32, 33, 34, 35, 36
    vL16, vWO, vT = 1, 2, (3, 4)
    ACC = 16
    AF = 80
    WF = AF + 8 * DEPTH
    NJ = 36
    a("s_cmp_ge_u32 s2, 256\ns_cbranch_scc1 %s" % done)
    a("s_load_dwordx2 s[4:5], s[0:1], 96\ns_load_dwordx2 s[6:7], s[0:1], 64\ns_load_dwordx2 s[8:9], s[0:1], 16\ns_load_dwordx2 s[10:11], s[0:1], 80")
    a("v_lshrrev_b32 v10, 6, v0\nv_and_b32 v0, 63, v0\nv_readfirstlane_b32 s%d, v10" % sWV)
    a("s_and_b32 s%d, s2, 7\ns_lshl_b32 s%d, s%d, 2\ns_lshr_b32 s%d, s2, 6\ns_add_u32 s%d, s%d, s%d" % (sRB, sRB, sRB, sT0, sRB, sRB, sT0))
    a("s_lshr_b32 s%d, s2, 3\ns_and_b32 s%d, s%d, 7" % (sCB, sCB, sCB))
    a("v_lshlrev_b32 v%d, 4, v0" % vL16)
    a("v_lshrrev_b32 v10, 4, v0\nv_and_b32 v10, 1, v10\nv_lshlrev_b32 v10, 2, v10\nv_and_b32 v11, 7, v0\nv_xor_b32 v10, v10, v11\nv_lshlrev_b32 v10, 4, v10")
    a("v_lshrrev_b32 v11, 3, v0\nv_lshl_add_u32 v%d, v11, 10, v10" % vWO)
    a("v_lshrrev_b32 v14, 2, v0\nv_and_b32 v14, 3, v14")
    a("v_lshrrev_b32 v15, 5, v0\nv_lshl_add_u32 v15, v15, 2, v14\nv_lshlrev_b32 v15, 7, v15")
    a("v_lshrrev_b32 v12, 4, v0\nv_and_b32 v12, 1, v12\nv_lshlrev_b32 v12, 1, v12")
    a("v_lshrrev_b32 v13, 1, v0\nv_and_b32 v13, 1, v13\nv_add_u32 v12, v12, v13")
    a("v_lshrrev_b32 v13, 1, v14\nv_lshlrev_b32 v13, 2, v13\nv_xor_b32 v12, v12, v13")
    a("v_lshl_add_u32 v15, v12, 4, v15\nv_and_b32 v13, 1, v0\nv_lshl_add_u32 v15, v13, 3, v15")
    a("s_lshl_b32 s%d, s%d, 14" % (sLB, sWV))
    a("v_add_u32 v%d, s%d, v15\nv_xor_b32 v%d, 64, v%d" % (vT[0], sLB, vT[1], vT[0]))
    a("s_mul_i32 s%d, s%d, %d\ns_lshl_b32 s%d, s%d, 10\ns_add_u32 s%d, s%d, s%d\ns_add_u32 s%d, s%d, 0x%x\ns_add_u32 s%d, s%d, %d" % (sAO, sRB, 2 * CROW, sT0, sWV, sAO, sAO, sT0, sAO, sAO, OFF_C, sAO2, sAO, CROW))
    a("s_lshl_b32 s%d, s%d, 14\ns_lshl_b32 s%d, s%d, 7\ns_add_u32 s%d, s%d, s%d" % (sWO, sWV, sT0, sCB, sWO, sWO, sT0))
    a("s_waitcnt lgkmcnt(0)")
    srd(a, SC_, 4, WS_SIZE); srd(a, SW, 6, 4096 * 1024); srd(a, SW2, 8, 512 * 1024); srd(a, SO, 10, 2048 * 1024)
    NSL = DEPTH + 1
    def issue(j):
        sl = j % DEPTH
        a("buffer_load_dwordx4 %s, v%d, s[%d:%d], s%d offen" % (vr(AF + 8 * sl, 4), vL16, SC_, SC_ + 3, sAO))
        a("buffer_load_dwordx4 %s, v%d, s[%d:%d], s%d offen" % (vr(AF + 8 * sl + 4, 4), vL16, SC_, SC_ + 3, sAO2))
        w = SW if j < 32 else SW2
        woff = (j if j < 32 else j - 32) * 8 * 16384
        ls = (j % NSL) * 2048
        a("s_add_u32 m0, s%d, %d\ns_add_u32 s%d, s%d, %d" % (sLB, ls, sT0, sWO, woff))
        a("buffer_load_dwordx4 v%d, s[%d:%d], s%d offen lds" % (vWO, w, w + 3, sT0))
        a("s_add_u32 m0, s%d, %d\ns_add_u32 s%d, s%d, %d" % (sLB, ls + 1024, sT0, sWO, woff + 8192))
        a("buffer_load_dwordx4 v%d, s[%d:%d], s%d offen lds" % (vWO, w, w + 3, sT0))
        a("s_add_u32 s%d, s%d, 8192\ns_add_u32 s%d, s%d, 8192" % (sAO, sAO, sAO2, sAO2))
    for j in range(DEPTH): issue(j)
    for j in range(NJ):
        a("s_waitcnt vmcnt(%d)" % (4 * min(DEPTH - 1, NJ - 1 - j)))
        wf = WF + 8 * (j % 2); ls = (j % NSL) * 2048
        for cb in range(2):
            a("ds_read_b64_tr_b16 %s, v%d offset:%d" % (vr(wf + 4 * cb, 2), vT[cb], ls))
            a("ds_read_b64_tr_b16 %s, v%d offset:%d" % (vr(wf + 4 * cb + 2, 2), vT[cb], ls + 1024))
        for cb in range(2):
            a("s_waitcnt lgkmcnt(%d)" % (2 - 2 * cb))
            for rb in range(2):
                acc = vr(ACC + (cb * 2 + rb) * 16, 16)
                a("%s %s, %s, %s, %s" % (MF32, acc, vr(wf + 4 * cb, 4), vr(AF + 8 * (j % DEPTH) + 4 * rb, 4), "0" if j == 0 else acc))
        if j + DEPTH < NJ: issue(j + DEPTH)
    a("s_nop 7\ns_nop 3")
    a("v_add_u32 v10, s%d, v%d" % (sLB, vL16))
    for q in range(16):
        a("ds_write_b128 v10, %s offset:%d" % (vr(ACC + 4 * q, 4), q * 1024))
    a("v_lshrrev_b32 v11, 3, v0\ns_lshl_b32 s%d, s%d, 3\nv_add_u32 v11, s%d, v11" % (sT0, sWV, sT0))
    a("v_and_b32 v12, 7, v0\nv_lshrrev_b32 v13, 2, v12\nv_lshlrev_b32 v13, 13, v13\nv_and_b32 v14, 3, v12\nv_lshl_add_u32 v13, v14, 10, v13")
    a("v_lshrrev_b32 v14, 5, v11\nv_lshl_add_u32 v13, v14, 12, v13\nv_and_b32 v14, 31, v11\nv_lshl_add_u32 v13, v14, 4, v13\nv_add_u32 v14, 0x10000, v13")
    a("v_lshlrev_b32 v11, 10, v11\nv_lshl_add_u32 v11, v12, 4, v11\ns_lshl_b32 s%d, s%d, 16\ns_lshl_b32 s%d, s%d, 7\ns_add_u32 s%d, s%d, s%d" % (sT0, sRB, sT1, sCB, sT0, sT0, sT1))
    a("s_waitcnt lgkmcnt(0)\ns_barrier")
    for w in range(8):
        for h in range(2):
            a("ds_read_b128 %s, v%d offset:%d" % (vr(16 + w * 8 + h * 4, 4), 13 if w < 4 else 14, (w % 4) * 16384 + h * 512))
    for w in range(1, 8):
        a("s_waitcnt lgkmcnt(%d)" % (14 - 2 * w))
        for j in range(8): a("v_add_f32 v%d, v%d, v%d" % (16 + j, 16 + j, 16 + w * 8 + j))
    for j in range(4): a("v_cvt_pk_bf16_f32 v%d, v%d, v%d" % (24 + j, 16 + 2 * j, 17 + 2 * j))
    a("buffer_store_dwordx4 v[24:27], v11, s[%d:%d], s%d offen" % (SO, SO + 3, sT0))
    a(done + ":\ns_endpgm")
    nv = WF + 16
    nv = (nv + 7) // 8 * 8
    a.add_kernel(name, nv, 48, nv)
    a.launch(name, 256, 512, 131072)
```

```python
import re, sys
def regs(tok):
    tok = tok.strip()
    tok = re.sub(r'^-|^abs\(|\)$|\|', '', tok)
    m = re.fullmatch(r'([vas])\[(\d+):(\d+)\]', tok)
    if m: return {(m.group(1), i) for i in range(int(m.group(2)), int(m.group(3)) + 1)}
    m = re.fullmatch(r'([vas])(\d+)', tok)
    if m: return {(m.group(1), int(m.group(2)))}
    if tok == 'vcc': return {('s', 106), ('s', 107)}
    if tok == 'exec': return {('s', 126), ('s', 127)}
    if tok == 'm0': return {('s', 124)}
    return set()
TRANS = ('v_exp_f32', 'v_log_f32', 'v_rcp_f32', 'v_rsq_f32', 'v_sqrt_f32')
class I: pass
def parse(line):
    line = line.split(';')[0].strip()
    if not line or line.startswith('.') or line.endswith(':'): return None
    p = line.split(None, 1)
    op = p[0]; ops = [x.strip() for x in re.sub(r' op_sel.*', '', p[1]).split(',')] if len(p) > 1 else []
    if ops:
        last = ops[-1].split()
        mods = last[1:]; ops[-1] = last[0]
    else: mods = []
    i = I(); i.op = op; i.text = line; i.w = set(); i.r = set(); i.kind = 'other'; i.states = 1
    i.srcC = set(); i.srcAB = set(); i.passes = 0; i.sdata = set()
    op0 = re.sub(r'_e(32|64)$', '', op)
    if op == 's_nop': i.states = int(ops[0], 0) + 1; i.kind = 'nop'
    elif op.startswith('v_mfma'):
        i.kind = 'mfma'; i.w = regs(ops[0]); i.srcAB = regs(ops[1]) | regs(ops[2]); i.srcC = regs(ops[3]); i.r = i.srcAB | i.srcC
        i.passes = 8 if '32x32x16' in op else 4
    elif op.startswith('v_'):
        i.kind = 'valu'
        if op0.startswith('v_cmp'):
            i.w = regs(ops[0]); i.r = set().union(*[regs(x) for x in ops[1:]])
        elif op0.startswith('v_permlane') and 'swap' in op0:
            i.w = regs(ops[0]) | regs(ops[1]); i.r = set(i.w); i.kind = 'perm'
        elif op0 in ('v_readfirstlane_b32', 'v_readlane_b32'):
            i.w = regs(ops[0]); i.r = regs(ops[1]); i.kind = 'rdlane'
        else:
            i.w = regs(ops[0]); i.r = set().union(*[regs(x) for x in ops[1:]]) if len(ops) > 1 else set()
            if op0 in ('v_fmac_f32', 'v_dot2c_f32_bf16', 'v_pk_fmac_f16'): i.r |= i.w
            if op0 in TRANS: i.kind = 'trans'
    elif op.startswith('buffer_') or op.startswith('global_'):
        i.kind = 'vmem'
        if 'lds' in mods:
            i.r = set().union(*[regs(x) for x in ops]) | {('s', 124)}; i.lds = True
        elif 'load' in op:
            i.w = regs(ops[0]); i.r = set().union(*[regs(x) for x in ops[1:]])
        else:
            i.r = set().union(*[regs(x) for x in ops])
            if 'x4' in op or 'x3' in op: i.sdata = regs(ops[0]) if op.startswith('buffer_') else regs(ops[1])
    elif op.startswith('ds_'):
        i.kind = 'ds'
        if 'read' in op or 'permute' in op or 'swizzle' in op:
            i.w = regs(ops[0]); i.r = set().union(*[regs(x) for x in ops[1:]])
        else: i.r = set().union(*[regs(x) for x in ops])
    elif op.startswith('s_'):
        i.kind = 'salu'
        if op.startswith('s_cmp') or op.startswith('s_cbranch') or op in ('s_branch', 's_waitcnt', 's_barrier', 's_endpgm', 's_setprio', 's_bitcmp1_b32', 's_bitcmp0_b32', 's_sleep'):
            i.r = set().union(*[regs(x) for x in ops]) if ops else set()
        else:
            i.w = regs(ops[0]); i.r = set().union(*[regs(x) for x in ops[1:]]) if len(ops) > 1 else set()
            if 'saveexec' in op: i.w |= regs('exec')
    return i
VAL = ('valu', 'trans', 'perm', 'rdlane')
def need(p, c):
    n = 0
    if p.kind == 'mfma':
        big = 12 if p.passes == 8 else 8
        ovl = 10 if p.passes == 8 else 6
        if c.kind == 'mfma':
            if p.w & c.srcAB: n = max(n, big)
            if p.w & c.srcC:
                if not (p.w == c.srcC and p.passes == c.passes): n = max(n, ovl)
            elif p.w & c.w: n = max(n, ovl)
        elif c.kind in VAL or c.kind in ('vmem', 'ds'):
            if p.w & (c.r | c.w): n = max(n, big)
        if c.kind in VAL and (p.srcC & c.w): n = max(n, 7 if p.passes == 8 else 3)
    if p.kind in VAL:
        vw = {x for x in p.w if x[0] != 's'}; sw = {x for x in p.w if x[0] == 's'}
        if c.kind == 'mfma' and vw & c.r: n = max(n, 2)
        if c.kind == 'perm' and vw & c.r: n = max(n, 2)
        if c.kind == 'rdlane' and vw & c.r: n = max(n, 1)
        if p.kind == 'trans' and c.kind in ('valu', 'perm', 'rdlane') and vw & c.r: n = max(n, 1)
        if c.kind in VAL and sw & c.r: n = max(n, 2)
        if c.kind == 'vmem' and sw & c.r: n = max(n, 5)
    if p.kind == 'salu' and ('s', 124) in p.w and c.kind == 'vmem' and ('s', 124) in c.r: n = max(n, 1)
    if p.kind == 'vmem' and p.sdata and (p.sdata & c.w): n = max(n, 2 if c.kind in VAL else 1)
    return n
def check(lines, verbose=True):
    ins = []; labels = {}
    for ln in lines:
        s = ln.split(';')[0].strip()
        if s.endswith(':') and not s.startswith('.'): labels[s[:-1]] = len(ins); continue
        i = parse(ln)
        if i: ins.append(i)
    bad = 0
    def succ(k):
        i = ins[k]
        if i.op == 's_endpgm': return []
        t = i.text.split()
        if i.op == 's_branch': return [labels[t[1]]]
        if i.op.startswith('s_cbranch'): return [k + 1, labels[t[1]]]
        return [k + 1]
    for k, p in enumerate(ins):
        if p.kind in ('nop', 'other'): continue
        stack = [(n, 0) for n in succ(k)]; seen = {}
        while stack:
            j, d = stack.pop()
            if j >= len(ins) or d >= 12: continue
            if seen.get(j, 99) <= d: continue
            seen[j] = d
            c = ins[j]
            n = need(p, c)
            if n > d:
                bad += 1
                if verbose and bad < 40: print("HAZARD need %d have %d:\n   %s\n   %s" % (n, d, p.text, c.text))
            for s2 in succ(j): stack.append((s2, d + c.states))
    return bad
if __name__ == '__main__':
    print("hazards:", check(open(sys.argv[1]).read().split('\n')))
```

```python
import sys
from gen_common import *
from gen_p1 import gen_p1
import hazard
def build(which=("p1", "p2", "p3"), out="gated_mix__sliding_local_dilated__compressed_kv_cla__prompt.s", **kw):
    a = Asm()
    if "p1" in which: gen_p1(a)
    if "p2" in which:
        from gen_p2 import gen_p2
        gen_p2(a)
    if "p3" in which:
        from gen_p3 import gen_p3
        gen_p3(a)
    ref = open("gated_mix__sliding_local_dilated__compressed_kv_cla__prompt.s.ref").read().split("\n")
    hdr = [l for l in ref if l.startswith(";") and "@launch" not in l][:14]
    txt = a.text(header="\n".join(hdr))
    open(out, "w").write(txt)
    print("hazards:", hazard.check(txt.split("\n")), "bytes:", len(txt))
if __name__ == "__main__":
    which = sys.argv[1].split(",") if len(sys.argv) > 1 else ("p1", "p2", "p3")
    out = sys.argv[2] if len(sys.argv) > 2 else "gated_mix__sliding_local_dilated__compressed_kv_cla__prompt.s"
    build(which, out)
```

```python
from asmlib import *
import math, struct
LOG2E = 1.4426950408889634
def fbits(x): return "0x%08x" % struct.unpack("<I", struct.pack("<f", x))[0]
WS_SIZE = 0x10000000
PH = 524288
OFF_A = 0
OFF_Q = 12 * PH
OFF_K = 44 * PH
OFF_V = 76 * PH
OFF_G = 108 * PH
OFF_C = 112 * PH
CROW = 288 * 1024
OFF_DUMMY = 160 * PH
MF32 = "v_mfma_f32_32x32x16_bf16"
def srd(a, d, b, size):
    a("s_mov_b32 s%d, s%d\ns_mov_b32 s%d, s%d\ns_mov_b32 s%d, 0x%x\ns_mov_b32 s%d, 0x20000" % (d, b, d + 1, b + 1, d + 2, size, d + 3))
def spread(n_items, lo, hi):
    return [lo + (k * (hi - lo)) // n_items for k in range(n_items)]

OFF_TS = 200 * PH
class TS:
    def __init__(self, a, on, kidx, base=64):
        self.a, self.on, self.k, self.base, self.n = a, on, kidx, base, 0
    def stamp(self, idx):
        if not self.on: return
        b = self.base + 4 * idx
        assert b + 3 < 100
        self.n = max(self.n, idx + 1)
        self.a("s_memtime s[%d:%d]\ns_memrealtime s[%d:%d]" % (b, b + 1, b + 2, b + 3))
    def dump(self, srd_, swave, nw):
        if not self.on: return
        a = self.a
        a("s_waitcnt vmcnt(0) lgkmcnt(0)")
        self.stamp(self.n)
        a("s_waitcnt lgkmcnt(0)")
        a("s_mul_i32 s62, s2, %d\ns_add_u32 s62, s62, s%d\ns_lshl_b32 s62, s62, 7\ns_add_u32 s62, s62, 0x%x" % (nw, swave, OFF_TS + self.k * 0x80000))
        a("v_mov_b32 v1, 0\ns_mov_b64 exec, 1")
        for i in range(self.n):
            b = self.base + 4 * i
            a("v_mov_b32 v2, s%d\nv_mov_b32 v3, s%d\nbuffer_store_dwordx2 v[2:3], v1, s[%d:%d], s62 offen offset:%d\ns_waitcnt vmcnt(0)" % (b, b + 2, srd_, srd_ + 3, 8 * i))
OFF_W = 150 * PH
WROW = 288 * 2048
OFF_X = 170 * PH
OFF_FL = 198 * PH
```

```python
from gen_common import *

pX, pWQKV, pWO, pC, pWQ, pWUK, pWUV, pBWO, pGATE, pDBG, pWS = 36, 38, 40, 44, 46, 48, 50, 52, 54, 58, 60
LDS_G = 131072

def emit(a, M, groups, lo=0, hi=None, pre=None):
    n = len(M)
    fill = [[] for _ in range(n)]
    for (G, l, h) in groups:
        if not G: continue
        for g, m in zip(G, spread(len(G), l, min(h, n))):
            fill[m] += g if isinstance(g, list) else [g]
    for m in range(n):
        a(M[m])
        for x in fill[m]: a(x)

def gen_gemm(a, T, fused, stflag="", PF=0, NDC=5, qnostore=False, qnodma=False, qnodrain=False):
    sWV = 3
    SA, SW, SX, SO = 4, 8, 12, 16
    sH, sI, sT0, sT1, sT2 = 20, 21, 22, 23, 24
    sAS, sAS2, sWS, sXS, sAM, sWM, sXM, sCNT, sOK, sDS, sSC = 25, 26, 27, 28, 29, 30, 31, 32, 33, 34, 35
    sQL, sQS, sU, sOA = 90, 91, 92, 93
    vL16, vAO, vWO, vXO = 1, (2, 3), 4, 5
    vAR, vWR, vXR = (6, 7, 8, 9), (10, 11, 12, 13), (14, 15)
    FS = (16, 48)
    TT, PK = (80, 88), 96
    QA = 128
    a("s_load_dwordx16 s[36:51], s[0:1], 0\ns_load_dwordx8 s[52:59], s[0:1], 64\ns_load_dwordx2 s[60:61], s[0:1], 96")
    a("v_lshrrev_b32 v16, 6, v0\nv_and_b32 v0, 63, v0\nv_readfirstlane_b32 s%d, v16" % sWV)
    a("s_and_b32 s%d, s2, 7\ns_lshl_b32 s%d, s%d, 2\ns_lshr_b32 s%d, s2, 3\ns_and_b32 s%d, s%d, 3\ns_add_u32 s%d, s%d, s%d" % (sH, sH, sH, sT0, sT0, sT0, sH, sH, sT0))
    a("s_lshr_b32 s%d, s2, 5" % sI)
    a("v_lshlrev_b32 v%d, 4, v0" % vL16)
    a("v_lshrrev_b32 v16, 3, v0\nv_lshrrev_b32 v17, 4, v0\nv_and_b32 v18, 7, v0")
    for n in range(2):
        a("v_add_u32 v19, %d, v17\nv_xor_b32 v19, v19, v18\nv_lshlrev_b32 v19, 4, v19\nv_lshl_add_u32 v%d, v16, 10, v19" % (4 * n, vAO[n]))
    a("v_and_b32 v19, 15, v0\nv_lshlrev_b32 v20, 2, v17\nv_xor_b32 v19, v19, v20\nv_lshlrev_b32 v19, 4, v19\nv_lshl_add_u32 v%d, v17, 13, v19" % vWO)
    a("s_lshl_b32 s%d, s%d, 2\ns_add_u32 s%d, s%d, s%d\ns_lshl_b32 s%d, s%d, 16\ns_add_u32 s%d, s%d, 32768" % (sT0, sI, sT0, sT0, sWV, sAS, sT0, sAS2, sAS))
    a("s_lshl_b32 s%d, s%d, 13" % (sAM, sWV))
    a("s_add_u32 s%d, s%d, 32768" % (sWM, sAM))
    a("s_and_b32 s%d, s%d, 1\ns_lshl_b32 s%d, s%d, 18\ns_lshl_b32 s%d, s%d, 8\ns_add_u32 s%d, s%d, s%d" % (sT0, sWV, sT0, sT0, sWS, sH, sWS, sWS, sT0))
    a("s_waitcnt lgkmcnt(0)")
    srd(a, SA, pC, 0x200000)
    a("s_cmp_lt_u32 s%d, 2\ns_cselect_b32 s%d, s%d, s%d\ns_cselect_b32 s%d, s%d, s%d\ns_mov_b32 s%d, 0x400000\ns_mov_b32 s%d, 0x20000" % (sWV, SW, pWUK, pWUV, SW + 1, pWUK + 1, pWUV + 1, SW + 2, SW + 3))
    def d_act(n):
        base = sAS if n < 4 else sAS2
        return ["s_add_u32 m0, s%d, %d" % (sAM, n * 1024), "s_add_u32 s%d, s%d, %d" % (sDS, base, (n % 4) * 8192),
                "buffer_load_dwordx4 v%d, s[%d:%d], s%d offen lds" % (vAO[n % 2], SA, SA + 3, sDS)]
    def d_w(n):
        return ["s_add_u32 m0, s%d, %d" % (sWM, n * 1024), "s_add_u32 s%d, s%d, %d" % (sDS, sWS, n * 32768),
                "buffer_load_dwordx4 v%d, s[%d:%d], s%d offen lds" % (vWO, SW, SW + 3, sDS)]
    def d_x(n):
        return ["s_add_u32 m0, s%d, %d" % (sXM, n * 1024), "s_add_u32 s%d, s%d, %d" % (sDS, sXS, n * 24576),
                "buffer_load_dwordx4 v%d, s[%d:%d], s%d offen lds" % (vXO, SX, SX + 3, sDS)]
    def dma_kv():
        G = []
        for n in range(8): G += [d_w(n), d_act(n)]
        G.append(["s_add_u32 s%d, s%d, 128" % (sAS, sAS), "s_add_u32 s%d, s%d, 128" % (sAS2, sAS2), "s_add_u32 s%d, s%d, 0x80000" % (sWS, sWS)])
        G.append(["s_xor_b32 s%d, s%d, 0x10000" % (sAM, sAM), "s_xor_b32 s%d, s%d, 0x10000" % (sWM, sWM)])
        return G
    def dma_q(withx):
        G = []
        for n in range(8):
            if n < 4: G.append(d_w(n))
            elif n < 6 and withx: G.append(d_x(n - 4))
            G.append(d_act(n))
        G.append(["s_add_u32 s%d, s%d, 128" % (sAS, sAS), "s_add_u32 s%d, s%d, 128" % (sAS2, sAS2), "s_add_u32 s%d, s%d, 0x80000" % (sWS, sWS), "s_add_u32 s%d, s%d, %d" % (sXS, sXS, 64 * 3072)])
        G.append(["s_xor_b32 s%d, s%d, 0x10000" % (sAM, sAM), "s_xor_b32 s%d, s%d, 0x10000" % (sWM, sWM), "s_xor_b32 s%d, s%d, 0x10000" % (sXM, sXM)])
        return G
    for rep in range(2):
        for g in dma_kv():
            for x in g: a(x)
    srd(a, SX, pGATE, 1024)
    a("s_mov_b32 m0, %d\ns_nop 0\nbuffer_load_dwordx4 v%d, s[%d:%d], 0 offen lds" % (LDS_G, vL16, SX, SX + 3))
    NSL = 14
    def preg(k): return 128 + 2 * k if k < 9 else 112 + 2 * (k - 9)
    def pf(k): return "global_load_dword v127, %s, off" % vr(preg(k), 2)
    def pfa(k, base, vo, so=None, imm=0):
        r = preg(k)
        if so is not None:
            a("s_add_u32 s%d, s%d, %d\nv_add_u32 v%d, s%d, v%d" % (sT2, so, imm, r, sT2, vo))
        else: a("v_add_u32 v%d, %d, v%d" % (r, imm, vo))
        a("v_mov_b32 v%d, s%d\nv_add_co_u32 v%d, vcc, s%d, v%d\ns_nop 1\nv_addc_co_u32 v%d, vcc, 0, v%d, vcc" % (r + 1, base + 1, r, base, r, r + 1, r + 1))
    def pfnone(k): a("v_mov_b32 v%d, s%d\nv_mov_b32 v%d, s%d" % (preg(k), pGATE, preg(k) + 1, pGATE + 1))
    if PF:
        l1, l2, le = a.label("pf1"), a.label("pf2"), a.label("pfe")
        a("s_cmp_eq_u32 s%d, 1\ns_cbranch_scc1 %s\ns_cmp_ge_u32 s%d, 2\ns_cbranch_scc1 %s" % (sWV, l1, sWV, l2))
        a("s_lshr_b32 s%d, s2, 3\ns_lshl_b32 s%d, s%d, 16\nv_lshlrev_b32 v26, 10, v0" % (sT0, sT0, sT0))
        for k in range(NSL):
            g = k + 2
            pfa(k, pC if g < 8 else pX, 26, sT0, (g % 8) * 128)
            if k < 2: a(pf(k))
        a("s_branch %s\n%s:" % (le, l1))
        a("v_lshrrev_b32 v26, 1, v0\nv_lshlrev_b32 v26, 13, v26\nv_and_b32 v27, 1, v0\nv_lshl_add_u32 v26, v27, 7, v26")
        a("s_bitcmp1_b32 s%d, 1\ns_cselect_b32 s96, s%d, s%d\ns_cselect_b32 s97, s%d, s%d" % (sI, pWUV, pWUK, pWUV + 1, pWUK + 1))
        a("s_lshr_b32 s%d, s%d, 2\ns_lshl_b32 s%d, s%d, 1\ns_and_b32 s%d, s%d, 1\ns_add_u32 s%d, s%d, s%d\ns_lshl_b32 s%d, s%d, 18\ns_lshl_b32 s%d, s%d, 8\ns_add_u32 s%d, s%d, s%d" % (sT0, sI, sT0, sT0, sT1, sI, sT0, sT0, sT1, sT0, sT0, sT1, sH, sT0, sT0, sT1))
        pfa(0, 96, 26, sT0, 2 * 0x80000); a(pf(0)); pfnone(1); a(pf(1))
        pfa(2, 96, 26, sT0, 4 * 0x80000); pfa(4, 96, 26, sT0, 6 * 0x80000)
        a("s_lshl_b32 s%d, s%d, 18\ns_add_u32 s%d, s%d, s%d" % (sT0, sI, sT0, sT0, sT1))
        pfa(6, pWQ, 26, sT0, 0); pfa(10, pWQ, 26, sT0, 4 * 0x80000)
        a("s_lshr_b32 s%d, s%d, 2\ns_mul_i32 s%d, s%d, 3\ns_and_b32 s%d, s%d, 3\ns_min_u32 s%d, s%d, 2\ns_add_u32 s%d, s%d, s%d\ns_lshl_b32 s%d, s%d, 7" % (sT0, sH, sT0, sT0, sT1, sH, sT1, sT1, sT0, sT0, sT1, sT0, sT0))
        a("s_mul_i32 s%d, s%d, %d\ns_add_u32 s%d, s%d, s%d\nv_mul_u32_u24 v26, 3072, v0" % (sT1, sI, 64 * 3072, sT0, sT0, sT1))
        pfa(7, pWQKV, 26, sT0, 0)
        for k in (3, 5, 8, 9, 11, 12, 13): pfnone(k)
        a("s_branch %s\n%s:" % (le, l2))
        pfnone(0); pfnone(1); a(pf(0)); a(pf(1))
        a("v_lshlrev_b32 v26, 7, v0\ns_and_b32 s%d, s%d, 1\ns_lshl_b32 s%d, s2, 1\ns_add_u32 s%d, s%d, s%d" % (sT0, sWV, sT1, sT1, sT1, sT0))
        a("v_and_b32 v27, 31, v0\nv_lshlrev_b32 v27, 7, v27\ns_lshl_b32 s%d, s%d, 12" % (sT0, sT1))
        pfa(2, pX, 27, sT0, 0)
        a("s_lshl_b32 s%d, s%d, 13" % (sT0, sT1))
        pfa(3, pWQ, 26, sT0, 0); pfa(5, pBWO, 26, sT0, 0)
        a("v_min_u32 v27, 23, v0\nv_lshlrev_b32 v27, 7, v27\ns_mul_i32 s%d, s%d, 3072" % (sT0, sT1))
        pfa(4, pWQKV, 27, sT0, 0)
        a("v_and_b32 v27, 7, v0\nv_lshlrev_b32 v27, 7, v27\ns_lshl_b32 s%d, s%d, 10" % (sT0, sT1))
        pfa(6, pWO, 27, sT0, 0)
        for k in range(7, NSL): pfnone(k)
        a(le + ":")
    def pfp(p): return [[pf(p + 2)]] if (PF and p + 2 < NSL) else []
    T.stamp(1)
    srd(a, SO, pWS, WS_SIZE)
    a("v_and_b32 v19, 1, v17\nv_lshlrev_b32 v19, 2, v19\nv_xor_b32 v19, v19, v18\nv_lshlrev_b32 v19, 4, v19\ns_movk_i32 s%d, 3072\nv_mad_u32_u24 v%d, v16, s%d, v19" % (sT0, vXO, sT0))
    a("v_and_b32 v19, 31, v0\nv_lshrrev_b32 v20, 1, v19\nv_and_b32 v20, 7, v20\nv_lshrrev_b32 v21, 5, v0\nv_xor_b32 v20, v20, v21\nv_lshlrev_b32 v20, 4, v20\nv_lshl_add_u32 v20, v19, 7, v20")
    a("s_and_b32 s%d, s%d, 1\ns_lshl_b32 s%d, s%d, 14" % (sT0, sWV, sT0, sT0))
    for k in range(4): a("v_xor_b32 v%d, %d, v20\nv_add_u32 v%d, s%d, v%d" % (vAR[k], 32 * k, vAR[k], sT0, vAR[k]))
    a("v_lshrrev_b32 v19, 2, v0\nv_and_b32 v19, 3, v19")
    a("v_lshl_add_u32 v20, v21, 3, v19")
    a("v_and_b32 v22, 1, v17\nv_lshlrev_b32 v22, 1, v22\nv_lshrrev_b32 v23, 1, v0\nv_and_b32 v23, 1, v23\nv_add_u32 v22, v22, v23")
    a("v_and_b32 v23, 1, v0\nv_lshlrev_b32 v23, 3, v23")
    a("v_lshlrev_b32 v24, 2, v19\nv_xor_b32 v24, v24, v22\nv_lshlrev_b32 v24, 4, v24\nv_lshl_add_u32 v24, v20, 8, v24\nv_add_u32 v24, v24, v23")
    a("s_lshr_b32 s%d, s%d, 1\ns_lshl_b32 s%d, s%d, 14\ns_add_u32 s%d, s%d, 32768" % (sT0, sWV, sT0, sT0, sT0, sT0))
    for k in range(4): a("v_xor_b32 v%d, %d, v24\nv_add_u32 v%d, s%d, v%d" % (vWR[k], 64 * k, vWR[k], sT0, vWR[k]))
    a("v_lshrrev_b32 v24, 1, v19\nv_lshlrev_b32 v24, 2, v24\nv_xor_b32 v24, v24, v22\nv_lshlrev_b32 v24, 4, v24\nv_lshl_add_u32 v24, v20, 7, v24\nv_add_u32 v24, v24, v23")
    a("v_add_u32 v%d, %d, v24\nv_xor_b32 v%d, 64, v%d" % (vXR[0], 49152, vXR[1], vXR[0]))
    a("s_lshl_b32 s%d, s%d, 2\ns_add_u32 s%d, s%d, s%d\ns_sub_u32 s%d, 60, s%d\ns_add_u32 s%d, s%d, s%d" % (sT1, sI, sQS, sT1, sWV, sQL, sT1, sQL, sQL, sWV))
    a("s_lshr_b32 s%d, s%d, 1\ns_lshl_b32 s%d, s%d, 5\ns_add_u32 s%d, s%d, s%d\ns_add_u32 s%d, s%d, 44\ns_lshl_b32 s%d, s%d, 19" % (sT0, sWV, sT0, sT0, sT0, sT0, sH, sT0, sT0, sOK, sT0))
    a("s_and_b32 s%d, s%d, 1\ns_lshl_b32 s%d, s%d, 1\ns_add_u32 s%d, s%d, s%d\ns_lshl_b32 s%d, s%d, 15\ns_add_u32 s%d, s%d, s%d" % (sT0, sWV, sT1, sI, sT0, sT0, sT1, sT0, sT0, sOK, sOK, sT0))
    a("s_lshr_b32 s%d, s%d, 2\ns_mul_i32 s%d, s%d, 3\ns_and_b32 s%d, s%d, 3\ns_add_u32 s%d, s%d, s%d" % (sT0, sH, sT0, sT0, sU, sH, sU, sU, sT0))
    for i in range(256): a("v_accvgpr_write_b32 a%d, 0" % i)

    def rd_kv(ks, st):
        F = FS[st]; L = []
        for j in range(4):
            L.append("ds_read_b128 %s, v%d offset:%d" % (vr(F + 4 * j, 4), vAR[ks], j * 4096))
        W = []
        for cb in range(4):
            for rd in range(2):
                W.append("ds_read_b64_tr_b16 %s, v%d offset:%d" % (vr(F + 16 + 4 * cb + 2 * rd, 2), vWR[cb], ks * 4096 + rd * 1024))
        return W[:2] + L + W[2:]
    def rd_q(ks, st, var, kglob):
        F = FS[st]; L = []
        for j in range(2):
            L.append("ds_read_b128 %s, v%d offset:%d" % (vr(F + 4 * j, 4), vAR[ks], j * 4096))
        for cb in range(4):
            for rd in range(2):
                L.append("ds_read_b64_tr_b16 %s, v%d offset:%d" % (vr(F + 16 + 4 * cb + 2 * rd, 2), vWR[cb], ks * 4096 + rd * 1024))
        if var in "NS":
            for cb in range(2):
                for rd in range(2):
                    L.append("ds_read_b64_tr_b16 %s, v%d offset:%d" % (vr(F + 8 + 4 * cb + 2 * rd, 2), vXR[cb], ks * 2048 + rd * 512))
        else:
            L.append("ds_read_b128 %s, v%d offset:%d" % (vr(F + 8, 4), vXR[0], kglob * 32))
        return L
    def mf_kv(st, isV, rbmajor=False):
        F = FS[st]; M = []
        order = [(rb, cb) for rb in range(4) for cb in range(4)] if rbmajor else [(rb, cb) for cb in range(4) for rb in range(4)]
        for rb, cb in order:
            acc = ar((rb * 4 + cb) * 16, 16); x = vr(F + 4 * rb, 4); w = vr(F + 16 + 4 * cb, 4)
            M.append("%s %s, %s, %s, %s" % (MF32, acc, x if isV else w, w if isV else x, acc))
        return M
    def mf_q(st, var, first):
        F = FS[st]; M = []
        for cb in range(4):
            for rb in range(2):
                acc = vr(QA + (rb * 4 + cb) * 16, 16)
                M.append("%s %s, %s, %s, %s" % (MF32, acc, vr(F + 16 + 4 * cb, 4), vr(F + 4 * rb, 4), "0" if first else acc))
        for cb in range(2 if var in "NS" else 1):
            for rb in range(2):
                acc = ar((cb * 2 + rb) * 16, 16); x = vr(F + 4 * rb, 4); w = vr(F + 8 + 4 * cb, 4)
                M.append("%s %s, %s, %s, %s" % (MF32, acc, x if var == "S" else w, w if var == "S" else x, "0" if first else acc))
        return M
    def toggles(q):
        L = ["v_xor_b32 v%d, 0x10000, v%d" % (r, r) for r in vWR]
        return L
    cnt = [0]
    def drain(areg, so, off, scale=None):
        t = TT[cnt[0] % 2]; pk = PK + 4 * (cnt[0] % 4); cnt[0] += 1
        G = ["v_accvgpr_read_b32 v%d, a%d" % (t + j, areg + j) for j in range(8)]
        if scale is not None: G += ["v_mul_f32 v%d, s%d, v%d" % (t + j, scale, t + j) for j in range(8)]
        G += ["v_cvt_pk_bf16_f32 v%d, v%d, v%d" % (pk + j, t + 2 * j, t + 2 * j + 1) for j in range(4)]
        G.append("buffer_store_dwordx4 %s, v%d, s[%d:%d], s%d offen offset:%d %s" % (vr(pk, 4), vL16, SO, SO + 3, so, off, stflag))
        return G
    def drain_kv(rb):
        G = []
        for c in range(8):
            G += drain(rb * 64 + c * 8, sOK, (c % 4) * 1024)
            if c % 4 == 3: G.append("s_add_u32 s%d, s%d, 4096" % (sOK, sOK))
        return G
    def xa(ks): return "v_xor_b32 v%d, 0x10000, v%d" % (vAR[ks], vAR[ks])
    qsetup = ["s_mov_b32 s%d, s%d" % (SA, pX), "s_mov_b32 s%d, s%d" % (SA + 1, pX + 1),
              "s_mov_b32 s%d, s%d" % (SW, pWQ), "s_mov_b32 s%d, s%d" % (SW + 1, pWQ + 1),
              "s_mov_b32 s%d, s%d" % (SX, pWQKV), "s_mov_b32 s%d, s%d" % (SX + 1, pWQKV + 1), "s_mov_b32 s%d, 0x180000" % (SX + 2),
              "s_lshl_b32 s%d, s%d, 15" % (sAS, sQL), "s_lshl_b32 s%d, s%d, 15" % (sAS2, sQS),
              "s_lshl_b32 s%d, s%d, 17" % (sT0, sWV), "s_lshl_b32 s%d, s%d, 8" % (sWS, sH), "s_add_u32 s%d, s%d, s%d" % (sWS, sWS, sT0),
              "s_lshl_b32 s%d, s%d, 12" % (sWM, sWV), "s_add_u32 s%d, s%d, 32768" % (sWM, sWM),
              "s_lshl_b32 s%d, s%d, 11" % (sXM, sWV), "s_add_u32 s%d, s%d, 49152" % (sXM, sXM),
              "s_mul_i32 s%d, s%d, %d" % (sXS, sWV, 16 * 3072), "s_lshl_b32 s%d, s%d, 7" % (sT0, sU), "s_add_u32 s%d, s%d, s%d" % (sXS, sXS, sT0),
              "s_and_b32 s%d, s%d, 3" % (sT0, sH), "s_cmp_eq_u32 s%d, 3" % sT0, "s_cselect_b32 s%d, 0, s%d" % (SX + 2, SX + 2)]
    a("s_lshl_b32 s%d, s%d, 13\ns_and_b32 s%d, s%d, 1\ns_lshl_b32 s%d, s%d, 14\ns_sub_u32 s94, s%d, s%d" % (sT0, sWV, sT1, sWV, sT1, sT1, sT0, sT1))
    a("s_lshr_b32 s%d, s%d, 1\ns_lshl_b32 s%d, s%d, 14\ns_add_u32 s95, s%d, 0x10000" % (sT0, sWV, sT0, sT0, sT0))
    a("s_waitcnt vmcnt(%d)\ns_barrier" % (19 if PF else 17))
    T.stamp(2)
    for x in rd_kv(0, 0): a(x)
    a(xa(0))
    lV = a.label("kvV"); lQ = a.label("qphase")
    a("s_cmp_ge_u32 s%d, 2\ns_cbranch_scc1 %s" % (sWV, lV))
    def ks012(isV, extra=None):
        for ks in range(3):
            a("s_waitcnt lgkmcnt(0)")
            st = [(rd_kv(ks + 1, (ks + 1) % 2) + [xa(ks + 1)], 0, 13)]
            if extra: st += extra[ks]
            emit(a, mf_kv(ks % 2, isV), st)
    def split3(G, first):
        return G[:first], [[(G[first:], 0, 16)], [], []]
    for isV in (False, True):
        if isV: a(lV + ":")
        ks012(isV)
        for per_ in range(7):
            peel = per_ == 6
            a("s_waitcnt vmcnt(%d) lgkmcnt(0)\ns_barrier" % ((2 if per_ == 0 else 1) if PF else 0))
            for x in toggles(0): a(x)
            if peel:
                g3, ex = split3(dma_q(True) + pfp(per_), 7)
                g3 = [qsetup[0:5], qsetup[5:10], qsetup[10:15], qsetup[15:19], qsetup[19:]] + g3
            else:
                g3, ex = split3(dma_kv() + pfp(per_), 9)
            emit(a, mf_kv(1, isV), [(rd_kv(0, 0) + [xa(0)], 0, 13), (g3, 0, 16)])
            ks012(isV, ex)
        a("s_waitcnt vmcnt(%d) lgkmcnt(0)\ns_barrier" % (1 if PF else 0))
        for k in range(4): a("v_add_u32 v%d, s94, v%d" % (vAR[k], vAR[k]))
        for k in range(4): a("v_subrev_u32 v%d, s95, v%d" % (vWR[k], vWR[k]))
        D0 = drain_kv(0)
        sv = cnt[0]
        emit(a, mf_kv(1, isV, rbmajor=True), [(rd_q(0, 0, "N", 0)[:10] + [xa(0)], 0, 7), (D0[:66], 7, 16)])
        if not isV:
            a("s_branch %s" % lQ); cnt[0] = 0
    a(lQ + ":")
    T.stamp(3)
    lN, lS, lG, lE = a.label("qN"), a.label("qS"), a.label("qG"), a.label("qE")
    a("s_and_b32 s%d, s%d, 3\ns_cmp_eq_u32 s%d, 3\ns_cbranch_scc1 %s\ns_cmp_ge_u32 s%d, 16\ns_cbranch_scc1 %s" % (sT0, sH, sT0, lG, sU, lS))
    cnt0 = cnt[0]
    for var, lab in (("N", lN), ("S", lS), ("G", lG)):
        a(lab + ":")
        cnt[0] = cnt0
        if var == "G": a("v_lshrrev_b32 v%d, 5, v0\nv_lshlrev_b32 v%d, 4, v%d\nv_add_u32 v%d, %d, v%d" % (vXR[0], vXR[0], vXR[0], vXR[0], LDS_G, vXR[0]))
        for x in rd_q(0, 0, var, 0)[10:]: a(x)
        DR = drain_kv(1) + drain_kv(2) + drain_kv(3)
        if qnostore: DR = [x for x in DR if not x.startswith("buffer_store")]
        if qnodrain: DR = []
        per = -(-len(DR) // (2 * NDC))
        pend = dma_q(var != "G") + pfp(7); npf = len(pfp(7))
        for kg in range(32):
            c, ks = kg // 4, kg % 4
            M = mf_q(kg % 2, var, kg == 0)
            nm = len(M)
            st = []
            if ks == 3 and c < 7:
                a("s_waitcnt vmcnt(%d) lgkmcnt(0)\ns_barrier" % (nst_after + npf))
                for x in toggles(1): a(x)
                if var != "G":
                    for r in vXR: a("v_xor_b32 v%d, 0x10000, v%d" % (r, r))
                pend = dma_q(var != "G") + pfp(8 + c) if c < 6 else []
                npf = len(pfp(8 + c)) if c < 6 else 0
            else:
                a("s_waitcnt lgkmcnt(0)")
            if kg < 31:
                nk = (ks + 1) % 4
                st.append((rd_q(nk, (kg + 1) % 2, var, kg + 1) + [xa(nk)], 0, nm - 3))
            if qnodma: pend = []
            if ks in (3, 0, 1) and pend:
                left = {3: 2, 0: 2 if kg == 0 else 1, 1: 1}[ks]
                take = -(-len(pend) // left)
                st.append((pend[:take], 0, nm)); pend = pend[take:]
            if kg == 0: ep = D0[66:]; st.append((ep, 0, 7))
            elif ks in (1, 2):
                ep = DR[:per]; DR = DR[per:]; st.append((ep, 0, nm))
            else: ep = []
            nsto = sum(1 for x in ep if x.startswith("buffer_store"))
            if ks == 1: nst_after = nsto if kg > 1 else 0
            if ks == 2: nst_after += nsto
            emit(a, M, st)
        a("s_nop 7\ns_nop 3")
        if var in "NS":
            a("s_lshr_b32 s%d, s%d, 1\ns_lshl_b32 s%d, s%d, 19\ns_and_b32 s%d, s%d, 1\ns_lshl_b32 s%d, s%d, 12\ns_add_u32 s%d, s%d, s%d" % (sT0, sU, sT0, sT0, sT1, sU, sT1, sT1, sT0, sT0, sT1))
            a("s_cmp_lt_u32 s%d, 8\ns_cselect_b32 s%d, %s, 1.0" % (sU, sSC, fbits(LOG2E * 0.25)))
            for rb, blk in ((0, sQL), (1, sQS)):
                a("s_lshl_b32 s%d, s%d, 13\ns_add_u32 s%d, s%d, s%d" % (sOA, blk, sOA, sOA, sT0))
                for cb in range(2):
                    for e in range(2):
                        for x in drain((cb * 2 + rb) * 16 + e * 8, sOA, cb * 2048 + e * 1024, sSC if var == "N" else None): a(x)
            a("s_branch %s" % lE)
        else:
            a("v_accvgpr_read_b32 v16, a0\nv_accvgpr_read_b32 v17, a16\nv_cmp_gt_u32 vcc, 32, v0\nv_mov_b32 v18, s%d\nv_mov_b32 v19, s%d" % (sQL, sQS))
            a("v_cndmask_b32 v16, v17, v16, vcc\nv_cndmask_b32 v18, v19, v18, vcc")
            a("v_mul_f32 v16, %s, v16\nv_exp_f32 v16, v16\nv_and_b32 v19, 31, v0\nv_add_f32 v16, 1.0, v16\nv_rcp_f32 v16, v16" % fbits(-LOG2E))
            a("v_lshl_add_u32 v18, v18, 5, v19\nv_lshlrev_b32 v18, 2, v18\ns_mov_b32 s%d, 0x%x" % (sT0, OFF_G))
            a("buffer_store_dword v16, v18, s[%d:%d], s%d offen %s" % (SO, SO + 3, sT0, stflag))
            a("s_barrier")
            a("s_lshr_b32 s%d, s%d, 2\ns_lshl_b32 s%d, s%d, 3\ns_add_u32 s%d, s%d, s%d" % (sCNT, sH, sCNT, sCNT, sCNT, sCNT, sI))
            a("s_mul_i32 s%d, s%d, 20480" % (sAM, sWV))
            a("v_lshrrev_b32 v17, 4, v0\nv_and_b32 v19, 15, v0\nv_lshlrev_b32 v20, 2, v17\nv_xor_b32 v19, v19, v20\nv_lshlrev_b32 v19, 4, v19\nv_lshl_add_u32 v%d, v17, 10, v19" % vWO)
            a("s_mov_b32 s%d, s%d\ns_mov_b32 s%d, s%d" % (SW, pBWO, SW + 1, pBWO + 1))
            a("s_lshl_b32 s%d, s%d, 14\ns_lshl_b32 s%d, s%d, 8\ns_add_u32 s%d, s%d, s%d" % (sWS, sCNT, sT0, sWV, sWS, sWS, sT0))
            for j in range(5):
                if j == 4:
                    a("s_mov_b32 s%d, s%d\ns_mov_b32 s%d, s%d\ns_mov_b32 s%d, 0x80000" % (SW, pWO, SW + 1, pWO + 1, SW + 2))
                for n in range(4):
                    a("s_add_u32 m0, s%d, %d\ns_add_u32 s%d, s%d, %d" % (sAM, j * 4096 + n * 1024, sDS, sWS, (j % 4) * 0x100000 + n * 4096))
                    a("buffer_load_dwordx4 v%d, s[%d:%d], s%d offen lds" % (vWO, SW, SW + 3, sDS))
            a("v_lshrrev_b32 v19, 2, v0\nv_and_b32 v19, 3, v19\nv_lshrrev_b32 v21, 5, v0\nv_lshl_add_u32 v20, v21, 2, v19")
            a("v_and_b32 v22, 1, v17\nv_lshlrev_b32 v22, 1, v22\nv_lshrrev_b32 v23, 1, v0\nv_and_b32 v23, 1, v23\nv_add_u32 v22, v22, v23\nv_and_b32 v23, 1, v0\nv_lshlrev_b32 v23, 3, v23")
            a("v_lshlrev_b32 v24, 2, v19\nv_xor_b32 v24, v24, v22\nv_lshlrev_b32 v24, 4, v24\nv_lshl_add_u32 v24, v20, 8, v24\nv_add_u32 v24, v24, v23")
            for k in range(4): a("v_xor_b32 v%d, %d, v24\nv_add_u32 v%d, s%d, v%d" % (vWR[k], 64 * k, vWR[k], sAM, vWR[k]))
            a("s_mul_i32 s%d, s%d, %d\ns_lshl_b32 s%d, s%d, 11\ns_add_u32 s%d, s%d, s%d\ns_add_u32 s%d, s%d, 0x%x" % (sT0, sWV, 2 * WROW, sT1, sCNT, sT0, sT0, sT1, sT0, sT0, OFF_W))
            lw = a.label("wtend")
            for j in range(5):
                if j == 4: a("s_cmp_ge_u32 s%d, 32\ns_cbranch_scc1 %s" % (sCNT, lw))
                a("s_waitcnt vmcnt(16)")
                r0 = 32 + 16 * j
                for cb in range(4):
                    for rd in range(2):
                        a("ds_read_b64_tr_b16 %s, v%d offset:%d" % (vr(r0 + 4 * cb + 2 * rd, 2), vWR[cb], j * 4096 + rd * 2048))
                a("s_add_u32 s%d, s%d, %d\ns_waitcnt lgkmcnt(0)" % (sT1, sT0, WROW))
                for cb in range(4):
                    a("buffer_store_dwordx4 %s, v%d, s[%d:%d], s%d offen offset:%d" % (vr(r0 + 4 * cb, 4), vL16, SO, SO + 3, sT0 if cb < 2 else sT1, (cb % 2) * 1024))
                a("s_add_u32 s%d, s%d, %d" % (sT0, sT0, 64 * 2048))
            a(lw + ":")
    a(lE + ":")
    T.stamp(4)
    if not fused:
        a("s_mov_b32 s%d, %s" % (sSC, fbits(LOG2E / math.sqrt(128.0))))
        for rb, blk in ((0, sQL), (1, sQS)):
            a("s_add_u32 s%d, s%d, 12\ns_lshl_b32 s%d, s%d, 19\ns_lshl_b32 s%d, s%d, 13\ns_add_u32 s%d, s%d, s%d" % (sT0, sH, sT0, sT0, sOA, blk, sOA, sOA, sT0))
            for c in range(8):
                src = QA + rb * 64 + c * 8
                for j in range(8): a("v_mul_f32 v%d, s%d, v%d" % (src + j, sSC, src + j))
                for j in range(4): a("v_cvt_pk_bf16_f32 v%d, v%d, v%d" % (src + j, src + 2 * j, src + 2 * j + 1))
                if c == 4: a("s_add_u32 s%d, s%d, 4096" % (sOA, sOA))
                a("buffer_store_dwordx4 %s, v%d, s[%d:%d], s%d offen offset:%d" % (vr(src, 4), vL16, SO, SO + 3, sOA, (c % 4) * 1024))

def gen_p1n(a, name="p1_kernel", ts=False, **kw):
    a.begin_kernel(name)
    T = TS(a, ts, 0)
    done = a.label("p1done")
    a("s_cmp_ge_u32 s2, 256\ns_cbranch_scc1 %s" % done)
    T.stamp(0)
    gen_gemm(a, T, False, **kw)
    T.dump(16, 3, 4)
    a(done + ":\ns_endpgm")
    a.add_kernel(name, 512, 100, 256)
    a.launch(name, 256, 256, 163840)
```

```python
from gen_common import *

def gen_p1(a, name="p1_kernel", ts=False, nostore=False, nodma=False, stflag="", PF=8, PFS=67):
    a.begin_kernel(name)
    T = TS(a, ts, 0)
    fin = a.label("p1fin")
    done = a.label("p1done")
    SA, SW, SO, SG = 20, 24, 28, 32
    sCG, sRB, sU, sUE, sWV = 36, 37, 38, 39, 40
    sSTR, sDS, sDM, sST8 = 41, 42, 43, 44
    sOC, sOP, sSC, sSP, sWO = 45, 46, 47, 48, 49
    sT0, sT1, sT2, sOC2, sOP2, sBUF = 50, 51, 52, 53, 54, 55
    vL16, vROW, vCH, vWOFF, vT0, vT1 = 1, 2, 3, 4, 5, 6
    vXO = (7, 8); vXR = (9, 10, 11, 12); vTMP = 13
    ACC = 16
    FR = 80; NFR = 8
    PK = 112
    MT = 128
    PD = 4
    a("s_cmp_ge_u32 s2, 256\ns_cbranch_scc1 %s" % done)
    T.stamp(0)
    a("s_load_dwordx4 s[4:7], s[0:1], 0\ns_load_dwordx4 s[8:11], s[0:1], 32\ns_load_dwordx4 s[12:15], s[0:1], 48")
    a("s_load_dwordx2 s[16:17], s[0:1], 72\ns_load_dwordx2 s[18:19], s[0:1], 96")
    a("v_lshrrev_b32 v%d, 6, v0\nv_and_b32 v0, 63, v0\nv_readfirstlane_b32 s%d, v%d" % (vTMP, sWV, vTMP))
    a("s_and_b32 s%d, s2, 7\ns_lshl_b32 s%d, s%d, 2\ns_lshr_b32 s%d, s2, 6\ns_add_u32 s%d, s%d, s%d" % (sCG, sCG, sCG, sT0, sCG, sCG, sT0))
    a("s_lshr_b32 s%d, s2, 3\ns_and_b32 s%d, s%d, 7" % (sRB, sRB, sRB))
    a("s_cmp_lt_u32 s%d, 13" % sCG)
    a("s_cselect_b32 s%d, 0, 13\ns_cselect_b32 s%d, 10, 14\ns_cselect_b32 s%d, 0, 88" % (sT0, sT1, sT2))
    a("s_sub_u32 s%d, s%d, s%d" % (sT0, sCG, sT0))
    a("s_mul_i32 s%d, s%d, 7\ns_add_u32 s%d, s%d, s%d" % (sU, sT0, sU, sU, sT2))
    a("s_max_u32 s%d, s%d, s%d\ns_sub_u32 s%d, s%d, s%d\ns_sub_u32 s%d, s%d, s%d" % (sT2, sT0, sT1, sT2, sT2, sT1, sU, sU, sT2))
    a("s_cmp_lt_u32 s%d, s%d\ns_cselect_b32 s%d, 7, 6\ns_add_u32 s%d, s%d, s%d" % (sT0, sT1, sUE, sUE, sUE, sU))
    a("v_lshlrev_b32 v%d, 4, v0" % vL16)
    a("v_lshrrev_b32 v%d, 3, v0" % vROW)
    a("v_lshrrev_b32 v%d, 4, v0" % vTMP)
    a("v_and_b32 v14, 7, v0")
    a("v_and_b32 v15, 1, v%d\nv_lshlrev_b32 v15, 2, v15\nv_xor_b32 v15, v15, v14\nv_lshlrev_b32 v%d, 4, v15" % (vTMP, vCH))
    for n in range(2):
        a("v_add_u32 v15, %d, v%d\nv_xor_b32 v15, v15, v14\nv_lshlrev_b32 v15, 4, v15\nv_lshl_add_u32 v%d, v%d, 10, v15" % (4 * n, vTMP, vXO[n], vROW))
    a("v_and_b32 v14, 31, v0\nv_lshrrev_b32 v15, 1, v14\nv_and_b32 v15, 7, v15\nv_lshrrev_b32 v16, 5, v0\nv_xor_b32 v15, v15, v16\nv_lshlrev_b32 v15, 4, v15\nv_lshl_add_u32 v15, v14, 7, v15")
    a("s_mul_i32 s%d, s%d, 24576\ns_add_u32 s%d, s%d, 65536" % (sT2, sWV, sT2, sT2))
    for k in range(4):
        a("v_xor_b32 v%d, %d, v15\nv_add_u32 v%d, s%d, v%d" % (vXR[k], 32 * k, vXR[k], sT2, vXR[k]))
    a("v_lshrrev_b32 v14, 2, v0\nv_and_b32 v14, 3, v14")
    a("v_lshrrev_b32 v15, 5, v0\nv_lshl_add_u32 v15, v15, 3, v14\nv_lshlrev_b32 v15, 7, v15")
    a("v_lshrrev_b32 v16, 4, v0\nv_and_b32 v16, 1, v16\nv_lshlrev_b32 v16, 1, v16")
    a("v_lshrrev_b32 v17, 1, v0\nv_and_b32 v17, 1, v17\nv_add_u32 v16, v16, v17")
    a("v_lshrrev_b32 v17, 1, v14\nv_lshlrev_b32 v17, 2, v17\nv_xor_b32 v16, v16, v17")
    a("v_lshl_add_u32 v15, v16, 4, v15\nv_and_b32 v17, 1, v0\nv_lshl_add_u32 v%d, v17, 3, v15\nv_xor_b32 v%d, 64, v%d" % (vT0, vT1, vT0))
    a("s_waitcnt lgkmcnt(0)")
    a("s_cmp_lt_u32 s%d, 13\ns_cselect_b32 s%d, s4, s8\ns_cselect_b32 s%d, s5, s9\ns_mov_b32 s%d, 0x200000\ns_mov_b32 s%d, 0x20000" % (sCG, SA, SA + 1, SA + 2, SA + 3))
    srd(a, SO, 18, WS_SIZE); srd(a, SG, 16, 1024)
    a("s_mov_b32 s%d, 0x20000" % (SW + 3))
    a("s_lshl_b32 s%d, s%d, 2\ns_add_u32 s%d, s%d, s%d\ns_lshl_b32 s%d, s%d, 14" % (sWO, sRB, sWO, sWO, sWV, sWO, sWO))

    def wparams(u):
        L = []
        L.append("s_sub_u32 s%d, s%d, 24" % (sT0, u))
        L.append("s_and_b32 s%d, s%d, 63" % (sT1, sT0))
        L.append("s_cmp_lt_u32 s%d, 88" % u)
        L.append("s_cselect_b32 s%d, s10, s12" % SW); L.append("s_cselect_b32 s%d, s11, s13" % (SW + 1))
        L.append("s_cmp_lt_u32 s%d, 152" % u)
        L.append("s_cselect_b32 s%d, s%d, s14" % (SW, SW)); L.append("s_cselect_b32 s%d, s%d, s15" % (SW + 1, SW + 1))
        L.append("s_cmp_lt_u32 s%d, 24" % u)
        L.append("s_cselect_b32 s%d, s6, s%d" % (SW, SW)); L.append("s_cselect_b32 s%d, s7, s%d" % (SW + 1, SW + 1))
        L.append("s_cselect_b32 s%d, 3072, 8192" % sSTR) if False else None
        L.append("s_cselect_b32 s%d, s%d, s%d" % (sT1, u, sT1))
        L.append("s_cselect_b32 s%d, 3, 8" % sSTR)
        L.append("s_lshl_b32 s%d, s%d, 10" % (sSTR, sSTR))
        L.append("s_lshl_b32 s%d, s%d, 9" % (SW + 2, sSTR))
        L.append("s_cmp_lt_u32 s%d, s%d" % (u, sUE))
        L.append("s_cselect_b32 s%d, s%d, 0" % (SW + 2, SW + 2))
        L.append("s_lshl_b32 s%d, s%d, 3" % (sST8, sSTR))
        L.append("s_mul_i32 s%d, s%d, s%d" % (sDS, sST8, sWV))
        L.append("s_lshl_b32 s%d, s%d, 4" % (sDS, sDS))
        L.append("s_lshl_b32 s%d, s%d, 7" % (sT1, sT1))
        L.append("s_add_u32 s%d, s%d, s%d" % (sDS, sDS, sT1))
        L.append("v_mad_u32_u24 v%d, v%d, s%d, v%d" % (vWOFF, vROW, sSTR, vCH))
        return [x for x in L if x]
    def wdma(n):
        L = []
        if n == 0: L.append("s_mov_b32 m0, s%d" % sDM)
        else: L.append("s_add_u32 m0, s%d, %d" % (sDM, n * 1024))
        if n > 0: L.append("s_add_u32 s%d, s%d, s%d" % (sDS, sDS, sST8))
        else: L.append("s_nop 0")
        L.append("buffer_load_dwordx4 v%d, s[%d:%d], s%d offen lds" % (vWOFF, SW, SW + 3, sDS))
        return L
    def oparams():
        L = []
        L.append("s_lshr_b32 s%d, s%d, 1" % (sT0, sU)); L.append("s_lshl_b32 s%d, s%d, 19" % (sT0, sT0))
        L.append("s_and_b32 s%d, s%d, 1" % (sT1, sU)); L.append("s_lshl_b32 s%d, s%d, 12" % (sT1, sT1))
        L.append("s_add_u32 s%d, s%d, s%d" % (sOC, sT0, sT1)); L.append("s_add_u32 s%d, s%d, s%d" % (sOC, sOC, sWO))
        L.append("s_add_u32 s%d, s%d, 8192" % (sOC2, sOC))
        L.append("s_sub_u32 s%d, s%d, 24" % (sT0, sU))
        L.append("s_cmp_lt_u32 s%d, 64" % sT0)
        L.append("s_cselect_b32 s%d, %s, 1.0" % (sSC, fbits(LOG2E / math.sqrt(128.0))))
        L.append("s_cmp_lt_u32 s%d, 8" % sU)
        L.append("s_cselect_b32 s%d, %s, s%d" % (sSC, fbits(LOG2E * 0.25), sSC))
        return L
    def pf_x():
        a("v_lshlrev_b32 v14, 7, v0")
        a("s_lshr_b32 s%d, s2, 6\ns_lshl_b32 s%d, s%d, 2\ns_add_u32 s%d, s%d, s%d\ns_lshl_b32 s%d, s%d, 2\ns_add_u32 s%d, s%d, s%d\ns_lshl_b32 s%d, s%d, 14" % (sT0, sT1, sRB, sT1, sT1, sT0, sT1, sT1, sT1, sT1, sWV, sT1, sT1))
        a("buffer_load_dword v200, v14, s[%d:%d], s%d offen\ns_add_u32 s%d, s%d, 8192\nbuffer_load_dword v201, v14, s[%d:%d], s%d offen" % (SA, SA + 3, sT1, sT1, sT1, SA, SA + 3, sT1))
    def pf_w(j, add):
        a("s_add_u32 s%d, s%d, s%d\ns_add_u32 s%d, s%d, %d\ns_min_u32 s%d, s%d, s%d" % (sT2, sU, sWV, sT2, sT2, add, sT2, sT2, sUE))
        for x in wparams(sT2)[:-6]: a(x)
        a("s_lshl_b32 s%d, s%d, 7\ns_mul_i32 s%d, s%d, s%d\ns_lshl_b32 s%d, s%d, 6\ns_add_u32 s%d, s%d, s%d" % (sT1, sT1, sT0, sRB, sSTR, sT0, sT0, sT0, sT0, sT1))
        a("v_mul_lo_u32 v15, v0, s%d\nbuffer_load_dword v%d, v15, s[%d:%d], s%d offen" % (sSTR, 202 + j, SW, SW + 3, sT0))
    def pf_w2():
        a("v_and_b32 v15, 7, v0\nv_lshlrev_b32 v15, 7, v15\nv_mad_u32_u24 v15, v%d, s%d, v15" % (vROW, sSTR))
        a("s_lshl_b32 s%d, s%d, 2\ns_add_u32 s%d, s%d, s%d\ns_mul_i32 s%d, s%d, s%d\ns_lshl_b32 s%d, s%d, 4\ns_add_u32 s%d, s%d, s%d" % (sT0, sRB, sT0, sT0, sWV, sT0, sT0, sSTR, sT0, sT0, sT0, sT0, sT1))
        a("buffer_load_dword v202, v15, s[%d:%d], s%d offen\ns_add_u32 s%d, s%d, s%d\nbuffer_load_dword v203, v15, s[%d:%d], s%d offen" % (SW, SW + 3, sT0, sT0, sT0, sST8, SW, SW + 3, sT0))
    npf = 0
    if PF in (4, 5, 6): pf_x()
    if PF == 6:
        for x in wparams(sU): a(x)
        pf_w2()
    if PF == 2:
        pf_x(); pf_w(0, 0)
    if PF == 3:
        pf_x(); pf_w(0, 0); pf_w(1, 4)
    SP1, SP2, sP1, sP2, sP1b, sP2b, sFIRST = 56, 60, 32+4+60, 32+5+60, 32+6+60, 32+7+60, 3
    if PF == 8:
        for (u, SP, sp, spb, vv, back) in ((sU, SP1, sP1, sP1b, 204, 0), (None, SP2, sP2, sP2b, 205, 1)):
            if u is None:
                a("s_sub_u32 s%d, s%d, 1" % (sT2, sUE)); u = sT2
            for x in wparams(u): a(x)
            if back: a("s_max_u32 s%d, s%d, 768\ns_sub_u32 s%d, s%d, 768" % (sT1, sT1, sT1, sT1))
            a("v_and_b32 v15, 7, v0\nv_lshlrev_b32 v15, 7, v15\nv_mad_u32_u24 v%d, v%d, s%d, v15" % (vv, vROW, sSTR))
            a("s_lshl_b32 s%d, s%d, 2\ns_add_u32 s%d, s%d, s%d\ns_mul_i32 s%d, s%d, s%d\ns_lshl_b32 s%d, s%d, 4\ns_add_u32 s%d, s%d, s%d\ns_add_u32 s%d, s%d, s%d" % (sT0, sRB, sT0, sT0, sWV, sT0, sT0, sSTR, sT0, sT0, sp, sT0, sT1, spb, sp, sST8))
            a("s_mov_b32 s%d, s%d\ns_mov_b32 s%d, s%d\ns_mov_b32 s%d, s%d\ns_mov_b32 s%d, 0x20000" % (SP, SW, SP + 1, SW + 1, SP + 2, SW + 2, SP + 3))
        a("s_cmp_eq_u32 s%d, s%d\ns_cselect_b32 s%d, 0, s%d" % (SP1, SP2, SP2 + 2, SP2 + 2))
    a("s_lshl_b32 s%d, s%d, 14" % (sDM, sWV))
    for x in wparams(sU): a(x)
    for n in range(16):
        for x in wdma(n): a(x)
    sXS, sXM = sOP, sOP2
    a("s_lshl_b32 s%d, s%d, 2\ns_add_u32 s%d, s%d, s%d\ns_lshl_b32 s%d, s%d, 16" % (sXS, sRB, sXS, sXS, sWV, sXS, sXS))
    a("s_mul_i32 s%d, s%d, 24576\ns_add_u32 s%d, s%d, 65536" % (sXM, sWV, sXM, sXM))
    def xdma(c):
        for n in range(8):
            a("s_add_u32 m0, s%d, %d\ns_add_u32 s%d, s%d, %d" % (sXM, (c % 3) * 8192 + n * 1024, sT0, sXS, n * 8192 + c * 128))
            a("buffer_load_dwordx4 v%d, s[%d:%d], s%d offen lds" % (vXO[n % 2], SA, SA + 3, sT0))
    for c in range(3): xdma(c)
    if PF == 1:
        pf_x(); pf_w(0, 1); pf_w(1, 5); npf = 4
    if PF == 2:
        pf_w(1, 4); npf = 1
    if PF in (5, 7):
        for x in wparams(sU): a(x)
        pf_w2(); npf = 2
    T.stamp(1)
    for c in range(8):
        a("s_waitcnt vmcnt(%d)" % (8 * min(2, 7 - c) + (npf if c < 3 else 0)))
        if c == 0: T.stamp(2)
        for rb in range(2):
            for k in range(4):
                a("ds_read_b128 %s, v%d offset:%d" % (ar((rb * 32 + c * 4 + k) * 4, 4), vXR[k], (c % 3) * 8192 + rb * 4096))
        if c + 3 < 8:
            a("s_waitcnt lgkmcnt(0)")
            xdma(c + 3)
    a("s_mov_b32 s%d, 0x%x\ns_add_u32 s%d, s%d, s%d\ns_add_u32 s%d, s%d, 8192\ns_mov_b32 s%d, 1.0" % (sOP, OFF_DUMMY, sOP, sOP, sWO, sOP2, sOP, sSP))
    a("s_xor_b32 s%d, s%d, 65536" % (sDM, sDM))
    a("s_waitcnt lgkmcnt(0)\ns_barrier")
    T.stamp(3)
    def trread(f):
        cb, ks = (f % 64) // 32, f % 32
        r = FR + 4 * (f % NFR); v = (vT0, vT1)[cb]
        return ["ds_read_b64_tr_b16 %s, v%d offset:%d" % (vr(r, 2), v, ks * 2048),
                "ds_read_b64_tr_b16 %s, v%d offset:%d" % (vr(r + 2, 2), v, ks * 2048 + 512)]
    for f in range(PD):
        for x in trread(f): a(x)
    def epi(cb, scale, so, so2):
        G = []
        for rb in range(2):
            for e in range(2):
                src = ACC + (cb * 2 + rb) * 16 + e * 8
                pk = PK + 4 * (rb * 2 + e)
                for j in range(4):
                    if scale is not None:
                        t = MT + (2 * j + 8 * e) % 16
                        G.append(["v_mul_f32 v%d, s%d, v%d" % (t, scale, src + 2 * j)])
                        G.append(["v_mul_f32 v%d, s%d, v%d" % (t + 1, scale, src + 2 * j + 1)])
                        G.append(["v_cvt_pk_bf16_f32 v%d, v%d, v%d" % (pk + j, t, t + 1)])
                    else:
                        G.append(["v_cvt_pk_bf16_f32 v%d, v%d, v%d" % (pk + j, src + 2 * j, src + 2 * j + 1)])
                if not nostore: G.append(["buffer_store_dwordx4 %s, v%d, s[%d:%d], s%d offen offset:%d %s" % (vr(pk, 4), vL16, SO, SO + 3, so if rb == 0 else so2, cb * 2048 + e * 1024, stflag)])
        return G
    top = a.label("p1top"); lN = a.label("p1N"); lS = a.label("p1S"); lQ = a.label("p1Q"); nxt = a.label("p1next")
    def body(mode):
        sc_p = sSP if mode == "Q" else None
        sc_c = sSC if mode == "Q" else None
        fill = {m: [] for m in range(128)}
        pre = ["s_add_u32 s%d, s%d, 1" % (sT2, sU)] + wparams(sT2)
        for x, m in zip(pre, spread(len(pre), 0, 8)): fill[m].append(x)
        if not nodma:
            for n, m in enumerate(spread(16, 9, 57)): fill[m] += wdma(n)
        g1 = epi(1, sc_p, sOP, sOP2)
        for x, m in zip(g1, spread(len(g1), 8, 60)): fill[m] += x
        if PF == 8:
            fill[PFS] += ["buffer_load_dword v200, v204, s[%d:%d], s%d offen" % (SP1, SP1 + 3, sP1)]
            fill[PFS + 1] += ["buffer_load_dword v201, v204, s[%d:%d], s%d offen" % (SP1, SP1 + 3, sP1b)]
            fill[PFS + 2] += ["buffer_load_dword v202, v205, s[%d:%d], s%d offen" % (SP2, SP2 + 3, sP2)]
            fill[PFS + 3] += ["buffer_load_dword v203, v205, s[%d:%d], s%d offen" % (SP2, SP2 + 3, sP2b), "s_mov_b32 s%d, 0" % (SP1 + 2), "s_mov_b32 s%d, 0" % (SP2 + 2)]
        op = oparams()
        for x, m in zip(op, spread(len(op), 58, 66)): fill[m].append(x)
        g0 = epi(0, sc_c, sOC, sOC2)
        for x, m in zip(g0, spread(len(g0), 72, 116)): fill[m] += x
        for m in range(128):
            f, rb = m // 2, m % 2
            cb, ks = f // 32, f % 32
            if rb == 0:
                if f <= 64 - PD: out = min(f + PD - 1, 63) - f
                else: out = None
                if f == 65 - PD:
                    a("s_waitcnt vmcnt(%d) lgkmcnt(0)\ns_barrier" % ((0 if nostore else 4) + (4 if PF == 8 else 0)))
                    a("v_xor_b32 v%d, 0x10000, v%d\nv_xor_b32 v%d, 0x10000, v%d" % (vT0, vT0, vT1, vT1))
                elif out is not None:
                    a("s_waitcnt lgkmcnt(%d)" % (2 * out))
            acc = vr(ACC + (cb * 2 + rb) * 16, 16)
            w = vr(FR + 4 * (f % NFR), 4); x = ar((rb * 32 + ks) * 4, 4)
            A, B = (x, w) if mode == "S" else (w, x)
            a("%s %s, %s, %s, %s" % (MF32, acc, A, B, "0" if ks == 0 else acc))
            if f + PD < 64:
                a(trread(f + PD)[rb])
            elif f == 65 - PD:
                for x in trread(64 + rb): a(x)
            elif f > 65 - PD:
                a(trread(f + PD)[rb])
            for x in fill[m]: a(x)
        a("s_mov_b32 s%d, s%d\ns_mov_b32 s%d, s%d\ns_mov_b32 s%d, s%d\ns_xor_b32 s%d, s%d, 65536" % (sOP, sOC, sOP2, sOC2, sSP, sSC, sDM, sDM))
        a("s_add_u32 s%d, s%d, 1\ns_cmp_lt_u32 s%d, s%d\ns_cbranch_scc1 %s\ns_branch %s" % (sU, sU, sU, sUE, top, nxt))
    a(top + ":")
    a("s_cmp_ge_u32 s%d, 152\ns_cbranch_scc1 %s\ns_cmp_ge_u32 s%d, 88\ns_cbranch_scc1 %s" % (sU, lS, sU, lN))
    a("s_sub_u32 s%d, s%d, 16\ns_cmp_lt_u32 s%d, 8\ns_cbranch_scc1 %s" % (sT0, sU, sT0, lS))
    a(lQ + ":"); body("Q")
    a(lN + ":"); body("N")
    a(lS + ":"); body("S")
    a(nxt + ":")
    T.stamp(4)
    a("s_nop 7")
    for g in epi(1, sSP, sOP, sOP2):
        for x in g: a(x)
    a("s_cmp_lg_u32 s%d, 12\ns_cbranch_scc1 %s" % (sCG, fin))
    a("s_waitcnt lgkmcnt(0)")
    a("v_lshrrev_b32 v14, 5, v0\nv_lshlrev_b32 v14, 4, v14")
    GF = 128
    for ks in range(32):
        a("buffer_load_dwordx4 %s, v14, s[%d:%d], 0 offen offset:%d" % (vr(GF + 4 * ks, 4), SG, SG + 3, ks * 32))
    for ks in range(32):
        a("s_waitcnt vmcnt(%d)" % (31 - ks))
        for rb in range(2):
            acc = vr(ACC + rb * 16, 16)
            a("%s %s, %s, %s, %s" % (MF32, acc, vr(GF + 4 * ks, 4), ar((rb * 32 + ks) * 4, 4), "0" if ks == 0 else acc))
    a("s_nop 15")
    a("v_cmp_gt_u32 vcc, 32, v0\ns_nop 1\nv_cndmask_b32 v14, v%d, v%d, vcc" % (ACC + 16, ACC))
    a("v_mul_f32 v14, %s, v14\nv_exp_f32 v14, v14\ns_nop 0\nv_add_f32 v14, 1.0, v14\nv_rcp_f32 v14, v14" % fbits(-LOG2E))
    a("s_lshl_b32 s%d, s%d, 2\ns_add_u32 s%d, s%d, s%d\ns_lshl_b32 s%d, s%d, 8\ns_add_u32 s%d, s%d, 0x%x" % (sT0, sRB, sT0, sT0, sWV, sT0, sT0, sT0, sT0, OFF_G))
    a("v_lshlrev_b32 v15, 2, v0")
    a("buffer_store_dword v14, v15, s[%d:%d], s%d offen" % (SO, SO + 3, sT0))
    a(fin + ":")
    T.dump(SO, sWV, 4)
    a(done + ":\ns_endpgm")
    a.add_kernel(name, 512, 100, 256)
    a.launch(name, 256, 256, 163840)
```

```python
from gen_common import *

NEG = "0xff800000"
THRESH = fbits(2.0 ** 24)

def gen_p2(a, name="p2_kernel", ts=False, WTR=False):
    a.begin_kernel(name)
    T = TS(a, ts, 1)
    done = a.label("p2done")
    SK, SV = 8, 12
    sWV, sI, sHD, sT = 16, 17, 18, 19
    sKO, sVO = 20, 21
    sW4, sW8 = 22, 23
    sT0, sT1, sT2, sDS = 24, 25, 26, 27
    sTH = 28
    sQL, sQS = 29, 30
    sM0, sM1, sM2 = 32, 34, 36
    sEND = 38
    vK, vV, vU, vGL, vGS = 1, 2, 3, 4, 5
    vL = (6, 7); vLT = (8, 9); vX = 10
    S = (16, 80); P = (144, 176); NM = 208; TM = 240
    O, Q, FR, NFR = 0, 128, 192, 16
    PD = 6
    a("s_cmp_ge_u32 s2, 256\ns_cbranch_scc1 %s" % done)
    T.stamp(0)
    a("s_load_dwordx2 s[4:5], s[0:1], 96\ns_load_dwordx2 s[6:7], s[0:1], 64\ns_load_dwordx2 s[44:45], s[0:1], 16")
    a("v_lshrrev_b32 v10, 6, v0\nv_and_b32 v0, 63, v0\nv_readfirstlane_b32 s%d, v10" % sWV)
    a("s_and_b32 s%d, s2, 7\ns_lshl_b32 s%d, s%d, 2\ns_lshr_b32 s%d, s2, 3\ns_and_b32 s%d, s%d, 3\ns_add_u32 s%d, s%d, s%d" % (sHD, sHD, sHD, sT0, sT0, sT0, sHD, sHD, sT0))
    a("s_lshr_b32 s%d, s2, 5" % sI)
    a("v_lshlrev_b32 v%d, 4, v0\nv_add_u32 v%d, 0x10000, v%d" % (vK, vV, vK))
    a("s_lshl_b32 s%d, s%d, 12\ns_lshl_b32 s%d, s%d, 13" % (sW4, sWV, sW8, sWV))
    a("s_lshl_b32 s%d, s%d, 19\ns_add_u32 s%d, s%d, 0x%x\ns_add_u32 s%d, s%d, 0x%x" % (sT0, sHD, sKO, sT0, OFF_K, sVO, sT0, OFF_V))
    a("s_lshl_b32 s%d, s%d, 2\ns_add_u32 s%d, s%d, s%d\ns_sub_u32 s%d, 60, s%d\ns_add_u32 s%d, s%d, s%d" % (sT1, sI, sQS, sT1, sWV, sQL, sT1, sQL, sQL, sWV))
    a("s_mov_b32 s%d, %s" % (sTH, THRESH))
    a("s_waitcnt lgkmcnt(0)")
    srd(a, SK, 4, WS_SIZE); srd(a, SV, 4, WS_SIZE)

    def dma(which, typ, par):
        so, sr_, base = (sKO, SK, 0) if which == "K" else (sVO, SV, 65536)
        sw = sW4 if typ == 1 else sW8
        G = []
        for q in range(typ):
            g = ["s_add_u32 m0, s%d, %d" % (sw, base + par * 32768 + q * 4096)]
            if q == 0: g.append("s_add_u32 s%d, s%d, s%d" % (sDS, so, sw))
            else: g.append("s_add_u32 s%d, s%d, 4096" % (sDS, sDS))
            G.append(g)
            for o in range(4):
                G.append(["buffer_load_dwordx4 v%d, s[%d:%d], s%d offen offset:%d lds" % (vK, sr_, sr_ + 3, sDS, o * 1024)])
        return G
    def adv(which, typ):
        so = sKO if which == "K" else sVO
        return ["s_add_u32 s%d, s%d, %d" % (so, so, 16384 * typ)]

    sRA, sHP, sA0, sA1 = 40, 41, 42, 43
    AQ, AKC, AKP, AV = 144, 152, 160, 168
    a("s_lshl_b32 s%d, s2, 2\ns_add_u32 s%d, s%d, s%d\ns_lshr_b32 s%d, s%d, 4\ns_and_b32 s%d, s%d, 15" % (sT0, sT0, sT0, sWV, sRA, sT0, sHP, sT0))
    a("s_lshr_b32 s%d, s%d, 2\ns_lshl_b32 s%d, s%d, 19\ns_and_b32 s%d, s%d, 3\ns_lshl_b32 s%d, s%d, 11\ns_add_u32 s%d, s%d, s%d" % (sT0, sHP, sT0, sT0, sT1, sHP, sT1, sT1, sT0, sT0, sT1))
    a("s_lshl_b32 s%d, s%d, 13\ns_add_u32 s%d, s%d, s%d" % (sT1, sRA, sA0, sT0, sT1))
    a("s_max_u32 s%d, s%d, 1\ns_sub_u32 s%d, s%d, 1\ns_lshl_b32 s%d, s%d, 13\ns_add_u32 s%d, s%d, s%d" % (sT1, sRA, sT1, sT1, sT1, sT1, sA1, sT0, sT1))
    def ld(dst, so, off): a("buffer_load_dwordx4 %s, v%d, s[%d:%d], s%d offen offset:%d" % (dst, vK, SV, SV + 3, so, off))
    ld(vr(AQ, 4), sA0, 0); ld(vr(AQ + 4, 4), sA0, 1024)
    a("s_add_u32 s%d, s%d, %d\ns_add_u32 s%d, s%d, %d" % (sA0, sA0, 4 * PH, sA1, sA1, 4 * PH))
    ld(vr(AKC, 4), sA0, 0); ld(vr(AKC + 4, 4), sA0, 1024); ld(vr(AKP, 4), sA1, 0); ld(vr(AKP + 4, 4), sA1, 1024)
    a("s_add_u32 s%d, s%d, %d\ns_add_u32 s%d, s%d, %d" % (sA0, sA0, 4 * PH, sA1, sA1, 4 * PH))
    ld(vr(AV, 4), sA1, 1024); ld(vr(AV + 4, 4), sA0, 0); ld(vr(AV + 8, 4), sA0, 1024)
    vGA = 248
    a("v_and_b32 v10, 31, v0\nv_lshlrev_b32 v10, 2, v10")
    for (dst, blk) in ((vGA, sRA), (vGL, sQL), (vGS, sQS)):
        a("s_lshl_b32 s%d, s%d, 7\ns_add_u32 s%d, s%d, 0x%x" % (sT0, blk, sT0, sT0, OFF_G))
        a("buffer_load_dword v%d, v10, s[%d:%d], s%d offen" % (dst, SV, SV + 3, sT0))
    for g in dma("K", 1, 0) + [adv("K", 1)]:
        for x in g: a(x)
    for rb, blk in ((0, sQL), (1, sQS)):
        a("s_lshl_b32 s%d, s%d, 19\ns_lshl_b32 s%d, s%d, 13\ns_add_u32 s%d, s%d, s%d\ns_add_u32 s%d, s%d, 0x%x" % (sT0, sHD, sT1, blk, sT0, sT0, sT1, sT0, sT0, OFF_Q))
        for s in range(8):
            if s == 4: a("s_add_u32 s%d, s%d, 4096" % (sT0, sT0))
            ld(ar(Q + rb * 32 + s * 4, 4), sT0, (s % 4) * 1024)
    for g in dma("K", 1, 1) + [adv("K", 1)]:
        for x in g: a(x)
    if WTR:
        SWT = 48; sWB, sWL = 46, 47
        vWO, vTR = 252, (253, 254)
        a("v_lshrrev_b32 v10, 4, v0\nv_and_b32 v10, 1, v10\nv_lshlrev_b32 v10, 2, v10\nv_and_b32 v11, 7, v0\nv_xor_b32 v10, v10, v11\nv_lshlrev_b32 v10, 4, v10")
        a("v_lshrrev_b32 v11, 3, v0\nv_lshl_add_u32 v%d, v11, 10, v10" % vWO)
        sWC = 52
        a("s_lshr_b32 s%d, s2, 3\ns_and_b32 s%d, s%d, 7\ns_lshr_b32 s%d, s2, 6\ns_lshl_b32 s%d, s%d, 3\ns_and_b32 s%d, s2, 7\ns_add_u32 s%d, s%d, s%d" % (sWC, sWC, sWC, sWB, sWB, sWB, sT0, sWB, sWB, sT0))
        a("s_mul_i32 s%d, s%d, 9\ns_add_u32 s%d, s%d, s%d" % (sWB, sWB, sWB, sWB, sWV))
        a("s_mul_i32 s%d, s%d, 6144\ns_add_u32 s%d, s%d, 131072" % (sWL, sWV, sWL, sWL))
        a("s_mov_b32 s%d, 0x20000" % (SWT + 3))
        for j in range(3):
            a("s_add_u32 s%d, s%d, %d" % (sT0, sWB, 4 * j))
            a("s_cmp_lt_u32 s%d, 256\ns_cselect_b32 s%d, s6, s44\ns_cselect_b32 s%d, s7, s45\ns_cselect_b32 s%d, 0x400000, 0x80000" % (sT0, SWT, SWT + 1, SWT + 2) if False else
              "s_cmp_lt_u32 s%d, 256\ns_cselect_b32 s%d, s6, s44\ns_cselect_b32 s%d, s7, s45\ns_cselect_b32 s%d, 8, 1\ns_lshl_b32 s%d, s%d, 19" % (sT0, SWT, SWT + 1, SWT + 2, SWT + 2, SWT + 2))
            if j == 2: a("s_cmp_eq_u32 s%d, 0\ns_cselect_b32 s%d, s%d, 0" % (sWV, SWT + 2, SWT + 2))
            a("s_and_b32 s%d, s%d, 255\ns_lshl_b32 s%d, s%d, 14\ns_lshl_b32 s%d, s%d, 7\ns_add_u32 s%d, s%d, s%d" % (sT0, sT0, sT0, sT0, sT1, sWC, sT0, sT0, sT1))
            a("s_add_u32 m0, s%d, %d\ns_nop 0\nbuffer_load_dwordx4 v%d, s[%d:%d], s%d offen lds" % (sWL, j * 2048, vWO, SWT, SWT + 3, sT0))
            a("s_add_u32 m0, s%d, %d\ns_add_u32 s%d, s%d, 8192\nbuffer_load_dwordx4 v%d, s[%d:%d], s%d offen lds" % (sWL, j * 2048 + 1024, sT0, sT0, vWO, SWT, SWT + 3, sT0))
        a("v_lshrrev_b32 v14, 2, v0\nv_and_b32 v14, 3, v14")
        a("v_lshrrev_b32 v15, 5, v0\nv_lshl_add_u32 v15, v15, 2, v14\nv_lshlrev_b32 v15, 7, v15")
        a("v_lshrrev_b32 v12, 4, v0\nv_and_b32 v12, 1, v12\nv_lshlrev_b32 v12, 1, v12")
        a("v_lshrrev_b32 v13, 1, v0\nv_and_b32 v13, 1, v13\nv_add_u32 v12, v12, v13")
        a("v_lshrrev_b32 v13, 1, v14\nv_lshlrev_b32 v13, 2, v13\nv_xor_b32 v12, v12, v13")
        a("v_lshl_add_u32 v15, v12, 4, v15\nv_and_b32 v13, 1, v0\nv_lshl_add_u32 v15, v13, 3, v15")
        a("v_add_u32 v%d, s%d, v15\nv_xor_b32 v%d, 64, v%d" % (vTR[0], sWL, vTR[1], vTR[0]))
    a("v_and_b32 v10, 31, v0\nv_lshrrev_b32 v11, 5, v0\nv_lshlrev_b32 v11, 2, v11\nv_sub_u32 v%d, v10, v11" % vU)
    for i in range(128): a("v_accvgpr_write_b32 a%d, 0" % (O + i))
    BC, BP = 80, 96
    vNEG = 249
    a("v_mov_b32 v%d, %s" % (vNEG, NEG))
    a("s_cmp_eq_u32 s%d, 0\ns_cselect_b32 s%d, 64, 32\nv_add_u32 v11, s%d, v%d" % (sRA, sT0, sT0, vU))
    items = [(BC + r, vU, 8 * (r // 4) + r % 4) for r in range(16)] + [(BP + r, 11, 8 * (r // 4) + r % 4) for r in range(8, 16)]
    ms = (sM0, sM1, sM2)
    for j in range(0, 24, 3):
        for q in range(3):
            d, u, key = items[j + q]
            a("v_subrev_u32 v%d, %d, v%d\nv_and_b32 v%d, -15, v%d\nv_cmp_eq_u32 s[%d:%d], 0, v%d" % (12 + q, key, u, 12 + q, 12 + q, ms[q], ms[q] + 1, 12 + q))
        for q in range(3):
            d = items[j + q][0]
            a("v_cndmask_b32 v%d, v%d, 0, s[%d:%d]" % (d, vNEG, ms[q], ms[q] + 1))
    for r in range(8): a("v_mov_b32 v%d, v%d" % (BP + r, vNEG))
    vPM = 250
    a("v_and_b32 v10, 1, v0\nv_lshlrev_b32 v10, 4, v10\nv_mov_b32 v11, 0xffff\nv_lshlrev_b32 v%d, v10, v11" % vPM)
    T.stamp(1)
    a("s_waitcnt vmcnt(%d)" % (30 if WTR else 24))
    T.stamp(2)
    SC, SP = (16, 32), (48, 64)
    for e in range(2):
        a("%s %s, %s, %s, %s" % (MF32, vr(SC[e], 16), vr(AKC + 4 * e, 4), vr(AQ + 4 * e, 4), vr(BC, 16)))
        a("%s %s, %s, %s, %s" % (MF32, vr(SP[e], 16), vr(AKP + 4 * e, 4), vr(AQ + 4 * e, 4), vr(BP, 16)))
    a("s_nop 9")
    TT = (112, 124)
    PA = (184, 196)
    MX = (10, 12); SM_ = (14, 251)
    for e in range(2):
        for j in range(4): a("v_max_f32 v%d, v%d, v%d" % (TT[e] + j, SP[e] + 8 + 2 * j, SP[e] + 9 + 2 * j))
        for j in range(8): a("v_max_f32 v%d, v%d, v%d" % (TT[e] + 4 + j, SC[e] + 2 * j, SC[e] + 2 * j + 1))
    for e in range(2):
        t = TT[e]; m = MX[e]
        a("v_max3_f32 v%d, v%d, v%d, v%d" % (m, t, t + 1, t + 2))
        for j in range(3, 11, 2): a("v_max3_f32 v%d, v%d, v%d, v%d" % (m, m, t + j, t + j + 1))
        a("v_max_f32 v%d, v%d, v%d\nv_mov_b32 v%d, v%d" % (m, m, t + 11, m + 1, m))
    a("s_nop 1")
    for e in range(2): a("v_permlane32_swap_b32 v%d, v%d" % (MX[e], MX[e] + 1))
    for e in range(2): a("v_max_f32 v%d, v%d, v%d" % (MX[e], MX[e], MX[e] + 1))
    for e in range(2):
        for j in range(12): a("v_sub_f32 v%d, v%d, v%d" % (TT[e] + j, TT[e] + j, MX[e]))
        for j in range(12): a("v_exp_f32 v%d, v%d" % (TT[e] + j, TT[e] + j))
    for e in range(2):
        for j in range(12): a("v_cvt_pk_bf16_f32 v%d, v%d, v%d" % (PA[e] + j, TT[e] + j, TT[e] + j))
        for j in range(12): a("v_and_b32 v%d, v%d, v%d" % (PA[e] + j, vPM, PA[e] + j))
    for e in range(2):
        a("v_add_f32 v%d, v%d, v%d" % (MX[e], TT[e], TT[e] + 1))
        for j in range(2, 12): a("v_add_f32 v%d, v%d, v%d" % (MX[e], MX[e], TT[e] + j))
        a("v_mov_b32 v%d, v%d" % (MX[e] + 1, MX[e]))
        for g in range(3):
            a("%s %s, %s, %s, %s" % (MF32, vr(SC[e], 16), vr(AV + 4 * g, 4), vr(PA[e] + 4 * g, 4), "0" if g == 0 else vr(SC[e], 16)))
    for e in range(2): a("v_permlane32_swap_b32 v%d, v%d" % (MX[e], MX[e] + 1))
    for e in range(2): a("v_add_f32 v%d, v%d, v%d" % (MX[e], MX[e], MX[e] + 1))
    for e in range(2): a("v_rcp_f32 v%d, v%d" % (MX[e], MX[e]))
    a("s_nop 0")
    for e in range(2): a("v_mul_f32 v%d, v%d, v%d" % (MX[e], MX[e], vGA))
    a("s_mul_i32 s%d, s%d, %d\ns_lshl_b32 s%d, s%d, 11\ns_add_u32 s%d, s%d, s%d\ns_add_u32 s%d, s%d, 0x%x" % (sT0, sRA, CROW, sT1, sHP, sT0, sT0, sT1, sT0, sT0, OFF_C + 256 * 1024))
    a("s_nop 1")
    for e in range(2):
        src = SC[e] + 8 * e
        for j in range(8): a("v_mul_f32 v%d, v%d, v%d" % (src + j, MX[e], src + j))
        for j in range(4): a("v_cvt_pk_bf16_f32 v%d, v%d, v%d" % (PA[e] + j, src + 2 * j, src + 2 * j + 1))
        a("buffer_store_dwordx4 %s, v%d, s[%d:%d], s%d offen offset:%d" % (vr(PA[e], 4), vK, SV, SV + 3, sT0, e * 1024))
    a("v_sub_f32 v%d, 1.0, v%d\nv_sub_f32 v%d, 1.0, v%d\nv_mov_b32 v%d, 0\nv_mov_b32 v%d, 0" % (vGL, vGL, vGS, vGS, vL[0], vL[1]))

    def kfrag(p, idx):
        return ("K", p * 32768 + idx * 1024)
    def vfrag(p, g, db):
        return ("V", p * 32768 + (g // 2) * 8192 + db * 2048 + (g % 2) * 1024)
    def rd(slot, fr):
        return "ds_read_b128 %s, v%d offset:%d" % (ar(FR + 4 * (slot % NFR), 4), vK if fr[0] == "K" else vV, fr[1])
    def mf_list(p, pv, qk, c0=None):
        L = []
        Pp = P[1 - p]; Sn = S[1 - p]
        if pv == 1:
            for g in range(4):
                for db in range(4):
                    L.append((vfrag(1 - p, g, db), ["%s %s, {F}, %s, %s" % (MF32, ar(O + rb * 64 + db * 16, 16), vr(Pp + rb * 16 + g * 4, 4), ar(O + rb * 64 + db * 16, 16)) for rb in range(2)]))
        elif pv == 2:
            for g in range(8):
                for db in range(4):
                    L.append((vfrag(1 - p, g, db), ["%s %s, {F}, %s, %s" % (MF32, ar(O + db * 16, 16), vr(Pp + g * 4, 4), ar(O + db * 16, 16))]))
        if qk == 1:
            for kb in range(2):
                for s in range(8):
                    ms_ = []
                    for rb in range(2):
                        d = vr(Sn + rb * 32 + kb * 16, 16)
                        c = d if s else (c0 if c0 is not None else vr(NM + rb * 16, 16))
                        ms_.append("%s %s, {F}, %s, %s" % (MF32, d, ar(Q + rb * 32 + s * 4, 4), c))
                    L.append((kfrag(1 - p, kb * 8 + s), ms_))
        elif qk == 2:
            for kb in range(4):
                for s in range(8):
                    d = vr(Sn + kb * 16, 16)
                    L.append((kfrag(1 - p, kb * 8 + s), ["%s %s, {F}, %s, %s" % (MF32, d, ar(Q + s * 4, 4), d if s else vr(NM, 16))]))
        return L
    def sm_list(p, sm):
        Sc, Pc = S[p], P[p]
        order = [0, 2, 1, 3] if sm == 1 else [0, 1, 2, 3]
        els = [b * 16 + j for b in order for j in range(16)]
        V = []
        first = {0: True, 1: True}
        def tail(n):
            e = els[n]; u = TM + (n % 8); lt = vLT[e // 32]
            out = []
            if first[e // 32]:
                out.append((4, "v_add_f32 v%d, v%d, v%d" % (lt, u, u + 1))); first[e // 32] = False
            else:
                out.append((4, "v_add_f32 v%d, v%d, v%d" % (lt, lt, u)))
                out.append((4, "v_add_f32 v%d, v%d, v%d" % (lt, lt, u + 1)))
            out.append((4, "v_cvt_pk_bf16_f32 v%d, v%d, v%d" % (Pc + e // 2, u, u + 1)))
            return out
        for n in range(0, 64, 2):
            tl = tail(n - 2) if n >= 2 else []
            V.append((8, "v_exp_f32 v%d, v%d" % (TM + n % 8, Sc + els[n])))
            V += tl[:1]
            V.append((8, "v_exp_f32 v%d, v%d" % (TM + n % 8 + 1, Sc + els[n + 1])))
            V += tl[1:]
        V += tail(62)
        return V
    rare_blocks = []
    def step(p, pv, sm, qk, dK, dV, pre_in=True, pre_out=True, c0=None, extra_end=None, advK=True):
        L = mf_list(p, pv, qk, c0)
        nf = len(L)
        nxt = [vfrag(p, g, db) for g in range(2) for db in range(4)][:PD]
        M = [(f, t) for f, (fr, ts) in enumerate(L) for t in ts]
        nm = len(M)
        fill = [[] for _ in range(nm)]
        G = []
        if dV: G += dma("V", dV, p) + [adv("V", dV)]
        if dK: G += dma("K", dK, p) + ([adv("K", dK)] if advK else [])
        lim = max(len(G), (nm * 5) // 8)
        dslots = spread(len(G), 1, min(nm, lim + 1)) if G else []
        cost = [0] * nm
        for g, m in zip(G, dslots):
            fill[m] += g; cost[m] += 4 * len(g)
        firstm = {}
        for m, (f, t) in enumerate(M): firstm.setdefault(f, m)
        for f in range(nf): cost[firstm[f]] += 8
        V = sm_list(p, sm) if sm else []
        if V:
            V.append((4, "v_max_f32 v%d, v%d, v%d" % (vX, vLT[0], vLT[1])))
            V.append((4, "v_cmp_lt_f32 vcc, s%d, v%d" % (sTH, vX)))
            last = nm - 2
            tot = sum(c for c, _ in V) + sum(cost[:last])
            acc = 0; vi = 0
            for m in range(last):
                acc += cost[m]
                tgt = tot * (m + 1) / last
                while vi < len(V) and (acc + V[vi][0] / 2 <= tgt or m == last - 1):
                    fill[m].append(V[vi][1]); acc += V[vi][0]; vi += 1
        if not pre_in:
            for f in range(PD): a(rd(f, L[f][0]))
        barf = nf + 1 - PD
        for m, (f, t) in enumerate(M):
            if firstm[f] == m:
                if f == barf and pre_out:
                    a("s_waitcnt vmcnt(0) lgkmcnt(0)\ns_barrier")
                elif f < barf or not pre_out:
                    a("s_waitcnt lgkmcnt(%d)" % (min(f + PD - 1, nf - 1) - f))
            a(t.replace("{F}", ar(FR + 4 * (f % NFR), 4)))
            if firstm[f] == m:
                if f + PD < nf: a(rd(f + PD, L[f + PD][0]))
                elif pre_out and f == barf:
                    a(rd(nf, nxt[0])); a(rd(nf + 1, nxt[1]))
                elif pre_out and f > barf: a(rd(f + PD, nxt[f + PD - nf]))
            for x in fill[m]: a(x)
        assert nf % NFR == 0
        if sm:
            lr = a.label("rare"); lb = a.label("back")
            a("s_cbranch_vccnz %s\n%s:" % (lr, lb))
            rare_blocks.append((lr, lb, p, sm, qk))
            if sm == 1: a("v_add_f32 v%d, v%d, v%d\nv_add_f32 v%d, v%d, v%d" % (vL[0], vL[0], vLT[0], vL[1], vL[1], vLT[1]))
            else: a("v_add_f32 v%d, v%d, v%d\nv_add_f32 v%d, v%d, v%d" % (vL[0], vL[0], vLT[0], vL[0], vL[0], vLT[1]))
    def rowmax(dst, regs_):
        a("v_max3_f32 v%d, v%d, v%d, v%d" % (dst, regs_[0], regs_[1], regs_[2]))
        j = 3
        while j + 1 < len(regs_):
            a("v_max3_f32 v%d, v%d, v%d, v%d" % (dst, dst, regs_[j], regs_[j + 1])); j += 2
        if j < len(regs_): a("v_max_f32 v%d, v%d, v%d" % (dst, dst, regs_[j]))
        a("v_mov_b32 v%d, v%d\ns_nop 1\nv_permlane32_swap_b32 v%d, v%d\nv_max_f32 v%d, v%d, v%d" % (dst + 1, dst, dst, dst + 1, dst, dst, dst + 1))
    def mask(base, nblk, kb0):
        a("s_nop 7\ns_nop 3")
        for j in range(nblk):
            lf = a.label("mfull"); le = a.label("mend")
            kb = kb0 + j; r0 = base + 16 * j
            a("s_cmp_gt_u32 s%d, %d\ns_cbranch_scc1 %s" % (sWV, kb, le))
            if kb > 0: a("s_cmp_lt_u32 s%d, %d\ns_cbranch_scc1 %s" % (sWV, kb, lf))
            rr = list(range(16))
            for c in range(0, 16, 3):
                grp = rr[c:c + 3]
                for q, r in enumerate(grp): a("v_cmp_gt_i32 s[%d:%d], %d, v%d" % (ms[q], ms[q] + 1, 8 * (r // 4) + r % 4, vU))
                if len(grp) < 3: a("s_nop 1")
                for q, r in enumerate(grp): a("v_cndmask_b32 v%d, v%d, v%d, s[%d:%d]" % (r0 + r, r0 + r, vNEG, ms[q], ms[q] + 1))
            if kb > 0:
                a("s_branch %s\n%s:" % (le, lf))
                for r in range(16): a("v_mov_b32 v%d, v%d" % (r0 + r, vNEG))
            a(le + ":")

    T.stamp(3)
    a("s_waitcnt vmcnt(%d)\ns_barrier" % (12 if WTR else 6))
    T.stamp(4)
    step(1, 0, 0, 1, 0, 0, pre_in=False, pre_out=False, c0="0")
    l0 = a.label("nomask0")
    a("s_cmp_lg_u32 s%d, 0\ns_cbranch_scc1 %s" % (sI, l0))
    mask(S[0] + 32, 2, 0)
    a(l0 + ":")
    a("s_nop 7\ns_nop 3")
    for rb in range(2):
        rowmax(vX + 2 * rb, [S[0] + rb * 32 + j for j in range(32)])
    for rb in range(2):
        for j in range(16): a("v_sub_f32 v%d, 0, v%d" % (NM + rb * 16 + j, vX + 2 * rb))
    for rb in range(2):
        for j in range(32): a("v_sub_f32 v%d, v%d, v%d" % (S[0] + rb * 32 + j, S[0] + rb * 32 + j, vX + 2 * rb))
    a("s_waitcnt vmcnt(0)")
    if not WTR: a("s_barrier")
    if WTR:
        WT = 176
        for j in range(3):
            for cb in range(2):
                a("ds_read_b64_tr_b16 %s, v%d offset:%d" % (vr(WT + 8 * j + 4 * cb, 2), vTR[cb], j * 2048))
                a("ds_read_b64_tr_b16 %s, v%d offset:%d" % (vr(WT + 8 * j + 4 * cb + 2, 2), vTR[cb], j * 2048 + 1024))
        a("s_barrier")
        a("s_mul_i32 s%d, s%d, %d\ns_lshl_b32 s%d, s%d, 11\ns_add_u32 s%d, s%d, s%d\ns_add_u32 s%d, s%d, 0x%x" % (sT0, sWC, WROW, sT1, sWB, sT0, sT0, sT1, sT0, sT0, OFF_W))
        a("s_waitcnt lgkmcnt(0)")
        lw = a.label("wt")
        for j in range(3):
            if j == 2: a("s_cmp_lg_u32 s%d, 0\ns_cbranch_scc1 %s" % (sWV, lw))
            for cb in range(2):
                a("buffer_store_dwordx4 %s, v%d, s[%d:%d], s%d offen offset:%d" % (vr(WT + 8 * j + 4 * cb, 4), vK, SV, SV + 3, sT0, cb * 1024))
            a("s_add_u32 s%d, s%d, 8192" % (sT0, sT0))
        a(lw + ":")
    step(0, 0, 1, 1, 2, 1, pre_in=False, advK=False)
    a("s_cmp_eq_u32 s%d, 0\ns_cselect_b32 s%d, 0x8000, 0x4000" % (sI, sT0) if False else "s_cmp_eq_u32 s%d, 0\ns_cselect_b32 s%d, 2, 1\ns_lshl_b32 s%d, s%d, 14\ns_add_u32 s%d, s%d, s%d" % (sI, sT0, sT0, sT0, sKO, sKO, sT0))
    T.stamp(5)
    lT0, lT1, lT2b, lL1, lL2, lT16, lE = [a.label(x) for x in ("T0", "T1", "T2b", "L1", "L2", "T16", "E17")]
    a("s_cmp_eq_u32 s%d, 0\ns_cbranch_scc1 %s" % (sI, lT1))
    a("s_mov_b32 s%d, s%d" % (sT, sI))
    a(".p2align 6\n" + lL1 + ":")
    step(1, 1, 1, 1, 1, 1)
    a("s_sub_u32 s%d, s%d, 1\ns_cmp_eq_u32 s%d, 0\ns_cbranch_scc1 %s" % (sT, sT, sT, lT0))
    step(0, 1, 1, 1, 1, 1)
    a("s_branch %s" % lL1)
    a(lT0 + ":")
    mask(S[0] + 32, 2, 0)
    step(0, 1, 1, 1, 2, 1)
    a(lT1 + ":")
    a("s_cmp_eq_u32 s%d, 7\ns_cselect_b32 s%d, 0, s%d" % (sI, SK + 2, SK + 2))
    mask(S[1] + 32, 2, 2)
    step(1, 1, 1, 2, 2, 1)
    a("s_cmp_eq_u32 s%d, 7\ns_cbranch_scc1 %s" % (sI, lT2b))
    step(0, 1, 2, 2, 2, 2)
    a("s_sub_u32 s%d, 7, s%d" % (sT, sI))
    a(".p2align 6\n" + lL2 + ":")
    a("s_cmp_eq_u32 s%d, 1\ns_cselect_b32 s%d, 0, s%d" % (sT, SK + 2, SK + 2))
    step(1, 2, 2, 2, 2, 2)
    a("s_sub_u32 s%d, s%d, 1\ns_cmp_eq_u32 s%d, 0\ns_cbranch_scc1 %s" % (sT, sT, sT, lT16))
    step(0, 2, 2, 2, 2, 2)
    a("s_branch %s" % lL2)
    a(lT2b + ":")
    mask(S[0], 4, 0)
    step(0, 1, 2, 0, 0, 2)
    a("s_branch %s" % lE)
    a(lT16 + ":")
    mask(S[0], 4, 0)
    step(0, 2, 2, 0, 0, 2)
    a(lE + ":")
    step(1, 2, 0, 0, 0, 0, pre_out=False)
    T.stamp(6)
    for rb in (1, 0):
        l = vL[rb]; g = (vGL, vGS)[rb]; blk = (sQL, sQS)[rb]
        a("v_mov_b32 v%d, v%d\ns_nop 1\nv_permlane32_swap_b32 v%d, v%d\nv_add_f32 v%d, v%d, v%d\nv_rcp_f32 v%d, v%d\ns_nop 0\nv_mul_f32 v%d, v%d, v%d" % (vX, l, l, vX, l, l, vX, l, l, l, l, g))
        a("s_mul_i32 s%d, s%d, %d\ns_lshl_b32 s%d, s%d, 13\ns_add_u32 s%d, s%d, s%d\ns_add_u32 s%d, s%d, 0x%x" % (sT0, blk, CROW, sT1, sHD, sT0, sT0, sT1, sT0, sT0, OFF_C))
        for c in range(8):
            t = 16 + rb * 64 + c * 8; pk = 144 + rb * 32 + c * 4
            for j in range(8): a("v_accvgpr_read_b32 v%d, a%d" % (t + j, O + rb * 64 + c * 8 + j))
            for j in range(8): a("v_mul_f32 v%d, v%d, v%d" % (t + j, l, t + j))
            for j in range(4): a("v_cvt_pk_bf16_f32 v%d, v%d, v%d" % (pk + j, t + 2 * j, t + 2 * j + 1))
            if c == 4: a("s_add_u32 s%d, s%d, 4096" % (sT0, sT0))
            a("buffer_store_dwordx4 %s, v%d, s[%d:%d], s%d offen offset:%d" % (vr(pk, 4), vK, SV, SV + 3, sT0, (c % 4) * 1024))
    T.dump(SV, sWV, 4)
    a(done + ":\ns_endpgm")
    for (lr, lb, p, sm, qk) in rare_blocks:
        a(lr + ":")
        a("s_nop 7\ns_nop 7")
        Sc, Sn = S[p], S[1 - p]
        for rb in range(2 if sm == 1 else 1):
            cur = [Sc + rb * 32 + j for j in range(32)] if sm == 1 else [Sc + j for j in range(64)]
            d, f = vX, vX + 2
            rowmax(d, cur)
            a("v_max_f32 v%d, 0, v%d\nv_exp_f32 v%d, -v%d" % (d, d, f, d))
            for r in cur: a("v_sub_f32 v%d, v%d, v%d" % (r, r, d))
            for j in range(16): a("v_sub_f32 v%d, v%d, v%d" % (NM + rb * 16 + j, NM + rb * 16 + j, d))
            nx = []
            if qk == 1: nx = [Sn + rb * 32 + j for j in range(32)]
            elif qk == 2 and rb == 0: nx = [Sn + j for j in range(64)]
            for r in nx: a("v_sub_f32 v%d, v%d, v%d" % (r, r, d))
            a("v_mul_f32 v%d, v%d, v%d" % (vL[rb], vL[rb], f))
            for j in range(0, 64, 4):
                for q in range(4): a("v_accvgpr_read_b32 v%d, a%d" % (TM + q, O + rb * 64 + j + q))
                for q in range(4): a("v_mul_f32 v%d, v%d, v%d" % (TM + q, TM + q, f))
                for q in range(4): a("v_accvgpr_write_b32 a%d, v%d" % (O + rb * 64 + j + q, TM + q))
        for c, x in sm_list(p, sm): a(x)
        a("s_branch %s" % lb)
    a.add_kernel(name, 512, 100 if ts else 64, 256)
    a.launch(name, 256, 256, 131072 + 24576)
```

```python
from gen_common import *

def gen_p3(a, name="p3_kernel", DEPTH=10, NW=4, ts=False, MAP=0, LEAD=0):
    a.begin_kernel(name)
    T = TS(a, ts, 2)
    done = a.label("p3done")
    SC_, SO = 12, 24
    sWV, sRB, sCB, sT0, sT1, sAO, sAO2, sWO, sLB = 28, 29, 30, 31, 32, 33, 34, 35, 36
    vL16 = 1
    ACC = 16
    AF = 80
    NJ = 288 // NW
    a("s_cmp_ge_u32 s2, 256\ns_cbranch_scc1 %s" % done)
    T.stamp(0)
    a("s_load_dwordx2 s[4:5], s[0:1], 96\ns_load_dwordx2 s[10:11], s[0:1], 80")
    a("v_lshrrev_b32 v10, 6, v0\nv_and_b32 v0, 63, v0\nv_readfirstlane_b32 s%d, v10" % sWV)
    if MAP == 0:
        a("s_and_b32 s%d, s2, 7\ns_lshl_b32 s%d, s%d, 2\ns_lshr_b32 s%d, s2, 6\ns_add_u32 s%d, s%d, s%d" % (sRB, sRB, sRB, sT0, sRB, sRB, sT0))
        a("s_lshr_b32 s%d, s2, 3\ns_and_b32 s%d, s%d, 7" % (sCB, sCB, sCB))
    else:
        a("s_and_b32 s%d, s2, 6\ns_lshl_b32 s%d, s%d, 2\ns_lshr_b32 s%d, s2, 5\ns_add_u32 s%d, s%d, s%d" % (sRB, sRB, sRB, sT0, sRB, sRB, sT0))
        a("s_lshr_b32 s%d, s2, 3\ns_and_b32 s%d, s%d, 3\ns_and_b32 s%d, s2, 1\ns_lshl_b32 s%d, s%d, 2\ns_add_u32 s%d, s%d, s%d" % (sCB, sCB, sCB, sT0, sT0, sT0, sCB, sCB, sT0))
    a("v_lshlrev_b32 v%d, 4, v0" % vL16)
    a("s_lshl_b32 s%d, s%d, 14" % (sLB, sWV))
    a("s_mul_i32 s%d, s%d, %d\ns_lshl_b32 s%d, s%d, 10\ns_add_u32 s%d, s%d, s%d\ns_add_u32 s%d, s%d, 0x%x\ns_add_u32 s%d, s%d, %d" % (sAO, sRB, 2 * CROW, sT0, sWV, sAO, sAO, sT0, sAO, sAO, OFF_C, sAO2, sAO, CROW))
    a("s_mul_i32 s%d, s%d, %d\ns_lshl_b32 s%d, s%d, 11\ns_add_u32 s%d, s%d, s%d\ns_add_u32 s%d, s%d, 0x%x" % (sWO, sCB, WROW, sT0, sWV, sWO, sWO, sT0, sWO, sWO, OFF_W))
    sWR = 37
    if LEAD:
        a("s_sub_u32 s%d, s%d, s%d\ns_and_b32 s%d, s%d, 3\ns_and_b32 s%d, s%d, 3\ns_cmp_eq_u32 s%d, s%d" % (sT0, sRB, sCB, sT0, sT0, sT1, sWV, sT0, sT1))
        a("s_cselect_b32 s%d, %d, 0\ns_cselect_b32 s%d, %d, 0" % (sT0, LEAD * 1024 * NW, sWR, 288 * 1024))
        a("s_add_u32 s%d, s%d, s%d\ns_add_u32 s%d, s%d, s%d\ns_add_u32 s%d, s%d, s%d\ns_add_u32 s%d, s%d, s%d" % (sAO, sAO, sT0, sAO2, sAO2, sT0, sWO, sWO, sT0, sWO, sWO, sT0))
    a("s_waitcnt lgkmcnt(0)")
    srd(a, SC_, 4, WS_SIZE); srd(a, SO, 10, 2048 * 1024)
    def issue(j):
        r = AF + 16 * (j % DEPTH)
        L = ["buffer_load_dwordx4 %s, v%d, s[%d:%d], s%d offen" % (vr(r, 4), vL16, SC_, SC_ + 3, sAO),
             "buffer_load_dwordx4 %s, v%d, s[%d:%d], s%d offen" % (vr(r + 8, 4), vL16, SC_, SC_ + 3, sWO),
             "buffer_load_dwordx4 %s, v%d, s[%d:%d], s%d offen" % (vr(r + 4, 4), vL16, SC_, SC_ + 3, sAO2),
             "buffer_load_dwordx4 %s, v%d, s[%d:%d], s%d offen offset:1024" % (vr(r + 12, 4), vL16, SC_, SC_ + 3, sWO),
             "s_add_u32 s%d, s%d, %d\ns_add_u32 s%d, s%d, %d\ns_add_u32 s%d, s%d, %d" % (sAO, sAO, 1024 * NW, sAO2, sAO2, 1024 * NW, sWO, sWO, 2048 * NW)]
        if LEAD and j == NJ - LEAD - 1:
            L[4] += "\ns_sub_u32 s%d, s%d, s%d\ns_sub_u32 s%d, s%d, s%d\ns_sub_u32 s%d, s%d, s%d\ns_sub_u32 s%d, s%d, s%d" % (sAO, sAO, sWR, sAO2, sAO2, sWR, sWO, sWO, sWR, sWO, sWO, sWR)
        return L
    for j in range(DEPTH - 1):
        for x in issue(j): a(x)
    for j in range(NJ):
        nx = issue(j + DEPTH - 1) if j + DEPTH - 1 < NJ else []
        a("s_waitcnt vmcnt(%d)" % (4 * min(DEPTH - 2, NJ - 1 - j)))
        if j == 0: T.stamp(1)
        if j == NJ // 3: T.stamp(2)
        if j == 2 * NJ // 3: T.stamp(3)
        r = AF + 16 * (j % DEPTH)
        q = 0
        for cb in range(2):
            for rb in range(2):
                acc = vr(ACC + (cb * 2 + rb) * 16, 16)
                a("%s %s, %s, %s, %s" % (MF32, acc, vr(r + 8 + 4 * cb, 4), vr(r + 4 * rb, 4), "0" if j == 0 else acc))
                if nx: a(nx[q])
                q += 1
        if nx: a(nx[4])
    T.stamp(4)
    RPW = 64 // NW
    NP = RPW // 8
    a("v_add_u32 v10, s%d, v%d" % (sLB, vL16))
    a("v_lshrrev_b32 v11, 3, v0\ns_mul_i32 s%d, s%d, %d\nv_add_u32 v11, s%d, v11" % (sT0, sWV, RPW, sT0))
    a("v_and_b32 v12, 7, v0\nv_lshrrev_b32 v13, 2, v12\nv_lshlrev_b32 v13, 13, v13\nv_and_b32 v14, 3, v12\nv_lshl_add_u32 v13, v14, 10, v13")
    a("v_lshrrev_b32 v14, 5, v11\nv_lshl_add_u32 v13, v14, 12, v13\nv_and_b32 v14, 31, v11\nv_lshl_add_u32 v13, v14, 4, v13\nv_add_u32 v14, 0x10000, v13")
    a("v_lshlrev_b32 v11, 10, v11\nv_lshl_add_u32 v11, v12, 4, v11\ns_lshl_b32 s%d, s%d, 16\ns_lshl_b32 s%d, s%d, 7\ns_add_u32 s%d, s%d, s%d" % (sT0, sRB, sT1, sCB, sT0, sT0, sT1))
    for q in range(16):
        a("ds_write_b128 v10, %s offset:%d" % (vr(ACC + 4 * q, 4), q * 1024))
    a("s_waitcnt lgkmcnt(0)\ns_barrier")
    for ps in range(NP):
        for w in range(NW):
            for h in range(2):
                a("ds_read_b128 %s, v%d offset:%d" % (vr(16 + (ps * NW + w) * 8 + h * 4, 4), 13 if w < 4 else 14, (w % 4) * 16384 + h * 512 + ps * 128))
    n = 0
    for ps in range(NP):
        b = 16 + ps * NW * 8
        for w in range(1, NW):
            a("s_waitcnt lgkmcnt(%d)" % (16 - 2 * (ps * NW + w + 1)))
            for j in range(8): a("v_add_f32 v%d, v%d, v%d" % (b + j, b + j, b + w * 8 + j))
        for j in range(4): a("v_cvt_pk_bf16_f32 v%d, v%d, v%d" % (80 + 4 * ps + j, b + 2 * j, b + 1 + 2 * j))
        if ps: a("s_add_u32 s%d, s%d, 8192" % (sT0, sT0))
        a("buffer_store_dwordx4 %s, v11, s[%d:%d], s%d offen" % (vr(80 + 4 * ps, 4), SO, SO + 3, sT0))
    T.dump(SC_, sWV, NW)
    a(done + ":\ns_endpgm")
    nv = AF + 16 * DEPTH
    nv = (nv + 7) // 8 * 8
    assert nv <= 256
    a.add_kernel(name, nv, 100 if ts else 48, nv)
    a.launch(name, 256, 64 * NW, 16384 * NW)
```

```python
import sys
from gen_common import *
from gen_p1 import gen_p1
import hazard
def build(which=("p1", "p2", "p3"), out="gated_mix__sliding_local_dilated__compressed_kv_cla__prompt.s", ts=False, **kw):
    a = Asm()
    if "p1" in which: gen_p1(a, ts=ts, **kw.get("p1", {}))
    if "p1n" in which:
        from gen_f import gen_p1n
        gen_p1n(a, ts=ts, **kw.get("p1", {}))
    if "f" in which:
        from gen_fused import gen_fused
        gen_fused(a, ts=ts, endlabel=("L_code_end" if "p4" in which else None), **kw.get("f", {}))
    if "g" in which:
        from gen2 import gen2
        gen2(a, ts=ts, **kw.get("f", {}))
    if "p2" in which:
        from gen_p2 import gen_p2
        gen_p2(a, ts=ts, **kw.get("p2", {}))
    if "p3" in which:
        from gen_p3 import gen_p3
        gen_p3(a, ts=ts, **kw.get("p3", {}))
    if "p4" in which:
        from gen_p4 import gen_p4
        gen_p4(a, ts=ts, **kw.get("p4", {}))
    ref = open("gated_mix__sliding_local_dilated__compressed_kv_cla__prompt.s.ref").read().split("\n")
    hdr = [l for l in ref if l.startswith(";") and "@launch" not in l][:14]
    txt = a.text(header="\n".join(hdr))
    if kw.get("single"):
        KN = "gated_mix__sliding_local_dilated__compressed_kv_cla__prompt_kernel"
        txt = txt.replace("; @launch kernel=p1_kernel ", "; @launch ").replace("p1_kernel", KN)
    open(out, "w").write(txt)
    print("hazards:", hazard.check(txt.split("\n")), "bytes:", len(txt))
if __name__ == "__main__":
    which = sys.argv[1].split(",") if len(sys.argv) > 1 else ("p1", "p2", "p3")
    out = sys.argv[2] if len(sys.argv) > 2 else "gated_mix__sliding_local_dilated__compressed_kv_cla__prompt.s"
    build(which, out, ts=(len(sys.argv) > 3 and sys.argv[3] == "ts"), **(eval(sys.argv[4]) if len(sys.argv) > 4 else {}))
```

```python
from gen_common import *

pX, pWQKV, pWO0, pC, pWQ, pWUK, pWUV, pBWO, pGATE, pDBG, pWS = 36, 38, 40, 44, 46, 48, 50, 52, 54, 58, 60
pWO = 58
NEG = "0xff800000"
THRESH = fbits(2.0 ** 24)
WSL = (98304, 131072)
LDS_G = WSL[0] + 24576
def aslot(g): return ((g + 2) % 3) * 32768

def emit(a, M, streams):
    n = len(M)
    fill = [[] for _ in range(n)]
    for (G, l, h) in streams:
        if not G: continue
        for g, m in zip(G, spread(len(G), l, min(h, n))):
            fill[m] += g if isinstance(g, list) else [g]
    for m in range(n):
        a(M[m])
        for x in fill[m]: a(x)
def isvm(x): return x.startswith("buffer_") or x.startswith("global_")

def gen_fused(a, name="p1_kernel", ts=False, NSK=30, WSP=16, PF=1, PKMUL=0, next_kernel=None, PD=6, TS2=0, XSL=3, ST=""):
    a.begin_kernel(name)
    T = TS(a, ts, 0)
    done = a.label("fdone")
    lAttn, lRare = a.label("attn"), a.label("rarecode")
    sWV = 3
    SA, SW, SX, SO, SD = 4, 8, 12, 16, 40
    sH, sI, sT0, sT1, sT2 = 20, 21, 22, 23, 24
    sAS, sAS2, sWS, sXS, sAM, sWM, sXM, sCNT, sOK, sDS, sSC = 25, 26, 27, 28, 29, 30, 31, 32, 33, 34, 35
    sQL, sQS, sU, sOA, sAD, sWD, sOJ, sVD, sFA, sGR = 92, 93, 94, 95, 96, 97, 56, 57, 63, 99
    sKO, sVO, sW4, sW8, sTH, sT = 48, 49, 50, 51, 54, 55
    vL16, vAO, vWO, vXO = 1, (2, 3), 4, 5
    vAR, vWR, vXR = (6, 7, 8, 9), (10, 11, 12, 13), (14, 15)
    FS = (16, 48); TT, PK = (80, 80), 96
    vFO, vONE = 88, 89
    QA = 128
    t2 = [0]
    def bar(waitstr):
        if TS2:
            n = t2[0]; t2[0] += 1
            if n > 0: a("v_writelane_b32 v91, s64, %d\nv_writelane_b32 v91, s66, %d" % (2 * n - 2, 2 * n - 1))
            a("s_memtime s[64:65]")
        a(waitstr + "\ns_barrier")
        if TS2: a("s_memtime s[66:67]")
    a("s_cmp_ge_u32 s2, 256\ns_cbranch_scc1 %s" % done)
    T.stamp(0)
    a("s_load_dwordx16 s[36:51], s[0:1], 0\ns_load_dwordx8 s[52:59], s[0:1], 64\ns_load_dwordx2 s[60:61], s[0:1], 96")
    a("v_lshrrev_b32 v16, 6, v0\nv_and_b32 v0, 63, v0\nv_readfirstlane_b32 s%d, v16" % sWV)
    a("s_and_b32 s%d, s2, 7\ns_lshl_b32 s%d, s%d, 2\ns_lshr_b32 s%d, s2, 3\ns_and_b32 s%d, s%d, 3\ns_add_u32 s%d, s%d, s%d" % (sH, sH, sH, sT0, sT0, sT0, sH, sH, sT0))
    a("s_lshr_b32 s%d, s2, 5" % sI)
    a("v_lshlrev_b32 v%d, 4, v0" % vL16)
    a("v_lshrrev_b32 v16, 3, v0\nv_lshrrev_b32 v17, 4, v0\nv_and_b32 v18, 7, v0")
    for n in range(2):
        a("v_add_u32 v19, %d, v17\nv_xor_b32 v19, v19, v18\nv_lshlrev_b32 v19, 4, v19\nv_lshl_add_u32 v%d, v16, 10, v19" % (4 * n, vAO[n]))
    a("v_and_b32 v19, 15, v0\nv_lshlrev_b32 v20, 2, v17\nv_xor_b32 v19, v19, v20\nv_lshlrev_b32 v19, 4, v19\nv_lshl_add_u32 v%d, v17, 13, v19" % vWO)
    a("s_sub_u32 s%d, 15, s%d\ns_bitcmp1_b32 s%d, 0\ns_cselect_b32 s%d, s%d, s%d\ns_lshl_b32 s%d, s%d, 1\ns_lshr_b32 s%d, s%d, 1\ns_add_u32 s%d, s%d, s%d" % (sT0, sI, sWV, sT0, sT0, sI, sT0, sT0, sT1, sWV, sT0, sT0, sT1))
    a("s_lshl_b32 s%d, s%d, 16\ns_add_u32 s%d, s%d, 32768" % (sAS, sT0, sAS2, sAS))
    a("s_lshl_b32 s%d, s%d, 13\ns_mov_b32 s%d, s%d" % (sAM, sWV, sWM, sAM))
    a("s_and_b32 s%d, s%d, 1\ns_lshl_b32 s%d, s%d, 18\ns_lshl_b32 s%d, s%d, 8\ns_add_u32 s%d, s%d, s%d" % (sT0, sWV, sT0, sT0, sWS, sH, sWS, sWS, sT0))
    a("s_and_b32 s%d, s2, 31" % sU)
    a("s_waitcnt lgkmcnt(0)")
    srd(a, SA, pC, 0x200000)
    a("s_cmp_lt_u32 s%d, 2\ns_cselect_b32 s%d, s%d, s%d\ns_cselect_b32 s%d, s%d, s%d\ns_mov_b32 s%d, 0x400000\ns_mov_b32 s%d, 0x20000" % (sWV, SW, pWUK, pWUV, SW + 1, pWUK + 1, pWUV + 1, SW + 2, SW + 3))
    def dma_act(g):
        G = []
        for n in range(8):
            G.append(["s_add_u32 m0, s%d, %d" % (sAM, aslot(g) + n * 1024), "s_add_u32 s%d, s%d, %d" % (sDS, sAS if n < 4 else sAS2, (n % 4) * 8192 + (g % 8) * 128),
                      "buffer_load_dwordx4 v%d, s[%d:%d], s%d offen lds" % (vAO[n % 2], SA, SA + 3, sDS)])
        return G
    def dma_w(g, withx=True):
        G = []
        for n in range(8 if g < 8 else 4):
            G.append(["s_add_u32 m0, s%d, %d" % (sWM, WSL[g % 2] + n * 1024), "s_add_u32 s%d, s%d, %d" % (sDS, sWS, n * 32768 + (g % 8) * 0x80000),
                      "buffer_load_dwordx4 v%d, s[%d:%d], s%d offen lds" % (vWO, SW, SW + 3, sDS)])
        if g >= 8 and withx:
            for n in range(2):
                G.append(["s_add_u32 m0, s%d, %d" % (sXM, WSL[g % 2] + 16384 + n * 1024), "s_add_u32 s%d, s%d, %d" % (sDS, sXS, n * 24576 + (g % 8) * 64 * 3072),
                          "buffer_load_dwordx4 v%d, s[%d:%d], s%d offen lds" % (vXO, SX, SX + 3, sDS)])
        return G
    for gw, ga in zip(dma_w(0), dma_act(0)):
        for x in gw + ga: a(x)
    NSL = 8
    def preg(k): return 128 + 2 * k
    def pf(k): return "global_load_dword v90, %s, off" % vr(preg(k), 2)
    def pfa(k, base, vo, so, imm=0):
        r = preg(k)
        a("s_add_u32 s%d, s%d, %d\nv_mov_b32 v%d, s%d\nv_add_u32 v%d, s%d, v%d" % (sT2, so, imm, r + 1, base + 1, r, sT2, vo))
        a("v_add_co_u32 v%d, vcc, s%d, v%d\ns_nop 1\nv_addc_co_u32 v%d, vcc, 0, v%d, vcc" % (r, base, r, r + 1, r + 1))
    def pfnone(k): a("v_mov_b32 v%d, s%d\nv_mov_b32 v%d, s%d" % (preg(k), pGATE, preg(k) + 1, pGATE + 1))
    if PF:
        l1, l3, le = a.label("pf1"), a.label("pf3"), a.label("pfe")
        a("s_cmp_eq_u32 s%d, 1\ns_cbranch_scc1 %s\ns_cmp_eq_u32 s%d, 3\ns_cbranch_scc1 %s" % (sWV, l1, sWV, l3))
        a("v_and_b32 v26, 31, v0\nv_lshlrev_b32 v26, 7, v26\ns_lshl_b32 s%d, s2, 13\ns_lshl_b32 s%d, s%d, 11\ns_add_u32 s%d, s%d, s%d" % (sT0, sT1, sWV, sT0, sT0, sT1))
        pfa(0, pC, 26, sT0, 0); a(pf(0))
        pfa(XSL, pX, 26, sT0, 0)
        for k in range(1, NSL):
            if k != XSL: pfnone(k)
        a("s_branch %s\n%s:" % (le, l1))
        a("v_lshrrev_b32 v26, 1, v0\nv_lshlrev_b32 v26, 13, v26\nv_and_b32 v27, 1, v0\nv_lshl_add_u32 v26, v27, 7, v26")
        a("s_bitcmp1_b32 s%d, 1\ns_cselect_b32 s98, s%d, s%d\ns_cselect_b32 s99, s%d, s%d" % (sI, pWUV, pWUK, pWUV + 1, pWUK + 1))
        a("s_and_b32 s%d, s%d, 1\ns_lshl_b32 s%d, s%d, 18\ns_lshl_b32 s%d, s%d, 8\ns_add_u32 s%d, s%d, s%d" % (sT0, sI, sT0, sT0, sT1, sH, sCNT, sT0, sT1))
        a("s_lshr_b32 s%d, s%d, 2\ns_lshl_b32 s%d, s%d, 19\ns_add_u32 s%d, s%d, s%d" % (sT0, sI, sT0, sT0, sT0, sT0, sCNT))
        pfa(0, 98, 26, sT0, 1 * 0x80000); a(pf(0))
        pfa(1, 98, 26, sT0, 3 * 0x80000); pfa(2, 98, 26, sT0, 5 * 0x80000); pfa(3, 98, 26, sCNT, 7 * 0x80000)
        a("s_lshl_b32 s%d, s%d, 18\ns_add_u32 s%d, s%d, s%d" % (sT0, sI, sT0, sT0, sT1))
        pfa(4, pWQ, 26, sT0, 0); pfa(6, pWQ, 26, sT0, 4 * 0x80000)
        a("s_min_u32 s%d, s%d, 23\ns_lshl_b32 s%d, s%d, 7\ns_mul_i32 s%d, s%d, %d\ns_add_u32 s%d, s%d, s%d\nv_mul_u32_u24 v26, 3072, v0" % (sT0, sU, sT0, sT0, sT1, sI, 64 * 3072, sT0, sT0, sT1))
        pfa(5, pWQKV, 26, sT0, 0); pfnone(7)
        a("s_branch %s\n%s:" % (le, l3))
        lpc = a.label("pc")
        a("s_getpc_b64 s[98:99]\n%s:" % lpc)
        a("s_lshr_b32 s%d, s2, 3\nv_lshlrev_b32 v26, 5, v0\nv_add_u32 v26, s%d, v26\nv_lshlrev_b32 v26, 7, v26\ns_mov_b32 s%d, 0" % (sT0, sT0, sT0))
        a("v_min_u32 v27, %s-%s, v26" % (lAttn, lpc))
        pfa(0, 98, 27, sT0, 0); a(pf(0))
        a("v_min_u32 v27, %s-%s, v26\ns_mov_b32 s%d, %s-%s" % (lRare, lAttn, sT0, lAttn, lpc))
        pfa(7, 98, 27, sT0, 0)
        a("v_lshlrev_b32 v26, 7, v0\ns_lshl_b32 s%d, s2, 14" % sT0)
        pfa(4, pBWO, 26, sT0, 0); pfa(5, pBWO, 26, sT0, 8192)
        a("v_and_b32 v27, 15, v0\nv_lshlrev_b32 v27, 7, v27\ns_lshl_b32 s%d, s2, 11" % sT0)
        pfa(6, pWO0, 27, sT0, 0)
        for k in (1, 2, 3): pfnone(k)
        a(le + ":")
    def pfp(p): return [[pf(p + 2)]] if (PF and p + 2 < NSL) else []
    srd(a, SO, pWS, WS_SIZE)
    a("v_and_b32 v19, 1, v17\nv_lshlrev_b32 v19, 2, v19\nv_xor_b32 v19, v19, v18\nv_lshlrev_b32 v19, 4, v19\ns_movk_i32 s%d, 3072\nv_mad_u32_u24 v%d, v16, s%d, v19" % (sT0, vXO, sT0))
    a("v_and_b32 v19, 31, v0\nv_lshrrev_b32 v20, 1, v19\nv_and_b32 v20, 7, v20\nv_lshrrev_b32 v21, 5, v0\nv_xor_b32 v20, v20, v21\nv_lshlrev_b32 v20, 4, v20\nv_lshl_add_u32 v20, v19, 7, v20")
    a("s_and_b32 s%d, s%d, 1\ns_lshl_b32 s%d, s%d, 14\ns_add_u32 s%d, s%d, %d" % (sT0, sWV, sT0, sT0, sT0, sT0, aslot(0)))
    for k in range(4): a("v_xor_b32 v%d, %d, v20\nv_add_u32 v%d, s%d, v%d" % (vAR[k], 32 * k, vAR[k], sT0, vAR[k]))
    a("v_lshrrev_b32 v19, 2, v0\nv_and_b32 v19, 3, v19\nv_lshl_add_u32 v20, v21, 3, v19")
    a("v_and_b32 v22, 1, v17\nv_lshlrev_b32 v22, 1, v22\nv_lshrrev_b32 v23, 1, v0\nv_and_b32 v23, 1, v23\nv_add_u32 v22, v22, v23\nv_and_b32 v23, 1, v0\nv_lshlrev_b32 v23, 3, v23")
    a("v_lshlrev_b32 v24, 2, v19\nv_xor_b32 v24, v24, v22\nv_lshlrev_b32 v24, 4, v24\nv_lshl_add_u32 v24, v20, 8, v24\nv_add_u32 v24, v24, v23")
    a("s_lshr_b32 s%d, s%d, 1\ns_lshl_b32 s%d, s%d, 14\ns_add_u32 s%d, s%d, %d" % (sWD, sWV, sWD, sWD, sT0, sWD, WSL[0]))
    for k in range(4): a("v_xor_b32 v%d, %d, v24\nv_add_u32 v%d, s%d, v%d" % (vWR[k], 64 * k, vWR[k], sT0, vWR[k]))
    a("v_lshrrev_b32 v24, 1, v19\nv_lshlrev_b32 v24, 2, v24\nv_xor_b32 v24, v24, v22\nv_lshlrev_b32 v24, 4, v24\nv_lshl_add_u32 v24, v20, 7, v24\nv_add_u32 v24, v24, v23")
    a("v_add_u32 v%d, %d, v24\nv_xor_b32 v%d, 64, v%d" % (vXR[0], WSL[0] + 16384, vXR[1], vXR[0]))
    a("s_lshl_b32 s%d, s%d, 2\ns_add_u32 s%d, s%d, s%d\ns_sub_u32 s%d, 60, s%d\ns_add_u32 s%d, s%d, s%d" % (sT1, sI, sQS, sT1, sWV, sQL, sT1, sQL, sQL, sWV))
    a("s_lshr_b32 s%d, s%d, 1\ns_lshl_b32 s%d, s%d, 5\ns_add_u32 s%d, s%d, s%d\ns_add_u32 s%d, s%d, 44\ns_lshl_b32 s%d, s%d, 19" % (sT0, sWV, sT0, sT0, sT0, sT0, sH, sT0, sT0, sOK, sT0))
    a("s_and_b32 s%d, s%d, 1\ns_lshl_b32 s%d, s%d, 1\ns_add_u32 s%d, s%d, s%d\ns_lshl_b32 s%d, s%d, 14\ns_add_u32 s%d, s%d, s%d" % (sT0, sWV, sT1, sI, sT0, sT0, sT1, sT0, sT0, sOK, sOK, sT0))
    a("s_lshl_b32 s%d, s%d, 16\ns_sub_u32 s%d, %d, s%d" % (sT0, sI, sOJ, 58 * 8192 + 4096, sT0))
    a("s_lshl_b32 s%d, s%d, 13\ns_and_b32 s%d, s%d, 1\ns_lshl_b32 s%d, s%d, 14\ns_sub_u32 s%d, s%d, s%d" % (sT0, sWV, sT1, sWV, sT1, sT1, sAD, sT0, sT1))
    a("s_lshl_b32 s%d, s%d, 6\nv_add_u32 v%d, s%d, v0\nv_lshlrev_b32 v%d, 12, v%d\nv_mov_b32 v%d, 1" % (sT0, sWV, vFO, sT0, vFO, vFO, vONE))
    srd(a, SX, pGATE, 1024)
    a("s_mov_b32 s98, s%d\ns_mov_b32 s99, s%d" % (pWO0, pWO0 + 1))
    srd(a, SD, pDBG, 256)
    a("s_mov_b32 s%d, s98\ns_mov_b32 s%d, s99" % (pWO, pWO + 1))
    a("s_getreg_b32 s%d, hwreg(HW_REG_XCC_ID, 0, 4)\ns_mul_i32 s%d, s%d, s%d\ns_lshl_b32 s%d, s%d, 8\ns_add_u32 s%d, s%d, s%d\ns_lshl_b32 s%d, s%d, 8\ns_add_u32 s%d, s%d, 1" % (sT0, sT1, sT0, sT0, sT1, sT1, sT1, sT1, sT0, sT1, sT1, sFA, sT1))
    a("v_mov_b32 v93, s%d\ns_lshl_b32 s%d, s%d, 3\ns_and_b32 s%d, s2, 7\ns_lshl_b32 s%d, s%d, 2\ns_lshl_b32 s%d, s%d, 2" % (sFA, sFA, sFA, sGR, sGR, sGR, sCNT, sH))
    a("v_and_b32 v94, 3, v0\nv_add_lshl_u32 v94, v94, s%d, 2" % sGR)
    a("buffer_atomic_add v93, v%d, s[%d:%d], s%d offen offset:128 sc1" % (vFO, SD, SD + 3, sCNT))

    def wofs(g): return (g % 2) * 32768
    def rd_kv(g, ks):
        F = FS[ks % 2]
        L = ["ds_read_b128 %s, v%d offset:%d" % (vr(F + 4 * j, 4), vAR[ks], j * 4096) for j in range(4)]
        W = ["ds_read_b64_tr_b16 %s, v%d offset:%d" % (vr(F + 16 + 4 * cb + 2 * rd, 2), vWR[cb], wofs(g) + ks * 4096 + rd * 1024) for cb in range(4) for rd in range(2)]
        return W[:2] + L + W[2:] + [xa(g, ks)]
    def rd_q(g, ks, var):
        F = FS[ks % 2]
        L = ["ds_read_b128 %s, v%d offset:%d" % (vr(F + 4 * j, 4), vAR[ks], j * 4096) for j in range(2)]
        L += ["ds_read_b64_tr_b16 %s, v%d offset:%d" % (vr(F + 16 + 4 * cb + 2 * rd, 2), vWR[cb], wofs(g) + ks * 4096 + rd * 1024) for cb in range(4) for rd in range(2)]
        if g < 15: L.append(xa(g, ks))
        if var in "NS":
            X = ["ds_read_b64_tr_b16 %s, v%d offset:%d" % (vr(F + 8 + 4 * cb + 2 * rd, 2), vXR[cb], wofs(g) + ks * 2048 + rd * 512) for cb in range(2) for rd in range(2)]
        else:
            X = ["ds_read_b128 %s, v%d offset:%d" % (vr(F + 8, 4), vXR[0], ((g - 8) * 4 + ks) * 32)]
        return L, X
    def xa(g, ks):
        d = aslot(g + 1) - aslot(g)
        return ("v_add_u32 v%d, 0x%x, v%d" % (vAR[ks], d, vAR[ks])) if d > 0 else ("v_subrev_u32 v%d, 0x%x, v%d" % (vAR[ks], -d, vAR[ks]))
    def mf_kv(ks, isV, first=False, rbmajor=False):
        F = FS[ks % 2]; M = []
        order = [(rb, cb) for rb in range(4) for cb in range(4)] if rbmajor else [(rb, cb) for cb in range(4) for rb in range(4)]
        for rb, cb in order:
            acc = ar((rb * 4 + cb) * 16, 16); x = vr(F + 4 * rb, 4); w = vr(F + 16 + 4 * cb, 4)
            M.append("%s %s, %s, %s, %s" % (MF32, acc, x if isV else w, w if isV else x, "0" if first else acc))
        return M
    def mf_q(ks, var, first):
        F = FS[ks % 2]; M = []
        for cb in range(4):
            for rb in range(2):
                acc = vr(QA + (rb * 4 + cb) * 16, 16)
                M.append("%s %s, %s, %s, %s" % (MF32, acc, vr(F + 16 + 4 * cb, 4), vr(F + 4 * rb, 4), "0" if first else acc))
        for cb in range(2 if var in "NS" else 1):
            for rb in range(2):
                acc = ar((cb * 2 + rb) * 16, 16); x = vr(F + 4 * rb, 4); w = vr(F + 8 + 4 * cb, 4)
                M.append("%s %s, %s, %s, %s" % (MF32, acc, x if var == "S" else w, w if var == "S" else x, "0" if first else acc))
        return M
    cnt = [0]
    def pack(areg, pk, scale=None):
        t = TT[0]
        G = ["v_accvgpr_read_b32 v%d, a%d" % (t + j, areg + j) for j in range(8)]
        if scale is not None: G += ["v_mul_f32 v%d, s%d, v%d" % (t + j, scale, t + j) for j in range(8)]
        G += ["v_cvt_pk_bf16_f32 v%d, v%d, v%d" % (pk + j, t + 2 * j, t + 2 * j + 1) for j in range(4)]
        return G
    def store(pk, so, off, fl=""): return "buffer_store_dwordx4 %s, v%d, s[%d:%d], s%d offen offset:%d %s" % (vr(pk, 4), vL16, SO, SO + 3, so, off, fl)
    def drain(areg, so, off, scale=None):
        pk = PK + 4 * (cnt[0] % 8); cnt[0] += 1
        return pack(areg, pk, scale) + [store(pk, so, off)]
    def kv_pack(j): return pack(j * 8, PK + 4 * (j % 8))
    def kv_store(j):
        G = [store(PK + 4 * (j % 8), sOK, (j % 4) * 1024, ST)]
        if j == 15: G.append("s_add_u32 s%d, s%d, s%d" % (sOK, sOK, sOJ))
        elif j % 4 == 3: G.append("s_add_u32 s%d, s%d, 4096" % (sOK, sOK))
        return G
    qa_setup = [["s_mov_b32 s%d, s%d" % (SA, pX), "s_mov_b32 s%d, s%d" % (SA + 1, pX + 1),
                 "s_lshl_b32 s%d, s%d, 15" % (sAS, sQL), "s_lshl_b32 s%d, s%d, 15" % (sAS2, sQS)]]
    qw_setup = [["s_mov_b32 m0, %d" % LDS_G, "s_mov_b32 s%d, s%d" % (SW, pWQ), "buffer_load_dwordx4 v%d, s[%d:%d], 0 offen lds" % (vL16, SX, SX + 3), "s_mov_b32 s%d, s%d" % (SW + 1, pWQ + 1)],
                ["s_lshl_b32 s%d, s%d, 17" % (sT0, sWV), "s_lshl_b32 s%d, s%d, 8" % (sWS, sH), "s_add_u32 s%d, s%d, s%d" % (sWS, sWS, sT0), "s_lshl_b32 s%d, s%d, 12" % (sWM, sWV)],
                ["s_mov_b32 s%d, s%d" % (SX, pWQKV), "s_mov_b32 s%d, s%d" % (SX + 1, pWQKV + 1), "s_lshl_b32 s%d, s%d, 11" % (sXM, sWV), "s_mul_i32 s%d, s%d, %d" % (sXS, sWV, 16 * 3072)],
                ["s_lshl_b32 s%d, s%d, 7" % (sT0, sU), "s_add_u32 s%d, s%d, s%d" % (sXS, sXS, sT0),
                 "s_and_b32 s%d, s%d, 3" % (sT0, sH), "s_cmp_eq_u32 s%d, 3" % sT0, "s_cselect_b32 s%d, 0, 0x180000" % (SX + 2)]]
    at_setup = [["v_cmp_ne_u32 vcc, s%d, v93" % sFA], ["s_cmp_eq_u64 vcc, 0", "s_cselect_b32 s%d, 1, 0" % sFA],
                ["s_lshl_b32 s%d, s%d, 12" % (sW4, sWV), "s_lshl_b32 s%d, s%d, 13" % (sW8, sWV), "s_lshl_b32 s%d, s%d, 19" % (sT0, sH)],
                ["s_lshl_b32 s%d, s%d, 15" % (sVD, sI), "s_add_u32 s%d, s%d, s%d" % (sT0, sT0, sVD)],
                ["s_add_u32 s%d, s%d, 0x%x" % (sKO, sT0, OFF_K), "s_add_u32 s%d, s%d, 0x%x" % (sVO, sT0, OFF_V), "s_mov_b32 s%d, %s" % (sTH, THRESH)]]
    SK, SV = 4, SO
    vK, vV = vL16, 2
    def dma(which, typ, par, srd_=None):
        so, sr_, base = (sKO, SK, 0) if which == "K" else (sVO, SV, 65536)
        if srd_ is not None: sr_ = srd_
        sw = sW4 if typ == 1 else sW8
        G = []
        for q in range(typ):
            g = ["s_add_u32 m0, s%d, %d" % (sw, base + par * 32768 + q * 4096)]
            g.append("s_add_u32 s%d, s%d, s%d" % (sDS, so, sw) if q == 0 else "s_add_u32 s%d, s%d, 4096" % (sDS, sDS))
            G.append(g)
            for o in range(4):
                G.append(["buffer_load_dwordx4 v%d, s[%d:%d], s%d offen offset:%d sc1 lds" % (vK, sr_, sr_ + 3, sDS, o * 1024)])
        return G
    def adv(which, typ):
        so = sKO if which == "K" else sVO
        if which == "V" and typ == 1: return ["s_add_u32 s%d, s%d, s%d" % (so, so, sVD), "s_movk_i32 s%d, 0x4000" % sVD]
        return ["s_add_u32 s%d, s%d, %d" % (so, so, 16384 * typ)]
    spins = []
    vF1, vFA, vPO = 90, 251, 254
    def poll_load(kind):
        if kind == 1: return "buffer_load_dword v%d, off, s[%d:%d], s%d sc1" % (vF1, SD, SD + 3, sCNT)
        return "buffer_load_dword v%d, v%d, s[%d:%d], 0 offen sc1" % (vFA, vPO, SD, SD + 3)
    def poll_cmp(kind): return ("v_cmp_gt_u16 vcc, 8, v%d" % vF1) if kind == 1 else ("v_cmp_gt_u32 vcc, 0x80000, v%d" % vFA)
    def poll_check(kind):
        ls, lb = a.label("spin"), a.label("spun")
        a("%s\ns_cbranch_vccnz %s\n%s:" % (poll_cmp(kind), ls, lb))
        spins.append((ls, lb, kind))
    rels = []
    def release():
        ls, lb = a.label("rel"), a.label("reld")
        a("s_cmp_eq_u32 s%d, 0\ns_cbranch_scc1 %s\n%s:" % (sFA, ls, lb))
        rels.append((ls, lb))

    T.stamp(1)
    bar("s_waitcnt vmcnt(%d)" % (2 if PF else 1))
    T.stamp(2)
    for x in rd_kv(0, 0): a(x)
    lV = a.label("kvV"); lQ = a.label("qphase")
    a("s_cmp_ge_u32 s%d, 2\ns_cbranch_scc1 %s" % (sWV, lV))
    def count_after(seq, pred):
        n = 0
        for x in reversed(seq):
            if pred(x): return n
            if isvm(x): n += 1
        return n
    for isV in (False, True):
        if isV: a(lV + ":")
        t2[0] = 1
        for g in range(8):
            p = g - 1
            if g == 0:
                W1, A1 = dma_w(1), dma_act(1)
                ex = [[x for pr in zip(W1, A1) for x in pr], dma_act(2) + pfp(-1), []]
                allowed = 8 + len(pfp(-1))
            else:
                A = (qa_setup if p + 3 == 8 else []) + dma_act(p + 3)
                ex = [A[:-6], A[-6:-3], A[-3:] + (at_setup if g == 7 else [])]
                allowed = 8 + len(pfp(p))
            for ks in range(3):
                a("s_waitcnt lgkmcnt(0)")
                emit(a, mf_kv(ks, isV, first=(g == 0 and ks == 0)), [(rd_kv(g, ks + 1), 0, 13), (ex[ks], 0, 16)])
            bar("s_waitcnt vmcnt(%d) lgkmcnt(0)" % allowed)
            if g < 7:
                Wn = (qw_setup if g == 6 else []) + dma_w(g + 2) + pfp(g)
                if g == 5: Wn = [["buffer_load_dword v93, v94, s[%d:%d], 0 offen offset:128 sc1" % (SD, SD + 3)]] + Wn
                emit(a, mf_kv(3, isV), [(rd_kv(g + 1, 0), 0, 13), (Wn, 0, WSP)])
        for k in range(4): a("v_add_u32 v%d, s%d, v%d" % (vAR[k], sAD, vAR[k]))
        for k in range(4): a("v_subrev_u32 v%d, s%d, v%d" % (vWR[k], sWD, vWR[k]))
        cnt[0] = 0
        D0 = [x for j in range(8) for x in kv_pack(j)]
        emit(a, mf_kv(3, isV, rbmajor=True), [(rd_q(8, 0, "N")[0], 0, 7), (dma_w(9), 0, 6), (D0[:48], 7, 16)])
        if not isV: a("s_branch %s" % lQ)
    a(lQ + ":")
    T.stamp(3)
    lN, lS, lG, lE = a.label("qN"), a.label("qS"), a.label("qG"), a.label("qE")
    a("s_and_b32 s%d, s%d, 3\ns_cmp_eq_u32 s%d, 3\ns_cbranch_scc1 %s\ns_cmp_ge_u32 s%d, 16\ns_cbranch_scc1 %s" % (sT0, sH, sT0, lG, sU, lS))
    cnt0 = cnt[0]
    for var, lab in (("N", lN), ("S", lS), ("G", lG)):
        a(lab + ":")
        cnt[0] = cnt0; t2[0] = 9
        if var == "G": a("v_lshrrev_b32 v%d, 5, v0\nv_lshlrev_b32 v%d, 4, v%d\nv_add_u32 v%d, %d, v%d" % (vXR[0], vXR[0], vXR[0], vXR[0], LDS_G, vXR[0]))
        for x in rd_q(8, 0, var)[1]: a(x)
        vTW, vTR, TG = vXO, (15, 93, 94, 95), 32
        sSJ, sTD, sTL = sOA, sXS, sXM
        tsetup = []
        if var == "G":
            t = 28
            tsetup = ("s_and_b32 s%d, s2, 7\ns_lshl_b32 s%d, s%d, 3\ns_add_u32 s%d, s%d, s%d\n" % (sSJ, sSJ, sSJ, sSJ, sSJ, sI) +
                "s_lshl_b32 s%d, s%d, 12\ns_add_u32 s%d, s%d, %d\n" % (sTL, sWV, sTL, sTL, WSL[1] + 16384) +
                "v_lshrrev_b32 v28, 4, v0\nv_and_b32 v29, 15, v0\nv_lshlrev_b32 v30, 2, v28\nv_xor_b32 v29, v29, v30\nv_lshlrev_b32 v29, 4, v29\nv_lshl_add_u32 v%d, v28, 10, v29\n" % vTW +
                "s_mov_b32 s%d, s%d\ns_mov_b32 s%d, s%d\ns_mov_b32 s%d, 0x400000\n" % (SX, pBWO, SX + 1, pBWO + 1, SX + 2) +
                "s_lshl_b32 s%d, s%d, 14\ns_lshl_b32 s%d, s%d, 8\ns_add_u32 s%d, s%d, s%d\n" % (sSC, sSJ, sT0, sWV, sSC, sSC, sT0) +
                "v_lshrrev_b32 v29, 2, v0\nv_and_b32 v29, 3, v29\nv_lshrrev_b32 v30, 5, v0\nv_lshl_add_u32 v30, v30, 2, v29\n" +
                "v_and_b32 v28, 1, v28\nv_lshlrev_b32 v28, 1, v28\nv_lshrrev_b32 v31, 1, v0\nv_and_b32 v31, 1, v31\nv_add_u32 v28, v28, v31\nv_and_b32 v31, 1, v0\nv_lshlrev_b32 v31, 3, v31\n" +
                "v_lshlrev_b32 v29, 2, v29\nv_xor_b32 v29, v29, v28\nv_lshlrev_b32 v29, 4, v29\nv_lshl_add_u32 v29, v30, 8, v29\nv_add3_u32 v29, v29, v31, s%d\n" % sTL +
                "".join("v_xor_b32 v%d, %d, v29\n" % (vTR[k], 64 * k) for k in range(4)) +
                "s_mul_i32 s%d, s%d, %d\ns_lshl_b32 s%d, s%d, 11\ns_add_u32 s%d, s%d, s%d\ns_add_u32 s%d, s%d, 0x%x" % (sTD, sWV, 2 * WROW, sT1, sSJ, sTD, sTD, sT1, sTD, sTD, OFF_W)).split("\n")
        def t_dma(j):
            G = []
            if j == 4: G.append(["s_mov_b32 s%d, s%d" % (SX, pWO), "s_mov_b32 s%d, s%d" % (SX + 1, pWO + 1), "s_mov_b32 s%d, 0x80000" % (SX + 2)])
            for n in range(4):
                G.append(["s_add_u32 m0, s%d, %d" % (sTL, n * 1024), "s_add_u32 s%d, s%d, %d" % (sDS, sSC, (j % 4) * 0x100000 + n * 4096),
                          "buffer_load_dwordx4 v%d, s[%d:%d], s%d offen lds" % (vTW, SX, SX + 3, sDS)])
            return G
        def t_read(): return ["ds_read_b64_tr_b16 %s, v%d offset:%d" % (ar(TG + 4 * cb + 2 * rd, 2), vTR[cb], rd * 2048) for cb in range(4) for rd in range(2)]
        def t_store(j):
            G = []
            if j == 4: G.append(["s_cmp_ge_u32 s%d, 32" % sSJ, "s_cselect_b32 s%d, 0x%x, s%d" % (sTD, OFF_DUMMY, sTD)])
            G.append(["s_add_u32 s%d, s%d, %d" % (sT1, sTD, WROW)])
            for cb in range(4):
                G.append(["buffer_store_dwordx4 %s, v%d, s[%d:%d], s%d offen offset:%d" % (ar(TG + 4 * cb, 4), vL16, SO, SO + 3, sTD if cb < 2 else sT1, (cb % 2) * 1024)])
            G.append(["s_add_u32 s%d, s%d, %d" % (sTD, sTD, 64 * 2048)])
            return G
        ZR = ["v_accvgpr_write_b32 a%d, 0" % r for r in range(64, 128)]
        after_w = 0
        sched = spread(32, 0, NSK)
        g_pub = 8 + max(sched[:16]) // 4 + (2 if max(sched[:16]) % 4 == 3 else 1)
        assert g_pub <= 14
        for g in range(8, 16):
            for ks in range(4):
                M = mf_q(ks, var, g == 8 and ks == 0); nm = len(M)
                st = []
                if ks == 3 and g < 15:
                    bar("s_waitcnt vmcnt(%d) lgkmcnt(0)" % after_w)
                    after_w = 0
                    G = dma_w(g + 2, var != "G") if g + 2 < 16 else []
                    if g == g_pub:
                        release()
                        G = [["buffer_atomic_add v%d, v%d, s[%d:%d], s%d offen sc1" % (vONE, vFO, SD, SD + 3, sCNT)]] + G
                    if g == 14:
                        G = G + dma("K", 1, 0, SO) + [adv("K", 1)] + dma("K", 1, 1, SO)
                    st.append((G, 0, nm - 2))
                else:
                    a("s_waitcnt lgkmcnt(0)")
                if not (g == 15 and ks == 3):
                    g2, k2 = (g, ks + 1) if ks < 3 else (g + 1, 0)
                    L, X = rd_q(g2, k2, var)
                    st.append((L + X, 0, nm - 3))
                ex = []
                if var != "G":
                    if ks < 2 and g + 2 < 16: ex = dma_act(g + 2)[4 * ks: 4 * ks + 4]
                else:
                    if ks in (1, 2) and g + 2 < 16: ex = dma_act(g + 2)[4 * ks - 4: 4 * ks]
                    if g == 8 and ks in (1, 2): st.append((tsetup[:26] if ks == 1 else tsetup[26:], 0, nm))
                    if ks == 0 and 9 <= g <= 13:
                        st.append((t_dma(g - 9), 0, nm - 3)); after_w = 0
                    if ks == 3 and 9 <= g <= 13: st.append((t_read(), 0, nm - 2))
                    if ks == 1 and 10 <= g <= 14: ex = t_store(g - 10) + ex
                st.append((ex, 0, nm))
                kg = (g - 8) * 4 + ks
                if kg == 0: st.append((D0[48:], 0, 7))
                ep = []
                for j in range(8, 32):
                    if max(sched[j] - 1, sched[j - 8] + 1) == kg: ep += kv_pack(j)
                if kg >= 20 and ZR: ep += ZR[:8]; ZR = ZR[8:]
                st.append((ep, 0, nm))
                so_ = [kv_store(j) for j in range(32) if sched[j] == kg]
                st.append((so_, nm - 1 - len(so_), nm))
                after_w += sum(1 for gr in ex + so_ for x in gr if isvm(x))
                emit(a, M, st)
        assert not ZR
        cnt[0] = 0
        a("s_nop 7\ns_nop 3")
        if var in "NS":
            a("s_lshr_b32 s%d, s%d, 1\ns_lshl_b32 s%d, s%d, 19\ns_and_b32 s%d, s%d, 1\ns_lshl_b32 s%d, s%d, 12\ns_add_u32 s%d, s%d, s%d" % (sT0, sU, sT0, sT0, sT1, sU, sT1, sT1, sT0, sT0, sT1))
            a("s_cmp_lt_u32 s%d, 8\ns_cselect_b32 s%d, %s, 1.0" % (sU, sSC, fbits(LOG2E * 0.25)))
            for rb, blk in ((0, sQL), (1, sQS)):
                a("s_lshl_b32 s%d, s%d, 13\ns_add_u32 s%d, s%d, s%d" % (sOA, blk, sOA, sOA, sT0))
                for cb in range(2):
                    for e in range(2):
                        for x in drain((cb * 2 + rb) * 16 + e * 8, sOA, cb * 2048 + e * 1024, sSC if var == "N" else None): a(x)
            a("s_waitcnt vmcnt(%d)" % (12 + after_w))
            a("s_branch %s" % lE)
        else:
            a("v_accvgpr_read_b32 v16, a0\nv_accvgpr_read_b32 v17, a16\nv_cmp_gt_u32 vcc, 32, v0\nv_mov_b32 v18, s%d\nv_mov_b32 v19, s%d" % (sQL, sQS))
            a("v_cndmask_b32 v16, v17, v16, vcc\nv_cndmask_b32 v18, v19, v18, vcc")
            a("v_mul_f32 v16, %s, v16\nv_exp_f32 v16, v16\nv_and_b32 v19, 31, v0\nv_add_f32 v16, 1.0, v16\nv_rcp_f32 v16, v16" % fbits(-LOG2E))
            a("v_lshl_add_u32 v18, v18, 5, v19\nv_lshlrev_b32 v18, 2, v18\ns_lshl_b32 s%d, s%d, 11\ns_add_u32 s%d, s%d, 0x%x" % (sT0, sGR, sT0, sT0, OFF_G))
            a("buffer_store_dword v16, v18, s[%d:%d], s%d offen" % (SO, SO + 3, sT0))
            a("s_waitcnt vmcnt(%d)" % (5 + after_w))
    a(lE + ":")
    a(lAttn + ":")
    T.stamp(4)
    vU, vGL, vGS = 3, 4, 5
    vL = (6, 7); vLT = (8, 9); vX = 10
    S = (16, 80); P = (144, 176); NM = 208; TM = 240
    vGA, vNEG, vPM = 248, 249, 250
    O, Q, FR, NFR = 0, 128, 192, 16
    ms = (26, 28, 30)
    def kfrag(p, idx): return ("K", p * 32768 + idx * 1024)
    def vfrag(p, g, db): return ("V", p * 32768 + (g // 2) * 8192 + db * 2048 + (g % 2) * 1024)
    def rd(slot, fr):
        return "ds_read_b128 %s, v%d offset:%d" % (ar(FR + 4 * (slot % NFR), 4), vK if fr[0] == "K" else vV, fr[1])
    def mf_list(p, pv, qk):
        L = []
        Pp = P[1 - p]; Sn = S[1 - p]
        if pv == 1:
            for g in range(4):
                for db in range(4):
                    L.append((vfrag(1 - p, g, db), ["%s %s, {F}, %s, %s" % (MF32, ar(O + rb * 64 + db * 16, 16), vr(Pp + rb * 16 + g * 4, 4), ar(O + rb * 64 + db * 16, 16)) for rb in range(2)]))
        elif pv == 2:
            for g in range(8):
                for db in range(4):
                    L.append((vfrag(1 - p, g, db), ["%s %s, {F}, %s, %s" % (MF32, ar(O + db * 16, 16), vr(Pp + g * 4, 4), ar(O + db * 16, 16))]))
        if qk == 1:
            for kb in range(2):
                for s in range(8):
                    ms_ = []
                    for rb in range(2):
                        d = vr(Sn + rb * 32 + kb * 16, 16)
                        ms_.append("%s %s, {F}, %s, %s" % (MF32, d, ar(Q + rb * 32 + s * 4, 4), d if s else vr(NM + rb * 16, 16)))
                    L.append((kfrag(1 - p, kb * 8 + s), ms_))
        elif qk == 2:
            for kb in range(4):
                for s in range(8):
                    d = vr(Sn + kb * 16, 16)
                    L.append((kfrag(1 - p, kb * 8 + s), ["%s %s, {F}, %s, %s" % (MF32, d, ar(Q + s * 4, 4), d if s else vr(NM, 16))]))
        return L
    def sm_list(p, sm):
        Sc, Pc = S[p], P[p]
        order = [0, 2, 1, 3] if sm == 1 else [0, 1, 2, 3]
        els = [b * 16 + j for b in order for j in range(16)]
        V = []
        first = {0: True, 1: True}
        def tail(n):
            e = els[n]; u = TM + (n % 8); lt = vLT[e // 32]
            out = []
            if first[e // 32]:
                out.append((4, "v_add_f32 v%d, v%d, v%d" % (lt, u, u + 1))); first[e // 32] = False
            else:
                out.append((4, "v_add_f32 v%d, v%d, v%d" % (lt, lt, u)))
                out.append((4, "v_add_f32 v%d, v%d, v%d" % (lt, lt, u + 1)))
            out.append((4, "v_cvt_pk_bf16_f32 v%d, v%d, v%d" % (Pc + e // 2, u, u + 1)))
            return out
        for n in range(0, 64, 2):
            tl = tail(n - 2) if n >= 2 else []
            V.append((8, "v_exp_f32 v%d, v%d" % (TM + n % 8, Sc + els[n])))
            V += tl[:1]
            V.append((8, "v_exp_f32 v%d, v%d" % (TM + n % 8 + 1, Sc + els[n + 1])))
            V += tl[1:]
        V += tail(62)
        return V
    rare = {}
    def step(p, pv, sm, qk, dK, dV, pre_in=True, pre_out=True, advK=True, extra_vm=None, extra_valu=None):
        L = mf_list(p, pv, qk)
        nf = len(L)
        nxt = [vfrag(p, g, db) for g in range(2) for db in range(4)][:PD]
        M = [(f, t) for f, (fr, ts_) in enumerate(L) for t in ts_]
        nm = len(M)
        fill = [[] for _ in range(nm)]
        G = []
        if dV: G += dma("V", dV, p) + [adv("V", dV)]
        if dK: G += dma("K", dK, p) + ([adv("K", dK)] if advK else [])
        if extra_vm: G += extra_vm
        lim = max(min(len(G), nm - 8), (nm * 4) // 8)
        cost = [0] * nm
        for g, m in zip(G, spread(len(G), 1, lim + 1) if G else []):
            fill[m] += g; cost[m] += 4 * len(g)
        firstm = {}
        for m, (f, t) in enumerate(M): firstm.setdefault(f, m)
        for f in range(nf): cost[firstm[f]] += 8
        V = sm_list(p, sm) if sm else []
        if sm:
            V.append((4, "v_max_f32 v%d, v%d, v%d" % (vX, vLT[0], vLT[1])))
            V.append((4, "v_cmp_lt_f32 vcc, s%d, v%d" % (sTH, vX)))
        if extra_valu: V += [(4, x) for x in extra_valu]
        if V:
            last = nm - 2
            tot = sum(c for c, _ in V) + sum(cost[:last])
            acc = 0; vi = 0
            for m in range(last):
                acc += cost[m]
                tgt = tot * (m + 1) / last
                while vi < len(V) and (acc + V[vi][0] / 2 <= tgt or m == last - 1):
                    fill[m].append(V[vi][1]); acc += V[vi][0]; vi += 1
        if not pre_in:
            for f in range(PD): a(rd(f, L[f][0]))
        barf = nf + 1 - PD
        for m, (f, t) in enumerate(M):
            if firstm[f] == m:
                if f == barf and pre_out: a("s_waitcnt vmcnt(0) lgkmcnt(0)\ns_barrier")
                elif f < barf or not pre_out: a("s_waitcnt lgkmcnt(%d)" % (min(f + PD - 1, nf - 1) - f))
            a(t.replace("{F}", ar(FR + 4 * (f % NFR), 4)))
            if firstm[f] == m:
                if f + PD < nf: a(rd(f + PD, L[f + PD][0]))
                elif pre_out and f == barf:
                    a(rd(nf, nxt[0])); a(rd(nf + 1, nxt[1]))
                elif pre_out and f > barf: a(rd(f + PD, nxt[f + PD - nf]))
            for x in fill[m]: a(x)
        assert nf % NFR == 0
        if sm:
            key = (p, sm, qk if qk else sm)
            if key not in rare: rare[key] = (a.label("rare"), [])
            lb = a.label("back"); lj = a.label("jr")
            rid = len(rare[key][1]); rare[key][1].append((lj, lb))
            a("s_cbranch_vccnz %s\n%s:" % (lj, lb))
            if sm == 1: a("v_add_f32 v%d, v%d, v%d\nv_add_f32 v%d, v%d, v%d" % (vL[0], vL[0], vLT[0], vL[1], vL[1], vLT[1]))
            else: a("v_add_f32 v%d, v%d, v%d\nv_add_f32 v%d, v%d, v%d" % (vL[0], vL[0], vLT[0], vL[0], vL[0], vLT[1]))
    def rowmax(dst, regs_):
        a("v_max3_f32 v%d, v%d, v%d, v%d" % (dst, regs_[0], regs_[1], regs_[2]))
        j = 3
        while j + 1 < len(regs_):
            a("v_max3_f32 v%d, v%d, v%d, v%d" % (dst, dst, regs_[j], regs_[j + 1])); j += 2
        if j < len(regs_): a("v_max_f32 v%d, v%d, v%d" % (dst, dst, regs_[j]))
        a("v_mov_b32 v%d, v%d\ns_nop 1\nv_permlane32_swap_b32 v%d, v%d\nv_max_f32 v%d, v%d, v%d" % (dst + 1, dst, dst, dst + 1, dst, dst, dst + 1))
    def mask(base, nblk, kb0):
        a("s_nop 7\ns_nop 3")
        for j in range(nblk):
            lf = a.label("mfull"); le_ = a.label("mend")
            kb = kb0 + j; r0 = base + 16 * j
            a("s_cmp_gt_u32 s%d, %d\ns_cbranch_scc1 %s" % (sWV, kb, le_))
            if kb > 0: a("s_cmp_lt_u32 s%d, %d\ns_cbranch_scc1 %s" % (sWV, kb, lf))
            rr = list(range(16))
            for c in range(0, 16, 3):
                grp = rr[c:c + 3]
                for q, r in enumerate(grp): a("v_cmp_gt_i32 s[%d:%d], %d, v%d" % (ms[q], ms[q] + 1, 8 * (r // 4) + r % 4, vU))
                if len(grp) < 3: a("s_nop 1")
                for q, r in enumerate(grp): a("v_cndmask_b32 v%d, v%d, v%d, s[%d:%d]" % (r0 + r, r0 + r, vNEG, ms[q], ms[q] + 1))
            if kb > 0:
                a("s_branch %s\n%s:" % (le_, lf))
                for r in range(16): a("v_mov_b32 v%d, v%d" % (r0 + r, vNEG))
            a(le_ + ":")
    bar("s_nop 0")
    if TS2:
        a("s_waitcnt lgkmcnt(0)"); bar("s_nop 0")
        a("s_lshl_b32 s62, s2, 2\ns_add_u32 s62, s62, s%d\ns_lshl_b32 s62, s62, 8\ns_add_u32 s62, s62, 0x%x\nv_lshlrev_b32 v92, 2, v0" % (sWV, OFF_TS + 0x80000))
        a("buffer_store_dword v91, v92, s[%d:%d], s62 offen\ns_waitcnt vmcnt(0)" % (SO, SO + 3))
    srd(a, SK, pWS, WS_SIZE)
    a("s_mov_b32 s%d, %s\ns_mov_b32 s%d, s%d" % (sSC - 1, fbits(LOG2E / math.sqrt(128.0)), sSC, sSC - 1))
    fr0 = [kfrag(0, kb * 8 + s) for s in range(8) for kb in range(2)]
    for f in range(12): a(rd(f, fr0[f]))
    def qepi(s):
        G = []
        for rb in range(2):
            src = QA + rb * 64 + s * 8
            if PKMUL: G += ["v_pk_mul_f32 %s, %s, s[%d:%d]" % (vr(src + 2 * j, 2), vr(src + 2 * j, 2), sSC - 1, sSC) for j in range(4)]
            else: G += ["v_mul_f32 v%d, s%d, v%d" % (src + j, sSC, src + j) for j in range(8)]
        for rb in range(2):
            src = QA + rb * 64 + s * 8
            G += ["v_cvt_pk_bf16_f32 v%d, v%d, v%d" % (src + j, src + 2 * j, src + 2 * j + 1) for j in range(4)]
        for rb in range(2):
            src = QA + rb * 64 + s * 8
            G += ["v_accvgpr_write_b32 a%d, v%d" % (Q + rb * 32 + s * 4 + j, src + j) for j in range(4)]
        return G
    for x in qepi(0): a(x)
    for f in range(12, 16): a(rd(f, fr0[f]))
    misc = ["v_add_u32 v%d, 0x10000, v%d" % (vV, vK), "v_and_b32 v10, 31, v0", "v_lshrrev_b32 v11, 5, v0", "v_lshlrev_b32 v11, 2, v11", "v_sub_u32 v%d, v10, v11" % vU,
            "v_mov_b32 v%d, 0" % vL[0], "v_mov_b32 v%d, 0" % vL[1], "v_mov_b32 v%d, %s" % (vNEG, NEG), poll_load(1), "v_and_b32 v%d, 3, v0" % vPO, "v_add_lshl_u32 v%d, v%d, s%d, 2" % (vPO, vPO, sGR), "v_mov_b32 v%d, 0x10000" % vONE]
    misc += ["v_accvgpr_write_b32 a%d, 0" % r for r in range(0, 24)]
    a("s_waitcnt lgkmcnt(0)")
    for s in range(8):
        M = []
        for kb in range(2):
            for rb in range(2):
                d = vr(S[0] + rb * 32 + kb * 16, 16)
                M.append("%s %s, %s, %s, %s" % (MF32, d, ar(FR + 4 * (2 * s + kb), 4), ar(Q + rb * 32 + s * 4, 4), d if s else "0"))
        emit(a, M, [(qepi(s + 1) + ["s_nop 0"] if s < 7 else misc, 0, 4)])
    for r in range(24, 64): a("v_accvgpr_write_b32 a%d, 0" % r)
    mask(S[0] + 32, 2, 0)
    for rb in range(2): rowmax(vX + 2 * rb, [S[0] + rb * 32 + j for j in range(32)])
    for rb in range(2):
        for j in range(16): a("v_sub_f32 v%d, 0, v%d" % (NM + rb * 16 + j, vX + 2 * rb))
    for rb in range(2):
        for j in range(32): a("v_sub_f32 v%d, v%d, v%d" % (S[0] + rb * 32 + j, S[0] + rb * 32 + j, vX + 2 * rb))
    a("s_waitcnt vmcnt(0)\ns_barrier")
    release()
    a("buffer_atomic_add v%d, v%d, s[%d:%d], s%d offen sc1" % (vONE, vFO, SD, SD + 3, sCNT))
    poll_check(1)
    a("s_add_u32 s%d, s%d, 0x4000\ns_sub_u32 s%d, s%d, s%d\ns_cmp_eq_u32 s%d, 0\ns_cselect_b32 s%d, 0x8000, 0\ns_add_u32 s%d, s%d, s%d" % (sT1, sVD, sKO, sKO, sT1, sI, sT0, sKO, sKO, sT0))
    a("s_sub_u32 s%d, 0, s%d\ns_movk_i32 s%d, 0x4000" % (sT, sT1, sVD))
    step(0, 0, 1, 1, 2, 1, pre_in=False, advK=False)
    a("s_mov_b32 s%d, s%d" % (sVD, sT))
    a("s_cmp_eq_u32 s%d, 0\ns_cselect_b32 s%d, 2, 1\ns_lshl_b32 s%d, s%d, 14\ns_add_u32 s%d, s%d, s%d" % (sI, sT0, sT0, sT0, sKO, sKO, sT0))
    mask(S[1] + 32, 2, 2)
    T.stamp(5)
    lT0, lT1, lT2b, lL1, lL2, lT16, lEn = [a.label(x) for x in ("T0", "T1", "T2b", "L1", "L2", "T16", "E17")]
    PL = [[poll_load(2)]]
    a("s_cmp_eq_u32 s%d, 0\ns_cbranch_scc1 %s" % (sI, lT1))
    a("s_mov_b32 s%d, s%d" % (sT, sI))
    a(".p2align 6\n" + lL1 + ":")
    step(1, 1, 1, 1, 1, 1)
    a("s_sub_u32 s%d, s%d, 1\ns_cmp_eq_u32 s%d, 0\ns_cbranch_scc1 %s" % (sT, sT, sT, lT0))
    step(0, 1, 1, 1, 1, 1)
    a("s_branch %s" % lL1)
    a(lT0 + ":")
    a("s_add_u32 s%d, s%d, 0x8000" % (sKO, sKO))
    step(0, 1, 1, 1, 2, 1, extra_vm=PL)
    poll_check(2)
    a(lT1 + ":")
    a("s_cmp_eq_u32 s%d, 7\ns_cselect_b32 s%d, 0, s%d" % (sI, SK + 2, SK + 2))
    step(1, 1, 1, 2, 2, 1)
    a("s_add_u32 s%d, s%d, 0x8000" % (sVO, sVO))
    a("s_cmp_eq_u32 s%d, 7\ns_cbranch_scc1 %s" % (sI, lT2b))
    step(0, 1, 2, 2, 2, 2, extra_vm=PL)
    poll_check(2)
    a("s_sub_u32 s%d, 7, s%d" % (sT, sI))
    a(".p2align 6\n" + lL2 + ":")
    a("s_cmp_eq_u32 s%d, 1\ns_cselect_b32 s%d, 0, s%d" % (sT, SK + 2, SK + 2))
    step(1, 2, 2, 2, 2, 2)
    a("s_sub_u32 s%d, s%d, 1\ns_cmp_eq_u32 s%d, 0\ns_cbranch_scc1 %s" % (sT, sT, sT, lT16))
    step(0, 2, 2, 2, 2, 2)
    a("s_branch %s" % lL2)
    sRA, sHP, sA0, sA1 = 36, 37, 38, 39
    AQ, AKC, AKP, AV = Q, Q + 8, Q + 16, Q + 24
    def ld(dst, so, off): return ["buffer_load_dwordx4 %s, v%d, s[%d:%d], s%d offen offset:%d sc1" % (dst, vK, SV, SV + 3, so, off)]
    ALD = [["s_lshr_b32 s%d, s2, 3" % sT0, "s_lshl_b32 s%d, s%d, 1" % (sT0, sT0), "s_lshr_b32 s%d, s%d, 1" % (sRA, sWV), "s_add_u32 s%d, s%d, s%d" % (sRA, sRA, sT0)],
           ["s_and_b32 s%d, s%d, 1" % (sHP, sWV), "s_lshr_b32 s%d, s%d, 1" % (sT0, sGR), "s_add_u32 s%d, s%d, s%d" % (sHP, sHP, sT0), "s_lshl_b32 s%d, s%d, 9" % (sT0, sGR)],
           ["v_and_b32 v14, 31, v0", "v_add_lshl_u32 v14, v14, s%d, 2" % sT0]]
    for (dst, blk) in ((vGS, sQS), (vGL, sQL), (vGA, sRA)):
        ALD.append(["s_lshl_b32 s%d, s%d, 7" % (sT0, blk), "s_add_u32 s%d, s%d, 0x%x" % (sT0, sT0, OFF_G), "buffer_load_dword v%d, v14, s[%d:%d], s%d offen sc1" % (dst, SV, SV + 3, sT0)])
    ALD += [["s_lshr_b32 s%d, s%d, 2" % (sT0, sHP), "s_lshl_b32 s%d, s%d, 19" % (sT0, sT0), "s_and_b32 s%d, s%d, 3" % (sT1, sHP), "s_lshl_b32 s%d, s%d, 11" % (sT1, sT1)],
            ["s_add_u32 s%d, s%d, s%d" % (sT0, sT0, sT1), "s_lshl_b32 s%d, s%d, 13" % (sT1, sRA), "s_add_u32 s%d, s%d, s%d" % (sA0, sT0, sT1)],
            ["s_max_u32 s%d, s%d, 1" % (sT1, sRA), "s_sub_u32 s%d, s%d, 1" % (sT1, sT1), "s_lshl_b32 s%d, s%d, 13" % (sT1, sT1), "s_add_u32 s%d, s%d, s%d" % (sA1, sT0, sT1)]]
    bump = ["s_add_u32 s%d, s%d, %d" % (sA0, sA0, 4 * PH), "s_add_u32 s%d, s%d, %d" % (sA1, sA1, 4 * PH)]
    ALD += [ld(ar(AQ, 4), sA0, 0), ld(ar(AQ + 4, 4), sA0, 1024) + bump, ld(ar(AKC, 4), sA0, 0), ld(ar(AKC + 4, 4), sA0, 1024), ld(ar(AKP, 4), sA1, 0), ld(ar(AKP + 4, 4), sA1, 1024) + bump,
            ld(ar(AV, 4), sA1, 1024), ld(ar(AV + 4, 4), sA0, 0), ld(ar(AV + 8, 4), sA0, 1024)]
    a(lT2b + ":")
    mask(S[0], 4, 0)
    step(0, 1, 2, 0, 0, 2, extra_vm=ALD)
    a("s_branch %s" % lEn)
    a(lT16 + ":")
    mask(S[0], 4, 0)
    step(0, 2, 2, 0, 0, 2, extra_vm=ALD)
    a(lEn + ":")
    def fin(rb):
        l = vL[rb]; g = (vGL, vGS)[rb]; blk = (sQL, sQS)[rb]
        G = ["v_mov_b32 v%d, v%d" % (vX, l), "v_sub_f32 v%d, 1.0, v%d" % (g, g), "s_mul_i32 s%d, s%d, %d" % (sT0, blk, CROW), "v_permlane32_swap_b32 v%d, v%d" % (l, vX),
             "v_add_f32 v%d, v%d, v%d" % (l, l, vX), "v_rcp_f32 v%d, v%d" % (l, l), "s_lshl_b32 s%d, s%d, 13" % (sT1, sH), "v_mul_f32 v%d, v%d, v%d" % (l, l, g),
             "s_add_u32 s%d, s%d, s%d" % (sT0, sT0, sT1), "s_add_u32 s%d, s%d, 0x%x" % (sT0, sT0, OFF_C)]
        for c in range(8):
            t = 16 + c * 8; pk = (176, 208)[rb] + c * 4
            G += ["v_accvgpr_read_b32 v%d, a%d" % (t + j, O + rb * 64 + c * 8 + j) for j in range(8)]
            G += ["v_mul_f32 v%d, v%d, v%d" % (t + j, l, t + j) for j in range(8)]
            G += ["v_cvt_pk_bf16_f32 v%d, v%d, v%d" % (pk + j, t + 2 * j, t + 2 * j + 1) for j in range(4)]
            if c == 4: G.append("s_add_u32 s%d, s%d, 4096" % (sT0, sT0))
            G.append("buffer_store_dwordx4 %s, v%d, s[%d:%d], s%d offen offset:%d" % (vr(pk, 4), vK, SV, SV + 3, sT0, (c % 4) * 1024))
        return G
    step(1, 2, 0, 0, 0, 0, pre_out=False, extra_valu=fin(1))
    T.stamp(6)
    BC, BP = 80, 96
    a("s_cmp_eq_u32 s%d, 0\ns_cselect_b32 s%d, 64, 32\nv_add_u32 v11, s%d, v%d" % (sRA, sT2, sT2, vU))
    items = [(BC + r, vU, 8 * (r // 4) + r % 4) for r in range(16)] + [(BP + r, 11, 8 * (r // 4) + r % 4) for r in range(8, 16)]
    for j in range(0, 24, 3):
        for q in range(3):
            d, u, key = items[j + q]
            a("v_subrev_u32 v%d, %d, v%d\nv_and_b32 v%d, -15, v%d\nv_cmp_eq_u32 s[%d:%d], 0, v%d" % (12 + q, key, u, 12 + q, 12 + q, ms[q], ms[q] + 1, 12 + q))
        for q in range(3): a("v_cndmask_b32 v%d, v%d, 0, s[%d:%d]" % (items[j + q][0], vNEG, ms[q], ms[q] + 1))
    for r in range(8): a("v_mov_b32 v%d, v%d" % (BP + r, vNEG))
    a("v_and_b32 v10, 1, v0\nv_lshlrev_b32 v10, 4, v10\nv_mov_b32 v11, 0xffff\nv_lshlrev_b32 v%d, v10, v11" % vPM)
    SC, SP = (112, 128), (144, 160)
    for e in range(2):
        a("%s %s, %s, %s, %s" % (MF32, vr(SC[e], 16), ar(AKC + 4 * e, 4), ar(AQ + 4 * e, 4), vr(BC, 16)))
        a("%s %s, %s, %s, %s" % (MF32, vr(SP[e], 16), ar(AKP + 4 * e, 4), ar(AQ + 4 * e, 4), vr(BP, 16)))
    for x in fin(0): a(x)
    TA = (16, 28); PA = (40, 52); MX = (10, 12)
    for e in range(2):
        for j in range(4): a("v_max_f32 v%d, v%d, v%d" % (TA[e] + j, SP[e] + 8 + 2 * j, SP[e] + 9 + 2 * j))
        for j in range(8): a("v_max_f32 v%d, v%d, v%d" % (TA[e] + 4 + j, SC[e] + 2 * j, SC[e] + 2 * j + 1))
    for e in range(2):
        t = TA[e]; m = MX[e]
        a("v_max3_f32 v%d, v%d, v%d, v%d" % (m, t, t + 1, t + 2))
        for j in range(3, 11, 2): a("v_max3_f32 v%d, v%d, v%d, v%d" % (m, m, t + j, t + j + 1))
        a("v_max_f32 v%d, v%d, v%d\nv_mov_b32 v%d, v%d" % (m, m, t + 11, m + 1, m))
    a("s_nop 1")
    for e in range(2): a("v_permlane32_swap_b32 v%d, v%d" % (MX[e], MX[e] + 1))
    for e in range(2): a("v_max_f32 v%d, v%d, v%d" % (MX[e], MX[e], MX[e] + 1))
    for e in range(2):
        for j in range(12): a("v_sub_f32 v%d, v%d, v%d" % (TA[e] + j, TA[e] + j, MX[e]))
        for j in range(12): a("v_exp_f32 v%d, v%d" % (TA[e] + j, TA[e] + j))
    for e in range(2):
        for j in range(12): a("v_cvt_pk_bf16_f32 v%d, v%d, v%d" % (PA[e] + j, TA[e] + j, TA[e] + j))
        for j in range(12): a("v_and_b32 v%d, v%d, v%d" % (PA[e] + j, vPM, PA[e] + j))
    for e in range(2):
        a("v_add_f32 v%d, v%d, v%d" % (MX[e], TA[e], TA[e] + 1))
        for j in range(2, 12): a("v_add_f32 v%d, v%d, v%d" % (MX[e], MX[e], TA[e] + j))
        a("v_mov_b32 v%d, v%d" % (MX[e] + 1, MX[e]))
        for g in range(3):
            a("%s %s, %s, %s, %s" % (MF32, vr(SC[e], 16), ar(AV + 4 * g, 4), vr(PA[e] + 4 * g, 4), "0" if g == 0 else vr(SC[e], 16)))
    for e in range(2): a("v_permlane32_swap_b32 v%d, v%d" % (MX[e], MX[e] + 1))
    for e in range(2): a("v_add_f32 v%d, v%d, v%d" % (MX[e], MX[e], MX[e] + 1))
    for e in range(2): a("v_rcp_f32 v%d, v%d" % (MX[e], MX[e]))
    a("s_nop 0")
    for e in range(2): a("v_mul_f32 v%d, v%d, v%d" % (MX[e], MX[e], vGA))
    a("s_mul_i32 s%d, s%d, %d\ns_lshl_b32 s%d, s%d, 11\ns_add_u32 s%d, s%d, s%d\ns_add_u32 s%d, s%d, 0x%x" % (sT0, sRA, CROW, sT1, sHP, sT0, sT0, sT1, sT0, sT0, OFF_C + 256 * 1024))
    a("s_nop 1")
    for e in range(2):
        src = SC[e] + 8 * e
        for j in range(8): a("v_mul_f32 v%d, v%d, v%d" % (src + j, MX[e], src + j))
        for j in range(4): a("v_cvt_pk_bf16_f32 v%d, v%d, v%d" % (PA[e] + j, src + 2 * j, src + 2 * j + 1))
        a("buffer_store_dwordx4 %s, v%d, s[%d:%d], s%d offen offset:%d" % (vr(PA[e], 4), vK, SV, SV + 3, sT0, e * 1024))
    T.dump(SO, sWV, 4)
    a(done + ":\ns_endpgm")
    a(lRare + ":")
    for (ls, lb, kind) in spins:
        lp = a.label("sp")
        a(ls + ":\ns_mov_b32 s%d, 0x40000\n%s:" % (sT2, lp))
        a("s_sleep 8\n" + poll_load(kind) + "\ns_waitcnt vmcnt(0)\n%s\ns_cbranch_vccz %s" % (poll_cmp(kind), lb))
        a("s_sub_u32 s%d, s%d, 1\ns_cmp_lg_u32 s%d, 0\ns_cbranch_scc1 %s\ns_branch %s" % (sT2, sT2, sT2, lp, lb))
    for (ls, lb) in rels:
        a("%s:\ns_cmp_lg_u32 s%d, 0\ns_cbranch_scc1 %s\nbuffer_wbl2 sc1\ns_waitcnt vmcnt(0)\ns_branch %s" % (ls, sWV, lb, lb))
    sRET = 44
    for (p, sm, qk), (lr, users) in rare.items():
        for rid, (lj, lb) in enumerate(users):
            a("%s:\ns_mov_b32 s%d, %d\ns_branch %s" % (lj, sRET, rid, lr))
        a(lr + ":")
        a("s_nop 7\ns_nop 7")
        Sc, Sn = S[p], S[1 - p]
        for rb in range(2 if sm == 1 else 1):
            cur = [Sc + rb * 32 + j for j in range(32)] if sm == 1 else [Sc + j for j in range(64)]
            d, f = vX, vX + 2
            rowmax(d, cur)
            a("v_max_f32 v%d, 0, v%d\nv_exp_f32 v%d, -v%d" % (d, d, f, d))
            for r in cur: a("v_sub_f32 v%d, v%d, v%d" % (r, r, d))
            for j in range(16): a("v_sub_f32 v%d, v%d, v%d" % (NM + rb * 16 + j, NM + rb * 16 + j, d))
            nx = []
            if qk == 1: nx = [Sn + rb * 32 + j for j in range(32)]
            elif qk == 2 and rb == 0: nx = [Sn + j for j in range(64)]
            for r in nx: a("v_sub_f32 v%d, v%d, v%d" % (r, r, d))
            a("v_mul_f32 v%d, v%d, v%d" % (vL[rb], vL[rb], f))
            for j in range(0, 64, 4):
                for q in range(4): a("v_accvgpr_read_b32 v%d, a%d" % (TM + q, O + rb * 64 + j + q))
                for q in range(4): a("v_mul_f32 v%d, v%d, v%d" % (TM + q, TM + q, f))
                for q in range(4): a("v_accvgpr_write_b32 a%d, v%d" % (O + rb * 64 + j + q, TM + q))
        for c, x in sm_list(p, sm): a(x)
        for rid, (lj, lb) in enumerate(users):
            if rid < len(users) - 1: a("s_cmp_eq_u32 s%d, %d\ns_cbranch_scc1 %s" % (sRET, rid, lb))
            else: a("s_branch %s" % lb)
    a.add_kernel(name, 512, 100, 256)
    a.launch(name, 256, 256, 163840)
```

```python
from gen_common import *

pX, pWQKV, pWO0, pC, pWQ, pWUK, pWUV, pBWO, pGATE, pDBG, pWS = 36, 38, 40, 44, 46, 48, 50, 52, 54, 58, 60
pWO = 58
NEG = "0xff800000"
THRESH = fbits(2.0 ** 48)
WSL = (98304, 131072)
LDS_G = WSL[0] + 24576
def aslot(g): return ((g + 2) % 3) * 32768

def emit(a, M, streams):
    n = len(M)
    fill = [[] for _ in range(n)]
    for (G, l, h) in streams:
        if not G: continue
        for g, m in zip(G, spread(len(G), l, min(h, n))):
            fill[m] += g if isinstance(g, list) else [g]
    for m in range(n):
        a(M[m])
        for x in fill[m]: a(x)
def isvm(x): return x.startswith("buffer_") or x.startswith("global_")

def gen_fused(a, name="p1_kernel", ts=False, NSK=30, WSP=16, PF=1, PKMUL=0, next_kernel=None, PD=6, TS2=0, LNT="", NTG=8, LATEAT=0, STAMPS=("start","setup","bar0","q","attn","s0","s17"), XSL=3, XL2=0, ST=""):
    a.begin_kernel(name)
    T = TS(a, ts, 0)
    def st_(nm):
        if nm in STAMPS: T.stamp(STAMPS.index(nm))
    done = a.label("fdone")
    lAttn, lRare = a.label("attn"), a.label("rarecode")
    sWV = 3
    SA, SW, SX, SO, SD = 4, 8, 12, 16, 40
    sH, sI, sT0, sT1, sT2 = 20, 21, 22, 23, 24
    sAS, sAS2, sWS, sXS, sAM, sWM, sXM, sCNT, sOK, sDS, sSC = 25, 26, 27, 28, 29, 30, 31, 32, 33, 34, 35
    sQL, sQS, sU, sOA, sAD, sWD, sOJ, sVD, sFA, sGR = 92, 93, 94, 95, 96, 97, 56, 57, 63, 99
    sKO, sVO, sW4, sW8, sTH, sT = 48, 49, 50, 51, 54, 55
    vL16, vAO, vWO, vXO = 1, (2, 3), 4, 5
    vAR, vWR, vXR = (6, 7, 8, 9), (10, 11, 12, 13), (14, 15)
    FS = (16, 48); TT, PK = (80, 80), 96
    vFO, vONE = 88, 89
    QA = 128
    t2 = [0]
    def bar(waitstr):
        if TS2:
            n = t2[0]; t2[0] += 1
            if n > 0: a("v_writelane_b32 v91, s64, %d\nv_writelane_b32 v91, s66, %d" % (2 * n - 2, 2 * n - 1))
            a("s_memtime s[64:65]")
        a(waitstr + "\ns_barrier")
        if TS2: a("s_memtime s[66:67]")
    a("s_cmp_ge_u32 s2, 256\ns_cbranch_scc1 %s" % done)
    st_("start")
    a("s_load_dwordx16 s[36:51], s[0:1], 0\ns_load_dwordx8 s[52:59], s[0:1], 64\ns_load_dwordx2 s[60:61], s[0:1], 96")
    a("v_lshrrev_b32 v16, 6, v0\nv_and_b32 v0, 63, v0\nv_readfirstlane_b32 s%d, v16" % sWV)
    a("s_and_b32 s%d, s2, 7\ns_lshl_b32 s%d, s%d, 2\ns_lshr_b32 s%d, s2, 3\ns_and_b32 s%d, s%d, 3\ns_add_u32 s%d, s%d, s%d" % (sH, sH, sH, sT0, sT0, sT0, sH, sH, sT0))
    a("s_lshr_b32 s%d, s2, 5" % sI)
    a("v_lshlrev_b32 v%d, 4, v0" % vL16)
    a("v_lshrrev_b32 v16, 3, v0\nv_lshrrev_b32 v17, 4, v0\nv_and_b32 v18, 7, v0")
    for n in range(2):
        a("v_add_u32 v19, %d, v17\nv_xor_b32 v19, v19, v18\nv_lshlrev_b32 v19, 4, v19\nv_lshl_add_u32 v%d, v16, 10, v19" % (4 * n, vAO[n]))
    a("v_and_b32 v19, 15, v0\nv_lshlrev_b32 v20, 2, v17\nv_xor_b32 v19, v19, v20\nv_lshlrev_b32 v19, 4, v19\nv_lshl_add_u32 v%d, v17, 13, v19" % vWO)
    a("s_sub_u32 s%d, 15, s%d\ns_bitcmp1_b32 s%d, 0\ns_cselect_b32 s%d, s%d, s%d\ns_lshl_b32 s%d, s%d, 1\ns_lshr_b32 s%d, s%d, 1\ns_add_u32 s%d, s%d, s%d" % (sT0, sI, sWV, sT0, sT0, sI, sT0, sT0, sT1, sWV, sT0, sT0, sT1))
    a("s_lshl_b32 s%d, s%d, 16\ns_add_u32 s%d, s%d, 32768" % (sAS, sT0, sAS2, sAS))
    a("s_lshl_b32 s%d, s%d, 13\ns_mov_b32 s%d, s%d" % (sAM, sWV, sWM, sAM))
    a("s_and_b32 s%d, s%d, 1\ns_lshl_b32 s%d, s%d, 18\ns_lshl_b32 s%d, s%d, 8\ns_add_u32 s%d, s%d, s%d" % (sT0, sWV, sT0, sT0, sWS, sH, sWS, sWS, sT0))
    a("s_and_b32 s%d, s2, 31" % sU)
    a("s_waitcnt lgkmcnt(0)")
    srd(a, SA, pC, 0x200000)
    a("s_cmp_lt_u32 s%d, 2\ns_cselect_b32 s%d, s%d, s%d\ns_cselect_b32 s%d, s%d, s%d\ns_mov_b32 s%d, 0x400000\ns_mov_b32 s%d, 0x20000" % (sWV, SW, pWUK, pWUV, SW + 1, pWUK + 1, pWUV + 1, SW + 2, SW + 3))
    def dma_act(g):
        G = []
        for n in range(8):
            G.append(["s_add_u32 m0, s%d, %d" % (sAM, aslot(g) + n * 1024), "s_add_u32 s%d, s%d, %d" % (sDS, sAS if n < 4 else sAS2, (n % 4) * 8192 + (g % 8) * 128),
                      "buffer_load_dwordx4 v%d, s[%d:%d], s%d offen %s lds" % (vAO[n % 2], SA, SA + 3, sDS, LNT if g >= NTG else "")])
        return G
    def dma_w(g, withx=True):
        G = []
        for n in range(8 if g < 8 else 4):
            G.append(["s_add_u32 m0, s%d, %d" % (sWM, WSL[g % 2] + n * 1024), "s_add_u32 s%d, s%d, %d" % (sDS, sWS, n * 32768 + (g % 8) * 0x80000),
                      "buffer_load_dwordx4 v%d, s[%d:%d], s%d offen %s lds" % (vWO, SW, SW + 3, sDS, LNT if g >= NTG else "")])
        if g >= 8 and withx:
            for n in range(2):
                G.append(["s_add_u32 m0, s%d, %d" % (sXM, WSL[g % 2] + 16384 + n * 1024), "s_add_u32 s%d, s%d, %d" % (sDS, sXS, n * 24576 + (g % 8) * 64 * 3072),
                          "buffer_load_dwordx4 v%d, s[%d:%d], s%d offen %s lds" % (vXO, SX, SX + 3, sDS, LNT)])
        return G
    for gw, ga in zip(dma_w(0), dma_act(0)):
        for x in gw + ga: a(x)
    NSL = 8
    def preg(k): return 128 + 2 * k
    def pf(k): return "global_load_dword v90, %s, off" % vr(preg(k), 2)
    def pfa(k, base, vo, so, imm=0):
        r = preg(k)
        a("s_add_u32 s%d, s%d, %d\nv_mov_b32 v%d, s%d\nv_add_u32 v%d, s%d, v%d" % (sT2, so, imm, r + 1, base + 1, r, sT2, vo))
        a("v_add_co_u32 v%d, vcc, s%d, v%d\ns_nop 1\nv_addc_co_u32 v%d, vcc, 0, v%d, vcc" % (r, base, r, r + 1, r + 1))
    def pfnone(k): a("v_mov_b32 v%d, s%d\nv_mov_b32 v%d, s%d" % (preg(k), pGATE, preg(k) + 1, pGATE + 1))
    if PF:
        l1, l3, le = a.label("pf1"), a.label("pf3"), a.label("pfe")
        a("s_cmp_eq_u32 s%d, 1\ns_cbranch_scc1 %s\ns_cmp_eq_u32 s%d, 3\ns_cbranch_scc1 %s" % (sWV, l1, sWV, l3))
        a("v_and_b32 v26, 31, v0\nv_lshlrev_b32 v26, 7, v26\ns_lshl_b32 s%d, s2, 13\ns_lshl_b32 s%d, s%d, 11\ns_add_u32 s%d, s%d, s%d" % (sT0, sT1, sWV, sT0, sT0, sT1))
        pfa(0, pC, 26, sT0, 0); a(pf(0))
        pfa(XSL, pX, 26, sT0, 0)
        used = {0, XSL}
        if XL2:
            a("s_lshr_b32 s%d, s2, 3\ns_lshl_b32 s%d, s%d, 16\ns_lshl_b32 s%d, s%d, 6\ns_add_u32 s%d, s%d, s%d\nv_lshlrev_b32 v26, 10, v0" % (sT0, sT0, sT0, sT1, sWV, sT1, sT0, sT1))
            for j in range(4):
                pfa(XL2 + j, pX, 26, sT1, 256 * j); used.add(XL2 + j)
        for k in range(NSL):
            if k not in used: pfnone(k)
        a("s_branch %s\n%s:" % (le, l1))
        a("v_lshrrev_b32 v26, 1, v0\nv_lshlrev_b32 v26, 13, v26\nv_and_b32 v27, 1, v0\nv_lshl_add_u32 v26, v27, 7, v26")
        a("s_bitcmp1_b32 s%d, 1\ns_cselect_b32 s98, s%d, s%d\ns_cselect_b32 s99, s%d, s%d" % (sI, pWUV, pWUK, pWUV + 1, pWUK + 1))
        a("s_and_b32 s%d, s%d, 1\ns_lshl_b32 s%d, s%d, 18\ns_lshl_b32 s%d, s%d, 8\ns_add_u32 s%d, s%d, s%d" % (sT0, sI, sT0, sT0, sT1, sH, sCNT, sT0, sT1))
        a("s_lshr_b32 s%d, s%d, 2\ns_lshl_b32 s%d, s%d, 19\ns_add_u32 s%d, s%d, s%d" % (sT0, sI, sT0, sT0, sT0, sT0, sCNT))
        pfa(0, 98, 26, sT0, 1 * 0x80000); a(pf(0))
        pfa(1, 98, 26, sT0, 3 * 0x80000); pfa(2, 98, 26, sT0, 5 * 0x80000); pfa(3, 98, 26, sCNT, 7 * 0x80000)
        a("s_lshl_b32 s%d, s%d, 18\ns_add_u32 s%d, s%d, s%d" % (sT0, sI, sT0, sT0, sT1))
        pfa(4, pWQ, 26, sT0, 0); pfa(6, pWQ, 26, sT0, 4 * 0x80000)
        a("s_min_u32 s%d, s%d, 23\ns_lshl_b32 s%d, s%d, 7\ns_mul_i32 s%d, s%d, %d\ns_add_u32 s%d, s%d, s%d\nv_mul_u32_u24 v26, 3072, v0" % (sT0, sU, sT0, sT0, sT1, sI, 64 * 3072, sT0, sT0, sT1))
        pfa(5, pWQKV, 26, sT0, 0); pfnone(7)
        a("s_branch %s\n%s:" % (le, l3))
        lpc = a.label("pc")
        a("s_getpc_b64 s[98:99]\n%s:" % lpc)
        a("s_lshr_b32 s%d, s2, 3\nv_lshlrev_b32 v26, 5, v0\nv_add_u32 v26, s%d, v26\nv_lshlrev_b32 v26, 7, v26\ns_mov_b32 s%d, 0" % (sT0, sT0, sT0))
        a("v_min_u32 v27, %s-%s, v26" % (lAttn, lpc))
        pfa(0, 98, 27, sT0, 0); a(pf(0))
        a("v_min_u32 v27, %s-%s, v26\ns_mov_b32 s%d, %s-%s" % (lRare, lAttn, sT0, lAttn, lpc))
        pfa(7, 98, 27, sT0, 0)
        a("v_lshlrev_b32 v26, 7, v0\ns_lshl_b32 s%d, s2, 14" % sT0)
        pfa(4, pBWO, 26, sT0, 0); pfa(5, pBWO, 26, sT0, 8192)
        a("v_and_b32 v27, 15, v0\nv_lshlrev_b32 v27, 7, v27\ns_lshl_b32 s%d, s2, 11" % sT0)
        pfa(6, pWO0, 27, sT0, 0)
        for k in (1, 2, 3): pfnone(k)
        a(le + ":")
    def pfp(p): return [[pf(p + 2)]] if (PF and p + 2 < NSL) else []
    srd(a, SO, pWS, WS_SIZE)
    a("v_and_b32 v19, 1, v17\nv_lshlrev_b32 v19, 2, v19\nv_xor_b32 v19, v19, v18\nv_lshlrev_b32 v19, 4, v19\ns_movk_i32 s%d, 3072\nv_mad_u32_u24 v%d, v16, s%d, v19" % (sT0, vXO, sT0))
    a("v_and_b32 v19, 31, v0\nv_lshrrev_b32 v20, 1, v19\nv_and_b32 v20, 7, v20\nv_lshrrev_b32 v21, 5, v0\nv_xor_b32 v20, v20, v21\nv_lshlrev_b32 v20, 4, v20\nv_lshl_add_u32 v20, v19, 7, v20")
    a("s_and_b32 s%d, s%d, 1\ns_lshl_b32 s%d, s%d, 14\ns_add_u32 s%d, s%d, %d" % (sT0, sWV, sT0, sT0, sT0, sT0, aslot(0)))
    for k in range(4): a("v_xor_b32 v%d, %d, v20\nv_add_u32 v%d, s%d, v%d" % (vAR[k], 32 * k, vAR[k], sT0, vAR[k]))
    a("v_lshrrev_b32 v19, 2, v0\nv_and_b32 v19, 3, v19\nv_lshl_add_u32 v20, v21, 3, v19")
    a("v_and_b32 v22, 1, v17\nv_lshlrev_b32 v22, 1, v22\nv_lshrrev_b32 v23, 1, v0\nv_and_b32 v23, 1, v23\nv_add_u32 v22, v22, v23\nv_and_b32 v23, 1, v0\nv_lshlrev_b32 v23, 3, v23")
    a("v_lshlrev_b32 v24, 2, v19\nv_xor_b32 v24, v24, v22\nv_lshlrev_b32 v24, 4, v24\nv_lshl_add_u32 v24, v20, 8, v24\nv_add_u32 v24, v24, v23")
    a("s_lshr_b32 s%d, s%d, 1\ns_lshl_b32 s%d, s%d, 14\ns_add_u32 s%d, s%d, %d" % (sWD, sWV, sWD, sWD, sT0, sWD, WSL[0]))
    for k in range(4): a("v_xor_b32 v%d, %d, v24\nv_add_u32 v%d, s%d, v%d" % (vWR[k], 64 * k, vWR[k], sT0, vWR[k]))
    a("v_lshrrev_b32 v24, 1, v19\nv_lshlrev_b32 v24, 2, v24\nv_xor_b32 v24, v24, v22\nv_lshlrev_b32 v24, 4, v24\nv_lshl_add_u32 v24, v20, 7, v24\nv_add_u32 v24, v24, v23")
    a("v_add_u32 v%d, %d, v24\nv_xor_b32 v%d, 64, v%d" % (vXR[0], WSL[0] + 16384, vXR[1], vXR[0]))
    a("s_lshl_b32 s%d, s%d, 2\ns_add_u32 s%d, s%d, s%d\ns_sub_u32 s%d, 60, s%d\ns_add_u32 s%d, s%d, s%d" % (sT1, sI, sQS, sT1, sWV, sQL, sT1, sQL, sQL, sWV))
    a("s_lshr_b32 s%d, s%d, 1\ns_lshl_b32 s%d, s%d, 5\ns_add_u32 s%d, s%d, s%d\ns_add_u32 s%d, s%d, 44\ns_lshl_b32 s%d, s%d, 19" % (sT0, sWV, sT0, sT0, sT0, sT0, sH, sT0, sT0, sOK, sT0))
    a("s_and_b32 s%d, s%d, 1\ns_lshl_b32 s%d, s%d, 1\ns_add_u32 s%d, s%d, s%d\ns_lshl_b32 s%d, s%d, 14\ns_add_u32 s%d, s%d, s%d" % (sT0, sWV, sT1, sI, sT0, sT0, sT1, sT0, sT0, sOK, sOK, sT0))
    a("s_lshl_b32 s%d, s%d, 16\ns_sub_u32 s%d, %d, s%d" % (sT0, sI, sOJ, 58 * 8192 + 4096, sT0))
    a("s_lshl_b32 s%d, s%d, 13\ns_and_b32 s%d, s%d, 1\ns_lshl_b32 s%d, s%d, 14\ns_sub_u32 s%d, s%d, s%d" % (sT0, sWV, sT1, sWV, sT1, sT1, sAD, sT0, sT1))
    a("s_lshl_b32 s%d, s%d, 6\nv_add_u32 v%d, s%d, v0\nv_lshlrev_b32 v%d, 12, v%d\nv_mov_b32 v%d, 1" % (sT0, sWV, vFO, sT0, vFO, vFO, vONE))
    srd(a, SX, pGATE, 1024)
    a("s_mov_b32 s98, s%d\ns_mov_b32 s99, s%d" % (pWO0, pWO0 + 1))
    srd(a, SD, pDBG, 256)
    a("s_mov_b32 s%d, s98\ns_mov_b32 s%d, s99" % (pWO, pWO + 1))
    a("s_getreg_b32 s%d, hwreg(HW_REG_XCC_ID, 0, 4)\ns_mul_i32 s%d, s%d, s%d\ns_lshl_b32 s%d, s%d, 8\ns_add_u32 s%d, s%d, s%d\ns_lshl_b32 s%d, s%d, 8\ns_add_u32 s%d, s%d, 1" % (sT0, sT1, sT0, sT0, sT1, sT1, sT1, sT1, sT0, sT1, sT1, sFA, sT1))
    a("v_mov_b32 v93, s%d\ns_lshl_b32 s%d, s%d, 3\ns_and_b32 s%d, s2, 7\ns_lshl_b32 s%d, s%d, 2\ns_lshl_b32 s%d, s%d, 2" % (sFA, sFA, sFA, sGR, sGR, sGR, sCNT, sH))
    a("v_and_b32 v94, 3, v0\nv_add_lshl_u32 v94, v94, s%d, 2\ns_lshl_b32 s%d, s%d, 12\nv_add_u32 v94, s%d, v94\nv_mov_b32 v92, s%d" % (sGR, sT0, sWV, sT0, sT0))
    a("buffer_atomic_add v93, v%d, s[%d:%d], s%d offen offset:128 sc1" % (vFO, SD, SD + 3, sCNT))

    def wofs(g): return (g % 2) * 32768
    def rd_kv(g, ks):
        F = FS[ks % 2]
        L = ["ds_read_b128 %s, v%d offset:%d" % (vr(F + 4 * j, 4), vAR[ks], j * 4096) for j in range(4)]
        W = ["ds_read_b64_tr_b16 %s, v%d offset:%d" % (vr(F + 16 + 4 * cb + 2 * rd, 2), vWR[cb], wofs(g) + ks * 4096 + rd * 1024) for cb in range(4) for rd in range(2)]
        return W[:2] + L + W[2:] + [xa(g, ks)]
    def rd_q(g, ks, var):
        F = FS[ks % 2]
        L = ["ds_read_b128 %s, v%d offset:%d" % (vr(F + 4 * j, 4), vAR[ks], j * 4096) for j in range(2)]
        L += ["ds_read_b64_tr_b16 %s, v%d offset:%d" % (vr(F + 16 + 4 * cb + 2 * rd, 2), vWR[cb], wofs(g) + ks * 4096 + rd * 1024) for cb in range(4) for rd in range(2)]
        if g < 15: L.append(xa(g, ks))
        if var in "NS":
            X = ["ds_read_b64_tr_b16 %s, v%d offset:%d" % (vr(F + 8 + 4 * cb + 2 * rd, 2), vXR[cb], wofs(g) + ks * 2048 + rd * 512) for cb in range(2) for rd in range(2)]
        else:
            X = ["ds_read_b128 %s, v%d offset:%d" % (vr(F + 8, 4), vXR[0], ((g - 8) * 4 + ks) * 32)]
        return L, X
    def xa(g, ks):
        d = aslot(g + 1) - aslot(g)
        return ("v_add_u32 v%d, 0x%x, v%d" % (vAR[ks], d, vAR[ks])) if d > 0 else ("v_subrev_u32 v%d, 0x%x, v%d" % (vAR[ks], -d, vAR[ks]))
    def mf_kv(ks, isV, first=False, rbmajor=False):
        F = FS[ks % 2]; M = []
        order = [(rb, cb) for rb in range(4) for cb in range(4)] if rbmajor else [(rb, cb) for cb in range(4) for rb in range(4)]
        for rb, cb in order:
            acc = ar((rb * 4 + cb) * 16, 16); x = vr(F + 4 * rb, 4); w = vr(F + 16 + 4 * cb, 4)
            M.append("%s %s, %s, %s, %s" % (MF32, acc, x if isV else w, w if isV else x, "0" if first else acc))
        return M
    def mf_q(ks, var, first):
        F = FS[ks % 2]; M = []
        for cb in range(4):
            for rb in range(2):
                acc = vr(QA + (rb * 4 + cb) * 16, 16)
                M.append("%s %s, %s, %s, %s" % (MF32, acc, vr(F + 16 + 4 * cb, 4), vr(F + 4 * rb, 4), "0" if first else acc))
        for cb in range(2 if var in "NS" else 1):
            for rb in range(2):
                acc = ar((cb * 2 + rb) * 16, 16); x = vr(F + 4 * rb, 4); w = vr(F + 8 + 4 * cb, 4)
                M.append("%s %s, %s, %s, %s" % (MF32, acc, x if var == "S" else w, w if var == "S" else x, "0" if first else acc))
        return M
    cnt = [0]
    def pack(areg, pk, scale=None):
        t = TT[0]
        G = ["v_accvgpr_read_b32 v%d, a%d" % (t + j, areg + j) for j in range(8)]
        if scale is not None: G += ["v_mul_f32 v%d, s%d, v%d" % (t + j, scale, t + j) for j in range(8)]
        G += ["v_cvt_pk_bf16_f32 v%d, v%d, v%d" % (pk + j, t + 2 * j, t + 2 * j + 1) for j in range(4)]
        return G
    def store(pk, so, off, fl=""): return "buffer_store_dwordx4 %s, v%d, s[%d:%d], s%d offen offset:%d %s" % (vr(pk, 4), vL16, SO, SO + 3, so, off, fl)
    def drain(areg, so, off, scale=None):
        pk = PK + 4 * (cnt[0] % 8); cnt[0] += 1
        return pack(areg, pk, scale) + [store(pk, so, off)]
    def kv_pack(j): return pack(j * 8, PK + 4 * (j % 8))
    def kv_store(j):
        G = [store(PK + 4 * (j % 8), sOK, (j % 4) * 1024, ST)]
        if j == 15: G.append("s_add_u32 s%d, s%d, s%d" % (sOK, sOK, sOJ))
        elif j % 4 == 3: G.append("s_add_u32 s%d, s%d, 4096" % (sOK, sOK))
        return G
    qa_setup = [["s_mov_b32 s%d, s%d" % (SA, pX), "s_mov_b32 s%d, s%d" % (SA + 1, pX + 1),
                 "s_lshl_b32 s%d, s%d, 15" % (sAS, sQL), "s_lshl_b32 s%d, s%d, 15" % (sAS2, sQS)]]
    qw_setup = [["s_mov_b32 m0, %d" % LDS_G, "s_mov_b32 s%d, s%d" % (SW, pWQ), "buffer_load_dwordx4 v%d, s[%d:%d], 0 offen lds" % (vL16, SX, SX + 3), "s_mov_b32 s%d, s%d" % (SW + 1, pWQ + 1)],
                ["s_lshl_b32 s%d, s%d, 17" % (sT0, sWV), "s_lshl_b32 s%d, s%d, 8" % (sWS, sH), "s_add_u32 s%d, s%d, s%d" % (sWS, sWS, sT0), "s_lshl_b32 s%d, s%d, 12" % (sWM, sWV)],
                ["s_mov_b32 s%d, s%d" % (SX, pWQKV), "s_mov_b32 s%d, s%d" % (SX + 1, pWQKV + 1), "s_lshl_b32 s%d, s%d, 11" % (sXM, sWV), "s_mul_i32 s%d, s%d, %d" % (sXS, sWV, 16 * 3072)],
                ["s_lshl_b32 s%d, s%d, 7" % (sT0, sU), "s_add_u32 s%d, s%d, s%d" % (sXS, sXS, sT0),
                 "s_and_b32 s%d, s%d, 3" % (sT0, sH), "s_cmp_eq_u32 s%d, 3" % sT0, "s_cselect_b32 s%d, 0, 0x180000" % (SX + 2)]]
    at_setup = [["v_cmp_ne_u32 vcc, s%d, v93" % sFA], ["s_cmp_eq_u64 vcc, 0", "s_cselect_b32 s%d, 1, s%d" % (sFA, sWV)],
                ["s_cmp_eq_u32 s%d, 0" % sWV, "s_cselect_b32 s46, 8, 0", "s_cselect_b32 s47, 0x80000000, 0"],
                ["s_lshl_b32 s%d, s%d, 12" % (sW4, sWV), "s_lshl_b32 s%d, s%d, 13" % (sW8, sWV), "s_lshl_b32 s%d, s%d, 19" % (sT0, sH)],
                ["s_lshl_b32 s%d, s%d, 15" % (sVD, sI), "s_add_u32 s%d, s%d, s%d" % (sT0, sT0, sVD)],
                ["s_add_u32 s%d, s%d, 0x%x" % (sKO, sT0, OFF_K), "s_add_u32 s%d, s%d, 0x%x" % (sVO, sT0, OFF_V), "s_mov_b32 s%d, %s" % (sTH, THRESH)]]
    SK, SV = 4, SO
    vK, vV = vL16, 2
    def dma(which, typ, par, srd_=None):
        so, sr_, base = (sKO, SK, 0) if which == "K" else (sVO, SV, 65536)
        if srd_ is not None: sr_ = srd_
        sw = sW4 if typ == 1 else sW8
        G = []
        for q in range(typ):
            g = ["s_add_u32 m0, s%d, %d" % (sw, base + par * 32768 + q * 4096)]
            g.append("s_add_u32 s%d, s%d, s%d" % (sDS, so, sw) if q == 0 else "s_add_u32 s%d, s%d, 4096" % (sDS, sDS))
            G.append(g)
            for o in range(4):
                G.append(["buffer_load_dwordx4 v%d, s[%d:%d], s%d offen offset:%d sc1 lds" % (vK, sr_, sr_ + 3, sDS, o * 1024)])
        return G
    def adv(which, typ):
        so = sKO if which == "K" else sVO
        if which == "V" and typ == 1: return ["s_add_u32 s%d, s%d, s%d" % (so, so, sVD), "s_movk_i32 s%d, 0x4000" % sVD]
        return ["s_add_u32 s%d, s%d, %d" % (so, so, 16384 * typ)]
    spins = []
    vF1, vFA, vPO = 90, 251, 254
    sP1, sG1, sG2 = 45, 46, 47
    def poll_load(kind):
        if kind == 1: return "buffer_load_dword v%d, v92, s[%d:%d], s%d offen sc1" % (vF1, SD, SD + 3, sCNT)
        return "buffer_load_dword v%d, v%d, s[%d:%d], 0 offen offset:128 sc1" % (vFA, vPO, SD, SD + 3)
    def poll_cmp(kind): return "v_cmp_gt_u32 vcc, s%d, v%d" % ((sG1, vF1) if kind == 1 else (sG2, vFA))
    def poll_check(kind):
        ls, lb = a.label("spin"), a.label("spun")
        a("%s\ns_cbranch_vccnz %s\n%s:" % (poll_cmp(kind), ls, lb))
        spins.append((ls, lb, kind))
    rels = []
    def release():
        ls, lb = a.label("rel"), a.label("reld")
        a("s_cmp_eq_u32 s%d, 0\ns_cbranch_scc1 %s\n%s:" % (sFA, ls, lb))
        rels.append((ls, lb))

    st_("setup")
    bar("s_waitcnt vmcnt(%d)" % (2 if PF else 1))
    st_("bar0")
    for x in rd_kv(0, 0): a(x)
    lV = a.label("kvV"); lQ = a.label("qphase")
    a("s_cmp_ge_u32 s%d, 2\ns_cbranch_scc1 %s" % (sWV, lV))
    def count_after(seq, pred):
        n = 0
        for x in reversed(seq):
            if pred(x): return n
            if isvm(x): n += 1
        return n
    for isV in (False, True):
        if isV: a(lV + ":")
        t2[0] = 1
        for g in range(8):
            p = g - 1
            if g == 0:
                W1, A1 = dma_w(1), dma_act(1)
                ex = [[x for pr in zip(W1, A1) for x in pr], dma_act(2) + pfp(-1), []]
                allowed = 8 + len(pfp(-1))
            else:
                A = (qa_setup if p + 3 == 8 else []) + dma_act(p + 3)
                ex = [A[:-6], A[-6:-3], A[-3:] + (at_setup if g == 7 else [])]
                allowed = 8 + len(pfp(p))
            for ks in range(3):
                a("s_waitcnt lgkmcnt(0)")
                emit(a, mf_kv(ks, isV, first=(g == 0 and ks == 0)), [(rd_kv(g, ks + 1), 0, 13), (ex[ks], 0, 16)])
            bar("s_waitcnt vmcnt(%d) lgkmcnt(0)" % allowed)
            if g < 7:
                Wn = (qw_setup if g == 6 else []) + dma_w(g + 2) + pfp(g)
                if g == 5: Wn = [["buffer_load_dword v93, v94, s[%d:%d], 0 offen offset:128 sc1" % (SD, SD + 3)]] + Wn
                emit(a, mf_kv(3, isV), [(rd_kv(g + 1, 0), 0, 13), (Wn, 0, WSP)])
        for k in range(4): a("v_add_u32 v%d, s%d, v%d" % (vAR[k], sAD, vAR[k]))
        for k in range(4): a("v_subrev_u32 v%d, s%d, v%d" % (vWR[k], sWD, vWR[k]))
        cnt[0] = 0
        D0 = [x for j in range(8) for x in kv_pack(j)]
        emit(a, mf_kv(3, isV, rbmajor=True), [(rd_q(8, 0, "N")[0], 0, 7), (dma_w(9), 0, 6), (D0[:48], 7, 16)])
        if not isV: a("s_branch %s" % lQ)
    a(lQ + ":")
    st_("q")
    lN, lS, lG, lE = a.label("qN"), a.label("qS"), a.label("qG"), a.label("qE")
    a("s_and_b32 s%d, s%d, 3\ns_cmp_eq_u32 s%d, 3\ns_cbranch_scc1 %s\ns_cmp_ge_u32 s%d, 16\ns_cbranch_scc1 %s" % (sT0, sH, sT0, lG, sU, lS))
    cnt0 = cnt[0]
    for var, lab in (("N", lN), ("S", lS), ("G", lG)):
        a(lab + ":")
        cnt[0] = cnt0; t2[0] = 9
        if var == "G": a("v_lshrrev_b32 v%d, 5, v0\nv_lshlrev_b32 v%d, 4, v%d\nv_add_u32 v%d, %d, v%d" % (vXR[0], vXR[0], vXR[0], vXR[0], LDS_G, vXR[0]))
        for x in rd_q(8, 0, var)[1]: a(x)
        vTW, vTR, TG = vXO, (15, 93, 94, 95), 32
        sSJ, sTD, sTL = sOA, sXS, sXM
        tsetup = []
        if var == "G":
            t = 28
            tsetup = ("s_and_b32 s%d, s2, 7\ns_lshl_b32 s%d, s%d, 3\ns_add_u32 s%d, s%d, s%d\n" % (sSJ, sSJ, sSJ, sSJ, sSJ, sI) +
                "s_lshl_b32 s%d, s%d, 12\ns_add_u32 s%d, s%d, %d\n" % (sTL, sWV, sTL, sTL, WSL[1] + 16384) +
                "v_lshrrev_b32 v28, 4, v0\nv_and_b32 v29, 15, v0\nv_lshlrev_b32 v30, 2, v28\nv_xor_b32 v29, v29, v30\nv_lshlrev_b32 v29, 4, v29\nv_lshl_add_u32 v%d, v28, 10, v29\n" % vTW +
                "s_mov_b32 s%d, s%d\ns_mov_b32 s%d, s%d\ns_mov_b32 s%d, 0x400000\n" % (SX, pBWO, SX + 1, pBWO + 1, SX + 2) +
                "s_lshl_b32 s%d, s%d, 14\ns_lshl_b32 s%d, s%d, 8\ns_add_u32 s%d, s%d, s%d\n" % (sSC, sSJ, sT0, sWV, sSC, sSC, sT0) +
                "v_lshrrev_b32 v29, 2, v0\nv_and_b32 v29, 3, v29\nv_lshrrev_b32 v30, 5, v0\nv_lshl_add_u32 v30, v30, 2, v29\n" +
                "v_and_b32 v28, 1, v28\nv_lshlrev_b32 v28, 1, v28\nv_lshrrev_b32 v31, 1, v0\nv_and_b32 v31, 1, v31\nv_add_u32 v28, v28, v31\nv_and_b32 v31, 1, v0\nv_lshlrev_b32 v31, 3, v31\n" +
                "v_lshlrev_b32 v29, 2, v29\nv_xor_b32 v29, v29, v28\nv_lshlrev_b32 v29, 4, v29\nv_lshl_add_u32 v29, v30, 8, v29\nv_add3_u32 v29, v29, v31, s%d\n" % sTL +
                "".join("v_xor_b32 v%d, %d, v29\n" % (vTR[k], 64 * k) for k in range(4)) +
                "s_mul_i32 s%d, s%d, %d\ns_lshl_b32 s%d, s%d, 11\ns_add_u32 s%d, s%d, s%d\ns_add_u32 s%d, s%d, 0x%x" % (sTD, sWV, 2 * WROW, sT1, sSJ, sTD, sTD, sT1, sTD, sTD, OFF_W)).split("\n")
        def t_dma(j):
            G = []
            if j == 4: G.append(["s_mov_b32 s%d, s%d" % (SX, pWO), "s_mov_b32 s%d, s%d" % (SX + 1, pWO + 1), "s_mov_b32 s%d, 0x80000" % (SX + 2)])
            for n in range(4):
                G.append(["s_add_u32 m0, s%d, %d" % (sTL, n * 1024), "s_add_u32 s%d, s%d, %d" % (sDS, sSC, (j % 4) * 0x100000 + n * 4096),
                          "buffer_load_dwordx4 v%d, s[%d:%d], s%d offen %s lds" % (vTW, SX, SX + 3, sDS, LNT)])
            return G
        def t_read(): return ["ds_read_b64_tr_b16 %s, v%d offset:%d" % (ar(TG + 4 * cb + 2 * rd, 2), vTR[cb], rd * 2048) for cb in range(4) for rd in range(2)]
        def t_store(j):
            G = []
            if j == 4: G.append(["s_cmp_ge_u32 s%d, 32" % sSJ, "s_cselect_b32 s%d, 0x%x, s%d" % (sTD, OFF_DUMMY, sTD)])
            G.append(["s_add_u32 s%d, s%d, %d" % (sT1, sTD, WROW)])
            for cb in range(4):
                G.append(["buffer_store_dwordx4 %s, v%d, s[%d:%d], s%d offen offset:%d" % (ar(TG + 4 * cb, 4), vL16, SO, SO + 3, sTD if cb < 2 else sT1, (cb % 2) * 1024)])
            G.append(["s_add_u32 s%d, s%d, %d" % (sTD, sTD, 64 * 2048)])
            return G
        ZR = ["v_accvgpr_write_b32 a%d, 0" % r for r in range(64, 128)]
        after_w = 0
        sched = spread(32, 0, NSK)
        g_pub = 8 + max(sched[:16]) // 4 + (2 if max(sched[:16]) % 4 == 3 else 1)
        assert g_pub <= 14
        for g in range(8, 16):
            for ks in range(4):
                M = mf_q(ks, var, g == 8 and ks == 0); nm = len(M)
                st = []
                if ks == 3 and g < 15:
                    bar("s_waitcnt vmcnt(%d) lgkmcnt(0)" % after_w)
                    after_w = 0
                    G = dma_w(g + 2, var != "G") if g + 2 < 16 else []
                    if g == g_pub:
                        release()
                        G = [["buffer_atomic_add v%d, v%d, s[%d:%d], s%d offen sc1" % (vONE, vFO, SD, SD + 3, sCNT)]] + G
                    if g == 14:
                        G = G + dma("K", 1, 0, SO) + [adv("K", 1)] + dma("K", 1, 1, SO) + [[poll_load(1)]]
                    st.append((G, 0, nm - 2))
                else:
                    a("s_waitcnt lgkmcnt(0)")
                if not (g == 15 and ks == 3):
                    g2, k2 = (g, ks + 1) if ks < 3 else (g + 1, 0)
                    L, X = rd_q(g2, k2, var)
                    st.append((L + X, 0, nm - 3))
                ex = []
                if var != "G":
                    if ks < 2 and g + 2 < 16: ex = dma_act(g + 2)[4 * ks: 4 * ks + 4]
                else:
                    if ks in (1, 2) and g + 2 < 16: ex = dma_act(g + 2)[4 * ks - 4: 4 * ks]
                    if g == 8 and ks in (1, 2): st.append((tsetup[:26] if ks == 1 else tsetup[26:], 0, nm))
                    if ks == 0 and 9 <= g <= 13:
                        st.append((t_dma(g - 9), 0, nm - 3)); after_w = 0
                    if ks == 3 and 9 <= g <= 13: st.append((t_read(), 0, nm - 2))
                    if ks == 1 and 10 <= g <= 14: ex = t_store(g - 10) + ex
                st.append((ex, 0, nm))
                kg = (g - 8) * 4 + ks
                if kg == 0: st.append((D0[48:], 0, 7))
                ep = []
                for j in range(8, 32):
                    if max(sched[j] - 1, sched[j - 8] + 1) == kg: ep += kv_pack(j)
                if kg >= 20 and ZR: ep += ZR[:8]; ZR = ZR[8:]
                st.append((ep, 0, nm))
                so_ = [kv_store(j) for j in range(32) if sched[j] == kg]
                st.append((so_, nm - 1 - len(so_), nm))
                after_w += sum(1 for gr in ex + so_ for x in gr if isvm(x))
                emit(a, M, st)
        assert not ZR
        cnt[0] = 0
        a("s_nop 7\ns_nop 3")
        if var in "NS":
            a("s_lshr_b32 s%d, s%d, 1\ns_lshl_b32 s%d, s%d, 19\ns_and_b32 s%d, s%d, 1\ns_lshl_b32 s%d, s%d, 12\ns_add_u32 s%d, s%d, s%d" % (sT0, sU, sT0, sT0, sT1, sU, sT1, sT1, sT0, sT0, sT1))
            a("s_cmp_lt_u32 s%d, 8\ns_cselect_b32 s%d, %s, 1.0" % (sU, sSC, fbits(LOG2E * 0.25)))
            for rb, blk in ((0, sQL), (1, sQS)):
                a("s_lshl_b32 s%d, s%d, 13\ns_add_u32 s%d, s%d, s%d" % (sOA, blk, sOA, sOA, sT0))
                for cb in range(2):
                    for e in range(2):
                        for x in drain((cb * 2 + rb) * 16 + e * 8, sOA, cb * 2048 + e * 1024, sSC if var == "N" else None): a(x)
            a("s_waitcnt vmcnt(%d)" % (8 + after_w))
            a("s_branch %s" % lE)
        else:
            a("v_accvgpr_read_b32 v16, a0\nv_accvgpr_read_b32 v17, a16\nv_cmp_gt_u32 vcc, 32, v0\nv_mov_b32 v18, s%d\nv_mov_b32 v19, s%d" % (sQL, sQS))
            a("v_cndmask_b32 v16, v17, v16, vcc\nv_cndmask_b32 v18, v19, v18, vcc")
            a("v_mul_f32 v16, %s, v16\nv_exp_f32 v16, v16\nv_and_b32 v19, 31, v0\nv_add_f32 v16, 1.0, v16\nv_rcp_f32 v16, v16" % fbits(-LOG2E))
            a("v_lshl_add_u32 v18, v18, 5, v19\nv_lshlrev_b32 v18, 2, v18\ns_lshl_b32 s%d, s%d, 11\ns_add_u32 s%d, s%d, 0x%x" % (sT0, sGR, sT0, sT0, OFF_G))
            a("buffer_store_dword v16, v18, s[%d:%d], s%d offen" % (SO, SO + 3, sT0))
            a("s_waitcnt vmcnt(%d)" % (1 + after_w))
    a(lE + ":")
    a(lAttn + ":")
    st_("attn")
    vU, vGL, vGS = 3, 4, 5
    vL = (6, 7); vLT = (8, 9); vX = 10
    S = (16, 80); P = (144, 176); NM = 208; TM = 240
    vGA, vNEG, vPM = 248, 249, 250
    O, Q, FR, NFR = 0, 128, 192, 16
    ms = (26, 28, 30)
    def kfrag(p, idx): return ("K", p * 32768 + idx * 1024)
    def vfrag(p, g, db): return ("V", p * 32768 + (g // 2) * 8192 + db * 2048 + (g % 2) * 1024)
    def rd(slot, fr):
        return "ds_read_b128 %s, v%d offset:%d" % (ar(FR + 4 * (slot % NFR), 4), vK if fr[0] == "K" else vV, fr[1])
    def mf_list(p, pv, qk):
        L = []
        Pp = P[1 - p]; Sn = S[1 - p]
        if pv == 1:
            for g in range(4):
                for db in range(4):
                    L.append((vfrag(1 - p, g, db), ["%s %s, {F}, %s, %s" % (MF32, ar(O + rb * 64 + db * 16, 16), vr(Pp + rb * 16 + g * 4, 4), ar(O + rb * 64 + db * 16, 16)) for rb in range(2)]))
        elif pv == 2:
            for g in range(8):
                for db in range(4):
                    L.append((vfrag(1 - p, g, db), ["%s %s, {F}, %s, %s" % (MF32, ar(O + db * 16, 16), vr(Pp + g * 4, 4), ar(O + db * 16, 16))]))
        if qk == 1:
            for kb in range(2):
                for s in range(8):
                    ms_ = []
                    for rb in range(2):
                        d = vr(Sn + rb * 32 + kb * 16, 16)
                        ms_.append("%s %s, {F}, %s, %s" % (MF32, d, ar(Q + rb * 32 + s * 4, 4), d if s else vr(NM + rb * 16, 16)))
                    L.append((kfrag(1 - p, kb * 8 + s), ms_))
        elif qk == 2:
            for kb in range(4):
                for s in range(8):
                    d = vr(Sn + kb * 16, 16)
                    L.append((kfrag(1 - p, kb * 8 + s), ["%s %s, {F}, %s, %s" % (MF32, d, ar(Q + s * 4, 4), d if s else vr(NM, 16))]))
        return L
    def sm_list(p, sm):
        Sc, Pc = S[p], P[p]
        order = [0, 2, 1, 3] if sm == 1 else [0, 1, 2, 3]
        els = [b * 16 + j for b in order for j in range(16)]
        V = []
        first = {0: True, 1: True}
        def tail(n):
            e = els[n]; u = TM + (n % 8); lt = vLT[e // 32]
            out = []
            if first[e // 32]:
                out.append((4, "v_add_f32 v%d, v%d, v%d" % (lt, u, u + 1))); first[e // 32] = False
            else:
                out.append((4, "v_add_f32 v%d, v%d, v%d" % (lt, lt, u)))
                out.append((4, "v_add_f32 v%d, v%d, v%d" % (lt, lt, u + 1)))
            out.append((4, "v_cvt_pk_bf16_f32 v%d, v%d, v%d" % (Pc + e // 2, u, u + 1)))
            return out
        for n in range(0, 64, 2):
            tl = tail(n - 2) if n >= 2 else []
            V.append((8, "v_exp_f32 v%d, v%d" % (TM + n % 8, Sc + els[n])))
            V += tl[:1]
            V.append((8, "v_exp_f32 v%d, v%d" % (TM + n % 8 + 1, Sc + els[n + 1])))
            V += tl[1:]
        V += tail(62)
        return V
    rare = {}
    def step(p, pv, sm, qk, dK, dV, pre_in=True, pre_out=True, advK=True, extra_vm=None, extra_valu=None, chk=0):
        L = mf_list(p, pv, qk)
        nf = len(L)
        nxt = [vfrag(p, g, db) for g in range(2) for db in range(4)][:PD]
        M = [(f, t) for f, (fr, ts_) in enumerate(L) for t in ts_]
        nm = len(M)
        fill = [[] for _ in range(nm)]
        G = []
        if dV: G += dma("V", dV, p) + [adv("V", dV)]
        if dK: G += dma("K", dK, p) + ([adv("K", dK)] if advK else [])
        if extra_vm: G += extra_vm
        lim = max(min(len(G), nm - 8), (nm * 4) // 8)
        cost = [0] * nm
        for g, m in zip(G, spread(len(G), 1, lim + 1) if G else []):
            fill[m] += g; cost[m] += 4 * len(g)
        firstm = {}
        for m, (f, t) in enumerate(M): firstm.setdefault(f, m)
        for f in range(nf): cost[firstm[f]] += 8
        V = sm_list(p, sm) if sm else []
        if sm:
            V.append((4, "v_max_f32 v%d, v%d, v%d" % (vX, vLT[0], vLT[1])))
            V.append((4, "v_cmp_lt_f32 vcc, s%d, v%d" % (sTH, vX)))
        if extra_valu: V += [(4, x) for x in extra_valu]
        if V:
            last = nm - 2
            tot = sum(c for c, _ in V) + sum(cost[:last])
            acc = 0; vi = 0
            for m in range(last):
                acc += cost[m]
                tgt = tot * (m + 1) / last
                while vi < len(V) and (acc + V[vi][0] / 2 <= tgt or m == last - 1):
                    fill[m].append(V[vi][1]); acc += V[vi][0]; vi += 1
        if not pre_in:
            for f in range(PD): a(rd(f, L[f][0]))
        barf = nf + 1 - PD
        for m, (f, t) in enumerate(M):
            if firstm[f] == m:
                if f == barf and pre_out:
                    a("s_waitcnt vmcnt(0) lgkmcnt(0)")
                    if chk: poll_check(chk)
                    a("s_barrier")
                elif f < barf or not pre_out: a("s_waitcnt lgkmcnt(%d)" % (min(f + PD - 1, nf - 1) - f))
            a(t.replace("{F}", ar(FR + 4 * (f % NFR), 4)))
            if firstm[f] == m:
                if f + PD < nf: a(rd(f + PD, L[f + PD][0]))
                elif pre_out and f == barf:
                    a(rd(nf, nxt[0])); a(rd(nf + 1, nxt[1]))
                elif pre_out and f > barf: a(rd(f + PD, nxt[f + PD - nf]))
            for x in fill[m]: a(x)
        assert nf % NFR == 0
        if sm:
            key = (p, sm, qk if qk else sm)
            if key not in rare: rare[key] = (a.label("rare"), [])
            lb = a.label("back"); lj = a.label("jr")
            rid = len(rare[key][1]); rare[key][1].append((lj, lb))
            a("s_cbranch_vccnz %s\n%s:" % (lj, lb))
            if sm == 1: a("v_add_f32 v%d, v%d, v%d\nv_add_f32 v%d, v%d, v%d" % (vL[0], vL[0], vLT[0], vL[1], vL[1], vLT[1]))
            else: a("v_add_f32 v%d, v%d, v%d\nv_add_f32 v%d, v%d, v%d" % (vL[0], vL[0], vLT[0], vL[0], vL[0], vLT[1]))
    def rowmax(dst, regs_):
        a("v_max3_f32 v%d, v%d, v%d, v%d" % (dst, regs_[0], regs_[1], regs_[2]))
        j = 3
        while j + 1 < len(regs_):
            a("v_max3_f32 v%d, v%d, v%d, v%d" % (dst, dst, regs_[j], regs_[j + 1])); j += 2
        if j < len(regs_): a("v_max_f32 v%d, v%d, v%d" % (dst, dst, regs_[j]))
        a("v_mov_b32 v%d, v%d\ns_nop 1\nv_permlane32_swap_b32 v%d, v%d\nv_max_f32 v%d, v%d, v%d" % (dst + 1, dst, dst, dst + 1, dst, dst, dst + 1))
    def mask(base, nblk, kb0):
        a("s_nop 7\ns_nop 3")
        for j in range(nblk):
            lf = a.label("mfull"); le_ = a.label("mend")
            kb = kb0 + j; r0 = base + 16 * j
            a("s_cmp_gt_u32 s%d, %d\ns_cbranch_scc1 %s" % (sWV, kb, le_))
            if kb > 0: a("s_cmp_lt_u32 s%d, %d\ns_cbranch_scc1 %s" % (sWV, kb, lf))
            rr = list(range(16))
            for c in range(0, 16, 3):
                grp = rr[c:c + 3]
                for q, r in enumerate(grp): a("v_cmp_gt_i32 s[%d:%d], %d, v%d" % (ms[q], ms[q] + 1, 8 * (r // 4) + r % 4, vU))
                if len(grp) < 3: a("s_nop 1")
                for q, r in enumerate(grp): a("v_cndmask_b32 v%d, v%d, v%d, s[%d:%d]" % (r0 + r, r0 + r, vNEG, ms[q], ms[q] + 1))
            if kb > 0:
                a("s_branch %s\n%s:" % (le_, lf))
                for r in range(16): a("v_mov_b32 v%d, v%d" % (r0 + r, vNEG))
            a(le_ + ":")
    poll_check(1)
    bar("s_nop 0")
    if TS2:
        a("s_waitcnt lgkmcnt(0)"); bar("s_nop 0")
        a("s_lshl_b32 s62, s2, 2\ns_add_u32 s62, s62, s%d\ns_lshl_b32 s62, s62, 8\ns_add_u32 s62, s62, 0x%x\nv_lshlrev_b32 v92, 2, v0" % (sWV, OFF_TS + 0x80000))
        a("buffer_store_dword v91, v92, s[%d:%d], s62 offen\ns_waitcnt vmcnt(0)" % (SO, SO + 3))
    srd(a, SK, pWS, WS_SIZE)
    a("s_mov_b32 s%d, %s" % (sSC, fbits(LOG2E / math.sqrt(128.0))))
    fr0 = [kfrag(0, kb * 8 + s) for s in range(8) for kb in range(2)]
    for f in range(12): a(rd(f, fr0[f]))
    def qepi(s):
        G = []
        for rb in range(2):
            src = QA + rb * 64 + s * 8
            if PKMUL: G += ["v_pk_mul_f32 %s, %s, s[%d:%d]" % (vr(src + 2 * j, 2), vr(src + 2 * j, 2), 98, sSC) for j in range(4)]
            else: G += ["v_mul_f32 v%d, s%d, v%d" % (src + j, sSC, src + j) for j in range(8)]
        for rb in range(2):
            src = QA + rb * 64 + s * 8
            G += ["v_cvt_pk_bf16_f32 v%d, v%d, v%d" % (src + j, src + 2 * j, src + 2 * j + 1) for j in range(4)]
        for rb in range(2):
            src = QA + rb * 64 + s * 8
            G += ["v_accvgpr_write_b32 a%d, v%d" % (Q + rb * 32 + s * 4 + j, src + j) for j in range(4)]
        return G
    a("s_add_u32 s%d, s%d, 0x4000\ns_sub_u32 s%d, s%d, s%d\ns_cmp_eq_u32 s%d, 0\ns_cselect_b32 s%d, 0x8000, 0\ns_add_u32 s%d, s%d, s%d" % (sT1, sVD, sKO, sKO, sT1, sI, sT0, sKO, sKO, sT0))
    for g_ in dma("V", 1, 0):
        for x in g_: a(x)
    a("s_add_u32 s%d, s%d, 0x4000\ns_sub_u32 s%d, 0, s%d" % (sVO, sVO, sVD, sT1))
    for x in qepi(0): a(x)
    for f in range(12, 16): a(rd(f, fr0[f]))
    misc = ["v_add_u32 v%d, 0x10000, v%d" % (vV, vK), "v_and_b32 v10, 31, v0", "v_lshrrev_b32 v11, 5, v0", "v_lshlrev_b32 v11, 2, v11", "v_sub_u32 v%d, v10, v11" % vU,
            "v_mov_b32 v%d, 0" % vL[0], "v_mov_b32 v%d, 0" % vL[1], "v_mov_b32 v%d, %s" % (vNEG, NEG), "v_and_b32 v%d, 3, v0" % vPO, "v_add_lshl_u32 v%d, v%d, s%d, 2" % (vPO, vPO, sGR), "v_add_u32 v%d, s%d, v%d" % (vPO, sW4, vPO), "v_mov_b32 v253, 0x10000000", "v_mov_b32 v252, v%d" % vFO]
    misc += ["v_accvgpr_write_b32 a%d, 0" % r for r in range(0, 24)]
    a("s_waitcnt lgkmcnt(0)\ns_barrier")
    K2 = dma("K", 2, 0) + [["s_cmp_eq_u32 s%d, 0" % sI, "s_cselect_b32 s%d, 2, 1" % sT0, "s_lshl_b32 s%d, s%d, 14" % (sT0, sT0), "s_add_u32 s%d, s%d, s%d" % (sKO, sKO, sT0)]]
    for s in range(8):
        M = []
        for kb in range(2):
            for rb in range(2):
                d = vr(S[0] + rb * 32 + kb * 16, 16)
                M.append("%s %s, %s, %s, %s" % (MF32, d, ar(FR + 4 * (2 * s + kb), 4), ar(Q + rb * 32 + s * 4, 4), d if s else "0"))
        emit(a, M, [(K2[2 * s: 2 * s + 2], 0, 3), (qepi(s + 1) + ["s_nop 0"] if s < 7 else misc, 0, 4)])
    st_("m1")
    for r in range(24, 64): a("v_accvgpr_write_b32 a%d, 0" % r)
    mask(S[0] + 32, 2, 0)
    for rb in range(2): rowmax(vX + 2 * rb, [S[0] + rb * 32 + j for j in range(32)])
    for rb in range(2):
        for j in range(16): a("v_sub_f32 v%d, 0, v%d" % (NM + rb * 16 + j, vX + 2 * rb))
    for rb in range(2):
        for j in range(32): a("v_sub_f32 v%d, v%d, v%d" % (S[0] + rb * 32 + j, S[0] + rb * 32 + j, vX + 2 * rb))
    st_("first")
    step(0, 0, 1, 1, 0, 0, pre_in=False)
    st_("s0a")
    release()
    a("buffer_atomic_add v253, v252, s[%d:%d], s%d offen offset:128 sc1" % (SD, SD + 3, sCNT))
    mask(S[1] + 32, 2, 2)
    st_("s0")
    lT0, lT1, lT2b, lL1, lL2, lT16, lEn = [a.label(x) for x in ("T0", "T1", "T2b", "L1", "L2", "T16", "E17")]
    PL = [[poll_load(2)]]
    a("s_cmp_eq_u32 s%d, 0\ns_cbranch_scc1 %s" % (sI, lT1))
    a("s_mov_b32 s%d, s%d" % (sT, sI))
    a(".p2align 6\n" + lL1 + ":")
    step(1, 1, 1, 1, 1, 1)
    a("s_sub_u32 s%d, s%d, 1\ns_cmp_eq_u32 s%d, 0\ns_cbranch_scc1 %s" % (sT, sT, sT, lT0))
    step(0, 1, 1, 1, 1, 1)
    a("s_branch %s" % lL1)
    a(lT0 + ":")
    a("s_add_u32 s%d, s%d, 0x8000" % (sKO, sKO))
    step(0, 1, 1, 1, 2, 1, extra_vm=PL, chk=2)
    a(lT1 + ":")
    a("s_cmp_eq_u32 s%d, 7\ns_cselect_b32 s%d, 0, s%d" % (sI, SK + 2, SK + 2))
    step(1, 1, 1, 2, 2, 1)
    a("s_add_u32 s%d, s%d, 0x8000" % (sVO, sVO))
    a("s_cmp_eq_u32 s%d, 7\ns_cbranch_scc1 %s" % (sI, lT2b))
    step(0, 1, 2, 2, 2, 2, extra_vm=PL, chk=2)
    a("s_sub_u32 s%d, 7, s%d" % (sT, sI))
    a(".p2align 6\n" + lL2 + ":")
    a("s_cmp_eq_u32 s%d, 1\ns_cselect_b32 s%d, 0, s%d" % (sT, SK + 2, SK + 2))
    step(1, 2, 2, 2, 2, 2)
    a("s_sub_u32 s%d, s%d, 1\ns_cmp_eq_u32 s%d, 0\ns_cbranch_scc1 %s" % (sT, sT, sT, lT16))
    step(0, 2, 2, 2, 2, 2)
    a("s_branch %s" % lL2)
    sRA, sHP, sA0, sA1 = 36, 37, 38, 39
    AQ, AKC, AKP, AV = Q, Q + 8, Q + 16, Q + 24
    def ld(dst, so, off): return ["buffer_load_dwordx4 %s, v%d, s[%d:%d], s%d offen offset:%d sc1" % (dst, vK, SV, SV + 3, so, off)]
    ALD = [["s_lshr_b32 s%d, s2, 3" % sT0, "s_lshl_b32 s%d, s%d, 1" % (sT0, sT0), "s_lshr_b32 s%d, s%d, 1" % (sRA, sWV), "s_add_u32 s%d, s%d, s%d" % (sRA, sRA, sT0)],
           ["s_and_b32 s%d, s%d, 1" % (sHP, sWV), "s_lshr_b32 s%d, s%d, 1" % (sT0, sGR), "s_add_u32 s%d, s%d, s%d" % (sHP, sHP, sT0), "s_lshl_b32 s%d, s%d, 9" % (sT0, sGR)],
           ["v_and_b32 v14, 31, v0", "v_add_lshl_u32 v14, v14, s%d, 2" % sT0]]
    for (dst, blk) in ((vGS, sQS), (vGL, sQL), (vGA, sRA)):
        ALD.append(["s_lshl_b32 s%d, s%d, 7" % (sT0, blk), "s_add_u32 s%d, s%d, 0x%x" % (sT0, sT0, OFF_G), "buffer_load_dword v%d, v14, s[%d:%d], s%d offen sc1" % (dst, SV, SV + 3, sT0)])
    ALD += [["s_lshr_b32 s%d, s%d, 2" % (sT0, sHP), "s_lshl_b32 s%d, s%d, 19" % (sT0, sT0), "s_and_b32 s%d, s%d, 3" % (sT1, sHP), "s_lshl_b32 s%d, s%d, 11" % (sT1, sT1)],
            ["s_add_u32 s%d, s%d, s%d" % (sT0, sT0, sT1), "s_lshl_b32 s%d, s%d, 13" % (sT1, sRA), "s_add_u32 s%d, s%d, s%d" % (sA0, sT0, sT1)],
            ["s_max_u32 s%d, s%d, 1" % (sT1, sRA), "s_sub_u32 s%d, s%d, 1" % (sT1, sT1), "s_lshl_b32 s%d, s%d, 13" % (sT1, sT1), "s_add_u32 s%d, s%d, s%d" % (sA1, sT0, sT1)]]
    bump = ["s_add_u32 s%d, s%d, %d" % (sA0, sA0, 4 * PH), "s_add_u32 s%d, s%d, %d" % (sA1, sA1, 4 * PH)]
    ALD += [ld(ar(AQ, 4), sA0, 0), ld(ar(AQ + 4, 4), sA0, 1024) + bump, ld(ar(AKC, 4), sA0, 0), ld(ar(AKC + 4, 4), sA0, 1024), ld(ar(AKP, 4), sA1, 0), ld(ar(AKP + 4, 4), sA1, 1024) + bump,
            ld(ar(AV, 4), sA1, 1024), ld(ar(AV + 4, 4), sA0, 0), ld(ar(AV + 8, 4), sA0, 1024)]
    a(lT2b + ":")
    mask(S[0], 4, 0)
    step(0, 1, 2, 0, 0, 2, extra_vm=ALD)
    a("s_branch %s" % lEn)
    a(lT16 + ":")
    mask(S[0], 4, 0)
    step(0, 2, 2, 0, 0, 2, extra_vm=ALD)
    a(lEn + ":")
    def fin(rb):
        l = vL[rb]; g = (vGL, vGS)[rb]; blk = (sQL, sQS)[rb]
        G = ["v_mov_b32 v%d, v%d" % (vX, l), "v_sub_f32 v%d, 1.0, v%d" % (g, g), "s_mul_i32 s%d, s%d, %d" % (sT0, blk, CROW), "v_permlane32_swap_b32 v%d, v%d" % (l, vX),
             "v_add_f32 v%d, v%d, v%d" % (l, l, vX), "v_rcp_f32 v%d, v%d" % (l, l), "s_lshl_b32 s%d, s%d, 13" % (sT1, sH), "v_mul_f32 v%d, v%d, v%d" % (l, l, g),
             "s_add_u32 s%d, s%d, s%d" % (sT0, sT0, sT1), "s_add_u32 s%d, s%d, 0x%x" % (sT0, sT0, OFF_C)]
        for c in range(8):
            t = 16 + c * 8; pk = (176, 208)[rb] + c * 4
            G += ["v_accvgpr_read_b32 v%d, a%d" % (t + j, O + rb * 64 + c * 8 + j) for j in range(8)]
            G += ["v_mul_f32 v%d, v%d, v%d" % (t + j, l, t + j) for j in range(8)]
            G += ["v_cvt_pk_bf16_f32 v%d, v%d, v%d" % (pk + j, t + 2 * j, t + 2 * j + 1) for j in range(4)]
            if c == 4: G.append("s_add_u32 s%d, s%d, 4096" % (sT0, sT0))
            G.append("buffer_store_dwordx4 %s, v%d, s[%d:%d], s%d offen offset:%d" % (vr(pk, 4), vK, SV, SV + 3, sT0, (c % 4) * 1024))
        return G
    step(1, 2, 0, 0, 0, 0, pre_out=False, extra_valu=fin(1))
    st_("s17")
    BC, BP = 80, 96
    a("s_cmp_eq_u32 s%d, 0\ns_cselect_b32 s%d, 64, 32\nv_add_u32 v11, s%d, v%d" % (sRA, sT2, sT2, vU))
    items = [(BC + r, vU, 8 * (r // 4) + r % 4) for r in range(16)] + [(BP + r, 11, 8 * (r // 4) + r % 4) for r in range(8, 16)]
    for j in range(0, 24, 3):
        for q in range(3):
            d, u, key = items[j + q]
            a("v_subrev_u32 v%d, %d, v%d\nv_and_b32 v%d, -15, v%d\nv_cmp_eq_u32 s[%d:%d], 0, v%d" % (12 + q, key, u, 12 + q, 12 + q, ms[q], ms[q] + 1, 12 + q))
        for q in range(3): a("v_cndmask_b32 v%d, v%d, 0, s[%d:%d]" % (items[j + q][0], vNEG, ms[q], ms[q] + 1))
    for r in range(8): a("v_mov_b32 v%d, v%d" % (BP + r, vNEG))
    a("v_and_b32 v10, 1, v0\nv_lshlrev_b32 v10, 4, v10\nv_mov_b32 v11, 0xffff\nv_lshlrev_b32 v%d, v10, v11" % vPM)
    SC, SP = (112, 128), (144, 160)
    for e in range(2):
        a("%s %s, %s, %s, %s" % (MF32, vr(SC[e], 16), ar(AKC + 4 * e, 4), ar(AQ + 4 * e, 4), vr(BC, 16)))
        a("%s %s, %s, %s, %s" % (MF32, vr(SP[e], 16), ar(AKP + 4 * e, 4), ar(AQ + 4 * e, 4), vr(BP, 16)))
    for x in fin(0): a(x)
    TA = (16, 28); PA = (40, 52); MX = (10, 12)
    for e in range(2):
        for j in range(4): a("v_max_f32 v%d, v%d, v%d" % (TA[e] + j, SP[e] + 8 + 2 * j, SP[e] + 9 + 2 * j))
        for j in range(8): a("v_max_f32 v%d, v%d, v%d" % (TA[e] + 4 + j, SC[e] + 2 * j, SC[e] + 2 * j + 1))
    for e in range(2):
        t = TA[e]; m = MX[e]
        a("v_max3_f32 v%d, v%d, v%d, v%d" % (m, t, t + 1, t + 2))
        for j in range(3, 11, 2): a("v_max3_f32 v%d, v%d, v%d, v%d" % (m, m, t + j, t + j + 1))
        a("v_max_f32 v%d, v%d, v%d\nv_mov_b32 v%d, v%d" % (m, m, t + 11, m + 1, m))
    a("s_nop 1")
    for e in range(2): a("v_permlane32_swap_b32 v%d, v%d" % (MX[e], MX[e] + 1))
    for e in range(2): a("v_max_f32 v%d, v%d, v%d" % (MX[e], MX[e], MX[e] + 1))
    for e in range(2):
        for j in range(12): a("v_sub_f32 v%d, v%d, v%d" % (TA[e] + j, TA[e] + j, MX[e]))
        for j in range(12): a("v_exp_f32 v%d, v%d" % (TA[e] + j, TA[e] + j))
    for e in range(2):
        for j in range(12): a("v_cvt_pk_bf16_f32 v%d, v%d, v%d" % (PA[e] + j, TA[e] + j, TA[e] + j))
        for j in range(12): a("v_and_b32 v%d, v%d, v%d" % (PA[e] + j, vPM, PA[e] + j))
    for e in range(2):
        a("v_add_f32 v%d, v%d, v%d" % (MX[e], TA[e], TA[e] + 1))
        for j in range(2, 12): a("v_add_f32 v%d, v%d, v%d" % (MX[e], MX[e], TA[e] + j))
        a("v_mov_b32 v%d, v%d" % (MX[e] + 1, MX[e]))
        for g in range(3):
            a("%s %s, %s, %s, %s" % (MF32, vr(SC[e], 16), ar(AV + 4 * g, 4), vr(PA[e] + 4 * g, 4), "0" if g == 0 else vr(SC[e], 16)))
    for e in range(2): a("v_permlane32_swap_b32 v%d, v%d" % (MX[e], MX[e] + 1))
    for e in range(2): a("v_add_f32 v%d, v%d, v%d" % (MX[e], MX[e], MX[e] + 1))
    for e in range(2): a("v_rcp_f32 v%d, v%d" % (MX[e], MX[e]))
    a("s_nop 0")
    for e in range(2): a("v_mul_f32 v%d, v%d, v%d" % (MX[e], MX[e], vGA))
    a("s_mul_i32 s%d, s%d, %d\ns_lshl_b32 s%d, s%d, 11\ns_add_u32 s%d, s%d, s%d\ns_add_u32 s%d, s%d, 0x%x" % (sT0, sRA, CROW, sT1, sHP, sT0, sT0, sT1, sT0, sT0, OFF_C + 256 * 1024))
    a("s_nop 1")
    for e in range(2):
        src = SC[e] + 8 * e
        for j in range(8): a("v_mul_f32 v%d, v%d, v%d" % (src + j, MX[e], src + j))
        for j in range(4): a("v_cvt_pk_bf16_f32 v%d, v%d, v%d" % (PA[e] + j, src + 2 * j, src + 2 * j + 1))
        a("buffer_store_dwordx4 %s, v%d, s[%d:%d], s%d offen offset:%d" % (vr(PA[e], 4), vK, SV, SV + 3, sT0, e * 1024))
    T.dump(SO, sWV, 4)
    a(done + ":\ns_endpgm")
    a(lRare + ":")
    for (ls, lb, kind) in spins:
        lp = a.label("sp")
        a(ls + ":\ns_mov_b32 s%d, 0x40000\n%s:" % (sT2, lp))
        a("s_sleep 8\n" + poll_load(kind) + "\ns_waitcnt vmcnt(0)\n%s\ns_cbranch_vccz %s" % (poll_cmp(kind), lb))
        a("s_sub_u32 s%d, s%d, 1\ns_cmp_lg_u32 s%d, 0\ns_cbranch_scc1 %s\ns_branch %s" % (sT2, sT2, sT2, lp, lb))
    for (ls, lb) in rels:
        a("%s:\nbuffer_wbl2 sc1\ns_waitcnt vmcnt(0)\ns_branch %s" % (ls, lb))
    sRET = 44
    for (p, sm, qk), (lr, users) in rare.items():
        for rid, (lj, lb) in enumerate(users):
            a("%s:\ns_mov_b32 s%d, %d\ns_branch %s" % (lj, sRET, rid, lr))
        a(lr + ":")
        a("s_nop 7\ns_nop 7")
        Sc, Sn = S[p], S[1 - p]
        for rb in range(2 if sm == 1 else 1):
            cur = [Sc + rb * 32 + j for j in range(32)] if sm == 1 else [Sc + j for j in range(64)]
            d, f = vX, vX + 2
            rowmax(d, cur)
            a("v_max_f32 v%d, 0, v%d\nv_exp_f32 v%d, -v%d" % (d, d, f, d))
            for r in cur: a("v_sub_f32 v%d, v%d, v%d" % (r, r, d))
            for j in range(16): a("v_sub_f32 v%d, v%d, v%d" % (NM + rb * 16 + j, NM + rb * 16 + j, d))
            nx = []
            if qk == 1: nx = [Sn + rb * 32 + j for j in range(32)]
            elif qk == 2 and rb == 0: nx = [Sn + j for j in range(64)]
            for r in nx: a("v_sub_f32 v%d, v%d, v%d" % (r, r, d))
            a("v_mul_f32 v%d, v%d, v%d" % (vL[rb], vL[rb], f))
            for j in range(0, 64, 4):
                for q in range(4): a("v_accvgpr_read_b32 v%d, a%d" % (TM + q, O + rb * 64 + j + q))
                for q in range(4): a("v_mul_f32 v%d, v%d, v%d" % (TM + q, TM + q, f))
                for q in range(4): a("v_accvgpr_write_b32 a%d, v%d" % (O + rb * 64 + j + q, TM + q))
        for c, x in sm_list(p, sm): a(x)
        for rid, (lj, lb) in enumerate(users):
            if rid < len(users) - 1: a("s_cmp_eq_u32 s%d, %d\ns_cbranch_scc1 %s" % (sRET, rid, lb))
            else: a("s_branch %s" % lb)
    a.add_kernel(name, 512, 100, 256)
    a.launch(name, 256, 256, 163840)
```

```python
from gen_common import *

def gen_p3(a, name="p3_kernel", DEPTH=10, NW=4, ts=False, MAP=0, LEAD=0):
    a.begin_kernel(name)
    T = TS(a, ts, 2)
    done = a.label("p3done")
    SC_, SO = 12, 24
    sWV, sRB, sCB, sT0, sT1, sAO, sAO2, sWO, sLB = 28, 29, 30, 31, 32, 33, 34, 35, 36
    vL16 = 1
    ACC = 16
    AF = 80
    NJ = 288 // NW
    a("s_cmp_ge_u32 s2, 256\ns_cbranch_scc1 %s" % done)
    T.stamp(0)
    a("s_load_dwordx2 s[4:5], s[0:1], 96\ns_load_dwordx2 s[10:11], s[0:1], 80")
    a("v_lshrrev_b32 v10, 6, v0\nv_and_b32 v0, 63, v0\nv_readfirstlane_b32 s%d, v10" % sWV)
    if MAP == 0:
        a("s_and_b32 s%d, s2, 7\ns_lshl_b32 s%d, s%d, 2\ns_lshr_b32 s%d, s2, 6\ns_add_u32 s%d, s%d, s%d" % (sRB, sRB, sRB, sT0, sRB, sRB, sT0))
        a("s_lshr_b32 s%d, s2, 3\ns_and_b32 s%d, s%d, 7" % (sCB, sCB, sCB))
    else:
        a("s_and_b32 s%d, s2, 6\ns_lshl_b32 s%d, s%d, 2\ns_lshr_b32 s%d, s2, 5\ns_add_u32 s%d, s%d, s%d" % (sRB, sRB, sRB, sT0, sRB, sRB, sT0))
        a("s_lshr_b32 s%d, s2, 3\ns_and_b32 s%d, s%d, 3\ns_and_b32 s%d, s2, 1\ns_lshl_b32 s%d, s%d, 2\ns_add_u32 s%d, s%d, s%d" % (sCB, sCB, sCB, sT0, sT0, sT0, sCB, sCB, sT0))
    a("v_lshlrev_b32 v%d, 4, v0" % vL16)
    a("s_lshl_b32 s%d, s%d, 14" % (sLB, sWV))
    a("s_mul_i32 s%d, s%d, %d\ns_lshl_b32 s%d, s%d, 10\ns_add_u32 s%d, s%d, s%d\ns_add_u32 s%d, s%d, 0x%x\ns_add_u32 s%d, s%d, %d" % (sAO, sRB, 2 * CROW, sT0, sWV, sAO, sAO, sT0, sAO, sAO, OFF_C, sAO2, sAO, CROW))
    a("s_mul_i32 s%d, s%d, %d\ns_lshl_b32 s%d, s%d, 11\ns_add_u32 s%d, s%d, s%d\ns_add_u32 s%d, s%d, 0x%x" % (sWO, sCB, WROW, sT0, sWV, sWO, sWO, sT0, sWO, sWO, OFF_W))
    sWR = 37
    if LEAD:
        a("s_sub_u32 s%d, s%d, s%d\ns_and_b32 s%d, s%d, 3\ns_and_b32 s%d, s%d, 3\ns_cmp_eq_u32 s%d, s%d" % (sT0, sRB, sCB, sT0, sT0, sT1, sWV, sT0, sT1))
        a("s_cselect_b32 s%d, %d, 0\ns_cselect_b32 s%d, %d, 0" % (sT0, LEAD * 1024 * NW, sWR, 288 * 1024))
        a("s_add_u32 s%d, s%d, s%d\ns_add_u32 s%d, s%d, s%d\ns_add_u32 s%d, s%d, s%d\ns_add_u32 s%d, s%d, s%d" % (sAO, sAO, sT0, sAO2, sAO2, sT0, sWO, sWO, sT0, sWO, sWO, sT0))
    a("s_waitcnt lgkmcnt(0)")
    srd(a, SC_, 4, WS_SIZE); srd(a, SO, 10, 2048 * 1024)
    def issue(j):
        r = AF + 16 * (j % DEPTH)
        L = ["buffer_load_dwordx4 %s, v%d, s[%d:%d], s%d offen" % (vr(r, 4), vL16, SC_, SC_ + 3, sAO),
             "buffer_load_dwordx4 %s, v%d, s[%d:%d], s%d offen" % (vr(r + 8, 4), vL16, SC_, SC_ + 3, sWO),
             "buffer_load_dwordx4 %s, v%d, s[%d:%d], s%d offen" % (vr(r + 4, 4), vL16, SC_, SC_ + 3, sAO2),
             "buffer_load_dwordx4 %s, v%d, s[%d:%d], s%d offen offset:1024" % (vr(r + 12, 4), vL16, SC_, SC_ + 3, sWO),
             "s_add_u32 s%d, s%d, %d\ns_add_u32 s%d, s%d, %d\ns_add_u32 s%d, s%d, %d" % (sAO, sAO, 1024 * NW, sAO2, sAO2, 1024 * NW, sWO, sWO, 2048 * NW)]
        if LEAD and j == NJ - LEAD - 1:
            L[4] += "\ns_sub_u32 s%d, s%d, s%d\ns_sub_u32 s%d, s%d, s%d\ns_sub_u32 s%d, s%d, s%d\ns_sub_u32 s%d, s%d, s%d" % (sAO, sAO, sWR, sAO2, sAO2, sWR, sWO, sWO, sWR, sWO, sWO, sWR)
        return L
    for j in range(DEPTH - 1):
        for x in issue(j): a(x)
    for j in range(NJ):
        nx = issue(j + DEPTH - 1) if j + DEPTH - 1 < NJ else []
        a("s_waitcnt vmcnt(%d)" % (4 * min(DEPTH - 2, NJ - 1 - j)))
        if j == 0: T.stamp(1)
        if j == NJ // 3: T.stamp(2)
        if j == 2 * NJ // 3: T.stamp(3)
        r = AF + 16 * (j % DEPTH)
        q = 0
        for cb in range(2):
            for rb in range(2):
                acc = vr(ACC + (cb * 2 + rb) * 16, 16)
                a("%s %s, %s, %s, %s" % (MF32, acc, vr(r + 8 + 4 * cb, 4), vr(r + 4 * rb, 4), "0" if j == 0 else acc))
                if nx: a(nx[q])
                q += 1
        if nx: a(nx[4])
    T.stamp(4)
    RPW = 64 // NW
    NP = RPW // 8
    a("v_add_u32 v10, s%d, v%d" % (sLB, vL16))
    a("v_lshrrev_b32 v11, 3, v0\ns_mul_i32 s%d, s%d, %d\nv_add_u32 v11, s%d, v11" % (sT0, sWV, RPW, sT0))
    a("v_and_b32 v12, 7, v0\nv_lshrrev_b32 v13, 2, v12\nv_lshlrev_b32 v13, 13, v13\nv_and_b32 v14, 3, v12\nv_lshl_add_u32 v13, v14, 10, v13")
    a("v_lshrrev_b32 v14, 5, v11\nv_lshl_add_u32 v13, v14, 12, v13\nv_and_b32 v14, 31, v11\nv_lshl_add_u32 v13, v14, 4, v13\nv_add_u32 v14, 0x10000, v13")
    a("v_lshlrev_b32 v11, 10, v11\nv_lshl_add_u32 v11, v12, 4, v11\ns_lshl_b32 s%d, s%d, 16\ns_lshl_b32 s%d, s%d, 7\ns_add_u32 s%d, s%d, s%d" % (sT0, sRB, sT1, sCB, sT0, sT0, sT1))
    for q in range(16):
        a("ds_write_b128 v10, %s offset:%d" % (vr(ACC + 4 * q, 4), q * 1024))
    a("s_waitcnt lgkmcnt(0)\ns_barrier")
    for ps in range(NP):
        for w in range(NW):
            for h in range(2):
                a("ds_read_b128 %s, v%d offset:%d" % (vr(16 + (ps * NW + w) * 8 + h * 4, 4), 13 if w < 4 else 14, (w % 4) * 16384 + h * 512 + ps * 128))
    n = 0
    for ps in range(NP):
        b = 16 + ps * NW * 8
        for w in range(1, NW):
            a("s_waitcnt lgkmcnt(%d)" % (16 - 2 * (ps * NW + w + 1)))
            for j in range(8): a("v_add_f32 v%d, v%d, v%d" % (b + j, b + j, b + w * 8 + j))
        for j in range(4): a("v_cvt_pk_bf16_f32 v%d, v%d, v%d" % (80 + 4 * ps + j, b + 2 * j, b + 1 + 2 * j))
        if ps: a("s_add_u32 s%d, s%d, 8192" % (sT0, sT0))
        a("buffer_store_dwordx4 %s, v11, s[%d:%d], s%d offen" % (vr(80 + 4 * ps, 4), SO, SO + 3, sT0))
    T.dump(SC_, sWV, NW)
    if ts:
        a("s_cmp_lg_u32 s2, 37\ns_cbranch_scc1 %s\ns_cmp_lg_u32 s%d, 0\ns_cbranch_scc1 %s" % (done, sWV, done))
        a("s_load_dwordx2 s[40:41], s[0:1], 88\ns_mov_b64 exec, 0xffff\ns_waitcnt lgkmcnt(0)\ns_mov_b32 s42, 256\ns_mov_b32 s43, 0x20000")
        a("v_and_b32 v2, 7, v0\nv_lshlrev_b32 v2, 3, v2\nv_lshrrev_b32 v3, 3, v0\nv_lshl_add_u32 v2, v3, 20, v2\ns_mov_b32 s44, 0x%x" % (OFF_TS + 37 * 4 * 128 + 4))
        a("buffer_load_dword v4, v2, s[%d:%d], s44 offen sc1\nv_lshlrev_b32 v3, 2, v0\ns_waitcnt vmcnt(0)\nbuffer_store_dword v4, v3, s[40:43], 0 offen" % (SC_, SC_ + 3))
    a(done + ":\ns_endpgm")
    nv = AF + 16 * DEPTH
    nv = (nv + 7) // 8 * 8
    assert nv <= 256
    a.add_kernel(name, nv, 100 if ts else 48, nv)
    a.launch(name, 256, 64 * NW, 16384 * NW)
```

```python
from gen_common import *

def gen_p3(a, name="p3_kernel", DEPTH=10, NW=4, ts=False, MAP=0, LEAD=0, HOLD=0):
    a.begin_kernel(name)
    T = TS(a, ts, 2)
    done = a.label("p3done")
    SC_, SO = 12, 24
    sWV, sRB, sCB, sT0, sT1, sAO, sAO2, sWO, sLB = 28, 29, 30, 31, 32, 33, 34, 35, 36
    vL16 = 1
    ACC = 16
    AF = 80
    NJ = 288 // NW
    a("s_cmp_ge_u32 s2, 256\ns_cbranch_scc1 %s" % done)
    T.stamp(0)
    a("s_load_dwordx2 s[4:5], s[0:1], 96\ns_load_dwordx2 s[10:11], s[0:1], 80")
    a("v_lshrrev_b32 v10, 6, v0\nv_and_b32 v0, 63, v0\nv_readfirstlane_b32 s%d, v10" % sWV)
    if MAP == 0:
        a("s_and_b32 s%d, s2, 7\ns_lshl_b32 s%d, s%d, 2\ns_lshr_b32 s%d, s2, 6\ns_add_u32 s%d, s%d, s%d" % (sRB, sRB, sRB, sT0, sRB, sRB, sT0))
        a("s_lshr_b32 s%d, s2, 3\ns_and_b32 s%d, s%d, 7" % (sCB, sCB, sCB))
    else:
        a("s_and_b32 s%d, s2, 6\ns_lshl_b32 s%d, s%d, 2\ns_lshr_b32 s%d, s2, 5\ns_add_u32 s%d, s%d, s%d" % (sRB, sRB, sRB, sT0, sRB, sRB, sT0))
        a("s_lshr_b32 s%d, s2, 3\ns_and_b32 s%d, s%d, 3\ns_and_b32 s%d, s2, 1\ns_lshl_b32 s%d, s%d, 2\ns_add_u32 s%d, s%d, s%d" % (sCB, sCB, sCB, sT0, sT0, sT0, sCB, sCB, sT0))
    a("v_lshlrev_b32 v%d, 4, v0" % vL16)
    a("s_lshl_b32 s%d, s%d, 14" % (sLB, sWV))
    a("s_mul_i32 s%d, s%d, %d\ns_lshl_b32 s%d, s%d, 10\ns_add_u32 s%d, s%d, s%d\ns_add_u32 s%d, s%d, 0x%x\ns_add_u32 s%d, s%d, %d" % (sAO, sRB, 2 * CROW, sT0, sWV, sAO, sAO, sT0, sAO, sAO, OFF_C, sAO2, sAO, CROW))
    a("s_mul_i32 s%d, s%d, %d\ns_lshl_b32 s%d, s%d, 11\ns_add_u32 s%d, s%d, s%d\ns_add_u32 s%d, s%d, 0x%x" % (sWO, sCB, WROW, sT0, sWV, sWO, sWO, sT0, sWO, sWO, OFF_W))
    sWR = 37
    if LEAD:
        a("s_sub_u32 s%d, s%d, s%d\ns_and_b32 s%d, s%d, 3\ns_and_b32 s%d, s%d, 3\ns_cmp_eq_u32 s%d, s%d" % (sT0, sRB, sCB, sT0, sT0, sT1, sWV, sT0, sT1))
        a("s_cselect_b32 s%d, %d, 0\ns_cselect_b32 s%d, %d, 0" % (sT0, LEAD * 1024 * NW, sWR, 288 * 1024))
        a("s_add_u32 s%d, s%d, s%d\ns_add_u32 s%d, s%d, s%d\ns_add_u32 s%d, s%d, s%d\ns_add_u32 s%d, s%d, s%d" % (sAO, sAO, sT0, sAO2, sAO2, sT0, sWO, sWO, sT0, sWO, sWO, sT0))
    a("s_waitcnt lgkmcnt(0)")
    srd(a, SC_, 4, WS_SIZE); srd(a, SO, 10, 2048 * 1024)
    def issue(j):
        r = AF + 16 * (j % DEPTH)
        L = ["buffer_load_dwordx4 %s, v%d, s[%d:%d], s%d offen" % (vr(r, 4), vL16, SC_, SC_ + 3, sAO),
             "buffer_load_dwordx4 %s, v%d, s[%d:%d], s%d offen" % (vr(r + 8, 4), vL16, SC_, SC_ + 3, sWO),
             "buffer_load_dwordx4 %s, v%d, s[%d:%d], s%d offen" % (vr(r + 4, 4), vL16, SC_, SC_ + 3, sAO2),
             "buffer_load_dwordx4 %s, v%d, s[%d:%d], s%d offen offset:1024" % (vr(r + 12, 4), vL16, SC_, SC_ + 3, sWO),
             "s_add_u32 s%d, s%d, %d\ns_add_u32 s%d, s%d, %d\ns_add_u32 s%d, s%d, %d" % (sAO, sAO, 1024 * NW, sAO2, sAO2, 1024 * NW, sWO, sWO, 2048 * NW)]
        if LEAD and j == NJ - LEAD - 1:
            L[4] += "\ns_sub_u32 s%d, s%d, s%d\ns_sub_u32 s%d, s%d, s%d\ns_sub_u32 s%d, s%d, s%d\ns_sub_u32 s%d, s%d, s%d" % (sAO, sAO, sWR, sAO2, sAO2, sWR, sWO, sWO, sWR, sWO, sWO, sWR)
        return L
    for j in range(DEPTH - 1):
        for x in issue(j): a(x)
    for j in range(NJ):
        nx = issue(j + DEPTH - 1) if j + DEPTH - 1 < NJ else []
        a("s_waitcnt vmcnt(%d)" % (4 * min(DEPTH - 2, NJ - 1 - j)))
        if j == 0: T.stamp(1)
        if j == NJ // 3: T.stamp(2)
        if j == 2 * NJ // 3: T.stamp(3)
        r = AF + 16 * (j % DEPTH)
        q = 0
        for cb in range(2):
            for rb in range(2):
                acc = vr(ACC + (cb * 2 + rb) * 16, 16)
                a("%s %s, %s, %s, %s" % (MF32, acc, vr(r + 8 + 4 * cb, 4), vr(r + 4 * rb, 4), "0" if j == 0 else acc))
                if nx: a(nx[q])
                q += 1
        if nx: a(nx[4])
    T.stamp(4)
    RPW = 64 // NW
    NP = RPW // 8
    a("v_add_u32 v10, s%d, v%d" % (sLB, vL16))
    a("v_lshrrev_b32 v11, 3, v0\ns_mul_i32 s%d, s%d, %d\nv_add_u32 v11, s%d, v11" % (sT0, sWV, RPW, sT0))
    a("v_and_b32 v12, 7, v0\nv_lshrrev_b32 v13, 2, v12\nv_lshlrev_b32 v13, 13, v13\nv_and_b32 v14, 3, v12\nv_lshl_add_u32 v13, v14, 10, v13")
    a("v_lshrrev_b32 v14, 5, v11\nv_lshl_add_u32 v13, v14, 12, v13\nv_and_b32 v14, 31, v11\nv_lshl_add_u32 v13, v14, 4, v13\nv_add_u32 v14, 0x10000, v13")
    a("v_lshlrev_b32 v11, 10, v11\nv_lshl_add_u32 v11, v12, 4, v11\ns_lshl_b32 s%d, s%d, 16\ns_lshl_b32 s%d, s%d, 7\ns_add_u32 s%d, s%d, s%d" % (sT0, sRB, sT1, sCB, sT0, sT0, sT1))
    for q in range(16):
        a("ds_write_b128 v10, %s offset:%d" % (vr(ACC + 4 * q, 4), q * 1024))
    a("s_waitcnt lgkmcnt(0)\ns_barrier")
    for ps in range(NP):
        for w in range(NW):
            for h in range(2):
                a("ds_read_b128 %s, v%d offset:%d" % (vr(16 + (ps * NW + w) * 8 + h * 4, 4), 13 if w < 4 else 14, (w % 4) * 16384 + h * 512 + ps * 128))
    n = 0
    for ps in range(NP):
        b = 16 + ps * NW * 8
        for w in range(1, NW):
            a("s_waitcnt lgkmcnt(%d)" % (16 - 2 * (ps * NW + w + 1)))
            for j in range(8): a("v_add_f32 v%d, v%d, v%d" % (b + j, b + j, b + w * 8 + j))
        for j in range(4): a("v_cvt_pk_bf16_f32 v%d, v%d, v%d" % (80 + 4 * ps + j, b + 2 * j, b + 1 + 2 * j))
        if ps: a("s_add_u32 s%d, s%d, 8192" % (sT0, sT0))
        a("buffer_store_dwordx4 %s, v11, s[%d:%d], s%d offen" % (vr(80 + 4 * ps, 4), SO, SO + 3, sT0))
    T.dump(SC_, sWV, NW)
    if ts and HOLD:
        lp = a.label("hold")
        a("s_mov_b32 s44, 0x%x\nv_mov_b32 v2, 0\nbuffer_load_dword v4, v2, s[%d:%d], s44 offen sc1\ns_waitcnt vmcnt(0)\nv_readfirstlane_b32 s45, v4" % (OFF_TS + 4, SC_, SC_ + 3))
        a("%s:\ns_memrealtime s[46:47]\ns_waitcnt lgkmcnt(0)\ns_sub_u32 s46, s46, s45\ns_cmp_lt_u32 s46, %d\ns_cbranch_scc1 %s" % (lp, HOLD, lp))
    if ts:
        a("s_cmp_lg_u32 s2, 37\ns_cbranch_scc1 %s\ns_cmp_lg_u32 s%d, 0\ns_cbranch_scc1 %s" % (done, sWV, done))
        a("s_load_dwordx2 s[40:41], s[0:1], 88\ns_mov_b64 exec, 0xffff\ns_waitcnt lgkmcnt(0)\ns_mov_b32 s42, 256\ns_mov_b32 s43, 0x20000")
        a("v_and_b32 v2, 7, v0\nv_lshlrev_b32 v2, 3, v2\nv_lshrrev_b32 v3, 3, v0\nv_lshl_add_u32 v2, v3, 20, v2\ns_mov_b32 s44, 0x%x" % (OFF_TS + 37 * 4 * 128 + 4))
        a("buffer_load_dword v4, v2, s[%d:%d], s44 offen sc1\nv_lshlrev_b32 v3, 2, v0\ns_waitcnt vmcnt(0)\nbuffer_store_dword v4, v3, s[40:43], 0 offen" % (SC_, SC_ + 3))
    a(done + ":\ns_endpgm")
    nv = AF + 16 * DEPTH
    nv = (nv + 7) // 8 * 8
    assert nv <= 256
    a.add_kernel(name, nv, 100 if ts else 48, nv)
    a.launch(name, 256, 64 * NW, 16384 * NW)
```

```python
from gen_common import *

pX, pWQKV, pWO0, pC, pWQ, pWUK, pWUV, pBWO, pGATE, pDBG, pWS = 36, 38, 40, 44, 46, 48, 50, 52, 54, 58, 60
pWO = 58
NEG = "0xff800000"
THRESH = fbits(2.0 ** 48)
WSL = (98304, 131072)
LDS_G = WSL[0] + 24576
def aslot(g): return ((g + 2) % 3) * 32768

def emit(a, M, streams):
    n = len(M)
    fill = [[] for _ in range(n)]
    for (G, l, h) in streams:
        if not G: continue
        for g, m in zip(G, spread(len(G), l, min(h, n))):
            fill[m] += g if isinstance(g, list) else [g]
    for m in range(n):
        a(M[m])
        for x in fill[m]: a(x)
def isvm(x): return x.startswith("buffer_") or x.startswith("global_")

def gen_fused(a, name="p1_kernel", ts=False, NSK=30, WSP=16, PF=1, PKMUL=0, next_kernel=None, PD=6, TS2=0, WPF=None, LNT="", NTG=8, LATEAT=0, STAMPS=("start","setup","bar0","q","attn","s0","s17"), XSL=3, XL2=0, ST=""):
    a.begin_kernel(name)
    T = TS(a, ts, 0)
    def st_(nm):
        if nm in STAMPS: T.stamp(STAMPS.index(nm))
    done = a.label("fdone")
    lAttn, lRare = a.label("attn"), a.label("rarecode")
    sWV = 3
    SA, SW, SX, SO, SD = 4, 8, 12, 16, 40
    sH, sI, sT0, sT1, sT2 = 20, 21, 22, 23, 24
    sAS, sAS2, sWS, sXS, sAM, sWM, sXM, sCNT, sOK, sDS, sSC = 25, 26, 27, 28, 29, 30, 31, 32, 33, 34, 35
    sQL, sQS, sU, sOA, sAD, sWD, sOJ, sVD, sFA, sGR = 92, 93, 94, 95, 96, 97, 56, 57, 63, 99
    sKO, sVO, sW4, sW8, sTH, sT = 48, 49, 50, 51, 54, 55
    vL16, vAO, vWO, vXO = 1, (2, 3), 4, 5
    vAR, vWR, vXR = (6, 7, 8, 9), (10, 11, 12, 13), (14, 15)
    FS = (16, 48); TT, PK = (80, 80), 96
    vFO, vONE = 88, 89
    QA = 128
    t2 = [0]
    def bar(waitstr):
        if TS2:
            n = t2[0]; t2[0] += 1
            if n > 0: a("v_writelane_b32 v91, s64, %d\nv_writelane_b32 v91, s66, %d" % (2 * n - 2, 2 * n - 1))
            a("s_memtime s[64:65]")
        a(waitstr + "\ns_barrier")
        if TS2: a("s_memtime s[66:67]")
    a("s_cmp_ge_u32 s2, 256\ns_cbranch_scc1 %s" % done)
    st_("start")
    a("s_load_dwordx16 s[36:51], s[0:1], 0\ns_load_dwordx8 s[52:59], s[0:1], 64\ns_load_dwordx2 s[60:61], s[0:1], 96")
    a("v_lshrrev_b32 v16, 6, v0\nv_and_b32 v0, 63, v0\nv_readfirstlane_b32 s%d, v16" % sWV)
    a("s_and_b32 s%d, s2, 7\ns_lshl_b32 s%d, s%d, 2\ns_lshr_b32 s%d, s2, 3\ns_and_b32 s%d, s%d, 3\ns_add_u32 s%d, s%d, s%d" % (sH, sH, sH, sT0, sT0, sT0, sH, sH, sT0))
    a("s_lshr_b32 s%d, s2, 5" % sI)
    a("v_lshlrev_b32 v%d, 4, v0" % vL16)
    a("v_lshrrev_b32 v16, 3, v0\nv_lshrrev_b32 v17, 4, v0\nv_and_b32 v18, 7, v0")
    for n in range(2):
        a("v_add_u32 v19, %d, v17\nv_xor_b32 v19, v19, v18\nv_lshlrev_b32 v19, 4, v19\nv_lshl_add_u32 v%d, v16, 10, v19" % (4 * n, vAO[n]))
    a("v_and_b32 v19, 15, v0\nv_lshlrev_b32 v20, 2, v17\nv_xor_b32 v19, v19, v20\nv_lshlrev_b32 v19, 4, v19\nv_lshl_add_u32 v%d, v17, 13, v19" % vWO)
    a("s_sub_u32 s%d, 15, s%d\ns_bitcmp1_b32 s%d, 0\ns_cselect_b32 s%d, s%d, s%d\ns_lshl_b32 s%d, s%d, 1\ns_lshr_b32 s%d, s%d, 1\ns_add_u32 s%d, s%d, s%d" % (sT0, sI, sWV, sT0, sT0, sI, sT0, sT0, sT1, sWV, sT0, sT0, sT1))
    a("s_lshl_b32 s%d, s%d, 16\ns_add_u32 s%d, s%d, 32768" % (sAS, sT0, sAS2, sAS))
    a("s_lshl_b32 s%d, s%d, 13\ns_mov_b32 s%d, s%d" % (sAM, sWV, sWM, sAM))
    a("s_and_b32 s%d, s%d, 1\ns_lshl_b32 s%d, s%d, 18\ns_lshl_b32 s%d, s%d, 8\ns_add_u32 s%d, s%d, s%d" % (sT0, sWV, sT0, sT0, sWS, sH, sWS, sWS, sT0))
    a("s_and_b32 s%d, s2, 31" % sU)
    a("s_waitcnt lgkmcnt(0)")
    srd(a, SA, pC, 0x200000)
    a("s_cmp_lt_u32 s%d, 2\ns_cselect_b32 s%d, s%d, s%d\ns_cselect_b32 s%d, s%d, s%d\ns_mov_b32 s%d, 0x400000\ns_mov_b32 s%d, 0x20000" % (sWV, SW, pWUK, pWUV, SW + 1, pWUK + 1, pWUV + 1, SW + 2, SW + 3))
    def dma_act(g):
        G = []
        for n in range(8):
            G.append(["s_add_u32 m0, s%d, %d" % (sAM, aslot(g) + n * 1024), "s_add_u32 s%d, s%d, %d" % (sDS, sAS if n < 4 else sAS2, (n % 4) * 8192 + (g % 8) * 128),
                      "buffer_load_dwordx4 v%d, s[%d:%d], s%d offen %s lds" % (vAO[n % 2], SA, SA + 3, sDS, LNT if g >= NTG else "")])
        return G
    def dma_w(g, withx=True):
        G = []
        for n in range(8 if g < 8 else 4):
            G.append(["s_add_u32 m0, s%d, %d" % (sWM, WSL[g % 2] + n * 1024), "s_add_u32 s%d, s%d, %d" % (sDS, sWS, n * 32768 + (g % 8) * 0x80000),
                      "buffer_load_dwordx4 v%d, s[%d:%d], s%d offen %s lds" % (vWO, SW, SW + 3, sDS, LNT if g >= NTG else "")])
        if g >= 8 and withx:
            for n in range(2):
                G.append(["s_add_u32 m0, s%d, %d" % (sXM, WSL[g % 2] + 16384 + n * 1024), "s_add_u32 s%d, s%d, %d" % (sDS, sXS, n * 24576 + (g % 8) * 64 * 3072),
                          "buffer_load_dwordx4 v%d, s[%d:%d], s%d offen %s lds" % (vXO, SX, SX + 3, sDS, LNT)])
        return G
    for gw, ga in zip(dma_w(0), dma_act(0)):
        for x in gw + ga: a(x)
    NSL = 8
    def preg(k): return 128 + 2 * k
    def pf(k): return "global_load_dword v90, %s, off" % vr(preg(k), 2)
    def pfa(k, base, vo, so, imm=0):
        r = preg(k)
        a("s_add_u32 s%d, s%d, %d\nv_mov_b32 v%d, s%d\nv_add_u32 v%d, s%d, v%d" % (sT2, so, imm, r + 1, base + 1, r, sT2, vo))
        a("v_add_co_u32 v%d, vcc, s%d, v%d\ns_nop 1\nv_addc_co_u32 v%d, vcc, 0, v%d, vcc" % (r, base, r, r + 1, r + 1))
    def pfnone(k): a("v_mov_b32 v%d, s%d\nv_mov_b32 v%d, s%d" % (preg(k), pGATE, preg(k) + 1, pGATE + 1))
    if PF:
        l1, l3, le = a.label("pf1"), a.label("pf3"), a.label("pfe")
        a("s_cmp_eq_u32 s%d, 1\ns_cbranch_scc1 %s\ns_cmp_eq_u32 s%d, 3\ns_cbranch_scc1 %s" % (sWV, l1, sWV, l3))
        a("v_and_b32 v26, 31, v0\nv_lshlrev_b32 v26, 7, v26\ns_lshl_b32 s%d, s2, 13\ns_lshl_b32 s%d, s%d, 11\ns_add_u32 s%d, s%d, s%d" % (sT0, sT1, sWV, sT0, sT0, sT1))
        pfa(0, pC, 26, sT0, 0); a(pf(0))
        pfa(XSL, pX, 26, sT0, 0)
        used = {0, XSL}
        if XL2:
            a("s_lshr_b32 s%d, s2, 3\ns_lshl_b32 s%d, s%d, 16\ns_lshl_b32 s%d, s%d, 6\ns_add_u32 s%d, s%d, s%d\nv_lshlrev_b32 v26, 10, v0" % (sT0, sT0, sT0, sT1, sWV, sT1, sT0, sT1))
            for j in range(4):
                pfa(XL2 + j, pX, 26, sT1, 256 * j); used.add(XL2 + j)
        for k in range(NSL):
            if k not in used: pfnone(k)
        a("s_branch %s\n%s:" % (le, l1))
        a("v_lshrrev_b32 v26, 1, v0\nv_lshlrev_b32 v26, 13, v26\nv_and_b32 v27, 1, v0\nv_lshl_add_u32 v26, v27, 7, v26")
        a("s_bitcmp1_b32 s%d, 1\ns_cselect_b32 s98, s%d, s%d\ns_cselect_b32 s99, s%d, s%d" % (sI, pWUV, pWUK, pWUV + 1, pWUK + 1))
        a("s_and_b32 s%d, s%d, 1\ns_lshl_b32 s%d, s%d, 18\ns_lshl_b32 s%d, s%d, 8\ns_add_u32 s%d, s%d, s%d" % (sT0, sI, sT0, sT0, sT1, sH, sCNT, sT0, sT1))
        a("s_lshr_b32 s%d, s%d, 2\ns_lshl_b32 s%d, s%d, 19\ns_add_u32 s%d, s%d, s%d" % (sT0, sI, sT0, sT0, sT0, sT0, sCNT))
        pfa(0, 98, 26, sT0, 1 * 0x80000); a(pf(0))
        pfa(1, 98, 26, sT0, 3 * 0x80000); pfa(2, 98, 26, sT0, 5 * 0x80000); pfa(3, 98, 26, sCNT, 7 * 0x80000)
        a("s_lshl_b32 s%d, s%d, 18\ns_add_u32 s%d, s%d, s%d" % (sT0, sI, sT0, sT0, sT1))
        pfa(4, pWQ, 26, sT0, 0); pfa(6, pWQ, 26, sT0, 4 * 0x80000)
        a("s_min_u32 s%d, s%d, 23\ns_lshl_b32 s%d, s%d, 7\ns_mul_i32 s%d, s%d, %d\ns_add_u32 s%d, s%d, s%d\nv_mul_u32_u24 v26, 3072, v0" % (sT0, sU, sT0, sT0, sT1, sI, 64 * 3072, sT0, sT0, sT1))
        pfa(5, pWQKV, 26, sT0, 0); pfnone(7)
        a("s_branch %s\n%s:" % (le, l3))
        lpc = a.label("pc")
        a("s_getpc_b64 s[98:99]\n%s:" % lpc)
        a("s_lshr_b32 s%d, s2, 3\nv_lshlrev_b32 v26, 5, v0\nv_add_u32 v26, s%d, v26\nv_lshlrev_b32 v26, 7, v26\ns_mov_b32 s%d, 0" % (sT0, sT0, sT0))
        a("v_min_u32 v27, %s-%s, v26" % (lAttn, lpc))
        pfa(0, 98, 27, sT0, 0); a(pf(0))
        a("v_min_u32 v27, %s-%s, v26\ns_mov_b32 s%d, %s-%s" % (lRare, lAttn, sT0, lAttn, lpc))
        pfa(7, 98, 27, sT0, 0)
        a("v_lshlrev_b32 v26, 7, v0\ns_lshl_b32 s%d, s2, 14" % sT0)
        pfa(4, pBWO, 26, sT0, 0); pfa(5, pBWO, 26, sT0, 8192)
        a("v_and_b32 v27, 15, v0\nv_lshlrev_b32 v27, 7, v27\ns_lshl_b32 s%d, s2, 11" % sT0)
        pfa(6, pWO0, 27, sT0, 0)
        for k in (1, 2, 3): pfnone(k)
        a(le + ":")
    def pfp(p): return [[pf(p + 2)]] if (PF and p + 2 < NSL) else []
    srd(a, SO, pWS, WS_SIZE)
    a("v_and_b32 v19, 1, v17\nv_lshlrev_b32 v19, 2, v19\nv_xor_b32 v19, v19, v18\nv_lshlrev_b32 v19, 4, v19\ns_movk_i32 s%d, 3072\nv_mad_u32_u24 v%d, v16, s%d, v19" % (sT0, vXO, sT0))
    a("v_and_b32 v19, 31, v0\nv_lshrrev_b32 v20, 1, v19\nv_and_b32 v20, 7, v20\nv_lshrrev_b32 v21, 5, v0\nv_xor_b32 v20, v20, v21\nv_lshlrev_b32 v20, 4, v20\nv_lshl_add_u32 v20, v19, 7, v20")
    a("s_and_b32 s%d, s%d, 1\ns_lshl_b32 s%d, s%d, 14\ns_add_u32 s%d, s%d, %d" % (sT0, sWV, sT0, sT0, sT0, sT0, aslot(0)))
    for k in range(4): a("v_xor_b32 v%d, %d, v20\nv_add_u32 v%d, s%d, v%d" % (vAR[k], 32 * k, vAR[k], sT0, vAR[k]))
    a("v_lshrrev_b32 v19, 2, v0\nv_and_b32 v19, 3, v19\nv_lshl_add_u32 v20, v21, 3, v19")
    a("v_and_b32 v22, 1, v17\nv_lshlrev_b32 v22, 1, v22\nv_lshrrev_b32 v23, 1, v0\nv_and_b32 v23, 1, v23\nv_add_u32 v22, v22, v23\nv_and_b32 v23, 1, v0\nv_lshlrev_b32 v23, 3, v23")
    a("v_lshlrev_b32 v24, 2, v19\nv_xor_b32 v24, v24, v22\nv_lshlrev_b32 v24, 4, v24\nv_lshl_add_u32 v24, v20, 8, v24\nv_add_u32 v24, v24, v23")
    a("s_lshr_b32 s%d, s%d, 1\ns_lshl_b32 s%d, s%d, 14\ns_add_u32 s%d, s%d, %d" % (sWD, sWV, sWD, sWD, sT0, sWD, WSL[0]))
    for k in range(4): a("v_xor_b32 v%d, %d, v24\nv_add_u32 v%d, s%d, v%d" % (vWR[k], 64 * k, vWR[k], sT0, vWR[k]))
    a("v_lshrrev_b32 v24, 1, v19\nv_lshlrev_b32 v24, 2, v24\nv_xor_b32 v24, v24, v22\nv_lshlrev_b32 v24, 4, v24\nv_lshl_add_u32 v24, v20, 7, v24\nv_add_u32 v24, v24, v23")
    a("v_add_u32 v%d, %d, v24\nv_xor_b32 v%d, 64, v%d" % (vXR[0], WSL[0] + 16384, vXR[1], vXR[0]))
    a("s_lshl_b32 s%d, s%d, 2\ns_add_u32 s%d, s%d, s%d\ns_sub_u32 s%d, 60, s%d\ns_add_u32 s%d, s%d, s%d" % (sT1, sI, sQS, sT1, sWV, sQL, sT1, sQL, sQL, sWV))
    a("s_lshr_b32 s%d, s%d, 1\ns_lshl_b32 s%d, s%d, 5\ns_add_u32 s%d, s%d, s%d\ns_add_u32 s%d, s%d, 44\ns_lshl_b32 s%d, s%d, 19" % (sT0, sWV, sT0, sT0, sT0, sT0, sH, sT0, sT0, sOK, sT0))
    a("s_and_b32 s%d, s%d, 1\ns_lshl_b32 s%d, s%d, 1\ns_add_u32 s%d, s%d, s%d\ns_lshl_b32 s%d, s%d, 14\ns_add_u32 s%d, s%d, s%d" % (sT0, sWV, sT1, sI, sT0, sT0, sT1, sT0, sT0, sOK, sOK, sT0))
    a("s_lshl_b32 s%d, s%d, 16\ns_sub_u32 s%d, %d, s%d" % (sT0, sI, sOJ, 58 * 8192 + 4096, sT0))
    a("s_lshl_b32 s%d, s%d, 13\ns_and_b32 s%d, s%d, 1\ns_lshl_b32 s%d, s%d, 14\ns_sub_u32 s%d, s%d, s%d" % (sT0, sWV, sT1, sWV, sT1, sT1, sAD, sT0, sT1))
    a("s_lshl_b32 s%d, s%d, 6\nv_add_u32 v%d, s%d, v0\nv_lshlrev_b32 v%d, 12, v%d\nv_mov_b32 v%d, 1" % (sT0, sWV, vFO, sT0, vFO, vFO, vONE))
    srd(a, SX, pGATE, 1024)
    a("s_mov_b32 s98, s%d\ns_mov_b32 s99, s%d" % (pWO0, pWO0 + 1))
    srd(a, SD, pDBG, 256)
    a("s_mov_b32 s%d, s98\ns_mov_b32 s%d, s99" % (pWO, pWO + 1))
    a("s_getreg_b32 s%d, hwreg(HW_REG_XCC_ID, 0, 4)\ns_mul_i32 s%d, s%d, s%d\ns_lshl_b32 s%d, s%d, 8\ns_add_u32 s%d, s%d, s%d\ns_lshl_b32 s%d, s%d, 8\ns_add_u32 s%d, s%d, 1" % (sT0, sT1, sT0, sT0, sT1, sT1, sT1, sT1, sT0, sT1, sT1, sFA, sT1))
    a("v_mov_b32 v93, s%d\ns_lshl_b32 s%d, s%d, 3\ns_and_b32 s%d, s2, 7\ns_lshl_b32 s%d, s%d, 2\ns_lshl_b32 s%d, s%d, 2" % (sFA, sFA, sFA, sGR, sGR, sGR, sCNT, sH))
    a("v_and_b32 v94, 3, v0\nv_add_lshl_u32 v94, v94, s%d, 2\ns_lshl_b32 s%d, s%d, 12\nv_add_u32 v94, s%d, v94\nv_mov_b32 v92, s%d" % (sGR, sT0, sWV, sT0, sT0))
    a("buffer_atomic_add v93, v%d, s[%d:%d], s%d offen offset:128 sc1" % (vFO, SD, SD + 3, sCNT))

    def wofs(g): return (g % 2) * 32768
    def rd_kv(g, ks):
        F = FS[ks % 2]
        L = ["ds_read_b128 %s, v%d offset:%d" % (vr(F + 4 * j, 4), vAR[ks], j * 4096) for j in range(4)]
        W = ["ds_read_b64_tr_b16 %s, v%d offset:%d" % (vr(F + 16 + 4 * cb + 2 * rd, 2), vWR[cb], wofs(g) + ks * 4096 + rd * 1024) for cb in range(4) for rd in range(2)]
        return W[:2] + L + W[2:] + [xa(g, ks)]
    def rd_q(g, ks, var):
        F = FS[ks % 2]
        L = ["ds_read_b128 %s, v%d offset:%d" % (vr(F + 4 * j, 4), vAR[ks], j * 4096) for j in range(2)]
        L += ["ds_read_b64_tr_b16 %s, v%d offset:%d" % (vr(F + 16 + 4 * cb + 2 * rd, 2), vWR[cb], wofs(g) + ks * 4096 + rd * 1024) for cb in range(4) for rd in range(2)]
        if g < 15: L.append(xa(g, ks))
        if var in "NS":
            X = ["ds_read_b64_tr_b16 %s, v%d offset:%d" % (vr(F + 8 + 4 * cb + 2 * rd, 2), vXR[cb], wofs(g) + ks * 2048 + rd * 512) for cb in range(2) for rd in range(2)]
        else:
            X = ["ds_read_b128 %s, v%d offset:%d" % (vr(F + 8, 4), vXR[0], ((g - 8) * 4 + ks) * 32)]
        return L, X
    def xa(g, ks):
        d = aslot(g + 1) - aslot(g)
        return ("v_add_u32 v%d, 0x%x, v%d" % (vAR[ks], d, vAR[ks])) if d > 0 else ("v_subrev_u32 v%d, 0x%x, v%d" % (vAR[ks], -d, vAR[ks]))
    def mf_kv(ks, isV, first=False, rbmajor=False):
        F = FS[ks % 2]; M = []
        order = [(rb, cb) for rb in range(4) for cb in range(4)] if rbmajor else [(rb, cb) for cb in range(4) for rb in range(4)]
        for rb, cb in order:
            acc = ar((rb * 4 + cb) * 16, 16); x = vr(F + 4 * rb, 4); w = vr(F + 16 + 4 * cb, 4)
            M.append("%s %s, %s, %s, %s" % (MF32, acc, x if isV else w, w if isV else x, "0" if first else acc))
        return M
    def mf_q(ks, var, first):
        F = FS[ks % 2]; M = []
        for cb in range(4):
            for rb in range(2):
                acc = vr(QA + (rb * 4 + cb) * 16, 16)
                M.append("%s %s, %s, %s, %s" % (MF32, acc, vr(F + 16 + 4 * cb, 4), vr(F + 4 * rb, 4), "0" if first else acc))
        for cb in range(2 if var in "NS" else 1):
            for rb in range(2):
                acc = ar((cb * 2 + rb) * 16, 16); x = vr(F + 4 * rb, 4); w = vr(F + 8 + 4 * cb, 4)
                M.append("%s %s, %s, %s, %s" % (MF32, acc, x if var == "S" else w, w if var == "S" else x, "0" if first else acc))
        return M
    cnt = [0]
    def pack(areg, pk, scale=None):
        t = TT[0]
        G = ["v_accvgpr_read_b32 v%d, a%d" % (t + j, areg + j) for j in range(8)]
        if scale is not None: G += ["v_mul_f32 v%d, s%d, v%d" % (t + j, scale, t + j) for j in range(8)]
        G += ["v_cvt_pk_bf16_f32 v%d, v%d, v%d" % (pk + j, t + 2 * j, t + 2 * j + 1) for j in range(4)]
        return G
    def store(pk, so, off, fl=""): return "buffer_store_dwordx4 %s, v%d, s[%d:%d], s%d offen offset:%d %s" % (vr(pk, 4), vL16, SO, SO + 3, so, off, fl)
    def drain(areg, so, off, scale=None):
        pk = PK + 4 * (cnt[0] % 8); cnt[0] += 1
        return pack(areg, pk, scale) + [store(pk, so, off)]
    def kv_pack(j): return pack(j * 8, PK + 4 * (j % 8))
    def kv_store(j):
        G = [store(PK + 4 * (j % 8), sOK, (j % 4) * 1024, ST)]
        if j == 15: G.append("s_add_u32 s%d, s%d, s%d" % (sOK, sOK, sOJ))
        elif j % 4 == 3: G.append("s_add_u32 s%d, s%d, 4096" % (sOK, sOK))
        return G
    qa_setup = [["s_mov_b32 s%d, s%d" % (SA, pX), "s_mov_b32 s%d, s%d" % (SA + 1, pX + 1),
                 "s_lshl_b32 s%d, s%d, 15" % (sAS, sQL), "s_lshl_b32 s%d, s%d, 15" % (sAS2, sQS)]]
    qw_setup = [["s_mov_b32 m0, %d" % LDS_G, "s_mov_b32 s%d, s%d" % (SW, pWQ), "buffer_load_dwordx4 v%d, s[%d:%d], 0 offen lds" % (vL16, SX, SX + 3), "s_mov_b32 s%d, s%d" % (SW + 1, pWQ + 1)],
                ["s_lshl_b32 s%d, s%d, 17" % (sT0, sWV), "s_lshl_b32 s%d, s%d, 8" % (sWS, sH), "s_add_u32 s%d, s%d, s%d" % (sWS, sWS, sT0), "s_lshl_b32 s%d, s%d, 12" % (sWM, sWV)],
                ["s_mov_b32 s%d, s%d" % (SX, pWQKV), "s_mov_b32 s%d, s%d" % (SX + 1, pWQKV + 1), "s_lshl_b32 s%d, s%d, 11" % (sXM, sWV), "s_mul_i32 s%d, s%d, %d" % (sXS, sWV, 16 * 3072)],
                ["s_lshl_b32 s%d, s%d, 7" % (sT0, sU), "s_add_u32 s%d, s%d, s%d" % (sXS, sXS, sT0),
                 "s_and_b32 s%d, s%d, 3" % (sT0, sH), "s_cmp_eq_u32 s%d, 3" % sT0, "s_cselect_b32 s%d, 0, 0x180000" % (SX + 2)]]
    at_setup = [["v_cmp_ne_u32 vcc, s%d, v93" % sFA], ["s_cmp_eq_u64 vcc, 0", "s_cselect_b32 s%d, 1, s%d" % (sFA, sWV)],
                ["s_cmp_eq_u32 s%d, 0" % sWV, "s_cselect_b32 s46, 8, 0", "s_cselect_b32 s47, 0x80000000, 0"],
                ["s_lshl_b32 s%d, s%d, 12" % (sW4, sWV), "s_lshl_b32 s%d, s%d, 13" % (sW8, sWV), "s_lshl_b32 s%d, s%d, 19" % (sT0, sH)],
                ["s_lshl_b32 s%d, s%d, 15" % (sVD, sI), "s_add_u32 s%d, s%d, s%d" % (sT0, sT0, sVD)],
                ["s_add_u32 s%d, s%d, 0x%x" % (sKO, sT0, OFF_K), "s_add_u32 s%d, s%d, 0x%x" % (sVO, sT0, OFF_V), "s_mov_b32 s%d, %s" % (sTH, THRESH)]]
    SK, SV = 4, SO
    vK, vV = vL16, 2
    def dma(which, typ, par, srd_=None):
        so, sr_, base = (sKO, SK, 0) if which == "K" else (sVO, SV, 65536)
        if srd_ is not None: sr_ = srd_
        sw = sW4 if typ == 1 else sW8
        G = []
        for q in range(typ):
            g = ["s_add_u32 m0, s%d, %d" % (sw, base + par * 32768 + q * 4096)]
            g.append("s_add_u32 s%d, s%d, s%d" % (sDS, so, sw) if q == 0 else "s_add_u32 s%d, s%d, 4096" % (sDS, sDS))
            G.append(g)
            for o in range(4):
                G.append(["buffer_load_dwordx4 v%d, s[%d:%d], s%d offen offset:%d sc1 lds" % (vK, sr_, sr_ + 3, sDS, o * 1024)])
        return G
    def adv(which, typ):
        so = sKO if which == "K" else sVO
        if which == "V" and typ == 1: return ["s_add_u32 s%d, s%d, s%d" % (so, so, sVD), "s_movk_i32 s%d, 0x4000" % sVD]
        return ["s_add_u32 s%d, s%d, %d" % (so, so, 16384 * typ)]
    spins = []
    vF1, vFA, vPO = 90, 251, 254
    sP1, sG1, sG2 = 45, 46, 47
    def poll_load(kind):
        if kind == 1: return "buffer_load_dword v%d, v92, s[%d:%d], s%d offen sc1" % (vF1, SD, SD + 3, sCNT)
        return "buffer_load_dword v%d, v%d, s[%d:%d], 0 offen offset:128 sc1" % (vFA, vPO, SD, SD + 3)
    def poll_cmp(kind): return "v_cmp_gt_u32 vcc, s%d, v%d" % ((sG1, vF1) if kind == 1 else (sG2, vFA))
    def poll_check(kind):
        ls, lb = a.label("spin"), a.label("spun")
        a("%s\ns_cbranch_vccnz %s\n%s:" % (poll_cmp(kind), ls, lb))
        spins.append((ls, lb, kind))
    rels = []
    def release():
        ls, lb = a.label("rel"), a.label("reld")
        a("s_cmp_eq_u32 s%d, 0\ns_cbranch_scc1 %s\n%s:" % (sFA, ls, lb))
        rels.append((ls, lb))

    st_("setup")
    bar("s_waitcnt vmcnt(%d)" % (2 if PF else 1))
    st_("bar0")
    for x in rd_kv(0, 0): a(x)
    lV = a.label("kvV"); lQ = a.label("qphase")
    a("s_cmp_ge_u32 s%d, 2\ns_cbranch_scc1 %s" % (sWV, lV))
    def count_after(seq, pred):
        n = 0
        for x in reversed(seq):
            if pred(x): return n
            if isvm(x): n += 1
        return n
    for isV in (False, True):
        if isV: a(lV + ":")
        t2[0] = 1
        for g in range(8):
            p = g - 1
            if g == 0:
                W1, A1 = dma_w(1), dma_act(1)
                ex = [[x for pr in zip(W1, A1) for x in pr], dma_act(2) + pfp(-1), []]
                allowed = 8 + len(pfp(-1))
            else:
                A = (qa_setup if p + 3 == 8 else []) + dma_act(p + 3)
                ex = [A[:-6], A[-6:-3], A[-3:] + (at_setup if g == 7 else [])]
                allowed = 8 + len(pfp(p))
            for ks in range(3):
                a("s_waitcnt lgkmcnt(0)")
                emit(a, mf_kv(ks, isV, first=(g == 0 and ks == 0)), [(rd_kv(g, ks + 1), 0, 13), (ex[ks], 0, 16)])
            bar("s_waitcnt vmcnt(%d) lgkmcnt(0)" % allowed)
            if g < 7:
                Wn = (qw_setup if g == 6 else []) + dma_w(g + 2) + pfp(g)
                if g == 5: Wn = [["buffer_load_dword v93, v94, s[%d:%d], 0 offen offset:128 sc1" % (SD, SD + 3)]] + Wn
                emit(a, mf_kv(3, isV), [(rd_kv(g + 1, 0), 0, 13), (Wn, 0, WSP)])
        for k in range(4): a("v_add_u32 v%d, s%d, v%d" % (vAR[k], sAD, vAR[k]))
        for k in range(4): a("v_subrev_u32 v%d, s%d, v%d" % (vWR[k], sWD, vWR[k]))
        cnt[0] = 0
        D0 = [x for j in range(8) for x in kv_pack(j)]
        emit(a, mf_kv(3, isV, rbmajor=True), [(rd_q(8, 0, "N")[0], 0, 7), (dma_w(9), 0, 6), (D0[:48], 7, 16)])
        if not isV: a("s_branch %s" % lQ)
    a(lQ + ":")
    st_("q")
    lN, lS, lG, lE = a.label("qN"), a.label("qS"), a.label("qG"), a.label("qE")
    a("s_and_b32 s%d, s%d, 3\ns_cmp_eq_u32 s%d, 3\ns_cbranch_scc1 %s\ns_cmp_ge_u32 s%d, 16\ns_cbranch_scc1 %s" % (sT0, sH, sT0, lG, sU, lS))
    cnt0 = cnt[0]
    for var, lab in (("N", lN), ("S", lS), ("G", lG)):
        a(lab + ":")
        cnt[0] = cnt0; t2[0] = 9
        if var == "G": a("v_lshrrev_b32 v%d, 5, v0\nv_lshlrev_b32 v%d, 4, v%d\nv_add_u32 v%d, %d, v%d" % (vXR[0], vXR[0], vXR[0], vXR[0], LDS_G, vXR[0]))
        for x in rd_q(8, 0, var)[1]: a(x)
        vTW, vTR, TG = vXO, (15, 93, 94, 95), 32
        sSJ, sTD, sTL = sOA, sXS, sXM
        tsetup = []
        if var == "G":
            t = 28
            tsetup = ("s_and_b32 s%d, s2, 7\ns_lshl_b32 s%d, s%d, 3\ns_add_u32 s%d, s%d, s%d\n" % (sSJ, sSJ, sSJ, sSJ, sSJ, sI) +
                "s_lshl_b32 s%d, s%d, 12\ns_add_u32 s%d, s%d, %d\n" % (sTL, sWV, sTL, sTL, WSL[1] + 16384) +
                "v_lshrrev_b32 v28, 4, v0\nv_and_b32 v29, 15, v0\nv_lshlrev_b32 v30, 2, v28\nv_xor_b32 v29, v29, v30\nv_lshlrev_b32 v29, 4, v29\nv_lshl_add_u32 v%d, v28, 10, v29\n" % vTW +
                "s_mov_b32 s%d, s%d\ns_mov_b32 s%d, s%d\ns_mov_b32 s%d, 0x400000\n" % (SX, pBWO, SX + 1, pBWO + 1, SX + 2) +
                "s_lshl_b32 s%d, s%d, 14\ns_lshl_b32 s%d, s%d, 8\ns_add_u32 s%d, s%d, s%d\n" % (sSC, sSJ, sT0, sWV, sSC, sSC, sT0) +
                "v_lshrrev_b32 v29, 2, v0\nv_and_b32 v29, 3, v29\nv_lshrrev_b32 v30, 5, v0\nv_lshl_add_u32 v30, v30, 2, v29\n" +
                "v_and_b32 v28, 1, v28\nv_lshlrev_b32 v28, 1, v28\nv_lshrrev_b32 v31, 1, v0\nv_and_b32 v31, 1, v31\nv_add_u32 v28, v28, v31\nv_and_b32 v31, 1, v0\nv_lshlrev_b32 v31, 3, v31\n" +
                "v_lshlrev_b32 v29, 2, v29\nv_xor_b32 v29, v29, v28\nv_lshlrev_b32 v29, 4, v29\nv_lshl_add_u32 v29, v30, 8, v29\nv_add3_u32 v29, v29, v31, s%d\n" % sTL +
                "".join("v_xor_b32 v%d, %d, v29\n" % (vTR[k], 64 * k) for k in range(4)) +
                "s_mul_i32 s%d, s%d, %d\ns_lshl_b32 s%d, s%d, 11\ns_add_u32 s%d, s%d, s%d\ns_add_u32 s%d, s%d, 0x%x" % (sTD, sWV, 2 * WROW, sT1, sSJ, sTD, sTD, sT1, sTD, sTD, OFF_W)).split("\n")
        def t_dma(j):
            G = []
            if j == 4: G.append(["s_mov_b32 s%d, s%d" % (SX, pWO), "s_mov_b32 s%d, s%d" % (SX + 1, pWO + 1), "s_mov_b32 s%d, 0x80000" % (SX + 2)])
            for n in range(4):
                G.append(["s_add_u32 m0, s%d, %d" % (sTL, n * 1024), "s_add_u32 s%d, s%d, %d" % (sDS, sSC, (j % 4) * 0x100000 + n * 4096),
                          "buffer_load_dwordx4 v%d, s[%d:%d], s%d offen %s lds" % (vTW, SX, SX + 3, sDS, LNT)])
            return G
        def t_read(): return ["ds_read_b64_tr_b16 %s, v%d offset:%d" % (ar(TG + 4 * cb + 2 * rd, 2), vTR[cb], rd * 2048) for cb in range(4) for rd in range(2)]
        def t_store(j):
            G = []
            if j == 4: G.append(["s_cmp_ge_u32 s%d, 32" % sSJ, "s_cselect_b32 s%d, 0x%x, s%d" % (sTD, OFF_DUMMY, sTD)])
            G.append(["s_add_u32 s%d, s%d, %d" % (sT1, sTD, WROW)])
            for cb in range(4):
                G.append(["buffer_store_dwordx4 %s, v%d, s[%d:%d], s%d offen offset:%d" % (ar(TG + 4 * cb, 4), vL16, SO, SO + 3, sTD if cb < 2 else sT1, (cb % 2) * 1024)])
            G.append(["s_add_u32 s%d, s%d, %d" % (sTD, sTD, 64 * 2048)])
            return G
        ZR = ["v_accvgpr_write_b32 a%d, 0" % r for r in range(64, 128)]
        after_w = 0
        sched = spread(32, 0, NSK)
        g_pub = 8 + max(sched[:16]) // 4 + (2 if max(sched[:16]) % 4 == 3 else 1)
        assert g_pub <= 14
        for g in range(8, 16):
            for ks in range(4):
                M = mf_q(ks, var, g == 8 and ks == 0); nm = len(M)
                st = []
                if ks == 3 and g < 15:
                    bar("s_waitcnt vmcnt(%d) lgkmcnt(0)" % after_w)
                    after_w = 0
                    G = dma_w(g + 2, var != "G") if g + 2 < 16 else []
                    if g == g_pub:
                        release()
                        G = [["buffer_atomic_add v%d, v%d, s[%d:%d], s%d offen sc1" % (vONE, vFO, SD, SD + 3, sCNT)]] + G
                    if g == 14:
                        G = G + dma("K", 1, 0, SO) + [adv("K", 1)] + dma("K", 1, 1, SO) + [[poll_load(1)]]
                    st.append((G, 0, nm - 2))
                else:
                    a("s_waitcnt lgkmcnt(0)")
                if not (g == 15 and ks == 3):
                    g2, k2 = (g, ks + 1) if ks < 3 else (g + 1, 0)
                    L, X = rd_q(g2, k2, var)
                    st.append((L + X, 0, nm - 3))
                ex = []
                if var != "G":
                    if ks < 2 and g + 2 < 16: ex = dma_act(g + 2)[4 * ks: 4 * ks + 4]
                else:
                    if ks in (1, 2) and g + 2 < 16: ex = dma_act(g + 2)[4 * ks - 4: 4 * ks]
                    if g == 8 and ks in (1, 2): st.append((tsetup[:26] if ks == 1 else tsetup[26:], 0, nm))
                    if ks == 0 and 9 <= g <= 13:
                        st.append((t_dma(g - 9), 0, nm - 3)); after_w = 0
                    if ks == 3 and 9 <= g <= 13: st.append((t_read(), 0, nm - 2))
                    if ks == 1 and 10 <= g <= 14: ex = t_store(g - 10) + ex
                st.append((ex, 0, nm))
                kg = (g - 8) * 4 + ks
                if kg == 0: st.append((D0[48:], 0, 7))
                ep = []
                for j in range(8, 32):
                    if max(sched[j] - 1, sched[j - 8] + 1) == kg: ep += kv_pack(j)
                if kg >= 20 and ZR: ep += ZR[:8]; ZR = ZR[8:]
                st.append((ep, 0, nm))
                so_ = [kv_store(j) for j in range(32) if sched[j] == kg]
                st.append((so_, nm - 1 - len(so_), nm))
                after_w += sum(1 for gr in ex + so_ for x in gr if isvm(x))
                emit(a, M, st)
        assert not ZR
        cnt[0] = 0
        a("s_nop 7\ns_nop 3")
        if var in "NS":
            a("s_lshr_b32 s%d, s%d, 1\ns_lshl_b32 s%d, s%d, 19\ns_and_b32 s%d, s%d, 1\ns_lshl_b32 s%d, s%d, 12\ns_add_u32 s%d, s%d, s%d" % (sT0, sU, sT0, sT0, sT1, sU, sT1, sT1, sT0, sT0, sT1))
            a("s_cmp_lt_u32 s%d, 8\ns_cselect_b32 s%d, %s, 1.0" % (sU, sSC, fbits(LOG2E * 0.25)))
            for rb, blk in ((0, sQL), (1, sQS)):
                a("s_lshl_b32 s%d, s%d, 13\ns_add_u32 s%d, s%d, s%d" % (sOA, blk, sOA, sOA, sT0))
                for cb in range(2):
                    for e in range(2):
                        for x in drain((cb * 2 + rb) * 16 + e * 8, sOA, cb * 2048 + e * 1024, sSC if var == "N" else None): a(x)
            a("s_waitcnt vmcnt(%d)" % (8 + after_w))
            a("s_branch %s" % lE)
        else:
            a("v_accvgpr_read_b32 v16, a0\nv_accvgpr_read_b32 v17, a16\nv_cmp_gt_u32 vcc, 32, v0\nv_mov_b32 v18, s%d\nv_mov_b32 v19, s%d" % (sQL, sQS))
            a("v_cndmask_b32 v16, v17, v16, vcc\nv_cndmask_b32 v18, v19, v18, vcc")
            a("v_mul_f32 v16, %s, v16\nv_exp_f32 v16, v16\nv_and_b32 v19, 31, v0\nv_add_f32 v16, 1.0, v16\nv_rcp_f32 v16, v16" % fbits(-LOG2E))
            a("v_lshl_add_u32 v18, v18, 5, v19\nv_lshlrev_b32 v18, 2, v18\ns_lshl_b32 s%d, s%d, 11\ns_add_u32 s%d, s%d, 0x%x" % (sT0, sGR, sT0, sT0, OFF_G))
            a("buffer_store_dword v16, v18, s[%d:%d], s%d offen" % (SO, SO + 3, sT0))
            a("s_waitcnt vmcnt(%d)" % (1 + after_w))
    a(lE + ":")
    a(lAttn + ":")
    st_("attn")
    vU, vGL, vGS = 3, 4, 5
    vL = (6, 7); vLT = (8, 9); vX = 10
    S = (16, 80); P = (144, 176); NM = 208; TM = 240
    vGA, vNEG, vPM = 248, 249, 250
    O, Q, FR, NFR = 0, 128, 192, 16
    ms = (26, 28, 30)
    def kfrag(p, idx): return ("K", p * 32768 + idx * 1024)
    def vfrag(p, g, db): return ("V", p * 32768 + (g // 2) * 8192 + db * 2048 + (g % 2) * 1024)
    def rd(slot, fr):
        return "ds_read_b128 %s, v%d offset:%d" % (ar(FR + 4 * (slot % NFR), 4), vK if fr[0] == "K" else vV, fr[1])
    def mf_list(p, pv, qk):
        L = []
        Pp = P[1 - p]; Sn = S[1 - p]
        if pv == 1:
            for g in range(4):
                for db in range(4):
                    L.append((vfrag(1 - p, g, db), ["%s %s, {F}, %s, %s" % (MF32, ar(O + rb * 64 + db * 16, 16), vr(Pp + rb * 16 + g * 4, 4), ar(O + rb * 64 + db * 16, 16)) for rb in range(2)]))
        elif pv == 2:
            for g in range(8):
                for db in range(4):
                    L.append((vfrag(1 - p, g, db), ["%s %s, {F}, %s, %s" % (MF32, ar(O + db * 16, 16), vr(Pp + g * 4, 4), ar(O + db * 16, 16))]))
        if qk == 1:
            for kb in range(2):
                for s in range(8):
                    ms_ = []
                    for rb in range(2):
                        d = vr(Sn + rb * 32 + kb * 16, 16)
                        ms_.append("%s %s, {F}, %s, %s" % (MF32, d, ar(Q + rb * 32 + s * 4, 4), d if s else vr(NM + rb * 16, 16)))
                    L.append((kfrag(1 - p, kb * 8 + s), ms_))
        elif qk == 2:
            for kb in range(4):
                for s in range(8):
                    d = vr(Sn + kb * 16, 16)
                    L.append((kfrag(1 - p, kb * 8 + s), ["%s %s, {F}, %s, %s" % (MF32, d, ar(Q + s * 4, 4), d if s else vr(NM, 16))]))
        return L
    def sm_list(p, sm):
        Sc, Pc = S[p], P[p]
        order = [0, 2, 1, 3] if sm == 1 else [0, 1, 2, 3]
        els = [b * 16 + j for b in order for j in range(16)]
        V = []
        first = {0: True, 1: True}
        def tail(n):
            e = els[n]; u = TM + (n % 8); lt = vLT[e // 32]
            out = []
            if first[e // 32]:
                out.append((4, "v_add_f32 v%d, v%d, v%d" % (lt, u, u + 1))); first[e // 32] = False
            else:
                out.append((4, "v_add_f32 v%d, v%d, v%d" % (lt, lt, u)))
                out.append((4, "v_add_f32 v%d, v%d, v%d" % (lt, lt, u + 1)))
            out.append((4, "v_cvt_pk_bf16_f32 v%d, v%d, v%d" % (Pc + e // 2, u, u + 1)))
            return out
        for n in range(0, 64, 2):
            tl = tail(n - 2) if n >= 2 else []
            V.append((8, "v_exp_f32 v%d, v%d" % (TM + n % 8, Sc + els[n])))
            V += tl[:1]
            V.append((8, "v_exp_f32 v%d, v%d" % (TM + n % 8 + 1, Sc + els[n + 1])))
            V += tl[1:]
        V += tail(62)
        return V
    rare = {}
    def step(p, pv, sm, qk, dK, dV, pre_in=True, pre_out=True, advK=True, extra_vm=None, extra_valu=None, chk=0):
        L = mf_list(p, pv, qk)
        nf = len(L)
        nxt = [vfrag(p, g, db) for g in range(2) for db in range(4)][:PD]
        M = [(f, t) for f, (fr, ts_) in enumerate(L) for t in ts_]
        nm = len(M)
        fill = [[] for _ in range(nm)]
        G = []
        if dV: G += dma("V", dV, p) + [adv("V", dV)]
        if dK: G += dma("K", dK, p) + ([adv("K", dK)] if advK else [])
        if extra_vm: G += extra_vm
        lim = max(min(len(G), nm - 8), (nm * 4) // 8)
        cost = [0] * nm
        for g, m in zip(G, spread(len(G), 1, lim + 1) if G else []):
            fill[m] += g; cost[m] += 4 * len(g)
        firstm = {}
        for m, (f, t) in enumerate(M): firstm.setdefault(f, m)
        for f in range(nf): cost[firstm[f]] += 8
        V = sm_list(p, sm) if sm else []
        if sm:
            V.append((4, "v_max_f32 v%d, v%d, v%d" % (vX, vLT[0], vLT[1])))
            V.append((4, "v_cmp_lt_f32 vcc, s%d, v%d" % (sTH, vX)))
        if extra_valu: V += [(4, x) for x in extra_valu]
        if V:
            last = nm - 2
            tot = sum(c for c, _ in V) + sum(cost[:last])
            acc = 0; vi = 0
            for m in range(last):
                acc += cost[m]
                tgt = tot * (m + 1) / last
                while vi < len(V) and (acc + V[vi][0] / 2 <= tgt or m == last - 1):
                    fill[m].append(V[vi][1]); acc += V[vi][0]; vi += 1
        if not pre_in:
            for f in range(PD): a(rd(f, L[f][0]))
        barf = nf + 1 - PD
        for m, (f, t) in enumerate(M):
            if firstm[f] == m:
                if f == barf and pre_out:
                    a("s_waitcnt vmcnt(0) lgkmcnt(0)")
                    if chk: poll_check(chk)
                    a("s_barrier")
                elif f < barf or not pre_out: a("s_waitcnt lgkmcnt(%d)" % (min(f + PD - 1, nf - 1) - f))
            a(t.replace("{F}", ar(FR + 4 * (f % NFR), 4)))
            if firstm[f] == m:
                if f + PD < nf: a(rd(f + PD, L[f + PD][0]))
                elif pre_out and f == barf:
                    a(rd(nf, nxt[0])); a(rd(nf + 1, nxt[1]))
                elif pre_out and f > barf: a(rd(f + PD, nxt[f + PD - nf]))
            for x in fill[m]: a(x)
        assert nf % NFR == 0
        if sm:
            key = (p, sm, qk if qk else sm)
            if key not in rare: rare[key] = (a.label("rare"), [])
            lb = a.label("back"); lj = a.label("jr")
            rid = len(rare[key][1]); rare[key][1].append((lj, lb))
            a("s_cbranch_vccnz %s\n%s:" % (lj, lb))
            if sm == 1: a("v_add_f32 v%d, v%d, v%d\nv_add_f32 v%d, v%d, v%d" % (vL[0], vL[0], vLT[0], vL[1], vL[1], vLT[1]))
            else: a("v_add_f32 v%d, v%d, v%d\nv_add_f32 v%d, v%d, v%d" % (vL[0], vL[0], vLT[0], vL[0], vL[0], vLT[1]))
    def rowmax(dst, regs_):
        a("v_max3_f32 v%d, v%d, v%d, v%d" % (dst, regs_[0], regs_[1], regs_[2]))
        j = 3
        while j + 1 < len(regs_):
            a("v_max3_f32 v%d, v%d, v%d, v%d" % (dst, dst, regs_[j], regs_[j + 1])); j += 2
        if j < len(regs_): a("v_max_f32 v%d, v%d, v%d" % (dst, dst, regs_[j]))
        a("v_mov_b32 v%d, v%d\ns_nop 1\nv_permlane32_swap_b32 v%d, v%d\nv_max_f32 v%d, v%d, v%d" % (dst + 1, dst, dst, dst + 1, dst, dst, dst + 1))
    def mask(base, nblk, kb0):
        a("s_nop 7\ns_nop 3")
        for j in range(nblk):
            lf = a.label("mfull"); le_ = a.label("mend")
            kb = kb0 + j; r0 = base + 16 * j
            a("s_cmp_gt_u32 s%d, %d\ns_cbranch_scc1 %s" % (sWV, kb, le_))
            if kb > 0: a("s_cmp_lt_u32 s%d, %d\ns_cbranch_scc1 %s" % (sWV, kb, lf))
            rr = list(range(16))
            for c in range(0, 16, 3):
                grp = rr[c:c + 3]
                for q, r in enumerate(grp): a("v_cmp_gt_i32 s[%d:%d], %d, v%d" % (ms[q], ms[q] + 1, 8 * (r // 4) + r % 4, vU))
                if len(grp) < 3: a("s_nop 1")
                for q, r in enumerate(grp): a("v_cndmask_b32 v%d, v%d, v%d, s[%d:%d]" % (r0 + r, r0 + r, vNEG, ms[q], ms[q] + 1))
            if kb > 0:
                a("s_branch %s\n%s:" % (le_, lf))
                for r in range(16): a("v_mov_b32 v%d, v%d" % (r0 + r, vNEG))
            a(le_ + ":")
    poll_check(1)
    bar("s_nop 0")
    if TS2:
        a("s_waitcnt lgkmcnt(0)"); bar("s_nop 0")
        a("s_lshl_b32 s62, s2, 2\ns_add_u32 s62, s62, s%d\ns_lshl_b32 s62, s62, 8\ns_add_u32 s62, s62, 0x%x\nv_lshlrev_b32 v92, 2, v0" % (sWV, OFF_TS + 0x80000))
        a("buffer_store_dword v91, v92, s[%d:%d], s62 offen\ns_waitcnt vmcnt(0)" % (SO, SO + 3))
    srd(a, SK, pWS, WS_SIZE)
    a("s_mov_b32 s%d, %s" % (sSC, fbits(LOG2E / math.sqrt(128.0))))
    fr0 = [kfrag(0, kb * 8 + s) for s in range(8) for kb in range(2)]
    for f in range(12): a(rd(f, fr0[f]))
    def qepi(s):
        G = []
        for rb in range(2):
            src = QA + rb * 64 + s * 8
            if PKMUL: G += ["v_pk_mul_f32 %s, %s, s[%d:%d]" % (vr(src + 2 * j, 2), vr(src + 2 * j, 2), 98, sSC) for j in range(4)]
            else: G += ["v_mul_f32 v%d, s%d, v%d" % (src + j, sSC, src + j) for j in range(8)]
        for rb in range(2):
            src = QA + rb * 64 + s * 8
            G += ["v_cvt_pk_bf16_f32 v%d, v%d, v%d" % (src + j, src + 2 * j, src + 2 * j + 1) for j in range(4)]
        for rb in range(2):
            src = QA + rb * 64 + s * 8
            G += ["v_accvgpr_write_b32 a%d, v%d" % (Q + rb * 32 + s * 4 + j, src + j) for j in range(4)]
        return G
    a("s_add_u32 s%d, s%d, 0x4000\ns_sub_u32 s%d, s%d, s%d\ns_cmp_eq_u32 s%d, 0\ns_cselect_b32 s%d, 0x8000, 0\ns_add_u32 s%d, s%d, s%d" % (sT1, sVD, sKO, sKO, sT1, sI, sT0, sKO, sKO, sT0))
    for g_ in dma("V", 1, 0):
        for x in g_: a(x)
    a("s_add_u32 s%d, s%d, 0x4000\ns_sub_u32 s%d, 0, s%d" % (sVO, sVO, sVD, sT1))
    for x in qepi(0): a(x)
    for f in range(12, 16): a(rd(f, fr0[f]))
    misc = ["v_add_u32 v%d, 0x10000, v%d" % (vV, vK), "v_and_b32 v10, 31, v0", "v_lshrrev_b32 v11, 5, v0", "v_lshlrev_b32 v11, 2, v11", "v_sub_u32 v%d, v10, v11" % vU,
            "v_mov_b32 v%d, 0" % vL[0], "v_mov_b32 v%d, 0" % vL[1], "v_mov_b32 v%d, %s" % (vNEG, NEG), "v_and_b32 v%d, 3, v0" % vPO, "v_add_lshl_u32 v%d, v%d, s%d, 2" % (vPO, vPO, sGR), "v_add_u32 v%d, s%d, v%d" % (vPO, sW4, vPO), "v_mov_b32 v253, 0x10000000", "v_mov_b32 v252, v%d" % vFO]
    misc += ["s_lshl_b32 s%d, s2, 7" % sT1, "s_add_u32 s%d, s%d, 0x%x" % (sT1, sT1, OFF_FL), "v_lshlrev_b32 v10, 2, v10",
             "buffer_store_dword v%d, v10, s[%d:%d], s%d offen" % (vL[0], SO, SO + 3, sT1)]
    misc += ["v_accvgpr_write_b32 a%d, 0" % r for r in range(0, 24)]
    a("s_waitcnt lgkmcnt(0)\ns_barrier")
    K2 = dma("K", 2, 0) + [["s_cmp_eq_u32 s%d, 0" % sI, "s_cselect_b32 s%d, 2, 1" % sT0, "s_lshl_b32 s%d, s%d, 14" % (sT0, sT0), "s_add_u32 s%d, s%d, s%d" % (sKO, sKO, sT0)]]
    for s in range(8):
        M = []
        for kb in range(2):
            for rb in range(2):
                d = vr(S[0] + rb * 32 + kb * 16, 16)
                M.append("%s %s, %s, %s, %s" % (MF32, d, ar(FR + 4 * (2 * s + kb), 4), ar(Q + rb * 32 + s * 4, 4), d if s else "0"))
        emit(a, M, [(K2[2 * s: 2 * s + 2], 0, 3), (qepi(s + 1) + ["s_nop 0"] if s < 7 else misc, 0, 4)])
    st_("m1")
    for r in range(24, 64): a("v_accvgpr_write_b32 a%d, 0" % r)
    mask(S[0] + 32, 2, 0)
    for rb in range(2): rowmax(vX + 2 * rb, [S[0] + rb * 32 + j for j in range(32)])
    for rb in range(2):
        for j in range(16): a("v_sub_f32 v%d, 0, v%d" % (NM + rb * 16 + j, vX + 2 * rb))
    for rb in range(2):
        for j in range(32): a("v_sub_f32 v%d, v%d, v%d" % (S[0] + rb * 32 + j, S[0] + rb * 32 + j, vX + 2 * rb))
    st_("first")
    step(0, 0, 1, 1, 0, 0, pre_in=False)
    st_("s0a")
    release()
    a("buffer_atomic_add v253, v252, s[%d:%d], s%d offen offset:128 sc1" % (SD, SD + 3, sCNT))
    mask(S[1] + 32, 2, 2)
    st_("s0")
    lT0, lT1, lT2b, lL1, lL2, lT16, lEn = [a.label(x) for x in ("T0", "T1", "T2b", "L1", "L2", "T16", "E17")]
    PL = [[poll_load(2)]]
    a("s_cmp_eq_u32 s%d, 0\ns_cbranch_scc1 %s" % (sI, lT1))
    a("s_mov_b32 s%d, s%d" % (sT, sI))
    a(".p2align 6\n" + lL1 + ":")
    step(1, 1, 1, 1, 1, 1)
    a("s_sub_u32 s%d, s%d, 1\ns_cmp_eq_u32 s%d, 0\ns_cbranch_scc1 %s" % (sT, sT, sT, lT0))
    step(0, 1, 1, 1, 1, 1)
    a("s_branch %s" % lL1)
    a(lT0 + ":")
    a("s_add_u32 s%d, s%d, 0x8000" % (sKO, sKO))
    step(0, 1, 1, 1, 2, 1, extra_vm=PL, chk=2)
    a(lT1 + ":")
    a("s_cmp_eq_u32 s%d, 7\ns_cselect_b32 s%d, 0, s%d" % (sI, SK + 2, SK + 2))
    step(1, 1, 1, 2, 2, 1)
    a("s_add_u32 s%d, s%d, 0x8000" % (sVO, sVO))
    a("s_cmp_eq_u32 s%d, 7\ns_cbranch_scc1 %s" % (sI, lT2b))
    step(0, 1, 2, 2, 2, 2, extra_vm=PL, chk=2)
    a("s_sub_u32 s%d, 7, s%d" % (sT, sI))
    a(".p2align 6\n" + lL2 + ":")
    a("s_cmp_eq_u32 s%d, 1\ns_cselect_b32 s%d, 0, s%d" % (sT, SK + 2, SK + 2))
    step(1, 2, 2, 2, 2, 2)
    a("s_sub_u32 s%d, s%d, 1\ns_cmp_eq_u32 s%d, 0\ns_cbranch_scc1 %s" % (sT, sT, sT, lT16))
    step(0, 2, 2, 2, 2, 2)
    a("s_branch %s" % lL2)
    sRA, sHP, sA0, sA1 = 36, 37, 38, 39
    AQ, AKC, AKP, AV = Q, Q + 8, Q + 16, Q + 24
    def ld(dst, so, off): return ["buffer_load_dwordx4 %s, v%d, s[%d:%d], s%d offen offset:%d sc1" % (dst, vK, SV, SV + 3, so, off)]
    ALD = [["s_lshr_b32 s%d, s2, 3" % sT0, "s_lshl_b32 s%d, s%d, 1" % (sT0, sT0), "s_lshr_b32 s%d, s%d, 1" % (sRA, sWV), "s_add_u32 s%d, s%d, s%d" % (sRA, sRA, sT0)],
           ["s_and_b32 s%d, s%d, 1" % (sHP, sWV), "s_lshr_b32 s%d, s%d, 1" % (sT0, sGR), "s_add_u32 s%d, s%d, s%d" % (sHP, sHP, sT0), "s_lshl_b32 s%d, s%d, 9" % (sT0, sGR)],
           ["v_and_b32 v14, 31, v0", "v_add_lshl_u32 v14, v14, s%d, 2" % sT0]]
    for (dst, blk) in ((vGS, sQS), (vGL, sQL), (vGA, sRA)):
        ALD.append(["s_lshl_b32 s%d, s%d, 7" % (sT0, blk), "s_add_u32 s%d, s%d, 0x%x" % (sT0, sT0, OFF_G), "buffer_load_dword v%d, v14, s[%d:%d], s%d offen sc1" % (dst, SV, SV + 3, sT0)])
    ALD += [["s_lshr_b32 s%d, s%d, 2" % (sT0, sHP), "s_lshl_b32 s%d, s%d, 19" % (sT0, sT0), "s_and_b32 s%d, s%d, 3" % (sT1, sHP), "s_lshl_b32 s%d, s%d, 11" % (sT1, sT1)],
            ["s_add_u32 s%d, s%d, s%d" % (sT0, sT0, sT1), "s_lshl_b32 s%d, s%d, 13" % (sT1, sRA), "s_add_u32 s%d, s%d, s%d" % (sA0, sT0, sT1)],
            ["s_max_u32 s%d, s%d, 1" % (sT1, sRA), "s_sub_u32 s%d, s%d, 1" % (sT1, sT1), "s_lshl_b32 s%d, s%d, 13" % (sT1, sT1), "s_add_u32 s%d, s%d, s%d" % (sA1, sT0, sT1)]]
    bump = ["s_add_u32 s%d, s%d, %d" % (sA0, sA0, 4 * PH), "s_add_u32 s%d, s%d, %d" % (sA1, sA1, 4 * PH)]
    ALD += [ld(ar(AQ, 4), sA0, 0), ld(ar(AQ + 4, 4), sA0, 1024) + bump, ld(ar(AKC, 4), sA0, 0), ld(ar(AKC + 4, 4), sA0, 1024), ld(ar(AKP, 4), sA1, 0), ld(ar(AKP + 4, 4), sA1, 1024) + bump,
            ld(ar(AV, 4), sA1, 1024), ld(ar(AV + 4, 4), sA0, 0), ld(ar(AV + 8, 4), sA0, 1024)]
    a(lT2b + ":")
    mask(S[0], 4, 0)
    step(0, 1, 2, 0, 0, 2, extra_vm=ALD)
    a("s_branch %s" % lEn)
    a(lT16 + ":")
    mask(S[0], 4, 0)
    step(0, 2, 2, 0, 0, 2, extra_vm=ALD)
    a(lEn + ":")
    def fin(rb):
        l = vL[rb]; g = (vGL, vGS)[rb]; blk = (sQL, sQS)[rb]
        G = ["v_mov_b32 v%d, v%d" % (vX, l), "v_sub_f32 v%d, 1.0, v%d" % (g, g), "s_mul_i32 s%d, s%d, %d" % (sT0, blk, CROW), "v_permlane32_swap_b32 v%d, v%d" % (l, vX),
             "v_add_f32 v%d, v%d, v%d" % (l, l, vX), "v_rcp_f32 v%d, v%d" % (l, l), "s_lshl_b32 s%d, s%d, 13" % (sT1, sH), "v_mul_f32 v%d, v%d, v%d" % (l, l, g),
             "s_add_u32 s%d, s%d, s%d" % (sT0, sT0, sT1), "s_add_u32 s%d, s%d, 0x%x" % (sT0, sT0, OFF_C)]
        for c in range(8):
            t = 16 + c * 8; pk = (176, 208)[rb] + c * 4
            G += ["v_accvgpr_read_b32 v%d, a%d" % (t + j, O + rb * 64 + c * 8 + j) for j in range(8)]
            G += ["v_mul_f32 v%d, v%d, v%d" % (t + j, l, t + j) for j in range(8)]
            G += ["v_cvt_pk_bf16_f32 v%d, v%d, v%d" % (pk + j, t + 2 * j, t + 2 * j + 1) for j in range(4)]
            if c == 4: G.append("s_add_u32 s%d, s%d, 4096" % (sT0, sT0))
            G.append("buffer_store_dwordx4 %s, v%d, s[%d:%d], s%d offen offset:%d" % (vr(pk, 4), vK, SV, SV + 3, sT0, (c % 4) * 1024))
        return G
    WP = []
    if WPF:
        mode, nins = WPF
        WP.append(["s_lshr_b32 s%d, s2, 3" % sA0, "s_lshl_b32 s%d, s%d, 2" % (sA0, sA0), "s_add_u32 s%d, s%d, s%d" % (sA0, sA0, sWV), "v_lshlrev_b32 v15, 7, v0"])
        if mode == 0:
            WP.append(["s_and_b32 s%d, s%d, 7" % (sA1, sA0), "s_mul_i32 s%d, s%d, %d" % (sA1, sA1, WROW), "s_lshr_b32 s%d, s%d, 3" % (sA0, sA0), "s_lshl_b32 s%d, s%d, 13" % (sA0, sA0)])
            stp = 16 * 8192
        else:
            WP.append(["s_and_b32 s%d, s2, 1" % sT2, "s_lshl_b32 s%d, s%d, 2" % (sT2, sT2), "s_and_b32 s%d, s%d, 3" % (sA1, sA0), "s_add_u32 s%d, s%d, s%d" % (sA1, sA1, sT2)])
            WP.append(["s_mul_i32 s%d, s%d, %d" % (sA1, sA1, WROW), "s_lshr_b32 s%d, s%d, 2" % (sA0, sA0), "s_lshl_b32 s%d, s%d, 13" % (sA0, sA0)])
            stp = 32 * 8192
        WP.append(["s_add_u32 s%d, s%d, s%d" % (sA0, sA0, sA1), "s_add_u32 s%d, s%d, 0x%x" % (sA0, sA0, OFF_W)])
        for j in range(nins):
            WP.append(["buffer_load_dword v255, v15, s[%d:%d], s%d offen" % (SV, SV + 3, sA0), "s_add_u32 s%d, s%d, %d" % (sA0, sA0, stp)])
    step(1, 2, 0, 0, 0, 0, pre_out=False, extra_valu=fin(1), extra_vm=WP)
    st_("s17")
    BC, BP = 80, 96
    a("s_cmp_eq_u32 s%d, 0\ns_cselect_b32 s%d, 64, 32\nv_add_u32 v11, s%d, v%d" % (sRA, sT2, sT2, vU))
    items = [(BC + r, vU, 8 * (r // 4) + r % 4) for r in range(16)] + [(BP + r, 11, 8 * (r // 4) + r % 4) for r in range(8, 16)]
    for j in range(0, 24, 3):
        for q in range(3):
            d, u, key = items[j + q]
            a("v_subrev_u32 v%d, %d, v%d\nv_and_b32 v%d, -15, v%d\nv_cmp_eq_u32 s[%d:%d], 0, v%d" % (12 + q, key, u, 12 + q, 12 + q, ms[q], ms[q] + 1, 12 + q))
        for q in range(3): a("v_cndmask_b32 v%d, v%d, 0, s[%d:%d]" % (items[j + q][0], vNEG, ms[q], ms[q] + 1))
    for r in range(8): a("v_mov_b32 v%d, v%d" % (BP + r, vNEG))
    a("v_and_b32 v10, 1, v0\nv_lshlrev_b32 v10, 4, v10\nv_mov_b32 v11, 0xffff\nv_lshlrev_b32 v%d, v10, v11" % vPM)
    SC, SP = (112, 128), (144, 160)
    for e in range(2):
        a("%s %s, %s, %s, %s" % (MF32, vr(SC[e], 16), ar(AKC + 4 * e, 4), ar(AQ + 4 * e, 4), vr(BC, 16)))
        a("%s %s, %s, %s, %s" % (MF32, vr(SP[e], 16), ar(AKP + 4 * e, 4), ar(AQ + 4 * e, 4), vr(BP, 16)))
    for x in fin(0): a(x)
    TA = (16, 28); PA = (40, 52); MX = (10, 12)
    for e in range(2):
        for j in range(4): a("v_max_f32 v%d, v%d, v%d" % (TA[e] + j, SP[e] + 8 + 2 * j, SP[e] + 9 + 2 * j))
        for j in range(8): a("v_max_f32 v%d, v%d, v%d" % (TA[e] + 4 + j, SC[e] + 2 * j, SC[e] + 2 * j + 1))
    for e in range(2):
        t = TA[e]; m = MX[e]
        a("v_max3_f32 v%d, v%d, v%d, v%d" % (m, t, t + 1, t + 2))
        for j in range(3, 11, 2): a("v_max3_f32 v%d, v%d, v%d, v%d" % (m, m, t + j, t + j + 1))
        a("v_max_f32 v%d, v%d, v%d\nv_mov_b32 v%d, v%d" % (m, m, t + 11, m + 1, m))
    a("s_nop 1")
    for e in range(2): a("v_permlane32_swap_b32 v%d, v%d" % (MX[e], MX[e] + 1))
    for e in range(2): a("v_max_f32 v%d, v%d, v%d" % (MX[e], MX[e], MX[e] + 1))
    for e in range(2):
        for j in range(12): a("v_sub_f32 v%d, v%d, v%d" % (TA[e] + j, TA[e] + j, MX[e]))
        for j in range(12): a("v_exp_f32 v%d, v%d" % (TA[e] + j, TA[e] + j))
    for e in range(2):
        for j in range(12): a("v_cvt_pk_bf16_f32 v%d, v%d, v%d" % (PA[e] + j, TA[e] + j, TA[e] + j))
        for j in range(12): a("v_and_b32 v%d, v%d, v%d" % (PA[e] + j, vPM, PA[e] + j))
    for e in range(2):
        a("v_add_f32 v%d, v%d, v%d" % (MX[e], TA[e], TA[e] + 1))
        for j in range(2, 12): a("v_add_f32 v%d, v%d, v%d" % (MX[e], MX[e], TA[e] + j))
        a("v_mov_b32 v%d, v%d" % (MX[e] + 1, MX[e]))
        for g in range(3):
            a("%s %s, %s, %s, %s" % (MF32, vr(SC[e], 16), ar(AV + 4 * g, 4), vr(PA[e] + 4 * g, 4), "0" if g == 0 else vr(SC[e], 16)))
    for e in range(2): a("v_permlane32_swap_b32 v%d, v%d" % (MX[e], MX[e] + 1))
    for e in range(2): a("v_add_f32 v%d, v%d, v%d" % (MX[e], MX[e], MX[e] + 1))
    for e in range(2): a("v_rcp_f32 v%d, v%d" % (MX[e], MX[e]))
    a("s_nop 0")
    for e in range(2): a("v_mul_f32 v%d, v%d, v%d" % (MX[e], MX[e], vGA))
    a("s_mul_i32 s%d, s%d, %d\ns_lshl_b32 s%d, s%d, 11\ns_add_u32 s%d, s%d, s%d\ns_add_u32 s%d, s%d, 0x%x" % (sT0, sRA, CROW, sT1, sHP, sT0, sT0, sT1, sT0, sT0, OFF_C + 256 * 1024))
    a("s_nop 1")
    for e in range(2):
        src = SC[e] + 8 * e
        for j in range(8): a("v_mul_f32 v%d, v%d, v%d" % (src + j, MX[e], src + j))
        for j in range(4): a("v_cvt_pk_bf16_f32 v%d, v%d, v%d" % (PA[e] + j, src + 2 * j, src + 2 * j + 1))
        a("buffer_store_dwordx4 %s, v%d, s[%d:%d], s%d offen offset:%d" % (vr(PA[e], 4), vK, SV, SV + 3, sT0, e * 1024))
    T.dump(SO, sWV, 4)
    a(done + ":\ns_endpgm")
    a(lRare + ":")
    for (ls, lb, kind) in spins:
        lp = a.label("sp")
        a(ls + ":\ns_mov_b32 s%d, 0x40000\n%s:" % (sT2, lp))
        a("s_sleep 8\n" + poll_load(kind) + "\ns_waitcnt vmcnt(0)\n%s\ns_cbranch_vccz %s" % (poll_cmp(kind), lb))
        a("s_sub_u32 s%d, s%d, 1\ns_cmp_lg_u32 s%d, 0\ns_cbranch_scc1 %s\ns_branch %s" % (sT2, sT2, sT2, lp, lb))
    for (ls, lb) in rels:
        a("%s:\nbuffer_wbl2 sc1\ns_waitcnt vmcnt(0)\ns_branch %s" % (ls, lb))
    sRET = 44
    for (p, sm, qk), (lr, users) in rare.items():
        for rid, (lj, lb) in enumerate(users):
            a("%s:\ns_mov_b32 s%d, %d\ns_branch %s" % (lj, sRET, rid, lr))
        a(lr + ":")
        a("s_nop 7\ns_nop 7")
        Sc, Sn = S[p], S[1 - p]
        for rb in range(2 if sm == 1 else 1):
            cur = [Sc + rb * 32 + j for j in range(32)] if sm == 1 else [Sc + j for j in range(64)]
            d, f = vX, vX + 2
            rowmax(d, cur)
            a("v_max_f32 v%d, 0, v%d\nv_exp_f32 v%d, -v%d" % (d, d, f, d))
            for r in cur: a("v_sub_f32 v%d, v%d, v%d" % (r, r, d))
            for j in range(16): a("v_sub_f32 v%d, v%d, v%d" % (NM + rb * 16 + j, NM + rb * 16 + j, d))
            nx = []
            if qk == 1: nx = [Sn + rb * 32 + j for j in range(32)]
            elif qk == 2 and rb == 0: nx = [Sn + j for j in range(64)]
            for r in nx: a("v_sub_f32 v%d, v%d, v%d" % (r, r, d))
            a("v_mul_f32 v%d, v%d, v%d" % (vL[rb], vL[rb], f))
            for j in range(0, 64, 4):
                for q in range(4): a("v_accvgpr_read_b32 v%d, a%d" % (TM + q, O + rb * 64 + j + q))
                for q in range(4): a("v_mul_f32 v%d, v%d, v%d" % (TM + q, TM + q, f))
                for q in range(4): a("v_accvgpr_write_b32 a%d, v%d" % (O + rb * 64 + j + q, TM + q))
        for c, x in sm_list(p, sm): a(x)
        for rid, (lj, lb) in enumerate(users):
            if rid < len(users) - 1: a("s_cmp_eq_u32 s%d, %d\ns_cbranch_scc1 %s" % (sRET, rid, lb))
            else: a("s_branch %s" % lb)
    a.add_kernel(name, 512, 100, 256)
    a.launch(name, 256, 256, 163840)
```

```python
from gen_common import *

def gen_p4(a, name="p3_kernel", ts=False, NST=5, AHEAD=3, SLP=8, WGF=1, PK=1, XOFF=OFF_X, MAP=0, XST="sc1", XLD="sc1"):
    a.begin_kernel(name)
    T = TS(a, ts, 2)
    done = a.label("p4done")
    SC_, SO = 12, 24
    sWV, sRB, sCB, sQ, sT0, sT1, sAO, sWO, sLM, sTL, sXO, sFL, sT2 = 28, 29, 30, 31, 32, 33, 34, 35, 36, 37, 38, 39, 40
    vL16, vA, vW = 1, (2, 3), (4, 5)
    ACC = 16; FR = 80
    NS = 18
    a("s_cmp_ge_u32 s2, 256\ns_cbranch_scc1 %s" % done)
    T.stamp(0)
    a("s_load_dwordx2 s[4:5], s[0:1], 96\ns_load_dwordx2 s[10:11], s[0:1], 80")
    a("v_lshrrev_b32 v10, 6, v0\nv_and_b32 v0, 63, v0\nv_readfirstlane_b32 s%d, v10" % sWV)
    if MAP == 0:
        a("s_lshr_b32 s%d, s2, 1\ns_and_b32 s%d, s%d, 3" % (sQ, sQ, sQ))
        a("s_and_b32 s%d, s2, 1\ns_lshl_b32 s%d, s%d, 3\ns_lshr_b32 s%d, s2, 5\ns_add_u32 s%d, s%d, s%d" % (sRB, sRB, sRB, sT0, sRB, sRB, sT0))
        a("s_lshr_b32 s%d, s2, 3\ns_and_b32 s%d, s%d, 3" % (sCB, sCB, sCB))
    elif MAP == 1:
        a("s_lshr_b32 s%d, s2, 3\ns_and_b32 s%d, s%d, 3" % (sQ, sQ, sQ))
        a("s_and_b32 s%d, s2, 7\ns_lshl_b32 s%d, s%d, 1\ns_lshr_b32 s%d, s2, 7\ns_add_u32 s%d, s%d, s%d" % (sRB, sRB, sRB, sT0, sRB, sRB, sT0))
        a("s_lshr_b32 s%d, s2, 5\ns_and_b32 s%d, s%d, 3" % (sCB, sCB, sCB))
    else:
        a("s_lshr_b32 s%d, s2, 3\ns_and_b32 s%d, s%d, 3" % (sQ, sQ, sQ))
        a("s_and_b32 s%d, s2, 6\ns_lshl_b32 s%d, s%d, 1\ns_lshr_b32 s%d, s2, 6\ns_add_u32 s%d, s%d, s%d" % (sRB, sRB, sRB, sT0, sRB, sRB, sT0))
        a("s_lshr_b32 s%d, s2, 5\ns_and_b32 s%d, s%d, 1\ns_and_b32 s%d, s2, 1\ns_lshl_b32 s%d, s%d, 1\ns_add_u32 s%d, s%d, s%d" % (sCB, sCB, sCB, sT0, sT0, sT0, sCB, sCB, sT0))
    a("v_lshlrev_b32 v%d, 4, v0" % vL16)
    a("s_lshl_b32 s%d, s%d, 2\ns_add_u32 s%d, s%d, s%d\ns_mul_i32 s%d, s%d, %d\ns_mul_i32 s%d, s%d, %d\ns_add_u32 s%d, s%d, s%d\ns_add_u32 s%d, s%d, 0x%x" % (sT0, sRB, sT0, sT0, sWV, sAO, sT0, CROW, sT1, sQ, 72 * 1024, sAO, sAO, sT1, sAO, sAO, OFF_C))
    a("s_lshr_b32 s%d, s%d, 1\ns_lshl_b32 s%d, s%d, 1\ns_add_u32 s%d, s%d, s%d\ns_mul_i32 s%d, s%d, %d\ns_lshl_b32 s%d, s%d, 1\ns_add_u32 s%d, s%d, s%d" % (sT0, sWV, sWO, sCB, sT0, sT0, sWO, sWO, sT0, WROW, sT1, sT1, sWO, sWO, sT1))
    a("s_and_b32 s%d, s%d, 1\ns_lshl_b32 s%d, s%d, 12\ns_add_u32 s%d, s%d, s%d\ns_add_u32 s%d, s%d, 0x%x" % (sT0, sWV, sT0, sT0, sWO, sWO, sT0, sWO, sWO, OFF_W))
    a("s_lshl_b32 s%d, s%d, 12" % (sLM, sWV))
    a("s_waitcnt lgkmcnt(0)")
    srd(a, SC_, 4, WS_SIZE)
    def dma(s):
        base = (s % NST) * 32768
        G = [["s_add_u32 m0, s%d, %d" % (sLM, base), "s_nop 0"]]
        G += [["buffer_load_dwordx4 v%d, s[%d:%d], s%d offen offset:%d lds" % (vL16, SC_, SC_ + 3, sAO, o * 1024)] for o in range(4)]
        G += [["s_add_u32 m0, s%d, %d" % (sLM, base + 16384), "s_add_u32 s%d, s%d, 4096" % (sAO, sAO)]]
        G += [["buffer_load_dwordx4 v%d, s[%d:%d], s%d offen offset:%d lds" % (vL16, SC_, SC_ + 3, sWO, o * 1024)] for o in range(4)]
        G += [["s_add_u32 s%d, s%d, 8192" % (sWO, sWO)]]
        return G
    for s in range(AHEAD):
        for g in dma(s):
            for x in g: a(x)
    srd(a, SO, 10, 2048 * 1024)
    a("s_and_b32 s%d, s%d, 1\ns_lshl_b32 s%d, s%d, 1\ns_and_b32 s%d, s%d, 1\ns_add_u32 s%d, s%d, s%d\ns_lshl_b32 s%d, s%d, 12" % (sT0, sWV, sT0, sT0, sT1, sQ, sT2, sT0, sT1, sT0, sT2))
    a("v_add_u32 v%d, s%d, v%d\nv_xor_b32 v%d, 4096, v%d" % (vA[0], sT0, vL16, vA[1], vA[0]))
    a("s_lshr_b32 s%d, s%d, 1\ns_lshl_b32 s%d, s%d, 13\ns_lshr_b32 s%d, s%d, 1\ns_lshl_b32 s%d, s%d, 10\ns_add_u32 s%d, s%d, s%d\ns_add_u32 s%d, s%d, 16384" % (sT0, sWV, sT0, sT0, sT1, sQ, sT1, sT1, sT0, sT0, sT1, sT0, sT0))
    a("v_add_u32 v%d, s%d, v%d\nv_xor_b32 v%d, 1024, v%d" % (vW[0], sT0, vL16, vW[1], vW[0]))
    a("v_and_b32 v6, 31, v0\nv_lshlrev_b32 v6, 10, v6\nv_lshrrev_b32 v7, 5, v0\nv_lshl_add_u32 v6, v7, 4, v6")
    sOUT = 41
    a("s_lshl_b32 s%d, s%d, 2\ns_add_u32 s%d, s%d, s%d\ns_lshl_b32 s%d, s%d, 15" % (sT0, sRB, sT0, sT0, sT2, sOUT, sT0))
    a("s_lshl_b32 s%d, s%d, 2\ns_and_b32 s%d, s%d, 2\ns_add_u32 s%d, s%d, s%d\ns_lshr_b32 s%d, s%d, 1\ns_add_u32 s%d, s%d, s%d\ns_lshl_b32 s%d, s%d, 6\ns_add_u32 s%d, s%d, s%d" % (sT0, sCB, sT1, sWV, sT0, sT0, sT1, sT1, sQ, sT0, sT0, sT1, sT0, sT0, sOUT, sOUT, sT0))
    a("s_lshl_b32 s%d, s%d, 2\ns_add_u32 s%d, s%d, s%d" % (sTL, sRB, sTL, sTL, sCB))
    a("s_mul_i32 s%d, s%d, %d\ns_add_u32 s%d, s%d, s%d\ns_add_u32 s%d, s%d, 0x%x" % (sXO, sTL, 4 * 49152, sXO, sXO, sLM, sXO, sXO, XOFF))
    a("s_lshl_b32 s%d, s%d, 2\ns_add_u32 s%d, s%d, s%d\ns_lshl_b32 s%d, s%d, 7\ns_add_u32 s%d, s%d, 0x%x" % (sFL, sTL, sFL, sFL, sWV, sFL, sFL, sFL, sFL, OFF_FL))
    cur = [0]
    def reads(k):
        s, ks = k // 4, k % 4
        base = (s % NST) * 32768
        L = []
        win = base // 65536
        if win != cur[0]:
            d = (win - cur[0]) * 65536
            for r in vA + vW: L.append(("v_add_u32 v%d, 0x%x, v%d" % (r, d, r)) if d > 0 else ("v_subrev_u32 v%d, 0x%x, v%d" % (r, -d, r)))
            cur[0] = win
        off = base % 65536
        F = FR + 16 * (k % 4)
        L += ["ds_read_b128 %s, v%d offset:%d" % (vr(F + 8, 4), vW[0], off + ks * 2048), "ds_read_b128 %s, v%d offset:%d" % (vr(F, 4), vA[0], off + ks * 1024),
              "ds_read_b128 %s, v%d offset:%d" % (vr(F + 4, 4), vA[1], off + ks * 1024), "ds_read_b128 %s, v%d offset:%d" % (vr(F + 12, 4), vW[1], off + ks * 2048)]
        return L
    a("s_waitcnt vmcnt(%d)\ns_barrier" % (8 * (AHEAD - 1)))
    T.stamp(1)
    for x in reads(0) + reads(1): a(x)
    pend = []
    NK = NS * 4
    for k in range(NK):
        s, ks = k // 4, k % 4
        if ks == 2 and s + 1 < NS:
            left = min(AHEAD - 1, NS - 1 - s) - 1
            a("s_waitcnt vmcnt(%d) lgkmcnt(4)\ns_barrier" % (8 * max(left, 0)))
            pend = dma(s + AHEAD) if s + AHEAD < NS else []
        else:
            a("s_waitcnt lgkmcnt(%d)" % (4 if k + 1 < NK else 0))
        F = FR + 16 * (k % 4)
        order = (0, 1, 2, 3) if k < NK - 1 else (1, 2, 3, 0)
        R = reads(k + 2) if k + 2 < NK else []
        take = pend[:4]; pend = pend[4:]
        for n, b in enumerate(order):
            rb, cb = b & 1, b >> 1
            acc = vr(ACC + b * 16, 16)
            a("%s %s, %s, %s, %s" % (MF32, acc, vr(F + 8 + 4 * cb, 4), vr(F + 4 * rb, 4), "0" if k == 0 else acc))
            lo, hi = (len(R) * n) // 4, (len(R) * (n + 1)) // 4
            for x in R[lo:hi]: a(x)
            if n < len(take):
                for x in take[n]: a(x)
    T.stamp(2)
    a("v_and_b32 v8, 3, v0\nv_lshlrev_b32 v8, 2, v8\nv_lshlrev_b32 v9, 28, v0\nv_mov_b32 v10, 1\ns_lshl_b32 s%d, s%d, 2\ns_add_u32 s%d, s%d, s%d" % (sT2, sQ, sT2, sT2, sFL))
    a("v_cmp_eq_u32 vcc, 0, v0\nv_mov_b32 v11, 0x20000000\ns_nop 0\nv_cndmask_b32 v9, v11, 0, vcc\ns_nop 3")
    NC = 2 if PK else 4
    for j in range(1, 4):
        a("s_xor_b32 s%d, s%d, %d\ns_mul_i32 s%d, s%d, 49152\ns_add_u32 s%d, s%d, s%d\ns_add_u32 s%d, s%d, %d" % (sT0, sQ, j, sT0, sT0, sT0, sT0, sXO, sT0, sT0, (j - 1) * 16384))
        src = ACC + j * 16
        if PK:
            for r in range(8): a("v_cvt_pk_bf16_f32 v%d, v%d, v%d" % (FR + 8 * j + r, src + 2 * r, src + 2 * r + 1))
            src = FR + 8 * j
        for c in range(NC):
            a("buffer_store_dwordx4 %s, v%d, s[%d:%d], s%d offen offset:%d %s" % (vr(src + 4 * c, 4), vL16, SC_, SC_ + 3, sT0, c * 1024, XST))
    a("s_waitcnt vmcnt(0)")
    T.stamp(3)
    lp, lo_ = a.label("xpoll"), a.label("xok")
    if WGF: a("s_barrier\ns_cmp_lg_u32 s%d, 0\ns_cbranch_scc1 %s" % (sWV, lo_))
    a("buffer_store_dword v10, v9, s[%d:%d], s%d offen %s" % (SC_, SC_ + 3, sT2, XST))
    a("s_mov_b32 s%d, 0x80000\n%s:" % (sT1, lp))
    if SLP: a("s_sleep %d" % SLP)
    a("buffer_load_dword v12, v8, s[%d:%d], s%d offen sc1\ns_waitcnt vmcnt(0)\nv_cmp_ne_u32 vcc, 1, v12\ns_cbranch_vccz %s" % (SC_, SC_ + 3, sFL, lo_))
    a("s_sub_u32 s%d, s%d, 1\ns_cmp_lg_u32 s%d, 0\ns_cbranch_scc1 %s\n%s:" % (sT1, sT1, sT1, lp, lo_))
    if WGF: a("s_barrier")
    T.stamp(4)
    a("s_mul_i32 s%d, s%d, 49152\ns_add_u32 s%d, s%d, s%d" % (sT0, sQ, sT0, sT0, sXO))
    for j in range(1, 4):
        for c in range(NC):
            a("buffer_load_dwordx4 %s, v%d, s[%d:%d], s%d offen offset:%d %s" % (vr(ACC + j * 16 + 4 * c, 4), vL16, SC_, SC_ + 3, sT0, c * 1024, XLD))
        a("s_add_u32 s%d, s%d, 16384" % (sT0, sT0))
    for j in range(1, 4):
        a("s_waitcnt vmcnt(%d)" % (NC * (3 - j)))
        if PK:
            for r in range(8):
                t = ACC + j * 16 + r
                a("v_lshlrev_b32 v12, 16, v%d\nv_and_b32 v13, 0xffff0000, v%d\nv_add_f32 v%d, v%d, v12\nv_add_f32 v%d, v%d, v13" % (t, t, ACC + 2 * r, ACC + 2 * r, ACC + 2 * r + 1, ACC + 2 * r + 1))
        else:
            for r in range(16): a("v_add_f32 v%d, v%d, v%d" % (ACC + r, ACC + r, ACC + j * 16 + r))
    for r in range(8): a("v_cvt_pk_bf16_f32 v%d, v%d, v%d" % (FR + r, ACC + 2 * r, ACC + 2 * r + 1))
    T.stamp(5)
    a("s_nop 1")
    for pr in range(2):
        a("v_permlane32_swap_b32 v%d, v%d\nv_permlane32_swap_b32 v%d, v%d" % (FR + 4 * pr, FR + 4 * pr + 2, FR + 4 * pr + 1, FR + 4 * pr + 3))
    for pr in range(2):
        a("buffer_store_dwordx4 %s, v6, s[%d:%d], s%d offen offset:%d" % (vr(FR + 4 * pr, 4), SO, SO + 3, sOUT, 32 * pr))
    T.dump(SC_, sWV, 4)
    a(done + ":\ns_endpgm")
    a.add_kernel(name, 144, 100 if ts else 48, 144)
    a.launch(name, 256, 256, 32768 * NST)
```

```python
from gen_common import *

pX, pWQKV, pWO0, pC, pWQ, pWUK, pWUV, pBWO, pGATE, pDBG, pWS = 36, 38, 40, 44, 46, 48, 50, 52, 54, 58, 60
pWO = 58
NEG = "0xff800000"
THRESH = fbits(2.0 ** 48)
WSL = (98304, 131072)
LDS_G = WSL[0] + 24576
def aslot(g): return ((g + 2) % 3) * 32768

def emit(a, M, streams):
    n = len(M)
    fill = [[] for _ in range(n)]
    for (G, l, h) in streams:
        if not G: continue
        for g, m in zip(G, spread(len(G), l, min(h, n))):
            fill[m] += g if isinstance(g, list) else [g]
    for m in range(n):
        a(M[m])
        for x in fill[m]: a(x)
def isvm(x): return x.startswith("buffer_") or x.startswith("global_")

def gen_fused(a, name="p1_kernel", ts=False, NSK=30, WSP=16, PF=1, PKMUL=0, next_kernel=None, PD=8, TS2=0, TS3=0, WP=2, NEWP=1, WPF=None, LNT="", NTG=8, LATEAT=0, STAMPS=("start","setup","bar0","q","attn","s0","s17"), XSL=3, XL2=0, ST=""):
    a.begin_kernel(name)
    T = TS(a, ts, 0)
    def st_(nm):
        if nm in STAMPS: T.stamp(STAMPS.index(nm))
    done = a.label("fdone")
    lAttn, lRare = a.label("attn"), a.label("rarecode")
    sWV = 3
    SA, SW, SX, SO, SD = 4, 8, 12, 16, 40
    sH, sI, sT0, sT1, sT2 = 20, 21, 22, 23, 24
    sAS, sAS2, sWS, sXS, sAM, sWM, sXM, sCNT, sOK, sDS, sSC = 25, 26, 27, 28, 29, 30, 31, 32, 33, 34, 35
    sQL, sQS, sU, sOA, sAD, sWD, sOJ, sVD, sFA, sGR = 92, 93, 94, 95, 96, 97, 56, 57, 63, 99
    sKO, sVO, sW4, sW8, sTH, sT = 48, 49, 50, 51, 54, 55
    vL16, vAO, vWO, vXO = 1, (2, 3), 4, 5
    vAR, vWR, vXR = (6, 7, 8, 9), (10, 11, 12, 13), (14, 15)
    FS = (16, 48); TT, PK = (80, 80), 96
    vFO, vONE = 88, 89
    QA = 128
    t2 = [0]
    def bar(waitstr):
        if TS2:
            n = t2[0]; t2[0] += 1
            if n > 0: a("v_writelane_b32 v91, s64, %d\nv_writelane_b32 v91, s66, %d" % (2 * n - 2, 2 * n - 1))
            a("s_memtime s[64:65]")
        a(waitstr + "\ns_barrier")
        if TS2: a("s_memtime s[66:67]")
    a("s_cmp_ge_u32 s2, 256\ns_cbranch_scc1 %s" % done)
    st_("start")
    a("s_load_dwordx16 s[36:51], s[0:1], 0\ns_load_dwordx8 s[52:59], s[0:1], 64\ns_load_dwordx2 s[60:61], s[0:1], 96")
    a("v_lshrrev_b32 v16, 6, v0\nv_and_b32 v0, 63, v0\nv_readfirstlane_b32 s%d, v16" % sWV)
    a("s_and_b32 s%d, s2, 7\ns_lshl_b32 s%d, s%d, 2\ns_lshr_b32 s%d, s2, 3\ns_and_b32 s%d, s%d, 3\ns_add_u32 s%d, s%d, s%d" % (sH, sH, sH, sT0, sT0, sT0, sH, sH, sT0))
    a("s_lshr_b32 s%d, s2, 5" % sI)
    a("v_lshlrev_b32 v%d, 4, v0" % vL16)
    a("v_lshrrev_b32 v16, 3, v0\nv_lshrrev_b32 v17, 4, v0\nv_and_b32 v18, 7, v0")
    for n in range(2):
        a("v_add_u32 v19, %d, v17\nv_xor_b32 v19, v19, v18\nv_lshlrev_b32 v19, 4, v19\nv_lshl_add_u32 v%d, v16, 10, v19" % (4 * n, vAO[n]))
    a("v_and_b32 v19, 15, v0\nv_lshlrev_b32 v20, 2, v17\nv_xor_b32 v19, v19, v20\nv_lshlrev_b32 v19, 4, v19\nv_lshl_add_u32 v%d, v17, 13, v19" % vWO)
    a("s_sub_u32 s%d, 15, s%d\ns_bitcmp1_b32 s%d, 0\ns_cselect_b32 s%d, s%d, s%d\ns_lshl_b32 s%d, s%d, 1\ns_lshr_b32 s%d, s%d, 1\ns_add_u32 s%d, s%d, s%d" % (sT0, sI, sWV, sT0, sT0, sI, sT0, sT0, sT1, sWV, sT0, sT0, sT1))
    a("s_lshl_b32 s%d, s%d, 16\ns_add_u32 s%d, s%d, 32768" % (sAS, sT0, sAS2, sAS))
    a("s_lshl_b32 s%d, s%d, 13\ns_mov_b32 s%d, s%d" % (sAM, sWV, sWM, sAM))
    a("s_and_b32 s%d, s%d, 1\ns_lshl_b32 s%d, s%d, 18\ns_lshl_b32 s%d, s%d, 8\ns_add_u32 s%d, s%d, s%d" % (sT0, sWV, sT0, sT0, sWS, sH, sWS, sWS, sT0))
    a("s_and_b32 s%d, s2, 31" % sU)
    a("s_waitcnt lgkmcnt(0)")
    srd(a, SA, pC, 0x200000)
    a("s_cmp_lt_u32 s%d, 2\ns_cselect_b32 s%d, s%d, s%d\ns_cselect_b32 s%d, s%d, s%d\ns_mov_b32 s%d, 0x400000\ns_mov_b32 s%d, 0x20000" % (sWV, SW, pWUK, pWUV, SW + 1, pWUK + 1, pWUV + 1, SW + 2, SW + 3))
    def dma_act(g):
        G = []
        for n in range(8):
            G.append(["s_add_u32 m0, s%d, %d" % (sAM, aslot(g) + n * 1024), "s_add_u32 s%d, s%d, %d" % (sDS, sAS if n < 4 else sAS2, (n % 4) * 8192 + (g % 8) * 128),
                      "buffer_load_dwordx4 v%d, s[%d:%d], s%d offen %s lds" % (vAO[n % 2], SA, SA + 3, sDS, LNT if g >= NTG else "")])
        return G
    def dma_w(g, withx=True):
        G = []
        for n in range(8 if g < 8 else 4):
            G.append(["s_add_u32 m0, s%d, %d" % (sWM, WSL[g % 2] + n * 1024), "s_add_u32 s%d, s%d, %d" % (sDS, sWS, n * 32768 + (g % 8) * 0x80000),
                      "buffer_load_dwordx4 v%d, s[%d:%d], s%d offen %s lds" % (vWO, SW, SW + 3, sDS, LNT if g >= NTG else "")])
        if g >= 8 and withx:
            for n in range(2):
                G.append(["s_add_u32 m0, s%d, %d" % (sXM, WSL[g % 2] + 16384 + n * 1024), "s_add_u32 s%d, s%d, %d" % (sDS, sXS, n * 24576 + (g % 8) * 64 * 3072),
                          "buffer_load_dwordx4 v%d, s[%d:%d], s%d offen %s lds" % (vXO, SX, SX + 3, sDS, LNT)])
        return G
    for gw, ga in zip(dma_w(0), dma_act(0)):
        for x in gw + ga: a(x)
    NSL = 8
    def preg(k): return 128 + 2 * k
    def pf(k): return "global_load_dword v90, %s, off" % vr(preg(k), 2)
    def pfa(k, base, vo, so, imm=0):
        r = preg(k)
        a("s_add_u32 s%d, s%d, %d\nv_mov_b32 v%d, s%d\nv_add_u32 v%d, s%d, v%d" % (sT2, so, imm, r + 1, base + 1, r, sT2, vo))
        a("v_add_co_u32 v%d, vcc, s%d, v%d\ns_nop 1\nv_addc_co_u32 v%d, vcc, 0, v%d, vcc" % (r, base, r, r + 1, r + 1))
    def pfnone(k): a("v_mov_b32 v%d, s%d\nv_mov_b32 v%d, s%d" % (preg(k), pGATE, preg(k) + 1, pGATE + 1))
    if PF:
        l1, l3, le = a.label("pf1"), a.label("pf3"), a.label("pfe")
        a("s_cmp_eq_u32 s%d, 1\ns_cbranch_scc1 %s\ns_cmp_eq_u32 s%d, 3\ns_cbranch_scc1 %s" % (sWV, l1, sWV, l3))
        a("v_and_b32 v26, 31, v0\nv_lshlrev_b32 v26, 7, v26\ns_lshl_b32 s%d, s2, 13\ns_lshl_b32 s%d, s%d, 11\ns_add_u32 s%d, s%d, s%d" % (sT0, sT1, sWV, sT0, sT0, sT1))
        pfa(0, pC, 26, sT0, 0); a(pf(0))
        pfa(XSL, pX, 26, sT0, 0)
        used = {0, XSL}
        if XL2:
            a("s_lshr_b32 s%d, s2, 3\ns_lshl_b32 s%d, s%d, 16\ns_lshl_b32 s%d, s%d, 6\ns_add_u32 s%d, s%d, s%d\nv_lshlrev_b32 v26, 10, v0" % (sT0, sT0, sT0, sT1, sWV, sT1, sT0, sT1))
            for j in range(4):
                pfa(XL2 + j, pX, 26, sT1, 256 * j); used.add(XL2 + j)
        for k in range(NSL):
            if k not in used: pfnone(k)
        a("s_branch %s\n%s:" % (le, l1))
        a("v_lshrrev_b32 v26, 1, v0\nv_lshlrev_b32 v26, 13, v26\nv_and_b32 v27, 1, v0\nv_lshl_add_u32 v26, v27, 7, v26")
        a("s_bitcmp1_b32 s%d, 1\ns_cselect_b32 s98, s%d, s%d\ns_cselect_b32 s99, s%d, s%d" % (sI, pWUV, pWUK, pWUV + 1, pWUK + 1))
        a("s_and_b32 s%d, s%d, 1\ns_lshl_b32 s%d, s%d, 18\ns_lshl_b32 s%d, s%d, 8\ns_add_u32 s%d, s%d, s%d" % (sT0, sI, sT0, sT0, sT1, sH, sCNT, sT0, sT1))
        a("s_lshr_b32 s%d, s%d, 2\ns_lshl_b32 s%d, s%d, 19\ns_add_u32 s%d, s%d, s%d" % (sT0, sI, sT0, sT0, sT0, sT0, sCNT))
        pfa(0, 98, 26, sT0, 1 * 0x80000); a(pf(0))
        pfa(1, 98, 26, sT0, 3 * 0x80000); pfa(2, 98, 26, sT0, 5 * 0x80000); pfa(3, 98, 26, sCNT, 7 * 0x80000)
        a("s_lshl_b32 s%d, s%d, 18\ns_add_u32 s%d, s%d, s%d" % (sT0, sI, sT0, sT0, sT1))
        pfa(4, pWQ, 26, sT0, 0); pfa(6, pWQ, 26, sT0, 4 * 0x80000)
        a("s_min_u32 s%d, s%d, 23\ns_lshl_b32 s%d, s%d, 7\ns_mul_i32 s%d, s%d, %d\ns_add_u32 s%d, s%d, s%d\nv_mul_u32_u24 v26, 3072, v0" % (sT0, sU, sT0, sT0, sT1, sI, 64 * 3072, sT0, sT0, sT1))
        pfa(5, pWQKV, 26, sT0, 0); pfnone(7)
        a("s_branch %s\n%s:" % (le, l3))
        lpc = a.label("pc")
        a("s_getpc_b64 s[98:99]\n%s:" % lpc)
        a("s_lshr_b32 s%d, s2, 3\nv_lshlrev_b32 v26, 5, v0\nv_add_u32 v26, s%d, v26\nv_lshlrev_b32 v26, 7, v26\ns_mov_b32 s%d, 0" % (sT0, sT0, sT0))
        a("v_min_u32 v27, %s-%s, v26" % (lAttn, lpc))
        pfa(0, 98, 27, sT0, 0); a(pf(0))
        a("v_min_u32 v27, %s-%s, v26\ns_mov_b32 s%d, %s-%s" % (lRare, lAttn, sT0, lAttn, lpc))
        pfa(7, 98, 27, sT0, 0)
        a("v_lshlrev_b32 v26, 7, v0\ns_lshl_b32 s%d, s2, 14" % sT0)
        pfa(4, pBWO, 26, sT0, 0); pfa(5, pBWO, 26, sT0, 8192)
        a("v_and_b32 v27, 15, v0\nv_lshlrev_b32 v27, 7, v27\ns_lshl_b32 s%d, s2, 11" % sT0)
        pfa(6, pWO0, 27, sT0, 0)
        for k in (1, 2, 3): pfnone(k)
        a(le + ":")
    def pfp(p): return [[pf(p + 2)]] if (PF and p + 2 < NSL) else []
    srd(a, SO, pWS, WS_SIZE)
    a("v_and_b32 v19, 1, v17\nv_lshlrev_b32 v19, 2, v19\nv_xor_b32 v19, v19, v18\nv_lshlrev_b32 v19, 4, v19\ns_movk_i32 s%d, 3072\nv_mad_u32_u24 v%d, v16, s%d, v19" % (sT0, vXO, sT0))
    a("v_and_b32 v19, 31, v0\nv_lshrrev_b32 v20, 1, v19\nv_and_b32 v20, 7, v20\nv_lshrrev_b32 v21, 5, v0\nv_xor_b32 v20, v20, v21\nv_lshlrev_b32 v20, 4, v20\nv_lshl_add_u32 v20, v19, 7, v20")
    a("s_and_b32 s%d, s%d, 1\ns_lshl_b32 s%d, s%d, 14\ns_add_u32 s%d, s%d, %d" % (sT0, sWV, sT0, sT0, sT0, sT0, aslot(0)))
    for k in range(4): a("v_xor_b32 v%d, %d, v20\nv_add_u32 v%d, s%d, v%d" % (vAR[k], 32 * k, vAR[k], sT0, vAR[k]))
    a("v_lshrrev_b32 v19, 2, v0\nv_and_b32 v19, 3, v19\nv_lshl_add_u32 v20, v21, 3, v19")
    a("v_and_b32 v22, 1, v17\nv_lshlrev_b32 v22, 1, v22\nv_lshrrev_b32 v23, 1, v0\nv_and_b32 v23, 1, v23\nv_add_u32 v22, v22, v23\nv_and_b32 v23, 1, v0\nv_lshlrev_b32 v23, 3, v23")
    a("v_lshlrev_b32 v24, 2, v19\nv_xor_b32 v24, v24, v22\nv_lshlrev_b32 v24, 4, v24\nv_lshl_add_u32 v24, v20, 8, v24\nv_add_u32 v24, v24, v23")
    a("s_lshr_b32 s%d, s%d, 1\ns_lshl_b32 s%d, s%d, 14\ns_add_u32 s%d, s%d, %d" % (sWD, sWV, sWD, sWD, sT0, sWD, WSL[0]))
    for k in range(4): a("v_xor_b32 v%d, %d, v24\nv_add_u32 v%d, s%d, v%d" % (vWR[k], 64 * k, vWR[k], sT0, vWR[k]))
    a("v_lshrrev_b32 v24, 1, v19\nv_lshlrev_b32 v24, 2, v24\nv_xor_b32 v24, v24, v22\nv_lshlrev_b32 v24, 4, v24\nv_lshl_add_u32 v24, v20, 7, v24\nv_add_u32 v24, v24, v23")
    a("v_add_u32 v%d, %d, v24\nv_xor_b32 v%d, 64, v%d" % (vXR[0], WSL[0] + 16384, vXR[1], vXR[0]))
    a("s_lshl_b32 s%d, s%d, 2\ns_add_u32 s%d, s%d, s%d\ns_sub_u32 s%d, 60, s%d\ns_add_u32 s%d, s%d, s%d" % (sT1, sI, sQS, sT1, sWV, sQL, sT1, sQL, sQL, sWV))
    a("s_lshr_b32 s%d, s%d, 1\ns_lshl_b32 s%d, s%d, 5\ns_add_u32 s%d, s%d, s%d\ns_add_u32 s%d, s%d, 44\ns_lshl_b32 s%d, s%d, 19" % (sT0, sWV, sT0, sT0, sT0, sT0, sH, sT0, sT0, sOK, sT0))
    a("s_and_b32 s%d, s%d, 1\ns_lshl_b32 s%d, s%d, 1\ns_add_u32 s%d, s%d, s%d\ns_lshl_b32 s%d, s%d, 14\ns_add_u32 s%d, s%d, s%d" % (sT0, sWV, sT1, sI, sT0, sT0, sT1, sT0, sT0, sOK, sOK, sT0))
    a("s_lshl_b32 s%d, s%d, 16\ns_sub_u32 s%d, %d, s%d" % (sT0, sI, sOJ, 58 * 8192 + 4096, sT0))
    a("s_lshl_b32 s%d, s%d, 13\ns_and_b32 s%d, s%d, 1\ns_lshl_b32 s%d, s%d, 14\ns_sub_u32 s%d, s%d, s%d" % (sT0, sWV, sT1, sWV, sT1, sT1, sAD, sT0, sT1))
    a("s_lshl_b32 s%d, s%d, 6\nv_add_u32 v%d, s%d, v0\nv_lshlrev_b32 v%d, 12, v%d\nv_mov_b32 v%d, 1" % (sT0, sWV, vFO, sT0, vFO, vFO, vONE))
    srd(a, SX, pGATE, 1024)
    a("s_mov_b32 s98, s%d\ns_mov_b32 s99, s%d" % (pWO0, pWO0 + 1))
    srd(a, SD, pDBG, 256)
    a("s_mov_b32 s%d, s98\ns_mov_b32 s%d, s99" % (pWO, pWO + 1))
    a("s_getreg_b32 s%d, hwreg(HW_REG_XCC_ID, 0, 4)\ns_mul_i32 s%d, s%d, s%d\ns_lshl_b32 s%d, s%d, 8\ns_add_u32 s%d, s%d, s%d\ns_lshl_b32 s%d, s%d, 8\ns_add_u32 s%d, s%d, 1" % (sT0, sT1, sT0, sT0, sT1, sT1, sT1, sT1, sT0, sT1, sT1, sFA, sT1))
    a("v_mov_b32 v93, s%d\ns_lshl_b32 s%d, s%d, 3\ns_and_b32 s%d, s2, 7\ns_lshl_b32 s%d, s%d, 2\ns_lshl_b32 s%d, s%d, 2" % (sFA, sFA, sFA, sGR, sGR, sGR, sCNT, sH))
    a("v_and_b32 v94, 3, v0\nv_add_lshl_u32 v94, v94, s%d, 2\ns_lshl_b32 s%d, s%d, 12\nv_add_u32 v94, s%d, v94\nv_mov_b32 v92, s%d" % (sGR, sT0, sWV, sT0, sT0))
    a("buffer_atomic_add v93, v%d, s[%d:%d], s%d offen offset:128 sc1" % (vFO, SD, SD + 3, sCNT))

    def wofs(g): return (g % 2) * 32768
    def rd_kv(g, ks):
        F = FS[ks % 2]
        L = ["ds_read_b128 %s, v%d offset:%d" % (vr(F + 4 * j, 4), vAR[ks], j * 4096) for j in range(4)]
        W = ["ds_read_b64_tr_b16 %s, v%d offset:%d" % (vr(F + 16 + 4 * cb + 2 * rd, 2), vWR[cb], wofs(g) + ks * 4096 + rd * 1024) for cb in range(4) for rd in range(2)]
        return W[:2] + L + W[2:] + [xa(g, ks)]
    def rd_q(g, ks, var):
        F = FS[ks % 2]
        L = ["ds_read_b128 %s, v%d offset:%d" % (vr(F + 4 * j, 4), vAR[ks], j * 4096) for j in range(2)]
        L += ["ds_read_b64_tr_b16 %s, v%d offset:%d" % (vr(F + 16 + 4 * cb + 2 * rd, 2), vWR[cb], wofs(g) + ks * 4096 + rd * 1024) for cb in range(4) for rd in range(2)]
        if g < 15: L.append(xa(g, ks))
        if var in "NS":
            X = ["ds_read_b64_tr_b16 %s, v%d offset:%d" % (vr(F + 8 + 4 * cb + 2 * rd, 2), vXR[cb], wofs(g) + ks * 2048 + rd * 512) for cb in range(2) for rd in range(2)]
        else:
            X = ["ds_read_b128 %s, v%d offset:%d" % (vr(F + 8, 4), vXR[0], ((g - 8) * 4 + ks) * 32)]
        return L, X
    def xa(g, ks):
        d = aslot(g + 1) - aslot(g)
        return ("v_add_u32 v%d, 0x%x, v%d" % (vAR[ks], d, vAR[ks])) if d > 0 else ("v_subrev_u32 v%d, 0x%x, v%d" % (vAR[ks], -d, vAR[ks]))
    def mf_kv(ks, isV, first=False, rbmajor=False):
        F = FS[ks % 2]; M = []
        order = [(rb, cb) for rb in range(4) for cb in range(4)] if rbmajor else [(rb, cb) for cb in range(4) for rb in range(4)]
        for rb, cb in order:
            acc = ar((rb * 4 + cb) * 16, 16); x = vr(F + 4 * rb, 4); w = vr(F + 16 + 4 * cb, 4)
            M.append("%s %s, %s, %s, %s" % (MF32, acc, x if isV else w, w if isV else x, "0" if first else acc))
        return M
    def mf_q(ks, var, first):
        F = FS[ks % 2]; M = []
        for cb in range(4):
            for rb in range(2):
                acc = vr(QA + (rb * 4 + cb) * 16, 16)
                M.append("%s %s, %s, %s, %s" % (MF32, acc, vr(F + 16 + 4 * cb, 4), vr(F + 4 * rb, 4), "0" if first else acc))
        for cb in range(2 if var in "NS" else 1):
            for rb in range(2):
                acc = ar((cb * 2 + rb) * 16, 16); x = vr(F + 4 * rb, 4); w = vr(F + 8 + 4 * cb, 4)
                M.append("%s %s, %s, %s, %s" % (MF32, acc, x if var == "S" else w, w if var == "S" else x, "0" if first else acc))
        return M
    cnt = [0]
    def pack(areg, pk, scale=None):
        t = TT[0]
        G = ["v_accvgpr_read_b32 v%d, a%d" % (t + j, areg + j) for j in range(8)]
        if scale is not None: G += ["v_mul_f32 v%d, s%d, v%d" % (t + j, scale, t + j) for j in range(8)]
        G += ["v_cvt_pk_bf16_f32 v%d, v%d, v%d" % (pk + j, t + 2 * j, t + 2 * j + 1) for j in range(4)]
        return G
    def store(pk, so, off, fl=""): return "buffer_store_dwordx4 %s, v%d, s[%d:%d], s%d offen offset:%d %s" % (vr(pk, 4), vL16, SO, SO + 3, so, off, fl)
    def drain(areg, so, off, scale=None):
        pk = PK + 4 * (cnt[0] % 8); cnt[0] += 1
        return pack(areg, pk, scale) + [store(pk, so, off)]
    def kv_pack(j): return pack(j * 8, PK + 4 * (j % 8))
    def kv_store(j):
        G = [store(PK + 4 * (j % 8), sOK, (j % 4) * 1024, ST)]
        if j == 15: G.append("s_add_u32 s%d, s%d, s%d" % (sOK, sOK, sOJ))
        elif j % 4 == 3: G.append("s_add_u32 s%d, s%d, 4096" % (sOK, sOK))
        return G
    qa_setup = [["s_mov_b32 s%d, s%d" % (SA, pX), "s_mov_b32 s%d, s%d" % (SA + 1, pX + 1),
                 "s_lshl_b32 s%d, s%d, 15" % (sAS, sQL), "s_lshl_b32 s%d, s%d, 15" % (sAS2, sQS)]]
    qw_setup = [["s_mov_b32 m0, %d" % LDS_G, "s_mov_b32 s%d, s%d" % (SW, pWQ), "buffer_load_dwordx4 v%d, s[%d:%d], 0 offen lds" % (vL16, SX, SX + 3), "s_mov_b32 s%d, s%d" % (SW + 1, pWQ + 1)],
                ["s_lshl_b32 s%d, s%d, 17" % (sT0, sWV), "s_lshl_b32 s%d, s%d, 8" % (sWS, sH), "s_add_u32 s%d, s%d, s%d" % (sWS, sWS, sT0), "s_lshl_b32 s%d, s%d, 12" % (sWM, sWV)],
                ["s_mov_b32 s%d, s%d" % (SX, pWQKV), "s_mov_b32 s%d, s%d" % (SX + 1, pWQKV + 1), "s_lshl_b32 s%d, s%d, 11" % (sXM, sWV), "s_mul_i32 s%d, s%d, %d" % (sXS, sWV, 16 * 3072)],
                ["s_lshl_b32 s%d, s%d, 7" % (sT0, sU), "s_add_u32 s%d, s%d, s%d" % (sXS, sXS, sT0),
                 "s_and_b32 s%d, s%d, 3" % (sT0, sH), "s_cmp_eq_u32 s%d, 3" % sT0, "s_cselect_b32 s%d, 0, 0x180000" % (SX + 2)]]
    at_setup = [["v_cmp_ne_u32 vcc, s%d, v93" % sFA], ["s_cmp_eq_u64 vcc, 0", "s_cselect_b32 s%d, 1, s%d" % (sFA, sWV)],
                ["s_cmp_eq_u32 s%d, 0" % sWV, "s_cselect_b32 s46, 8, 0", "s_cselect_b32 s47, 0x80000000, 0"],
                ["s_lshl_b32 s%d, s%d, 12" % (sW4, sWV), "s_lshl_b32 s%d, s%d, 13" % (sW8, sWV), "s_lshl_b32 s%d, s%d, 19" % (sT0, sH)],
                ["s_lshl_b32 s%d, s%d, 15" % (sVD, sI), "s_add_u32 s%d, s%d, s%d" % (sT0, sT0, sVD)],
                ["s_add_u32 s%d, s%d, 0x%x" % (sKO, sT0, OFF_K), "s_add_u32 s%d, s%d, 0x%x" % (sVO, sT0, OFF_V), "s_mov_b32 s%d, %s" % (sTH, THRESH)]]
    SK, SV = 4, SO
    vK, vV = vL16, 2
    def dma(which, typ, par, srd_=None):
        so, sr_, base = (sKO, SK, 0) if which == "K" else (sVO, SV, 65536)
        if srd_ is not None: sr_ = srd_
        sw = sW4 if typ == 1 else sW8
        G = []
        for q in range(typ):
            g = ["s_add_u32 m0, s%d, %d" % (sw, base + par * 32768 + q * 4096)]
            g.append("s_add_u32 s%d, s%d, s%d" % (sDS, so, sw) if q == 0 else "s_add_u32 s%d, s%d, 4096" % (sDS, sDS))
            G.append(g)
            for o in range(4):
                G.append(["buffer_load_dwordx4 v%d, s[%d:%d], s%d offen offset:%d sc1 lds" % (vK, sr_, sr_ + 3, sDS, o * 1024)])
        return G
    def adv(which, typ):
        so = sKO if which == "K" else sVO
        if which == "V" and typ == 1: return ["s_add_u32 s%d, s%d, s%d" % (so, so, sVD), "s_movk_i32 s%d, 0x4000" % sVD]
        return ["s_add_u32 s%d, s%d, %d" % (so, so, 16384 * typ)]
    spins = []
    vF1, vFA, vPO = 90, 251, 254
    sP1, sG1, sG2 = 45, 46, 47
    def poll_load(kind):
        if kind == 1: return "buffer_load_dword v%d, v92, s[%d:%d], s%d offen sc1" % (vF1, SD, SD + 3, sCNT)
        return "buffer_load_dword v%d, v%d, s[%d:%d], 0 offen offset:128 sc1" % (vFA, vPO, SD, SD + 3)
    def poll_cmp(kind): return "v_cmp_gt_u32 vcc, s%d, v%d" % ((sG1, vF1) if kind == 1 else (sG2, vFA))
    def poll_check(kind):
        ls, lb = a.label("spin"), a.label("spun")
        a("%s\ns_cbranch_vccnz %s\n%s:" % (poll_cmp(kind), ls, lb))
        spins.append((ls, lb, kind))
    rels = []
    def release():
        ls, lb = a.label("rel"), a.label("reld")
        a("s_cmp_eq_u32 s%d, 0\ns_cbranch_scc1 %s\n%s:" % (sFA, ls, lb))
        rels.append((ls, lb))

    st_("setup")
    bar("s_waitcnt vmcnt(%d)" % (2 if PF else 1))
    st_("bar0")
    for x in rd_kv(0, 0): a(x)
    lV = a.label("kvV"); lQ = a.label("qphase")
    a("s_cmp_ge_u32 s%d, 2\ns_cbranch_scc1 %s" % (sWV, lV))
    def count_after(seq, pred):
        n = 0
        for x in reversed(seq):
            if pred(x): return n
            if isvm(x): n += 1
        return n
    for isV in (False, True):
        if isV: a(lV + ":")
        t2[0] = 1
        for g in range(8):
            p = g - 1
            if g == 0:
                W1, A1 = dma_w(1), dma_act(1)
                ex = [[x for pr in zip(W1, A1) for x in pr], dma_act(2) + pfp(-1), []]
                allowed = 8 + len(pfp(-1))
            else:
                A = (qa_setup if p + 3 == 8 else []) + dma_act(p + 3)
                ex = [A[:-6], A[-6:-3], A[-3:] + (at_setup if g == 7 else [])]
                allowed = 8 + len(pfp(p))
            for ks in range(3):
                a("s_waitcnt lgkmcnt(0)")
                emit(a, mf_kv(ks, isV, first=(g == 0 and ks == 0)), [(rd_kv(g, ks + 1), 0, 13), (ex[ks], 0, 16)])
            bar("s_waitcnt vmcnt(%d) lgkmcnt(0)" % allowed)
            if g < 7:
                Wn = (qw_setup if g == 6 else []) + dma_w(g + 2) + pfp(g)
                if g == 5: Wn = [["buffer_load_dword v93, v94, s[%d:%d], 0 offen offset:128 sc1" % (SD, SD + 3)]] + Wn
                emit(a, mf_kv(3, isV), [(rd_kv(g + 1, 0), 0, 13), (Wn, 0, WSP)])
        for k in range(4): a("v_add_u32 v%d, s%d, v%d" % (vAR[k], sAD, vAR[k]))
        for k in range(4): a("v_subrev_u32 v%d, s%d, v%d" % (vWR[k], sWD, vWR[k]))
        cnt[0] = 0
        D0 = [x for j in range(8) for x in kv_pack(j)]
        emit(a, mf_kv(3, isV, rbmajor=True), [(rd_q(8, 0, "N")[0], 0, 7), (dma_w(9), 0, 6), (D0[:48], 7, 16)])
        if not isV: a("s_branch %s" % lQ)
    a(lQ + ":")
    st_("q")
    lN, lS, lG, lE = a.label("qN"), a.label("qS"), a.label("qG"), a.label("qE")
    a("s_and_b32 s%d, s%d, 3\ns_cmp_eq_u32 s%d, 3\ns_cbranch_scc1 %s\ns_cmp_ge_u32 s%d, 16\ns_cbranch_scc1 %s" % (sT0, sH, sT0, lG, sU, lS))
    cnt0 = cnt[0]
    for var, lab in (("N", lN), ("S", lS), ("G", lG)):
        a(lab + ":")
        cnt[0] = cnt0; t2[0] = 9
        if var == "G": a("v_lshrrev_b32 v%d, 5, v0\nv_lshlrev_b32 v%d, 4, v%d\nv_add_u32 v%d, %d, v%d" % (vXR[0], vXR[0], vXR[0], vXR[0], LDS_G, vXR[0]))
        for x in rd_q(8, 0, var)[1]: a(x)
        vTW, vTR, TG = vXO, (15, 93, 94, 95), 32
        sSJ, sTD, sTL = sOA, sXS, sXM
        tsetup = []
        if var == "G":
            t = 28
            tsetup = ("s_and_b32 s%d, s2, 7\ns_lshl_b32 s%d, s%d, 3\ns_add_u32 s%d, s%d, s%d\n" % (sSJ, sSJ, sSJ, sSJ, sSJ, sI) +
                "s_lshl_b32 s%d, s%d, 12\ns_add_u32 s%d, s%d, %d\n" % (sTL, sWV, sTL, sTL, WSL[1] + 16384) +
                "v_lshrrev_b32 v28, 4, v0\nv_and_b32 v29, 15, v0\nv_lshlrev_b32 v30, 2, v28\nv_xor_b32 v29, v29, v30\nv_lshlrev_b32 v29, 4, v29\nv_lshl_add_u32 v%d, v28, 10, v29\n" % vTW +
                "s_mov_b32 s%d, s%d\ns_mov_b32 s%d, s%d\ns_mov_b32 s%d, 0x400000\n" % (SX, pBWO, SX + 1, pBWO + 1, SX + 2) +
                "s_lshl_b32 s%d, s%d, 14\ns_lshl_b32 s%d, s%d, 8\ns_add_u32 s%d, s%d, s%d\n" % (sSC, sSJ, sT0, sWV, sSC, sSC, sT0) +
                "v_lshrrev_b32 v29, 2, v0\nv_and_b32 v29, 3, v29\nv_lshrrev_b32 v30, 5, v0\nv_lshl_add_u32 v30, v30, 2, v29\n" +
                "v_and_b32 v28, 1, v28\nv_lshlrev_b32 v28, 1, v28\nv_lshrrev_b32 v31, 1, v0\nv_and_b32 v31, 1, v31\nv_add_u32 v28, v28, v31\nv_and_b32 v31, 1, v0\nv_lshlrev_b32 v31, 3, v31\n" +
                "v_lshlrev_b32 v29, 2, v29\nv_xor_b32 v29, v29, v28\nv_lshlrev_b32 v29, 4, v29\nv_lshl_add_u32 v29, v30, 8, v29\nv_add3_u32 v29, v29, v31, s%d\n" % sTL +
                "".join("v_xor_b32 v%d, %d, v29\n" % (vTR[k], 64 * k) for k in range(4)) +
                "s_mul_i32 s%d, s%d, %d\ns_lshl_b32 s%d, s%d, 11\ns_add_u32 s%d, s%d, s%d\ns_add_u32 s%d, s%d, 0x%x" % (sTD, sWV, 2 * WROW, sT1, sSJ, sTD, sTD, sT1, sTD, sTD, OFF_W)).split("\n")
        def t_dma(j):
            G = []
            if j == 4: G.append(["s_mov_b32 s%d, s%d" % (SX, pWO), "s_mov_b32 s%d, s%d" % (SX + 1, pWO + 1), "s_mov_b32 s%d, 0x80000" % (SX + 2)])
            for n in range(4):
                G.append(["s_add_u32 m0, s%d, %d" % (sTL, n * 1024), "s_add_u32 s%d, s%d, %d" % (sDS, sSC, (j % 4) * 0x100000 + n * 4096),
                          "buffer_load_dwordx4 v%d, s[%d:%d], s%d offen %s lds" % (vTW, SX, SX + 3, sDS, LNT)])
            return G
        def t_read(): return ["ds_read_b64_tr_b16 %s, v%d offset:%d" % (ar(TG + 4 * cb + 2 * rd, 2), vTR[cb], rd * 2048) for cb in range(4) for rd in range(2)]
        def t_store(j):
            G = []
            if j == 4: G.append(["s_cmp_ge_u32 s%d, 32" % sSJ, "s_cselect_b32 s%d, 0x%x, s%d" % (sTD, OFF_DUMMY, sTD)])
            G.append(["s_add_u32 s%d, s%d, %d" % (sT1, sTD, WROW)])
            for cb in range(4):
                G.append(["buffer_store_dwordx4 %s, v%d, s[%d:%d], s%d offen offset:%d" % (ar(TG + 4 * cb, 4), vL16, SO, SO + 3, sTD if cb < 2 else sT1, (cb % 2) * 1024)])
            G.append(["s_add_u32 s%d, s%d, %d" % (sTD, sTD, 64 * 2048)])
            return G
        ZR = ["v_accvgpr_write_b32 a%d, 0" % r for r in range(64, 128)]
        after_w = 0
        sched = spread(32, 0, NSK)
        g_pub = 8 + max(sched[:16]) // 4 + (2 if max(sched[:16]) % 4 == 3 else 1)
        assert g_pub <= 14
        for g in range(8, 16):
            for ks in range(4):
                M = mf_q(ks, var, g == 8 and ks == 0); nm = len(M)
                st = []
                if ks == 3 and g < 15:
                    bar("s_waitcnt vmcnt(%d) lgkmcnt(0)" % after_w)
                    after_w = 0
                    G = dma_w(g + 2, var != "G") if g + 2 < 16 else []
                    if g == g_pub:
                        release()
                        G = [["buffer_atomic_add v%d, v%d, s[%d:%d], s%d offen sc1" % (vONE, vFO, SD, SD + 3, sCNT)]] + G
                    if g == 14:
                        G = G + dma("K", 1, 0, SO) + [adv("K", 1)] + dma("K", 1, 1, SO) + [[poll_load(1)]]
                    st.append((G, 0, nm - 2))
                else:
                    a("s_waitcnt lgkmcnt(0)")
                if not (g == 15 and ks == 3):
                    g2, k2 = (g, ks + 1) if ks < 3 else (g + 1, 0)
                    L, X = rd_q(g2, k2, var)
                    st.append((L + X, 0, nm - 3))
                ex = []
                if var != "G":
                    if ks < 2 and g + 2 < 16: ex = dma_act(g + 2)[4 * ks: 4 * ks + 4]
                else:
                    if ks in (1, 2) and g + 2 < 16: ex = dma_act(g + 2)[4 * ks - 4: 4 * ks]
                    if g == 8 and ks in (1, 2): st.append((tsetup[:26] if ks == 1 else tsetup[26:], 0, nm))
                    if ks == 0 and 9 <= g <= 13:
                        st.append((t_dma(g - 9), 0, nm - 3)); after_w = 0
                    if ks == 3 and 9 <= g <= 13: st.append((t_read(), 0, nm - 2))
                    if ks == 1 and 10 <= g <= 14: ex = t_store(g - 10) + ex
                st.append((ex, 0, nm))
                kg = (g - 8) * 4 + ks
                if kg == 0: st.append((D0[48:], 0, 7))
                ep = []
                for j in range(8, 32):
                    if max(sched[j] - 1, sched[j - 8] + 1) == kg: ep += kv_pack(j)
                if kg >= 20 and ZR: ep += ZR[:8]; ZR = ZR[8:]
                st.append((ep, 0, nm))
                so_ = [kv_store(j) for j in range(32) if sched[j] == kg]
                st.append((so_, nm - 1 - len(so_), nm))
                after_w += sum(1 for gr in ex + so_ for x in gr if isvm(x))
                emit(a, M, st)
        assert not ZR
        cnt[0] = 0
        a("s_nop 7\ns_nop 3")
        if var in "NS":
            a("s_lshr_b32 s%d, s%d, 1\ns_lshl_b32 s%d, s%d, 19\ns_and_b32 s%d, s%d, 1\ns_lshl_b32 s%d, s%d, 12\ns_add_u32 s%d, s%d, s%d" % (sT0, sU, sT0, sT0, sT1, sU, sT1, sT1, sT0, sT0, sT1))
            a("s_cmp_lt_u32 s%d, 8\ns_cselect_b32 s%d, %s, 1.0" % (sU, sSC, fbits(LOG2E * 0.25)))
            for rb, blk in ((0, sQL), (1, sQS)):
                a("s_lshl_b32 s%d, s%d, 13\ns_add_u32 s%d, s%d, s%d" % (sOA, blk, sOA, sOA, sT0))
                for cb in range(2):
                    for e in range(2):
                        for x in drain((cb * 2 + rb) * 16 + e * 8, sOA, cb * 2048 + e * 1024, sSC if var == "N" else None): a(x)
            a("s_waitcnt vmcnt(%d)" % (8 + after_w))
            a("s_branch %s" % lE)
        else:
            a("v_accvgpr_read_b32 v16, a0\nv_accvgpr_read_b32 v17, a16\nv_cmp_gt_u32 vcc, 32, v0\nv_mov_b32 v18, s%d\nv_mov_b32 v19, s%d" % (sQL, sQS))
            a("v_cndmask_b32 v16, v17, v16, vcc\nv_cndmask_b32 v18, v19, v18, vcc")
            a("v_mul_f32 v16, %s, v16\nv_exp_f32 v16, v16\nv_and_b32 v19, 31, v0\nv_add_f32 v16, 1.0, v16\nv_rcp_f32 v16, v16" % fbits(-LOG2E))
            a("v_lshl_add_u32 v18, v18, 5, v19\nv_lshlrev_b32 v18, 2, v18\ns_lshl_b32 s%d, s%d, 11\ns_add_u32 s%d, s%d, 0x%x" % (sT0, sGR, sT0, sT0, OFF_G))
            a("buffer_store_dword v16, v18, s[%d:%d], s%d offen" % (SO, SO + 3, sT0))
            a("s_waitcnt vmcnt(%d)" % (1 + after_w))
    a(lE + ":")
    a(lAttn + ":")
    st_("attn")
    vU, vGL, vGS = 3, 4, 5
    vL = (6, 7); vLT = (8, 9); vX = 10
    S = (16, 80); P = (144, 176); NM = 208; TM = 240
    vGA, vNEG, vPM = 248, 249, 250
    O, Q, FR, NFR = 0, 128, 192, 16
    ms = (26, 28, 30)
    def kfrag(p, idx): return ("K", p * 32768 + idx * 1024)
    def vfrag(p, g, db): return ("V", p * 32768 + (g // 2) * 8192 + db * 2048 + (g % 2) * 1024)
    def rd(slot, fr):
        return "ds_read_b128 %s, v%d offset:%d" % (ar(FR + 4 * (slot % NFR), 4), vK if fr[0] == "K" else vV, fr[1])
    def mf_list(p, pv, qk):
        L = []
        Pp = P[1 - p]; Sn = S[1 - p]
        if pv == 1:
            for g in range(4):
                for db in range(4):
                    L.append((vfrag(1 - p, g, db), ["%s %s, {F}, %s, %s" % (MF32, ar(O + rb * 64 + db * 16, 16), vr(Pp + rb * 16 + g * 4, 4), ar(O + rb * 64 + db * 16, 16)) for rb in range(2)]))
        elif pv == 2:
            for g in range(8):
                for db in range(4):
                    L.append((vfrag(1 - p, g, db), ["%s %s, {F}, %s, %s" % (MF32, ar(O + db * 16, 16), vr(Pp + g * 4, 4), ar(O + db * 16, 16))]))
        elif pv == 3:
            for db in range(4):
                for g in range(8):
                    L.append((("K", vfrag(1, g, db)[1]), ["%s %s, {F}, %s, %s" % (MF32, ar(O + db * 16, 16), vr(Pp + g * 4, 4), ar(O + db * 16, 16))]))
        if qk == 1:
            for kb in range(2):
                for s in range(8):
                    ms_ = []
                    for rb in range(2):
                        d = vr(Sn + rb * 32 + kb * 16, 16)
                        ms_.append("%s %s, {F}, %s, %s" % (MF32, d, ar(Q + rb * 32 + s * 4, 4), d if s else vr(NM + rb * 16, 16)))
                    L.append((kfrag(1 - p, kb * 8 + s), ms_))
        elif qk == 2:
            for kb in range(4):
                for s in range(8):
                    d = vr(Sn + kb * 16, 16)
                    L.append((kfrag(1 - p, kb * 8 + s), ["%s %s, {F}, %s, %s" % (MF32, d, ar(Q + s * 4, 4), d if s else vr(NM, 16))]))
        return L
    def sm_list(p, sm):
        Sc, Pc = S[p], P[p]
        order = [0, 2, 1, 3] if sm == 1 else [0, 1, 2, 3]
        els = [b * 16 + j for b in order for j in range(16)]
        V = []
        first = {0: True, 1: True}
        def tail(n):
            e = els[n]; u = TM + (n % 8); lt = vLT[e // 32]
            out = []
            if first[e // 32]:
                out.append((4, "v_add_f32 v%d, v%d, v%d" % (lt, u, u + 1))); first[e // 32] = False
            else:
                out.append((4, "v_add_f32 v%d, v%d, v%d" % (lt, lt, u)))
                out.append((4, "v_add_f32 v%d, v%d, v%d" % (lt, lt, u + 1)))
            out.append((4, "v_cvt_pk_bf16_f32 v%d, v%d, v%d" % (Pc + e // 2, u, u + 1)))
            return out
        for n in range(0, 64, 2):
            tl = tail(n - 2) if n >= 2 else []
            V.append((8, "v_exp_f32 v%d, v%d" % (TM + n % 8, Sc + els[n])))
            V += tl[:1]
            V.append((8, "v_exp_f32 v%d, v%d" % (TM + n % 8 + 1, Sc + els[n + 1])))
            V += tl[1:]
        V += tail(62)
        return V
    rare = {}
    def step(p, pv, sm, qk, dK, dV, pre_in=True, pre_out=True, advK=True, extra_vm=None, extra_valu=None, chk=0, last16=False, staged=None):
        L = mf_list(p, pv, qk)
        nf = len(L)
        nxt = [vfrag(p, g, db) for g in range(4) for db in range(4)][:PD]
        if last16: nxt = [x[0] for x in mf_list(1, 3, 0)][:PD]
        M = [(f, t) for f, (fr, ts_) in enumerate(L) for t in ts_]
        nm = len(M)
        fill = [[] for _ in range(nm)]
        G = []
        if dV: G += dma("V", dV, p) + [adv("V", dV)]
        if dK: G += dma("K", dK, p) + ([adv("K", dK)] if advK else [])
        if extra_vm: G += extra_vm
        cost = [0] * nm
        firstm = {}
        for m, (f, t) in enumerate(M): firstm.setdefault(f, m)
        barf = nf + 1 - PD
        if barf % WP: barf += WP - barf % WP
        if not pre_out or last16: barf = nf + 99
        CAP = 24
        pre = [[] for _ in range(nm)]
        allfr = [x[0] for x in L] + (nxt if pre_out else [])
        nrd = PD
        for f in range(nf):
            m = firstm[f]
            if f == barf: pre[m].append("BAR")
            elif f < barf and f % WP == 0: pre[m].append("s_waitcnt lgkmcnt(%d)" % max(0, nrd - 1 - min(f + WP - 1, nf - 1)))
            if m > 0 and pre[m]: cost[m - 1] += 8 if f == barf else 4
            want = min(f + PD, len(allfr) - 1)
            if f < barf and not last16: want = min(want, nf - 1)
            lim = 2
            while nrd <= want and lim:
                fill[m].append(rd(nrd, allfr[nrd])); cost[m] += 4; nrd += 1; lim -= 1
        assert nrd == len(allfr), (nrd, len(allfr))
        cost[nm - 1] += 20
        def place(stream, lo, hi):
            tot = sum(c for c, _ in stream); done_ = 0
            free = sum(max(0, CAP - cost[k]) for k in range(lo, hi))
            seen = 0; i = 0
            for k in range(lo, hi):
                seen += max(0, CAP - cost[k])
                tgt = tot * min(1.0, seen / max(free, 1))
                while i < len(stream) and (k == hi - 1 or (done_ < tgt and (cost[k] + stream[i][0] <= CAP or done_ + 8 < tgt))):
                    fill[k] += stream[i][1]; cost[k] += stream[i][0]; done_ += stream[i][0]; i += 1
        hiD = min(max(len(G) + 1, nm // 2), firstm[barf] - 4 if barf < nf else nm)
        place([(4 * len(g), g) for g in G], 1, hiD)
        V = sm_list(p, sm) if sm else []
        if sm:
            V.append((4, "v_max_f32 v%d, v%d, v%d" % (vX, vLT[0], vLT[1])))
            V.append((4, "v_cmp_lt_f32 vcc, s%d, v%d" % (sTH, vX)))
        if extra_valu: V += [(4, x) for x in extra_valu]
        place([(c, [x]) for c, x in V], 0, nm - 1)
        for (lst, lo, hi) in (staged or []): place([(4, [x]) for x in lst], lo, hi)
        if not pre_in:
            for f in range(PD): a(rd(f, L[f][0]))
        for m, (f, t) in enumerate(M):
            for x in pre[m]:
                if x == "BAR":
                    if TS3: a("s_mov_b32 m0, s70\ns_add_u32 s70, s70, 1\nv_writelane_b32 v255, s64, m0\ns_mov_b32 m0, s70\ns_add_u32 s70, s70, 1\nv_writelane_b32 v255, s66, m0\ns_memtime s[64:65]")
                    a("s_waitcnt vmcnt(0) lgkmcnt(0)")
                    if chk: poll_check(chk)
                    a("s_barrier")
                    if TS3: a("s_memtime s[66:67]\ns_waitcnt lgkmcnt(0)")
                else: a(x)
            a(t.replace("{F}", ar(FR + 4 * (f % NFR), 4)))
            for x in fill[m]: a(x)
        assert nf % NFR == 0
        if sm:
            key = (p, sm, qk if qk else sm)
            if key not in rare: rare[key] = (a.label("rare"), [])
            lb = a.label("back"); lj = a.label("jr")
            rid = len(rare[key][1]); rare[key][1].append((lj, lb))
            a("s_cbranch_vccnz %s\n%s:" % (lj, lb))
            if sm == 1: a("v_add_f32 v%d, v%d, v%d\nv_add_f32 v%d, v%d, v%d" % (vL[0], vL[0], vLT[0], vL[1], vL[1], vLT[1]))
            else: a("v_add_f32 v%d, v%d, v%d\nv_add_f32 v%d, v%d, v%d" % (vL[0], vL[0], vLT[0], vL[0], vL[0], vLT[1]))
    def rowmax(dst, regs_):
        a("v_max3_f32 v%d, v%d, v%d, v%d" % (dst, regs_[0], regs_[1], regs_[2]))
        j = 3
        while j + 1 < len(regs_):
            a("v_max3_f32 v%d, v%d, v%d, v%d" % (dst, dst, regs_[j], regs_[j + 1])); j += 2
        if j < len(regs_): a("v_max_f32 v%d, v%d, v%d" % (dst, dst, regs_[j]))
        a("v_mov_b32 v%d, v%d\ns_nop 1\nv_permlane32_swap_b32 v%d, v%d\nv_max_f32 v%d, v%d, v%d" % (dst + 1, dst, dst, dst + 1, dst, dst, dst + 1))
    def mask(base, nblk, kb0):
        a("s_nop 7\ns_nop 3")
        for j in range(nblk):
            lf = a.label("mfull"); le_ = a.label("mend")
            kb = kb0 + j; r0 = base + 16 * j
            a("s_cmp_gt_u32 s%d, %d\ns_cbranch_scc1 %s" % (sWV, kb, le_))
            if kb > 0: a("s_cmp_lt_u32 s%d, %d\ns_cbranch_scc1 %s" % (sWV, kb, lf))
            rr = list(range(16))
            for c in range(0, 16, 3):
                grp = rr[c:c + 3]
                for q, r in enumerate(grp): a("v_cmp_gt_i32 s[%d:%d], %d, v%d" % (ms[q], ms[q] + 1, 8 * (r // 4) + r % 4, vU))
                if len(grp) < 3: a("s_nop 1")
                for q, r in enumerate(grp): a("v_cndmask_b32 v%d, v%d, v%d, s[%d:%d]" % (r0 + r, r0 + r, vNEG, ms[q], ms[q] + 1))
            if kb > 0:
                a("s_branch %s\n%s:" % (le_, lf))
                for r in range(16): a("v_mov_b32 v%d, v%d" % (r0 + r, vNEG))
            a(le_ + ":")
    poll_check(1)
    bar("s_nop 0")
    if TS2:
        a("s_waitcnt lgkmcnt(0)"); bar("s_nop 0")
        a("s_lshl_b32 s62, s2, 2\ns_add_u32 s62, s62, s%d\ns_lshl_b32 s62, s62, 8\ns_add_u32 s62, s62, 0x%x\nv_lshlrev_b32 v92, 2, v0" % (sWV, OFF_TS + 0x80000))
        a("buffer_store_dword v91, v92, s[%d:%d], s62 offen\ns_waitcnt vmcnt(0)" % (SO, SO + 3))
    srd(a, SK, pWS, WS_SIZE)
    a("s_mov_b32 s%d, %s" % (sSC, fbits(LOG2E / math.sqrt(128.0))))
    fr0 = [kfrag(0, kb * 8 + s) for s in range(8) for kb in range(2)]
    for f in range(12): a(rd(f, fr0[f]))
    def qepi(s):
        G = []
        for rb in range(2):
            src = QA + rb * 64 + s * 8
            if PKMUL: G += ["v_pk_mul_f32 %s, %s, s[%d:%d]" % (vr(src + 2 * j, 2), vr(src + 2 * j, 2), 98, sSC) for j in range(4)]
            else: G += ["v_mul_f32 v%d, s%d, v%d" % (src + j, sSC, src + j) for j in range(8)]
        for rb in range(2):
            src = QA + rb * 64 + s * 8
            G += ["v_cvt_pk_bf16_f32 v%d, v%d, v%d" % (src + j, src + 2 * j, src + 2 * j + 1) for j in range(4)]
        for rb in range(2):
            src = QA + rb * 64 + s * 8
            G += ["v_accvgpr_write_b32 a%d, v%d" % (Q + rb * 32 + s * 4 + j, src + j) for j in range(4)]
        return G
    a("s_add_u32 s%d, s%d, 0x4000\ns_sub_u32 s%d, s%d, s%d\ns_cmp_eq_u32 s%d, 0\ns_cselect_b32 s%d, 0x8000, 0\ns_add_u32 s%d, s%d, s%d" % (sT1, sVD, sKO, sKO, sT1, sI, sT0, sKO, sKO, sT0))
    for g_ in dma("V", 1, 0):
        for x in g_: a(x)
    a("s_add_u32 s%d, s%d, 0x4000\ns_sub_u32 s%d, 0, s%d" % (sVO, sVO, sVD, sT1))
    for x in qepi(0): a(x)
    for f in range(12, 16): a(rd(f, fr0[f]))
    misc = ["v_add_u32 v%d, 0x10000, v%d" % (vV, vK), "v_and_b32 v10, 31, v0", "v_lshrrev_b32 v11, 5, v0", "v_lshlrev_b32 v11, 2, v11", "v_sub_u32 v%d, v10, v11" % vU,
            "v_mov_b32 v%d, 0" % vL[0], "v_mov_b32 v%d, 0" % vL[1], "v_mov_b32 v%d, %s" % (vNEG, NEG), "v_and_b32 v%d, 3, v0" % vPO, "v_add_lshl_u32 v%d, v%d, s%d, 2" % (vPO, vPO, sGR), "v_add_u32 v%d, s%d, v%d" % (vPO, sW4, vPO), "v_mov_b32 v253, 0x10000000", "v_mov_b32 v252, v%d" % vFO]
    misc += ["s_lshl_b32 s%d, s2, 7" % sT1, "s_add_u32 s%d, s%d, 0x%x" % (sT1, sT1, OFF_FL), "v_lshlrev_b32 v10, 2, v10",
             "buffer_store_dword v%d, v10, s[%d:%d], s%d offen" % (vL[0], SO, SO + 3, sT1)]
    misc += ["v_accvgpr_write_b32 a%d, 0" % r for r in range(0, 24)]
    a("s_waitcnt lgkmcnt(0)\ns_barrier")
    K2 = dma("K", 2, 0) + [["s_cmp_eq_u32 s%d, 0" % sI, "s_cselect_b32 s%d, 2, 1" % sT0, "s_lshl_b32 s%d, s%d, 14" % (sT0, sT0), "s_add_u32 s%d, s%d, s%d" % (sKO, sKO, sT0)]]
    for s in range(8):
        M = []
        for kb in range(2):
            for rb in range(2):
                d = vr(S[0] + rb * 32 + kb * 16, 16)
                M.append("%s %s, %s, %s, %s" % (MF32, d, ar(FR + 4 * (2 * s + kb), 4), ar(Q + rb * 32 + s * 4, 4), d if s else "0"))
        emit(a, M, [(K2[2 * s: 2 * s + 2], 0, 3), (qepi(s + 1) + ["s_nop 0"] if s < 7 else misc, 0, 4)])
    st_("m1")
    for r in range(24, 64): a("v_accvgpr_write_b32 a%d, 0" % r)
    mask(S[0] + 32, 2, 0)
    for rb in range(2): rowmax(vX + 2 * rb, [S[0] + rb * 32 + j for j in range(32)])
    for rb in range(2):
        for j in range(16): a("v_sub_f32 v%d, 0, v%d" % (NM + rb * 16 + j, vX + 2 * rb))
    for rb in range(2):
        for j in range(32): a("v_sub_f32 v%d, v%d, v%d" % (S[0] + rb * 32 + j, S[0] + rb * 32 + j, vX + 2 * rb))
    st_("first")
    if TS3: a("s_mov_b32 s70, 0\ns_mov_b32 s64, 0\ns_mov_b32 s66, 0")
    step(0, 0, 1, 1, 0, 0, pre_in=False)
    st_("s0a")
    release()
    a("buffer_atomic_add v253, v252, s[%d:%d], s%d offen offset:128 sc1" % (SD, SD + 3, sCNT))
    mask(S[1] + 32, 2, 2)
    st_("s0")
    lT0, lT1, lT1b, lL1, lL2, lS15, lMid, lI7, lEn = [a.label(x) for x in ("T0", "T1", "T1b", "L1", "L2", "S15", "MID", "I7", "END")]
    PL = [[poll_load(2)]]
    sRA, sHP, sA0, sA1 = 36, 37, 38, 39
    AQ, AKC, AKP = ar(Q + 32, 4), None, None
    AF = [ar(Q + 32 + 4 * j, 4) for j in range(8)] + [vr(252, 4)]
    def ld(dst, so, off): return ["buffer_load_dwordx4 %s, v%d, s[%d:%d], s%d offen offset:%d sc1" % (dst, vK, SV, SV + 3, so, off)]
    ALD = [["s_lshr_b32 s%d, s2, 3" % sT0, "s_lshl_b32 s%d, s%d, 1" % (sT0, sT0), "s_lshr_b32 s%d, s%d, 1" % (sRA, sWV), "s_add_u32 s%d, s%d, s%d" % (sRA, sRA, sT0)],
           ["s_and_b32 s%d, s%d, 1" % (sHP, sWV), "s_lshr_b32 s%d, s%d, 1" % (sT0, sGR), "s_add_u32 s%d, s%d, s%d" % (sHP, sHP, sT0), "s_lshl_b32 s%d, s%d, 9" % (sT0, sGR)],
           ["v_and_b32 v14, 31, v0", "v_add_lshl_u32 v14, v14, s%d, 2" % sT0]]
    for (dst, blk) in ((vGS, sQS), (vGL, sQL), (vGA, sRA)):
        ALD.append(["s_lshl_b32 s%d, s%d, 7" % (sT0, blk), "s_add_u32 s%d, s%d, 0x%x" % (sT0, sT0, OFF_G), "buffer_load_dword v%d, v14, s[%d:%d], s%d offen sc1" % (dst, SV, SV + 3, sT0)])
    ALD += [["s_lshr_b32 s%d, s%d, 2" % (sT0, sHP), "s_lshl_b32 s%d, s%d, 19" % (sT0, sT0), "s_and_b32 s%d, s%d, 3" % (sT1, sHP), "s_lshl_b32 s%d, s%d, 11" % (sT1, sT1)],
            ["s_add_u32 s%d, s%d, s%d" % (sT0, sT0, sT1), "s_lshl_b32 s%d, s%d, 13" % (sT1, sRA), "s_add_u32 s%d, s%d, s%d" % (sA0, sT0, sT1)],
            ["s_max_u32 s%d, s%d, 1" % (sT1, sRA), "s_sub_u32 s%d, s%d, 1" % (sT1, sT1), "s_lshl_b32 s%d, s%d, 13" % (sT1, sT1), "s_add_u32 s%d, s%d, s%d" % (sA1, sT0, sT1)]]
    bump = ["s_add_u32 s%d, s%d, %d" % (sA0, sA0, 4 * PH), "s_add_u32 s%d, s%d, %d" % (sA1, sA1, 4 * PH)]
    ALD += [ld(AF[0], sA0, 0), ld(AF[1], sA0, 1024) + bump, ld(AF[2], sA0, 0), ld(AF[3], sA0, 1024), ld(AF[4], sA1, 0), ld(AF[5], sA1, 1024) + bump,
            ld(AF[6], sA1, 1024), ld(AF[7], sA0, 0), ld(AF[8], sA0, 1024)]
    a("s_cmp_eq_u32 s%d, 0\ns_cbranch_scc1 %s" % (sI, lT1))
    a("s_mov_b32 s%d, s%d" % (sT, sI))
    a(".p2align 6\n" + lL1 + ":")
    step(1, 1, 1, 1, 1, 1)
    a("s_sub_u32 s%d, s%d, 1\ns_cbranch_scc0 %s" % (sT, sT, lT0) if False else "s_sub_u32 s%d, s%d, 1\ns_cmp_eq_u32 s%d, 0\ns_cbranch_scc1 %s" % (sT, sT, sT, lT0))
    step(0, 1, 1, 1, 1, 1)
    a("s_branch %s" % lL1)
    a(lT0 + ":")
    a("s_add_u32 s%d, s%d, 0x8000" % (sKO, sKO))
    step(0, 1, 1, 1, 2, 1, extra_vm=PL, chk=2)
    a("s_cmp_eq_u32 s%d, 7\ns_cbranch_scc1 %s" % (sI, lT1b))
    a(lT1 + ":")
    step(1, 1, 1, 2, 2, 1)
    a("s_add_u32 s%d, s%d, 0x8000" % (sVO, sVO))
    step(0, 1, 2, 2, 2, 2, extra_vm=PL, chk=2)
    a("s_sub_u32 s%d, 6, s%d\ns_cmp_eq_u32 s%d, 0\ns_cbranch_scc1 %s" % (sT, sI, sT, lS15))
    a(".p2align 6\n" + lL2 + ":")
    step(1, 2, 2, 2, 2, 2)
    step(0, 2, 2, 2, 2, 2)
    a("s_sub_u32 s%d, s%d, 1\ns_cmp_lg_u32 s%d, 0\ns_cbranch_scc1 %s" % (sT, sT, sT, lL2))
    a(lS15 + ":")
    a("s_add_u32 s%d, s%d, 0x8000" % (sKO, sVO))
    step(1, 2, 2, 2, 2, 2, extra_vm=ALD)
    a("s_branch %s" % lMid)
    a(lT1b + ":")
    a("s_add_u32 s%d, s%d, 0xc000" % (sKO, sVO))
    step(1, 1, 1, 2, 2, 1, extra_vm=ALD)
    def fin_head(rb, so):
        l = vL[rb]; g = (vGL, vGS)[rb]; blk = (sQL, sQS)[rb]
        return ["v_mov_b32 v%d, v%d" % (vX + 5, l), "v_sub_f32 v%d, 1.0, v%d" % (g, g), "s_mul_i32 s%d, s%d, %d" % (so, blk, CROW), "v_permlane32_swap_b32 v%d, v%d" % (l, vX + 5),
                "v_add_f32 v%d, v%d, v%d" % (l, l, vX + 5), "v_rcp_f32 v%d, v%d" % (l, l), "s_lshl_b32 s%d, s%d, 13" % (sT1, sH), "v_mul_f32 v%d, v%d, v%d" % (l, l, g),
                "s_add_u32 s%d, s%d, s%d" % (so, so, sT1), "s_add_u32 s%d, s%d, 0x%x" % (so, so, OFF_C)]
    def fin_part(rb, c, t, so):
        l = vL[rb]
        G = ["v_accvgpr_read_b32 v%d, a%d" % (t + j, O + rb * 64 + c * 8 + j) for j in range(8)]
        G += ["v_mul_f32 v%d, v%d, v%d" % (t + j, l, t + j) for j in range(8)]
        G += ["v_cvt_pk_bf16_f32 v%d, v%d, v%d" % (t + j, t + 2 * j, t + 2 * j + 1) for j in range(4)]
        if c == 4: G.append("s_add_u32 s%d, s%d, 4096" % (so, so))
        G.append("buffer_store_dwordx4 %s, v%d, s[%d:%d], s%d offen offset:%d" % (vr(t, 4), vK, SV, SV + 3, so, (c % 4) * 1024))
        return G
    a(lMid + ":")
    st_("mid")
    BC, BP = NM, NM + 16
    SC, SP = (80, 96), (112, 128); TA = (144, 156); PA = (112, 128); MX = (10, 12)
    a("v_add_u32 v12, 18, v%d\nv_mov_b32 v10, 0x5555\nv_mov_b32 v11, 0\ns_cmp_eq_u32 s%d, 0\ns_cselect_b32 s%d, -1, 0" % (vU, sRA, sT2))
    a("v_lshlrev_b64 v[10:11], v12, v[10:11]\nv_not_b32 v10, v10\nv_not_b32 v11, v11\nv_or_b32 v10, s%d, v10" % sT2)
    for r in range(16): a("v_bfe_i32 v%d, v11, %d, 1" % (BC + r, 8 * (r // 4) + r % 4))
    for r in range(8, 16): a("v_bfe_i32 v%d, v10, %d, 1" % (BP + r, 8 * (r // 4) + r % 4))
    for r in list(range(16)) + list(range(24, 32)): a("v_and_b32 v%d, v%d, v%d" % (BC + r, vNEG, BC + r))
    a("v_and_b32 v10, 1, v0\nv_lshlrev_b32 v10, 4, v10\nv_mov_b32 v11, 0xffff\nv_lshlrev_b32 v%d, v10, v11" % vPM)
    for e in range(2):
        a("%s %s, %s, %s, %s" % (MF32, vr(SC[e], 16), AF[2 + e], AF[e], vr(BC, 16)))
        a("%s %s, %s, %s, %s" % (MF32, vr(SP[e], 16), AF[4 + e], AF[e], vr(BP, 16)))
    mask(S[0], 4, 0)
    for e in range(2):
        for j in range(4): a("v_max_f32 v%d, v%d, v%d" % (TA[e] + j, SP[e] + 8 + 2 * j, SP[e] + 9 + 2 * j))
        for j in range(8): a("v_max_f32 v%d, v%d, v%d" % (TA[e] + 4 + j, SC[e] + 2 * j, SC[e] + 2 * j + 1))
    for e in range(2):
        t = TA[e]; m = MX[e]
        a("v_max3_f32 v%d, v%d, v%d, v%d" % (m, t, t + 1, t + 2))
        for j in range(3, 11, 2): a("v_max3_f32 v%d, v%d, v%d, v%d" % (m, m, t + j, t + j + 1))
        a("v_max_f32 v%d, v%d, v%d\nv_mov_b32 v%d, v%d" % (m, m, t + 11, m + 1, m))
    a("s_nop 1")
    for e in range(2): a("v_permlane32_swap_b32 v%d, v%d" % (MX[e], MX[e] + 1))
    for e in range(2): a("v_max_f32 v%d, v%d, v%d" % (MX[e], MX[e], MX[e] + 1))
    for e in range(2):
        for j in range(12): a("v_sub_f32 v%d, v%d, v%d" % (TA[e] + j, TA[e] + j, MX[e]))
        for j in range(12): a("v_exp_f32 v%d, v%d" % (TA[e] + j, TA[e] + j))
    for e in range(2):
        for j in range(12): a("v_cvt_pk_bf16_f32 v%d, v%d, v%d" % (PA[e] + j, TA[e] + j, TA[e] + j))
        for j in range(12): a("v_and_b32 v%d, v%d, v%d" % (PA[e] + j, vPM, PA[e] + j))
        if e == 1: a("s_nop 1")
        else: a("v_add_f32 v%d, v%d, v%d\nv_add_f32 v%d, v%d, v%d" % (MX[0], TA[0], TA[0] + 1, MX[1], TA[1], TA[1] + 1))
        for g in range(3):
            a("%s %s, %s, %s, %s" % (MF32, vr(SC[e], 16), AF[6 + g], vr(PA[e] + 4 * g, 4), "0" if g == 0 else vr(SC[e], 16)))
    for j in range(2, 12):
        for e in range(2): a("v_add_f32 v%d, v%d, v%d" % (MX[e], MX[e], TA[e] + j))
    for e in range(2): a("v_mov_b32 v%d, v%d" % (MX[e] + 1, MX[e]))
    a("s_mul_i32 s%d, s%d, %d\ns_lshl_b32 s%d, s%d, 11" % (sT0, sRA, CROW, sT1, sHP))
    for e in range(2): a("v_permlane32_swap_b32 v%d, v%d" % (MX[e], MX[e] + 1))
    for e in range(2): a("v_add_f32 v%d, v%d, v%d" % (MX[e], MX[e], MX[e] + 1))
    for e in range(2): a("v_rcp_f32 v%d, v%d" % (MX[e], MX[e]))
    a("s_add_u32 s%d, s%d, s%d\ns_add_u32 s%d, s%d, 0x%x" % (sT0, sT0, sT1, sT0, sT0, OFF_C + 256 * 1024))
    for e in range(2): a("v_mul_f32 v%d, v%d, v%d" % (MX[e], MX[e], vGA))
    for e in range(2):
        src = SC[e] + 8 * e
        for j in range(8): a("v_mul_f32 v%d, v%d, v%d" % (src + j, MX[e], src + j))
        for j in range(4): a("v_cvt_pk_bf16_f32 v%d, v%d, v%d" % (PA[e] + j, src + 2 * j, src + 2 * j + 1))
        a("buffer_store_dwordx4 %s, v%d, s[%d:%d], s%d offen offset:%d" % (vr(PA[e], 4), vK, SV, SV + 3, sT0, e * 1024))
    a("s_cmp_eq_u32 s%d, 7\ns_cbranch_scc1 %s" % (sI, lI7))
    NE = 6
    for x in fin_head(1, sA0): a(x)
    for c in range(NE):
        for x in fin_part(1, c, 208 + 8 * (c % 4), sA0): a(x)
    step(0, 2, 2, 0, 0, 0, last16=True)
    def final(first):
        stg = [(first + fin_head(0, sA1), 0, 11)]
        for db in range(3):
            stg.append((fin_part(0, 2 * db, 80 + 16 * db, sA1) + fin_part(0, 2 * db + 1, 88 + 16 * db, sA1), 8 * db + 11, min(8 * db + 19, 32)))
        step(1, 3, 0, 0, 0, 0, pre_out=False, staged=stg)
        a("s_nop 8")
        for x in fin_part(0, 6, 128, sA1) + fin_part(0, 7, 136, sA1): a(x)
    final([x for c in range(NE, 8) for x in fin_part(1, c, 208 + 8 * (c % 4), sA0)])
    a("s_branch %s" % lEn)
    a(lI7 + ":")
    step(0, 1, 2, 0, 0, 0, last16=True)
    final(fin_head(1, sA0) + [x for c in range(8) for x in fin_part(1, c, 208 + 8 * (c % 4), sA0)])
    a(lEn + ":")
    st_("s17")
    if TS3:
        a("s_mov_b32 m0, s70\ns_add_u32 s70, s70, 1\nv_writelane_b32 v255, s64, m0\ns_mov_b32 m0, s70\ns_add_u32 s70, s70, 1\nv_writelane_b32 v255, s66, m0")
        a("s_lshl_b32 s62, s2, 2\ns_add_u32 s62, s62, s%d\ns_lshl_b32 s62, s62, 8\ns_add_u32 s62, s62, 0x%x\nv_lshlrev_b32 v254, 2, v0" % (sWV, OFF_TS + 0x80000))
        a("buffer_store_dword v255, v254, s[%d:%d], s62 offen" % (SO, SO + 3))
    T.dump(SO, sWV, 4)
    a(done + ":\ns_endpgm")
    a(lRare + ":")
    for (ls, lb, kind) in spins:
        lp = a.label("sp")
        a(ls + ":\ns_mov_b32 s%d, 0x40000\n%s:" % (sT2, lp))
        a("s_sleep 8\n" + poll_load(kind) + "\ns_waitcnt vmcnt(0)\n%s\ns_cbranch_vccz %s" % (poll_cmp(kind), lb))
        a("s_sub_u32 s%d, s%d, 1\ns_cmp_lg_u32 s%d, 0\ns_cbranch_scc1 %s\ns_branch %s" % (sT2, sT2, sT2, lp, lb))
    for (ls, lb) in rels:
        a("%s:\nbuffer_wbl2 sc1\ns_waitcnt vmcnt(0)\ns_branch %s" % (ls, lb))
    sRET = 44
    for (p, sm, qk), (lr, users) in rare.items():
        for rid, (lj, lb) in enumerate(users):
            a("%s:\ns_mov_b32 s%d, %d\ns_branch %s" % (lj, sRET, rid, lr))
        a(lr + ":")
        a("s_nop 7\ns_nop 7")
        Sc, Sn = S[p], S[1 - p]
        for rb in range(2 if sm == 1 else 1):
            cur = [Sc + rb * 32 + j for j in range(32)] if sm == 1 else [Sc + j for j in range(64)]
            d, f = vX, vX + 2
            rowmax(d, cur)
            a("v_max_f32 v%d, 0, v%d\nv_exp_f32 v%d, -v%d" % (d, d, f, d))
            for r in cur: a("v_sub_f32 v%d, v%d, v%d" % (r, r, d))
            for j in range(16): a("v_sub_f32 v%d, v%d, v%d" % (NM + rb * 16 + j, NM + rb * 16 + j, d))
            nx = []
            if qk == 1: nx = [Sn + rb * 32 + j for j in range(32)]
            elif qk == 2 and rb == 0: nx = [Sn + j for j in range(64)]
            for r in nx: a("v_sub_f32 v%d, v%d, v%d" % (r, r, d))
            a("v_mul_f32 v%d, v%d, v%d" % (vL[rb], vL[rb], f))
            for j in range(0, 64, 4):
                for q in range(4): a("v_accvgpr_read_b32 v%d, a%d" % (TM + q, O + rb * 64 + j + q))
                for q in range(4): a("v_mul_f32 v%d, v%d, v%d" % (TM + q, TM + q, f))
                for q in range(4): a("v_accvgpr_write_b32 a%d, v%d" % (O + rb * 64 + j + q, TM + q))
        for c, x in sm_list(p, sm): a(x)
        for rid, (lj, lb) in enumerate(users):
            if rid < len(users) - 1: a("s_cmp_eq_u32 s%d, %d\ns_cbranch_scc1 %s" % (sRET, rid, lb))
            else: a("s_branch %s" % lb)
    a.add_kernel(name, 512, 100, 256)
    a.launch(name, 256, 256, 163840)
```

```python
from gen_common import *

def gen_p4(a, name="p3_kernel", ts=False, NST=5, AHEAD=3, SLP=8, WGF=1, PK=1, XOFF=OFF_X, MAP=0, XST="sc1", XLD="sc1", HOLD=None):
    a.begin_kernel(name)
    T = TS(a, ts, 2)
    done = a.label("p4done")
    SC_, SO = 12, 24
    sWV, sRB, sCB, sQ, sT0, sT1, sAO, sWO, sLM, sTL, sXO, sFL, sT2 = 28, 29, 30, 31, 32, 33, 34, 35, 36, 37, 38, 39, 40
    vL16, vA, vW = 1, (2, 3), (4, 5)
    ACC = 16; FR = 80
    NS = 18
    a("s_cmp_ge_u32 s2, 256\ns_cbranch_scc1 %s" % done)
    T.stamp(0)
    a("s_load_dwordx2 s[4:5], s[0:1], 96\ns_load_dwordx2 s[10:11], s[0:1], 80")
    a("v_lshrrev_b32 v10, 6, v0\nv_and_b32 v0, 63, v0\nv_readfirstlane_b32 s%d, v10" % sWV)
    if MAP == 0:
        a("s_lshr_b32 s%d, s2, 1\ns_and_b32 s%d, s%d, 3" % (sQ, sQ, sQ))
        a("s_and_b32 s%d, s2, 1\ns_lshl_b32 s%d, s%d, 3\ns_lshr_b32 s%d, s2, 5\ns_add_u32 s%d, s%d, s%d" % (sRB, sRB, sRB, sT0, sRB, sRB, sT0))
        a("s_lshr_b32 s%d, s2, 3\ns_and_b32 s%d, s%d, 3" % (sCB, sCB, sCB))
    elif MAP == 1:
        a("s_lshr_b32 s%d, s2, 3\ns_and_b32 s%d, s%d, 3" % (sQ, sQ, sQ))
        a("s_and_b32 s%d, s2, 7\ns_lshl_b32 s%d, s%d, 1\ns_lshr_b32 s%d, s2, 7\ns_add_u32 s%d, s%d, s%d" % (sRB, sRB, sRB, sT0, sRB, sRB, sT0))
        a("s_lshr_b32 s%d, s2, 5\ns_and_b32 s%d, s%d, 3" % (sCB, sCB, sCB))
    else:
        a("s_lshr_b32 s%d, s2, 3\ns_and_b32 s%d, s%d, 3" % (sQ, sQ, sQ))
        a("s_and_b32 s%d, s2, 6\ns_lshl_b32 s%d, s%d, 1\ns_lshr_b32 s%d, s2, 6\ns_add_u32 s%d, s%d, s%d" % (sRB, sRB, sRB, sT0, sRB, sRB, sT0))
        a("s_lshr_b32 s%d, s2, 5\ns_and_b32 s%d, s%d, 1\ns_and_b32 s%d, s2, 1\ns_lshl_b32 s%d, s%d, 1\ns_add_u32 s%d, s%d, s%d" % (sCB, sCB, sCB, sT0, sT0, sT0, sCB, sCB, sT0))
    a("v_lshlrev_b32 v%d, 4, v0" % vL16)
    a("s_lshl_b32 s%d, s%d, 2\ns_add_u32 s%d, s%d, s%d\ns_mul_i32 s%d, s%d, %d\ns_mul_i32 s%d, s%d, %d\ns_add_u32 s%d, s%d, s%d\ns_add_u32 s%d, s%d, 0x%x" % (sT0, sRB, sT0, sT0, sWV, sAO, sT0, CROW, sT1, sQ, 72 * 1024, sAO, sAO, sT1, sAO, sAO, OFF_C))
    a("s_lshr_b32 s%d, s%d, 1\ns_lshl_b32 s%d, s%d, 1\ns_add_u32 s%d, s%d, s%d\ns_mul_i32 s%d, s%d, %d\ns_lshl_b32 s%d, s%d, 1\ns_add_u32 s%d, s%d, s%d" % (sT0, sWV, sWO, sCB, sT0, sT0, sWO, sWO, sT0, WROW, sT1, sT1, sWO, sWO, sT1))
    a("s_and_b32 s%d, s%d, 1\ns_lshl_b32 s%d, s%d, 12\ns_add_u32 s%d, s%d, s%d\ns_add_u32 s%d, s%d, 0x%x" % (sT0, sWV, sT0, sT0, sWO, sWO, sT0, sWO, sWO, OFF_W))
    a("s_lshl_b32 s%d, s%d, 12" % (sLM, sWV))
    a("s_waitcnt lgkmcnt(0)")
    srd(a, SC_, 4, WS_SIZE)
    def dma(s):
        base = (s % NST) * 32768
        G = [["s_add_u32 m0, s%d, %d" % (sLM, base), "s_nop 0"]]
        G += [["buffer_load_dwordx4 v%d, s[%d:%d], s%d offen offset:%d lds" % (vL16, SC_, SC_ + 3, sAO, o * 1024)] for o in range(4)]
        G += [["s_add_u32 m0, s%d, %d" % (sLM, base + 16384), "s_add_u32 s%d, s%d, 4096" % (sAO, sAO)]]
        G += [["buffer_load_dwordx4 v%d, s[%d:%d], s%d offen offset:%d lds" % (vL16, SC_, SC_ + 3, sWO, o * 1024)] for o in range(4)]
        G += [["s_add_u32 s%d, s%d, 8192" % (sWO, sWO)]]
        return G
    for s in range(AHEAD):
        for g in dma(s):
            for x in g: a(x)
    srd(a, SO, 10, 2048 * 1024)
    a("s_and_b32 s%d, s%d, 1\ns_lshl_b32 s%d, s%d, 1\ns_and_b32 s%d, s%d, 1\ns_add_u32 s%d, s%d, s%d\ns_lshl_b32 s%d, s%d, 12" % (sT0, sWV, sT0, sT0, sT1, sQ, sT2, sT0, sT1, sT0, sT2))
    a("v_add_u32 v%d, s%d, v%d\nv_xor_b32 v%d, 4096, v%d" % (vA[0], sT0, vL16, vA[1], vA[0]))
    a("s_lshr_b32 s%d, s%d, 1\ns_lshl_b32 s%d, s%d, 13\ns_lshr_b32 s%d, s%d, 1\ns_lshl_b32 s%d, s%d, 10\ns_add_u32 s%d, s%d, s%d\ns_add_u32 s%d, s%d, 16384" % (sT0, sWV, sT0, sT0, sT1, sQ, sT1, sT1, sT0, sT0, sT1, sT0, sT0))
    a("v_add_u32 v%d, s%d, v%d\nv_xor_b32 v%d, 1024, v%d" % (vW[0], sT0, vL16, vW[1], vW[0]))
    a("v_and_b32 v6, 31, v0\nv_lshlrev_b32 v6, 10, v6\nv_lshrrev_b32 v7, 5, v0\nv_lshl_add_u32 v6, v7, 4, v6")
    sOUT = 41
    a("s_lshl_b32 s%d, s%d, 2\ns_add_u32 s%d, s%d, s%d\ns_lshl_b32 s%d, s%d, 15" % (sT0, sRB, sT0, sT0, sT2, sOUT, sT0))
    a("s_lshl_b32 s%d, s%d, 2\ns_and_b32 s%d, s%d, 2\ns_add_u32 s%d, s%d, s%d\ns_lshr_b32 s%d, s%d, 1\ns_add_u32 s%d, s%d, s%d\ns_lshl_b32 s%d, s%d, 6\ns_add_u32 s%d, s%d, s%d" % (sT0, sCB, sT1, sWV, sT0, sT0, sT1, sT1, sQ, sT0, sT0, sT1, sT0, sT0, sOUT, sOUT, sT0))
    a("s_lshl_b32 s%d, s%d, 2\ns_add_u32 s%d, s%d, s%d" % (sTL, sRB, sTL, sTL, sCB))
    a("s_mul_i32 s%d, s%d, %d\ns_add_u32 s%d, s%d, s%d\ns_add_u32 s%d, s%d, 0x%x" % (sXO, sTL, 4 * 49152, sXO, sXO, sLM, sXO, sXO, XOFF))
    a("s_lshl_b32 s%d, s%d, 2\ns_add_u32 s%d, s%d, s%d\ns_lshl_b32 s%d, s%d, 7\ns_add_u32 s%d, s%d, 0x%x" % (sFL, sTL, sFL, sFL, sWV, sFL, sFL, sFL, sFL, OFF_FL))
    cur = [0]
    def reads(k):
        s, ks = k // 4, k % 4
        base = (s % NST) * 32768
        L = []
        win = base // 65536
        if win != cur[0]:
            d = (win - cur[0]) * 65536
            for r in vA + vW: L.append(("v_add_u32 v%d, 0x%x, v%d" % (r, d, r)) if d > 0 else ("v_subrev_u32 v%d, 0x%x, v%d" % (r, -d, r)))
            cur[0] = win
        off = base % 65536
        F = FR + 16 * (k % 4)
        L += ["ds_read_b128 %s, v%d offset:%d" % (vr(F + 8, 4), vW[0], off + ks * 2048), "ds_read_b128 %s, v%d offset:%d" % (vr(F, 4), vA[0], off + ks * 1024),
              "ds_read_b128 %s, v%d offset:%d" % (vr(F + 4, 4), vA[1], off + ks * 1024), "ds_read_b128 %s, v%d offset:%d" % (vr(F + 12, 4), vW[1], off + ks * 2048)]
        return L
    a("s_waitcnt vmcnt(%d)\ns_barrier" % (8 * (AHEAD - 1)))
    T.stamp(1)
    for x in reads(0) + reads(1): a(x)
    pend = []
    NK = NS * 4
    for k in range(NK):
        s, ks = k // 4, k % 4
        if ks == 2 and s + 1 < NS:
            left = min(AHEAD - 1, NS - 1 - s) - 1
            a("s_waitcnt vmcnt(%d) lgkmcnt(4)\ns_barrier" % (8 * max(left, 0)))
            pend = dma(s + AHEAD) if s + AHEAD < NS else []
        else:
            a("s_waitcnt lgkmcnt(%d)" % (4 if k + 1 < NK else 0))
        F = FR + 16 * (k % 4)
        order = (0, 1, 2, 3) if k < NK - 1 else (1, 2, 3, 0)
        R = reads(k + 2) if k + 2 < NK else []
        take = pend[:4]; pend = pend[4:]
        for n, b in enumerate(order):
            rb, cb = b & 1, b >> 1
            acc = vr(ACC + b * 16, 16)
            a("%s %s, %s, %s, %s" % (MF32, acc, vr(F + 8 + 4 * cb, 4), vr(F + 4 * rb, 4), "0" if k == 0 else acc))
            lo, hi = (len(R) * n) // 4, (len(R) * (n + 1)) // 4
            for x in R[lo:hi]: a(x)
            if n < len(take):
                for x in take[n]: a(x)
    T.stamp(2)
    a("v_and_b32 v8, 3, v0\nv_lshlrev_b32 v8, 2, v8\nv_lshlrev_b32 v9, 28, v0\nv_mov_b32 v10, 1\ns_lshl_b32 s%d, s%d, 2\ns_add_u32 s%d, s%d, s%d" % (sT2, sQ, sT2, sT2, sFL))
    a("v_cmp_eq_u32 vcc, 0, v0\nv_mov_b32 v11, 0x20000000\ns_nop 0\nv_cndmask_b32 v9, v11, 0, vcc\ns_nop 3")
    NC = 2 if PK else 4
    for j in range(1, 4):
        a("s_xor_b32 s%d, s%d, %d\ns_mul_i32 s%d, s%d, 49152\ns_add_u32 s%d, s%d, s%d\ns_add_u32 s%d, s%d, %d" % (sT0, sQ, j, sT0, sT0, sT0, sT0, sXO, sT0, sT0, (j - 1) * 16384))
        src = ACC + j * 16
        if PK:
            for r in range(8): a("v_cvt_pk_bf16_f32 v%d, v%d, v%d" % (FR + 8 * j + r, src + 2 * r, src + 2 * r + 1))
            src = FR + 8 * j
        for c in range(NC):
            a("buffer_store_dwordx4 %s, v%d, s[%d:%d], s%d offen offset:%d %s" % (vr(src + 4 * c, 4), vL16, SC_, SC_ + 3, sT0, c * 1024, XST))
    a("s_waitcnt vmcnt(0)")
    T.stamp(3)
    lp, lo_ = a.label("xpoll"), a.label("xok")
    if WGF: a("s_barrier\ns_cmp_lg_u32 s%d, 0\ns_cbranch_scc1 %s" % (sWV, lo_))
    a("buffer_store_dword v10, v9, s[%d:%d], s%d offen %s" % (SC_, SC_ + 3, sT2, XST))
    a("s_mov_b32 s%d, 0x80000\n%s:" % (sT1, lp))
    if SLP: a("s_sleep %d" % SLP)
    a("buffer_load_dword v12, v8, s[%d:%d], s%d offen sc1\ns_waitcnt vmcnt(0)\nv_cmp_ne_u32 vcc, 1, v12\ns_cbranch_vccz %s" % (SC_, SC_ + 3, sFL, lo_))
    a("s_sub_u32 s%d, s%d, 1\ns_cmp_lg_u32 s%d, 0\ns_cbranch_scc1 %s\n%s:" % (sT1, sT1, sT1, lp, lo_))
    if WGF: a("s_barrier")
    T.stamp(4)
    a("s_mul_i32 s%d, s%d, 49152\ns_add_u32 s%d, s%d, s%d" % (sT0, sQ, sT0, sT0, sXO))
    for j in range(1, 4):
        for c in range(NC):
            a("buffer_load_dwordx4 %s, v%d, s[%d:%d], s%d offen offset:%d %s" % (vr(ACC + j * 16 + 4 * c, 4), vL16, SC_, SC_ + 3, sT0, c * 1024, XLD))
        a("s_add_u32 s%d, s%d, 16384" % (sT0, sT0))
    for j in range(1, 4):
        a("s_waitcnt vmcnt(%d)" % (NC * (3 - j)))
        if PK:
            for r in range(8):
                t = ACC + j * 16 + r
                a("v_lshlrev_b32 v12, 16, v%d\nv_and_b32 v13, 0xffff0000, v%d\nv_add_f32 v%d, v%d, v12\nv_add_f32 v%d, v%d, v13" % (t, t, ACC + 2 * r, ACC + 2 * r, ACC + 2 * r + 1, ACC + 2 * r + 1))
        else:
            for r in range(16): a("v_add_f32 v%d, v%d, v%d" % (ACC + r, ACC + r, ACC + j * 16 + r))
    for r in range(8): a("v_cvt_pk_bf16_f32 v%d, v%d, v%d" % (FR + r, ACC + 2 * r, ACC + 2 * r + 1))
    T.stamp(5)
    a("s_nop 1")
    for pr in range(2):
        a("v_permlane32_swap_b32 v%d, v%d\nv_permlane32_swap_b32 v%d, v%d" % (FR + 4 * pr, FR + 4 * pr + 2, FR + 4 * pr + 1, FR + 4 * pr + 3))
    for pr in range(2):
        a("buffer_store_dwordx4 %s, v6, s[%d:%d], s%d offen offset:%d" % (vr(FR + 4 * pr, 4), SO, SO + 3, sOUT, 32 * pr))
    T.dump(SC_, sWV, 4)
    if ts and HOLD:
        (ka, ia), (kb, ib), wg = HOLD
        lp = a.label("hold")
        a("v_mov_b32 v2, 0")
        for n, off in enumerate((OFF_TS + 4, OFF_TS + ka * 0x80000 + wg * 512 + ia * 8 + 4, OFF_TS + kb * 0x80000 + wg * 512 + ib * 8 + 4)):
            a("s_mov_b32 s44, 0x%x\nbuffer_load_dword v%d, v2, s[%d:%d], s44 offen sc1" % (off, 4 + n, SC_, SC_ + 3))
        a("s_cmp_lg_u32 s2, %d\ns_cbranch_scc1 %s" % (wg, done))
        a("s_waitcnt vmcnt(0)\nv_sub_u32 v6, v6, v5\nv_add_u32 v4, v4, v6\ns_nop 0\nv_readfirstlane_b32 s45, v4")
        a("%s:\ns_memrealtime s[46:47]\ns_waitcnt lgkmcnt(0)\ns_sub_u32 s46, s46, s45\ns_cmp_lt_i32 s46, 10000\ns_cbranch_scc1 %s" % (lp, lp))
    a(done + ":\ns_endpgm")
    a.add_kernel(name, 144, 100 if ts else 48, 144)
    a.launch(name, 256, 256, 32768 * NST)
```

```python
from gen_common import *
from sched import Sched
MF16 = "v_mfma_f32_16x16x32_bf16"

pX, pWQKV, pWO0, pC, pWQ, pWUK, pWUV, pBWO, pGATE, pDBG, pWS = 36, 38, 40, 44, 46, 48, 50, 52, 54, 58, 60
pWO = 58
NEG = "0xff800000"
THRESH = fbits(2.0 ** 48)
WSL = (98304, 131072)
LDS_G = WSL[0] + 24576
def aslot(g): return ((g + 2) % 3) * 32768

HACK16 = [0, 0]
def emit(a, M, streams):
    if HACK16[0]:
        import re
        M2 = []
        HACK16[1] += 1
        for t in M:
            m = re.match(r"(\S+) ([av])\[(\d+):\d+\], (\S+), (\S+), (\S+)", t)
            for q in range(2):
                b = int(m.group(3)) + 8 * (HACK16[1] % 2) + 4 * q
                d = "%s[%d:%d]" % (m.group(2), b, b + 3)
                M2.append("v_mfma_f32_16x16x32_bf16 %s, %s, %s, %s" % (d, m.group(4), m.group(5), d))
        M = M2
        streams = [([x for g in G for x in (g if isinstance(g, list) else [g])], 2 * l, 2 * h) for (G, l, h) in streams]
    n = len(M)
    fill = [[] for _ in range(n)]
    for (G, l, h) in streams:
        if not G: continue
        for g, m in zip(G, spread(len(G), l, min(h, n))):
            fill[m] += g if isinstance(g, list) else [g]
    for m in range(n):
        a(M[m])
        for x in fill[m]: a(x)
def isvm(x): return x.startswith("buffer_") or x.startswith("global_")

def gen_fused(a, name="p1_kernel", ts=False, NSK=30, WSP=16, PF=1, PKMUL=0, next_kernel=None, PD=8, TS2=0, QSL=(4, 6, 5), endlabel=None, NOTR=1, CRF=2, PDW=5, GPUB=11, VERB=0, H16=0, W16=0, TS3=0, WP=2, NEWP=1, WPF=None, LNT="", NTG=8, LATEAT=0, STAMPS=("start","setup","bar0","q","attn","s0","s17"), XSL=3, XL2=0, ST=""):
    a.begin_kernel(name)
    T = TS(a, ts, 0)
    def st_(nm):
        if nm in STAMPS: T.stamp(STAMPS.index(nm))
    done = a.label("fdone")
    lAttn, lRare = a.label("attn"), a.label("rarecode")
    sWV = 3
    SA, SW, SX, SO, SD = 4, 8, 12, 16, 40
    sH, sI, sT0, sT1, sT2 = 20, 21, 22, 23, 24
    sAS, sAS2, sWS, sXS, sAM, sWM, sXM, sCNT, sOK, sDS, sSC = 25, 26, 27, 28, 29, 30, 31, 32, 33, 34, 35
    sQL, sQS, sU, sOA, sAD, sWD, sOJ, sVD, sFA, sGR = 92, 93, 94, 95, 96, 97, 56, 57, 63, 99
    sKO, sVO, sW4, sW8, sTH, sT = 48, 49, 50, 51, 54, 55
    vL16 = 1
    vAO, vWO, vXO = (2, 3, 4, 5), (6, 7, 8, 9), (10, 11)
    vAR, vWR, vXR = (12, 13), tuple(range(14, 22)), (22, 23, 24, 25)
    vOS, vOK = 26, 27
    QS = (28, 44); WR, NWR = 60, 8; TT, PK = 96, 104
    KS = (128, 160)
    vFO, vONE, vPFD, vTS, vW12, vPL, vPLO = 120, 121, 122, 123, 124, 125, 126
    sWS2, sOK2 = 62, 98
    QA = 128
    t2 = [0]
    def bar(waitstr):
        if TS2:
            n = t2[0]; t2[0] += 1
            if n > 0: a("v_writelane_b32 v123, s64, %d\nv_writelane_b32 v123, s66, %d" % (2 * n - 2, 2 * n - 1))
            a("s_memtime s[64:65]")
        a(waitstr + "\ns_barrier")
        if TS2: a("s_memtime s[66:67]")
    a("s_cmp_ge_u32 s2, 256\ns_cbranch_scc1 %s" % done)
    st_("start")
    a("s_load_dwordx16 s[36:51], s[0:1], 0\ns_load_dwordx8 s[52:59], s[0:1], 64\ns_load_dwordx2 s[60:61], s[0:1], 96")
    a("v_lshrrev_b32 v30, 6, v0\nv_and_b32 v0, 63, v0\nv_readfirstlane_b32 s%d, v30" % sWV)
    a("s_and_b32 s%d, s2, 7\ns_lshl_b32 s%d, s%d, 2\ns_lshr_b32 s%d, s2, 3\ns_and_b32 s%d, s%d, 3\ns_add_u32 s%d, s%d, s%d" % (sH, sH, sH, sT0, sT0, sT0, sH, sH, sT0))
    a("s_lshr_b32 s%d, s2, 5" % sI)
    a("v_lshlrev_b32 v%d, 4, v0" % vL16)
    a("v_lshrrev_b32 v30, 3, v0\nv_lshrrev_b32 v31, 4, v0\nv_and_b32 v32, 7, v0")
    a("v_xor_b32 v33, v31, v32\nv_lshlrev_b32 v33, 4, v33\nv_lshl_add_u32 v%d, v30, 10, v33" % vAO[0])
    a("v_add_u32 v%d, %d, v%d\nv_xor_b32 v33, 64, v%d\nv_add_u32 v%d, %d, v33\nv_add_u32 v%d, %d, v33" % (vAO[1], 7168, vAO[0], vAO[0], vAO[2], 2 * 7168, vAO[3], 3 * 7168))
    a("v_and_b32 v33, 15, v0\nv_lshlrev_b32 v34, 2, v31\nv_xor_b32 v33, v33, v34\nv_lshlrev_b32 v33, 4, v33\nv_lshl_add_u32 v%d, v31, 13, v33" % vWO[0])
    a("v_add_u32 v%d, %d, v%d\nv_xor_b32 v33, 16, v%d\nv_add_u32 v%d, %d, v33\nv_add_u32 v%d, %d, v33" % (vWO[1], 31744, vWO[0], vWO[0], vWO[2], 2 * 31744, vWO[3], 3 * 31744))
    a("s_sub_u32 s%d, 15, s%d\ns_bitcmp1_b32 s%d, 0\ns_cselect_b32 s%d, s%d, s%d\ns_lshl_b32 s%d, s%d, 1\ns_lshr_b32 s%d, s%d, 1\ns_add_u32 s%d, s%d, s%d" % (sT0, sI, sWV, sT0, sT0, sI, sT0, sT0, sT1, sWV, sT0, sT0, sT1))
    a("s_lshl_b32 s%d, s%d, 16\ns_add_u32 s%d, s%d, 32768" % (sAS, sT0, sAS2, sAS))
    a("s_lshl_b32 s%d, s%d, 13\ns_mov_b32 s%d, s%d" % (sAM, sWV, sWM, sAM))
    a("s_and_b32 s%d, s%d, 1\ns_lshl_b32 s%d, s%d, 18\ns_lshl_b32 s%d, s%d, 8\ns_add_u32 s%d, s%d, s%d" % (sT0, sWV, sT0, sT0, sWS, sH, sWS, sWS, sT0))
    a("s_and_b32 s%d, s2, 31\ns_add_u32 s%d, s%d, 0x20000" % (sU, sWS2, sWS))
    a("s_waitcnt lgkmcnt(0)")
    srd(a, SA, pC, 0x200000)
    a("s_cmp_lt_u32 s%d, 2\ns_cselect_b32 s%d, s%d, s%d\ns_cselect_b32 s%d, s%d, s%d\ns_mov_b32 s%d, 0x400000\ns_mov_b32 s%d, 0x20000" % (sWV, SW, pWUK, pWUV, SW + 1, pWUK + 1, pWUV + 1, SW + 2, SW + 3))
    def dgrp(m0s, m0i, vo, srd_, so, stp, nd):
        G = ["s_add_u32 m0, s%d, %d" % (m0s, m0i)]
        G += ["buffer_load_dwordx4 v%d, s[%d:%d], s%d offen offset:%d lds ; need:%d" % (v, srd_, srd_ + 3, so, n * 1024, nd) for n, v in enumerate(vo)]
        G.append("s_add_u32 s%d, s%d, %d" % (so, so, stp))
        return G
    def fixm0(G):
        out = []
        for k, x in enumerate(G):
            out.append(x)
            if x.startswith("s_add_u32 m0"):
                if len(out) > 1 and out[-2].startswith("s_add_u32 s"): out[-1], out[-2] = out[-2], out[-1]
                else: out.append("s_nop 0")
        return out
    def dma_act(g): return fixm0(dgrp(sAM, aslot(g), vAO, SA, sAS, 128, g) + dgrp(sAM, aslot(g) + 4096, vAO, SA, sAS2, 128, g))
    def dma_w(g, withx=True):
        G = dgrp(sWM, WSL[g % 2], vWO, SW, sWS, 0x80000, g)
        if g < 8: G += dgrp(sWM, WSL[g % 2] + 4096, vWO, SW, sWS2, 0x80000, g)
        elif withx: G += dgrp(sXM, WSL[g % 2] + 16384, vXO, SX, sXS, 64 * 3072, g)
        return fixm0(G)
    for x in dma_w(0) + dma_act(0): a(x.split(";")[0])
    NSL = max(XL2 + 4 if XL2 else 0, max(QSL) + 1, XSL + 1)
    def preg(k): return 192 + 2 * k
    def pf(k): return "global_load_dword v122, %s, off" % vr(preg(k), 2)
    def pfa(k, base, vo, so, imm=0):
        r = preg(k)
        a("s_add_u32 s%d, s%d, %d\nv_mov_b32 v%d, s%d\nv_add_u32 v%d, s%d, v%d" % (sT2, so, imm, r + 1, base + 1, r, sT2, vo))
        a("v_add_co_u32 v%d, vcc, s%d, v%d\ns_nop 1\nv_addc_co_u32 v%d, vcc, 0, v%d, vcc" % (r, base, r, r + 1, r + 1))
    def pfnone(k): a("v_mov_b32 v%d, s%d\nv_mov_b32 v%d, s%d" % (preg(k), pGATE, preg(k) + 1, pGATE + 1))
    if PF:
        l1, l3, le = a.label("pf1"), a.label("pf3"), a.label("pfe")
        a("s_cmp_eq_u32 s%d, 1\ns_cbranch_scc1 %s\ns_cmp_eq_u32 s%d, 3\ns_cbranch_scc1 %s" % (sWV, l1, sWV, l3))
        a("v_and_b32 v26, 31, v0\nv_lshlrev_b32 v26, 7, v26\ns_lshl_b32 s%d, s2, 13\ns_lshl_b32 s%d, s%d, 11\ns_add_u32 s%d, s%d, s%d" % (sT0, sT1, sWV, sT0, sT0, sT1))
        pfa(0, pC, 26, sT0, 0); a(pf(0))
        pfa(XSL, pX, 26, sT0, 0)
        used = {0, XSL}
        if XL2:
            a("s_lshr_b32 s%d, s2, 3\ns_lshl_b32 s%d, s%d, 16\ns_lshl_b32 s%d, s%d, 6\ns_add_u32 s%d, s%d, s%d\nv_lshlrev_b32 v26, 10, v0" % (sT0, sT0, sT0, sT1, sWV, sT1, sT0, sT1))
            for j in range(4):
                pfa(XL2 + j, pX, 26, sT1, 256 * j); used.add(XL2 + j)
        for k in range(NSL):
            if k not in used: pfnone(k)
        a("s_branch %s\n%s:" % (le, l1))
        a("v_lshrrev_b32 v26, 1, v0\nv_lshlrev_b32 v26, 13, v26\nv_and_b32 v27, 1, v0\nv_lshl_add_u32 v26, v27, 7, v26")
        a("s_bitcmp1_b32 s%d, 1\ns_cselect_b32 s98, s%d, s%d\ns_cselect_b32 s99, s%d, s%d" % (sI, pWUV, pWUK, pWUV + 1, pWUK + 1))
        a("s_and_b32 s%d, s%d, 1\ns_lshl_b32 s%d, s%d, 18\ns_lshl_b32 s%d, s%d, 8\ns_add_u32 s%d, s%d, s%d" % (sT0, sI, sT0, sT0, sT1, sH, sCNT, sT0, sT1))
        a("s_lshr_b32 s%d, s%d, 2\ns_lshl_b32 s%d, s%d, 19\ns_add_u32 s%d, s%d, s%d" % (sT0, sI, sT0, sT0, sT0, sT0, sCNT))
        pfa(0, 98, 26, sT0, 1 * 0x80000); a(pf(0))
        pfa(1, 98, 26, sT0, 3 * 0x80000); pfa(2, 98, 26, sT0, 5 * 0x80000); pfa(3, 98, 26, sCNT, 7 * 0x80000)
        for k in range(4, NSL): pfnone(k)
        a("s_branch %s\n%s:" % (le, l3))
        lpc = a.label("pc")
        a("s_getpc_b64 s[98:99]\n%s:" % lpc)
        a("s_lshr_b32 s%d, s2, 3\nv_lshlrev_b32 v26, 5, v0\nv_add_u32 v26, s%d, v26\nv_lshlrev_b32 v26, 7, v26\ns_mov_b32 s%d, 0" % (sT0, sT0, sT0))
        a("v_min_u32 v27, %s-%s, v26" % (lAttn, lpc))
        pfa(0, 98, 27, sT0, 0); a(pf(0))
        a("v_lshrrev_b32 v26, 1, v0\nv_lshlrev_b32 v26, 13, v26\nv_and_b32 v27, 1, v0\nv_lshl_add_u32 v26, v27, 7, v26")
        a("s_lshl_b32 s%d, s%d, 18\ns_lshl_b32 s%d, s%d, 8\ns_add_u32 s%d, s%d, s%d" % (sT0, sI, sT1, sH, sT0, sT0, sT1))
        pfa(QSL[0], pWQ, 26, sT0, 0); pfa(QSL[1], pWQ, 26, sT0, 4 * 0x80000)
        a("s_min_u32 s%d, s%d, 23\ns_lshl_b32 s%d, s%d, 7\ns_mul_i32 s%d, s%d, %d\ns_add_u32 s%d, s%d, s%d\nv_mul_u32_u24 v26, 3072, v0" % (sT0, sU, sT0, sT0, sT1, sI, 64 * 3072, sT0, sT0, sT1))
        pfa(QSL[2], pWQKV, 26, sT0, 0)
        for k in range(1, NSL):
            if k not in QSL: pfnone(k)
        a(le + ":")
    def pfp(p): return [pf(p + 2)] if (PF and p + 2 < NSL) else []
    srd(a, SO, pWS, WS_SIZE)
    a("v_and_b32 v33, 1, v31\nv_lshlrev_b32 v33, 2, v33\nv_xor_b32 v33, v33, v32\nv_lshlrev_b32 v33, 4, v33\ns_movk_i32 s%d, 3072\nv_mad_u32_u24 v%d, v30, s%d, v33" % (sT0, vXO[0], sT0))
    a("v_xor_b32 v33, 16, v%d\nv_add_u32 v%d, %d, v33" % (vXO[0], vXO[1], 24576 - 1024))
    a("v_and_b32 v33, 1, v30\nv_lshl_add_u32 v33, v33, 4, v32")
    a("v_and_b32 v34, 15, v0\nv_lshrrev_b32 v34, 1, v34\nv_xor_b32 v34, v34, v31\nv_lshlrev_b32 v34, 4, v34\nv_lshl_add_u32 v34, v33, 7, v34")
    a("s_and_b32 s%d, s%d, 1\ns_lshl_b32 s%d, s%d, 14\ns_add_u32 s%d, s%d, %d" % (sT0, sWV, sT0, sT0, sT0, sT0, aslot(0)))
    a("v_add_u32 v%d, s%d, v34\nv_xor_b32 v%d, 64, v%d" % (vAR[0], sT0, vAR[1], vAR[0]))
    a("v_lshlrev_b32 v33, 4, v33\nv_lshl_add_u32 v%d, v31, 9, v33" % vOS)
    a("v_and_b32 v34, 1, v31\nv_lshl_add_u32 v33, v34, 10, v33\nv_lshrrev_b32 v35, 5, v0\nv_lshl_add_u32 v33, v35, 9, v33")
    a("s_cmp_lt_u32 s%d, 2\ns_cselect_b64 vcc, -1, 0\nv_cndmask_b32 v%d, v%d, v33, vcc" % (sWV, vOK, vOS))
    a("v_lshrrev_b32 v35, 2, v0\nv_and_b32 v35, 3, v35\nv_lshl_add_u32 v36, v31, 3, v35")
    a("v_and_b32 v37, 2, v0\nv_xor_b32 v37, v37, v34\nv_and_b32 v38, 1, v0\nv_lshlrev_b32 v38, 3, v38")
    a("v_lshlrev_b32 v39, 2, v35\nv_xor_b32 v39, v39, v37\nv_lshlrev_b32 v39, 4, v39\nv_lshl_add_u32 v39, v36, 8, v39")
    a("s_lshr_b32 s%d, s%d, 1\ns_lshl_b32 s%d, s%d, 14\ns_add_u32 s%d, s%d, %d\nv_add3_u32 v39, v39, v38, s%d" % (sWD, sWV, sWD, sWD, sT0, sWD, WSL[0], sT0))
    for k in range(8): a("v_xor_b32 v%d, %d, v39" % (vWR[k], 64 * (k // 2) + 16 * (k % 2)))
    a("v_lshrrev_b32 v39, 1, v35\nv_lshlrev_b32 v39, 2, v39\nv_xor_b32 v39, v39, v37\nv_lshlrev_b32 v39, 4, v39\nv_lshl_add_u32 v39, v36, 7, v39\nv_add_u32 v39, v39, v38\nv_add_u32 v39, %d, v39" % (WSL[0] + 16384))
    for k in range(4): a("v_xor_b32 v%d, %d, v39" % (vXR[k], 64 * (k // 2) + 16 * (k % 2)))
    a("s_lshl_b32 s%d, s%d, 2\ns_add_u32 s%d, s%d, s%d\ns_sub_u32 s%d, 60, s%d\ns_add_u32 s%d, s%d, s%d" % (sT1, sI, sQS, sT1, sWV, sQL, sT1, sQL, sQL, sWV))
    a("s_lshr_b32 s%d, s%d, 1\ns_lshl_b32 s%d, s%d, 5\ns_add_u32 s%d, s%d, s%d\ns_add_u32 s%d, s%d, 44\ns_lshl_b32 s%d, s%d, 19" % (sT0, sWV, sT0, sT0, sT0, sT0, sH, sT0, sT0, sOK, sT0))
    a("s_and_b32 s%d, s%d, 1\ns_lshl_b32 s%d, s%d, 1\ns_add_u32 s%d, s%d, s%d\ns_lshl_b32 s%d, s%d, 14\ns_add_u32 s%d, s%d, s%d" % (sT0, sWV, sT1, sI, sT0, sT0, sT1, sT0, sT0, sOK, sOK, sT0))
    a("s_lshl_b32 s%d, s%d, 16\ns_sub_u32 s%d, %d, s%d" % (sT0, sI, sOJ, 60 * 8192 - 4096, sT0))
    a("s_lshl_b32 s%d, s%d, 13\ns_and_b32 s%d, s%d, 1\ns_lshl_b32 s%d, s%d, 14\ns_sub_u32 s%d, s%d, s%d\ns_add_u32 s%d, s%d, %d" % (sT0, sWV, sT1, sWV, sT1, sT1, sAD, sT0, sT1, sAD, sAD, aslot(8) - aslot(7)))
    a("s_lshl_b32 s%d, s%d, 6\nv_add_u32 v%d, s%d, v0\nv_lshlrev_b32 v%d, 12, v%d\nv_mov_b32 v%d, 1" % (sT0, sWV, vFO, sT0, vFO, vFO, vONE))
    lpc2 = a.label("pc")
    a("s_getpc_b64 s[0:1]\n%s:" % lpc2)
    a("s_lshr_b32 s%d, s2, 3\ns_lshl_b32 s%d, s%d, 2\ns_add_u32 s%d, s%d, s%d\nv_and_b32 v127, 15, v0\nv_lshlrev_b32 v127, 7, v127\nv_add_lshl_u32 v127, v127, s%d, 7" % (sT0, sT0, sT0, sT0, sT0, sWV, sT0))
    a("v_min_u32 v127, %s-%s, v127" % (endlabel or lRare, lpc2))
    srd(a, SX, pGATE, 1024)
    a("s_mov_b32 s98, s%d\ns_mov_b32 s99, s%d" % (pWO0, pWO0 + 1))
    srd(a, SD, pDBG, 256)
    a("s_mov_b32 s%d, s98\ns_mov_b32 s%d, s99" % (pWO, pWO + 1))
    a("s_getreg_b32 s%d, hwreg(HW_REG_XCC_ID, 0, 4)\ns_mul_i32 s%d, s%d, s%d\ns_lshl_b32 s%d, s%d, 8\ns_add_u32 s%d, s%d, s%d\ns_lshl_b32 s%d, s%d, 8\ns_add_u32 s%d, s%d, 1" % (sT0, sT1, sT0, sT0, sT1, sT1, sT1, sT1, sT0, sT1, sT1, sFA, sT1))
    a("v_mov_b32 v125, s%d\ns_lshl_b32 s%d, s%d, 3\ns_and_b32 s%d, s2, 7\ns_lshl_b32 s%d, s%d, 2\ns_lshl_b32 s%d, s%d, 2" % (sFA, sFA, sFA, sGR, sGR, sGR, sCNT, sH))
    a("v_and_b32 v126, 3, v0\nv_add_lshl_u32 v126, v126, s%d, 2\ns_lshl_b32 s%d, s%d, 12\nv_add_u32 v126, s%d, v126\nv_mov_b32 v124, s%d" % (sGR, sT0, sWV, sT0, sT0))
    a("buffer_atomic_add v125, v%d, s[%d:%d], s%d offen offset:128 sc1\ns_add_u32 s%d, s%d, 8192" % (vFO, SD, SD + 3, sCNT, sOK2, sOK))

    def wofs(g): return (g % 2) * 32768
    def xa(g, ks):
        if g == 7: return "v_add_u32 v%d, s%d, v%d" % (vAR[ks], sAD, vAR[ks])
        d = aslot(g + 1) - aslot(g)
        return ("v_add_u32 v%d, 0x%x, v%d" % (vAR[ks], d, vAR[ks])) if d > 0 else ("v_subrev_u32 v%d, 0x%x, v%d" % (vAR[ks], -d, vAR[ks]))
    def rd_act(g, ks):
        F = (KS if g < 8 else QS)[ks]
        return ["ds_read_b128 %s, v%d offset:%d" % (vr(F + 4 * n, 4), vAR[ks], (n // 2) * 4096 + (n % 2) * 1024) for n in range(8 if g < 8 else 4)]
    def rd_w(g, ks, wf, slot):
        r = WR + 4 * (slot % NWR)
        if wf < 8: return ["ds_read_b64_tr_b16 %s, v%d offset:%d" % (vr(r + 2 * rd_, 2), vWR[wf], wofs(g) + ks * 8192 + rd_ * 1024) for rd_ in range(2)]
        if wf < 12: return ["ds_read_b64_tr_b16 %s, v%d offset:%d" % (vr(r + 2 * rd_, 2), vXR[wf - 8], wofs(g) + ks * 4096 + rd_ * 512) for rd_ in range(2)]
        return ["ds_read_b128 %s, v%d offset:%d" % (vr(r, 4), vXR[0], ((g - 8) * 2 + ks) * 64)]
    def mfs(g, ks, wf, slot, var):
        w = vr(WR + 4 * (slot % NWR), 4); F = (KS if g < 8 else QS)[ks]; first = (g % 8 == 0 and ks == 0)
        cb, tc = (wf % 8) // 2, wf % 2
        M = []
        for n in range(8 if g < 8 else 4):
            rb, tr = n // 2, n % 2
            x = vr(F + 4 * n, 4)
            sw = (var == "V") or (var == "S" and wf >= 8)
            tb, ta = (tc, tr) if sw else (tr, tc)
            if g < 8: acc = ar(((rb // 2) * 16 + cb * 4 + (rb % 2) * 2 + tb) * 8 + ta * 4, 4)
            elif wf < 8: acc = vr(QA + ((rb * 4 + cb) * 2 + tr) * 8 + tc * 4, 4)
            elif wf < 12: acc = ar((cb * 4 + rb * 2 + tb) * 8 + ta * 4, 4)
            else: acc = ar(4 * n, 4)
            M.append("%s %s, %s, %s, %s" % (MF16, acc, x if sw else w, w if sw else x, "0" if first else acc))
        return M
    def order(g, var):
        nw = list(range(8)) + ([8, 9, 10, 11] if var in "NS" else [12] if var == "G" else [])
        if g == 7: return [(ks, 2 * cb + t) for cb in range(4) for ks in range(2) for t in range(2)]
        if g == 15 and var in "NS":
            return [(ks, wf) for ks in range(2) for wf in range(8, 12)] + [(ks, 2 * cb + t) for cb in range(4) for ks in range(2) for t in range(2)]
        return [(ks, wf) for ks in range(2) for wf in nw]
    def build(g0, var):
        fr = [(g, ks, wf) for g in range(g0, g0 + 8) for (ks, wf) in order(g, var)]
        M = []; fm = []
        for k, (g, ks, wf) in enumerate(fr):
            fm.append(len(M)); M += mfs(g, ks, wf, k, var)
        S_ = Sched(M); n = len(M)
        look = [(8, 0, wf) for wf in range(PDW)] if g0 == 0 else []
        allf = fr + look
        cs = {};
        for k, (g, ks, wf) in enumerate(allf): cs.setdefault(g, k)
        bar_m = {g: fm[cs[g] - PDW + 1] for g in cs if g > g0}
        for g, m in bar_m.items(): S_.bars[m] = g
        na = 8 if g0 == 0 else 4
        items = []
        for k in range(PDW, len(allf)):
            g, ks, wf = allf[k]
            t = fm[k - PDW]; e = bar_m.get(g, 0); use = fm[k] if k < len(fr) else n + 1 + (k - len(fr))
            if k == cs[g] and g == 8: items += [(max(t, e), 0, j, ("v_subrev_u32 v%d, s%d, v%d" % (r, sWD, r), t, e, None)) for j, r in enumerate(vWR)]
            items += [(max(t, e), 1 if k == cs[g] else 3, 2 * k + j, (x, t, e, use)) for j, x in enumerate(rd_w(g, ks, wf, k))]
        for g in cs:
            for ks in range(2):
                if g == g0 and ks == 0: continue
                if g == 8 and g0 == 0 and ks == 1: continue
                R = rd_act(g, ks) + ([xa(g, ks)] if g < 15 else [])
                k1 = [k for k, f in enumerate(allf) if f[0] == g and f[1] == ks][0]
                u0 = fm[k1] if k1 < len(fr) else None
                for j, x in enumerate(R):
                    if ks == 0: t = e = bar_m[g]
                    else:
                        e = fm[cs[g]]; t = e + (j * min(u0 - e - 8, 40)) // len(R)
                    use = None if not x.startswith("ds_") else (u0 + j if u0 is not None else n)
                    items.append((max(t, e), 2, j, (x, t, e, use)))
        items.sort(key=lambda z: z[:3])
        S_.rq = [z[3] for z in items]
        S_.waitpts = [fm[k] for k in range(0, len(fr), 2 if var != "G" else 1) ]
        S_.place_reads()
        return S_, {g: fm[cs[g]] for g in range(g0, g0 + 8)}, bar_m, fm
    def pack(areg, pk, scale=None):
        t = TT
        G = ["v_accvgpr_read_b32 v%d, a%d" % (t + j, areg + j) for j in range(8)]
        if scale is not None: G += ["v_mul_f32 v%d, s%d, v%d" % (t + j, scale, t + j) for j in range(8)]
        G += ["v_cvt_pk_bf16_f32 v%d, v%d, v%d" % (pk + j, t + 2 * j, t + 2 * j + 1) for j in range(4)]
        return G
    def kv_unit(j, nd=None):
        cb, rb, tb = (j % 16) // 4, (j // 2) % 2, j % 2
        pk = PK + 4 * (j % 4)
        G = pack(j * 8, pk) + ["buffer_store_dwordx4 %s, v%d, s[%d:%d], s%d offen offset:%d%s" % (vr(pk, 4), vOK, SO, SO + 3, (sOK, sOK2)[rb], (cb % 2) * 2048 + tb * 128, " ; need:%d" % nd if nd else "")]
        if j == 15: G += ["s_add_u32 s%d, s%d, s%d" % (sOK, sOK, sOJ), "s_add_u32 s%d, s%d, s%d" % (sOK2, sOK2, sOJ)]
        elif j % 16 == 7: G += ["s_add_u32 s%d, s%d, 4096" % (sOK, sOK), "s_add_u32 s%d, s%d, 4096" % (sOK2, sOK2)]
        return G
    qa_setup = [["s_mov_b32 s%d, s%d" % (SA, pX), "s_mov_b32 s%d, s%d" % (SA + 1, pX + 1),
                 "s_lshl_b32 s%d, s%d, 15" % (sAS, sQL), "s_lshl_b32 s%d, s%d, 15" % (sAS2, sQS)]]
    qw_setup = [["s_mov_b32 m0, %d" % LDS_G, "s_mov_b32 s%d, s%d" % (SW, pWQ), "buffer_load_dwordx4 v%d, s[%d:%d], 0 offen lds ; need:8" % (vL16, SX, SX + 3), "s_mov_b32 s%d, s%d" % (SW + 1, pWQ + 1)],
                ["s_lshl_b32 s%d, s%d, 17" % (sT0, sWV), "s_lshl_b32 s%d, s%d, 8" % (sWS, sH), "s_add_u32 s%d, s%d, s%d" % (sWS, sWS, sT0), "s_lshl_b32 s%d, s%d, 12" % (sWM, sWV)],
                ["s_mov_b32 s%d, s%d" % (SX, pWQKV), "s_mov_b32 s%d, s%d" % (SX + 1, pWQKV + 1), "s_lshl_b32 s%d, s%d, 11" % (sXM, sWV), "s_mul_i32 s%d, s%d, %d" % (sXS, sWV, 16 * 3072)],
                ["s_lshl_b32 s%d, s%d, 7" % (sT0, sU), "s_add_u32 s%d, s%d, s%d" % (sXS, sXS, sT0),
                 "s_and_b32 s%d, s%d, 3" % (sT0, sH), "s_cmp_eq_u32 s%d, 3" % sT0, "s_cselect_b32 s%d, 0, 0x180000" % (SX + 2)]]
    at_setup = [["v_cmp_ne_u32 vcc, s%d, v125" % sFA], ["s_cmp_eq_u64 vcc, 0", "s_cselect_b32 s%d, 1, s%d" % (sFA, sWV)],
                ["s_cmp_eq_u32 s%d, 0" % sWV, "s_cselect_b32 s46, 8, 0", "s_cselect_b32 s47, 0x80000000, 0"],
                ["s_lshl_b32 s%d, s%d, 12" % (sW4, sWV), "s_lshl_b32 s%d, s%d, 13" % (sW8, sWV), "s_lshl_b32 s%d, s%d, 19" % (sT0, sH)],
                ["s_lshl_b32 s%d, s%d, 15" % (sVD, sI), "s_add_u32 s%d, s%d, s%d" % (sT0, sT0, sVD)],
                ["s_add_u32 s%d, s%d, 0x%x" % (sKO, sT0, OFF_K), "s_add_u32 s%d, s%d, 0x%x" % (sVO, sT0, OFF_V), "s_mov_b32 s%d, %s" % (sTH, THRESH)]]
    SK, SV = 4, SO
    vK, vV = vL16, 2
    def dma(which, typ, par, srd_=None):
        so, sr_, base = (sKO, SK, 0) if which == "K" else (sVO, SV, 65536)
        if srd_ is not None: sr_ = srd_
        sw = sW4 if typ == 1 else sW8
        G = []
        for q in range(typ):
            g = ["s_add_u32 m0, s%d, %d" % (sw, base + par * 32768 + q * 4096)]
            g.append("s_add_u32 s%d, s%d, s%d" % (sDS, so, sw) if q == 0 else "s_add_u32 s%d, s%d, 4096" % (sDS, sDS))
            G.append(g)
            for o in range(4):
                G.append(["buffer_load_dwordx4 v%d, s[%d:%d], s%d offen offset:%d sc1 lds" % (vK, sr_, sr_ + 3, sDS, o * 1024)])
        return G
    def adv(which, typ):
        so = sKO if which == "K" else sVO
        if which == "V" and typ == 1: return ["s_add_u32 s%d, s%d, s%d" % (so, so, sVD), "s_movk_i32 s%d, 0x4000" % sVD]
        return ["s_add_u32 s%d, s%d, %d" % (so, so, 16384 * typ)]
    spins = []
    vF1, vFA, vPO = 122, 251, 254
    sP1, sG1, sG2 = 45, 46, 47
    def poll_load(kind):
        if kind == 1: return "buffer_load_dword v%d, v124, s[%d:%d], s%d offen sc1" % (vF1, SD, SD + 3, sCNT)
        return "buffer_load_dword v%d, v%d, s[%d:%d], 0 offen offset:128 sc1" % (vFA, vPO, SD, SD + 3)
    def poll_cmp(kind): return "v_cmp_gt_u32 vcc, s%d, v%d" % ((sG1, vF1) if kind == 1 else (sG2, vFA))
    def poll_check(kind):
        ls, lb = a.label("spin"), a.label("spun")
        a("%s\ns_cbranch_vccnz %s\n%s:" % (poll_cmp(kind), ls, lb))
        spins.append((ls, lb, kind))
    rels = []
    def release():
        ls, lb = a.label("rel"), a.label("reld")
        a("s_cmp_eq_u32 s%d, 0\ns_cbranch_scc1 %s\n%s:" % (sFA, ls, lb))
        rels.append((ls, lb))

    st_("setup")
    bar("s_waitcnt vmcnt(%d)" % (2 if PF else 1))
    st_("bar0")
    def flat(G): return [x for g in G for x in g]
    def keep(G): return [g if any(x.startswith("s_cselect") for x in g) else None for g in G]
    def soft(G):
        out = []
        for g in G:
            if any(x.startswith("s_cselect") for x in g):
                k = [j for j, x in enumerate(g) if x.startswith("s_cmp")][0]
                out += g[:k] + [g[k:]]
            else: out += g
        return out
    pre0 = rd_w(0, 0, 0, 0) + rd_act(0, 0) + [x for k in range(1, PDW) for x in rd_w(0, 0, k, k)]
    use0 = [0, 0] + list(range(8)) + [8 * k for k in range(1, PDW) for _ in range(2)]
    for x in pre0: a(x)
    a(xa(0, 0))
    lV = a.label("kvV"); lQ = a.label("qphase")
    a("s_cmp_ge_u32 s%d, 2\ns_cbranch_scc1 %s" % (sWV, lV))
    NKV = 12
    for var in ("K", "V"):
        if var == "V": a(lV + ":")
        t2[0] = 1
        S_, cm, bm, fm = build(0, var)
        S_.place(dma_w(1) + dma_act(1), 0, 56)
        S_.place(dma_act(2) + pfp(-1), 56, bm[1] - 2)
        for g in range(1, 9):
            b = bm[g]; e = bm.get(g + 1, S_.n + 96)
            Wn = (soft(qw_setup) if g == 7 else []) + dma_w(g + 1) + pfp(g - 1)
            if CRF and g in (3, 5, 7): Wn = Wn + ["global_load_dword v122, v127, s[0:1]"]
            if g == 6: Wn = ["buffer_load_dword v125, v126, s[%d:%d], 0 offen offset:128 sc1 ; need:7" % (SD, SD + 3)] + Wn
            S_.place(Wn, b, b + (44 if g < 8 else 31))
            if g < 8: S_.place((flat(qa_setup) if g == 6 else []) + dma_act(g + 2) + (soft(at_setup) if g == 7 else []), b + 44, e - 8)
        for cb in range(3):
            S_.place([x for j in range(4 * cb, 4 * cb + 4) for x in kv_unit(j, GPUB)], cm[7] + 32 * cb + 36, cm[7] + 32 * cb + 68 if cb < 2 else S_.n)
        vmh = S_.emit(a, bar, use0, [])
        left = S_.left; nkv = S_.n
        if VERB: print("KV over", S_.over, "sum", sum(S_.cost))
        if var == "K": a("s_branch %s" % lQ)
    a(lQ + ":")
    st_("q")
    lN, lS, lG, lE = a.label("qN"), a.label("qS"), a.label("qG"), a.label("qE")
    a("s_and_b32 s%d, s%d, 3\ns_cmp_eq_u32 s%d, 3\ns_cbranch_scc1 %s\ns_cmp_ge_u32 s%d, 16\ns_cbranch_scc1 %s" % (sT0, sH, sT0, lG, sU, lS))
    use8 = [0 if u == nkv else 4 * (u - nkv - 1) for u in left]
    for var, lab in (("N", lN), ("S", lS), ("G", lG)):
        a(lab + ":")
        t2[0] = 9
        if var == "G": a("v_lshrrev_b32 v%d, 4, v0\nv_lshlrev_b32 v%d, 4, v%d\nv_add_u32 v%d, %d, v%d" % (vXR[0], vXR[0], vXR[0], vXR[0], LDS_G, vXR[0]))
        S_, cm, bm, fm = build(8, var)
        per = cm[9] - cm[8]
        vTW, vTR, TG = vXO[0], (vXO[1], vXR[1], vXR[2], vXR[3]), 32
        sSJ, sTD, sTL = sOA, sXS, sXM
        def t_dma(j, nd):
            G = []
            if j == 4: G += ["s_mov_b32 s%d, s%d" % (SX, pWO), "s_mov_b32 s%d, s%d" % (SX + 1, pWO + 1), "s_mov_b32 s%d, 0x80000" % (SX + 2)]
            for n in range(4):
                G += ["s_add_u32 m0, s%d, %d" % (sTL, n * 1024), "s_add_u32 s%d, s%d, %d" % (sDS, sSC, (j % 4) * 0x100000 + n * 4096),
                      "buffer_load_dwordx4 v%d, s[%d:%d], s%d offen lds ; need:%d" % (vTW, SX, SX + 3, sDS, nd)]
            return G
        def t_store(j):
            G = []
            if j == 4: G.append(["s_cmp_ge_u32 s%d, 32" % sSJ, "s_cselect_b32 s%d, 0x%x, s%d" % (sTD, OFF_DUMMY, sTD)])
            G.append("s_add_u32 s%d, s%d, %d" % (sT1, sTD, WROW))
            G += ["buffer_store_dwordx4 %s, v%d, s[%d:%d], s%d offen offset:%d" % (ar(TG + 4 * cb, 4), vL16, SO, SO + 3, sTD if cb < 2 else sT1, (cb % 2) * 1024) for cb in range(4)]
            G.append("s_add_u32 s%d, s%d, %d" % (sTD, sTD, 64 * 2048))
            return G
        if var == "G" and not NOTR:
            rq = list(S_.rq)
            for g in range(10, 15):
                pos = [k for k, r in enumerate(rq) if max(r[1], r[2]) >= cm[g]][0]
                rq[pos:pos] = [("ds_read_b64_tr_b16 %s, v%d offset:%d" % (ar(TG + 4 * cb + 2 * rd_, 2), vTR[cb], rd_ * 2048), cm[g] - 1, cm[g] - 1, cm[g] + 12) for cb in range(4) for rd_ in range(2)]
            S2 = Sched(S_.M); S2.bars = S_.bars; S2.waitpts = S_.waitpts; S2.rq = rq; S2.place_reads(); S_ = S2
            tsetup = ("s_and_b32 s%d, s2, 7\ns_lshl_b32 s%d, s%d, 3\ns_add_u32 s%d, s%d, s%d\n" % (sSJ, sSJ, sSJ, sSJ, sSJ, sI) +
                "s_lshl_b32 s%d, s%d, 12\ns_add_u32 s%d, s%d, %d\n" % (sTL, sWV, sTL, sTL, WSL[1] + 16384) +
                "v_lshrrev_b32 v92, 4, v0\nv_and_b32 v93, 15, v0\nv_lshlrev_b32 v94, 2, v92\nv_xor_b32 v93, v93, v94\nv_lshlrev_b32 v93, 4, v93\nv_lshl_add_u32 v%d, v92, 10, v93\n" % vTW +
                "s_mov_b32 s%d, s%d\ns_mov_b32 s%d, s%d\ns_mov_b32 s%d, 0x400000\n" % (SX, pBWO, SX + 1, pBWO + 1, SX + 2) +
                "s_lshl_b32 s%d, s%d, 14\ns_lshl_b32 s%d, s%d, 8\ns_add_u32 s%d, s%d, s%d\n" % (sSC, sSJ, sT0, sWV, sSC, sSC, sT0) +
                "v_lshrrev_b32 v93, 2, v0\nv_and_b32 v93, 3, v93\nv_lshrrev_b32 v94, 5, v0\nv_lshl_add_u32 v94, v94, 2, v93\n" +
                ("v_and_b32 v95, 1, v92\nv_lshlrev_b32 v95, 3, v95\nv_and_b32 v92, 3, v0\n" if W16 else
                 "v_and_b32 v92, 1, v92\nv_lshlrev_b32 v92, 1, v92\nv_lshrrev_b32 v95, 1, v0\nv_and_b32 v95, 1, v95\nv_add_u32 v92, v92, v95\nv_and_b32 v95, 1, v0\nv_lshlrev_b32 v95, 3, v95\n") +
                "v_lshlrev_b32 v93, 2, v93\nv_xor_b32 v93, v93, v92\nv_lshlrev_b32 v93, 4, v93\nv_lshl_add_u32 v93, v94, 8, v93\nv_add3_u32 v93, v93, v95, s%d\n" % sTL +
                "".join("v_xor_b32 v%d, %d, v93\n" % (vTR[k], 64 * k) for k in range(4)) +
                "s_mul_i32 s%d, s%d, %d\ns_lshl_b32 s%d, s%d, 11\ns_add_u32 s%d, s%d, s%d\ns_add_u32 s%d, s%d, 0x%x" % (sTD, sWV, 2 * WROW, sT1, sSJ, sTD, sTD, sT1, sTD, sTD, OFF_W)).split("\n")
        S_.place(dma_act(10) + (tsetup if var == "G" and not NOTR else []), 0, bm[9] - 6)
        for g in range(9, 16):
            b = bm[g]; e = bm.get(g + 1, S_.n)
            Wn = dma_w(g + 1, var != "G") if g < 15 else flat(dma("K", 1, 0, SO) + [adv("K", 1)] + dma("K", 1, 1, SO)) + [poll_load(1) + " ; need:16"]
            if g == GPUB:
                S_.hooks[g] = release
                Wn = Wn + ["buffer_atomic_add v%d, v%d, s[%d:%d], s%d offen sc1" % (vONE, vFO, SD, SD + 3, sCNT)]
            if CRF and g in (9, 11, 13): Wn = Wn + ["global_load_dword v122, v127, s[0:1]"]
            A = dma_act(g + 2) if g + 2 < 16 else []
            if var == "G" and not NOTR:
                mid = cm[g] + 14
                S_.place(Wn, b, mid)
                S_.place((t_dma(g - 9, g + 1) if g < 14 else []) + (t_store(g - 10) if 10 <= g < 15 else []) + A, mid, e - 4)
            else:
                S_.place(Wn, b, b + 32)
                S_.place(A, b + 32, e - 6)
        zero = lambda lo, hi: ["v_accvgpr_write_b32 a%d, 0" % r for r in range(lo, hi)]
        S_.place([x for j in range(NKV, 16) for x in kv_unit(j, GPUB)], 6, cm[9] + per // 2)
        S_.place([x for j in range(16, 32) for x in kv_unit(j)] + zero(64, 128), cm[9] + per // 2, cm[15] + 24)
        tail = []
        if var in "NS":
            hd = ["s_lshr_b32 s%d, s%d, 1" % (sT0, sU), "s_lshl_b32 s%d, s%d, 19" % (sT0, sT0), "s_and_b32 s%d, s%d, 1" % (sT1, sU), "s_lshl_b32 s%d, s%d, 12" % (sT1, sT1), "s_add_u32 s%d, s%d, s%d" % (sT0, sT0, sT1),
                  ["s_cmp_lt_u32 s%d, 8" % sU, "s_cselect_b32 s%d, %s, 1.0" % (sSC, fbits(LOG2E * 0.25))],
                  "s_lshl_b32 s%d, s%d, 13" % (sOK, sQL), "s_add_u32 s%d, s%d, s%d" % (sOK, sOK, sT0), "s_lshl_b32 s%d, s%d, 13" % (sOK2, sQS), "s_add_u32 s%d, s%d, s%d" % (sOK2, sOK2, sT0)]
            AE = []
            for j in range(8):
                cb, rb, tb = j // 4, (j // 2) % 2, j % 2
                pk = PK + 4 * (j % 4)
                AE += pack(j * 8, pk, sSC if var == "N" else None) + ["buffer_store_dwordx4 %s, v%d, s[%d:%d], s%d offen offset:%d" % (vr(pk, 4), vOS, SO, SO + 3, (sOK, sOK2)[rb], cb * 2048 + tb * 128)]
            S_.place(hd, cm[15] + 24, cm[15] + 36)
            room = sum(max(0, 8 - S_.cost[k]) for k in range(cm[15] + 38, S_.n)) // 4
            S_.place(AE[:room], cm[15] + 38, S_.n); tail = AE[room:]
        vm2 = S_.emit(a, bar, use8, vmh)
        if VERB: print("Q", var, "over", S_.over, "sum", sum(S_.cost), "tail", len(tail))
        for x in tail: a(x)
        nafter = len(vm2) - 1 - max(k for k, nd in enumerate(vm2) if nd == 16) + sum(1 for x in tail if isvm(x))
        if var in "NS":
            a("s_waitcnt vmcnt(%d)\ns_branch %s" % (nafter, lE))
        else:
            a("s_nop 7")
            a("v_accvgpr_read_b32 v28, a0\nv_accvgpr_read_b32 v29, a4\nv_accvgpr_read_b32 v30, a8\nv_accvgpr_read_b32 v31, a12\nv_and_b32 v32, 16, v0\nv_cmp_eq_u32 s[26:27], 0, v32\nv_cmp_gt_u32 vcc, 32, v0")
            a("v_mov_b32 v33, s%d\nv_mov_b32 v34, s%d\nv_cndmask_b32 v28, v29, v28, s[26:27]\nv_cndmask_b32 v30, v31, v30, s[26:27]\nv_cndmask_b32 v28, v30, v28, vcc\nv_cndmask_b32 v33, v34, v33, vcc" % (sQL, sQS))
            a("v_mul_f32 v28, %s, v28\nv_exp_f32 v28, v28\nv_and_b32 v34, 0x1ff, v%d\nv_add_f32 v28, 1.0, v28\nv_rcp_f32 v28, v28" % (fbits(-LOG2E), vOS))
            a("v_lshrrev_b32 v34, 2, v34\nv_lshl_add_u32 v34, v32, 1, v34\nv_lshl_add_u32 v33, v33, 7, v34\ns_lshl_b32 s%d, s%d, 11\ns_add_u32 s%d, s%d, 0x%x" % (sT0, sGR, sT0, sT0, OFF_G))
            a("buffer_store_dword v28, v33, s[%d:%d], s%d offen\ns_waitcnt vmcnt(%d)" % (SO, SO + 3, sT0, nafter + 1))
    a(lE + ":")
    a(lAttn + ":")
    st_("attn")
    vU, vGL, vGS = 3, 4, 5
    vL = (6, 7); vLT = (8, 9); vX = 10
    S = (16, 80); P = (144, 176); NM = 208; TM = 240
    vGA, vNEG, vPM = 248, 249, 250
    O, Q, FR, NFR = 0, 128, 192, 16
    ms = (26, 28, 30)
    def kfrag(p, idx): return ("K", p * 32768 + idx * 1024)
    def vfrag(p, g, db): return ("V", p * 32768 + (g // 2) * 8192 + db * 2048 + (g % 2) * 1024)
    def rd(slot, fr):
        return "ds_read_b128 %s, v%d offset:%d" % (ar(FR + 4 * (slot % NFR), 4), vK if fr[0] == "K" else vV, fr[1])
    def mf_list(p, pv, qk):
        L = []
        Pp = P[1 - p]; Sn = S[1 - p]
        if pv == 1:
            for g in range(4):
                for db in range(4):
                    L.append((vfrag(1 - p, g, db), ["%s %s, {F}, %s, %s" % (MF32, ar(O + rb * 64 + db * 16, 16), vr(Pp + rb * 16 + g * 4, 4), ar(O + rb * 64 + db * 16, 16)) for rb in range(2)]))
        elif pv == 2:
            for g in range(8):
                for db in range(4):
                    L.append((vfrag(1 - p, g, db), ["%s %s, {F}, %s, %s" % (MF32, ar(O + db * 16, 16), vr(Pp + g * 4, 4), ar(O + db * 16, 16))]))
        elif pv == 3:
            for db in range(4):
                for g in range(8):
                    L.append((("K", vfrag(1, g, db)[1]), ["%s %s, {F}, %s, %s" % (MF32, ar(O + db * 16, 16), vr(Pp + g * 4, 4), ar(O + db * 16, 16))]))
        if qk == 1:
            for kb in range(2):
                for s in range(8):
                    ms_ = []
                    for rb in range(2):
                        d = vr(Sn + rb * 32 + kb * 16, 16)
                        ms_.append("%s %s, {F}, %s, %s" % (MF32, d, ar(Q + rb * 32 + s * 4, 4), d if s else vr(NM + rb * 16, 16)))
                    L.append((kfrag(1 - p, kb * 8 + s), ms_))
        elif qk == 2:
            for kb in range(4):
                for s in range(8):
                    d = vr(Sn + kb * 16, 16)
                    L.append((kfrag(1 - p, kb * 8 + s), ["%s %s, {F}, %s, %s" % (MF32, d, ar(Q + s * 4, 4), d if s else vr(NM, 16))]))
        return L
    def sm_list(p, sm):
        Sc, Pc = S[p], P[p]
        order = [0, 2, 1, 3] if sm == 1 else [0, 1, 2, 3]
        els = [b * 16 + j for b in order for j in range(16)]
        V = []
        first = {0: True, 1: True}
        def tail(n):
            e = els[n]; u = TM + (n % 8); lt = vLT[e // 32]
            out = []
            if first[e // 32]:
                out.append((4, "v_add_f32 v%d, v%d, v%d" % (lt, u, u + 1))); first[e // 32] = False
            else:
                out.append((4, "v_add_f32 v%d, v%d, v%d" % (lt, lt, u)))
                out.append((4, "v_add_f32 v%d, v%d, v%d" % (lt, lt, u + 1)))
            out.append((4, "v_cvt_pk_bf16_f32 v%d, v%d, v%d" % (Pc + e // 2, u, u + 1)))
            return out
        for n in range(0, 64, 2):
            tl = tail(n - 2) if n >= 2 else []
            V.append((8, "v_exp_f32 v%d, v%d" % (TM + n % 8, Sc + els[n])))
            V += tl[:1]
            V.append((8, "v_exp_f32 v%d, v%d" % (TM + n % 8 + 1, Sc + els[n + 1])))
            V += tl[1:]
        V += tail(62)
        return V
    rare = {}
    def step(p, pv, sm, qk, dK, dV, pre_in=True, pre_out=True, advK=True, extra_vm=None, extra_valu=None, chk=0, last16=False, staged=None):
        L = mf_list(p, pv, qk)
        nf = len(L)
        nxt = [vfrag(p, g, db) for g in range(4) for db in range(4)][:PD]
        if last16: nxt = [x[0] for x in mf_list(1, 3, 0)][:PD]
        M = [(f, t) for f, (fr, ts_) in enumerate(L) for t in ts_]
        nm = len(M)
        fill = [[] for _ in range(nm)]
        G = []
        if dV: G += dma("V", dV, p) + [adv("V", dV)]
        if dK: G += dma("K", dK, p) + ([adv("K", dK)] if advK else [])
        if extra_vm: G += extra_vm
        elif CRF > 1 and p == 0 and dK: G += [["global_load_dword v%d, v255, s[0:1]" % vGA]]
        cost = [0] * nm
        firstm = {}
        for m, (f, t) in enumerate(M): firstm.setdefault(f, m)
        barf = nf + 1 - PD
        if barf % WP: barf += WP - barf % WP
        if not pre_out or last16: barf = nf + 99
        CAP = 24
        pre = [[] for _ in range(nm)]
        allfr = [x[0] for x in L] + (nxt if pre_out else [])
        nrd = PD
        for f in range(nf):
            m = firstm[f]
            if f == barf: pre[m].append("BAR")
            elif f < barf and f % WP == 0: pre[m].append("s_waitcnt lgkmcnt(%d)" % max(0, nrd - 1 - min(f + WP - 1, nf - 1)))
            if m > 0 and pre[m]: cost[m - 1] += 8 if f == barf else 4
            want = min(f + PD, len(allfr) - 1)
            if f < barf and not last16: want = min(want, nf - 1)
            lim = 2
            while nrd <= want and lim:
                fill[m].append(rd(nrd, allfr[nrd])); cost[m] += 4; nrd += 1; lim -= 1
        assert nrd == len(allfr), (nrd, len(allfr))
        cost[nm - 1] += 20
        def place(stream, lo, hi):
            tot = sum(c for c, _ in stream); done_ = 0
            free = sum(max(0, CAP - cost[k]) for k in range(lo, hi))
            seen = 0; i = 0
            for k in range(lo, hi):
                seen += max(0, CAP - cost[k])
                tgt = tot * min(1.0, seen / max(free, 1))
                while i < len(stream) and (k == hi - 1 or (done_ < tgt and (cost[k] + stream[i][0] <= CAP or done_ + 8 < tgt))):
                    fill[k] += stream[i][1]; cost[k] += stream[i][0]; done_ += stream[i][0]; i += 1
        hiD = min(max(len(G) + 1, nm // 2), firstm[barf] - 4 if barf < nf else nm)
        place([(4 * len(g), g) for g in G], 1, hiD)
        V = sm_list(p, sm) if sm else []
        if sm:
            V.append((4, "v_max_f32 v%d, v%d, v%d" % (vX, vLT[0], vLT[1])))
            V.append((4, "v_cmp_lt_f32 vcc, s%d, v%d" % (sTH, vX)))
        if extra_valu: V += [(4, x) for x in extra_valu]
        place([(c, [x]) for c, x in V], 0, nm - 1)
        for (lst, lo, hi) in (staged or []): place([(4, [x]) for x in lst], lo, hi)
        if not pre_in:
            for f in range(PD): a(rd(f, L[f][0]))
        for m, (f, t) in enumerate(M):
            for x in pre[m]:
                if x == "BAR":
                    if TS3: a("s_mov_b32 m0, s70\ns_add_u32 s70, s70, 1\nv_writelane_b32 v255, s64, m0\ns_mov_b32 m0, s70\ns_add_u32 s70, s70, 1\nv_writelane_b32 v255, s66, m0\ns_memtime s[64:65]")
                    a("s_waitcnt vmcnt(0) lgkmcnt(0)")
                    if chk: poll_check(chk)
                    a("s_barrier")
                    if TS3: a("s_memtime s[66:67]\ns_waitcnt lgkmcnt(0)")
                else: a(x)
            a(t.replace("{F}", ar(FR + 4 * (f % NFR), 4)))
            for x in fill[m]: a(x)
        assert nf % NFR == 0
        if sm:
            key = (p, sm, qk if qk else sm)
            if key not in rare: rare[key] = (a.label("rare"), [])
            lb = a.label("back"); lj = a.label("jr")
            rid = len(rare[key][1]); rare[key][1].append((lj, lb))
            a("s_cbranch_vccnz %s\n%s:" % (lj, lb))
            if sm == 1: a("v_add_f32 v%d, v%d, v%d\nv_add_f32 v%d, v%d, v%d" % (vL[0], vL[0], vLT[0], vL[1], vL[1], vLT[1]))
            else: a("v_add_f32 v%d, v%d, v%d\nv_add_f32 v%d, v%d, v%d" % (vL[0], vL[0], vLT[0], vL[0], vL[0], vLT[1]))
    def rowmax(dst, regs_):
        a("v_max3_f32 v%d, v%d, v%d, v%d" % (dst, regs_[0], regs_[1], regs_[2]))
        j = 3
        while j + 1 < len(regs_):
            a("v_max3_f32 v%d, v%d, v%d, v%d" % (dst, dst, regs_[j], regs_[j + 1])); j += 2
        if j < len(regs_): a("v_max_f32 v%d, v%d, v%d" % (dst, dst, regs_[j]))
        a("v_mov_b32 v%d, v%d\ns_nop 1\nv_permlane32_swap_b32 v%d, v%d\nv_max_f32 v%d, v%d, v%d" % (dst + 1, dst, dst, dst + 1, dst, dst, dst + 1))
    def mask(base, nblk, kb0):
        a("s_nop 7\ns_nop 3")
        for j in range(nblk):
            lf = a.label("mfull"); le_ = a.label("mend")
            kb = kb0 + j; r0 = base + 16 * j
            a("s_cmp_gt_u32 s%d, %d\ns_cbranch_scc1 %s" % (sWV, kb, le_))
            if kb > 0: a("s_cmp_lt_u32 s%d, %d\ns_cbranch_scc1 %s" % (sWV, kb, lf))
            rr = list(range(16))
            for c in range(0, 16, 3):
                grp = rr[c:c + 3]
                for q, r in enumerate(grp): a("v_cmp_gt_i32 s[%d:%d], %d, v%d" % (ms[q], ms[q] + 1, 8 * (r // 4) + r % 4, vU))
                if len(grp) < 3: a("s_nop 1")
                for q, r in enumerate(grp): a("v_cndmask_b32 v%d, v%d, v%d, s[%d:%d]" % (r0 + r, r0 + r, vNEG, ms[q], ms[q] + 1))
            if kb > 0:
                a("s_branch %s\n%s:" % (le_, lf))
                for r in range(16): a("v_mov_b32 v%d, v%d" % (r0 + r, vNEG))
            a(le_ + ":")
    poll_check(1)
    bar("s_nop 0")
    if TS2:
        a("s_waitcnt lgkmcnt(0)"); bar("s_nop 0")
        a("s_lshl_b32 s62, s2, 2\ns_add_u32 s62, s62, s%d\ns_lshl_b32 s62, s62, 8\ns_add_u32 s62, s62, 0x%x\nv_lshlrev_b32 v122, 2, v0" % (sWV, OFF_TS + 0x80000))
        a("buffer_store_dword v123, v122, s[%d:%d], s62 offen\ns_waitcnt vmcnt(0)" % (SO, SO + 3))
    srd(a, SK, pWS, WS_SIZE)
    a("s_mov_b32 s%d, %s" % (sSC, fbits(LOG2E / math.sqrt(128.0))))
    fr0 = [kfrag(0, kb * 8 + s) for s in range(8) for kb in range(2)]
    for f in range(12): a(rd(f, fr0[f]))
    def qepi(cb):
        G = []
        for rb in range(2):
            src = QA + (rb * 4 + cb) * 16
            G += ["v_mul_f32 v%d, s%d, v%d" % (src + j, sSC, src + j) for j in range(16)]
            G += ["v_cvt_pk_bf16_f32 v%d, v%d, v%d" % (src + j, src + 2 * j, src + 2 * j + 1) for j in range(8)]
        for rb in range(2):
            src = QA + (rb * 4 + cb) * 16
            G += ["v_permlane16_swap_b32 v%d, v%d" % (src + j, src + 4 + j) for j in range(4)]
        for rb in range(2):
            src = QA + (rb * 4 + cb) * 16
            G += ["v_accvgpr_write_b32 a%d, v%d" % (Q + rb * 32 + cb * 8 + j, src + j) for j in range(8)]
        return G
    a("s_add_u32 s%d, s%d, 0x4000\ns_sub_u32 s%d, s%d, s%d\ns_cmp_eq_u32 s%d, 0\ns_cselect_b32 s%d, 0x8000, 0\ns_add_u32 s%d, s%d, s%d" % (sT1, sVD, sKO, sKO, sT1, sI, sT0, sKO, sKO, sT0))
    for g_ in dma("V", 1, 0):
        for x in g_: a(x)
    a("s_add_u32 s%d, s%d, 0x4000\ns_sub_u32 s%d, 0, s%d" % (sVO, sVO, sVD, sT1))
    for x in qepi(0): a(x)
    for f in range(12, 16): a(rd(f, fr0[f]))
    misc = ["v_add_u32 v%d, 0x10000, v%d" % (vV, vK), "v_and_b32 v10, 31, v0", "v_lshrrev_b32 v11, 5, v0", "v_lshlrev_b32 v11, 2, v11",
            "v_and_b32 v12, 8, v0", "v_and_b32 v13, 16, v0", "v_lshrrev_b32 v13, 1, v13", "v_and_b32 v14, 7, v0", "v_lshl_add_u32 v12, v12, 1, v13", "v_add_u32 v12, v12, v14", "v_sub_u32 v%d, v12, v11" % vU,
            "v_mov_b32 v%d, 0" % vL[0], "v_mov_b32 v%d, 0" % vL[1], "v_mov_b32 v%d, %s" % (vNEG, NEG), "v_and_b32 v%d, 3, v0" % vPO, "v_add_lshl_u32 v%d, v%d, s%d, 2" % (vPO, vPO, sGR), "v_add_u32 v%d, s%d, v%d" % (vPO, sW4, vPO), "v_mov_b32 v253, 0x10000000", "v_mov_b32 v252, v%d" % vFO, "v_mov_b32 v255, v127"]
    misc += ["s_lshl_b32 s%d, s2, 7" % sT1, "s_add_u32 s%d, s%d, 0x%x" % (sT1, sT1, OFF_FL), "v_lshlrev_b32 v10, 2, v10",
             "buffer_store_dword v%d, v10, s[%d:%d], s%d offen" % (vL[0], SO, SO + 3, sT1)]
    misc += ["v_accvgpr_write_b32 a%d, 0" % r for r in range(0, 40)]
    a("s_waitcnt lgkmcnt(0)\ns_barrier")
    K2 = dma("K", 2, 0) + [["s_cmp_eq_u32 s%d, 0" % sI, "s_cselect_b32 s%d, 2, 1" % sT0, "s_lshl_b32 s%d, s%d, 14" % (sT0, sT0), "s_add_u32 s%d, s%d, s%d" % (sKO, sKO, sT0)]]
    for cb in range(4):
        M = []
        for s in (2 * cb, 2 * cb + 1):
            for kb in range(2):
                for rb in range(2):
                    d = vr(S[0] + rb * 32 + kb * 16, 16)
                    M.append("%s %s, %s, %s, %s" % (MF32, d, ar(FR + 4 * (2 * s + kb), 4), ar(Q + rb * 32 + s * 4, 4), d if s else "0"))
        emit(a, M, [(K2[4 * cb: 4 * cb + 4], 0, 7), (qepi(cb + 1) + ["s_nop 0"] if cb < 3 else misc, 0, 8)])
    st_("m1")
    for r in range(40, 64): a("v_accvgpr_write_b32 a%d, 0" % r)
    mask(S[0] + 32, 2, 0)
    for rb in range(2): rowmax(vX + 2 * rb, [S[0] + rb * 32 + j for j in range(32)])
    for rb in range(2):
        for j in range(16): a("v_sub_f32 v%d, 0, v%d" % (NM + rb * 16 + j, vX + 2 * rb))
    for rb in range(2):
        for j in range(32): a("v_sub_f32 v%d, v%d, v%d" % (S[0] + rb * 32 + j, S[0] + rb * 32 + j, vX + 2 * rb))
    st_("first")
    if TS3: a("s_mov_b32 s70, 0\ns_mov_b32 s64, 0\ns_mov_b32 s66, 0")
    step(0, 0, 1, 1, 0, 0, pre_in=False)
    st_("s0a")
    release()
    a("buffer_atomic_add v253, v252, s[%d:%d], s%d offen offset:128 sc1" % (SD, SD + 3, sCNT))
    mask(S[1] + 32, 2, 2)
    st_("s0")
    lT0, lT1, lT1b, lL1, lL2, lS15, lMid, lI7, lEn = [a.label(x) for x in ("T0", "T1", "T1b", "L1", "L2", "S15", "MID", "I7", "END")]
    PL = [[poll_load(2)]]
    sRA, sHP, sA0, sA1 = 36, 37, 38, 39
    AQ, AKC, AKP = ar(Q + 32, 4), None, None
    AF = [ar(Q + 32 + 4 * j, 4) for j in range(8)] + [vr(252, 4)]
    def ld(dst, so, off): return ["buffer_load_dwordx4 %s, v%d, s[%d:%d], s%d offen offset:%d sc1" % (dst, vK, SV, SV + 3, so, off)]
    ALD = [["s_lshr_b32 s%d, s2, 3" % sT0, "s_lshl_b32 s%d, s%d, 1" % (sT0, sT0), "s_lshr_b32 s%d, s%d, 1" % (sRA, sWV), "s_add_u32 s%d, s%d, s%d" % (sRA, sRA, sT0)],
           ["s_and_b32 s%d, s%d, 1" % (sHP, sWV), "s_lshr_b32 s%d, s%d, 1" % (sT0, sGR), "s_add_u32 s%d, s%d, s%d" % (sHP, sHP, sT0), "s_lshl_b32 s%d, s%d, 9" % (sT0, sGR)],
           ["v_and_b32 v14, 31, v0", "v_add_lshl_u32 v14, v14, s%d, 2" % sT0],
           ["v_lshrrev_b32 v15, 5, v0", "v_lshl_add_u32 v%d, v15, 2, v%d" % (vFA, vU), "v_lshlrev_b32 v15, 5, v15"],
           ["v_add_lshl_u32 v%d, v%d, v15, 4" % (vPM, vFA), "v_add_lshl_u32 v15, v%d, s%d, 2" % (vFA, sT0), "v_mov_b32 v%d, v%d" % (vFA, vPM)]]
    for (dst, blk) in ((vGS, sQS), (vGL, sQL), (vGA, sRA)):
        ALD.append(["s_lshl_b32 s%d, s%d, 7" % (sT0, blk), "s_add_u32 s%d, s%d, 0x%x" % (sT0, sT0, OFF_G), "buffer_load_dword v%d, v%d, s[%d:%d], s%d offen sc1" % (dst, 14 if dst == vGA else 15, SV, SV + 3, sT0)])
    ALD += [["s_lshr_b32 s%d, s%d, 2" % (sT0, sHP), "s_lshl_b32 s%d, s%d, 19" % (sT0, sT0), "s_and_b32 s%d, s%d, 3" % (sT1, sHP), "s_lshl_b32 s%d, s%d, 11" % (sT1, sT1)],
            ["s_add_u32 s%d, s%d, s%d" % (sT0, sT0, sT1), "s_lshl_b32 s%d, s%d, 13" % (sT1, sRA), "s_add_u32 s%d, s%d, s%d" % (sA0, sT0, sT1)],
            ["s_max_u32 s%d, s%d, 1" % (sT1, sRA), "s_sub_u32 s%d, s%d, 1" % (sT1, sT1), "s_lshl_b32 s%d, s%d, 13" % (sT1, sT1), "s_add_u32 s%d, s%d, s%d" % (sA1, sT0, sT1)]]
    bump = ["s_add_u32 s%d, s%d, %d" % (sA0, sA0, 4 * PH), "s_add_u32 s%d, s%d, %d" % (sA1, sA1, 4 * PH)]
    ALD += [ld(AF[0], sA0, 0), ld(AF[1], sA0, 1024) + bump, ld(AF[2], sA0, 0), ld(AF[3], sA0, 1024), ld(AF[4], sA1, 0), ld(AF[5], sA1, 1024) + bump,
            ld(AF[6], sA1, 1024), ld(AF[7], sA0, 0), ld(AF[8], sA0, 1024)]
    a("s_cmp_eq_u32 s%d, 0\ns_cbranch_scc1 %s" % (sI, lT1))
    a("s_mov_b32 s%d, s%d" % (sT, sI))
    a(".p2align 6\n" + lL1 + ":")
    step(1, 1, 1, 1, 1, 1)
    a("s_sub_u32 s%d, s%d, 1\ns_cbranch_scc0 %s" % (sT, sT, lT0) if False else "s_sub_u32 s%d, s%d, 1\ns_cmp_eq_u32 s%d, 0\ns_cbranch_scc1 %s" % (sT, sT, sT, lT0))
    step(0, 1, 1, 1, 1, 1)
    a("s_branch %s" % lL1)
    a(lT0 + ":")
    a("s_add_u32 s%d, s%d, 0x8000" % (sKO, sKO))
    step(0, 1, 1, 1, 2, 1, extra_vm=PL, chk=2)
    a("s_cmp_eq_u32 s%d, 7\ns_cbranch_scc1 %s" % (sI, lT1b))
    a(lT1 + ":")
    step(1, 1, 1, 2, 2, 1)
    a("s_add_u32 s%d, s%d, 0x8000" % (sVO, sVO))
    step(0, 1, 2, 2, 2, 2, extra_vm=PL, chk=2)
    a("s_sub_u32 s%d, 6, s%d\ns_cmp_eq_u32 s%d, 0\ns_cbranch_scc1 %s" % (sT, sI, sT, lS15))
    a(".p2align 6\n" + lL2 + ":")
    step(1, 2, 2, 2, 2, 2)
    step(0, 2, 2, 2, 2, 2)
    a("s_sub_u32 s%d, s%d, 1\ns_cmp_lg_u32 s%d, 0\ns_cbranch_scc1 %s" % (sT, sT, sT, lL2))
    a(lS15 + ":")
    a("s_add_u32 s%d, s%d, 0x8000" % (sKO, sVO))
    step(1, 2, 2, 2, 2, 2, extra_vm=ALD)
    a("s_branch %s" % lMid)
    a(lT1b + ":")
    a("s_add_u32 s%d, s%d, 0xc000" % (sKO, sVO))
    step(1, 1, 1, 2, 2, 1, extra_vm=ALD)
    def fin_head(rb, so):
        l = vL[rb]; g = (vGL, vGS)[rb]; blk = (sQL, sQS)[rb]
        return ["v_mov_b32 v%d, v%d" % (vX + 5, l), "v_sub_f32 v%d, 1.0, v%d" % (g, g), "s_mul_i32 s%d, s%d, %d" % (so, blk, CROW), "v_permlane32_swap_b32 v%d, v%d" % (l, vX + 5),
                "v_add_f32 v%d, v%d, v%d" % (l, l, vX + 5), "v_rcp_f32 v%d, v%d" % (l, l), "s_lshl_b32 s%d, s%d, 13" % (sT1, sH), "v_mul_f32 v%d, v%d, v%d" % (l, l, g),
                "s_add_u32 s%d, s%d, s%d" % (so, so, sT1), "s_add_u32 s%d, s%d, 0x%x" % (so, so, OFF_C)]
    def fin_part(rb, c, t, so):
        l = vL[rb]
        G = ["v_accvgpr_read_b32 v%d, a%d" % (t + j, O + rb * 64 + c * 8 + j) for j in range(8)]
        G += ["v_mul_f32 v%d, v%d, v%d" % (t + j, l, t + j) for j in range(8)]
        G += ["v_cvt_pk_bf16_f32 v%d, v%d, v%d" % (t + j, t + 2 * j, t + 2 * j + 1) for j in range(4)]
        if c == 4: G.append("s_add_u32 s%d, s%d, 4096" % (so, so))
        G.append("buffer_store_dwordx4 %s, v%d, s[%d:%d], s%d offen offset:%d" % (vr(t, 4), vFA, SV, SV + 3, so, (c % 4) * 1024))
        return G
    a(lMid + ":")
    st_("mid")
    a("s_lshr_b32 s%d, s2, 3\ns_lshl_b32 s%d, s%d, 2\ns_add_u32 s%d, s%d, s%d\ns_and_b32 s%d, s2, 6\ns_lshl_b32 s%d, s%d, 6\ns_add_u32 s%d, s%d, s%d" % (sT0, sT0, sT0, sT0, sT0, sWV, sT1, sT1, sT1, sT0, sT0, sT1))
    a("s_lshl_b32 s%d, s%d, 6\nv_add_lshl_u32 v10, v0, s%d, 7\nglobal_load_dword a128, v10, s[%d:%d]" % (sT1, sT0, sT1, pBWO, pBWO + 1))
    a("s_lshl_b32 s%d, s%d, 3\nv_and_b32 v11, 7, v0\nv_add_lshl_u32 v11, v11, s%d, 7\nglobal_load_dword a128, v11, s[%d:%d]" % (sT1, sT0, sT1, pWO, pWO + 1))
    BC, BP = NM, NM + 16
    SC, SP = (80, 96), (112, 128); TA = (144, 156); PA = (112, 128); MX = (10, 12)
    a("v_and_b32 v12, 31, v0\nv_lshrrev_b32 v11, 5, v0\nv_lshlrev_b32 v11, 2, v11\nv_sub_u32 v12, v12, v11")
    a("v_add_u32 v12, 18, v12\nv_mov_b32 v10, 0x5555\nv_mov_b32 v11, 0\ns_cmp_eq_u32 s%d, 0\ns_cselect_b32 s%d, -1, 0" % (sRA, sT2))
    a("v_lshlrev_b64 v[10:11], v12, v[10:11]\nv_not_b32 v10, v10\nv_not_b32 v11, v11\nv_or_b32 v10, s%d, v10" % sT2)
    for r in range(16): a("v_bfe_i32 v%d, v11, %d, 1" % (BC + r, 8 * (r // 4) + r % 4))
    for r in range(8, 16): a("v_bfe_i32 v%d, v10, %d, 1" % (BP + r, 8 * (r // 4) + r % 4))
    for r in list(range(16)) + list(range(24, 32)): a("v_and_b32 v%d, v%d, v%d" % (BC + r, vNEG, BC + r))
    a("v_and_b32 v10, 1, v0\nv_lshlrev_b32 v10, 4, v10\nv_mov_b32 v11, 0xffff\nv_lshlrev_b32 v%d, v10, v11" % vPM)
    for e in range(2):
        a("%s %s, %s, %s, %s" % (MF32, vr(SC[e], 16), AF[2 + e], AF[e], vr(BC, 16)))
        a("%s %s, %s, %s, %s" % (MF32, vr(SP[e], 16), AF[4 + e], AF[e], vr(BP, 16)))
    mask(S[0], 4, 0)
    for e in range(2):
        for j in range(4): a("v_max_f32 v%d, v%d, v%d" % (TA[e] + j, SP[e] + 8 + 2 * j, SP[e] + 9 + 2 * j))
        for j in range(8): a("v_max_f32 v%d, v%d, v%d" % (TA[e] + 4 + j, SC[e] + 2 * j, SC[e] + 2 * j + 1))
    for e in range(2):
        t = TA[e]; m = MX[e]
        a("v_max3_f32 v%d, v%d, v%d, v%d" % (m, t, t + 1, t + 2))
        for j in range(3, 11, 2): a("v_max3_f32 v%d, v%d, v%d, v%d" % (m, m, t + j, t + j + 1))
        a("v_max_f32 v%d, v%d, v%d\nv_mov_b32 v%d, v%d" % (m, m, t + 11, m + 1, m))
    a("s_nop 1")
    for e in range(2): a("v_permlane32_swap_b32 v%d, v%d" % (MX[e], MX[e] + 1))
    for e in range(2): a("v_max_f32 v%d, v%d, v%d" % (MX[e], MX[e], MX[e] + 1))
    for e in range(2):
        for j in range(12): a("v_sub_f32 v%d, v%d, v%d" % (TA[e] + j, TA[e] + j, MX[e]))
        for j in range(12): a("v_exp_f32 v%d, v%d" % (TA[e] + j, TA[e] + j))
    for e in range(2):
        for j in range(12): a("v_cvt_pk_bf16_f32 v%d, v%d, v%d" % (PA[e] + j, TA[e] + j, TA[e] + j))
        for j in range(12): a("v_and_b32 v%d, v%d, v%d" % (PA[e] + j, vPM, PA[e] + j))
        if e == 1: a("s_nop 1")
        else: a("v_add_f32 v%d, v%d, v%d\nv_add_f32 v%d, v%d, v%d" % (MX[0], TA[0], TA[0] + 1, MX[1], TA[1], TA[1] + 1))
        for g in range(3):
            a("%s %s, %s, %s, %s" % (MF32, vr(SC[e], 16), AF[6 + g], vr(PA[e] + 4 * g, 4), "0" if g == 0 else vr(SC[e], 16)))
    for j in range(2, 12):
        for e in range(2): a("v_add_f32 v%d, v%d, v%d" % (MX[e], MX[e], TA[e] + j))
    for e in range(2): a("v_mov_b32 v%d, v%d" % (MX[e] + 1, MX[e]))
    a("s_mul_i32 s%d, s%d, %d\ns_lshl_b32 s%d, s%d, 11" % (sT0, sRA, CROW, sT1, sHP))
    for e in range(2): a("v_permlane32_swap_b32 v%d, v%d" % (MX[e], MX[e] + 1))
    for e in range(2): a("v_add_f32 v%d, v%d, v%d" % (MX[e], MX[e], MX[e] + 1))
    for e in range(2): a("v_rcp_f32 v%d, v%d" % (MX[e], MX[e]))
    a("s_add_u32 s%d, s%d, s%d\ns_add_u32 s%d, s%d, 0x%x" % (sT0, sT0, sT1, sT0, sT0, OFF_C + 256 * 1024))
    for e in range(2): a("v_mul_f32 v%d, v%d, v%d" % (MX[e], MX[e], vGA))
    for e in range(2):
        src = SC[e] + 8 * e
        for j in range(8): a("v_mul_f32 v%d, v%d, v%d" % (src + j, MX[e], src + j))
        for j in range(4): a("v_cvt_pk_bf16_f32 v%d, v%d, v%d" % (PA[e] + j, src + 2 * j, src + 2 * j + 1))
        a("buffer_store_dwordx4 %s, v%d, s[%d:%d], s%d offen offset:%d" % (vr(PA[e], 4), vK, SV, SV + 3, sT0, e * 1024))
    a("s_cmp_eq_u32 s%d, 7\ns_cbranch_scc1 %s" % (sI, lI7))
    NE = 6
    for x in fin_head(1, sA0): a(x)
    for c in range(NE):
        for x in fin_part(1, c, 208 + 8 * (c % 4), sA0): a(x)
    step(0, 2, 2, 0, 0, 0, last16=True)
    def final(first):
        stg = [(first + fin_head(0, sA1), 0, 11)]
        for db in range(3):
            stg.append((fin_part(0, 2 * db, 80 + 16 * db, sA1) + fin_part(0, 2 * db + 1, 88 + 16 * db, sA1), 8 * db + 11, min(8 * db + 19, 32)))
        step(1, 3, 0, 0, 0, 0, pre_out=False, staged=stg)
        a("s_nop 8")
        for x in fin_part(0, 6, 128, sA1) + fin_part(0, 7, 136, sA1): a(x)
    final([x for c in range(NE, 8) for x in fin_part(1, c, 208 + 8 * (c % 4), sA0)])
    a("s_branch %s" % lEn)
    a(lI7 + ":")
    step(0, 1, 2, 0, 0, 0, last16=True)
    final(fin_head(1, sA0) + [x for c in range(8) for x in fin_part(1, c, 208 + 8 * (c % 4), sA0)])
    a(lEn + ":")
    st_("s17")
    if TS3:
        a("s_mov_b32 m0, s70\ns_add_u32 s70, s70, 1\nv_writelane_b32 v255, s64, m0\ns_mov_b32 m0, s70\ns_add_u32 s70, s70, 1\nv_writelane_b32 v255, s66, m0")
        a("s_lshl_b32 s62, s2, 2\ns_add_u32 s62, s62, s%d\ns_lshl_b32 s62, s62, 8\ns_add_u32 s62, s62, 0x%x\nv_lshlrev_b32 v254, 2, v0" % (sWV, OFF_TS + 0x80000))
        a("buffer_store_dword v255, v254, s[%d:%d], s62 offen" % (SO, SO + 3))
    T.dump(SO, sWV, 4)
    a(done + ":\ns_endpgm")
    a(lRare + ":")
    for (ls, lb, kind) in spins:
        lp = a.label("sp")
        a(ls + ":\ns_mov_b32 s%d, 0x40000\n%s:" % (sT2, lp))
        a("s_sleep 8\n" + poll_load(kind) + "\ns_waitcnt vmcnt(0)\n%s\ns_cbranch_vccz %s" % (poll_cmp(kind), lb))
        a("s_sub_u32 s%d, s%d, 1\ns_cmp_lg_u32 s%d, 0\ns_cbranch_scc1 %s\ns_branch %s" % (sT2, sT2, sT2, lp, lb))
    for (ls, lb) in rels:
        a("%s:\nbuffer_wbl2 sc1\ns_waitcnt vmcnt(0)\ns_branch %s" % (ls, lb))
    sRET = 44
    for (p, sm, qk), (lr, users) in rare.items():
        for rid, (lj, lb) in enumerate(users):
            a("%s:\ns_mov_b32 s%d, %d\ns_branch %s" % (lj, sRET, rid, lr))
        a(lr + ":")
        a("s_nop 7\ns_nop 7")
        Sc, Sn = S[p], S[1 - p]
        for rb in range(2 if sm == 1 else 1):
            cur = [Sc + rb * 32 + j for j in range(32)] if sm == 1 else [Sc + j for j in range(64)]
            d, f = vX, vX + 2
            rowmax(d, cur)
            a("v_max_f32 v%d, 0, v%d\nv_exp_f32 v%d, -v%d" % (d, d, f, d))
            for r in cur: a("v_sub_f32 v%d, v%d, v%d" % (r, r, d))
            for j in range(16): a("v_sub_f32 v%d, v%d, v%d" % (NM + rb * 16 + j, NM + rb * 16 + j, d))
            nx = []
            if qk == 1: nx = [Sn + rb * 32 + j for j in range(32)]
            elif qk == 2 and rb == 0: nx = [Sn + j for j in range(64)]
            for r in nx: a("v_sub_f32 v%d, v%d, v%d" % (r, r, d))
            a("v_mul_f32 v%d, v%d, v%d" % (vL[rb], vL[rb], f))
            for j in range(0, 64, 4):
                for q in range(4): a("v_accvgpr_read_b32 v%d, a%d" % (TM + q, O + rb * 64 + j + q))
                for q in range(4): a("v_mul_f32 v%d, v%d, v%d" % (TM + q, TM + q, f))
                for q in range(4): a("v_accvgpr_write_b32 a%d, v%d" % (O + rb * 64 + j + q, TM + q))
        for c, x in sm_list(p, sm): a(x)
        for rid, (lj, lb) in enumerate(users):
            if rid < len(users) - 1: a("s_cmp_eq_u32 s%d, %d\ns_cbranch_scc1 %s" % (sRET, rid, lb))
            else: a("s_branch %s" % lb)
    a.add_kernel(name, 512, 100, 256)
    a.launch(name, 256, 256, 163840)
```

```python
from gen_common import *

def gen_p4(a, name="p3_kernel", ts=False, NST=5, AHEAD=3, SLP=8, WGF=1, PK=1, XOFF=OFF_X, MAP=0, XST="sc1", XLD="sc1", HOLD=None, M16=0, DIR=1):
    a.begin_kernel(name)
    T = TS(a, ts, 2)
    done = a.label("p4done")
    SC_, SO = 12, 24
    sWV, sRB, sCB, sQ, sT0, sT1, sAO, sWO, sLM, sTL, sXO, sFL, sT2 = 28, 29, 30, 31, 32, 33, 34, 35, 36, 37, 38, 39, 40
    vL16, vA, vW = 1, (2, 3), (4, 5)
    ACC = 16; FR = 80
    NS = 18
    a("s_cmp_ge_u32 s2, 256\ns_cbranch_scc1 %s" % done)
    T.stamp(0)
    a("s_load_dwordx2 s[4:5], s[0:1], 96\ns_load_dwordx2 s[10:11], s[0:1], 80\ns_load_dwordx2 s[6:7], s[0:1], 64\ns_load_dwordx2 s[8:9], s[0:1], 16")
    a("v_lshrrev_b32 v10, 6, v0\nv_and_b32 v0, 63, v0\nv_readfirstlane_b32 s%d, v10" % sWV)
    if MAP == 0:
        a("s_lshr_b32 s%d, s2, 1\ns_and_b32 s%d, s%d, 3" % (sQ, sQ, sQ))
        a("s_and_b32 s%d, s2, 1\ns_lshl_b32 s%d, s%d, 3\ns_lshr_b32 s%d, s2, 5\ns_add_u32 s%d, s%d, s%d" % (sRB, sRB, sRB, sT0, sRB, sRB, sT0))
        a("s_lshr_b32 s%d, s2, 3\ns_and_b32 s%d, s%d, 3" % (sCB, sCB, sCB))
    elif MAP == 1:
        a("s_lshr_b32 s%d, s2, 3\ns_and_b32 s%d, s%d, 3" % (sQ, sQ, sQ))
        a("s_and_b32 s%d, s2, 7\ns_lshl_b32 s%d, s%d, 1\ns_lshr_b32 s%d, s2, 7\ns_add_u32 s%d, s%d, s%d" % (sRB, sRB, sRB, sT0, sRB, sRB, sT0))
        a("s_lshr_b32 s%d, s2, 5\ns_and_b32 s%d, s%d, 3" % (sCB, sCB, sCB))
    else:
        a("s_lshr_b32 s%d, s2, 3\ns_and_b32 s%d, s%d, 3" % (sQ, sQ, sQ))
        a("s_and_b32 s%d, s2, 6\ns_lshl_b32 s%d, s%d, 1\ns_lshr_b32 s%d, s2, 6\ns_add_u32 s%d, s%d, s%d" % (sRB, sRB, sRB, sT0, sRB, sRB, sT0))
        a("s_lshr_b32 s%d, s2, 5\ns_and_b32 s%d, s%d, 1\ns_and_b32 s%d, s2, 1\ns_lshl_b32 s%d, s%d, 1\ns_add_u32 s%d, s%d, s%d" % (sCB, sCB, sCB, sT0, sT0, sT0, sCB, sCB, sT0))
    a("v_lshlrev_b32 v%d, 4, v0" % vL16)
    a("s_lshl_b32 s%d, s%d, 2\ns_add_u32 s%d, s%d, s%d\ns_mul_i32 s%d, s%d, %d\ns_mul_i32 s%d, s%d, %d\ns_add_u32 s%d, s%d, s%d\ns_add_u32 s%d, s%d, 0x%x" % (sT0, sRB, sT0, sT0, sWV, sAO, sT0, CROW, sT1, sQ, 72 * 1024, sAO, sAO, sT1, sAO, sAO, OFF_C))
    a("s_lshr_b32 s%d, s%d, 1\ns_lshl_b32 s%d, s%d, 1\ns_add_u32 s%d, s%d, s%d\ns_mul_i32 s%d, s%d, %d\ns_lshl_b32 s%d, s%d, 1\ns_add_u32 s%d, s%d, s%d" % (sT0, sWV, sWO, sCB, sT0, sT0, sWO, sWO, sT0, WROW, sT1, sT1, sWO, sWO, sT1))
    a("s_and_b32 s%d, s%d, 1\ns_lshl_b32 s%d, s%d, 12\ns_add_u32 s%d, s%d, s%d\ns_add_u32 s%d, s%d, 0x%x" % (sT0, sWV, sT0, sT0, sWO, sWO, sT0, sWO, sWO, OFF_W))
    a("s_lshl_b32 s%d, s%d, 12" % (sLM, sWV))
    SW, SW2, sAO2, sWO2 = 16, 20, 42, 43
    vD = (12, 13, 14, 15)
    if DIR:
        a("s_lshl_b32 s%d, s%d, 13\ns_sub_u32 s%d, s%d, s%d\ns_mul_i32 s%d, s%d, %d\ns_sub_u32 s%d, s%d, s%d\ns_add_u32 s%d, s%d, %d" % (sT0, sQ, sAO, sAO, sT0, sT0, sQ, 56 * 1024, sAO2, sAO, sT0, sAO2, sAO2, 256 * 1024))
        a("s_lshl_b32 s%d, s%d, 14\ns_lshl_b32 s%d, s%d, 8\ns_add_u32 s%d, s%d, s%d\ns_lshl_b32 s%d, s%d, 20\ns_add_u32 s%d, s%d, s%d\ns_lshl_b32 s%d, s%d, 17\ns_add_u32 s%d, s%d, s%d" % (sT0, sWV, sT1, sCB, sT0, sT0, sT1, sWO, sQ, sWO, sWO, sT0, sWO2, sQ, sWO2, sWO2, sT0))
        a("v_lshrrev_b32 v7, 4, v0\nv_and_b32 v8, 15, v0\nv_lshlrev_b32 v9, 2, v7\nv_xor_b32 v8, v8, v9\nv_lshlrev_b32 v8, 4, v8\nv_lshl_add_u32 v%d, v7, 10, v8" % vD[0])
        for n in range(1, 4): a("v_add_u32 v%d, %d, v%d" % (vD[n], 3072 * n, vD[0]))
    a("s_waitcnt lgkmcnt(0)")
    if DIR: srd(a, SW, 6, 0x400000); srd(a, SW2, 8, 0x80000)
    srd(a, SC_, 4, WS_SIZE)
    def dma(s):
        base = (s % NST) * 32768
        if DIR:
            ao, wo_, sw = (sAO, sWO, SW) if s < 16 else (sAO2, sWO2, SW2)
            G = [["s_add_u32 m0, s%d, %d" % (sLM, base), "s_nop 0"]]
            G += [["buffer_load_dwordx4 v%d, s[%d:%d], s%d offen offset:%d lds" % (vL16, SC_, SC_ + 3, ao, o * 1024)] for o in range(4)]
            G += [["s_add_u32 m0, s%d, %d" % (sLM, base + 16384), "s_add_u32 s%d, s%d, 4096" % (ao, ao)]]
            G += [["buffer_load_dwordx4 v%d, s[%d:%d], s%d offen offset:%d lds" % (vD[o], sw, sw + 3, wo_, o * 1024)] for o in range(4)]
            G += [["s_add_u32 s%d, s%d, 65536" % (wo_, wo_)]]
            return G
        G = [["s_add_u32 m0, s%d, %d" % (sLM, base), "s_nop 0"]]
        G += [["buffer_load_dwordx4 v%d, s[%d:%d], s%d offen offset:%d lds" % (vL16, SC_, SC_ + 3, sAO, o * 1024)] for o in range(4)]
        G += [["s_add_u32 m0, s%d, %d" % (sLM, base + 16384), "s_add_u32 s%d, s%d, 4096" % (sAO, sAO)]]
        G += [["buffer_load_dwordx4 v%d, s[%d:%d], s%d offen offset:%d lds" % (vL16, SC_, SC_ + 3, sWO, o * 1024)] for o in range(4)]
        G += [["s_add_u32 s%d, s%d, 8192" % (sWO, sWO)]]
        return G
    for s in range(AHEAD):
        for g in dma(s):
            for x in g: a(x)
    srd(a, SO, 10, 2048 * 1024)
    a("s_and_b32 s%d, s%d, 1\ns_lshl_b32 s%d, s%d, 1\ns_and_b32 s%d, s%d, 1\ns_add_u32 s%d, s%d, s%d\ns_lshl_b32 s%d, s%d, 12" % (sT0, sWV, sT0, sT0, sT1, sQ, sT2, sT0, sT1, sT0, sT2))
    if M16:
        a("v_and_b32 v7, 15, v0\nv_lshlrev_b32 v7, 4, v7\nv_lshrrev_b32 v8, 4, v0\nv_lshl_add_u32 v9, v8, 9, v7")
        a("v_lshrrev_b32 v8, 5, v0\nv_lshl_add_u32 v10, v8, 10, v9")
    a("v_add_u32 v%d, s%d, v%d\nv_xor_b32 v%d, 4096, v%d" % (vA[0], sT0, 9 if M16 else vL16, vA[1], vA[0]))
    a("s_lshr_b32 s%d, s%d, 1\ns_lshl_b32 s%d, s%d, 13\ns_lshr_b32 s%d, s%d, 1\ns_lshl_b32 s%d, s%d, 10\ns_add_u32 s%d, s%d, s%d\ns_add_u32 s%d, s%d, 16384" % (sT0, sWV, sT0, sT0, sT1, sQ, sT1, sT1, sT0, sT0, sT1, sT0, sT0))
    a("v_add_u32 v%d, s%d, v%d\nv_xor_b32 v%d, 1024, v%d" % (vW[0], sT0, 10 if M16 else vL16, vW[1], vW[0]))
    if DIR:
        a("v_lshrrev_b32 v8, 2, v0\nv_and_b32 v8, 3, v8\nv_lshrrev_b32 v9, 5, v0\nv_lshl_add_u32 v9, v9, 2, v8")
        a("v_and_b32 v7, 1, v7\nv_lshlrev_b32 v7, 1, v7\nv_lshrrev_b32 v10, 1, v0\nv_and_b32 v10, 1, v10\nv_add_u32 v7, v7, v10\nv_and_b32 v10, 1, v0\nv_lshlrev_b32 v10, 3, v10")
        a("s_and_b32 s%d, s%d, 2\ns_lshr_b32 s%d, s%d, 1\ns_add_u32 s%d, s%d, s%d\nv_xor_b32 v8, s%d, v8" % (sT0, sWV, sT1, sQ, sT0, sT0, sT1, sT0))
        a("v_lshlrev_b32 v8, 2, v8\nv_xor_b32 v8, v8, v7\nv_lshlrev_b32 v8, 4, v8\nv_lshl_add_u32 v8, v9, 8, v8\nv_add_u32 v8, v8, v10")
        a("v_add_u32 v%d, 16384, v8\nv_xor_b32 v%d, 64, v%d" % (vW[0], vW[1], vW[0]))
    if M16: a("v_and_b32 v6, 15, v0\nv_lshlrev_b32 v6, 10, v6\nv_lshrrev_b32 v7, 4, v0\nv_lshl_add_u32 v6, v7, 4, v6")
    else: a("v_and_b32 v6, 31, v0\nv_lshlrev_b32 v6, 10, v6\nv_lshrrev_b32 v7, 5, v0\nv_lshl_add_u32 v6, v7, 4, v6")
    sOUT = 41
    a("s_lshl_b32 s%d, s%d, 2\ns_add_u32 s%d, s%d, s%d\ns_lshl_b32 s%d, s%d, 15" % (sT0, sRB, sT0, sT0, sT2, sOUT, sT0))
    a("s_lshl_b32 s%d, s%d, 2\ns_and_b32 s%d, s%d, 2\ns_add_u32 s%d, s%d, s%d\ns_lshr_b32 s%d, s%d, 1\ns_add_u32 s%d, s%d, s%d\ns_lshl_b32 s%d, s%d, 6\ns_add_u32 s%d, s%d, s%d" % (sT0, sCB, sT1, sWV, sT0, sT0, sT1, sT1, sQ, sT0, sT0, sT1, sT0, sT0, sOUT, sOUT, sT0))
    a("s_lshl_b32 s%d, s%d, 2\ns_add_u32 s%d, s%d, s%d" % (sTL, sRB, sTL, sTL, sCB))
    a("s_mul_i32 s%d, s%d, %d\ns_add_u32 s%d, s%d, s%d\ns_add_u32 s%d, s%d, 0x%x" % (sXO, sTL, 4 * 49152, sXO, sXO, sLM, sXO, sXO, XOFF))
    a("s_lshl_b32 s%d, s%d, 2\ns_add_u32 s%d, s%d, s%d\ns_lshl_b32 s%d, s%d, 7\ns_add_u32 s%d, s%d, 0x%x" % (sFL, sTL, sFL, sFL, sWV, sFL, sFL, sFL, sFL, OFF_FL))
    cur = [0]
    def reads(k):
        s, ks = k // 4, k % 4
        base = (s % NST) * 32768
        L = []
        win = base // 65536
        if win != cur[0]:
            d = (win - cur[0]) * 65536
            for r in vA + vW: L.append(("v_add_u32 v%d, 0x%x, v%d" % (r, d, r)) if d > 0 else ("v_subrev_u32 v%d, 0x%x, v%d" % (r, -d, r)))
            cur[0] = win
        off = base % 65536
        F = FR + 16 * (k % 4)
        if DIR:
            tr = lambda cb: ["ds_read_b64_tr_b16 %s, v%d offset:%d" % (vr(F + 8 + 4 * cb + 2 * r_, 2), vW[cb], off + ks * 4096 + r_ * 2048) for r_ in range(2)]
            return L + tr(0) + ["ds_read_b128 %s, v%d offset:%d" % (vr(F + 4 * rb, 4), vA[rb], off + ks * 1024) for rb in range(2)] + tr(1)
        L += ["ds_read_b128 %s, v%d offset:%d" % (vr(F + 8, 4), vW[0], off + ks * 2048), "ds_read_b128 %s, v%d offset:%d" % (vr(F, 4), vA[0], off + ks * 1024),
              "ds_read_b128 %s, v%d offset:%d" % (vr(F + 4, 4), vA[1], off + ks * 1024), "ds_read_b128 %s, v%d offset:%d" % (vr(F + 12, 4), vW[1], off + ks * 2048)]
        return L
    a("s_waitcnt vmcnt(%d)\ns_barrier" % (8 * (AHEAD - 1)))
    T.stamp(1)
    def reads16(u):
        s, us = u // 2, u % 2
        base = (s % NST) * 32768
        L = []
        win = base // 65536
        if win != cur[0]:
            d = (win - cur[0]) * 65536
            for r in vA + vW: L.append(("v_add_u32 v%d, 0x%x, v%d" % (r, d, r)) if d > 0 else ("v_subrev_u32 v%d, 0x%x, v%d" % (r, -d, r)))
            cur[0] = win
        off = base % 65536
        F = FR + 32 * (u % 2)
        A = ["ds_read_b128 %s, v%d offset:%d" % (vr(F + 4 * n, 4), vA[n // 2], off + us * 2048 + (n % 2) * 256) for n in range(4)]
        W = ["ds_read_b128 %s, v%d offset:%d" % (vr(F + 16 + 4 * n, 4), vW[n // 2], off + us * 4096 + (n % 2) * 256) for n in range(4)]
        return L + [W[0], A[0], W[1], A[1], A[2], A[3], W[2], W[3]]
    if M16:
        for x in reads16(0): a(x)
        NU = NS * 2
        for u in range(NU):
            s, us = u // 2, u % 2
            pend = []
            if us == 1 and s + 1 < NS:
                left = min(AHEAD - 1, NS - 1 - s) - 1
                a("s_waitcnt vmcnt(%d) lgkmcnt(0)\ns_barrier" % (8 * max(left, 0)))
                allp = [x for g in dma(s + AHEAD) for x in g] if s + AHEAD < NS else []
                pend, rest = allp[:6], allp[6:]
            else:
                a("s_waitcnt lgkmcnt(0)")
                if u > 0: pend, rest = rest, []
            F = FR + 32 * (u % 2)
            R = reads16(u + 1) if u + 1 < NU else []
            order = (0, 1, 2, 3) if u < NU - 1 else (1, 2, 3, 0)
            n = 0
            for b in order:
                rb, cb = b & 1, b >> 1
                for tr in range(2):
                    for tc in range(2):
                        acc = vr(ACC + b * 16 + tr * 8 + tc * 4, 4)
                        a("v_mfma_f32_16x16x32_bf16 %s, %s, %s, %s" % (acc, vr(F + 16 + 8 * cb + 4 * tc, 4), vr(F + 8 * rb + 4 * tr, 4), "0" if u == 0 else acc))
                        if n < len(R): a(R[n])
                        if n % 2 == 1 and n // 2 < len(pend): a(pend[n // 2])
                        n += 1
    for x in ([] if M16 else reads(0) + reads(1)): a(x)
    pend = []
    NK = 0 if M16 else NS * 4
    for k in range(NK):
        s, ks = k // 4, k % 4
        if ks == 2 and s + 1 < NS:
            left = min(AHEAD - 1, NS - 1 - s) - 1
            a("s_waitcnt vmcnt(%d) lgkmcnt(%d)\ns_barrier" % (8 * max(left, 0), 6 if DIR else 4))
            pend = dma(s + AHEAD) if s + AHEAD < NS else []
        else:
            a("s_waitcnt lgkmcnt(%d)" % ((6 if DIR else 4) if k + 1 < NK else 0))
        F = FR + 16 * (k % 4)
        order = (0, 1, 2, 3) if k < NK - 1 else (1, 2, 3, 0)
        R = reads(k + 2) if k + 2 < NK else []
        take = pend[:4]; pend = pend[4:]
        for n, b in enumerate(order):
            rb, cb = b & 1, b >> 1
            acc = vr(ACC + b * 16, 16)
            a("%s %s, %s, %s, %s" % (MF32, acc, vr(F + 8 + 4 * cb, 4), vr(F + 4 * rb, 4), "0" if k == 0 else acc))
            lo, hi = (len(R) * n) // 4, (len(R) * (n + 1)) // 4
            for x in R[lo:hi]: a(x)
            if n < len(take):
                for x in take[n]: a(x)
    T.stamp(2)
    a("v_and_b32 v8, 3, v0\nv_lshlrev_b32 v8, 2, v8\nv_lshlrev_b32 v9, 28, v0\nv_mov_b32 v10, 1\ns_lshl_b32 s%d, s%d, 2\ns_add_u32 s%d, s%d, s%d" % (sT2, sQ, sT2, sT2, sFL))
    a("v_cmp_eq_u32 vcc, 0, v0\nv_mov_b32 v11, 0x20000000\ns_nop 0\nv_cndmask_b32 v9, v11, 0, vcc\ns_nop 3")
    NC = 2 if PK else 4
    for j in range(1, 4):
        a("s_xor_b32 s%d, s%d, %d\ns_mul_i32 s%d, s%d, 49152\ns_add_u32 s%d, s%d, s%d\ns_add_u32 s%d, s%d, %d" % (sT0, sQ, j, sT0, sT0, sT0, sT0, sXO, sT0, sT0, (j - 1) * 16384))
        src = ACC + j * 16
        if PK:
            for r in range(8): a("v_cvt_pk_bf16_f32 v%d, v%d, v%d" % (FR + 8 * j + r, src + 2 * r, src + 2 * r + 1))
            src = FR + 8 * j
        for c in range(NC):
            a("buffer_store_dwordx4 %s, v%d, s[%d:%d], s%d offen offset:%d %s" % (vr(src + 4 * c, 4), vL16, SC_, SC_ + 3, sT0, c * 1024, XST))
    a("s_waitcnt vmcnt(0)")
    T.stamp(3)
    lp, lo_ = a.label("xpoll"), a.label("xok")
    if WGF: a("s_barrier\ns_cmp_lg_u32 s%d, 0\ns_cbranch_scc1 %s" % (sWV, lo_))
    a("buffer_store_dword v10, v9, s[%d:%d], s%d offen %s" % (SC_, SC_ + 3, sT2, XST))
    a("s_mov_b32 s%d, 0x80000\n%s:" % (sT1, lp))
    if SLP: a("s_sleep %d" % SLP)
    a("buffer_load_dword v12, v8, s[%d:%d], s%d offen sc1\ns_waitcnt vmcnt(0)\nv_cmp_ne_u32 vcc, 1, v12\ns_cbranch_vccz %s" % (SC_, SC_ + 3, sFL, lo_))
    a("s_sub_u32 s%d, s%d, 1\ns_cmp_lg_u32 s%d, 0\ns_cbranch_scc1 %s\n%s:" % (sT1, sT1, sT1, lp, lo_))
    if WGF: a("s_barrier")
    T.stamp(4)
    a("s_mul_i32 s%d, s%d, 49152\ns_add_u32 s%d, s%d, s%d" % (sT0, sQ, sT0, sT0, sXO))
    for j in range(1, 4):
        for c in range(NC):
            a("buffer_load_dwordx4 %s, v%d, s[%d:%d], s%d offen offset:%d %s" % (vr(ACC + j * 16 + 4 * c, 4), vL16, SC_, SC_ + 3, sT0, c * 1024, XLD))
        a("s_add_u32 s%d, s%d, 16384" % (sT0, sT0))
    for j in range(1, 4):
        a("s_waitcnt vmcnt(%d)" % (NC * (3 - j)))
        if PK:
            for r in range(8):
                t = ACC + j * 16 + r
                a("v_lshlrev_b32 v12, 16, v%d\nv_and_b32 v13, 0xffff0000, v%d\nv_add_f32 v%d, v%d, v12\nv_add_f32 v%d, v%d, v13" % (t, t, ACC + 2 * r, ACC + 2 * r, ACC + 2 * r + 1, ACC + 2 * r + 1))
        else:
            for r in range(16): a("v_add_f32 v%d, v%d, v%d" % (ACC + r, ACC + r, ACC + j * 16 + r))
    for r in range(8): a("v_cvt_pk_bf16_f32 v%d, v%d, v%d" % (FR + r, ACC + 2 * r, ACC + 2 * r + 1))
    T.stamp(5)
    if M16:
        a("buffer_store_dwordx4 %s, v6, s[%d:%d], s%d offen\ns_add_u32 s%d, s%d, 16384" % (vr(FR, 4), SO, SO + 3, sOUT, sOUT, sOUT))
        a("buffer_store_dwordx4 %s, v6, s[%d:%d], s%d offen" % (vr(FR + 4, 4), SO, SO + 3, sOUT))
    else:
        a("s_nop 1")
        for pr in range(2):
            a("v_permlane32_swap_b32 v%d, v%d\nv_permlane32_swap_b32 v%d, v%d" % (FR + 4 * pr, FR + 4 * pr + 2, FR + 4 * pr + 1, FR + 4 * pr + 3))
        for pr in range(2):
            a("buffer_store_dwordx4 %s, v6, s[%d:%d], s%d offen offset:%d" % (vr(FR + 4 * pr, 4), SO, SO + 3, sOUT, 32 * pr))
    T.dump(SC_, sWV, 4)
    if ts and HOLD:
        (ka, ia), (kb, ib), wg = HOLD
        lp = a.label("hold")
        a("v_mov_b32 v2, 0")
        for n, off in enumerate((OFF_TS + 4, OFF_TS + ka * 0x80000 + wg * 512 + ia * 8 + 4, OFF_TS + kb * 0x80000 + wg * 512 + ib * 8 + 4)):
            a("s_mov_b32 s44, 0x%x\nbuffer_load_dword v%d, v2, s[%d:%d], s44 offen sc1" % (off, 4 + n, SC_, SC_ + 3))
        a("s_cmp_lg_u32 s2, %d\ns_cbranch_scc1 %s\ns_cmp_lg_u32 s%d, 0\ns_cbranch_scc1 %s" % (wg, done, sWV, done))
        a("s_waitcnt vmcnt(0)\nv_sub_u32 v6, v6, v5\nv_min_u32 v6, 0x2000, v6\nv_add_u32 v4, v4, v6\ns_nop 0\nv_readfirstlane_b32 s45, v4")
        a("%s:\ns_memrealtime s[46:47]\ns_waitcnt lgkmcnt(0)\ns_sub_u32 s46, s46, s45\ns_add_u32 s46, s46, 0x4000\ns_cmp_lt_u32 s46, 26384\ns_cbranch_scc1 %s" % (lp, lp))
    a(done + ":\nL_code_end:\ns_endpgm")
    a.add_kernel(name, 144, 100 if ts else 48, 144)
    a.launch(name, 256, 256, 32768 * NST)
```

```python
import re
def isvm(x): return x.startswith("buffer_") or x.startswith("global_")
def fc(g): return sum(8 if isvm(x) else 4 for x in g)
class Sched:
    def __init__(self, M, cap=8):
        self.M = M; n = len(M); self.n = n; self.cap = cap
        self.fill = [[] for _ in range(n)]; self.cost = [0] * n
        self.bars = {}
        self.hooks = {}
        self.waitpts = []; self.backlog = 8
        self.rq = []
    def place_reads(self):
        self.issued_at = [[] for _ in range(self.n)]
        q = list(self.rq); i = 0
        for g in range(self.n):
            ready = 0
            while i + ready < len(q) and max(q[i + ready][1], q[i + ready][2]) <= g: ready += 1
            lim = 2 if ready > self.backlog else 1
            if g == self.n - 1: lim = 99
            for _ in range(min(lim, ready)):
                self.fill[g].append(q[i][0]); self.cost[g] += 4; self.issued_at[g].append(q[i]); i += 1
        assert i == len(q), (i, len(q))
        for m in self.waitpts:
            if m > 0: self.cost[m - 1] += 4
        for m in self.bars:
            if m > 0: self.cost[m - 1] += 8
    def place(self, stream, lo, hi, vmgap=0):
        st = [g if isinstance(g, list) else [g] for g in stream]
        if not st: return
        hi = min(hi, self.n); lo = max(0, min(lo, hi - 1))
        tot = sum(fc(g) for g in st); done = 0
        free = sum(max(0, self.cap - self.cost[k]) for k in range(lo, hi)); seen = 0; i = 0
        for k in range(lo, hi):
            seen += max(0, self.cap - self.cost[k])
            tgt = tot * min(1.0, seen / max(free, 1))
            while i < len(st) and (k == hi - 1 or (done < tgt and (self.cost[k] + fc(st[i]) <= self.cap or done + 16 < tgt))):
                self.fill[k] += st[i]; self.cost[k] += fc(st[i]); done += fc(st[i]); i += 1
    def emit(self, a, bar, pre_reads, vmhist):
        issued = list(pre_reads); covered = 0
        wp = sorted(set(self.waitpts)); vm = list(vmhist)
        for m in range(self.n):
            if m in self.bars:
                bid = self.bars[m]
                idx = max([k for k, nd in enumerate(vm) if nd is not None and nd <= bid], default=-1)
                bar("s_waitcnt vmcnt(%d) lgkmcnt(0)" % min(63, len(vm) - 1 - idx))
                covered = len(issued)
                if bid in self.hooks: self.hooks[bid]()
            elif m in wp:
                nxt = min([w for w in wp if w > m] + [b for b in self.bars if b > m] + [self.n])
                need = max([k for k, u in enumerate(issued) if u is not None and u < nxt], default=-1)
                if need >= covered:
                    a("s_waitcnt lgkmcnt(%d)" % min(15, len(issued) - 1 - need)); covered = need + 1
            for k, u in enumerate(issued):
                assert not (u == m and k >= covered), ("uncovered read", m)
            a(self.M[m])
            rd = {r[0]: r for r in self.issued_at[m]}
            for x in self.fill[m]:
                t = x.split(";")
                a(t[0].strip())
                if x in rd and x.startswith("ds_"):
                    assert rd[x][3] is None or rd[x][3] > m, ("late read", x, m)
                    issued.append(rd[x][3])
                if isvm(x):
                    mm = re.search(r"need:(\d+)", x); vm.append(int(mm.group(1)) if mm else None)
        self.left = issued[covered:]
        self.over = sum(max(0, c - self.cap) for c in self.cost)
        return vm
```

```python
from gen_common import *
from sched import Sched
MF16 = "v_mfma_f32_16x16x32_bf16"

pX, pWQKV, pWO0, pC, pWQ, pWUK, pWUV, pBWO, pGATE, pDBG, pWS = 36, 38, 40, 44, 46, 48, 50, 52, 54, 58, 60
pWO = 58
NEG = "0xff800000"
THRESH = fbits(2.0 ** 48)
WSL = (98304, 131072)
LDS_G = WSL[0] + 24576
def aslot(g): return ((g + 2) % 3) * 32768

HACK16 = [0, 0]
def emit(a, M, streams):
    if HACK16[0]:
        import re
        M2 = []
        HACK16[1] += 1
        for t in M:
            m = re.match(r"(\S+) ([av])\[(\d+):\d+\], (\S+), (\S+), (\S+)", t)
            for q in range(2):
                b = int(m.group(3)) + 8 * (HACK16[1] % 2) + 4 * q
                d = "%s[%d:%d]" % (m.group(2), b, b + 3)
                M2.append("v_mfma_f32_16x16x32_bf16 %s, %s, %s, %s" % (d, m.group(4), m.group(5), d))
        M = M2
        streams = [([x for g in G for x in (g if isinstance(g, list) else [g])], 2 * l, 2 * h) for (G, l, h) in streams]
    n = len(M)
    fill = [[] for _ in range(n)]
    for (G, l, h) in streams:
        if not G: continue
        for g, m in zip(G, spread(len(G), l, min(h, n))):
            fill[m] += g if isinstance(g, list) else [g]
    for m in range(n):
        a(M[m])
        for x in fill[m]: a(x)
def isvm(x): return x.startswith("buffer_") or x.startswith("global_")

def gen_fused(a, name="p1_kernel", ts=False, NSK=30, WSP=16, PF=1, PKMUL=0, next_kernel=None, PD=8, TS2=0, FUSE=0, SLP=4, QSL=(4, 6, 5), endlabel=None, NOTR=1, CRF=1, PDW=5, GPUB=11, VERB=0, H16=0, W16=0, TS3=0, WP=2, NEWP=1, WPF=None, LNT="", NTG=8, LATEAT=0, STAMPS=("start","setup","bar0","q","attn","s0","s17"), XSL=3, XL2=0, ST=""):
    a.begin_kernel(name)
    T = TS(a, ts, 0)
    def st_(nm):
        if nm in STAMPS: T.stamp(STAMPS.index(nm))
    done = a.label("fdone")
    lAttn, lRare = a.label("attn"), a.label("rarecode")
    sWV = 3
    SA, SW, SX, SO, SD = 4, 8, 12, 16, 40
    sH, sI, sT0, sT1, sT2 = 20, 21, 22, 23, 24
    sAS, sAS2, sWS, sXS, sAM, sWM, sXM, sCNT, sOK, sDS, sSC = 25, 26, 27, 28, 29, 30, 31, 32, 33, 34, 35
    sQL, sQS, sU, sOA, sAD, sWD, sOJ, sVD, sFA, sGR = 92, 93, 94, 95, 96, 97, 56, 57, 63, 99
    sKO, sVO, sW4, sW8, sTH, sT = 48, 49, 50, 51, 54, 55
    vL16 = 1
    vAO, vWO, vXO = (2, 3, 4, 5), (6, 7, 8, 9), (10, 11)
    vAR, vWR, vXR = (12, 13), tuple(range(14, 22)), (22, 23, 24, 25)
    vOS, vOK = 26, 27
    QS = (28, 44); WR, NWR = 60, 8; TT, PK = 96, 104
    KS = (128, 160)
    vFO, vONE, vPFD, vTS, vW12, vPL, vPLO = 120, 121, 122, 123, 124, 125, 126
    sWS2, sOK2 = 62, 98
    QA = 128
    t2 = [0]
    def bar(waitstr):
        if TS2:
            n = t2[0]; t2[0] += 1
            if n > 0: a("v_writelane_b32 v123, s64, %d\nv_writelane_b32 v123, s66, %d" % (2 * n - 2, 2 * n - 1))
            a("s_memtime s[64:65]")
        a(waitstr + "\ns_barrier")
        if TS2: a("s_memtime s[66:67]")
    a("s_cmp_ge_u32 s2, 256\ns_cbranch_scc1 %s" % done)
    st_("start")
    a("s_load_dwordx16 s[36:51], s[0:1], 0\ns_load_dwordx8 s[52:59], s[0:1], 64\ns_load_dwordx2 s[60:61], s[0:1], 96")
    a("v_lshrrev_b32 v30, 6, v0\nv_and_b32 v0, 63, v0\nv_readfirstlane_b32 s%d, v30" % sWV)
    a("s_and_b32 s%d, s2, 7\ns_lshl_b32 s%d, s%d, 2\ns_lshr_b32 s%d, s2, 3\ns_and_b32 s%d, s%d, 3\ns_add_u32 s%d, s%d, s%d" % (sH, sH, sH, sT0, sT0, sT0, sH, sH, sT0))
    a("s_lshr_b32 s%d, s2, 5" % sI)
    a("v_lshlrev_b32 v%d, 4, v0" % vL16)
    a("v_lshrrev_b32 v30, 3, v0\nv_lshrrev_b32 v31, 4, v0\nv_and_b32 v32, 7, v0")
    a("v_xor_b32 v33, v31, v32\nv_lshlrev_b32 v33, 4, v33\nv_lshl_add_u32 v%d, v30, 10, v33" % vAO[0])
    a("v_add_u32 v%d, %d, v%d\nv_xor_b32 v33, 64, v%d\nv_add_u32 v%d, %d, v33\nv_add_u32 v%d, %d, v33" % (vAO[1], 7168, vAO[0], vAO[0], vAO[2], 2 * 7168, vAO[3], 3 * 7168))
    a("v_and_b32 v33, 15, v0\nv_lshlrev_b32 v34, 2, v31\nv_xor_b32 v33, v33, v34\nv_lshlrev_b32 v33, 4, v33\nv_lshl_add_u32 v%d, v31, 13, v33" % vWO[0])
    a("v_add_u32 v%d, %d, v%d\nv_xor_b32 v33, 16, v%d\nv_add_u32 v%d, %d, v33\nv_add_u32 v%d, %d, v33" % (vWO[1], 31744, vWO[0], vWO[0], vWO[2], 2 * 31744, vWO[3], 3 * 31744))
    a("s_sub_u32 s%d, 15, s%d\ns_bitcmp1_b32 s%d, 0\ns_cselect_b32 s%d, s%d, s%d\ns_lshl_b32 s%d, s%d, 1\ns_lshr_b32 s%d, s%d, 1\ns_add_u32 s%d, s%d, s%d" % (sT0, sI, sWV, sT0, sT0, sI, sT0, sT0, sT1, sWV, sT0, sT0, sT1))
    a("s_lshl_b32 s%d, s%d, 16\ns_add_u32 s%d, s%d, 32768" % (sAS, sT0, sAS2, sAS))
    a("s_lshl_b32 s%d, s%d, 13\ns_mov_b32 s%d, s%d" % (sAM, sWV, sWM, sAM))
    a("s_and_b32 s%d, s%d, 1\ns_lshl_b32 s%d, s%d, 18\ns_lshl_b32 s%d, s%d, 8\ns_add_u32 s%d, s%d, s%d" % (sT0, sWV, sT0, sT0, sWS, sH, sWS, sWS, sT0))
    a("s_and_b32 s%d, s2, 31\ns_add_u32 s%d, s%d, 0x20000" % (sU, sWS2, sWS))
    a("s_waitcnt lgkmcnt(0)")
    a("s_mov_b32 s100, s56\ns_mov_b32 s101, s57")
    srd(a, SA, pC, 0x200000)
    a("s_cmp_lt_u32 s%d, 2\ns_cselect_b32 s%d, s%d, s%d\ns_cselect_b32 s%d, s%d, s%d\ns_mov_b32 s%d, 0x400000\ns_mov_b32 s%d, 0x20000" % (sWV, SW, pWUK, pWUV, SW + 1, pWUK + 1, pWUV + 1, SW + 2, SW + 3))
    def dgrp(m0s, m0i, vo, srd_, so, stp, nd):
        G = ["s_add_u32 m0, s%d, %d" % (m0s, m0i)]
        G += ["buffer_load_dwordx4 v%d, s[%d:%d], s%d offen offset:%d lds ; need:%d" % (v, srd_, srd_ + 3, so, n * 1024, nd) for n, v in enumerate(vo)]
        G.append("s_add_u32 s%d, s%d, %d" % (so, so, stp))
        return G
    def fixm0(G):
        out = []
        for k, x in enumerate(G):
            out.append(x)
            if x.startswith("s_add_u32 m0"):
                if len(out) > 1 and out[-2].startswith("s_add_u32 s"): out[-1], out[-2] = out[-2], out[-1]
                else: out.append("s_nop 0")
        return out
    def dma_act(g): return fixm0(dgrp(sAM, aslot(g), vAO, SA, sAS, 128, g) + dgrp(sAM, aslot(g) + 4096, vAO, SA, sAS2, 128, g))
    def dma_w(g, withx=True):
        G = dgrp(sWM, WSL[g % 2], vWO, SW, sWS, 0x80000, g)
        if g < 8: G += dgrp(sWM, WSL[g % 2] + 4096, vWO, SW, sWS2, 0x80000, g)
        elif withx: G += dgrp(sXM, WSL[g % 2] + 16384, vXO, SX, sXS, 64 * 3072, g)
        return fixm0(G)
    for x in dma_w(0) + dma_act(0): a(x.split(";")[0])
    NSL = max(XL2 + 4 if XL2 else 0, max(QSL) + 1, XSL + 1)
    def preg(k): return 192 + 2 * k
    def pf(k): return "global_load_dword v122, %s, off" % vr(preg(k), 2)
    def pfa(k, base, vo, so, imm=0):
        r = preg(k)
        a("s_add_u32 s%d, s%d, %d\nv_mov_b32 v%d, s%d\nv_add_u32 v%d, s%d, v%d" % (sT2, so, imm, r + 1, base + 1, r, sT2, vo))
        a("v_add_co_u32 v%d, vcc, s%d, v%d\ns_nop 1\nv_addc_co_u32 v%d, vcc, 0, v%d, vcc" % (r, base, r, r + 1, r + 1))
    def pfnone(k): a("v_mov_b32 v%d, s%d\nv_mov_b32 v%d, s%d" % (preg(k), pGATE, preg(k) + 1, pGATE + 1))
    if PF:
        l1, l3, le = a.label("pf1"), a.label("pf3"), a.label("pfe")
        a("s_cmp_eq_u32 s%d, 1\ns_cbranch_scc1 %s\ns_cmp_eq_u32 s%d, 3\ns_cbranch_scc1 %s" % (sWV, l1, sWV, l3))
        a("v_and_b32 v26, 31, v0\nv_lshlrev_b32 v26, 7, v26\ns_lshl_b32 s%d, s2, 13\ns_lshl_b32 s%d, s%d, 11\ns_add_u32 s%d, s%d, s%d" % (sT0, sT1, sWV, sT0, sT0, sT1))
        pfa(0, pC, 26, sT0, 0); a(pf(0))
        pfa(XSL, pX, 26, sT0, 0)
        used = {0, XSL}
        if XL2:
            a("s_lshr_b32 s%d, s2, 3\ns_lshl_b32 s%d, s%d, 16\ns_lshl_b32 s%d, s%d, 6\ns_add_u32 s%d, s%d, s%d\nv_lshlrev_b32 v26, 10, v0" % (sT0, sT0, sT0, sT1, sWV, sT1, sT0, sT1))
            for j in range(4):
                pfa(XL2 + j, pX, 26, sT1, 256 * j); used.add(XL2 + j)
        for k in range(NSL):
            if k not in used: pfnone(k)
        a("s_branch %s\n%s:" % (le, l1))
        a("v_lshrrev_b32 v26, 1, v0\nv_lshlrev_b32 v26, 13, v26\nv_and_b32 v27, 1, v0\nv_lshl_add_u32 v26, v27, 7, v26")
        a("s_bitcmp1_b32 s%d, 1\ns_cselect_b32 s98, s%d, s%d\ns_cselect_b32 s99, s%d, s%d" % (sI, pWUV, pWUK, pWUV + 1, pWUK + 1))
        a("s_and_b32 s%d, s%d, 1\ns_lshl_b32 s%d, s%d, 18\ns_lshl_b32 s%d, s%d, 8\ns_add_u32 s%d, s%d, s%d" % (sT0, sI, sT0, sT0, sT1, sH, sCNT, sT0, sT1))
        a("s_lshr_b32 s%d, s%d, 2\ns_lshl_b32 s%d, s%d, 19\ns_add_u32 s%d, s%d, s%d" % (sT0, sI, sT0, sT0, sT0, sT0, sCNT))
        pfa(0, 98, 26, sT0, 1 * 0x80000); a(pf(0))
        pfa(1, 98, 26, sT0, 3 * 0x80000); pfa(2, 98, 26, sT0, 5 * 0x80000); pfa(3, 98, 26, sCNT, 7 * 0x80000)
        for k in range(4, NSL): pfnone(k)
        a("s_branch %s\n%s:" % (le, l3))
        lpc = a.label("pc")
        a("s_getpc_b64 s[98:99]\n%s:" % lpc)
        a("s_lshr_b32 s%d, s2, 3\nv_lshlrev_b32 v26, 5, v0\nv_add_u32 v26, s%d, v26\nv_lshlrev_b32 v26, 7, v26\ns_mov_b32 s%d, 0" % (sT0, sT0, sT0))
        a("v_min_u32 v27, %s-%s, v26" % (lAttn, lpc))
        pfa(0, 98, 27, sT0, 0); a(pf(0))
        a("v_lshrrev_b32 v26, 1, v0\nv_lshlrev_b32 v26, 13, v26\nv_and_b32 v27, 1, v0\nv_lshl_add_u32 v26, v27, 7, v26")
        a("s_lshl_b32 s%d, s%d, 18\ns_lshl_b32 s%d, s%d, 8\ns_add_u32 s%d, s%d, s%d" % (sT0, sI, sT1, sH, sT0, sT0, sT1))
        pfa(QSL[0], pWQ, 26, sT0, 0); pfa(QSL[1], pWQ, 26, sT0, 4 * 0x80000)
        a("s_min_u32 s%d, s%d, 23\ns_lshl_b32 s%d, s%d, 7\ns_mul_i32 s%d, s%d, %d\ns_add_u32 s%d, s%d, s%d\nv_mul_u32_u24 v26, 3072, v0" % (sT0, sU, sT0, sT0, sT1, sI, 64 * 3072, sT0, sT0, sT1))
        pfa(QSL[2], pWQKV, 26, sT0, 0)
        for k in range(1, NSL):
            if k not in QSL: pfnone(k)
        a(le + ":")
    def pfp(p): return [pf(p + 2)] if (PF and p + 2 < NSL) else []
    srd(a, SO, pWS, WS_SIZE)
    a("v_and_b32 v33, 1, v31\nv_lshlrev_b32 v33, 2, v33\nv_xor_b32 v33, v33, v32\nv_lshlrev_b32 v33, 4, v33\ns_movk_i32 s%d, 3072\nv_mad_u32_u24 v%d, v30, s%d, v33" % (sT0, vXO[0], sT0))
    a("v_xor_b32 v33, 16, v%d\nv_add_u32 v%d, %d, v33" % (vXO[0], vXO[1], 24576 - 1024))
    a("v_and_b32 v33, 1, v30\nv_lshl_add_u32 v33, v33, 4, v32")
    a("v_and_b32 v34, 15, v0\nv_lshrrev_b32 v34, 1, v34\nv_xor_b32 v34, v34, v31\nv_lshlrev_b32 v34, 4, v34\nv_lshl_add_u32 v34, v33, 7, v34")
    a("s_and_b32 s%d, s%d, 1\ns_lshl_b32 s%d, s%d, 14\ns_add_u32 s%d, s%d, %d" % (sT0, sWV, sT0, sT0, sT0, sT0, aslot(0)))
    a("v_add_u32 v%d, s%d, v34\nv_xor_b32 v%d, 64, v%d" % (vAR[0], sT0, vAR[1], vAR[0]))
    a("v_lshlrev_b32 v33, 4, v33\nv_lshl_add_u32 v%d, v31, 9, v33" % vOS)
    a("v_and_b32 v34, 1, v31\nv_lshl_add_u32 v33, v34, 10, v33\nv_lshrrev_b32 v35, 5, v0\nv_lshl_add_u32 v33, v35, 9, v33")
    a("s_cmp_lt_u32 s%d, 2\ns_cselect_b64 vcc, -1, 0\nv_cndmask_b32 v%d, v%d, v33, vcc" % (sWV, vOK, vOS))
    a("v_lshrrev_b32 v35, 2, v0\nv_and_b32 v35, 3, v35\nv_lshl_add_u32 v36, v31, 3, v35")
    a("v_and_b32 v37, 2, v0\nv_xor_b32 v37, v37, v34\nv_and_b32 v38, 1, v0\nv_lshlrev_b32 v38, 3, v38")
    a("v_lshlrev_b32 v39, 2, v35\nv_xor_b32 v39, v39, v37\nv_lshlrev_b32 v39, 4, v39\nv_lshl_add_u32 v39, v36, 8, v39")
    a("s_lshr_b32 s%d, s%d, 1\ns_lshl_b32 s%d, s%d, 14\ns_add_u32 s%d, s%d, %d\nv_add3_u32 v39, v39, v38, s%d" % (sWD, sWV, sWD, sWD, sT0, sWD, WSL[0], sT0))
    for k in range(8): a("v_xor_b32 v%d, %d, v39" % (vWR[k], 64 * (k // 2) + 16 * (k % 2)))
    a("v_lshrrev_b32 v39, 1, v35\nv_lshlrev_b32 v39, 2, v39\nv_xor_b32 v39, v39, v37\nv_lshlrev_b32 v39, 4, v39\nv_lshl_add_u32 v39, v36, 7, v39\nv_add_u32 v39, v39, v38\nv_add_u32 v39, %d, v39" % (WSL[0] + 16384))
    for k in range(4): a("v_xor_b32 v%d, %d, v39" % (vXR[k], 64 * (k // 2) + 16 * (k % 2)))
    a("s_lshl_b32 s%d, s%d, 2\ns_add_u32 s%d, s%d, s%d\ns_sub_u32 s%d, 60, s%d\ns_add_u32 s%d, s%d, s%d" % (sT1, sI, sQS, sT1, sWV, sQL, sT1, sQL, sQL, sWV))
    a("s_lshr_b32 s%d, s%d, 1\ns_lshl_b32 s%d, s%d, 5\ns_add_u32 s%d, s%d, s%d\ns_add_u32 s%d, s%d, 44\ns_lshl_b32 s%d, s%d, 19" % (sT0, sWV, sT0, sT0, sT0, sT0, sH, sT0, sT0, sOK, sT0))
    a("s_and_b32 s%d, s%d, 1\ns_lshl_b32 s%d, s%d, 1\ns_add_u32 s%d, s%d, s%d\ns_lshl_b32 s%d, s%d, 14\ns_add_u32 s%d, s%d, s%d" % (sT0, sWV, sT1, sI, sT0, sT0, sT1, sT0, sT0, sOK, sOK, sT0))
    a("s_lshl_b32 s%d, s%d, 16\ns_sub_u32 s%d, %d, s%d" % (sT0, sI, sOJ, 60 * 8192 - 4096, sT0))
    a("s_lshl_b32 s%d, s%d, 13\ns_and_b32 s%d, s%d, 1\ns_lshl_b32 s%d, s%d, 14\ns_sub_u32 s%d, s%d, s%d\ns_add_u32 s%d, s%d, %d" % (sT0, sWV, sT1, sWV, sT1, sT1, sAD, sT0, sT1, sAD, sAD, aslot(8) - aslot(7)))
    a("s_lshl_b32 s%d, s%d, 6\nv_add_u32 v%d, s%d, v0\nv_lshlrev_b32 v%d, 12, v%d\nv_mov_b32 v%d, 1" % (sT0, sWV, vFO, sT0, vFO, vFO, vONE))
    lpc2 = a.label("pc")
    a("s_getpc_b64 s[0:1]\n%s:" % lpc2)
    a("s_lshr_b32 s%d, s2, 3\ns_lshl_b32 s%d, s%d, 2\ns_add_u32 s%d, s%d, s%d\nv_and_b32 v127, 15, v0\nv_lshlrev_b32 v127, 7, v127\nv_add_lshl_u32 v127, v127, s%d, 7" % (sT0, sT0, sT0, sT0, sT0, sWV, sT0))
    a("v_min_u32 v127, %s-%s, v127" % (endlabel or lRare, lpc2))
    srd(a, SX, pGATE, 1024)
    a("s_mov_b32 s98, s%d\ns_mov_b32 s99, s%d" % (pWO0, pWO0 + 1))
    srd(a, SD, pDBG, 256)
    a("s_mov_b32 s%d, s98\ns_mov_b32 s%d, s99" % (pWO, pWO + 1))
    a("s_getreg_b32 s%d, hwreg(HW_REG_XCC_ID, 0, 4)\ns_mul_i32 s%d, s%d, s%d\ns_lshl_b32 s%d, s%d, 8\ns_add_u32 s%d, s%d, s%d\ns_lshl_b32 s%d, s%d, 8\ns_add_u32 s%d, s%d, 1" % (sT0, sT1, sT0, sT0, sT1, sT1, sT1, sT1, sT0, sT1, sT1, sFA, sT1))
    a("v_mov_b32 v125, s%d\ns_lshl_b32 s%d, s%d, 3\ns_and_b32 s%d, s2, 7\ns_lshl_b32 s%d, s%d, 2\ns_lshl_b32 s%d, s%d, 2" % (sFA, sFA, sFA, sGR, sGR, sGR, sCNT, sH))
    a("v_and_b32 v126, 3, v0\nv_add_lshl_u32 v126, v126, s%d, 2\ns_lshl_b32 s%d, s%d, 12\nv_add_u32 v126, s%d, v126\nv_mov_b32 v124, s%d" % (sGR, sT0, sWV, sT0, sT0))
    a("buffer_atomic_add v125, v%d, s[%d:%d], s%d offen offset:128 sc1\ns_add_u32 s%d, s%d, 8192" % (vFO, SD, SD + 3, sCNT, sOK2, sOK))

    def wofs(g): return (g % 2) * 32768
    def xa(g, ks):
        if g == 7: return "v_add_u32 v%d, s%d, v%d" % (vAR[ks], sAD, vAR[ks])
        d = aslot(g + 1) - aslot(g)
        return ("v_add_u32 v%d, 0x%x, v%d" % (vAR[ks], d, vAR[ks])) if d > 0 else ("v_subrev_u32 v%d, 0x%x, v%d" % (vAR[ks], -d, vAR[ks]))
    def rd_act(g, ks):
        F = (KS if g < 8 else QS)[ks]
        return ["ds_read_b128 %s, v%d offset:%d" % (vr(F + 4 * n, 4), vAR[ks], (n // 2) * 4096 + (n % 2) * 1024) for n in range(8 if g < 8 else 4)]
    def rd_w(g, ks, wf, slot):
        r = WR + 4 * (slot % NWR)
        if wf < 8: return ["ds_read_b64_tr_b16 %s, v%d offset:%d" % (vr(r + 2 * rd_, 2), vWR[wf], wofs(g) + ks * 8192 + rd_ * 1024) for rd_ in range(2)]
        if wf < 12: return ["ds_read_b64_tr_b16 %s, v%d offset:%d" % (vr(r + 2 * rd_, 2), vXR[wf - 8], wofs(g) + ks * 4096 + rd_ * 512) for rd_ in range(2)]
        return ["ds_read_b128 %s, v%d offset:%d" % (vr(r, 4), vXR[0], ((g - 8) * 2 + ks) * 64)]
    def mfs(g, ks, wf, slot, var):
        w = vr(WR + 4 * (slot % NWR), 4); F = (KS if g < 8 else QS)[ks]; first = (g % 8 == 0 and ks == 0)
        cb, tc = (wf % 8) // 2, wf % 2
        M = []
        for n in range(8 if g < 8 else 4):
            rb, tr = n // 2, n % 2
            x = vr(F + 4 * n, 4)
            sw = (var == "V") or (var == "S" and wf >= 8)
            tb, ta = (tc, tr) if sw else (tr, tc)
            if g < 8: acc = ar(((rb // 2) * 16 + cb * 4 + (rb % 2) * 2 + tb) * 8 + ta * 4, 4)
            elif wf < 8: acc = vr(QA + ((rb * 4 + cb) * 2 + tr) * 8 + tc * 4, 4)
            elif wf < 12: acc = ar((cb * 4 + rb * 2 + tb) * 8 + ta * 4, 4)
            else: acc = ar(4 * n, 4)
            M.append("%s %s, %s, %s, %s" % (MF16, acc, x if sw else w, w if sw else x, "0" if first else acc))
        return M
    def order(g, var):
        nw = list(range(8)) + ([8, 9, 10, 11] if var in "NS" else [12] if var == "G" else [])
        if g == 7: return [(ks, 2 * cb + t) for cb in range(4) for ks in range(2) for t in range(2)]
        if g == 15 and var in "NS":
            return [(ks, wf) for ks in range(2) for wf in range(8, 12)] + [(ks, 2 * cb + t) for cb in range(4) for ks in range(2) for t in range(2)]
        return [(ks, wf) for ks in range(2) for wf in nw]
    def build(g0, var):
        fr = [(g, ks, wf) for g in range(g0, g0 + 8) for (ks, wf) in order(g, var)]
        M = []; fm = []
        for k, (g, ks, wf) in enumerate(fr):
            fm.append(len(M)); M += mfs(g, ks, wf, k, var)
        S_ = Sched(M); n = len(M)
        look = [(8, 0, wf) for wf in range(PDW)] if g0 == 0 else []
        allf = fr + look
        cs = {};
        for k, (g, ks, wf) in enumerate(allf): cs.setdefault(g, k)
        bar_m = {g: fm[cs[g] - PDW + 1] for g in cs if g > g0}
        for g, m in bar_m.items(): S_.bars[m] = g
        na = 8 if g0 == 0 else 4
        items = []
        for k in range(PDW, len(allf)):
            g, ks, wf = allf[k]
            t = fm[k - PDW]; e = bar_m.get(g, 0); use = fm[k] if k < len(fr) else n + 1 + (k - len(fr))
            if k == cs[g] and g == 8: items += [(max(t, e), 0, j, ("v_subrev_u32 v%d, s%d, v%d" % (r, sWD, r), t, e, None)) for j, r in enumerate(vWR)]
            items += [(max(t, e), 1 if k == cs[g] else 3, 2 * k + j, (x, t, e, use)) for j, x in enumerate(rd_w(g, ks, wf, k))]
        for g in cs:
            for ks in range(2):
                if g == g0 and ks == 0: continue
                if g == 8 and g0 == 0 and ks == 1: continue
                R = rd_act(g, ks) + ([xa(g, ks)] if g < 15 else [])
                k1 = [k for k, f in enumerate(allf) if f[0] == g and f[1] == ks][0]
                u0 = fm[k1] if k1 < len(fr) else None
                for j, x in enumerate(R):
                    if ks == 0: t = e = bar_m[g]
                    else:
                        e = fm[cs[g]]; t = e + (j * min(u0 - e - 8, 40)) // len(R)
                    use = None if not x.startswith("ds_") else (u0 + j if u0 is not None else n)
                    items.append((max(t, e), 2, j, (x, t, e, use)))
        items.sort(key=lambda z: z[:3])
        S_.rq = [z[3] for z in items]
        S_.waitpts = [fm[k] for k in range(0, len(fr), 2 if var != "G" else 1) ]
        S_.place_reads()
        return S_, {g: fm[cs[g]] for g in range(g0, g0 + 8)}, bar_m, fm
    def pack(areg, pk, scale=None):
        t = TT
        G = ["v_accvgpr_read_b32 v%d, a%d" % (t + j, areg + j) for j in range(8)]
        if scale is not None: G += ["v_mul_f32 v%d, s%d, v%d" % (t + j, scale, t + j) for j in range(8)]
        G += ["v_cvt_pk_bf16_f32 v%d, v%d, v%d" % (pk + j, t + 2 * j, t + 2 * j + 1) for j in range(4)]
        return G
    def kv_unit(j, nd=None):
        cb, rb, tb = (j % 16) // 4, (j // 2) % 2, j % 2
        pk = PK + 4 * (j % 4)
        G = pack(j * 8, pk) + ["buffer_store_dwordx4 %s, v%d, s[%d:%d], s%d offen offset:%d%s" % (vr(pk, 4), vOK, SO, SO + 3, (sOK, sOK2)[rb], (cb % 2) * 2048 + tb * 128, " ; need:%d" % nd if nd else "")]
        if j == 15: G += ["s_add_u32 s%d, s%d, s%d" % (sOK, sOK, sOJ), "s_add_u32 s%d, s%d, s%d" % (sOK2, sOK2, sOJ)]
        elif j % 16 == 7: G += ["s_add_u32 s%d, s%d, 4096" % (sOK, sOK), "s_add_u32 s%d, s%d, 4096" % (sOK2, sOK2)]
        return G
    qa_setup = [["s_mov_b32 s%d, s%d" % (SA, pX), "s_mov_b32 s%d, s%d" % (SA + 1, pX + 1),
                 "s_lshl_b32 s%d, s%d, 15" % (sAS, sQL), "s_lshl_b32 s%d, s%d, 15" % (sAS2, sQS)]]
    qw_setup = [["s_mov_b32 m0, %d" % LDS_G, "s_mov_b32 s%d, s%d" % (SW, pWQ), "buffer_load_dwordx4 v%d, s[%d:%d], 0 offen lds ; need:8" % (vL16, SX, SX + 3), "s_mov_b32 s%d, s%d" % (SW + 1, pWQ + 1)],
                ["s_lshl_b32 s%d, s%d, 17" % (sT0, sWV), "s_lshl_b32 s%d, s%d, 8" % (sWS, sH), "s_add_u32 s%d, s%d, s%d" % (sWS, sWS, sT0), "s_lshl_b32 s%d, s%d, 12" % (sWM, sWV)],
                ["s_mov_b32 s%d, s%d" % (SX, pWQKV), "s_mov_b32 s%d, s%d" % (SX + 1, pWQKV + 1), "s_lshl_b32 s%d, s%d, 11" % (sXM, sWV), "s_mul_i32 s%d, s%d, %d" % (sXS, sWV, 16 * 3072)],
                ["s_lshl_b32 s%d, s%d, 7" % (sT0, sU), "s_add_u32 s%d, s%d, s%d" % (sXS, sXS, sT0),
                 "s_and_b32 s%d, s%d, 3" % (sT0, sH), "s_cmp_eq_u32 s%d, 3" % sT0, "s_cselect_b32 s%d, 0, 0x180000" % (SX + 2)]]
    at_setup = [["v_cmp_ne_u32 vcc, s%d, v125" % sFA], ["s_cmp_eq_u64 vcc, 0", "s_cselect_b32 s%d, 1, s%d" % (sFA, sWV)],
                ["s_cmp_eq_u32 s%d, 0" % sWV, "s_cselect_b32 s46, 8, 0", "s_cselect_b32 s47, 0x80000000, 0"],
                ["s_lshl_b32 s%d, s%d, 12" % (sW4, sWV), "s_lshl_b32 s%d, s%d, 13" % (sW8, sWV), "s_lshl_b32 s%d, s%d, 19" % (sT0, sH)],
                ["s_lshl_b32 s%d, s%d, 15" % (sVD, sI), "s_add_u32 s%d, s%d, s%d" % (sT0, sT0, sVD)],
                ["s_add_u32 s%d, s%d, 0x%x" % (sKO, sT0, OFF_K), "s_add_u32 s%d, s%d, 0x%x" % (sVO, sT0, OFF_V), "s_mov_b32 s%d, %s" % (sTH, THRESH)]]
    SK, SV = 4, SO
    vK, vV = vL16, 2
    def dma(which, typ, par, srd_=None):
        so, sr_, base = (sKO, SK, 0) if which == "K" else (sVO, SV, 65536)
        if srd_ is not None: sr_ = srd_
        sw = sW4 if typ == 1 else sW8
        G = []
        for q in range(typ):
            g = ["s_add_u32 m0, s%d, %d" % (sw, base + par * 32768 + q * 4096)]
            g.append("s_add_u32 s%d, s%d, s%d" % (sDS, so, sw) if q == 0 else "s_add_u32 s%d, s%d, 4096" % (sDS, sDS))
            G.append(g)
            for o in range(4):
                G.append(["buffer_load_dwordx4 v%d, s[%d:%d], s%d offen offset:%d sc1 lds" % (vK, sr_, sr_ + 3, sDS, o * 1024)])
        return G
    def adv(which, typ):
        so = sKO if which == "K" else sVO
        if which == "V" and typ == 1: return ["s_add_u32 s%d, s%d, s%d" % (so, so, sVD), "s_movk_i32 s%d, 0x4000" % sVD]
        return ["s_add_u32 s%d, s%d, %d" % (so, so, 16384 * typ)]
    spins = []
    vF1, vFA, vPO = 122, 251, 254
    sP1, sG1, sG2 = 45, 46, 47
    def poll_load(kind):
        if kind == 1: return "buffer_load_dword v%d, v124, s[%d:%d], s%d offen sc1" % (vF1, SD, SD + 3, sCNT)
        if kind == 3: return "buffer_load_dword v13, v12, s[%d:%d], 0 offen offset:128 sc1" % (SD, SD + 3)
        return "buffer_load_dword v%d, v%d, s[%d:%d], 0 offen offset:128 sc1" % (vFA, vPO, SD, SD + 3)
    def poll_cmp(kind): return "v_cmp_gt_u32 vcc, s%d, v%d" % ((sG1, vF1) if kind == 1 else (sG2, vFA) if kind == 2 else (sG2, 13))
    def poll_check(kind):
        ls, lb = a.label("spin"), a.label("spun")
        a("%s\ns_cbranch_vccnz %s\n%s:" % (poll_cmp(kind), ls, lb))
        spins.append((ls, lb, kind))
    rels = []
    def release():
        ls, lb = a.label("rel"), a.label("reld")
        a("s_cmp_eq_u32 s%d, 0\ns_cbranch_scc1 %s\n%s:" % (sFA, ls, lb))
        rels.append((ls, lb))

    st_("setup")
    bar("s_waitcnt vmcnt(%d)" % (2 if PF else 1))
    st_("bar0")
    def flat(G): return [x for g in G for x in g]
    def keep(G): return [g if any(x.startswith("s_cselect") for x in g) else None for g in G]
    def soft(G):
        out = []
        for g in G:
            if any(x.startswith("s_cselect") for x in g):
                k = [j for j, x in enumerate(g) if x.startswith("s_cmp")][0]
                out += g[:k] + [g[k:]]
            else: out += g
        return out
    pre0 = rd_w(0, 0, 0, 0) + rd_act(0, 0) + [x for k in range(1, PDW) for x in rd_w(0, 0, k, k)]
    use0 = [0, 0] + list(range(8)) + [8 * k for k in range(1, PDW) for _ in range(2)]
    for x in pre0: a(x)
    a(xa(0, 0))
    lV = a.label("kvV"); lQ = a.label("qphase")
    a("s_cmp_ge_u32 s%d, 2\ns_cbranch_scc1 %s" % (sWV, lV))
    NKV = 12
    for var in ("K", "V"):
        if var == "V": a(lV + ":")
        t2[0] = 1
        S_, cm, bm, fm = build(0, var)
        S_.place(dma_w(1) + dma_act(1), 0, 56)
        S_.place(dma_act(2) + pfp(-1), 56, bm[1] - 2)
        for g in range(1, 9):
            b = bm[g]; e = bm.get(g + 1, S_.n + 96)
            Wn = (soft(qw_setup) if g == 7 else []) + dma_w(g + 1) + pfp(g - 1)
            if CRF and g in (3, 5, 7): Wn = Wn + ["global_load_dword v122, v127, s[0:1]"]
            if g == 6: Wn = ["buffer_load_dword v125, v126, s[%d:%d], 0 offen offset:128 sc1 ; need:7" % (SD, SD + 3)] + Wn
            S_.place(Wn, b, b + (44 if g < 8 else 31))
            if g < 8: S_.place((flat(qa_setup) if g == 6 else []) + dma_act(g + 2) + (soft(at_setup) if g == 7 else []), b + 44, e - 8)
        for cb in range(3):
            S_.place([x for j in range(4 * cb, 4 * cb + 4) for x in kv_unit(j, GPUB)], cm[7] + 32 * cb + 36, cm[7] + 32 * cb + 68 if cb < 2 else S_.n)
        vmh = S_.emit(a, bar, use0, [])
        left = S_.left; nkv = S_.n
        if VERB: print("KV over", S_.over, "sum", sum(S_.cost))
        if var == "K": a("s_branch %s" % lQ)
    a(lQ + ":")
    st_("q")
    lN, lS, lG, lE = a.label("qN"), a.label("qS"), a.label("qG"), a.label("qE")
    a("s_and_b32 s%d, s%d, 3\ns_cmp_eq_u32 s%d, 3\ns_cbranch_scc1 %s\ns_cmp_ge_u32 s%d, 16\ns_cbranch_scc1 %s" % (sT0, sH, sT0, lG, sU, lS))
    use8 = [0 if u == nkv else 4 * (u - nkv - 1) for u in left]
    for var, lab in (("N", lN), ("S", lS), ("G", lG)):
        a(lab + ":")
        t2[0] = 9
        if var == "G": a("v_lshrrev_b32 v%d, 4, v0\nv_lshlrev_b32 v%d, 4, v%d\nv_add_u32 v%d, %d, v%d" % (vXR[0], vXR[0], vXR[0], vXR[0], LDS_G, vXR[0]))
        S_, cm, bm, fm = build(8, var)
        per = cm[9] - cm[8]
        vTW, vTR, TG = vXO[0], (vXO[1], vXR[1], vXR[2], vXR[3]), 32
        sSJ, sTD, sTL = sOA, sXS, sXM
        def t_dma(j, nd):
            G = []
            if j == 4: G += ["s_mov_b32 s%d, s%d" % (SX, pWO), "s_mov_b32 s%d, s%d" % (SX + 1, pWO + 1), "s_mov_b32 s%d, 0x80000" % (SX + 2)]
            for n in range(4):
                G += ["s_add_u32 m0, s%d, %d" % (sTL, n * 1024), "s_add_u32 s%d, s%d, %d" % (sDS, sSC, (j % 4) * 0x100000 + n * 4096),
                      "buffer_load_dwordx4 v%d, s[%d:%d], s%d offen lds ; need:%d" % (vTW, SX, SX + 3, sDS, nd)]
            return G
        def t_store(j):
            G = []
            if j == 4: G.append(["s_cmp_ge_u32 s%d, 32" % sSJ, "s_cselect_b32 s%d, 0x%x, s%d" % (sTD, OFF_DUMMY, sTD)])
            G.append("s_add_u32 s%d, s%d, %d" % (sT1, sTD, WROW))
            G += ["buffer_store_dwordx4 %s, v%d, s[%d:%d], s%d offen offset:%d" % (ar(TG + 4 * cb, 4), vL16, SO, SO + 3, sTD if cb < 2 else sT1, (cb % 2) * 1024) for cb in range(4)]
            G.append("s_add_u32 s%d, s%d, %d" % (sTD, sTD, 64 * 2048))
            return G
        if var == "G" and not NOTR:
            rq = list(S_.rq)
            for g in range(10, 15):
                pos = [k for k, r in enumerate(rq) if max(r[1], r[2]) >= cm[g]][0]
                rq[pos:pos] = [("ds_read_b64_tr_b16 %s, v%d offset:%d" % (ar(TG + 4 * cb + 2 * rd_, 2), vTR[cb], rd_ * 2048), cm[g] - 1, cm[g] - 1, cm[g] + 12) for cb in range(4) for rd_ in range(2)]
            S2 = Sched(S_.M); S2.bars = S_.bars; S2.waitpts = S_.waitpts; S2.rq = rq; S2.place_reads(); S_ = S2
            tsetup = ("s_and_b32 s%d, s2, 7\ns_lshl_b32 s%d, s%d, 3\ns_add_u32 s%d, s%d, s%d\n" % (sSJ, sSJ, sSJ, sSJ, sSJ, sI) +
                "s_lshl_b32 s%d, s%d, 12\ns_add_u32 s%d, s%d, %d\n" % (sTL, sWV, sTL, sTL, WSL[1] + 16384) +
                "v_lshrrev_b32 v92, 4, v0\nv_and_b32 v93, 15, v0\nv_lshlrev_b32 v94, 2, v92\nv_xor_b32 v93, v93, v94\nv_lshlrev_b32 v93, 4, v93\nv_lshl_add_u32 v%d, v92, 10, v93\n" % vTW +
                "s_mov_b32 s%d, s%d\ns_mov_b32 s%d, s%d\ns_mov_b32 s%d, 0x400000\n" % (SX, pBWO, SX + 1, pBWO + 1, SX + 2) +
                "s_lshl_b32 s%d, s%d, 14\ns_lshl_b32 s%d, s%d, 8\ns_add_u32 s%d, s%d, s%d\n" % (sSC, sSJ, sT0, sWV, sSC, sSC, sT0) +
                "v_lshrrev_b32 v93, 2, v0\nv_and_b32 v93, 3, v93\nv_lshrrev_b32 v94, 5, v0\nv_lshl_add_u32 v94, v94, 2, v93\n" +
                ("v_and_b32 v95, 1, v92\nv_lshlrev_b32 v95, 3, v95\nv_and_b32 v92, 3, v0\n" if W16 else
                 "v_and_b32 v92, 1, v92\nv_lshlrev_b32 v92, 1, v92\nv_lshrrev_b32 v95, 1, v0\nv_and_b32 v95, 1, v95\nv_add_u32 v92, v92, v95\nv_and_b32 v95, 1, v0\nv_lshlrev_b32 v95, 3, v95\n") +
                "v_lshlrev_b32 v93, 2, v93\nv_xor_b32 v93, v93, v92\nv_lshlrev_b32 v93, 4, v93\nv_lshl_add_u32 v93, v94, 8, v93\nv_add3_u32 v93, v93, v95, s%d\n" % sTL +
                "".join("v_xor_b32 v%d, %d, v93\n" % (vTR[k], 64 * k) for k in range(4)) +
                "s_mul_i32 s%d, s%d, %d\ns_lshl_b32 s%d, s%d, 11\ns_add_u32 s%d, s%d, s%d\ns_add_u32 s%d, s%d, 0x%x" % (sTD, sWV, 2 * WROW, sT1, sSJ, sTD, sTD, sT1, sTD, sTD, OFF_W)).split("\n")
        S_.place(dma_act(10) + (tsetup if var == "G" and not NOTR else []), 0, bm[9] - 6)
        for g in range(9, 16):
            b = bm[g]; e = bm.get(g + 1, S_.n)
            Wn = dma_w(g + 1, var != "G") if g < 15 else flat(dma("K", 1, 0, SO) + [adv("K", 1)] + dma("K", 1, 1, SO)) + [poll_load(1) + " ; need:16"]
            if g == GPUB:
                S_.hooks[g] = release
                Wn = Wn + ["buffer_atomic_add v%d, v%d, s[%d:%d], s%d offen sc1" % (vONE, vFO, SD, SD + 3, sCNT)]
            if CRF and g in (9, 11, 13): Wn = Wn + ["global_load_dword v122, v127, s[0:1]"]
            A = dma_act(g + 2) if g + 2 < 16 else []
            if var == "G" and not NOTR:
                mid = cm[g] + 14
                S_.place(Wn, b, mid)
                S_.place((t_dma(g - 9, g + 1) if g < 14 else []) + (t_store(g - 10) if 10 <= g < 15 else []) + A, mid, e - 4)
            else:
                S_.place(Wn, b, b + 32)
                S_.place(A, b + 32, e - 6)
        zero = lambda lo, hi: ["v_accvgpr_write_b32 a%d, 0" % r for r in range(lo, hi)]
        S_.place([x for j in range(NKV, 16) for x in kv_unit(j, GPUB)], 6, cm[9] + per // 2)
        S_.place([x for j in range(16, 32) for x in kv_unit(j)] + zero(64, 128), cm[9] + per // 2, cm[15] + 24)
        tail = []
        if var in "NS":
            hd = ["s_lshr_b32 s%d, s%d, 1" % (sT0, sU), "s_lshl_b32 s%d, s%d, 19" % (sT0, sT0), "s_and_b32 s%d, s%d, 1" % (sT1, sU), "s_lshl_b32 s%d, s%d, 12" % (sT1, sT1), "s_add_u32 s%d, s%d, s%d" % (sT0, sT0, sT1),
                  ["s_cmp_lt_u32 s%d, 8" % sU, "s_cselect_b32 s%d, %s, 1.0" % (sSC, fbits(LOG2E * 0.25))],
                  "s_lshl_b32 s%d, s%d, 13" % (sOK, sQL), "s_add_u32 s%d, s%d, s%d" % (sOK, sOK, sT0), "s_lshl_b32 s%d, s%d, 13" % (sOK2, sQS), "s_add_u32 s%d, s%d, s%d" % (sOK2, sOK2, sT0)]
            AE = []
            for j in range(8):
                cb, rb, tb = j // 4, (j // 2) % 2, j % 2
                pk = PK + 4 * (j % 4)
                AE += pack(j * 8, pk, sSC if var == "N" else None) + ["buffer_store_dwordx4 %s, v%d, s[%d:%d], s%d offen offset:%d" % (vr(pk, 4), vOS, SO, SO + 3, (sOK, sOK2)[rb], cb * 2048 + tb * 128)]
            S_.place(hd, cm[15] + 24, cm[15] + 36)
            room = sum(max(0, 8 - S_.cost[k]) for k in range(cm[15] + 38, S_.n)) // 4
            S_.place(AE[:room], cm[15] + 38, S_.n); tail = AE[room:]
        vm2 = S_.emit(a, bar, use8, vmh)
        if VERB: print("Q", var, "over", S_.over, "sum", sum(S_.cost), "tail", len(tail))
        for x in tail: a(x)
        nafter = len(vm2) - 1 - max(k for k, nd in enumerate(vm2) if nd == 16) + sum(1 for x in tail if isvm(x))
        if var in "NS":
            a("s_waitcnt vmcnt(%d)\ns_branch %s" % (nafter, lE))
        else:
            a("s_nop 7")
            a("v_accvgpr_read_b32 v28, a0\nv_accvgpr_read_b32 v29, a4\nv_accvgpr_read_b32 v30, a8\nv_accvgpr_read_b32 v31, a12\nv_and_b32 v32, 16, v0\nv_cmp_eq_u32 s[26:27], 0, v32\nv_cmp_gt_u32 vcc, 32, v0")
            a("v_mov_b32 v33, s%d\nv_mov_b32 v34, s%d\nv_cndmask_b32 v28, v29, v28, s[26:27]\nv_cndmask_b32 v30, v31, v30, s[26:27]\nv_cndmask_b32 v28, v30, v28, vcc\nv_cndmask_b32 v33, v34, v33, vcc" % (sQL, sQS))
            a("v_mul_f32 v28, %s, v28\nv_exp_f32 v28, v28\nv_and_b32 v34, 0x1ff, v%d\nv_add_f32 v28, 1.0, v28\nv_rcp_f32 v28, v28" % (fbits(-LOG2E), vOS))
            a("v_lshrrev_b32 v34, 2, v34\nv_lshl_add_u32 v34, v32, 1, v34\nv_lshl_add_u32 v33, v33, 7, v34\ns_lshl_b32 s%d, s%d, 11\ns_add_u32 s%d, s%d, 0x%x" % (sT0, sGR, sT0, sT0, OFF_G))
            a("buffer_store_dword v28, v33, s[%d:%d], s%d offen\ns_waitcnt vmcnt(%d)" % (SO, SO + 3, sT0, nafter + 1))
    a(lE + ":")
    a(lAttn + ":")
    st_("attn")
    vU, vGL, vGS = 3, 4, 5
    vL = (6, 7); vLT = (8, 9); vX = 10
    S = (16, 80); P = (144, 176); NM = 208; TM = 240
    vGA, vNEG, vPM = 248, 249, 250
    O, Q, FR, NFR = 0, 128, 192, 16
    ms = (26, 28, 30)
    def kfrag(p, idx): return ("K", p * 32768 + idx * 1024)
    def vfrag(p, g, db): return ("V", p * 32768 + (g // 2) * 8192 + db * 2048 + (g % 2) * 1024)
    def rd(slot, fr):
        return "ds_read_b128 %s, v%d offset:%d" % (ar(FR + 4 * (slot % NFR), 4), vK if fr[0] == "K" else vV, fr[1])
    def mf_list(p, pv, qk):
        L = []
        Pp = P[1 - p]; Sn = S[1 - p]
        if pv == 1:
            for g in range(4):
                for db in range(4):
                    L.append((vfrag(1 - p, g, db), ["%s %s, {F}, %s, %s" % (MF32, ar(O + rb * 64 + db * 16, 16), vr(Pp + rb * 16 + g * 4, 4), ar(O + rb * 64 + db * 16, 16)) for rb in range(2)]))
        elif pv == 2:
            for g in range(8):
                for db in range(4):
                    L.append((vfrag(1 - p, g, db), ["%s %s, {F}, %s, %s" % (MF32, ar(O + db * 16, 16), vr(Pp + g * 4, 4), ar(O + db * 16, 16))]))
        elif pv == 3:
            for db in range(4):
                for g in range(8):
                    L.append((("K", vfrag(1, g, db)[1]), ["%s %s, {F}, %s, %s" % (MF32, ar(O + db * 16, 16), vr(Pp + g * 4, 4), ar(O + db * 16, 16))]))
        if qk == 1:
            for kb in range(2):
                for s in range(8):
                    ms_ = []
                    for rb in range(2):
                        d = vr(Sn + rb * 32 + kb * 16, 16)
                        ms_.append("%s %s, {F}, %s, %s" % (MF32, d, ar(Q + rb * 32 + s * 4, 4), d if s else vr(NM + rb * 16, 16)))
                    L.append((kfrag(1 - p, kb * 8 + s), ms_))
        elif qk == 2:
            for kb in range(4):
                for s in range(8):
                    d = vr(Sn + kb * 16, 16)
                    L.append((kfrag(1 - p, kb * 8 + s), ["%s %s, {F}, %s, %s" % (MF32, d, ar(Q + s * 4, 4), d if s else vr(NM, 16))]))
        return L
    def sm_list(p, sm):
        Sc, Pc = S[p], P[p]
        order = [0, 2, 1, 3] if sm == 1 else [0, 1, 2, 3]
        els = [b * 16 + j for b in order for j in range(16)]
        V = []
        first = {0: True, 1: True}
        def tail(n):
            e = els[n]; u = TM + (n % 8); lt = vLT[e // 32]
            out = []
            if first[e // 32]:
                out.append((4, "v_add_f32 v%d, v%d, v%d" % (lt, u, u + 1))); first[e // 32] = False
            else:
                out.append((4, "v_add_f32 v%d, v%d, v%d" % (lt, lt, u)))
                out.append((4, "v_add_f32 v%d, v%d, v%d" % (lt, lt, u + 1)))
            out.append((4, "v_cvt_pk_bf16_f32 v%d, v%d, v%d" % (Pc + e // 2, u, u + 1)))
            return out
        for n in range(0, 64, 2):
            tl = tail(n - 2) if n >= 2 else []
            V.append((8, "v_exp_f32 v%d, v%d" % (TM + n % 8, Sc + els[n])))
            V += tl[:1]
            V.append((8, "v_exp_f32 v%d, v%d" % (TM + n % 8 + 1, Sc + els[n + 1])))
            V += tl[1:]
        V += tail(62)
        return V
    rare = {}
    def step(p, pv, sm, qk, dK, dV, pre_in=True, pre_out=True, advK=True, extra_vm=None, extra_valu=None, chk=0, last16=False, staged=None):
        L = mf_list(p, pv, qk)
        nf = len(L)
        nxt = [vfrag(p, g, db) for g in range(4) for db in range(4)][:PD]
        if last16: nxt = [x[0] for x in mf_list(1, 3, 0)][:PD]
        M = [(f, t) for f, (fr, ts_) in enumerate(L) for t in ts_]
        nm = len(M)
        fill = [[] for _ in range(nm)]
        G = []
        if dV: G += dma("V", dV, p) + [adv("V", dV)]
        if dK: G += dma("K", dK, p) + ([adv("K", dK)] if advK else [])
        if extra_vm: G += extra_vm
        elif CRF > 1 and p == 0 and dK: G += [["global_load_dword v%d, v255, s[0:1]" % vGA]]
        cost = [0] * nm
        firstm = {}
        for m, (f, t) in enumerate(M): firstm.setdefault(f, m)
        barf = nf + 1 - PD
        if barf % WP: barf += WP - barf % WP
        if not pre_out or last16: barf = nf + 99
        CAP = 24
        pre = [[] for _ in range(nm)]
        allfr = [x[0] for x in L] + (nxt if pre_out else [])
        nrd = PD
        for f in range(nf):
            m = firstm[f]
            if f == barf: pre[m].append("BAR")
            elif f < barf and f % WP == 0: pre[m].append("s_waitcnt lgkmcnt(%d)" % max(0, nrd - 1 - min(f + WP - 1, nf - 1)))
            if m > 0 and pre[m]: cost[m - 1] += 8 if f == barf else 4
            want = min(f + PD, len(allfr) - 1)
            if f < barf and not last16: want = min(want, nf - 1)
            lim = 2
            while nrd <= want and lim:
                fill[m].append(rd(nrd, allfr[nrd])); cost[m] += 4; nrd += 1; lim -= 1
        assert nrd == len(allfr), (nrd, len(allfr))
        cost[nm - 1] += 20
        def place(stream, lo, hi):
            tot = sum(c for c, _ in stream); done_ = 0
            free = sum(max(0, CAP - cost[k]) for k in range(lo, hi))
            seen = 0; i = 0
            for k in range(lo, hi):
                seen += max(0, CAP - cost[k])
                tgt = tot * min(1.0, seen / max(free, 1))
                while i < len(stream) and (k == hi - 1 or (done_ < tgt and (cost[k] + stream[i][0] <= CAP or done_ + 8 < tgt))):
                    fill[k] += stream[i][1]; cost[k] += stream[i][0]; done_ += stream[i][0]; i += 1
        hiD = min(max(len(G) + 1, nm // 2), firstm[barf] - 4 if barf < nf else nm)
        place([(4 * len(g), g) for g in G], 1, hiD)
        V = sm_list(p, sm) if sm else []
        if sm:
            V.append((4, "v_max_f32 v%d, v%d, v%d" % (vX, vLT[0], vLT[1])))
            V.append((4, "v_cmp_lt_f32 vcc, s%d, v%d" % (sTH, vX)))
        if extra_valu: V += [(4, x) for x in extra_valu]
        place([(c, [x]) for c, x in V], 0, nm - 1)
        for (lst, lo, hi) in (staged or []): place([(4, [x]) for x in lst], lo, hi)
        if not pre_in:
            for f in range(PD): a(rd(f, L[f][0]))
        for m, (f, t) in enumerate(M):
            for x in pre[m]:
                if x == "BAR":
                    if TS3: a("s_mov_b32 m0, s70\ns_add_u32 s70, s70, 1\nv_writelane_b32 v255, s64, m0\ns_mov_b32 m0, s70\ns_add_u32 s70, s70, 1\nv_writelane_b32 v255, s66, m0\ns_memtime s[64:65]")
                    a("s_waitcnt vmcnt(0) lgkmcnt(0)")
                    if chk: poll_check(chk)
                    a("s_barrier")
                    if TS3: a("s_memtime s[66:67]\ns_waitcnt lgkmcnt(0)")
                else: a(x)
            a(t.replace("{F}", ar(FR + 4 * (f % NFR), 4)))
            for x in fill[m]: a(x)
        assert nf % NFR == 0
        if sm:
            key = (p, sm, qk if qk else sm)
            if key not in rare: rare[key] = (a.label("rare"), [])
            lb = a.label("back"); lj = a.label("jr")
            rid = len(rare[key][1]); rare[key][1].append((lj, lb))
            a("s_cbranch_vccnz %s\n%s:" % (lj, lb))
            if sm == 1: a("v_add_f32 v%d, v%d, v%d\nv_add_f32 v%d, v%d, v%d" % (vL[0], vL[0], vLT[0], vL[1], vL[1], vLT[1]))
            else: a("v_add_f32 v%d, v%d, v%d\nv_add_f32 v%d, v%d, v%d" % (vL[0], vL[0], vLT[0], vL[0], vL[0], vLT[1]))
    def rowmax(dst, regs_):
        a("v_max3_f32 v%d, v%d, v%d, v%d" % (dst, regs_[0], regs_[1], regs_[2]))
        j = 3
        while j + 1 < len(regs_):
            a("v_max3_f32 v%d, v%d, v%d, v%d" % (dst, dst, regs_[j], regs_[j + 1])); j += 2
        if j < len(regs_): a("v_max_f32 v%d, v%d, v%d" % (dst, dst, regs_[j]))
        a("v_mov_b32 v%d, v%d\ns_nop 1\nv_permlane32_swap_b32 v%d, v%d\nv_max_f32 v%d, v%d, v%d" % (dst + 1, dst, dst, dst + 1, dst, dst, dst + 1))
    def mask(base, nblk, kb0):
        a("s_nop 7\ns_nop 3")
        for j in range(nblk):
            lf = a.label("mfull"); le_ = a.label("mend")
            kb = kb0 + j; r0 = base + 16 * j
            a("s_cmp_gt_u32 s%d, %d\ns_cbranch_scc1 %s" % (sWV, kb, le_))
            if kb > 0: a("s_cmp_lt_u32 s%d, %d\ns_cbranch_scc1 %s" % (sWV, kb, lf))
            rr = list(range(16))
            for c in range(0, 16, 3):
                grp = rr[c:c + 3]
                for q, r in enumerate(grp): a("v_cmp_gt_i32 s[%d:%d], %d, v%d" % (ms[q], ms[q] + 1, 8 * (r // 4) + r % 4, vU))
                if len(grp) < 3: a("s_nop 1")
                for q, r in enumerate(grp): a("v_cndmask_b32 v%d, v%d, v%d, s[%d:%d]" % (r0 + r, r0 + r, vNEG, ms[q], ms[q] + 1))
            if kb > 0:
                a("s_branch %s\n%s:" % (le_, lf))
                for r in range(16): a("v_mov_b32 v%d, v%d" % (r0 + r, vNEG))
            a(le_ + ":")
    poll_check(1)
    bar("s_nop 0")
    if TS2:
        a("s_waitcnt lgkmcnt(0)"); bar("s_nop 0")
        a("s_lshl_b32 s62, s2, 2\ns_add_u32 s62, s62, s%d\ns_lshl_b32 s62, s62, 8\ns_add_u32 s62, s62, 0x%x\nv_lshlrev_b32 v122, 2, v0" % (sWV, OFF_TS + 0x80000))
        a("buffer_store_dword v123, v122, s[%d:%d], s62 offen\ns_waitcnt vmcnt(0)" % (SO, SO + 3))
    srd(a, SK, pWS, WS_SIZE)
    a("s_mov_b32 s%d, %s" % (sSC, fbits(LOG2E / math.sqrt(128.0))))
    fr0 = [kfrag(0, kb * 8 + s) for s in range(8) for kb in range(2)]
    for f in range(12): a(rd(f, fr0[f]))
    def qepi(cb):
        G = []
        for rb in range(2):
            src = QA + (rb * 4 + cb) * 16
            G += ["v_mul_f32 v%d, s%d, v%d" % (src + j, sSC, src + j) for j in range(16)]
            G += ["v_cvt_pk_bf16_f32 v%d, v%d, v%d" % (src + j, src + 2 * j, src + 2 * j + 1) for j in range(8)]
        for rb in range(2):
            src = QA + (rb * 4 + cb) * 16
            G += ["v_permlane16_swap_b32 v%d, v%d" % (src + j, src + 4 + j) for j in range(4)]
        for rb in range(2):
            src = QA + (rb * 4 + cb) * 16
            G += ["v_accvgpr_write_b32 a%d, v%d" % (Q + rb * 32 + cb * 8 + j, src + j) for j in range(8)]
        return G
    a("s_add_u32 s%d, s%d, 0x4000\ns_sub_u32 s%d, s%d, s%d\ns_cmp_eq_u32 s%d, 0\ns_cselect_b32 s%d, 0x8000, 0\ns_add_u32 s%d, s%d, s%d" % (sT1, sVD, sKO, sKO, sT1, sI, sT0, sKO, sKO, sT0))
    for g_ in dma("V", 1, 0):
        for x in g_: a(x)
    a("s_add_u32 s%d, s%d, 0x4000\ns_sub_u32 s%d, 0, s%d" % (sVO, sVO, sVD, sT1))
    for x in qepi(0): a(x)
    for f in range(12, 16): a(rd(f, fr0[f]))
    misc = ["v_add_u32 v%d, 0x10000, v%d" % (vV, vK), "v_and_b32 v10, 31, v0", "v_lshrrev_b32 v11, 5, v0", "v_lshlrev_b32 v11, 2, v11",
            "v_and_b32 v12, 8, v0", "v_and_b32 v13, 16, v0", "v_lshrrev_b32 v13, 1, v13", "v_and_b32 v14, 7, v0", "v_lshl_add_u32 v12, v12, 1, v13", "v_add_u32 v12, v12, v14", "v_sub_u32 v%d, v12, v11" % vU,
            "v_mov_b32 v%d, 0" % vL[0], "v_mov_b32 v%d, 0" % vL[1], "v_mov_b32 v%d, %s" % (vNEG, NEG), "v_and_b32 v%d, 3, v0" % vPO, "v_add_lshl_u32 v%d, v%d, s%d, 2" % (vPO, vPO, sGR), "v_add_u32 v%d, s%d, v%d" % (vPO, sW4, vPO), "v_mov_b32 v253, 0x10000000", "v_mov_b32 v252, v%d" % vFO, "v_mov_b32 v255, v127"]
    sFG, sFX = 96, 97
    if FUSE:
        misc += ["s_lshr_b32 s%d, s%d, 3" % (sT1, sH), "s_lshl_b32 s%d, s%d, 3" % (sFG, sT1), "s_add_u32 s%d, s%d, s%d" % (sFG, sFG, sI), "s_lshl_b32 s%d, s%d, 5" % (sFG, sFG),
                 "s_and_b32 s%d, s%d, 7" % (sT2, sH), "s_add_u32 s%d, s%d, s%d" % (sFG, sFG, sT2), "s_lshl_b32 s%d, s%d, 2" % (sFG, sFG), "s_add_u32 s%d, s%d, 0x%x" % (sFG, sFG, OFF_FL),
                 "s_sub_u32 s%d, 15, s%d" % (sT2, sI), ["s_bitcmp1_b32 s2, 0", "s_cselect_b32 s%d, s%d, s%d" % (sOA, sT2, sI)], "s_lshl_b32 s%d, s%d, 2" % (sFX, sOA),
                 "s_and_b32 s%d, s%d, 3" % (sT2, sH), "s_add_u32 s%d, s%d, s%d" % (sU, sFX, sT2), "s_lshl_b32 s%d, s%d, 5" % (sFX, sU), "s_add_u32 s%d, s%d, s%d" % (sFX, sFX, sT1),
                 "s_lshl_b32 s%d, s%d, 2" % (sFX, sFX), "s_add_u32 s%d, s%d, 0x%x" % (sFX, sFX, OFF_FL + 32 * 128),
                 "v_lshlrev_b32 v10, 16, v%d" % vFO, "v_min_u32 v13, 1, v%d" % vFO, "v_lshlrev_b32 v13, 29, v13",
                 "buffer_store_dword v%d, v13, s[%d:%d], s%d offen sc1" % (vL[0], SO, SO + 3, sFG), "buffer_store_dword v%d, v13, s[%d:%d], s%d offen sc1" % (vL[0], SO, SO + 3, sFX)]
    else:
        misc += ["s_lshl_b32 s%d, s2, 7" % sT1, "s_add_u32 s%d, s%d, 0x%x" % (sT1, sT1, OFF_FL), "v_lshlrev_b32 v10, 2, v10",
                 "buffer_store_dword v%d, v10, s[%d:%d], s%d offen" % (vL[0], SO, SO + 3, sT1)]
    misc += ["v_accvgpr_write_b32 a%d, 0" % r for r in range(0, 40)]
    a("s_waitcnt lgkmcnt(0)\ns_barrier")
    K2 = dma("K", 2, 0) + [["s_cmp_eq_u32 s%d, 0" % sI, "s_cselect_b32 s%d, 2, 1" % sT0, "s_lshl_b32 s%d, s%d, 14" % (sT0, sT0), "s_add_u32 s%d, s%d, s%d" % (sKO, sKO, sT0)]]
    for cb in range(4):
        M = []
        for s in (2 * cb, 2 * cb + 1):
            for kb in range(2):
                for rb in range(2):
                    d = vr(S[0] + rb * 32 + kb * 16, 16)
                    M.append("%s %s, %s, %s, %s" % (MF32, d, ar(FR + 4 * (2 * s + kb), 4), ar(Q + rb * 32 + s * 4, 4), d if s else "0"))
        emit(a, M, [(K2[4 * cb: 4 * cb + 4], 0, 7), (qepi(cb + 1) + ["s_nop 0"] if cb < 3 else misc, 0, 8)])
    st_("m1")
    for r in range(40, 64): a("v_accvgpr_write_b32 a%d, 0" % r)
    mask(S[0] + 32, 2, 0)
    for rb in range(2): rowmax(vX + 2 * rb, [S[0] + rb * 32 + j for j in range(32)])
    for rb in range(2):
        for j in range(16): a("v_sub_f32 v%d, 0, v%d" % (NM + rb * 16 + j, vX + 2 * rb))
    for rb in range(2):
        for j in range(32): a("v_sub_f32 v%d, v%d, v%d" % (S[0] + rb * 32 + j, S[0] + rb * 32 + j, vX + 2 * rb))
    st_("first")
    if TS3: a("s_mov_b32 s70, 0\ns_mov_b32 s64, 0\ns_mov_b32 s66, 0")
    step(0, 0, 1, 1, 0, 0, pre_in=False)
    st_("s0a")
    release()
    a("buffer_atomic_add v253, v252, s[%d:%d], s%d offen offset:128 sc1" % (SD, SD + 3, sCNT))
    mask(S[1] + 32, 2, 2)
    st_("s0")
    lT0, lT1, lT1b, lL1, lL2, lS15, lMid, lI7, lEn = [a.label(x) for x in ("T0", "T1", "T1b", "L1", "L2", "S15", "MID", "I7", "END")]
    PL = [[poll_load(2)]]
    sRA, sHP, sA0, sA1 = 36, 37, 38, 39
    AQ, AKC, AKP = ar(Q + 32, 4), None, None
    AF = [ar(Q + 32 + 4 * j, 4) for j in range(8)] + [vr(252, 4)]
    def ld(dst, so, off): return ["buffer_load_dwordx4 %s, v%d, s[%d:%d], s%d offen offset:%d sc1" % (dst, vK, SV, SV + 3, so, off)]
    ALD = [["s_bitcmp1_b32 s%d, 1" % sH, "s_cselect_b32 s%d, s%d, s%d" % (sRA, sQL, sQS)],
           ["s_and_b32 s%d, s%d, 1" % (sHP, sH), "s_lshr_b32 s%d, s%d, 1" % (sT0, sGR), "s_add_u32 s%d, s%d, s%d" % (sHP, sHP, sT0), "s_lshl_b32 s%d, s%d, 9" % (sT0, sGR)],
           ["v_and_b32 v14, 31, v0", "v_add_lshl_u32 v14, v14, s%d, 2" % sT0],
           ["v_lshrrev_b32 v15, 5, v0", "v_lshl_add_u32 v%d, v15, 2, v%d" % (vFA, vU), "v_lshlrev_b32 v15, 5, v15"],
           ["v_add_lshl_u32 v%d, v%d, v15, 4" % (vPM, vFA), "v_add_lshl_u32 v15, v%d, s%d, 2" % (vFA, sT0), "v_mov_b32 v%d, v%d" % (vFA, vPM)]]
    for (dst, blk) in ((vGS, sQS), (vGL, sQL), (vGA, sRA)):
        ALD.append(["s_lshl_b32 s%d, s%d, 7" % (sT0, blk), "s_add_u32 s%d, s%d, 0x%x" % (sT0, sT0, OFF_G), "buffer_load_dword v%d, v%d, s[%d:%d], s%d offen sc1" % (dst, 14 if dst == vGA else 15, SV, SV + 3, sT0)])
    ALD += [["s_lshr_b32 s%d, s%d, 2" % (sT0, sHP), "s_lshl_b32 s%d, s%d, 19" % (sT0, sT0), "s_and_b32 s%d, s%d, 3" % (sT1, sHP), "s_lshl_b32 s%d, s%d, 11" % (sT1, sT1)],
            ["s_add_u32 s%d, s%d, s%d" % (sT0, sT0, sT1), "s_lshl_b32 s%d, s%d, 13" % (sT1, sRA), "s_add_u32 s%d, s%d, s%d" % (sA0, sT0, sT1)],
            ["s_max_u32 s%d, s%d, 1" % (sT1, sRA), "s_sub_u32 s%d, s%d, 1" % (sT1, sT1), "s_lshl_b32 s%d, s%d, 13" % (sT1, sT1), "s_add_u32 s%d, s%d, s%d" % (sA1, sT0, sT1)]]
    bump = ["s_add_u32 s%d, s%d, %d" % (sA0, sA0, 4 * PH), "s_add_u32 s%d, s%d, %d" % (sA1, sA1, 4 * PH)]
    ALD += [ld(AF[0], sA0, 0), ld(AF[1], sA0, 1024) + bump, ld(AF[2], sA0, 0), ld(AF[3], sA0, 1024), ld(AF[4], sA1, 0), ld(AF[5], sA1, 1024) + bump,
            ld(AF[6], sA1, 1024), ld(AF[7], sA0, 0), ld(AF[8], sA0, 1024)]
    WPF_ = [["s_lshr_b32 s%d, s2, 3" % sT0, "s_lshl_b32 s%d, s%d, 2" % (sT0, sT0), "s_add_u32 s%d, s%d, s%d" % (sT0, sT0, sWV), "s_and_b32 s%d, s2, 6" % sT1],
            ["s_lshl_b32 s%d, s%d, 6" % (sT1, sT1), "s_add_u32 s%d, s%d, s%d" % (sT0, sT0, sT1), "s_lshl_b32 s%d, s%d, 6" % (sT1, sT0)],
            ["v_add_lshl_u32 v14, v0, s%d, 7" % sT1, "global_load_dword v%d, v14, s[%d:%d]" % (vGA, pBWO, pBWO + 1)],
            ["s_lshl_b32 s%d, s%d, 3" % (sT1, sT0), "v_and_b32 v14, 7, v0", "v_add_lshl_u32 v14, v14, s%d, 7" % sT1, "global_load_dword v%d, v14, s[%d:%d]" % (vGA, pWO, pWO + 1)]]
    if FUSE:
        ALD += [["v_and_b32 v12, 31, v0", "v_lshl_add_u32 v12, v12, 2, s%d" % sW4, poll_load(3)]]
        PL = PL + WPF_
    CST = "sc1" if FUSE else ""
    a("s_cmp_eq_u32 s%d, 0\ns_cbranch_scc1 %s" % (sI, lT1))
    a("s_mov_b32 s%d, s%d" % (sT, sI))
    a(".p2align 6\n" + lL1 + ":")
    step(1, 1, 1, 1, 1, 1)
    a("s_sub_u32 s%d, s%d, 1\ns_cbranch_scc0 %s" % (sT, sT, lT0) if False else "s_sub_u32 s%d, s%d, 1\ns_cmp_eq_u32 s%d, 0\ns_cbranch_scc1 %s" % (sT, sT, sT, lT0))
    step(0, 1, 1, 1, 1, 1)
    a("s_branch %s" % lL1)
    a(lT0 + ":")
    a("s_add_u32 s%d, s%d, 0x8000" % (sKO, sKO))
    step(0, 1, 1, 1, 2, 1, extra_vm=PL, chk=2)
    a("s_cmp_eq_u32 s%d, 7\ns_cbranch_scc1 %s" % (sI, lT1b))
    a(lT1 + ":")
    step(1, 1, 1, 2, 2, 1)
    a("s_add_u32 s%d, s%d, 0x8000" % (sVO, sVO))
    step(0, 1, 2, 2, 2, 2, extra_vm=PL, chk=2)
    a("s_sub_u32 s%d, 6, s%d\ns_cmp_eq_u32 s%d, 0\ns_cbranch_scc1 %s" % (sT, sI, sT, lS15))
    a(".p2align 6\n" + lL2 + ":")
    step(1, 2, 2, 2, 2, 2)
    step(0, 2, 2, 2, 2, 2)
    a("s_sub_u32 s%d, s%d, 1\ns_cmp_lg_u32 s%d, 0\ns_cbranch_scc1 %s" % (sT, sT, sT, lL2))
    a(lS15 + ":")
    a("s_add_u32 s%d, s%d, 0x8000" % (sKO, sVO))
    step(1, 2, 2, 2, 2, 2, extra_vm=ALD, chk=3 if FUSE else 0)
    a("s_branch %s" % lMid)
    a(lT1b + ":")
    a("s_add_u32 s%d, s%d, 0xc000" % (sKO, sVO))
    step(1, 1, 1, 2, 2, 1, extra_vm=ALD, chk=3 if FUSE else 0)
    def fin_head(rb, so):
        l = vL[rb]; g = (vGL, vGS)[rb]; blk = (sQL, sQS)[rb]
        return ["v_mov_b32 v%d, v%d" % (vX + 5, l), "v_sub_f32 v%d, 1.0, v%d" % (g, g), "s_mul_i32 s%d, s%d, %d" % (so, blk, CROW), "v_permlane32_swap_b32 v%d, v%d" % (l, vX + 5),
                "v_add_f32 v%d, v%d, v%d" % (l, l, vX + 5), "v_rcp_f32 v%d, v%d" % (l, l), "s_lshl_b32 s%d, s%d, 13" % (sT1, sH), "v_mul_f32 v%d, v%d, v%d" % (l, l, g),
                "s_add_u32 s%d, s%d, s%d" % (so, so, sT1), "s_add_u32 s%d, s%d, 0x%x" % (so, so, OFF_C)]
    def fin_part(rb, c, t, so):
        l = vL[rb]
        G = ["v_accvgpr_read_b32 v%d, a%d" % (t + j, O + rb * 64 + c * 8 + j) for j in range(8)]
        G += ["v_mul_f32 v%d, v%d, v%d" % (t + j, l, t + j) for j in range(8)]
        G += ["v_cvt_pk_bf16_f32 v%d, v%d, v%d" % (t + j, t + 2 * j, t + 2 * j + 1) for j in range(4)]
        if c == 4: G.append("s_add_u32 s%d, s%d, 4096" % (so, so))
        G.append("buffer_store_dwordx4 %s, v%d, s[%d:%d], s%d offen offset:%d %s" % (vr(t, 4), vFA, SV, SV + 3, so, (c % 4) * 1024, CST))
        return G
    a(lMid + ":")
    st_("mid")
    if not FUSE:
        a("s_lshr_b32 s%d, s2, 3\ns_lshl_b32 s%d, s%d, 2\ns_add_u32 s%d, s%d, s%d\ns_and_b32 s%d, s2, 6\ns_lshl_b32 s%d, s%d, 6\ns_add_u32 s%d, s%d, s%d" % (sT0, sT0, sT0, sT0, sT0, sWV, sT1, sT1, sT1, sT0, sT0, sT1))
        a("s_lshl_b32 s%d, s%d, 6\nv_add_lshl_u32 v10, v0, s%d, 7\nglobal_load_dword a128, v10, s[%d:%d]" % (sT1, sT0, sT1, pBWO, pBWO + 1))
        a("s_lshl_b32 s%d, s%d, 3\nv_and_b32 v11, 7, v0\nv_add_lshl_u32 v11, v11, s%d, 7\nglobal_load_dword a128, v11, s[%d:%d]" % (sT1, sT0, sT1, pWO, pWO + 1))
    BC, BP = NM, NM + 16
    SC, SP = (80, 96), (112, 128); TA = (144, 156); PA = (112, 128); MX = (10, 12)
    a("v_and_b32 v12, 31, v0\nv_lshrrev_b32 v11, 5, v0\nv_lshlrev_b32 v11, 2, v11\nv_sub_u32 v12, v12, v11")
    a("v_add_u32 v12, 18, v12\nv_mov_b32 v10, 0x5555\nv_mov_b32 v11, 0\ns_cmp_eq_u32 s%d, 0\ns_cselect_b32 s%d, -1, 0" % (sRA, sT2))
    a("v_lshlrev_b64 v[10:11], v12, v[10:11]\nv_not_b32 v10, v10\nv_not_b32 v11, v11\nv_or_b32 v10, s%d, v10" % sT2)
    for r in range(16): a("v_bfe_i32 v%d, v11, %d, 1" % (BC + r, 8 * (r // 4) + r % 4))
    for r in range(8, 16): a("v_bfe_i32 v%d, v10, %d, 1" % (BP + r, 8 * (r // 4) + r % 4))
    for r in list(range(16)) + list(range(24, 32)): a("v_and_b32 v%d, v%d, v%d" % (BC + r, vNEG, BC + r))
    a("v_and_b32 v10, 1, v0\nv_lshlrev_b32 v10, 4, v10\nv_mov_b32 v11, 0xffff\nv_lshlrev_b32 v%d, v10, v11" % vPM)
    for e in range(2):
        a("%s %s, %s, %s, %s" % (MF32, vr(SC[e], 16), AF[2 + e], AF[e], vr(BC, 16)))
        a("%s %s, %s, %s, %s" % (MF32, vr(SP[e], 16), AF[4 + e], AF[e], vr(BP, 16)))
    mask(S[0], 4, 0)
    for e in range(2):
        for j in range(4): a("v_max_f32 v%d, v%d, v%d" % (TA[e] + j, SP[e] + 8 + 2 * j, SP[e] + 9 + 2 * j))
        for j in range(8): a("v_max_f32 v%d, v%d, v%d" % (TA[e] + 4 + j, SC[e] + 2 * j, SC[e] + 2 * j + 1))
    for e in range(2):
        t = TA[e]; m = MX[e]
        a("v_max3_f32 v%d, v%d, v%d, v%d" % (m, t, t + 1, t + 2))
        for j in range(3, 11, 2): a("v_max3_f32 v%d, v%d, v%d, v%d" % (m, m, t + j, t + j + 1))
        a("v_max_f32 v%d, v%d, v%d\nv_mov_b32 v%d, v%d" % (m, m, t + 11, m + 1, m))
    a("s_nop 1")
    for e in range(2): a("v_permlane32_swap_b32 v%d, v%d" % (MX[e], MX[e] + 1))
    for e in range(2): a("v_max_f32 v%d, v%d, v%d" % (MX[e], MX[e], MX[e] + 1))
    for e in range(2):
        for j in range(12): a("v_sub_f32 v%d, v%d, v%d" % (TA[e] + j, TA[e] + j, MX[e]))
        for j in range(12): a("v_exp_f32 v%d, v%d" % (TA[e] + j, TA[e] + j))
    for e in range(2):
        for j in range(12): a("v_cvt_pk_bf16_f32 v%d, v%d, v%d" % (PA[e] + j, TA[e] + j, TA[e] + j))
        for j in range(12): a("v_and_b32 v%d, v%d, v%d" % (PA[e] + j, vPM, PA[e] + j))
        if e == 1: a("s_nop 1")
        else: a("v_add_f32 v%d, v%d, v%d\nv_add_f32 v%d, v%d, v%d" % (MX[0], TA[0], TA[0] + 1, MX[1], TA[1], TA[1] + 1))
        for g in range(3):
            a("%s %s, %s, %s, %s" % (MF32, vr(SC[e], 16), AF[6 + g], vr(PA[e] + 4 * g, 4), "0" if g == 0 else vr(SC[e], 16)))
    for j in range(2, 12):
        for e in range(2): a("v_add_f32 v%d, v%d, v%d" % (MX[e], MX[e], TA[e] + j))
    for e in range(2): a("v_mov_b32 v%d, v%d" % (MX[e] + 1, MX[e]))
    a("s_mul_i32 s%d, s%d, %d\ns_lshl_b32 s%d, s%d, 11" % (sT0, sRA, CROW, sT1, sHP))
    for e in range(2): a("v_permlane32_swap_b32 v%d, v%d" % (MX[e], MX[e] + 1))
    for e in range(2): a("v_add_f32 v%d, v%d, v%d" % (MX[e], MX[e], MX[e] + 1))
    for e in range(2): a("v_rcp_f32 v%d, v%d" % (MX[e], MX[e]))
    a("s_add_u32 s%d, s%d, s%d\ns_add_u32 s%d, s%d, 0x%x" % (sT0, sT0, sT1, sT0, sT0, OFF_C + 256 * 1024))
    for e in range(2): a("v_mul_f32 v%d, v%d, v%d" % (MX[e], MX[e], vGA))
    for e in range(2):
        src = SC[e] + 8 * e
        for j in range(8): a("v_mul_f32 v%d, v%d, v%d" % (src + j, MX[e], src + j))
        for j in range(4): a("v_cvt_pk_bf16_f32 v%d, v%d, v%d" % (PA[e] + j, src + 2 * j, src + 2 * j + 1))
        a("buffer_store_dwordx4 %s, v%d, s[%d:%d], s%d offen offset:%d %s" % (vr(PA[e], 4), vK, SV, SV + 3, sT0, e * 1024, CST))
    PW, PW2 = 8, 12
    sWB, sHW, sWC, sAB, sHA, sAC = 25, 32, 33, 34, 35, 45
    vD = (252, 253, 254, 255)
    WRING = [0, 16384, 65536, 81920, 131072, 147456]; ARING = [32768, 49152, 98304, 114688]
    def w_dma(st):
        G = []
        if st < 16 and st % 2 == 0:
            G.append(["s_lshl_b32 s%d, s%d, 17" % (sWC, sHW), "s_add_u32 s%d, s%d, s%d" % (sWC, sWC, sWB), "s_add_u32 s%d, s%d, 1" % (sHW, sHW), "s_and_b32 s%d, s%d, 7" % (sHW, sHW)])
        if st == 16: G.append(["s_and_b32 s%d, s%d, 0xffff" % (sWC, sWB), "s_lshr_b32 s%d, s%d, 20" % (sHW, sWB), "s_lshl_b32 s%d, s%d, 17" % (sHW, sHW), "s_add_u32 s%d, s%d, s%d" % (sWC, sWC, sHW)])
        G.append(["s_add_u32 m0, s%d, %d" % (sW4, WRING[st % 6]), "s_nop 0" if st % 2 == 0 else "s_add_u32 s%d, s%d, 65536" % (sWC, sWC)])
        sr_ = PW if st < 16 else PW2
        G += [["buffer_load_dwordx4 v%d, s[%d:%d], s%d offen offset:%d lds" % (vD[o], sr_, sr_ + 3, sWC, o * 1024)] for o in range(4)]
        return G
    def a_dma(st):
        G = []
        if st < 16 and st % 2 == 0:
            G.append(["s_lshl_b32 s%d, s%d, 13" % (sAC, sHA), "s_add_u32 s%d, s%d, s%d" % (sAC, sAC, sAB), "s_add_u32 s%d, s%d, 1" % (sHA, sHA), "s_and_b32 s%d, s%d, 7" % (sHA, sHA)])
        if st == 16: G.append(["s_lshr_b32 s%d, s%d, 3" % (sHA, sH), "s_mul_i32 s%d, s%d, %d" % (sHA, sHA, 56 * 1024), "s_sub_u32 s%d, s%d, s%d" % (sAC, sAB, sHA), "s_add_u32 s%d, s%d, %d" % (sAC, sAC, 256 * 1024)])
        G.append(["s_add_u32 m0, s%d, %d" % (sW4, ARING[st % 4]), "s_nop 0" if st % 2 == 0 else "s_add_u32 s%d, s%d, 4096" % (sAC, sAC)])
        G += [["buffer_load_dwordx4 v%d, s[%d:%d], s%d offen offset:%d sc1 lds" % (vK, SV, SV + 3, sAC, o * 1024)] for o in range(4)]
        return G
    W16_, W17_ = [], []
    if FUSE:
        srd(a, PW, pBWO, 0x400000); srd(a, PW2, pWO, 0x80000)
        a("s_lshr_b32 s%d, s%d, 3\ns_lshl_b32 s%d, s%d, 20\ns_and_b32 s%d, s%d, 3\ns_lshl_b32 s%d, s%d, 8\ns_add_u32 s%d, s%d, s%d\ns_lshl_b32 s%d, s%d, 14\ns_add_u32 s%d, s%d, s%d" % (sT0, sH, sWB, sT0, sT1, sH, sT1, sT1, sWB, sWB, sT1, sT1, sWV, sWB, sWB, sT1))
        a("s_and_b32 s%d, s%d, 7\ns_mov_b32 s%d, s%d" % (sHW, sH, sHA, sHW))
        a("s_lshl_b32 s%d, s%d, 2\ns_add_u32 s%d, s%d, s%d\ns_mul_i32 s%d, s%d, %d\ns_lshl_b32 s%d, s%d, 16\ns_add_u32 s%d, s%d, s%d\ns_add_u32 s%d, s%d, 0x%x" % (sT1, sOA, sT1, sT1, sWV, sAB, sT1, CROW, sT0, sT0, sAB, sAB, sT0, sAB, sAB, OFF_C))
        a("v_lshrrev_b32 v10, 4, v0\nv_and_b32 v11, 15, v0\nv_lshlrev_b32 v12, 2, v10\nv_xor_b32 v11, v11, v12\nv_lshlrev_b32 v11, 4, v11\nv_lshl_add_u32 v%d, v10, 10, v11" % vD[0])
        for n in range(1, 4): a("v_add_u32 v%d, %d, v%d" % (vD[n], 3072 * n, vD[0]))
        W16_ = [g for st in range(4) for g in w_dma(st)]; W17_ = [g for st in range(4, 6) for g in w_dma(st)]
    a("s_cmp_eq_u32 s%d, 7\ns_cbranch_scc1 %s" % (sI, lI7))
    NE = 6
    for x in fin_head(1, sA0): a(x)
    for c in range(NE):
        for x in fin_part(1, c, 208 + 8 * (c % 4), sA0): a(x)
    step(0, 2, 2, 0, 0, 0, last16=True, extra_vm=W16_)
    def final(first):
        stg = [(first + fin_head(0, sA1), 0, 11)]
        for db in range(3):
            stg.append((fin_part(0, 2 * db, 80 + 16 * db, sA1) + fin_part(0, 2 * db + 1, 88 + 16 * db, sA1), 8 * db + 11, min(8 * db + 19, 32)))
        step(1, 3, 0, 0, 0, 0, pre_out=False, staged=stg, extra_vm=W17_)
        a("s_nop 8")
        for x in fin_part(0, 6, 128, sA1) + fin_part(0, 7, 136, sA1): a(x)
    final([x for c in range(NE, 8) for x in fin_part(1, c, 208 + 8 * (c % 4), sA0)])
    a("s_branch %s" % lEn)
    a(lI7 + ":")
    step(0, 1, 2, 0, 0, 0, last16=True, extra_vm=W16_)
    final(fin_head(1, sA0) + [x for c in range(8) for x in fin_part(1, c, 208 + 8 * (c % 4), sA0)])
    a(lEn + ":")
    st_("s17")
    if FUSE:
        SOUT = 4; sQ, sXO, sOUT = 26, 27, 28
        vA, vW = (2, 3), (4, 5); ACC, FP = 16, 80
        srd(a, SOUT, 100, 2048 * 1024)
        a("s_lshr_b32 s%d, s%d, 3" % (sQ, sH))
        a("s_and_b32 s%d, s%d, 1\ns_lshl_b32 s%d, s%d, 1\ns_and_b32 s%d, s%d, 1\ns_add_u32 s%d, s%d, s%d\ns_lshl_b32 s%d, s%d, 12" % (sT0, sWV, sT0, sT0, sT1, sQ, sT2, sT0, sT1, sT0, sT2))
        a("v_add_u32 v%d, s%d, v%d\nv_xor_b32 v%d, 4096, v%d" % (vA[0], sT0, vK, vA[1], vA[0]))
        a("v_lshrrev_b32 v7, 4, v0\nv_lshrrev_b32 v8, 2, v0\nv_and_b32 v8, 3, v8\nv_lshrrev_b32 v9, 5, v0\nv_lshl_add_u32 v9, v9, 2, v8")
        a("v_and_b32 v7, 1, v7\nv_lshlrev_b32 v7, 1, v7\nv_lshrrev_b32 v10, 1, v0\nv_and_b32 v10, 1, v10\nv_add_u32 v7, v7, v10\nv_and_b32 v10, 1, v0\nv_lshlrev_b32 v10, 3, v10")
        a("s_and_b32 s%d, s%d, 2\ns_lshr_b32 s%d, s%d, 1\ns_add_u32 s%d, s%d, s%d\nv_xor_b32 v8, s%d, v8" % (sT0, sWV, sT1, sQ, sT0, sT0, sT1, sT0))
        a("v_lshlrev_b32 v8, 2, v8\nv_xor_b32 v8, v8, v7\nv_lshlrev_b32 v8, 4, v8\nv_lshl_add_u32 v8, v9, 8, v8\nv_add_u32 v%d, v8, v10\nv_xor_b32 v%d, 64, v%d" % (vW[0], vW[1], vW[0]))
        a("s_and_b32 s%d, s%d, 3\ns_lshl_b32 s%d, s%d, 2\ns_add_u32 s%d, s%d, s%d\ns_lshl_b32 s%d, s%d, 6" % (sT1, sH, sT1, sT1, sT1, sT1, sT0, sOUT, sT1))
        a("s_lshl_b32 s%d, s%d, 2\ns_add_u32 s%d, s%d, s%d\ns_lshl_b32 s%d, s%d, 15\ns_add_u32 s%d, s%d, s%d" % (sT0, sOA, sT0, sT0, sT2, sT0, sT0, sOUT, sOUT, sT0))
        a("v_and_b32 v6, 31, v0\nv_lshlrev_b32 v6, 10, v6\nv_lshrrev_b32 v7, 5, v0\nv_lshl_add_u32 v6, v7, 4, v6")
        a("s_mul_i32 s%d, s%d, %d\ns_add_u32 s%d, s%d, s%d\ns_add_u32 s%d, s%d, 0x%x" % (sXO, sU, 4 * 49152, sXO, sXO, sW4, sXO, sXO, OFF_X))
        a("v_min_u32 v9, 1, v0\nv_lshlrev_b32 v9, 29, v9\nv_mov_b32 v10, 1\nv_and_b32 v8, 7, v0\nv_lshlrev_b32 v8, 2, v8\nv_and_b32 v11, 12, v8")
        def signal_wait(sown, vo, pre):
            lp, lo_ = a.label("xpoll"), a.label("xok")
            a("s_waitcnt vmcnt(0)\ns_barrier\ns_cmp_lg_u32 s%d, 0\ns_cbranch_scc1 %s_s" % (sWV, lo_))
            a("buffer_store_dword v10, v9, s[%d:%d], s%d offen sc1\n%s_s:" % (SO, SO + 3, sown, lo_))
            for x in pre: a(x)
            a("s_cmp_lg_u32 s%d, 0\ns_cbranch_scc1 %s" % (sWV, lo_))
            a("s_and_b32 s%d, s%d, 0xffffff80\ns_mov_b32 s%d, 0x80000\n%s:" % (sT0, sown, sT1, lp))
            a("buffer_load_dword v12, v%d, s[%d:%d], s%d offen sc1\ns_waitcnt vmcnt(0)\nv_cmp_ne_u32 vcc, 1, v12\ns_cbranch_vccz %s" % (vo, SO, SO + 3, sT0, lo_))
            a("s_sleep %d\ns_sub_u32 s%d, s%d, 1\ns_cmp_lg_u32 s%d, 0\ns_cbranch_scc1 %s\n%s:" % (SLP, sT1, sT1, sT1, lp, lo_))
            a("s_waitcnt vmcnt(0)\ns_barrier")
        signal_wait(sFG, 8, flat(a_dma(0) + a_dma(1)))
        st_("sync")
        for x in flat(a_dma(2) + a_dma(3)): a(x)
        curA, curW = [0], [0]
        def reads(k):
            st, ks = k // 4, k % 4
            L = []
            def win(base, cur, regs_):
                w_ = base // 65536
                if w_ != cur[0]:
                    d = (w_ - cur[0]) * 65536
                    for r in regs_: L.append(("v_add_u32 v%d, 0x%x, v%d" % (r, d, r)) if d > 0 else ("v_subrev_u32 v%d, 0x%x, v%d" % (r, -d, r)))
                    cur[0] = w_
                return base % 65536
            oa = win(ARING[st % 4], curA, vA); ow = win(WRING[st % 6], curW, vW)
            F = FP + 16 * (k % 4)
            tr = lambda cb: ["ds_read_b64_tr_b16 %s, v%d offset:%d" % (vr(F + 8 + 4 * cb + 2 * r_, 2), vW[cb], ow + ks * 4096 + r_ * 2048) for r_ in range(2)]
            return L + tr(0) + ["ds_read_b128 %s, v%d offset:%d" % (vr(F + 4 * rb, 4), vA[rb], oa + ks * 1024) for rb in range(2)] + tr(1)
        for x in reads(0) + reads(1): a(x)
        vmq = [2] * 4 + [3] * 4
        pend = []
        for k in range(72):
            st, ks = k // 4, k % 4
            if ks == 2 and st + 1 < 18:
                idx = max([j for j, z in enumerate(vmq) if z <= st + 1], default=-1)
                a("s_waitcnt vmcnt(%d) lgkmcnt(6)\ns_barrier" % (len(vmq) - 1 - idx))
                pend = []
                if st >= 1:
                    if st + 3 < 18: pend += [(g, st + 3) for g in a_dma(st + 3)]
                    if st + 5 < 18: pend += [(g, st + 5) for g in w_dma(st + 5)]
            else: a("s_waitcnt lgkmcnt(%d)" % (6 if k + 1 < 72 else 0))
            F = FP + 16 * (k % 4)
            R = reads(k + 2) if k + 2 < 72 else []
            take = pend[:4]; pend = pend[4:]
            for n, b in enumerate((0, 1, 2, 3) if k < 71 else (1, 2, 3, 0)):
                acc = vr(ACC + b * 16, 16)
                a("%s %s, %s, %s, %s" % (MF32, acc, vr(F + 8 + 4 * (b >> 1), 4), vr(F + 4 * (b & 1), 4), "0" if k == 0 else acc))
                for x in R[(len(R) * n) // 4:(len(R) * (n + 1)) // 4]: a(x)
                if n < len(take):
                    for x in take[n][0]:
                        a(x)
                        if isvm(x): vmq.append(take[n][1])
        st_("pm")
        a("s_nop 7")
        for j in range(1, 4):
            a("s_xor_b32 s%d, s%d, %d\ns_mul_i32 s%d, s%d, 49152\ns_add_u32 s%d, s%d, s%d\ns_add_u32 s%d, s%d, %d" % (sT0, sQ, j, sT0, sT0, sT0, sT0, sXO, sT0, sT0, (j - 1) * 16384))
            for r in range(8): a("v_cvt_pk_bf16_f32 v%d, v%d, v%d" % (FP + 8 * j + r, ACC + j * 16 + 2 * r, ACC + j * 16 + 2 * r + 1))
            for c in range(2): a("buffer_store_dwordx4 %s, v%d, s[%d:%d], s%d offen offset:%d sc1" % (vr(FP + 8 * j + 4 * c, 4), vK, SO, SO + 3, sT0, c * 1024))
        signal_wait(sFX, 11, [])
        st_("xs")
        a("s_mul_i32 s%d, s%d, 49152\ns_add_u32 s%d, s%d, s%d" % (sT0, sQ, sT0, sT0, sXO))
        for j in range(1, 4):
            for c in range(2): a("buffer_load_dwordx4 %s, v%d, s[%d:%d], s%d offen offset:%d sc1" % (vr(ACC + j * 16 + 4 * c, 4), vK, SO, SO + 3, sT0, c * 1024))
            a("s_add_u32 s%d, s%d, 16384" % (sT0, sT0))
        for j in range(1, 4):
            a("s_waitcnt vmcnt(%d)" % (2 * (3 - j)))
            for r in range(8):
                t = ACC + j * 16 + r
                a("v_lshlrev_b32 v12, 16, v%d\nv_and_b32 v13, 0xffff0000, v%d\nv_add_f32 v%d, v%d, v12\nv_add_f32 v%d, v%d, v13" % (t, t, ACC + 2 * r, ACC + 2 * r, ACC + 2 * r + 1, ACC + 2 * r + 1))
        for r in range(8): a("v_cvt_pk_bf16_f32 v%d, v%d, v%d" % (FP + r, ACC + 2 * r, ACC + 2 * r + 1))
        a("s_nop 1")
        for pr in range(2): a("v_permlane32_swap_b32 v%d, v%d\nv_permlane32_swap_b32 v%d, v%d" % (FP + 4 * pr, FP + 4 * pr + 2, FP + 4 * pr + 1, FP + 4 * pr + 3))
        for pr in range(2): a("buffer_store_dwordx4 %s, v6, s[%d:%d], s%d offen offset:%d" % (vr(FP + 4 * pr, 4), SOUT, SOUT + 3, sOUT, 32 * pr))
    if TS3:
        a("s_mov_b32 m0, s70\ns_add_u32 s70, s70, 1\nv_writelane_b32 v255, s64, m0\ns_mov_b32 m0, s70\ns_add_u32 s70, s70, 1\nv_writelane_b32 v255, s66, m0")
        a("s_lshl_b32 s62, s2, 2\ns_add_u32 s62, s62, s%d\ns_lshl_b32 s62, s62, 8\ns_add_u32 s62, s62, 0x%x\nv_lshlrev_b32 v254, 2, v0" % (sWV, OFF_TS + 0x80000))
        a("buffer_store_dword v255, v254, s[%d:%d], s62 offen" % (SO, SO + 3))
    T.dump(SO, sWV, 4)
    a(done + ":\ns_endpgm")
    a(lRare + ":")
    for (ls, lb, kind) in spins:
        lp = a.label("sp")
        a(ls + ":\ns_mov_b32 s%d, 0x40000\n%s:" % (sT2, lp))
        a("s_sleep 8\n" + poll_load(kind) + "\ns_waitcnt vmcnt(0)\n%s\ns_cbranch_vccz %s" % (poll_cmp(kind), lb))
        a("s_sub_u32 s%d, s%d, 1\ns_cmp_lg_u32 s%d, 0\ns_cbranch_scc1 %s\ns_branch %s" % (sT2, sT2, sT2, lp, lb))
    for (ls, lb) in rels:
        a("%s:\nbuffer_wbl2 sc1\ns_waitcnt vmcnt(0)\ns_branch %s" % (ls, lb))
    sRET = 44
    for (p, sm, qk), (lr, users) in rare.items():
        for rid, (lj, lb) in enumerate(users):
            a("%s:\ns_mov_b32 s%d, %d\ns_branch %s" % (lj, sRET, rid, lr))
        a(lr + ":")
        a("s_nop 7\ns_nop 7")
        Sc, Sn = S[p], S[1 - p]
        for rb in range(2 if sm == 1 else 1):
            cur = [Sc + rb * 32 + j for j in range(32)] if sm == 1 else [Sc + j for j in range(64)]
            d, f = vX, vX + 2
            rowmax(d, cur)
            a("v_max_f32 v%d, 0, v%d\nv_exp_f32 v%d, -v%d" % (d, d, f, d))
            for r in cur: a("v_sub_f32 v%d, v%d, v%d" % (r, r, d))
            for j in range(16): a("v_sub_f32 v%d, v%d, v%d" % (NM + rb * 16 + j, NM + rb * 16 + j, d))
            nx = []
            if qk == 1: nx = [Sn + rb * 32 + j for j in range(32)]
            elif qk == 2 and rb == 0: nx = [Sn + j for j in range(64)]
            for r in nx: a("v_sub_f32 v%d, v%d, v%d" % (r, r, d))
            a("v_mul_f32 v%d, v%d, v%d" % (vL[rb], vL[rb], f))
            for j in range(0, 64, 4):
                for q in range(4): a("v_accvgpr_read_b32 v%d, a%d" % (TM + q, O + rb * 64 + j + q))
                for q in range(4): a("v_mul_f32 v%d, v%d, v%d" % (TM + q, TM + q, f))
                for q in range(4): a("v_accvgpr_write_b32 a%d, v%d" % (O + rb * 64 + j + q, TM + q))
        for c, x in sm_list(p, sm): a(x)
        for rid, (lj, lb) in enumerate(users):
            if rid < len(users) - 1: a("s_cmp_eq_u32 s%d, %d\ns_cbranch_scc1 %s" % (sRET, rid, lb))
            else: a("s_branch %s" % lb)
    a.add_kernel(name, 512, 102, 256)
    a.launch(name, 256, 256, 163840)
```

```python
from gen_common import *
from sched import Sched
MF16 = "v_mfma_f32_16x16x32_bf16"

pX, pWQKV, pWO0, pC, pWQ, pWUK, pWUV, pBWO, pGATE, pDBG, pWS = 36, 38, 40, 44, 46, 48, 50, 52, 54, 58, 60
pWO = 58
NEG = "0xff800000"
THRESH = fbits(2.0 ** 48)
WSL = (98304, 131072)
LDS_G = WSL[0] + 24576
def aslot(g): return ((g + 2) % 3) * 32768

HACK16 = [0, 0]
def emit(a, M, streams):
    if HACK16[0]:
        import re
        M2 = []
        HACK16[1] += 1
        for t in M:
            m = re.match(r"(\S+) ([av])\[(\d+):\d+\], (\S+), (\S+), (\S+)", t)
            for q in range(2):
                b = int(m.group(3)) + 8 * (HACK16[1] % 2) + 4 * q
                d = "%s[%d:%d]" % (m.group(2), b, b + 3)
                M2.append("v_mfma_f32_16x16x32_bf16 %s, %s, %s, %s" % (d, m.group(4), m.group(5), d))
        M = M2
        streams = [([x for g in G for x in (g if isinstance(g, list) else [g])], 2 * l, 2 * h) for (G, l, h) in streams]
    n = len(M)
    fill = [[] for _ in range(n)]
    for (G, l, h) in streams:
        if not G: continue
        for g, m in zip(G, spread(len(G), l, min(h, n))):
            fill[m] += g if isinstance(g, list) else [g]
    for m in range(n):
        a(M[m])
        for x in fill[m]: a(x)
def isvm(x): return x.startswith("buffer_") or x.startswith("global_")

def gen_fused(a, name="p1_kernel", ts=False, NSK=30, WSP=16, PF=1, PKMUL=0, next_kernel=None, PD=8, TS2=0, LSPL=100, WL2=1, FUSE=1, SLP=4, QSL=(4, 6, 5), endlabel=None, NOTR=1, CRF=1, PDW=5, GPUB=11, VERB=0, H16=0, W16=0, TS3=0, WP=2, NEWP=1, WPF=None, LNT="", NTG=8, LATEAT=0, STAMPS=("start","q","attn","mid","s17"), XSL=3, XL2=0, ST=""):
    a.begin_kernel(name)
    T = TS(a, ts, 0, base=72)
    def st_(nm):
        if nm in STAMPS: T.stamp(STAMPS.index(nm))
    done = a.label("fdone")
    lAttn, lRare = a.label("attn"), a.label("rarecode")
    sWV = 3
    SA, SW, SX, SO, SD = 4, 8, 12, 16, 40
    sH, sI, sT0, sT1, sT2 = 20, 21, 22, 23, 24
    sAS, sAS2, sWS, sXS, sAM, sWM, sXM, sCNT, sOK, sDS, sSC = 25, 26, 27, 28, 29, 30, 31, 32, 33, 34, 35
    sQL, sQS, sU, sOA, sAD, sWD, sOJ, sVD, sFA, sGR = 92, 93, 94, 95, 96, 97, 56, 57, 63, 99
    sKO, sVO, sW4, sW8, sTH, sT = 48, 49, 50, 51, 54, 55
    vL16 = 1
    vAO, vWO, vXO = (2, 3, 4, 5), (6, 7, 8, 9), (10, 11)
    vAR, vWR, vXR = (12, 13), tuple(range(14, 22)), (22, 23, 24, 25)
    vOS, vOK = 26, 27
    QS = (28, 44); WR, NWR = 60, 8; TT, PK = 96, 104
    KS = (128, 160)
    vFO, vONE, vPFD, vTS, vW12, vPL, vPLO = 120, 121, 122, 123, 124, 125, 126
    sWS2, sOK2 = 62, 98
    QA = 128
    t2 = [0]
    def bar(waitstr):
        if TS2:
            n = t2[0]; t2[0] += 1
            if n > 0: a("v_writelane_b32 v123, s72, %d\nv_writelane_b32 v123, s74, %d" % (2 * n - 2, 2 * n - 1))
            a("s_memtime s[72:73]")
        a(waitstr + "\ns_barrier")
        if TS2: a("s_memtime s[74:75]")
    a("s_cmp_ge_u32 s2, 256\ns_cbranch_scc1 %s" % done)
    st_("start")
    a("s_load_dwordx16 s[36:51], s[0:1], 0\ns_load_dwordx8 s[52:59], s[0:1], 64\ns_load_dwordx2 s[60:61], s[0:1], 96")
    a("v_lshrrev_b32 v30, 6, v0\nv_and_b32 v0, 63, v0\nv_readfirstlane_b32 s%d, v30" % sWV)
    a("s_and_b32 s%d, s2, 7\ns_lshl_b32 s%d, s%d, 2\ns_lshr_b32 s%d, s2, 3\ns_and_b32 s%d, s%d, 3\ns_add_u32 s%d, s%d, s%d" % (sH, sH, sH, sT0, sT0, sT0, sH, sH, sT0))
    a("s_lshr_b32 s%d, s2, 5" % sI)
    a("v_lshlrev_b32 v%d, 4, v0" % vL16)
    a("v_lshrrev_b32 v30, 3, v0\nv_lshrrev_b32 v31, 4, v0\nv_and_b32 v32, 7, v0")
    a("v_xor_b32 v33, v31, v32\nv_lshlrev_b32 v33, 4, v33\nv_lshl_add_u32 v%d, v30, 10, v33" % vAO[0])
    a("v_add_u32 v%d, %d, v%d\nv_xor_b32 v33, 64, v%d\nv_add_u32 v%d, %d, v33\nv_add_u32 v%d, %d, v33" % (vAO[1], 7168, vAO[0], vAO[0], vAO[2], 2 * 7168, vAO[3], 3 * 7168))
    a("v_and_b32 v33, 15, v0\nv_lshlrev_b32 v34, 2, v31\nv_xor_b32 v33, v33, v34\nv_lshlrev_b32 v33, 4, v33\nv_lshl_add_u32 v%d, v31, 13, v33" % vWO[0])
    a("v_add_u32 v%d, %d, v%d\nv_xor_b32 v33, 16, v%d\nv_add_u32 v%d, %d, v33\nv_add_u32 v%d, %d, v33" % (vWO[1], 31744, vWO[0], vWO[0], vWO[2], 2 * 31744, vWO[3], 3 * 31744))
    a("s_sub_u32 s%d, 15, s%d\ns_bitcmp1_b32 s%d, 0\ns_cselect_b32 s%d, s%d, s%d\ns_lshl_b32 s%d, s%d, 1\ns_lshr_b32 s%d, s%d, 1\ns_add_u32 s%d, s%d, s%d" % (sT0, sI, sWV, sT0, sT0, sI, sT0, sT0, sT1, sWV, sT0, sT0, sT1))
    a("s_lshl_b32 s%d, s%d, 16\ns_add_u32 s%d, s%d, 32768" % (sAS, sT0, sAS2, sAS))
    a("s_lshl_b32 s%d, s%d, 13\ns_mov_b32 s%d, s%d" % (sAM, sWV, sWM, sAM))
    a("s_and_b32 s%d, s%d, 1\ns_lshl_b32 s%d, s%d, 18\ns_lshl_b32 s%d, s%d, 8\ns_add_u32 s%d, s%d, s%d" % (sT0, sWV, sT0, sT0, sWS, sH, sWS, sWS, sT0))
    a("s_and_b32 s%d, s2, 31\ns_add_u32 s%d, s%d, 0x20000" % (sU, sWS2, sWS))
    a("s_waitcnt lgkmcnt(0)")
    a("s_mov_b32 s100, s56\ns_mov_b32 s101, s57")
    srd(a, SA, pC, 0x200000)
    a("s_cmp_lt_u32 s%d, 2\ns_cselect_b32 s%d, s%d, s%d\ns_cselect_b32 s%d, s%d, s%d\ns_mov_b32 s%d, 0x400000\ns_mov_b32 s%d, 0x20000" % (sWV, SW, pWUK, pWUV, SW + 1, pWUK + 1, pWUV + 1, SW + 2, SW + 3))
    def dgrp(m0s, m0i, vo, srd_, so, stp, nd):
        G = ["s_add_u32 m0, s%d, %d" % (m0s, m0i)]
        G += ["buffer_load_dwordx4 v%d, s[%d:%d], s%d offen offset:%d lds ; need:%d" % (v, srd_, srd_ + 3, so, n * 1024, nd) for n, v in enumerate(vo)]
        G.append("s_add_u32 s%d, s%d, %d" % (so, so, stp))
        return G
    def fixm0(G):
        out = []
        for k, x in enumerate(G):
            out.append(x)
            if x.startswith("s_add_u32 m0"):
                if len(out) > 1 and out[-2].startswith("s_add_u32 s"): out[-1], out[-2] = out[-2], out[-1]
                else: out.append("s_nop 0")
        return out
    def dma_act(g): return fixm0(dgrp(sAM, aslot(g), vAO, SA, sAS, 128, g) + dgrp(sAM, aslot(g) + 4096, vAO, SA, sAS2, 128, g))
    def dma_w(g, withx=True):
        G = dgrp(sWM, WSL[g % 2], vWO, SW, sWS, 0x80000, g)
        if g < 8: G += dgrp(sWM, WSL[g % 2] + 4096, vWO, SW, sWS2, 0x80000, g)
        elif withx: G += dgrp(sXM, WSL[g % 2] + 16384, vXO, SX, sXS, 64 * 3072, g)
        return fixm0(G)
    for x in dma_w(0) + dma_act(0): a(x.split(";")[0])
    NSL = max(XL2 + 4 if XL2 else 0, max(QSL) + 1, XSL + 1)
    def preg(k): return 192 + 2 * k
    def pf(k): return "global_load_dword v122, %s, off" % vr(preg(k), 2)
    def pfa(k, base, vo, so, imm=0):
        r = preg(k)
        a("s_add_u32 s%d, s%d, %d\nv_mov_b32 v%d, s%d\nv_add_u32 v%d, s%d, v%d" % (sT2, so, imm, r + 1, base + 1, r, sT2, vo))
        a("v_add_co_u32 v%d, vcc, s%d, v%d\ns_nop 1\nv_addc_co_u32 v%d, vcc, 0, v%d, vcc" % (r, base, r, r + 1, r + 1))
    def pfnone(k): a("v_mov_b32 v%d, s%d\nv_mov_b32 v%d, s%d" % (preg(k), pGATE, preg(k) + 1, pGATE + 1))
    if PF:
        l1, l3, le = a.label("pf1"), a.label("pf3"), a.label("pfe")
        a("s_cmp_eq_u32 s%d, 1\ns_cbranch_scc1 %s\ns_cmp_eq_u32 s%d, 3\ns_cbranch_scc1 %s" % (sWV, l1, sWV, l3))
        a("v_and_b32 v26, 31, v0\nv_lshlrev_b32 v26, 7, v26\ns_lshl_b32 s%d, s2, 13\ns_lshl_b32 s%d, s%d, 11\ns_add_u32 s%d, s%d, s%d" % (sT0, sT1, sWV, sT0, sT0, sT1))
        pfa(0, pC, 26, sT0, 0); a(pf(0))
        pfa(XSL, pX, 26, sT0, 0)
        used = {0, XSL}
        if XL2:
            a("s_lshr_b32 s%d, s2, 3\ns_lshl_b32 s%d, s%d, 16\ns_lshl_b32 s%d, s%d, 6\ns_add_u32 s%d, s%d, s%d\nv_lshlrev_b32 v26, 10, v0" % (sT0, sT0, sT0, sT1, sWV, sT1, sT0, sT1))
            for j in range(4):
                pfa(XL2 + j, pX, 26, sT1, 256 * j); used.add(XL2 + j)
        for k in range(NSL):
            if k not in used: pfnone(k)
        a("s_branch %s\n%s:" % (le, l1))
        a("v_lshlrev_b32 v26, 13, v30\nv_lshl_add_u32 v26, v32, 7, v26")
        a("s_bitcmp1_b32 s2, 3\ns_cselect_b32 s98, s%d, s%d\ns_cselect_b32 s99, s%d, s%d" % (pWUV, pWUK, pWUV + 1, pWUK + 1))
        a("s_and_b32 s%d, s2, 7\ns_lshl_b32 s%d, s%d, 10\ns_lshr_b32 s%d, s2, 4\ns_and_b32 s%d, s%d, 7\ns_lshl_b32 s%d, s%d, 16\ns_lshl_b32 s%d, s%d, 16" % (sT1, sT1, sT1, sT0, sCNT, sT0, sT0, sT0, sCNT, sCNT))
        a("s_add_u32 s%d, s%d, s%d\ns_add_u32 s%d, s%d, s%d" % (sT0, sT0, sT1, sCNT, sCNT, sT1))
        pfa(0, 98, 26, sT0, 1 * 0x80000); a(pf(0))
        pfa(1, 98, 26, sT0, 3 * 0x80000); pfa(2, 98, 26, sT0, 5 * 0x80000); pfa(3, 98, 26, sCNT, 7 * 0x80000)
        for k in range(4, NSL): pfnone(k)
        a("s_branch %s\n%s:" % (le, l3))
        lpc = a.label("pc")
        a("s_getpc_b64 s[98:99]\n%s:" % lpc)
        a("s_lshr_b32 s%d, s2, 3\nv_lshlrev_b32 v26, 5, v0\nv_add_u32 v26, s%d, v26\nv_lshlrev_b32 v26, 7, v26\ns_mov_b32 s%d, 0" % (sT0, sT0, sT0))
        a("v_min_u32 v27, %s-%s, v26" % (lAttn, lpc))
        pfa(0, 98, 27, sT0, 0); a(pf(0))
        a("v_lshlrev_b32 v26, 13, v30\nv_lshl_add_u32 v26, v32, 7, v26")
        a("s_lshr_b32 s%d, s2, 3\ns_lshl_b32 s%d, s%d, 16\ns_and_b32 s%d, s2, 7\ns_lshl_b32 s%d, s%d, 10\ns_add_u32 s%d, s%d, s%d" % (sT0, sT0, sT0, sT1, sT1, sT1, sT0, sT0, sT1))
        pfa(QSL[0], pWQ, 26, sT0, 0); pfa(QSL[1], pWQ, 26, sT0, 4 * 0x80000)
        a("s_min_u32 s%d, s%d, 23\ns_lshl_b32 s%d, s%d, 7\ns_mul_i32 s%d, s%d, %d\ns_add_u32 s%d, s%d, s%d\nv_mul_u32_u24 v26, 3072, v0" % (sT0, sU, sT0, sT0, sT1, sI, 64 * 3072, sT0, sT0, sT1))
        pfa(QSL[2], pWQKV, 26, sT0, 0)
        for k in range(1, NSL):
            if k not in QSL: pfnone(k)
        a(le + ":")
    def pfp(p): return [pf(p + 2)] if (PF and p + 2 < NSL) else []
    srd(a, SO, pWS, WS_SIZE)
    a("v_and_b32 v33, 1, v31\nv_lshlrev_b32 v33, 2, v33\nv_xor_b32 v33, v33, v32\nv_lshlrev_b32 v33, 4, v33\ns_movk_i32 s%d, 3072\nv_mad_u32_u24 v%d, v30, s%d, v33" % (sT0, vXO[0], sT0))
    a("v_xor_b32 v33, 16, v%d\nv_add_u32 v%d, %d, v33" % (vXO[0], vXO[1], 24576 - 1024))
    a("v_and_b32 v33, 1, v30\nv_lshl_add_u32 v33, v33, 4, v32")
    a("v_and_b32 v34, 15, v0\nv_lshrrev_b32 v34, 1, v34\nv_xor_b32 v34, v34, v31\nv_lshlrev_b32 v34, 4, v34\nv_lshl_add_u32 v34, v33, 7, v34")
    a("s_and_b32 s%d, s%d, 1\ns_lshl_b32 s%d, s%d, 14\ns_add_u32 s%d, s%d, %d" % (sT0, sWV, sT0, sT0, sT0, sT0, aslot(0)))
    a("v_add_u32 v%d, s%d, v34\nv_xor_b32 v%d, 64, v%d" % (vAR[0], sT0, vAR[1], vAR[0]))
    a("v_lshlrev_b32 v33, 4, v33\nv_lshl_add_u32 v%d, v31, 9, v33" % vOS)
    a("v_and_b32 v34, 1, v31\nv_lshl_add_u32 v33, v34, 10, v33\nv_lshrrev_b32 v35, 5, v0\nv_lshl_add_u32 v33, v35, 9, v33")
    a("s_cmp_lt_u32 s%d, 2\ns_cselect_b64 vcc, -1, 0\nv_cndmask_b32 v%d, v%d, v33, vcc" % (sWV, vOK, vOS))
    a("v_lshrrev_b32 v35, 2, v0\nv_and_b32 v35, 3, v35\nv_lshl_add_u32 v36, v31, 3, v35")
    a("v_and_b32 v37, 2, v0\nv_xor_b32 v37, v37, v34\nv_and_b32 v38, 1, v0\nv_lshlrev_b32 v38, 3, v38")
    a("v_lshlrev_b32 v39, 2, v35\nv_xor_b32 v39, v39, v37\nv_lshlrev_b32 v39, 4, v39\nv_lshl_add_u32 v39, v36, 8, v39")
    a("s_lshr_b32 s%d, s%d, 1\ns_lshl_b32 s%d, s%d, 14\ns_add_u32 s%d, s%d, %d\nv_add3_u32 v39, v39, v38, s%d" % (sWD, sWV, sWD, sWD, sT0, sWD, WSL[0], sT0))
    for k in range(8): a("v_xor_b32 v%d, %d, v39" % (vWR[k], 64 * (k // 2) + 16 * (k % 2)))
    a("v_lshrrev_b32 v39, 1, v35\nv_lshlrev_b32 v39, 2, v39\nv_xor_b32 v39, v39, v37\nv_lshlrev_b32 v39, 4, v39\nv_lshl_add_u32 v39, v36, 7, v39\nv_add_u32 v39, v39, v38\nv_add_u32 v39, %d, v39" % (WSL[0] + 16384))
    for k in range(4): a("v_xor_b32 v%d, %d, v39" % (vXR[k], 64 * (k // 2) + 16 * (k % 2)))
    a("s_lshl_b32 s%d, s%d, 2\ns_add_u32 s%d, s%d, s%d\ns_sub_u32 s%d, 60, s%d\ns_add_u32 s%d, s%d, s%d" % (sT1, sI, sQS, sT1, sWV, sQL, sT1, sQL, sQL, sWV))
    a("s_lshr_b32 s%d, s%d, 1\ns_lshl_b32 s%d, s%d, 5\ns_add_u32 s%d, s%d, s%d\ns_add_u32 s%d, s%d, 44\ns_lshl_b32 s%d, s%d, 19" % (sT0, sWV, sT0, sT0, sT0, sT0, sH, sT0, sT0, sOK, sT0))
    a("s_and_b32 s%d, s%d, 1\ns_lshl_b32 s%d, s%d, 1\ns_add_u32 s%d, s%d, s%d\ns_lshl_b32 s%d, s%d, 14\ns_add_u32 s%d, s%d, s%d" % (sT0, sWV, sT1, sI, sT0, sT0, sT1, sT0, sT0, sOK, sOK, sT0))
    a("s_lshl_b32 s%d, s%d, 16\ns_sub_u32 s%d, %d, s%d" % (sT0, sI, sOJ, 60 * 8192 - 4096, sT0))
    a("s_lshl_b32 s%d, s%d, 13\ns_and_b32 s%d, s%d, 1\ns_lshl_b32 s%d, s%d, 14\ns_sub_u32 s%d, s%d, s%d\ns_add_u32 s%d, s%d, %d" % (sT0, sWV, sT1, sWV, sT1, sT1, sAD, sT0, sT1, sAD, sAD, aslot(8) - aslot(7)))
    a("s_lshl_b32 s%d, s%d, 6\nv_add_u32 v%d, s%d, v0\nv_lshlrev_b32 v%d, 12, v%d\nv_mov_b32 v%d, 1" % (sT0, sWV, vFO, sT0, vFO, vFO, vONE))
    lpc2 = a.label("pc")
    a("s_getpc_b64 s[0:1]\n%s:" % lpc2)
    a("s_lshr_b32 s%d, s2, 3\ns_lshl_b32 s%d, s%d, 2\ns_add_u32 s%d, s%d, s%d\nv_and_b32 v127, 15, v0\nv_lshlrev_b32 v127, 7, v127\nv_add_lshl_u32 v127, v127, s%d, 7" % (sT0, sT0, sT0, sT0, sT0, sWV, sT0))
    a("v_min_u32 v127, %s-%s, v127" % (endlabel or lRare, lpc2))
    srd(a, SX, pGATE, 1024)
    a("s_mov_b32 s98, s%d\ns_mov_b32 s99, s%d" % (pWO0, pWO0 + 1))
    srd(a, SD, pDBG, 256)
    a("s_mov_b32 s%d, s98\ns_mov_b32 s%d, s99" % (pWO, pWO + 1))
    a("s_getreg_b32 s%d, hwreg(HW_REG_XCC_ID, 0, 4)\ns_mul_i32 s%d, s%d, s%d\ns_lshl_b32 s%d, s%d, 8\ns_add_u32 s%d, s%d, s%d\ns_lshl_b32 s%d, s%d, 8\ns_add_u32 s%d, s%d, 1" % (sT0, sT1, sT0, sT0, sT1, sT1, sT1, sT1, sT0, sT1, sT1, sFA, sT1))
    a("v_mov_b32 v125, s%d\ns_lshl_b32 s%d, s%d, 3\ns_and_b32 s%d, s2, 7\ns_lshl_b32 s%d, s%d, 2\ns_lshl_b32 s%d, s%d, 2" % (sFA, sFA, sFA, sGR, sGR, sGR, sCNT, sH))
    a("v_and_b32 v126, 3, v0\nv_add_lshl_u32 v126, v126, s%d, 2\ns_lshl_b32 s%d, s%d, 12\nv_add_u32 v126, s%d, v126\nv_mov_b32 v124, s%d" % (sGR, sT0, sWV, sT0, sT0))
    a("buffer_atomic_add v125, v%d, s[%d:%d], s%d offen offset:128 sc1\ns_add_u32 s%d, s%d, 8192" % (vFO, SD, SD + 3, sCNT, sOK2, sOK))

    def wofs(g): return (g % 2) * 32768
    def xa(g, ks):
        if g == 7: return "v_add_u32 v%d, s%d, v%d" % (vAR[ks], sAD, vAR[ks])
        d = aslot(g + 1) - aslot(g)
        return ("v_add_u32 v%d, 0x%x, v%d" % (vAR[ks], d, vAR[ks])) if d > 0 else ("v_subrev_u32 v%d, 0x%x, v%d" % (vAR[ks], -d, vAR[ks]))
    def rd_act(g, ks):
        F = (KS if g < 8 else QS)[ks]
        return ["ds_read_b128 %s, v%d offset:%d" % (vr(F + 4 * n, 4), vAR[ks], (n // 2) * 4096 + (n % 2) * 1024) for n in range(8 if g < 8 else 4)]
    def rd_w(g, ks, wf, slot):
        r = WR + 4 * (slot % NWR)
        if wf < 8: return ["ds_read_b64_tr_b16 %s, v%d offset:%d" % (vr(r + 2 * rd_, 2), vWR[wf], wofs(g) + ks * 8192 + rd_ * 1024) for rd_ in range(2)]
        if wf < 12: return ["ds_read_b64_tr_b16 %s, v%d offset:%d" % (vr(r + 2 * rd_, 2), vXR[wf - 8], wofs(g) + ks * 4096 + rd_ * 512) for rd_ in range(2)]
        return ["ds_read_b128 %s, v%d offset:%d" % (vr(r, 4), vXR[0], ((g - 8) * 2 + ks) * 64)]
    def mfs(g, ks, wf, slot, var):
        w = vr(WR + 4 * (slot % NWR), 4); F = (KS if g < 8 else QS)[ks]; first = (g % 8 == 0 and ks == 0)
        cb, tc = (wf % 8) // 2, wf % 2
        M = []
        for n in range(8 if g < 8 else 4):
            rb, tr = n // 2, n % 2
            x = vr(F + 4 * n, 4)
            sw = (var == "V") or (var == "S" and wf >= 8)
            tb, ta = (tc, tr) if sw else (tr, tc)
            if g < 8: acc = ar(((rb // 2) * 16 + cb * 4 + (rb % 2) * 2 + tb) * 8 + ta * 4, 4)
            elif wf < 8: acc = vr(QA + ((rb * 4 + cb) * 2 + tr) * 8 + tc * 4, 4)
            elif wf < 12: acc = ar((cb * 4 + rb * 2 + tb) * 8 + ta * 4, 4)
            else: acc = ar(4 * n, 4)
            M.append("%s %s, %s, %s, %s" % (MF16, acc, x if sw else w, w if sw else x, "0" if first else acc))
        return M
    def order(g, var):
        nw = list(range(8)) + ([8, 9, 10, 11] if var in "NS" else [12] if var == "G" else [])
        if g == 7: return [(ks, 2 * cb + t) for cb in range(4) for ks in range(2) for t in range(2)]
        if g == 15 and var in "NS":
            return [(ks, wf) for ks in range(2) for wf in range(8, 12)] + [(ks, 2 * cb + t) for cb in range(4) for ks in range(2) for t in range(2)]
        return [(ks, wf) for ks in range(2) for wf in nw]
    def build(g0, var):
        fr = [(g, ks, wf) for g in range(g0, g0 + 8) for (ks, wf) in order(g, var)]
        M = []; fm = []
        for k, (g, ks, wf) in enumerate(fr):
            fm.append(len(M)); M += mfs(g, ks, wf, k, var)
        S_ = Sched(M); n = len(M)
        look = [(8, 0, wf) for wf in range(PDW)] if g0 == 0 else []
        allf = fr + look
        cs = {};
        for k, (g, ks, wf) in enumerate(allf): cs.setdefault(g, k)
        bar_m = {g: fm[cs[g] - PDW + 1] for g in cs if g > g0}
        for g, m in bar_m.items(): S_.bars[m] = g
        na = 8 if g0 == 0 else 4
        items = []
        for k in range(PDW, len(allf)):
            g, ks, wf = allf[k]
            t = fm[k - PDW]; e = bar_m.get(g, 0); use = fm[k] if k < len(fr) else n + 1 + (k - len(fr))
            if k == cs[g] and g == 8: items += [(max(t, e), 0, j, ("v_subrev_u32 v%d, s%d, v%d" % (r, sWD, r), t, e, None)) for j, r in enumerate(vWR)]
            items += [(max(t, e), 1 if k == cs[g] else 3, 2 * k + j, (x, t, e, use)) for j, x in enumerate(rd_w(g, ks, wf, k))]
        for g in cs:
            for ks in range(2):
                if g == g0 and ks == 0: continue
                if g == 8 and g0 == 0 and ks == 1: continue
                R = rd_act(g, ks) + ([xa(g, ks)] if g < 15 else [])
                k1 = [k for k, f in enumerate(allf) if f[0] == g and f[1] == ks][0]
                u0 = fm[k1] if k1 < len(fr) else None
                for j, x in enumerate(R):
                    if ks == 0: t = e = bar_m[g]
                    else:
                        e = fm[cs[g]]; t = e + (j * min(u0 - e - 8, 40)) // len(R)
                    use = None if not x.startswith("ds_") else (u0 + j if u0 is not None else n)
                    items.append((max(t, e), 2, j, (x, t, e, use)))
        items.sort(key=lambda z: z[:3])
        S_.rq = [z[3] for z in items]
        S_.waitpts = [fm[k] for k in range(0, len(fr), 2 if var != "G" else 1) ]
        S_.place_reads()
        return S_, {g: fm[cs[g]] for g in range(g0, g0 + 8)}, bar_m, fm
    def pack(areg, pk, scale=None):
        t = TT
        G = ["v_accvgpr_read_b32 v%d, a%d" % (t + j, areg + j) for j in range(8)]
        if scale is not None: G += ["v_mul_f32 v%d, s%d, v%d" % (t + j, scale, t + j) for j in range(8)]
        G += ["v_cvt_pk_bf16_f32 v%d, v%d, v%d" % (pk + j, t + 2 * j, t + 2 * j + 1) for j in range(4)]
        return G
    def kv_unit(j, nd=None):
        cb, rb, tb = (j % 16) // 4, (j // 2) % 2, j % 2
        pk = PK + 4 * (j % 4)
        G = pack(j * 8, pk) + ["buffer_store_dwordx4 %s, v%d, s[%d:%d], s%d offen offset:%d%s" % (vr(pk, 4), vOK, SO, SO + 3, (sOK, sOK2)[rb], (cb % 2) * 2048 + tb * 128, " ; need:%d" % nd if nd else "")]
        if j == 15: G += ["s_add_u32 s%d, s%d, s%d" % (sOK, sOK, sOJ), "s_add_u32 s%d, s%d, s%d" % (sOK2, sOK2, sOJ)]
        elif j % 16 == 7: G += ["s_add_u32 s%d, s%d, 4096" % (sOK, sOK), "s_add_u32 s%d, s%d, 4096" % (sOK2, sOK2)]
        return G
    qa_setup = [["s_mov_b32 s%d, s%d" % (SA, pX), "s_mov_b32 s%d, s%d" % (SA + 1, pX + 1),
                 "s_lshl_b32 s%d, s%d, 15" % (sAS, sQL), "s_lshl_b32 s%d, s%d, 15" % (sAS2, sQS)]]
    qw_setup = [["s_mov_b32 m0, %d" % LDS_G, "s_mov_b32 s%d, s%d" % (SW, pWQ), "buffer_load_dwordx4 v%d, s[%d:%d], 0 offen lds ; need:8" % (vL16, SX, SX + 3), "s_mov_b32 s%d, s%d" % (SW + 1, pWQ + 1)],
                ["s_lshl_b32 s%d, s%d, 17" % (sT0, sWV), "s_lshl_b32 s%d, s%d, 8" % (sWS, sH), "s_add_u32 s%d, s%d, s%d" % (sWS, sWS, sT0), "s_lshl_b32 s%d, s%d, 12" % (sWM, sWV)],
                ["s_mov_b32 s%d, s%d" % (SX, pWQKV), "s_mov_b32 s%d, s%d" % (SX + 1, pWQKV + 1), "s_lshl_b32 s%d, s%d, 11" % (sXM, sWV), "s_mul_i32 s%d, s%d, %d" % (sXS, sWV, 16 * 3072)],
                ["s_lshl_b32 s%d, s%d, 7" % (sT0, sU), "s_add_u32 s%d, s%d, s%d" % (sXS, sXS, sT0),
                 "s_and_b32 s%d, s%d, 3" % (sT0, sH), "s_cmp_eq_u32 s%d, 3" % sT0, "s_cselect_b32 s%d, 0, 0x180000" % (SX + 2)]]
    at_setup = [["v_cmp_ne_u32 vcc, s%d, v125" % sFA], ["s_cmp_eq_u64 vcc, 0", "s_cselect_b32 s%d, 1, s%d" % (sFA, sWV)],
                ["s_cmp_eq_u32 s%d, 0" % sWV, "s_cselect_b32 s46, 8, 0", "s_cselect_b32 s47, 0x80000000, 0"],
                ["s_lshl_b32 s%d, s%d, 12" % (sW4, sWV), "s_lshl_b32 s%d, s%d, 13" % (sW8, sWV), "s_lshl_b32 s%d, s%d, 19" % (sT0, sH)],
                ["s_lshl_b32 s%d, s%d, 15" % (sVD, sI), "s_add_u32 s%d, s%d, s%d" % (sT0, sT0, sVD)],
                ["s_add_u32 s%d, s%d, 0x%x" % (sKO, sT0, OFF_K), "s_add_u32 s%d, s%d, 0x%x" % (sVO, sT0, OFF_V), "s_mov_b32 s%d, %s" % (sTH, THRESH)]]
    sRA, sHP, sA0, sA1, sGB, sGA_, sGL_, sGS_, sP0, sP1_, sX0, sX1 = 36, 37, 38, 39, 64, 65, 66, 67, 68, 69, 70, 71
    sFG, sFX, sRBK, sTIL = 96, 97, 60, 61
    late_setup = [["s_lshr_b32 s%d, s%d, 3" % (sX1, sH), "s_lshl_b32 s%d, s%d, 3" % (sFG, sX1), "s_add_u32 s%d, s%d, s%d" % (sFG, sFG, sI), "s_lshl_b32 s%d, s%d, 5" % (sFG, sFG),
                 "s_and_b32 s%d, s%d, 7" % (sX0, sH), "s_add_u32 s%d, s%d, s%d" % (sFG, sFG, sX0), "s_lshl_b32 s%d, s%d, 2" % (sFG, sFG), "s_add_u32 s%d, s%d, 0x%x" % (sFG, sFG, OFF_FL),
                 "s_sub_u32 s%d, 15, s%d" % (sX0, sI)], ["s_bitcmp1_b32 s2, 0", "s_cselect_b32 s%d, s%d, s%d" % (sRBK, sX0, sI)], ["s_lshl_b32 s%d, s%d, 2" % (sFX, sRBK),
                 "s_and_b32 s%d, s%d, 3" % (sX0, sH), "s_add_u32 s%d, s%d, s%d" % (sTIL, sFX, sX0), "s_lshl_b32 s%d, s%d, 5" % (sFX, sTIL), "s_add_u32 s%d, s%d, s%d" % (sFX, sFX, sX1),
                 "s_lshl_b32 s%d, s%d, 2" % (sFX, sFX), "s_add_u32 s%d, s%d, 0x%x" % (sFX, sFX, OFF_FL + 32 * 128)],
        ["s_bitcmp1_b32 s%d, 1" % sH, "s_cselect_b32 s%d, s%d, s%d" % (sRA, sQL, sQS)],
        ["s_and_b32 s%d, s%d, 1" % (sHP, sH), "s_lshr_b32 s%d, s%d, 1" % (sX0, sGR), "s_add_u32 s%d, s%d, s%d" % (sHP, sHP, sX0), "s_lshl_b32 s%d, s%d, 11" % (sGB, sGR), "s_add_u32 s%d, s%d, 0x%x" % (sGB, sGB, OFF_G)]]
    for d_, blk in ((sGA_, sRA), (sGL_, sQL), (sGS_, sQS)): late_setup.append(["s_lshl_b32 s%d, s%d, 7" % (d_, blk), "s_add_u32 s%d, s%d, s%d" % (d_, d_, sGB)])
    late_setup += [["s_lshr_b32 s%d, s%d, 2" % (sX0, sHP), "s_lshl_b32 s%d, s%d, 19" % (sX0, sX0), "s_and_b32 s%d, s%d, 3" % (sX1, sHP), "s_lshl_b32 s%d, s%d, 11" % (sX1, sX1),
         "s_add_u32 s%d, s%d, s%d" % (sX0, sX0, sX1), "s_lshl_b32 s%d, s%d, 13" % (sX1, sRA), "s_add_u32 s%d, s%d, s%d" % (sA0, sX0, sX1),
         "s_max_u32 s%d, s%d, 1" % (sX1, sRA), "s_sub_u32 s%d, s%d, 1" % (sX1, sX1), "s_lshl_b32 s%d, s%d, 13" % (sX1, sX1), "s_add_u32 s%d, s%d, s%d" % (sA1, sX0, sX1),
         "s_add_u32 s%d, s%d, %d" % (sA1, sA1, 4 * PH),
         "s_lshr_b32 s%d, s2, 3" % sX0, "s_lshl_b32 s%d, s%d, 2" % (sX0, sX0), "s_add_u32 s%d, s%d, s%d" % (sX0, sX0, sWV), "s_and_b32 s%d, s2, 6" % sX1,
         "s_lshl_b32 s%d, s%d, 6" % (sX1, sX1), "s_add_u32 s%d, s%d, s%d" % (sX0, sX0, sX1), "s_lshl_b32 s%d, s%d, 6" % (sP0, sX0), "s_lshl_b32 s%d, s%d, 3" % (sP1_, sX0),
         "s_add_u32 s%d, s%d, %d" % (sX0, sA0, 4 * PH), "s_add_u32 s%d, s%d, %d" % (sX1, sA0, 8 * PH), "s_add_u32 s%d, s%d, %d" % (sGB, sA1, 4 * PH)]]
    SK, SV = SO, SO
    vK, vV = vL16, 2
    def dma(which, typ, par, srd_=None):
        so, sr_, base = (sKO, SK, 0) if which == "K" else (sVO, SV, 65536)
        if srd_ is not None: sr_ = srd_
        sw = sW4 if typ == 1 else sW8
        G = []
        for q in range(typ):
            g = ["s_add_u32 m0, s%d, %d" % (sw, base + par * 32768 + q * 4096)]
            g.append("s_add_u32 s%d, s%d, s%d" % (sDS, so, sw) if q == 0 else "s_add_u32 s%d, s%d, 4096" % (sDS, sDS))
            G.append(g)
            for o in range(4):
                G.append(["buffer_load_dwordx4 v%d, s[%d:%d], s%d offen offset:%d sc1 lds" % (vK, sr_, sr_ + 3, sDS, o * 1024)])
        return G
    def adv(which, typ):
        so = sKO if which == "K" else sVO
        if which == "V" and typ == 1: return ["s_add_u32 s%d, s%d, s%d" % (so, so, sVD), "s_movk_i32 s%d, 0x4000" % sVD]
        return ["s_add_u32 s%d, s%d, %d" % (so, so, 16384 * typ)]
    spins = []
    vF1, vFA, vPO = 122, 251, 254
    sP1, sG1, sG2 = 45, 46, 47
    def poll_load(kind):
        if kind == 1: return "buffer_load_dword v%d, v124, s[%d:%d], s%d offen sc1" % (vF1, SD, SD + 3, sCNT)
        if kind == 4: return "buffer_load_dword v195, v192, s[%d:%d], s%d offen sc1" % (SO, SO + 3, sG2)
        if kind == 3: return "buffer_load_dword v13, v12, s[%d:%d], 0 offen offset:128 sc1" % (SD, SD + 3)
        return "buffer_load_dword v%d, v%d, s[%d:%d], 0 offen offset:128 sc1" % (vFA, vPO, SD, SD + 3)
    def poll_cmp(kind): return "v_cmp_gt_u32 vcc, s%d, v%d" % ((sG1, vF1) if kind == 1 else (sG2, vFA) if kind == 2 else (sG2, 13) if kind == 3 else (sG1, 195))
    def poll_check(kind):
        ls, lb = a.label("spin"), a.label("spun")
        a("%s\ns_cbranch_vccnz %s\n%s:" % (poll_cmp(kind), ls, lb))
        spins.append((ls, lb, kind))
    rels = []
    def release():
        ls, lb = a.label("rel"), a.label("reld")
        a("s_cmp_eq_u32 s%d, 0\ns_cbranch_scc1 %s\n%s:" % (sFA, ls, lb))
        rels.append((ls, lb))

    st_("setup")
    bar("s_waitcnt vmcnt(%d)" % (2 if PF else 1))
    st_("bar0")
    def flat(G): return [x for g in G for x in g]
    def keep(G): return [g if any(x.startswith("s_cselect") for x in g) else None for g in G]
    def soft(G):
        out = []
        for g in G:
            if any(x.startswith("s_cselect") for x in g):
                k = [j for j, x in enumerate(g) if x.startswith("s_cmp") or x.startswith("s_bitcmp")][0]
                out += g[:k] + [g[k:]]
            else: out += g
        return out
    pre0 = rd_w(0, 0, 0, 0) + rd_act(0, 0) + [x for k in range(1, PDW) for x in rd_w(0, 0, k, k)]
    use0 = [0, 0] + list(range(8)) + [8 * k for k in range(1, PDW) for _ in range(2)]
    for x in pre0: a(x)
    a(xa(0, 0))
    lV = a.label("kvV"); lQ = a.label("qphase")
    a("s_cmp_ge_u32 s%d, 2\ns_cbranch_scc1 %s" % (sWV, lV))
    NKV = 12
    for var in ("K", "V"):
        if var == "V": a(lV + ":")
        t2[0] = 1
        S_, cm, bm, fm = build(0, var)
        S_.place(dma_w(1) + dma_act(1), 0, 56)
        S_.place(dma_act(2) + pfp(-1), 56, bm[1] - 2)
        for g in range(1, 9):
            b = bm[g]; e = bm.get(g + 1, S_.n + 96)
            Wn = (soft(qw_setup) if g == 7 else []) + dma_w(g + 1) + pfp(g - 1)
            if CRF and g in (3, 5, 7): Wn = Wn + ["global_load_dword v122, v127, s[0:1]"]
            if g == 6: Wn = ["buffer_load_dword v125, v126, s[%d:%d], 0 offen offset:128 sc1 ; need:7" % (SD, SD + 3)] + Wn
            S_.place(Wn, b, b + (44 if g < 8 else 31))
            if g < 8: S_.place((flat(qa_setup) if g == 6 else []) + dma_act(g + 2) + (soft(at_setup) if g == 7 else []), b + 44, e - 8)
        for cb in range(3):
            S_.place([x for j in range(4 * cb, 4 * cb + 4) for x in kv_unit(j, GPUB)], cm[7] + 32 * cb + 36, cm[7] + 32 * cb + 68 if cb < 2 else S_.n)
        vmh = S_.emit(a, bar, use0, [])
        left = S_.left; nkv = S_.n
        if VERB: print("KV over", S_.over, "sum", sum(S_.cost))
        if var == "K": a("s_branch %s" % lQ)
    a(lQ + ":")
    st_("q")
    lN, lS, lG, lE = a.label("qN"), a.label("qS"), a.label("qG"), a.label("qE")
    a("s_and_b32 s%d, s%d, 3\ns_cmp_eq_u32 s%d, 3\ns_cbranch_scc1 %s\ns_cmp_ge_u32 s%d, 16\ns_cbranch_scc1 %s" % (sT0, sH, sT0, lG, sU, lS))
    use8 = [0 if u == nkv else 4 * (u - nkv - 1) for u in left]
    for var, lab in (("N", lN), ("S", lS), ("G", lG)):
        a(lab + ":")
        t2[0] = 9
        if var == "G": a("v_lshrrev_b32 v%d, 4, v0\nv_lshlrev_b32 v%d, 4, v%d\nv_add_u32 v%d, %d, v%d" % (vXR[0], vXR[0], vXR[0], vXR[0], LDS_G, vXR[0]))
        S_, cm, bm, fm = build(8, var)
        per = cm[9] - cm[8]
        vTW, vTR, TG = vXO[0], (vXO[1], vXR[1], vXR[2], vXR[3]), 32
        sSJ, sTD, sTL = sOA, sXS, sXM
        def t_dma(j, nd):
            G = []
            if j == 4: G += ["s_mov_b32 s%d, s%d" % (SX, pWO), "s_mov_b32 s%d, s%d" % (SX + 1, pWO + 1), "s_mov_b32 s%d, 0x80000" % (SX + 2)]
            for n in range(4):
                G += ["s_add_u32 m0, s%d, %d" % (sTL, n * 1024), "s_add_u32 s%d, s%d, %d" % (sDS, sSC, (j % 4) * 0x100000 + n * 4096),
                      "buffer_load_dwordx4 v%d, s[%d:%d], s%d offen lds ; need:%d" % (vTW, SX, SX + 3, sDS, nd)]
            return G
        def t_store(j):
            G = []
            if j == 4: G.append(["s_cmp_ge_u32 s%d, 32" % sSJ, "s_cselect_b32 s%d, 0x%x, s%d" % (sTD, OFF_DUMMY, sTD)])
            G.append("s_add_u32 s%d, s%d, %d" % (sT1, sTD, WROW))
            G += ["buffer_store_dwordx4 %s, v%d, s[%d:%d], s%d offen offset:%d" % (ar(TG + 4 * cb, 4), vL16, SO, SO + 3, sTD if cb < 2 else sT1, (cb % 2) * 1024) for cb in range(4)]
            G.append("s_add_u32 s%d, s%d, %d" % (sTD, sTD, 64 * 2048))
            return G
        if var == "G" and not NOTR:
            rq = list(S_.rq)
            for g in range(10, 15):
                pos = [k for k, r in enumerate(rq) if max(r[1], r[2]) >= cm[g]][0]
                rq[pos:pos] = [("ds_read_b64_tr_b16 %s, v%d offset:%d" % (ar(TG + 4 * cb + 2 * rd_, 2), vTR[cb], rd_ * 2048), cm[g] - 1, cm[g] - 1, cm[g] + 12) for cb in range(4) for rd_ in range(2)]
            S2 = Sched(S_.M); S2.bars = S_.bars; S2.waitpts = S_.waitpts; S2.rq = rq; S2.place_reads(); S_ = S2
            tsetup = ("s_and_b32 s%d, s2, 7\ns_lshl_b32 s%d, s%d, 3\ns_add_u32 s%d, s%d, s%d\n" % (sSJ, sSJ, sSJ, sSJ, sSJ, sI) +
                "s_lshl_b32 s%d, s%d, 12\ns_add_u32 s%d, s%d, %d\n" % (sTL, sWV, sTL, sTL, WSL[1] + 16384) +
                "v_lshrrev_b32 v92, 4, v0\nv_and_b32 v93, 15, v0\nv_lshlrev_b32 v94, 2, v92\nv_xor_b32 v93, v93, v94\nv_lshlrev_b32 v93, 4, v93\nv_lshl_add_u32 v%d, v92, 10, v93\n" % vTW +
                "s_mov_b32 s%d, s%d\ns_mov_b32 s%d, s%d\ns_mov_b32 s%d, 0x400000\n" % (SX, pBWO, SX + 1, pBWO + 1, SX + 2) +
                "s_lshl_b32 s%d, s%d, 14\ns_lshl_b32 s%d, s%d, 8\ns_add_u32 s%d, s%d, s%d\n" % (sSC, sSJ, sT0, sWV, sSC, sSC, sT0) +
                "v_lshrrev_b32 v93, 2, v0\nv_and_b32 v93, 3, v93\nv_lshrrev_b32 v94, 5, v0\nv_lshl_add_u32 v94, v94, 2, v93\n" +
                ("v_and_b32 v95, 1, v92\nv_lshlrev_b32 v95, 3, v95\nv_and_b32 v92, 3, v0\n" if W16 else
                 "v_and_b32 v92, 1, v92\nv_lshlrev_b32 v92, 1, v92\nv_lshrrev_b32 v95, 1, v0\nv_and_b32 v95, 1, v95\nv_add_u32 v92, v92, v95\nv_and_b32 v95, 1, v0\nv_lshlrev_b32 v95, 3, v95\n") +
                "v_lshlrev_b32 v93, 2, v93\nv_xor_b32 v93, v93, v92\nv_lshlrev_b32 v93, 4, v93\nv_lshl_add_u32 v93, v94, 8, v93\nv_add3_u32 v93, v93, v95, s%d\n" % sTL +
                "".join("v_xor_b32 v%d, %d, v93\n" % (vTR[k], 64 * k) for k in range(4)) +
                "s_mul_i32 s%d, s%d, %d\ns_lshl_b32 s%d, s%d, 11\ns_add_u32 s%d, s%d, s%d\ns_add_u32 s%d, s%d, 0x%x" % (sTD, sWV, 2 * WROW, sT1, sSJ, sTD, sTD, sT1, sTD, sTD, OFF_W)).split("\n")
        S_.place(dma_act(10) + (tsetup if var == "G" and not NOTR else []), 0, bm[9] - 6)
        for g in range(9, 16):
            b = bm[g]; e = bm.get(g + 1, S_.n)
            Wn = dma_w(g + 1, var != "G") if g < 15 else flat(dma("K", 1, 0, SO) + [adv("K", 1)] + dma("K", 1, 1, SO)) + [poll_load(1) + " ; need:16"]
            if g == GPUB:
                S_.hooks[g] = release
                Wn = Wn + ["buffer_atomic_add v%d, v%d, s[%d:%d], s%d offen sc1" % (vONE, vFO, SD, SD + 3, sCNT)]
            if CRF and g in (9, 11, 13): Wn = Wn + ["global_load_dword v122, v127, s[0:1]"]
            A = dma_act(g + 2) if g + 2 < 16 else []
            if var == "G" and not NOTR:
                mid = cm[g] + 14
                S_.place(Wn, b, mid)
                S_.place((t_dma(g - 9, g + 1) if g < 14 else []) + (t_store(g - 10) if 10 <= g < 15 else []) + A, mid, e - 4)
            else:
                S_.place(Wn, b, b + 32)
                S_.place(A, b + 32, e - 6)
        S_.place(soft(late_setup), cm[10], cm[14])
        zero = lambda lo, hi: ["v_accvgpr_write_b32 a%d, 0" % r for r in range(lo, hi)]
        S_.place([x for j in range(NKV, 16) for x in kv_unit(j, GPUB)], 6, cm[9] + per // 2)
        S_.place([x for j in range(16, 32) for x in kv_unit(j)] + zero(64, 128), cm[9] + per // 2, cm[15] + 24)
        tail = []
        if var in "NS":
            hd = ["s_lshr_b32 s%d, s%d, 1" % (sT0, sU), "s_lshl_b32 s%d, s%d, 19" % (sT0, sT0), "s_and_b32 s%d, s%d, 1" % (sT1, sU), "s_lshl_b32 s%d, s%d, 12" % (sT1, sT1), "s_add_u32 s%d, s%d, s%d" % (sT0, sT0, sT1),
                  ["s_cmp_lt_u32 s%d, 8" % sU, "s_cselect_b32 s%d, %s, 1.0" % (sSC, fbits(LOG2E * 0.25))],
                  "s_lshl_b32 s%d, s%d, 13" % (sOK, sQL), "s_add_u32 s%d, s%d, s%d" % (sOK, sOK, sT0), "s_lshl_b32 s%d, s%d, 13" % (sOK2, sQS), "s_add_u32 s%d, s%d, s%d" % (sOK2, sOK2, sT0)]
            AE = []
            for j in range(8):
                cb, rb, tb = j // 4, (j // 2) % 2, j % 2
                pk = PK + 4 * (j % 4)
                AE += pack(j * 8, pk, sSC if var == "N" else None) + ["buffer_store_dwordx4 %s, v%d, s[%d:%d], s%d offen offset:%d" % (vr(pk, 4), vOS, SO, SO + 3, (sOK, sOK2)[rb], cb * 2048 + tb * 128)]
            S_.place(hd, cm[15] + 24, cm[15] + 36)
            room = sum(max(0, 8 - S_.cost[k]) for k in range(cm[15] + 38, S_.n)) // 4
            S_.place(AE[:room], cm[15] + 38, S_.n); tail = AE[room:]
        vm2 = S_.emit(a, bar, use8, vmh)
        if VERB: print("Q", var, "over", S_.over, "sum", sum(S_.cost), "tail", len(tail))
        for x in tail: a(x)
        nafter = len(vm2) - 1 - max(k for k, nd in enumerate(vm2) if nd == 16) + sum(1 for x in tail if isvm(x))
        if var in "NS":
            a("s_waitcnt vmcnt(%d)\ns_branch %s" % (nafter, lE))
        else:
            a("s_nop 7")
            a("v_accvgpr_read_b32 v28, a0\nv_accvgpr_read_b32 v29, a4\nv_accvgpr_read_b32 v30, a8\nv_accvgpr_read_b32 v31, a12\nv_and_b32 v32, 16, v0\nv_cmp_eq_u32 s[26:27], 0, v32\nv_cmp_gt_u32 vcc, 32, v0")
            a("v_mov_b32 v33, s%d\nv_mov_b32 v34, s%d\nv_cndmask_b32 v28, v29, v28, s[26:27]\nv_cndmask_b32 v30, v31, v30, s[26:27]\nv_cndmask_b32 v28, v30, v28, vcc\nv_cndmask_b32 v33, v34, v33, vcc" % (sQL, sQS))
            a("v_mul_f32 v28, %s, v28\nv_exp_f32 v28, v28\nv_and_b32 v34, 0x1ff, v%d\nv_add_f32 v28, 1.0, v28\nv_rcp_f32 v28, v28" % (fbits(-LOG2E), vOS))
            a("v_lshrrev_b32 v34, 2, v34\nv_lshl_add_u32 v34, v32, 1, v34\nv_lshl_add_u32 v33, v33, 7, v34\ns_lshl_b32 s%d, s%d, 11\ns_add_u32 s%d, s%d, 0x%x" % (sT0, sGR, sT0, sT0, OFF_G))
            a("buffer_store_dword v28, v33, s[%d:%d], s%d offen\ns_waitcnt vmcnt(%d)" % (SO, SO + 3, sT0, nafter + 1))
    a(lE + ":")
    a(lAttn + ":")
    st_("attn")
    vU, vGL, vGS = 3, 4, 5
    vL = (6, 7); vLT = (8, 9); vX = 10
    S = (16, 80); P = (144, 176); NM = 208; TM = 240
    vGA, vNEG, vPM, vDUM = 248, 249, 250, 14
    O, Q, FR, NFR = 0, 128, 192, 16
    ms = (26, 28, 30)
    def kfrag(p, idx): return ("K", p * 32768 + idx * 1024)
    def vfrag(p, g, db): return ("V", p * 32768 + (g // 2) * 8192 + db * 2048 + (g % 2) * 1024)
    def rd(slot, fr):
        return "ds_read_b128 %s, v%d offset:%d" % (ar(FR + 4 * (slot % NFR), 4), vK if fr[0] == "K" else vV, fr[1])
    def mf_list(p, pv, qk):
        L = []
        Pp = P[1 - p]; Sn = S[1 - p]
        if pv == 1:
            for g in range(4):
                for db in range(4):
                    L.append((vfrag(1 - p, g, db), ["%s %s, {F}, %s, %s" % (MF32, ar(O + rb * 64 + db * 16, 16), vr(Pp + rb * 16 + g * 4, 4), ar(O + rb * 64 + db * 16, 16)) for rb in range(2)]))
        elif pv == 2:
            for g in range(8):
                for db in range(4):
                    L.append((vfrag(1 - p, g, db), ["%s %s, {F}, %s, %s" % (MF32, ar(O + db * 16, 16), vr(Pp + g * 4, 4), ar(O + db * 16, 16))]))
        elif pv == 3:
            for db in range(4):
                for g in range(8):
                    L.append((("K", vfrag(1, g, db)[1]), ["%s %s, {F}, %s, %s" % (MF32, ar(O + db * 16, 16), vr(Pp + g * 4, 4), ar(O + db * 16, 16))]))
        if qk == 1:
            for kb in range(2):
                for s in range(8):
                    ms_ = []
                    for rb in range(2):
                        d = vr(Sn + rb * 32 + kb * 16, 16)
                        ms_.append("%s %s, {F}, %s, %s" % (MF32, d, ar(Q + rb * 32 + s * 4, 4), d if s else vr(NM + rb * 16, 16)))
                    L.append((kfrag(1 - p, kb * 8 + s), ms_))
        elif qk == 2:
            for kb in range(4):
                for s in range(8):
                    d = vr(Sn + kb * 16, 16)
                    L.append((kfrag(1 - p, kb * 8 + s), ["%s %s, {F}, %s, %s" % (MF32, d, ar(Q + s * 4, 4), d if s else vr(NM, 16))]))
        return L
    def sm_list(p, sm):
        Sc, Pc = S[p], P[p]
        order = [0, 2, 1, 3] if sm == 1 else [0, 1, 2, 3]
        els = [b * 16 + j for b in order for j in range(16)]
        V = []
        first = {0: True, 1: True}
        def tail(n):
            e = els[n]; u = TM + (n % 8); lt = vLT[e // 32]
            out = []
            if first[e // 32]:
                out.append((4, "v_add_f32 v%d, v%d, v%d" % (lt, u, u + 1))); first[e // 32] = False
            else:
                out.append((4, "v_add_f32 v%d, v%d, v%d" % (lt, lt, u)))
                out.append((4, "v_add_f32 v%d, v%d, v%d" % (lt, lt, u + 1)))
            out.append((4, "v_cvt_pk_bf16_f32 v%d, v%d, v%d" % (Pc + e // 2, u, u + 1)))
            return out
        for n in range(0, 64, 2):
            tl = tail(n - 2) if n >= 2 else []
            V.append((8, "v_exp_f32 v%d, v%d" % (TM + n % 8, Sc + els[n])))
            V += tl[:1]
            V.append((8, "v_exp_f32 v%d, v%d" % (TM + n % 8 + 1, Sc + els[n + 1])))
            V += tl[1:]
        V += tail(62)
        return V
    rare = {}
    def step(p, pv, sm, qk, dK, dV, pre_in=True, pre_out=True, advK=True, extra_vm=None, extra_valu=None, chk=0, last16=False, staged=None, trail=None, vm_first=False):
        L = mf_list(p, pv, qk)
        nf = len(L)
        nxt = [vfrag(p, g, db) for g in range(4) for db in range(4)][:PD]
        if last16: nxt = [x[0] for x in mf_list(1, 3, 0)][:PD]
        M = [(f, t) for f, (fr, ts_) in enumerate(L) for t in ts_]
        nm = len(M)
        fill = [[] for _ in range(nm)]
        G = []
        if dV: G += dma("V", dV, p) + [adv("V", dV)]
        if dK: G += dma("K", dK, p) + ([adv("K", dK)] if advK else [])
        ntr = sum(1 for g in (trail or []) for x in g if isvm(x))
        if extra_vm and vm_first: G = extra_vm + G + (trail or [])
        elif extra_vm: G += extra_vm + (trail or [])
        elif CRF > 1 and p == 0 and dK: G += [["global_load_dword v%d, v255, s[0:1]" % vGA]]
        cost = [0] * nm
        firstm = {}
        for m, (f, t) in enumerate(M): firstm.setdefault(f, m)
        barf = nf + 1 - PD
        if barf % WP: barf += WP - barf % WP
        if not pre_out or last16: barf = nf + 99
        CAP = 24
        pre = [[] for _ in range(nm)]
        allfr = [x[0] for x in L] + (nxt if pre_out else [])
        nrd = PD
        for f in range(nf):
            m = firstm[f]
            if f == barf: pre[m].append("BAR")
            elif f < barf and f % WP == 0: pre[m].append("s_waitcnt lgkmcnt(%d)" % max(0, nrd - 1 - min(f + WP - 1, nf - 1)))
            if m > 0 and pre[m]: cost[m - 1] += 8 if f == barf else 4
            want = min(f + PD, len(allfr) - 1)
            if f < barf and not last16: want = min(want, nf - 1)
            lim = 2
            while nrd <= want and lim:
                fill[m].append(rd(nrd, allfr[nrd])); cost[m] += 4; nrd += 1; lim -= 1
        assert nrd == len(allfr), (nrd, len(allfr))
        cost[nm - 1] += 20
        def place(stream, lo, hi):
            tot = sum(c for c, _ in stream); done_ = 0
            free = sum(max(0, CAP - cost[k]) for k in range(lo, hi))
            seen = 0; i = 0
            for k in range(lo, hi):
                seen += max(0, CAP - cost[k])
                tgt = tot * min(1.0, seen / max(free, 1))
                while i < len(stream) and (k == hi - 1 or (done_ < tgt and (cost[k] + stream[i][0] <= CAP or done_ + 8 < tgt))):
                    fill[k] += stream[i][1]; cost[k] += stream[i][0]; done_ += stream[i][0]; i += 1
        hiD = min(max(len(G) + 1, nm // 2), firstm[barf] - 4 if barf < nf else nm)
        place([(4 * len(g), g) for g in G], 1, hiD)
        V = sm_list(p, sm) if sm else []
        if sm:
            V.append((4, "v_max_f32 v%d, v%d, v%d" % (vX, vLT[0], vLT[1])))
            V.append((4, "v_cmp_lt_f32 vcc, s%d, v%d" % (sTH, vX)))
        if extra_valu: V += [(4, x) for x in extra_valu]
        place([(c, [x]) for c, x in V], 0, nm - 1)
        for (lst, lo, hi) in (staged or []): place([(4, [x]) for x in lst], lo, hi)
        if not pre_in:
            for f in range(PD): a(rd(f, L[f][0]))
        for m, (f, t) in enumerate(M):
            for x in pre[m]:
                if x == "BAR":
                    if TS3: a("s_mov_b32 m0, s76\ns_add_u32 s76, s76, 1\nv_writelane_b32 v11, s72, m0\ns_mov_b32 m0, s76\ns_add_u32 s76, s76, 1\nv_writelane_b32 v11, s74, m0\ns_memtime s[72:73]")
                    a("s_waitcnt vmcnt(%d) lgkmcnt(0)" % ntr)
                    if chk: poll_check(chk)
                    a("s_barrier")
                    if TS3: a("s_memtime s[74:75]\ns_waitcnt lgkmcnt(0)")
                else: a(x)
            a(t.replace("{F}", ar(FR + 4 * (f % NFR), 4)))
            for x in fill[m]: a(x)
        assert nf % NFR == 0
        if sm:
            key = (p, sm, qk if qk else sm)
            if key not in rare: rare[key] = (a.label("rare"), [])
            lb = a.label("back"); lj = a.label("jr")
            rid = len(rare[key][1]); rare[key][1].append((lj, lb))
            a("s_cbranch_vccnz %s\n%s:" % (lj, lb))
            if sm == 1: a("v_add_f32 v%d, v%d, v%d\nv_add_f32 v%d, v%d, v%d" % (vL[0], vL[0], vLT[0], vL[1], vL[1], vLT[1]))
            else: a("v_add_f32 v%d, v%d, v%d\nv_add_f32 v%d, v%d, v%d" % (vL[0], vL[0], vLT[0], vL[0], vL[0], vLT[1]))
    def rowmax(dst, regs_):
        a("v_max3_f32 v%d, v%d, v%d, v%d" % (dst, regs_[0], regs_[1], regs_[2]))
        j = 3
        while j + 1 < len(regs_):
            a("v_max3_f32 v%d, v%d, v%d, v%d" % (dst, dst, regs_[j], regs_[j + 1])); j += 2
        if j < len(regs_): a("v_max_f32 v%d, v%d, v%d" % (dst, dst, regs_[j]))
        a("v_mov_b32 v%d, v%d\ns_nop 1\nv_permlane32_swap_b32 v%d, v%d\nv_max_f32 v%d, v%d, v%d" % (dst + 1, dst, dst, dst + 1, dst, dst, dst + 1))
    def mask(base, nblk, kb0):
        a("s_nop 7\ns_nop 3")
        for j in range(nblk):
            lf = a.label("mfull"); le_ = a.label("mend")
            kb = kb0 + j; r0 = base + 16 * j
            a("s_cmp_gt_u32 s%d, %d\ns_cbranch_scc1 %s" % (sWV, kb, le_))
            if kb > 0: a("s_cmp_lt_u32 s%d, %d\ns_cbranch_scc1 %s" % (sWV, kb, lf))
            rr = list(range(16))
            for c in range(0, 16, 3):
                grp = rr[c:c + 3]
                for q, r in enumerate(grp): a("v_cmp_gt_i32 s[%d:%d], %d, v%d" % (ms[q], ms[q] + 1, 8 * (r // 4) + r % 4, vU))
                if len(grp) < 3: a("s_nop 1")
                for q, r in enumerate(grp): a("v_cndmask_b32 v%d, v%d, v%d, s[%d:%d]" % (r0 + r, r0 + r, vNEG, ms[q], ms[q] + 1))
            if kb > 0:
                a("s_branch %s\n%s:" % (le_, lf))
                for r in range(16): a("v_mov_b32 v%d, v%d" % (r0 + r, vNEG))
            a(le_ + ":")
    poll_check(1)
    bar("s_nop 0")
    if TS2:
        a("s_waitcnt lgkmcnt(0)"); bar("s_nop 0")
        a("s_lshl_b32 s62, s2, 2\ns_add_u32 s62, s62, s%d\ns_lshl_b32 s62, s62, 8\ns_add_u32 s62, s62, 0x%x\nv_lshlrev_b32 v122, 2, v0" % (sWV, OFF_TS + 0x80000))
        a("buffer_store_dword v123, v122, s[%d:%d], s62 offen\ns_waitcnt vmcnt(0)" % (SO, SO + 3))
    a("s_mov_b32 s%d, %s" % (sSC, fbits(LOG2E / math.sqrt(128.0))))
    fr0 = [kfrag(0, kb * 8 + s) for s in range(8) for kb in range(2)]
    for f in range(12): a(rd(f, fr0[f]))
    def qepi(cb):
        G = []
        for rb in range(2):
            src = QA + (rb * 4 + cb) * 16
            G += ["v_mul_f32 v%d, s%d, v%d" % (src + j, sSC, src + j) for j in range(16)]
            G += ["v_cvt_pk_bf16_f32 v%d, v%d, v%d" % (src + j, src + 2 * j, src + 2 * j + 1) for j in range(8)]
        for rb in range(2):
            src = QA + (rb * 4 + cb) * 16
            G += ["v_permlane16_swap_b32 v%d, v%d" % (src + j, src + 4 + j) for j in range(4)]
        for rb in range(2):
            src = QA + (rb * 4 + cb) * 16
            G += ["v_accvgpr_write_b32 a%d, v%d" % (Q + rb * 32 + cb * 8 + j, src + j) for j in range(8)]
        return G
    a("s_add_u32 s%d, s%d, 0x4000\ns_sub_u32 s%d, s%d, s%d\ns_cmp_eq_u32 s%d, 0\ns_cselect_b32 s%d, 0x8000, 0\ns_add_u32 s%d, s%d, s%d" % (sT1, sVD, sKO, sKO, sT1, sI, sT0, sKO, sKO, sT0))
    for g_ in dma("V", 1, 0):
        for x in g_: a(x)
    a("s_add_u32 s%d, s%d, 0x4000\ns_sub_u32 s%d, 0, s%d" % (sVO, sVO, sVD, sT1))
    for x in qepi(0): a(x)
    for f in range(12, 16): a(rd(f, fr0[f]))
    misc = ["v_add_u32 v%d, 0x10000, v%d" % (vV, vK), "v_and_b32 v10, 31, v0", "v_lshrrev_b32 v11, 5, v0", "v_lshlrev_b32 v11, 2, v11",
            "v_and_b32 v12, 8, v0", "v_and_b32 v13, 16, v0", "v_lshrrev_b32 v13, 1, v13", "v_and_b32 v14, 7, v0", "v_lshl_add_u32 v12, v12, 1, v13", "v_add_u32 v12, v12, v14", "v_sub_u32 v%d, v12, v11" % vU,
            "v_mov_b32 v%d, 0" % vL[0], "v_mov_b32 v%d, 0" % vL[1], "v_mov_b32 v%d, %s" % (vNEG, NEG), "v_and_b32 v%d, 3, v0" % vPO, "v_add_lshl_u32 v%d, v%d, s%d, 2" % (vPO, vPO, sGR), "v_add_u32 v%d, s%d, v%d" % (vPO, sW4, vPO), "v_mov_b32 v253, 0x10000000", "v_mov_b32 v252, v%d" % vFO, "v_mov_b32 v255, v127"]
    if FUSE:
        misc += ["v_min_u32 v13, 1, v%d" % vFO, "v_lshlrev_b32 v13, 29, v13",
                 "buffer_store_dword v%d, v13, s[%d:%d], s%d offen sc1" % (vL[0], SO, SO + 3, sFG), "buffer_store_dword v%d, v13, s[%d:%d], s%d offen sc1" % (vL[0], SO, SO + 3, sFX)]
    else:
        misc += ["s_lshl_b32 s%d, s2, 7" % sT1, "s_add_u32 s%d, s%d, 0x%x" % (sT1, sT1, OFF_FL), "v_lshlrev_b32 v10, 2, v10",
                 "buffer_store_dword v%d, v10, s[%d:%d], s%d offen" % (vL[0], SO, SO + 3, sT1)]
    misc += ["v_accvgpr_write_b32 a%d, 0" % r for r in range(0, 40)]
    a("s_waitcnt lgkmcnt(0)\ns_barrier")
    K2 = dma("K", 2, 0) + [["s_cmp_eq_u32 s%d, 0" % sI, "s_cselect_b32 s%d, 2, 1" % sT0, "s_lshl_b32 s%d, s%d, 14" % (sT0, sT0), "s_add_u32 s%d, s%d, s%d" % (sKO, sKO, sT0)]]
    for cb in range(4):
        M = []
        for s in (2 * cb, 2 * cb + 1):
            for kb in range(2):
                for rb in range(2):
                    d = vr(S[0] + rb * 32 + kb * 16, 16)
                    M.append("%s %s, %s, %s, %s" % (MF32, d, ar(FR + 4 * (2 * s + kb), 4), ar(Q + rb * 32 + s * 4, 4), d if s else "0"))
        emit(a, M, [(K2[4 * cb: 4 * cb + 4], 0, 7), (qepi(cb + 1) + ["s_nop 0"] if cb < 3 else misc, 0, 8)])
    st_("m1")
    for r in range(40, 64): a("v_accvgpr_write_b32 a%d, 0" % r)
    mask(S[0] + 32, 2, 0)
    for rb in range(2): rowmax(vX + 2 * rb, [S[0] + rb * 32 + j for j in range(32)])
    for rb in range(2):
        for j in range(16): a("v_sub_f32 v%d, 0, v%d" % (NM + rb * 16 + j, vX + 2 * rb))
    for rb in range(2):
        for j in range(32): a("v_sub_f32 v%d, v%d, v%d" % (S[0] + rb * 32 + j, S[0] + rb * 32 + j, vX + 2 * rb))
    st_("first")
    if TS3: a("s_mov_b32 s76, 0\ns_mov_b32 s72, 0\ns_mov_b32 s74, 0")
    step(0, 0, 1, 1, 0, 0, pre_in=False)
    st_("s0a")
    release()
    a("buffer_atomic_add v253, v252, s[%d:%d], s%d offen offset:128 sc1" % (SD, SD + 3, sCNT))
    mask(S[1] + 32, 2, 2)
    st_("s0")
    lT0, lT1, lT1b, lL1, lL2, lS15, lMid, lI7, lEn = [a.label(x) for x in ("T0", "T1", "T1b", "L1", "L2", "S15", "MID", "I7", "END")]
    PL = [[poll_load(2)]]
    AF = [ar(Q + 4 * j, 4) for j in range(9)]
    def ld(dst, so, off): return ["buffer_load_dwordx4 %s, v%d, s[%d:%d], s%d offen offset:%d sc1" % (dst, vK, SV, SV + 3, so, off)]
    AOP = [ld(AF[0], sA0, 0), ld(AF[1], sA0, 1024), ld(AF[2], sX0, 0), ld(AF[3], sX0, 1024), ld(AF[4], sA1, 0), ld(AF[5], sA1, 1024),
           ld(AF[6], sGB, 1024), ld(AF[7], sX1, 0), ld(AF[8], sX1, 1024)]
    ALD = [["v_and_b32 v14, 31, v0", "v_lshlrev_b32 v14, 2, v14", "buffer_load_dword v%d, v14, s[%d:%d], s%d offen sc1" % (vGA, SV, SV + 3, sGA_)],
           ["v_lshrrev_b32 v15, 5, v0", "v_lshl_add_u32 v13, v15, 2, v%d" % vU, "v_lshlrev_b32 v15, 5, v15"],
           ["v_add_lshl_u32 v%d, v13, v15, 4" % vFA, "v_lshlrev_b32 v15, 2, v13", "buffer_load_dword v%d, v15, s[%d:%d], s%d offen sc1" % (vGL, SV, SV + 3, sGL_)],
           ["buffer_load_dword v%d, v15, s[%d:%d], s%d offen sc1" % (vGS, SV, SV + 3, sGS_)]]
    def wpf(dst): return [["v_add_lshl_u32 v14, v0, s%d, 7" % sP0, "global_load_dword %s, v14, s[%d:%d]" % (dst, pBWO, pBWO + 1)],
                          ["v_and_b32 v15, 7, v0", "v_add_lshl_u32 v15, v15, s%d, 7" % sP1_, "global_load_dword %s, v15, s[%d:%d]" % (dst, pWO, pWO + 1)]]
    TR0, TR15 = [], []
    if FUSE:
        ALD += [["v_add_u32 v12, s%d, v14" % sW4, poll_load(3)]]
        TR0 = wpf("v%d" % vPM)
        if WL2: TR15 = wpf("v9" if False else "v%d" % vDUM)
    CST = "sc1" if FUSE else ""
    a("s_cmp_eq_u32 s%d, 0\ns_cbranch_scc1 %s" % (sI, lT1))
    a("s_mov_b32 s%d, s%d" % (sT, sI))
    a(".p2align 6\n" + lL1 + ":")
    step(1, 1, 1, 1, 1, 1)
    a("s_sub_u32 s%d, s%d, 1\ns_cbranch_scc0 %s" % (sT, sT, lT0) if False else "s_sub_u32 s%d, s%d, 1\ns_cmp_eq_u32 s%d, 0\ns_cbranch_scc1 %s" % (sT, sT, sT, lT0))
    step(0, 1, 1, 1, 1, 1)
    a("s_branch %s" % lL1)
    a(lT0 + ":")
    a("s_add_u32 s%d, s%d, 0x8000" % (sKO, sKO))
    step(0, 1, 1, 1, 2, 1, extra_vm=PL, chk=2, trail=TR0)
    a("s_cmp_eq_u32 s%d, 7\ns_cbranch_scc1 %s" % (sI, lT1b))
    a(lT1 + ":")
    step(1, 1, 1, 2, 2, 1)
    a("s_add_u32 s%d, s%d, 0x8000" % (sVO, sVO))
    step(0, 1, 2, 2, 2, 2, extra_vm=PL, chk=2, trail=TR0)
    a("s_sub_u32 s%d, 6, s%d\ns_cmp_eq_u32 s%d, 0\ns_cbranch_scc1 %s" % (sT, sI, sT, lS15))
    a(".p2align 6\n" + lL2 + ":")
    step(1, 2, 2, 2, 2, 2)
    step(0, 2, 2, 2, 2, 2)
    a("s_sub_u32 s%d, s%d, 1\ns_cmp_lg_u32 s%d, 0\ns_cbranch_scc1 %s" % (sT, sT, sT, lL2))
    a(lS15 + ":")
    a("s_add_u32 s%d, s%d, 0x8000" % (sKO, sVO))
    step(1, 2, 2, 2, 2, 2, extra_vm=ALD, chk=3 if FUSE else 0, trail=TR15, vm_first=True)
    a("s_branch %s" % lMid)
    a(lT1b + ":")
    a("s_add_u32 s%d, s%d, 0xc000" % (sKO, sVO))
    step(1, 1, 1, 2, 2, 1, extra_vm=ALD, chk=3 if FUSE else 0, trail=TR15, vm_first=True)
    def fin_head(rb, so):
        l = vL[rb]; g = (vGL, vGS)[rb]; blk = (sQL, sQS)[rb]
        return ["v_mov_b32 v%d, v%d" % (vX + 5, l), "v_sub_f32 v%d, 1.0, v%d" % (g, g), "s_mul_i32 s%d, s%d, %d" % (so, blk, CROW), "v_permlane32_swap_b32 v%d, v%d" % (l, vX + 5),
                "v_add_f32 v%d, v%d, v%d" % (l, l, vX + 5), "v_rcp_f32 v%d, v%d" % (l, l), "s_lshl_b32 s%d, s%d, 13" % (sT1, sH), "v_mul_f32 v%d, v%d, v%d" % (l, l, g),
                "s_add_u32 s%d, s%d, s%d" % (so, so, sT1), "s_add_u32 s%d, s%d, 0x%x" % (so, so, OFF_C)]
    def fin_part(rb, c, t, so):
        l = vL[rb]
        G = ["v_accvgpr_read_b32 v%d, a%d" % (t + j, O + rb * 64 + c * 8 + j) for j in range(8)]
        G += ["v_mul_f32 v%d, v%d, v%d" % (t + j, l, t + j) for j in range(8)]
        G += ["v_cvt_pk_bf16_f32 v%d, v%d, v%d" % (t + j, t + 2 * j, t + 2 * j + 1) for j in range(4)]
        if c == 4: G.append("s_add_u32 s%d, s%d, 4096" % (so, so))
        G.append("buffer_store_dwordx4 %s, v%d, s[%d:%d], s%d offen offset:%d %s" % (vr(t, 4), vFA, SV, SV + 3, so, (c % 4) * 1024, CST))
        return G
    a(lMid + ":")
    st_("mid")
    if TS3:
        a("s_mov_b32 m0, s76\ns_add_u32 s76, s76, 1\nv_writelane_b32 v11, s72, m0\ns_mov_b32 m0, s76\ns_add_u32 s76, s76, 1\nv_writelane_b32 v11, s74, m0")
        a("s_lshl_b32 s62, s2, 2\ns_add_u32 s62, s62, s%d\ns_lshl_b32 s62, s62, 8\ns_add_u32 s62, s62, 0x%x\nv_lshlrev_b32 v10, 2, v0" % (sWV, OFF_TS + 0x80000))
        a("buffer_store_dword v11, v10, s[%d:%d], s62 offen\ns_nop 4" % (SO, SO + 3))
    for x in flat(AOP): a(x)
    mask(S[0], 4, 0)
    PW, PW2 = 8, 12
    sWB, sHW, sWC, sAB, sHA, sAC = 25, 32, 33, 34, 35, 45
    vD = (252, 253, 254, 255)
    WRING = [0, 16384, 65536, 81920, 131072, 147456]; ARING = [32768, 49152, 98304, 114688]
    def w_dma(st):
        G = []
        if st < 16 and st % 2 == 0:
            G.append(["s_lshl_b32 s%d, s%d, 17" % (sWC, sHW), "s_add_u32 s%d, s%d, s%d" % (sWC, sWC, sWB), "s_add_u32 s%d, s%d, 1" % (sHW, sHW), "s_and_b32 s%d, s%d, 7" % (sHW, sHW)])
        if st == 16: G.append(["s_and_b32 s%d, s%d, 0xffff" % (sWC, sWB), "s_lshr_b32 s%d, s%d, 20" % (sHW, sWB), "s_lshl_b32 s%d, s%d, 17" % (sHW, sHW), "s_add_u32 s%d, s%d, s%d" % (sWC, sWC, sHW)])
        G.append(["s_add_u32 m0, s%d, %d" % (sW4, WRING[st % 6]), "s_nop 0" if st % 2 == 0 else "s_add_u32 s%d, s%d, 65536" % (sWC, sWC)])
        sr_ = PW if st < 16 else PW2
        G += [["buffer_load_dwordx4 v%d, s[%d:%d], s%d offen offset:%d lds" % (vD[o], sr_, sr_ + 3, sWC, o * 1024)] for o in range(4)]
        return G
    def a_dma(st):
        G = []
        if st < 16 and st % 2 == 0:
            G.append(["s_lshl_b32 s%d, s%d, 13" % (sAC, sHA), "s_add_u32 s%d, s%d, s%d" % (sAC, sAC, sAB), "s_add_u32 s%d, s%d, 1" % (sHA, sHA), "s_and_b32 s%d, s%d, 7" % (sHA, sHA)])
        if st == 16: G.append(["s_lshr_b32 s%d, s%d, 3" % (sHA, sH), "s_mul_i32 s%d, s%d, %d" % (sHA, sHA, 56 * 1024), "s_sub_u32 s%d, s%d, s%d" % (sAC, sAB, sHA), "s_add_u32 s%d, s%d, %d" % (sAC, sAC, 256 * 1024)])
        G.append(["s_add_u32 m0, s%d, %d" % (sW4, ARING[st % 4]), "s_nop 0" if st % 2 == 0 else "s_add_u32 s%d, s%d, 4096" % (sAC, sAC)])
        G += [["buffer_load_dwordx4 v%d, s[%d:%d], s%d offen offset:%d sc1 lds" % (vK, SV, SV + 3, sAC, o * 1024)] for o in range(4)]
        return G
    W16_, W17_ = [], []
    if FUSE:
        srd(a, PW, pBWO, 0x400000); srd(a, PW2, pWO, 0x80000)
        a("s_lshr_b32 s%d, s%d, 3\ns_lshl_b32 s%d, s%d, 20\ns_and_b32 s%d, s%d, 3\ns_lshl_b32 s%d, s%d, 8\ns_add_u32 s%d, s%d, s%d\ns_lshl_b32 s%d, s%d, 14\ns_add_u32 s%d, s%d, s%d" % (sT0, sH, sWB, sT0, sT1, sH, sT1, sT1, sWB, sWB, sT1, sT1, sWV, sWB, sWB, sT1))
        a("s_and_b32 s%d, s%d, 7\ns_mov_b32 s%d, s%d" % (sHW, sH, sHA, sHW))
        a("s_lshl_b32 s%d, s%d, 2\ns_add_u32 s%d, s%d, s%d\ns_mul_i32 s%d, s%d, %d\ns_lshl_b32 s%d, s%d, 16\ns_add_u32 s%d, s%d, s%d\ns_add_u32 s%d, s%d, 0x%x" % (sT1, sRBK, sT1, sT1, sWV, sAB, sT1, CROW, sT0, sT0, sAB, sAB, sT0, sAB, sAB, OFF_C))
        a("v_lshrrev_b32 v10, 4, v0\nv_and_b32 v11, 15, v0\nv_lshlrev_b32 v12, 2, v10\nv_xor_b32 v11, v11, v12\nv_lshlrev_b32 v11, 4, v11\nv_lshl_add_u32 v%d, v10, 10, v11" % vD[0])
        for n in range(1, 4): a("v_add_u32 v%d, %d, v%d" % (vD[n], 3072 * n, vD[0]))
        W16_ = [g for st in range(4) for g in w_dma(st)]; W17_ = [g for st in range(4, 6) for g in w_dma(st)]
    a("s_cmp_eq_u32 s%d, 7\ns_cbranch_scc1 %s" % (sI, lI7))
    NE = 6
    for x in fin_head(1, sA0): a(x)
    for c in range(NE):
        for x in fin_part(1, c, 208 + 8 * (c % 4), sA0): a(x)
    step(0, 2, 2, 0, 0, 0, last16=True, extra_vm=W16_)
    def final(first):
        stg = [(first + fin_head(0, sA1), 0, 11)]
        for db in range(3):
            stg.append((fin_part(0, 2 * db, 80 + 16 * db, sA1) + fin_part(0, 2 * db + 1, 88 + 16 * db, sA1), 8 * db + 11, min(8 * db + 19, 32)))
        step(1, 3, 0, 0, 0, 0, pre_out=False, staged=stg, extra_vm=W17_)
        a("s_nop 8")
        for x in fin_part(0, 6, 128, sA1) + fin_part(0, 7, 136, sA1): a(x)
    final([x for c in range(NE, 8) for x in fin_part(1, c, 208 + 8 * (c % 4), sA0)])
    a("s_branch %s" % lEn)
    a(lI7 + ":")
    step(0, 1, 2, 0, 0, 0, last16=True, extra_vm=W16_)
    final(fin_head(1, sA0) + [x for c in range(8) for x in fin_part(1, c, 208 + 8 * (c % 4), sA0)])
    a(lEn + ":")
    st_("s17")
    if FUSE:
        SOUT = 4; sQ, sXO, sOUT = 26, 27, 28
        vA, vW = (2, 3), (4, 5); ACC, FP = 16, 80
        BC, BP = 208, 224
        SC, SP = (16, 32), (48, 64); TA = (144, 156); PA = (168, 180); MX = (240, 242)
        L1 = ["v_and_b32 v246, 31, v0", "v_lshrrev_b32 v245, 5, v0", "v_lshlrev_b32 v245, 2, v245", "v_sub_u32 v246, v246, v245",
              "v_add_u32 v246, 18, v246", "v_mov_b32 v244, 0x5555", "v_mov_b32 v245, 0", "s_cmp_eq_u32 s%d, 0" % sRA, "s_cselect_b32 s%d, -1, 0" % sT2,
              "v_lshlrev_b64 v[244:245], v246, v[244:245]", "v_not_b32 v244, v244", "v_not_b32 v245, v245", "v_or_b32 v244, s%d, v244" % sT2]
        L1 += ["v_bfe_i32 v%d, v245, %d, 1" % (BC + r, 8 * (r // 4) + r % 4) for r in range(16)]
        L1 += ["v_bfe_i32 v%d, v244, %d, 1" % (BP + r, 8 * (r // 4) + r % 4) for r in range(8, 16)]
        L1 += ["v_and_b32 v%d, v%d, v%d" % (BC + r, vNEG, BC + r) for r in list(range(16)) + list(range(24, 32))]
        L1 += ["v_and_b32 v244, 1, v0", "v_lshlrev_b32 v244, 4, v244", "v_mov_b32 v245, 0xffff", "v_lshlrev_b32 v%d, v244, v245" % vPM, "s_waitcnt vmcnt(40)"]
        for e in range(2):
            L1.append("%s %s, %s, %s, %s" % (MF32, vr(SC[e], 16), AF[2 + e], AF[e], vr(BC, 16)))
            L1.append("%s %s, %s, %s, %s" % (MF32, vr(SP[e], 16), AF[4 + e], AF[e], vr(BP, 16)))
        L2 = []
        for e in range(2):
            L2 += ["v_max_f32 v%d, v%d, v%d" % (TA[e] + j, SP[e] + 8 + 2 * j, SP[e] + 9 + 2 * j) for j in range(4)]
            L2 += ["v_max_f32 v%d, v%d, v%d" % (TA[e] + 4 + j, SC[e] + 2 * j, SC[e] + 2 * j + 1) for j in range(8)]
        for e in range(2):
            t = TA[e]; m = MX[e]
            L2.append("v_max3_f32 v%d, v%d, v%d, v%d" % (m, t, t + 1, t + 2))
            L2 += ["v_max3_f32 v%d, v%d, v%d, v%d" % (m, m, t + j, t + j + 1) for j in range(3, 11, 2)]
            L2 += ["v_max_f32 v%d, v%d, v%d" % (m, m, t + 11), "v_mov_b32 v%d, v%d" % (m + 1, m)]
        L2.append("s_nop 1")
        L2 += ["v_permlane32_swap_b32 v%d, v%d" % (MX[e], MX[e] + 1) for e in range(2)]
        L2 += ["v_max_f32 v%d, v%d, v%d" % (MX[e], MX[e], MX[e] + 1) for e in range(2)]
        for e in range(2):
            L2 += ["v_sub_f32 v%d, v%d, v%d" % (TA[e] + j, TA[e] + j, MX[e]) for j in range(12)]
            L2 += ["v_exp_f32 v%d, v%d" % (TA[e] + j, TA[e] + j) for j in range(12)]
        for e in range(2):
            L2 += ["v_cvt_pk_bf16_f32 v%d, v%d, v%d" % (PA[e] + j, TA[e] + j, TA[e] + j) for j in range(12)]
            L2 += ["v_and_b32 v%d, v%d, v%d" % (PA[e] + j, vPM, PA[e] + j) for j in range(12)]
            L2 += ["s_nop 1"] if e == 1 else ["v_add_f32 v%d, v%d, v%d" % (MX[q], TA[q], TA[q] + 1) for q in range(2)]
            L2 += ["%s %s, %s, %s, %s" % (MF32, vr(SC[e], 16), AF[6 + g], vr(PA[e] + 4 * g, 4), "0" if g == 0 else vr(SC[e], 16)) for g in range(3)]
        L2 += ["v_add_f32 v%d, v%d, v%d" % (MX[e], MX[e], TA[e] + j) for j in range(2, 12) for e in range(2)]
        L2 += ["v_mov_b32 v%d, v%d" % (MX[e] + 1, MX[e]) for e in range(2)]
        L2 += ["s_mul_i32 s%d, s%d, %d" % (sA0, sRA, CROW), "s_lshl_b32 s%d, s%d, 11" % (sA1, sHP)]
        L2 += ["v_permlane32_swap_b32 v%d, v%d" % (MX[e], MX[e] + 1) for e in range(2)]
        L2 += ["v_add_f32 v%d, v%d, v%d" % (MX[e], MX[e], MX[e] + 1) for e in range(2)]
        L2 += ["v_rcp_f32 v%d, v%d" % (MX[e], MX[e]) for e in range(2)]
        L2 += ["s_add_u32 s%d, s%d, s%d" % (sA0, sA0, sA1), "s_add_u32 s%d, s%d, 0x%x" % (sA0, sA0, OFF_C + 256 * 1024)]
        L2 += ["v_mul_f32 v%d, v%d, v%d" % (MX[e], MX[e], vGA) for e in range(2)]
        for e in range(2):
            src = SC[e] + 8 * e
            L2 += ["v_mul_f32 v%d, v%d, v%d" % (src + j, MX[e], src + j) for j in range(8)]
            L2 += ["v_cvt_pk_bf16_f32 v%d, v%d, v%d" % (PA[e] + j, src + 2 * j, src + 2 * j + 1) for j in range(4)]
        LST = ["buffer_store_dwordx4 %s, v%d, s[%d:%d], s%d offen offset:%d sc1" % (vr(PA[e], 4), vK, SV, SV + 3, sA0, e * 1024) for e in range(2)]
        for x in L1: a(x)
        srd(a, SOUT, 100, 2048 * 1024)
        a("s_lshr_b32 s%d, s%d, 3" % (sQ, sH))
        a("s_and_b32 s%d, s%d, 1\ns_lshl_b32 s%d, s%d, 1\ns_and_b32 s%d, s%d, 1\ns_add_u32 s%d, s%d, s%d\ns_lshl_b32 s%d, s%d, 12" % (sT0, sWV, sT0, sT0, sT1, sQ, sT2, sT0, sT1, sT0, sT2))
        a("v_add_u32 v%d, s%d, v%d\nv_xor_b32 v%d, 4096, v%d" % (vA[0], sT0, vK, vA[1], vA[0]))
        a("v_lshrrev_b32 v7, 4, v0\nv_lshrrev_b32 v8, 2, v0\nv_and_b32 v8, 3, v8\nv_lshrrev_b32 v9, 5, v0\nv_lshl_add_u32 v9, v9, 2, v8")
        a("v_and_b32 v7, 1, v7\nv_lshlrev_b32 v7, 1, v7\nv_lshrrev_b32 v10, 1, v0\nv_and_b32 v10, 1, v10\nv_add_u32 v7, v7, v10\nv_and_b32 v10, 1, v0\nv_lshlrev_b32 v10, 3, v10")
        a("s_and_b32 s%d, s%d, 2\ns_lshr_b32 s%d, s%d, 1\ns_add_u32 s%d, s%d, s%d\nv_xor_b32 v8, s%d, v8" % (sT0, sWV, sT1, sQ, sT0, sT0, sT1, sT0))
        a("v_lshlrev_b32 v8, 2, v8\nv_xor_b32 v8, v8, v7\nv_lshlrev_b32 v8, 4, v8\nv_lshl_add_u32 v8, v9, 8, v8\nv_add_u32 v%d, v8, v10\nv_xor_b32 v%d, 64, v%d" % (vW[0], vW[1], vW[0]))
        a("s_and_b32 s%d, s%d, 3\ns_lshl_b32 s%d, s%d, 2\ns_add_u32 s%d, s%d, s%d\ns_lshl_b32 s%d, s%d, 6" % (sT1, sH, sT1, sT1, sT1, sT1, sT0, sOUT, sT1))
        a("s_lshl_b32 s%d, s%d, 2\ns_add_u32 s%d, s%d, s%d\ns_lshl_b32 s%d, s%d, 15\ns_add_u32 s%d, s%d, s%d" % (sT0, sRBK, sT0, sT0, sT2, sT0, sT0, sOUT, sOUT, sT0))
        a("v_and_b32 v6, 31, v0\nv_lshlrev_b32 v6, 10, v6\nv_lshrrev_b32 v7, 5, v0\nv_lshl_add_u32 v6, v7, 4, v6")
        a("s_mul_i32 s%d, s%d, %d\ns_add_u32 s%d, s%d, s%d\ns_add_u32 s%d, s%d, 0x%x" % (sXO, sTIL, 4 * 49152, sXO, sXO, sW4, sXO, sXO, OFF_X))
        a("v_min_u32 v9, 1, v0\nv_lshlrev_b32 v9, 29, v9\nv_mov_b32 v10, 1\nv_and_b32 v8, 7, v0\nv_lshlrev_b32 v8, 2, v8\nv_and_b32 v11, 12, v8")
        def signal_wait(sown, vo, pre):
            lp, lo_ = a.label("xpoll"), a.label("xok")
            a("s_waitcnt vmcnt(0)\ns_barrier\ns_cmp_lg_u32 s%d, 0\ns_cbranch_scc1 %s_s" % (sWV, lo_))
            a("buffer_store_dword v10, v9, s[%d:%d], s%d offen sc1\n%s_s:" % (SO, SO + 3, sown, lo_))
            for x in pre: a(x)
            a("s_cmp_lg_u32 s%d, 0\ns_cbranch_scc1 %s" % (sWV, lo_))
            a("s_and_b32 s%d, s%d, 0xffffff80\ns_mov_b32 s%d, 0x80000\n%s:" % (sT0, sown, sT1, lp))
            a("buffer_load_dword v12, v%d, s[%d:%d], s%d offen sc1\ns_waitcnt vmcnt(0)\nv_cmp_gt_u32 vcc, 1, v12\ns_cbranch_vccz %s" % (vo, SO, SO + 3, sT0, lo_))
            a("s_sleep %d\ns_sub_u32 s%d, s%d, 1\ns_cmp_lg_u32 s%d, 0\ns_cbranch_scc1 %s\n%s:" % (SLP, sT1, sT1, sT1, lp, lo_))
            a("s_waitcnt vmcnt(0)\ns_barrier")
        a("s_cmp_eq_u32 s%d, 0\ns_cselect_b32 s%d, 2, 0\ns_cselect_b32 s%d, 0, 0x20000000\nv_add_u32 v192, s%d, v8\nv_or_b32 v193, s%d, v9\nv_mov_b32 v194, 2\ns_and_b32 s%d, s%d, 0xffffff80" % (sWV, sG1, sT0, sT0, sT0, sG2, sFG))
        for x in L2[:LSPL]: a(x)
        signal_wait(sFG, 8, flat(a_dma(0) + a_dma(1)) + L2[LSPL:])
        st_("sync")
        for x in flat(a_dma(2) + a_dma(3)) + LST: a(x)
        curA, curW = [0], [0]
        def reads(k):
            st, ks = k // 4, k % 4
            L = []
            def win(base, cur, regs_):
                w_ = base // 65536
                if w_ != cur[0]:
                    d = (w_ - cur[0]) * 65536
                    for r in regs_: L.append(("v_add_u32 v%d, 0x%x, v%d" % (r, d, r)) if d > 0 else ("v_subrev_u32 v%d, 0x%x, v%d" % (r, -d, r)))
                    cur[0] = w_
                return base % 65536
            oa = win(ARING[st % 4], curA, vA); ow = win(WRING[st % 6], curW, vW)
            F = FP + 16 * (k % 4)
            tr = lambda cb: ["ds_read_b64_tr_b16 %s, v%d offset:%d" % (vr(F + 8 + 4 * cb + 2 * r_, 2), vW[cb], ow + ks * 4096 + r_ * 2048) for r_ in range(2)]
            return L + tr(0) + ["ds_read_b128 %s, v%d offset:%d" % (vr(F + 4 * rb, 4), vA[rb], oa + ks * 1024) for rb in range(2)] + tr(1)
        for x in reads(0) + reads(1): a(x)
        vmq = [2] * 4 + [3] * 4 + [4] * 2
        pend = []
        for k in range(72):
            st, ks = k // 4, k % 4
            if ks == 2 and st + 1 < 18:
                idx = max([j for j, z in enumerate(vmq) if z <= st + 1], default=-1)
                a("s_waitcnt vmcnt(%d) lgkmcnt(6)" % (len(vmq) - 1 - idx))
                if st == 13: poll_check(4)
                a("s_barrier")
                if st == 3:
                    a("buffer_store_dword v194, v193, s[%d:%d], s%d offen sc1" % (SO, SO + 3, sFG)); vmq.append(99)
                if st == 10:
                    a(poll_load(4)); vmq.append(14)
                pend = []
                if st >= 1:
                    if st + 3 < 18: pend += [(g, st + 3) for g in a_dma(st + 3)]
                    if st + 5 < 18: pend += [(g, st + 5) for g in w_dma(st + 5)]
            else: a("s_waitcnt lgkmcnt(%d)" % (6 if k + 1 < 72 else 0))
            F = FP + 16 * (k % 4)
            R = reads(k + 2) if k + 2 < 72 else []
            take = pend[:4]; pend = pend[4:]
            for n, b in enumerate((0, 1, 2, 3) if k < 71 else (1, 2, 3, 0)):
                acc = vr(ACC + b * 16, 16)
                a("%s %s, %s, %s, %s" % (MF32, acc, vr(F + 8 + 4 * (b >> 1), 4), vr(F + 4 * (b & 1), 4), "0" if k == 0 else acc))
                for x in R[(len(R) * n) // 4:(len(R) * (n + 1)) // 4]: a(x)
                if n < len(take):
                    for x in take[n][0]:
                        a(x)
                        if isvm(x): vmq.append(take[n][1])
        st_("pm")
        a("s_nop 7")
        for j in range(1, 4):
            a("s_xor_b32 s%d, s%d, %d\ns_mul_i32 s%d, s%d, 49152\ns_add_u32 s%d, s%d, s%d\ns_add_u32 s%d, s%d, %d" % (sT0, sQ, j, sT0, sT0, sT0, sT0, sXO, sT0, sT0, (j - 1) * 16384))
            for r in range(8): a("v_cvt_pk_bf16_f32 v%d, v%d, v%d" % (FP + 8 * j + r, ACC + j * 16 + 2 * r, ACC + j * 16 + 2 * r + 1))
            for c in range(2): a("buffer_store_dwordx4 %s, v%d, s[%d:%d], s%d offen offset:%d sc1" % (vr(FP + 8 * j + 4 * c, 4), vK, SO, SO + 3, sT0, c * 1024))
        signal_wait(sFX, 11, [])
        st_("xs")
        a("s_mul_i32 s%d, s%d, 49152\ns_add_u32 s%d, s%d, s%d" % (sT0, sQ, sT0, sT0, sXO))
        for j in range(1, 4):
            for c in range(2): a("buffer_load_dwordx4 %s, v%d, s[%d:%d], s%d offen offset:%d sc1" % (vr(ACC + j * 16 + 4 * c, 4), vK, SO, SO + 3, sT0, c * 1024))
            a("s_add_u32 s%d, s%d, 16384" % (sT0, sT0))
        for j in range(1, 4):
            a("s_waitcnt vmcnt(%d)" % (2 * (3 - j)))
            for r in range(8):
                t = ACC + j * 16 + r
                a("v_lshlrev_b32 v12, 16, v%d\nv_and_b32 v13, 0xffff0000, v%d\nv_add_f32 v%d, v%d, v12\nv_add_f32 v%d, v%d, v13" % (t, t, ACC + 2 * r, ACC + 2 * r, ACC + 2 * r + 1, ACC + 2 * r + 1))
        for r in range(8): a("v_cvt_pk_bf16_f32 v%d, v%d, v%d" % (FP + r, ACC + 2 * r, ACC + 2 * r + 1))
        a("s_nop 1")
        for pr in range(2): a("v_permlane32_swap_b32 v%d, v%d\nv_permlane32_swap_b32 v%d, v%d" % (FP + 4 * pr, FP + 4 * pr + 2, FP + 4 * pr + 1, FP + 4 * pr + 3))
        for pr in range(2): a("buffer_store_dwordx4 %s, v6, s[%d:%d], s%d offen offset:%d" % (vr(FP + 4 * pr, 4), SOUT, SOUT + 3, sOUT, 32 * pr))
    T.dump(SO, sWV, 4)
    a(done + ":\ns_endpgm")
    a(lRare + ":")
    for (ls, lb, kind) in spins:
        lp = a.label("sp")
        a(ls + ":\ns_mov_b32 s%d, 0x40000\n%s:" % (sT2, lp))
        a("s_sleep 8\n" + poll_load(kind) + "\ns_waitcnt vmcnt(0)\n%s\ns_cbranch_vccz %s" % (poll_cmp(kind), lb))
        a("s_sub_u32 s%d, s%d, 1\ns_cmp_lg_u32 s%d, 0\ns_cbranch_scc1 %s\ns_branch %s" % (sT2, sT2, sT2, lp, lb))
    for (ls, lb) in rels:
        a("%s:\nbuffer_wbl2 sc1\ns_waitcnt vmcnt(0)\ns_branch %s" % (ls, lb))
    sRET = 44
    for (p, sm, qk), (lr, users) in rare.items():
        for rid, (lj, lb) in enumerate(users):
            a("%s:\ns_mov_b32 s%d, %d\ns_branch %s" % (lj, sRET, rid, lr))
        a(lr + ":")
        a("s_nop 7\ns_nop 7")
        Sc, Sn = S[p], S[1 - p]
        for rb in range(2 if sm == 1 else 1):
            cur = [Sc + rb * 32 + j for j in range(32)] if sm == 1 else [Sc + j for j in range(64)]
            d, f = vX, vX + 2
            rowmax(d, cur)
            a("v_max_f32 v%d, 0, v%d\nv_exp_f32 v%d, -v%d" % (d, d, f, d))
            for r in cur: a("v_sub_f32 v%d, v%d, v%d" % (r, r, d))
            for j in range(16): a("v_sub_f32 v%d, v%d, v%d" % (NM + rb * 16 + j, NM + rb * 16 + j, d))
            nx = []
            if qk == 1: nx = [Sn + rb * 32 + j for j in range(32)]
            elif qk == 2 and rb == 0: nx = [Sn + j for j in range(64)]
            for r in nx: a("v_sub_f32 v%d, v%d, v%d" % (r, r, d))
            a("v_mul_f32 v%d, v%d, v%d" % (vL[rb], vL[rb], f))
            for j in range(0, 64, 4):
                for q in range(4): a("v_accvgpr_read_b32 v%d, a%d" % (TM + q, O + rb * 64 + j + q))
                for q in range(4): a("v_mul_f32 v%d, v%d, v%d" % (TM + q, TM + q, f))
                for q in range(4): a("v_accvgpr_write_b32 a%d, v%d" % (O + rb * 64 + j + q, TM + q))
        for c, x in sm_list(p, sm): a(x)
        for rid, (lj, lb) in enumerate(users):
            if rid < len(users) - 1: a("s_cmp_eq_u32 s%d, %d\ns_cbranch_scc1 %s" % (sRET, rid, lb))
            else: a("s_branch %s" % lb)
    a.add_kernel(name, 512, 102, 256)
    a.launch(name, 256, 256, 163840)
```

```python
from gen_common import *
from sched import Sched
MF16 = "v_mfma_f32_16x16x32_bf16"

pX, pWQKV, pWO0, pC, pWQ, pWUK, pWUV, pBWO, pGATE, pDBG, pWS = 36, 38, 40, 44, 46, 48, 50, 52, 54, 58, 60
pWO = 58
NEG = "0xff800000"
THRESH = fbits(2.0 ** 48)
WSL = (98304, 131072)
LDS_G = WSL[0] + 24576
def aslot(g): return ((g + 2) % 3) * 32768

HACK16 = [0, 0]
def emit(a, M, streams):
    if HACK16[0]:
        import re
        M2 = []
        HACK16[1] += 1
        for t in M:
            m = re.match(r"(\S+) ([av])\[(\d+):\d+\], (\S+), (\S+), (\S+)", t)
            for q in range(2):
                b = int(m.group(3)) + 8 * (HACK16[1] % 2) + 4 * q
                d = "%s[%d:%d]" % (m.group(2), b, b + 3)
                M2.append("v_mfma_f32_16x16x32_bf16 %s, %s, %s, %s" % (d, m.group(4), m.group(5), d))
        M = M2
        streams = [([x for g in G for x in (g if isinstance(g, list) else [g])], 2 * l, 2 * h) for (G, l, h) in streams]
    n = len(M)
    fill = [[] for _ in range(n)]
    for (G, l, h) in streams:
        if not G: continue
        for g, m in zip(G, spread(len(G), l, min(h, n))):
            fill[m] += g if isinstance(g, list) else [g]
    for m in range(n):
        a(M[m])
        for x in fill[m]: a(x)
def isvm(x): return x.startswith("buffer_") or x.startswith("global_")

def gen_fused(a, name="p1_kernel", ts=False, NSK=30, WSP=16, PF=1, PKMUL=0, next_kernel=None, PD=8, TS2=0, EARLY1=1, SENT=1, XSL0=6, LSPL=100, WL2=1, FUSE=1, SLP=4, QSL=(4, 6, 5), endlabel=None, NOTR=1, CRF=1, PDW=5, GPUB=11, VERB=0, H16=0, W16=0, TS3=0, WP=2, NEWP=1, WPF=None, LNT="", NTG=8, LATEAT=0, STAMPS=("start","q","attn","mid","s17"), XSL=3, XL2=0, ST=""):
    a.begin_kernel(name)
    T = TS(a, ts, 0, base=72)
    def st_(nm):
        if nm in STAMPS: T.stamp(STAMPS.index(nm))
    done = a.label("fdone")
    lAttn, lRare = a.label("attn"), a.label("rarecode")
    sWV = 3
    SA, SW, SX, SO, SD = 4, 8, 12, 16, 40
    sH, sI, sT0, sT1, sT2 = 20, 21, 22, 23, 24
    sAS, sAS2, sWS, sXS, sAM, sWM, sXM, sCNT, sOK, sDS, sSC = 25, 26, 27, 28, 29, 30, 31, 32, 33, 34, 35
    sQL, sQS, sU, sOA, sAD, sWD, sOJ, sVD, sFA, sGR = 92, 93, 94, 95, 96, 97, 56, 57, 63, 99
    sKO, sVO, sW4, sW8, sTH, sT = 48, 49, 50, 51, 54, 55
    vL16 = 1
    vAO, vWO, vXO = (2, 3, 4, 5), (6, 7, 8, 9), (10, 11)
    vAR, vWR, vXR = (12, 13), tuple(range(14, 22)), (22, 23, 24, 25)
    vOS, vOK = 26, 27
    QS = (28, 44); WR, NWR = 60, 8; TT, PK = 96, 104
    KS = (128, 160)
    vFO, vONE, vPFD, vTS, vW12, vPL, vPLO = 120, 121, 122, 123, 124, 125, 126
    sWS2, sOK2 = 62, 98
    QA = 128
    t2 = [0]
    def bar(waitstr):
        if TS2:
            n = t2[0]; t2[0] += 1
            if n > 0: a("v_writelane_b32 v123, s72, %d\nv_writelane_b32 v123, s74, %d" % (2 * n - 2, 2 * n - 1))
            a("s_memtime s[72:73]")
        a(waitstr + "\ns_barrier")
        if TS2: a("s_memtime s[74:75]")
    a("s_cmp_ge_u32 s2, 256\ns_cbranch_scc1 %s" % done)
    st_("start")
    a("s_load_dwordx16 s[36:51], s[0:1], 0\ns_load_dwordx8 s[52:59], s[0:1], 64\ns_load_dwordx2 s[60:61], s[0:1], 96")
    a("v_lshrrev_b32 v30, 6, v0\nv_and_b32 v0, 63, v0\nv_readfirstlane_b32 s%d, v30" % sWV)
    a("s_and_b32 s%d, s2, 7\ns_lshl_b32 s%d, s%d, 2\ns_lshr_b32 s%d, s2, 3\ns_and_b32 s%d, s%d, 3\ns_add_u32 s%d, s%d, s%d" % (sH, sH, sH, sT0, sT0, sT0, sH, sH, sT0))
    a("s_lshr_b32 s%d, s2, 5" % sI)
    a("v_lshlrev_b32 v%d, 4, v0" % vL16)
    a("v_lshrrev_b32 v30, 3, v0\nv_lshrrev_b32 v31, 4, v0\nv_and_b32 v32, 7, v0")
    a("v_xor_b32 v33, v31, v32\nv_lshlrev_b32 v33, 4, v33\nv_lshl_add_u32 v%d, v30, 10, v33" % vAO[0])
    a("v_add_u32 v%d, %d, v%d\nv_xor_b32 v33, 64, v%d\nv_add_u32 v%d, %d, v33\nv_add_u32 v%d, %d, v33" % (vAO[1], 7168, vAO[0], vAO[0], vAO[2], 2 * 7168, vAO[3], 3 * 7168))
    a("v_and_b32 v33, 15, v0\nv_lshlrev_b32 v34, 2, v31\nv_xor_b32 v33, v33, v34\nv_lshlrev_b32 v33, 4, v33\nv_lshl_add_u32 v%d, v31, 13, v33" % vWO[0])
    a("v_add_u32 v%d, %d, v%d\nv_xor_b32 v33, 16, v%d\nv_add_u32 v%d, %d, v33\nv_add_u32 v%d, %d, v33" % (vWO[1], 31744, vWO[0], vWO[0], vWO[2], 2 * 31744, vWO[3], 3 * 31744))
    a("s_sub_u32 s%d, 15, s%d\ns_bitcmp1_b32 s%d, 0\ns_cselect_b32 s%d, s%d, s%d\ns_lshl_b32 s%d, s%d, 1\ns_lshr_b32 s%d, s%d, 1\ns_add_u32 s%d, s%d, s%d" % (sT0, sI, sWV, sT0, sT0, sI, sT0, sT0, sT1, sWV, sT0, sT0, sT1))
    a("s_lshl_b32 s%d, s%d, 16\ns_add_u32 s%d, s%d, 32768" % (sAS, sT0, sAS2, sAS))
    a("s_lshl_b32 s%d, s%d, 13\ns_mov_b32 s%d, s%d" % (sAM, sWV, sWM, sAM))
    a("s_and_b32 s%d, s%d, 1\ns_lshl_b32 s%d, s%d, 18\ns_lshl_b32 s%d, s%d, 8\ns_add_u32 s%d, s%d, s%d" % (sT0, sWV, sT0, sT0, sWS, sH, sWS, sWS, sT0))
    a("s_and_b32 s%d, s2, 31\ns_add_u32 s%d, s%d, 0x20000" % (sU, sWS2, sWS))
    a("s_waitcnt lgkmcnt(0)")
    a("s_mov_b32 s100, s56\ns_mov_b32 s101, s57")
    srd(a, SA, pC, 0x200000)
    a("s_cmp_lt_u32 s%d, 2\ns_cselect_b32 s%d, s%d, s%d\ns_cselect_b32 s%d, s%d, s%d\ns_mov_b32 s%d, 0x400000\ns_mov_b32 s%d, 0x20000" % (sWV, SW, pWUK, pWUV, SW + 1, pWUK + 1, pWUV + 1, SW + 2, SW + 3))
    def dgrp(m0s, m0i, vo, srd_, so, stp, nd):
        G = ["s_add_u32 m0, s%d, %d" % (m0s, m0i)]
        G += ["buffer_load_dwordx4 v%d, s[%d:%d], s%d offen offset:%d lds ; need:%d" % (v, srd_, srd_ + 3, so, n * 1024, nd) for n, v in enumerate(vo)]
        G.append("s_add_u32 s%d, s%d, %d" % (so, so, stp))
        return G
    def fixm0(G):
        out = []
        for k, x in enumerate(G):
            out.append(x)
            if x.startswith("s_add_u32 m0"):
                if len(out) > 1 and out[-2].startswith("s_add_u32 s"): out[-1], out[-2] = out[-2], out[-1]
                else: out.append("s_nop 0")
        return out
    def dma_act(g): return fixm0(dgrp(sAM, aslot(g), vAO, SA, sAS, 128, g) + dgrp(sAM, aslot(g) + 4096, vAO, SA, sAS2, 128, g))
    def dma_w(g, withx=True):
        G = dgrp(sWM, WSL[g % 2], vWO, SW, sWS, 0x80000, g)
        if g < 8: G += dgrp(sWM, WSL[g % 2] + 4096, vWO, SW, sWS2, 0x80000, g)
        elif withx: G += dgrp(sXM, WSL[g % 2] + 16384, vXO, SX, sXS, 64 * 3072, g)
        return fixm0(G)
    for x in dma_w(0) + dma_act(0): a(x.split(";")[0])
    NSL = max(XL2 + 4 if XL2 else 0, max(QSL) + 1, XSL + 1)
    def preg(k): return 192 + 2 * k
    def pf(k): return "global_load_dword v122, %s, off" % vr(preg(k), 2)
    def pfa(k, base, vo, so, imm=0):
        r = preg(k)
        a("s_add_u32 s%d, s%d, %d\nv_mov_b32 v%d, s%d\nv_add_u32 v%d, s%d, v%d" % (sT2, so, imm, r + 1, base + 1, r, sT2, vo))
        a("v_add_co_u32 v%d, vcc, s%d, v%d\ns_nop 1\nv_addc_co_u32 v%d, vcc, 0, v%d, vcc" % (r, base, r, r + 1, r + 1))
    def pfnone(k): a("v_mov_b32 v%d, s%d\nv_mov_b32 v%d, s%d" % (preg(k), pGATE, preg(k) + 1, pGATE + 1))
    if PF:
        l1, l3, le = a.label("pf1"), a.label("pf3"), a.label("pfe")
        a("s_cmp_eq_u32 s%d, 1\ns_cbranch_scc1 %s\ns_cmp_eq_u32 s%d, 3\ns_cbranch_scc1 %s" % (sWV, l1, sWV, l3))
        a("v_and_b32 v26, 31, v0\nv_lshlrev_b32 v26, 7, v26\ns_lshl_b32 s%d, s2, 13\ns_lshl_b32 s%d, s%d, 11\ns_add_u32 s%d, s%d, s%d" % (sT0, sT1, sWV, sT0, sT0, sT1))
        pfa(0, pC, 26, sT0, 0); a(pf(0))
        pfa(XSL, pX, 26, sT0, 0)
        used = {0, XSL}
        if XL2:
            a("s_lshr_b32 s%d, s2, 3\ns_lshl_b32 s%d, s%d, 16\ns_lshl_b32 s%d, s%d, 6\ns_add_u32 s%d, s%d, s%d\nv_lshlrev_b32 v26, 10, v0" % (sT0, sT0, sT0, sT1, sWV, sT1, sT0, sT1))
            for j in range(4):
                pfa(XL2 + j, pX, 26, sT1, 256 * j); used.add(XL2 + j)
        for k in range(NSL):
            if k not in used: pfnone(k)
        a("s_branch %s\n%s:" % (le, l1))
        a("v_lshlrev_b32 v26, 13, v30\nv_lshl_add_u32 v26, v32, 7, v26")
        a("s_bitcmp1_b32 s2, 3\ns_cselect_b32 s98, s%d, s%d\ns_cselect_b32 s99, s%d, s%d" % (pWUV, pWUK, pWUV + 1, pWUK + 1))
        a("s_and_b32 s%d, s2, 7\ns_lshl_b32 s%d, s%d, 10\ns_lshr_b32 s%d, s2, 4\ns_and_b32 s%d, s%d, 7\ns_lshl_b32 s%d, s%d, 16\ns_lshl_b32 s%d, s%d, 16" % (sT1, sT1, sT1, sT0, sCNT, sT0, sT0, sT0, sCNT, sCNT))
        a("s_add_u32 s%d, s%d, s%d\ns_add_u32 s%d, s%d, s%d" % (sT0, sT0, sT1, sCNT, sCNT, sT1))
        pfa(0, 98, 26, sT0, 1 * 0x80000); a(pf(0))
        pfa(1, 98, 26, sT0, 3 * 0x80000); pfa(2, 98, 26, sT0, 5 * 0x80000); pfa(3, 98, 26, sCNT, 7 * 0x80000)
        for k in range(4, NSL): pfnone(k)
        a("s_branch %s\n%s:" % (le, l3))
        lpc = a.label("pc")
        a("s_getpc_b64 s[98:99]\n%s:" % lpc)
        a("s_lshr_b32 s%d, s2, 3\nv_lshlrev_b32 v26, 5, v0\nv_add_u32 v26, s%d, v26\nv_lshlrev_b32 v26, 7, v26\ns_mov_b32 s%d, 0" % (sT0, sT0, sT0))
        a("v_min_u32 v27, %s-%s, v26" % (lAttn, lpc))
        pfa(0, 98, 27, sT0, 0); a(pf(0))
        a("v_lshlrev_b32 v26, 13, v30\nv_lshl_add_u32 v26, v32, 7, v26")
        a("s_lshr_b32 s%d, s2, 3\ns_lshl_b32 s%d, s%d, 16\ns_and_b32 s%d, s2, 7\ns_lshl_b32 s%d, s%d, 10\ns_add_u32 s%d, s%d, s%d" % (sT0, sT0, sT0, sT1, sT1, sT1, sT0, sT0, sT1))
        pfa(QSL[0], pWQ, 26, sT0, 0); pfa(QSL[1], pWQ, 26, sT0, 4 * 0x80000)
        a("s_min_u32 s%d, s%d, 23\ns_lshl_b32 s%d, s%d, 7\ns_mul_i32 s%d, s%d, %d\ns_add_u32 s%d, s%d, s%d\nv_mul_u32_u24 v26, 3072, v0" % (sT0, sU, sT0, sT0, sT1, sI, 64 * 3072, sT0, sT0, sT1))
        pfa(QSL[2], pWQKV, 26, sT0, 0)
        for k in range(1, NSL):
            if k not in QSL: pfnone(k)
        a(le + ":")
    def pfp(p): return [pf(p + 2)] if (PF and p + 2 < NSL) else []
    srd(a, SO, pWS, WS_SIZE)
    a("v_and_b32 v33, 1, v31\nv_lshlrev_b32 v33, 2, v33\nv_xor_b32 v33, v33, v32\nv_lshlrev_b32 v33, 4, v33\ns_movk_i32 s%d, 3072\nv_mad_u32_u24 v%d, v30, s%d, v33" % (sT0, vXO[0], sT0))
    a("v_xor_b32 v33, 16, v%d\nv_add_u32 v%d, %d, v33" % (vXO[0], vXO[1], 24576 - 1024))
    a("v_and_b32 v33, 1, v30\nv_lshl_add_u32 v33, v33, 4, v32")
    a("v_and_b32 v34, 15, v0\nv_lshrrev_b32 v34, 1, v34\nv_xor_b32 v34, v34, v31\nv_lshlrev_b32 v34, 4, v34\nv_lshl_add_u32 v34, v33, 7, v34")
    a("s_and_b32 s%d, s%d, 1\ns_lshl_b32 s%d, s%d, 14\ns_add_u32 s%d, s%d, %d" % (sT0, sWV, sT0, sT0, sT0, sT0, aslot(0)))
    a("v_add_u32 v%d, s%d, v34\nv_xor_b32 v%d, 64, v%d" % (vAR[0], sT0, vAR[1], vAR[0]))
    a("v_lshlrev_b32 v33, 4, v33\nv_lshl_add_u32 v%d, v31, 9, v33" % vOS)
    a("v_and_b32 v34, 1, v31\nv_lshl_add_u32 v33, v34, 10, v33\nv_lshrrev_b32 v35, 5, v0\nv_lshl_add_u32 v33, v35, 9, v33")
    a("s_cmp_lt_u32 s%d, 2\ns_cselect_b64 vcc, -1, 0\nv_cndmask_b32 v%d, v%d, v33, vcc" % (sWV, vOK, vOS))
    a("v_lshrrev_b32 v35, 2, v0\nv_and_b32 v35, 3, v35\nv_lshl_add_u32 v36, v31, 3, v35")
    a("v_and_b32 v37, 2, v0\nv_xor_b32 v37, v37, v34\nv_and_b32 v38, 1, v0\nv_lshlrev_b32 v38, 3, v38")
    a("v_lshlrev_b32 v39, 2, v35\nv_xor_b32 v39, v39, v37\nv_lshlrev_b32 v39, 4, v39\nv_lshl_add_u32 v39, v36, 8, v39")
    a("s_lshr_b32 s%d, s%d, 1\ns_lshl_b32 s%d, s%d, 14\ns_add_u32 s%d, s%d, %d\nv_add3_u32 v39, v39, v38, s%d" % (sWD, sWV, sWD, sWD, sT0, sWD, WSL[0], sT0))
    for k in range(8): a("v_xor_b32 v%d, %d, v39" % (vWR[k], 64 * (k // 2) + 16 * (k % 2)))
    a("v_lshrrev_b32 v39, 1, v35\nv_lshlrev_b32 v39, 2, v39\nv_xor_b32 v39, v39, v37\nv_lshlrev_b32 v39, 4, v39\nv_lshl_add_u32 v39, v36, 7, v39\nv_add_u32 v39, v39, v38\nv_add_u32 v39, %d, v39" % (WSL[0] + 16384))
    for k in range(4): a("v_xor_b32 v%d, %d, v39" % (vXR[k], 64 * (k // 2) + 16 * (k % 2)))
    a("s_lshl_b32 s%d, s%d, 2\ns_add_u32 s%d, s%d, s%d\ns_sub_u32 s%d, 60, s%d\ns_add_u32 s%d, s%d, s%d" % (sT1, sI, sQS, sT1, sWV, sQL, sT1, sQL, sQL, sWV))
    a("s_lshr_b32 s%d, s%d, 1\ns_lshl_b32 s%d, s%d, 5\ns_add_u32 s%d, s%d, s%d\ns_add_u32 s%d, s%d, 44\ns_lshl_b32 s%d, s%d, 19" % (sT0, sWV, sT0, sT0, sT0, sT0, sH, sT0, sT0, sOK, sT0))
    a("s_and_b32 s%d, s%d, 1\ns_lshl_b32 s%d, s%d, 1\ns_add_u32 s%d, s%d, s%d\ns_lshl_b32 s%d, s%d, 14\ns_add_u32 s%d, s%d, s%d" % (sT0, sWV, sT1, sI, sT0, sT0, sT1, sT0, sT0, sOK, sOK, sT0))
    a("s_lshl_b32 s%d, s%d, 16\ns_sub_u32 s%d, %d, s%d" % (sT0, sI, sOJ, 60 * 8192 - 4096, sT0))
    a("s_lshl_b32 s%d, s%d, 13\ns_and_b32 s%d, s%d, 1\ns_lshl_b32 s%d, s%d, 14\ns_sub_u32 s%d, s%d, s%d\ns_add_u32 s%d, s%d, %d" % (sT0, sWV, sT1, sWV, sT1, sT1, sAD, sT0, sT1, sAD, sAD, aslot(8) - aslot(7)))
    a("s_lshl_b32 s%d, s%d, 6\nv_add_u32 v%d, s%d, v0\nv_lshlrev_b32 v%d, 12, v%d\nv_mov_b32 v%d, 1" % (sT0, sWV, vFO, sT0, vFO, vFO, vONE))
    lpc2 = a.label("pc")
    a("s_getpc_b64 s[0:1]\n%s:" % lpc2)
    a("s_lshr_b32 s%d, s2, 3\ns_lshl_b32 s%d, s%d, 2\ns_add_u32 s%d, s%d, s%d\nv_and_b32 v127, 15, v0\nv_lshlrev_b32 v127, 7, v127\nv_add_lshl_u32 v127, v127, s%d, 7" % (sT0, sT0, sT0, sT0, sT0, sWV, sT0))
    a("v_min_u32 v127, %s-%s, v127" % (endlabel or lRare, lpc2))
    srd(a, SX, pGATE, 1024)
    a("s_mov_b32 s98, s%d\ns_mov_b32 s99, s%d" % (pWO0, pWO0 + 1))
    srd(a, SD, pDBG, 256)
    a("s_mov_b32 s%d, s98\ns_mov_b32 s%d, s99" % (pWO, pWO + 1))
    a("s_getreg_b32 s%d, hwreg(HW_REG_XCC_ID, 0, 4)\ns_mul_i32 s%d, s%d, s%d\ns_lshl_b32 s%d, s%d, 8\ns_add_u32 s%d, s%d, s%d\ns_lshl_b32 s%d, s%d, 8\ns_add_u32 s%d, s%d, 1" % (sT0, sT1, sT0, sT0, sT1, sT1, sT1, sT1, sT0, sT1, sT1, sFA, sT1))
    a("v_mov_b32 v125, s%d\ns_lshl_b32 s%d, s%d, 3\ns_and_b32 s%d, s2, 7\ns_lshl_b32 s%d, s%d, 2\ns_lshl_b32 s%d, s%d, 2" % (sFA, sFA, sFA, sGR, sGR, sGR, sCNT, sH))
    a("v_and_b32 v126, 3, v0\nv_add_lshl_u32 v126, v126, s%d, 2\ns_lshl_b32 s%d, s%d, 12\nv_add_u32 v126, s%d, v126\nv_mov_b32 v124, s%d" % (sGR, sT0, sWV, sT0, sT0))
    a("buffer_atomic_add v125, v%d, s[%d:%d], s%d offen offset:128 sc1\ns_add_u32 s%d, s%d, 8192" % (vFO, SD, SD + 3, sCNT, sOK2, sOK))

    def wofs(g): return (g % 2) * 32768
    def xa(g, ks):
        if g == 7: return "v_add_u32 v%d, s%d, v%d" % (vAR[ks], sAD, vAR[ks])
        d = aslot(g + 1) - aslot(g)
        return ("v_add_u32 v%d, 0x%x, v%d" % (vAR[ks], d, vAR[ks])) if d > 0 else ("v_subrev_u32 v%d, 0x%x, v%d" % (vAR[ks], -d, vAR[ks]))
    def rd_act(g, ks):
        F = (KS if g < 8 else QS)[ks]
        return ["ds_read_b128 %s, v%d offset:%d" % (vr(F + 4 * n, 4), vAR[ks], (n // 2) * 4096 + (n % 2) * 1024) for n in range(8 if g < 8 else 4)]
    def rd_w(g, ks, wf, slot):
        r = WR + 4 * (slot % NWR)
        if wf < 8: return ["ds_read_b64_tr_b16 %s, v%d offset:%d" % (vr(r + 2 * rd_, 2), vWR[wf], wofs(g) + ks * 8192 + rd_ * 1024) for rd_ in range(2)]
        if wf < 12: return ["ds_read_b64_tr_b16 %s, v%d offset:%d" % (vr(r + 2 * rd_, 2), vXR[wf - 8], wofs(g) + ks * 4096 + rd_ * 512) for rd_ in range(2)]
        return ["ds_read_b128 %s, v%d offset:%d" % (vr(r, 4), vXR[0], ((g - 8) * 2 + ks) * 64)]
    def mfs(g, ks, wf, slot, var):
        w = vr(WR + 4 * (slot % NWR), 4); F = (KS if g < 8 else QS)[ks]; first = (g % 8 == 0 and ks == 0)
        cb, tc = (wf % 8) // 2, wf % 2
        M = []
        for n in range(8 if g < 8 else 4):
            rb, tr = n // 2, n % 2
            x = vr(F + 4 * n, 4)
            sw = (var == "V") or (var == "S" and wf >= 8)
            tb, ta = (tc, tr) if sw else (tr, tc)
            if g < 8: acc = ar(((rb // 2) * 16 + cb * 4 + (rb % 2) * 2 + tb) * 8 + ta * 4, 4)
            elif wf < 8: acc = vr(QA + ((rb * 4 + cb) * 2 + tr) * 8 + tc * 4, 4)
            elif wf < 12: acc = ar((cb * 4 + rb * 2 + tb) * 8 + ta * 4, 4)
            else: acc = ar(4 * n, 4)
            M.append("%s %s, %s, %s, %s" % (MF16, acc, x if sw else w, w if sw else x, "0" if first else acc))
        return M
    def order(g, var):
        nw = list(range(8)) + ([8, 9, 10, 11] if var in "NS" else [12] if var == "G" else [])
        if g == 7: return [(ks, 2 * cb + t) for cb in range(4) for ks in range(2) for t in range(2)]
        if g == 15 and var in "NS":
            return [(ks, wf) for ks in range(2) for wf in range(8, 12)] + [(ks, 2 * cb + t) for cb in range(4) for ks in range(2) for t in range(2)]
        return [(ks, wf) for ks in range(2) for wf in nw]
    def build(g0, var):
        fr = [(g, ks, wf) for g in range(g0, g0 + 8) for (ks, wf) in order(g, var)]
        M = []; fm = []
        for k, (g, ks, wf) in enumerate(fr):
            fm.append(len(M)); M += mfs(g, ks, wf, k, var)
        S_ = Sched(M); n = len(M)
        look = [(8, 0, wf) for wf in range(PDW)] if g0 == 0 else []
        allf = fr + look
        cs = {};
        for k, (g, ks, wf) in enumerate(allf): cs.setdefault(g, k)
        bar_m = {g: fm[cs[g] - PDW + 1] for g in cs if g > g0}
        for g, m in bar_m.items(): S_.bars[m] = g
        na = 8 if g0 == 0 else 4
        items = []
        for k in range(PDW, len(allf)):
            g, ks, wf = allf[k]
            t = fm[k - PDW]; e = bar_m.get(g, 0); use = fm[k] if k < len(fr) else n + 1 + (k - len(fr))
            if k == cs[g] and g == 8: items += [(max(t, e), 0, j, ("v_subrev_u32 v%d, s%d, v%d" % (r, sWD, r), t, e, None)) for j, r in enumerate(vWR)]
            items += [(max(t, e), 1 if k == cs[g] else 3, 2 * k + j, (x, t, e, use)) for j, x in enumerate(rd_w(g, ks, wf, k))]
        for g in cs:
            for ks in range(2):
                if g == g0 and ks == 0: continue
                if g == 8 and g0 == 0 and ks == 1: continue
                R = rd_act(g, ks) + ([xa(g, ks)] if g < 15 else [])
                k1 = [k for k, f in enumerate(allf) if f[0] == g and f[1] == ks][0]
                u0 = fm[k1] if k1 < len(fr) else None
                for j, x in enumerate(R):
                    if ks == 0: t = e = bar_m[g]
                    else:
                        e = fm[cs[g]]; t = e + (j * min(u0 - e - 8, 40)) // len(R)
                    use = None if not x.startswith("ds_") else (u0 + j if u0 is not None else n)
                    items.append((max(t, e), 2, j, (x, t, e, use)))
        items.sort(key=lambda z: z[:3])
        S_.rq = [z[3] for z in items]
        S_.waitpts = [fm[k] for k in range(0, len(fr), 2 if var != "G" else 1) ]
        S_.place_reads()
        return S_, {g: fm[cs[g]] for g in range(g0, g0 + 8)}, bar_m, fm
    def pack(areg, pk, scale=None):
        t = TT
        G = ["v_accvgpr_read_b32 v%d, a%d" % (t + j, areg + j) for j in range(8)]
        if scale is not None: G += ["v_mul_f32 v%d, s%d, v%d" % (t + j, scale, t + j) for j in range(8)]
        G += ["v_cvt_pk_bf16_f32 v%d, v%d, v%d" % (pk + j, t + 2 * j, t + 2 * j + 1) for j in range(4)]
        return G
    def kv_unit(j, nd=None):
        cb, rb, tb = (j % 16) // 4, (j // 2) % 2, j % 2
        pk = PK + 4 * (j % 4)
        G = pack(j * 8, pk) + ["buffer_store_dwordx4 %s, v%d, s[%d:%d], s%d offen offset:%d%s" % (vr(pk, 4), vOK, SO, SO + 3, (sOK, sOK2)[rb], (cb % 2) * 2048 + tb * 128, " ; need:%d" % nd if nd else "")]
        if j == 15: G += ["s_add_u32 s%d, s%d, s%d" % (sOK, sOK, sOJ), "s_add_u32 s%d, s%d, s%d" % (sOK2, sOK2, sOJ)]
        elif j % 16 == 7: G += ["s_add_u32 s%d, s%d, 4096" % (sOK, sOK), "s_add_u32 s%d, s%d, 4096" % (sOK2, sOK2)]
        return G
    qa_setup = [["s_mov_b32 s%d, s%d" % (SA, pX), "s_mov_b32 s%d, s%d" % (SA + 1, pX + 1),
                 "s_lshl_b32 s%d, s%d, 15" % (sAS, sQL), "s_lshl_b32 s%d, s%d, 15" % (sAS2, sQS)]]
    qw_setup = [["s_mov_b32 m0, %d" % LDS_G, "s_mov_b32 s%d, s%d" % (SW, pWQ), "buffer_load_dwordx4 v%d, s[%d:%d], 0 offen lds ; need:8" % (vL16, SX, SX + 3), "s_mov_b32 s%d, s%d" % (SW + 1, pWQ + 1)],
                ["s_lshl_b32 s%d, s%d, 17" % (sT0, sWV), "s_lshl_b32 s%d, s%d, 8" % (sWS, sH), "s_add_u32 s%d, s%d, s%d" % (sWS, sWS, sT0), "s_lshl_b32 s%d, s%d, 12" % (sWM, sWV)],
                ["s_mov_b32 s%d, s%d" % (SX, pWQKV), "s_mov_b32 s%d, s%d" % (SX + 1, pWQKV + 1), "s_lshl_b32 s%d, s%d, 11" % (sXM, sWV), "s_mul_i32 s%d, s%d, %d" % (sXS, sWV, 16 * 3072)],
                ["s_lshl_b32 s%d, s%d, 7" % (sT0, sU), "s_add_u32 s%d, s%d, s%d" % (sXS, sXS, sT0),
                 "s_and_b32 s%d, s%d, 3" % (sT0, sH), "s_cmp_eq_u32 s%d, 3" % sT0, "s_cselect_b32 s%d, 0, 0x180000" % (SX + 2)]]
    at_setup = [["v_cmp_ne_u32 vcc, s%d, v125" % sFA], ["s_cmp_eq_u64 vcc, 0", "s_cselect_b32 s%d, 1, s%d" % (sFA, sWV)],
                ["s_cmp_eq_u32 s%d, 0" % sWV, "s_cselect_b32 s46, 8, 0", "s_cselect_b32 s47, 0x80000000, 0"],
                ["s_lshl_b32 s%d, s%d, 12" % (sW4, sWV), "s_lshl_b32 s%d, s%d, 13" % (sW8, sWV), "s_lshl_b32 s%d, s%d, 19" % (sT0, sH)],
                ["s_lshl_b32 s%d, s%d, 15" % (sVD, sI), "s_add_u32 s%d, s%d, s%d" % (sT0, sT0, sVD)],
                ["s_add_u32 s%d, s%d, 0x%x" % (sKO, sT0, OFF_K), "s_add_u32 s%d, s%d, 0x%x" % (sVO, sT0, OFF_V), "s_mov_b32 s%d, %s" % (sTH, THRESH)]]
    sRA, sHP, sA0, sA1, sGB, sGA_, sGL_, sGS_, sP0, sP1_, sX0, sX1 = 36, 37, 38, 39, 64, 65, 66, 67, 68, 69, 70, 71
    sXO, sXR = 62, 95
    sFG, sFX, sRBK, sTIL = 96, 97, 60, 61
    late_setup = [["s_lshr_b32 s%d, s%d, 3" % (sX1, sH), "s_lshl_b32 s%d, s%d, 3" % (sFG, sX1), "s_add_u32 s%d, s%d, s%d" % (sFG, sFG, sI), "s_lshl_b32 s%d, s%d, 5" % (sFG, sFG),
                 "s_and_b32 s%d, s%d, 7" % (sX0, sH), "s_add_u32 s%d, s%d, s%d" % (sFG, sFG, sX0), "s_lshl_b32 s%d, s%d, 2" % (sFG, sFG), "s_add_u32 s%d, s%d, 0x%x" % (sFG, sFG, OFF_FL),
                 "s_sub_u32 s%d, 15, s%d" % (sX0, sI)], ["s_bitcmp1_b32 s2, 0", "s_cselect_b32 s%d, s%d, s%d" % (sRBK, sX0, sI)], ["s_lshl_b32 s%d, s%d, 2" % (sFX, sRBK),
                 "s_and_b32 s%d, s%d, 3" % (sX0, sH), "s_add_u32 s%d, s%d, s%d" % (sTIL, sFX, sX0), "s_lshl_b32 s%d, s%d, 5" % (sFX, sTIL), "s_add_u32 s%d, s%d, s%d" % (sFX, sFX, sX1),
                 "s_lshl_b32 s%d, s%d, 2" % (sFX, sFX), "s_add_u32 s%d, s%d, 0x%x" % (sFX, sFX, OFF_FL + 32 * 128)],
        ["s_bitcmp1_b32 s%d, 1" % sH, "s_cselect_b32 s%d, s%d, s%d" % (sRA, sQL, sQS)],
        ["s_and_b32 s%d, s%d, 1" % (sHP, sH), "s_lshr_b32 s%d, s%d, 1" % (sX0, sGR), "s_add_u32 s%d, s%d, s%d" % (sHP, sHP, sX0), "s_lshl_b32 s%d, s%d, 11" % (sGB, sGR), "s_add_u32 s%d, s%d, 0x%x" % (sGB, sGB, OFF_G)]]
    for d_, blk in ((sGA_, sRA), (sGL_, sQL), (sGS_, sQS)): late_setup.append(["s_lshl_b32 s%d, s%d, 7" % (d_, blk), "s_add_u32 s%d, s%d, s%d" % (d_, d_, sGB)])
    late_setup += [["s_lshr_b32 s%d, s%d, 2" % (sX0, sHP), "s_lshl_b32 s%d, s%d, 19" % (sX0, sX0), "s_and_b32 s%d, s%d, 3" % (sX1, sHP), "s_lshl_b32 s%d, s%d, 11" % (sX1, sX1),
         "s_add_u32 s%d, s%d, s%d" % (sX0, sX0, sX1), "s_lshl_b32 s%d, s%d, 13" % (sX1, sRA), "s_add_u32 s%d, s%d, s%d" % (sA0, sX0, sX1),
         "s_max_u32 s%d, s%d, 1" % (sX1, sRA), "s_sub_u32 s%d, s%d, 1" % (sX1, sX1), "s_lshl_b32 s%d, s%d, 13" % (sX1, sX1), "s_add_u32 s%d, s%d, s%d" % (sA1, sX0, sX1),
         "s_add_u32 s%d, s%d, %d" % (sA1, sA1, 4 * PH),
         "s_lshr_b32 s%d, s2, 3" % sX0, "s_lshl_b32 s%d, s%d, 2" % (sX0, sX0), "s_add_u32 s%d, s%d, s%d" % (sX0, sX0, sWV), "s_and_b32 s%d, s2, 6" % sX1,
         "s_lshl_b32 s%d, s%d, 6" % (sX1, sX1), "s_add_u32 s%d, s%d, s%d" % (sX0, sX0, sX1), "s_lshl_b32 s%d, s%d, 6" % (sP0, sX0), "s_lshl_b32 s%d, s%d, 3" % (sP1_, sX0),
         "s_mul_i32 s%d, s%d, %d" % (sXO, sTIL, 4 * 49152), "s_add_u32 s%d, s%d, s%d" % (sXO, sXO, sW4), "s_add_u32 s%d, s%d, 0x%x" % (sXO, sXO, OFF_X),
         "s_lshr_b32 s%d, s%d, 3" % (sXR, sH), "s_mul_i32 s%d, s%d, 49152" % (sXR, sXR), "s_add_u32 s%d, s%d, s%d" % (sXR, sXR, sXO),
         "s_add_u32 s%d, s%d, %d" % (sX0, sA0, 4 * PH), "s_add_u32 s%d, s%d, %d" % (sX1, sA0, 8 * PH), "s_add_u32 s%d, s%d, %d" % (sGB, sA1, 4 * PH)]]
    SK, SV = SO, SO
    vK, vV = vL16, 2
    def dma(which, typ, par, srd_=None):
        so, sr_, base = (sKO, SK, 0) if which == "K" else (sVO, SV, 65536)
        if srd_ is not None: sr_ = srd_
        sw = sW4 if typ == 1 else sW8
        G = []
        for q in range(typ):
            g = ["s_add_u32 m0, s%d, %d" % (sw, base + par * 32768 + q * 4096)]
            g.append("s_add_u32 s%d, s%d, s%d" % (sDS, so, sw) if q == 0 else "s_add_u32 s%d, s%d, 4096" % (sDS, sDS))
            G.append(g)
            for o in range(4):
                G.append(["buffer_load_dwordx4 v%d, s[%d:%d], s%d offen offset:%d sc1 lds" % (vK, sr_, sr_ + 3, sDS, o * 1024)])
        return G
    def adv(which, typ):
        so = sKO if which == "K" else sVO
        if which == "V" and typ == 1: return ["s_add_u32 s%d, s%d, s%d" % (so, so, sVD), "s_movk_i32 s%d, 0x4000" % sVD]
        return ["s_add_u32 s%d, s%d, %d" % (so, so, 16384 * typ)]
    spins = []
    vF1, vFA, vPO = 122, 251, 254
    sP1, sG1, sG2 = 45, 46, 47
    def poll_load(kind):
        if kind == 1: return "buffer_load_dword v%d, v124, s[%d:%d], s%d offen sc1" % (vF1, SD, SD + 3, sCNT)
        if kind == 4: return "buffer_load_dword v195, v192, s[%d:%d], s%d offen sc1" % (SO, SO + 3, sG2)
        if kind == 3: return "buffer_load_dword v13, v12, s[%d:%d], 0 offen offset:128 sc1" % (SD, SD + 3)
        return "buffer_load_dword v%d, v%d, s[%d:%d], 0 offen offset:128 sc1" % (vFA, vPO, SD, SD + 3)
    def poll_cmp(kind): return "v_cmp_gt_u32 vcc, s%d, v%d" % ((sG1, vF1) if kind == 1 else (sG2, vFA) if kind == 2 else (sG2, 13) if kind == 3 else (sG1, 195))
    def poll_check(kind):
        ls, lb = a.label("spin"), a.label("spun")
        a("%s\ns_cbranch_vccnz %s\n%s:" % (poll_cmp(kind), ls, lb))
        spins.append((ls, lb, kind))
    rels = []
    def release():
        ls, lb = a.label("rel"), a.label("reld")
        a("s_cmp_eq_u32 s%d, 0\ns_cbranch_scc1 %s\n%s:" % (sFA, ls, lb))
        rels.append((ls, lb))

    st_("setup")
    if EARLY1:
        for x in dma_w(1) + dma_act(1): a(x.split(";")[0])
    bar("s_waitcnt vmcnt(%d)" % ((2 if PF else 1) + (16 if EARLY1 else 0)))
    st_("bar0")
    def flat(G): return [x for g in G for x in g]
    def keep(G): return [g if any(x.startswith("s_cselect") for x in g) else None for g in G]
    def soft(G):
        out = []
        for g in G:
            if any(x.startswith("s_cselect") for x in g):
                k = [j for j, x in enumerate(g) if x.startswith("s_cmp") or x.startswith("s_bitcmp")][0]
                out += g[:k] + [g[k:]]
            else: out += g
        return out
    pre0 = rd_w(0, 0, 0, 0) + rd_act(0, 0) + [x for k in range(1, PDW) for x in rd_w(0, 0, k, k)]
    use0 = [0, 0] + list(range(8)) + [8 * k for k in range(1, PDW) for _ in range(2)]
    for x in pre0: a(x)
    a(xa(0, 0))
    lV = a.label("kvV"); lQ = a.label("qphase")
    a("s_cmp_ge_u32 s%d, 2\ns_cbranch_scc1 %s" % (sWV, lV))
    NKV = 12
    for var in ("K", "V"):
        if var == "V": a(lV + ":")
        t2[0] = 1
        S_, cm, bm, fm = build(0, var)
        if EARLY1: S_.place(pfp(-1) + dma_act(2), 40, bm[1] - 2)
        else:
            S_.place(dma_w(1) + dma_act(1), 0, 56)
            S_.place(dma_act(2) + pfp(-1), 56, bm[1] - 2)
        for g in range(1, 9):
            b = bm[g]; e = bm.get(g + 1, S_.n + 96)
            Wn = (soft(qw_setup) if g == 7 else []) + dma_w(g + 1) + pfp(g - 1)
            if CRF and g in (3, 5, 7): Wn = Wn + ["global_load_dword v122, v127, s[0:1]"]
            if g == 6: Wn = ["buffer_load_dword v125, v126, s[%d:%d], 0 offen offset:128 sc1 ; need:7" % (SD, SD + 3)] + Wn
            S_.place(Wn, b, b + (44 if g < 8 else 31))
            if g < 8: S_.place((flat(qa_setup) if g == 6 else []) + dma_act(g + 2) + (soft(at_setup) if g == 7 else []), b + 44, e - 8)
        for cb in range(3):
            S_.place([x for j in range(4 * cb, 4 * cb + 4) for x in kv_unit(j, GPUB)], cm[7] + 32 * cb + 36, cm[7] + 32 * cb + 68 if cb < 2 else S_.n)
        vmh = S_.emit(a, bar, use0, [1] * 16 if EARLY1 else [])
        left = S_.left; nkv = S_.n
        if VERB: print("KV over", S_.over, "sum", sum(S_.cost))
        if var == "K": a("s_branch %s" % lQ)
    a(lQ + ":")
    st_("q")
    lN, lS, lG, lE = a.label("qN"), a.label("qS"), a.label("qG"), a.label("qE")
    a("s_and_b32 s%d, s%d, 3\ns_cmp_eq_u32 s%d, 3\ns_cbranch_scc1 %s\ns_cmp_ge_u32 s%d, 16\ns_cbranch_scc1 %s" % (sT0, sH, sT0, lG, sU, lS))
    use8 = [0 if u == nkv else 4 * (u - nkv - 1) for u in left]
    for var, lab in (("N", lN), ("S", lS), ("G", lG)):
        a(lab + ":")
        t2[0] = 9
        if var == "G": a("v_lshrrev_b32 v%d, 4, v0\nv_lshlrev_b32 v%d, 4, v%d\nv_add_u32 v%d, %d, v%d" % (vXR[0], vXR[0], vXR[0], vXR[0], LDS_G, vXR[0]))
        S_, cm, bm, fm = build(8, var)
        per = cm[9] - cm[8]
        vTW, vTR, TG = vXO[0], (vXO[1], vXR[1], vXR[2], vXR[3]), 32
        sSJ, sTD, sTL = sOA, sXS, sXM
        def t_dma(j, nd):
            G = []
            if j == 4: G += ["s_mov_b32 s%d, s%d" % (SX, pWO), "s_mov_b32 s%d, s%d" % (SX + 1, pWO + 1), "s_mov_b32 s%d, 0x80000" % (SX + 2)]
            for n in range(4):
                G += ["s_add_u32 m0, s%d, %d" % (sTL, n * 1024), "s_add_u32 s%d, s%d, %d" % (sDS, sSC, (j % 4) * 0x100000 + n * 4096),
                      "buffer_load_dwordx4 v%d, s[%d:%d], s%d offen lds ; need:%d" % (vTW, SX, SX + 3, sDS, nd)]
            return G
        def t_store(j):
            G = []
            if j == 4: G.append(["s_cmp_ge_u32 s%d, 32" % sSJ, "s_cselect_b32 s%d, 0x%x, s%d" % (sTD, OFF_DUMMY, sTD)])
            G.append("s_add_u32 s%d, s%d, %d" % (sT1, sTD, WROW))
            G += ["buffer_store_dwordx4 %s, v%d, s[%d:%d], s%d offen offset:%d" % (ar(TG + 4 * cb, 4), vL16, SO, SO + 3, sTD if cb < 2 else sT1, (cb % 2) * 1024) for cb in range(4)]
            G.append("s_add_u32 s%d, s%d, %d" % (sTD, sTD, 64 * 2048))
            return G
        if var == "G" and not NOTR:
            rq = list(S_.rq)
            for g in range(10, 15):
                pos = [k for k, r in enumerate(rq) if max(r[1], r[2]) >= cm[g]][0]
                rq[pos:pos] = [("ds_read_b64_tr_b16 %s, v%d offset:%d" % (ar(TG + 4 * cb + 2 * rd_, 2), vTR[cb], rd_ * 2048), cm[g] - 1, cm[g] - 1, cm[g] + 12) for cb in range(4) for rd_ in range(2)]
            S2 = Sched(S_.M); S2.bars = S_.bars; S2.waitpts = S_.waitpts; S2.rq = rq; S2.place_reads(); S_ = S2
            tsetup = ("s_and_b32 s%d, s2, 7\ns_lshl_b32 s%d, s%d, 3\ns_add_u32 s%d, s%d, s%d\n" % (sSJ, sSJ, sSJ, sSJ, sSJ, sI) +
                "s_lshl_b32 s%d, s%d, 12\ns_add_u32 s%d, s%d, %d\n" % (sTL, sWV, sTL, sTL, WSL[1] + 16384) +
                "v_lshrrev_b32 v92, 4, v0\nv_and_b32 v93, 15, v0\nv_lshlrev_b32 v94, 2, v92\nv_xor_b32 v93, v93, v94\nv_lshlrev_b32 v93, 4, v93\nv_lshl_add_u32 v%d, v92, 10, v93\n" % vTW +
                "s_mov_b32 s%d, s%d\ns_mov_b32 s%d, s%d\ns_mov_b32 s%d, 0x400000\n" % (SX, pBWO, SX + 1, pBWO + 1, SX + 2) +
                "s_lshl_b32 s%d, s%d, 14\ns_lshl_b32 s%d, s%d, 8\ns_add_u32 s%d, s%d, s%d\n" % (sSC, sSJ, sT0, sWV, sSC, sSC, sT0) +
                "v_lshrrev_b32 v93, 2, v0\nv_and_b32 v93, 3, v93\nv_lshrrev_b32 v94, 5, v0\nv_lshl_add_u32 v94, v94, 2, v93\n" +
                ("v_and_b32 v95, 1, v92\nv_lshlrev_b32 v95, 3, v95\nv_and_b32 v92, 3, v0\n" if W16 else
                 "v_and_b32 v92, 1, v92\nv_lshlrev_b32 v92, 1, v92\nv_lshrrev_b32 v95, 1, v0\nv_and_b32 v95, 1, v95\nv_add_u32 v92, v92, v95\nv_and_b32 v95, 1, v0\nv_lshlrev_b32 v95, 3, v95\n") +
                "v_lshlrev_b32 v93, 2, v93\nv_xor_b32 v93, v93, v92\nv_lshlrev_b32 v93, 4, v93\nv_lshl_add_u32 v93, v94, 8, v93\nv_add3_u32 v93, v93, v95, s%d\n" % sTL +
                "".join("v_xor_b32 v%d, %d, v93\n" % (vTR[k], 64 * k) for k in range(4)) +
                "s_mul_i32 s%d, s%d, %d\ns_lshl_b32 s%d, s%d, 11\ns_add_u32 s%d, s%d, s%d\ns_add_u32 s%d, s%d, 0x%x" % (sTD, sWV, 2 * WROW, sT1, sSJ, sTD, sTD, sT1, sTD, sTD, OFF_W)).split("\n")
        S_.place(dma_act(10) + (tsetup if var == "G" and not NOTR else []), 0, bm[9] - 6)
        for g in range(9, 16):
            b = bm[g]; e = bm.get(g + 1, S_.n)
            Wn = dma_w(g + 1, var != "G") if g < 15 else flat(dma("K", 1, 0, SO) + [adv("K", 1)] + dma("K", 1, 1, SO)) + [poll_load(1) + " ; need:16"]
            if g == GPUB:
                S_.hooks[g] = release
                Wn = Wn + ["buffer_atomic_add v%d, v%d, s[%d:%d], s%d offen sc1" % (vONE, vFO, SD, SD + 3, sCNT)]
            if CRF and g in (9, 11, 13): Wn = Wn + ["global_load_dword v122, v127, s[0:1]"]
            A = dma_act(g + 2) if g + 2 < 16 else []
            if var == "G" and not NOTR:
                mid = cm[g] + 14
                S_.place(Wn, b, mid)
                S_.place((t_dma(g - 9, g + 1) if g < 14 else []) + (t_store(g - 10) if 10 <= g < 15 else []) + A, mid, e - 4)
            else:
                S_.place(Wn, b, b + 32)
                S_.place(A, b + 32, e - 6)
        S_.place(soft(late_setup), cm[10], cm[14])
        zero = lambda lo, hi: ["v_accvgpr_write_b32 a%d, 0" % r for r in range(lo, hi)]
        S_.place([x for j in range(NKV, 16) for x in kv_unit(j, GPUB)], 6, cm[9] + per // 2)
        S_.place([x for j in range(16, 32) for x in kv_unit(j)] + zero(64, 128), cm[9] + per // 2, cm[15] + 24)
        tail = []
        if var in "NS":
            hd = ["s_lshr_b32 s%d, s%d, 1" % (sT0, sU), "s_lshl_b32 s%d, s%d, 19" % (sT0, sT0), "s_and_b32 s%d, s%d, 1" % (sT1, sU), "s_lshl_b32 s%d, s%d, 12" % (sT1, sT1), "s_add_u32 s%d, s%d, s%d" % (sT0, sT0, sT1),
                  ["s_cmp_lt_u32 s%d, 8" % sU, "s_cselect_b32 s%d, %s, 1.0" % (sSC, fbits(LOG2E * 0.25))],
                  "s_lshl_b32 s%d, s%d, 13" % (sOK, sQL), "s_add_u32 s%d, s%d, s%d" % (sOK, sOK, sT0), "s_lshl_b32 s%d, s%d, 13" % (sOK2, sQS), "s_add_u32 s%d, s%d, s%d" % (sOK2, sOK2, sT0)]
            AE = []
            for j in range(8):
                cb, rb, tb = j // 4, (j // 2) % 2, j % 2
                pk = PK + 4 * (j % 4)
                AE += pack(j * 8, pk, sSC if var == "N" else None) + ["buffer_store_dwordx4 %s, v%d, s[%d:%d], s%d offen offset:%d" % (vr(pk, 4), vOS, SO, SO + 3, (sOK, sOK2)[rb], cb * 2048 + tb * 128)]
            S_.place(hd, cm[15] + 24, cm[15] + 36)
            room = sum(max(0, 8 - S_.cost[k]) for k in range(cm[15] + 38, S_.n)) // 4
            S_.place(AE[:room], cm[15] + 38, S_.n); tail = AE[room:]
        vm2 = S_.emit(a, bar, use8, vmh)
        if VERB: print("Q", var, "over", S_.over, "sum", sum(S_.cost), "tail", len(tail))
        for x in tail: a(x)
        nafter = len(vm2) - 1 - max(k for k, nd in enumerate(vm2) if nd == 16) + sum(1 for x in tail if isvm(x))
        if var in "NS":
            a("s_waitcnt vmcnt(%d)\ns_branch %s" % (nafter, lE))
        else:
            a("s_nop 7")
            a("v_accvgpr_read_b32 v28, a0\nv_accvgpr_read_b32 v29, a4\nv_accvgpr_read_b32 v30, a8\nv_accvgpr_read_b32 v31, a12\nv_and_b32 v32, 16, v0\nv_cmp_eq_u32 s[26:27], 0, v32\nv_cmp_gt_u32 vcc, 32, v0")
            a("v_mov_b32 v33, s%d\nv_mov_b32 v34, s%d\nv_cndmask_b32 v28, v29, v28, s[26:27]\nv_cndmask_b32 v30, v31, v30, s[26:27]\nv_cndmask_b32 v28, v30, v28, vcc\nv_cndmask_b32 v33, v34, v33, vcc" % (sQL, sQS))
            a("v_mul_f32 v28, %s, v28\nv_exp_f32 v28, v28\nv_and_b32 v34, 0x1ff, v%d\nv_add_f32 v28, 1.0, v28\nv_rcp_f32 v28, v28" % (fbits(-LOG2E), vOS))
            a("v_lshrrev_b32 v34, 2, v34\nv_lshl_add_u32 v34, v32, 1, v34\nv_lshl_add_u32 v33, v33, 7, v34\ns_lshl_b32 s%d, s%d, 11\ns_add_u32 s%d, s%d, 0x%x" % (sT0, sGR, sT0, sT0, OFF_G))
            a("buffer_store_dword v28, v33, s[%d:%d], s%d offen\ns_waitcnt vmcnt(%d)" % (SO, SO + 3, sT0, nafter + 1))
    a(lE + ":")
    a(lAttn + ":")
    st_("attn")
    vU, vGL, vGS = 3, 4, 5
    vL = (6, 7); vLT = (8, 9); vX = 10
    S = (16, 80); P = (144, 176); NM = 208; TM = 240
    vGA, vNEG, vPM, vDUM = 248, 249, 250, 14
    O, Q, FR, NFR = 0, 128, 192, 16
    ms = (26, 28, 30)
    def kfrag(p, idx): return ("K", p * 32768 + idx * 1024)
    def vfrag(p, g, db): return ("V", p * 32768 + (g // 2) * 8192 + db * 2048 + (g % 2) * 1024)
    def rd(slot, fr):
        return "ds_read_b128 %s, v%d offset:%d" % (ar(FR + 4 * (slot % NFR), 4), vK if fr[0] == "K" else vV, fr[1])
    def mf_list(p, pv, qk):
        L = []
        Pp = P[1 - p]; Sn = S[1 - p]
        if pv == 1:
            for g in range(4):
                for db in range(4):
                    L.append((vfrag(1 - p, g, db), ["%s %s, {F}, %s, %s" % (MF32, ar(O + rb * 64 + db * 16, 16), vr(Pp + rb * 16 + g * 4, 4), ar(O + rb * 64 + db * 16, 16)) for rb in range(2)]))
        elif pv == 2:
            for g in range(8):
                for db in range(4):
                    L.append((vfrag(1 - p, g, db), ["%s %s, {F}, %s, %s" % (MF32, ar(O + db * 16, 16), vr(Pp + g * 4, 4), ar(O + db * 16, 16))]))
        elif pv == 3:
            for db in range(4):
                for g in range(8):
                    L.append((("K", vfrag(1, g, db)[1]), ["%s %s, {F}, %s, %s" % (MF32, ar(O + db * 16, 16), vr(Pp + g * 4, 4), ar(O + db * 16, 16))]))
        if qk == 1:
            for kb in range(2):
                for s in range(8):
                    ms_ = []
                    for rb in range(2):
                        d = vr(Sn + rb * 32 + kb * 16, 16)
                        ms_.append("%s %s, {F}, %s, %s" % (MF32, d, ar(Q + rb * 32 + s * 4, 4), d if s else vr(NM + rb * 16, 16)))
                    L.append((kfrag(1 - p, kb * 8 + s), ms_))
        elif qk == 2:
            for kb in range(4):
                for s in range(8):
                    d = vr(Sn + kb * 16, 16)
                    L.append((kfrag(1 - p, kb * 8 + s), ["%s %s, {F}, %s, %s" % (MF32, d, ar(Q + s * 4, 4), d if s else vr(NM, 16))]))
        return L
    def sm_list(p, sm):
        Sc, Pc = S[p], P[p]
        order = [0, 2, 1, 3] if sm == 1 else [0, 1, 2, 3]
        els = [b * 16 + j for b in order for j in range(16)]
        V = []
        first = {0: True, 1: True}
        def tail(n):
            e = els[n]; u = TM + (n % 8); lt = vLT[e // 32]
            out = []
            if first[e // 32]:
                out.append((4, "v_add_f32 v%d, v%d, v%d" % (lt, u, u + 1))); first[e // 32] = False
            else:
                out.append((4, "v_add_f32 v%d, v%d, v%d" % (lt, lt, u)))
                out.append((4, "v_add_f32 v%d, v%d, v%d" % (lt, lt, u + 1)))
            out.append((4, "v_cvt_pk_bf16_f32 v%d, v%d, v%d" % (Pc + e // 2, u, u + 1)))
            return out
        for n in range(0, 64, 2):
            tl = tail(n - 2) if n >= 2 else []
            V.append((8, "v_exp_f32 v%d, v%d" % (TM + n % 8, Sc + els[n])))
            V += tl[:1]
            V.append((8, "v_exp_f32 v%d, v%d" % (TM + n % 8 + 1, Sc + els[n + 1])))
            V += tl[1:]
        V += tail(62)
        return V
    rare = {}
    def step(p, pv, sm, qk, dK, dV, pre_in=True, pre_out=True, advK=True, extra_vm=None, extra_valu=None, chk=0, last16=False, staged=None, trail=None, vm_first=False):
        L = mf_list(p, pv, qk)
        nf = len(L)
        nxt = [vfrag(p, g, db) for g in range(4) for db in range(4)][:PD]
        if last16: nxt = [x[0] for x in mf_list(1, 3, 0)][:PD]
        M = [(f, t) for f, (fr, ts_) in enumerate(L) for t in ts_]
        nm = len(M)
        fill = [[] for _ in range(nm)]
        G = []
        if dV: G += dma("V", dV, p) + [adv("V", dV)]
        if dK: G += dma("K", dK, p) + ([adv("K", dK)] if advK else [])
        ntr = sum(1 for g in (trail or []) for x in g if isvm(x))
        if extra_vm and vm_first: G = extra_vm + G + (trail or [])
        elif extra_vm: G += extra_vm + (trail or [])
        elif CRF > 1 and p == 0 and dK: G += [["global_load_dword v%d, v255, s[0:1]" % vGA]]
        cost = [0] * nm
        firstm = {}
        for m, (f, t) in enumerate(M): firstm.setdefault(f, m)
        barf = nf + 1 - PD
        if barf % WP: barf += WP - barf % WP
        if not pre_out or last16: barf = nf + 99
        CAP = 24
        pre = [[] for _ in range(nm)]
        allfr = [x[0] for x in L] + (nxt if pre_out else [])
        nrd = PD
        for f in range(nf):
            m = firstm[f]
            if f == barf: pre[m].append("BAR")
            elif f < barf and f % WP == 0: pre[m].append("s_waitcnt lgkmcnt(%d)" % max(0, nrd - 1 - min(f + WP - 1, nf - 1)))
            if m > 0 and pre[m]: cost[m - 1] += 8 if f == barf else 4
            want = min(f + PD, len(allfr) - 1)
            if f < barf and not last16: want = min(want, nf - 1)
            lim = 2
            while nrd <= want and lim:
                fill[m].append(rd(nrd, allfr[nrd])); cost[m] += 4; nrd += 1; lim -= 1
        assert nrd == len(allfr), (nrd, len(allfr))
        cost[nm - 1] += 20
        def place(stream, lo, hi):
            tot = sum(c for c, _ in stream); done_ = 0
            free = sum(max(0, CAP - cost[k]) for k in range(lo, hi))
            seen = 0; i = 0
            for k in range(lo, hi):
                seen += max(0, CAP - cost[k])
                tgt = tot * min(1.0, seen / max(free, 1))
                while i < len(stream) and (k == hi - 1 or (done_ < tgt and (cost[k] + stream[i][0] <= CAP or done_ + 8 < tgt))):
                    fill[k] += stream[i][1]; cost[k] += stream[i][0]; done_ += stream[i][0]; i += 1
        hiD = min(max(len(G) + 1, nm // 2), firstm[barf] - 4 if barf < nf else nm)
        place([(4 * len(g), g) for g in G], 1, hiD)
        V = sm_list(p, sm) if sm else []
        if sm:
            V.append((4, "v_max_f32 v%d, v%d, v%d" % (vX, vLT[0], vLT[1])))
            V.append((4, "v_cmp_lt_f32 vcc, s%d, v%d" % (sTH, vX)))
        if extra_valu: V += [(4, x) for x in extra_valu]
        place([(c, [x]) for c, x in V], 0, nm - 1)
        for (lst, lo, hi) in (staged or []): place([(4, [x]) for x in lst], lo, hi)
        if not pre_in:
            for f in range(PD): a(rd(f, L[f][0]))
        for m, (f, t) in enumerate(M):
            for x in pre[m]:
                if x == "BAR":
                    if TS3: a("s_mov_b32 m0, s76\ns_add_u32 s76, s76, 1\nv_writelane_b32 v11, s72, m0\ns_mov_b32 m0, s76\ns_add_u32 s76, s76, 1\nv_writelane_b32 v11, s74, m0\ns_memtime s[72:73]")
                    a("s_waitcnt vmcnt(%d) lgkmcnt(0)" % ntr)
                    if chk: poll_check(chk)
                    a("s_barrier")
                    if TS3: a("s_memtime s[74:75]\ns_waitcnt lgkmcnt(0)")
                else: a(x)
            a(t.replace("{F}", ar(FR + 4 * (f % NFR), 4)))
            for x in fill[m]: a(x)
        assert nf % NFR == 0
        if sm:
            key = (p, sm, qk if qk else sm)
            if key not in rare: rare[key] = (a.label("rare"), [])
            lb = a.label("back"); lj = a.label("jr")
            rid = len(rare[key][1]); rare[key][1].append((lj, lb))
            a("s_cbranch_vccnz %s\n%s:" % (lj, lb))
            if sm == 1: a("v_add_f32 v%d, v%d, v%d\nv_add_f32 v%d, v%d, v%d" % (vL[0], vL[0], vLT[0], vL[1], vL[1], vLT[1]))
            else: a("v_add_f32 v%d, v%d, v%d\nv_add_f32 v%d, v%d, v%d" % (vL[0], vL[0], vLT[0], vL[0], vL[0], vLT[1]))
    def rowmax(dst, regs_):
        a("v_max3_f32 v%d, v%d, v%d, v%d" % (dst, regs_[0], regs_[1], regs_[2]))
        j = 3
        while j + 1 < len(regs_):
            a("v_max3_f32 v%d, v%d, v%d, v%d" % (dst, dst, regs_[j], regs_[j + 1])); j += 2
        if j < len(regs_): a("v_max_f32 v%d, v%d, v%d" % (dst, dst, regs_[j]))
        a("v_mov_b32 v%d, v%d\ns_nop 1\nv_permlane32_swap_b32 v%d, v%d\nv_max_f32 v%d, v%d, v%d" % (dst + 1, dst, dst, dst + 1, dst, dst, dst + 1))
    def mask(base, nblk, kb0):
        a("s_nop 7\ns_nop 3")
        for j in range(nblk):
            lf = a.label("mfull"); le_ = a.label("mend")
            kb = kb0 + j; r0 = base + 16 * j
            a("s_cmp_gt_u32 s%d, %d\ns_cbranch_scc1 %s" % (sWV, kb, le_))
            if kb > 0: a("s_cmp_lt_u32 s%d, %d\ns_cbranch_scc1 %s" % (sWV, kb, lf))
            rr = list(range(16))
            for c in range(0, 16, 3):
                grp = rr[c:c + 3]
                for q, r in enumerate(grp): a("v_cmp_gt_i32 s[%d:%d], %d, v%d" % (ms[q], ms[q] + 1, 8 * (r // 4) + r % 4, vU))
                if len(grp) < 3: a("s_nop 1")
                for q, r in enumerate(grp): a("v_cndmask_b32 v%d, v%d, v%d, s[%d:%d]" % (r0 + r, r0 + r, vNEG, ms[q], ms[q] + 1))
            if kb > 0:
                a("s_branch %s\n%s:" % (le_, lf))
                for r in range(16): a("v_mov_b32 v%d, v%d" % (r0 + r, vNEG))
            a(le_ + ":")
    poll_check(1)
    bar("s_nop 0")
    if TS2:
        a("s_waitcnt lgkmcnt(0)"); bar("s_nop 0")
        a("s_lshl_b32 s78, s2, 2\ns_add_u32 s78, s78, s%d\ns_lshl_b32 s78, s78, 8\ns_add_u32 s78, s78, 0x%x\nv_lshlrev_b32 v122, 2, v0" % (sWV, OFF_TS + 0x80000))
        a("buffer_store_dword v123, v122, s[%d:%d], s78 offen\ns_waitcnt vmcnt(0)" % (SO, SO + 3))
    a("s_mov_b32 s%d, %s" % (sSC, fbits(LOG2E / math.sqrt(128.0))))
    fr0 = [kfrag(0, kb * 8 + s) for s in range(8) for kb in range(2)]
    for f in range(12): a(rd(f, fr0[f]))
    def qepi(cb):
        G = []
        for rb in range(2):
            src = QA + (rb * 4 + cb) * 16
            G += ["v_mul_f32 v%d, s%d, v%d" % (src + j, sSC, src + j) for j in range(16)]
            G += ["v_cvt_pk_bf16_f32 v%d, v%d, v%d" % (src + j, src + 2 * j, src + 2 * j + 1) for j in range(8)]
        for rb in range(2):
            src = QA + (rb * 4 + cb) * 16
            G += ["v_permlane16_swap_b32 v%d, v%d" % (src + j, src + 4 + j) for j in range(4)]
        for rb in range(2):
            src = QA + (rb * 4 + cb) * 16
            G += ["v_accvgpr_write_b32 a%d, v%d" % (Q + rb * 32 + cb * 8 + j, src + j) for j in range(8)]
        return G
    a("s_add_u32 s%d, s%d, 0x4000\ns_sub_u32 s%d, s%d, s%d\ns_cmp_eq_u32 s%d, 0\ns_cselect_b32 s%d, 0x8000, 0\ns_add_u32 s%d, s%d, s%d" % (sT1, sVD, sKO, sKO, sT1, sI, sT0, sKO, sKO, sT0))
    for g_ in dma("V", 1, 0):
        for x in g_: a(x)
    a("s_add_u32 s%d, s%d, 0x4000\ns_sub_u32 s%d, 0, s%d" % (sVO, sVO, sVD, sT1))
    for x in qepi(0): a(x)
    for f in range(12, 16): a(rd(f, fr0[f]))
    misc = ["v_add_u32 v%d, 0x10000, v%d" % (vV, vK), "v_and_b32 v10, 31, v0", "v_lshrrev_b32 v11, 5, v0", "v_lshlrev_b32 v11, 2, v11",
            "v_and_b32 v12, 8, v0", "v_and_b32 v13, 16, v0", "v_lshrrev_b32 v13, 1, v13", "v_and_b32 v14, 7, v0", "v_lshl_add_u32 v12, v12, 1, v13", "v_add_u32 v12, v12, v14", "v_sub_u32 v%d, v12, v11" % vU,
            "v_mov_b32 v%d, 0" % vL[0], "v_mov_b32 v%d, 0" % vL[1], "v_mov_b32 v%d, %s" % (vNEG, NEG), "v_and_b32 v%d, 3, v0" % vPO, "v_add_lshl_u32 v%d, v%d, s%d, 2" % (vPO, vPO, sGR), "v_add_u32 v%d, s%d, v%d" % (vPO, sW4, vPO), "v_mov_b32 v253, 0x10000000", "v_mov_b32 v252, v%d" % vFO, "v_mov_b32 v255, v127"]
    if FUSE:
        misc += ["v_min_u32 v13, 1, v%d" % vFO, "v_lshlrev_b32 v13, 29, v13",
                 "buffer_store_dword v%d, v13, s[%d:%d], s%d offen sc1" % (vL[0], SO, SO + 3, sFG), "buffer_store_dword v%d, v13, s[%d:%d], s%d offen sc1" % (vL[0], SO, SO + 3, sFX)]
    else:
        misc += ["s_lshl_b32 s%d, s2, 7" % sT1, "s_add_u32 s%d, s%d, 0x%x" % (sT1, sT1, OFF_FL), "v_lshlrev_b32 v10, 2, v10",
                 "buffer_store_dword v%d, v10, s[%d:%d], s%d offen" % (vL[0], SO, SO + 3, sT1)]
    if SENT:
        misc += ["v_mov_b32 v%d, -1" % r for r in range(240, 244)]
        for j in range(3):
            misc += ["s_add_u32 s%d, s%d, %d" % (sT1, sXR, j * 16384)] + ["buffer_store_dwordx4 v[240:243], v%d, s[%d:%d], s%d offen offset:%d sc1" % (vK, SO, SO + 3, sT1, c * 1024) for c in range(2)]
    misc += ["v_accvgpr_write_b32 a%d, 0" % r for r in range(0, 40)]
    a("s_waitcnt lgkmcnt(0)\ns_barrier")
    K2 = dma("K", 2, 0) + [["s_cmp_eq_u32 s%d, 0" % sI, "s_cselect_b32 s%d, 2, 1" % sT0, "s_lshl_b32 s%d, s%d, 14" % (sT0, sT0), "s_add_u32 s%d, s%d, s%d" % (sKO, sKO, sT0)]]
    for cb in range(4):
        M = []
        for s in (2 * cb, 2 * cb + 1):
            for kb in range(2):
                for rb in range(2):
                    d = vr(S[0] + rb * 32 + kb * 16, 16)
                    M.append("%s %s, %s, %s, %s" % (MF32, d, ar(FR + 4 * (2 * s + kb), 4), ar(Q + rb * 32 + s * 4, 4), d if s else "0"))
        emit(a, M, [(K2[4 * cb: 4 * cb + 4], 0, 7), (qepi(cb + 1) + ["s_nop 0"] if cb < 3 else misc, 0, 8)])
    st_("m1")
    for r in range(40, 64): a("v_accvgpr_write_b32 a%d, 0" % r)
    mask(S[0] + 32, 2, 0)
    for rb in range(2): rowmax(vX + 2 * rb, [S[0] + rb * 32 + j for j in range(32)])
    for rb in range(2):
        for j in range(16): a("v_sub_f32 v%d, 0, v%d" % (NM + rb * 16 + j, vX + 2 * rb))
    for rb in range(2):
        for j in range(32): a("v_sub_f32 v%d, v%d, v%d" % (S[0] + rb * 32 + j, S[0] + rb * 32 + j, vX + 2 * rb))
    st_("first")
    if TS3: a("s_mov_b32 s76, 0\ns_mov_b32 s72, 0\ns_mov_b32 s74, 0")
    step(0, 0, 1, 1, 0, 0, pre_in=False)
    st_("s0a")
    release()
    a("buffer_atomic_add v253, v252, s[%d:%d], s%d offen offset:128 sc1" % (SD, SD + 3, sCNT))
    mask(S[1] + 32, 2, 2)
    st_("s0")
    lT0, lT1, lT1b, lL1, lL2, lS15, lMid, lI7, lEn = [a.label(x) for x in ("T0", "T1", "T1b", "L1", "L2", "S15", "MID", "I7", "END")]
    PL = [[poll_load(2)]]
    AF = [ar(Q + 4 * j, 4) for j in range(9)]
    def ld(dst, so, off): return ["buffer_load_dwordx4 %s, v%d, s[%d:%d], s%d offen offset:%d sc1" % (dst, vK, SV, SV + 3, so, off)]
    AOP = [ld(AF[0], sA0, 0), ld(AF[1], sA0, 1024), ld(AF[2], sX0, 0), ld(AF[3], sX0, 1024), ld(AF[4], sA1, 0), ld(AF[5], sA1, 1024),
           ld(AF[6], sGB, 1024), ld(AF[7], sX1, 0), ld(AF[8], sX1, 1024)]
    ALD = [["v_and_b32 v14, 31, v0", "v_lshlrev_b32 v14, 2, v14", "buffer_load_dword v%d, v14, s[%d:%d], s%d offen sc1" % (vGA, SV, SV + 3, sGA_)],
           ["v_lshrrev_b32 v15, 5, v0", "v_lshl_add_u32 v13, v15, 2, v%d" % vU, "v_lshlrev_b32 v15, 5, v15"],
           ["v_add_lshl_u32 v%d, v13, v15, 4" % vFA, "v_lshlrev_b32 v15, 2, v13", "buffer_load_dword v%d, v15, s[%d:%d], s%d offen sc1" % (vGL, SV, SV + 3, sGL_)],
           ["buffer_load_dword v%d, v15, s[%d:%d], s%d offen sc1" % (vGS, SV, SV + 3, sGS_)]]
    def wpf(dst): return [["v_add_lshl_u32 v14, v0, s%d, 7" % sP0, "global_load_dword %s, v14, s[%d:%d]" % (dst, pBWO, pBWO + 1)],
                          ["v_and_b32 v15, 7, v0", "v_add_lshl_u32 v15, v15, s%d, 7" % sP1_, "global_load_dword %s, v15, s[%d:%d]" % (dst, pWO, pWO + 1)]]
    TR0, TR15 = [], []
    if FUSE:
        ALD += [["v_add_u32 v12, s%d, v14" % sW4, poll_load(3)]]
        TR0 = wpf("v%d" % vPM)
        if WL2: TR15 = wpf("v9" if False else "v%d" % vDUM)
    CST = "sc1" if FUSE else ""
    a("s_cmp_eq_u32 s%d, 0\ns_cbranch_scc1 %s" % (sI, lT1))
    a("s_mov_b32 s%d, s%d" % (sT, sI))
    a(".p2align 6\n" + lL1 + ":")
    step(1, 1, 1, 1, 1, 1)
    a("s_sub_u32 s%d, s%d, 1\ns_cbranch_scc0 %s" % (sT, sT, lT0) if False else "s_sub_u32 s%d, s%d, 1\ns_cmp_eq_u32 s%d, 0\ns_cbranch_scc1 %s" % (sT, sT, sT, lT0))
    step(0, 1, 1, 1, 1, 1)
    a("s_branch %s" % lL1)
    a(lT0 + ":")
    a("s_add_u32 s%d, s%d, 0x8000" % (sKO, sKO))
    step(0, 1, 1, 1, 2, 1, extra_vm=PL, chk=2, trail=TR0)
    a("s_cmp_eq_u32 s%d, 7\ns_cbranch_scc1 %s" % (sI, lT1b))
    a(lT1 + ":")
    step(1, 1, 1, 2, 2, 1)
    a("s_add_u32 s%d, s%d, 0x8000" % (sVO, sVO))
    step(0, 1, 2, 2, 2, 2, extra_vm=PL, chk=2, trail=TR0)
    a("s_sub_u32 s%d, 6, s%d\ns_cmp_eq_u32 s%d, 0\ns_cbranch_scc1 %s" % (sT, sI, sT, lS15))
    a(".p2align 6\n" + lL2 + ":")
    step(1, 2, 2, 2, 2, 2)
    step(0, 2, 2, 2, 2, 2)
    a("s_sub_u32 s%d, s%d, 1\ns_cmp_lg_u32 s%d, 0\ns_cbranch_scc1 %s" % (sT, sT, sT, lL2))
    a(lS15 + ":")
    a("s_add_u32 s%d, s%d, 0x8000" % (sKO, sVO))
    step(1, 2, 2, 2, 2, 2, extra_vm=ALD, chk=3 if FUSE else 0, trail=TR15, vm_first=True)
    a("s_branch %s" % lMid)
    a(lT1b + ":")
    a("s_add_u32 s%d, s%d, 0xc000" % (sKO, sVO))
    step(1, 1, 1, 2, 2, 1, extra_vm=ALD, chk=3 if FUSE else 0, trail=TR15, vm_first=True)
    def fin_head(rb, so):
        l = vL[rb]; g = (vGL, vGS)[rb]; blk = (sQL, sQS)[rb]
        return ["v_mov_b32 v%d, v%d" % (vX + 5, l), "v_sub_f32 v%d, 1.0, v%d" % (g, g), "s_mul_i32 s%d, s%d, %d" % (so, blk, CROW), "v_permlane32_swap_b32 v%d, v%d" % (l, vX + 5),
                "v_add_f32 v%d, v%d, v%d" % (l, l, vX + 5), "v_rcp_f32 v%d, v%d" % (l, l), "s_lshl_b32 s%d, s%d, 13" % (sT1, sH), "v_mul_f32 v%d, v%d, v%d" % (l, l, g),
                "s_add_u32 s%d, s%d, s%d" % (so, so, sT1), "s_add_u32 s%d, s%d, 0x%x" % (so, so, OFF_C)]
    def fin_part(rb, c, t, so):
        l = vL[rb]
        G = ["v_accvgpr_read_b32 v%d, a%d" % (t + j, O + rb * 64 + c * 8 + j) for j in range(8)]
        G += ["v_mul_f32 v%d, v%d, v%d" % (t + j, l, t + j) for j in range(8)]
        G += ["v_cvt_pk_bf16_f32 v%d, v%d, v%d" % (t + j, t + 2 * j, t + 2 * j + 1) for j in range(4)]
        if c == 4: G.append("s_add_u32 s%d, s%d, 4096" % (so, so))
        G.append("buffer_store_dwordx4 %s, v%d, s[%d:%d], s%d offen offset:%d %s" % (vr(t, 4), vFA, SV, SV + 3, so, (c % 4) * 1024, CST))
        return G
    a(lMid + ":")
    st_("mid")
    if TS3:
        a("s_mov_b32 m0, s76\ns_add_u32 s76, s76, 1\nv_writelane_b32 v11, s72, m0\ns_mov_b32 m0, s76\ns_add_u32 s76, s76, 1\nv_writelane_b32 v11, s74, m0")
        a("s_lshl_b32 s78, s2, 2\ns_add_u32 s78, s78, s%d\ns_lshl_b32 s78, s78, 8\ns_add_u32 s78, s78, 0x%x\nv_lshlrev_b32 v10, 2, v0" % (sWV, OFF_TS + 0x80000))
        a("buffer_store_dword v11, v10, s[%d:%d], s78 offen\ns_nop 4" % (SO, SO + 3))
    for x in flat(AOP): a(x)
    mask(S[0], 4, 0)
    PW, PW2 = 8, 12
    sWB, sHW, sWC, sAB, sHA, sAC = 25, 32, 33, 34, 35, 45
    vD = (252, 253, 254, 255)
    WRING = [0, 16384, 65536, 81920, 131072, 147456]; ARING = [32768, 49152, 98304, 114688]
    def w_dma(st):
        G = []
        if st < 16 and st % 2 == 0:
            G.append(["s_lshl_b32 s%d, s%d, 17" % (sWC, sHW), "s_add_u32 s%d, s%d, s%d" % (sWC, sWC, sWB), "s_add_u32 s%d, s%d, 1" % (sHW, sHW), "s_and_b32 s%d, s%d, 7" % (sHW, sHW)])
        if st == 16: G.append(["s_and_b32 s%d, s%d, 0xffff" % (sWC, sWB), "s_lshr_b32 s%d, s%d, 20" % (sHW, sWB), "s_lshl_b32 s%d, s%d, 17" % (sHW, sHW), "s_add_u32 s%d, s%d, s%d" % (sWC, sWC, sHW)])
        G.append(["s_add_u32 m0, s%d, %d" % (sW4, WRING[st % 6]), "s_nop 0" if st % 2 == 0 else "s_add_u32 s%d, s%d, 65536" % (sWC, sWC)])
        sr_ = PW if st < 16 else PW2
        G += [["buffer_load_dwordx4 v%d, s[%d:%d], s%d offen offset:%d lds" % (vD[o], sr_, sr_ + 3, sWC, o * 1024)] for o in range(4)]
        return G
    def a_dma(st):
        G = []
        if st < 16 and st % 2 == 0:
            G.append(["s_lshl_b32 s%d, s%d, 13" % (sAC, sHA), "s_add_u32 s%d, s%d, s%d" % (sAC, sAC, sAB), "s_add_u32 s%d, s%d, 1" % (sHA, sHA), "s_and_b32 s%d, s%d, 7" % (sHA, sHA)])
        if st == 16: G.append(["s_lshr_b32 s%d, s%d, 3" % (sHA, sH), "s_mul_i32 s%d, s%d, %d" % (sHA, sHA, 56 * 1024), "s_sub_u32 s%d, s%d, s%d" % (sAC, sAB, sHA), "s_add_u32 s%d, s%d, %d" % (sAC, sAC, 256 * 1024)])
        G.append(["s_add_u32 m0, s%d, %d" % (sW4, ARING[st % 4]), "s_nop 0" if st % 2 == 0 else "s_add_u32 s%d, s%d, 4096" % (sAC, sAC)])
        G += [["buffer_load_dwordx4 v%d, s[%d:%d], s%d offen offset:%d sc1 lds" % (vK, SV, SV + 3, sAC, o * 1024)] for o in range(4)]
        return G
    W16_, W17_ = [], []
    if FUSE:
        srd(a, PW, pBWO, 0x400000); srd(a, PW2, pWO, 0x80000)
        a("s_lshr_b32 s%d, s%d, 3\ns_lshl_b32 s%d, s%d, 20\ns_and_b32 s%d, s%d, 3\ns_lshl_b32 s%d, s%d, 8\ns_add_u32 s%d, s%d, s%d\ns_lshl_b32 s%d, s%d, 14\ns_add_u32 s%d, s%d, s%d" % (sT0, sH, sWB, sT0, sT1, sH, sT1, sT1, sWB, sWB, sT1, sT1, sWV, sWB, sWB, sT1))
        a("s_and_b32 s%d, s%d, 7\ns_mov_b32 s%d, s%d" % (sHW, sH, sHA, sHW))
        a("s_lshl_b32 s%d, s%d, 2\ns_add_u32 s%d, s%d, s%d\ns_mul_i32 s%d, s%d, %d\ns_lshl_b32 s%d, s%d, 16\ns_add_u32 s%d, s%d, s%d\ns_add_u32 s%d, s%d, 0x%x" % (sT1, sRBK, sT1, sT1, sWV, sAB, sT1, CROW, sT0, sT0, sAB, sAB, sT0, sAB, sAB, OFF_C))
        a("v_lshrrev_b32 v10, 4, v0\nv_and_b32 v11, 15, v0\nv_lshlrev_b32 v12, 2, v10\nv_xor_b32 v11, v11, v12\nv_lshlrev_b32 v11, 4, v11\nv_lshl_add_u32 v%d, v10, 10, v11" % vD[0])
        for n in range(1, 4): a("v_add_u32 v%d, %d, v%d" % (vD[n], 3072 * n, vD[0]))
        W16_ = [g for st in range(4) for g in w_dma(st)]; W17_ = [g for st in range(4, 6) for g in w_dma(st)]
    a("s_cmp_eq_u32 s%d, 7\ns_cbranch_scc1 %s" % (sI, lI7))
    NE = 6
    for x in fin_head(1, sA0): a(x)
    for c in range(NE):
        for x in fin_part(1, c, 208 + 8 * (c % 4), sA0): a(x)
    step(0, 2, 2, 0, 0, 0, last16=True, extra_vm=W16_)
    def final(first):
        stg = [(first + fin_head(0, sA1), 0, 11)]
        for db in range(3):
            stg.append((fin_part(0, 2 * db, 80 + 16 * db, sA1) + fin_part(0, 2 * db + 1, 88 + 16 * db, sA1), 8 * db + 11, min(8 * db + 19, 32)))
        step(1, 3, 0, 0, 0, 0, pre_out=False, staged=stg, extra_vm=W17_)
        a("s_nop 8")
        for x in fin_part(0, 6, 128, sA1) + fin_part(0, 7, 136, sA1): a(x)
    final([x for c in range(NE, 8) for x in fin_part(1, c, 208 + 8 * (c % 4), sA0)])
    a("s_branch %s" % lEn)
    a(lI7 + ":")
    step(0, 1, 2, 0, 0, 0, last16=True, extra_vm=W16_)
    final(fin_head(1, sA0) + [x for c in range(8) for x in fin_part(1, c, 208 + 8 * (c % 4), sA0)])
    a(lEn + ":")
    st_("s17")
    if FUSE:
        SOUT = 4; sQ, sOUT = 26, 28
        vA, vW = (2, 3), (4, 5); ACC, FP = 16, 80
        BC, BP = 208, 224
        SC, SP = (16, 32), (48, 64); TA = (144, 156); PA = (168, 180); MX = (240, 242)
        L1 = ["v_and_b32 v246, 31, v0", "v_lshrrev_b32 v245, 5, v0", "v_lshlrev_b32 v245, 2, v245", "v_sub_u32 v246, v246, v245",
              "v_add_u32 v246, 18, v246", "v_mov_b32 v244, 0x5555", "v_mov_b32 v245, 0", "s_cmp_eq_u32 s%d, 0" % sRA, "s_cselect_b32 s%d, -1, 0" % sT2,
              "v_lshlrev_b64 v[244:245], v246, v[244:245]", "v_not_b32 v244, v244", "v_not_b32 v245, v245", "v_or_b32 v244, s%d, v244" % sT2]
        L1 += ["v_bfe_i32 v%d, v245, %d, 1" % (BC + r, 8 * (r // 4) + r % 4) for r in range(16)]
        L1 += ["v_bfe_i32 v%d, v244, %d, 1" % (BP + r, 8 * (r // 4) + r % 4) for r in range(8, 16)]
        L1 += ["v_and_b32 v%d, v%d, v%d" % (BC + r, vNEG, BC + r) for r in list(range(16)) + list(range(24, 32))]
        L1 += ["v_and_b32 v244, 1, v0", "v_lshlrev_b32 v244, 4, v244", "v_mov_b32 v245, 0xffff", "v_lshlrev_b32 v%d, v244, v245" % vPM, "s_waitcnt vmcnt(40)"]
        for e in range(2):
            L1.append("%s %s, %s, %s, %s" % (MF32, vr(SC[e], 16), AF[2 + e], AF[e], vr(BC, 16)))
            L1.append("%s %s, %s, %s, %s" % (MF32, vr(SP[e], 16), AF[4 + e], AF[e], vr(BP, 16)))
        L2 = []
        for e in range(2):
            L2 += ["v_max_f32 v%d, v%d, v%d" % (TA[e] + j, SP[e] + 8 + 2 * j, SP[e] + 9 + 2 * j) for j in range(4)]
            L2 += ["v_max_f32 v%d, v%d, v%d" % (TA[e] + 4 + j, SC[e] + 2 * j, SC[e] + 2 * j + 1) for j in range(8)]
        for e in range(2):
            t = TA[e]; m = MX[e]
            L2.append("v_max3_f32 v%d, v%d, v%d, v%d" % (m, t, t + 1, t + 2))
            L2 += ["v_max3_f32 v%d, v%d, v%d, v%d" % (m, m, t + j, t + j + 1) for j in range(3, 11, 2)]
            L2 += ["v_max_f32 v%d, v%d, v%d" % (m, m, t + 11), "v_mov_b32 v%d, v%d" % (m + 1, m)]
        L2.append("s_nop 1")
        L2 += ["v_permlane32_swap_b32 v%d, v%d" % (MX[e], MX[e] + 1) for e in range(2)]
        L2 += ["v_max_f32 v%d, v%d, v%d" % (MX[e], MX[e], MX[e] + 1) for e in range(2)]
        for e in range(2):
            L2 += ["v_sub_f32 v%d, v%d, v%d" % (TA[e] + j, TA[e] + j, MX[e]) for j in range(12)]
            L2 += ["v_exp_f32 v%d, v%d" % (TA[e] + j, TA[e] + j) for j in range(12)]
        for e in range(2):
            L2 += ["v_cvt_pk_bf16_f32 v%d, v%d, v%d" % (PA[e] + j, TA[e] + j, TA[e] + j) for j in range(12)]
            L2 += ["v_and_b32 v%d, v%d, v%d" % (PA[e] + j, vPM, PA[e] + j) for j in range(12)]
            L2 += ["s_nop 1"] if e == 1 else ["v_add_f32 v%d, v%d, v%d" % (MX[q], TA[q], TA[q] + 1) for q in range(2)]
            L2 += ["%s %s, %s, %s, %s" % (MF32, vr(SC[e], 16), AF[6 + g], vr(PA[e] + 4 * g, 4), "0" if g == 0 else vr(SC[e], 16)) for g in range(3)]
        L2 += ["v_add_f32 v%d, v%d, v%d" % (MX[e], MX[e], TA[e] + j) for j in range(2, 12) for e in range(2)]
        L2 += ["v_mov_b32 v%d, v%d" % (MX[e] + 1, MX[e]) for e in range(2)]
        L2 += ["s_mul_i32 s%d, s%d, %d" % (sA0, sRA, CROW), "s_lshl_b32 s%d, s%d, 11" % (sA1, sHP)]
        L2 += ["v_permlane32_swap_b32 v%d, v%d" % (MX[e], MX[e] + 1) for e in range(2)]
        L2 += ["v_add_f32 v%d, v%d, v%d" % (MX[e], MX[e], MX[e] + 1) for e in range(2)]
        L2 += ["v_rcp_f32 v%d, v%d" % (MX[e], MX[e]) for e in range(2)]
        L2 += ["s_add_u32 s%d, s%d, s%d" % (sA0, sA0, sA1), "s_add_u32 s%d, s%d, 0x%x" % (sA0, sA0, OFF_C + 256 * 1024)]
        L2 += ["v_mul_f32 v%d, v%d, v%d" % (MX[e], MX[e], vGA) for e in range(2)]
        for e in range(2):
            src = SC[e] + 8 * e
            L2 += ["v_mul_f32 v%d, v%d, v%d" % (src + j, MX[e], src + j) for j in range(8)]
            L2 += ["v_cvt_pk_bf16_f32 v%d, v%d, v%d" % (PA[e] + j, src + 2 * j, src + 2 * j + 1) for j in range(4)]
        LST = ["buffer_store_dwordx4 %s, v%d, s[%d:%d], s%d offen offset:%d sc1" % (vr(PA[e], 4), vK, SV, SV + 3, sA0, e * 1024) for e in range(2)]
        for x in L1: a(x)
        srd(a, SOUT, 100, 2048 * 1024)
        a("s_lshr_b32 s%d, s%d, 3" % (sQ, sH))
        a("s_and_b32 s%d, s%d, 1\ns_lshl_b32 s%d, s%d, 1\ns_and_b32 s%d, s%d, 1\ns_add_u32 s%d, s%d, s%d\ns_lshl_b32 s%d, s%d, 12" % (sT0, sWV, sT0, sT0, sT1, sQ, sT2, sT0, sT1, sT0, sT2))
        a("v_add_u32 v%d, s%d, v%d\nv_xor_b32 v%d, 4096, v%d" % (vA[0], sT0, vK, vA[1], vA[0]))
        a("v_lshrrev_b32 v7, 4, v0\nv_lshrrev_b32 v8, 2, v0\nv_and_b32 v8, 3, v8\nv_lshrrev_b32 v9, 5, v0\nv_lshl_add_u32 v9, v9, 2, v8")
        a("v_and_b32 v7, 1, v7\nv_lshlrev_b32 v7, 1, v7\nv_lshrrev_b32 v10, 1, v0\nv_and_b32 v10, 1, v10\nv_add_u32 v7, v7, v10\nv_and_b32 v10, 1, v0\nv_lshlrev_b32 v10, 3, v10")
        a("s_and_b32 s%d, s%d, 2\ns_lshr_b32 s%d, s%d, 1\ns_add_u32 s%d, s%d, s%d\nv_xor_b32 v8, s%d, v8" % (sT0, sWV, sT1, sQ, sT0, sT0, sT1, sT0))
        a("v_lshlrev_b32 v8, 2, v8\nv_xor_b32 v8, v8, v7\nv_lshlrev_b32 v8, 4, v8\nv_lshl_add_u32 v8, v9, 8, v8\nv_add_u32 v%d, v8, v10\nv_xor_b32 v%d, 64, v%d" % (vW[0], vW[1], vW[0]))
        a("s_and_b32 s%d, s%d, 3\ns_lshl_b32 s%d, s%d, 2\ns_add_u32 s%d, s%d, s%d\ns_lshl_b32 s%d, s%d, 6" % (sT1, sH, sT1, sT1, sT1, sT1, sT0, sOUT, sT1))
        a("s_lshl_b32 s%d, s%d, 2\ns_add_u32 s%d, s%d, s%d\ns_lshl_b32 s%d, s%d, 15\ns_add_u32 s%d, s%d, s%d" % (sT0, sRBK, sT0, sT0, sT2, sT0, sT0, sOUT, sOUT, sT0))
        a("v_and_b32 v6, 31, v0\nv_lshlrev_b32 v6, 10, v6\nv_lshrrev_b32 v7, 5, v0\nv_lshl_add_u32 v6, v7, 4, v6")
        a("v_min_u32 v9, 1, v0\nv_lshlrev_b32 v9, 29, v9\nv_mov_b32 v10, 1\nv_and_b32 v8, 7, v0\nv_lshlrev_b32 v8, 2, v8\nv_and_b32 v11, 12, v8")
        def signal_wait(sown, vo, pre):
            lp, lo_ = a.label("xpoll"), a.label("xok")
            a("s_waitcnt vmcnt(0)\ns_barrier\ns_cmp_lg_u32 s%d, 0\ns_cbranch_scc1 %s_s" % (sWV, lo_))
            a("buffer_store_dword v10, v9, s[%d:%d], s%d offen sc1\n%s_s:" % (SO, SO + 3, sown, lo_))
            for x in pre: a(x)
            a("s_cmp_lg_u32 s%d, 0\ns_cbranch_scc1 %s" % (sWV, lo_))
            a("s_and_b32 s%d, s%d, 0xffffff80\ns_mov_b32 s%d, 0x80000\n%s:" % (sT0, sown, sT1, lp))
            a("buffer_load_dword v12, v%d, s[%d:%d], s%d offen sc1\ns_waitcnt vmcnt(0)\nv_cmp_gt_u32 vcc, 1, v12\ns_cbranch_vccz %s" % (vo, SO, SO + 3, sT0, lo_))
            a("s_sleep %d\ns_sub_u32 s%d, s%d, 1\ns_cmp_lg_u32 s%d, 0\ns_cbranch_scc1 %s\n%s:" % (SLP, sT1, sT1, sT1, lp, lo_))
            a("s_waitcnt vmcnt(0)\ns_barrier")
        a("s_cmp_eq_u32 s%d, 0\ns_cselect_b32 s%d, 2, 0\ns_cselect_b32 s%d, 0, 0x20000000\nv_add_u32 v192, s%d, v8\nv_or_b32 v193, s%d, v9\nv_mov_b32 v194, 2\ns_and_b32 s%d, s%d, 0xffffff80" % (sWV, sG1, sT0, sT0, sT0, sG2, sFG))
        for x in L2[:LSPL]: a(x)
        signal_wait(sFG, 8, flat(a_dma(0) + a_dma(1)) + L2[LSPL:])
        st_("sync")
        for x in flat(a_dma(2) + a_dma(3)) + LST: a(x)
        curA, curW = [0], [0]
        def reads(k):
            st, ks = k // 4, k % 4
            L = []
            def win(base, cur, regs_):
                w_ = base // 65536
                if w_ != cur[0]:
                    d = (w_ - cur[0]) * 65536
                    for r in regs_: L.append(("v_add_u32 v%d, 0x%x, v%d" % (r, d, r)) if d > 0 else ("v_subrev_u32 v%d, 0x%x, v%d" % (r, -d, r)))
                    cur[0] = w_
                return base % 65536
            oa = win(ARING[st % 4], curA, vA); ow = win(WRING[st % 6], curW, vW)
            F = FP + 16 * (k % 4)
            tr = lambda cb: ["ds_read_b64_tr_b16 %s, v%d offset:%d" % (vr(F + 8 + 4 * cb + 2 * r_, 2), vW[cb], ow + ks * 4096 + r_ * 2048) for r_ in range(2)]
            return L + tr(0) + ["ds_read_b128 %s, v%d offset:%d" % (vr(F + 4 * rb, 4), vA[rb], oa + ks * 1024) for rb in range(2)] + tr(1)
        for x in reads(0) + reads(1): a(x)
        vmq = [2] * 4 + [3] * 4 + [4] * 2
        pend = []
        for k in range(72):
            st, ks = k // 4, k % 4
            if ks == 2 and st + 1 < 18:
                idx = max([j for j, z in enumerate(vmq) if z <= st + 1], default=-1)
                a("s_waitcnt vmcnt(%d) lgkmcnt(6)" % (len(vmq) - 1 - idx))
                if st == 13: poll_check(4)
                a("s_barrier")
                if st == 3:
                    a("buffer_store_dword v194, v193, s[%d:%d], s%d offen sc1" % (SO, SO + 3, sFG)); vmq.append(99)
                if st == 10:
                    a(poll_load(4)); vmq.append(14)
                pend = []
                if st >= 1:
                    if st + 3 < 18: pend += [(g, st + 3) for g in a_dma(st + 3)]
                    if st + 5 < 18: pend += [(g, st + 5) for g in w_dma(st + 5)]
            else: a("s_waitcnt lgkmcnt(%d)" % (6 if k + 1 < 72 else 0))
            F = FP + 16 * (k % 4)
            R = reads(k + 2) if k + 2 < 72 else []
            take = pend[:4]; pend = pend[4:]
            for n, b in enumerate((0, 1, 2, 3) if k < 71 else (1, 2, 3, 0)):
                acc = vr(ACC + b * 16, 16)
                a("%s %s, %s, %s, %s" % (MF32, acc, vr(F + 8 + 4 * (b >> 1), 4), vr(F + 4 * (b & 1), 4), "0" if k == 0 else acc))
                for x in R[(len(R) * n) // 4:(len(R) * (n + 1)) // 4]: a(x)
                if n < len(take):
                    for x in take[n][0]:
                        a(x)
                        if isvm(x): vmq.append(take[n][1])
        st_("pm")
        a("s_nop 7")
        for j in range(1, 4):
            a("s_xor_b32 s%d, s%d, %d\ns_mul_i32 s%d, s%d, 49152\ns_add_u32 s%d, s%d, s%d\ns_add_u32 s%d, s%d, %d" % (sT0, sQ, j, sT0, sT0, sT0, sT0, sXO, sT0, sT0, (j - 1) * 16384))
            for r in range(8): a("v_cvt_pk_bf16_f32 v%d, v%d, v%d" % (FP + 8 * j + r, ACC + j * 16 + 2 * r, ACC + j * 16 + 2 * r + 1))
            for c in range(2): a("buffer_store_dwordx4 %s, v%d, s[%d:%d], s%d offen offset:%d sc1" % (vr(FP + 8 * j + 4 * c, 4), vK, SO, SO + 3, sT0, c * 1024))
        def xloads():
            a("s_mov_b32 s%d, s%d" % (sT0, sXR))
            for j in range(1, 4):
                for c in range(2): a("buffer_load_dwordx4 %s, v%d, s[%d:%d], s%d offen offset:%d sc1" % (vr(ACC + j * 16 + 4 * c, 4), vK, SO, SO + 3, sT0, c * 1024))
                if j < 3: a("s_add_u32 s%d, s%d, 16384" % (sT0, sT0))
        if SENT:
            lp, lo_ = a.label("xp"), a.label("xo")
            a("s_mov_b32 s%d, 0x40000\ns_sleep %d\n%s:" % (sT1, XSL0, lp))
            xloads()
            rr = [ACC + j * 16 + r for j in range(1, 4) for r in range(8)]
            a("s_waitcnt vmcnt(0)\nv_max3_u32 v12, v%d, v%d, v%d" % tuple(rr[:3]))
            for j in range(3, 23, 2): a("v_max3_u32 v12, v12, v%d, v%d" % (rr[j], rr[j + 1]))
            a("v_max_u32 v12, v12, v%d\nv_cmp_eq_u32 vcc, -1, v12\ns_cbranch_vccz %s" % (rr[23], lo_))
            a("s_sleep %d\ns_sub_u32 s%d, s%d, 1\ns_cmp_lg_u32 s%d, 0\ns_cbranch_scc1 %s\n%s:" % (SLP, sT1, sT1, sT1, lp, lo_))
            st_("xs")
        else:
            signal_wait(sFX, 11, [])
            st_("xs")
            xloads()
        for j in range(1, 4):
            a("s_waitcnt vmcnt(%d)" % (2 * (3 - j)))
            for r in range(8):
                t = ACC + j * 16 + r
                a("v_lshlrev_b32 v12, 16, v%d\nv_and_b32 v13, 0xffff0000, v%d\nv_add_f32 v%d, v%d, v12\nv_add_f32 v%d, v%d, v13" % (t, t, ACC + 2 * r, ACC + 2 * r, ACC + 2 * r + 1, ACC + 2 * r + 1))
        for r in range(8): a("v_cvt_pk_bf16_f32 v%d, v%d, v%d" % (FP + r, ACC + 2 * r, ACC + 2 * r + 1))
        a("s_nop 1")
        for pr in range(2): a("v_permlane32_swap_b32 v%d, v%d\nv_permlane32_swap_b32 v%d, v%d" % (FP + 4 * pr, FP + 4 * pr + 2, FP + 4 * pr + 1, FP + 4 * pr + 3))
        for pr in range(2): a("buffer_store_dwordx4 %s, v6, s[%d:%d], s%d offen offset:%d" % (vr(FP + 4 * pr, 4), SOUT, SOUT + 3, sOUT, 32 * pr))
    T.dump(SO, sWV, 4)
    a(done + ":\ns_endpgm")
    a(lRare + ":")
    for (ls, lb, kind) in spins:
        lp = a.label("sp")
        a(ls + ":\ns_mov_b32 s%d, 0x40000\n%s:" % (sT2, lp))
        a("s_sleep 8\n" + poll_load(kind) + "\ns_waitcnt vmcnt(0)\n%s\ns_cbranch_vccz %s" % (poll_cmp(kind), lb))
        a("s_sub_u32 s%d, s%d, 1\ns_cmp_lg_u32 s%d, 0\ns_cbranch_scc1 %s\ns_branch %s" % (sT2, sT2, sT2, lp, lb))
    for (ls, lb) in rels:
        a("%s:\nbuffer_wbl2 sc1\ns_waitcnt vmcnt(0)\ns_branch %s" % (ls, lb))
    sRET = 44
    for (p, sm, qk), (lr, users) in rare.items():
        for rid, (lj, lb) in enumerate(users):
            a("%s:\ns_mov_b32 s%d, %d\ns_branch %s" % (lj, sRET, rid, lr))
        a(lr + ":")
        a("s_nop 7\ns_nop 7")
        Sc, Sn = S[p], S[1 - p]
        for rb in range(2 if sm == 1 else 1):
            cur = [Sc + rb * 32 + j for j in range(32)] if sm == 1 else [Sc + j for j in range(64)]
            d, f = vX, vX + 2
            rowmax(d, cur)
            a("v_max_f32 v%d, 0, v%d\nv_exp_f32 v%d, -v%d" % (d, d, f, d))
            for r in cur: a("v_sub_f32 v%d, v%d, v%d" % (r, r, d))
            for j in range(16): a("v_sub_f32 v%d, v%d, v%d" % (NM + rb * 16 + j, NM + rb * 16 + j, d))
            nx = []
            if qk == 1: nx = [Sn + rb * 32 + j for j in range(32)]
            elif qk == 2 and rb == 0: nx = [Sn + j for j in range(64)]
            for r in nx: a("v_sub_f32 v%d, v%d, v%d" % (r, r, d))
            a("v_mul_f32 v%d, v%d, v%d" % (vL[rb], vL[rb], f))
            for j in range(0, 64, 4):
                for q in range(4): a("v_accvgpr_read_b32 v%d, a%d" % (TM + q, O + rb * 64 + j + q))
                for q in range(4): a("v_mul_f32 v%d, v%d, v%d" % (TM + q, TM + q, f))
                for q in range(4): a("v_accvgpr_write_b32 a%d, v%d" % (O + rb * 64 + j + q, TM + q))
        for c, x in sm_list(p, sm): a(x)
        for rid, (lj, lb) in enumerate(users):
            if rid < len(users) - 1: a("s_cmp_eq_u32 s%d, %d\ns_cbranch_scc1 %s" % (sRET, rid, lb))
            else: a("s_branch %s" % lb)
    a.add_kernel(name, 512, 102, 256)
    a.launch(name, 256, 256, 163840)
```

```python
from gen_common import *
from sched import Sched, isvm
from pack import Gaps, cost as gcost
import re as _re
MF16 = "v_mfma_f32_16x16x32_bf16"
MFH = "v_mfma_f32_16x16x16_bf16"
pX, pWQKV, pWO0, pC, pWQ, pWUK, pWUV, pBWO, pGATE, pDBG, pWS = 36, 38, 40, 44, 46, 48, 50, 52, 54, 58, 60
pWO = 58
NEG = "0xff800000"
THRESH = fbits(2.0 ** 48)
WSL = (98304, 131072)
LDS_G = WSL[0] + 24576
def aslot(g): return ((g + 2) % 3) * 32768
def flat(G): return [x for g in G for x in (g if isinstance(g, list) else [g])]
def soft(G):
    out = []
    for g in G:
        if any(x.startswith("s_cselect") for x in g):
            k = [j for j, x in enumerate(g) if x.startswith("s_cmp") or x.startswith("s_bitcmp")][0]
            out += g[:k] + [g[k:]]
        else: out += g
    return out

def gen2(a, name="p1_kernel", ts=False, PF=1, PD=8, WP=2, TS2=0, TS3=0, DFR=10, LSPL=60, SLP=4, QSL=(4, 6, 5), XSL=3, PDW=5, GPUB=11, VERB=0, NE=6, PB=2,
         STAMPS=("start", "q", "attn", "mid", "s17")):
    XL2 = 0; PRE0 = 0; endlabel = None; SENT = 0
    a.begin_kernel(name)
    T = TS(a, ts, 0, base=72)
    def st_(nm):
        if nm in STAMPS: T.stamp(STAMPS.index(nm))
    done = a.label("fdone")
    lAttn, lRare = a.label("attn"), a.label("rarecode")
    sWV = 3
    SA, SW, SX, SO, SD = 4, 8, 12, 16, 40
    sH, sI, sT0, sT1, sT2 = 20, 21, 22, 23, 24
    sAS, sAS2, sWS, sXS, sAM, sWM, sXM, sCNT, sOK, sDS, sSC = 25, 26, 27, 28, 29, 30, 31, 32, 33, 34, 35
    sQL, sQS, sU, sOA, sAD, sWD, sOJ, sVD, sFA, sGR = 92, 93, 94, 95, 96, 97, 56, 57, 63, 99
    sKO, sVO, sW4, sW8, sTH, sT = 48, 49, 50, 51, 54, 55
    vL16 = 1
    vAO, vWO, vXO = (2, 3, 4, 5), (6, 7, 8, 9), (10, 11)
    vAR, vWR, vXR = (12, 13), tuple(range(14, 22)), (22, 23, 24)
    vGR, vGA2, GC = 25, (26, 27), 92
    QS = (28, 44); WR, NWR = 60, 8; TT, PK = 96, 104
    KS = (128, 160)
    vFO, vONE, vPFD, vTS, vW12, vPL, vPLO = 120, 121, 122, 123, 124, 125, 126
    sWS2, sOK2 = 62, 98
    QA = 128
    t2 = [0]
    def bar(waitstr):
        if TS2:
            n = t2[0]; t2[0] += 1
            if n > 0: a("v_writelane_b32 v123, s72, %d\nv_writelane_b32 v123, s74, %d" % (2 * n - 2, 2 * n - 1))
            a("s_memtime s[72:73]")
        a(waitstr + "\ns_barrier")
        if TS2: a("s_memtime s[74:75]")
    a("s_cmp_ge_u32 s2, 256\ns_cbranch_scc1 %s" % done)
    st_("start")
    a("s_load_dwordx16 s[36:51], s[0:1], 0\ns_load_dwordx8 s[52:59], s[0:1], 64\ns_load_dwordx2 s[60:61], s[0:1], 96")
    a("v_lshrrev_b32 v30, 6, v0\nv_and_b32 v0, 63, v0\nv_readfirstlane_b32 s%d, v30" % sWV)
    a("s_and_b32 s%d, s2, 7\ns_lshl_b32 s%d, s%d, 2\ns_lshr_b32 s%d, s2, 3\ns_and_b32 s%d, s%d, 3\ns_add_u32 s%d, s%d, s%d" % (sH, sH, sH, sT0, sT0, sT0, sH, sH, sT0))
    a("s_lshr_b32 s%d, s2, 5" % sI)
    a("v_lshlrev_b32 v%d, 4, v0" % vL16)
    a("v_lshrrev_b32 v30, 3, v0\nv_lshrrev_b32 v31, 4, v0\nv_and_b32 v32, 7, v0")
    a("v_xor_b32 v33, v31, v32\nv_lshlrev_b32 v33, 4, v33\nv_lshl_add_u32 v%d, v30, 10, v33" % vAO[0])
    a("v_add_u32 v%d, %d, v%d\nv_xor_b32 v33, 64, v%d\nv_add_u32 v%d, %d, v33\nv_add_u32 v%d, %d, v33" % (vAO[2], 2 * 7168, vAO[0], vAO[0], vAO[1], 7168, vAO[3], 3 * 7168))
    a("v_and_b32 v33, 15, v0\nv_lshlrev_b32 v34, 2, v31\nv_xor_b32 v33, v33, v34\nv_lshlrev_b32 v33, 4, v33\nv_lshl_add_u32 v%d, v31, 13, v33" % vWO[0])
    a("v_add_u32 v%d, %d, v%d\nv_xor_b32 v33, 32, v%d\nv_add_u32 v%d, %d, v33\nv_add_u32 v%d, %d, v33" % (vWO[1], 31744, vWO[0], vWO[0], vWO[2], 2 * 31744, vWO[3], 3 * 31744))
    a("s_sub_u32 s%d, 15, s%d\ns_bitcmp1_b32 s%d, 0\ns_cselect_b32 s%d, s%d, s%d\ns_lshl_b32 s%d, s%d, 1\ns_lshr_b32 s%d, s%d, 1\ns_add_u32 s%d, s%d, s%d" % (sT0, sI, sWV, sT0, sT0, sI, sT0, sT0, sT1, sWV, sT0, sT0, sT1))
    a("s_lshl_b32 s%d, s%d, 16\ns_add_u32 s%d, s%d, 32768" % (sAS, sT0, sAS2, sAS))
    a("s_lshl_b32 s%d, s%d, 13\ns_mov_b32 s%d, s%d" % (sAM, sWV, sWM, sAM))
    a("s_and_b32 s%d, s%d, 1\ns_lshl_b32 s%d, s%d, 18\ns_lshl_b32 s%d, s%d, 8\ns_add_u32 s%d, s%d, s%d" % (sT0, sWV, sT0, sT0, sWS, sH, sWS, sWS, sT0))
    a("s_and_b32 s%d, s2, 31\ns_add_u32 s%d, s%d, 0x20000" % (sU, sWS2, sWS))
    a("s_waitcnt lgkmcnt(0)")
    a("s_mov_b32 s100, s56\ns_mov_b32 s101, s57")
    srd(a, SA, pC, 0x200000)
    a("s_cmp_lt_u32 s%d, 2\ns_cselect_b32 s%d, s%d, s%d\ns_cselect_b32 s%d, s%d, s%d\ns_mov_b32 s%d, 0x400000\ns_mov_b32 s%d, 0x20000" % (sWV, SW, pWUK, pWUV, SW + 1, pWUK + 1, pWUV + 1, SW + 2, SW + 3))
    def dgrp(m0s, m0i, vo, srd_, so, stp, nd):
        G = ["s_add_u32 m0, s%d, %d" % (m0s, m0i)]
        G += ["buffer_load_dwordx4 v%d, s[%d:%d], s%d offen offset:%d lds ; need:%d" % (v, srd_, srd_ + 3, so, n * 1024, nd) for n, v in enumerate(vo)]
        G.append("s_add_u32 s%d, s%d, %d" % (so, so, stp))
        return G
    def fixm0(G):
        out = []
        for k, x in enumerate(G):
            out.append(x)
            if x.startswith("s_add_u32 m0"):
                if len(out) > 1 and out[-2].startswith("s_add_u32 s"): out[-1], out[-2] = out[-2], out[-1]
                else: out.append("s_nop 0")
        return out
    def dma_act(g): return fixm0(dgrp(sAM, aslot(g), vAO, SA, sAS, 128, g) + dgrp(sAM, aslot(g) + 4096, vAO, SA, sAS2, 128, g))
    def dma_w(g):
        G = dgrp(sWM, WSL[g % 2], vWO, SW, sWS, 0x80000, g)
        if g < 8: G += dgrp(sWM, WSL[g % 2] + 4096, vWO, SW, sWS2, 0x80000, g)
        else: G += dgrp(sXM, WSL[g % 2] + 16384, vXO, SX, sXS, 64 * 3072, g)
        return fixm0(G)
    for x in dma_w(0) + dma_act(0): a(x.split(";")[0])
    NSL = max(XL2 + 4 if XL2 else 0, max(QSL) + 1, XSL + 1)
    def preg(k): return 192 + 2 * k
    def pf(k): return "global_load_dword v122, %s, off" % vr(preg(k), 2)
    def pfa(k, base, vo, so, imm=0):
        r = preg(k)
        a("s_add_u32 s%d, s%d, %d\nv_mov_b32 v%d, s%d\nv_add_u32 v%d, s%d, v%d" % (sT2, so, imm, r + 1, base + 1, r, sT2, vo))
        a("v_add_co_u32 v%d, vcc, s%d, v%d\ns_nop 1\nv_addc_co_u32 v%d, vcc, 0, v%d, vcc" % (r, base, r, r + 1, r + 1))
    def pfnone(k): a("v_mov_b32 v%d, s%d\nv_mov_b32 v%d, s%d" % (preg(k), pGATE, preg(k) + 1, pGATE + 1))
    if PF:
        l1, l3, le = a.label("pf1"), a.label("pf3"), a.label("pfe")
        a("s_cmp_eq_u32 s%d, 1\ns_cbranch_scc1 %s\ns_cmp_eq_u32 s%d, 3\ns_cbranch_scc1 %s" % (sWV, l1, sWV, l3))
        a("v_and_b32 v26, 31, v0\nv_lshlrev_b32 v26, 7, v26\ns_lshl_b32 s%d, s2, 13\ns_lshl_b32 s%d, s%d, 11\ns_add_u32 s%d, s%d, s%d" % (sT0, sT1, sWV, sT0, sT0, sT1))
        pfa(0, pC, 26, sT0, 0); a(pf(0))
        pfa(XSL, pX, 26, sT0, 0)
        used = {0, XSL}
        if XL2:
            a("s_lshr_b32 s%d, s2, 3\ns_lshl_b32 s%d, s%d, 16\ns_lshl_b32 s%d, s%d, 6\ns_add_u32 s%d, s%d, s%d\nv_lshlrev_b32 v26, 10, v0" % (sT0, sT0, sT0, sT1, sWV, sT1, sT0, sT1))
            for j in range(4):
                pfa(XL2 + j, pX, 26, sT1, 256 * j); used.add(XL2 + j)
        for k in range(NSL):
            if k not in used: pfnone(k)
        a("s_branch %s\n%s:" % (le, l1))
        a("v_lshlrev_b32 v26, 13, v30\nv_lshl_add_u32 v26, v32, 7, v26")
        a("s_bitcmp1_b32 s2, 3\ns_cselect_b32 s98, s%d, s%d\ns_cselect_b32 s99, s%d, s%d" % (pWUV, pWUK, pWUV + 1, pWUK + 1))
        a("s_and_b32 s%d, s2, 7\ns_lshl_b32 s%d, s%d, 10\ns_lshr_b32 s%d, s2, 4\ns_and_b32 s%d, s%d, 7\ns_lshl_b32 s%d, s%d, 16\ns_lshl_b32 s%d, s%d, 16" % (sT1, sT1, sT1, sT0, sCNT, sT0, sT0, sT0, sCNT, sCNT))
        a("s_add_u32 s%d, s%d, s%d\ns_add_u32 s%d, s%d, s%d" % (sT0, sT0, sT1, sCNT, sCNT, sT1))
        if PRE0:
            pfnone(0); a(pf(0)); pfa(1, 98, 26, sT0, 4 * 0x80000); pfa(2, 98, 26, sT0, 6 * 0x80000); pfnone(3)
        else:
            pfa(0, 98, 26, sT0, 1 * 0x80000); a(pf(0))
            pfa(1, 98, 26, sT0, 3 * 0x80000); pfa(2, 98, 26, sT0, 5 * 0x80000); pfa(3, 98, 26, sCNT, 7 * 0x80000)
        for k in range(4, NSL): pfnone(k)
        a("s_branch %s\n%s:" % (le, l3))
        lpc = a.label("pc")
        a("s_getpc_b64 s[98:99]\n%s:" % lpc)
        a("s_lshr_b32 s%d, s2, 3\nv_lshlrev_b32 v26, 5, v0\nv_add_u32 v26, s%d, v26\nv_lshlrev_b32 v26, 7, v26\ns_mov_b32 s%d, 0" % (sT0, sT0, sT0))
        a("v_min_u32 v27, %s-%s, v26" % (lAttn, lpc))
        pfa(0, 98, 27, sT0, 0); a(pf(0))
        a("v_lshlrev_b32 v26, 13, v30\nv_lshl_add_u32 v26, v32, 7, v26")
        a("s_lshr_b32 s%d, s2, 3\ns_lshl_b32 s%d, s%d, 16\ns_and_b32 s%d, s2, 7\ns_lshl_b32 s%d, s%d, 10\ns_add_u32 s%d, s%d, s%d" % (sT0, sT0, sT0, sT1, sT1, sT1, sT0, sT0, sT1))
        pfa(QSL[0], pWQ, 26, sT0, 0); pfa(QSL[1], pWQ, 26, sT0, 4 * 0x80000)
        a("s_min_u32 s%d, s%d, 23\ns_lshl_b32 s%d, s%d, 7\ns_mul_i32 s%d, s%d, %d\ns_add_u32 s%d, s%d, s%d\nv_mul_u32_u24 v26, 3072, v0" % (sT0, sU, sT0, sT0, sT1, sI, 64 * 3072, sT0, sT0, sT1))
        pfa(QSL[2], pWQKV, 26, sT0, 0)
        for k in range(1, NSL):
            if k not in QSL: pfnone(k)
        a(le + ":")
    def pfp(p): return [pf(p + 2)] if (PF and p + 2 < NSL) else []
    srd(a, SO, pWS, WS_SIZE)
    a("s_and_b32 s%d, s%d, 3\ns_and_b32 s%d, s2, 7\ns_lshl_b32 s%d, s%d, 7" % (sT0, sH, sT1, sT1, sT1))
    a("s_lshl_b32 s%d, s%d, 5\ns_add_u32 s%d, s%d, s%d\ns_add_u32 s%d, s%d, %d" % (sT2, sT0, sT2, sT2, sT1, sT2, sT2, 2048 - 64))
    a("s_lshr_b32 s%d, s%d, 1\ns_lshl_b32 s%d, s%d, 10\ns_add_u32 s%d, s%d, s%d\ns_and_b32 s%d, s%d, 1\ns_lshl_b32 s%d, s%d, 6\ns_add_u32 s%d, s%d, s%d" % (sDS, sT0, sDS, sDS, sT1, sT1, sDS, sDS, sT0, sDS, sDS, sT1, sT1, sDS))
    a("v_and_b32 v33, 1, v31\nv_lshlrev_b32 v33, 2, v33\nv_xor_b32 v33, v33, v32\nv_mul_u32_u24 v34, 3072, v30\nv_mov_b32 v36, s%d\nv_mov_b32 v37, s%d\nv_mov_b32 v38, 0x1000000" % (sT1, sT2))
    for n in range(2):
        if n: a("v_xor_b32 v33, 2, v33\nv_add_u32 v34, %d, v34" % (24576 - 1024))
        a("v_cmp_gt_u32 vcc, 4, v33\nv_cmp_gt_u32 s[98:99], 6, v33\nv_lshl_add_u32 v35, v33, 4, v34\nv_cndmask_b32 v39, v37, v36, vcc\nv_cndmask_b32 v39, v38, v39, s[98:99]\nv_add_u32 v%d, v35, v39" % vXO[n])
    a("v_and_b32 v33, 15, v0\nv_lshrrev_b32 v34, 1, v33\nv_xor_b32 v34, v34, v31\nv_lshlrev_b32 v34, 4, v34\nv_lshl_add_u32 v34, v33, 7, v34")
    a("s_lshl_b32 s%d, s%d, 11\ns_lshl_b32 s%d, s%d, 13\ns_add_u32 s%d, s%d, s%d\ns_add_u32 s%d, s%d, %d" % (sT0, sT0, sT1, sWV, sT0, sT0, sT1, sT0, sT0, aslot(8)))
    a("v_add_u32 v%d, s%d, v34\nv_xor_b32 v%d, 64, v%d\nv_lshlrev_b32 v%d, 4, v31\nv_add_u32 v%d, %d, v%d" % (vGA2[0], sT0, vGA2[1], vGA2[0], vGR, vGR, LDS_G, vGR))
    a("s_and_b32 s%d, s%d, 1\ns_lshl_b32 s%d, s%d, 14\ns_add_u32 s%d, s%d, %d" % (sT0, sWV, sT0, sT0, sT0, sT0, aslot(0)))
    a("v_add_u32 v%d, s%d, v34\nv_xor_b32 v%d, 64, v%d" % (vAR[0], sT0, vAR[1], vAR[0]))
    a("v_lshrrev_b32 v35, 2, v0\nv_and_b32 v35, 3, v35\nv_lshl_add_u32 v36, v31, 3, v35")
    a("v_bfe_u32 v37, v0, 1, 1\nv_and_b32 v34, 1, v31\nv_lshl_add_u32 v37, v34, 1, v37\nv_and_b32 v38, 1, v0\nv_lshlrev_b32 v38, 3, v38")
    a("v_lshlrev_b32 v39, 2, v35\nv_xor_b32 v39, v39, v37\nv_lshlrev_b32 v39, 4, v39\nv_lshl_add_u32 v39, v36, 8, v39")
    a("s_lshr_b32 s%d, s%d, 1\ns_lshl_b32 s%d, s%d, 14\ns_add_u32 s%d, s%d, %d\nv_add3_u32 v39, v39, v38, s%d" % (sWD, sWV, sWD, sWD, sT0, sWD, WSL[0], sT0))
    for k in range(8): a("v_xor_b32 v%d, %d, v39" % (vWR[k], 32 * k))
    a("v_lshrrev_b32 v39, 1, v35\nv_lshlrev_b32 v39, 2, v39\nv_xor_b32 v39, v39, v37\nv_lshlrev_b32 v39, 4, v39\nv_lshl_add_u32 v39, v36, 7, v39\nv_add_u32 v39, v39, v38\nv_add_u32 v39, %d, v39" % (WSL[0] + 16384))
    for k in range(3): a("v_xor_b32 v%d, %d, v39" % (vXR[k], 32 * k))
    a("s_lshl_b32 s%d, s%d, 2\ns_add_u32 s%d, s%d, s%d\ns_sub_u32 s%d, 60, s%d\ns_add_u32 s%d, s%d, s%d" % (sT1, sI, sQS, sT1, sWV, sQL, sT1, sQL, sQL, sWV))
    a("s_lshr_b32 s%d, s%d, 1\ns_lshl_b32 s%d, s%d, 5\ns_add_u32 s%d, s%d, s%d\ns_add_u32 s%d, s%d, 44\ns_lshl_b32 s%d, s%d, 19" % (sT0, sWV, sT0, sT0, sT0, sT0, sH, sT0, sT0, sOK, sT0))
    a("s_and_b32 s%d, s%d, 1\ns_lshl_b32 s%d, s%d, 1\ns_add_u32 s%d, s%d, s%d\ns_lshl_b32 s%d, s%d, 14\ns_add_u32 s%d, s%d, s%d" % (sT0, sWV, sT1, sI, sT0, sT0, sT1, sT0, sT0, sOK, sOK, sT0))
    a("s_lshl_b32 s%d, s%d, 16\ns_sub_u32 s%d, %d, s%d" % (sT0, sI, sOJ, 60 * 8192 - 4096, sT0))
    a("s_lshl_b32 s%d, s%d, 13\ns_and_b32 s%d, s%d, 1\ns_lshl_b32 s%d, s%d, 14\ns_sub_u32 s%d, s%d, s%d\ns_add_u32 s%d, s%d, %d" % (sT0, sWV, sT1, sWV, sT1, sT1, sAD, sT0, sT1, sAD, sAD, aslot(8) - aslot(7)))
    a("s_lshl_b32 s%d, s%d, 6\nv_add_u32 v%d, s%d, v0\nv_lshlrev_b32 v%d, 12, v%d\nv_mov_b32 v%d, 1" % (sT0, sWV, vFO, sT0, vFO, vFO, vONE))
    lpc2 = a.label("pc")
    a("s_getpc_b64 s[0:1]\n%s:" % lpc2)
    a("s_lshr_b32 s%d, s2, 3\ns_lshl_b32 s%d, s%d, 2\ns_add_u32 s%d, s%d, s%d\nv_and_b32 v127, 15, v0\nv_lshlrev_b32 v127, 7, v127\nv_add_lshl_u32 v127, v127, s%d, 7" % (sT0, sT0, sT0, sT0, sT0, sWV, sT0))
    a("v_min_u32 v127, %s-%s, v127" % (endlabel or lRare, lpc2))
    srd(a, SX, pGATE, 1024)
    a("s_mov_b32 s98, s%d\ns_mov_b32 s99, s%d" % (pWO0, pWO0 + 1))
    srd(a, SD, pDBG, 256)
    a("s_mov_b32 s%d, s98\ns_mov_b32 s%d, s99" % (pWO, pWO + 1))
    a("s_getreg_b32 s%d, hwreg(HW_REG_XCC_ID, 0, 4)\ns_mul_i32 s%d, s%d, s%d\ns_lshl_b32 s%d, s%d, 8\ns_add_u32 s%d, s%d, s%d\ns_lshl_b32 s%d, s%d, 8\ns_add_u32 s%d, s%d, 1" % (sT0, sT1, sT0, sT0, sT1, sT1, sT1, sT1, sT0, sT1, sT1, sFA, sT1))
    a("v_mov_b32 v125, s%d\ns_lshl_b32 s%d, s%d, 3\ns_and_b32 s%d, s2, 7\ns_lshl_b32 s%d, s%d, 2\ns_lshl_b32 s%d, s%d, 2" % (sFA, sFA, sFA, sGR, sGR, sGR, sCNT, sH))
    a("v_and_b32 v126, 3, v0\nv_add_lshl_u32 v126, v126, s%d, 2\ns_lshl_b32 s%d, s%d, 12\nv_add_u32 v126, s%d, v126\nv_mov_b32 v124, s%d" % (sGR, sT0, sWV, sT0, sT0))
    a("buffer_atomic_add v125, v%d, s[%d:%d], s%d offen offset:128 sc1\ns_add_u32 s%d, s%d, 8192" % (vFO, SD, SD + 3, sCNT, sOK2, sOK))

    def wofs(g): return (g % 2) * 32768
    def xa(g, ks, R=vAR):
        if g == 7: return "v_add_u32 v%d, s%d, v%d" % (R[ks], sAD, R[ks])
        d = aslot(g + 1) - aslot(g)
        return ("v_add_u32 v%d, 0x%x, v%d" % (R[ks], d, R[ks])) if d > 0 else ("v_subrev_u32 v%d, 0x%x, v%d" % (R[ks], -d, R[ks]))
    def rd_act(g, ks):
        F = (KS if g < 8 else QS)[ks]
        return ["ds_read_b128 %s, v%d offset:%d" % (vr(F + 4 * n, 4), vAR[ks], n * 2048) for n in range(8 if g < 8 else 4)]
    def rd_w(g, ks, wf, slot):
        r = WR + 4 * (slot % NWR)
        if wf < 8: return ["ds_read_b64_tr_b16 %s, v%d offset:%d" % (vr(r + 2 * rd_, 2), vWR[wf], wofs(g) + ks * 8192 + rd_ * 1024) for rd_ in range(2)]
        if wf < 11: return ["ds_read_b64_tr_b16 %s, v%d offset:%d" % (vr(r + 2 * rd_, 2), vXR[wf - 8], wofs(g) + ks * 4096 + rd_ * 512) for rd_ in range(2)]
        return ["ds_read_b128 %s, v%d offset:%d" % (vr(r, 4), vGR, ((g - 8) * 2 + ks) * 64), "ds_read_b128 %s, v%d" % (vr(GC, 4), vGA2[ks])] + ([xa(g, ks, vGA2)] if g < 15 else [])
    def mfs(g, ks, wf, slot, var):
        w = vr(WR + 4 * (slot % NWR), 4); F = (KS if g < 8 else QS)[ks]; first = (g % 8 == 0 and ks == 0)
        cb, tc = (wf % 8) // 2, wf % 2
        if wf == 11: return ["%s a[48:51], %s, %s, %s" % (MF16, w, vr(GC, 4), "0" if first else "a[48:51]")]
        M = []
        for n in range(8 if g < 8 else 4):
            rb, tr = n // 2, n % 2
            x = vr(F + 4 * n, 4)
            sw = (var == "V") or wf == 10
            tb, ta = (tc, tr) if sw else (tr, tc)
            if g < 8: acc = ar(((rb // 2) * 16 + cb * 4 + (rb % 2) * 2 + tb) * 8 + ta * 4, 4)
            elif wf < 8: acc = vr(QA + ((rb * 4 + cb) * 2 + tr) * 8 + tc * 4, 4)
            elif wf < 10: acc = ar(n * 8 + tc * 4, 4)
            else: acc = ar(32 + n * 4, 4)
            M.append("%s %s, %s, %s, %s" % (MF16, acc, x if sw else w, w if sw else x, "0" if first else acc))
        return M
    def order(g, var):
        nw = list(range(8 if g < 8 else 12))
        if g == 7: return [(ks, 2 * cb + t) for cb in range(4) for ks in range(2) for t in range(2)]
        if g == 15:
            return [(ks, wf) for ks in range(2) for wf in (8, 9, 10, 0, 1, 11)] + [(ks, 2 * cb + t) for cb in range(1, 4) for ks in range(2) for t in range(2)]
        return [(ks, wf) for ks in range(2) for wf in nw]
    def build(g0, var):
        fr = [(g, ks, wf) for g in range(g0, g0 + 8) for (ks, wf) in order(g, var)]
        M = []; fm = []
        for k, (g, ks, wf) in enumerate(fr):
            fm.append(len(M)); M += mfs(g, ks, wf, k, var)
        S_ = Sched(M); n = len(M)
        look = [(8, 0, wf) for wf in range(PDW)] if g0 == 0 else []
        allf = fr + look
        cs = {};
        for k, (g, ks, wf) in enumerate(allf): cs.setdefault(g, k)
        bar_m = {g: fm[cs[g] - PDW + 1] for g in cs if g > g0}
        for g, m in bar_m.items(): S_.bars[m] = g
        na = 8 if g0 == 0 else 4
        items = []
        for k in range(PDW, len(allf)):
            g, ks, wf = allf[k]
            t = fm[k - PDW]; e = bar_m.get(g, 0); use = fm[k] if k < len(fr) else n + 1 + (k - len(fr))
            if k == cs[g] and g == 8: items += [(max(t, e), 0, j, ("v_subrev_u32 v%d, s%d, v%d" % (r, sWD, r), t, e, None)) for j, r in enumerate(vWR)]
            items += [(max(t, e), 1 if k == cs[g] else 3, 4 * k + j, (x, t, e, use if x.startswith("ds_") else None)) for j, x in enumerate(rd_w(g, ks, wf, k))]
        for g in cs:
            for ks in range(2):
                if g == g0 and ks == 0: continue
                if g == 8 and g0 == 0 and ks == 1: continue
                R = rd_act(g, ks) + ([xa(g, ks)] if g < 15 else [])
                k1 = [k for k, f in enumerate(allf) if f[0] == g and f[1] == ks][0]
                u0 = fm[k1] if k1 < len(fr) else None
                for j, x in enumerate(R):
                    if ks == 0: t = e = bar_m[g]
                    else:
                        e = fm[cs[g]]; t = e + (j * min(u0 - e - 8, 40)) // len(R)
                    use = None if not x.startswith("ds_") else (u0 + j if u0 is not None else n)
                    items.append((max(t, e), 2, j, (x, t, e, use)))
        items.sort(key=lambda z: z[:3])
        S_.rq = [z[3] for z in items]
        S_.waitpts = [fm[k] for k in range(0, len(fr), 2)]
        S_.place_reads()
        return S_, {g: fm[cs[g]] for g in range(g0, g0 + 8)}, bar_m, fm
    def pack(areg, pk, scale=None):
        t = TT
        G = ["v_accvgpr_read_b32 v%d, a%d" % (t + j, areg + j) for j in range(8)]
        if scale is not None: G += ["v_mul_f32 v%d, s%d, v%d" % (t + j, scale, t + j) for j in range(8)]
        G += ["v_cvt_pk_bf16_f32 v%d, v%d, v%d" % (pk + j, t + 2 * j, t + 2 * j + 1) for j in range(4)]
        return G
    def kv_unit(j, nd=None):
        cb, rb, tb = (j % 16) // 4, (j // 2) % 2, j % 2
        pk = PK + 4 * (j % 4)
        G = pack(j * 8, pk) + ["buffer_store_dwordx4 %s, v%d, s[%d:%d], s%d offen offset:%d%s" % (vr(pk, 4), vL16, SO, SO + 3, (sOK, sOK2)[rb], (cb % 2) * 2048 + tb * 1024, " ; need:%d" % nd if nd else "")]
        if j == 15: G += ["s_add_u32 s%d, s%d, s%d" % (sOK, sOK, sOJ), "s_add_u32 s%d, s%d, s%d" % (sOK2, sOK2, sOJ)]
        elif j % 16 == 7: G += ["s_add_u32 s%d, s%d, 4096" % (sOK, sOK), "s_add_u32 s%d, s%d, 4096" % (sOK2, sOK2)]
        return G
    qa_setup = [["s_mov_b32 s%d, s%d" % (SA, pX), "s_mov_b32 s%d, s%d" % (SA + 1, pX + 1),
                 "s_lshl_b32 s%d, s%d, 15" % (sAS, sQL), "s_lshl_b32 s%d, s%d, 15" % (sAS2, sQS)]]
    qw_setup = [["s_mov_b32 m0, %d" % LDS_G, "s_mov_b32 s%d, s%d" % (SW, pWQ), "buffer_load_dwordx4 v%d, s[%d:%d], 0 offen lds ; need:8" % (vL16, SX, SX + 3), "s_mov_b32 s%d, s%d" % (SW + 1, pWQ + 1)],
                ["s_lshl_b32 s%d, s%d, 17" % (sT0, sWV), "s_lshl_b32 s%d, s%d, 8" % (sWS, sH), "s_add_u32 s%d, s%d, s%d" % (sWS, sWS, sT0), "s_lshl_b32 s%d, s%d, 12" % (sWM, sWV)],
                ["s_mov_b32 s%d, s%d" % (SX, pWQKV), "s_mov_b32 s%d, s%d" % (SX + 1, pWQKV + 1), "s_lshl_b32 s%d, s%d, 11" % (sXM, sWV), "s_mul_i32 s%d, s%d, %d" % (sXS, sWV, 16 * 3072)],
                ["s_mov_b32 s%d, 0x180000" % (SX + 2)]]
    at_setup = [["v_cmp_ne_u32 vcc, s%d, v125" % sFA], ["s_cmp_eq_u64 vcc, 0", "s_cselect_b32 s%d, 1, s%d" % (sFA, sWV)],
                ["s_cmp_eq_u32 s%d, 0" % sWV, "s_cselect_b32 s46, 8, 0", "s_cselect_b32 s47, 0x80000000, 0"],
                ["s_lshl_b32 s%d, s%d, 12" % (sW4, sWV), "s_lshl_b32 s%d, s%d, 13" % (sW8, sWV), "s_lshl_b32 s%d, s%d, 19" % (sT0, sH)],
                ["s_lshl_b32 s%d, s%d, 15" % (sVD, sI), "s_add_u32 s%d, s%d, s%d" % (sT0, sT0, sVD)],
                ["s_add_u32 s%d, s%d, 0x%x" % (sKO, sT0, OFF_K), "s_add_u32 s%d, s%d, 0x%x" % (sVO, sT0, OFF_V), "s_mov_b32 s%d, %s" % (sTH, THRESH)]]
    sRA, sHP, sA0, sA1, sGB, sGA_, sGL_, sGS_, sP0, sP1_, sX0, sX1 = 36, 37, 38, 39, 64, 65, 66, 67, 68, 69, 70, 71
    sXO, sXR = 62, 95
    sFG, sFX, sRBK, sTIL = 96, 97, 60, 61
    late_setup = [["s_lshr_b32 s%d, s%d, 3" % (sX1, sH), "s_lshl_b32 s%d, s%d, 3" % (sFG, sX1), "s_add_u32 s%d, s%d, s%d" % (sFG, sFG, sI), "s_lshl_b32 s%d, s%d, 5" % (sFG, sFG),
                 "s_and_b32 s%d, s%d, 7" % (sX0, sH), "s_add_u32 s%d, s%d, s%d" % (sFG, sFG, sX0), "s_lshl_b32 s%d, s%d, 2" % (sFG, sFG), "s_add_u32 s%d, s%d, 0x%x" % (sFG, sFG, OFF_FL),
                 "s_sub_u32 s%d, 15, s%d" % (sX0, sI)], ["s_bitcmp1_b32 s2, 0", "s_cselect_b32 s%d, s%d, s%d" % (sRBK, sX0, sI)], ["s_lshl_b32 s%d, s%d, 2" % (sFX, sRBK),
                 "s_and_b32 s%d, s%d, 3" % (sX0, sH), "s_add_u32 s%d, s%d, s%d" % (sTIL, sFX, sX0), "s_lshl_b32 s%d, s%d, 5" % (sFX, sTIL), "s_add_u32 s%d, s%d, s%d" % (sFX, sFX, sX1),
                 "s_lshl_b32 s%d, s%d, 2" % (sFX, sFX), "s_add_u32 s%d, s%d, 0x%x" % (sFX, sFX, OFF_FL + 32 * 128)],
        ["s_bitcmp1_b32 s%d, 1" % sH, "s_cselect_b32 s%d, s%d, s%d" % (sRA, sQL, sQS)],
        ["s_and_b32 s%d, s%d, 1" % (sHP, sH), "s_lshr_b32 s%d, s%d, 1" % (sX0, sGR), "s_add_u32 s%d, s%d, s%d" % (sHP, sHP, sX0), "s_lshl_b32 s%d, s%d, 11" % (sGB, sGR), "s_add_u32 s%d, s%d, 0x%x" % (sGB, sGB, OFF_G)]]
    for d_, blk in ((sGA_, sRA), (sGL_, sQL), (sGS_, sQS)): late_setup.append(["s_lshl_b32 s%d, s%d, 7" % (d_, blk), "s_add_u32 s%d, s%d, s%d" % (d_, d_, sGB)])
    late_setup += [["s_lshr_b32 s%d, s%d, 2" % (sX0, sHP), "s_lshl_b32 s%d, s%d, 19" % (sX0, sX0), "s_and_b32 s%d, s%d, 3" % (sX1, sHP), "s_lshl_b32 s%d, s%d, 11" % (sX1, sX1),
         "s_add_u32 s%d, s%d, s%d" % (sX0, sX0, sX1), "s_lshl_b32 s%d, s%d, 13" % (sX1, sRA), "s_add_u32 s%d, s%d, s%d" % (sA0, sX0, sX1),
         "s_max_u32 s%d, s%d, 1" % (sX1, sRA), "s_sub_u32 s%d, s%d, 1" % (sX1, sX1), "s_lshl_b32 s%d, s%d, 13" % (sX1, sX1), "s_add_u32 s%d, s%d, s%d" % (sA1, sX0, sX1),
         "s_add_u32 s%d, s%d, %d" % (sA1, sA1, 4 * PH),
         "s_lshr_b32 s%d, s2, 3" % sX0, "s_lshl_b32 s%d, s%d, 2" % (sX0, sX0), "s_add_u32 s%d, s%d, s%d" % (sX0, sX0, sWV), "s_and_b32 s%d, s2, 6" % sX1,
         "s_lshl_b32 s%d, s%d, 6" % (sX1, sX1), "s_add_u32 s%d, s%d, s%d" % (sX0, sX0, sX1), "s_lshl_b32 s%d, s%d, 6" % (sP0, sX0), "s_lshl_b32 s%d, s%d, 3" % (sP1_, sX0),
         "s_mul_i32 s%d, s%d, %d" % (sXO, sTIL, 4 * 49152), "s_add_u32 s%d, s%d, s%d" % (sXO, sXO, sW4), "s_add_u32 s%d, s%d, 0x%x" % (sXO, sXO, OFF_X),
         "s_lshr_b32 s%d, s%d, 3" % (sXR, sH), "s_mul_i32 s%d, s%d, 49152" % (sXR, sXR), "s_add_u32 s%d, s%d, s%d" % (sXR, sXR, sXO),
         "s_add_u32 s%d, s%d, %d" % (sX0, sA0, 4 * PH), "s_add_u32 s%d, s%d, %d" % (sX1, sA0, 8 * PH), "s_add_u32 s%d, s%d, %d" % (sGB, sA1, 4 * PH)]]
    def ren(G, mp): return [[_re.sub(r"\bs(\d+)\b", lambda m_: "s%d" % mp.get(int(m_.group(1)), int(m_.group(1))), x) for x in g] for g in G]
    early = ren(late_setup[:3], {sFG: 64, sFX: 65})
    early += [["v_mov_b32 v28, 0", "v_min_u32 v29, 1, v%d" % vFO, "v_lshlrev_b32 v29, 29, v29", "buffer_store_dword v28, v29, s[%d:%d], s64 offen sc1" % (SO, SO + 3)]]
    if SENT:
        early += [["s_lshl_b32 s66, s%d, 2" % sTIL, "s_add_u32 s66, s66, s%d" % sX1, "s_mul_i32 s66, s66, 49152", "s_lshl_b32 s67, s%d, 12" % sWV, "s_add_u32 s66, s66, s67", "s_add_u32 s66, s66, 0x%x" % OFF_X]]
        early += [["v_mov_b32 v%d, -1" % r for r in range(32, 36)]]
        for j in range(3):
            early += [["buffer_store_dwordx4 v[32:35], v%d, s[%d:%d], s66 offen offset:%d sc1" % (vL16, SO, SO + 3, c * 1024) for c in range(2)] + ["s_add_u32 s66, s66, 16384"]]
    else: early += [["buffer_store_dword v28, v29, s[%d:%d], s65 offen sc1" % (SO, SO + 3)]]
    SK, SV = SO, SO
    vK, vV = vL16, 2
    def dma(which, typ, par, srd_=None):
        so, sr_, base = (sKO, SK, 0) if which == "K" else (sVO, SV, 65536)
        if srd_ is not None: sr_ = srd_
        sw = sW4 if typ == 1 else sW8
        G = []
        for q in range(typ):
            g = ["s_add_u32 m0, s%d, %d" % (sw, base + par * 32768 + q * 4096)]
            g.append("s_add_u32 s%d, s%d, s%d" % (sDS, so, sw) if q == 0 else "s_add_u32 s%d, s%d, 4096" % (sDS, sDS))
            G.append(g)
            for o in range(4):
                G.append(["buffer_load_dwordx4 v%d, s[%d:%d], s%d offen offset:%d sc1 lds" % (vK, sr_, sr_ + 3, sDS, o * 1024)])
        return G
    def adv(which, typ):
        so = sKO if which == "K" else sVO
        if which == "V" and typ == 1: return ["s_add_u32 s%d, s%d, s%d" % (so, so, sVD), "s_movk_i32 s%d, 0x4000" % sVD]
        return ["s_add_u32 s%d, s%d, %d" % (so, so, 16384 * typ)]
    spins = []
    vF1, vFA, vPO = 122, 251, 250
    sP1, sG1, sG2 = 45, 46, 47
    def poll_load(kind):
        if kind == 1: return "buffer_load_dword v%d, v124, s[%d:%d], s%d offen sc1" % (vF1, SD, SD + 3, sCNT)
        if kind == 4: return "buffer_load_dword v195, v192, s[%d:%d], s%d offen sc1" % (SO, SO + 3, sG2)
        if kind == 3: return "buffer_load_dword v%d, v13, s[%d:%d], 0 offen offset:128 sc1" % (vFA, SD, SD + 3)
        return "buffer_load_dword v%d, v%d, s[%d:%d], 0 offen offset:128 sc1" % (vFA, vPO, SD, SD + 3)
    def poll_cmp(kind): return "v_cmp_gt_u32 vcc, s%d, v%d" % ((sG1, vF1) if kind == 1 else (sG2, vFA) if kind < 4 else (sG1, 195))
    def poll_check(kind):
        ls, lb = a.label("spin"), a.label("spun")
        a("%s\ns_cbranch_vccnz %s\n%s:" % (poll_cmp(kind), ls, lb))
        spins.append((ls, lb, kind))
    rels = []
    def release():
        ls, lb = a.label("rel"), a.label("reld")
        a("s_cmp_eq_u32 s%d, 0\ns_cbranch_scc1 %s\n%s:" % (sFA, ls, lb))
        rels.append((ls, lb))

    st_("setup")
    bar("s_waitcnt vmcnt(%d)" % ((2 if PF else 1)))
    st_("bar0")

    pre0 = rd_w(0, 0, 0, 0) + rd_act(0, 0) + [x for k in range(1, PDW) for x in rd_w(0, 0, k, k)]
    use0 = [0, 0] + list(range(8)) + [8 * k for k in range(1, PDW) for _ in range(2)]
    for x in pre0: a(x)
    a(xa(0, 0))
    lV = a.label("kvV"); lQ = a.label("qphase")
    a("s_cmp_ge_u32 s%d, 2\ns_cbranch_scc1 %s" % (sWV, lV))
    NKV = 12
    CRL = "global_load_dword v122, v127, s[0:1]"
    for var in ("K", "V"):
        if var == "V": a(lV + ":")
        t2[0] = 1
        S_, cm, bm, fm = build(0, var)
        S_.place(dma_w(1) + dma_act(1), 0, 56)
        S_.place(dma_act(2) + pfp(-1), 56, bm[1] - 2)
        for g in range(1, 9):
            b = bm[g]; e = bm.get(g + 1, S_.n + 96)
            Wn = (soft(qw_setup) if g == 7 else []) + dma_w(g + 1) + pfp(g - 1)
            if g in (3, 5, 7): Wn = Wn + [CRL]
            if g == 6: Wn = ["buffer_load_dword v125, v126, s[%d:%d], 0 offen offset:128 sc1 ; need:7" % (SD, SD + 3)] + Wn
            S_.place(Wn, b, b + (44 if g < 8 else 31))
            if g < 8: S_.place((flat(qa_setup) if g == 6 else []) + dma_act(g + 2) + (soft(at_setup) if g == 7 else []), b + 44, e - 8)
        S_.place(soft(early), bm[3], bm[6])
        for cb in range(3):
            S_.place([x for j in range(4 * cb, 4 * cb + 4) for x in kv_unit(j, GPUB)], cm[7] + 32 * cb + 38, cm[7] + 32 * cb + 70 if cb < 2 else S_.n)
        vmh = S_.emit(a, bar, use0, [])
        left = S_.left; nkv = S_.n
        if VERB: print("KV over", S_.over)
        if var == "K": a("s_branch %s" % lQ)
    a(lQ + ":")
    st_("q")
    use8 = [0 if u == nkv else 4 * (u - nkv - 1) for u in left]
    t2[0] = 9
    S_, cm, bm, fm = build(8, "Q")
    per = cm[9] - cm[8]
    S_.place(dma_act(10), 0, bm[9] - 6)
    for g in range(9, 16):
        b = bm[g]; e = bm.get(g + 1, S_.n)
        Wn = dma_w(g + 1) if g < 15 else flat(dma("K", 1, 0) + [adv("K", 1)] + dma("K", 1, 1)) + [poll_load(1) + " ; need:16"]
        if g == GPUB:
            S_.hooks[g] = release
            Wn = Wn + ["buffer_atomic_add v%d, v%d, s[%d:%d], s%d offen sc1" % (vONE, vFO, SD, SD + 3, sCNT)]
        if g in (9, 11, 13): Wn = Wn + [CRL]
        S_.place(Wn, b, b + 34)
        S_.place(dma_act(g + 2) if g + 2 < 16 else [], b + 34, e - 6)
    S_.place(soft(late_setup), cm[10], cm[14])
    zero = lambda lo, hi: ["v_accvgpr_write_b32 a%d, 0" % r for r in range(lo, hi)]
    S_.place([x for j in range(NKV, 16) for x in kv_unit(j, GPUB)], 8, cm[9] + per // 2)
    S_.place([x for j in range(16, 32) for x in kv_unit(j)] + zero(52, 128), cm[9] + per // 2, cm[15] + 20)
    hd = ["s_and_b32 s%d, s%d, 1" % (sT0, sH), "s_lshr_b32 s%d, s%d, 1" % (sT1, sGR), "s_add_u32 s%d, s%d, s%d" % (sT0, sT0, sT1),
          "s_and_b32 s%d, s%d, 2" % (sT2, sH), "s_lshl_b32 s%d, s%d, 20" % (sAS, sT2), "s_lshr_b32 s%d, s%d, 1" % (sT2, sT2), "s_add_u32 s%d, s%d, s%d" % (sT1, sT1, sT2),
          "s_lshr_b32 s%d, s%d, 2" % (sT2, sT0), "s_lshl_b32 s%d, s%d, 19" % (sT2, sT2), "s_add_u32 s%d, s%d, s%d" % (sAS, sAS, sT2), "s_and_b32 s%d, s%d, 3" % (sT0, sT0), "s_lshl_b32 s%d, s%d, 11" % (sT0, sT0),
          "s_add_u32 s%d, s%d, s%d" % (sAS, sAS, sT0),
          "s_lshr_b32 s%d, s%d, 2" % (sT2, sT1), "s_add_u32 s%d, s%d, 8" % (sT2, sT2), "s_lshl_b32 s%d, s%d, 19" % (sAS2, sT2), "s_and_b32 s%d, s%d, 3" % (sT1, sT1), "s_lshl_b32 s%d, s%d, 11" % (sT1, sT1),
          "s_add_u32 s%d, s%d, s%d" % (sAS2, sAS2, sT1), "s_and_b32 s%d, s%d, 1" % (sT0, sH), "s_lshl_b32 s%d, s%d, 10" % (sT0, sT0), "s_add_u32 s%d, s%d, s%d" % (sAS2, sAS2, sT0),
          "s_lshl_b32 s%d, s%d, 13" % (sT0, sQL), "s_lshl_b32 s%d, s%d, 13" % (sT1, sQS),
          "s_add_u32 s%d, s%d, s%d" % (sWS, sAS, sT0), "s_add_u32 s%d, s%d, s%d" % (sXS, sAS, sT1), "s_add_u32 s%d, s%d, s%d" % (sAM, sAS2, sT0), "s_add_u32 s%d, s%d, s%d" % (sWM, sAS2, sT1),
          ["s_bitcmp1_b32 s%d, 1" % sH, "s_cselect_b32 s%d, 1.0, %s" % (sSC, fbits(LOG2E * 0.25)), "s_cselect_b32 s%d, s%d, s%d" % (sXM, sGS_, sGL_)],
          "s_and_b32 s%d, s%d, 1" % (sT0, sH), "s_lshl_b32 s%d, s%d, 6" % (sT0, sT0), "s_add_u32 s%d, s%d, s%d" % (sXM, sXM, sT0)]
    AE = []
    for j in range(6):
        pk = PK + 4 * (j % 4)
        so, off = ((sWS, sXS)[j // 2], (j % 2) * 1024) if j < 4 else ((sAM, sWM)[j - 4], 0)
        AE += pack(j * 8, pk, sSC if j < 4 else None) + ["buffer_store_dwordx4 %s, v%d, s[%d:%d], s%d offen offset:%d" % (vr(pk, 4), vL16, SO, SO + 3, so, off)]
    AE += ["v_accvgpr_read_b32 v%d, a48" % TT, "v_and_b32 v%d, 15, v0" % (TT + 1), "v_mul_f32 v%d, %s, v%d" % (TT, fbits(-LOG2E), TT), "v_exp_f32 v%d, v%d" % (TT, TT), "v_lshlrev_b32 v%d, 2, v%d" % (TT + 1, TT + 1),
           "v_add_f32 v%d, 1.0, v%d" % (TT, TT), "v_rcp_f32 v%d, v%d" % (TT, TT), "s_nop 0", "buffer_store_dword v%d, v%d, s[%d:%d], s%d offen" % (TT, TT + 1, SO, SO + 3, sXM)]
    S_.place(hd, bm[15] + 2, cm[15] + 38)
    room = S_.room(cm[15] + 40, S_.n) - 8
    S_.place(AE[:room], cm[15] + 40, S_.n); tail = AE[room:]
    vm2 = S_.emit(a, bar, use8, vmh)
    if VERB: print("Q over", S_.over, "tail", len(tail))
    for x in tail: a(x)
    a("s_waitcnt vmcnt(%d)" % (len(vm2) - 1 - max(k for k, nd in enumerate(vm2) if nd == 16) + sum(1 for x in tail if isvm(x))))
    a(lAttn + ":")
    st_("attn")
    vU = 3; vL = (4, 5, 6, 7); vG = (8, 9, 14, 15); vX = 10
    S = (16, 80); P = (144, 176); NM, LT, TM, ONES = 208, 224, 240, 252
    vT8, vNEG = 248, 249
    O, Q, FR, NFR = 0, 128, 192, 16
    ms = (26, 28, 30, 4)
    def kfrag(p, kb, s): return ("K", p * 32768 + (kb // 2) * 8192 + s * 2048 + (kb % 2) * 1024)
    def vfrag(p, kp, dt): return ("V", p * 32768 + kp * 8192 + dt * 1024)
    def rd(slot, fr): return "ds_read_b128 %s, v%d offset:%d" % (ar(FR + 4 * (slot % NFR), 4), vK if fr[0] == "K" else vV, fr[1])
    def pvm(Pp, nq, kp, dt): return ["%s %s, {F}, %s, %s" % (MF16, ar(O + (qb * 8 + dt) * 4, 4), vr(Pp + (kp * nq + qb) * 4, 4), ar(O + (qb * 8 + dt) * 4, 4)) for qb in range(nq)]
    def mf_list(p, pv, qk):
        L = []; Pp = P[1 - p]; Sn = S[1 - p]
        if pv in (1, 2):
            nq = 4 // pv
            L += [(vfrag(1 - p, kp, dt), pvm(Pp, nq, kp, dt)) for kp in range(2 * pv) for dt in range(8)]
        elif pv == 3:
            L += [(("K", vfrag(1, kp, dt)[1]), pvm(Pp, 2, kp, dt)) for dt in range(8) for kp in range(4)]
        if qk:
            nq = 4 // qk
            for kb in range(4 * qk):
                for s in range(4):
                    ms_ = []
                    for qb in range(nq):
                        d = vr(Sn + ((kb // 2) * nq + qb) * 8 + (kb % 2) * 4, 4)
                        ms_.append("%s %s, {F}, %s, %s" % (MF16, d, ar(Q + (qb * 4 + s) * 4, 4), d if s else vr(NM + qb * 4, 4)))
                    L.append((kfrag(1 - p, kb, s), ms_))
        return L
    def ex(p, n): return "v_exp_f32 v%d, v%d" % (TM + n % 8, S[p] + n)
    def cv(p, j): return "v_cvt_pk_bf16_f32 v%d, v%d, v%d" % (P[p] + j, TM + (2 * j) % 8, TM + (2 * j) % 8 + 1)
    def summ(p, sm, q):
        nq = 4 // sm; d = vr(LT + (q % nq) * 4, 4)
        return "%s %s, %s, %s, %s" % (MF16, d, vr(ONES, 4), vr(P[p] + 4 * q, 4), d if q >= nq else "0")
    def chks(sm):
        c = ["v_max3_f32 v%d, v%d, v%d, v%d" % (vX, LT, LT + 4, LT + 8), "v_max_f32 v%d, v%d, v%d" % (vX, vX, LT + 12)] if sm == 1 else ["v_max_f32 v%d, v%d, v%d" % (vX, LT, LT + 4)]
        return c + ["v_cmp_lt_f32 vcc, s%d, v%d" % (sTH, vX)]
    rare = {}
    def step(p, pv, sm, qk, dK, dV, pre_in=True, pre_out=True, extra_vm=None, chk=0, last16=False, staged=None, trail=None, vm_first=False):
        L = mf_list(p, pv, qk); nf = len(L)
        nxt = [x[0] for x in mf_list(1, 3, 0)][:PD] if last16 else [vfrag(p, kp, dt) for kp in range(2) for dt in range(8)][:PD]
        M0 = [(f, t) for f, (fr, ts_) in enumerate(L) for t in ts_]
        nb = len(M0); M = []; spos = []
        endm = nb - 13
        ins = {((q + 1) * endm) // 8 + 3: q for q in range(8)} if sm else {}
        for m, it in enumerate(M0):
            M.append(it)
            if m in ins: spos.append(len(M)); M.append((it[0], summ(p, sm, ins[m])))
        nm = len(M)
        G = []
        if dV: G += dma("V", dV, p) + [adv("V", dV)]
        if dK: G += dma("K", dK, p) + [adv("K", dK)]
        ntr = sum(1 for x in flat(trail or []) if isvm(x))
        G = ((extra_vm or []) + G if vm_first else G + (extra_vm or [])) + (trail or [])
        firstm = {}
        for m, (f, t) in enumerate(M): firstm.setdefault(f, m)
        barf = nf + 1 - PD
        if barf % WP: barf += WP - barf % WP
        if not pre_out or last16: barf = nf + 99
        Gp = Gaps([12] * (nm - 1) + [4])
        sR = Gp.newstream(); pre = None
        allfr = [x[0] for x in L] + (nxt if pre_out else [])
        nrd = PD
        for f in range(nf):
            m = firstm[f]; w_ = None
            if f == barf: w_ = ["s_BARW", "s_BAR"]
            elif f < barf and f % WP == 0: w_ = ["s_waitcnt lgkmcnt(%d)" % max(0, nrd - 1 - min(f + WP - 1, nf - 1))]
            if w_ and m == 0: pre = w_
            elif w_:
                for x in w_: Gp.add(m - 1, sR, x)
            want = min(f + PD, len(allfr) - 1)
            if f < barf and not last16: want = min(want, nf - 1)
            k = m
            while nrd <= want and k < m + 2:
                Gp.add(k, sR, rd(nrd, allfr[nrd])); nrd += 1; k += 1
        assert nrd == len(allfr), (nrd, len(allfr))
        hiD = min(max(2 * len(G), (nm * DFR) // 16), firstm[barf] - 8 if barf < nf else nm)
        Gp.place(flat(G), 1, hiD, slack=40)
        if sm:
            pe = []; lo = 0
            for q in range(8):
                hi = spos[q] - 3
                pe += Gp.place([ex(p, n) for n in range(8 * q, 8 * q + 8)], lo, hi, slack=16, ahead=8); lo = hi
            sC = Gp.newstream(); k = 0
            for j in range(32):
                k = max(k, pe[2 * j + 1] + 1)
                dl = min(pe[2 * j + 8] - 1 if 2 * j + 8 < 64 else nm, spos[j // 4] - 3)
                assert k <= dl, (j, k, dl)
                cand = [z for z in range(k, dl + 1) if gcost(Gp.g[z] + [(sC, cv(p, j))]) <= Gp.cap[z]]
                k = cand[0] if cand else min(range(k, dl + 1), key=lambda z: gcost(Gp.g[z]))
                Gp.add(k, sC, cv(p, j))
            Gp.place(chks(sm), nm - 3, nm - 1)
        for (lst, lo, hi) in (staged or []): Gp.place(lst, lo, hi)
        if VERB: print("step", p, pv, sm, qk, "gaps", nm, "over", Gp.over())
        if not pre_in:
            for f in range(PD): a(rd(f, L[f][0]))
        for x in pre or []: a(x)
        for m, (f, t) in enumerate(M):
            a(t.replace("{F}", ar(FR + 4 * (f % NFR), 4)))
            for x in Gp.out(m):
                if x == "s_BARW": continue
                if x == "s_BAR":
                    if TS3: a("s_mov_b32 m0, s76\ns_add_u32 s76, s76, 1\nv_writelane_b32 v11, s72, m0\ns_mov_b32 m0, s76\ns_add_u32 s76, s76, 1\nv_writelane_b32 v11, s74, m0\ns_memtime s[72:73]")
                    a("s_waitcnt vmcnt(%d) lgkmcnt(0)" % ntr)
                    if chk: poll_check(chk)
                    a("s_barrier")
                    if TS3: a("s_memtime s[74:75]\ns_waitcnt lgkmcnt(0)")
                else: a(x)
        assert nf % NFR == 0
        if sm:
            key = (p, sm, qk if qk else sm)
            if key not in rare: rare[key] = (a.label("rare"), [])
            lb = a.label("back"); lj = a.label("jr")
            rare[key][1].append((lj, lb))
            a("s_cbranch_vccnz %s\n%s:" % (lj, lb))
            for qb in range(4 // sm): a("v_add_f32 v%d, v%d, v%d" % (vL[qb], vL[qb], LT + 4 * qb))
    def qregs(base, typ, qb):
        nq = 4 // typ
        return [base + (kp * nq + qb) * 8 + j for kp in range(2 * typ) for j in range(8)]
    def maxtree(dst, R):
        L = ["v_max3_f32 v%d, v%d, v%d, v%d" % (dst, R[0], R[1], R[2])]; j = 3
        while j + 1 < len(R):
            L.append("v_max3_f32 v%d, v%d, v%d, v%d" % (dst, dst, R[j], R[j + 1])); j += 2
        if j < len(R): L.append("v_max_f32 v%d, v%d, v%d" % (dst, dst, R[j]))
        return L
    def xlane(op, D, Tm):
        L = []
        for sw in ("v_permlane16_swap_b32", "v_permlane32_swap_b32"):
            L += ["v_mov_b32 v%d, v%d" % (t, d) for d, t in zip(D, Tm)]
            if len(D) < 3: L.append("s_nop %d" % (2 - len(D)))
            L += ["%s v%d, v%d" % (sw, d, t) for d, t in zip(D, Tm)]
            L += ["%s v%d, v%d, v%d" % (op, d, d, t) for d, t in zip(D, Tm)]
        return L
    def mask(base, blocks, pad=True):
        if pad: a("s_nop 7")
        for (r0, kb) in blocks:
            r0 += base
            lf = a.label("mfull"); le_ = a.label("mend")
            a("s_cmp_gt_u32 s%d, %d\ns_cbranch_scc1 %s" % (sWV, kb, le_))
            for r in range(4): a("v_mov_b32 v%d, v%d" % (r0 + 4 + r, vNEG))
            if kb > 0: a("s_cmp_lt_u32 s%d, %d\ns_cbranch_scc1 %s" % (sWV, kb, lf))
            for r in range(4): a("v_cmp_gt_i32 s[%d:%d], %d, v%d" % (ms[r], ms[r] + 1, r, vU))
            for t in (0, 12):
                for r in range(4): a("v_cndmask_b32 v%d, v%d, v%d, s[%d:%d]" % (r0 + t + r, r0 + t + r, vNEG, ms[r], ms[r] + 1))
            if kb > 0:
                a("s_branch %s\n%s:" % (le_, lf))
                for r in list(range(4)) + list(range(8, 16)): a("v_mov_b32 v%d, v%d" % (r0 + r, vNEG))
            a(le_ + ":")
    poll_check(1)
    bar("s_nop 0")
    if TS2:
        a("s_waitcnt lgkmcnt(0)"); bar("s_nop 0")
        a("s_lshl_b32 s78, s2, 2\ns_add_u32 s78, s78, s%d\ns_lshl_b32 s78, s78, 8\ns_add_u32 s78, s78, 0x%x\nv_lshlrev_b32 v122, 2, v0" % (sWV, OFF_TS + 0x80000))
        a("buffer_store_dword v123, v122, s[%d:%d], s78 offen\ns_waitcnt vmcnt(0)" % (SO, SO + 3))
    a("s_mov_b32 s%d, %s" % (sSC, fbits(LOG2E / math.sqrt(128.0))))
    fr0 = [kfrag(0, kb, s) for s in range(4) for kb in range(4)]
    for f in range(12): a(rd(f, fr0[f]))
    def qepi(cb):
        G = []
        for qb in range(4):
            src = QA + (((qb // 2) * 4 + cb) * 2 + qb % 2) * 8
            G += ["v_mul_f32 v%d, s%d, v%d" % (src + j, sSC, src + j) for j in range(8)]
            G += ["v_cvt_pk_bf16_f32 v%d, v%d, v%d" % (src + j, src + 2 * j, src + 2 * j + 1) for j in range(4)]
            G += ["v_accvgpr_write_b32 a%d, v%d" % (Q + (qb * 4 + cb) * 4 + j, src + j) for j in range(4)]
        return G
    a("s_add_u32 s%d, s%d, 0x4000\ns_sub_u32 s%d, s%d, s%d\ns_cmp_eq_u32 s%d, 0\ns_cselect_b32 s%d, 0x8000, 0\ns_add_u32 s%d, s%d, s%d" % (sT1, sVD, sKO, sKO, sT1, sI, sT0, sKO, sKO, sT0))
    for x in flat(dma("V", 1, 0)): a(x)
    a("s_add_u32 s%d, s%d, 0x4000\ns_sub_u32 s%d, 0, s%d" % (sVO, sVO, sVD, sT1))
    for x in qepi(0): a(x)
    for f in range(12, 16): a(rd(f, fr0[f]))
    misc = ["v_add_u32 v%d, 0x10000, v%d" % (vV, vK), "v_and_b32 v10, 15, v0", "v_lshrrev_b32 v11, 4, v0", "v_lshlrev_b32 v11, 2, v11", "v_sub_u32 v%d, v10, v11" % vU]
    misc += ["v_mov_b32 v%d, 0" % r for r in vL] + ["v_mov_b32 v%d, %s" % (vNEG, NEG), "v_and_b32 v%d, 3, v0" % vPO, "v_add_lshl_u32 v%d, v%d, s%d, 2" % (vPO, vPO, sGR), "v_add_u32 v%d, s%d, v%d" % (vPO, sW4, vPO)]
    misc += ["v_mov_b32 v%d, 0x3f803f80" % r for r in range(ONES, ONES + 4)] + ["v_mov_b32 v14, v%d" % vFO, "v_mov_b32 v15, 0x10000000"] + zero(0, 52)
    a("s_waitcnt lgkmcnt(0)\ns_barrier")
    K2 = flat(dma("K", 2, 0)) + [["s_cmp_eq_u32 s%d, 0" % sI, "s_cselect_b32 s%d, 2, 1" % sT0], "s_lshl_b32 s%d, s%d, 14" % (sT0, sT0), "s_add_u32 s%d, s%d, s%d" % (sKO, sKO, sT0)]
    Gp = Gaps([12] * 64)
    Gp.place(K2, 0, 40)
    for s in range(4): Gp.place(qepi(s + 1) if s < 3 else misc, 16 * s, 16 * s + 16, slack=4)
    for s in range(4):
        for n in range(16):
            qb, kb = n // 4, n % 4
            d = vr(S[0] + ((kb // 2) * 4 + qb) * 8 + (kb % 2) * 4, 4)
            a("%s %s, %s, %s, %s" % (MF16, d, ar(FR + 4 * (4 * s + kb), 4), ar(Q + (qb * 4 + s) * 4, 4), d if s else "0"))
            for x in Gp.out(16 * s + n): a(x)
    st_("m1")
    mask(S[0], [(16, 0), (48, 1)])
    MXr, MXt = (240, 241, 242, 243), (244, 245, 246, 247)
    for qb in range(4):
        for x in maxtree(MXr[qb], qregs(S[0], 1, qb)): a(x)
    for x in xlane("v_max_f32", MXr, MXt): a(x)
    for qb in range(4):
        for j in range(4): a("v_sub_f32 v%d, 0, v%d" % (NM + qb * 4 + j, MXr[qb]))
    for qb in range(4):
        for r in qregs(S[0], 1, qb): a("v_sub_f32 v%d, v%d, v%d" % (r, r, MXr[qb]))
    st_("first")
    if TS3: a("s_mov_b32 s76, 0\ns_mov_b32 s72, 0\ns_mov_b32 s74, 0")
    step(0, 0, 1, 1, 0, 0, pre_in=False)
    release()
    a("buffer_atomic_add v15, v14, s[%d:%d], s%d offen offset:128 sc1" % (SD, SD + 3, sCNT))
    mask(S[1], [(16, 2), (48, 3)], pad=False)
    st_("s0")
    lT0, lT1, lT1b, lL1, lL2, lS15, lMid, lI7, lEn = [a.label(x) for x in ("T0", "T1", "T1b", "L1", "L2", "S15", "MID", "I7", "END")]
    PL = [[poll_load(2)]]
    AF = [Q + 4 * j for j in range(9)]
    def ld(dst, so, off): return "buffer_load_dwordx4 %s, v%d, s[%d:%d], s%d offen offset:%d sc1" % (ar(dst, 4), vK, SV, SV + 3, so, off)
    AOP = [ld(AF[0], sA0, 0), ld(AF[1], sA0, 1024), ld(AF[2], sX0, 0), ld(AF[3], sX0, 1024), ld(AF[4], sA1, 1024),
           ld(AF[5], sX1, 0), ld(AF[6], sX1, 1024), ld(AF[7], sGB, 0), ld(AF[8], sGB, 1024)]
    AOP += ["v_and_b32 v12, 15, v0", "v_lshlrev_b32 v12, 2, v12"] + ["buffer_load_dword a%d, v12, s[%d:%d], s%d offen offset:%d sc1" % (Q + 36 + t, SV, SV + 3, sGA_, 64 * t) for t in range(2)]
    ALD = [["v_and_b32 v12, 15, v0", "v_lshlrev_b32 v12, 2, v12"]]
    ALD += [["buffer_load_dword v%d, v12, s[%d:%d], s%d offen offset:%d sc1" % (vG[qb], SV, SV + 3, (sGL_, sGS_)[qb // 2], 64 * (qb % 2))] for qb in range(4)]
    ALD += [["v_and_b32 v13, 31, v0", "v_lshl_add_u32 v13, v13, 2, s%d" % sW4, poll_load(3)]]
    def wpf(dst): return [["v_add_lshl_u32 v%d, v0, s%d, 7" % (vT8, sP0), "global_load_dword v%d, v%d, s[%d:%d]" % (dst, vT8, pBWO, pBWO + 1)],
                          ["v_and_b32 v12, 7, v0", "v_add_lshl_u32 v12, v12, s%d, 7" % sP1_, "global_load_dword v%d, v12, s[%d:%d]" % (dst, pWO, pWO + 1)]]
    TR0, TR15 = wpf(vG[0]), wpf(vT8)
    a("s_cmp_eq_u32 s%d, 0\ns_cbranch_scc1 %s" % (sI, lT1))
    a("s_mov_b32 s%d, s%d" % (sT, sI))
    a(".p2align 6\n" + lL1 + ":")
    step(1, 1, 1, 1, 1, 1)
    a("s_sub_u32 s%d, s%d, 1\ns_cmp_eq_u32 s%d, 0\ns_cbranch_scc1 %s" % (sT, sT, sT, lT0))
    step(0, 1, 1, 1, 1, 1)
    a("s_branch %s" % lL1)
    a(lT0 + ":")
    a("s_add_u32 s%d, s%d, 0x8000" % (sKO, sKO))
    step(0, 1, 1, 1, 2, 1, extra_vm=PL, chk=2, trail=TR0)
    a("s_cmp_eq_u32 s%d, 7\ns_cbranch_scc1 %s" % (sI, lT1b))
    a(lT1 + ":")
    step(1, 1, 1, 2, 2, 1)
    a("s_add_u32 s%d, s%d, 0x8000" % (sVO, sVO))
    step(0, 1, 2, 2, 2, 2, extra_vm=PL, chk=2, trail=TR0)
    a("s_sub_u32 s%d, 6, s%d\ns_cmp_eq_u32 s%d, 0\ns_cbranch_scc1 %s" % (sT, sI, sT, lS15))
    a(".p2align 6\n" + lL2 + ":")
    step(1, 2, 2, 2, 2, 2)
    step(0, 2, 2, 2, 2, 2)
    a("s_sub_u32 s%d, s%d, 1\ns_cmp_lg_u32 s%d, 0\ns_cbranch_scc1 %s" % (sT, sT, sT, lL2))
    a(lS15 + ":")
    a("s_add_u32 s%d, s%d, 0x8000" % (sKO, sVO))
    step(1, 2, 2, 2, 2, 2, extra_vm=ALD, chk=3, trail=TR15, vm_first=True)
    a("s_branch %s" % lMid)
    a(lT1b + ":")
    a("s_add_u32 s%d, s%d, 0xc000" % (sKO, sVO))
    step(1, 1, 1, 2, 2, 1, extra_vm=ALD, chk=3, trail=TR15, vm_first=True)
    def fin_head(rb, so):
        q0, q1 = 2 * rb, 2 * rb + 1
        return ["v_rcp_f32 v%d, v%d" % (vL[q0], vL[q0]), "v_rcp_f32 v%d, v%d" % (vL[q1], vL[q1]), "v_sub_f32 v%d, 1.0, v%d" % (vG[q0], vG[q0]), "v_sub_f32 v%d, 1.0, v%d" % (vG[q1], vG[q1]),
                "s_mul_i32 s%d, s%d, %d" % (so, (sQL, sQS)[rb], CROW), "s_lshl_b32 s%d, s%d, 13" % (sT1, sH), "v_mul_f32 v%d, v%d, v%d" % (vL[q0], vL[q0], vG[q0]), "v_mul_f32 v%d, v%d, v%d" % (vL[q1], vL[q1], vG[q1]),
                "s_add_u32 s%d, s%d, s%d" % (so, so, sT1), "s_add_u32 s%d, s%d, 0x%x" % (so, so, OFF_C)]
    def fin_part(rb, c, t, so):
        u, tq = c // 2, c % 2; qb = 2 * rb + tq
        G = ["v_accvgpr_read_b32 v%d, a%d" % (t + j, O + qb * 32 + u * 8 + j) for j in range(8)]
        G += ["v_mul_f32 v%d, v%d, v%d" % (t + j, vL[qb], t + j) for j in range(8)]
        G += ["v_cvt_pk_bf16_f32 v%d, v%d, v%d" % (t + j, t + 2 * j, t + 2 * j + 1) for j in range(4)]
        if c == 4: G.append("s_add_u32 s%d, s%d, 4096" % (so, so))
        G.append("buffer_store_dwordx4 %s, v%d, s[%d:%d], s%d offen offset:%d sc1" % (vr(t, 4), vK, SV, SV + 3, so, (c % 4) * 1024))
        return G
    a(lMid + ":")
    st_("mid")
    if TS3:
        a("s_mov_b32 m0, s76\ns_add_u32 s76, s76, 1\nv_writelane_b32 v11, s72, m0\ns_mov_b32 m0, s76\ns_add_u32 s76, s76, 1\nv_writelane_b32 v11, s74, m0")
        a("s_lshl_b32 s78, s2, 2\ns_add_u32 s78, s78, s%d\ns_lshl_b32 s78, s78, 8\ns_add_u32 s78, s78, 0x%x\nv_lshlrev_b32 v10, 2, v0" % (sWV, OFF_TS + 0x80000))
        a("buffer_store_dword v11, v10, s[%d:%d], s78 offen\ns_nop 4" % (SO, SO + 3))
    for x in AOP: a(x)
    mask(S[0], [(16 * kp, kp) for kp in range(4)], pad=False)
    PW, PW2 = 8, 12
    sWB, sHW, sWC, sAB, sHA, sAC = 25, 32, 33, 34, 35, 45
    vD = (232, 233, 234, 235)
    WRING = [0, 16384, 65536, 81920, 131072, 147456]; ARING = [32768, 49152, 98304, 114688]
    def w_dma(st):
        G = []
        if st < 16 and st % 2 == 0:
            G += ["s_lshl_b32 s%d, s%d, 17" % (sWC, sHW), "s_add_u32 s%d, s%d, s%d" % (sWC, sWC, sWB), "s_add_u32 s%d, s%d, 1" % (sHW, sHW)]
        if st == 16: G += ["s_and_b32 s%d, s%d, 0xffff" % (sWC, sWB), "s_lshr_b32 s%d, s%d, 20" % (sHW, sWB), "s_lshl_b32 s%d, s%d, 17" % (sHW, sHW), "s_add_u32 s%d, s%d, s%d" % (sWC, sWC, sHW)]
        G += ["s_add_u32 m0, s%d, %d" % (sW4, WRING[st % 6]), "s_and_b32 s%d, s%d, 7" % (sHW, sHW) if st % 2 == 0 else "s_add_u32 s%d, s%d, 65536" % (sWC, sWC)]
        sr_ = PW if st < 16 else PW2
        return G + ["buffer_load_dwordx4 v%d, s[%d:%d], s%d offen offset:%d lds ; need:%d" % (vD[o], sr_, sr_ + 3, sWC, o * 1024, st) for o in range(4)]
    def a_dma(st):
        G = []
        if st < 16 and st % 2 == 0:
            G += ["s_lshl_b32 s%d, s%d, 13" % (sAC, sHA), "s_add_u32 s%d, s%d, s%d" % (sAC, sAC, sAB), "s_add_u32 s%d, s%d, 1" % (sHA, sHA)]
        if st == 16: G += ["s_lshr_b32 s%d, s%d, 3" % (sHA, sH), "s_mul_i32 s%d, s%d, %d" % (sHA, sHA, 56 * 1024), "s_sub_u32 s%d, s%d, s%d" % (sAC, sAB, sHA), "s_add_u32 s%d, s%d, %d" % (sAC, sAC, 256 * 1024)]
        G += ["s_add_u32 m0, s%d, %d" % (sW4, ARING[st % 4]), "s_and_b32 s%d, s%d, 7" % (sHA, sHA) if st % 2 == 0 else "s_add_u32 s%d, s%d, 4096" % (sAC, sAC)]
        return G + ["buffer_load_dwordx4 v%d, s[%d:%d], s%d offen offset:%d sc1 lds ; need:%d" % (vK, SV, SV + 3, sAC, o * 1024, st) for o in range(4)]
    nt = lambda L: [x.split(";")[0].strip() for x in L]
    srd(a, PW, pBWO, 0x400000); srd(a, PW2, pWO, 0x80000)
    a("s_lshr_b32 s%d, s%d, 3\ns_lshl_b32 s%d, s%d, 20\ns_and_b32 s%d, s%d, 3\ns_lshl_b32 s%d, s%d, 8\ns_add_u32 s%d, s%d, s%d\ns_lshl_b32 s%d, s%d, 14\ns_add_u32 s%d, s%d, s%d" % (sT0, sH, sWB, sT0, sT1, sH, sT1, sT1, sWB, sWB, sT1, sT1, sWV, sWB, sWB, sT1))
    a("s_and_b32 s%d, s%d, 7\ns_mov_b32 s%d, s%d" % (sHW, sH, sHA, sHW))
    a("s_lshl_b32 s%d, s%d, 2\ns_add_u32 s%d, s%d, s%d\ns_mul_i32 s%d, s%d, %d\ns_lshl_b32 s%d, s%d, 16\ns_add_u32 s%d, s%d, s%d\ns_add_u32 s%d, s%d, 0x%x" % (sT1, sRBK, sT1, sT1, sWV, sAB, sT1, CROW, sT0, sT0, sAB, sAB, sT0, sAB, sAB, OFF_C))
    a("v_lshrrev_b32 v10, 4, v0\nv_and_b32 v11, 15, v0\nv_lshlrev_b32 v12, 2, v10\nv_xor_b32 v11, v11, v12\nv_lshlrev_b32 v11, 4, v11\nv_lshl_add_u32 v%d, v10, 10, v11" % vD[0])
    a("v_xor_b32 v11, 16, v%d\nv_add_u32 v%d, 6144, v%d\nv_add_u32 v%d, 3072, v11\nv_add_u32 v%d, 9216, v11" % (vD[0], vD[2], vD[0], vD[1], vD[3]))
    W16_ = [[x] for st in range(4) for x in nt(w_dma(st))]; W17_ = [[x] for st in range(4, 6) for x in nt(w_dma(st))]
    a("s_cmp_eq_u32 s%d, 7\ns_cbranch_scc1 %s" % (sI, lI7))
    FT = lambda c: 80 + 8 * (c % 8)
    for x in fin_head(1, sA0): a(x)
    for c in range(NE):
        for x in fin_part(1, c, FT(c), sA0): a(x)
    step(0, 2, 2, 0, 0, 0, last16=True, extra_vm=W16_)
    def final(first):
        stg = [(first + fin_head(0, sA1), 0, 22)]
        for u in range(3):
            stg.append((fin_part(0, 2 * u, 16 + 16 * u, sA1) + fin_part(0, 2 * u + 1, 24 + 16 * u, sA1), 16 * u + 22, min(16 * u + 38, 64)))
        step(1, 3, 0, 0, 0, 0, pre_out=False, staged=stg, extra_vm=W17_)
        a("s_nop 7")
        for x in fin_part(0, 6, 64, sA1) + fin_part(0, 7, 72, sA1): a(x)
    final([x for c in range(NE, 8) for x in fin_part(1, c, FT(c), sA0)])
    a("s_branch %s" % lEn)
    a(lI7 + ":")
    step(0, 1, 2, 0, 0, 0, last16=True, extra_vm=W16_)
    final(fin_head(1, sA0) + [x for c in range(8) for x in fin_part(1, c, FT(c), sA0)])
    a(lEn + ":")
    st_("s17")
    BS, BP, BP0 = 208, 212, 216
    SL = 144; TA = 176; PA = 196; MXl = (240, 241, 242, 243); vPM = 250; OL = 144
    L1 = ["v_add_u32 v246, 14, v%d" % vU, "v_mov_b32 v244, 0x5555", "v_mov_b32 v245, 0", "s_cmp_eq_u32 s%d, 0" % sRA, "s_cselect_b32 s%d, -1, 0" % sT2,
          "v_lshlrev_b64 v[244:245], v246, v[244:245]", "v_alignbit_b32 v244, v245, v244, 12", "v_not_b32 v244, v244"]
    L1 += ["v_bfe_i32 v%d, v244, %d, 1" % (BS + r, 16 + r) for r in range(4)] + ["v_bfe_i32 v%d, v244, %d, 1" % (BP + r, r) for r in range(4)]
    L1 += ["v_or_b32 v%d, s%d, v%d" % (BP0 + r, sT2, BP + r) for r in range(4)]
    L1 += ["v_and_b32 v%d, v%d, v%d" % (BS + r, vNEG, BS + r) for r in range(12)]
    L1 += ["v_and_b32 v244, 1, v0", "v_lshlrev_b32 v244, 4, v244", "v_mov_b32 v245, 0xffff", "v_lshlrev_b32 v%d, v244, v245" % vPM, "s_waitcnt vmcnt(40)"]
    for e in range(2):
        for tq in range(2):
            d = SL + (2 * e + tq) * 8
            L1.append("%s %s, %s, %s, %s" % (MFH, vr(d, 4), ar((AF[4], AF[2])[tq] + 2 * e, 2), ar(AF[tq] + 2 * e, 2), vr((BP0, BP)[tq], 4)))
            L1.append("%s %s, %s, %s, %s" % (MFH, vr(d + 4, 4), ar(AF[2 + tq] + 2 * e, 2), ar(AF[tq] + 2 * e, 2), vr(BS, 4)))
    L2 = ["v_max_f32 v%d, v%d, v%d" % (TA + j, SL + 2 * j, SL + 2 * j + 1) for j in range(16)]
    for n in range(4): L2 += maxtree(MXl[n], [TA + 4 * n + j for j in range(4)])
    L2 += xlane("v_max_f32", MXl, MXt)
    L2 += ["v_sub_f32 v%d, v%d, v%d" % (TA + j, TA + j, MXl[j // 4]) for j in range(16)]
    L2 += ["v_exp_f32 v%d, v%d" % (TA + j, TA + j) for j in range(16)]
    L2 += ["v_cvt_pk_bf16_f32 v%d, v%d, v%d" % (TA + j, TA + j, TA + j) for j in range(16)]
    L2 += ["v_and_b32 v%d, v%d, v%d" % (TA + j, vPM, TA + j) for j in range(16)]
    L2 += ["v_accvgpr_read_b32 v%d, a%d" % (246 + t, Q + 36 + t) for t in range(2)]
    for n in range(4): L2.append("%s %s, %s, %s, 0" % (MF16, vr(OL + 16 + 4 * n, 4), vr(ONES, 4), vr(TA + 4 * n, 4)))
    for e in range(2):
        L2.append("%s %s, %s, %s, 0" % (MFH, vr(OL + 4 * e, 4), ar(AF[7 + e] + 2, 2), vr(TA + 8 * e, 2)))
        L2.append("%s %s, %s, %s, 0" % (MF16, vr(OL + 8 + 4 * e, 4), ar(AF[5 + e], 4), vr(TA + 8 * e + 4, 4)))
    for e in range(2): L2.append("%s %s, %s, %s, %s" % (MFH, vr(OL + 4 * e, 4), ar(AF[5 + e], 2), vr(TA + 8 * e + 2, 2), vr(OL + 4 * e, 4)))
    L2 += ["s_mul_i32 s%d, s%d, %d" % (sA0, sRA, CROW), "s_lshl_b32 s%d, s%d, 11" % (sA1, sHP), "s_add_u32 s%d, s%d, s%d" % (sA0, sA0, sA1), "s_add_u32 s%d, s%d, 0x%x" % (sA0, sA0, OFF_C + 256 * 1024)]
    L2 += ["v_rcp_f32 v%d, v%d" % (MXl[n], OL + 16 + 4 * n) for n in range(4)]
    L2 += ["v_mul_f32 v%d, v%d, v%d" % (MXl[n], MXl[n], 246 + n % 2) for n in range(4)]
    for tq in range(2):
        for e in range(2): L2 += ["v_mul_f32 v%d, v%d, v%d" % (OL + 8 * tq + 4 * e + j, MXl[2 * e + tq], OL + 8 * tq + 4 * e + j) for j in range(4)]
        L2 += ["v_cvt_pk_bf16_f32 v%d, v%d, v%d" % (PA + 4 * tq + j, OL + 8 * tq + 2 * j, OL + 8 * tq + 2 * j + 1) for j in range(4)]
    LST = ["buffer_store_dwordx4 %s, v%d, s[%d:%d], s%d offen offset:%d sc1" % (vr(PA + 4 * tq, 4), vK, SV, SV + 3, sA0, tq * 1024) for tq in range(2)]
    for x in L1: a(x)
    SOUT = 4; sQ, sOUT = 26, 28
    vA, vW = (2, 3), (4, 5, 14, 15); ACC, FP = 16, 80
    srd(a, SOUT, 100, 2048 * 1024)
    a("s_lshr_b32 s%d, s%d, 3" % (sQ, sH))
    a("s_and_b32 s%d, s%d, 1\ns_lshl_b32 s%d, s%d, 1\ns_and_b32 s%d, s%d, 1\ns_add_u32 s%d, s%d, s%d\ns_lshl_b32 s%d, s%d, 12" % (sT0, sWV, sT0, sT0, sT1, sQ, sT2, sT0, sT1, sT0, sT2))
    a("v_add_u32 v%d, s%d, v%d\nv_xor_b32 v%d, 4096, v%d" % (vA[0], sT0, vK, vA[1], vA[0]))
    a("v_lshrrev_b32 v9, 2, v0\nv_and_b32 v8, 3, v9\nv_bfe_u32 v7, v0, 4, 1\nv_and_b32 v10, 2, v0\nv_or_b32 v7, v7, v10\nv_and_b32 v10, 1, v0\nv_lshlrev_b32 v10, 3, v10")
    a("s_and_b32 s%d, s%d, 2\ns_lshr_b32 s%d, s%d, 1\ns_add_u32 s%d, s%d, s%d\nv_xor_b32 v8, s%d, v8" % (sT0, sWV, sT1, sQ, sT0, sT0, sT1, sT0))
    a("v_lshl_or_b32 v8, v8, 2, v7\nv_lshlrev_b32 v8, 4, v8\nv_lshl_add_u32 v8, v9, 8, v8\nv_add_u32 v%d, v8, v10" % vW[0])
    a("v_xor_b32 v%d, 16, v%d\nv_xor_b32 v%d, 64, v%d\nv_xor_b32 v%d, 80, v%d" % (vW[1], vW[0], vW[2], vW[0], vW[3], vW[0]))
    a("s_and_b32 s%d, s%d, 3\ns_lshl_b32 s%d, s%d, 2\ns_add_u32 s%d, s%d, s%d\ns_lshl_b32 s%d, s%d, 6" % (sT1, sH, sT1, sT1, sT1, sT1, sT0, sOUT, sT1))
    a("s_lshl_b32 s%d, s%d, 2\ns_add_u32 s%d, s%d, s%d\ns_lshl_b32 s%d, s%d, 15\ns_add_u32 s%d, s%d, s%d" % (sT0, sRBK, sT0, sT0, sT2, sT0, sT0, sOUT, sOUT, sT0))
    a("v_and_b32 v6, 15, v0\nv_lshlrev_b32 v6, 10, v6\nv_lshrrev_b32 v7, 4, v0\nv_lshl_add_u32 v6, v7, 4, v6")
    a("v_min_u32 v9, 1, v0\nv_lshlrev_b32 v9, 29, v9\nv_mov_b32 v10, 1\nv_and_b32 v8, 7, v0\nv_lshlrev_b32 v8, 2, v8\nv_and_b32 v11, 12, v8")
    def signal_wait(sown, vo, pre):
        lp, lo_ = a.label("xpoll"), a.label("xok")
        a("s_waitcnt vmcnt(0)\ns_barrier\ns_cmp_lg_u32 s%d, 0\ns_cbranch_scc1 %s_s" % (sWV, lo_))
        a("buffer_store_dword v10, v9, s[%d:%d], s%d offen sc1\n%s_s:" % (SO, SO + 3, sown, lo_))
        for x in pre: a(x)
        a("s_cmp_lg_u32 s%d, 0\ns_cbranch_scc1 %s" % (sWV, lo_))
        a("s_and_b32 s%d, s%d, 0xffffff80\ns_mov_b32 s%d, 0x80000\n%s:" % (sT0, sown, sT1, lp))
        a("buffer_load_dword v12, v%d, s[%d:%d], s%d offen sc1\ns_waitcnt vmcnt(0)\nv_cmp_gt_u32 vcc, 1, v12\ns_cbranch_vccz %s" % (vo, SO, SO + 3, sT0, lo_))
        a("s_sleep %d\ns_sub_u32 s%d, s%d, 1\ns_cmp_lg_u32 s%d, 0\ns_cbranch_scc1 %s\n%s:" % (SLP, sT1, sT1, sT1, lp, lo_))
        a("s_waitcnt vmcnt(0)\ns_barrier")
    a("s_cmp_eq_u32 s%d, 0\ns_cselect_b32 s%d, 2, 0\ns_cselect_b32 s%d, 0, 0x20000000\nv_add_u32 v192, s%d, v8\nv_or_b32 v193, s%d, v9\nv_mov_b32 v194, 2\ns_and_b32 s%d, s%d, 0xffffff80" % (sWV, sG1, sT0, sT0, sT0, sG2, sFG))
    for x in L2[:LSPL]: a(x)
    signal_wait(sFG, 8, nt(a_dma(0) + a_dma(1)) + L2[LSPL:])
    st_("sync")
    for x in nt(a_dma(2) + a_dma(3)) + LST: a(x)
    curA, curW = [0], [0]
    def preads(u):
        st, us = u // 2, u % 2
        L = []
        def win(base, cur, regs_):
            w_ = base // 65536
            if w_ != cur[0]:
                d = (w_ - cur[0]) * 65536
                for r in regs_: L.append((("v_add_u32 v%d, 0x%x, v%d" % (r, d, r)) if d > 0 else ("v_subrev_u32 v%d, 0x%x, v%d" % (r, -d, r)), None))
                cur[0] = w_
            return base % 65536
        oa = win(ARING[st % 4], curA, vA); ow = win(WRING[st % 6], curW, vW)
        F = FP + 32 * (u % 2)
        tr = lambda n: [("ds_read_b64_tr_b16 %s, v%d offset:%d" % (vr(F + 16 + 4 * n + 2 * r_, 2), vW[n], ow + us * 8192 + r_ * 4096), 4 * n) for r_ in range(2)]
        ac = [("ds_read_b128 %s, v%d offset:%d" % (vr(F + 4 * n, 4), vA[n // 2], oa + us * 2048 + (n % 2) * 1024), n) for n in range(4)]
        return L + tr(0) + ac + tr(1) + tr(2) + tr(3)
    Mp = []
    for u in range(36):
        F = FP + 32 * (u % 2)
        for wn in range(4):
            for n in range(4):
                acc = vr(ACC + ((n // 2) + 2 * (wn // 2)) * 16 + (n % 2) * 8 + (wn % 2) * 4, 4)
                Mp.append("%s %s, %s, %s, %s" % (MF16, acc, vr(F + 16 + 4 * wn, 4), vr(F + 4 * n, 4), "0" if u == 0 else acc))
    SP_ = Sched(Mp); SP_.backlog = 99
    R0 = preads(0)
    for x, _ in R0: a(x)
    for u in range(1, 36):
        t0 = 16 * (u - 1) + (PB if u % 2 == 0 else 0)
        SP_.rq += [(x, t0, t0, None if us_ is None else 16 * u + us_) for x, us_ in preads(u)]
    for st in range(1, 18): SP_.bars[32 * st - 16 + PB] = st
    SP_.waitpts = [8 * k for k in range(72)]
    SP_.place_reads()
    for g_ in range(SP_.n):
        for u_ in SP_.use[g_].values():
            if u_ is not None: assert g_ < 32 * (u_ // 32 + 1) - 16 + PB, (g_, u_)
    for st in range(1, 18):
        b = 32 * st - 16 + PB
        G = []
        if st == 5: G.append("buffer_store_dword v194, v193, s[%d:%d], s%d offen sc1" % (SO, SO + 3, sFG))
        if st == 10: G.append(poll_load(4) + " ; need:13")
        if st + 3 < 18: G += a_dma(st + 3)
        if st + 5 < 18: G += w_dma(st + 5)
        SP_.place(G, b, b + 30, slack=30)
    nb_ = [0]
    def pbar(w):
        nb_[0] += 1
        a(w)
        if nb_[0] == 13: poll_check(4)
        a("s_barrier")
    SP_.emit(a, pbar, [u_ for _, u_ in R0], [2] * 4 + [3] * 4 + [5] * 2)
    if VERB: print("P over", SP_.over)
    st_("pm")
    a("s_nop 3")
    for j in range(1, 4):
        a("s_xor_b32 s%d, s%d, %d\ns_mul_i32 s%d, s%d, 49152\ns_add_u32 s%d, s%d, s%d\ns_add_u32 s%d, s%d, %d" % (sT0, sQ, j, sT0, sT0, sT0, sT0, sXO, sT0, sT0, (j - 1) * 16384))
        for r in range(8): a("v_cvt_pk_bf16_f32 v%d, v%d, v%d" % (FP + 8 * j + r, ACC + j * 16 + 2 * r, ACC + j * 16 + 2 * r + 1))
        for c in range(2): a("buffer_store_dwordx4 %s, v%d, s[%d:%d], s%d offen offset:%d sc1" % (vr(FP + 8 * j + 4 * c, 4), vK, SO, SO + 3, sT0, c * 1024))
    signal_wait(sFX, 11, [])
    st_("xs")
    a("s_mov_b32 s%d, s%d" % (sT0, sXR))
    for j in range(1, 4):
        for c in range(2): a("buffer_load_dwordx4 %s, v%d, s[%d:%d], s%d offen offset:%d sc1" % (vr(ACC + j * 16 + 4 * c, 4), vK, SO, SO + 3, sT0, c * 1024))
        if j < 3: a("s_add_u32 s%d, s%d, 16384" % (sT0, sT0))
    for j in range(1, 4):
        a("s_waitcnt vmcnt(%d)" % (2 * (3 - j)))
        for r in range(8):
            t = ACC + j * 16 + r
            a("v_lshlrev_b32 v12, 16, v%d\nv_and_b32 v13, 0xffff0000, v%d\nv_add_f32 v%d, v%d, v12\nv_add_f32 v%d, v%d, v13" % (t, t, ACC + 2 * r, ACC + 2 * r, ACC + 2 * r + 1, ACC + 2 * r + 1))
    for r in range(8): a("v_cvt_pk_bf16_f32 v%d, v%d, v%d" % (FP + r, ACC + 2 * r, ACC + 2 * r + 1))
    a("s_nop 1")
    for pr in range(2): a("v_permlane16_swap_b32 v%d, v%d\nv_permlane16_swap_b32 v%d, v%d" % (FP + 4 * pr, FP + 4 * pr + 2, FP + 4 * pr + 1, FP + 4 * pr + 3))
    a("buffer_store_dwordx4 %s, v6, s[%d:%d], s%d offen\ns_add_u32 s%d, s%d, 16384" % (vr(FP, 4), SOUT, SOUT + 3, sOUT, sOUT, sOUT))
    a("buffer_store_dwordx4 %s, v6, s[%d:%d], s%d offen" % (vr(FP + 4, 4), SOUT, SOUT + 3, sOUT))
    T.dump(SO, sWV, 4)
    a(done + ":\ns_endpgm")
    a(lRare + ":")
    for (ls, lb, kind) in spins:
        lp = a.label("sp")
        a(ls + ":\ns_mov_b32 s%d, 0x40000\n%s:" % (sT2, lp))
        a("s_sleep 8\n" + poll_load(kind) + "\ns_waitcnt vmcnt(0)\n%s\ns_cbranch_vccz %s" % (poll_cmp(kind), lb))
        a("s_sub_u32 s%d, s%d, 1\ns_cmp_lg_u32 s%d, 0\ns_cbranch_scc1 %s\ns_branch %s" % (sT2, sT2, sT2, lp, lb))
    for (ls, lb) in rels:
        a("%s:\nbuffer_wbl2 sc1\ns_waitcnt vmcnt(0)\ns_branch %s" % (ls, lb))
    sRET = 44
    for (p, sm, qk), (lr, users) in rare.items():
        for rid, (lj, lb) in enumerate(users): a("%s:\ns_mov_b32 s%d, %d\ns_branch %s" % (lj, sRET, rid, lr))
        a(lr + ":\ns_nop 7\ns_nop 7")
        for qb in range(4 // sm):
            cur = qregs(S[p], sm, qb); d, f = vX, vX + 2
            for x in maxtree(d, cur) + xlane("v_max_f32", [d], [d + 1]): a(x)
            a("v_max_f32 v%d, 0, v%d\nv_exp_f32 v%d, -v%d" % (d, d, f, d))
            nx = qregs(S[1 - p], qk, qb) if qb < 4 // qk else []
            for r in cur + [NM + 4 * qb + j for j in range(4)] + nx: a("v_sub_f32 v%d, v%d, v%d" % (r, r, d))
            a("v_mul_f32 v%d, v%d, v%d" % (vL[qb], vL[qb], f))
            for j in range(0, 32, 4):
                for q in range(4): a("v_accvgpr_read_b32 v%d, a%d" % (TM + q, O + qb * 32 + j + q))
                for q in range(4): a("v_mul_f32 v%d, v%d, v%d" % (TM + q, TM + q, f))
                for q in range(4): a("v_accvgpr_write_b32 a%d, v%d" % (O + qb * 32 + j + q, TM + q))
        for q in range(8):
            for n in range(8 * q, 8 * q + 8): a(ex(p, n))
            for j in range(4 * q, 4 * q + 4): a(cv(p, j))
        a("s_nop 1")
        for q in range(8): a(summ(p, sm, q))
        a("s_nop 7")
        for rid, (lj, lb) in enumerate(users):
            if rid < len(users) - 1: a("s_cmp_eq_u32 s%d, %d\ns_cbranch_scc1 %s" % (sRET, rid, lb))
            else: a("s_branch %s" % lb)
    a.add_kernel(name, 512, 102, 256)
    a.launch(name, 256, 256, 163840)
```

```python
from gen_common import *
from sched import Sched
from pack import Gaps
MF16 = "v_mfma_f32_16x16x32_bf16"

pX, pWQKV, pWO0, pC, pWQ, pWUK, pWUV, pBWO, pGATE, pDBG, pWS = 36, 38, 40, 44, 46, 48, 50, 52, 54, 58, 60
pWO = 58
NEG = "0xff800000"
THRESH = fbits(2.0 ** 48)
WSL = (98304, 131072)
LDS_G = WSL[0] + 24576
def aslot(g): return ((g + 2) % 3) * 32768

HACK16 = [0, 0]
def emit(a, M, streams):
    if HACK16[0]:
        import re
        M2 = []
        HACK16[1] += 1
        for t in M:
            m = re.match(r"(\S+) ([av])\[(\d+):\d+\], (\S+), (\S+), (\S+)", t)
            for q in range(2):
                b = int(m.group(3)) + 8 * (HACK16[1] % 2) + 4 * q
                d = "%s[%d:%d]" % (m.group(2), b, b + 3)
                M2.append("v_mfma_f32_16x16x32_bf16 %s, %s, %s, %s" % (d, m.group(4), m.group(5), d))
        M = M2
        streams = [([x for g in G for x in (g if isinstance(g, list) else [g])], 2 * l, 2 * h) for (G, l, h) in streams]
    n = len(M)
    fill = [[] for _ in range(n)]
    for (G, l, h) in streams:
        if not G: continue
        for g, m in zip(G, spread(len(G), l, min(h, n))):
            fill[m] += g if isinstance(g, list) else [g]
    for m in range(n):
        a(M[m])
        for x in fill[m]: a(x)
def isvm(x): return x.startswith("buffer_") or x.startswith("global_")

def gen_fused(a, name="p1_kernel", ts=False, NSK=30, WSP=16, PF=1, PKMUL=0, next_kernel=None, PD=8, TS2=0, DFR=9, EARLY1=0, PRE0=0, SENT=0, XSL0=6, LSPL=100, WL2=1, FUSE=1, SLP=4, QSL=(4, 6, 5), endlabel=None, NOTR=1, CRF=1, PDW=5, GPUB=11, VERB=0, H16=0, W16=0, TS3=0, WP=2, NEWP=1, WPF=None, LNT="", NTG=8, LATEAT=0, STAMPS=("start","q","attn","mid","s17"), XSL=3, XL2=0, ST=""):
    a.begin_kernel(name)
    T = TS(a, ts, 0, base=72)
    def st_(nm):
        if nm in STAMPS: T.stamp(STAMPS.index(nm))
    done = a.label("fdone")
    lAttn, lRare = a.label("attn"), a.label("rarecode")
    sWV = 3
    SA, SW, SX, SO, SD = 4, 8, 12, 16, 40
    sH, sI, sT0, sT1, sT2 = 20, 21, 22, 23, 24
    sAS, sAS2, sWS, sXS, sAM, sWM, sXM, sCNT, sOK, sDS, sSC = 25, 26, 27, 28, 29, 30, 31, 32, 33, 34, 35
    sQL, sQS, sU, sOA, sAD, sWD, sOJ, sVD, sFA, sGR = 92, 93, 94, 95, 96, 97, 56, 57, 63, 99
    sKO, sVO, sW4, sW8, sTH, sT = 48, 49, 50, 51, 54, 55
    vL16 = 1
    vAO, vWO, vXO = (2, 3, 4, 5), (6, 7, 8, 9), (10, 11)
    vAR, vWR, vXR = (12, 13), tuple(range(14, 22)), (22, 23, 24, 25)
    vOS, vOK = 26, 27
    QS = (28, 44); WR, NWR = 60, 8; TT, PK = 96, 104
    KS = (128, 160)
    vFO, vONE, vPFD, vTS, vW12, vPL, vPLO = 120, 121, 122, 123, 124, 125, 126
    sWS2, sOK2 = 62, 98
    QA = 128
    t2 = [0]
    def bar(waitstr):
        if TS2:
            n = t2[0]; t2[0] += 1
            if n > 0: a("v_writelane_b32 v123, s72, %d\nv_writelane_b32 v123, s74, %d" % (2 * n - 2, 2 * n - 1))
            a("s_memtime s[72:73]")
        a(waitstr + "\ns_barrier")
        if TS2: a("s_memtime s[74:75]")
    a("s_cmp_ge_u32 s2, 256\ns_cbranch_scc1 %s" % done)
    st_("start")
    a("s_load_dwordx16 s[36:51], s[0:1], 0\ns_load_dwordx8 s[52:59], s[0:1], 64\ns_load_dwordx2 s[60:61], s[0:1], 96")
    a("v_lshrrev_b32 v30, 6, v0\nv_and_b32 v0, 63, v0\nv_readfirstlane_b32 s%d, v30" % sWV)
    a("s_and_b32 s%d, s2, 7\ns_lshl_b32 s%d, s%d, 2\ns_lshr_b32 s%d, s2, 3\ns_and_b32 s%d, s%d, 3\ns_add_u32 s%d, s%d, s%d" % (sH, sH, sH, sT0, sT0, sT0, sH, sH, sT0))
    a("s_lshr_b32 s%d, s2, 5" % sI)
    a("v_lshlrev_b32 v%d, 4, v0" % vL16)
    a("v_lshrrev_b32 v30, 3, v0\nv_lshrrev_b32 v31, 4, v0\nv_and_b32 v32, 7, v0")
    a("v_xor_b32 v33, v31, v32\nv_lshlrev_b32 v33, 4, v33\nv_lshl_add_u32 v%d, v30, 10, v33" % vAO[0])
    a("v_add_u32 v%d, %d, v%d\nv_xor_b32 v33, 64, v%d\nv_add_u32 v%d, %d, v33\nv_add_u32 v%d, %d, v33" % (vAO[1], 7168, vAO[0], vAO[0], vAO[2], 2 * 7168, vAO[3], 3 * 7168))
    a("v_and_b32 v33, 15, v0\nv_lshlrev_b32 v34, 2, v31\nv_xor_b32 v33, v33, v34\nv_lshlrev_b32 v33, 4, v33\nv_lshl_add_u32 v%d, v31, 13, v33" % vWO[0])
    a("v_add_u32 v%d, %d, v%d\nv_xor_b32 v33, 16, v%d\nv_add_u32 v%d, %d, v33\nv_add_u32 v%d, %d, v33" % (vWO[1], 31744, vWO[0], vWO[0], vWO[2], 2 * 31744, vWO[3], 3 * 31744))
    a("s_sub_u32 s%d, 15, s%d\ns_bitcmp1_b32 s%d, 0\ns_cselect_b32 s%d, s%d, s%d\ns_lshl_b32 s%d, s%d, 1\ns_lshr_b32 s%d, s%d, 1\ns_add_u32 s%d, s%d, s%d" % (sT0, sI, sWV, sT0, sT0, sI, sT0, sT0, sT1, sWV, sT0, sT0, sT1))
    a("s_lshl_b32 s%d, s%d, 16\ns_add_u32 s%d, s%d, 32768" % (sAS, sT0, sAS2, sAS))
    a("s_lshl_b32 s%d, s%d, 13\ns_mov_b32 s%d, s%d" % (sAM, sWV, sWM, sAM))
    a("s_and_b32 s%d, s%d, 1\ns_lshl_b32 s%d, s%d, 18\ns_lshl_b32 s%d, s%d, 8\ns_add_u32 s%d, s%d, s%d" % (sT0, sWV, sT0, sT0, sWS, sH, sWS, sWS, sT0))
    a("s_and_b32 s%d, s2, 31\ns_add_u32 s%d, s%d, 0x20000" % (sU, sWS2, sWS))
    a("s_waitcnt lgkmcnt(0)")
    a("s_mov_b32 s100, s56\ns_mov_b32 s101, s57")
    srd(a, SA, pC, 0x200000)
    a("s_cmp_lt_u32 s%d, 2\ns_cselect_b32 s%d, s%d, s%d\ns_cselect_b32 s%d, s%d, s%d\ns_mov_b32 s%d, 0x400000\ns_mov_b32 s%d, 0x20000" % (sWV, SW, pWUK, pWUV, SW + 1, pWUK + 1, pWUV + 1, SW + 2, SW + 3))
    def dgrp(m0s, m0i, vo, srd_, so, stp, nd):
        G = ["s_add_u32 m0, s%d, %d" % (m0s, m0i)]
        G += ["buffer_load_dwordx4 v%d, s[%d:%d], s%d offen offset:%d lds ; need:%d" % (v, srd_, srd_ + 3, so, n * 1024, nd) for n, v in enumerate(vo)]
        G.append("s_add_u32 s%d, s%d, %d" % (so, so, stp))
        return G
    def fixm0(G):
        out = []
        for k, x in enumerate(G):
            out.append(x)
            if x.startswith("s_add_u32 m0"):
                if len(out) > 1 and out[-2].startswith("s_add_u32 s"): out[-1], out[-2] = out[-2], out[-1]
                else: out.append("s_nop 0")
        return out
    def dma_act(g): return fixm0(dgrp(sAM, aslot(g), vAO, SA, sAS, 128, g) + dgrp(sAM, aslot(g) + 4096, vAO, SA, sAS2, 128, g))
    def dma_w(g, withx=True):
        G = dgrp(sWM, WSL[g % 2], vWO, SW, sWS, 0x80000, g)
        if g < 8: G += dgrp(sWM, WSL[g % 2] + 4096, vWO, SW, sWS2, 0x80000, g)
        elif withx: G += dgrp(sXM, WSL[g % 2] + 16384, vXO, SX, sXS, 64 * 3072, g)
        return fixm0(G)
    if PRE0:
        a("s_lshr_b32 s%d, s2, 3\ns_lshl_b32 s%d, s%d, 16\ns_lshl_b32 s%d, s%d, 6\ns_add_u32 s%d, s%d, s%d\nv_lshlrev_b32 v36, 10, v0" % (sT0, sT0, sT0, sT1, sWV, sT0, sT0, sT1))
        a("s_and_b32 s%d, s2, 7\ns_lshl_b32 s%d, s%d, 10\ns_lshr_b32 s%d, s2, 4\ns_lshl_b32 s%d, s%d, 16\ns_add_u32 s%d, s%d, s%d\ns_lshr_b32 s%d, s%d, 1\ns_lshl_b32 s%d, s%d, 20\ns_add_u32 s%d, s%d, s%d" % (sT1, sT1, sT1, sT2, sT2, sT2, sT1, sT1, sT2, sT2, sWV, sT2, sT2, sT1, sT1, sT2))
        a("v_lshlrev_b32 v37, 13, v30\nv_lshl_add_u32 v37, v32, 7, v37")
        a("s_bitcmp1_b32 s2, 3\ns_cselect_b32 s98, s%d, s%d\ns_cselect_b32 s99, s%d, s%d" % (pWUV, pWUK, pWUV + 1, pWUK + 1))
        a("s_bitcmp1_b32 s%d, 0\ns_cselect_b32 s98, s98, s%d\ns_cselect_b32 s99, s99, s%d\ns_cselect_b32 s%d, s%d, s%d\ns_cselect_b64 vcc, -1, 0" % (sWV, pC, pC + 1, sT0, sT1, sT0))
        a("v_cndmask_b32 v36, v36, v37, vcc\nv_add_u32 v36, s%d, v36\nglobal_load_dword v122, v36, s[98:99]" % sT0)
    for x in dma_w(0) + dma_act(0): a(x.split(";")[0])
    NSL = max(XL2 + 4 if XL2 else 0, max(QSL) + 1, XSL + 1)
    def preg(k): return 192 + 2 * k
    def pf(k): return "global_load_dword v122, %s, off" % vr(preg(k), 2)
    def pfa(k, base, vo, so, imm=0):
        r = preg(k)
        a("s_add_u32 s%d, s%d, %d\nv_mov_b32 v%d, s%d\nv_add_u32 v%d, s%d, v%d" % (sT2, so, imm, r + 1, base + 1, r, sT2, vo))
        a("v_add_co_u32 v%d, vcc, s%d, v%d\ns_nop 1\nv_addc_co_u32 v%d, vcc, 0, v%d, vcc" % (r, base, r, r + 1, r + 1))
    def pfnone(k): a("v_mov_b32 v%d, s%d\nv_mov_b32 v%d, s%d" % (preg(k), pGATE, preg(k) + 1, pGATE + 1))
    if PF:
        l1, l3, le = a.label("pf1"), a.label("pf3"), a.label("pfe")
        a("s_cmp_eq_u32 s%d, 1\ns_cbranch_scc1 %s\ns_cmp_eq_u32 s%d, 3\ns_cbranch_scc1 %s" % (sWV, l1, sWV, l3))
        a("v_and_b32 v26, 31, v0\nv_lshlrev_b32 v26, 7, v26\ns_lshl_b32 s%d, s2, 13\ns_lshl_b32 s%d, s%d, 11\ns_add_u32 s%d, s%d, s%d" % (sT0, sT1, sWV, sT0, sT0, sT1))
        pfa(0, pC, 26, sT0, 0); a(pf(0))
        pfa(XSL, pX, 26, sT0, 0)
        used = {0, XSL}
        if XL2:
            a("s_lshr_b32 s%d, s2, 3\ns_lshl_b32 s%d, s%d, 16\ns_lshl_b32 s%d, s%d, 6\ns_add_u32 s%d, s%d, s%d\nv_lshlrev_b32 v26, 10, v0" % (sT0, sT0, sT0, sT1, sWV, sT1, sT0, sT1))
            for j in range(4):
                pfa(XL2 + j, pX, 26, sT1, 256 * j); used.add(XL2 + j)
        for k in range(NSL):
            if k not in used: pfnone(k)
        a("s_branch %s\n%s:" % (le, l1))
        a("v_lshlrev_b32 v26, 13, v30\nv_lshl_add_u32 v26, v32, 7, v26")
        a("s_bitcmp1_b32 s2, 3\ns_cselect_b32 s98, s%d, s%d\ns_cselect_b32 s99, s%d, s%d" % (pWUV, pWUK, pWUV + 1, pWUK + 1))
        a("s_and_b32 s%d, s2, 7\ns_lshl_b32 s%d, s%d, 10\ns_lshr_b32 s%d, s2, 4\ns_and_b32 s%d, s%d, 7\ns_lshl_b32 s%d, s%d, 16\ns_lshl_b32 s%d, s%d, 16" % (sT1, sT1, sT1, sT0, sCNT, sT0, sT0, sT0, sCNT, sCNT))
        a("s_add_u32 s%d, s%d, s%d\ns_add_u32 s%d, s%d, s%d" % (sT0, sT0, sT1, sCNT, sCNT, sT1))
        if PRE0:
            pfnone(0); a(pf(0)); pfa(1, 98, 26, sT0, 4 * 0x80000); pfa(2, 98, 26, sT0, 6 * 0x80000); pfnone(3)
        else:
            pfa(0, 98, 26, sT0, 1 * 0x80000); a(pf(0))
            pfa(1, 98, 26, sT0, 3 * 0x80000); pfa(2, 98, 26, sT0, 5 * 0x80000); pfa(3, 98, 26, sCNT, 7 * 0x80000)
        for k in range(4, NSL): pfnone(k)
        a("s_branch %s\n%s:" % (le, l3))
        lpc = a.label("pc")
        a("s_getpc_b64 s[98:99]\n%s:" % lpc)
        a("s_lshr_b32 s%d, s2, 3\nv_lshlrev_b32 v26, 5, v0\nv_add_u32 v26, s%d, v26\nv_lshlrev_b32 v26, 7, v26\ns_mov_b32 s%d, 0" % (sT0, sT0, sT0))
        a("v_min_u32 v27, %s-%s, v26" % (lAttn, lpc))
        pfa(0, 98, 27, sT0, 0); a(pf(0))
        a("v_lshlrev_b32 v26, 13, v30\nv_lshl_add_u32 v26, v32, 7, v26")
        a("s_lshr_b32 s%d, s2, 3\ns_lshl_b32 s%d, s%d, 16\ns_and_b32 s%d, s2, 7\ns_lshl_b32 s%d, s%d, 10\ns_add_u32 s%d, s%d, s%d" % (sT0, sT0, sT0, sT1, sT1, sT1, sT0, sT0, sT1))
        pfa(QSL[0], pWQ, 26, sT0, 0); pfa(QSL[1], pWQ, 26, sT0, 4 * 0x80000)
        a("s_min_u32 s%d, s%d, 23\ns_lshl_b32 s%d, s%d, 7\ns_mul_i32 s%d, s%d, %d\ns_add_u32 s%d, s%d, s%d\nv_mul_u32_u24 v26, 3072, v0" % (sT0, sU, sT0, sT0, sT1, sI, 64 * 3072, sT0, sT0, sT1))
        pfa(QSL[2], pWQKV, 26, sT0, 0)
        for k in range(1, NSL):
            if k not in QSL: pfnone(k)
        a(le + ":")
    def pfp(p): return [pf(p + 2)] if (PF and p + 2 < NSL) else []
    srd(a, SO, pWS, WS_SIZE)
    a("v_and_b32 v33, 1, v31\nv_lshlrev_b32 v33, 2, v33\nv_xor_b32 v33, v33, v32\nv_lshlrev_b32 v33, 4, v33\ns_movk_i32 s%d, 3072\nv_mad_u32_u24 v%d, v30, s%d, v33" % (sT0, vXO[0], sT0))
    a("v_xor_b32 v33, 16, v%d\nv_add_u32 v%d, %d, v33" % (vXO[0], vXO[1], 24576 - 1024))
    a("v_and_b32 v33, 1, v30\nv_lshl_add_u32 v33, v33, 4, v32")
    a("v_and_b32 v34, 15, v0\nv_lshrrev_b32 v34, 1, v34\nv_xor_b32 v34, v34, v31\nv_lshlrev_b32 v34, 4, v34\nv_lshl_add_u32 v34, v33, 7, v34")
    a("s_and_b32 s%d, s%d, 1\ns_lshl_b32 s%d, s%d, 14\ns_add_u32 s%d, s%d, %d" % (sT0, sWV, sT0, sT0, sT0, sT0, aslot(0)))
    a("v_add_u32 v%d, s%d, v34\nv_xor_b32 v%d, 64, v%d" % (vAR[0], sT0, vAR[1], vAR[0]))
    a("v_lshlrev_b32 v33, 4, v33\nv_lshl_add_u32 v%d, v31, 9, v33" % vOS)
    a("v_and_b32 v34, 1, v31\nv_lshl_add_u32 v33, v34, 10, v33\nv_lshrrev_b32 v35, 5, v0\nv_lshl_add_u32 v33, v35, 9, v33")
    a("s_cmp_lt_u32 s%d, 2\ns_cselect_b64 vcc, -1, 0\nv_cndmask_b32 v%d, v%d, v33, vcc" % (sWV, vOK, vOS))
    a("v_lshrrev_b32 v35, 2, v0\nv_and_b32 v35, 3, v35\nv_lshl_add_u32 v36, v31, 3, v35")
    a("v_and_b32 v37, 2, v0\nv_xor_b32 v37, v37, v34\nv_and_b32 v38, 1, v0\nv_lshlrev_b32 v38, 3, v38")
    a("v_lshlrev_b32 v39, 2, v35\nv_xor_b32 v39, v39, v37\nv_lshlrev_b32 v39, 4, v39\nv_lshl_add_u32 v39, v36, 8, v39")
    a("s_lshr_b32 s%d, s%d, 1\ns_lshl_b32 s%d, s%d, 14\ns_add_u32 s%d, s%d, %d\nv_add3_u32 v39, v39, v38, s%d" % (sWD, sWV, sWD, sWD, sT0, sWD, WSL[0], sT0))
    for k in range(8): a("v_xor_b32 v%d, %d, v39" % (vWR[k], 64 * (k // 2) + 16 * (k % 2)))
    a("v_lshrrev_b32 v39, 1, v35\nv_lshlrev_b32 v39, 2, v39\nv_xor_b32 v39, v39, v37\nv_lshlrev_b32 v39, 4, v39\nv_lshl_add_u32 v39, v36, 7, v39\nv_add_u32 v39, v39, v38\nv_add_u32 v39, %d, v39" % (WSL[0] + 16384))
    for k in range(4): a("v_xor_b32 v%d, %d, v39" % (vXR[k], 64 * (k // 2) + 16 * (k % 2)))
    a("s_lshl_b32 s%d, s%d, 2\ns_add_u32 s%d, s%d, s%d\ns_sub_u32 s%d, 60, s%d\ns_add_u32 s%d, s%d, s%d" % (sT1, sI, sQS, sT1, sWV, sQL, sT1, sQL, sQL, sWV))
    a("s_lshr_b32 s%d, s%d, 1\ns_lshl_b32 s%d, s%d, 5\ns_add_u32 s%d, s%d, s%d\ns_add_u32 s%d, s%d, 44\ns_lshl_b32 s%d, s%d, 19" % (sT0, sWV, sT0, sT0, sT0, sT0, sH, sT0, sT0, sOK, sT0))
    a("s_and_b32 s%d, s%d, 1\ns_lshl_b32 s%d, s%d, 1\ns_add_u32 s%d, s%d, s%d\ns_lshl_b32 s%d, s%d, 14\ns_add_u32 s%d, s%d, s%d" % (sT0, sWV, sT1, sI, sT0, sT0, sT1, sT0, sT0, sOK, sOK, sT0))
    a("s_lshl_b32 s%d, s%d, 16\ns_sub_u32 s%d, %d, s%d" % (sT0, sI, sOJ, 60 * 8192 - 4096, sT0))
    a("s_lshl_b32 s%d, s%d, 13\ns_and_b32 s%d, s%d, 1\ns_lshl_b32 s%d, s%d, 14\ns_sub_u32 s%d, s%d, s%d\ns_add_u32 s%d, s%d, %d" % (sT0, sWV, sT1, sWV, sT1, sT1, sAD, sT0, sT1, sAD, sAD, aslot(8) - aslot(7)))
    a("s_lshl_b32 s%d, s%d, 6\nv_add_u32 v%d, s%d, v0\nv_lshlrev_b32 v%d, 12, v%d\nv_mov_b32 v%d, 1" % (sT0, sWV, vFO, sT0, vFO, vFO, vONE))
    lpc2 = a.label("pc")
    a("s_getpc_b64 s[0:1]\n%s:" % lpc2)
    a("s_lshr_b32 s%d, s2, 3\ns_lshl_b32 s%d, s%d, 2\ns_add_u32 s%d, s%d, s%d\nv_and_b32 v127, 15, v0\nv_lshlrev_b32 v127, 7, v127\nv_add_lshl_u32 v127, v127, s%d, 7" % (sT0, sT0, sT0, sT0, sT0, sWV, sT0))
    a("v_min_u32 v127, %s-%s, v127" % (endlabel or lRare, lpc2))
    srd(a, SX, pGATE, 1024)
    a("s_mov_b32 s98, s%d\ns_mov_b32 s99, s%d" % (pWO0, pWO0 + 1))
    srd(a, SD, pDBG, 256)
    a("s_mov_b32 s%d, s98\ns_mov_b32 s%d, s99" % (pWO, pWO + 1))
    a("s_getreg_b32 s%d, hwreg(HW_REG_XCC_ID, 0, 4)\ns_mul_i32 s%d, s%d, s%d\ns_lshl_b32 s%d, s%d, 8\ns_add_u32 s%d, s%d, s%d\ns_lshl_b32 s%d, s%d, 8\ns_add_u32 s%d, s%d, 1" % (sT0, sT1, sT0, sT0, sT1, sT1, sT1, sT1, sT0, sT1, sT1, sFA, sT1))
    a("v_mov_b32 v125, s%d\ns_lshl_b32 s%d, s%d, 3\ns_and_b32 s%d, s2, 7\ns_lshl_b32 s%d, s%d, 2\ns_lshl_b32 s%d, s%d, 2" % (sFA, sFA, sFA, sGR, sGR, sGR, sCNT, sH))
    a("v_and_b32 v126, 3, v0\nv_add_lshl_u32 v126, v126, s%d, 2\ns_lshl_b32 s%d, s%d, 12\nv_add_u32 v126, s%d, v126\nv_mov_b32 v124, s%d" % (sGR, sT0, sWV, sT0, sT0))
    a("buffer_atomic_add v125, v%d, s[%d:%d], s%d offen offset:128 sc1\ns_add_u32 s%d, s%d, 8192" % (vFO, SD, SD + 3, sCNT, sOK2, sOK))

    def wofs(g): return (g % 2) * 32768
    def xa(g, ks):
        if g == 7: return "v_add_u32 v%d, s%d, v%d" % (vAR[ks], sAD, vAR[ks])
        d = aslot(g + 1) - aslot(g)
        return ("v_add_u32 v%d, 0x%x, v%d" % (vAR[ks], d, vAR[ks])) if d > 0 else ("v_subrev_u32 v%d, 0x%x, v%d" % (vAR[ks], -d, vAR[ks]))
    def rd_act(g, ks):
        F = (KS if g < 8 else QS)[ks]
        return ["ds_read_b128 %s, v%d offset:%d" % (vr(F + 4 * n, 4), vAR[ks], (n // 2) * 4096 + (n % 2) * 1024) for n in range(8 if g < 8 else 4)]
    def rd_w(g, ks, wf, slot):
        r = WR + 4 * (slot % NWR)
        if wf < 8: return ["ds_read_b64_tr_b16 %s, v%d offset:%d" % (vr(r + 2 * rd_, 2), vWR[wf], wofs(g) + ks * 8192 + rd_ * 1024) for rd_ in range(2)]
        if wf < 12: return ["ds_read_b64_tr_b16 %s, v%d offset:%d" % (vr(r + 2 * rd_, 2), vXR[wf - 8], wofs(g) + ks * 4096 + rd_ * 512) for rd_ in range(2)]
        return ["ds_read_b128 %s, v%d offset:%d" % (vr(r, 4), vXR[0], ((g - 8) * 2 + ks) * 64)]
    def mfs(g, ks, wf, slot, var):
        w = vr(WR + 4 * (slot % NWR), 4); F = (KS if g < 8 else QS)[ks]; first = (g % 8 == 0 and ks == 0)
        cb, tc = (wf % 8) // 2, wf % 2
        M = []
        for n in range(8 if g < 8 else 4):
            rb, tr = n // 2, n % 2
            x = vr(F + 4 * n, 4)
            sw = (var == "V") or (var == "S" and wf >= 8)
            tb, ta = (tc, tr) if sw else (tr, tc)
            if g < 8: acc = ar(((rb // 2) * 16 + cb * 4 + (rb % 2) * 2 + tb) * 8 + ta * 4, 4)
            elif wf < 8: acc = vr(QA + ((rb * 4 + cb) * 2 + tr) * 8 + tc * 4, 4)
            elif wf < 12: acc = ar((cb * 4 + rb * 2 + tb) * 8 + ta * 4, 4)
            else: acc = ar(4 * n, 4)
            M.append("%s %s, %s, %s, %s" % (MF16, acc, x if sw else w, w if sw else x, "0" if first else acc))
        return M
    def order(g, var):
        nw = list(range(8)) + ([8, 9, 10, 11] if var in "NS" else [12] if var == "G" else [])
        if g == 7: return [(ks, 2 * cb + t) for cb in range(4) for ks in range(2) for t in range(2)]
        if g == 15 and var in "NS":
            return [(ks, wf) for ks in range(2) for wf in range(8, 12)] + [(ks, 2 * cb + t) for cb in range(4) for ks in range(2) for t in range(2)]
        return [(ks, wf) for ks in range(2) for wf in nw]
    def build(g0, var):
        fr = [(g, ks, wf) for g in range(g0, g0 + 8) for (ks, wf) in order(g, var)]
        M = []; fm = []
        for k, (g, ks, wf) in enumerate(fr):
            fm.append(len(M)); M += mfs(g, ks, wf, k, var)
        S_ = Sched(M); n = len(M)
        look = [(8, 0, wf) for wf in range(PDW)] if g0 == 0 else []
        allf = fr + look
        cs = {};
        for k, (g, ks, wf) in enumerate(allf): cs.setdefault(g, k)
        bar_m = {g: fm[cs[g] - PDW + 1] for g in cs if g > g0}
        for g, m in bar_m.items(): S_.bars[m] = g
        na = 8 if g0 == 0 else 4
        items = []
        for k in range(PDW, len(allf)):
            g, ks, wf = allf[k]
            t = fm[k - PDW]; e = bar_m.get(g, 0); use = fm[k] if k < len(fr) else n + 1 + (k - len(fr))
            if k == cs[g] and g == 8: items += [(max(t, e), 0, j, ("v_subrev_u32 v%d, s%d, v%d" % (r, sWD, r), t, e, None)) for j, r in enumerate(vWR)]
            items += [(max(t, e), 1 if k == cs[g] else 3, 2 * k + j, (x, t, e, use)) for j, x in enumerate(rd_w(g, ks, wf, k))]
        for g in cs:
            for ks in range(2):
                if g == g0 and ks == 0: continue
                if g == 8 and g0 == 0 and ks == 1: continue
                R = rd_act(g, ks) + ([xa(g, ks)] if g < 15 else [])
                k1 = [k for k, f in enumerate(allf) if f[0] == g and f[1] == ks][0]
                u0 = fm[k1] if k1 < len(fr) else None
                for j, x in enumerate(R):
                    if ks == 0: t = e = bar_m[g]
                    else:
                        e = fm[cs[g]]; t = e + (j * min(u0 - e - 8, 40)) // len(R)
                    use = None if not x.startswith("ds_") else (u0 + j if u0 is not None else n)
                    items.append((max(t, e), 2, j, (x, t, e, use)))
        items.sort(key=lambda z: z[:3])
        S_.rq = [z[3] for z in items]
        S_.waitpts = [fm[k] for k in range(0, len(fr), 2 if var != "G" else 1) ]
        S_.place_reads()
        return S_, {g: fm[cs[g]] for g in range(g0, g0 + 8)}, bar_m, fm
    def pack(areg, pk, scale=None):
        t = TT
        G = ["v_accvgpr_read_b32 v%d, a%d" % (t + j, areg + j) for j in range(8)]
        if scale is not None: G += ["v_mul_f32 v%d, s%d, v%d" % (t + j, scale, t + j) for j in range(8)]
        G += ["v_cvt_pk_bf16_f32 v%d, v%d, v%d" % (pk + j, t + 2 * j, t + 2 * j + 1) for j in range(4)]
        return G
    def kv_unit(j, nd=None):
        cb, rb, tb = (j % 16) // 4, (j // 2) % 2, j % 2
        pk = PK + 4 * (j % 4)
        G = pack(j * 8, pk) + ["buffer_store_dwordx4 %s, v%d, s[%d:%d], s%d offen offset:%d%s" % (vr(pk, 4), vOK, SO, SO + 3, (sOK, sOK2)[rb], (cb % 2) * 2048 + tb * 128, " ; need:%d" % nd if nd else "")]
        if j == 15: G += ["s_add_u32 s%d, s%d, s%d" % (sOK, sOK, sOJ), "s_add_u32 s%d, s%d, s%d" % (sOK2, sOK2, sOJ)]
        elif j % 16 == 7: G += ["s_add_u32 s%d, s%d, 4096" % (sOK, sOK), "s_add_u32 s%d, s%d, 4096" % (sOK2, sOK2)]
        return G
    qa_setup = [["s_mov_b32 s%d, s%d" % (SA, pX), "s_mov_b32 s%d, s%d" % (SA + 1, pX + 1),
                 "s_lshl_b32 s%d, s%d, 15" % (sAS, sQL), "s_lshl_b32 s%d, s%d, 15" % (sAS2, sQS)]]
    qw_setup = [["s_mov_b32 m0, %d" % LDS_G, "s_mov_b32 s%d, s%d" % (SW, pWQ), "buffer_load_dwordx4 v%d, s[%d:%d], 0 offen lds ; need:8" % (vL16, SX, SX + 3), "s_mov_b32 s%d, s%d" % (SW + 1, pWQ + 1)],
                ["s_lshl_b32 s%d, s%d, 17" % (sT0, sWV), "s_lshl_b32 s%d, s%d, 8" % (sWS, sH), "s_add_u32 s%d, s%d, s%d" % (sWS, sWS, sT0), "s_lshl_b32 s%d, s%d, 12" % (sWM, sWV)],
                ["s_mov_b32 s%d, s%d" % (SX, pWQKV), "s_mov_b32 s%d, s%d" % (SX + 1, pWQKV + 1), "s_lshl_b32 s%d, s%d, 11" % (sXM, sWV), "s_mul_i32 s%d, s%d, %d" % (sXS, sWV, 16 * 3072)],
                ["s_lshl_b32 s%d, s%d, 7" % (sT0, sU), "s_add_u32 s%d, s%d, s%d" % (sXS, sXS, sT0),
                 "s_and_b32 s%d, s%d, 3" % (sT0, sH), "s_cmp_eq_u32 s%d, 3" % sT0, "s_cselect_b32 s%d, 0, 0x180000" % (SX + 2)]]
    at_setup = [["v_cmp_ne_u32 vcc, s%d, v125" % sFA], ["s_cmp_eq_u64 vcc, 0", "s_cselect_b32 s%d, 1, s%d" % (sFA, sWV)],
                ["s_cmp_eq_u32 s%d, 0" % sWV, "s_cselect_b32 s46, 8, 0", "s_cselect_b32 s47, 0x80000000, 0"],
                ["s_lshl_b32 s%d, s%d, 12" % (sW4, sWV), "s_lshl_b32 s%d, s%d, 13" % (sW8, sWV), "s_lshl_b32 s%d, s%d, 19" % (sT0, sH)],
                ["s_lshl_b32 s%d, s%d, 15" % (sVD, sI), "s_add_u32 s%d, s%d, s%d" % (sT0, sT0, sVD)],
                ["s_add_u32 s%d, s%d, 0x%x" % (sKO, sT0, OFF_K), "s_add_u32 s%d, s%d, 0x%x" % (sVO, sT0, OFF_V), "s_mov_b32 s%d, %s" % (sTH, THRESH)]]
    sRA, sHP, sA0, sA1, sGB, sGA_, sGL_, sGS_, sP0, sP1_, sX0, sX1 = 36, 37, 38, 39, 64, 65, 66, 67, 68, 69, 70, 71
    sXO, sXR = 62, 95
    sFG, sFX, sRBK, sTIL = 96, 97, 60, 61
    late_setup = [["s_lshr_b32 s%d, s%d, 3" % (sX1, sH), "s_lshl_b32 s%d, s%d, 3" % (sFG, sX1), "s_add_u32 s%d, s%d, s%d" % (sFG, sFG, sI), "s_lshl_b32 s%d, s%d, 5" % (sFG, sFG),
                 "s_and_b32 s%d, s%d, 7" % (sX0, sH), "s_add_u32 s%d, s%d, s%d" % (sFG, sFG, sX0), "s_lshl_b32 s%d, s%d, 2" % (sFG, sFG), "s_add_u32 s%d, s%d, 0x%x" % (sFG, sFG, OFF_FL),
                 "s_sub_u32 s%d, 15, s%d" % (sX0, sI)], ["s_bitcmp1_b32 s2, 0", "s_cselect_b32 s%d, s%d, s%d" % (sRBK, sX0, sI)], ["s_lshl_b32 s%d, s%d, 2" % (sFX, sRBK),
                 "s_and_b32 s%d, s%d, 3" % (sX0, sH), "s_add_u32 s%d, s%d, s%d" % (sTIL, sFX, sX0), "s_lshl_b32 s%d, s%d, 5" % (sFX, sTIL), "s_add_u32 s%d, s%d, s%d" % (sFX, sFX, sX1),
                 "s_lshl_b32 s%d, s%d, 2" % (sFX, sFX), "s_add_u32 s%d, s%d, 0x%x" % (sFX, sFX, OFF_FL + 32 * 128)],
        ["s_bitcmp1_b32 s%d, 1" % sH, "s_cselect_b32 s%d, s%d, s%d" % (sRA, sQL, sQS)],
        ["s_and_b32 s%d, s%d, 1" % (sHP, sH), "s_lshr_b32 s%d, s%d, 1" % (sX0, sGR), "s_add_u32 s%d, s%d, s%d" % (sHP, sHP, sX0), "s_lshl_b32 s%d, s%d, 11" % (sGB, sGR), "s_add_u32 s%d, s%d, 0x%x" % (sGB, sGB, OFF_G)]]
    for d_, blk in ((sGA_, sRA), (sGL_, sQL), (sGS_, sQS)): late_setup.append(["s_lshl_b32 s%d, s%d, 7" % (d_, blk), "s_add_u32 s%d, s%d, s%d" % (d_, d_, sGB)])
    late_setup += [["s_lshr_b32 s%d, s%d, 2" % (sX0, sHP), "s_lshl_b32 s%d, s%d, 19" % (sX0, sX0), "s_and_b32 s%d, s%d, 3" % (sX1, sHP), "s_lshl_b32 s%d, s%d, 11" % (sX1, sX1),
         "s_add_u32 s%d, s%d, s%d" % (sX0, sX0, sX1), "s_lshl_b32 s%d, s%d, 13" % (sX1, sRA), "s_add_u32 s%d, s%d, s%d" % (sA0, sX0, sX1),
         "s_max_u32 s%d, s%d, 1" % (sX1, sRA), "s_sub_u32 s%d, s%d, 1" % (sX1, sX1), "s_lshl_b32 s%d, s%d, 13" % (sX1, sX1), "s_add_u32 s%d, s%d, s%d" % (sA1, sX0, sX1),
         "s_add_u32 s%d, s%d, %d" % (sA1, sA1, 4 * PH),
         "s_lshr_b32 s%d, s2, 3" % sX0, "s_lshl_b32 s%d, s%d, 2" % (sX0, sX0), "s_add_u32 s%d, s%d, s%d" % (sX0, sX0, sWV), "s_and_b32 s%d, s2, 6" % sX1,
         "s_lshl_b32 s%d, s%d, 6" % (sX1, sX1), "s_add_u32 s%d, s%d, s%d" % (sX0, sX0, sX1), "s_lshl_b32 s%d, s%d, 6" % (sP0, sX0), "s_lshl_b32 s%d, s%d, 3" % (sP1_, sX0),
         "s_mul_i32 s%d, s%d, %d" % (sXO, sTIL, 4 * 49152), "s_add_u32 s%d, s%d, s%d" % (sXO, sXO, sW4), "s_add_u32 s%d, s%d, 0x%x" % (sXO, sXO, OFF_X),
         "s_lshr_b32 s%d, s%d, 3" % (sXR, sH), "s_mul_i32 s%d, s%d, 49152" % (sXR, sXR), "s_add_u32 s%d, s%d, s%d" % (sXR, sXR, sXO),
         "s_add_u32 s%d, s%d, %d" % (sX0, sA0, 4 * PH), "s_add_u32 s%d, s%d, %d" % (sX1, sA0, 8 * PH), "s_add_u32 s%d, s%d, %d" % (sGB, sA1, 4 * PH)]]
    import re as _re
    def ren(G, mp): return [[_re.sub(r"\bs(\d+)\b", lambda m_: "s%d" % mp.get(int(m_.group(1)), int(m_.group(1))), x) for x in g] for g in G]
    early = ren(late_setup[:3], {sFG: 64, sFX: 65})
    early += [["v_mov_b32 v28, 0", "v_min_u32 v29, 1, v%d" % vFO, "v_lshlrev_b32 v29, 29, v29", "buffer_store_dword v28, v29, s[%d:%d], s64 offen sc1" % (SO, SO + 3)]]
    if SENT:
        early += [["s_lshl_b32 s66, s%d, 2" % sTIL, "s_add_u32 s66, s66, s%d" % sX1, "s_mul_i32 s66, s66, 49152", "s_lshl_b32 s67, s%d, 12" % sWV, "s_add_u32 s66, s66, s67", "s_add_u32 s66, s66, 0x%x" % OFF_X]]
        early += [["v_mov_b32 v%d, -1" % r for r in range(32, 36)]]
        for j in range(3):
            early += [["buffer_store_dwordx4 v[32:35], v%d, s[%d:%d], s66 offen offset:%d sc1" % (vL16, SO, SO + 3, c * 1024) for c in range(2)] + ["s_add_u32 s66, s66, 16384"]]
    else: early += [["buffer_store_dword v28, v29, s[%d:%d], s65 offen sc1" % (SO, SO + 3)]]
    SK, SV = SO, SO
    vK, vV = vL16, 2
    def dma(which, typ, par, srd_=None):
        so, sr_, base = (sKO, SK, 0) if which == "K" else (sVO, SV, 65536)
        if srd_ is not None: sr_ = srd_
        sw = sW4 if typ == 1 else sW8
        G = []
        for q in range(typ):
            g = ["s_add_u32 m0, s%d, %d" % (sw, base + par * 32768 + q * 4096)]
            g.append("s_add_u32 s%d, s%d, s%d" % (sDS, so, sw) if q == 0 else "s_add_u32 s%d, s%d, 4096" % (sDS, sDS))
            G.append(g)
            for o in range(4):
                G.append(["buffer_load_dwordx4 v%d, s[%d:%d], s%d offen offset:%d sc1 lds" % (vK, sr_, sr_ + 3, sDS, o * 1024)])
        return G
    def adv(which, typ):
        so = sKO if which == "K" else sVO
        if which == "V" and typ == 1: return ["s_add_u32 s%d, s%d, s%d" % (so, so, sVD), "s_movk_i32 s%d, 0x4000" % sVD]
        return ["s_add_u32 s%d, s%d, %d" % (so, so, 16384 * typ)]
    spins = []
    vF1, vFA, vPO = 122, 251, 254
    sP1, sG1, sG2 = 45, 46, 47
    def poll_load(kind):
        if kind == 1: return "buffer_load_dword v%d, v124, s[%d:%d], s%d offen sc1" % (vF1, SD, SD + 3, sCNT)
        if kind == 4: return "buffer_load_dword v195, v192, s[%d:%d], s%d offen sc1" % (SO, SO + 3, sG2)
        if kind == 3: return "buffer_load_dword v13, v12, s[%d:%d], 0 offen offset:128 sc1" % (SD, SD + 3)
        return "buffer_load_dword v%d, v%d, s[%d:%d], 0 offen offset:128 sc1" % (vFA, vPO, SD, SD + 3)
    def poll_cmp(kind): return "v_cmp_gt_u32 vcc, s%d, v%d" % ((sG1, vF1) if kind == 1 else (sG2, vFA) if kind == 2 else (sG2, 13) if kind == 3 else (sG1, 195))
    def poll_check(kind):
        ls, lb = a.label("spin"), a.label("spun")
        a("%s\ns_cbranch_vccnz %s\n%s:" % (poll_cmp(kind), ls, lb))
        spins.append((ls, lb, kind))
    rels = []
    def release():
        ls, lb = a.label("rel"), a.label("reld")
        a("s_cmp_eq_u32 s%d, 0\ns_cbranch_scc1 %s\n%s:" % (sFA, ls, lb))
        rels.append((ls, lb))

    st_("setup")
    if EARLY1:
        for x in dma_w(1) + dma_act(1): a(x.split(";")[0])
    bar("s_waitcnt vmcnt(%d)" % ((2 if PF else 1) + (16 if EARLY1 else 0)))
    st_("bar0")
    def flat(G): return [x for g in G for x in g]
    def keep(G): return [g if any(x.startswith("s_cselect") for x in g) else None for g in G]
    def soft(G):
        out = []
        for g in G:
            if any(x.startswith("s_cselect") for x in g):
                k = [j for j, x in enumerate(g) if x.startswith("s_cmp") or x.startswith("s_bitcmp")][0]
                out += g[:k] + [g[k:]]
            else: out += g
        return out
    pre0 = rd_w(0, 0, 0, 0) + rd_act(0, 0) + [x for k in range(1, PDW) for x in rd_w(0, 0, k, k)]
    use0 = [0, 0] + list(range(8)) + [8 * k for k in range(1, PDW) for _ in range(2)]
    for x in pre0: a(x)
    a(xa(0, 0))
    lV = a.label("kvV"); lQ = a.label("qphase")
    a("s_cmp_ge_u32 s%d, 2\ns_cbranch_scc1 %s" % (sWV, lV))
    NKV = 12
    for var in ("K", "V"):
        if var == "V": a(lV + ":")
        t2[0] = 1
        S_, cm, bm, fm = build(0, var)
        if EARLY1: S_.place(pfp(-1) + dma_act(2), 40, bm[1] - 2)
        else:
            S_.place(dma_w(1) + dma_act(1), 0, 56)
            S_.place(dma_act(2) + pfp(-1), 56, bm[1] - 2)
        for g in range(1, 9):
            b = bm[g]; e = bm.get(g + 1, S_.n + 96)
            Wn = (soft(qw_setup) if g == 7 else []) + dma_w(g + 1) + pfp(g - 1)
            if CRF and g in (3, 5, 7): Wn = Wn + ["global_load_dword v122, v127, s[0:1]"]
            if g == 6: Wn = ["buffer_load_dword v125, v126, s[%d:%d], 0 offen offset:128 sc1 ; need:7" % (SD, SD + 3)] + Wn
            S_.place(Wn, b, b + (44 if g < 8 else 31))
            if g < 8: S_.place((flat(qa_setup) if g == 6 else []) + dma_act(g + 2) + (soft(at_setup) if g == 7 else []), b + 44, e - 8)
        S_.place(soft(early), bm[3], bm[6])
        for cb in range(3):
            S_.place([x for j in range(4 * cb, 4 * cb + 4) for x in kv_unit(j, GPUB)], cm[7] + 32 * cb + 36, cm[7] + 32 * cb + 68 if cb < 2 else S_.n)
        vmh = S_.emit(a, bar, use0, [1] * 16 if EARLY1 else [])
        left = S_.left; nkv = S_.n
        if VERB: print("KV over", S_.over)
        if var == "K": a("s_branch %s" % lQ)
    a(lQ + ":")
    st_("q")
    lN, lS, lG, lE = a.label("qN"), a.label("qS"), a.label("qG"), a.label("qE")
    a("s_and_b32 s%d, s%d, 3\ns_cmp_eq_u32 s%d, 3\ns_cbranch_scc1 %s\ns_cmp_ge_u32 s%d, 16\ns_cbranch_scc1 %s" % (sT0, sH, sT0, lG, sU, lS))
    use8 = [0 if u == nkv else 4 * (u - nkv - 1) for u in left]
    for var, lab in (("N", lN), ("S", lS), ("G", lG)):
        a(lab + ":")
        t2[0] = 9
        if var == "G": a("v_lshrrev_b32 v%d, 4, v0\nv_lshlrev_b32 v%d, 4, v%d\nv_add_u32 v%d, %d, v%d" % (vXR[0], vXR[0], vXR[0], vXR[0], LDS_G, vXR[0]))
        S_, cm, bm, fm = build(8, var)
        per = cm[9] - cm[8]
        vTW, vTR, TG = vXO[0], (vXO[1], vXR[1], vXR[2], vXR[3]), 32
        sSJ, sTD, sTL = sOA, sXS, sXM
        def t_dma(j, nd):
            G = []
            if j == 4: G += ["s_mov_b32 s%d, s%d" % (SX, pWO), "s_mov_b32 s%d, s%d" % (SX + 1, pWO + 1), "s_mov_b32 s%d, 0x80000" % (SX + 2)]
            for n in range(4):
                G += ["s_add_u32 m0, s%d, %d" % (sTL, n * 1024), "s_add_u32 s%d, s%d, %d" % (sDS, sSC, (j % 4) * 0x100000 + n * 4096),
                      "buffer_load_dwordx4 v%d, s[%d:%d], s%d offen lds ; need:%d" % (vTW, SX, SX + 3, sDS, nd)]
            return G
        def t_store(j):
            G = []
            if j == 4: G.append(["s_cmp_ge_u32 s%d, 32" % sSJ, "s_cselect_b32 s%d, 0x%x, s%d" % (sTD, OFF_DUMMY, sTD)])
            G.append("s_add_u32 s%d, s%d, %d" % (sT1, sTD, WROW))
            G += ["buffer_store_dwordx4 %s, v%d, s[%d:%d], s%d offen offset:%d" % (ar(TG + 4 * cb, 4), vL16, SO, SO + 3, sTD if cb < 2 else sT1, (cb % 2) * 1024) for cb in range(4)]
            G.append("s_add_u32 s%d, s%d, %d" % (sTD, sTD, 64 * 2048))
            return G
        if var == "G" and not NOTR:
            rq = list(S_.rq)
            for g in range(10, 15):
                pos = [k for k, r in enumerate(rq) if max(r[1], r[2]) >= cm[g]][0]
                rq[pos:pos] = [("ds_read_b64_tr_b16 %s, v%d offset:%d" % (ar(TG + 4 * cb + 2 * rd_, 2), vTR[cb], rd_ * 2048), cm[g] - 1, cm[g] - 1, cm[g] + 12) for cb in range(4) for rd_ in range(2)]
            S2 = Sched(S_.M); S2.bars = S_.bars; S2.waitpts = S_.waitpts; S2.rq = rq; S2.place_reads(); S_ = S2
            tsetup = ("s_and_b32 s%d, s2, 7\ns_lshl_b32 s%d, s%d, 3\ns_add_u32 s%d, s%d, s%d\n" % (sSJ, sSJ, sSJ, sSJ, sSJ, sI) +
                "s_lshl_b32 s%d, s%d, 12\ns_add_u32 s%d, s%d, %d\n" % (sTL, sWV, sTL, sTL, WSL[1] + 16384) +
                "v_lshrrev_b32 v92, 4, v0\nv_and_b32 v93, 15, v0\nv_lshlrev_b32 v94, 2, v92\nv_xor_b32 v93, v93, v94\nv_lshlrev_b32 v93, 4, v93\nv_lshl_add_u32 v%d, v92, 10, v93\n" % vTW +
                "s_mov_b32 s%d, s%d\ns_mov_b32 s%d, s%d\ns_mov_b32 s%d, 0x400000\n" % (SX, pBWO, SX + 1, pBWO + 1, SX + 2) +
                "s_lshl_b32 s%d, s%d, 14\ns_lshl_b32 s%d, s%d, 8\ns_add_u32 s%d, s%d, s%d\n" % (sSC, sSJ, sT0, sWV, sSC, sSC, sT0) +
                "v_lshrrev_b32 v93, 2, v0\nv_and_b32 v93, 3, v93\nv_lshrrev_b32 v94, 5, v0\nv_lshl_add_u32 v94, v94, 2, v93\n" +
                ("v_and_b32 v95, 1, v92\nv_lshlrev_b32 v95, 3, v95\nv_and_b32 v92, 3, v0\n" if W16 else
                 "v_and_b32 v92, 1, v92\nv_lshlrev_b32 v92, 1, v92\nv_lshrrev_b32 v95, 1, v0\nv_and_b32 v95, 1, v95\nv_add_u32 v92, v92, v95\nv_and_b32 v95, 1, v0\nv_lshlrev_b32 v95, 3, v95\n") +
                "v_lshlrev_b32 v93, 2, v93\nv_xor_b32 v93, v93, v92\nv_lshlrev_b32 v93, 4, v93\nv_lshl_add_u32 v93, v94, 8, v93\nv_add3_u32 v93, v93, v95, s%d\n" % sTL +
                "".join("v_xor_b32 v%d, %d, v93\n" % (vTR[k], 64 * k) for k in range(4)) +
                "s_mul_i32 s%d, s%d, %d\ns_lshl_b32 s%d, s%d, 11\ns_add_u32 s%d, s%d, s%d\ns_add_u32 s%d, s%d, 0x%x" % (sTD, sWV, 2 * WROW, sT1, sSJ, sTD, sTD, sT1, sTD, sTD, OFF_W)).split("\n")
        S_.place(dma_act(10) + (tsetup if var == "G" and not NOTR else []), 0, bm[9] - 6)
        for g in range(9, 16):
            b = bm[g]; e = bm.get(g + 1, S_.n)
            Wn = dma_w(g + 1, var != "G") if g < 15 else flat(dma("K", 1, 0, SO) + [adv("K", 1)] + dma("K", 1, 1, SO)) + [poll_load(1) + " ; need:16"]
            if g == GPUB:
                S_.hooks[g] = release
                Wn = Wn + ["buffer_atomic_add v%d, v%d, s[%d:%d], s%d offen sc1" % (vONE, vFO, SD, SD + 3, sCNT)]
            if CRF and g in (9, 11, 13): Wn = Wn + ["global_load_dword v122, v127, s[0:1]"]
            A = dma_act(g + 2) if g + 2 < 16 else []
            if var == "G" and not NOTR:
                mid = cm[g] + 14
                S_.place(Wn, b, mid)
                S_.place((t_dma(g - 9, g + 1) if g < 14 else []) + (t_store(g - 10) if 10 <= g < 15 else []) + A, mid, e - 4)
            else:
                S_.place(Wn, b, b + 32)
                S_.place(A, b + 32, e - 6)
        S_.place(soft(late_setup), cm[10], cm[14])
        zero = lambda lo, hi: ["v_accvgpr_write_b32 a%d, 0" % r for r in range(lo, hi)]
        S_.place([x for j in range(NKV, 16) for x in kv_unit(j, GPUB)], 6, cm[9] + per // 2)
        S_.place([x for j in range(16, 32) for x in kv_unit(j)] + zero(64, 128), cm[9] + per // 2, cm[15] + 24)
        tail = []
        if var in "NS":
            hd = ["s_lshr_b32 s%d, s%d, 1" % (sT0, sU), "s_lshl_b32 s%d, s%d, 19" % (sT0, sT0), "s_and_b32 s%d, s%d, 1" % (sT1, sU), "s_lshl_b32 s%d, s%d, 12" % (sT1, sT1), "s_add_u32 s%d, s%d, s%d" % (sT0, sT0, sT1),
                  ["s_cmp_lt_u32 s%d, 8" % sU, "s_cselect_b32 s%d, %s, 1.0" % (sSC, fbits(LOG2E * 0.25))],
                  "s_lshl_b32 s%d, s%d, 13" % (sOK, sQL), "s_add_u32 s%d, s%d, s%d" % (sOK, sOK, sT0), "s_lshl_b32 s%d, s%d, 13" % (sOK2, sQS), "s_add_u32 s%d, s%d, s%d" % (sOK2, sOK2, sT0)]
            AE = []
            for j in range(8):
                cb, rb, tb = j // 4, (j // 2) % 2, j % 2
                pk = PK + 4 * (j % 4)
                AE += pack(j * 8, pk, sSC if var == "N" else None) + ["buffer_store_dwordx4 %s, v%d, s[%d:%d], s%d offen offset:%d" % (vr(pk, 4), vOS, SO, SO + 3, (sOK, sOK2)[rb], cb * 2048 + tb * 128)]
            S_.place(hd, cm[15] + 24, cm[15] + 36)
            room = S_.room(cm[15] + 38, S_.n) - 8
            S_.place(AE[:room], cm[15] + 38, S_.n); tail = AE[room:]
        vm2 = S_.emit(a, bar, use8, vmh)
        if VERB: print("Q", var, "over", S_.over, "tail", len(tail))
        for x in tail: a(x)
        nafter = len(vm2) - 1 - max(k for k, nd in enumerate(vm2) if nd == 16) + sum(1 for x in tail if isvm(x))
        if var in "NS":
            a("s_waitcnt vmcnt(%d)\ns_branch %s" % (nafter, lE))
        else:
            a("s_nop 7")
            a("v_accvgpr_read_b32 v28, a0\nv_accvgpr_read_b32 v29, a4\nv_accvgpr_read_b32 v30, a8\nv_accvgpr_read_b32 v31, a12\nv_and_b32 v32, 16, v0\nv_cmp_eq_u32 s[26:27], 0, v32\nv_cmp_gt_u32 vcc, 32, v0")
            a("v_mov_b32 v33, s%d\nv_mov_b32 v34, s%d\nv_cndmask_b32 v28, v29, v28, s[26:27]\nv_cndmask_b32 v30, v31, v30, s[26:27]\nv_cndmask_b32 v28, v30, v28, vcc\nv_cndmask_b32 v33, v34, v33, vcc" % (sQL, sQS))
            a("v_mul_f32 v28, %s, v28\nv_exp_f32 v28, v28\nv_and_b32 v34, 0x1ff, v%d\nv_add_f32 v28, 1.0, v28\nv_rcp_f32 v28, v28" % (fbits(-LOG2E), vOS))
            a("v_lshrrev_b32 v34, 2, v34\nv_lshl_add_u32 v34, v32, 1, v34\nv_lshl_add_u32 v33, v33, 7, v34\ns_lshl_b32 s%d, s%d, 11\ns_add_u32 s%d, s%d, 0x%x" % (sT0, sGR, sT0, sT0, OFF_G))
            a("buffer_store_dword v28, v33, s[%d:%d], s%d offen\ns_waitcnt vmcnt(%d)" % (SO, SO + 3, sT0, nafter + 1))
    a(lE + ":")
    a(lAttn + ":")
    st_("attn")
    vU, vGL, vGS = 3, 4, 5
    vL = (6, 7); vLT = (8, 9); vX = 10
    S = (16, 80); P = (144, 176); NM = 208; TM = 240
    vGA, vNEG, vPM, vDUM = 248, 249, 250, 14
    O, Q, FR, NFR = 0, 128, 192, 16
    ms = (26, 28, 30)
    def kfrag(p, idx): return ("K", p * 32768 + idx * 1024)
    def vfrag(p, g, db): return ("V", p * 32768 + (g // 2) * 8192 + db * 2048 + (g % 2) * 1024)
    def rd(slot, fr):
        return "ds_read_b128 %s, v%d offset:%d" % (ar(FR + 4 * (slot % NFR), 4), vK if fr[0] == "K" else vV, fr[1])
    def mf_list(p, pv, qk):
        L = []
        Pp = P[1 - p]; Sn = S[1 - p]
        if pv == 1:
            for g in range(4):
                for db in range(4):
                    L.append((vfrag(1 - p, g, db), ["%s %s, {F}, %s, %s" % (MF32, ar(O + rb * 64 + db * 16, 16), vr(Pp + rb * 16 + g * 4, 4), ar(O + rb * 64 + db * 16, 16)) for rb in range(2)]))
        elif pv == 2:
            for g in range(8):
                for db in range(4):
                    L.append((vfrag(1 - p, g, db), ["%s %s, {F}, %s, %s" % (MF32, ar(O + db * 16, 16), vr(Pp + g * 4, 4), ar(O + db * 16, 16))]))
        elif pv == 3:
            for db in range(4):
                for g in range(8):
                    L.append((("K", vfrag(1, g, db)[1]), ["%s %s, {F}, %s, %s" % (MF32, ar(O + db * 16, 16), vr(Pp + g * 4, 4), ar(O + db * 16, 16))]))
        if qk == 1:
            for kb in range(2):
                for s in range(8):
                    ms_ = []
                    for rb in range(2):
                        d = vr(Sn + rb * 32 + kb * 16, 16)
                        ms_.append("%s %s, {F}, %s, %s" % (MF32, d, ar(Q + rb * 32 + s * 4, 4), d if s else vr(NM + rb * 16, 16)))
                    L.append((kfrag(1 - p, kb * 8 + s), ms_))
        elif qk == 2:
            for kb in range(4):
                for s in range(8):
                    d = vr(Sn + kb * 16, 16)
                    L.append((kfrag(1 - p, kb * 8 + s), ["%s %s, {F}, %s, %s" % (MF32, d, ar(Q + s * 4, 4), d if s else vr(NM, 16))]))
        return L
    def sm_list(p, sm):
        Sc, Pc = S[p], P[p]
        order = [0, 2, 1, 3] if sm == 1 else [0, 1, 2, 3]
        els = [b * 16 + j for b in order for j in range(16)]
        V = []
        first = {0: True, 1: True}
        def tail(n):
            e = els[n]; u = TM + (n % 8); lt = vLT[e // 32]
            out = []
            if first[e // 32]:
                out.append((4, "v_add_f32 v%d, v%d, v%d" % (lt, u, u + 1))); first[e // 32] = False
            else:
                out.append((4, "v_add_f32 v%d, v%d, v%d" % (lt, lt, u)))
                out.append((4, "v_add_f32 v%d, v%d, v%d" % (lt, lt, u + 1)))
            out.append((4, "v_cvt_pk_bf16_f32 v%d, v%d, v%d" % (Pc + e // 2, u, u + 1)))
            return out
        for n in range(0, 64, 2):
            tl = tail(n - 2) if n >= 2 else []
            V.append((8, "v_exp_f32 v%d, v%d" % (TM + n % 8, Sc + els[n])))
            V += tl[:1]
            V.append((8, "v_exp_f32 v%d, v%d" % (TM + n % 8 + 1, Sc + els[n + 1])))
            V += tl[1:]
        V += tail(62)
        return V
    rare = {}
    def step(p, pv, sm, qk, dK, dV, pre_in=True, pre_out=True, advK=True, extra_vm=None, extra_valu=None, chk=0, last16=False, staged=None, trail=None, vm_first=False):
        L = mf_list(p, pv, qk)
        nf = len(L)
        nxt = [vfrag(p, g, db) for g in range(4) for db in range(4)][:PD]
        if last16: nxt = [x[0] for x in mf_list(1, 3, 0)][:PD]
        M = [(f, t) for f, (fr, ts_) in enumerate(L) for t in ts_]
        nm = len(M)
        fill = [[] for _ in range(nm)]
        G = []
        if dV: G += dma("V", dV, p) + [adv("V", dV)]
        if dK: G += dma("K", dK, p) + ([adv("K", dK)] if advK else [])
        ntr = sum(1 for g in (trail or []) for x in g if isvm(x))
        if extra_vm and vm_first: G = extra_vm + G + (trail or [])
        elif extra_vm: G += extra_vm + (trail or [])
        elif CRF > 1 and p == 0 and dK: G += [["global_load_dword v%d, v255, s[0:1]" % vGA]]
        firstm = {}
        for m, (f, t) in enumerate(M): firstm.setdefault(f, m)
        barf = nf + 1 - PD
        if barf % WP: barf += WP - barf % WP
        if not pre_out or last16: barf = nf + 99
        Gp = Gaps([28] * (nm - 1) + [8])
        sR = Gp.newstream(); pre = None
        allfr = [x[0] for x in L] + (nxt if pre_out else [])
        nrd = PD
        for f in range(nf):
            m = firstm[f]
            w_ = None
            if f == barf: w_ = ["s_BARW", "s_BAR"]
            elif f < barf and f % WP == 0: w_ = ["s_waitcnt lgkmcnt(%d)" % max(0, nrd - 1 - min(f + WP - 1, nf - 1))]
            if w_ and m == 0: pre = w_
            elif w_:
                for x in w_: Gp.add(m - 1, sR, x)
            want = min(f + PD, len(allfr) - 1)
            if f < barf and not last16: want = min(want, nf - 1)
            lim = 2
            while nrd <= want and lim:
                Gp.add(m, sR, rd(nrd, allfr[nrd])); nrd += 1; lim -= 1
        assert nrd == len(allfr), (nrd, len(allfr))
        hiD = min(max(len(G) + 1, (nm * DFR) // 16), firstm[barf] - 4 if barf < nf else nm)
        Gp.place(G, 1, hiD, slack=40)
        V = [x for c, x in sm_list(p, sm)] if sm else []
        if sm: V += ["v_max_f32 v%d, v%d, v%d" % (vX, vLT[0], vLT[1]), "v_cmp_lt_f32 vcc, s%d, v%d" % (sTH, vX)]
        if extra_valu: V += extra_valu
        Gp.place(V, 0, nm - 1)
        for (lst, lo, hi) in (staged or []): Gp.place(lst, lo, hi)
        if VERB: print("step", p, pv, sm, qk, "over", Gp.over())
        if not pre_in:
            for f in range(PD): a(rd(f, L[f][0]))
        for x in pre or []: a(x)
        for m, (f, t) in enumerate(M):
            a(t.replace("{F}", ar(FR + 4 * (f % NFR), 4)))
            for x in Gp.out(m):
                if x == "s_BARW": continue
                if x == "s_BAR":
                    if TS3: a("s_mov_b32 m0, s76\ns_add_u32 s76, s76, 1\nv_writelane_b32 v11, s72, m0\ns_mov_b32 m0, s76\ns_add_u32 s76, s76, 1\nv_writelane_b32 v11, s74, m0\ns_memtime s[72:73]")
                    a("s_waitcnt vmcnt(%d) lgkmcnt(0)" % ntr)
                    if chk: poll_check(chk)
                    a("s_barrier")
                    if TS3: a("s_memtime s[74:75]\ns_waitcnt lgkmcnt(0)")
                else: a(x)
        assert nf % NFR == 0
        if sm:
            key = (p, sm, qk if qk else sm)
            if key not in rare: rare[key] = (a.label("rare"), [])
            lb = a.label("back"); lj = a.label("jr")
            rid = len(rare[key][1]); rare[key][1].append((lj, lb))
            a("s_cbranch_vccnz %s\n%s:" % (lj, lb))
            if sm == 1: a("v_add_f32 v%d, v%d, v%d\nv_add_f32 v%d, v%d, v%d" % (vL[0], vL[0], vLT[0], vL[1], vL[1], vLT[1]))
            else: a("v_add_f32 v%d, v%d, v%d\nv_add_f32 v%d, v%d, v%d" % (vL[0], vL[0], vLT[0], vL[0], vL[0], vLT[1]))
    def rowmax(dst, regs_):
        a("v_max3_f32 v%d, v%d, v%d, v%d" % (dst, regs_[0], regs_[1], regs_[2]))
        j = 3
        while j + 1 < len(regs_):
            a("v_max3_f32 v%d, v%d, v%d, v%d" % (dst, dst, regs_[j], regs_[j + 1])); j += 2
        if j < len(regs_): a("v_max_f32 v%d, v%d, v%d" % (dst, dst, regs_[j]))
        a("v_mov_b32 v%d, v%d\ns_nop 1\nv_permlane32_swap_b32 v%d, v%d\nv_max_f32 v%d, v%d, v%d" % (dst + 1, dst, dst, dst + 1, dst, dst, dst + 1))
    def mask(base, nblk, kb0):
        a("s_nop 7\ns_nop 3")
        for j in range(nblk):
            lf = a.label("mfull"); le_ = a.label("mend")
            kb = kb0 + j; r0 = base + 16 * j
            a("s_cmp_gt_u32 s%d, %d\ns_cbranch_scc1 %s" % (sWV, kb, le_))
            if kb > 0: a("s_cmp_lt_u32 s%d, %d\ns_cbranch_scc1 %s" % (sWV, kb, lf))
            rr = list(range(16))
            for c in range(0, 16, 3):
                grp = rr[c:c + 3]
                for q, r in enumerate(grp): a("v_cmp_gt_i32 s[%d:%d], %d, v%d" % (ms[q], ms[q] + 1, 8 * (r // 4) + r % 4, vU))
                if len(grp) < 3: a("s_nop 1")
                for q, r in enumerate(grp): a("v_cndmask_b32 v%d, v%d, v%d, s[%d:%d]" % (r0 + r, r0 + r, vNEG, ms[q], ms[q] + 1))
            if kb > 0:
                a("s_branch %s\n%s:" % (le_, lf))
                for r in range(16): a("v_mov_b32 v%d, v%d" % (r0 + r, vNEG))
            a(le_ + ":")
    poll_check(1)
    bar("s_nop 0")
    if TS2:
        a("s_waitcnt lgkmcnt(0)"); bar("s_nop 0")
        a("s_lshl_b32 s78, s2, 2\ns_add_u32 s78, s78, s%d\ns_lshl_b32 s78, s78, 8\ns_add_u32 s78, s78, 0x%x\nv_lshlrev_b32 v122, 2, v0" % (sWV, OFF_TS + 0x80000))
        a("buffer_store_dword v123, v122, s[%d:%d], s78 offen\ns_waitcnt vmcnt(0)" % (SO, SO + 3))
    a("s_mov_b32 s%d, %s" % (sSC, fbits(LOG2E / math.sqrt(128.0))))
    fr0 = [kfrag(0, kb * 8 + s) for s in range(8) for kb in range(2)]
    for f in range(12): a(rd(f, fr0[f]))
    def qepi(cb):
        G = []
        for rb in range(2):
            src = QA + (rb * 4 + cb) * 16
            G += ["v_mul_f32 v%d, s%d, v%d" % (src + j, sSC, src + j) for j in range(16)]
            G += ["v_cvt_pk_bf16_f32 v%d, v%d, v%d" % (src + j, src + 2 * j, src + 2 * j + 1) for j in range(8)]
        for rb in range(2):
            src = QA + (rb * 4 + cb) * 16
            G += ["v_permlane16_swap_b32 v%d, v%d" % (src + j, src + 4 + j) for j in range(4)]
        for rb in range(2):
            src = QA + (rb * 4 + cb) * 16
            G += ["v_accvgpr_write_b32 a%d, v%d" % (Q + rb * 32 + cb * 8 + j, src + j) for j in range(8)]
        return G
    a("s_add_u32 s%d, s%d, 0x4000\ns_sub_u32 s%d, s%d, s%d\ns_cmp_eq_u32 s%d, 0\ns_cselect_b32 s%d, 0x8000, 0\ns_add_u32 s%d, s%d, s%d" % (sT1, sVD, sKO, sKO, sT1, sI, sT0, sKO, sKO, sT0))
    for g_ in dma("V", 1, 0):
        for x in g_: a(x)
    a("s_add_u32 s%d, s%d, 0x4000\ns_sub_u32 s%d, 0, s%d" % (sVO, sVO, sVD, sT1))
    for x in qepi(0): a(x)
    for f in range(12, 16): a(rd(f, fr0[f]))
    misc = ["v_add_u32 v%d, 0x10000, v%d" % (vV, vK), "v_and_b32 v10, 31, v0", "v_lshrrev_b32 v11, 5, v0", "v_lshlrev_b32 v11, 2, v11",
            "v_and_b32 v12, 8, v0", "v_and_b32 v13, 16, v0", "v_lshrrev_b32 v13, 1, v13", "v_and_b32 v14, 7, v0", "v_lshl_add_u32 v12, v12, 1, v13", "v_add_u32 v12, v12, v14", "v_sub_u32 v%d, v12, v11" % vU,
            "v_mov_b32 v%d, 0" % vL[0], "v_mov_b32 v%d, 0" % vL[1], "v_mov_b32 v%d, %s" % (vNEG, NEG), "v_and_b32 v%d, 3, v0" % vPO, "v_add_lshl_u32 v%d, v%d, s%d, 2" % (vPO, vPO, sGR), "v_add_u32 v%d, s%d, v%d" % (vPO, sW4, vPO), "v_mov_b32 v253, 0x10000000", "v_mov_b32 v252, v%d" % vFO, "v_mov_b32 v255, v127"]
    misc += ["v_accvgpr_write_b32 a%d, 0" % r for r in range(0, 40)]
    a("s_waitcnt lgkmcnt(0)\ns_barrier")
    K2 = dma("K", 2, 0) + [["s_cmp_eq_u32 s%d, 0" % sI, "s_cselect_b32 s%d, 2, 1" % sT0, "s_lshl_b32 s%d, s%d, 14" % (sT0, sT0), "s_add_u32 s%d, s%d, s%d" % (sKO, sKO, sT0)]]
    for cb in range(4):
        M = []
        for s in (2 * cb, 2 * cb + 1):
            for kb in range(2):
                for rb in range(2):
                    d = vr(S[0] + rb * 32 + kb * 16, 16)
                    M.append("%s %s, %s, %s, %s" % (MF32, d, ar(FR + 4 * (2 * s + kb), 4), ar(Q + rb * 32 + s * 4, 4), d if s else "0"))
        emit(a, M, [(K2[4 * cb: 4 * cb + 4], 0, 7), (qepi(cb + 1) + ["s_nop 0"] if cb < 3 else misc, 0, 8)])
    st_("m1")
    for r in range(40, 64): a("v_accvgpr_write_b32 a%d, 0" % r)
    mask(S[0] + 32, 2, 0)
    for rb in range(2): rowmax(vX + 2 * rb, [S[0] + rb * 32 + j for j in range(32)])
    for rb in range(2):
        for j in range(16): a("v_sub_f32 v%d, 0, v%d" % (NM + rb * 16 + j, vX + 2 * rb))
    for rb in range(2):
        for j in range(32): a("v_sub_f32 v%d, v%d, v%d" % (S[0] + rb * 32 + j, S[0] + rb * 32 + j, vX + 2 * rb))
    st_("first")
    if TS3: a("s_mov_b32 s76, 0\ns_mov_b32 s72, 0\ns_mov_b32 s74, 0")
    step(0, 0, 1, 1, 0, 0, pre_in=False)
    st_("s0a")
    release()
    a("buffer_atomic_add v253, v252, s[%d:%d], s%d offen offset:128 sc1" % (SD, SD + 3, sCNT))
    mask(S[1] + 32, 2, 2)
    st_("s0")
    lT0, lT1, lT1b, lL1, lL2, lS15, lMid, lI7, lEn = [a.label(x) for x in ("T0", "T1", "T1b", "L1", "L2", "S15", "MID", "I7", "END")]
    PL = [[poll_load(2)]]
    AF = [ar(Q + 4 * j, 4) for j in range(9)]
    def ld(dst, so, off): return ["buffer_load_dwordx4 %s, v%d, s[%d:%d], s%d offen offset:%d sc1" % (dst, vK, SV, SV + 3, so, off)]
    AOP = [ld(AF[0], sA0, 0), ld(AF[1], sA0, 1024), ld(AF[2], sX0, 0), ld(AF[3], sX0, 1024), ld(AF[4], sA1, 0), ld(AF[5], sA1, 1024),
           ld(AF[6], sGB, 1024), ld(AF[7], sX1, 0), ld(AF[8], sX1, 1024)]
    ALD = [["v_and_b32 v14, 31, v0", "v_lshlrev_b32 v14, 2, v14", "buffer_load_dword v%d, v14, s[%d:%d], s%d offen sc1" % (vGA, SV, SV + 3, sGA_)],
           ["v_lshrrev_b32 v15, 5, v0", "v_lshl_add_u32 v13, v15, 2, v%d" % vU, "v_lshlrev_b32 v15, 5, v15"],
           ["v_add_lshl_u32 v%d, v13, v15, 4" % vFA, "v_lshlrev_b32 v15, 2, v13", "buffer_load_dword v%d, v15, s[%d:%d], s%d offen sc1" % (vGL, SV, SV + 3, sGL_)],
           ["buffer_load_dword v%d, v15, s[%d:%d], s%d offen sc1" % (vGS, SV, SV + 3, sGS_)]]
    def wpf(dst): return [["v_add_lshl_u32 v14, v0, s%d, 7" % sP0, "global_load_dword %s, v14, s[%d:%d]" % (dst, pBWO, pBWO + 1)],
                          ["v_and_b32 v15, 7, v0", "v_add_lshl_u32 v15, v15, s%d, 7" % sP1_, "global_load_dword %s, v15, s[%d:%d]" % (dst, pWO, pWO + 1)]]
    TR0, TR15 = [], []
    if FUSE:
        ALD += [["v_add_u32 v12, s%d, v14" % sW4, poll_load(3)]]
        TR0 = wpf("v%d" % vPM)
        if WL2: TR15 = wpf("v9" if False else "v%d" % vDUM)
    CST = "sc1" if FUSE else ""
    a("s_cmp_eq_u32 s%d, 0\ns_cbranch_scc1 %s" % (sI, lT1))
    a("s_mov_b32 s%d, s%d" % (sT, sI))
    a(".p2align 6\n" + lL1 + ":")
    step(1, 1, 1, 1, 1, 1)
    a("s_sub_u32 s%d, s%d, 1\ns_cbranch_scc0 %s" % (sT, sT, lT0) if False else "s_sub_u32 s%d, s%d, 1\ns_cmp_eq_u32 s%d, 0\ns_cbranch_scc1 %s" % (sT, sT, sT, lT0))
    step(0, 1, 1, 1, 1, 1)
    a("s_branch %s" % lL1)
    a(lT0 + ":")
    a("s_add_u32 s%d, s%d, 0x8000" % (sKO, sKO))
    step(0, 1, 1, 1, 2, 1, extra_vm=PL, chk=2, trail=TR0)
    a("s_cmp_eq_u32 s%d, 7\ns_cbranch_scc1 %s" % (sI, lT1b))
    a(lT1 + ":")
    step(1, 1, 1, 2, 2, 1)
    a("s_add_u32 s%d, s%d, 0x8000" % (sVO, sVO))
    step(0, 1, 2, 2, 2, 2, extra_vm=PL, chk=2, trail=TR0)
    a("s_sub_u32 s%d, 6, s%d\ns_cmp_eq_u32 s%d, 0\ns_cbranch_scc1 %s" % (sT, sI, sT, lS15))
    a(".p2align 6\n" + lL2 + ":")
    step(1, 2, 2, 2, 2, 2)
    step(0, 2, 2, 2, 2, 2)
    a("s_sub_u32 s%d, s%d, 1\ns_cmp_lg_u32 s%d, 0\ns_cbranch_scc1 %s" % (sT, sT, sT, lL2))
    a(lS15 + ":")
    a("s_add_u32 s%d, s%d, 0x8000" % (sKO, sVO))
    step(1, 2, 2, 2, 2, 2, extra_vm=ALD, chk=3 if FUSE else 0, trail=TR15, vm_first=True)
    a("s_branch %s" % lMid)
    a(lT1b + ":")
    a("s_add_u32 s%d, s%d, 0xc000" % (sKO, sVO))
    step(1, 1, 1, 2, 2, 1, extra_vm=ALD, chk=3 if FUSE else 0, trail=TR15, vm_first=True)
    def fin_head(rb, so):
        l = vL[rb]; g = (vGL, vGS)[rb]; blk = (sQL, sQS)[rb]
        return ["v_mov_b32 v%d, v%d" % (vX + 5, l), "v_sub_f32 v%d, 1.0, v%d" % (g, g), "s_mul_i32 s%d, s%d, %d" % (so, blk, CROW), "v_permlane32_swap_b32 v%d, v%d" % (l, vX + 5),
                "v_add_f32 v%d, v%d, v%d" % (l, l, vX + 5), "v_rcp_f32 v%d, v%d" % (l, l), "s_lshl_b32 s%d, s%d, 13" % (sT1, sH), "v_mul_f32 v%d, v%d, v%d" % (l, l, g),
                "s_add_u32 s%d, s%d, s%d" % (so, so, sT1), "s_add_u32 s%d, s%d, 0x%x" % (so, so, OFF_C)]
    def fin_part(rb, c, t, so):
        l = vL[rb]
        G = ["v_accvgpr_read_b32 v%d, a%d" % (t + j, O + rb * 64 + c * 8 + j) for j in range(8)]
        G += ["v_mul_f32 v%d, v%d, v%d" % (t + j, l, t + j) for j in range(8)]
        G += ["v_cvt_pk_bf16_f32 v%d, v%d, v%d" % (t + j, t + 2 * j, t + 2 * j + 1) for j in range(4)]
        if c == 4: G.append("s_add_u32 s%d, s%d, 4096" % (so, so))
        G.append("buffer_store_dwordx4 %s, v%d, s[%d:%d], s%d offen offset:%d %s" % (vr(t, 4), vFA, SV, SV + 3, so, (c % 4) * 1024, CST))
        return G
    a(lMid + ":")
    st_("mid")
    if TS3:
        a("s_mov_b32 m0, s76\ns_add_u32 s76, s76, 1\nv_writelane_b32 v11, s72, m0\ns_mov_b32 m0, s76\ns_add_u32 s76, s76, 1\nv_writelane_b32 v11, s74, m0")
        a("s_lshl_b32 s78, s2, 2\ns_add_u32 s78, s78, s%d\ns_lshl_b32 s78, s78, 8\ns_add_u32 s78, s78, 0x%x\nv_lshlrev_b32 v10, 2, v0" % (sWV, OFF_TS + 0x80000))
        a("buffer_store_dword v11, v10, s[%d:%d], s78 offen\ns_nop 4" % (SO, SO + 3))
    for x in flat(AOP): a(x)
    mask(S[0], 4, 0)
    PW, PW2 = 8, 12
    sWB, sHW, sWC, sAB, sHA, sAC = 25, 32, 33, 34, 35, 45
    vD = (252, 253, 254, 255)
    WRING = [0, 16384, 65536, 81920, 131072, 147456]; ARING = [32768, 49152, 98304, 114688]
    def w_dma(st):
        G = []
        if st < 16 and st % 2 == 0:
            G.append(["s_lshl_b32 s%d, s%d, 17" % (sWC, sHW), "s_add_u32 s%d, s%d, s%d" % (sWC, sWC, sWB), "s_add_u32 s%d, s%d, 1" % (sHW, sHW), "s_and_b32 s%d, s%d, 7" % (sHW, sHW)])
        if st == 16: G.append(["s_and_b32 s%d, s%d, 0xffff" % (sWC, sWB), "s_lshr_b32 s%d, s%d, 20" % (sHW, sWB), "s_lshl_b32 s%d, s%d, 17" % (sHW, sHW), "s_add_u32 s%d, s%d, s%d" % (sWC, sWC, sHW)])
        G.append(["s_add_u32 m0, s%d, %d" % (sW4, WRING[st % 6]), "s_nop 0" if st % 2 == 0 else "s_add_u32 s%d, s%d, 65536" % (sWC, sWC)])
        sr_ = PW if st < 16 else PW2
        G += [["buffer_load_dwordx4 v%d, s[%d:%d], s%d offen offset:%d lds" % (vD[o], sr_, sr_ + 3, sWC, o * 1024)] for o in range(4)]
        return G
    def a_dma(st):
        G = []
        if st < 16 and st % 2 == 0:
            G.append(["s_lshl_b32 s%d, s%d, 13" % (sAC, sHA), "s_add_u32 s%d, s%d, s%d" % (sAC, sAC, sAB), "s_add_u32 s%d, s%d, 1" % (sHA, sHA), "s_and_b32 s%d, s%d, 7" % (sHA, sHA)])
        if st == 16: G.append(["s_lshr_b32 s%d, s%d, 3" % (sHA, sH), "s_mul_i32 s%d, s%d, %d" % (sHA, sHA, 56 * 1024), "s_sub_u32 s%d, s%d, s%d" % (sAC, sAB, sHA), "s_add_u32 s%d, s%d, %d" % (sAC, sAC, 256 * 1024)])
        G.append(["s_add_u32 m0, s%d, %d" % (sW4, ARING[st % 4]), "s_nop 0" if st % 2 == 0 else "s_add_u32 s%d, s%d, 4096" % (sAC, sAC)])
        G += [["buffer_load_dwordx4 v%d, s[%d:%d], s%d offen offset:%d sc1 lds" % (vK, SV, SV + 3, sAC, o * 1024)] for o in range(4)]
        return G
    W16_, W17_ = [], []
    if FUSE:
        srd(a, PW, pBWO, 0x400000); srd(a, PW2, pWO, 0x80000)
        a("s_lshr_b32 s%d, s%d, 3\ns_lshl_b32 s%d, s%d, 20\ns_and_b32 s%d, s%d, 3\ns_lshl_b32 s%d, s%d, 8\ns_add_u32 s%d, s%d, s%d\ns_lshl_b32 s%d, s%d, 14\ns_add_u32 s%d, s%d, s%d" % (sT0, sH, sWB, sT0, sT1, sH, sT1, sT1, sWB, sWB, sT1, sT1, sWV, sWB, sWB, sT1))
        a("s_and_b32 s%d, s%d, 7\ns_mov_b32 s%d, s%d" % (sHW, sH, sHA, sHW))
        a("s_lshl_b32 s%d, s%d, 2\ns_add_u32 s%d, s%d, s%d\ns_mul_i32 s%d, s%d, %d\ns_lshl_b32 s%d, s%d, 16\ns_add_u32 s%d, s%d, s%d\ns_add_u32 s%d, s%d, 0x%x" % (sT1, sRBK, sT1, sT1, sWV, sAB, sT1, CROW, sT0, sT0, sAB, sAB, sT0, sAB, sAB, OFF_C))
        a("v_lshrrev_b32 v10, 4, v0\nv_and_b32 v11, 15, v0\nv_lshlrev_b32 v12, 2, v10\nv_xor_b32 v11, v11, v12\nv_lshlrev_b32 v11, 4, v11\nv_lshl_add_u32 v%d, v10, 10, v11" % vD[0])
        for n in range(1, 4): a("v_add_u32 v%d, %d, v%d" % (vD[n], 3072 * n, vD[0]))
        W16_ = [g for st in range(4) for g in w_dma(st)]; W17_ = [g for st in range(4, 6) for g in w_dma(st)]
    a("s_cmp_eq_u32 s%d, 7\ns_cbranch_scc1 %s" % (sI, lI7))
    NE = 6
    for x in fin_head(1, sA0): a(x)
    for c in range(NE):
        for x in fin_part(1, c, 208 + 8 * (c % 4), sA0): a(x)
    step(0, 2, 2, 0, 0, 0, last16=True, extra_vm=W16_)
    def final(first):
        stg = [(first + fin_head(0, sA1), 0, 11)]
        for db in range(3):
            stg.append((fin_part(0, 2 * db, 80 + 16 * db, sA1) + fin_part(0, 2 * db + 1, 88 + 16 * db, sA1), 8 * db + 11, min(8 * db + 19, 32)))
        step(1, 3, 0, 0, 0, 0, pre_out=False, staged=stg, extra_vm=W17_)
        a("s_nop 11")
        for x in fin_part(0, 6, 128, sA1) + fin_part(0, 7, 136, sA1): a(x)
    final([x for c in range(NE, 8) for x in fin_part(1, c, 208 + 8 * (c % 4), sA0)])
    a("s_branch %s" % lEn)
    a(lI7 + ":")
    step(0, 1, 2, 0, 0, 0, last16=True, extra_vm=W16_)
    final(fin_head(1, sA0) + [x for c in range(8) for x in fin_part(1, c, 208 + 8 * (c % 4), sA0)])
    a(lEn + ":")
    st_("s17")
    if FUSE:
        SOUT = 4; sQ, sOUT = 26, 28
        vA, vW = (2, 3), (4, 5); ACC, FP = 16, 80
        BC, BP = 208, 224
        SC, SP = (16, 32), (48, 64); TA = (144, 156); PA = (168, 180); MX = (240, 242)
        L1 = ["v_and_b32 v246, 31, v0", "v_lshrrev_b32 v245, 5, v0", "v_lshlrev_b32 v245, 2, v245", "v_sub_u32 v246, v246, v245",
              "v_add_u32 v246, 18, v246", "v_mov_b32 v244, 0x5555", "v_mov_b32 v245, 0", "s_cmp_eq_u32 s%d, 0" % sRA, "s_cselect_b32 s%d, -1, 0" % sT2,
              "v_lshlrev_b64 v[244:245], v246, v[244:245]", "v_not_b32 v244, v244", "v_not_b32 v245, v245", "v_or_b32 v244, s%d, v244" % sT2]
        L1 += ["v_bfe_i32 v%d, v245, %d, 1" % (BC + r, 8 * (r // 4) + r % 4) for r in range(16)]
        L1 += ["v_bfe_i32 v%d, v244, %d, 1" % (BP + r, 8 * (r // 4) + r % 4) for r in range(8, 16)]
        L1 += ["v_and_b32 v%d, v%d, v%d" % (BC + r, vNEG, BC + r) for r in list(range(16)) + list(range(24, 32))]
        L1 += ["v_and_b32 v244, 1, v0", "v_lshlrev_b32 v244, 4, v244", "v_mov_b32 v245, 0xffff", "v_lshlrev_b32 v%d, v244, v245" % vPM, "s_waitcnt vmcnt(40)"]
        for e in range(2):
            L1.append("%s %s, %s, %s, %s" % (MF32, vr(SC[e], 16), AF[2 + e], AF[e], vr(BC, 16)))
            L1.append("%s %s, %s, %s, %s" % (MF32, vr(SP[e], 16), AF[4 + e], AF[e], vr(BP, 16)))
        L2 = []
        for e in range(2):
            L2 += ["v_max_f32 v%d, v%d, v%d" % (TA[e] + j, SP[e] + 8 + 2 * j, SP[e] + 9 + 2 * j) for j in range(4)]
            L2 += ["v_max_f32 v%d, v%d, v%d" % (TA[e] + 4 + j, SC[e] + 2 * j, SC[e] + 2 * j + 1) for j in range(8)]
        for e in range(2):
            t = TA[e]; m = MX[e]
            L2.append("v_max3_f32 v%d, v%d, v%d, v%d" % (m, t, t + 1, t + 2))
            L2 += ["v_max3_f32 v%d, v%d, v%d, v%d" % (m, m, t + j, t + j + 1) for j in range(3, 11, 2)]
            L2 += ["v_max_f32 v%d, v%d, v%d" % (m, m, t + 11), "v_mov_b32 v%d, v%d" % (m + 1, m)]
        L2.append("s_nop 1")
        L2 += ["v_permlane32_swap_b32 v%d, v%d" % (MX[e], MX[e] + 1) for e in range(2)]
        L2 += ["v_max_f32 v%d, v%d, v%d" % (MX[e], MX[e], MX[e] + 1) for e in range(2)]
        for e in range(2):
            L2 += ["v_sub_f32 v%d, v%d, v%d" % (TA[e] + j, TA[e] + j, MX[e]) for j in range(12)]
            L2 += ["v_exp_f32 v%d, v%d" % (TA[e] + j, TA[e] + j) for j in range(12)]
        for e in range(2):
            L2 += ["v_cvt_pk_bf16_f32 v%d, v%d, v%d" % (PA[e] + j, TA[e] + j, TA[e] + j) for j in range(12)]
            L2 += ["v_and_b32 v%d, v%d, v%d" % (PA[e] + j, vPM, PA[e] + j) for j in range(12)]
            L2 += ["s_nop 1"] if e == 1 else ["v_add_f32 v%d, v%d, v%d" % (MX[q], TA[q], TA[q] + 1) for q in range(2)]
            L2 += ["%s %s, %s, %s, %s" % (MF32, vr(SC[e], 16), AF[6 + g], vr(PA[e] + 4 * g, 4), "0" if g == 0 else vr(SC[e], 16)) for g in range(3)]
        L2 += ["v_add_f32 v%d, v%d, v%d" % (MX[e], MX[e], TA[e] + j) for j in range(2, 12) for e in range(2)]
        L2 += ["v_mov_b32 v%d, v%d" % (MX[e] + 1, MX[e]) for e in range(2)]
        L2 += ["s_mul_i32 s%d, s%d, %d" % (sA0, sRA, CROW), "s_lshl_b32 s%d, s%d, 11" % (sA1, sHP)]
        L2 += ["v_permlane32_swap_b32 v%d, v%d" % (MX[e], MX[e] + 1) for e in range(2)]
        L2 += ["v_add_f32 v%d, v%d, v%d" % (MX[e], MX[e], MX[e] + 1) for e in range(2)]
        L2 += ["v_rcp_f32 v%d, v%d" % (MX[e], MX[e]) for e in range(2)]
        L2 += ["s_add_u32 s%d, s%d, s%d" % (sA0, sA0, sA1), "s_add_u32 s%d, s%d, 0x%x" % (sA0, sA0, OFF_C + 256 * 1024)]
        L2 += ["v_mul_f32 v%d, v%d, v%d" % (MX[e], MX[e], vGA) for e in range(2)]
        for e in range(2):
            src = SC[e] + 8 * e
            L2 += ["v_mul_f32 v%d, v%d, v%d" % (src + j, MX[e], src + j) for j in range(8)]
            L2 += ["v_cvt_pk_bf16_f32 v%d, v%d, v%d" % (PA[e] + j, src + 2 * j, src + 2 * j + 1) for j in range(4)]
        LST = ["buffer_store_dwordx4 %s, v%d, s[%d:%d], s%d offen offset:%d sc1" % (vr(PA[e], 4), vK, SV, SV + 3, sA0, e * 1024) for e in range(2)]
        for x in L1: a(x)
        srd(a, SOUT, 100, 2048 * 1024)
        a("s_lshr_b32 s%d, s%d, 3" % (sQ, sH))
        a("s_and_b32 s%d, s%d, 1\ns_lshl_b32 s%d, s%d, 1\ns_and_b32 s%d, s%d, 1\ns_add_u32 s%d, s%d, s%d\ns_lshl_b32 s%d, s%d, 12" % (sT0, sWV, sT0, sT0, sT1, sQ, sT2, sT0, sT1, sT0, sT2))
        a("v_add_u32 v%d, s%d, v%d\nv_xor_b32 v%d, 4096, v%d" % (vA[0], sT0, vK, vA[1], vA[0]))
        a("v_lshrrev_b32 v7, 4, v0\nv_lshrrev_b32 v8, 2, v0\nv_and_b32 v8, 3, v8\nv_lshrrev_b32 v9, 5, v0\nv_lshl_add_u32 v9, v9, 2, v8")
        a("v_and_b32 v7, 1, v7\nv_lshlrev_b32 v7, 1, v7\nv_lshrrev_b32 v10, 1, v0\nv_and_b32 v10, 1, v10\nv_add_u32 v7, v7, v10\nv_and_b32 v10, 1, v0\nv_lshlrev_b32 v10, 3, v10")
        a("s_and_b32 s%d, s%d, 2\ns_lshr_b32 s%d, s%d, 1\ns_add_u32 s%d, s%d, s%d\nv_xor_b32 v8, s%d, v8" % (sT0, sWV, sT1, sQ, sT0, sT0, sT1, sT0))
        a("v_lshlrev_b32 v8, 2, v8\nv_xor_b32 v8, v8, v7\nv_lshlrev_b32 v8, 4, v8\nv_lshl_add_u32 v8, v9, 8, v8\nv_add_u32 v%d, v8, v10\nv_xor_b32 v%d, 64, v%d" % (vW[0], vW[1], vW[0]))
        a("s_and_b32 s%d, s%d, 3\ns_lshl_b32 s%d, s%d, 2\ns_add_u32 s%d, s%d, s%d\ns_lshl_b32 s%d, s%d, 6" % (sT1, sH, sT1, sT1, sT1, sT1, sT0, sOUT, sT1))
        a("s_lshl_b32 s%d, s%d, 2\ns_add_u32 s%d, s%d, s%d\ns_lshl_b32 s%d, s%d, 15\ns_add_u32 s%d, s%d, s%d" % (sT0, sRBK, sT0, sT0, sT2, sT0, sT0, sOUT, sOUT, sT0))
        a("v_and_b32 v6, 31, v0\nv_lshlrev_b32 v6, 10, v6\nv_lshrrev_b32 v7, 5, v0\nv_lshl_add_u32 v6, v7, 4, v6")
        a("v_min_u32 v9, 1, v0\nv_lshlrev_b32 v9, 29, v9\nv_mov_b32 v10, 1\nv_and_b32 v8, 7, v0\nv_lshlrev_b32 v8, 2, v8\nv_and_b32 v11, 12, v8")
        def signal_wait(sown, vo, pre):
            lp, lo_ = a.label("xpoll"), a.label("xok")
            a("s_waitcnt vmcnt(0)\ns_barrier\ns_cmp_lg_u32 s%d, 0\ns_cbranch_scc1 %s_s" % (sWV, lo_))
            a("buffer_store_dword v10, v9, s[%d:%d], s%d offen sc1\n%s_s:" % (SO, SO + 3, sown, lo_))
            for x in pre: a(x)
            a("s_cmp_lg_u32 s%d, 0\ns_cbranch_scc1 %s" % (sWV, lo_))
            a("s_and_b32 s%d, s%d, 0xffffff80\ns_mov_b32 s%d, 0x80000\n%s:" % (sT0, sown, sT1, lp))
            a("buffer_load_dword v12, v%d, s[%d:%d], s%d offen sc1\ns_waitcnt vmcnt(0)\nv_cmp_gt_u32 vcc, 1, v12\ns_cbranch_vccz %s" % (vo, SO, SO + 3, sT0, lo_))
            a("s_sleep %d\ns_sub_u32 s%d, s%d, 1\ns_cmp_lg_u32 s%d, 0\ns_cbranch_scc1 %s\n%s:" % (SLP, sT1, sT1, sT1, lp, lo_))
            a("s_waitcnt vmcnt(0)\ns_barrier")
        a("s_cmp_eq_u32 s%d, 0\ns_cselect_b32 s%d, 2, 0\ns_cselect_b32 s%d, 0, 0x20000000\nv_add_u32 v192, s%d, v8\nv_or_b32 v193, s%d, v9\nv_mov_b32 v194, 2\ns_and_b32 s%d, s%d, 0xffffff80" % (sWV, sG1, sT0, sT0, sT0, sG2, sFG))
        for x in L2[:LSPL]: a(x)
        signal_wait(sFG, 8, flat(a_dma(0) + a_dma(1)) + L2[LSPL:])
        st_("sync")
        for x in flat(a_dma(2) + a_dma(3)) + LST: a(x)
        curA, curW = [0], [0]
        def reads(k):
            st, ks = k // 4, k % 4
            L = []
            def win(base, cur, regs_):
                w_ = base // 65536
                if w_ != cur[0]:
                    d = (w_ - cur[0]) * 65536
                    for r in regs_: L.append(("v_add_u32 v%d, 0x%x, v%d" % (r, d, r)) if d > 0 else ("v_subrev_u32 v%d, 0x%x, v%d" % (r, -d, r)))
                    cur[0] = w_
                return base % 65536
            oa = win(ARING[st % 4], curA, vA); ow = win(WRING[st % 6], curW, vW)
            F = FP + 16 * (k % 4)
            tr = lambda cb: ["ds_read_b64_tr_b16 %s, v%d offset:%d" % (vr(F + 8 + 4 * cb + 2 * r_, 2), vW[cb], ow + ks * 4096 + r_ * 2048) for r_ in range(2)]
            return L + tr(0) + ["ds_read_b128 %s, v%d offset:%d" % (vr(F + 4 * rb, 4), vA[rb], oa + ks * 1024) for rb in range(2)] + tr(1)
        for x in reads(0) + reads(1): a(x)
        vmq = [2] * 4 + [3] * 4 + [4] * 2
        pend = []
        for k in range(72):
            st, ks = k // 4, k % 4
            if ks == 2 and st + 1 < 18:
                idx = max([j for j, z in enumerate(vmq) if z <= st + 1], default=-1)
                a("s_waitcnt vmcnt(%d) lgkmcnt(6)" % (len(vmq) - 1 - idx))
                if st == 13: poll_check(4)
                a("s_barrier")
                if st == 3:
                    a("buffer_store_dword v194, v193, s[%d:%d], s%d offen sc1" % (SO, SO + 3, sFG)); vmq.append(99)
                if st == 10:
                    a(poll_load(4)); vmq.append(14)
                pend = []
                if st >= 1:
                    if st + 3 < 18: pend += [(g, st + 3) for g in a_dma(st + 3)]
                    if st + 5 < 18: pend += [(g, st + 5) for g in w_dma(st + 5)]
            else: a("s_waitcnt lgkmcnt(%d)" % (6 if k + 1 < 72 else 0))
            F = FP + 16 * (k % 4)
            R = reads(k + 2) if k + 2 < 72 else []
            take = pend[:4]; pend = pend[4:]
            for n, b in enumerate((0, 1, 2, 3) if k < 71 else (1, 2, 3, 0)):
                acc = vr(ACC + b * 16, 16)
                a("%s %s, %s, %s, %s" % (MF32, acc, vr(F + 8 + 4 * (b >> 1), 4), vr(F + 4 * (b & 1), 4), "0" if k == 0 else acc))
                for x in R[(len(R) * n) // 4:(len(R) * (n + 1)) // 4]: a(x)
                if n < len(take):
                    for x in take[n][0]:
                        a(x)
                        if isvm(x): vmq.append(take[n][1])
        st_("pm")
        a("s_nop 7")
        for j in range(1, 4):
            a("s_xor_b32 s%d, s%d, %d\ns_mul_i32 s%d, s%d, 49152\ns_add_u32 s%d, s%d, s%d\ns_add_u32 s%d, s%d, %d" % (sT0, sQ, j, sT0, sT0, sT0, sT0, sXO, sT0, sT0, (j - 1) * 16384))
            for r in range(8): a("v_cvt_pk_bf16_f32 v%d, v%d, v%d" % (FP + 8 * j + r, ACC + j * 16 + 2 * r, ACC + j * 16 + 2 * r + 1))
            for c in range(2): a("buffer_store_dwordx4 %s, v%d, s[%d:%d], s%d offen offset:%d sc1" % (vr(FP + 8 * j + 4 * c, 4), vK, SO, SO + 3, sT0, c * 1024))
        def xloads():
            a("s_mov_b32 s%d, s%d" % (sT0, sXR))
            for j in range(1, 4):
                for c in range(2): a("buffer_load_dwordx4 %s, v%d, s[%d:%d], s%d offen offset:%d sc1" % (vr(ACC + j * 16 + 4 * c, 4), vK, SO, SO + 3, sT0, c * 1024))
                if j < 3: a("s_add_u32 s%d, s%d, 16384" % (sT0, sT0))
        if SENT:
            lp, lo_ = a.label("xp"), a.label("xo")
            a("s_mov_b32 s%d, 0x40000\ns_sleep %d\n%s:" % (sT1, XSL0, lp))
            xloads()
            rr = [ACC + j * 16 + r for j in range(1, 4) for r in range(8)]
            a("s_waitcnt vmcnt(0)\nv_max3_u32 v12, v%d, v%d, v%d" % tuple(rr[:3]))
            for j in range(3, 23, 2): a("v_max3_u32 v12, v12, v%d, v%d" % (rr[j], rr[j + 1]))
            a("v_max_u32 v12, v12, v%d\nv_cmp_eq_u32 vcc, -1, v12\ns_cbranch_vccz %s" % (rr[23], lo_))
            a("s_sleep %d\ns_sub_u32 s%d, s%d, 1\ns_cmp_lg_u32 s%d, 0\ns_cbranch_scc1 %s\n%s:" % (SLP, sT1, sT1, sT1, lp, lo_))
            st_("xs")
        else:
            signal_wait(sFX, 11, [])
            st_("xs")
            xloads()
        for j in range(1, 4):
            a("s_waitcnt vmcnt(%d)" % (2 * (3 - j)))
            for r in range(8):
                t = ACC + j * 16 + r
                a("v_lshlrev_b32 v12, 16, v%d\nv_and_b32 v13, 0xffff0000, v%d\nv_add_f32 v%d, v%d, v12\nv_add_f32 v%d, v%d, v13" % (t, t, ACC + 2 * r, ACC + 2 * r, ACC + 2 * r + 1, ACC + 2 * r + 1))
        for r in range(8): a("v_cvt_pk_bf16_f32 v%d, v%d, v%d" % (FP + r, ACC + 2 * r, ACC + 2 * r + 1))
        a("s_nop 1")
        for pr in range(2): a("v_permlane32_swap_b32 v%d, v%d\nv_permlane32_swap_b32 v%d, v%d" % (FP + 4 * pr, FP + 4 * pr + 2, FP + 4 * pr + 1, FP + 4 * pr + 3))
        for pr in range(2): a("buffer_store_dwordx4 %s, v6, s[%d:%d], s%d offen offset:%d" % (vr(FP + 4 * pr, 4), SOUT, SOUT + 3, sOUT, 32 * pr))
    T.dump(SO, sWV, 4)
    a(done + ":\ns_endpgm")
    a(lRare + ":")
    for (ls, lb, kind) in spins:
        lp = a.label("sp")
        a(ls + ":\ns_mov_b32 s%d, 0x40000\n%s:" % (sT2, lp))
        a("s_sleep 8\n" + poll_load(kind) + "\ns_waitcnt vmcnt(0)\n%s\ns_cbranch_vccz %s" % (poll_cmp(kind), lb))
        a("s_sub_u32 s%d, s%d, 1\ns_cmp_lg_u32 s%d, 0\ns_cbranch_scc1 %s\ns_branch %s" % (sT2, sT2, sT2, lp, lb))
    for (ls, lb) in rels:
        a("%s:\nbuffer_wbl2 sc1\ns_waitcnt vmcnt(0)\ns_branch %s" % (ls, lb))
    sRET = 44
    for (p, sm, qk), (lr, users) in rare.items():
        for rid, (lj, lb) in enumerate(users):
            a("%s:\ns_mov_b32 s%d, %d\ns_branch %s" % (lj, sRET, rid, lr))
        a(lr + ":")
        a("s_nop 7\ns_nop 7")
        Sc, Sn = S[p], S[1 - p]
        for rb in range(2 if sm == 1 else 1):
            cur = [Sc + rb * 32 + j for j in range(32)] if sm == 1 else [Sc + j for j in range(64)]
            d, f = vX, vX + 2
            rowmax(d, cur)
            a("v_max_f32 v%d, 0, v%d\nv_exp_f32 v%d, -v%d" % (d, d, f, d))
            for r in cur: a("v_sub_f32 v%d, v%d, v%d" % (r, r, d))
            for j in range(16): a("v_sub_f32 v%d, v%d, v%d" % (NM + rb * 16 + j, NM + rb * 16 + j, d))
            nx = []
            if qk == 1: nx = [Sn + rb * 32 + j for j in range(32)]
            elif qk == 2 and rb == 0: nx = [Sn + j for j in range(64)]
            for r in nx: a("v_sub_f32 v%d, v%d, v%d" % (r, r, d))
            a("v_mul_f32 v%d, v%d, v%d" % (vL[rb], vL[rb], f))
            for j in range(0, 64, 4):
                for q in range(4): a("v_accvgpr_read_b32 v%d, a%d" % (TM + q, O + rb * 64 + j + q))
                for q in range(4): a("v_mul_f32 v%d, v%d, v%d" % (TM + q, TM + q, f))
                for q in range(4): a("v_accvgpr_write_b32 a%d, v%d" % (O + rb * 64 + j + q, TM + q))
        for c, x in sm_list(p, sm): a(x)
        for rid, (lj, lb) in enumerate(users):
            if rid < len(users) - 1: a("s_cmp_eq_u32 s%d, %d\ns_cbranch_scc1 %s" % (sRET, rid, lb))
            else: a("s_branch %s" % lb)
    a.add_kernel(name, 512, 102, 256)
    a.launch(name, 256, 256, 163840)
```

```python
def kind(x):
    op = x.split()[0]
    if op.startswith("ds_"): return "ds"
    if op.startswith("buffer_store") or op.startswith("global_store"): return "st"
    if op.startswith("buffer_") or op.startswith("global_"): return "vm"
    if op.startswith("s_"): return "s"
    if op in ("v_exp_f32", "v_rcp_f32"): return "t"
    return "v"
C = dict(ds=8, st=24, vm=12, s=4, t=8, v=4)
def order(items):
    heads = {}
    for k, (s, x) in enumerate(items): heads.setdefault(s, k)
    best = None
    for pref in ("ds", "vm", "st", "s"):
        c = [k for k in heads.values() if kind(items[k][1]) == pref]
        if c: best = min(c); break
    if best is None: return list(items)
    return [items[best]] + [it for k, it in enumerate(items) if k != best]
def cost(items):
    if not items: return 0
    o = order(items)
    return sum(C[kind(x)] for _, x in o) + (4 if kind(o[0][1]) in "vt" else 0)
class Gaps:
    def __init__(self, caps):
        self.cap = caps; self.n = len(caps); self.g = [[] for _ in caps]; self.sid = 0
    def add(self, k, s, x): self.g[k].append((s, x))
    def newstream(self): self.sid += 1; return self.sid
    def room(self, k): return max(0, self.cap[k] - max(4, cost(self.g[k])))
    def place(self, stream, lo, hi, slack=16, ahead=0):
        st = [g if isinstance(g, list) else [g] for g in stream]
        if not st: return []
        hi = min(hi, self.n); lo = max(0, min(lo, hi - 1)); s = self.newstream()
        w = [sum(C[kind(x)] for x in g) for g in st]
        tot = sum(w); free = sum(self.room(k) for k in range(lo, hi)); seen = 0; done = 0; i = 0; pos = []
        for k in range(lo, hi):
            seen += self.room(k)
            tgt = tot * min(1.0, seen / max(free, 1))
            while i < len(st):
                fits = cost(self.g[k] + [(s, x) for x in st[i]]) <= self.cap[k]
                if k == hi - 1 or (done < tgt + ahead and fits) or done + slack < tgt:
                    for x in st[i]: self.add(k, s, x)
                    done += w[i]; i += 1; pos.append(k)
                else: break
        return pos
    def over(self): return sum(max(0, cost(self.g[k]) - self.cap[k]) for k in range(self.n))
    def out(self, k): return [x for _, x in order(self.g[k])]
```

```python
import re
from pack import *
def isvm(x): return x.startswith("buffer_") or x.startswith("global_")
class Sched:
    def __init__(self, M, cap=12):
        self.M = M; n = len(M); self.n = n
        self.G = Gaps([cap] * n)
        self.bars = {}; self.hooks = {}; self.waitpts = []; self.backlog = 8
        self.rq = []
    def place_reads(self):
        self.use = [dict() for _ in range(self.n)]
        q = list(self.rq); i = 0; sR = self.G.newstream()
        wp = set(self.waitpts) - set(self.bars)
        for g in range(self.n):
            ready = 0
            while i + ready < len(q) and max(q[i + ready][1], q[i + ready][2]) <= g: ready += 1
            lim = 2 if ready > self.backlog else 1
            if ready > 1 and not (q[i][0].startswith("ds_") and q[i + 1][0].startswith("ds_")) and not q[i + 1][0].startswith("ds_"): lim = 2
            if g == self.n - 1: lim = 99
            for _ in range(min(lim, ready)):
                self.G.add(g, sR, q[i][0]); self.use[g][q[i][0]] = q[i][3]; i += 1
            if g + 1 in self.bars:
                self.G.add(g, sR, "s_BARW"); self.G.add(g, sR, "s_BAR")
            elif g + 1 in wp: self.G.add(g, sR, "s_WAIT")
        assert i == len(q), (i, len(q))
    def place(self, stream, lo, hi, slack=24): return self.G.place(stream, lo, hi, slack=slack)
    def room(self, lo, hi): return sum(self.G.room(k) for k in range(lo, hi)) // 4
    def emit(self, a, bar, pre_reads, vmhist):
        issued = list(pre_reads); cov = [0]
        wp = sorted(set(self.waitpts)); vm = list(vmhist)
        def wait(m):
            nxt = min([w for w in wp if w > m] + [b for b in self.bars if b > m] + [self.n])
            need = max([k for k, u in enumerate(issued) if u is not None and u < nxt], default=-1)
            if need >= cov[0]:
                a("s_waitcnt lgkmcnt(%d)" % min(15, len(issued) - 1 - need)); cov[0] = need + 1
        wait(0)
        for m in range(self.n):
            for k, u in enumerate(issued):
                assert not (u == m and k >= cov[0]), ("uncovered read", m)
            a(self.M[m])
            items = self.G.out(m)
            if "s_BAR" in items:
                items = [x for x in items if x not in ("s_BARW", "s_BAR")] + ["s_BAR"]
            for x in items:
                if x == "s_WAIT": wait(m + 1); continue
                if x == "s_BAR":
                    bid = self.bars[m + 1]
                    idx = max([k for k, nd in enumerate(vm) if nd is not None and nd <= bid], default=-1)
                    bar("s_waitcnt vmcnt(%d) lgkmcnt(0)" % min(63, len(vm) - 1 - idx))
                    cov[0] = len(issued)
                    if bid in self.hooks: self.hooks[bid]()
                    continue
                a(x.split(";")[0].strip())
                if x in self.use[m] and x.startswith("ds_"):
                    assert self.use[m][x] is None or self.use[m][x] > m, ("late read", x, m)
                    issued.append(self.use[m][x])
                if isvm(x):
                    mm = re.search(r"need:(\d+)", x); vm.append(int(mm.group(1)) if mm else None)
        self.left = issued[cov[0]:]
        self.over = self.G.over()
        return vm
```

```python
from gen_common import *
from sched import Sched, isvm
from pack import Gaps, cost as gcost
import re as _re
MF16 = "v_mfma_f32_16x16x32_bf16"
MFH = "v_mfma_f32_16x16x16_bf16"
pX, pWQKV, pWO0, pC, pWQ, pWUK, pWUV, pBWO, pGATE, pDBG, pWS = 36, 38, 40, 44, 46, 48, 50, 52, 54, 58, 60
pWO = 58
NEG = "0xff800000"
THRESH = fbits(2.0 ** 48)
WSL = (98304, 131072)
LDS_G = WSL[0] + 24576
def aslot(g): return ((g + 2) % 3) * 32768
def flat(G): return [x for g in G for x in (g if isinstance(g, list) else [g])]
def soft(G):
    out = []
    for g in G:
        if any(x.startswith("s_cselect") for x in g):
            k = [j for j, x in enumerate(g) if x.startswith("s_cmp") or x.startswith("s_bitcmp")][0]
            out += g[:k] + [g[k:]]
        else: out += g
    return out

def gen2(a, name="p1_kernel", ts=False, PF=1, PD=8, WP=2, TS2=0, TS3=0, DFR=12, LSPL=110, SLP=4, QSL=(4, 6, 5), XSL=3, PDW=5, GPUB=11, VERB=0, NE=6, CM=0, PB=2,
         STAMPS=("start", "q", "attn", "mid", "s17")):
    XL2 = 0; PRE0 = 0; endlabel = None; SENT = 0
    a.begin_kernel(name)
    T = TS(a, ts, 0, base=72)
    def st_(nm):
        if nm in STAMPS: T.stamp(STAMPS.index(nm))
    done = a.label("fdone")
    lAttn, lRare = a.label("attn"), a.label("rarecode")
    sWV = 3
    SA, SW, SX, SO, SD = 4, 8, 12, 16, 40
    sH, sI, sT0, sT1, sT2 = 20, 21, 22, 23, 24
    sAS, sAS2, sWS, sXS, sAM, sWM, sXM, sCNT, sOK, sDS, sSC = 25, 26, 27, 28, 29, 30, 31, 32, 33, 34, 35
    sQL, sQS, sU, sOA, sAD, sWD, sOJ, sVD, sFA, sGR = 92, 93, 94, 95, 96, 97, 56, 57, 63, 99
    sKO, sVO, sW4, sW8, sTH, sT = 48, 49, 50, 51, 54, 55
    vL16 = 1
    vAO, vWO, vXO = (2, 3, 4, 5), (6, 7, 8, 9), (10, 11)
    vAR, vWR, vXR = (12, 13), tuple(range(14, 22)), (22, 23, 24)
    vGR, vGA2, GC = 25, (26, 27), 92
    QS = (28, 44); WR, NWR = 60, 8; TT, PK = 96, 104
    KS = (128, 160)
    vFO, vONE, vPFD, vTS, vW12, vPL, vPLO = 120, 121, 122, 123, 124, 125, 126
    sWS2, sOK2 = 62, 98
    QA = 128
    t2 = [0]
    def bar(waitstr):
        if TS2:
            n = t2[0]; t2[0] += 1
            if n > 0: a("v_writelane_b32 v123, s72, %d\nv_writelane_b32 v123, s74, %d" % (2 * n - 2, 2 * n - 1))
            a("s_memtime s[72:73]")
        a(waitstr + "\ns_barrier")
        if TS2: a("s_memtime s[74:75]")
    a("s_cmp_ge_u32 s2, 256\ns_cbranch_scc1 %s" % done)
    st_("start")
    a("s_load_dwordx16 s[36:51], s[0:1], 0\ns_load_dwordx8 s[52:59], s[0:1], 64\ns_load_dwordx2 s[60:61], s[0:1], 96")
    a("v_lshrrev_b32 v30, 6, v0\nv_and_b32 v0, 63, v0\nv_readfirstlane_b32 s%d, v30" % sWV)
    a("s_and_b32 s%d, s2, 7\ns_lshl_b32 s%d, s%d, 2\ns_lshr_b32 s%d, s2, 3\ns_and_b32 s%d, s%d, 3\ns_add_u32 s%d, s%d, s%d" % (sH, sH, sH, sT0, sT0, sT0, sH, sH, sT0))
    a("s_lshr_b32 s%d, s2, 5" % sI)
    a("v_lshlrev_b32 v%d, 4, v0" % vL16)
    a("v_lshrrev_b32 v30, 3, v0\nv_lshrrev_b32 v31, 4, v0\nv_and_b32 v32, 7, v0")
    a("v_xor_b32 v33, v31, v32\nv_lshlrev_b32 v33, 4, v33\nv_lshl_add_u32 v%d, v30, 10, v33" % vAO[0])
    a("v_add_u32 v%d, %d, v%d\nv_xor_b32 v33, 64, v%d\nv_add_u32 v%d, %d, v33\nv_add_u32 v%d, %d, v33" % (vAO[2], 2 * 7168, vAO[0], vAO[0], vAO[1], 7168, vAO[3], 3 * 7168))
    a("v_and_b32 v33, 15, v0\nv_lshlrev_b32 v34, 2, v31\nv_xor_b32 v33, v33, v34\nv_lshlrev_b32 v33, 4, v33\nv_lshl_add_u32 v%d, v31, 13, v33" % vWO[0])
    a("v_add_u32 v%d, %d, v%d\nv_xor_b32 v33, 32, v%d\nv_add_u32 v%d, %d, v33\nv_add_u32 v%d, %d, v33" % (vWO[1], 31744, vWO[0], vWO[0], vWO[2], 2 * 31744, vWO[3], 3 * 31744))
    a("s_sub_u32 s%d, 15, s%d\ns_bitcmp1_b32 s%d, 0\ns_cselect_b32 s%d, s%d, s%d\ns_lshl_b32 s%d, s%d, 1\ns_lshr_b32 s%d, s%d, 1\ns_add_u32 s%d, s%d, s%d" % (sT0, sI, sWV, sT0, sT0, sI, sT0, sT0, sT1, sWV, sT0, sT0, sT1))
    a("s_lshl_b32 s%d, s%d, 16\ns_add_u32 s%d, s%d, 32768" % (sAS, sT0, sAS2, sAS))
    a("s_lshl_b32 s%d, s%d, 13\ns_mov_b32 s%d, s%d" % (sAM, sWV, sWM, sAM))
    a("s_and_b32 s%d, s%d, 1\ns_lshl_b32 s%d, s%d, 18\ns_lshl_b32 s%d, s%d, 8\ns_add_u32 s%d, s%d, s%d" % (sT0, sWV, sT0, sT0, sWS, sH, sWS, sWS, sT0))
    a("s_and_b32 s%d, s2, 31\ns_add_u32 s%d, s%d, 0x20000" % (sU, sWS2, sWS))
    a("s_waitcnt lgkmcnt(0)")
    a("s_mov_b32 s100, s56\ns_mov_b32 s101, s57")
    srd(a, SA, pC, 0x200000)
    a("s_cmp_lt_u32 s%d, 2\ns_cselect_b32 s%d, s%d, s%d\ns_cselect_b32 s%d, s%d, s%d\ns_mov_b32 s%d, 0x400000\ns_mov_b32 s%d, 0x20000" % (sWV, SW, pWUK, pWUV, SW + 1, pWUK + 1, pWUV + 1, SW + 2, SW + 3))
    def dgrp(m0s, m0i, vo, srd_, so, stp, nd):
        G = ["s_add_u32 m0, s%d, %d" % (m0s, m0i)]
        G += ["buffer_load_dwordx4 v%d, s[%d:%d], s%d offen offset:%d lds ; need:%d" % (v, srd_, srd_ + 3, so, n * 1024, nd) for n, v in enumerate(vo)]
        G.append("s_add_u32 s%d, s%d, %d" % (so, so, stp))
        return G
    def fixm0(G):
        out = []
        for k, x in enumerate(G):
            out.append(x)
            if x.startswith("s_add_u32 m0"):
                if len(out) > 1 and out[-2].startswith("s_add_u32 s"): out[-1], out[-2] = out[-2], out[-1]
                else: out.append("s_nop 0")
        return out
    def dma_act(g): return fixm0(dgrp(sAM, aslot(g), vAO, SA, sAS, 128, g) + dgrp(sAM, aslot(g) + 4096, vAO, SA, sAS2, 128, g))
    def dma_w(g):
        G = dgrp(sWM, WSL[g % 2], vWO, SW, sWS, 0x80000, g)
        if g < 8: G += dgrp(sWM, WSL[g % 2] + 4096, vWO, SW, sWS2, 0x80000, g)
        else: G += dgrp(sXM, WSL[g % 2] + 16384, vXO, SX, sXS, 64 * 3072, g)
        return fixm0(G)
    for x in dma_w(0) + dma_act(0): a(x.split(";")[0])
    NSL = max(XL2 + 4 if XL2 else 0, max(QSL) + 1, XSL + 1)
    def preg(k): return 192 + 2 * k
    def pf(k): return "global_load_dword v122, %s, off" % vr(preg(k), 2)
    def pfa(k, base, vo, so, imm=0):
        r = preg(k)
        a("s_add_u32 s%d, s%d, %d\nv_mov_b32 v%d, s%d\nv_add_u32 v%d, s%d, v%d" % (sT2, so, imm, r + 1, base + 1, r, sT2, vo))
        a("v_add_co_u32 v%d, vcc, s%d, v%d\ns_nop 1\nv_addc_co_u32 v%d, vcc, 0, v%d, vcc" % (r, base, r, r + 1, r + 1))
    def pfnone(k): a("v_mov_b32 v%d, s%d\nv_mov_b32 v%d, s%d" % (preg(k), pGATE, preg(k) + 1, pGATE + 1))
    if PF:
        l1, l3, le = a.label("pf1"), a.label("pf3"), a.label("pfe")
        a("s_cmp_eq_u32 s%d, 1\ns_cbranch_scc1 %s\ns_cmp_eq_u32 s%d, 3\ns_cbranch_scc1 %s" % (sWV, l1, sWV, l3))
        used = {0, XSL}
        if CM:
            a("s_lshr_b32 s%d, s2, 3\ns_lshl_b32 s%d, s%d, 16\ns_lshl_b32 s%d, s%d, 6\ns_add_u32 s%d, s%d, s%d\nv_lshlrev_b32 v26, 10, v0" % (sT0, sT0, sT0, sT1, sWV, sT1, sT0, sT1))
            pfa(0, pC, 26, sT1, 128); a(pf(0)); used.add(1)
        a("v_and_b32 v26, 31, v0\nv_lshlrev_b32 v26, 7, v26\ns_lshl_b32 s%d, s2, 13\ns_lshl_b32 s%d, s%d, 11\ns_add_u32 s%d, s%d, s%d" % (sT0, sT1, sWV, sT0, sT0, sT1))
        pfa(CM, pC, 26, sT0, 0)
        if not CM: a(pf(0))
        pfa(XSL, pX, 26, sT0, 0)
        for k in range(NSL):
            if k not in used: pfnone(k)
        a("s_branch %s\n%s:" % (le, l1))
        a("v_lshlrev_b32 v26, 13, v30\nv_lshl_add_u32 v26, v32, 7, v26")
        a("s_bitcmp1_b32 s2, 3\ns_cselect_b32 s98, s%d, s%d\ns_cselect_b32 s99, s%d, s%d" % (pWUV, pWUK, pWUV + 1, pWUK + 1))
        a("s_and_b32 s%d, s2, 7\ns_lshl_b32 s%d, s%d, 10\ns_lshr_b32 s%d, s2, 4\ns_and_b32 s%d, s%d, 7\ns_lshl_b32 s%d, s%d, 16\ns_lshl_b32 s%d, s%d, 16" % (sT1, sT1, sT1, sT0, sCNT, sT0, sT0, sT0, sCNT, sCNT))
        a("s_add_u32 s%d, s%d, s%d\ns_add_u32 s%d, s%d, s%d" % (sT0, sT0, sT1, sCNT, sCNT, sT1))
        if PRE0:
            pfnone(0); a(pf(0)); pfa(1, 98, 26, sT0, 4 * 0x80000); pfa(2, 98, 26, sT0, 6 * 0x80000); pfnone(3)
        else:
            pfa(0, 98, 26, sT0, 1 * 0x80000); a(pf(0))
            pfa(1, 98, 26, sT0, 3 * 0x80000); pfa(2, 98, 26, sT0, 5 * 0x80000); pfa(3, 98, 26, sCNT, 7 * 0x80000)
        for k in range(4, NSL): pfnone(k)
        a("s_branch %s\n%s:" % (le, l3))
        lpc = a.label("pc")
        a("s_getpc_b64 s[98:99]\n%s:" % lpc)
        a("s_lshr_b32 s%d, s2, 3\nv_lshlrev_b32 v26, 5, v0\nv_add_u32 v26, s%d, v26\nv_lshlrev_b32 v26, 7, v26\ns_mov_b32 s%d, 0" % (sT0, sT0, sT0))
        a("v_min_u32 v27, %s-%s, v26" % (lAttn, lpc))
        pfa(0, 98, 27, sT0, 0); a(pf(0))
        a("v_lshlrev_b32 v26, 13, v30\nv_lshl_add_u32 v26, v32, 7, v26")
        a("s_lshr_b32 s%d, s2, 3\ns_lshl_b32 s%d, s%d, 16\ns_and_b32 s%d, s2, 7\ns_lshl_b32 s%d, s%d, 10\ns_add_u32 s%d, s%d, s%d" % (sT0, sT0, sT0, sT1, sT1, sT1, sT0, sT0, sT1))
        pfa(QSL[0], pWQ, 26, sT0, 0); pfa(QSL[1], pWQ, 26, sT0, 4 * 0x80000)
        a("s_min_u32 s%d, s%d, 23\ns_lshl_b32 s%d, s%d, 7\ns_mul_i32 s%d, s%d, %d\ns_add_u32 s%d, s%d, s%d\nv_mul_u32_u24 v26, 3072, v0" % (sT0, sU, sT0, sT0, sT1, sI, 64 * 3072, sT0, sT0, sT1))
        pfa(QSL[2], pWQKV, 26, sT0, 0)
        for k in range(1, NSL):
            if k not in QSL: pfnone(k)
        a(le + ":")
    def pfp(p): return [pf(p + 2)] if (PF and p + 2 < NSL) else []
    a("v_and_b32 v33, 15, v0\nv_lshrrev_b32 v34, 1, v33\nv_xor_b32 v34, v34, v31\nv_lshlrev_b32 v34, 4, v34\nv_lshl_add_u32 v40, v33, 7, v34")
    a("s_and_b32 s%d, s%d, 1\ns_lshl_b32 s%d, s%d, 14\ns_add_u32 s%d, s%d, %d" % (sT0, sWV, sT0, sT0, sT0, sT0, aslot(0)))
    a("v_add_u32 v%d, s%d, v40\nv_xor_b32 v%d, 64, v%d" % (vAR[0], sT0, vAR[1], vAR[0]))
    a("v_lshrrev_b32 v35, 2, v0\nv_and_b32 v35, 3, v35\nv_lshl_add_u32 v36, v31, 3, v35")
    a("v_bfe_u32 v37, v0, 1, 1\nv_and_b32 v34, 1, v31\nv_lshl_add_u32 v37, v34, 1, v37\nv_and_b32 v38, 1, v0\nv_lshlrev_b32 v38, 3, v38")
    a("v_lshlrev_b32 v39, 2, v35\nv_xor_b32 v39, v39, v37\nv_lshlrev_b32 v39, 4, v39\nv_lshl_add_u32 v39, v36, 8, v39")
    a("s_lshr_b32 s%d, s%d, 1\ns_lshl_b32 s%d, s%d, 14\ns_add_u32 s%d, s%d, %d\nv_add3_u32 v39, v39, v38, s%d" % (sWD, sWV, sWD, sWD, sT0, sWD, WSL[0], sT0))
    for k in range(8): a("v_xor_b32 v%d, %d, v39" % (vWR[k], 32 * k))
    lpc2 = a.label("pc")
    a("s_getpc_b64 s[0:1]\n%s:" % lpc2)
    srd(a, SO, pWS, WS_SIZE); srd(a, SX, pGATE, 1024)
    a("s_mov_b32 s98, s%d\ns_mov_b32 s99, s%d" % (pWO0, pWO0 + 1))
    srd(a, SD, pDBG, 256)
    a("s_mov_b32 s%d, s98\ns_mov_b32 s%d, s99" % (pWO, pWO + 1))
    DF = []
    def d(t): DF.extend(t.split("\n"))
    d("s_lshl_b32 s%d, s%d, 6\nv_add_u32 v%d, s%d, v0\nv_lshlrev_b32 v%d, 12, v%d\nv_mov_b32 v%d, 1" % (sT0, sWV, vFO, sT0, vFO, vFO, vONE))
    d("s_getreg_b32 s%d, hwreg(HW_REG_XCC_ID, 0, 4)\ns_mul_i32 s%d, s%d, s%d\ns_lshl_b32 s%d, s%d, 8\ns_add_u32 s%d, s%d, s%d\ns_lshl_b32 s%d, s%d, 8\ns_add_u32 s%d, s%d, 1" % (sT0, sT1, sT0, sT0, sT1, sT1, sT1, sT1, sT0, sT1, sT1, sFA, sT1))
    d("v_mov_b32 v125, s%d\ns_lshl_b32 s%d, s%d, 3\ns_and_b32 s%d, s2, 7\ns_lshl_b32 s%d, s%d, 2\ns_lshl_b32 s%d, s%d, 2" % (sFA, sFA, sFA, sGR, sGR, sGR, sCNT, sH))
    d("v_and_b32 v126, 3, v0\nv_add_lshl_u32 v126, v126, s%d, 2\ns_lshl_b32 s%d, s%d, 12\nv_add_u32 v126, s%d, v126\nv_mov_b32 v124, s%d" % (sGR, sT0, sWV, sT0, sT0))
    d("s_lshr_b32 s%d, s2, 3\ns_lshl_b32 s%d, s%d, 2\ns_add_u32 s%d, s%d, s%d\nv_and_b32 v127, 15, v0\nv_lshlrev_b32 v127, 7, v127\nv_add_lshl_u32 v127, v127, s%d, 7" % (sT0, sT0, sT0, sT0, sT0, sWV, sT0))
    d("v_min_u32 v127, %s-%s, v127" % (lRare, lpc2))
    d("v_lshrrev_b32 v39, 1, v35\nv_lshlrev_b32 v39, 2, v39\nv_xor_b32 v39, v39, v37\nv_lshlrev_b32 v39, 4, v39\nv_lshl_add_u32 v39, v36, 7, v39\nv_add_u32 v39, v39, v38\nv_add_u32 v39, %d, v39" % (WSL[0] + 16384))
    for k in range(3): d("v_xor_b32 v%d, %d, v39" % (vXR[k], 32 * k))
    d("s_and_b32 s%d, s%d, 3\ns_and_b32 s%d, s2, 7\ns_lshl_b32 s%d, s%d, 7" % (sT0, sH, sT1, sT1, sT1))
    d("s_lshl_b32 s%d, s%d, 5\ns_add_u32 s%d, s%d, s%d\ns_add_u32 s%d, s%d, %d" % (sT2, sT0, sT2, sT2, sT1, sT2, sT2, 2048 - 64))
    d("s_lshr_b32 s%d, s%d, 1\ns_lshl_b32 s%d, s%d, 10\ns_add_u32 s%d, s%d, s%d\ns_and_b32 s%d, s%d, 1\ns_lshl_b32 s%d, s%d, 6\ns_add_u32 s%d, s%d, s%d" % (sDS, sT0, sDS, sDS, sT1, sT1, sDS, sDS, sT0, sDS, sDS, sT1, sT1, sDS))
    d("v_and_b32 v33, 1, v31\nv_lshlrev_b32 v33, 2, v33\nv_xor_b32 v33, v33, v32\nv_mul_u32_u24 v34, 3072, v30\nv_mov_b32 v36, s%d\nv_mov_b32 v37, s%d\nv_mov_b32 v38, 0x1000000" % (sT1, sT2))
    for n in range(2):
        if n: d("v_xor_b32 v33, 2, v33\nv_add_u32 v34, %d, v34" % (24576 - 1024))
        d("v_cmp_gt_u32 vcc, 4, v33\nv_cmp_gt_u32 s[66:67], 6, v33\nv_lshl_add_u32 v35, v33, 4, v34\nv_cndmask_b32 v39, v37, v36, vcc\nv_cndmask_b32 v39, v38, v39, s[66:67]\nv_add_u32 v%d, v35, v39" % vXO[n])
    d("s_lshl_b32 s%d, s%d, 11\ns_lshl_b32 s%d, s%d, 13\ns_add_u32 s%d, s%d, s%d\ns_add_u32 s%d, s%d, %d" % (sT0, sT0, sT1, sWV, sT0, sT0, sT1, sT0, sT0, aslot(8)))
    d("v_add_u32 v%d, s%d, v40\nv_xor_b32 v%d, 64, v%d\nv_lshlrev_b32 v%d, 4, v31\nv_add_u32 v%d, %d, v%d" % (vGA2[0], sT0, vGA2[1], vGA2[0], vGR, vGR, LDS_G, vGR))
    d("s_lshl_b32 s%d, s%d, 2\ns_add_u32 s%d, s%d, s%d\ns_sub_u32 s%d, 60, s%d\ns_add_u32 s%d, s%d, s%d" % (sT1, sI, sQS, sT1, sWV, sQL, sT1, sQL, sQL, sWV))
    d("s_lshr_b32 s%d, s%d, 1\ns_lshl_b32 s%d, s%d, 5\ns_add_u32 s%d, s%d, s%d\ns_add_u32 s%d, s%d, 44\ns_lshl_b32 s%d, s%d, 19" % (sT0, sWV, sT0, sT0, sT0, sT0, sH, sT0, sT0, sOK, sT0))
    d("s_and_b32 s%d, s%d, 1\ns_lshl_b32 s%d, s%d, 1\ns_add_u32 s%d, s%d, s%d\ns_lshl_b32 s%d, s%d, 14\ns_add_u32 s%d, s%d, s%d" % (sT0, sWV, sT1, sI, sT0, sT0, sT1, sT0, sT0, sOK, sOK, sT0))
    d("s_lshl_b32 s%d, s%d, 16\ns_sub_u32 s%d, %d, s%d\ns_add_u32 s%d, s%d, 8192" % (sT0, sI, sOJ, 60 * 8192 - 4096, sT0, sOK2, sOK))
    d("s_lshl_b32 s%d, s%d, 13\ns_and_b32 s%d, s%d, 1\ns_lshl_b32 s%d, s%d, 14\ns_sub_u32 s%d, s%d, s%d\ns_add_u32 s%d, s%d, %d" % (sT0, sWV, sT1, sWV, sT1, sT1, sAD, sT0, sT1, sAD, sAD, aslot(8) - aslot(7)))
    PLA = "buffer_atomic_add v125, v%d, s[%d:%d], s%d offen offset:128 sc1" % (vFO, SD, SD + 3, sCNT)

    def wofs(g): return (g % 2) * 32768
    def xa(g, ks, R=vAR):
        if g == 7: return "v_add_u32 v%d, s%d, v%d" % (R[ks], sAD, R[ks])
        d = aslot(g + 1) - aslot(g)
        return ("v_add_u32 v%d, 0x%x, v%d" % (R[ks], d, R[ks])) if d > 0 else ("v_subrev_u32 v%d, 0x%x, v%d" % (R[ks], -d, R[ks]))
    def rd_act(g, ks):
        F = (KS if g < 8 else QS)[ks]
        return ["ds_read_b128 %s, v%d offset:%d" % (vr(F + 4 * n, 4), vAR[ks], n * 2048) for n in range(8 if g < 8 else 4)]
    def rd_w(g, ks, wf, slot):
        r = WR + 4 * (slot % NWR)
        if wf < 8: return ["ds_read_b64_tr_b16 %s, v%d offset:%d" % (vr(r + 2 * rd_, 2), vWR[wf], wofs(g) + ks * 8192 + rd_ * 1024) for rd_ in range(2)]
        if wf < 11: return ["ds_read_b64_tr_b16 %s, v%d offset:%d" % (vr(r + 2 * rd_, 2), vXR[wf - 8], wofs(g) + ks * 4096 + rd_ * 512) for rd_ in range(2)]
        return ["ds_read_b128 %s, v%d offset:%d" % (vr(r, 4), vGR, ((g - 8) * 2 + ks) * 64), "ds_read_b128 %s, v%d" % (vr(GC, 4), vGA2[ks])] + ([xa(g, ks, vGA2)] if g < 15 else [])
    def mfs(g, ks, wf, slot, var):
        w = vr(WR + 4 * (slot % NWR), 4); F = (KS if g < 8 else QS)[ks]; first = (g % 8 == 0 and ks == 0)
        cb, tc = (wf % 8) // 2, wf % 2
        if wf == 11: return ["%s a[48:51], %s, %s, %s" % (MF16, w, vr(GC, 4), "0" if first else "a[48:51]")]
        M = []
        for n in range(8 if g < 8 else 4):
            rb, tr = n // 2, n % 2
            x = vr(F + 4 * n, 4)
            sw = (var == "V") or wf == 10
            tb, ta = (tc, tr) if sw else (tr, tc)
            if g < 8: acc = ar(((rb // 2) * 16 + cb * 4 + (rb % 2) * 2 + tb) * 8 + ta * 4, 4)
            elif wf < 8: acc = vr(QA + ((rb * 4 + cb) * 2 + tr) * 8 + tc * 4, 4)
            elif wf < 10: acc = ar(n * 8 + tc * 4, 4)
            else: acc = ar(32 + n * 4, 4)
            M.append("%s %s, %s, %s, %s" % (MF16, acc, x if sw else w, w if sw else x, "0" if first else acc))
        return M
    def order(g, var):
        nw = list(range(8 if g < 8 else 12))
        if g == 7: return [(ks, 2 * cb + t) for cb in range(4) for ks in range(2) for t in range(2)]
        if g == 15:
            return [(ks, wf) for ks in range(2) for wf in (8, 9, 10, 0, 1, 11)] + [(ks, 2 * cb + t) for cb in range(1, 4) for ks in range(2) for t in range(2)]
        return [(ks, wf) for ks in range(2) for wf in nw]
    def build(g0, var):
        fr = [(g, ks, wf) for g in range(g0, g0 + 8) for (ks, wf) in order(g, var)]
        M = []; fm = []
        for k, (g, ks, wf) in enumerate(fr):
            fm.append(len(M)); M += mfs(g, ks, wf, k, var)
        S_ = Sched(M); n = len(M)
        look = [(8, 0, wf) for wf in range(PDW)] if g0 == 0 else []
        allf = fr + look
        cs = {};
        for k, (g, ks, wf) in enumerate(allf): cs.setdefault(g, k)
        bar_m = {g: fm[cs[g] - PDW + 1] for g in cs if g > g0}
        for g, m in bar_m.items(): S_.bars[m] = g
        na = 8 if g0 == 0 else 4
        items = []
        for k in range(PDW, len(allf)):
            g, ks, wf = allf[k]
            t = fm[k - PDW]; e = bar_m.get(g, 0); use = fm[k] if k < len(fr) else n + 1 + (k - len(fr))
            if k == cs[g] and g == 8: items += [(max(t, e), 0, j, ("v_subrev_u32 v%d, s%d, v%d" % (r, sWD, r), t, e, None)) for j, r in enumerate(vWR)]
            items += [(max(t, e), 1 if k == cs[g] else 3, 4 * k + j, (x, t, e, use if x.startswith("ds_") else None)) for j, x in enumerate(rd_w(g, ks, wf, k))]
        for g in cs:
            for ks in range(2):
                if g == g0 and ks == 0: continue
                if g == 8 and g0 == 0 and ks == 1: continue
                R = rd_act(g, ks) + ([xa(g, ks)] if g < 15 else [])
                k1 = [k for k, f in enumerate(allf) if f[0] == g and f[1] == ks][0]
                u0 = fm[k1] if k1 < len(fr) else None
                for j, x in enumerate(R):
                    if ks == 0: t = e = bar_m[g]
                    else:
                        e = fm[cs[g]]; t = e + (j * min(u0 - e - 8, 40)) // len(R)
                    use = None if not x.startswith("ds_") else (u0 + j if u0 is not None else n)
                    items.append((max(t, e), 2, j, (x, t, e, use)))
        items.sort(key=lambda z: z[:3])
        S_.rq = [z[3] for z in items]
        S_.waitpts = [fm[k] for k in range(0, len(fr), 2)]
        S_.place_reads()
        return S_, {g: fm[cs[g]] for g in range(g0, g0 + 8)}, bar_m, fm
    def pack(areg, pk, scale=None):
        t = TT
        G = ["v_accvgpr_read_b32 v%d, a%d" % (t + j, areg + j) for j in range(8)]
        if scale is not None: G += ["v_mul_f32 v%d, s%d, v%d" % (t + j, scale, t + j) for j in range(8)]
        G += ["v_cvt_pk_bf16_f32 v%d, v%d, v%d" % (pk + j, t + 2 * j, t + 2 * j + 1) for j in range(4)]
        return G
    def kv_unit(j, nd=None):
        cb, rb, tb = (j % 16) // 4, (j // 2) % 2, j % 2
        pk = PK + 4 * (j % 4)
        G = pack(j * 8, pk) + ["buffer_store_dwordx4 %s, v%d, s[%d:%d], s%d offen offset:%d%s" % (vr(pk, 4), vL16, SO, SO + 3, (sOK, sOK2)[rb], (cb % 2) * 2048 + tb * 1024, " ; need:%d" % nd if nd else "")]
        if j == 15: G += ["s_add_u32 s%d, s%d, s%d" % (sOK, sOK, sOJ), "s_add_u32 s%d, s%d, s%d" % (sOK2, sOK2, sOJ)]
        elif j % 16 == 7: G += ["s_add_u32 s%d, s%d, 4096" % (sOK, sOK), "s_add_u32 s%d, s%d, 4096" % (sOK2, sOK2)]
        return G
    qa_setup = [["s_mov_b32 s%d, s%d" % (SA, pX), "s_mov_b32 s%d, s%d" % (SA + 1, pX + 1),
                 "s_lshl_b32 s%d, s%d, 15" % (sAS, sQL), "s_lshl_b32 s%d, s%d, 15" % (sAS2, sQS)]]
    qw_setup = [["s_mov_b32 m0, %d" % LDS_G, "s_mov_b32 s%d, s%d" % (SW, pWQ), "buffer_load_dwordx4 v%d, s[%d:%d], 0 offen lds ; need:8" % (vL16, SX, SX + 3), "s_mov_b32 s%d, s%d" % (SW + 1, pWQ + 1)],
                ["s_lshl_b32 s%d, s%d, 17" % (sT0, sWV), "s_lshl_b32 s%d, s%d, 8" % (sWS, sH), "s_add_u32 s%d, s%d, s%d" % (sWS, sWS, sT0), "s_lshl_b32 s%d, s%d, 12" % (sWM, sWV)],
                ["s_mov_b32 s%d, s%d" % (SX, pWQKV), "s_mov_b32 s%d, s%d" % (SX + 1, pWQKV + 1), "s_lshl_b32 s%d, s%d, 11" % (sXM, sWV), "s_mul_i32 s%d, s%d, %d" % (sXS, sWV, 16 * 3072)],
                ["s_mov_b32 s%d, 0x180000" % (SX + 2)]]
    at_setup = [["v_cmp_ne_u32 vcc, s%d, v125" % sFA], ["s_cmp_eq_u64 vcc, 0", "s_cselect_b32 s%d, 1, s%d" % (sFA, sWV)],
                ["s_cmp_eq_u32 s%d, 0" % sWV, "s_cselect_b32 s46, 8, 0", "s_cselect_b32 s47, 0x80000000, 0"],
                ["s_lshl_b32 s%d, s%d, 12" % (sW4, sWV), "s_lshl_b32 s%d, s%d, 13" % (sW8, sWV), "s_lshl_b32 s%d, s%d, 19" % (sT0, sH)],
                ["s_lshl_b32 s%d, s%d, 15" % (sVD, sI), "s_add_u32 s%d, s%d, s%d" % (sT0, sT0, sVD)],
                ["s_add_u32 s%d, s%d, 0x%x" % (sKO, sT0, OFF_K), "s_add_u32 s%d, s%d, 0x%x" % (sVO, sT0, OFF_V), "s_mov_b32 s%d, %s" % (sTH, THRESH)]]
    sRA, sHP, sA0, sA1, sGB, sGA_, sGL_, sGS_, sP0, sP1_, sX0, sX1 = 36, 37, 38, 39, 64, 65, 66, 67, 68, 69, 70, 71
    sXO, sXR = 62, 95
    sFG, sFX, sRBK, sTIL = 96, 97, 60, 61
    late_setup = [["s_lshr_b32 s%d, s%d, 3" % (sX1, sH), "s_lshl_b32 s%d, s%d, 3" % (sFG, sX1), "s_add_u32 s%d, s%d, s%d" % (sFG, sFG, sI), "s_lshl_b32 s%d, s%d, 5" % (sFG, sFG),
                 "s_and_b32 s%d, s%d, 7" % (sX0, sH), "s_add_u32 s%d, s%d, s%d" % (sFG, sFG, sX0), "s_lshl_b32 s%d, s%d, 2" % (sFG, sFG), "s_add_u32 s%d, s%d, 0x%x" % (sFG, sFG, OFF_FL),
                 "s_sub_u32 s%d, 15, s%d" % (sX0, sI)], ["s_bitcmp1_b32 s2, 0", "s_cselect_b32 s%d, s%d, s%d" % (sRBK, sX0, sI)], ["s_lshl_b32 s%d, s%d, 2" % (sFX, sRBK),
                 "s_and_b32 s%d, s%d, 3" % (sX0, sH), "s_add_u32 s%d, s%d, s%d" % (sTIL, sFX, sX0), "s_lshl_b32 s%d, s%d, 5" % (sFX, sTIL), "s_add_u32 s%d, s%d, s%d" % (sFX, sFX, sX1),
                 "s_lshl_b32 s%d, s%d, 2" % (sFX, sFX), "s_add_u32 s%d, s%d, 0x%x" % (sFX, sFX, OFF_FL + 32 * 128)],
        ["s_bitcmp1_b32 s%d, 1" % sH, "s_cselect_b32 s%d, s%d, s%d" % (sRA, sQL, sQS)],
        ["s_and_b32 s%d, s%d, 1" % (sHP, sH), "s_lshr_b32 s%d, s%d, 1" % (sX0, sGR), "s_add_u32 s%d, s%d, s%d" % (sHP, sHP, sX0), "s_lshl_b32 s%d, s%d, 11" % (sGB, sGR), "s_add_u32 s%d, s%d, 0x%x" % (sGB, sGB, OFF_G)]]
    for d_, blk in ((sGA_, sRA), (sGL_, sQL), (sGS_, sQS)): late_setup.append(["s_lshl_b32 s%d, s%d, 7" % (d_, blk), "s_add_u32 s%d, s%d, s%d" % (d_, d_, sGB)])
    late_setup += [["s_lshr_b32 s%d, s%d, 2" % (sX0, sHP), "s_lshl_b32 s%d, s%d, 19" % (sX0, sX0), "s_and_b32 s%d, s%d, 3" % (sX1, sHP), "s_lshl_b32 s%d, s%d, 11" % (sX1, sX1),
         "s_add_u32 s%d, s%d, s%d" % (sX0, sX0, sX1), "s_lshl_b32 s%d, s%d, 13" % (sX1, sRA), "s_add_u32 s%d, s%d, s%d" % (sA0, sX0, sX1),
         "s_max_u32 s%d, s%d, 1" % (sX1, sRA), "s_sub_u32 s%d, s%d, 1" % (sX1, sX1), "s_lshl_b32 s%d, s%d, 13" % (sX1, sX1), "s_add_u32 s%d, s%d, s%d" % (sA1, sX0, sX1),
         "s_add_u32 s%d, s%d, %d" % (sA1, sA1, 4 * PH),
         "s_lshr_b32 s%d, s2, 3" % sX0, "s_lshl_b32 s%d, s%d, 2" % (sX0, sX0), "s_add_u32 s%d, s%d, s%d" % (sX0, sX0, sWV), "s_and_b32 s%d, s2, 6" % sX1,
         "s_lshl_b32 s%d, s%d, 6" % (sX1, sX1), "s_add_u32 s%d, s%d, s%d" % (sX0, sX0, sX1), "s_lshl_b32 s%d, s%d, 6" % (sP0, sX0), "s_lshl_b32 s%d, s%d, 3" % (sP1_, sX0),
         "s_mul_i32 s%d, s%d, %d" % (sXO, sTIL, 4 * 49152), "s_add_u32 s%d, s%d, s%d" % (sXO, sXO, sW4), "s_add_u32 s%d, s%d, 0x%x" % (sXO, sXO, OFF_X),
         "s_lshr_b32 s%d, s%d, 3" % (sXR, sH), "s_mul_i32 s%d, s%d, 49152" % (sXR, sXR), "s_add_u32 s%d, s%d, s%d" % (sXR, sXR, sXO),
         "s_add_u32 s%d, s%d, %d" % (sX0, sA0, 4 * PH), "s_add_u32 s%d, s%d, %d" % (sX1, sA0, 8 * PH), "s_add_u32 s%d, s%d, %d" % (sGB, sA1, 4 * PH)]]
    def ren(G, mp): return [[_re.sub(r"\bs(\d+)\b", lambda m_: "s%d" % mp.get(int(m_.group(1)), int(m_.group(1))), x) for x in g] for g in G]
    early = ren(late_setup[:3], {sFG: 64, sFX: 65})
    early += [["v_mov_b32 v28, 0", "v_min_u32 v29, 1, v%d" % vFO, "v_lshlrev_b32 v29, 29, v29", "buffer_store_dword v28, v29, s[%d:%d], s64 offen sc1" % (SO, SO + 3)]]
    if SENT:
        early += [["s_lshl_b32 s66, s%d, 2" % sTIL, "s_add_u32 s66, s66, s%d" % sX1, "s_mul_i32 s66, s66, 49152", "s_lshl_b32 s67, s%d, 12" % sWV, "s_add_u32 s66, s66, s67", "s_add_u32 s66, s66, 0x%x" % OFF_X]]
        early += [["v_mov_b32 v%d, -1" % r for r in range(32, 36)]]
        for j in range(3):
            early += [["buffer_store_dwordx4 v[32:35], v%d, s[%d:%d], s66 offen offset:%d sc1" % (vL16, SO, SO + 3, c * 1024) for c in range(2)] + ["s_add_u32 s66, s66, 16384"]]
    else: early += [["buffer_store_dword v28, v29, s[%d:%d], s65 offen sc1" % (SO, SO + 3)]]
    SK, SV = SO, SO
    vK, vV = vL16, 2
    def dma(which, typ, par, srd_=None):
        so, sr_, base = (sKO, SK, 0) if which == "K" else (sVO, SV, 65536)
        if srd_ is not None: sr_ = srd_
        sw = sW4 if typ == 1 else sW8
        G = []
        for q in range(typ):
            g = ["s_add_u32 m0, s%d, %d" % (sw, base + par * 32768 + q * 4096)]
            g.append("s_add_u32 s%d, s%d, s%d" % (sDS, so, sw) if q == 0 else "s_add_u32 s%d, s%d, 4096" % (sDS, sDS))
            G.append(g)
            for o in range(4):
                G.append(["buffer_load_dwordx4 v%d, s[%d:%d], s%d offen offset:%d sc1 lds" % (vK, sr_, sr_ + 3, sDS, o * 1024)])
        return G
    def adv(which, typ):
        so = sKO if which == "K" else sVO
        if which == "V" and typ == 1: return ["s_add_u32 s%d, s%d, s%d" % (so, so, sVD), "s_movk_i32 s%d, 0x4000" % sVD]
        return ["s_add_u32 s%d, s%d, %d" % (so, so, 16384 * typ)]
    spins = []
    vF1, vFA, vPO = 122, 251, 250
    sP1, sG1, sG2 = 45, 46, 47
    def poll_load(kind):
        if kind == 1: return "buffer_load_dword v%d, v124, s[%d:%d], s%d offen sc1" % (vF1, SD, SD + 3, sCNT)
        if kind == 4: return "buffer_load_dword v195, v192, s[%d:%d], s%d offen sc1" % (SO, SO + 3, sG2)
        if kind == 3: return "buffer_load_dword v%d, v13, s[%d:%d], 0 offen offset:128 sc1" % (vFA, SD, SD + 3)
        return "buffer_load_dword v%d, v%d, s[%d:%d], 0 offen offset:128 sc1" % (vFA, vPO, SD, SD + 3)
    def poll_cmp(kind): return "v_cmp_gt_u32 vcc, s%d, v%d" % ((sG1, vF1) if kind == 1 else (sG2, vFA) if kind < 4 else (sG1, 195))
    def poll_check(kind):
        ls, lb = a.label("spin"), a.label("spun")
        a("%s\ns_cbranch_vccnz %s\n%s:" % (poll_cmp(kind), ls, lb))
        spins.append((ls, lb, kind))
    rels = []
    def release():
        ls, lb = a.label("rel"), a.label("reld")
        a("s_cmp_eq_u32 s%d, 0\ns_cbranch_scc1 %s\n%s:" % (sFA, ls, lb))
        rels.append((ls, lb))

    st_("setup")
    bar("s_waitcnt vmcnt(1)")
    st_("bar0")

    pre0 = rd_w(0, 0, 0, 0) + rd_act(0, 0) + [x for k in range(1, PDW) for x in rd_w(0, 0, k, k)]
    use0 = [0, 0] + list(range(8)) + [8 * k for k in range(1, PDW) for _ in range(2)]
    for x in pre0: a(x)
    a(xa(0, 0))
    lV = a.label("kvV"); lQ = a.label("qphase")
    a("s_cmp_ge_u32 s%d, 2\ns_cbranch_scc1 %s" % (sWV, lV))
    NKV = 12
    CRL = "global_load_dword v122, v127, s[0:1]"
    for var in ("K", "V"):
        if var == "V": a(lV + ":")
        t2[0] = 1
        S_, cm, bm, fm = build(0, var)
        S_.place(dma_w(1) + dma_act(1), 0, 56)
        S_.place(dma_act(2) + pfp(-1), 56, bm[1] - 2)
        for g in range(1, 9):
            b = bm[g]; e = bm.get(g + 1, S_.n + 96)
            Wn = (soft(qw_setup) if g == 7 else []) + dma_w(g + 1) + pfp(g - 1)
            if g in (3, 5, 7): Wn = Wn + [CRL]
            if g == 2: Wn = Wn + [PLA]
            if g == 6: Wn = ["buffer_load_dword v125, v126, s[%d:%d], 0 offen offset:128 sc1 ; need:7" % (SD, SD + 3)] + Wn
            S_.place(Wn, b, b + (44 if g < 8 else 31))
            if g < 8: S_.place((flat(qa_setup) if g == 6 else []) + dma_act(g + 2) + (soft(at_setup) if g == 7 else []), b + 44, e - 8)
        S_.place(DF, 4, bm[2] - 4)
        S_.place(soft(early), bm[3], bm[6])
        for cb in range(3):
            S_.place([x for j in range(4 * cb, 4 * cb + 4) for x in kv_unit(j, GPUB)], cm[7] + 32 * cb + 38, cm[7] + 32 * cb + 70 if cb < 2 else S_.n)
        vmh = S_.emit(a, bar, use0, [])
        left = S_.left; nkv = S_.n
        if VERB: print("KV over", S_.over)
        if var == "K": a("s_branch %s" % lQ)
    a(lQ + ":")
    st_("q")
    use8 = [0 if u == nkv else 4 * (u - nkv - 1) for u in left]
    t2[0] = 9
    S_, cm, bm, fm = build(8, "Q")
    per = cm[9] - cm[8]
    S_.place(dma_act(10), 0, bm[9] - 6)
    for g in range(9, 16):
        b = bm[g]; e = bm.get(g + 1, S_.n)
        Wn = dma_w(g + 1) if g < 15 else [x + " ; need:16" if isvm(x) else x for x in flat(dma("K", 1, 1))]
        if g == GPUB:
            S_.hooks[g] = release
            Wn = Wn + ["buffer_atomic_add v%d, v%d, s[%d:%d], s%d offen sc1" % (vONE, vFO, SD, SD + 3, sCNT)]
        if g in (9, 11, 13): Wn = Wn + [CRL]
        S_.place(Wn, b, b + 34)
        S_.place(dma_act(g + 2) if g + 2 < 16 else flat(dma("K", 1, 0) + [adv("K", 1)]) + [poll_load(1)] if g == 14 else [], b + 34, e - 6)
    S_.place(soft(late_setup), cm[10], cm[14])
    zero = lambda lo, hi: ["v_accvgpr_write_b32 a%d, 0" % r for r in range(lo, hi)]
    S_.place([x for j in range(NKV, 16) for x in kv_unit(j, GPUB)], 8, cm[9] + per // 2)
    S_.place([x for j in range(16, 32) for x in kv_unit(j)] + zero(52, 128), cm[9] + per // 2, cm[15] + 20)
    hd = ["s_and_b32 s%d, s%d, 1" % (sT0, sH), "s_lshr_b32 s%d, s%d, 1" % (sT1, sGR), "s_add_u32 s%d, s%d, s%d" % (sT0, sT0, sT1),
          "s_and_b32 s%d, s%d, 2" % (sT2, sH), "s_lshl_b32 s%d, s%d, 20" % (sAS, sT2), "s_lshr_b32 s%d, s%d, 1" % (sT2, sT2), "s_add_u32 s%d, s%d, s%d" % (sT1, sT1, sT2),
          "s_lshr_b32 s%d, s%d, 2" % (sT2, sT0), "s_lshl_b32 s%d, s%d, 19" % (sT2, sT2), "s_add_u32 s%d, s%d, s%d" % (sAS, sAS, sT2), "s_and_b32 s%d, s%d, 3" % (sT0, sT0), "s_lshl_b32 s%d, s%d, 11" % (sT0, sT0),
          "s_add_u32 s%d, s%d, s%d" % (sAS, sAS, sT0),
          "s_lshr_b32 s%d, s%d, 2" % (sT2, sT1), "s_add_u32 s%d, s%d, 8" % (sT2, sT2), "s_lshl_b32 s%d, s%d, 19" % (sAS2, sT2), "s_and_b32 s%d, s%d, 3" % (sT1, sT1), "s_lshl_b32 s%d, s%d, 11" % (sT1, sT1),
          "s_add_u32 s%d, s%d, s%d" % (sAS2, sAS2, sT1), "s_and_b32 s%d, s%d, 1" % (sT0, sH), "s_lshl_b32 s%d, s%d, 10" % (sT0, sT0), "s_add_u32 s%d, s%d, s%d" % (sAS2, sAS2, sT0),
          "s_lshl_b32 s%d, s%d, 13" % (sT0, sQL), "s_lshl_b32 s%d, s%d, 13" % (sT1, sQS),
          "s_add_u32 s%d, s%d, s%d" % (sWS, sAS, sT0), "s_add_u32 s%d, s%d, s%d" % (sXS, sAS, sT1), "s_add_u32 s%d, s%d, s%d" % (sAM, sAS2, sT0), "s_add_u32 s%d, s%d, s%d" % (sWM, sAS2, sT1),
          ["s_bitcmp1_b32 s%d, 1" % sH, "s_cselect_b32 s%d, 1.0, %s" % (sSC, fbits(LOG2E * 0.25)), "s_cselect_b32 s%d, s%d, s%d" % (sXM, sGS_, sGL_)],
          "s_and_b32 s%d, s%d, 1" % (sT0, sH), "s_lshl_b32 s%d, s%d, 6" % (sT0, sT0), "s_add_u32 s%d, s%d, s%d" % (sXM, sXM, sT0)]
    AE = []
    for j in range(6):
        pk = PK + 4 * (j % 4)
        so, off = ((sWS, sXS)[j // 2], (j % 2) * 1024) if j < 4 else ((sAM, sWM)[j - 4], 0)
        AE += pack(j * 8, pk, sSC if j < 4 else None) + ["buffer_store_dwordx4 %s, v%d, s[%d:%d], s%d offen offset:%d" % (vr(pk, 4), vL16, SO, SO + 3, so, off)]
    AE += ["v_accvgpr_read_b32 v%d, a48" % TT, "v_and_b32 v%d, 15, v0" % (TT + 1), "v_mul_f32 v%d, %s, v%d" % (TT, fbits(-LOG2E), TT), "v_exp_f32 v%d, v%d" % (TT, TT), "v_lshlrev_b32 v%d, 2, v%d" % (TT + 1, TT + 1),
           "v_add_f32 v%d, 1.0, v%d" % (TT, TT), "v_rcp_f32 v%d, v%d" % (TT, TT), "s_nop 0", "buffer_store_dword v%d, v%d, s[%d:%d], s%d offen" % (TT, TT + 1, SO, SO + 3, sXM)]
    S_.place(hd, bm[15] + 2, cm[15] + 38)
    room = S_.room(cm[15] + 40, S_.n) - 8
    S_.place(AE[:room], cm[15] + 40, S_.n); tail = AE[room:]
    vm2 = S_.emit(a, bar, use8, vmh)
    if VERB: print("Q over", S_.over, "tail", len(tail))
    for x in tail: a(x)
    a("s_waitcnt vmcnt(%d)" % (len(vm2) - 1 - max(k for k, nd in enumerate(vm2) if nd == 16) + sum(1 for x in tail if isvm(x))))
    a(lAttn + ":")
    st_("attn")
    vU = 3; vL = (4, 5, 6, 7); vG = (8, 9, 14, 15); vX = 10
    S = (16, 80); P = (144, 176); NM, LT, TM, ONES = 208, 224, 240, 252
    vT8, vNEG = 248, 249
    O, Q, FR, NFR = 0, 128, 192, 16
    ms = (26, 28, 30, 4)
    def kfrag(p, kb, s): return ("K", p * 32768 + (kb // 2) * 8192 + s * 2048 + (kb % 2) * 1024)
    def vfrag(p, kp, dt): return ("V", p * 32768 + kp * 8192 + dt * 1024)
    def rd(slot, fr): return "ds_read_b128 %s, v%d offset:%d" % (ar(FR + 4 * (slot % NFR), 4), vK if fr[0] == "K" else vV, fr[1])
    def pvm(Pp, nq, kp, dt): return ["%s %s, {F}, %s, %s" % (MF16, ar(O + (qb * 8 + dt) * 4, 4), vr(Pp + (kp * nq + qb) * 4, 4), ar(O + (qb * 8 + dt) * 4, 4)) for qb in range(nq)]
    def mf_list(p, pv, qk):
        L = []; Pp = P[1 - p]; Sn = S[1 - p]
        if pv in (1, 2):
            nq = 4 // pv
            L += [(vfrag(1 - p, kp, dt), pvm(Pp, nq, kp, dt)) for kp in range(2 * pv) for dt in range(8)]
        elif pv == 3:
            L += [(("K", vfrag(1, kp, dt)[1]), pvm(Pp, 2, kp, dt)) for dt in range(8) for kp in range(4)]
        if qk:
            nq = 4 // qk
            for kb in range(4 * qk):
                for s in range(4):
                    ms_ = []
                    for qb in range(nq):
                        d = vr(Sn + ((kb // 2) * nq + qb) * 8 + (kb % 2) * 4, 4)
                        ms_.append("%s %s, {F}, %s, %s" % (MF16, d, ar(Q + (qb * 4 + s) * 4, 4), d if s else vr(NM + qb * 4, 4)))
                    L.append((kfrag(1 - p, kb, s), ms_))
        return L
    def ex(p, n): return "v_exp_f32 v%d, v%d" % (TM + n % 8, S[p] + n)
    def cv(p, j): return "v_cvt_pk_bf16_f32 v%d, v%d, v%d" % (P[p] + j, TM + (2 * j) % 8, TM + (2 * j) % 8 + 1)
    def summ(p, sm, q):
        nq = 4 // sm; d = vr(LT + (q % nq) * 4, 4)
        return "%s %s, %s, %s, %s" % (MF16, d, vr(ONES, 4), vr(P[p] + 4 * q, 4), d if q >= nq else "0")
    def chks(sm):
        c = ["v_max3_f32 v%d, v%d, v%d, v%d" % (vX, LT, LT + 4, LT + 8), "v_max_f32 v%d, v%d, v%d" % (vX, vX, LT + 12)] if sm == 1 else ["v_max_f32 v%d, v%d, v%d" % (vX, LT, LT + 4)]
        return c + ["v_cmp_lt_f32 vcc, s%d, v%d" % (sTH, vX)]
    rare = {}
    def step(p, pv, sm, qk, dK, dV, pre_in=True, pre_out=True, extra_vm=None, chk=0, last16=False, staged=None, trail=None, vm_first=False, flush=False, ctl=None):
        L = mf_list(p, pv, qk); nf = len(L)
        nxt = [x[0] for x in mf_list(1, 3, 0)][:PD] if last16 else [vfrag(p, kp, dt) for kp in range(2) for dt in range(8)][:PD]
        M0 = [(f, t) for f, (fr, ts_) in enumerate(L) for t in ts_]
        nb = len(M0); M = []; spos = []
        endm = nb - 13
        ins = {((q + 1) * endm) // 8 + 3: q for q in range(8)} if sm else {}
        for m, it in enumerate(M0):
            M.append(it)
            if m in ins: spos.append(len(M)); M.append((it[0], summ(p, sm, ins[m])))
        nm = len(M)
        G = []
        if dV: G += dma("V", dV, p) + [adv("V", dV)]
        if dK: G += dma("K", dK, p) + [adv("K", dK)]
        ntr = sum(1 for x in flat(trail or []) if isvm(x))
        G = ((extra_vm or []) + G if vm_first else G + (extra_vm or [])) + (trail or [])
        firstm = {}
        for m, (f, t) in enumerate(M): firstm.setdefault(f, m)
        barf = nf + 1 - PD
        if barf % WP: barf += WP - barf % WP
        if not pre_out or last16: barf = nf + 99
        Gp = Gaps([12] * (nm - 1) + [4])
        sR = Gp.newstream(); pre = None
        allfr = [x[0] for x in L] + (nxt if pre_out else [])
        nrd = PD
        for f in range(nf):
            m = firstm[f]; w_ = None
            if f == barf: w_ = ["s_BARW", "s_BAR"]
            elif f < barf and f % WP == 0: w_ = ["s_waitcnt lgkmcnt(%d)" % max(0, nrd - 1 - min(f + WP - 1, nf - 1))]
            if w_ and m == 0: pre = w_
            elif w_:
                for x in w_: Gp.add(m - 1, sR, x)
            want = min(f + PD, len(allfr) - 1)
            if f < barf and not last16: want = min(want, nf - 1)
            k = m
            while nrd <= want and k < m + 2:
                Gp.add(k, sR, rd(nrd, allfr[nrd])); nrd += 1; k += 1
        assert nrd == len(allfr), (nrd, len(allfr))
        hiD = min(max(2 * len(G), (nm * DFR) // 16), firstm[barf] - 8 if barf < nf else nm)
        Gp.place(flat(G), 1, hiD, slack=40)
        if pv in (1, 2) and not last16: Gp.place(["v_add_f32 v%d, v%d, v%d" % (vL[qb], vL[qb], LT + 4 * qb) for qb in range(4 // pv)], 0, 10)
        if ctl: Gp.place([ctl], nm - 8, nm - 3)
        if sm:
            pe = []; lo = 0
            for q in range(8):
                hi = spos[q] - 3
                pe += Gp.place([ex(p, n) for n in range(8 * q, 8 * q + 8)], lo, hi, slack=16, ahead=8); lo = hi
            sC = Gp.newstream(); k = 0
            for j in range(32):
                k = max(k, pe[2 * j + 1] + 1)
                dl = min(pe[2 * j + 8] - 1 if 2 * j + 8 < 64 else nm, spos[j // 4] - 3)
                assert k <= dl, (j, k, dl)
                cand = [z for z in range(k, dl + 1) if gcost(Gp.g[z] + [(sC, cv(p, j))]) <= Gp.cap[z]]
                k = cand[0] if cand else min(range(k, dl + 1), key=lambda z: gcost(Gp.g[z]))
                Gp.add(k, sC, cv(p, j))
            Gp.place(chks(sm), nm - 3, nm - 1)
        for (lst, lo, hi) in (staged or []): Gp.place(lst, lo, hi)
        if VERB: print("step", p, pv, sm, qk, "gaps", nm, "over", Gp.over())
        if not pre_in:
            for f in range(PD): a(rd(f, L[f][0]))
        for x in pre or []: a(x)
        for m, (f, t) in enumerate(M):
            a(t.replace("{F}", ar(FR + 4 * (f % NFR), 4)))
            for x in Gp.out(m):
                if x == "s_BARW": continue
                if x == "s_BAR":
                    if TS3: a("s_mov_b32 m0, s76\ns_add_u32 s76, s76, 1\nv_writelane_b32 v11, s72, m0\ns_mov_b32 m0, s76\ns_add_u32 s76, s76, 1\nv_writelane_b32 v11, s74, m0\ns_memtime s[72:73]")
                    a("s_waitcnt vmcnt(%d) lgkmcnt(0)" % ntr)
                    if chk: poll_check(chk)
                    a("s_barrier")
                    if TS3: a("s_memtime s[74:75]\ns_waitcnt lgkmcnt(0)")
                else: a(x)
        assert nf % NFR == 0
        if sm:
            key = (p, sm, qk if qk else sm)
            if key not in rare: rare[key] = (a.label("rare"), [])
            lb = a.label("back"); lj = a.label("jr")
            rare[key][1].append((lj, lb))
            a("s_cbranch_vccnz %s\n%s:" % (lj, lb))
            if last16 or flush:
                for qb in range(4 // sm): a("v_add_f32 v%d, v%d, v%d" % (vL[qb], vL[qb], LT + 4 * qb))
    def qregs(base, typ, qb):
        nq = 4 // typ
        return [base + (kp * nq + qb) * 8 + j for kp in range(2 * typ) for j in range(8)]
    def maxtree(dst, R):
        L = ["v_max3_f32 v%d, v%d, v%d, v%d" % (dst, R[0], R[1], R[2])]; j = 3
        while j + 1 < len(R):
            L.append("v_max3_f32 v%d, v%d, v%d, v%d" % (dst, dst, R[j], R[j + 1])); j += 2
        if j < len(R): L.append("v_max_f32 v%d, v%d, v%d" % (dst, dst, R[j]))
        return L
    def xlane(op, D, Tm):
        L = []
        for sw in ("v_permlane16_swap_b32", "v_permlane32_swap_b32"):
            L += ["v_mov_b32 v%d, v%d" % (t, d) for d, t in zip(D, Tm)]
            if len(D) < 3: L.append("s_nop %d" % (2 - len(D)))
            L += ["%s v%d, v%d" % (sw, d, t) for d, t in zip(D, Tm)]
            L += ["%s v%d, v%d, v%d" % (op, d, d, t) for d, t in zip(D, Tm)]
        return L
    def mask(base, blocks, pad=True):
        if pad: a("s_nop 7")
        for (r0, kb) in blocks:
            r0 += base
            lf = a.label("mfull"); le_ = a.label("mend")
            a("s_cmp_gt_u32 s%d, %d\ns_cbranch_scc1 %s" % (sWV, kb, le_))
            for r in range(4): a("v_mov_b32 v%d, v%d" % (r0 + 4 + r, vNEG))
            if kb > 0: a("s_cmp_lt_u32 s%d, %d\ns_cbranch_scc1 %s" % (sWV, kb, lf))
            for r in range(4): a("v_cmp_gt_i32 s[%d:%d], %d, v%d" % (ms[r], ms[r] + 1, r, vU))
            for t in (0, 12):
                for r in range(4): a("v_cndmask_b32 v%d, v%d, v%d, s[%d:%d]" % (r0 + t + r, r0 + t + r, vNEG, ms[r], ms[r] + 1))
            if kb > 0:
                a("s_branch %s\n%s:" % (le_, lf))
                for r in list(range(4)) + list(range(8, 16)): a("v_mov_b32 v%d, v%d" % (r0 + r, vNEG))
            a(le_ + ":")
    poll_check(1)
    bar("s_nop 0")
    if TS2:
        a("s_waitcnt lgkmcnt(0)"); bar("s_nop 0")
        a("s_lshl_b32 s78, s2, 2\ns_add_u32 s78, s78, s%d\ns_lshl_b32 s78, s78, 8\ns_add_u32 s78, s78, 0x%x\nv_lshlrev_b32 v122, 2, v0" % (sWV, OFF_TS + 0x80000))
        a("buffer_store_dword v123, v122, s[%d:%d], s78 offen\ns_waitcnt vmcnt(0)" % (SO, SO + 3))
    a("s_mov_b32 s%d, %s" % (sSC, fbits(LOG2E / math.sqrt(128.0))))
    fr0 = [kfrag(0, kb, s) for s in range(4) for kb in range(4)]
    for f in range(12): a(rd(f, fr0[f]))
    def qepi(cb):
        G = []
        for qb in range(4):
            src = QA + (((qb // 2) * 4 + cb) * 2 + qb % 2) * 8
            G += ["v_mul_f32 v%d, s%d, v%d" % (src + j, sSC, src + j) for j in range(8)]
            G += ["v_cvt_pk_bf16_f32 v%d, v%d, v%d" % (src + j, src + 2 * j, src + 2 * j + 1) for j in range(4)]
            G += ["v_accvgpr_write_b32 a%d, v%d" % (Q + (qb * 4 + cb) * 4 + j, src + j) for j in range(4)]
        return G
    a("s_add_u32 s%d, s%d, 0x4000\ns_sub_u32 s%d, s%d, s%d\ns_cmp_eq_u32 s%d, 0\ns_cselect_b32 s%d, 0x8000, 0\ns_add_u32 s%d, s%d, s%d" % (sT1, sVD, sKO, sKO, sT1, sI, sT0, sKO, sKO, sT0))
    for x in flat(dma("V", 1, 0)): a(x)
    a("s_add_u32 s%d, s%d, 0x4000\ns_sub_u32 s%d, 0, s%d" % (sVO, sVO, sVD, sT1))
    for x in qepi(0): a(x)
    for f in range(12, 16): a(rd(f, fr0[f]))
    misc = ["v_add_u32 v%d, 0x10000, v%d" % (vV, vK), "v_and_b32 v10, 15, v0", "v_lshrrev_b32 v11, 4, v0", "v_lshlrev_b32 v11, 2, v11", "v_sub_u32 v%d, v10, v11" % vU]
    misc += ["v_mov_b32 v%d, 0" % r for r in vL] + ["v_mov_b32 v%d, %s" % (vNEG, NEG), "v_and_b32 v%d, 3, v0" % vPO, "v_add_lshl_u32 v%d, v%d, s%d, 2" % (vPO, vPO, sGR), "v_add_u32 v%d, s%d, v%d" % (vPO, sW4, vPO)]
    misc += ["v_mov_b32 v%d, 0x3f803f80" % r for r in range(ONES, ONES + 4)] + ["v_mov_b32 v14, v%d" % vFO, "v_mov_b32 v15, 0x10000000"] + zero(0, 52)
    a("s_waitcnt lgkmcnt(0)\ns_barrier")
    K2 = flat(dma("K", 2, 0)) + [["s_cmp_eq_u32 s%d, 0" % sI, "s_cselect_b32 s%d, 2, 1" % sT0], "s_lshl_b32 s%d, s%d, 14" % (sT0, sT0), "s_add_u32 s%d, s%d, s%d" % (sKO, sKO, sT0)]
    Gp = Gaps([12] * 64)
    Gp.place(K2, 0, 40)
    for s in range(4): Gp.place(qepi(s + 1) if s < 3 else misc, 16 * s, 16 * s + 16, slack=4)
    for s in range(4):
        for n in range(16):
            qb, kb = n // 4, n % 4
            d = vr(S[0] + ((kb // 2) * 4 + qb) * 8 + (kb % 2) * 4, 4)
            a("%s %s, %s, %s, %s" % (MF16, d, ar(FR + 4 * (4 * s + kb), 4), ar(Q + (qb * 4 + s) * 4, 4), d if s else "0"))
            for x in Gp.out(16 * s + n): a(x)
    st_("m1")
    mask(S[0], [(16, 0), (48, 1)])
    MXr, MXt = (240, 241, 242, 243), (244, 245, 246, 247)
    for qb in range(4):
        for x in maxtree(MXr[qb], qregs(S[0], 1, qb)): a(x)
    for x in xlane("v_max_f32", MXr, MXt): a(x)
    for qb in range(4):
        for j in range(4): a("v_sub_f32 v%d, 0, v%d" % (NM + qb * 4 + j, MXr[qb]))
    for qb in range(4):
        for r in qregs(S[0], 1, qb): a("v_sub_f32 v%d, v%d, v%d" % (r, r, MXr[qb]))
    st_("first")
    if TS3: a("s_mov_b32 s76, 0\ns_mov_b32 s72, 0\ns_mov_b32 s74, 0")
    step(0, 0, 1, 1, 0, 0, pre_in=False)
    release()
    a("buffer_atomic_add v15, v14, s[%d:%d], s%d offen offset:128 sc1" % (SD, SD + 3, sCNT))
    mask(S[1], [(16, 2), (48, 3)], pad=False)
    st_("s0")
    lT0, lT1, lT1b, lL1, lL2, lS15, lMid, lI7, lEn = [a.label(x) for x in ("T0", "T1", "T1b", "L1", "L2", "S15", "MID", "I7", "END")]
    PL = [[poll_load(2)]]
    AF = [Q + 4 * j for j in range(9)]
    def ld(dst, so, off): return "buffer_load_dwordx4 %s, v%d, s[%d:%d], s%d offen offset:%d sc1" % (ar(dst, 4), vK, SV, SV + 3, so, off)
    AOP = [ld(AF[0], sA0, 0), ld(AF[1], sA0, 1024), ld(AF[2], sX0, 0), ld(AF[3], sX0, 1024), ld(AF[4], sA1, 1024),
           ld(AF[5], sX1, 0), ld(AF[6], sX1, 1024), ld(AF[7], sGB, 0), ld(AF[8], sGB, 1024)]
    AOP += ["v_and_b32 v12, 15, v0", "v_lshlrev_b32 v12, 2, v12"] + ["buffer_load_dword a%d, v12, s[%d:%d], s%d offen offset:%d sc1" % (Q + 36 + t, SV, SV + 3, sGA_, 64 * t) for t in range(2)]
    ALD = [["v_and_b32 v12, 15, v0", "v_lshlrev_b32 v12, 2, v12"]]
    ALD += [["buffer_load_dword v%d, v12, s[%d:%d], s%d offen offset:%d sc1" % (vG[qb], SV, SV + 3, (sGL_, sGS_)[qb // 2], 64 * (qb % 2))] for qb in range(4)]
    ALD += [["v_and_b32 v13, 31, v0", "v_lshl_add_u32 v13, v13, 2, s%d" % sW4, poll_load(3)]]
    def wpf(dst): return [["v_add_lshl_u32 v%d, v0, s%d, 7" % (vT8, sP0), "global_load_dword v%d, v%d, s[%d:%d]" % (dst, vT8, pBWO, pBWO + 1)],
                          ["v_and_b32 v12, 7, v0", "v_add_lshl_u32 v12, v12, s%d, 7" % sP1_, "global_load_dword v%d, v12, s[%d:%d]" % (dst, pWO, pWO + 1)]]
    TR0, TR15 = wpf(vG[0]), wpf(vT8)
    a("s_cmp_eq_u32 s%d, 0\ns_cbranch_scc1 %s" % (sI, lT1))
    a("s_mov_b32 s%d, s%d" % (sT, sI))
    a(".p2align 6\n" + lL1 + ":")
    step(1, 1, 1, 1, 1, 1, ctl=["s_sub_u32 s%d, s%d, 1" % (sT, sT)])
    a("s_cmp_eq_u32 s%d, 0\ns_cbranch_scc1 %s" % (sT, lT0))
    step(0, 1, 1, 1, 1, 1)
    a("s_branch %s" % lL1)
    a(lT0 + ":")
    a("s_add_u32 s%d, s%d, 0x8000" % (sKO, sKO))
    step(0, 1, 1, 1, 2, 1, extra_vm=PL, chk=2, trail=TR0)
    a("s_cmp_eq_u32 s%d, 7\ns_cbranch_scc1 %s" % (sI, lT1b))
    a(lT1 + ":")
    step(1, 1, 1, 2, 2, 1)
    a("s_add_u32 s%d, s%d, 0x8000" % (sVO, sVO))
    step(0, 1, 2, 2, 2, 2, extra_vm=PL, chk=2, trail=TR0)
    a("s_sub_u32 s%d, 6, s%d\ns_cmp_eq_u32 s%d, 0\ns_cbranch_scc1 %s" % (sT, sI, sT, lS15))
    a(".p2align 6\n" + lL2 + ":")
    step(1, 2, 2, 2, 2, 2)
    step(0, 2, 2, 2, 2, 2, ctl=["s_sub_u32 s%d, s%d, 1" % (sT, sT)])
    a("s_cmp_lg_u32 s%d, 0\ns_cbranch_scc1 %s" % (sT, lL2))
    a(lS15 + ":")
    a("s_add_u32 s%d, s%d, 0x8000" % (sKO, sVO))
    step(1, 2, 2, 2, 2, 2, extra_vm=ALD, chk=3, trail=TR15, vm_first=True, flush=True)
    a("s_branch %s" % lMid)
    a(lT1b + ":")
    a("s_add_u32 s%d, s%d, 0xc000" % (sKO, sVO))
    step(1, 1, 1, 2, 2, 1, extra_vm=ALD, chk=3, trail=TR15, vm_first=True, flush=True)
    def fin_head(rb, so):
        q0, q1 = 2 * rb, 2 * rb + 1
        return ["v_rcp_f32 v%d, v%d" % (vL[q0], vL[q0]), "v_rcp_f32 v%d, v%d" % (vL[q1], vL[q1]), "v_sub_f32 v%d, 1.0, v%d" % (vG[q0], vG[q0]), "v_sub_f32 v%d, 1.0, v%d" % (vG[q1], vG[q1]),
                "s_mul_i32 s%d, s%d, %d" % (so, (sQL, sQS)[rb], CROW), "s_lshl_b32 s%d, s%d, 13" % (sT1, sH), "v_mul_f32 v%d, v%d, v%d" % (vL[q0], vL[q0], vG[q0]), "v_mul_f32 v%d, v%d, v%d" % (vL[q1], vL[q1], vG[q1]),
                "s_add_u32 s%d, s%d, s%d" % (so, so, sT1), "s_add_u32 s%d, s%d, 0x%x" % (so, so, OFF_C)]
    def fin_part(rb, c, t, so):
        u, tq = c // 2, c % 2; qb = 2 * rb + tq
        G = ["v_accvgpr_read_b32 v%d, a%d" % (t + j, O + qb * 32 + u * 8 + j) for j in range(8)]
        G += ["v_mul_f32 v%d, v%d, v%d" % (t + j, vL[qb], t + j) for j in range(8)]
        G += ["v_cvt_pk_bf16_f32 v%d, v%d, v%d" % (t + j, t + 2 * j, t + 2 * j + 1) for j in range(4)]
        if c == 4: G.append("s_add_u32 s%d, s%d, 4096" % (so, so))
        G.append("buffer_store_dwordx4 %s, v%d, s[%d:%d], s%d offen offset:%d sc1" % (vr(t, 4), vK, SV, SV + 3, so, (c % 4) * 1024))
        return G
    a(lMid + ":")
    st_("mid")
    if TS3:
        a("s_mov_b32 m0, s76\ns_add_u32 s76, s76, 1\nv_writelane_b32 v11, s72, m0\ns_mov_b32 m0, s76\ns_add_u32 s76, s76, 1\nv_writelane_b32 v11, s74, m0")
        a("s_lshl_b32 s78, s2, 2\ns_add_u32 s78, s78, s%d\ns_lshl_b32 s78, s78, 8\ns_add_u32 s78, s78, 0x%x\nv_lshlrev_b32 v10, 2, v0" % (sWV, OFF_TS + 0x80000))
        a("buffer_store_dword v11, v10, s[%d:%d], s78 offen\ns_nop 4" % (SO, SO + 3))
    for x in AOP: a(x)
    mask(S[0], [(16 * kp, kp) for kp in range(4)], pad=False)
    PW, PW2 = 8, 12
    sWB, sHW, sWC, sAB, sHA, sAC = 25, 32, 33, 34, 35, 45
    vD = (232, 233, 234, 235)
    WRING = [0, 16384, 65536, 81920, 131072, 147456]; ARING = [32768, 49152, 98304, 114688]
    def w_dma(st):
        G = []
        if st < 16 and st % 2 == 0:
            G += ["s_lshl_b32 s%d, s%d, 17" % (sWC, sHW), "s_add_u32 s%d, s%d, s%d" % (sWC, sWC, sWB), "s_add_u32 s%d, s%d, 1" % (sHW, sHW)]
        if st == 16: G += ["s_and_b32 s%d, s%d, 0xffff" % (sWC, sWB), "s_lshr_b32 s%d, s%d, 20" % (sHW, sWB), "s_lshl_b32 s%d, s%d, 17" % (sHW, sHW), "s_add_u32 s%d, s%d, s%d" % (sWC, sWC, sHW)]
        G += ["s_add_u32 m0, s%d, %d" % (sW4, WRING[st % 6]), "s_and_b32 s%d, s%d, 7" % (sHW, sHW) if st % 2 == 0 else "s_add_u32 s%d, s%d, 65536" % (sWC, sWC)]
        sr_ = PW if st < 16 else PW2
        return G + ["buffer_load_dwordx4 v%d, s[%d:%d], s%d offen offset:%d lds ; need:%d" % (vD[o], sr_, sr_ + 3, sWC, o * 1024, st) for o in range(4)]
    def a_dma(st):
        G = []
        if st < 16 and st % 2 == 0:
            G += ["s_lshl_b32 s%d, s%d, 13" % (sAC, sHA), "s_add_u32 s%d, s%d, s%d" % (sAC, sAC, sAB), "s_add_u32 s%d, s%d, 1" % (sHA, sHA)]
        if st == 16: G += ["s_lshr_b32 s%d, s%d, 3" % (sHA, sH), "s_mul_i32 s%d, s%d, %d" % (sHA, sHA, 56 * 1024), "s_sub_u32 s%d, s%d, s%d" % (sAC, sAB, sHA), "s_add_u32 s%d, s%d, %d" % (sAC, sAC, 256 * 1024)]
        G += ["s_add_u32 m0, s%d, %d" % (sW4, ARING[st % 4]), "s_and_b32 s%d, s%d, 7" % (sHA, sHA) if st % 2 == 0 else "s_add_u32 s%d, s%d, 4096" % (sAC, sAC)]
        return G + ["buffer_load_dwordx4 v%d, s[%d:%d], s%d offen offset:%d sc1 lds ; need:%d" % (vK, SV, SV + 3, sAC, o * 1024, st) for o in range(4)]
    nt = lambda L: [x.split(";")[0].strip() for x in L]
    srd(a, PW, pBWO, 0x400000); srd(a, PW2, pWO, 0x80000)
    a("s_lshr_b32 s%d, s%d, 3\ns_lshl_b32 s%d, s%d, 20\ns_and_b32 s%d, s%d, 3\ns_lshl_b32 s%d, s%d, 8\ns_add_u32 s%d, s%d, s%d\ns_lshl_b32 s%d, s%d, 14\ns_add_u32 s%d, s%d, s%d" % (sT0, sH, sWB, sT0, sT1, sH, sT1, sT1, sWB, sWB, sT1, sT1, sWV, sWB, sWB, sT1))
    a("s_and_b32 s%d, s%d, 7\ns_mov_b32 s%d, s%d" % (sHW, sH, sHA, sHW))
    a("s_lshl_b32 s%d, s%d, 2\ns_add_u32 s%d, s%d, s%d\ns_mul_i32 s%d, s%d, %d\ns_lshl_b32 s%d, s%d, 16\ns_add_u32 s%d, s%d, s%d\ns_add_u32 s%d, s%d, 0x%x" % (sT1, sRBK, sT1, sT1, sWV, sAB, sT1, CROW, sT0, sT0, sAB, sAB, sT0, sAB, sAB, OFF_C))
    a("v_lshrrev_b32 v10, 4, v0\nv_and_b32 v11, 15, v0\nv_lshlrev_b32 v12, 2, v10\nv_xor_b32 v11, v11, v12\nv_lshlrev_b32 v11, 4, v11\nv_lshl_add_u32 v%d, v10, 10, v11" % vD[0])
    a("v_xor_b32 v11, 16, v%d\nv_add_u32 v%d, 6144, v%d\nv_add_u32 v%d, 3072, v11\nv_add_u32 v%d, 9216, v11" % (vD[0], vD[2], vD[0], vD[1], vD[3]))
    W16_ = [[x] for st in range(4) for x in nt(w_dma(st))]; W17_ = [[x] for st in range(4, 6) for x in nt(w_dma(st))]
    a("s_cmp_eq_u32 s%d, 7\ns_cbranch_scc1 %s" % (sI, lI7))
    FT = lambda c: 80 + 8 * (c % 8)
    for x in fin_head(1, sA0): a(x)
    for c in range(NE):
        for x in fin_part(1, c, FT(c), sA0): a(x)
    step(0, 2, 2, 0, 0, 0, last16=True, extra_vm=W16_)
    def final(first):
        stg = [(first + fin_head(0, sA1), 0, 22)]
        for u in range(3):
            stg.append((fin_part(0, 2 * u, 16 + 16 * u, sA1) + fin_part(0, 2 * u + 1, 24 + 16 * u, sA1), 16 * u + 22, min(16 * u + 38, 64)))
        step(1, 3, 0, 0, 0, 0, pre_out=False, staged=stg, extra_vm=W17_)
        a("s_nop 7")
        for x in fin_part(0, 6, 64, sA1) + fin_part(0, 7, 72, sA1): a(x)
    final([x for c in range(NE, 8) for x in fin_part(1, c, FT(c), sA0)])
    a("s_branch %s" % lEn)
    a(lI7 + ":")
    step(0, 1, 2, 0, 0, 0, last16=True, extra_vm=W16_)
    final(fin_head(1, sA0) + [x for c in range(8) for x in fin_part(1, c, FT(c), sA0)])
    a(lEn + ":")
    st_("s17")
    BS, BP, BP0 = 208, 212, 216
    SL = 144; TA = 176; PA = 196; MXl = (240, 241, 242, 243); vPM = 250; OL = 144
    L1 = ["v_add_u32 v246, 14, v%d" % vU, "v_mov_b32 v244, 0x5555", "v_mov_b32 v245, 0", "s_cmp_eq_u32 s%d, 0" % sRA, "s_cselect_b32 s%d, -1, 0" % sT2,
          "v_lshlrev_b64 v[244:245], v246, v[244:245]", "v_alignbit_b32 v244, v245, v244, 12", "v_not_b32 v244, v244"]
    L1 += ["v_bfe_i32 v%d, v244, %d, 1" % (BS + r, 16 + r) for r in range(4)] + ["v_bfe_i32 v%d, v244, %d, 1" % (BP + r, r) for r in range(4)]
    L1 += ["v_or_b32 v%d, s%d, v%d" % (BP0 + r, sT2, BP + r) for r in range(4)]
    L1 += ["v_and_b32 v%d, v%d, v%d" % (BS + r, vNEG, BS + r) for r in range(12)]
    L1 += ["v_and_b32 v244, 1, v0", "v_lshlrev_b32 v244, 4, v244", "v_mov_b32 v245, 0xffff", "v_lshlrev_b32 v%d, v244, v245" % vPM, "s_waitcnt vmcnt(40)"]
    for e in range(2):
        for tq in range(2):
            d = SL + (2 * e + tq) * 8
            L1.append("%s %s, %s, %s, %s" % (MFH, vr(d, 4), ar((AF[4], AF[2])[tq] + 2 * e, 2), ar(AF[tq] + 2 * e, 2), vr((BP0, BP)[tq], 4)))
            L1.append("%s %s, %s, %s, %s" % (MFH, vr(d + 4, 4), ar(AF[2 + tq] + 2 * e, 2), ar(AF[tq] + 2 * e, 2), vr(BS, 4)))
    L2 = ["v_max_f32 v%d, v%d, v%d" % (TA + j, SL + 2 * j, SL + 2 * j + 1) for j in range(16)]
    for n in range(4): L2 += maxtree(MXl[n], [TA + 4 * n + j for j in range(4)])
    L2 += xlane("v_max_f32", MXl, MXt)
    L2 += ["v_sub_f32 v%d, v%d, v%d" % (TA + j, TA + j, MXl[j // 4]) for j in range(16)]
    L2 += ["v_exp_f32 v%d, v%d" % (TA + j, TA + j) for j in range(16)]
    L2 += ["v_cvt_pk_bf16_f32 v%d, v%d, v%d" % (TA + j, TA + j, TA + j) for j in range(16)]
    L2 += ["v_and_b32 v%d, v%d, v%d" % (TA + j, vPM, TA + j) for j in range(16)]
    L2 += ["v_accvgpr_read_b32 v%d, a%d" % (246 + t, Q + 36 + t) for t in range(2)]
    for n in range(4): L2.append("%s %s, %s, %s, 0" % (MF16, vr(OL + 16 + 4 * n, 4), vr(ONES, 4), vr(TA + 4 * n, 4)))
    for e in range(2):
        L2.append("%s %s, %s, %s, 0" % (MFH, vr(OL + 4 * e, 4), ar(AF[7 + e] + 2, 2), vr(TA + 8 * e, 2)))
        L2.append("%s %s, %s, %s, 0" % (MF16, vr(OL + 8 + 4 * e, 4), ar(AF[5 + e], 4), vr(TA + 8 * e + 4, 4)))
    for e in range(2): L2.append("%s %s, %s, %s, %s" % (MFH, vr(OL + 4 * e, 4), ar(AF[5 + e], 2), vr(TA + 8 * e + 2, 2), vr(OL + 4 * e, 4)))
    L2 += ["s_mul_i32 s%d, s%d, %d" % (sA0, sRA, CROW), "s_lshl_b32 s%d, s%d, 11" % (sA1, sHP), "s_add_u32 s%d, s%d, s%d" % (sA0, sA0, sA1), "s_add_u32 s%d, s%d, 0x%x" % (sA0, sA0, OFF_C + 256 * 1024)]
    L2 += ["v_rcp_f32 v%d, v%d" % (MXl[n], OL + 16 + 4 * n) for n in range(4)]
    L2 += ["v_mul_f32 v%d, v%d, v%d" % (MXl[n], MXl[n], 246 + n % 2) for n in range(4)]
    for tq in range(2):
        for e in range(2): L2 += ["v_mul_f32 v%d, v%d, v%d" % (OL + 8 * tq + 4 * e + j, MXl[2 * e + tq], OL + 8 * tq + 4 * e + j) for j in range(4)]
        L2 += ["v_cvt_pk_bf16_f32 v%d, v%d, v%d" % (PA + 4 * tq + j, OL + 8 * tq + 2 * j, OL + 8 * tq + 2 * j + 1) for j in range(4)]
    LST = ["buffer_store_dwordx4 %s, v%d, s[%d:%d], s%d offen offset:%d sc1" % (vr(PA + 4 * tq, 4), vK, SV, SV + 3, sA0, tq * 1024) for tq in range(2)]
    for x in L1: a(x)
    SOUT = 4; sQ, sOUT = 26, 28
    vA, vW = (2, 3), (4, 5, 14, 15); ACC, FP = 16, 80
    srd(a, SOUT, 100, 2048 * 1024)
    a("s_lshr_b32 s%d, s%d, 3" % (sQ, sH))
    a("s_and_b32 s%d, s%d, 1\ns_lshl_b32 s%d, s%d, 1\ns_and_b32 s%d, s%d, 1\ns_add_u32 s%d, s%d, s%d\ns_lshl_b32 s%d, s%d, 12" % (sT0, sWV, sT0, sT0, sT1, sQ, sT2, sT0, sT1, sT0, sT2))
    a("v_add_u32 v%d, s%d, v%d\nv_xor_b32 v%d, 4096, v%d" % (vA[0], sT0, vK, vA[1], vA[0]))
    a("v_lshrrev_b32 v9, 2, v0\nv_and_b32 v8, 3, v9\nv_bfe_u32 v7, v0, 4, 1\nv_and_b32 v10, 2, v0\nv_or_b32 v7, v7, v10\nv_and_b32 v10, 1, v0\nv_lshlrev_b32 v10, 3, v10")
    a("s_and_b32 s%d, s%d, 2\ns_lshr_b32 s%d, s%d, 1\ns_add_u32 s%d, s%d, s%d\nv_xor_b32 v8, s%d, v8" % (sT0, sWV, sT1, sQ, sT0, sT0, sT1, sT0))
    a("v_lshl_or_b32 v8, v8, 2, v7\nv_lshlrev_b32 v8, 4, v8\nv_lshl_add_u32 v8, v9, 8, v8\nv_add_u32 v%d, v8, v10" % vW[0])
    a("v_xor_b32 v%d, 16, v%d\nv_xor_b32 v%d, 64, v%d\nv_xor_b32 v%d, 80, v%d" % (vW[1], vW[0], vW[2], vW[0], vW[3], vW[0]))
    a("s_and_b32 s%d, s%d, 3\ns_lshl_b32 s%d, s%d, 2\ns_add_u32 s%d, s%d, s%d\ns_lshl_b32 s%d, s%d, 6" % (sT1, sH, sT1, sT1, sT1, sT1, sT0, sOUT, sT1))
    a("s_lshl_b32 s%d, s%d, 2\ns_add_u32 s%d, s%d, s%d\ns_lshl_b32 s%d, s%d, 15\ns_add_u32 s%d, s%d, s%d" % (sT0, sRBK, sT0, sT0, sT2, sT0, sT0, sOUT, sOUT, sT0))
    a("v_and_b32 v6, 15, v0\nv_lshlrev_b32 v6, 10, v6\nv_lshrrev_b32 v7, 4, v0\nv_lshl_add_u32 v6, v7, 4, v6")
    a("v_min_u32 v9, 1, v0\nv_lshlrev_b32 v9, 29, v9\nv_mov_b32 v10, 1\nv_and_b32 v8, 7, v0\nv_lshlrev_b32 v8, 2, v8\nv_and_b32 v11, 12, v8")
    def signal_wait(sown, vo, pre):
        lp, lo_ = a.label("xpoll"), a.label("xok")
        a("s_waitcnt vmcnt(0)\ns_barrier\ns_cmp_lg_u32 s%d, 0\ns_cbranch_scc1 %s_s" % (sWV, lo_))
        a("buffer_store_dword v10, v9, s[%d:%d], s%d offen sc1\n%s_s:" % (SO, SO + 3, sown, lo_))
        for x in pre: a(x)
        a("s_cmp_lg_u32 s%d, 0\ns_cbranch_scc1 %s" % (sWV, lo_))
        a("s_and_b32 s%d, s%d, 0xffffff80\ns_mov_b32 s%d, 0x80000\n%s:" % (sT0, sown, sT1, lp))
        a("buffer_load_dword v12, v%d, s[%d:%d], s%d offen sc1\ns_waitcnt vmcnt(0)\nv_cmp_gt_u32 vcc, 1, v12\ns_cbranch_vccz %s" % (vo, SO, SO + 3, sT0, lo_))
        a("s_sleep %d\ns_sub_u32 s%d, s%d, 1\ns_cmp_lg_u32 s%d, 0\ns_cbranch_scc1 %s\n%s:" % (SLP, sT1, sT1, sT1, lp, lo_))
        a("s_waitcnt vmcnt(0)\ns_barrier")
    a("s_cmp_eq_u32 s%d, 0\ns_cselect_b32 s%d, 2, 0\ns_cselect_b32 s%d, 0, 0x20000000\nv_add_u32 v192, s%d, v8\nv_or_b32 v193, s%d, v9\nv_mov_b32 v194, 2\ns_and_b32 s%d, s%d, 0xffffff80" % (sWV, sG1, sT0, sT0, sT0, sG2, sFG))
    for x in L2[:LSPL]: a(x)
    signal_wait(sFG, 8, nt(a_dma(0) + a_dma(1)) + L2[LSPL:])
    st_("sync")
    for x in nt(a_dma(2) + a_dma(3)) + LST: a(x)
    curA, curW = [0], [0]
    def preads(u):
        st, us = u // 2, u % 2
        L = []
        def win(base, cur, regs_):
            w_ = base // 65536
            if w_ != cur[0]:
                d = (w_ - cur[0]) * 65536
                for r in regs_: L.append((("v_add_u32 v%d, 0x%x, v%d" % (r, d, r)) if d > 0 else ("v_subrev_u32 v%d, 0x%x, v%d" % (r, -d, r)), None))
                cur[0] = w_
            return base % 65536
        oa = win(ARING[st % 4], curA, vA); ow = win(WRING[st % 6], curW, vW)
        F = FP + 32 * (u % 2)
        tr = lambda n: [("ds_read_b64_tr_b16 %s, v%d offset:%d" % (vr(F + 16 + 4 * n + 2 * r_, 2), vW[n], ow + us * 8192 + r_ * 4096), 4 * n) for r_ in range(2)]
        ac = [("ds_read_b128 %s, v%d offset:%d" % (vr(F + 4 * n, 4), vA[n // 2], oa + us * 2048 + (n % 2) * 1024), n) for n in range(4)]
        return L + tr(0) + ac + tr(1) + tr(2) + tr(3)
    Mp = []
    for u in range(36):
        F = FP + 32 * (u % 2)
        for wn in range(4):
            for n in range(4):
                acc = vr(ACC + ((n // 2) + 2 * (wn // 2)) * 16 + (n % 2) * 8 + (wn % 2) * 4, 4)
                Mp.append("%s %s, %s, %s, %s" % (MF16, acc, vr(F + 16 + 4 * wn, 4), vr(F + 4 * n, 4), "0" if u == 0 else acc))
    SP_ = Sched(Mp); SP_.backlog = 99
    R0 = preads(0)
    for x, _ in R0: a(x)
    for u in range(1, 36):
        t0 = 16 * (u - 1) + (PB if u % 2 == 0 else 0)
        SP_.rq += [(x, t0, t0, None if us_ is None else 16 * u + us_) for x, us_ in preads(u)]
    for st in range(1, 18): SP_.bars[32 * st - 16 + PB] = st
    SP_.waitpts = [8 * k for k in range(72)]
    SP_.place_reads()
    for g_ in range(SP_.n):
        for u_ in SP_.use[g_].values():
            if u_ is not None: assert g_ < 32 * (u_ // 32 + 1) - 16 + PB, (g_, u_)
    for st in range(1, 18):
        b = 32 * st - 16 + PB
        G = []
        if st == 5: G.append("buffer_store_dword v194, v193, s[%d:%d], s%d offen sc1" % (SO, SO + 3, sFG))
        if st == 10: G.append(poll_load(4) + " ; need:13")
        if st + 3 < 18: G += a_dma(st + 3)
        if st + 5 < 18: G += w_dma(st + 5)
        SP_.place(G, b, b + 30, slack=30)
    nb_ = [0]
    def pbar(w):
        nb_[0] += 1
        a(w)
        if nb_[0] == 13: poll_check(4)
        a("s_barrier")
    SP_.emit(a, pbar, [u_ for _, u_ in R0], [2] * 4 + [3] * 4 + [5] * 2)
    if VERB: print("P over", SP_.over)
    st_("pm")
    a("s_nop 3")
    for j in range(1, 4):
        a("s_xor_b32 s%d, s%d, %d\ns_mul_i32 s%d, s%d, 49152\ns_add_u32 s%d, s%d, s%d\ns_add_u32 s%d, s%d, %d" % (sT0, sQ, j, sT0, sT0, sT0, sT0, sXO, sT0, sT0, (j - 1) * 16384))
        for r in range(8): a("v_cvt_pk_bf16_f32 v%d, v%d, v%d" % (FP + 8 * j + r, ACC + j * 16 + 2 * r, ACC + j * 16 + 2 * r + 1))
        for c in range(2): a("buffer_store_dwordx4 %s, v%d, s[%d:%d], s%d offen offset:%d sc1" % (vr(FP + 8 * j + 4 * c, 4), vK, SO, SO + 3, sT0, c * 1024))
    signal_wait(sFX, 11, [])
    st_("xs")
    a("s_mov_b32 s%d, s%d" % (sT0, sXR))
    for j in range(1, 4):
        for c in range(2): a("buffer_load_dwordx4 %s, v%d, s[%d:%d], s%d offen offset:%d sc1" % (vr(ACC + j * 16 + 4 * c, 4), vK, SO, SO + 3, sT0, c * 1024))
        if j < 3: a("s_add_u32 s%d, s%d, 16384" % (sT0, sT0))
    for j in range(1, 4):
        a("s_waitcnt vmcnt(%d)" % (2 * (3 - j)))
        for r in range(8):
            t = ACC + j * 16 + r
            a("v_lshlrev_b32 v12, 16, v%d\nv_and_b32 v13, 0xffff0000, v%d\nv_add_f32 v%d, v%d, v12\nv_add_f32 v%d, v%d, v13" % (t, t, ACC + 2 * r, ACC + 2 * r, ACC + 2 * r + 1, ACC + 2 * r + 1))
    for r in range(8): a("v_cvt_pk_bf16_f32 v%d, v%d, v%d" % (FP + r, ACC + 2 * r, ACC + 2 * r + 1))
    a("s_nop 1")
    for pr in range(2): a("v_permlane16_swap_b32 v%d, v%d\nv_permlane16_swap_b32 v%d, v%d" % (FP + 4 * pr, FP + 4 * pr + 2, FP + 4 * pr + 1, FP + 4 * pr + 3))
    a("buffer_store_dwordx4 %s, v6, s[%d:%d], s%d offen\ns_add_u32 s%d, s%d, 16384" % (vr(FP, 4), SOUT, SOUT + 3, sOUT, sOUT, sOUT))
    a("buffer_store_dwordx4 %s, v6, s[%d:%d], s%d offen" % (vr(FP + 4, 4), SOUT, SOUT + 3, sOUT))
    T.dump(SO, sWV, 4)
    a(done + ":\ns_endpgm")
    a(lRare + ":")
    for (ls, lb, kind) in spins:
        lp = a.label("sp")
        a(ls + ":\ns_mov_b32 s%d, 0x40000\n%s:" % (sT2, lp))
        a("s_sleep 8\n" + poll_load(kind) + "\ns_waitcnt vmcnt(0)\n%s\ns_cbranch_vccz %s" % (poll_cmp(kind), lb))
        a("s_sub_u32 s%d, s%d, 1\ns_cmp_lg_u32 s%d, 0\ns_cbranch_scc1 %s\ns_branch %s" % (sT2, sT2, sT2, lp, lb))
    for (ls, lb) in rels:
        a("%s:\nbuffer_wbl2 sc1\ns_waitcnt vmcnt(0)\ns_branch %s" % (ls, lb))
    sRET = 44
    for (p, sm, qk), (lr, users) in rare.items():
        for rid, (lj, lb) in enumerate(users): a("%s:\ns_mov_b32 s%d, %d\ns_branch %s" % (lj, sRET, rid, lr))
        a(lr + ":\ns_nop 7\ns_nop 7")
        for qb in range(4 // sm):
            cur = qregs(S[p], sm, qb); d, f = vX, vX + 2
            for x in maxtree(d, cur) + xlane("v_max_f32", [d], [d + 1]): a(x)
            a("v_max_f32 v%d, 0, v%d\nv_exp_f32 v%d, -v%d" % (d, d, f, d))
            nx = qregs(S[1 - p], qk, qb) if qb < 4 // qk else []
            for r in cur + [NM + 4 * qb + j for j in range(4)] + nx: a("v_sub_f32 v%d, v%d, v%d" % (r, r, d))
            a("v_mul_f32 v%d, v%d, v%d" % (vL[qb], vL[qb], f))
            for j in range(0, 32, 4):
                for q in range(4): a("v_accvgpr_read_b32 v%d, a%d" % (TM + q, O + qb * 32 + j + q))
                for q in range(4): a("v_mul_f32 v%d, v%d, v%d" % (TM + q, TM + q, f))
                for q in range(4): a("v_accvgpr_write_b32 a%d, v%d" % (O + qb * 32 + j + q, TM + q))
        for q in range(8):
            for n in range(8 * q, 8 * q + 8): a(ex(p, n))
            for j in range(4 * q, 4 * q + 4): a(cv(p, j))
        a("s_nop 1")
        for q in range(8): a(summ(p, sm, q))
        a("s_nop 7")
        for rid, (lj, lb) in enumerate(users):
            if rid < len(users) - 1: a("s_cmp_eq_u32 s%d, %d\ns_cbranch_scc1 %s" % (sRET, rid, lb))
            else: a("s_branch %s" % lb)
    a.add_kernel(name, 512, 102, 256)
    a.launch(name, 256, 256, 163840)
```

```python
from gen_common import *
from sched import Sched, isvm
from pack import Gaps, cost as gcost
import re as _re
MF16 = "v_mfma_f32_16x16x32_bf16"
MFH = "v_mfma_f32_16x16x16_bf16"
pX, pWQKV, pWO0, pC, pWQ, pWUK, pWUV, pBWO, pGATE, pDBG, pWS = 36, 38, 40, 44, 46, 48, 50, 52, 54, 58, 60
pWO = 58
NEG = "0xff800000"
THRESH = fbits(2.0 ** 48)
WSL = (98304, 131072)
LDS_G = WSL[0] + 24576
def aslot(g): return ((g + 2) % 3) * 32768
def flat(G): return [x for g in G for x in (g if isinstance(g, list) else [g])]
def soft(G):
    out = []
    for g in G:
        if any(x.startswith("s_cselect") for x in g):
            k = [j for j, x in enumerate(g) if x.startswith("s_cmp") or x.startswith("s_bitcmp")][0]
            out += g[:k] + [g[k:]]
        else: out += g
    return out

def gen2(a, name="p1_kernel", ts=False, PF=1, PD=8, WP=2, TS2=0, TS3=0, DFR=12, LSPL=110, SLP=4, QSL=(4, 6, 5), XSL=3, PDW=5, GPUB=11, VERB=0, NE=6, PB=2,
         STAMPS=("start", "q", "attn", "mid", "s17")):
    XL2 = 0; PRE0 = 0; endlabel = None; SENT = 0
    a.begin_kernel(name)
    T = TS(a, ts, 0, base=72)
    def st_(nm):
        if nm in STAMPS: T.stamp(STAMPS.index(nm))
    done = a.label("fdone")
    lAttn, lRare = a.label("attn"), a.label("rarecode")
    sWV = 3
    SA, SW, SX, SO, SD = 4, 8, 12, 16, 40
    sH, sI, sT0, sT1, sT2 = 20, 21, 22, 23, 24
    sAS, sAS2, sWS, sXS, sAM, sWM, sXM, sCNT, sOK, sDS, sSC = 25, 26, 27, 28, 29, 30, 31, 32, 33, 34, 35
    sQL, sQS, sU, sOA, sAD, sWD, sOJ, sVD, sFA, sGR = 92, 93, 94, 95, 96, 97, 56, 57, 63, 99
    sKO, sVO, sW4, sW8, sTH, sT = 48, 49, 50, 51, 54, 55
    vL16 = 1
    vAO, vWO, vXO = (2, 3, 4, 5), (6, 7, 8, 9), (10, 11)
    vAR, vWR, vXR = (12, 13), tuple(range(14, 22)), (22, 23, 24)
    vGR, vGA2, GC = 25, (26, 27), 92
    QS = (28, 44); WR, NWR = 60, 8; TT, PK = 96, 104
    KS = (128, 160)
    vFO, vONE, vPFD, vTS, vW12, vPL, vPLO = 120, 121, 122, 123, 124, 125, 126
    sWS2, sOK2 = 62, 98
    QA = 128
    t2 = [0]
    def bar(waitstr):
        if TS2:
            n = t2[0]; t2[0] += 1
            if n > 0: a("v_writelane_b32 v123, s72, %d\nv_writelane_b32 v123, s74, %d" % (2 * n - 2, 2 * n - 1))
            a("s_memtime s[72:73]")
        a(waitstr + "\ns_barrier")
        if TS2: a("s_memtime s[74:75]")
    a("s_cmp_ge_u32 s2, 256\ns_cbranch_scc1 %s" % done)
    st_("start")
    a("s_load_dwordx16 s[36:51], s[0:1], 0\ns_load_dwordx8 s[52:59], s[0:1], 64\ns_load_dwordx2 s[60:61], s[0:1], 96")
    a("v_lshrrev_b32 v30, 6, v0\nv_and_b32 v0, 63, v0\nv_readfirstlane_b32 s%d, v30" % sWV)
    a("s_and_b32 s%d, s2, 7\ns_lshl_b32 s%d, s%d, 2\ns_lshr_b32 s%d, s2, 3\ns_and_b32 s%d, s%d, 3\ns_add_u32 s%d, s%d, s%d" % (sH, sH, sH, sT0, sT0, sT0, sH, sH, sT0))
    a("s_lshr_b32 s%d, s2, 5" % sI)
    a("v_lshlrev_b32 v%d, 4, v0" % vL16)
    a("v_lshrrev_b32 v30, 3, v0\nv_lshrrev_b32 v31, 4, v0\nv_and_b32 v32, 7, v0")
    a("v_xor_b32 v33, v31, v32\nv_lshlrev_b32 v33, 4, v33\nv_lshl_add_u32 v%d, v30, 10, v33" % vAO[0])
    a("v_add_u32 v%d, %d, v%d\nv_xor_b32 v33, 64, v%d\nv_add_u32 v%d, %d, v33\nv_add_u32 v%d, %d, v33" % (vAO[2], 2 * 7168, vAO[0], vAO[0], vAO[1], 7168, vAO[3], 3 * 7168))
    a("v_and_b32 v33, 15, v0\nv_lshlrev_b32 v34, 2, v31\nv_xor_b32 v33, v33, v34\nv_lshlrev_b32 v33, 4, v33\nv_lshl_add_u32 v%d, v31, 13, v33" % vWO[0])
    a("v_add_u32 v%d, %d, v%d\nv_xor_b32 v33, 32, v%d\nv_add_u32 v%d, %d, v33\nv_add_u32 v%d, %d, v33" % (vWO[1], 31744, vWO[0], vWO[0], vWO[2], 2 * 31744, vWO[3], 3 * 31744))
    a("s_sub_u32 s%d, 15, s%d\ns_bitcmp1_b32 s%d, 0\ns_cselect_b32 s%d, s%d, s%d\ns_lshl_b32 s%d, s%d, 1\ns_lshr_b32 s%d, s%d, 1\ns_add_u32 s%d, s%d, s%d" % (sT0, sI, sWV, sT0, sT0, sI, sT0, sT0, sT1, sWV, sT0, sT0, sT1))
    a("s_lshl_b32 s%d, s%d, 16\ns_add_u32 s%d, s%d, 32768" % (sAS, sT0, sAS2, sAS))
    a("s_lshl_b32 s%d, s%d, 13\ns_mov_b32 s%d, s%d" % (sAM, sWV, sWM, sAM))
    a("s_and_b32 s%d, s%d, 1\ns_lshl_b32 s%d, s%d, 18\ns_lshl_b32 s%d, s%d, 8\ns_add_u32 s%d, s%d, s%d" % (sT0, sWV, sT0, sT0, sWS, sH, sWS, sWS, sT0))
    a("s_and_b32 s%d, s2, 31\ns_add_u32 s%d, s%d, 0x20000" % (sU, sWS2, sWS))
    a("s_waitcnt lgkmcnt(0)")
    a("s_mov_b32 s100, s56\ns_mov_b32 s101, s57")
    srd(a, SA, pC, 0x200000)
    a("s_cmp_lt_u32 s%d, 2\ns_cselect_b32 s%d, s%d, s%d\ns_cselect_b32 s%d, s%d, s%d\ns_mov_b32 s%d, 0x400000\ns_mov_b32 s%d, 0x20000" % (sWV, SW, pWUK, pWUV, SW + 1, pWUK + 1, pWUV + 1, SW + 2, SW + 3))
    def dgrp(m0s, m0i, vo, srd_, so, stp, nd):
        G = ["s_add_u32 m0, s%d, %d" % (m0s, m0i)]
        G += ["buffer_load_dwordx4 v%d, s[%d:%d], s%d offen offset:%d lds ; need:%d" % (v, srd_, srd_ + 3, so, n * 1024, nd) for n, v in enumerate(vo)]
        G.append("s_add_u32 s%d, s%d, %d" % (so, so, stp))
        return G
    def fixm0(G):
        out = []
        for k, x in enumerate(G):
            out.append(x)
            if x.startswith("s_add_u32 m0"):
                if len(out) > 1 and out[-2].startswith("s_add_u32 s"): out[-1], out[-2] = out[-2], out[-1]
                else: out.append("s_nop 0")
        return out
    def dma_act(g): return fixm0(dgrp(sAM, aslot(g), vAO, SA, sAS, 128, g) + dgrp(sAM, aslot(g) + 4096, vAO, SA, sAS2, 128, g))
    def dma_w(g):
        G = dgrp(sWM, WSL[g % 2], vWO, SW, sWS, 0x80000, g)
        if g < 8: G += dgrp(sWM, WSL[g % 2] + 4096, vWO, SW, sWS2, 0x80000, g)
        else: G += dgrp(sXM, WSL[g % 2] + 16384, vXO, SX, sXS, 64 * 3072, g)
        return fixm0(G)
    for x in dma_w(0) + dma_act(0): a(x.split(";")[0])
    NSL = max(XL2 + 4 if XL2 else 0, max(QSL) + 1, XSL + 1)
    def preg(k): return 192 + 2 * k
    def pf(k): return "global_load_dword v122, %s, off" % vr(preg(k), 2)
    def pfa(k, base, vo, so, imm=0):
        r = preg(k)
        a("s_add_u32 s%d, s%d, %d\nv_mov_b32 v%d, s%d\nv_add_u32 v%d, s%d, v%d" % (sT2, so, imm, r + 1, base + 1, r, sT2, vo))
        a("v_add_co_u32 v%d, vcc, s%d, v%d\ns_nop 1\nv_addc_co_u32 v%d, vcc, 0, v%d, vcc" % (r, base, r, r + 1, r + 1))
    def pfnone(k): a("v_mov_b32 v%d, s%d\nv_mov_b32 v%d, s%d" % (preg(k), pGATE, preg(k) + 1, pGATE + 1))
    if PF:
        l1, l3, le = a.label("pf1"), a.label("pf3"), a.label("pfe")
        a("s_cmp_eq_u32 s%d, 1\ns_cbranch_scc1 %s\ns_cmp_eq_u32 s%d, 3\ns_cbranch_scc1 %s" % (sWV, l1, sWV, l3))
        a("v_and_b32 v26, 31, v0\nv_lshlrev_b32 v26, 7, v26\ns_lshl_b32 s%d, s2, 13\ns_lshl_b32 s%d, s%d, 11\ns_add_u32 s%d, s%d, s%d" % (sT0, sT1, sWV, sT0, sT0, sT1))
        pfa(0, pC, 26, sT0, 0); a(pf(0))
        pfa(XSL, pX, 26, sT0, 0)
        used = {0, XSL}
        if XL2:
            a("s_lshr_b32 s%d, s2, 3\ns_lshl_b32 s%d, s%d, 16\ns_lshl_b32 s%d, s%d, 6\ns_add_u32 s%d, s%d, s%d\nv_lshlrev_b32 v26, 10, v0" % (sT0, sT0, sT0, sT1, sWV, sT1, sT0, sT1))
            for j in range(4):
                pfa(XL2 + j, pX, 26, sT1, 256 * j); used.add(XL2 + j)
        for k in range(NSL):
            if k not in used: pfnone(k)
        a("s_branch %s\n%s:" % (le, l1))
        a("v_lshlrev_b32 v26, 13, v30\nv_lshl_add_u32 v26, v32, 7, v26")
        a("s_bitcmp1_b32 s2, 3\ns_cselect_b32 s98, s%d, s%d\ns_cselect_b32 s99, s%d, s%d" % (pWUV, pWUK, pWUV + 1, pWUK + 1))
        a("s_and_b32 s%d, s2, 7\ns_lshl_b32 s%d, s%d, 10\ns_lshr_b32 s%d, s2, 4\ns_and_b32 s%d, s%d, 7\ns_lshl_b32 s%d, s%d, 16\ns_lshl_b32 s%d, s%d, 16" % (sT1, sT1, sT1, sT0, sCNT, sT0, sT0, sT0, sCNT, sCNT))
        a("s_add_u32 s%d, s%d, s%d\ns_add_u32 s%d, s%d, s%d" % (sT0, sT0, sT1, sCNT, sCNT, sT1))
        if PRE0:
            pfnone(0); a(pf(0)); pfa(1, 98, 26, sT0, 4 * 0x80000); pfa(2, 98, 26, sT0, 6 * 0x80000); pfnone(3)
        else:
            pfa(0, 98, 26, sT0, 1 * 0x80000); a(pf(0))
            pfa(1, 98, 26, sT0, 3 * 0x80000); pfa(2, 98, 26, sT0, 5 * 0x80000); pfa(3, 98, 26, sCNT, 7 * 0x80000)
        for k in range(4, NSL): pfnone(k)
        a("s_branch %s\n%s:" % (le, l3))
        lpc = a.label("pc")
        a("s_getpc_b64 s[98:99]\n%s:" % lpc)
        a("s_lshr_b32 s%d, s2, 3\nv_lshlrev_b32 v26, 5, v0\nv_add_u32 v26, s%d, v26\nv_lshlrev_b32 v26, 7, v26\ns_mov_b32 s%d, 0" % (sT0, sT0, sT0))
        a("v_min_u32 v27, %s-%s, v26" % (lAttn, lpc))
        pfa(0, 98, 27, sT0, 0); a(pf(0))
        a("v_lshlrev_b32 v26, 13, v30\nv_lshl_add_u32 v26, v32, 7, v26")
        a("s_lshr_b32 s%d, s2, 3\ns_lshl_b32 s%d, s%d, 16\ns_and_b32 s%d, s2, 7\ns_lshl_b32 s%d, s%d, 10\ns_add_u32 s%d, s%d, s%d" % (sT0, sT0, sT0, sT1, sT1, sT1, sT0, sT0, sT1))
        pfa(QSL[0], pWQ, 26, sT0, 0); pfa(QSL[1], pWQ, 26, sT0, 4 * 0x80000)
        a("s_min_u32 s%d, s%d, 23\ns_lshl_b32 s%d, s%d, 7\ns_mul_i32 s%d, s%d, %d\ns_add_u32 s%d, s%d, s%d\nv_mul_u32_u24 v26, 3072, v0" % (sT0, sU, sT0, sT0, sT1, sI, 64 * 3072, sT0, sT0, sT1))
        pfa(QSL[2], pWQKV, 26, sT0, 0)
        for k in range(1, NSL):
            if k not in QSL: pfnone(k)
        a(le + ":")
    def pfp(p): return [pf(p + 2)] if (PF and p + 2 < NSL) else []
    srd(a, SO, pWS, WS_SIZE)
    a("s_and_b32 s%d, s%d, 3\ns_and_b32 s%d, s2, 7\ns_lshl_b32 s%d, s%d, 7" % (sT0, sH, sT1, sT1, sT1))
    a("s_lshl_b32 s%d, s%d, 5\ns_add_u32 s%d, s%d, s%d\ns_add_u32 s%d, s%d, %d" % (sT2, sT0, sT2, sT2, sT1, sT2, sT2, 2048 - 64))
    a("s_lshr_b32 s%d, s%d, 1\ns_lshl_b32 s%d, s%d, 10\ns_add_u32 s%d, s%d, s%d\ns_and_b32 s%d, s%d, 1\ns_lshl_b32 s%d, s%d, 6\ns_add_u32 s%d, s%d, s%d" % (sDS, sT0, sDS, sDS, sT1, sT1, sDS, sDS, sT0, sDS, sDS, sT1, sT1, sDS))
    a("v_and_b32 v33, 1, v31\nv_lshlrev_b32 v33, 2, v33\nv_xor_b32 v33, v33, v32\nv_mul_u32_u24 v34, 3072, v30\nv_mov_b32 v36, s%d\nv_mov_b32 v37, s%d\nv_mov_b32 v38, 0x1000000" % (sT1, sT2))
    for n in range(2):
        if n: a("v_xor_b32 v33, 2, v33\nv_add_u32 v34, %d, v34" % (24576 - 1024))
        a("v_cmp_gt_u32 vcc, 4, v33\nv_cmp_gt_u32 s[98:99], 6, v33\nv_lshl_add_u32 v35, v33, 4, v34\nv_cndmask_b32 v39, v37, v36, vcc\nv_cndmask_b32 v39, v38, v39, s[98:99]\nv_add_u32 v%d, v35, v39" % vXO[n])
    a("v_and_b32 v33, 15, v0\nv_lshrrev_b32 v34, 1, v33\nv_xor_b32 v34, v34, v31\nv_lshlrev_b32 v34, 4, v34\nv_lshl_add_u32 v34, v33, 7, v34")
    a("s_lshl_b32 s%d, s%d, 11\ns_lshl_b32 s%d, s%d, 13\ns_add_u32 s%d, s%d, s%d\ns_add_u32 s%d, s%d, %d" % (sT0, sT0, sT1, sWV, sT0, sT0, sT1, sT0, sT0, aslot(8)))
    a("v_add_u32 v%d, s%d, v34\nv_xor_b32 v%d, 64, v%d\nv_lshlrev_b32 v%d, 4, v31\nv_add_u32 v%d, %d, v%d" % (vGA2[0], sT0, vGA2[1], vGA2[0], vGR, vGR, LDS_G, vGR))
    a("s_and_b32 s%d, s%d, 1\ns_lshl_b32 s%d, s%d, 14\ns_add_u32 s%d, s%d, %d" % (sT0, sWV, sT0, sT0, sT0, sT0, aslot(0)))
    a("v_add_u32 v%d, s%d, v34\nv_xor_b32 v%d, 64, v%d" % (vAR[0], sT0, vAR[1], vAR[0]))
    a("v_lshrrev_b32 v35, 2, v0\nv_and_b32 v35, 3, v35\nv_lshl_add_u32 v36, v31, 3, v35")
    a("v_bfe_u32 v37, v0, 1, 1\nv_and_b32 v34, 1, v31\nv_lshl_add_u32 v37, v34, 1, v37\nv_and_b32 v38, 1, v0\nv_lshlrev_b32 v38, 3, v38")
    a("v_lshlrev_b32 v39, 2, v35\nv_xor_b32 v39, v39, v37\nv_lshlrev_b32 v39, 4, v39\nv_lshl_add_u32 v39, v36, 8, v39")
    a("s_lshr_b32 s%d, s%d, 1\ns_lshl_b32 s%d, s%d, 14\ns_add_u32 s%d, s%d, %d\nv_add3_u32 v39, v39, v38, s%d" % (sWD, sWV, sWD, sWD, sT0, sWD, WSL[0], sT0))
    for k in range(8): a("v_xor_b32 v%d, %d, v39" % (vWR[k], 32 * k))
    a("v_lshrrev_b32 v39, 1, v35\nv_lshlrev_b32 v39, 2, v39\nv_xor_b32 v39, v39, v37\nv_lshlrev_b32 v39, 4, v39\nv_lshl_add_u32 v39, v36, 7, v39\nv_add_u32 v39, v39, v38\nv_add_u32 v39, %d, v39" % (WSL[0] + 16384))
    for k in range(3): a("v_xor_b32 v%d, %d, v39" % (vXR[k], 32 * k))
    a("s_lshl_b32 s%d, s%d, 2\ns_add_u32 s%d, s%d, s%d\ns_sub_u32 s%d, 60, s%d\ns_add_u32 s%d, s%d, s%d" % (sT1, sI, sQS, sT1, sWV, sQL, sT1, sQL, sQL, sWV))
    a("s_lshr_b32 s%d, s%d, 1\ns_lshl_b32 s%d, s%d, 5\ns_add_u32 s%d, s%d, s%d\ns_add_u32 s%d, s%d, 44\ns_lshl_b32 s%d, s%d, 19" % (sT0, sWV, sT0, sT0, sT0, sT0, sH, sT0, sT0, sOK, sT0))
    a("s_and_b32 s%d, s%d, 1\ns_lshl_b32 s%d, s%d, 1\ns_add_u32 s%d, s%d, s%d\ns_lshl_b32 s%d, s%d, 14\ns_add_u32 s%d, s%d, s%d" % (sT0, sWV, sT1, sI, sT0, sT0, sT1, sT0, sT0, sOK, sOK, sT0))
    a("s_lshl_b32 s%d, s%d, 16\ns_sub_u32 s%d, %d, s%d" % (sT0, sI, sOJ, 60 * 8192 - 4096, sT0))
    a("s_lshl_b32 s%d, s%d, 13\ns_and_b32 s%d, s%d, 1\ns_lshl_b32 s%d, s%d, 14\ns_sub_u32 s%d, s%d, s%d\ns_add_u32 s%d, s%d, %d" % (sT0, sWV, sT1, sWV, sT1, sT1, sAD, sT0, sT1, sAD, sAD, aslot(8) - aslot(7)))
    a("s_lshl_b32 s%d, s%d, 6\nv_add_u32 v%d, s%d, v0\nv_lshlrev_b32 v%d, 12, v%d\nv_mov_b32 v%d, 1" % (sT0, sWV, vFO, sT0, vFO, vFO, vONE))
    lpc2 = a.label("pc")
    a("s_getpc_b64 s[0:1]\n%s:" % lpc2)
    a("s_lshr_b32 s%d, s2, 3\ns_lshl_b32 s%d, s%d, 2\ns_add_u32 s%d, s%d, s%d\nv_and_b32 v127, 15, v0\nv_lshlrev_b32 v127, 7, v127\nv_add_lshl_u32 v127, v127, s%d, 7" % (sT0, sT0, sT0, sT0, sT0, sWV, sT0))
    a("v_min_u32 v127, %s-%s, v127" % (endlabel or lRare, lpc2))
    srd(a, SX, pGATE, 1024)
    a("s_mov_b32 s98, s%d\ns_mov_b32 s99, s%d" % (pWO0, pWO0 + 1))
    srd(a, SD, pDBG, 256)
    a("s_mov_b32 s%d, s98\ns_mov_b32 s%d, s99" % (pWO, pWO + 1))
    a("s_getreg_b32 s%d, hwreg(HW_REG_XCC_ID, 0, 4)\ns_mul_i32 s%d, s%d, s%d\ns_lshl_b32 s%d, s%d, 8\ns_add_u32 s%d, s%d, s%d\ns_lshl_b32 s%d, s%d, 8\ns_add_u32 s%d, s%d, 1" % (sT0, sT1, sT0, sT0, sT1, sT1, sT1, sT1, sT0, sT1, sT1, sFA, sT1))
    a("v_mov_b32 v125, s%d\ns_lshl_b32 s%d, s%d, 3\ns_and_b32 s%d, s2, 7\ns_lshl_b32 s%d, s%d, 2\ns_lshl_b32 s%d, s%d, 2" % (sFA, sFA, sFA, sGR, sGR, sGR, sCNT, sH))
    a("v_and_b32 v126, 3, v0\nv_add_lshl_u32 v126, v126, s%d, 2\ns_lshl_b32 s%d, s%d, 12\nv_add_u32 v126, s%d, v126\nv_mov_b32 v124, s%d" % (sGR, sT0, sWV, sT0, sT0))
    a("buffer_atomic_add v125, v%d, s[%d:%d], s%d offen offset:128 sc1\ns_add_u32 s%d, s%d, 8192" % (vFO, SD, SD + 3, sCNT, sOK2, sOK))

    def wofs(g): return (g % 2) * 32768
    def xa(g, ks, R=vAR):
        if g == 7: return "v_add_u32 v%d, s%d, v%d" % (R[ks], sAD, R[ks])
        d = aslot(g + 1) - aslot(g)
        return ("v_add_u32 v%d, 0x%x, v%d" % (R[ks], d, R[ks])) if d > 0 else ("v_subrev_u32 v%d, 0x%x, v%d" % (R[ks], -d, R[ks]))
    def rd_act(g, ks):
        F = (KS if g < 8 else QS)[ks]
        return ["ds_read_b128 %s, v%d offset:%d" % (vr(F + 4 * n, 4), vAR[ks], n * 2048) for n in range(8 if g < 8 else 4)]
    def rd_w(g, ks, wf, slot):
        r = WR + 4 * (slot % NWR)
        if wf < 8: return ["ds_read_b64_tr_b16 %s, v%d offset:%d" % (vr(r + 2 * rd_, 2), vWR[wf], wofs(g) + ks * 8192 + rd_ * 1024) for rd_ in range(2)]
        if wf < 11: return ["ds_read_b64_tr_b16 %s, v%d offset:%d" % (vr(r + 2 * rd_, 2), vXR[wf - 8], wofs(g) + ks * 4096 + rd_ * 512) for rd_ in range(2)]
        return ["ds_read_b128 %s, v%d offset:%d" % (vr(r, 4), vGR, ((g - 8) * 2 + ks) * 64), "ds_read_b128 %s, v%d" % (vr(GC, 4), vGA2[ks])] + ([xa(g, ks, vGA2)] if g < 15 else [])
    def mfs(g, ks, wf, slot, var):
        w = vr(WR + 4 * (slot % NWR), 4); F = (KS if g < 8 else QS)[ks]; first = (g % 8 == 0 and ks == 0)
        cb, tc = (wf % 8) // 2, wf % 2
        if wf == 11: return ["%s a[48:51], %s, %s, %s" % (MF16, w, vr(GC, 4), "0" if first else "a[48:51]")]
        M = []
        for n in range(8 if g < 8 else 4):
            rb, tr = n // 2, n % 2
            x = vr(F + 4 * n, 4)
            sw = (var == "V") or wf == 10
            tb, ta = (tc, tr) if sw else (tr, tc)
            if g < 8: acc = ar(((rb // 2) * 16 + cb * 4 + (rb % 2) * 2 + tb) * 8 + ta * 4, 4)
            elif wf < 8: acc = vr(QA + ((rb * 4 + cb) * 2 + tr) * 8 + tc * 4, 4)
            elif wf < 10: acc = ar(n * 8 + tc * 4, 4)
            else: acc = ar(32 + n * 4, 4)
            M.append("%s %s, %s, %s, %s" % (MF16, acc, x if sw else w, w if sw else x, "0" if first else acc))
        return M
    def order(g, var):
        nw = list(range(8 if g < 8 else 12))
        if g == 7: return [(ks, 2 * cb + t) for cb in range(4) for ks in range(2) for t in range(2)]
        if g == 15:
            return [(ks, wf) for ks in range(2) for wf in (8, 9, 10, 0, 1, 11)] + [(ks, 2 * cb + t) for cb in range(1, 4) for ks in range(2) for t in range(2)]
        return [(ks, wf) for ks in range(2) for wf in nw]
    def build(g0, var):
        fr = [(g, ks, wf) for g in range(g0, g0 + 8) for (ks, wf) in order(g, var)]
        M = []; fm = []
        for k, (g, ks, wf) in enumerate(fr):
            fm.append(len(M)); M += mfs(g, ks, wf, k, var)
        S_ = Sched(M); n = len(M)
        look = [(8, 0, wf) for wf in range(PDW)] if g0 == 0 else []
        allf = fr + look
        cs = {};
        for k, (g, ks, wf) in enumerate(allf): cs.setdefault(g, k)
        bar_m = {g: fm[cs[g] - PDW + 1] for g in cs if g > g0}
        for g, m in bar_m.items(): S_.bars[m] = g
        na = 8 if g0 == 0 else 4
        items = []
        for k in range(PDW, len(allf)):
            g, ks, wf = allf[k]
            t = fm[k - PDW]; e = bar_m.get(g, 0); use = fm[k] if k < len(fr) else n + 1 + (k - len(fr))
            if k == cs[g] and g == 8: items += [(max(t, e), 0, j, ("v_subrev_u32 v%d, s%d, v%d" % (r, sWD, r), t, e, None)) for j, r in enumerate(vWR)]
            items += [(max(t, e), 1 if k == cs[g] else 3, 4 * k + j, (x, t, e, use if x.startswith("ds_") else None)) for j, x in enumerate(rd_w(g, ks, wf, k))]
        for g in cs:
            for ks in range(2):
                if g == g0 and ks == 0: continue
                if g == 8 and g0 == 0 and ks == 1: continue
                R = rd_act(g, ks) + ([xa(g, ks)] if g < 15 else [])
                k1 = [k for k, f in enumerate(allf) if f[0] == g and f[1] == ks][0]
                u0 = fm[k1] if k1 < len(fr) else None
                for j, x in enumerate(R):
                    if ks == 0: t = e = bar_m[g]
                    else:
                        e = fm[cs[g]]; t = e + (j * min(u0 - e - 8, 40)) // len(R)
                    use = None if not x.startswith("ds_") else (u0 + j if u0 is not None else n)
                    items.append((max(t, e), 2, j, (x, t, e, use)))
        items.sort(key=lambda z: z[:3])
        S_.rq = [z[3] for z in items]
        S_.waitpts = [fm[k] for k in range(0, len(fr), 2)]
        S_.place_reads()
        return S_, {g: fm[cs[g]] for g in range(g0, g0 + 8)}, bar_m, fm
    def pack(areg, pk, scale=None):
        t = TT
        G = ["v_accvgpr_read_b32 v%d, a%d" % (t + j, areg + j) for j in range(8)]
        if scale is not None: G += ["v_mul_f32 v%d, s%d, v%d" % (t + j, scale, t + j) for j in range(8)]
        G += ["v_cvt_pk_bf16_f32 v%d, v%d, v%d" % (pk + j, t + 2 * j, t + 2 * j + 1) for j in range(4)]
        return G
    def kv_unit(j, nd=None):
        cb, rb, tb = (j % 16) // 4, (j // 2) % 2, j % 2
        pk = PK + 4 * (j % 4)
        G = pack(j * 8, pk) + ["buffer_store_dwordx4 %s, v%d, s[%d:%d], s%d offen offset:%d%s" % (vr(pk, 4), vL16, SO, SO + 3, (sOK, sOK2)[rb], (cb % 2) * 2048 + tb * 1024, " ; need:%d" % nd if nd else "")]
        if j == 15: G += ["s_add_u32 s%d, s%d, s%d" % (sOK, sOK, sOJ), "s_add_u32 s%d, s%d, s%d" % (sOK2, sOK2, sOJ)]
        elif j % 16 == 7: G += ["s_add_u32 s%d, s%d, 4096" % (sOK, sOK), "s_add_u32 s%d, s%d, 4096" % (sOK2, sOK2)]
        return G
    qa_setup = [["s_mov_b32 s%d, s%d" % (SA, pX), "s_mov_b32 s%d, s%d" % (SA + 1, pX + 1),
                 "s_lshl_b32 s%d, s%d, 15" % (sAS, sQL), "s_lshl_b32 s%d, s%d, 15" % (sAS2, sQS)]]
    qw_setup = [["s_mov_b32 m0, %d" % LDS_G, "s_mov_b32 s%d, s%d" % (SW, pWQ), "buffer_load_dwordx4 v%d, s[%d:%d], 0 offen lds ; need:8" % (vL16, SX, SX + 3), "s_mov_b32 s%d, s%d" % (SW + 1, pWQ + 1)],
                ["s_lshl_b32 s%d, s%d, 17" % (sT0, sWV), "s_lshl_b32 s%d, s%d, 8" % (sWS, sH), "s_add_u32 s%d, s%d, s%d" % (sWS, sWS, sT0), "s_lshl_b32 s%d, s%d, 12" % (sWM, sWV)],
                ["s_mov_b32 s%d, s%d" % (SX, pWQKV), "s_mov_b32 s%d, s%d" % (SX + 1, pWQKV + 1), "s_lshl_b32 s%d, s%d, 11" % (sXM, sWV), "s_mul_i32 s%d, s%d, %d" % (sXS, sWV, 16 * 3072)],
                ["s_mov_b32 s%d, 0x180000" % (SX + 2)]]
    at_setup = [["v_cmp_ne_u32 vcc, s%d, v125" % sFA], ["s_cmp_eq_u64 vcc, 0", "s_cselect_b32 s%d, 1, s%d" % (sFA, sWV)],
                ["s_cmp_eq_u32 s%d, 0" % sWV, "s_cselect_b32 s46, 8, 0", "s_cselect_b32 s47, 0x80000000, 0"],
                ["s_lshl_b32 s%d, s%d, 12" % (sW4, sWV), "s_lshl_b32 s%d, s%d, 13" % (sW8, sWV), "s_lshl_b32 s%d, s%d, 19" % (sT0, sH)],
                ["s_lshl_b32 s%d, s%d, 15" % (sVD, sI), "s_add_u32 s%d, s%d, s%d" % (sT0, sT0, sVD)],
                ["s_add_u32 s%d, s%d, 0x%x" % (sKO, sT0, OFF_K), "s_add_u32 s%d, s%d, 0x%x" % (sVO, sT0, OFF_V), "s_mov_b32 s%d, %s" % (sTH, THRESH)]]
    sRA, sHP, sA0, sA1, sGB, sGA_, sGL_, sGS_, sP0, sP1_, sX0, sX1 = 36, 37, 38, 39, 64, 65, 66, 67, 68, 69, 70, 71
    sXO, sXR = 62, 95
    sFG, sFX, sRBK, sTIL = 96, 97, 60, 61
    late_setup = [["s_lshr_b32 s%d, s%d, 3" % (sX1, sH), "s_lshl_b32 s%d, s%d, 3" % (sFG, sX1), "s_add_u32 s%d, s%d, s%d" % (sFG, sFG, sI), "s_lshl_b32 s%d, s%d, 5" % (sFG, sFG),
                 "s_and_b32 s%d, s%d, 7" % (sX0, sH), "s_add_u32 s%d, s%d, s%d" % (sFG, sFG, sX0), "s_lshl_b32 s%d, s%d, 2" % (sFG, sFG), "s_add_u32 s%d, s%d, 0x%x" % (sFG, sFG, OFF_FL),
                 "s_sub_u32 s%d, 15, s%d" % (sX0, sI)], ["s_bitcmp1_b32 s2, 0", "s_cselect_b32 s%d, s%d, s%d" % (sRBK, sX0, sI)], ["s_lshl_b32 s%d, s%d, 2" % (sFX, sRBK),
                 "s_and_b32 s%d, s%d, 3" % (sX0, sH), "s_add_u32 s%d, s%d, s%d" % (sTIL, sFX, sX0), "s_lshl_b32 s%d, s%d, 5" % (sFX, sTIL), "s_add_u32 s%d, s%d, s%d" % (sFX, sFX, sX1),
                 "s_lshl_b32 s%d, s%d, 2" % (sFX, sFX), "s_add_u32 s%d, s%d, 0x%x" % (sFX, sFX, OFF_FL + 32 * 128)],
        ["s_bitcmp1_b32 s%d, 1" % sH, "s_cselect_b32 s%d, s%d, s%d" % (sRA, sQL, sQS)],
        ["s_and_b32 s%d, s%d, 1" % (sHP, sH), "s_lshr_b32 s%d, s%d, 1" % (sX0, sGR), "s_add_u32 s%d, s%d, s%d" % (sHP, sHP, sX0), "s_lshl_b32 s%d, s%d, 11" % (sGB, sGR), "s_add_u32 s%d, s%d, 0x%x" % (sGB, sGB, OFF_G)]]
    for d_, blk in ((sGA_, sRA), (sGL_, sQL), (sGS_, sQS)): late_setup.append(["s_lshl_b32 s%d, s%d, 7" % (d_, blk), "s_add_u32 s%d, s%d, s%d" % (d_, d_, sGB)])
    late_setup += [["s_lshr_b32 s%d, s%d, 2" % (sX0, sHP), "s_lshl_b32 s%d, s%d, 19" % (sX0, sX0), "s_and_b32 s%d, s%d, 3" % (sX1, sHP), "s_lshl_b32 s%d, s%d, 11" % (sX1, sX1),
         "s_add_u32 s%d, s%d, s%d" % (sX0, sX0, sX1), "s_lshl_b32 s%d, s%d, 13" % (sX1, sRA), "s_add_u32 s%d, s%d, s%d" % (sA0, sX0, sX1),
         "s_max_u32 s%d, s%d, 1" % (sX1, sRA), "s_sub_u32 s%d, s%d, 1" % (sX1, sX1), "s_lshl_b32 s%d, s%d, 13" % (sX1, sX1), "s_add_u32 s%d, s%d, s%d" % (sA1, sX0, sX1),
         "s_add_u32 s%d, s%d, %d" % (sA1, sA1, 4 * PH),
         "s_lshr_b32 s%d, s2, 3" % sX0, "s_lshl_b32 s%d, s%d, 2" % (sX0, sX0), "s_add_u32 s%d, s%d, s%d" % (sX0, sX0, sWV), "s_and_b32 s%d, s2, 6" % sX1,
         "s_lshl_b32 s%d, s%d, 6" % (sX1, sX1), "s_add_u32 s%d, s%d, s%d" % (sX0, sX0, sX1), "s_lshl_b32 s%d, s%d, 6" % (sP0, sX0), "s_lshl_b32 s%d, s%d, 3" % (sP1_, sX0),
         "s_mul_i32 s%d, s%d, %d" % (sXO, sTIL, 4 * 49152), "s_add_u32 s%d, s%d, s%d" % (sXO, sXO, sW4), "s_add_u32 s%d, s%d, 0x%x" % (sXO, sXO, OFF_X),
         "s_lshr_b32 s%d, s%d, 3" % (sXR, sH), "s_mul_i32 s%d, s%d, 49152" % (sXR, sXR), "s_add_u32 s%d, s%d, s%d" % (sXR, sXR, sXO),
         "s_add_u32 s%d, s%d, %d" % (sX0, sA0, 4 * PH), "s_add_u32 s%d, s%d, %d" % (sX1, sA0, 8 * PH), "s_add_u32 s%d, s%d, %d" % (sGB, sA1, 4 * PH)]]
    def ren(G, mp): return [[_re.sub(r"\bs(\d+)\b", lambda m_: "s%d" % mp.get(int(m_.group(1)), int(m_.group(1))), x) for x in g] for g in G]
    early = ren(late_setup[:3], {sFG: 64, sFX: 65})
    early += [["v_mov_b32 v28, 0", "v_min_u32 v29, 1, v%d" % vFO, "v_lshlrev_b32 v29, 29, v29", "buffer_store_dword v28, v29, s[%d:%d], s64 offen sc1" % (SO, SO + 3)]]
    if SENT:
        early += [["s_lshl_b32 s66, s%d, 2" % sTIL, "s_add_u32 s66, s66, s%d" % sX1, "s_mul_i32 s66, s66, 49152", "s_lshl_b32 s67, s%d, 12" % sWV, "s_add_u32 s66, s66, s67", "s_add_u32 s66, s66, 0x%x" % OFF_X]]
        early += [["v_mov_b32 v%d, -1" % r for r in range(32, 36)]]
        for j in range(3):
            early += [["buffer_store_dwordx4 v[32:35], v%d, s[%d:%d], s66 offen offset:%d sc1" % (vL16, SO, SO + 3, c * 1024) for c in range(2)] + ["s_add_u32 s66, s66, 16384"]]
    else: early += [["buffer_store_dword v28, v29, s[%d:%d], s65 offen sc1" % (SO, SO + 3)]]
    SK, SV = SO, SO
    vK, vV = vL16, 2
    def dma(which, typ, par, srd_=None):
        so, sr_, base = (sKO, SK, 0) if which == "K" else (sVO, SV, 65536)
        if srd_ is not None: sr_ = srd_
        sw = sW4 if typ == 1 else sW8
        G = []
        for q in range(typ):
            g = ["s_add_u32 m0, s%d, %d" % (sw, base + par * 32768 + q * 4096)]
            g.append("s_add_u32 s%d, s%d, s%d" % (sDS, so, sw) if q == 0 else "s_add_u32 s%d, s%d, 4096" % (sDS, sDS))
            G.append(g)
            for o in range(4):
                G.append(["buffer_load_dwordx4 v%d, s[%d:%d], s%d offen offset:%d sc1 lds" % (vK, sr_, sr_ + 3, sDS, o * 1024)])
        return G
    def adv(which, typ):
        so = sKO if which == "K" else sVO
        if which == "V" and typ == 1: return ["s_add_u32 s%d, s%d, s%d" % (so, so, sVD), "s_movk_i32 s%d, 0x4000" % sVD]
        return ["s_add_u32 s%d, s%d, %d" % (so, so, 16384 * typ)]
    spins = []
    vF1, vFA, vPO = 122, 251, 250
    sP1, sG1, sG2 = 45, 46, 47
    def poll_load(kind):
        if kind == 1: return "buffer_load_dword v%d, v124, s[%d:%d], s%d offen sc1" % (vF1, SD, SD + 3, sCNT)
        if kind == 4: return "buffer_load_dword v195, v192, s[%d:%d], s%d offen sc1" % (SO, SO + 3, sG2)
        if kind == 3: return "buffer_load_dword v%d, v13, s[%d:%d], 0 offen offset:128 sc1" % (vFA, SD, SD + 3)
        return "buffer_load_dword v%d, v%d, s[%d:%d], 0 offen offset:128 sc1" % (vFA, vPO, SD, SD + 3)
    def poll_cmp(kind): return "v_cmp_gt_u32 vcc, s%d, v%d" % ((sG1, vF1) if kind == 1 else (sG2, vFA) if kind < 4 else (sG1, 195))
    def poll_check(kind):
        ls, lb = a.label("spin"), a.label("spun")
        a("%s\ns_cbranch_vccnz %s\n%s:" % (poll_cmp(kind), ls, lb))
        spins.append((ls, lb, kind))
    rels = []
    def release():
        ls, lb = a.label("rel"), a.label("reld")
        a("s_cmp_eq_u32 s%d, 0\ns_cbranch_scc1 %s\n%s:" % (sFA, ls, lb))
        rels.append((ls, lb))

    st_("setup")
    bar("s_waitcnt vmcnt(%d)" % ((2 if PF else 1)))
    st_("bar0")

    pre0 = rd_w(0, 0, 0, 0) + rd_act(0, 0) + [x for k in range(1, PDW) for x in rd_w(0, 0, k, k)]
    use0 = [0, 0] + list(range(8)) + [8 * k for k in range(1, PDW) for _ in range(2)]
    for x in pre0: a(x)
    a(xa(0, 0))
    lV = a.label("kvV"); lQ = a.label("qphase")
    a("s_cmp_ge_u32 s%d, 2\ns_cbranch_scc1 %s" % (sWV, lV))
    NKV = 12
    CRL = "global_load_dword v122, v127, s[0:1]"
    for var in ("K", "V"):
        if var == "V": a(lV + ":")
        t2[0] = 1
        S_, cm, bm, fm = build(0, var)
        S_.place(dma_w(1) + dma_act(1), 0, 56)
        S_.place(dma_act(2) + pfp(-1), 56, bm[1] - 2)
        for g in range(1, 9):
            b = bm[g]; e = bm.get(g + 1, S_.n + 96)
            Wn = (soft(qw_setup) if g == 7 else []) + dma_w(g + 1) + pfp(g - 1)
            if g in (3, 5, 7): Wn = Wn + [CRL]
            if g == 6: Wn = ["buffer_load_dword v125, v126, s[%d:%d], 0 offen offset:128 sc1 ; need:7" % (SD, SD + 3)] + Wn
            S_.place(Wn, b, b + (44 if g < 8 else 31))
            if g < 8: S_.place((flat(qa_setup) if g == 6 else []) + dma_act(g + 2) + (soft(at_setup) if g == 7 else []), b + 44, e - 8)
        S_.place(soft(early), bm[3], bm[6])
        for cb in range(3):
            S_.place([x for j in range(4 * cb, 4 * cb + 4) for x in kv_unit(j, GPUB)], cm[7] + 32 * cb + 38, cm[7] + 32 * cb + 70 if cb < 2 else S_.n)
        vmh = S_.emit(a, bar, use0, [])
        left = S_.left; nkv = S_.n
        if VERB: print("KV over", S_.over)
        if var == "K": a("s_branch %s" % lQ)
    a(lQ + ":")
    st_("q")
    use8 = [0 if u == nkv else 4 * (u - nkv - 1) for u in left]
    t2[0] = 9
    S_, cm, bm, fm = build(8, "Q")
    per = cm[9] - cm[8]
    S_.place(dma_act(10), 0, bm[9] - 6)
    for g in range(9, 16):
        b = bm[g]; e = bm.get(g + 1, S_.n)
        Wn = dma_w(g + 1) if g < 15 else flat(dma("K", 1, 0) + [adv("K", 1)] + dma("K", 1, 1)) + [poll_load(1) + " ; need:16"]
        if g == GPUB:
            S_.hooks[g] = release
            Wn = Wn + ["buffer_atomic_add v%d, v%d, s[%d:%d], s%d offen sc1" % (vONE, vFO, SD, SD + 3, sCNT)]
        if g in (9, 11, 13): Wn = Wn + [CRL]
        S_.place(Wn, b, b + 34)
        S_.place(dma_act(g + 2) if g + 2 < 16 else [], b + 34, e - 6)
    S_.place(soft(late_setup), cm[10], cm[14])
    zero = lambda lo, hi: ["v_accvgpr_write_b32 a%d, 0" % r for r in range(lo, hi)]
    S_.place([x for j in range(NKV, 16) for x in kv_unit(j, GPUB)], 8, cm[9] + per // 2)
    S_.place([x for j in range(16, 32) for x in kv_unit(j)] + zero(52, 128), cm[9] + per // 2, cm[15] + 20)
    hd = ["s_and_b32 s%d, s%d, 1" % (sT0, sH), "s_lshr_b32 s%d, s%d, 1" % (sT1, sGR), "s_add_u32 s%d, s%d, s%d" % (sT0, sT0, sT1),
          "s_and_b32 s%d, s%d, 2" % (sT2, sH), "s_lshl_b32 s%d, s%d, 20" % (sAS, sT2), "s_lshr_b32 s%d, s%d, 1" % (sT2, sT2), "s_add_u32 s%d, s%d, s%d" % (sT1, sT1, sT2),
          "s_lshr_b32 s%d, s%d, 2" % (sT2, sT0), "s_lshl_b32 s%d, s%d, 19" % (sT2, sT2), "s_add_u32 s%d, s%d, s%d" % (sAS, sAS, sT2), "s_and_b32 s%d, s%d, 3" % (sT0, sT0), "s_lshl_b32 s%d, s%d, 11" % (sT0, sT0),
          "s_add_u32 s%d, s%d, s%d" % (sAS, sAS, sT0),
          "s_lshr_b32 s%d, s%d, 2" % (sT2, sT1), "s_add_u32 s%d, s%d, 8" % (sT2, sT2), "s_lshl_b32 s%d, s%d, 19" % (sAS2, sT2), "s_and_b32 s%d, s%d, 3" % (sT1, sT1), "s_lshl_b32 s%d, s%d, 11" % (sT1, sT1),
          "s_add_u32 s%d, s%d, s%d" % (sAS2, sAS2, sT1), "s_and_b32 s%d, s%d, 1" % (sT0, sH), "s_lshl_b32 s%d, s%d, 10" % (sT0, sT0), "s_add_u32 s%d, s%d, s%d" % (sAS2, sAS2, sT0),
          "s_lshl_b32 s%d, s%d, 13" % (sT0, sQL), "s_lshl_b32 s%d, s%d, 13" % (sT1, sQS),
          "s_add_u32 s%d, s%d, s%d" % (sWS, sAS, sT0), "s_add_u32 s%d, s%d, s%d" % (sXS, sAS, sT1), "s_add_u32 s%d, s%d, s%d" % (sAM, sAS2, sT0), "s_add_u32 s%d, s%d, s%d" % (sWM, sAS2, sT1),
          ["s_bitcmp1_b32 s%d, 1" % sH, "s_cselect_b32 s%d, 1.0, %s" % (sSC, fbits(LOG2E * 0.25)), "s_cselect_b32 s%d, s%d, s%d" % (sXM, sGS_, sGL_)],
          "s_and_b32 s%d, s%d, 1" % (sT0, sH), "s_lshl_b32 s%d, s%d, 6" % (sT0, sT0), "s_add_u32 s%d, s%d, s%d" % (sXM, sXM, sT0)]
    AE = []
    for j in range(6):
        pk = PK + 4 * (j % 4)
        so, off = ((sWS, sXS)[j // 2], (j % 2) * 1024) if j < 4 else ((sAM, sWM)[j - 4], 0)
        AE += pack(j * 8, pk, sSC if j < 4 else None) + ["buffer_store_dwordx4 %s, v%d, s[%d:%d], s%d offen offset:%d" % (vr(pk, 4), vL16, SO, SO + 3, so, off)]
    AE += ["v_accvgpr_read_b32 v%d, a48" % TT, "v_and_b32 v%d, 15, v0" % (TT + 1), "v_mul_f32 v%d, %s, v%d" % (TT, fbits(-LOG2E), TT), "v_exp_f32 v%d, v%d" % (TT, TT), "v_lshlrev_b32 v%d, 2, v%d" % (TT + 1, TT + 1),
           "v_add_f32 v%d, 1.0, v%d" % (TT, TT), "v_rcp_f32 v%d, v%d" % (TT, TT), "s_nop 0", "buffer_store_dword v%d, v%d, s[%d:%d], s%d offen" % (TT, TT + 1, SO, SO + 3, sXM)]
    S_.place(hd, bm[15] + 2, cm[15] + 38)
    room = S_.room(cm[15] + 40, S_.n) - 8
    S_.place(AE[:room], cm[15] + 40, S_.n); tail = AE[room:]
    vm2 = S_.emit(a, bar, use8, vmh)
    if VERB: print("Q over", S_.over, "tail", len(tail))
    for x in tail: a(x)
    a("s_waitcnt vmcnt(%d)" % (len(vm2) - 1 - max(k for k, nd in enumerate(vm2) if nd == 16) + sum(1 for x in tail if isvm(x))))
    a(lAttn + ":")
    st_("attn")
    vU = 3; vL = (4, 5, 6, 7); vG = (8, 9, 14, 15); vX = 10
    S = (16, 80); P = (144, 176); NM, LT, TM, ONES = 208, 224, 240, 252
    vT8, vNEG = 248, 249
    O, Q, FR, NFR = 0, 128, 192, 16
    ms = (26, 28, 30, 4)
    def kfrag(p, kb, s): return ("K", p * 32768 + (kb // 2) * 8192 + s * 2048 + (kb % 2) * 1024)
    def vfrag(p, kp, dt): return ("V", p * 32768 + kp * 8192 + dt * 1024)
    def rd(slot, fr): return "ds_read_b128 %s, v%d offset:%d" % (ar(FR + 4 * (slot % NFR), 4), vK if fr[0] == "K" else vV, fr[1])
    def pvm(Pp, nq, kp, dt): return ["%s %s, {F}, %s, %s" % (MF16, ar(O + (qb * 8 + dt) * 4, 4), vr(Pp + (kp * nq + qb) * 4, 4), ar(O + (qb * 8 + dt) * 4, 4)) for qb in range(nq)]
    def mf_list(p, pv, qk):
        L = []; Pp = P[1 - p]; Sn = S[1 - p]
        if pv in (1, 2):
            nq = 4 // pv
            L += [(vfrag(1 - p, kp, dt), pvm(Pp, nq, kp, dt)) for kp in range(2 * pv) for dt in range(8)]
        elif pv == 3:
            L += [(("K", vfrag(1, kp, dt)[1]), pvm(Pp, 2, kp, dt)) for dt in range(8) for kp in range(4)]
        if qk:
            nq = 4 // qk
            for kb in range(4 * qk):
                for s in range(4):
                    ms_ = []
                    for qb in range(nq):
                        d = vr(Sn + ((kb // 2) * nq + qb) * 8 + (kb % 2) * 4, 4)
                        ms_.append("%s %s, {F}, %s, %s" % (MF16, d, ar(Q + (qb * 4 + s) * 4, 4), d if s else vr(NM + qb * 4, 4)))
                    L.append((kfrag(1 - p, kb, s), ms_))
        return L
    def ex(p, n): return "v_exp_f32 v%d, v%d" % (TM + n % 8, S[p] + n)
    def cv(p, j): return "v_cvt_pk_bf16_f32 v%d, v%d, v%d" % (P[p] + j, TM + (2 * j) % 8, TM + (2 * j) % 8 + 1)
    def summ(p, sm, q):
        nq = 4 // sm; d = vr(LT + (q % nq) * 4, 4)
        return "%s %s, %s, %s, %s" % (MF16, d, vr(ONES, 4), vr(P[p] + 4 * q, 4), d if q >= nq else "0")
    def chks(sm):
        c = ["v_max3_f32 v%d, v%d, v%d, v%d" % (vX, LT, LT + 4, LT + 8), "v_max_f32 v%d, v%d, v%d" % (vX, vX, LT + 12)] if sm == 1 else ["v_max_f32 v%d, v%d, v%d" % (vX, LT, LT + 4)]
        return c + ["v_cmp_lt_f32 vcc, s%d, v%d" % (sTH, vX)]
    rare = {}
    def step(p, pv, sm, qk, dK, dV, pre_in=True, pre_out=True, extra_vm=None, chk=0, last16=False, staged=None, trail=None, vm_first=False):
        L = mf_list(p, pv, qk); nf = len(L)
        nxt = [x[0] for x in mf_list(1, 3, 0)][:PD] if last16 else [vfrag(p, kp, dt) for kp in range(2) for dt in range(8)][:PD]
        M0 = [(f, t) for f, (fr, ts_) in enumerate(L) for t in ts_]
        nb = len(M0); M = []; spos = []
        endm = nb - 13
        ins = {((q + 1) * endm) // 8 + 3: q for q in range(8)} if sm else {}
        for m, it in enumerate(M0):
            M.append(it)
            if m in ins: spos.append(len(M)); M.append((it[0], summ(p, sm, ins[m])))
        nm = len(M)
        G = []
        if dV: G += dma("V", dV, p) + [adv("V", dV)]
        if dK: G += dma("K", dK, p) + [adv("K", dK)]
        ntr = sum(1 for x in flat(trail or []) if isvm(x))
        G = ((extra_vm or []) + G if vm_first else G + (extra_vm or [])) + (trail or [])
        firstm = {}
        for m, (f, t) in enumerate(M): firstm.setdefault(f, m)
        barf = nf + 1 - PD
        if barf % WP: barf += WP - barf % WP
        if not pre_out or last16: barf = nf + 99
        Gp = Gaps([12] * (nm - 1) + [4])
        sR = Gp.newstream(); pre = None
        allfr = [x[0] for x in L] + (nxt if pre_out else [])
        nrd = PD
        for f in range(nf):
            m = firstm[f]; w_ = None
            if f == barf: w_ = ["s_BARW", "s_BAR"]
            elif f < barf and f % WP == 0: w_ = ["s_waitcnt lgkmcnt(%d)" % max(0, nrd - 1 - min(f + WP - 1, nf - 1))]
            if w_ and m == 0: pre = w_
            elif w_:
                for x in w_: Gp.add(m - 1, sR, x)
            want = min(f + PD, len(allfr) - 1)
            if f < barf and not last16: want = min(want, nf - 1)
            k = m
            while nrd <= want and k < m + 2:
                Gp.add(k, sR, rd(nrd, allfr[nrd])); nrd += 1; k += 1
        assert nrd == len(allfr), (nrd, len(allfr))
        hiD = min(max(2 * len(G), (nm * DFR) // 16), firstm[barf] - 8 if barf < nf else nm)
        Gp.place(flat(G), 1, hiD, slack=40)
        if sm:
            pe = []; lo = 0
            for q in range(8):
                hi = spos[q] - 3
                pe += Gp.place([ex(p, n) for n in range(8 * q, 8 * q + 8)], lo, hi, slack=16, ahead=8); lo = hi
            sC = Gp.newstream(); k = 0
            for j in range(32):
                k = max(k, pe[2 * j + 1] + 1)
                dl = min(pe[2 * j + 8] - 1 if 2 * j + 8 < 64 else nm, spos[j // 4] - 3)
                assert k <= dl, (j, k, dl)
                cand = [z for z in range(k, dl + 1) if gcost(Gp.g[z] + [(sC, cv(p, j))]) <= Gp.cap[z]]
                k = cand[0] if cand else min(range(k, dl + 1), key=lambda z: gcost(Gp.g[z]))
                Gp.add(k, sC, cv(p, j))
            Gp.place(chks(sm), nm - 3, nm - 1)
        for (lst, lo, hi) in (staged or []): Gp.place(lst, lo, hi)
        if VERB: print("step", p, pv, sm, qk, "gaps", nm, "over", Gp.over())
        if not pre_in:
            for f in range(PD): a(rd(f, L[f][0]))
        for x in pre or []: a(x)
        for m, (f, t) in enumerate(M):
            a(t.replace("{F}", ar(FR + 4 * (f % NFR), 4)))
            for x in Gp.out(m):
                if x == "s_BARW": continue
                if x == "s_BAR":
                    if TS3: a("s_mov_b32 m0, s76\ns_add_u32 s76, s76, 1\nv_writelane_b32 v11, s72, m0\ns_mov_b32 m0, s76\ns_add_u32 s76, s76, 1\nv_writelane_b32 v11, s74, m0\ns_memtime s[72:73]")
                    a("s_waitcnt vmcnt(%d) lgkmcnt(0)" % ntr)
                    if chk: poll_check(chk)
                    a("s_barrier")
                    if TS3: a("s_memtime s[74:75]\ns_waitcnt lgkmcnt(0)")
                else: a(x)
        assert nf % NFR == 0
        if sm:
            key = (p, sm, qk if qk else sm)
            if key not in rare: rare[key] = (a.label("rare"), [])
            lb = a.label("back"); lj = a.label("jr")
            rare[key][1].append((lj, lb))
            a("s_cbranch_vccnz %s\n%s:" % (lj, lb))
            for qb in range(4 // sm): a("v_add_f32 v%d, v%d, v%d" % (vL[qb], vL[qb], LT + 4 * qb))
    def qregs(base, typ, qb):
        nq = 4 // typ
        return [base + (kp * nq + qb) * 8 + j for kp in range(2 * typ) for j in range(8)]
    def maxtree(dst, R):
        L = ["v_max3_f32 v%d, v%d, v%d, v%d" % (dst, R[0], R[1], R[2])]; j = 3
        while j + 1 < len(R):
            L.append("v_max3_f32 v%d, v%d, v%d, v%d" % (dst, dst, R[j], R[j + 1])); j += 2
        if j < len(R): L.append("v_max_f32 v%d, v%d, v%d" % (dst, dst, R[j]))
        return L
    def xlane(op, D, Tm):
        L = []
        for sw in ("v_permlane16_swap_b32", "v_permlane32_swap_b32"):
            L += ["v_mov_b32 v%d, v%d" % (t, d) for d, t in zip(D, Tm)]
            if len(D) < 3: L.append("s_nop %d" % (2 - len(D)))
            L += ["%s v%d, v%d" % (sw, d, t) for d, t in zip(D, Tm)]
            L += ["%s v%d, v%d, v%d" % (op, d, d, t) for d, t in zip(D, Tm)]
        return L
    def mask(base, blocks, pad=True):
        if pad: a("s_nop 7")
        for (r0, kb) in blocks:
            r0 += base
            lf = a.label("mfull"); le_ = a.label("mend")
            a("s_cmp_gt_u32 s%d, %d\ns_cbranch_scc1 %s" % (sWV, kb, le_))
            for r in range(4): a("v_mov_b32 v%d, v%d" % (r0 + 4 + r, vNEG))
            if kb > 0: a("s_cmp_lt_u32 s%d, %d\ns_cbranch_scc1 %s" % (sWV, kb, lf))
            for r in range(4): a("v_cmp_gt_i32 s[%d:%d], %d, v%d" % (ms[r], ms[r] + 1, r, vU))
            for t in (0, 12):
                for r in range(4): a("v_cndmask_b32 v%d, v%d, v%d, s[%d:%d]" % (r0 + t + r, r0 + t + r, vNEG, ms[r], ms[r] + 1))
            if kb > 0:
                a("s_branch %s\n%s:" % (le_, lf))
                for r in list(range(4)) + list(range(8, 16)): a("v_mov_b32 v%d, v%d" % (r0 + r, vNEG))
            a(le_ + ":")
    poll_check(1)
    bar("s_nop 0")
    if TS2:
        a("s_waitcnt lgkmcnt(0)"); bar("s_nop 0")
        a("s_lshl_b32 s78, s2, 2\ns_add_u32 s78, s78, s%d\ns_lshl_b32 s78, s78, 8\ns_add_u32 s78, s78, 0x%x\nv_lshlrev_b32 v122, 2, v0" % (sWV, OFF_TS + 0x80000))
        a("buffer_store_dword v123, v122, s[%d:%d], s78 offen\ns_waitcnt vmcnt(0)" % (SO, SO + 3))
    a("s_mov_b32 s%d, %s" % (sSC, fbits(LOG2E / math.sqrt(128.0))))
    fr0 = [kfrag(0, kb, s) for s in range(4) for kb in range(4)]
    for f in range(12): a(rd(f, fr0[f]))
    def qepi(cb):
        G = []
        for qb in range(4):
            src = QA + (((qb // 2) * 4 + cb) * 2 + qb % 2) * 8
            G += ["v_mul_f32 v%d, s%d, v%d" % (src + j, sSC, src + j) for j in range(8)]
            G += ["v_cvt_pk_bf16_f32 v%d, v%d, v%d" % (src + j, src + 2 * j, src + 2 * j + 1) for j in range(4)]
            G += ["v_accvgpr_write_b32 a%d, v%d" % (Q + (qb * 4 + cb) * 4 + j, src + j) for j in range(4)]
        return G
    a("s_add_u32 s%d, s%d, 0x4000\ns_sub_u32 s%d, s%d, s%d\ns_cmp_eq_u32 s%d, 0\ns_cselect_b32 s%d, 0x8000, 0\ns_add_u32 s%d, s%d, s%d" % (sT1, sVD, sKO, sKO, sT1, sI, sT0, sKO, sKO, sT0))
    for x in flat(dma("V", 1, 0)): a(x)
    a("s_add_u32 s%d, s%d, 0x4000\ns_sub_u32 s%d, 0, s%d" % (sVO, sVO, sVD, sT1))
    for x in qepi(0): a(x)
    for f in range(12, 16): a(rd(f, fr0[f]))
    misc = ["v_add_u32 v%d, 0x10000, v%d" % (vV, vK), "v_and_b32 v10, 15, v0", "v_lshrrev_b32 v11, 4, v0", "v_lshlrev_b32 v11, 2, v11", "v_sub_u32 v%d, v10, v11" % vU]
    misc += ["v_mov_b32 v%d, 0" % r for r in vL] + ["v_mov_b32 v%d, %s" % (vNEG, NEG), "v_and_b32 v%d, 3, v0" % vPO, "v_add_lshl_u32 v%d, v%d, s%d, 2" % (vPO, vPO, sGR), "v_add_u32 v%d, s%d, v%d" % (vPO, sW4, vPO)]
    misc += ["v_mov_b32 v%d, 0x3f803f80" % r for r in range(ONES, ONES + 4)] + ["v_mov_b32 v14, v%d" % vFO, "v_mov_b32 v15, 0x10000000"] + zero(0, 52)
    a("s_waitcnt lgkmcnt(0)\ns_barrier")
    K2 = flat(dma("K", 2, 0)) + [["s_cmp_eq_u32 s%d, 0" % sI, "s_cselect_b32 s%d, 2, 1" % sT0], "s_lshl_b32 s%d, s%d, 14" % (sT0, sT0), "s_add_u32 s%d, s%d, s%d" % (sKO, sKO, sT0)]
    Gp = Gaps([12] * 64)
    Gp.place(K2, 0, 40)
    for s in range(4): Gp.place(qepi(s + 1) if s < 3 else misc, 16 * s, 16 * s + 16, slack=4)
    for s in range(4):
        for n in range(16):
            qb, kb = n // 4, n % 4
            d = vr(S[0] + ((kb // 2) * 4 + qb) * 8 + (kb % 2) * 4, 4)
            a("%s %s, %s, %s, %s" % (MF16, d, ar(FR + 4 * (4 * s + kb), 4), ar(Q + (qb * 4 + s) * 4, 4), d if s else "0"))
            for x in Gp.out(16 * s + n): a(x)
    st_("m1")
    mask(S[0], [(16, 0), (48, 1)])
    MXr, MXt = (240, 241, 242, 243), (244, 245, 246, 247)
    for qb in range(4):
        for x in maxtree(MXr[qb], qregs(S[0], 1, qb)): a(x)
    for x in xlane("v_max_f32", MXr, MXt): a(x)
    for qb in range(4):
        for j in range(4): a("v_sub_f32 v%d, 0, v%d" % (NM + qb * 4 + j, MXr[qb]))
    for qb in range(4):
        for r in qregs(S[0], 1, qb): a("v_sub_f32 v%d, v%d, v%d" % (r, r, MXr[qb]))
    st_("first")
    if TS3: a("s_mov_b32 s76, 0\ns_mov_b32 s72, 0\ns_mov_b32 s74, 0")
    step(0, 0, 1, 1, 0, 0, pre_in=False)
    release()
    a("buffer_atomic_add v15, v14, s[%d:%d], s%d offen offset:128 sc1" % (SD, SD + 3, sCNT))
    mask(S[1], [(16, 2), (48, 3)], pad=False)
    st_("s0")
    lT0, lT1, lT1b, lL1, lL2, lS15, lMid, lI7, lEn = [a.label(x) for x in ("T0", "T1", "T1b", "L1", "L2", "S15", "MID", "I7", "END")]
    PL = [[poll_load(2)]]
    AF = [Q + 4 * j for j in range(9)]
    def ld(dst, so, off): return "buffer_load_dwordx4 %s, v%d, s[%d:%d], s%d offen offset:%d sc1" % (ar(dst, 4), vK, SV, SV + 3, so, off)
    AOP = [ld(AF[0], sA0, 0), ld(AF[1], sA0, 1024), ld(AF[2], sX0, 0), ld(AF[3], sX0, 1024), ld(AF[4], sA1, 1024),
           ld(AF[5], sX1, 0), ld(AF[6], sX1, 1024), ld(AF[7], sGB, 0), ld(AF[8], sGB, 1024)]
    AOP += ["v_and_b32 v12, 15, v0", "v_lshlrev_b32 v12, 2, v12"] + ["buffer_load_dword a%d, v12, s[%d:%d], s%d offen offset:%d sc1" % (Q + 36 + t, SV, SV + 3, sGA_, 64 * t) for t in range(2)]
    ALD = [["v_and_b32 v12, 15, v0", "v_lshlrev_b32 v12, 2, v12"]]
    ALD += [["buffer_load_dword v%d, v12, s[%d:%d], s%d offen offset:%d sc1" % (vG[qb], SV, SV + 3, (sGL_, sGS_)[qb // 2], 64 * (qb % 2))] for qb in range(4)]
    ALD += [["v_and_b32 v13, 31, v0", "v_lshl_add_u32 v13, v13, 2, s%d" % sW4, poll_load(3)]]
    def wpf(dst): return [["v_add_lshl_u32 v%d, v0, s%d, 7" % (vT8, sP0), "global_load_dword v%d, v%d, s[%d:%d]" % (dst, vT8, pBWO, pBWO + 1)],
                          ["v_and_b32 v12, 7, v0", "v_add_lshl_u32 v12, v12, s%d, 7" % sP1_, "global_load_dword v%d, v12, s[%d:%d]" % (dst, pWO, pWO + 1)]]
    TR0, TR15 = wpf(vG[0]), wpf(vT8)
    a("s_cmp_eq_u32 s%d, 0\ns_cbranch_scc1 %s" % (sI, lT1))
    a("s_mov_b32 s%d, s%d" % (sT, sI))
    a(".p2align 6\n" + lL1 + ":")
    step(1, 1, 1, 1, 1, 1)
    a("s_sub_u32 s%d, s%d, 1\ns_cmp_eq_u32 s%d, 0\ns_cbranch_scc1 %s" % (sT, sT, sT, lT0))
    step(0, 1, 1, 1, 1, 1)
    a("s_branch %s" % lL1)
    a(lT0 + ":")
    a("s_add_u32 s%d, s%d, 0x8000" % (sKO, sKO))
    step(0, 1, 1, 1, 2, 1, extra_vm=PL, chk=2, trail=TR0)
    a("s_cmp_eq_u32 s%d, 7\ns_cbranch_scc1 %s" % (sI, lT1b))
    a(lT1 + ":")
    step(1, 1, 1, 2, 2, 1)
    a("s_add_u32 s%d, s%d, 0x8000" % (sVO, sVO))
    step(0, 1, 2, 2, 2, 2, extra_vm=PL, chk=2, trail=TR0)
    a("s_sub_u32 s%d, 6, s%d\ns_cmp_eq_u32 s%d, 0\ns_cbranch_scc1 %s" % (sT, sI, sT, lS15))
    a(".p2align 6\n" + lL2 + ":")
    step(1, 2, 2, 2, 2, 2)
    step(0, 2, 2, 2, 2, 2)
    a("s_sub_u32 s%d, s%d, 1\ns_cmp_lg_u32 s%d, 0\ns_cbranch_scc1 %s" % (sT, sT, sT, lL2))
    a(lS15 + ":")
    a("s_add_u32 s%d, s%d, 0x8000" % (sKO, sVO))
    step(1, 2, 2, 2, 2, 2, extra_vm=ALD, chk=3, trail=TR15, vm_first=True)
    a("s_branch %s" % lMid)
    a(lT1b + ":")
    a("s_add_u32 s%d, s%d, 0xc000" % (sKO, sVO))
    step(1, 1, 1, 2, 2, 1, extra_vm=ALD, chk=3, trail=TR15, vm_first=True)
    def fin_head(rb, so):
        q0, q1 = 2 * rb, 2 * rb + 1
        return ["v_rcp_f32 v%d, v%d" % (vL[q0], vL[q0]), "v_rcp_f32 v%d, v%d" % (vL[q1], vL[q1]), "v_sub_f32 v%d, 1.0, v%d" % (vG[q0], vG[q0]), "v_sub_f32 v%d, 1.0, v%d" % (vG[q1], vG[q1]),
                "s_mul_i32 s%d, s%d, %d" % (so, (sQL, sQS)[rb], CROW), "s_lshl_b32 s%d, s%d, 13" % (sT1, sH), "v_mul_f32 v%d, v%d, v%d" % (vL[q0], vL[q0], vG[q0]), "v_mul_f32 v%d, v%d, v%d" % (vL[q1], vL[q1], vG[q1]),
                "s_add_u32 s%d, s%d, s%d" % (so, so, sT1), "s_add_u32 s%d, s%d, 0x%x" % (so, so, OFF_C)]
    def fin_part(rb, c, t, so):
        u, tq = c // 2, c % 2; qb = 2 * rb + tq
        G = ["v_accvgpr_read_b32 v%d, a%d" % (t + j, O + qb * 32 + u * 8 + j) for j in range(8)]
        G += ["v_mul_f32 v%d, v%d, v%d" % (t + j, vL[qb], t + j) for j in range(8)]
        G += ["v_cvt_pk_bf16_f32 v%d, v%d, v%d" % (t + j, t + 2 * j, t + 2 * j + 1) for j in range(4)]
        if c == 4: G.append("s_add_u32 s%d, s%d, 4096" % (so, so))
        G.append("buffer_store_dwordx4 %s, v%d, s[%d:%d], s%d offen offset:%d sc1" % (vr(t, 4), vK, SV, SV + 3, so, (c % 4) * 1024))
        return G
    a(lMid + ":")
    st_("mid")
    if TS3:
        a("s_mov_b32 m0, s76\ns_add_u32 s76, s76, 1\nv_writelane_b32 v11, s72, m0\ns_mov_b32 m0, s76\ns_add_u32 s76, s76, 1\nv_writelane_b32 v11, s74, m0")
        a("s_lshl_b32 s78, s2, 2\ns_add_u32 s78, s78, s%d\ns_lshl_b32 s78, s78, 8\ns_add_u32 s78, s78, 0x%x\nv_lshlrev_b32 v10, 2, v0" % (sWV, OFF_TS + 0x80000))
        a("buffer_store_dword v11, v10, s[%d:%d], s78 offen\ns_nop 4" % (SO, SO + 3))
    for x in AOP: a(x)
    mask(S[0], [(16 * kp, kp) for kp in range(4)], pad=False)
    PW, PW2 = 8, 12
    sWB, sHW, sWC, sAB, sHA, sAC = 25, 32, 33, 34, 35, 45
    vD = (232, 233, 234, 235)
    WRING = [0, 16384, 65536, 81920, 131072, 147456]; ARING = [32768, 49152, 98304, 114688]
    def w_dma(st):
        G = []
        if st < 16 and st % 2 == 0:
            G += ["s_lshl_b32 s%d, s%d, 17" % (sWC, sHW), "s_add_u32 s%d, s%d, s%d" % (sWC, sWC, sWB), "s_add_u32 s%d, s%d, 1" % (sHW, sHW)]
        if st == 16: G += ["s_and_b32 s%d, s%d, 0xffff" % (sWC, sWB), "s_lshr_b32 s%d, s%d, 20" % (sHW, sWB), "s_lshl_b32 s%d, s%d, 17" % (sHW, sHW), "s_add_u32 s%d, s%d, s%d" % (sWC, sWC, sHW)]
        G += ["s_add_u32 m0, s%d, %d" % (sW4, WRING[st % 6]), "s_and_b32 s%d, s%d, 7" % (sHW, sHW) if st % 2 == 0 else "s_add_u32 s%d, s%d, 65536" % (sWC, sWC)]
        sr_ = PW if st < 16 else PW2
        return G + ["buffer_load_dwordx4 v%d, s[%d:%d], s%d offen offset:%d lds ; need:%d" % (vD[o], sr_, sr_ + 3, sWC, o * 1024, st) for o in range(4)]
    def a_dma(st):
        G = []
        if st < 16 and st % 2 == 0:
            G += ["s_lshl_b32 s%d, s%d, 13" % (sAC, sHA), "s_add_u32 s%d, s%d, s%d" % (sAC, sAC, sAB), "s_add_u32 s%d, s%d, 1" % (sHA, sHA)]
        if st == 16: G += ["s_lshr_b32 s%d, s%d, 3" % (sHA, sH), "s_mul_i32 s%d, s%d, %d" % (sHA, sHA, 56 * 1024), "s_sub_u32 s%d, s%d, s%d" % (sAC, sAB, sHA), "s_add_u32 s%d, s%d, %d" % (sAC, sAC, 256 * 1024)]
        G += ["s_add_u32 m0, s%d, %d" % (sW4, ARING[st % 4]), "s_and_b32 s%d, s%d, 7" % (sHA, sHA) if st % 2 == 0 else "s_add_u32 s%d, s%d, 4096" % (sAC, sAC)]
        return G + ["buffer_load_dwordx4 v%d, s[%d:%d], s%d offen offset:%d sc1 lds ; need:%d" % (vK, SV, SV + 3, sAC, o * 1024, st) for o in range(4)]
    nt = lambda L: [x.split(";")[0].strip() for x in L]
    srd(a, PW, pBWO, 0x400000); srd(a, PW2, pWO, 0x80000)
    a("s_lshr_b32 s%d, s%d, 3\ns_lshl_b32 s%d, s%d, 20\ns_and_b32 s%d, s%d, 3\ns_lshl_b32 s%d, s%d, 8\ns_add_u32 s%d, s%d, s%d\ns_lshl_b32 s%d, s%d, 14\ns_add_u32 s%d, s%d, s%d" % (sT0, sH, sWB, sT0, sT1, sH, sT1, sT1, sWB, sWB, sT1, sT1, sWV, sWB, sWB, sT1))
    a("s_and_b32 s%d, s%d, 7\ns_mov_b32 s%d, s%d" % (sHW, sH, sHA, sHW))
    a("s_lshl_b32 s%d, s%d, 2\ns_add_u32 s%d, s%d, s%d\ns_mul_i32 s%d, s%d, %d\ns_lshl_b32 s%d, s%d, 16\ns_add_u32 s%d, s%d, s%d\ns_add_u32 s%d, s%d, 0x%x" % (sT1, sRBK, sT1, sT1, sWV, sAB, sT1, CROW, sT0, sT0, sAB, sAB, sT0, sAB, sAB, OFF_C))
    a("v_lshrrev_b32 v10, 4, v0\nv_and_b32 v11, 15, v0\nv_lshlrev_b32 v12, 2, v10\nv_xor_b32 v11, v11, v12\nv_lshlrev_b32 v11, 4, v11\nv_lshl_add_u32 v%d, v10, 10, v11" % vD[0])
    a("v_xor_b32 v11, 16, v%d\nv_add_u32 v%d, 6144, v%d\nv_add_u32 v%d, 3072, v11\nv_add_u32 v%d, 9216, v11" % (vD[0], vD[2], vD[0], vD[1], vD[3]))
    W16_ = [[x] for st in range(4) for x in nt(w_dma(st))]; W17_ = [[x] for st in range(4, 6) for x in nt(w_dma(st))]
    a("s_cmp_eq_u32 s%d, 7\ns_cbranch_scc1 %s" % (sI, lI7))
    FT = lambda c: 80 + 8 * (c % 8)
    for x in fin_head(1, sA0): a(x)
    for c in range(NE):
        for x in fin_part(1, c, FT(c), sA0): a(x)
    step(0, 2, 2, 0, 0, 0, last16=True, extra_vm=W16_)
    def final(first):
        stg = [(first + fin_head(0, sA1), 0, 22)]
        for u in range(3):
            stg.append((fin_part(0, 2 * u, 16 + 16 * u, sA1) + fin_part(0, 2 * u + 1, 24 + 16 * u, sA1), 16 * u + 22, min(16 * u + 38, 64)))
        step(1, 3, 0, 0, 0, 0, pre_out=False, staged=stg, extra_vm=W17_)
        a("s_nop 7")
        for x in fin_part(0, 6, 64, sA1) + fin_part(0, 7, 72, sA1): a(x)
    final([x for c in range(NE, 8) for x in fin_part(1, c, FT(c), sA0)])
    a("s_branch %s" % lEn)
    a(lI7 + ":")
    step(0, 1, 2, 0, 0, 0, last16=True, extra_vm=W16_)
    final(fin_head(1, sA0) + [x for c in range(8) for x in fin_part(1, c, FT(c), sA0)])
    a(lEn + ":")
    st_("s17")
    BS, BP, BP0 = 208, 212, 216
    SL = 144; TA = 176; PA = 196; MXl = (240, 241, 242, 243); vPM = 250; OL = 144
    L1 = ["v_add_u32 v246, 14, v%d" % vU, "v_mov_b32 v244, 0x5555", "v_mov_b32 v245, 0", "s_cmp_eq_u32 s%d, 0" % sRA, "s_cselect_b32 s%d, -1, 0" % sT2,
          "v_lshlrev_b64 v[244:245], v246, v[244:245]", "v_alignbit_b32 v244, v245, v244, 12", "v_not_b32 v244, v244"]
    L1 += ["v_bfe_i32 v%d, v244, %d, 1" % (BS + r, 16 + r) for r in range(4)] + ["v_bfe_i32 v%d, v244, %d, 1" % (BP + r, r) for r in range(4)]
    L1 += ["v_or_b32 v%d, s%d, v%d" % (BP0 + r, sT2, BP + r) for r in range(4)]
    L1 += ["v_and_b32 v%d, v%d, v%d" % (BS + r, vNEG, BS + r) for r in range(12)]
    L1 += ["v_and_b32 v244, 1, v0", "v_lshlrev_b32 v244, 4, v244", "v_mov_b32 v245, 0xffff", "v_lshlrev_b32 v%d, v244, v245" % vPM, "s_waitcnt vmcnt(40)"]
    for e in range(2):
        for tq in range(2):
            d = SL + (2 * e + tq) * 8
            L1.append("%s %s, %s, %s, %s" % (MFH, vr(d, 4), ar((AF[4], AF[2])[tq] + 2 * e, 2), ar(AF[tq] + 2 * e, 2), vr((BP0, BP)[tq], 4)))
            L1.append("%s %s, %s, %s, %s" % (MFH, vr(d + 4, 4), ar(AF[2 + tq] + 2 * e, 2), ar(AF[tq] + 2 * e, 2), vr(BS, 4)))
    L2 = ["v_max_f32 v%d, v%d, v%d" % (TA + j, SL + 2 * j, SL + 2 * j + 1) for j in range(16)]
    for n in range(4): L2 += maxtree(MXl[n], [TA + 4 * n + j for j in range(4)])
    L2 += xlane("v_max_f32", MXl, MXt)
    L2 += ["v_sub_f32 v%d, v%d, v%d" % (TA + j, TA + j, MXl[j // 4]) for j in range(16)]
    L2 += ["v_exp_f32 v%d, v%d" % (TA + j, TA + j) for j in range(16)]
    L2 += ["v_cvt_pk_bf16_f32 v%d, v%d, v%d" % (TA + j, TA + j, TA + j) for j in range(16)]
    L2 += ["v_and_b32 v%d, v%d, v%d" % (TA + j, vPM, TA + j) for j in range(16)]
    L2 += ["v_accvgpr_read_b32 v%d, a%d" % (246 + t, Q + 36 + t) for t in range(2)]
    for n in range(4): L2.append("%s %s, %s, %s, 0" % (MF16, vr(OL + 16 + 4 * n, 4), vr(ONES, 4), vr(TA + 4 * n, 4)))
    for e in range(2):
        L2.append("%s %s, %s, %s, 0" % (MFH, vr(OL + 4 * e, 4), ar(AF[7 + e] + 2, 2), vr(TA + 8 * e, 2)))
        L2.append("%s %s, %s, %s, 0" % (MF16, vr(OL + 8 + 4 * e, 4), ar(AF[5 + e], 4), vr(TA + 8 * e + 4, 4)))
    for e in range(2): L2.append("%s %s, %s, %s, %s" % (MFH, vr(OL + 4 * e, 4), ar(AF[5 + e], 2), vr(TA + 8 * e + 2, 2), vr(OL + 4 * e, 4)))
    L2 += ["s_mul_i32 s%d, s%d, %d" % (sA0, sRA, CROW), "s_lshl_b32 s%d, s%d, 11" % (sA1, sHP), "s_add_u32 s%d, s%d, s%d" % (sA0, sA0, sA1), "s_add_u32 s%d, s%d, 0x%x" % (sA0, sA0, OFF_C + 256 * 1024)]
    L2 += ["v_rcp_f32 v%d, v%d" % (MXl[n], OL + 16 + 4 * n) for n in range(4)]
    L2 += ["v_mul_f32 v%d, v%d, v%d" % (MXl[n], MXl[n], 246 + n % 2) for n in range(4)]
    for tq in range(2):
        for e in range(2): L2 += ["v_mul_f32 v%d, v%d, v%d" % (OL + 8 * tq + 4 * e + j, MXl[2 * e + tq], OL + 8 * tq + 4 * e + j) for j in range(4)]
        L2 += ["v_cvt_pk_bf16_f32 v%d, v%d, v%d" % (PA + 4 * tq + j, OL + 8 * tq + 2 * j, OL + 8 * tq + 2 * j + 1) for j in range(4)]
    LST = ["buffer_store_dwordx4 %s, v%d, s[%d:%d], s%d offen offset:%d sc1" % (vr(PA + 4 * tq, 4), vK, SV, SV + 3, sA0, tq * 1024) for tq in range(2)]
    for x in L1: a(x)
    SOUT = 4; sQ, sOUT = 26, 28
    vA, vW = (2, 3), (4, 5, 14, 15); ACC, FP = 16, 80
    srd(a, SOUT, 100, 2048 * 1024)
    a("s_lshr_b32 s%d, s%d, 3" % (sQ, sH))
    a("s_and_b32 s%d, s%d, 1\ns_lshl_b32 s%d, s%d, 1\ns_and_b32 s%d, s%d, 1\ns_add_u32 s%d, s%d, s%d\ns_lshl_b32 s%d, s%d, 12" % (sT0, sWV, sT0, sT0, sT1, sQ, sT2, sT0, sT1, sT0, sT2))
    a("v_add_u32 v%d, s%d, v%d\nv_xor_b32 v%d, 4096, v%d" % (vA[0], sT0, vK, vA[1], vA[0]))
    a("v_lshrrev_b32 v9, 2, v0\nv_and_b32 v8, 3, v9\nv_bfe_u32 v7, v0, 4, 1\nv_and_b32 v10, 2, v0\nv_or_b32 v7, v7, v10\nv_and_b32 v10, 1, v0\nv_lshlrev_b32 v10, 3, v10")
    a("s_and_b32 s%d, s%d, 2\ns_lshr_b32 s%d, s%d, 1\ns_add_u32 s%d, s%d, s%d\nv_xor_b32 v8, s%d, v8" % (sT0, sWV, sT1, sQ, sT0, sT0, sT1, sT0))
    a("v_lshl_or_b32 v8, v8, 2, v7\nv_lshlrev_b32 v8, 4, v8\nv_lshl_add_u32 v8, v9, 8, v8\nv_add_u32 v%d, v8, v10" % vW[0])
    a("v_xor_b32 v%d, 16, v%d\nv_xor_b32 v%d, 64, v%d\nv_xor_b32 v%d, 80, v%d" % (vW[1], vW[0], vW[2], vW[0], vW[3], vW[0]))
    a("s_and_b32 s%d, s%d, 3\ns_lshl_b32 s%d, s%d, 2\ns_add_u32 s%d, s%d, s%d\ns_lshl_b32 s%d, s%d, 6" % (sT1, sH, sT1, sT1, sT1, sT1, sT0, sOUT, sT1))
    a("s_lshl_b32 s%d, s%d, 2\ns_add_u32 s%d, s%d, s%d\ns_lshl_b32 s%d, s%d, 15\ns_add_u32 s%d, s%d, s%d" % (sT0, sRBK, sT0, sT0, sT2, sT0, sT0, sOUT, sOUT, sT0))
    a("v_and_b32 v6, 15, v0\nv_lshlrev_b32 v6, 10, v6\nv_lshrrev_b32 v7, 4, v0\nv_lshl_add_u32 v6, v7, 4, v6")
    a("v_min_u32 v9, 1, v0\nv_lshlrev_b32 v9, 29, v9\nv_mov_b32 v10, 1\nv_and_b32 v8, 7, v0\nv_lshlrev_b32 v8, 2, v8\nv_and_b32 v11, 12, v8")
    def signal_wait(sown, vo, pre):
        lp, lo_ = a.label("xpoll"), a.label("xok")
        a("s_waitcnt vmcnt(0)\ns_barrier\ns_cmp_lg_u32 s%d, 0\ns_cbranch_scc1 %s_s" % (sWV, lo_))
        a("buffer_store_dword v10, v9, s[%d:%d], s%d offen sc1\n%s_s:" % (SO, SO + 3, sown, lo_))
        for x in pre: a(x)
        a("s_cmp_lg_u32 s%d, 0\ns_cbranch_scc1 %s" % (sWV, lo_))
        a("s_and_b32 s%d, s%d, 0xffffff80\ns_mov_b32 s%d, 0x80000\n%s:" % (sT0, sown, sT1, lp))
        a("buffer_load_dword v12, v%d, s[%d:%d], s%d offen sc1\ns_waitcnt vmcnt(0)\nv_cmp_gt_u32 vcc, 1, v12\ns_cbranch_vccz %s" % (vo, SO, SO + 3, sT0, lo_))
        a("s_sleep %d\ns_sub_u32 s%d, s%d, 1\ns_cmp_lg_u32 s%d, 0\ns_cbranch_scc1 %s\n%s:" % (SLP, sT1, sT1, sT1, lp, lo_))
        a("s_waitcnt vmcnt(0)\ns_barrier")
    a("s_cmp_eq_u32 s%d, 0\ns_cselect_b32 s%d, 2, 0\ns_cselect_b32 s%d, 0, 0x20000000\nv_add_u32 v192, s%d, v8\nv_or_b32 v193, s%d, v9\nv_mov_b32 v194, 2\ns_and_b32 s%d, s%d, 0xffffff80" % (sWV, sG1, sT0, sT0, sT0, sG2, sFG))
    for x in L2[:LSPL]: a(x)
    signal_wait(sFG, 8, nt(a_dma(0) + a_dma(1)) + L2[LSPL:])
    st_("sync")
    for x in nt(a_dma(2) + a_dma(3)) + LST: a(x)
    curA, curW = [0], [0]
    def preads(u):
        st, us = u // 2, u % 2
        L = []
        def win(base, cur, regs_):
            w_ = base // 65536
            if w_ != cur[0]:
                d = (w_ - cur[0]) * 65536
                for r in regs_: L.append((("v_add_u32 v%d, 0x%x, v%d" % (r, d, r)) if d > 0 else ("v_subrev_u32 v%d, 0x%x, v%d" % (r, -d, r)), None))
                cur[0] = w_
            return base % 65536
        oa = win(ARING[st % 4], curA, vA); ow = win(WRING[st % 6], curW, vW)
        F = FP + 32 * (u % 2)
        tr = lambda n: [("ds_read_b64_tr_b16 %s, v%d offset:%d" % (vr(F + 16 + 4 * n + 2 * r_, 2), vW[n], ow + us * 8192 + r_ * 4096), 4 * n) for r_ in range(2)]
        ac = [("ds_read_b128 %s, v%d offset:%d" % (vr(F + 4 * n, 4), vA[n // 2], oa + us * 2048 + (n % 2) * 1024), n) for n in range(4)]
        return L + tr(0) + ac + tr(1) + tr(2) + tr(3)
    Mp = []
    for u in range(36):
        F = FP + 32 * (u % 2)
        for wn in range(4):
            for n in range(4):
                acc = vr(ACC + ((n // 2) + 2 * (wn // 2)) * 16 + (n % 2) * 8 + (wn % 2) * 4, 4)
                Mp.append("%s %s, %s, %s, %s" % (MF16, acc, vr(F + 16 + 4 * wn, 4), vr(F + 4 * n, 4), "0" if u == 0 else acc))
    SP_ = Sched(Mp); SP_.backlog = 99
    R0 = preads(0)
    for x, _ in R0: a(x)
    for u in range(1, 36):
        t0 = 16 * (u - 1) + (PB if u % 2 == 0 else 0)
        SP_.rq += [(x, t0, t0, None if us_ is None else 16 * u + us_) for x, us_ in preads(u)]
    for st in range(1, 18): SP_.bars[32 * st - 16 + PB] = st
    SP_.waitpts = [8 * k for k in range(72)]
    SP_.place_reads()
    for g_ in range(SP_.n):
        for u_ in SP_.use[g_].values():
            if u_ is not None: assert g_ < 32 * (u_ // 32 + 1) - 16 + PB, (g_, u_)
    for st in range(1, 18):
        b = 32 * st - 16 + PB
        G = []
        if st == 5: G.append("buffer_store_dword v194, v193, s[%d:%d], s%d offen sc1" % (SO, SO + 3, sFG))
        if st == 10: G.append(poll_load(4) + " ; need:13")
        if st + 3 < 18: G += a_dma(st + 3)
        if st + 5 < 18: G += w_dma(st + 5)
        SP_.place(G, b, b + 30, slack=30)
    nb_ = [0]
    def pbar(w):
        nb_[0] += 1
        a(w)
        if nb_[0] == 13: poll_check(4)
        a("s_barrier")
    SP_.emit(a, pbar, [u_ for _, u_ in R0], [2] * 4 + [3] * 4 + [5] * 2)
    if VERB: print("P over", SP_.over)
    st_("pm")
    a("s_nop 3")
    for j in range(1, 4):
        a("s_xor_b32 s%d, s%d, %d\ns_mul_i32 s%d, s%d, 49152\ns_add_u32 s%d, s%d, s%d\ns_add_u32 s%d, s%d, %d" % (sT0, sQ, j, sT0, sT0, sT0, sT0, sXO, sT0, sT0, (j - 1) * 16384))
        for r in range(8): a("v_cvt_pk_bf16_f32 v%d, v%d, v%d" % (FP + 8 * j + r, ACC + j * 16 + 2 * r, ACC + j * 16 + 2 * r + 1))
        for c in range(2): a("buffer_store_dwordx4 %s, v%d, s[%d:%d], s%d offen offset:%d sc1" % (vr(FP + 8 * j + 4 * c, 4), vK, SO, SO + 3, sT0, c * 1024))
    signal_wait(sFX, 11, [])
    st_("xs")
    a("s_mov_b32 s%d, s%d" % (sT0, sXR))
    for j in range(1, 4):
        for c in range(2): a("buffer_load_dwordx4 %s, v%d, s[%d:%d], s%d offen offset:%d sc1" % (vr(ACC + j * 16 + 4 * c, 4), vK, SO, SO + 3, sT0, c * 1024))
        if j < 3: a("s_add_u32 s%d, s%d, 16384" % (sT0, sT0))
    for j in range(1, 4):
        a("s_waitcnt vmcnt(%d)" % (2 * (3 - j)))
        for r in range(8):
            t = ACC + j * 16 + r
            a("v_lshlrev_b32 v12, 16, v%d\nv_and_b32 v13, 0xffff0000, v%d\nv_add_f32 v%d, v%d, v12\nv_add_f32 v%d, v%d, v13" % (t, t, ACC + 2 * r, ACC + 2 * r, ACC + 2 * r + 1, ACC + 2 * r + 1))
    for r in range(8): a("v_cvt_pk_bf16_f32 v%d, v%d, v%d" % (FP + r, ACC + 2 * r, ACC + 2 * r + 1))
    a("s_nop 1")
    for pr in range(2): a("v_permlane16_swap_b32 v%d, v%d\nv_permlane16_swap_b32 v%d, v%d" % (FP + 4 * pr, FP + 4 * pr + 2, FP + 4 * pr + 1, FP + 4 * pr + 3))
    a("buffer_store_dwordx4 %s, v6, s[%d:%d], s%d offen\ns_add_u32 s%d, s%d, 16384" % (vr(FP, 4), SOUT, SOUT + 3, sOUT, sOUT, sOUT))
    a("buffer_store_dwordx4 %s, v6, s[%d:%d], s%d offen" % (vr(FP + 4, 4), SOUT, SOUT + 3, sOUT))
    T.dump(SO, sWV, 4)
    a(done + ":\ns_endpgm")
    a(lRare + ":")
    for (ls, lb, kind) in spins:
        lp = a.label("sp")
        a(ls + ":\ns_mov_b32 s%d, 0x40000\n%s:" % (sT2, lp))
        a("s_sleep 8\n" + poll_load(kind) + "\ns_waitcnt vmcnt(0)\n%s\ns_cbranch_vccz %s" % (poll_cmp(kind), lb))
        a("s_sub_u32 s%d, s%d, 1\ns_cmp_lg_u32 s%d, 0\ns_cbranch_scc1 %s\ns_branch %s" % (sT2, sT2, sT2, lp, lb))
    for (ls, lb) in rels:
        a("%s:\nbuffer_wbl2 sc1\ns_waitcnt vmcnt(0)\ns_branch %s" % (ls, lb))
    sRET = 44
    for (p, sm, qk), (lr, users) in rare.items():
        for rid, (lj, lb) in enumerate(users): a("%s:\ns_mov_b32 s%d, %d\ns_branch %s" % (lj, sRET, rid, lr))
        a(lr + ":\ns_nop 7\ns_nop 7")
        for qb in range(4 // sm):
            cur = qregs(S[p], sm, qb); d, f = vX, vX + 2
            for x in maxtree(d, cur) + xlane("v_max_f32", [d], [d + 1]): a(x)
            a("v_max_f32 v%d, 0, v%d\nv_exp_f32 v%d, -v%d" % (d, d, f, d))
            nx = qregs(S[1 - p], qk, qb) if qb < 4 // qk else []
            for r in cur + [NM + 4 * qb + j for j in range(4)] + nx: a("v_sub_f32 v%d, v%d, v%d" % (r, r, d))
            a("v_mul_f32 v%d, v%d, v%d" % (vL[qb], vL[qb], f))
            for j in range(0, 32, 4):
                for q in range(4): a("v_accvgpr_read_b32 v%d, a%d" % (TM + q, O + qb * 32 + j + q))
                for q in range(4): a("v_mul_f32 v%d, v%d, v%d" % (TM + q, TM + q, f))
                for q in range(4): a("v_accvgpr_write_b32 a%d, v%d" % (O + qb * 32 + j + q, TM + q))
        for q in range(8):
            for n in range(8 * q, 8 * q + 8): a(ex(p, n))
            for j in range(4 * q, 4 * q + 4): a(cv(p, j))
        a("s_nop 1")
        for q in range(8): a(summ(p, sm, q))
        a("s_nop 7")
        for rid, (lj, lb) in enumerate(users):
            if rid < len(users) - 1: a("s_cmp_eq_u32 s%d, %d\ns_cbranch_scc1 %s" % (sRET, rid, lb))
            else: a("s_branch %s" % lb)
    a.add_kernel(name, 512, 102, 256)
    a.launch(name, 256, 256, 163840)
```

```python
from gen_common import *
from sched import Sched, isvm
from pack import Gaps, cost as gcost
import re as _re
MF16 = "v_mfma_f32_16x16x32_bf16"
MFH = "v_mfma_f32_16x16x16_bf16"
pX, pWQKV, pWO0, pC, pWQ, pWUK, pWUV, pBWO, pGATE, pDBG, pWS = 36, 38, 40, 44, 46, 48, 50, 52, 54, 58, 60
pWO = 58
NEG = "0xff800000"
THRESH = fbits(2.0 ** 48)
WSL = (98304, 131072)
LDS_G = WSL[0] + 24576
def aslot(g): return ((g + 2) % 3) * 32768
def flat(G): return [x for g in G for x in (g if isinstance(g, list) else [g])]
def soft(G):
    out = []
    for g in G:
        if any(x.startswith("s_cselect") for x in g):
            k = [j for j, x in enumerate(g) if x.startswith("s_cmp") or x.startswith("s_bitcmp")][0]
            out += g[:k] + [g[k:]]
        else: out += g
    return out

def gen2(a, name="p1_kernel", ts=False, PF=1, PD=8, WP=2, TS2=0, TS3=0, DFR=12, LSPL=110, SLP=4, QSL=(4, 6, 5), XSL=3, PDW=5, GPUB=11, VERB=0, NE=6, HOLD=None, CM=0, PB=2,
         STAMPS=("start", "q", "attn", "mid", "s17")):
    XL2 = 0; PRE0 = 0; endlabel = None; SENT = 0
    a.begin_kernel(name)
    T = TS(a, ts, 0, base=72)
    def st_(nm):
        if nm in STAMPS: T.stamp(STAMPS.index(nm))
    done = a.label("fdone")
    lAttn, lRare = a.label("attn"), a.label("rarecode")
    sWV = 3
    SA, SW, SX, SO, SD = 4, 8, 12, 16, 40
    sH, sI, sT0, sT1, sT2 = 20, 21, 22, 23, 24
    sAS, sAS2, sWS, sXS, sAM, sWM, sXM, sCNT, sOK, sDS, sSC = 25, 26, 27, 28, 29, 30, 31, 32, 33, 34, 35
    sQL, sQS, sU, sOA, sAD, sWD, sOJ, sVD, sFA, sGR = 92, 93, 94, 95, 96, 97, 56, 57, 63, 99
    sKO, sVO, sW4, sW8, sTH, sT = 48, 49, 50, 51, 54, 32
    vL16 = 1
    vAO, vWO, vXO = (2, 3, 4, 5), (6, 7, 8, 9), (10, 11)
    vAR, vWR, vXR = (12, 13), tuple(range(14, 22)), (22, 23, 24)
    vGR, vGA2, GC = 25, (26, 27), 92
    QS = (28, 44); WR, NWR = 60, 8; TT, PK = 96, 104
    KS = (128, 160)
    vFO, vONE, vPFD, vTS, vW12, vPL, vPLO = 120, 121, 122, 123, 124, 125, 126
    sWS2, sOK2, sHL = 62, 98, 55
    QA = 128
    t2 = [0]
    def bar(waitstr):
        if TS2:
            n = t2[0]; t2[0] += 1
            if n > 0: a("v_writelane_b32 v123, s72, %d\nv_writelane_b32 v123, s74, %d" % (2 * n - 2, 2 * n - 1))
            a("s_memtime s[72:73]")
        a(waitstr + "\ns_barrier")
        if TS2: a("s_memtime s[74:75]")
    a("s_cmp_ge_u32 s2, 256\ns_cbranch_scc1 %s" % done)
    st_("start")
    a("s_load_dwordx16 s[36:51], s[0:1], 0\ns_load_dwordx8 s[52:59], s[0:1], 64\ns_load_dwordx2 s[60:61], s[0:1], 96")
    a("v_lshrrev_b32 v30, 6, v0\nv_and_b32 v0, 63, v0\nv_readfirstlane_b32 s%d, v30" % sWV)
    a("s_and_b32 s%d, s2, 7\ns_lshl_b32 s%d, s%d, 2\ns_lshr_b32 s%d, s2, 3\ns_and_b32 s%d, s%d, 3\ns_add_u32 s%d, s%d, s%d" % (sH, sH, sH, sT0, sT0, sT0, sH, sH, sT0))
    a("s_lshr_b32 s%d, s2, 5" % sI)
    a("v_lshlrev_b32 v%d, 4, v0" % vL16)
    a("v_lshrrev_b32 v30, 3, v0\nv_lshrrev_b32 v31, 4, v0\nv_and_b32 v32, 7, v0")
    a("v_xor_b32 v33, v31, v32\nv_lshlrev_b32 v33, 4, v33\nv_lshl_add_u32 v%d, v30, 10, v33" % vAO[0])
    a("v_add_u32 v%d, %d, v%d\nv_xor_b32 v33, 64, v%d\nv_add_u32 v%d, %d, v33\nv_add_u32 v%d, %d, v33" % (vAO[2], 2 * 7168, vAO[0], vAO[0], vAO[1], 7168, vAO[3], 3 * 7168))
    a("v_and_b32 v33, 15, v0\nv_lshlrev_b32 v34, 2, v31\nv_xor_b32 v33, v33, v34\nv_lshlrev_b32 v33, 4, v33\nv_lshl_add_u32 v%d, v31, 13, v33" % vWO[0])
    a("v_add_u32 v%d, %d, v%d\nv_xor_b32 v33, 32, v%d\nv_add_u32 v%d, %d, v33\nv_add_u32 v%d, %d, v33" % (vWO[1], 31744, vWO[0], vWO[0], vWO[2], 2 * 31744, vWO[3], 3 * 31744))
    a("s_sub_u32 s%d, 15, s%d\ns_bitcmp1_b32 s%d, 0\ns_cselect_b32 s%d, s%d, s%d\ns_lshl_b32 s%d, s%d, 1\ns_lshr_b32 s%d, s%d, 1\ns_add_u32 s%d, s%d, s%d" % (sT0, sI, sWV, sT0, sT0, sI, sT0, sT0, sT1, sWV, sT0, sT0, sT1))
    a("s_lshl_b32 s%d, s%d, 16\ns_add_u32 s%d, s%d, 32768" % (sAS, sT0, sAS2, sAS))
    a("s_lshl_b32 s%d, s%d, 13\ns_mov_b32 s%d, s%d" % (sAM, sWV, sWM, sAM))
    a("s_and_b32 s%d, s%d, 1\ns_lshl_b32 s%d, s%d, 18\ns_lshl_b32 s%d, s%d, 8\ns_add_u32 s%d, s%d, s%d" % (sT0, sWV, sT0, sT0, sWS, sH, sWS, sWS, sT0))
    a("s_and_b32 s%d, s2, 31\ns_add_u32 s%d, s%d, 0x20000" % (sU, sWS2, sWS))
    a("s_waitcnt lgkmcnt(0)")
    a("s_mov_b32 s100, s56\ns_mov_b32 s101, s57")
    srd(a, SA, pC, 0x200000)
    a("s_cmp_lt_u32 s%d, 2\ns_cselect_b32 s%d, s%d, s%d\ns_cselect_b32 s%d, s%d, s%d\ns_mov_b32 s%d, 0x400000\ns_mov_b32 s%d, 0x20000" % (sWV, SW, pWUK, pWUV, SW + 1, pWUK + 1, pWUV + 1, SW + 2, SW + 3))
    def dgrp(m0s, m0i, vo, srd_, so, stp, nd):
        G = ["s_add_u32 m0, s%d, %d" % (m0s, m0i)]
        G += ["buffer_load_dwordx4 v%d, s[%d:%d], s%d offen offset:%d lds ; need:%d" % (v, srd_, srd_ + 3, so, n * 1024, nd) for n, v in enumerate(vo)]
        G.append("s_add_u32 s%d, s%d, %d" % (so, so, stp))
        return G
    def fixm0(G):
        out = []
        for k, x in enumerate(G):
            out.append(x)
            if x.startswith("s_add_u32 m0"):
                if len(out) > 1 and out[-2].startswith("s_add_u32 s"): out[-1], out[-2] = out[-2], out[-1]
                else: out.append("s_nop 0")
        return out
    def dma_act(g): return fixm0(dgrp(sAM, aslot(g), vAO, SA, sAS, 128, g) + dgrp(sAM, aslot(g) + 4096, vAO, SA, sAS2, 128, g))
    def dma_w(g):
        G = dgrp(sWM, WSL[g % 2], vWO, SW, sWS, 0x80000, g)
        if g < 8: G += dgrp(sWM, WSL[g % 2] + 4096, vWO, SW, sWS2, 0x80000, g)
        else: G += dgrp(sXM, WSL[g % 2] + 16384, vXO, SX, sXS, 64 * 3072, g)
        return fixm0(G)
    for x in dma_w(0) + dma_act(0): a(x.split(";")[0])
    NSL = max(XL2 + 4 if XL2 else 0, max(QSL) + 1, XSL + 1)
    def preg(k): return 192 + 2 * k
    def pf(k): return "global_load_dword v122, %s, off" % vr(preg(k), 2)
    def pfa(k, base, vo, so, imm=0):
        r = preg(k)
        a("s_add_u32 s%d, s%d, %d\nv_mov_b32 v%d, s%d\nv_add_u32 v%d, s%d, v%d" % (sT2, so, imm, r + 1, base + 1, r, sT2, vo))
        a("v_add_co_u32 v%d, vcc, s%d, v%d\ns_nop 1\nv_addc_co_u32 v%d, vcc, 0, v%d, vcc" % (r, base, r, r + 1, r + 1))
    def pfnone(k): a("v_mov_b32 v%d, s%d\nv_mov_b32 v%d, s%d" % (preg(k), pGATE, preg(k) + 1, pGATE + 1))
    if PF:
        l1, l3, le = a.label("pf1"), a.label("pf3"), a.label("pfe")
        a("s_cmp_eq_u32 s%d, 1\ns_cbranch_scc1 %s\ns_cmp_eq_u32 s%d, 3\ns_cbranch_scc1 %s" % (sWV, l1, sWV, l3))
        used = {0, XSL}
        if CM:
            a("s_lshr_b32 s%d, s2, 3\ns_lshl_b32 s%d, s%d, 16\ns_lshl_b32 s%d, s%d, 6\ns_add_u32 s%d, s%d, s%d\nv_lshlrev_b32 v26, 10, v0" % (sT0, sT0, sT0, sT1, sWV, sT1, sT0, sT1))
            pfa(0, pC, 26, sT1, 128); a(pf(0)); used.add(1)
        a("v_and_b32 v26, 31, v0\nv_lshlrev_b32 v26, 7, v26\ns_lshl_b32 s%d, s2, 13\ns_lshl_b32 s%d, s%d, 11\ns_add_u32 s%d, s%d, s%d" % (sT0, sT1, sWV, sT0, sT0, sT1))
        pfa(CM, pC, 26, sT0, 0)
        if not CM: a(pf(0))
        pfa(XSL, pX, 26, sT0, 0)
        for k in range(NSL):
            if k not in used: pfnone(k)
        a("s_branch %s\n%s:" % (le, l1))
        a("v_lshlrev_b32 v26, 13, v30\nv_lshl_add_u32 v26, v32, 7, v26")
        a("s_bitcmp1_b32 s2, 3\ns_cselect_b32 s98, s%d, s%d\ns_cselect_b32 s99, s%d, s%d" % (pWUV, pWUK, pWUV + 1, pWUK + 1))
        a("s_and_b32 s%d, s2, 7\ns_lshl_b32 s%d, s%d, 10\ns_lshr_b32 s%d, s2, 4\ns_and_b32 s%d, s%d, 7\ns_lshl_b32 s%d, s%d, 16\ns_lshl_b32 s%d, s%d, 16" % (sT1, sT1, sT1, sT0, sCNT, sT0, sT0, sT0, sCNT, sCNT))
        a("s_add_u32 s%d, s%d, s%d\ns_add_u32 s%d, s%d, s%d" % (sT0, sT0, sT1, sCNT, sCNT, sT1))
        if PRE0:
            pfnone(0); a(pf(0)); pfa(1, 98, 26, sT0, 4 * 0x80000); pfa(2, 98, 26, sT0, 6 * 0x80000); pfnone(3)
        else:
            pfa(0, 98, 26, sT0, 1 * 0x80000); a(pf(0))
            pfa(1, 98, 26, sT0, 3 * 0x80000); pfa(2, 98, 26, sT0, 5 * 0x80000); pfa(3, 98, 26, sCNT, 7 * 0x80000)
        for k in range(4, NSL): pfnone(k)
        a("s_branch %s\n%s:" % (le, l3))
        lpc = a.label("pc")
        a("s_getpc_b64 s[98:99]\n%s:" % lpc)
        a("s_lshr_b32 s%d, s2, 3\nv_lshlrev_b32 v26, 5, v0\nv_add_u32 v26, s%d, v26\nv_lshlrev_b32 v26, 7, v26\ns_mov_b32 s%d, 0" % (sT0, sT0, sT0))
        a("v_min_u32 v27, %s-%s, v26" % (lAttn, lpc))
        pfa(0, 98, 27, sT0, 0); a(pf(0))
        a("v_lshlrev_b32 v26, 13, v30\nv_lshl_add_u32 v26, v32, 7, v26")
        a("s_lshr_b32 s%d, s2, 3\ns_lshl_b32 s%d, s%d, 16\ns_and_b32 s%d, s2, 7\ns_lshl_b32 s%d, s%d, 10\ns_add_u32 s%d, s%d, s%d" % (sT0, sT0, sT0, sT1, sT1, sT1, sT0, sT0, sT1))
        pfa(QSL[0], pWQ, 26, sT0, 0); pfa(QSL[1], pWQ, 26, sT0, 4 * 0x80000)
        a("s_min_u32 s%d, s%d, 23\ns_lshl_b32 s%d, s%d, 7\ns_mul_i32 s%d, s%d, %d\ns_add_u32 s%d, s%d, s%d\nv_mul_u32_u24 v26, 3072, v0" % (sT0, sU, sT0, sT0, sT1, sI, 64 * 3072, sT0, sT0, sT1))
        pfa(QSL[2], pWQKV, 26, sT0, 0)
        for k in range(1, NSL):
            if k not in QSL: pfnone(k)
        a(le + ":")
    def pfp(p): return [pf(p + 2)] if (PF and p + 2 < NSL) else []
    a("v_and_b32 v33, 15, v0\nv_lshrrev_b32 v34, 1, v33\nv_xor_b32 v34, v34, v31\nv_lshlrev_b32 v34, 4, v34\nv_lshl_add_u32 v40, v33, 7, v34")
    a("s_and_b32 s%d, s%d, 1\ns_lshl_b32 s%d, s%d, 14\ns_add_u32 s%d, s%d, %d" % (sT0, sWV, sT0, sT0, sT0, sT0, aslot(0)))
    a("v_add_u32 v%d, s%d, v40\nv_xor_b32 v%d, 64, v%d" % (vAR[0], sT0, vAR[1], vAR[0]))
    a("v_lshrrev_b32 v35, 2, v0\nv_and_b32 v35, 3, v35\nv_lshl_add_u32 v36, v31, 3, v35")
    a("v_bfe_u32 v37, v0, 1, 1\nv_and_b32 v34, 1, v31\nv_lshl_add_u32 v37, v34, 1, v37\nv_and_b32 v38, 1, v0\nv_lshlrev_b32 v38, 3, v38")
    a("v_lshlrev_b32 v39, 2, v35\nv_xor_b32 v39, v39, v37\nv_lshlrev_b32 v39, 4, v39\nv_lshl_add_u32 v39, v36, 8, v39")
    a("s_lshr_b32 s%d, s%d, 1\ns_lshl_b32 s%d, s%d, 14\ns_add_u32 s%d, s%d, %d\nv_add3_u32 v39, v39, v38, s%d" % (sWD, sWV, sWD, sWD, sT0, sWD, WSL[0], sT0))
    for k in range(8): a("v_xor_b32 v%d, %d, v39" % (vWR[k], 32 * k))
    lpc2 = a.label("pc")
    a("s_getpc_b64 s[0:1]\n%s:" % lpc2)
    srd(a, SO, pWS, WS_SIZE); srd(a, SX, pGATE, 1024)
    a("s_mov_b32 s98, s%d\ns_mov_b32 s99, s%d" % (pWO0, pWO0 + 1))
    srd(a, SD, pDBG, 256)
    a("s_mov_b32 s%d, s98\ns_mov_b32 s%d, s99" % (pWO, pWO + 1))
    DF = []
    def d(t): DF.extend(t.split("\n"))
    d("s_lshl_b32 s%d, s%d, 6\nv_add_u32 v%d, s%d, v0\nv_lshlrev_b32 v%d, 12, v%d\nv_min_u32 v%d, 1, v%d\nv_lshlrev_b32 v%d, 29, v%d" % (sT0, sWV, vFO, sT0, vFO, vFO, vONE, vFO, vONE, vONE))
    d("s_getreg_b32 s%d, hwreg(HW_REG_XCC_ID, 0, 4)\ns_mul_i32 s%d, s%d, s%d\ns_lshl_b32 s%d, s%d, 8\ns_add_u32 s%d, s%d, s%d\ns_lshl_b32 s%d, s%d, 8\ns_add_u32 s%d, s%d, 1" % (sT0, sT1, sT0, sT0, sT1, sT1, sT1, sT1, sT0, sT1, sT1, sFA, sT1))
    d("v_mov_b32 v125, s%d\ns_lshl_b32 s%d, s%d, 3\ns_and_b32 s%d, s2, 7\ns_lshl_b32 s%d, s%d, 2\ns_lshl_b32 s%d, s%d, 2" % (sFA, sFA, sFA, sGR, sGR, sGR, sCNT, sH))
    d("v_and_b32 v126, 31, v0\ns_lshl_b32 s%d, s%d, 12\nv_lshl_add_u32 v126, v126, 2, s%d" % (sT0, sWV, sT0))
    d("s_min_u32 s%d, s%d, 1\ns_lshl_b32 s%d, s%d, 29\nv_and_b32 v124, 7, v0\nv_lshl_add_u32 v124, v124, 2, s%d" % (sT0, sWV, sT0, sT0, sT0))
    d("s_lshl_b32 s%d, s%d, 7\ns_add_u32 s%d, s%d, 0x%x\ns_lshl_b32 s%d, s%d, 2\ns_add_u32 s%d, s%d, s%d" % (sHL, sH, sHL, sHL, OFF_FL + 128 * 128, sU, sI, sU, sU, sHL))
    d("s_lshr_b32 s%d, s2, 3\ns_lshl_b32 s%d, s%d, 2\ns_add_u32 s%d, s%d, s%d\nv_and_b32 v127, 15, v0\nv_lshlrev_b32 v127, 7, v127\nv_add_lshl_u32 v127, v127, s%d, 7" % (sT0, sT0, sT0, sT0, sT0, sWV, sT0))
    d("v_min_u32 v127, %s-%s, v127" % (lRare, lpc2))
    d("v_lshrrev_b32 v39, 1, v35\nv_lshlrev_b32 v39, 2, v39\nv_xor_b32 v39, v39, v37\nv_lshlrev_b32 v39, 4, v39\nv_lshl_add_u32 v39, v36, 7, v39\nv_add_u32 v39, v39, v38\nv_add_u32 v39, %d, v39" % (WSL[0] + 16384))
    for k in range(3): d("v_xor_b32 v%d, %d, v39" % (vXR[k], 32 * k))
    d("s_and_b32 s%d, s%d, 3\ns_and_b32 s%d, s2, 7\ns_lshl_b32 s%d, s%d, 7" % (sT0, sH, sT1, sT1, sT1))
    d("s_lshl_b32 s%d, s%d, 5\ns_add_u32 s%d, s%d, s%d\ns_add_u32 s%d, s%d, %d" % (sT2, sT0, sT2, sT2, sT1, sT2, sT2, 2048 - 64))
    d("s_lshr_b32 s%d, s%d, 1\ns_lshl_b32 s%d, s%d, 10\ns_add_u32 s%d, s%d, s%d\ns_and_b32 s%d, s%d, 1\ns_lshl_b32 s%d, s%d, 6\ns_add_u32 s%d, s%d, s%d" % (sDS, sT0, sDS, sDS, sT1, sT1, sDS, sDS, sT0, sDS, sDS, sT1, sT1, sDS))
    d("v_and_b32 v33, 1, v31\nv_lshlrev_b32 v33, 2, v33\nv_xor_b32 v33, v33, v32\nv_mul_u32_u24 v34, 3072, v30\nv_mov_b32 v36, s%d\nv_mov_b32 v37, s%d\nv_mov_b32 v38, 0x1000000" % (sT1, sT2))
    for n in range(2):
        if n: d("v_xor_b32 v33, 2, v33\nv_add_u32 v34, %d, v34" % (24576 - 1024))
        d("v_cmp_gt_u32 vcc, 4, v33\nv_cmp_gt_u32 s[66:67], 6, v33\nv_lshl_add_u32 v35, v33, 4, v34\nv_cndmask_b32 v39, v37, v36, vcc\nv_cndmask_b32 v39, v38, v39, s[66:67]\nv_add_u32 v%d, v35, v39" % vXO[n])
    d("s_lshl_b32 s%d, s%d, 11\ns_lshl_b32 s%d, s%d, 13\ns_add_u32 s%d, s%d, s%d\ns_add_u32 s%d, s%d, %d" % (sT0, sT0, sT1, sWV, sT0, sT0, sT1, sT0, sT0, aslot(8)))
    d("v_add_u32 v%d, s%d, v40\nv_xor_b32 v%d, 64, v%d\nv_lshlrev_b32 v%d, 4, v31\nv_add_u32 v%d, %d, v%d" % (vGA2[0], sT0, vGA2[1], vGA2[0], vGR, vGR, LDS_G, vGR))
    d("s_lshl_b32 s%d, s%d, 2\ns_add_u32 s%d, s%d, s%d\ns_sub_u32 s%d, 60, s%d\ns_add_u32 s%d, s%d, s%d" % (sT1, sI, sQS, sT1, sWV, sQL, sT1, sQL, sQL, sWV))
    d("s_lshr_b32 s%d, s%d, 1\ns_lshl_b32 s%d, s%d, 5\ns_add_u32 s%d, s%d, s%d\ns_add_u32 s%d, s%d, 44\ns_lshl_b32 s%d, s%d, 19" % (sT0, sWV, sT0, sT0, sT0, sT0, sH, sT0, sT0, sOK, sT0))
    d("s_and_b32 s%d, s%d, 1\ns_lshl_b32 s%d, s%d, 1\ns_add_u32 s%d, s%d, s%d\ns_lshl_b32 s%d, s%d, 14\ns_add_u32 s%d, s%d, s%d" % (sT0, sWV, sT1, sI, sT0, sT0, sT1, sT0, sT0, sOK, sOK, sT0))
    d("s_lshl_b32 s%d, s%d, 16\ns_sub_u32 s%d, %d, s%d\ns_add_u32 s%d, s%d, 8192" % (sT0, sI, sOJ, 60 * 8192 - 4096, sT0, sOK2, sOK))
    d("s_lshl_b32 s%d, s%d, 13\ns_and_b32 s%d, s%d, 1\ns_lshl_b32 s%d, s%d, 14\ns_sub_u32 s%d, s%d, s%d\ns_add_u32 s%d, s%d, %d" % (sT0, sWV, sT1, sWV, sT1, sT1, sAD, sT0, sT1, sAD, sAD, aslot(8) - aslot(7)))
    PLA = "buffer_atomic_add v125, v%d, s[%d:%d], s%d offen sc1" % (vFO, SD, SD + 3, sCNT)

    def wofs(g): return (g % 2) * 32768
    def xa(g, ks, R=vAR):
        if g == 7: return "v_add_u32 v%d, s%d, v%d" % (R[ks], sAD, R[ks])
        d = aslot(g + 1) - aslot(g)
        return ("v_add_u32 v%d, 0x%x, v%d" % (R[ks], d, R[ks])) if d > 0 else ("v_subrev_u32 v%d, 0x%x, v%d" % (R[ks], -d, R[ks]))
    def rd_act(g, ks):
        F = (KS if g < 8 else QS)[ks]
        return ["ds_read_b128 %s, v%d offset:%d" % (vr(F + 4 * n, 4), vAR[ks], n * 2048) for n in range(8 if g < 8 else 4)]
    def rd_w(g, ks, wf, slot):
        r = WR + 4 * (slot % NWR)
        if wf < 8: return ["ds_read_b64_tr_b16 %s, v%d offset:%d" % (vr(r + 2 * rd_, 2), vWR[wf], wofs(g) + ks * 8192 + rd_ * 1024) for rd_ in range(2)]
        if wf < 11: return ["ds_read_b64_tr_b16 %s, v%d offset:%d" % (vr(r + 2 * rd_, 2), vXR[wf - 8], wofs(g) + ks * 4096 + rd_ * 512) for rd_ in range(2)]
        return ["ds_read_b128 %s, v%d offset:%d" % (vr(r, 4), vGR, ((g - 8) * 2 + ks) * 64), "ds_read_b128 %s, v%d" % (vr(GC, 4), vGA2[ks])] + ([xa(g, ks, vGA2)] if g < 15 else [])
    def mfs(g, ks, wf, slot, var):
        w = vr(WR + 4 * (slot % NWR), 4); F = (KS if g < 8 else QS)[ks]; first = (g % 8 == 0 and ks == 0)
        cb, tc = (wf % 8) // 2, wf % 2
        if wf == 11: return ["%s a[48:51], %s, %s, %s" % (MF16, w, vr(GC, 4), "0" if first else "a[48:51]")]
        M = []
        for n in range(8 if g < 8 else 4):
            rb, tr = n // 2, n % 2
            x = vr(F + 4 * n, 4)
            sw = (var == "V") or wf == 10
            tb, ta = (tc, tr) if sw else (tr, tc)
            if g < 8: acc = ar(((rb // 2) * 16 + cb * 4 + (rb % 2) * 2 + tb) * 8 + ta * 4, 4)
            elif wf < 8: acc = vr(QA + ((rb * 4 + cb) * 2 + tr) * 8 + tc * 4, 4)
            elif wf < 10: acc = ar(n * 8 + tc * 4, 4)
            else: acc = ar(32 + n * 4, 4)
            M.append("%s %s, %s, %s, %s" % (MF16, acc, x if sw else w, w if sw else x, "0" if first else acc))
        return M
    def order(g, var):
        nw = list(range(8 if g < 8 else 12))
        if g == 7: return [(ks, 2 * cb + t) for cb in range(4) for ks in range(2) for t in range(2)]
        if g == 15:
            return [(ks, wf) for ks in range(2) for wf in (8, 9, 10, 0, 1, 11)] + [(ks, 2 * cb + t) for cb in range(1, 4) for ks in range(2) for t in range(2)]
        return [(ks, wf) for ks in range(2) for wf in nw]
    def build(g0, var):
        fr = [(g, ks, wf) for g in range(g0, g0 + 8) for (ks, wf) in order(g, var)]
        M = []; fm = []
        for k, (g, ks, wf) in enumerate(fr):
            fm.append(len(M)); M += mfs(g, ks, wf, k, var)
        S_ = Sched(M); n = len(M)
        look = [(8, 0, wf) for wf in range(PDW)] if g0 == 0 else []
        allf = fr + look
        cs = {};
        for k, (g, ks, wf) in enumerate(allf): cs.setdefault(g, k)
        bar_m = {g: fm[cs[g] - PDW + 1] for g in cs if g > g0}
        for g, m in bar_m.items(): S_.bars[m] = g
        na = 8 if g0 == 0 else 4
        items = []
        for k in range(PDW, len(allf)):
            g, ks, wf = allf[k]
            t = fm[k - PDW]; e = bar_m.get(g, 0); use = fm[k] if k < len(fr) else n + 1 + (k - len(fr))
            if k == cs[g] and g == 8: items += [(max(t, e), 0, j, ("v_subrev_u32 v%d, s%d, v%d" % (r, sWD, r), t, e, None)) for j, r in enumerate(vWR)]
            items += [(max(t, e), 1 if k == cs[g] else 3, 4 * k + j, (x, t, e, use if x.startswith("ds_") else None)) for j, x in enumerate(rd_w(g, ks, wf, k))]
        for g in cs:
            for ks in range(2):
                if g == g0 and ks == 0: continue
                if g == 8 and g0 == 0 and ks == 1: continue
                R = rd_act(g, ks) + ([xa(g, ks)] if g < 15 else [])
                k1 = [k for k, f in enumerate(allf) if f[0] == g and f[1] == ks][0]
                u0 = fm[k1] if k1 < len(fr) else None
                for j, x in enumerate(R):
                    if ks == 0: t = e = bar_m[g]
                    else:
                        e = fm[cs[g]]; t = e + (j * min(u0 - e - 8, 40)) // len(R)
                    use = None if not x.startswith("ds_") else (u0 + j if u0 is not None else n)
                    items.append((max(t, e), 2, j, (x, t, e, use)))
        items.sort(key=lambda z: z[:3])
        S_.rq = [z[3] for z in items]
        S_.waitpts = [fm[k] for k in range(0, len(fr), 2)]
        S_.place_reads()
        return S_, {g: fm[cs[g]] for g in range(g0, g0 + 8)}, bar_m, fm
    def pack(areg, pk, scale=None):
        t = TT
        G = ["v_accvgpr_read_b32 v%d, a%d" % (t + j, areg + j) for j in range(8)]
        if scale is not None: G += ["v_mul_f32 v%d, s%d, v%d" % (t + j, scale, t + j) for j in range(8)]
        G += ["v_cvt_pk_bf16_f32 v%d, v%d, v%d" % (pk + j, t + 2 * j, t + 2 * j + 1) for j in range(4)]
        return G
    def kv_unit(j, nd=None):
        cb, rb, tb = (j % 16) // 4, (j // 2) % 2, j % 2
        pk = PK + 4 * (j % 4)
        G = pack(j * 8, pk) + ["buffer_store_dwordx4 %s, v%d, s[%d:%d], s%d offen offset:%d%s" % (vr(pk, 4), vL16, SO, SO + 3, (sOK, sOK2)[rb], (cb % 2) * 2048 + tb * 1024, " ; need:%d" % nd if nd else "")]
        if j == 15: G += ["s_add_u32 s%d, s%d, s%d" % (sOK, sOK, sOJ), "s_add_u32 s%d, s%d, s%d" % (sOK2, sOK2, sOJ)]
        elif j % 16 == 7: G += ["s_add_u32 s%d, s%d, 4096" % (sOK, sOK), "s_add_u32 s%d, s%d, 4096" % (sOK2, sOK2)]
        return G
    qa_setup = [["s_mov_b32 s%d, s%d" % (SA, pX), "s_mov_b32 s%d, s%d" % (SA + 1, pX + 1),
                 "s_lshl_b32 s%d, s%d, 15" % (sAS, sQL), "s_lshl_b32 s%d, s%d, 15" % (sAS2, sQS)]]
    qw_setup = [["s_mov_b32 m0, %d" % LDS_G, "s_mov_b32 s%d, s%d" % (SW, pWQ), "buffer_load_dwordx4 v%d, s[%d:%d], 0 offen lds ; need:8" % (vL16, SX, SX + 3), "s_mov_b32 s%d, s%d" % (SW + 1, pWQ + 1)],
                ["s_lshl_b32 s%d, s%d, 17" % (sT0, sWV), "s_lshl_b32 s%d, s%d, 8" % (sWS, sH), "s_add_u32 s%d, s%d, s%d" % (sWS, sWS, sT0), "s_lshl_b32 s%d, s%d, 12" % (sWM, sWV)],
                ["s_mov_b32 s%d, s%d" % (SX, pWQKV), "s_mov_b32 s%d, s%d" % (SX + 1, pWQKV + 1), "s_lshl_b32 s%d, s%d, 11" % (sXM, sWV), "s_mul_i32 s%d, s%d, %d" % (sXS, sWV, 16 * 3072)],
                ["s_mov_b32 s%d, 0x180000" % (SX + 2)]]
    at_setup = [["v_cmp_ne_u32 vcc, s%d, v125" % sFA, "v_mov_b32 v%d, 1" % vFO, "s_nop 0", "s_lshr_b32 s%d, vcc_lo, s%d" % (sT0, sGR), "s_and_b32 s%d, s%d, 15" % (sT0, sT0)],
                ["s_cmp_eq_u32 s%d, 0" % sT0, "s_cselect_b32 s%d, 1, s%d" % (sFA, sWV)],
                ["s_cmp_eq_u32 s%d, 0" % sWV, "s_cselect_b32 s46, 1, 0", "s_cselect_b32 s47, 2, 0"],
                ["s_lshl_b32 s%d, s%d, 12" % (sW4, sWV), "s_lshl_b32 s%d, s%d, 13" % (sW8, sWV), "s_lshl_b32 s%d, s%d, 19" % (sT0, sH)],
                ["s_lshl_b32 s%d, s%d, 15" % (sVD, sI), "s_add_u32 s%d, s%d, s%d" % (sT0, sT0, sVD)],
                ["s_add_u32 s%d, s%d, 0x%x" % (sKO, sT0, OFF_K), "s_add_u32 s%d, s%d, 0x%x" % (sVO, sT0, OFF_V), "s_mov_b32 s%d, %s" % (sTH, THRESH)]]
    sRA, sHP, sA0, sA1, sGB, sGA_, sGL_, sGS_, sP0, sP1_, sX0, sX1 = 36, 37, 38, 39, 64, 65, 66, 67, 68, 69, 70, 71
    sXO, sXR = 62, 95
    sFG, sFX, sRBK, sTIL = 96, 97, 60, 61
    late_setup = [["s_lshr_b32 s%d, s%d, 3" % (sX1, sH), "s_lshl_b32 s%d, s%d, 3" % (sFG, sX1), "s_add_u32 s%d, s%d, s%d" % (sFG, sFG, sI), "s_lshl_b32 s%d, s%d, 5" % (sFG, sFG),
                 "s_and_b32 s%d, s%d, 7" % (sX0, sH), "s_add_u32 s%d, s%d, s%d" % (sFG, sFG, sX0), "s_lshl_b32 s%d, s%d, 2" % (sFG, sFG), "s_add_u32 s%d, s%d, 0x%x" % (sFG, sFG, OFF_FL),
                 "s_sub_u32 s%d, 15, s%d" % (sX0, sI)], ["s_bitcmp1_b32 s2, 0", "s_cselect_b32 s%d, s%d, s%d" % (sRBK, sX0, sI)], ["s_lshl_b32 s%d, s%d, 2" % (sFX, sRBK),
                 "s_and_b32 s%d, s%d, 3" % (sX0, sH), "s_add_u32 s%d, s%d, s%d" % (sTIL, sFX, sX0), "s_lshl_b32 s%d, s%d, 5" % (sFX, sTIL), "s_add_u32 s%d, s%d, s%d" % (sFX, sFX, sX1),
                 "s_lshl_b32 s%d, s%d, 2" % (sFX, sFX), "s_add_u32 s%d, s%d, 0x%x" % (sFX, sFX, OFF_FL + 32 * 128)],
        ["s_bitcmp1_b32 s%d, 1" % sH, "s_cselect_b32 s%d, s%d, s%d" % (sRA, sQL, sQS)],
        ["s_and_b32 s%d, s%d, 1" % (sHP, sH), "s_lshr_b32 s%d, s%d, 1" % (sX0, sGR), "s_add_u32 s%d, s%d, s%d" % (sHP, sHP, sX0), "s_lshl_b32 s%d, s%d, 11" % (sGB, sGR), "s_add_u32 s%d, s%d, 0x%x" % (sGB, sGB, OFF_G)]]
    for d_, blk in ((sGA_, sRA), (sGL_, sQL), (sGS_, sQS)): late_setup.append(["s_lshl_b32 s%d, s%d, 7" % (d_, blk), "s_add_u32 s%d, s%d, s%d" % (d_, d_, sGB)])
    late_setup += [["s_lshr_b32 s%d, s%d, 2" % (sX0, sHP), "s_lshl_b32 s%d, s%d, 19" % (sX0, sX0), "s_and_b32 s%d, s%d, 3" % (sX1, sHP), "s_lshl_b32 s%d, s%d, 11" % (sX1, sX1),
         "s_add_u32 s%d, s%d, s%d" % (sX0, sX0, sX1), "s_lshl_b32 s%d, s%d, 13" % (sX1, sRA), "s_add_u32 s%d, s%d, s%d" % (sA0, sX0, sX1),
         "s_max_u32 s%d, s%d, 1" % (sX1, sRA), "s_sub_u32 s%d, s%d, 1" % (sX1, sX1), "s_lshl_b32 s%d, s%d, 13" % (sX1, sX1), "s_add_u32 s%d, s%d, s%d" % (sA1, sX0, sX1),
         "s_add_u32 s%d, s%d, %d" % (sA1, sA1, 4 * PH),
         "s_lshr_b32 s%d, s2, 3" % sX0, "s_lshl_b32 s%d, s%d, 2" % (sX0, sX0), "s_add_u32 s%d, s%d, s%d" % (sX0, sX0, sWV), "s_and_b32 s%d, s2, 6" % sX1,
         "s_lshl_b32 s%d, s%d, 6" % (sX1, sX1), "s_add_u32 s%d, s%d, s%d" % (sX0, sX0, sX1), "s_lshl_b32 s%d, s%d, 6" % (sP0, sX0), "s_lshl_b32 s%d, s%d, 3" % (sP1_, sX0),
         "s_mul_i32 s%d, s%d, %d" % (sXO, sTIL, 4 * 49152), "s_add_u32 s%d, s%d, s%d" % (sXO, sXO, sW4), "s_add_u32 s%d, s%d, 0x%x" % (sXO, sXO, OFF_X),
         "s_lshr_b32 s%d, s%d, 3" % (sXR, sH), "s_mul_i32 s%d, s%d, 49152" % (sXR, sXR), "s_add_u32 s%d, s%d, s%d" % (sXR, sXR, sXO),
         "s_add_u32 s%d, s%d, %d" % (sX0, sA0, 4 * PH), "s_add_u32 s%d, s%d, %d" % (sX1, sA0, 8 * PH), "s_add_u32 s%d, s%d, %d" % (sGB, sA1, 4 * PH)]]
    def ren(G, mp): return [[_re.sub(r"\bs(\d+)\b", lambda m_: "s%d" % mp.get(int(m_.group(1)), int(m_.group(1))), x) for x in g] for g in G]
    early = ren(late_setup[:3], {sFG: 64, sFX: 65})
    early += [["v_mov_b32 v28, 0"] + ["buffer_store_dword v28, v%d, s[%d:%d], s%d offen sc1 ; need:2" % (vONE, SO, SO + 3, r) for r in (64, 65, sU)]]
    SK, SV = SO, SO
    vK, vV = vL16, 2
    def dma(which, typ, par, srd_=None):
        so, sr_, base = (sKO, SK, 0) if which == "K" else (sVO, SV, 65536)
        if srd_ is not None: sr_ = srd_
        sw = sW4 if typ == 1 else sW8
        G = []
        for q in range(typ):
            g = ["s_add_u32 m0, s%d, %d" % (sw, base + par * 32768 + q * 4096)]
            g.append("s_add_u32 s%d, s%d, s%d" % (sDS, so, sw) if q == 0 else "s_add_u32 s%d, s%d, 4096" % (sDS, sDS))
            G.append(g)
            for o in range(4):
                G.append(["buffer_load_dwordx4 v%d, s[%d:%d], s%d offen offset:%d sc1 lds" % (vK, sr_, sr_ + 3, sDS, o * 1024)])
        return G
    def adv(which, typ):
        so = sKO if which == "K" else sVO
        if which == "V" and typ == 1: return ["s_add_u32 s%d, s%d, s%d" % (so, so, sVD), "s_movk_i32 s%d, 0x4000" % sVD]
        return ["s_add_u32 s%d, s%d, %d" % (so, so, 16384 * typ)]
    spins = []
    vF1, vFA, vPO = 122, 251, 250
    sP1, sG1, sG2 = 45, 46, 47
    def poll_load(kind):
        if kind == 0: return "buffer_load_dword v125, v126, s[%d:%d], 0 offen sc1" % (SD, SD + 3)
        if kind == 1: return "buffer_load_dword v%d, v124, s[%d:%d], s%d offen sc1" % (vF1, SO, SO + 3, sHL)
        if kind == 4: return "buffer_load_dword v195, v192, s[%d:%d], s%d offen sc1" % (SO, SO + 3, sG2)
        return "buffer_load_dword v%d, v%d, s[%d:%d], s%d offen sc1" % (vFA, vPO, SO, SO + 3, sHL)
    def poll_cmp(kind):
        if kind == 0: return "v_and_b32 v%d, 0xff, v125\nv_cmp_gt_u32 vcc, s%d, v%d" % (vFO, sP1, vFO)
        return "v_cmp_gt_u32 vcc, s%d, v%d" % ((sG1, vF1) if kind == 1 else (sG2, vFA) if kind == 2 else (sG1, 195))
    def poll_check(kind):
        ls, lb = a.label("spin"), a.label("spun")
        a("%s\ns_cbranch_vccnz %s\n%s:" % (poll_cmp(kind), ls, lb))
        spins.append((ls, lb, kind))
    rels = []
    def release():
        ls, lb = a.label("rel"), a.label("reld")
        a("s_cmp_eq_u32 s%d, 0\ns_cbranch_scc1 %s\n%s:" % (sFA, ls, lb))
        rels.append((ls, lb))

    st_("setup")
    bar("s_waitcnt vmcnt(1)")
    st_("bar0")

    pre0 = rd_w(0, 0, 0, 0) + rd_act(0, 0) + [x for k in range(1, PDW) for x in rd_w(0, 0, k, k)]
    use0 = [0, 0] + list(range(8)) + [8 * k for k in range(1, PDW) for _ in range(2)]
    for x in pre0: a(x)
    a(xa(0, 0))
    lV = a.label("kvV"); lQ = a.label("qphase")
    a("s_cmp_ge_u32 s%d, 2\ns_cbranch_scc1 %s" % (sWV, lV))
    NKV = 12
    CRL = "global_load_dword v122, v127, s[0:1]"
    for var in ("K", "V"):
        if var == "V": a(lV + ":")
        t2[0] = 1
        S_, cm, bm, fm = build(0, var)
        S_.place(dma_w(1) + dma_act(1), 0, 56)
        S_.place(dma_act(2) + pfp(-1), 56, bm[1] - 2)
        for g in range(1, 9):
            b = bm[g]; e = bm.get(g + 1, S_.n + 96)
            Wn = (soft(qw_setup) if g == 7 else []) + dma_w(g + 1) + pfp(g - 1)
            if g in (3, 5, 7): Wn = Wn + [CRL]
            if g == 2: Wn = Wn + [PLA]
            if g == 6: Wn = Wn + [poll_load(0) + " ; need:7", ["s_cmp_eq_u32 s%d, 0" % sWV, "s_cselect_b32 s%d, 8, 0" % sP1]]
            S_.place(Wn, b, b + (44 if g < 8 else 31))
            if g < 8: S_.place((flat(qa_setup) if g == 6 else []) + dma_act(g + 2) + (soft(at_setup) if g == 7 else []), b + 44, e - 8)
        S_.place(DF[:34] + soft(early), 2, bm[1] + 8)
        S_.place(DF[34:], bm[1] + 8, bm[3] - 4)
        S_.hooks[7] = lambda: poll_check(0)
        for cb in range(3):
            S_.place([x for j in range(4 * cb, 4 * cb + 4) for x in kv_unit(j, GPUB)], cm[7] + 32 * cb + 38, cm[7] + 32 * cb + 70 if cb < 2 else S_.n)
        vmh = S_.emit(a, bar, use0, [])
        left = S_.left; nkv = S_.n
        if VERB: print("KV over", S_.over)
        if var == "K": a("s_branch %s" % lQ)
    a(lQ + ":")
    st_("q")
    use8 = [0 if u == nkv else 4 * (u - nkv - 1) for u in left]
    t2[0] = 9
    S_, cm, bm, fm = build(8, "Q")
    per = cm[9] - cm[8]
    S_.place(dma_act(10), 0, bm[9] - 6)
    for g in range(9, 16):
        b = bm[g]; e = bm.get(g + 1, S_.n)
        Wn = dma_w(g + 1) if g < 15 else [x + " ; need:16" if isvm(x) else x for x in flat(dma("K", 1, 1))]
        if g == GPUB:
            S_.hooks[g] = release
            Wn = Wn + ["buffer_store_dword v%d, v%d, s[%d:%d], s%d offen sc1" % (vFO, vONE, SO, SO + 3, sU)]
        if g in (9, 11, 13): Wn = Wn + [CRL]
        S_.place(Wn, b, b + 34)
        S_.place(dma_act(g + 2) if g + 2 < 16 else flat(dma("K", 1, 0) + [adv("K", 1)]) + [poll_load(1)] if g == 14 else [], b + 34, e - 6)
    S_.place(soft(late_setup), cm[10], cm[14])
    zero = lambda lo, hi: ["v_accvgpr_write_b32 a%d, 0" % r for r in range(lo, hi)]
    S_.place([x for j in range(NKV, 16) for x in kv_unit(j, GPUB)], 8, cm[9] + per // 2)
    S_.place([x for j in range(16, 32) for x in kv_unit(j)] + zero(52, 128), cm[9] + per // 2, cm[15] + 20)
    hd = ["s_and_b32 s%d, s%d, 1" % (sT0, sH), "s_lshr_b32 s%d, s%d, 1" % (sT1, sGR), "s_add_u32 s%d, s%d, s%d" % (sT0, sT0, sT1),
          "s_and_b32 s%d, s%d, 2" % (sT2, sH), "s_lshl_b32 s%d, s%d, 20" % (sAS, sT2), "s_lshr_b32 s%d, s%d, 1" % (sT2, sT2), "s_add_u32 s%d, s%d, s%d" % (sT1, sT1, sT2),
          "s_lshr_b32 s%d, s%d, 2" % (sT2, sT0), "s_lshl_b32 s%d, s%d, 19" % (sT2, sT2), "s_add_u32 s%d, s%d, s%d" % (sAS, sAS, sT2), "s_and_b32 s%d, s%d, 3" % (sT0, sT0), "s_lshl_b32 s%d, s%d, 11" % (sT0, sT0),
          "s_add_u32 s%d, s%d, s%d" % (sAS, sAS, sT0),
          "s_lshr_b32 s%d, s%d, 2" % (sT2, sT1), "s_add_u32 s%d, s%d, 8" % (sT2, sT2), "s_lshl_b32 s%d, s%d, 19" % (sAS2, sT2), "s_and_b32 s%d, s%d, 3" % (sT1, sT1), "s_lshl_b32 s%d, s%d, 11" % (sT1, sT1),
          "s_add_u32 s%d, s%d, s%d" % (sAS2, sAS2, sT1), "s_and_b32 s%d, s%d, 1" % (sT0, sH), "s_lshl_b32 s%d, s%d, 10" % (sT0, sT0), "s_add_u32 s%d, s%d, s%d" % (sAS2, sAS2, sT0),
          "s_lshl_b32 s%d, s%d, 13" % (sT0, sQL), "s_lshl_b32 s%d, s%d, 13" % (sT1, sQS),
          "s_add_u32 s%d, s%d, s%d" % (sWS, sAS, sT0), "s_add_u32 s%d, s%d, s%d" % (sXS, sAS, sT1), "s_add_u32 s%d, s%d, s%d" % (sAM, sAS2, sT0), "s_add_u32 s%d, s%d, s%d" % (sWM, sAS2, sT1),
          ["s_bitcmp1_b32 s%d, 1" % sH, "s_cselect_b32 s%d, 1.0, %s" % (sSC, fbits(LOG2E * 0.25)), "s_cselect_b32 s%d, s%d, s%d" % (sXM, sGS_, sGL_)],
          "s_and_b32 s%d, s%d, 1" % (sT0, sH), "s_lshl_b32 s%d, s%d, 6" % (sT0, sT0), "s_add_u32 s%d, s%d, s%d" % (sXM, sXM, sT0)]
    AE = []
    for j in range(6):
        pk = PK + 4 * (j % 4)
        so, off = ((sWS, sXS)[j // 2], (j % 2) * 1024) if j < 4 else ((sAM, sWM)[j - 4], 0)
        AE += pack(j * 8, pk, sSC if j < 4 else None) + ["buffer_store_dwordx4 %s, v%d, s[%d:%d], s%d offen offset:%d" % (vr(pk, 4), vL16, SO, SO + 3, so, off)]
    AE += ["v_accvgpr_read_b32 v%d, a48" % TT, "v_and_b32 v%d, 15, v0" % (TT + 1), "v_mul_f32 v%d, %s, v%d" % (TT, fbits(-LOG2E), TT), "v_exp_f32 v%d, v%d" % (TT, TT), "v_lshlrev_b32 v%d, 2, v%d" % (TT + 1, TT + 1),
           "v_add_f32 v%d, 1.0, v%d" % (TT, TT), "v_rcp_f32 v%d, v%d" % (TT, TT), "s_nop 0", "buffer_store_dword v%d, v%d, s[%d:%d], s%d offen" % (TT, TT + 1, SO, SO + 3, sXM)]
    S_.place(hd, bm[15] + 2, cm[15] + 38)
    room = S_.room(cm[15] + 40, S_.n) - 8
    S_.place(AE[:room], cm[15] + 40, S_.n); tail = AE[room:]
    vm2 = S_.emit(a, bar, use8, vmh)
    if VERB: print("Q over", S_.over, "tail", len(tail))
    for x in tail: a(x)
    a("s_waitcnt vmcnt(%d)" % (len(vm2) - 1 - max(k for k, nd in enumerate(vm2) if nd == 16) + sum(1 for x in tail if isvm(x))))
    a(lAttn + ":")
    st_("attn")
    vU = 3; vL = (4, 5, 6, 7); vG = (8, 9, 14, 15); vX = 10
    S = (16, 80); P = (144, 176); NM, LT, TM, ONES = 208, 224, 240, 252
    vT8, vNEG = 248, 249
    O, Q, FR, NFR = 0, 128, 192, 16
    ms = (26, 28, 30, 4)
    def kfrag(p, kb, s): return ("K", p * 32768 + (kb // 2) * 8192 + s * 2048 + (kb % 2) * 1024)
    def vfrag(p, kp, dt): return ("V", p * 32768 + kp * 8192 + dt * 1024)
    def rd(slot, fr): return "ds_read_b128 %s, v%d offset:%d" % (ar(FR + 4 * (slot % NFR), 4), vK if fr[0] == "K" else vV, fr[1])
    def pvm(Pp, nq, kp, dt): return ["%s %s, {F}, %s, %s" % (MF16, ar(O + (qb * 8 + dt) * 4, 4), vr(Pp + (kp * nq + qb) * 4, 4), ar(O + (qb * 8 + dt) * 4, 4)) for qb in range(nq)]
    def mf_list(p, pv, qk):
        L = []; Pp = P[1 - p]; Sn = S[1 - p]
        if pv in (1, 2):
            nq = 4 // pv
            L += [(vfrag(1 - p, kp, dt), pvm(Pp, nq, kp, dt)) for kp in range(2 * pv) for dt in range(8)]
        elif pv == 3:
            L += [(("K", vfrag(1, kp, dt)[1]), pvm(Pp, 2, kp, dt)) for dt in range(8) for kp in range(4)]
        if qk:
            nq = 4 // qk
            for kb in range(4 * qk):
                for s in range(4):
                    ms_ = []
                    for qb in range(nq):
                        d = vr(Sn + ((kb // 2) * nq + qb) * 8 + (kb % 2) * 4, 4)
                        ms_.append("%s %s, {F}, %s, %s" % (MF16, d, ar(Q + (qb * 4 + s) * 4, 4), d if s else vr(NM + qb * 4, 4)))
                    L.append((kfrag(1 - p, kb, s), ms_))
        return L
    def ex(p, n): return "v_exp_f32 v%d, v%d" % (TM + n % 8, S[p] + n)
    def cv(p, j): return "v_cvt_pk_bf16_f32 v%d, v%d, v%d" % (P[p] + j, TM + (2 * j) % 8, TM + (2 * j) % 8 + 1)
    def summ(p, sm, q):
        nq = 4 // sm; d = vr(LT + (q % nq) * 4, 4)
        return "%s %s, %s, %s, %s" % (MF16, d, vr(ONES, 4), vr(P[p] + 4 * q, 4), d if q >= nq else "0")
    def chks(sm):
        c = ["v_max3_f32 v%d, v%d, v%d, v%d" % (vX, LT, LT + 4, LT + 8), "v_max_f32 v%d, v%d, v%d" % (vX, vX, LT + 12)] if sm == 1 else ["v_max_f32 v%d, v%d, v%d" % (vX, LT, LT + 4)]
        return c + ["v_cmp_lt_f32 vcc, s%d, v%d" % (sTH, vX)]
    rare = {}
    def step(p, pv, sm, qk, dK, dV, pre_in=True, pre_out=True, extra_vm=None, chk=0, last16=False, staged=None, trail=None, vm_first=False, flush=False, ctl=None):
        L = mf_list(p, pv, qk); nf = len(L)
        nxt = [x[0] for x in mf_list(1, 3, 0)][:PD] if last16 else [vfrag(p, kp, dt) for kp in range(2) for dt in range(8)][:PD]
        M0 = [(f, t) for f, (fr, ts_) in enumerate(L) for t in ts_]
        nb = len(M0); M = []; spos = []
        endm = nb - 13
        ins = {((q + 1) * endm) // 8 + 3: q for q in range(8)} if sm else {}
        for m, it in enumerate(M0):
            M.append(it)
            if m in ins: spos.append(len(M)); M.append((it[0], summ(p, sm, ins[m])))
        nm = len(M)
        G = []
        if dV: G += dma("V", dV, p) + [adv("V", dV)]
        if dK: G += dma("K", dK, p) + [adv("K", dK)]
        ntr = sum(1 for x in flat(trail or []) if isvm(x))
        G = ((extra_vm or []) + G if vm_first else G + (extra_vm or [])) + (trail or [])
        firstm = {}
        for m, (f, t) in enumerate(M): firstm.setdefault(f, m)
        barf = nf + 1 - PD
        if barf % WP: barf += WP - barf % WP
        if not pre_out or last16: barf = nf + 99
        Gp = Gaps([12] * (nm - 1) + [4])
        sR = Gp.newstream(); pre = None
        allfr = [x[0] for x in L] + (nxt if pre_out else [])
        nrd = PD
        for f in range(nf):
            m = firstm[f]; w_ = None
            if f == barf: w_ = ["s_BARW", "s_BAR"]
            elif f < barf and f % WP == 0: w_ = ["s_waitcnt lgkmcnt(%d)" % max(0, nrd - 1 - min(f + WP - 1, nf - 1))]
            if w_ and m == 0: pre = w_
            elif w_:
                for x in w_: Gp.add(m - 1, sR, x)
            want = min(f + PD, len(allfr) - 1)
            if f < barf and not last16: want = min(want, nf - 1)
            k = m
            while nrd <= want and k < m + 2:
                Gp.add(k, sR, rd(nrd, allfr[nrd])); nrd += 1; k += 1
        assert nrd == len(allfr), (nrd, len(allfr))
        hiD = min(max(2 * len(G), (nm * DFR) // 16), firstm[barf] - 8 if barf < nf else nm)
        Gp.place(flat(G), 1, hiD, slack=40)
        if pv in (1, 2) and not last16: Gp.place(["v_add_f32 v%d, v%d, v%d" % (vL[qb], vL[qb], LT + 4 * qb) for qb in range(4 // pv)], 0, 10)
        if ctl: Gp.place([ctl], nm - 8, nm - 3)
        if sm:
            pe = []; lo = 0
            for q in range(8):
                hi = spos[q] - 3
                pe += Gp.place([ex(p, n) for n in range(8 * q, 8 * q + 8)], lo, hi, slack=16, ahead=8); lo = hi
            sC = Gp.newstream(); k = 0
            for j in range(32):
                k = max(k, pe[2 * j + 1] + 1)
                dl = min(pe[2 * j + 8] - 1 if 2 * j + 8 < 64 else nm, spos[j // 4] - 3)
                assert k <= dl, (j, k, dl)
                cand = [z for z in range(k, dl + 1) if gcost(Gp.g[z] + [(sC, cv(p, j))]) <= Gp.cap[z]]
                k = cand[0] if cand else min(range(k, dl + 1), key=lambda z: gcost(Gp.g[z]))
                Gp.add(k, sC, cv(p, j))
            Gp.place(chks(sm), nm - 3, nm - 1)
        for (lst, lo, hi) in (staged or []): Gp.place(lst, lo, hi)
        if VERB: print("step", p, pv, sm, qk, "gaps", nm, "over", Gp.over())
        if not pre_in:
            for f in range(PD): a(rd(f, L[f][0]))
        for x in pre or []: a(x)
        for m, (f, t) in enumerate(M):
            a(t.replace("{F}", ar(FR + 4 * (f % NFR), 4)))
            for x in Gp.out(m):
                if x == "s_BARW": continue
                if x == "s_BAR":
                    if TS3: a("s_mov_b32 m0, s76\ns_add_u32 s76, s76, 1\nv_writelane_b32 v11, s72, m0\ns_mov_b32 m0, s76\ns_add_u32 s76, s76, 1\nv_writelane_b32 v11, s74, m0\ns_memtime s[72:73]")
                    a("s_waitcnt vmcnt(%d) lgkmcnt(0)" % ntr)
                    if chk: poll_check(chk)
                    a("s_barrier")
                    if TS3: a("s_memtime s[74:75]\ns_waitcnt lgkmcnt(0)")
                else: a(x)
        assert nf % NFR == 0
        if sm:
            key = (p, sm, qk if qk else sm)
            if key not in rare: rare[key] = (a.label("rare"), [])
            lb = a.label("back"); lj = a.label("jr")
            rare[key][1].append((lj, lb))
            a("s_cbranch_vccnz %s\n%s:" % (lj, lb))
            if last16 or flush:
                for qb in range(4 // sm): a("v_add_f32 v%d, v%d, v%d" % (vL[qb], vL[qb], LT + 4 * qb))
    def qregs(base, typ, qb):
        nq = 4 // typ
        return [base + (kp * nq + qb) * 8 + j for kp in range(2 * typ) for j in range(8)]
    def maxtree(dst, R):
        L = ["v_max3_f32 v%d, v%d, v%d, v%d" % (dst, R[0], R[1], R[2])]; j = 3
        while j + 1 < len(R):
            L.append("v_max3_f32 v%d, v%d, v%d, v%d" % (dst, dst, R[j], R[j + 1])); j += 2
        if j < len(R): L.append("v_max_f32 v%d, v%d, v%d" % (dst, dst, R[j]))
        return L
    def xlane(op, D, Tm):
        L = []
        for sw in ("v_permlane16_swap_b32", "v_permlane32_swap_b32"):
            L += ["v_mov_b32 v%d, v%d" % (t, d) for d, t in zip(D, Tm)]
            if len(D) < 3: L.append("s_nop %d" % (2 - len(D)))
            L += ["%s v%d, v%d" % (sw, d, t) for d, t in zip(D, Tm)]
            L += ["%s v%d, v%d, v%d" % (op, d, d, t) for d, t in zip(D, Tm)]
        return L
    def mask(base, blocks, pad=True):
        if pad: a("s_nop 7")
        for (r0, kb) in blocks:
            r0 += base
            lf = a.label("mfull"); le_ = a.label("mend")
            a("s_cmp_gt_u32 s%d, %d\ns_cbranch_scc1 %s" % (sWV, kb, le_))
            for r in range(4): a("v_mov_b32 v%d, v%d" % (r0 + 4 + r, vNEG))
            if kb > 0: a("s_cmp_lt_u32 s%d, %d\ns_cbranch_scc1 %s" % (sWV, kb, lf))
            for r in range(4): a("v_cmp_gt_i32 s[%d:%d], %d, v%d" % (ms[r], ms[r] + 1, r, vU))
            for t in (0, 12):
                for r in range(4): a("v_cndmask_b32 v%d, v%d, v%d, s[%d:%d]" % (r0 + t + r, r0 + t + r, vNEG, ms[r], ms[r] + 1))
            if kb > 0:
                a("s_branch %s\n%s:" % (le_, lf))
                for r in list(range(4)) + list(range(8, 16)): a("v_mov_b32 v%d, v%d" % (r0 + r, vNEG))
            a(le_ + ":")
    poll_check(1)
    bar("s_nop 0")
    if TS2:
        a("s_waitcnt lgkmcnt(0)"); bar("s_nop 0")
        a("s_lshl_b32 s78, s2, 2\ns_add_u32 s78, s78, s%d\ns_lshl_b32 s78, s78, 8\ns_add_u32 s78, s78, 0x%x\nv_lshlrev_b32 v122, 2, v0" % (sWV, OFF_TS + 0x80000))
        a("buffer_store_dword v123, v122, s[%d:%d], s78 offen\ns_waitcnt vmcnt(0)" % (SO, SO + 3))
    a("s_mov_b32 s%d, %s" % (sSC, fbits(LOG2E / math.sqrt(128.0))))
    fr0 = [kfrag(0, kb, s) for s in range(4) for kb in range(4)]
    for f in range(12): a(rd(f, fr0[f]))
    def qepi(cb):
        G = []
        for qb in range(4):
            src = QA + (((qb // 2) * 4 + cb) * 2 + qb % 2) * 8
            G += ["v_mul_f32 v%d, s%d, v%d" % (src + j, sSC, src + j) for j in range(8)]
            G += ["v_cvt_pk_bf16_f32 v%d, v%d, v%d" % (src + j, src + 2 * j, src + 2 * j + 1) for j in range(4)]
            G += ["v_accvgpr_write_b32 a%d, v%d" % (Q + (qb * 4 + cb) * 4 + j, src + j) for j in range(4)]
        return G
    a("s_add_u32 s%d, s%d, 0x4000\ns_sub_u32 s%d, s%d, s%d\ns_cmp_eq_u32 s%d, 0\ns_cselect_b32 s%d, 0x8000, 0\ns_add_u32 s%d, s%d, s%d" % (sT1, sVD, sKO, sKO, sT1, sI, sT0, sKO, sKO, sT0))
    for x in flat(dma("V", 1, 0)): a(x)
    a("s_add_u32 s%d, s%d, 0x4000\ns_sub_u32 s%d, 0, s%d" % (sVO, sVO, sVD, sT1))
    for x in qepi(0): a(x)
    for f in range(12, 16): a(rd(f, fr0[f]))
    misc = ["v_add_u32 v%d, 0x10000, v%d" % (vV, vK), "v_and_b32 v10, 15, v0", "v_lshrrev_b32 v11, 4, v0", "v_lshlrev_b32 v11, 2, v11", "v_sub_u32 v%d, v10, v11" % vU]
    misc += ["v_mov_b32 v%d, 0" % r for r in vL] + ["v_mov_b32 v%d, %s" % (vNEG, NEG), "v_bfe_u32 v%d, v0, 3, 2" % vPO, "v_lshl_add_u32 v%d, v%d, 7, v124" % (vPO, vPO), "s_and_b32 s%d, s%d, 0xfffffe00" % (sHL, sHL)]
    misc += ["v_mov_b32 v%d, 0x3f803f80" % r for r in range(ONES, ONES + 4)] + ["v_mov_b32 v14, v%d" % vONE, "v_mov_b32 v15, 2"] + zero(0, 52)
    a("s_waitcnt lgkmcnt(0)\ns_barrier")
    K2 = flat(dma("K", 2, 0)) + [["s_cmp_eq_u32 s%d, 0" % sI, "s_cselect_b32 s%d, 2, 1" % sT0], "s_lshl_b32 s%d, s%d, 14" % (sT0, sT0), "s_add_u32 s%d, s%d, s%d" % (sKO, sKO, sT0)]
    Gp = Gaps([12] * 64)
    Gp.place(K2, 0, 40)
    for s in range(4): Gp.place(qepi(s + 1) if s < 3 else misc, 16 * s, 16 * s + 16, slack=4)
    for s in range(4):
        for n in range(16):
            qb, kb = n // 4, n % 4
            d = vr(S[0] + ((kb // 2) * 4 + qb) * 8 + (kb % 2) * 4, 4)
            a("%s %s, %s, %s, %s" % (MF16, d, ar(FR + 4 * (4 * s + kb), 4), ar(Q + (qb * 4 + s) * 4, 4), d if s else "0"))
            for x in Gp.out(16 * s + n): a(x)
    st_("m1")
    mask(S[0], [(16, 0), (48, 1)])
    MXr, MXt = (240, 241, 242, 243), (244, 245, 246, 247)
    for qb in range(4):
        for x in maxtree(MXr[qb], qregs(S[0], 1, qb)): a(x)
    for x in xlane("v_max_f32", MXr, MXt): a(x)
    for qb in range(4):
        for j in range(4): a("v_sub_f32 v%d, 0, v%d" % (NM + qb * 4 + j, MXr[qb]))
    for qb in range(4):
        for r in qregs(S[0], 1, qb): a("v_sub_f32 v%d, v%d, v%d" % (r, r, MXr[qb]))
    st_("first")
    if TS3: a("s_mov_b32 s76, 0\ns_mov_b32 s72, 0\ns_mov_b32 s74, 0")
    step(0, 0, 1, 1, 0, 0, pre_in=False)
    release()
    a("buffer_store_dword v15, v14, s[%d:%d], s%d offen sc1" % (SO, SO + 3, sU))
    mask(S[1], [(16, 2), (48, 3)], pad=False)
    st_("s0")
    lT0, lT1, lT1b, lL1, lL2, lS15, lMid, lI7, lEn = [a.label(x) for x in ("T0", "T1", "T1b", "L1", "L2", "S15", "MID", "I7", "END")]
    PL = [[poll_load(2)]]
    AF = [Q + 4 * j for j in range(9)]
    def ld(dst, so, off): return "buffer_load_dwordx4 %s, v%d, s[%d:%d], s%d offen offset:%d sc1" % (ar(dst, 4), vK, SV, SV + 3, so, off)
    AOP = [ld(AF[0], sA0, 0), ld(AF[1], sA0, 1024), ld(AF[2], sX0, 0), ld(AF[3], sX0, 1024), ld(AF[4], sA1, 1024),
           ld(AF[5], sX1, 0), ld(AF[6], sX1, 1024), ld(AF[7], sGB, 0), ld(AF[8], sGB, 1024)]
    AOP += ["v_and_b32 v12, 15, v0", "v_lshlrev_b32 v12, 2, v12"] + ["buffer_load_dword a%d, v12, s[%d:%d], s%d offen offset:%d sc1" % (Q + 36 + t, SV, SV + 3, sGA_, 64 * t) for t in range(2)]
    ALD = [["v_and_b32 v12, 15, v0", "v_lshlrev_b32 v12, 2, v12"]]
    ALD += [["buffer_load_dword v%d, v12, s[%d:%d], s%d offen offset:%d sc1" % (vG[qb], SV, SV + 3, (sGL_, sGS_)[qb // 2], 64 * (qb % 2))] for qb in range(4)]
    def wpf(dst): return [["v_add_lshl_u32 v%d, v0, s%d, 7" % (vT8, sP0), "global_load_dword v%d, v%d, s[%d:%d]" % (dst, vT8, pBWO, pBWO + 1)],
                          ["v_and_b32 v12, 7, v0", "v_add_lshl_u32 v12, v12, s%d, 7" % sP1_, "global_load_dword v%d, v12, s[%d:%d]" % (dst, pWO, pWO + 1)]]
    TR0, TR15 = wpf(vG[0]), wpf(vT8)
    a("s_cmp_eq_u32 s%d, 0\ns_cbranch_scc1 %s" % (sI, lT1))
    a("s_mov_b32 s%d, s%d" % (sT, sI))
    a(".p2align 6\n" + lL1 + ":")
    step(1, 1, 1, 1, 1, 1, ctl=["s_sub_u32 s%d, s%d, 1" % (sT, sT)])
    a("s_cmp_eq_u32 s%d, 0\ns_cbranch_scc1 %s" % (sT, lT0))
    step(0, 1, 1, 1, 1, 1)
    a("s_branch %s" % lL1)
    a(lT0 + ":")
    a("s_add_u32 s%d, s%d, 0x8000" % (sKO, sKO))
    step(0, 1, 1, 1, 2, 1, extra_vm=PL, chk=2, trail=TR0)
    a("s_cmp_eq_u32 s%d, 7\ns_cbranch_scc1 %s" % (sI, lT1b))
    a(lT1 + ":")
    step(1, 1, 1, 2, 2, 1)
    a("s_add_u32 s%d, s%d, 0x8000" % (sVO, sVO))
    step(0, 1, 2, 2, 2, 2, extra_vm=PL, chk=2, trail=TR0)
    a("s_sub_u32 s%d, 6, s%d\ns_cmp_eq_u32 s%d, 0\ns_cbranch_scc1 %s" % (sT, sI, sT, lS15))
    a(".p2align 6\n" + lL2 + ":")
    step(1, 2, 2, 2, 2, 2)
    step(0, 2, 2, 2, 2, 2, ctl=["s_sub_u32 s%d, s%d, 1" % (sT, sT)])
    a("s_cmp_lg_u32 s%d, 0\ns_cbranch_scc1 %s" % (sT, lL2))
    a(lS15 + ":")
    a("s_add_u32 s%d, s%d, 0x8000" % (sKO, sVO))
    step(1, 2, 2, 2, 2, 2, extra_vm=ALD, trail=TR15, vm_first=True, flush=True)
    a("s_branch %s" % lMid)
    a(lT1b + ":")
    a("s_add_u32 s%d, s%d, 0xc000" % (sKO, sVO))
    step(1, 1, 1, 2, 2, 1, extra_vm=ALD, trail=TR15, vm_first=True, flush=True)
    def fin_head(rb, so):
        q0, q1 = 2 * rb, 2 * rb + 1
        return ["v_rcp_f32 v%d, v%d" % (vL[q0], vL[q0]), "v_rcp_f32 v%d, v%d" % (vL[q1], vL[q1]), "v_sub_f32 v%d, 1.0, v%d" % (vG[q0], vG[q0]), "v_sub_f32 v%d, 1.0, v%d" % (vG[q1], vG[q1]),
                "s_mul_i32 s%d, s%d, %d" % (so, (sQL, sQS)[rb], CROW), "s_lshl_b32 s%d, s%d, 13" % (sT1, sH), "v_mul_f32 v%d, v%d, v%d" % (vL[q0], vL[q0], vG[q0]), "v_mul_f32 v%d, v%d, v%d" % (vL[q1], vL[q1], vG[q1]),
                "s_add_u32 s%d, s%d, s%d" % (so, so, sT1), "s_add_u32 s%d, s%d, 0x%x" % (so, so, OFF_C)]
    def fin_part(rb, c, t, so):
        u, tq = c // 2, c % 2; qb = 2 * rb + tq
        G = ["v_accvgpr_read_b32 v%d, a%d" % (t + j, O + qb * 32 + u * 8 + j) for j in range(8)]
        G += ["v_mul_f32 v%d, v%d, v%d" % (t + j, vL[qb], t + j) for j in range(8)]
        G += ["v_cvt_pk_bf16_f32 v%d, v%d, v%d" % (t + j, t + 2 * j, t + 2 * j + 1) for j in range(4)]
        if c == 4: G.append("s_add_u32 s%d, s%d, 4096" % (so, so))
        G.append("buffer_store_dwordx4 %s, v%d, s[%d:%d], s%d offen offset:%d sc1" % (vr(t, 4), vK, SV, SV + 3, so, (c % 4) * 1024))
        return G
    a(lMid + ":")
    st_("mid")
    if TS3:
        a("s_mov_b32 m0, s76\ns_add_u32 s76, s76, 1\nv_writelane_b32 v11, s72, m0\ns_mov_b32 m0, s76\ns_add_u32 s76, s76, 1\nv_writelane_b32 v11, s74, m0")
        a("s_lshl_b32 s78, s2, 2\ns_add_u32 s78, s78, s%d\ns_lshl_b32 s78, s78, 8\ns_add_u32 s78, s78, 0x%x\nv_lshlrev_b32 v10, 2, v0" % (sWV, OFF_TS + 0x80000))
        a("buffer_store_dword v11, v10, s[%d:%d], s78 offen\ns_nop 4" % (SO, SO + 3))
    for x in AOP: a(x)
    mask(S[0], [(16 * kp, kp) for kp in range(4)], pad=False)
    PW, PW2 = 8, 12
    sWB, sHW, sWC, sAB, sHA, sAC = 25, 32, 33, 34, 35, 45
    vD = (232, 233, 234, 235)
    WRING = [0, 16384, 65536, 81920, 131072, 147456]; ARING = [32768, 49152, 98304, 114688]
    def w_dma(st):
        G = []
        if st < 16 and st % 2 == 0:
            G += ["s_lshl_b32 s%d, s%d, 17" % (sWC, sHW), "s_add_u32 s%d, s%d, s%d" % (sWC, sWC, sWB), "s_add_u32 s%d, s%d, 1" % (sHW, sHW)]
        if st == 16: G += ["s_and_b32 s%d, s%d, 0xffff" % (sWC, sWB), "s_lshr_b32 s%d, s%d, 20" % (sHW, sWB), "s_lshl_b32 s%d, s%d, 17" % (sHW, sHW), "s_add_u32 s%d, s%d, s%d" % (sWC, sWC, sHW)]
        G += ["s_add_u32 m0, s%d, %d" % (sW4, WRING[st % 6]), "s_and_b32 s%d, s%d, 7" % (sHW, sHW) if st % 2 == 0 else "s_add_u32 s%d, s%d, 65536" % (sWC, sWC)]
        sr_ = PW if st < 16 else PW2
        return G + ["buffer_load_dwordx4 v%d, s[%d:%d], s%d offen offset:%d lds ; need:%d" % (vD[o], sr_, sr_ + 3, sWC, o * 1024, st) for o in range(4)]
    def a_dma(st):
        G = []
        if st < 16 and st % 2 == 0:
            G += ["s_lshl_b32 s%d, s%d, 13" % (sAC, sHA), "s_add_u32 s%d, s%d, s%d" % (sAC, sAC, sAB), "s_add_u32 s%d, s%d, 1" % (sHA, sHA)]
        if st == 16: G += ["s_lshr_b32 s%d, s%d, 3" % (sHA, sH), "s_mul_i32 s%d, s%d, %d" % (sHA, sHA, 56 * 1024), "s_sub_u32 s%d, s%d, s%d" % (sAC, sAB, sHA), "s_add_u32 s%d, s%d, %d" % (sAC, sAC, 256 * 1024)]
        G += ["s_add_u32 m0, s%d, %d" % (sW4, ARING[st % 4]), "s_and_b32 s%d, s%d, 7" % (sHA, sHA) if st % 2 == 0 else "s_add_u32 s%d, s%d, 4096" % (sAC, sAC)]
        return G + ["buffer_load_dwordx4 v%d, s[%d:%d], s%d offen offset:%d sc1 lds ; need:%d" % (vK, SV, SV + 3, sAC, o * 1024, st) for o in range(4)]
    nt = lambda L: [x.split(";")[0].strip() for x in L]
    srd(a, PW, pBWO, 0x400000); srd(a, PW2, pWO, 0x80000)
    a("s_lshr_b32 s%d, s%d, 3\ns_lshl_b32 s%d, s%d, 20\ns_and_b32 s%d, s%d, 3\ns_lshl_b32 s%d, s%d, 8\ns_add_u32 s%d, s%d, s%d\ns_lshl_b32 s%d, s%d, 14\ns_add_u32 s%d, s%d, s%d" % (sT0, sH, sWB, sT0, sT1, sH, sT1, sT1, sWB, sWB, sT1, sT1, sWV, sWB, sWB, sT1))
    a("s_and_b32 s%d, s%d, 7\ns_mov_b32 s%d, s%d" % (sHW, sH, sHA, sHW))
    a("s_lshl_b32 s%d, s%d, 2\ns_add_u32 s%d, s%d, s%d\ns_mul_i32 s%d, s%d, %d\ns_lshl_b32 s%d, s%d, 16\ns_add_u32 s%d, s%d, s%d\ns_add_u32 s%d, s%d, 0x%x" % (sT1, sRBK, sT1, sT1, sWV, sAB, sT1, CROW, sT0, sT0, sAB, sAB, sT0, sAB, sAB, OFF_C))
    a("v_lshrrev_b32 v10, 4, v0\nv_and_b32 v11, 15, v0\nv_lshlrev_b32 v12, 2, v10\nv_xor_b32 v11, v11, v12\nv_lshlrev_b32 v11, 4, v11\nv_lshl_add_u32 v%d, v10, 10, v11" % vD[0])
    a("v_xor_b32 v11, 16, v%d\nv_add_u32 v%d, 6144, v%d\nv_add_u32 v%d, 3072, v11\nv_add_u32 v%d, 9216, v11" % (vD[0], vD[2], vD[0], vD[1], vD[3]))
    W16_ = [[x] for st in range(4) for x in nt(w_dma(st))]; W17_ = [[x] for st in range(4, 6) for x in nt(w_dma(st))]
    a("s_cmp_eq_u32 s%d, 7\ns_cbranch_scc1 %s" % (sI, lI7))
    FT = lambda c: 80 + 8 * (c % 8)
    for x in fin_head(1, sA0): a(x)
    for c in range(NE):
        for x in fin_part(1, c, FT(c), sA0): a(x)
    step(0, 2, 2, 0, 0, 0, last16=True, extra_vm=W16_)
    def final(first):
        stg = [(first + fin_head(0, sA1), 0, 22)]
        for u in range(3):
            stg.append((fin_part(0, 2 * u, 16 + 16 * u, sA1) + fin_part(0, 2 * u + 1, 24 + 16 * u, sA1), 16 * u + 22, min(16 * u + 38, 64)))
        step(1, 3, 0, 0, 0, 0, pre_out=False, staged=stg, extra_vm=W17_)
        a("s_nop 7")
        for x in fin_part(0, 6, 64, sA1) + fin_part(0, 7, 72, sA1): a(x)
    final([x for c in range(NE, 8) for x in fin_part(1, c, FT(c), sA0)])
    a("s_branch %s" % lEn)
    a(lI7 + ":")
    step(0, 1, 2, 0, 0, 0, last16=True, extra_vm=W16_)
    final(fin_head(1, sA0) + [x for c in range(8) for x in fin_part(1, c, FT(c), sA0)])
    a(lEn + ":")
    st_("s17")
    BS, BP, BP0 = 208, 212, 216
    SL = 144; TA = 176; PA = 196; MXl = (240, 241, 242, 243); vPM = 250; OL = 144
    L1 = ["v_add_u32 v246, 14, v%d" % vU, "v_mov_b32 v244, 0x5555", "v_mov_b32 v245, 0", "s_cmp_eq_u32 s%d, 0" % sRA, "s_cselect_b32 s%d, -1, 0" % sT2,
          "v_lshlrev_b64 v[244:245], v246, v[244:245]", "v_alignbit_b32 v244, v245, v244, 12", "v_not_b32 v244, v244"]
    L1 += ["v_bfe_i32 v%d, v244, %d, 1" % (BS + r, 16 + r) for r in range(4)] + ["v_bfe_i32 v%d, v244, %d, 1" % (BP + r, r) for r in range(4)]
    L1 += ["v_or_b32 v%d, s%d, v%d" % (BP0 + r, sT2, BP + r) for r in range(4)]
    L1 += ["v_and_b32 v%d, v%d, v%d" % (BS + r, vNEG, BS + r) for r in range(12)]
    L1 += ["v_and_b32 v244, 1, v0", "v_lshlrev_b32 v244, 4, v244", "v_mov_b32 v245, 0xffff", "v_lshlrev_b32 v%d, v244, v245" % vPM, "s_waitcnt vmcnt(40)"]
    for e in range(2):
        for tq in range(2):
            d = SL + (2 * e + tq) * 8
            L1.append("%s %s, %s, %s, %s" % (MFH, vr(d, 4), ar((AF[4], AF[2])[tq] + 2 * e, 2), ar(AF[tq] + 2 * e, 2), vr((BP0, BP)[tq], 4)))
            L1.append("%s %s, %s, %s, %s" % (MFH, vr(d + 4, 4), ar(AF[2 + tq] + 2 * e, 2), ar(AF[tq] + 2 * e, 2), vr(BS, 4)))
    L2 = ["v_max_f32 v%d, v%d, v%d" % (TA + j, SL + 2 * j, SL + 2 * j + 1) for j in range(16)]
    for n in range(4): L2 += maxtree(MXl[n], [TA + 4 * n + j for j in range(4)])
    L2 += xlane("v_max_f32", MXl, MXt)
    L2 += ["v_sub_f32 v%d, v%d, v%d" % (TA + j, TA + j, MXl[j // 4]) for j in range(16)]
    L2 += ["v_exp_f32 v%d, v%d" % (TA + j, TA + j) for j in range(16)]
    L2 += ["v_cvt_pk_bf16_f32 v%d, v%d, v%d" % (TA + j, TA + j, TA + j) for j in range(16)]
    L2 += ["v_and_b32 v%d, v%d, v%d" % (TA + j, vPM, TA + j) for j in range(16)]
    L2 += ["v_accvgpr_read_b32 v%d, a%d" % (246 + t, Q + 36 + t) for t in range(2)]
    for n in range(4): L2.append("%s %s, %s, %s, 0" % (MF16, vr(OL + 16 + 4 * n, 4), vr(ONES, 4), vr(TA + 4 * n, 4)))
    for e in range(2):
        L2.append("%s %s, %s, %s, 0" % (MFH, vr(OL + 4 * e, 4), ar(AF[7 + e] + 2, 2), vr(TA + 8 * e, 2)))
        L2.append("%s %s, %s, %s, 0" % (MF16, vr(OL + 8 + 4 * e, 4), ar(AF[5 + e], 4), vr(TA + 8 * e + 4, 4)))
    for e in range(2): L2.append("%s %s, %s, %s, %s" % (MFH, vr(OL + 4 * e, 4), ar(AF[5 + e], 2), vr(TA + 8 * e + 2, 2), vr(OL + 4 * e, 4)))
    L2 += ["s_mul_i32 s%d, s%d, %d" % (sA0, sRA, CROW), "s_lshl_b32 s%d, s%d, 11" % (sA1, sHP), "s_add_u32 s%d, s%d, s%d" % (sA0, sA0, sA1), "s_add_u32 s%d, s%d, 0x%x" % (sA0, sA0, OFF_C + 256 * 1024)]
    L2 += ["v_rcp_f32 v%d, v%d" % (MXl[n], OL + 16 + 4 * n) for n in range(4)]
    L2 += ["v_mul_f32 v%d, v%d, v%d" % (MXl[n], MXl[n], 246 + n % 2) for n in range(4)]
    for tq in range(2):
        for e in range(2): L2 += ["v_mul_f32 v%d, v%d, v%d" % (OL + 8 * tq + 4 * e + j, MXl[2 * e + tq], OL + 8 * tq + 4 * e + j) for j in range(4)]
        L2 += ["v_cvt_pk_bf16_f32 v%d, v%d, v%d" % (PA + 4 * tq + j, OL + 8 * tq + 2 * j, OL + 8 * tq + 2 * j + 1) for j in range(4)]
    LST = ["buffer_store_dwordx4 %s, v%d, s[%d:%d], s%d offen offset:%d sc1" % (vr(PA + 4 * tq, 4), vK, SV, SV + 3, sA0, tq * 1024) for tq in range(2)]
    for x in L1: a(x)
    SOUT = 4; sQ, sOUT = 26, 28
    vA, vW = (2, 3), (4, 5, 14, 15); ACC, FP = 16, 80
    srd(a, SOUT, 100, 2048 * 1024)
    a("s_lshr_b32 s%d, s%d, 3" % (sQ, sH))
    a("s_and_b32 s%d, s%d, 1\ns_lshl_b32 s%d, s%d, 1\ns_and_b32 s%d, s%d, 1\ns_add_u32 s%d, s%d, s%d\ns_lshl_b32 s%d, s%d, 12" % (sT0, sWV, sT0, sT0, sT1, sQ, sT2, sT0, sT1, sT0, sT2))
    a("v_add_u32 v%d, s%d, v%d\nv_xor_b32 v%d, 4096, v%d" % (vA[0], sT0, vK, vA[1], vA[0]))
    a("v_lshrrev_b32 v9, 2, v0\nv_and_b32 v8, 3, v9\nv_bfe_u32 v7, v0, 4, 1\nv_and_b32 v10, 2, v0\nv_or_b32 v7, v7, v10\nv_and_b32 v10, 1, v0\nv_lshlrev_b32 v10, 3, v10")
    a("s_and_b32 s%d, s%d, 2\ns_lshr_b32 s%d, s%d, 1\ns_add_u32 s%d, s%d, s%d\nv_xor_b32 v8, s%d, v8" % (sT0, sWV, sT1, sQ, sT0, sT0, sT1, sT0))
    a("v_lshl_or_b32 v8, v8, 2, v7\nv_lshlrev_b32 v8, 4, v8\nv_lshl_add_u32 v8, v9, 8, v8\nv_add_u32 v%d, v8, v10" % vW[0])
    a("v_xor_b32 v%d, 16, v%d\nv_xor_b32 v%d, 64, v%d\nv_xor_b32 v%d, 80, v%d" % (vW[1], vW[0], vW[2], vW[0], vW[3], vW[0]))
    a("s_and_b32 s%d, s%d, 3\ns_lshl_b32 s%d, s%d, 2\ns_add_u32 s%d, s%d, s%d\ns_lshl_b32 s%d, s%d, 6" % (sT1, sH, sT1, sT1, sT1, sT1, sT0, sOUT, sT1))
    a("s_lshl_b32 s%d, s%d, 2\ns_add_u32 s%d, s%d, s%d\ns_lshl_b32 s%d, s%d, 15\ns_add_u32 s%d, s%d, s%d" % (sT0, sRBK, sT0, sT0, sT2, sT0, sT0, sOUT, sOUT, sT0))
    a("v_and_b32 v6, 15, v0\nv_lshlrev_b32 v6, 10, v6\nv_lshrrev_b32 v7, 4, v0\nv_lshl_add_u32 v6, v7, 4, v6")
    a("v_min_u32 v9, 1, v0\nv_lshlrev_b32 v9, 29, v9\nv_mov_b32 v10, 1\nv_and_b32 v8, 7, v0\nv_lshlrev_b32 v8, 2, v8\nv_and_b32 v11, 12, v8")
    def signal_wait(sown, vo, pre):
        lp, lo_ = a.label("xpoll"), a.label("xok")
        a("s_waitcnt vmcnt(0)\ns_barrier\ns_cmp_lg_u32 s%d, 0\ns_cbranch_scc1 %s_s" % (sWV, lo_))
        a("buffer_store_dword v10, v9, s[%d:%d], s%d offen sc1\n%s_s:" % (SO, SO + 3, sown, lo_))
        for x in pre: a(x)
        a("s_cmp_lg_u32 s%d, 0\ns_cbranch_scc1 %s" % (sWV, lo_))
        a("s_and_b32 s%d, s%d, 0xffffff80\ns_mov_b32 s%d, 0x80000\n%s:" % (sT0, sown, sT1, lp))
        a("buffer_load_dword v12, v%d, s[%d:%d], s%d offen sc1\ns_waitcnt vmcnt(0)\nv_cmp_gt_u32 vcc, 1, v12\ns_cbranch_vccz %s" % (vo, SO, SO + 3, sT0, lo_))
        a("s_sleep %d\ns_sub_u32 s%d, s%d, 1\ns_cmp_lg_u32 s%d, 0\ns_cbranch_scc1 %s\n%s:" % (SLP, sT1, sT1, sT1, lp, lo_))
        a("s_waitcnt vmcnt(0)\ns_barrier")
    a("s_cmp_eq_u32 s%d, 0\ns_cselect_b32 s%d, 2, 0\ns_cselect_b32 s%d, 0, 0x20000000\nv_add_u32 v192, s%d, v8\nv_or_b32 v193, s%d, v9\nv_mov_b32 v194, 2\ns_and_b32 s%d, s%d, 0xffffff80" % (sWV, sG1, sT0, sT0, sT0, sG2, sFG))
    for x in L2[:LSPL]: a(x)
    signal_wait(sFG, 8, nt(a_dma(0) + a_dma(1)) + L2[LSPL:])
    st_("sync")
    for x in nt(a_dma(2) + a_dma(3)) + LST: a(x)
    curA, curW = [0], [0]
    def preads(u):
        st, us = u // 2, u % 2
        L = []
        def win(base, cur, regs_):
            w_ = base // 65536
            if w_ != cur[0]:
                d = (w_ - cur[0]) * 65536
                for r in regs_: L.append((("v_add_u32 v%d, 0x%x, v%d" % (r, d, r)) if d > 0 else ("v_subrev_u32 v%d, 0x%x, v%d" % (r, -d, r)), None))
                cur[0] = w_
            return base % 65536
        oa = win(ARING[st % 4], curA, vA); ow = win(WRING[st % 6], curW, vW)
        F = FP + 32 * (u % 2)
        tr = lambda n: [("ds_read_b64_tr_b16 %s, v%d offset:%d" % (vr(F + 16 + 4 * n + 2 * r_, 2), vW[n], ow + us * 8192 + r_ * 4096), 4 * n) for r_ in range(2)]
        ac = [("ds_read_b128 %s, v%d offset:%d" % (vr(F + 4 * n, 4), vA[n // 2], oa + us * 2048 + (n % 2) * 1024), n) for n in range(4)]
        return L + tr(0) + ac + tr(1) + tr(2) + tr(3)
    Mp = []
    for u in range(36):
        F = FP + 32 * (u % 2)
        for wn in range(4):
            for n in range(4):
                acc = vr(ACC + ((n // 2) + 2 * (wn // 2)) * 16 + (n % 2) * 8 + (wn % 2) * 4, 4)
                Mp.append("%s %s, %s, %s, %s" % (MF16, acc, vr(F + 16 + 4 * wn, 4), vr(F + 4 * n, 4), "0" if u == 0 else acc))
    SP_ = Sched(Mp); SP_.backlog = 99
    R0 = preads(0)
    for x, _ in R0: a(x)
    for u in range(1, 36):
        t0 = 16 * (u - 1) + (PB if u % 2 == 0 else 0)
        SP_.rq += [(x, t0, t0, None if us_ is None else 16 * u + us_) for x, us_ in preads(u)]
    for st in range(1, 18): SP_.bars[32 * st - 16 + PB] = st
    SP_.waitpts = [8 * k for k in range(72)]
    SP_.place_reads()
    for g_ in range(SP_.n):
        for u_ in SP_.use[g_].values():
            if u_ is not None: assert g_ < 32 * (u_ // 32 + 1) - 16 + PB, (g_, u_)
    for st in range(1, 18):
        b = 32 * st - 16 + PB
        G = []
        if st == 5: G.append("buffer_store_dword v194, v193, s[%d:%d], s%d offen sc1" % (SO, SO + 3, sFG))
        if st == 10: G.append(poll_load(4) + " ; need:13")
        if st + 3 < 18: G += a_dma(st + 3)
        if st + 5 < 18: G += w_dma(st + 5)
        SP_.place(G, b, b + 30, slack=30)
    nb_ = [0]
    def pbar(w):
        nb_[0] += 1
        a(w)
        if nb_[0] == 13: poll_check(4)
        a("s_barrier")
    SP_.emit(a, pbar, [u_ for _, u_ in R0], [2] * 4 + [3] * 4 + [5] * 2)
    if VERB: print("P over", SP_.over)
    st_("pm")
    a("s_nop 3")
    for j in range(1, 4):
        a("s_xor_b32 s%d, s%d, %d\ns_mul_i32 s%d, s%d, 49152\ns_add_u32 s%d, s%d, s%d\ns_add_u32 s%d, s%d, %d" % (sT0, sQ, j, sT0, sT0, sT0, sT0, sXO, sT0, sT0, (j - 1) * 16384))
        for r in range(8): a("v_cvt_pk_bf16_f32 v%d, v%d, v%d" % (FP + 8 * j + r, ACC + j * 16 + 2 * r, ACC + j * 16 + 2 * r + 1))
        for c in range(2): a("buffer_store_dwordx4 %s, v%d, s[%d:%d], s%d offen offset:%d sc1" % (vr(FP + 8 * j + 4 * c, 4), vK, SO, SO + 3, sT0, c * 1024))
    signal_wait(sFX, 11, [])
    st_("xs")
    a("s_mov_b32 s%d, s%d" % (sT0, sXR))
    for j in range(1, 4):
        for c in range(2): a("buffer_load_dwordx4 %s, v%d, s[%d:%d], s%d offen offset:%d sc1" % (vr(ACC + j * 16 + 4 * c, 4), vK, SO, SO + 3, sT0, c * 1024))
        if j < 3: a("s_add_u32 s%d, s%d, 16384" % (sT0, sT0))
    for j in range(1, 4):
        a("s_waitcnt vmcnt(%d)" % (2 * (3 - j)))
        for r in range(8):
            t = ACC + j * 16 + r
            a("v_lshlrev_b32 v12, 16, v%d\nv_and_b32 v13, 0xffff0000, v%d\nv_add_f32 v%d, v%d, v12\nv_add_f32 v%d, v%d, v13" % (t, t, ACC + 2 * r, ACC + 2 * r, ACC + 2 * r + 1, ACC + 2 * r + 1))
    for r in range(8): a("v_cvt_pk_bf16_f32 v%d, v%d, v%d" % (FP + r, ACC + 2 * r, ACC + 2 * r + 1))
    a("s_nop 1")
    for pr in range(2): a("v_permlane16_swap_b32 v%d, v%d\nv_permlane16_swap_b32 v%d, v%d" % (FP + 4 * pr, FP + 4 * pr + 2, FP + 4 * pr + 1, FP + 4 * pr + 3))
    a("buffer_store_dwordx4 %s, v6, s[%d:%d], s%d offen\ns_add_u32 s%d, s%d, 16384" % (vr(FP, 4), SOUT, SOUT + 3, sOUT, sOUT, sOUT))
    a("buffer_store_dwordx4 %s, v6, s[%d:%d], s%d offen" % (vr(FP + 4, 4), SOUT, SOUT + 3, sOUT))
    if HOLD:
        ia, ib, wg = HOLD; lp = a.label("hold")
        a("s_waitcnt lgkmcnt(0)\ns_cmp_lg_u32 s2, %d\ns_cbranch_scc1 %s" % (wg, done))
        a("s_sub_u32 s22, s%d, s%d\ns_min_u32 s22, s22, 0x2000\ns_add_u32 s22, s22, 10000" % (74 + 4 * ib, 74 + 4 * ia))
        a("%s:\ns_memrealtime s[24:25]\ns_waitcnt lgkmcnt(0)\ns_sub_u32 s24, s24, s74\ns_cmp_lt_u32 s24, s22\ns_cbranch_scc1 %s" % (lp, lp))
    else: T.dump(SO, sWV, 4)
    a(done + ":\ns_endpgm")
    a(lRare + ":")
    for (ls, lb, kind) in spins:
        lp = a.label("sp")
        a(ls + ":\ns_mov_b32 s%d, 0x40000\n%s:" % (sT2, lp))
        a("s_sleep 8\n" + poll_load(kind) + "\ns_waitcnt vmcnt(0)\n%s\ns_cbranch_vccz %s" % (poll_cmp(kind), lb))
        a("s_sub_u32 s%d, s%d, 1\ns_cmp_lg_u32 s%d, 0\ns_cbranch_scc1 %s\ns_branch %s" % (sT2, sT2, sT2, lp, lb))
    for (ls, lb) in rels:
        a("%s:\nbuffer_wbl2 sc1\ns_waitcnt vmcnt(0)\ns_branch %s" % (ls, lb))
    sRET = 44
    for (p, sm, qk), (lr, users) in rare.items():
        for rid, (lj, lb) in enumerate(users): a("%s:\ns_mov_b32 s%d, %d\ns_branch %s" % (lj, sRET, rid, lr))
        a(lr + ":\ns_nop 7\ns_nop 7")
        for qb in range(4 // sm):
            cur = qregs(S[p], sm, qb); d, f = vX, vX + 2
            for x in maxtree(d, cur) + xlane("v_max_f32", [d], [d + 1]): a(x)
            a("v_max_f32 v%d, 0, v%d\nv_exp_f32 v%d, -v%d" % (d, d, f, d))
            nx = qregs(S[1 - p], qk, qb) if qb < 4 // qk else []
            for r in cur + [NM + 4 * qb + j for j in range(4)] + nx: a("v_sub_f32 v%d, v%d, v%d" % (r, r, d))
            a("v_mul_f32 v%d, v%d, v%d" % (vL[qb], vL[qb], f))
            for j in range(0, 32, 4):
                for q in range(4): a("v_accvgpr_read_b32 v%d, a%d" % (TM + q, O + qb * 32 + j + q))
                for q in range(4): a("v_mul_f32 v%d, v%d, v%d" % (TM + q, TM + q, f))
                for q in range(4): a("v_accvgpr_write_b32 a%d, v%d" % (O + qb * 32 + j + q, TM + q))
        for q in range(8):
            for n in range(8 * q, 8 * q + 8): a(ex(p, n))
            for j in range(4 * q, 4 * q + 4): a(cv(p, j))
        a("s_nop 1")
        for q in range(8): a(summ(p, sm, q))
        a("s_nop 7")
        for rid, (lj, lb) in enumerate(users):
            if rid < len(users) - 1: a("s_cmp_eq_u32 s%d, %d\ns_cbranch_scc1 %s" % (sRET, rid, lb))
            else: a("s_branch %s" % lb)
    a.add_kernel(name, 512, 102, 256)
    a.launch(name, 256, 256, 163840)
```

```python
from gen_common import *
from sched import Sched, isvm
from pack import Gaps, cost as gcost
import re as _re
MF16 = "v_mfma_f32_16x16x32_bf16"
MFH = "v_mfma_f32_16x16x16_bf16"
pX, pWQKV, pWO0, pC, pWQ, pWUK, pWUV, pBWO, pGATE, pDBG, pWS = 36, 38, 40, 44, 46, 48, 50, 52, 54, 58, 60
pWO = 58
NEG = "0xff800000"
THRESH = fbits(2.0 ** 48)
WSL = (98304, 131072)
LDS_G = WSL[0] + 24576
def aslot(g): return ((g + 2) % 3) * 32768
def flat(G): return [x for g in G for x in (g if isinstance(g, list) else [g])]
def soft(G):
    out = []
    for g in G:
        if any(x.startswith("s_cselect") for x in g):
            k = [j for j, x in enumerate(g) if x.startswith("s_cmp") or x.startswith("s_bitcmp")][0]
            out += g[:k] + [g[k:]]
        else: out += g
    return out

def gen2(a, name="p1_kernel", ts=False, PF=1, PD=8, WP=2, TS2=0, TS3=0, DFR=12, LSPL=110, SLP=4, QSL=(4, 6, 5), XSL=3, PDW=5, GPUB=11, VERB=0, NE=6, CM=0, PB=2,
         STAMPS=("start", "q", "attn", "mid", "s17")):
    XL2 = 0; PRE0 = 0; endlabel = None; SENT = 0
    a.begin_kernel(name)
    T = TS(a, ts, 0, base=72)
    def st_(nm):
        if nm in STAMPS: T.stamp(STAMPS.index(nm))
    done = a.label("fdone")
    lAttn, lRare = a.label("attn"), a.label("rarecode")
    sWV = 3
    SA, SW, SX, SO, SD = 4, 8, 12, 16, 40
    sH, sI, sT0, sT1, sT2 = 20, 21, 22, 23, 24
    sAS, sAS2, sWS, sXS, sAM, sWM, sXM, sCNT, sOK, sDS, sSC = 25, 26, 27, 28, 29, 30, 31, 32, 33, 34, 35
    sQL, sQS, sU, sOA, sAD, sWD, sOJ, sVD, sFA, sGR = 92, 93, 94, 95, 96, 97, 56, 57, 63, 99
    sKO, sVO, sW4, sW8, sTH, sT = 48, 49, 50, 51, 54, 32
    vL16 = 1
    vAO, vWO, vXO = (2, 3, 4, 5), (6, 7, 8, 9), (10, 11)
    vAR, vWR, vXR = (12, 13), tuple(range(14, 22)), (22, 23, 24)
    vGR, vGA2, GC = 25, (26, 27), 92
    QS = (28, 44); WR, NWR = 60, 8; TT, PK = 96, 104
    KS = (128, 160)
    vFO, vONE, vPFD, vTS, vW12, vPL, vPLO = 120, 121, 122, 123, 124, 125, 126
    sWS2, sOK2, sHL = 62, 98, 55
    QA = 128
    t2 = [0]
    def bar(waitstr):
        if TS2:
            n = t2[0]; t2[0] += 1
            if n > 0: a("v_writelane_b32 v123, s72, %d\nv_writelane_b32 v123, s74, %d" % (2 * n - 2, 2 * n - 1))
            a("s_memtime s[72:73]")
        a(waitstr + "\ns_barrier")
        if TS2: a("s_memtime s[74:75]")
    a("s_cmp_ge_u32 s2, 256\ns_cbranch_scc1 %s" % done)
    st_("start")
    a("s_load_dwordx16 s[36:51], s[0:1], 0\ns_load_dwordx8 s[52:59], s[0:1], 64\ns_load_dwordx2 s[60:61], s[0:1], 96")
    a("v_lshrrev_b32 v30, 6, v0\nv_and_b32 v0, 63, v0\nv_readfirstlane_b32 s%d, v30" % sWV)
    a("s_and_b32 s%d, s2, 7\ns_lshl_b32 s%d, s%d, 2\ns_lshr_b32 s%d, s2, 3\ns_and_b32 s%d, s%d, 3\ns_add_u32 s%d, s%d, s%d" % (sH, sH, sH, sT0, sT0, sT0, sH, sH, sT0))
    a("s_lshr_b32 s%d, s2, 5" % sI)
    a("v_lshlrev_b32 v%d, 4, v0" % vL16)
    a("v_lshrrev_b32 v30, 3, v0\nv_lshrrev_b32 v31, 4, v0\nv_and_b32 v32, 7, v0")
    a("v_xor_b32 v33, v31, v32\nv_lshlrev_b32 v33, 4, v33\nv_lshl_add_u32 v%d, v30, 10, v33" % vAO[0])
    a("v_add_u32 v%d, %d, v%d\nv_xor_b32 v33, 64, v%d\nv_add_u32 v%d, %d, v33\nv_add_u32 v%d, %d, v33" % (vAO[2], 2 * 7168, vAO[0], vAO[0], vAO[1], 7168, vAO[3], 3 * 7168))
    a("v_and_b32 v33, 15, v0\nv_lshlrev_b32 v34, 2, v31\nv_xor_b32 v33, v33, v34\nv_lshlrev_b32 v33, 4, v33\nv_lshl_add_u32 v%d, v31, 13, v33" % vWO[0])
    a("v_add_u32 v%d, %d, v%d\nv_xor_b32 v33, 32, v%d\nv_add_u32 v%d, %d, v33\nv_add_u32 v%d, %d, v33" % (vWO[1], 31744, vWO[0], vWO[0], vWO[2], 2 * 31744, vWO[3], 3 * 31744))
    a("s_sub_u32 s%d, 15, s%d\ns_bitcmp1_b32 s%d, 0\ns_cselect_b32 s%d, s%d, s%d\ns_lshl_b32 s%d, s%d, 1\ns_lshr_b32 s%d, s%d, 1\ns_add_u32 s%d, s%d, s%d" % (sT0, sI, sWV, sT0, sT0, sI, sT0, sT0, sT1, sWV, sT0, sT0, sT1))
    a("s_lshl_b32 s%d, s%d, 16\ns_add_u32 s%d, s%d, 32768" % (sAS, sT0, sAS2, sAS))
    a("s_lshl_b32 s%d, s%d, 13\ns_mov_b32 s%d, s%d" % (sAM, sWV, sWM, sAM))
    a("s_and_b32 s%d, s%d, 1\ns_lshl_b32 s%d, s%d, 18\ns_lshl_b32 s%d, s%d, 8\ns_add_u32 s%d, s%d, s%d" % (sT0, sWV, sT0, sT0, sWS, sH, sWS, sWS, sT0))
    a("s_and_b32 s%d, s2, 31\ns_add_u32 s%d, s%d, 0x20000" % (sU, sWS2, sWS))
    a("s_waitcnt lgkmcnt(0)")
    a("s_mov_b32 s100, s56\ns_mov_b32 s101, s57")
    srd(a, SA, pC, 0x200000)
    a("s_cmp_lt_u32 s%d, 2\ns_cselect_b32 s%d, s%d, s%d\ns_cselect_b32 s%d, s%d, s%d\ns_mov_b32 s%d, 0x400000\ns_mov_b32 s%d, 0x20000" % (sWV, SW, pWUK, pWUV, SW + 1, pWUK + 1, pWUV + 1, SW + 2, SW + 3))
    def dgrp(m0s, m0i, vo, srd_, so, stp, nd):
        G = ["s_add_u32 m0, s%d, %d" % (m0s, m0i)]
        G += ["buffer_load_dwordx4 v%d, s[%d:%d], s%d offen offset:%d lds ; need:%d" % (v, srd_, srd_ + 3, so, n * 1024, nd) for n, v in enumerate(vo)]
        G.append("s_add_u32 s%d, s%d, %d" % (so, so, stp))
        return G
    def fixm0(G):
        out = []
        for k, x in enumerate(G):
            out.append(x)
            if x.startswith("s_add_u32 m0"):
                if len(out) > 1 and out[-2].startswith("s_add_u32 s"): out[-1], out[-2] = out[-2], out[-1]
                else: out.append("s_nop 0")
        return out
    def dma_act(g): return fixm0(dgrp(sAM, aslot(g), vAO, SA, sAS, 128, g) + dgrp(sAM, aslot(g) + 4096, vAO, SA, sAS2, 128, g))
    def dma_w(g):
        G = dgrp(sWM, WSL[g % 2], vWO, SW, sWS, 0x80000, g)
        if g < 8: G += dgrp(sWM, WSL[g % 2] + 4096, vWO, SW, sWS2, 0x80000, g)
        else: G += dgrp(sXM, WSL[g % 2] + 16384, vXO, SX, sXS, 64 * 3072, g)
        return fixm0(G)
    for x in dma_w(0) + dma_act(0): a(x.split(";")[0])
    NSL = max(XL2 + 4 if XL2 else 0, max(QSL) + 1, XSL + 1)
    def preg(k): return 192 + 2 * k
    def pf(k): return "global_load_dword v122, %s, off" % vr(preg(k), 2)
    def pfa(k, base, vo, so, imm=0):
        r = preg(k)
        a("s_add_u32 s%d, s%d, %d\nv_mov_b32 v%d, s%d\nv_add_u32 v%d, s%d, v%d" % (sT2, so, imm, r + 1, base + 1, r, sT2, vo))
        a("v_add_co_u32 v%d, vcc, s%d, v%d\ns_nop 1\nv_addc_co_u32 v%d, vcc, 0, v%d, vcc" % (r, base, r, r + 1, r + 1))
    def pfnone(k): a("v_mov_b32 v%d, s%d\nv_mov_b32 v%d, s%d" % (preg(k), pGATE, preg(k) + 1, pGATE + 1))
    if PF:
        l1, l3, le = a.label("pf1"), a.label("pf3"), a.label("pfe")
        a("s_cmp_eq_u32 s%d, 1\ns_cbranch_scc1 %s\ns_cmp_eq_u32 s%d, 3\ns_cbranch_scc1 %s" % (sWV, l1, sWV, l3))
        used = {0, XSL}
        if CM:
            a("s_lshr_b32 s%d, s2, 3\ns_lshl_b32 s%d, s%d, 16\ns_lshl_b32 s%d, s%d, 6\ns_add_u32 s%d, s%d, s%d\nv_lshlrev_b32 v26, 10, v0" % (sT0, sT0, sT0, sT1, sWV, sT1, sT0, sT1))
            pfa(0, pC, 26, sT1, 128); a(pf(0)); used.add(1)
        a("v_and_b32 v26, 31, v0\nv_lshlrev_b32 v26, 7, v26\ns_lshl_b32 s%d, s2, 13\ns_lshl_b32 s%d, s%d, 11\ns_add_u32 s%d, s%d, s%d" % (sT0, sT1, sWV, sT0, sT0, sT1))
        pfa(CM, pC, 26, sT0, 0)
        if not CM: a(pf(0))
        pfa(XSL, pX, 26, sT0, 0)
        for k in range(NSL):
            if k not in used: pfnone(k)
        a("s_branch %s\n%s:" % (le, l1))
        a("v_lshlrev_b32 v26, 13, v30\nv_lshl_add_u32 v26, v32, 7, v26")
        a("s_bitcmp1_b32 s2, 3\ns_cselect_b32 s98, s%d, s%d\ns_cselect_b32 s99, s%d, s%d" % (pWUV, pWUK, pWUV + 1, pWUK + 1))
        a("s_and_b32 s%d, s2, 7\ns_lshl_b32 s%d, s%d, 10\ns_lshr_b32 s%d, s2, 4\ns_and_b32 s%d, s%d, 7\ns_lshl_b32 s%d, s%d, 16\ns_lshl_b32 s%d, s%d, 16" % (sT1, sT1, sT1, sT0, sCNT, sT0, sT0, sT0, sCNT, sCNT))
        a("s_add_u32 s%d, s%d, s%d\ns_add_u32 s%d, s%d, s%d" % (sT0, sT0, sT1, sCNT, sCNT, sT1))
        if PRE0:
            pfnone(0); a(pf(0)); pfa(1, 98, 26, sT0, 4 * 0x80000); pfa(2, 98, 26, sT0, 6 * 0x80000); pfnone(3)
        else:
            pfa(0, 98, 26, sT0, 1 * 0x80000); a(pf(0))
            pfa(1, 98, 26, sT0, 3 * 0x80000); pfa(2, 98, 26, sT0, 5 * 0x80000); pfa(3, 98, 26, sCNT, 7 * 0x80000)
        for k in range(4, NSL): pfnone(k)
        a("s_branch %s\n%s:" % (le, l3))
        lpc = a.label("pc")
        a("s_getpc_b64 s[98:99]\n%s:" % lpc)
        a("s_lshr_b32 s%d, s2, 3\nv_lshlrev_b32 v26, 5, v0\nv_add_u32 v26, s%d, v26\nv_lshlrev_b32 v26, 7, v26\ns_mov_b32 s%d, 0" % (sT0, sT0, sT0))
        a("v_min_u32 v27, %s-%s, v26" % (lAttn, lpc))
        pfa(0, 98, 27, sT0, 0); a(pf(0))
        a("v_lshlrev_b32 v26, 13, v30\nv_lshl_add_u32 v26, v32, 7, v26")
        a("s_lshr_b32 s%d, s2, 3\ns_lshl_b32 s%d, s%d, 16\ns_and_b32 s%d, s2, 7\ns_lshl_b32 s%d, s%d, 10\ns_add_u32 s%d, s%d, s%d" % (sT0, sT0, sT0, sT1, sT1, sT1, sT0, sT0, sT1))
        pfa(QSL[0], pWQ, 26, sT0, 0); pfa(QSL[1], pWQ, 26, sT0, 4 * 0x80000)
        a("s_min_u32 s%d, s%d, 23\ns_lshl_b32 s%d, s%d, 7\ns_mul_i32 s%d, s%d, %d\ns_add_u32 s%d, s%d, s%d\nv_mul_u32_u24 v26, 3072, v0" % (sT0, sU, sT0, sT0, sT1, sI, 64 * 3072, sT0, sT0, sT1))
        pfa(QSL[2], pWQKV, 26, sT0, 0)
        for k in range(1, NSL):
            if k not in QSL: pfnone(k)
        a(le + ":")
    def pfp(p): return [pf(p + 2)] if (PF and p + 2 < NSL) else []
    a("v_and_b32 v33, 15, v0\nv_lshrrev_b32 v34, 1, v33\nv_xor_b32 v34, v34, v31\nv_lshlrev_b32 v34, 4, v34\nv_lshl_add_u32 v40, v33, 7, v34")
    a("s_and_b32 s%d, s%d, 1\ns_lshl_b32 s%d, s%d, 14\ns_add_u32 s%d, s%d, %d" % (sT0, sWV, sT0, sT0, sT0, sT0, aslot(0)))
    a("v_add_u32 v%d, s%d, v40\nv_xor_b32 v%d, 64, v%d" % (vAR[0], sT0, vAR[1], vAR[0]))
    a("v_lshrrev_b32 v35, 2, v0\nv_and_b32 v35, 3, v35\nv_lshl_add_u32 v36, v31, 3, v35")
    a("v_bfe_u32 v37, v0, 1, 1\nv_and_b32 v34, 1, v31\nv_lshl_add_u32 v37, v34, 1, v37\nv_and_b32 v38, 1, v0\nv_lshlrev_b32 v38, 3, v38")
    a("v_lshlrev_b32 v39, 2, v35\nv_xor_b32 v39, v39, v37\nv_lshlrev_b32 v39, 4, v39\nv_lshl_add_u32 v39, v36, 8, v39")
    a("s_lshr_b32 s%d, s%d, 1\ns_lshl_b32 s%d, s%d, 14\ns_add_u32 s%d, s%d, %d\nv_add3_u32 v39, v39, v38, s%d" % (sWD, sWV, sWD, sWD, sT0, sWD, WSL[0], sT0))
    for k in range(8): a("v_xor_b32 v%d, %d, v39" % (vWR[k], 32 * k))
    lpc2 = a.label("pc")
    a("s_getpc_b64 s[0:1]\n%s:" % lpc2)
    srd(a, SO, pWS, WS_SIZE); srd(a, SX, pGATE, 1024)
    a("s_mov_b32 s98, s%d\ns_mov_b32 s99, s%d" % (pWO0, pWO0 + 1))
    srd(a, SD, pDBG, 256)
    a("s_mov_b32 s%d, s98\ns_mov_b32 s%d, s99" % (pWO, pWO + 1))
    DF = []
    def d(t): DF.extend(t.split("\n"))
    d("s_lshl_b32 s%d, s%d, 6\nv_add_u32 v%d, s%d, v0\nv_lshlrev_b32 v%d, 12, v%d\nv_min_u32 v%d, 1, v%d\nv_lshlrev_b32 v%d, 29, v%d" % (sT0, sWV, vFO, sT0, vFO, vFO, vONE, vFO, vONE, vONE))
    d("s_getreg_b32 s%d, hwreg(HW_REG_XCC_ID, 0, 4)\ns_mul_i32 s%d, s%d, s%d\ns_lshl_b32 s%d, s%d, 8\ns_add_u32 s%d, s%d, s%d\ns_lshl_b32 s%d, s%d, 8\ns_add_u32 s%d, s%d, 1" % (sT0, sT1, sT0, sT0, sT1, sT1, sT1, sT1, sT0, sT1, sT1, sFA, sT1))
    d("v_mov_b32 v125, s%d\ns_lshl_b32 s%d, s%d, 3\ns_and_b32 s%d, s2, 7\ns_lshl_b32 s%d, s%d, 2\ns_lshl_b32 s%d, s%d, 2" % (sFA, sFA, sFA, sGR, sGR, sGR, sCNT, sH))
    d("v_and_b32 v126, 31, v0\ns_lshl_b32 s%d, s%d, 12\nv_lshl_add_u32 v126, v126, 2, s%d" % (sT0, sWV, sT0))
    d("s_min_u32 s%d, s%d, 1\ns_lshl_b32 s%d, s%d, 29\nv_and_b32 v124, 7, v0\nv_lshl_add_u32 v124, v124, 2, s%d" % (sT0, sWV, sT0, sT0, sT0))
    d("s_lshl_b32 s%d, s%d, 7\ns_add_u32 s%d, s%d, 0x%x\ns_lshl_b32 s%d, s%d, 2\ns_add_u32 s%d, s%d, s%d" % (sHL, sH, sHL, sHL, OFF_FL + 128 * 128, sU, sI, sU, sU, sHL))
    d("s_lshr_b32 s%d, s2, 3\ns_lshl_b32 s%d, s%d, 2\ns_add_u32 s%d, s%d, s%d\nv_and_b32 v127, 15, v0\nv_lshlrev_b32 v127, 7, v127\nv_add_lshl_u32 v127, v127, s%d, 7" % (sT0, sT0, sT0, sT0, sT0, sWV, sT0))
    d("v_min_u32 v127, %s-%s, v127" % (lRare, lpc2))
    d("v_lshrrev_b32 v39, 1, v35\nv_lshlrev_b32 v39, 2, v39\nv_xor_b32 v39, v39, v37\nv_lshlrev_b32 v39, 4, v39\nv_lshl_add_u32 v39, v36, 7, v39\nv_add_u32 v39, v39, v38\nv_add_u32 v39, %d, v39" % (WSL[0] + 16384))
    for k in range(3): d("v_xor_b32 v%d, %d, v39" % (vXR[k], 32 * k))
    d("s_and_b32 s%d, s%d, 3\ns_and_b32 s%d, s2, 7\ns_lshl_b32 s%d, s%d, 7" % (sT0, sH, sT1, sT1, sT1))
    d("s_lshl_b32 s%d, s%d, 5\ns_add_u32 s%d, s%d, s%d\ns_add_u32 s%d, s%d, %d" % (sT2, sT0, sT2, sT2, sT1, sT2, sT2, 2048 - 64))
    d("s_lshr_b32 s%d, s%d, 1\ns_lshl_b32 s%d, s%d, 10\ns_add_u32 s%d, s%d, s%d\ns_and_b32 s%d, s%d, 1\ns_lshl_b32 s%d, s%d, 6\ns_add_u32 s%d, s%d, s%d" % (sDS, sT0, sDS, sDS, sT1, sT1, sDS, sDS, sT0, sDS, sDS, sT1, sT1, sDS))
    d("v_and_b32 v33, 1, v31\nv_lshlrev_b32 v33, 2, v33\nv_xor_b32 v33, v33, v32\nv_mul_u32_u24 v34, 3072, v30\nv_mov_b32 v36, s%d\nv_mov_b32 v37, s%d\nv_mov_b32 v38, 0x1000000" % (sT1, sT2))
    for n in range(2):
        if n: d("v_xor_b32 v33, 2, v33\nv_add_u32 v34, %d, v34" % (24576 - 1024))
        d("v_cmp_gt_u32 vcc, 4, v33\nv_cmp_gt_u32 s[66:67], 6, v33\nv_lshl_add_u32 v35, v33, 4, v34\nv_cndmask_b32 v39, v37, v36, vcc\nv_cndmask_b32 v39, v38, v39, s[66:67]\nv_add_u32 v%d, v35, v39" % vXO[n])
    d("s_lshl_b32 s%d, s%d, 11\ns_lshl_b32 s%d, s%d, 13\ns_add_u32 s%d, s%d, s%d\ns_add_u32 s%d, s%d, %d" % (sT0, sT0, sT1, sWV, sT0, sT0, sT1, sT0, sT0, aslot(8)))
    d("v_add_u32 v%d, s%d, v40\nv_xor_b32 v%d, 64, v%d\nv_lshlrev_b32 v%d, 4, v31\nv_add_u32 v%d, %d, v%d" % (vGA2[0], sT0, vGA2[1], vGA2[0], vGR, vGR, LDS_G, vGR))
    d("s_lshl_b32 s%d, s%d, 2\ns_add_u32 s%d, s%d, s%d\ns_sub_u32 s%d, 60, s%d\ns_add_u32 s%d, s%d, s%d" % (sT1, sI, sQS, sT1, sWV, sQL, sT1, sQL, sQL, sWV))
    d("s_lshr_b32 s%d, s%d, 1\ns_lshl_b32 s%d, s%d, 5\ns_add_u32 s%d, s%d, s%d\ns_add_u32 s%d, s%d, 44\ns_lshl_b32 s%d, s%d, 19" % (sT0, sWV, sT0, sT0, sT0, sT0, sH, sT0, sT0, sOK, sT0))
    d("s_and_b32 s%d, s%d, 1\ns_lshl_b32 s%d, s%d, 1\ns_add_u32 s%d, s%d, s%d\ns_lshl_b32 s%d, s%d, 14\ns_add_u32 s%d, s%d, s%d" % (sT0, sWV, sT1, sI, sT0, sT0, sT1, sT0, sT0, sOK, sOK, sT0))
    d("s_lshl_b32 s%d, s%d, 16\ns_sub_u32 s%d, %d, s%d\ns_add_u32 s%d, s%d, 8192" % (sT0, sI, sOJ, 60 * 8192 - 4096, sT0, sOK2, sOK))
    d("s_lshl_b32 s%d, s%d, 13\ns_and_b32 s%d, s%d, 1\ns_lshl_b32 s%d, s%d, 14\ns_sub_u32 s%d, s%d, s%d\ns_add_u32 s%d, s%d, %d" % (sT0, sWV, sT1, sWV, sT1, sT1, sAD, sT0, sT1, sAD, sAD, aslot(8) - aslot(7)))
    PLA = "buffer_atomic_add v125, v%d, s[%d:%d], s%d offen sc1" % (vFO, SD, SD + 3, sCNT)

    def wofs(g): return (g % 2) * 32768
    def xa(g, ks, R=vAR):
        if g == 7: return "v_add_u32 v%d, s%d, v%d" % (R[ks], sAD, R[ks])
        d = aslot(g + 1) - aslot(g)
        return ("v_add_u32 v%d, 0x%x, v%d" % (R[ks], d, R[ks])) if d > 0 else ("v_subrev_u32 v%d, 0x%x, v%d" % (R[ks], -d, R[ks]))
    def rd_act(g, ks):
        F = (KS if g < 8 else QS)[ks]
        return ["ds_read_b128 %s, v%d offset:%d" % (vr(F + 4 * n, 4), vAR[ks], n * 2048) for n in range(8 if g < 8 else 4)]
    def rd_w(g, ks, wf, slot):
        r = WR + 4 * (slot % NWR)
        if wf < 8: return ["ds_read_b64_tr_b16 %s, v%d offset:%d" % (vr(r + 2 * rd_, 2), vWR[wf], wofs(g) + ks * 8192 + rd_ * 1024) for rd_ in range(2)]
        if wf < 11: return ["ds_read_b64_tr_b16 %s, v%d offset:%d" % (vr(r + 2 * rd_, 2), vXR[wf - 8], wofs(g) + ks * 4096 + rd_ * 512) for rd_ in range(2)]
        return ["ds_read_b128 %s, v%d offset:%d" % (vr(r, 4), vGR, ((g - 8) * 2 + ks) * 64), "ds_read_b128 %s, v%d" % (vr(GC, 4), vGA2[ks])] + ([xa(g, ks, vGA2)] if g < 15 else [])
    def mfs(g, ks, wf, slot, var):
        w = vr(WR + 4 * (slot % NWR), 4); F = (KS if g < 8 else QS)[ks]; first = (g % 8 == 0 and ks == 0)
        cb, tc = (wf % 8) // 2, wf % 2
        if wf == 11: return ["%s a[48:51], %s, %s, %s" % (MF16, w, vr(GC, 4), "0" if first else "a[48:51]")]
        M = []
        for n in range(8 if g < 8 else 4):
            rb, tr = n // 2, n % 2
            x = vr(F + 4 * n, 4)
            sw = (var == "V") or wf == 10
            tb, ta = (tc, tr) if sw else (tr, tc)
            if g < 8: acc = ar(((rb // 2) * 16 + cb * 4 + (rb % 2) * 2 + tb) * 8 + ta * 4, 4)
            elif wf < 8: acc = vr(QA + ((rb * 4 + cb) * 2 + tr) * 8 + tc * 4, 4)
            elif wf < 10: acc = ar(n * 8 + tc * 4, 4)
            else: acc = ar(32 + n * 4, 4)
            M.append("%s %s, %s, %s, %s" % (MF16, acc, x if sw else w, w if sw else x, "0" if first else acc))
        return M
    def order(g, var):
        nw = list(range(8 if g < 8 else 12))
        if g == 7: return [(ks, 2 * cb + t) for cb in range(4) for ks in range(2) for t in range(2)]
        if g == 15:
            return [(ks, wf) for ks in range(2) for wf in (8, 9, 10, 0, 1, 11)] + [(ks, 2 * cb + t) for cb in range(1, 4) for ks in range(2) for t in range(2)]
        return [(ks, wf) for ks in range(2) for wf in nw]
    def build(g0, var):
        fr = [(g, ks, wf) for g in range(g0, g0 + 8) for (ks, wf) in order(g, var)]
        M = []; fm = []
        for k, (g, ks, wf) in enumerate(fr):
            fm.append(len(M)); M += mfs(g, ks, wf, k, var)
        S_ = Sched(M); n = len(M)
        look = [(8, 0, wf) for wf in range(PDW)] if g0 == 0 else []
        allf = fr + look
        cs = {};
        for k, (g, ks, wf) in enumerate(allf): cs.setdefault(g, k)
        bar_m = {g: fm[cs[g] - PDW + 1] for g in cs if g > g0}
        for g, m in bar_m.items(): S_.bars[m] = g
        na = 8 if g0 == 0 else 4
        items = []
        for k in range(PDW, len(allf)):
            g, ks, wf = allf[k]
            t = fm[k - PDW]; e = bar_m.get(g, 0); use = fm[k] if k < len(fr) else n + 1 + (k - len(fr))
            if k == cs[g] and g == 8: items += [(max(t, e), 0, j, ("v_subrev_u32 v%d, s%d, v%d" % (r, sWD, r), t, e, None)) for j, r in enumerate(vWR)]
            items += [(max(t, e), 1 if k == cs[g] else 3, 4 * k + j, (x, t, e, use if x.startswith("ds_") else None)) for j, x in enumerate(rd_w(g, ks, wf, k))]
        for g in cs:
            for ks in range(2):
                if g == g0 and ks == 0: continue
                if g == 8 and g0 == 0 and ks == 1: continue
                R = rd_act(g, ks) + ([xa(g, ks)] if g < 15 else [])
                k1 = [k for k, f in enumerate(allf) if f[0] == g and f[1] == ks][0]
                u0 = fm[k1] if k1 < len(fr) else None
                for j, x in enumerate(R):
                    if ks == 0: t = e = bar_m[g]
                    else:
                        e = fm[cs[g]]; t = e + (j * min(u0 - e - 8, 40)) // len(R)
                    use = None if not x.startswith("ds_") else (u0 + j if u0 is not None else n)
                    items.append((max(t, e), 2, j, (x, t, e, use)))
        items.sort(key=lambda z: z[:3])
        S_.rq = [z[3] for z in items]
        S_.waitpts = [fm[k] for k in range(0, len(fr), 2)]
        S_.place_reads()
        return S_, {g: fm[cs[g]] for g in range(g0, g0 + 8)}, bar_m, fm
    def pack(areg, pk, scale=None):
        t = TT
        G = ["v_accvgpr_read_b32 v%d, a%d" % (t + j, areg + j) for j in range(8)]
        if scale is not None: G += ["v_mul_f32 v%d, s%d, v%d" % (t + j, scale, t + j) for j in range(8)]
        G += ["v_cvt_pk_bf16_f32 v%d, v%d, v%d" % (pk + j, t + 2 * j, t + 2 * j + 1) for j in range(4)]
        return G
    def kv_unit(j, nd=None):
        cb, rb, tb = (j % 16) // 4, (j // 2) % 2, j % 2
        pk = PK + 4 * (j % 4)
        G = pack(j * 8, pk) + ["buffer_store_dwordx4 %s, v%d, s[%d:%d], s%d offen offset:%d%s" % (vr(pk, 4), vL16, SO, SO + 3, (sOK, sOK2)[rb], (cb % 2) * 2048 + tb * 1024, " ; need:%d" % nd if nd else "")]
        if j == 15: G += ["s_add_u32 s%d, s%d, s%d" % (sOK, sOK, sOJ), "s_add_u32 s%d, s%d, s%d" % (sOK2, sOK2, sOJ)]
        elif j % 16 == 7: G += ["s_add_u32 s%d, s%d, 4096" % (sOK, sOK), "s_add_u32 s%d, s%d, 4096" % (sOK2, sOK2)]
        return G
    qa_setup = [["s_mov_b32 s%d, s%d" % (SA, pX), "s_mov_b32 s%d, s%d" % (SA + 1, pX + 1),
                 "s_lshl_b32 s%d, s%d, 15" % (sAS, sQL), "s_lshl_b32 s%d, s%d, 15" % (sAS2, sQS)]]
    qw_setup = [["s_mov_b32 m0, %d" % LDS_G, "s_mov_b32 s%d, s%d" % (SW, pWQ), "buffer_load_dwordx4 v%d, s[%d:%d], 0 offen lds ; need:8" % (vL16, SX, SX + 3), "s_mov_b32 s%d, s%d" % (SW + 1, pWQ + 1)],
                ["s_lshl_b32 s%d, s%d, 17" % (sT0, sWV), "s_lshl_b32 s%d, s%d, 8" % (sWS, sH), "s_add_u32 s%d, s%d, s%d" % (sWS, sWS, sT0), "s_lshl_b32 s%d, s%d, 12" % (sWM, sWV)],
                ["s_mov_b32 s%d, s%d" % (SX, pWQKV), "s_mov_b32 s%d, s%d" % (SX + 1, pWQKV + 1), "s_lshl_b32 s%d, s%d, 11" % (sXM, sWV), "s_mul_i32 s%d, s%d, %d" % (sXS, sWV, 16 * 3072)],
                ["s_mov_b32 s%d, 0x180000" % (SX + 2)]]
    at_setup = [["v_cmp_ne_u32 vcc, s%d, v125" % sFA, "v_mov_b32 v%d, 1" % vFO, "s_nop 0", "s_lshr_b32 s%d, vcc_lo, s%d" % (sT0, sGR), "s_and_b32 s%d, s%d, 15" % (sT0, sT0)],
                ["s_cmp_eq_u32 s%d, 0" % sT0, "s_cselect_b32 s%d, 1, s%d" % (sFA, sWV)],
                ["s_cmp_eq_u32 s%d, 0" % sWV, "s_cselect_b32 s46, 1, 0", "s_cselect_b32 s47, 2, 0"],
                ["s_lshl_b32 s%d, s%d, 12" % (sW4, sWV), "s_lshl_b32 s%d, s%d, 13" % (sW8, sWV), "s_lshl_b32 s%d, s%d, 19" % (sT0, sH)],
                ["s_lshl_b32 s%d, s%d, 15" % (sVD, sI), "s_add_u32 s%d, s%d, s%d" % (sT0, sT0, sVD)],
                ["s_add_u32 s%d, s%d, 0x%x" % (sKO, sT0, OFF_K), "s_add_u32 s%d, s%d, 0x%x" % (sVO, sT0, OFF_V), "s_mov_b32 s%d, %s" % (sTH, THRESH)]]
    sRA, sHP, sA0, sA1, sGB, sGA_, sGL_, sGS_, sP0, sP1_, sX0, sX1 = 36, 37, 38, 39, 64, 65, 66, 67, 68, 69, 70, 71
    sXO, sXR = 62, 95
    sFG, sFX, sRBK, sTIL = 96, 97, 60, 61
    late_setup = [["s_lshr_b32 s%d, s%d, 3" % (sX1, sH), "s_lshl_b32 s%d, s%d, 3" % (sFG, sX1), "s_add_u32 s%d, s%d, s%d" % (sFG, sFG, sI), "s_lshl_b32 s%d, s%d, 5" % (sFG, sFG),
                 "s_and_b32 s%d, s%d, 7" % (sX0, sH), "s_add_u32 s%d, s%d, s%d" % (sFG, sFG, sX0), "s_lshl_b32 s%d, s%d, 2" % (sFG, sFG), "s_add_u32 s%d, s%d, 0x%x" % (sFG, sFG, OFF_FL),
                 "s_sub_u32 s%d, 15, s%d" % (sX0, sI)], ["s_bitcmp1_b32 s2, 0", "s_cselect_b32 s%d, s%d, s%d" % (sRBK, sX0, sI)], ["s_lshl_b32 s%d, s%d, 2" % (sFX, sRBK),
                 "s_and_b32 s%d, s%d, 3" % (sX0, sH), "s_add_u32 s%d, s%d, s%d" % (sTIL, sFX, sX0), "s_lshl_b32 s%d, s%d, 5" % (sFX, sTIL), "s_add_u32 s%d, s%d, s%d" % (sFX, sFX, sX1),
                 "s_lshl_b32 s%d, s%d, 2" % (sFX, sFX), "s_add_u32 s%d, s%d, 0x%x" % (sFX, sFX, OFF_FL + 32 * 128)],
        ["s_bitcmp1_b32 s%d, 1" % sH, "s_cselect_b32 s%d, s%d, s%d" % (sRA, sQL, sQS)],
        ["s_and_b32 s%d, s%d, 1" % (sHP, sH), "s_lshr_b32 s%d, s%d, 1" % (sX0, sGR), "s_add_u32 s%d, s%d, s%d" % (sHP, sHP, sX0), "s_lshl_b32 s%d, s%d, 11" % (sGB, sGR), "s_add_u32 s%d, s%d, 0x%x" % (sGB, sGB, OFF_G)]]
    for d_, blk in ((sGA_, sRA), (sGL_, sQL), (sGS_, sQS)): late_setup.append(["s_lshl_b32 s%d, s%d, 7" % (d_, blk), "s_add_u32 s%d, s%d, s%d" % (d_, d_, sGB)])
    late_setup += [["s_lshr_b32 s%d, s%d, 2" % (sX0, sHP), "s_lshl_b32 s%d, s%d, 19" % (sX0, sX0), "s_and_b32 s%d, s%d, 3" % (sX1, sHP), "s_lshl_b32 s%d, s%d, 11" % (sX1, sX1),
         "s_add_u32 s%d, s%d, s%d" % (sX0, sX0, sX1), "s_lshl_b32 s%d, s%d, 13" % (sX1, sRA), "s_add_u32 s%d, s%d, s%d" % (sA0, sX0, sX1),
         "s_max_u32 s%d, s%d, 1" % (sX1, sRA), "s_sub_u32 s%d, s%d, 1" % (sX1, sX1), "s_lshl_b32 s%d, s%d, 13" % (sX1, sX1), "s_add_u32 s%d, s%d, s%d" % (sA1, sX0, sX1),
         "s_add_u32 s%d, s%d, %d" % (sA1, sA1, 4 * PH),
         "s_lshr_b32 s%d, s2, 3" % sX0, "s_lshl_b32 s%d, s%d, 2" % (sX0, sX0), "s_add_u32 s%d, s%d, s%d" % (sX0, sX0, sWV), "s_and_b32 s%d, s2, 6" % sX1,
         "s_lshl_b32 s%d, s%d, 6" % (sX1, sX1), "s_add_u32 s%d, s%d, s%d" % (sX0, sX0, sX1), "s_lshl_b32 s%d, s%d, 6" % (sP0, sX0), "s_lshl_b32 s%d, s%d, 3" % (sP1_, sX0),
         "s_mul_i32 s%d, s%d, %d" % (sXO, sTIL, 4 * 49152), "s_add_u32 s%d, s%d, s%d" % (sXO, sXO, sW4), "s_add_u32 s%d, s%d, 0x%x" % (sXO, sXO, OFF_X),
         "s_lshr_b32 s%d, s%d, 3" % (sXR, sH), "s_mul_i32 s%d, s%d, 49152" % (sXR, sXR), "s_add_u32 s%d, s%d, s%d" % (sXR, sXR, sXO),
         "s_add_u32 s%d, s%d, %d" % (sX0, sA0, 4 * PH), "s_add_u32 s%d, s%d, %d" % (sX1, sA0, 8 * PH), "s_add_u32 s%d, s%d, %d" % (sGB, sA1, 4 * PH)]]
    def ren(G, mp): return [[_re.sub(r"\bs(\d+)\b", lambda m_: "s%d" % mp.get(int(m_.group(1)), int(m_.group(1))), x) for x in g] for g in G]
    early = ren(late_setup[:3], {sFG: 64, sFX: 65})
    early += [["v_mov_b32 v28, 0"] + ["buffer_store_dword v28, v%d, s[%d:%d], s%d offen sc1 ; need:2" % (vONE, SO, SO + 3, r) for r in (64, 65, sU)]]
    SK, SV = SO, SO
    vK, vV = vL16, 2
    def dma(which, typ, par, srd_=None):
        so, sr_, base = (sKO, SK, 0) if which == "K" else (sVO, SV, 65536)
        if srd_ is not None: sr_ = srd_
        sw = sW4 if typ == 1 else sW8
        G = []
        for q in range(typ):
            g = ["s_add_u32 m0, s%d, %d" % (sw, base + par * 32768 + q * 4096)]
            g.append("s_add_u32 s%d, s%d, s%d" % (sDS, so, sw) if q == 0 else "s_add_u32 s%d, s%d, 4096" % (sDS, sDS))
            G.append(g)
            for o in range(4):
                G.append(["buffer_load_dwordx4 v%d, s[%d:%d], s%d offen offset:%d sc1 lds" % (vK, sr_, sr_ + 3, sDS, o * 1024)])
        return G
    def adv(which, typ):
        so = sKO if which == "K" else sVO
        if which == "V" and typ == 1: return ["s_add_u32 s%d, s%d, s%d" % (so, so, sVD), "s_movk_i32 s%d, 0x4000" % sVD]
        return ["s_add_u32 s%d, s%d, %d" % (so, so, 16384 * typ)]
    spins = []
    vF1, vFA, vPO = 122, 251, 250
    sP1, sG1, sG2 = 45, 46, 47
    def poll_load(kind):
        if kind == 0: return "buffer_load_dword v125, v126, s[%d:%d], 0 offen sc1" % (SD, SD + 3)
        if kind == 1: return "buffer_load_dword v%d, v124, s[%d:%d], s%d offen sc1" % (vF1, SO, SO + 3, sHL)
        if kind == 4: return "buffer_load_dword v195, v192, s[%d:%d], s%d offen sc1" % (SO, SO + 3, sG2)
        return "buffer_load_dword v%d, v%d, s[%d:%d], s%d offen sc1" % (vFA, vPO, SO, SO + 3, sHL)
    def poll_cmp(kind):
        if kind == 0: return "v_and_b32 v%d, 0xff, v125\nv_cmp_gt_u32 vcc, s%d, v%d" % (vFO, sP1, vFO)
        return "v_cmp_gt_u32 vcc, s%d, v%d" % ((sG1, vF1) if kind == 1 else (sG2, vFA) if kind == 2 else (sG1, 195))
    def poll_check(kind):
        ls, lb = a.label("spin"), a.label("spun")
        a("%s\ns_cbranch_vccnz %s\n%s:" % (poll_cmp(kind), ls, lb))
        spins.append((ls, lb, kind))
    rels = []
    def release():
        ls, lb = a.label("rel"), a.label("reld")
        a("s_cmp_eq_u32 s%d, 0\ns_cbranch_scc1 %s\n%s:" % (sFA, ls, lb))
        rels.append((ls, lb))

    st_("setup")
    bar("s_waitcnt vmcnt(1)")
    st_("bar0")

    pre0 = rd_w(0, 0, 0, 0) + rd_act(0, 0) + [x for k in range(1, PDW) for x in rd_w(0, 0, k, k)]
    use0 = [0, 0] + list(range(8)) + [8 * k for k in range(1, PDW) for _ in range(2)]
    for x in pre0: a(x)
    a(xa(0, 0))
    lV = a.label("kvV"); lQ = a.label("qphase")
    a("s_cmp_ge_u32 s%d, 2\ns_cbranch_scc1 %s" % (sWV, lV))
    NKV = 12
    CRL = "global_load_dword v122, v127, s[0:1]"
    for var in ("K", "V"):
        if var == "V": a(lV + ":")
        t2[0] = 1
        S_, cm, bm, fm = build(0, var)
        S_.place(dma_w(1) + dma_act(1), 0, 56)
        S_.place(dma_act(2) + pfp(-1), 56, bm[1] - 2)
        for g in range(1, 9):
            b = bm[g]; e = bm.get(g + 1, S_.n + 96)
            Wn = (soft(qw_setup) if g == 7 else []) + dma_w(g + 1) + pfp(g - 1)
            if g in (3, 5, 7): Wn = Wn + [CRL]
            if g == 2: Wn = Wn + [PLA]
            if g == 6: Wn = Wn + [poll_load(0) + " ; need:7", ["s_cmp_eq_u32 s%d, 0" % sWV, "s_cselect_b32 s%d, 8, 0" % sP1]]
            S_.place(Wn, b, b + (44 if g < 8 else 31))
            if g < 8: S_.place((flat(qa_setup) if g == 6 else []) + dma_act(g + 2) + (soft(at_setup) if g == 7 else []), b + 44, e - 8)
        S_.place(DF[:34] + soft(early), 2, bm[1] + 8)
        S_.place(DF[34:], bm[1] + 8, bm[3] - 4)
        S_.hooks[7] = lambda: poll_check(0)
        for cb in range(3):
            S_.place([x for j in range(4 * cb, 4 * cb + 4) for x in kv_unit(j, GPUB)], cm[7] + 32 * cb + 38, cm[7] + 32 * cb + 70 if cb < 2 else S_.n)
        vmh = S_.emit(a, bar, use0, [])
        left = S_.left; nkv = S_.n
        if VERB: print("KV over", S_.over)
        if var == "K": a("s_branch %s" % lQ)
    a(lQ + ":")
    st_("q")
    use8 = [0 if u == nkv else 4 * (u - nkv - 1) for u in left]
    t2[0] = 9
    S_, cm, bm, fm = build(8, "Q")
    per = cm[9] - cm[8]
    S_.place(dma_act(10), 0, bm[9] - 6)
    for g in range(9, 16):
        b = bm[g]; e = bm.get(g + 1, S_.n)
        Wn = dma_w(g + 1) if g < 15 else [x + " ; need:16" if isvm(x) else x for x in flat(dma("K", 1, 1))]
        if g == GPUB:
            S_.hooks[g] = release
            Wn = Wn + ["buffer_store_dword v%d, v%d, s[%d:%d], s%d offen sc1" % (vFO, vONE, SO, SO + 3, sU)]
        if g in (9, 11, 13): Wn = Wn + [CRL]
        S_.place(Wn, b, b + 34)
        S_.place(dma_act(g + 2) if g + 2 < 16 else flat(dma("K", 1, 0) + [adv("K", 1)]) + [poll_load(1)] if g == 14 else [], b + 34, e - 6)
    S_.place(soft(late_setup), cm[10], cm[14])
    zero = lambda lo, hi: ["v_accvgpr_write_b32 a%d, 0" % r for r in range(lo, hi)]
    S_.place([x for j in range(NKV, 16) for x in kv_unit(j, GPUB)], 8, cm[9] + per // 2)
    S_.place([x for j in range(16, 32) for x in kv_unit(j)] + zero(52, 128), cm[9] + per // 2, cm[15] + 20)
    hd = ["s_and_b32 s%d, s%d, 1" % (sT0, sH), "s_lshr_b32 s%d, s%d, 1" % (sT1, sGR), "s_add_u32 s%d, s%d, s%d" % (sT0, sT0, sT1),
          "s_and_b32 s%d, s%d, 2" % (sT2, sH), "s_lshl_b32 s%d, s%d, 20" % (sAS, sT2), "s_lshr_b32 s%d, s%d, 1" % (sT2, sT2), "s_add_u32 s%d, s%d, s%d" % (sT1, sT1, sT2),
          "s_lshr_b32 s%d, s%d, 2" % (sT2, sT0), "s_lshl_b32 s%d, s%d, 19" % (sT2, sT2), "s_add_u32 s%d, s%d, s%d" % (sAS, sAS, sT2), "s_and_b32 s%d, s%d, 3" % (sT0, sT0), "s_lshl_b32 s%d, s%d, 11" % (sT0, sT0),
          "s_add_u32 s%d, s%d, s%d" % (sAS, sAS, sT0),
          "s_lshr_b32 s%d, s%d, 2" % (sT2, sT1), "s_add_u32 s%d, s%d, 8" % (sT2, sT2), "s_lshl_b32 s%d, s%d, 19" % (sAS2, sT2), "s_and_b32 s%d, s%d, 3" % (sT1, sT1), "s_lshl_b32 s%d, s%d, 11" % (sT1, sT1),
          "s_add_u32 s%d, s%d, s%d" % (sAS2, sAS2, sT1), "s_and_b32 s%d, s%d, 1" % (sT0, sH), "s_lshl_b32 s%d, s%d, 10" % (sT0, sT0), "s_add_u32 s%d, s%d, s%d" % (sAS2, sAS2, sT0),
          "s_lshl_b32 s%d, s%d, 13" % (sT0, sQL), "s_lshl_b32 s%d, s%d, 13" % (sT1, sQS),
          "s_add_u32 s%d, s%d, s%d" % (sWS, sAS, sT0), "s_add_u32 s%d, s%d, s%d" % (sXS, sAS, sT1), "s_add_u32 s%d, s%d, s%d" % (sAM, sAS2, sT0), "s_add_u32 s%d, s%d, s%d" % (sWM, sAS2, sT1),
          ["s_bitcmp1_b32 s%d, 1" % sH, "s_cselect_b32 s%d, 1.0, %s" % (sSC, fbits(LOG2E * 0.25)), "s_cselect_b32 s%d, s%d, s%d" % (sXM, sGS_, sGL_)],
          "s_and_b32 s%d, s%d, 1" % (sT0, sH), "s_lshl_b32 s%d, s%d, 6" % (sT0, sT0), "s_add_u32 s%d, s%d, s%d" % (sXM, sXM, sT0)]
    AE = []
    for j in range(6):
        pk = PK + 4 * (j % 4)
        so, off = ((sWS, sXS)[j // 2], (j % 2) * 1024) if j < 4 else ((sAM, sWM)[j - 4], 0)
        AE += pack(j * 8, pk, sSC if j < 4 else None) + ["buffer_store_dwordx4 %s, v%d, s[%d:%d], s%d offen offset:%d" % (vr(pk, 4), vL16, SO, SO + 3, so, off)]
    AE += ["v_accvgpr_read_b32 v%d, a48" % TT, "v_and_b32 v%d, 15, v0" % (TT + 1), "v_mul_f32 v%d, %s, v%d" % (TT, fbits(-LOG2E), TT), "v_exp_f32 v%d, v%d" % (TT, TT), "v_lshlrev_b32 v%d, 2, v%d" % (TT + 1, TT + 1),
           "v_add_f32 v%d, 1.0, v%d" % (TT, TT), "v_rcp_f32 v%d, v%d" % (TT, TT), "s_nop 0", "buffer_store_dword v%d, v%d, s[%d:%d], s%d offen" % (TT, TT + 1, SO, SO + 3, sXM)]
    S_.place(hd, bm[15] + 2, cm[15] + 38)
    room = S_.room(cm[15] + 40, S_.n) - 8
    S_.place(AE[:room], cm[15] + 40, S_.n); tail = AE[room:]
    vm2 = S_.emit(a, bar, use8, vmh)
    if VERB: print("Q over", S_.over, "tail", len(tail))
    for x in tail: a(x)
    a("s_waitcnt vmcnt(%d)" % (len(vm2) - 1 - max(k for k, nd in enumerate(vm2) if nd == 16) + sum(1 for x in tail if isvm(x))))
    a(lAttn + ":")
    st_("attn")
    vU = 3; vL = (4, 5, 6, 7); vG = (8, 9, 14, 15); vX = 10
    S = (16, 80); P = (144, 176); NM, LT, TM, ONES = 208, 224, 240, 252
    vT8, vNEG = 248, 249
    O, Q, FR, NFR = 0, 128, 192, 16
    ms = (26, 28, 30, 4)
    def kfrag(p, kb, s): return ("K", p * 32768 + (kb // 2) * 8192 + s * 2048 + (kb % 2) * 1024)
    def vfrag(p, kp, dt): return ("V", p * 32768 + kp * 8192 + dt * 1024)
    def rd(slot, fr): return "ds_read_b128 %s, v%d offset:%d" % (ar(FR + 4 * (slot % NFR), 4), vK if fr[0] == "K" else vV, fr[1])
    def pvm(Pp, nq, kp, dt): return ["%s %s, {F}, %s, %s" % (MF16, ar(O + (qb * 8 + dt) * 4, 4), vr(Pp + (kp * nq + qb) * 4, 4), ar(O + (qb * 8 + dt) * 4, 4)) for qb in range(nq)]
    def mf_list(p, pv, qk):
        L = []; Pp = P[1 - p]; Sn = S[1 - p]
        if pv in (1, 2):
            nq = 4 // pv
            L += [(vfrag(1 - p, kp, dt), pvm(Pp, nq, kp, dt)) for kp in range(2 * pv) for dt in range(8)]
        elif pv == 3:
            L += [(("K", vfrag(1, kp, dt)[1]), pvm(Pp, 2, kp, dt)) for dt in range(8) for kp in range(4)]
        if qk:
            nq = 4 // qk
            for kb in range(4 * qk):
                for s in range(4):
                    ms_ = []
                    for qb in range(nq):
                        d = vr(Sn + ((kb // 2) * nq + qb) * 8 + (kb % 2) * 4, 4)
                        ms_.append("%s %s, {F}, %s, %s" % (MF16, d, ar(Q + (qb * 4 + s) * 4, 4), d if s else vr(NM + qb * 4, 4)))
                    L.append((kfrag(1 - p, kb, s), ms_))
        return L
    def ex(p, n): return "v_exp_f32 v%d, v%d" % (TM + n % 8, S[p] + n)
    def cv(p, j): return "v_cvt_pk_bf16_f32 v%d, v%d, v%d" % (P[p] + j, TM + (2 * j) % 8, TM + (2 * j) % 8 + 1)
    def summ(p, sm, q):
        nq = 4 // sm; d = vr(LT + (q % nq) * 4, 4)
        return "%s %s, %s, %s, %s" % (MF16, d, vr(ONES, 4), vr(P[p] + 4 * q, 4), d if q >= nq else "0")
    def chks(sm):
        c = ["v_max3_f32 v%d, v%d, v%d, v%d" % (vX, LT, LT + 4, LT + 8), "v_max_f32 v%d, v%d, v%d" % (vX, vX, LT + 12)] if sm == 1 else ["v_max_f32 v%d, v%d, v%d" % (vX, LT, LT + 4)]
        return c + ["v_cmp_lt_f32 vcc, s%d, v%d" % (sTH, vX)]
    rare = {}
    def step(p, pv, sm, qk, dK, dV, pre_in=True, pre_out=True, extra_vm=None, chk=0, last16=False, staged=None, trail=None, vm_first=False, flush=False, ctl=None):
        L = mf_list(p, pv, qk); nf = len(L)
        nxt = [x[0] for x in mf_list(1, 3, 0)][:PD] if last16 else [vfrag(p, kp, dt) for kp in range(2) for dt in range(8)][:PD]
        M0 = [(f, t) for f, (fr, ts_) in enumerate(L) for t in ts_]
        nb = len(M0); M = []; spos = []
        endm = nb - 13
        ins = {((q + 1) * endm) // 8 + 3: q for q in range(8)} if sm else {}
        for m, it in enumerate(M0):
            M.append(it)
            if m in ins: spos.append(len(M)); M.append((it[0], summ(p, sm, ins[m])))
        nm = len(M)
        G = []
        if dV: G += dma("V", dV, p) + [adv("V", dV)]
        if dK: G += dma("K", dK, p) + [adv("K", dK)]
        ntr = sum(1 for x in flat(trail or []) if isvm(x))
        G = ((extra_vm or []) + G if vm_first else G + (extra_vm or [])) + (trail or [])
        firstm = {}
        for m, (f, t) in enumerate(M): firstm.setdefault(f, m)
        barf = nf + 1 - PD
        if barf % WP: barf += WP - barf % WP
        if not pre_out or last16: barf = nf + 99
        Gp = Gaps([12] * (nm - 1) + [4])
        sR = Gp.newstream(); pre = None
        allfr = [x[0] for x in L] + (nxt if pre_out else [])
        nrd = PD
        for f in range(nf):
            m = firstm[f]; w_ = None
            if f == barf: w_ = ["s_BARW", "s_BAR"]
            elif f < barf and f % WP == 0: w_ = ["s_waitcnt lgkmcnt(%d)" % max(0, nrd - 1 - min(f + WP - 1, nf - 1))]
            if w_ and m == 0: pre = w_
            elif w_:
                for x in w_: Gp.add(m - 1, sR, x)
            want = min(f + PD, len(allfr) - 1)
            if f < barf and not last16: want = min(want, nf - 1)
            k = m
            while nrd <= want and k < m + 2:
                Gp.add(k, sR, rd(nrd, allfr[nrd])); nrd += 1; k += 1
        assert nrd == len(allfr), (nrd, len(allfr))
        hiD = min(max(2 * len(G), (nm * DFR) // 16), firstm[barf] - 8 if barf < nf else nm)
        Gp.place(flat(G), 1, hiD, slack=40)
        if pv in (1, 2) and not last16: Gp.place(["v_add_f32 v%d, v%d, v%d" % (vL[qb], vL[qb], LT + 4 * qb) for qb in range(4 // pv)], 0, 10)
        if ctl: Gp.place([ctl], nm - 8, nm - 3)
        if sm:
            pe = []; lo = 0
            for q in range(8):
                hi = spos[q] - 3
                pe += Gp.place([ex(p, n) for n in range(8 * q, 8 * q + 8)], lo, hi, slack=16, ahead=8); lo = hi
            sC = Gp.newstream(); k = 0
            for j in range(32):
                k = max(k, pe[2 * j + 1] + 1)
                dl = min(pe[2 * j + 8] - 1 if 2 * j + 8 < 64 else nm, spos[j // 4] - 3)
                assert k <= dl, (j, k, dl)
                cand = [z for z in range(k, dl + 1) if gcost(Gp.g[z] + [(sC, cv(p, j))]) <= Gp.cap[z]]
                k = cand[0] if cand else min(range(k, dl + 1), key=lambda z: gcost(Gp.g[z]))
                Gp.add(k, sC, cv(p, j))
            Gp.place(chks(sm), nm - 3, nm - 1)
        for (lst, lo, hi) in (staged or []): Gp.place(lst, lo, hi)
        if VERB: print("step", p, pv, sm, qk, "gaps", nm, "over", Gp.over())
        if not pre_in:
            for f in range(PD): a(rd(f, L[f][0]))
        for x in pre or []: a(x)
        for m, (f, t) in enumerate(M):
            a(t.replace("{F}", ar(FR + 4 * (f % NFR), 4)))
            for x in Gp.out(m):
                if x == "s_BARW": continue
                if x == "s_BAR":
                    if TS3: a("s_mov_b32 m0, s76\ns_add_u32 s76, s76, 1\nv_writelane_b32 v11, s72, m0\ns_mov_b32 m0, s76\ns_add_u32 s76, s76, 1\nv_writelane_b32 v11, s74, m0\ns_memtime s[72:73]")
                    a("s_waitcnt vmcnt(%d) lgkmcnt(0)" % ntr)
                    if chk: poll_check(chk)
                    a("s_barrier")
                    if TS3: a("s_memtime s[74:75]\ns_waitcnt lgkmcnt(0)")
                else: a(x)
        assert nf % NFR == 0
        if sm:
            key = (p, sm, qk if qk else sm)
            if key not in rare: rare[key] = (a.label("rare"), [])
            lb = a.label("back"); lj = a.label("jr")
            rare[key][1].append((lj, lb))
            a("s_cbranch_vccnz %s\n%s:" % (lj, lb))
            if last16 or flush:
                for qb in range(4 // sm): a("v_add_f32 v%d, v%d, v%d" % (vL[qb], vL[qb], LT + 4 * qb))
    def qregs(base, typ, qb):
        nq = 4 // typ
        return [base + (kp * nq + qb) * 8 + j for kp in range(2 * typ) for j in range(8)]
    def maxtree(dst, R):
        L = ["v_max3_f32 v%d, v%d, v%d, v%d" % (dst, R[0], R[1], R[2])]; j = 3
        while j + 1 < len(R):
            L.append("v_max3_f32 v%d, v%d, v%d, v%d" % (dst, dst, R[j], R[j + 1])); j += 2
        if j < len(R): L.append("v_max_f32 v%d, v%d, v%d" % (dst, dst, R[j]))
        return L
    def xlane(op, D, Tm):
        L = []
        for sw in ("v_permlane16_swap_b32", "v_permlane32_swap_b32"):
            L += ["v_mov_b32 v%d, v%d" % (t, d) for d, t in zip(D, Tm)]
            if len(D) < 3: L.append("s_nop %d" % (2 - len(D)))
            L += ["%s v%d, v%d" % (sw, d, t) for d, t in zip(D, Tm)]
            L += ["%s v%d, v%d, v%d" % (op, d, d, t) for d, t in zip(D, Tm)]
        return L
    def mask(base, blocks, pad=True):
        if pad: a("s_nop 7")
        for (r0, kb) in blocks:
            r0 += base
            lf = a.label("mfull"); le_ = a.label("mend")
            a("s_cmp_gt_u32 s%d, %d\ns_cbranch_scc1 %s" % (sWV, kb, le_))
            for r in range(4): a("v_mov_b32 v%d, v%d" % (r0 + 4 + r, vNEG))
            if kb > 0: a("s_cmp_lt_u32 s%d, %d\ns_cbranch_scc1 %s" % (sWV, kb, lf))
            for r in range(4): a("v_cmp_gt_i32 s[%d:%d], %d, v%d" % (ms[r], ms[r] + 1, r, vU))
            for t in (0, 12):
                for r in range(4): a("v_cndmask_b32 v%d, v%d, v%d, s[%d:%d]" % (r0 + t + r, r0 + t + r, vNEG, ms[r], ms[r] + 1))
            if kb > 0:
                a("s_branch %s\n%s:" % (le_, lf))
                for r in list(range(4)) + list(range(8, 16)): a("v_mov_b32 v%d, v%d" % (r0 + r, vNEG))
            a(le_ + ":")
    poll_check(1)
    bar("s_nop 0")
    if TS2:
        a("s_waitcnt lgkmcnt(0)"); bar("s_nop 0")
        a("s_lshl_b32 s78, s2, 2\ns_add_u32 s78, s78, s%d\ns_lshl_b32 s78, s78, 8\ns_add_u32 s78, s78, 0x%x\nv_lshlrev_b32 v122, 2, v0" % (sWV, OFF_TS + 0x80000))
        a("buffer_store_dword v123, v122, s[%d:%d], s78 offen\ns_waitcnt vmcnt(0)" % (SO, SO + 3))
    a("s_mov_b32 s%d, %s" % (sSC, fbits(LOG2E / math.sqrt(128.0))))
    fr0 = [kfrag(0, kb, s) for s in range(4) for kb in range(4)]
    for f in range(12): a(rd(f, fr0[f]))
    def qepi(cb):
        G = []
        for qb in range(4):
            src = QA + (((qb // 2) * 4 + cb) * 2 + qb % 2) * 8
            G += ["v_mul_f32 v%d, s%d, v%d" % (src + j, sSC, src + j) for j in range(8)]
            G += ["v_cvt_pk_bf16_f32 v%d, v%d, v%d" % (src + j, src + 2 * j, src + 2 * j + 1) for j in range(4)]
            G += ["v_accvgpr_write_b32 a%d, v%d" % (Q + (qb * 4 + cb) * 4 + j, src + j) for j in range(4)]
        return G
    a("s_add_u32 s%d, s%d, 0x4000\ns_sub_u32 s%d, s%d, s%d\ns_cmp_eq_u32 s%d, 0\ns_cselect_b32 s%d, 0x8000, 0\ns_add_u32 s%d, s%d, s%d" % (sT1, sVD, sKO, sKO, sT1, sI, sT0, sKO, sKO, sT0))
    for x in flat(dma("V", 1, 0)): a(x)
    a("s_add_u32 s%d, s%d, 0x4000\ns_sub_u32 s%d, 0, s%d" % (sVO, sVO, sVD, sT1))
    for x in qepi(0): a(x)
    for f in range(12, 16): a(rd(f, fr0[f]))
    misc = ["v_add_u32 v%d, 0x10000, v%d" % (vV, vK), "v_and_b32 v10, 15, v0", "v_lshrrev_b32 v11, 4, v0", "v_lshlrev_b32 v11, 2, v11", "v_sub_u32 v%d, v10, v11" % vU]
    misc += ["v_mov_b32 v%d, 0" % r for r in vL] + ["v_mov_b32 v%d, %s" % (vNEG, NEG), "v_bfe_u32 v%d, v0, 3, 2" % vPO, "v_lshl_add_u32 v%d, v%d, 7, v124" % (vPO, vPO), "s_and_b32 s%d, s%d, 0xfffffe00" % (sHL, sHL)]
    misc += ["v_mov_b32 v%d, 0x3f803f80" % r for r in range(ONES, ONES + 4)] + ["v_mov_b32 v14, v%d" % vONE, "v_mov_b32 v15, 2"] + zero(0, 52)
    a("s_waitcnt lgkmcnt(0)\ns_barrier")
    K2 = flat(dma("K", 2, 0)) + [["s_cmp_eq_u32 s%d, 0" % sI, "s_cselect_b32 s%d, 2, 1" % sT0], "s_lshl_b32 s%d, s%d, 14" % (sT0, sT0), "s_add_u32 s%d, s%d, s%d" % (sKO, sKO, sT0)]
    Gp = Gaps([12] * 64)
    Gp.place(K2, 0, 40)
    for s in range(4): Gp.place(qepi(s + 1) if s < 3 else misc, 16 * s, 16 * s + 16, slack=4)
    for s in range(4):
        for n in range(16):
            qb, kb = n // 4, n % 4
            d = vr(S[0] + ((kb // 2) * 4 + qb) * 8 + (kb % 2) * 4, 4)
            a("%s %s, %s, %s, %s" % (MF16, d, ar(FR + 4 * (4 * s + kb), 4), ar(Q + (qb * 4 + s) * 4, 4), d if s else "0"))
            for x in Gp.out(16 * s + n): a(x)
    st_("m1")
    mask(S[0], [(16, 0), (48, 1)])
    MXr, MXt = (240, 241, 242, 243), (244, 245, 246, 247)
    for qb in range(4):
        for x in maxtree(MXr[qb], qregs(S[0], 1, qb)): a(x)
    for x in xlane("v_max_f32", MXr, MXt): a(x)
    for qb in range(4):
        for j in range(4): a("v_sub_f32 v%d, 0, v%d" % (NM + qb * 4 + j, MXr[qb]))
    for qb in range(4):
        for r in qregs(S[0], 1, qb): a("v_sub_f32 v%d, v%d, v%d" % (r, r, MXr[qb]))
    st_("first")
    if TS3: a("s_mov_b32 s76, 0\ns_mov_b32 s72, 0\ns_mov_b32 s74, 0")
    step(0, 0, 1, 1, 0, 0, pre_in=False)
    release()
    a("buffer_store_dword v15, v14, s[%d:%d], s%d offen sc1" % (SO, SO + 3, sU))
    mask(S[1], [(16, 2), (48, 3)], pad=False)
    st_("s0")
    lT0, lT1, lT1b, lL1, lL2, lS15, lMid, lI7, lEn = [a.label(x) for x in ("T0", "T1", "T1b", "L1", "L2", "S15", "MID", "I7", "END")]
    PL = [[poll_load(2)]]
    AF = [Q + 4 * j for j in range(9)]
    def ld(dst, so, off): return "buffer_load_dwordx4 %s, v%d, s[%d:%d], s%d offen offset:%d sc1" % (ar(dst, 4), vK, SV, SV + 3, so, off)
    AOP = [ld(AF[0], sA0, 0), ld(AF[1], sA0, 1024), ld(AF[2], sX0, 0), ld(AF[3], sX0, 1024), ld(AF[4], sA1, 1024),
           ld(AF[5], sX1, 0), ld(AF[6], sX1, 1024), ld(AF[7], sGB, 0), ld(AF[8], sGB, 1024)]
    AOP += ["v_and_b32 v12, 15, v0", "v_lshlrev_b32 v12, 2, v12"] + ["buffer_load_dword a%d, v12, s[%d:%d], s%d offen offset:%d sc1" % (Q + 36 + t, SV, SV + 3, sGA_, 64 * t) for t in range(2)]
    ALD = [["v_and_b32 v12, 15, v0", "v_lshlrev_b32 v12, 2, v12"]]
    ALD += [["buffer_load_dword v%d, v12, s[%d:%d], s%d offen offset:%d sc1" % (vG[qb], SV, SV + 3, (sGL_, sGS_)[qb // 2], 64 * (qb % 2))] for qb in range(4)]
    def wpf(dst): return [["v_add_lshl_u32 v%d, v0, s%d, 7" % (vT8, sP0), "global_load_dword v%d, v%d, s[%d:%d]" % (dst, vT8, pBWO, pBWO + 1)],
                          ["v_and_b32 v12, 7, v0", "v_add_lshl_u32 v12, v12, s%d, 7" % sP1_, "global_load_dword v%d, v12, s[%d:%d]" % (dst, pWO, pWO + 1)]]
    TR0, TR15 = wpf(vG[0]), wpf(vT8)
    a("s_cmp_eq_u32 s%d, 0\ns_cbranch_scc1 %s" % (sI, lT1))
    a("s_mov_b32 s%d, s%d" % (sT, sI))
    a(".p2align 6\n" + lL1 + ":")
    step(1, 1, 1, 1, 1, 1, ctl=["s_sub_u32 s%d, s%d, 1" % (sT, sT)])
    a("s_cmp_eq_u32 s%d, 0\ns_cbranch_scc1 %s" % (sT, lT0))
    step(0, 1, 1, 1, 1, 1)
    a("s_branch %s" % lL1)
    a(lT0 + ":")
    a("s_add_u32 s%d, s%d, 0x8000" % (sKO, sKO))
    step(0, 1, 1, 1, 2, 1, extra_vm=PL, chk=2, trail=TR0)
    a("s_cmp_eq_u32 s%d, 7\ns_cbranch_scc1 %s" % (sI, lT1b))
    a(lT1 + ":")
    step(1, 1, 1, 2, 2, 1)
    a("s_add_u32 s%d, s%d, 0x8000" % (sVO, sVO))
    step(0, 1, 2, 2, 2, 2, extra_vm=PL, chk=2, trail=TR0)
    a("s_sub_u32 s%d, 6, s%d\ns_cmp_eq_u32 s%d, 0\ns_cbranch_scc1 %s" % (sT, sI, sT, lS15))
    a(".p2align 6\n" + lL2 + ":")
    step(1, 2, 2, 2, 2, 2)
    step(0, 2, 2, 2, 2, 2, ctl=["s_sub_u32 s%d, s%d, 1" % (sT, sT)])
    a("s_cmp_lg_u32 s%d, 0\ns_cbranch_scc1 %s" % (sT, lL2))
    a(lS15 + ":")
    a("s_add_u32 s%d, s%d, 0x8000" % (sKO, sVO))
    step(1, 2, 2, 2, 2, 2, extra_vm=ALD, trail=TR15, vm_first=True, flush=True)
    a("s_branch %s" % lMid)
    a(lT1b + ":")
    a("s_add_u32 s%d, s%d, 0xc000" % (sKO, sVO))
    step(1, 1, 1, 2, 2, 1, extra_vm=ALD, trail=TR15, vm_first=True, flush=True)
    def fin_head(rb, so):
        q0, q1 = 2 * rb, 2 * rb + 1
        return ["v_rcp_f32 v%d, v%d" % (vL[q0], vL[q0]), "v_rcp_f32 v%d, v%d" % (vL[q1], vL[q1]), "v_sub_f32 v%d, 1.0, v%d" % (vG[q0], vG[q0]), "v_sub_f32 v%d, 1.0, v%d" % (vG[q1], vG[q1]),
                "s_mul_i32 s%d, s%d, %d" % (so, (sQL, sQS)[rb], CROW), "s_lshl_b32 s%d, s%d, 13" % (sT1, sH), "v_mul_f32 v%d, v%d, v%d" % (vL[q0], vL[q0], vG[q0]), "v_mul_f32 v%d, v%d, v%d" % (vL[q1], vL[q1], vG[q1]),
                "s_add_u32 s%d, s%d, s%d" % (so, so, sT1), "s_add_u32 s%d, s%d, 0x%x" % (so, so, OFF_C)]
    def fin_part(rb, c, t, so):
        u, tq = c // 2, c % 2; qb = 2 * rb + tq
        G = ["v_accvgpr_read_b32 v%d, a%d" % (t + j, O + qb * 32 + u * 8 + j) for j in range(8)]
        G += ["v_mul_f32 v%d, v%d, v%d" % (t + j, vL[qb], t + j) for j in range(8)]
        G += ["v_cvt_pk_bf16_f32 v%d, v%d, v%d" % (t + j, t + 2 * j, t + 2 * j + 1) for j in range(4)]
        if c == 4: G.append("s_add_u32 s%d, s%d, 4096" % (so, so))
        G.append("buffer_store_dwordx4 %s, v%d, s[%d:%d], s%d offen offset:%d sc1" % (vr(t, 4), vK, SV, SV + 3, so, (c % 4) * 1024))
        return G
    a(lMid + ":")
    st_("mid")
    if TS3:
        a("s_mov_b32 m0, s76\ns_add_u32 s76, s76, 1\nv_writelane_b32 v11, s72, m0\ns_mov_b32 m0, s76\ns_add_u32 s76, s76, 1\nv_writelane_b32 v11, s74, m0")
        a("s_lshl_b32 s78, s2, 2\ns_add_u32 s78, s78, s%d\ns_lshl_b32 s78, s78, 8\ns_add_u32 s78, s78, 0x%x\nv_lshlrev_b32 v10, 2, v0" % (sWV, OFF_TS + 0x80000))
        a("buffer_store_dword v11, v10, s[%d:%d], s78 offen\ns_nop 4" % (SO, SO + 3))
    for x in AOP: a(x)
    mask(S[0], [(16 * kp, kp) for kp in range(4)], pad=False)
    PW, PW2 = 8, 12
    sWB, sHW, sWC, sAB, sHA, sAC = 25, 32, 33, 34, 35, 45
    vD = (232, 233, 234, 235)
    WRING = [0, 16384, 65536, 81920, 131072, 147456]; ARING = [32768, 49152, 98304, 114688]
    def w_dma(st):
        G = []
        if st < 16 and st % 2 == 0:
            G += ["s_lshl_b32 s%d, s%d, 17" % (sWC, sHW), "s_add_u32 s%d, s%d, s%d" % (sWC, sWC, sWB), "s_add_u32 s%d, s%d, 1" % (sHW, sHW)]
        if st == 16: G += ["s_and_b32 s%d, s%d, 0xffff" % (sWC, sWB), "s_lshr_b32 s%d, s%d, 20" % (sHW, sWB), "s_lshl_b32 s%d, s%d, 17" % (sHW, sHW), "s_add_u32 s%d, s%d, s%d" % (sWC, sWC, sHW)]
        G += ["s_add_u32 m0, s%d, %d" % (sW4, WRING[st % 6]), "s_and_b32 s%d, s%d, 7" % (sHW, sHW) if st % 2 == 0 else "s_add_u32 s%d, s%d, 65536" % (sWC, sWC)]
        sr_ = PW if st < 16 else PW2
        return G + ["buffer_load_dwordx4 v%d, s[%d:%d], s%d offen offset:%d lds ; need:%d" % (vD[o], sr_, sr_ + 3, sWC, o * 1024, st) for o in range(4)]
    def a_dma(st):
        G = []
        if st < 16 and st % 2 == 0:
            G += ["s_lshl_b32 s%d, s%d, 13" % (sAC, sHA), "s_add_u32 s%d, s%d, s%d" % (sAC, sAC, sAB), "s_add_u32 s%d, s%d, 1" % (sHA, sHA)]
        if st == 16: G += ["s_lshr_b32 s%d, s%d, 3" % (sHA, sH), "s_mul_i32 s%d, s%d, %d" % (sHA, sHA, 56 * 1024), "s_sub_u32 s%d, s%d, s%d" % (sAC, sAB, sHA), "s_add_u32 s%d, s%d, %d" % (sAC, sAC, 256 * 1024)]
        G += ["s_add_u32 m0, s%d, %d" % (sW4, ARING[st % 4]), "s_and_b32 s%d, s%d, 7" % (sHA, sHA) if st % 2 == 0 else "s_add_u32 s%d, s%d, 4096" % (sAC, sAC)]
        return G + ["buffer_load_dwordx4 v%d, s[%d:%d], s%d offen offset:%d sc1 lds ; need:%d" % (vK, SV, SV + 3, sAC, o * 1024, st) for o in range(4)]
    nt = lambda L: [x.split(";")[0].strip() for x in L]
    srd(a, PW, pBWO, 0x400000); srd(a, PW2, pWO, 0x80000)
    a("s_lshr_b32 s%d, s%d, 3\ns_lshl_b32 s%d, s%d, 20\ns_and_b32 s%d, s%d, 3\ns_lshl_b32 s%d, s%d, 8\ns_add_u32 s%d, s%d, s%d\ns_lshl_b32 s%d, s%d, 14\ns_add_u32 s%d, s%d, s%d" % (sT0, sH, sWB, sT0, sT1, sH, sT1, sT1, sWB, sWB, sT1, sT1, sWV, sWB, sWB, sT1))
    a("s_and_b32 s%d, s%d, 7\ns_mov_b32 s%d, s%d" % (sHW, sH, sHA, sHW))
    a("s_lshl_b32 s%d, s%d, 2\ns_add_u32 s%d, s%d, s%d\ns_mul_i32 s%d, s%d, %d\ns_lshl_b32 s%d, s%d, 16\ns_add_u32 s%d, s%d, s%d\ns_add_u32 s%d, s%d, 0x%x" % (sT1, sRBK, sT1, sT1, sWV, sAB, sT1, CROW, sT0, sT0, sAB, sAB, sT0, sAB, sAB, OFF_C))
    a("v_lshrrev_b32 v10, 4, v0\nv_and_b32 v11, 15, v0\nv_lshlrev_b32 v12, 2, v10\nv_xor_b32 v11, v11, v12\nv_lshlrev_b32 v11, 4, v11\nv_lshl_add_u32 v%d, v10, 10, v11" % vD[0])
    a("v_xor_b32 v11, 16, v%d\nv_add_u32 v%d, 6144, v%d\nv_add_u32 v%d, 3072, v11\nv_add_u32 v%d, 9216, v11" % (vD[0], vD[2], vD[0], vD[1], vD[3]))
    W16_ = [[x] for st in range(4) for x in nt(w_dma(st))]; W17_ = [[x] for st in range(4, 6) for x in nt(w_dma(st))]
    a("s_cmp_eq_u32 s%d, 7\ns_cbranch_scc1 %s" % (sI, lI7))
    FT = lambda c: 80 + 8 * (c % 8)
    for x in fin_head(1, sA0): a(x)
    for c in range(NE):
        for x in fin_part(1, c, FT(c), sA0): a(x)
    step(0, 2, 2, 0, 0, 0, last16=True, extra_vm=W16_)
    def final(first):
        stg = [(first + fin_head(0, sA1), 0, 22)]
        for u in range(3):
            stg.append((fin_part(0, 2 * u, 16 + 16 * u, sA1) + fin_part(0, 2 * u + 1, 24 + 16 * u, sA1), 16 * u + 22, min(16 * u + 38, 64)))
        step(1, 3, 0, 0, 0, 0, pre_out=False, staged=stg, extra_vm=W17_)
        a("s_nop 7")
        for x in fin_part(0, 6, 64, sA1) + fin_part(0, 7, 72, sA1): a(x)
    final([x for c in range(NE, 8) for x in fin_part(1, c, FT(c), sA0)])
    a("s_branch %s" % lEn)
    a(lI7 + ":")
    step(0, 1, 2, 0, 0, 0, last16=True, extra_vm=W16_)
    final(fin_head(1, sA0) + [x for c in range(8) for x in fin_part(1, c, FT(c), sA0)])
    a(lEn + ":")
    st_("s17")
    BS, BP, BP0 = 208, 212, 216
    SL = 144; TA = 176; PA = 196; MXl = (240, 241, 242, 243); vPM = 250; OL = 144
    L1 = ["v_add_u32 v246, 14, v%d" % vU, "v_mov_b32 v244, 0x5555", "v_mov_b32 v245, 0", "s_cmp_eq_u32 s%d, 0" % sRA, "s_cselect_b32 s%d, -1, 0" % sT2,
          "v_lshlrev_b64 v[244:245], v246, v[244:245]", "v_alignbit_b32 v244, v245, v244, 12", "v_not_b32 v244, v244"]
    L1 += ["v_bfe_i32 v%d, v244, %d, 1" % (BS + r, 16 + r) for r in range(4)] + ["v_bfe_i32 v%d, v244, %d, 1" % (BP + r, r) for r in range(4)]
    L1 += ["v_or_b32 v%d, s%d, v%d" % (BP0 + r, sT2, BP + r) for r in range(4)]
    L1 += ["v_and_b32 v%d, v%d, v%d" % (BS + r, vNEG, BS + r) for r in range(12)]
    L1 += ["v_and_b32 v244, 1, v0", "v_lshlrev_b32 v244, 4, v244", "v_mov_b32 v245, 0xffff", "v_lshlrev_b32 v%d, v244, v245" % vPM, "s_waitcnt vmcnt(40)"]
    for e in range(2):
        for tq in range(2):
            d = SL + (2 * e + tq) * 8
            L1.append("%s %s, %s, %s, %s" % (MFH, vr(d, 4), ar((AF[4], AF[2])[tq] + 2 * e, 2), ar(AF[tq] + 2 * e, 2), vr((BP0, BP)[tq], 4)))
            L1.append("%s %s, %s, %s, %s" % (MFH, vr(d + 4, 4), ar(AF[2 + tq] + 2 * e, 2), ar(AF[tq] + 2 * e, 2), vr(BS, 4)))
    L2 = ["v_max_f32 v%d, v%d, v%d" % (TA + j, SL + 2 * j, SL + 2 * j + 1) for j in range(16)]
    for n in range(4): L2 += maxtree(MXl[n], [TA + 4 * n + j for j in range(4)])
    L2 += xlane("v_max_f32", MXl, MXt)
    L2 += ["v_sub_f32 v%d, v%d, v%d" % (TA + j, TA + j, MXl[j // 4]) for j in range(16)]
    L2 += ["v_exp_f32 v%d, v%d" % (TA + j, TA + j) for j in range(16)]
    L2 += ["v_cvt_pk_bf16_f32 v%d, v%d, v%d" % (TA + j, TA + j, TA + j) for j in range(16)]
    L2 += ["v_and_b32 v%d, v%d, v%d" % (TA + j, vPM, TA + j) for j in range(16)]
    L2 += ["v_accvgpr_read_b32 v%d, a%d" % (246 + t, Q + 36 + t) for t in range(2)]
    for n in range(4): L2.append("%s %s, %s, %s, 0" % (MF16, vr(OL + 16 + 4 * n, 4), vr(ONES, 4), vr(TA + 4 * n, 4)))
    for e in range(2):
        L2.append("%s %s, %s, %s, 0" % (MFH, vr(OL + 4 * e, 4), ar(AF[7 + e] + 2, 2), vr(TA + 8 * e, 2)))
        L2.append("%s %s, %s, %s, 0" % (MF16, vr(OL + 8 + 4 * e, 4), ar(AF[5 + e], 4), vr(TA + 8 * e + 4, 4)))
    for e in range(2): L2.append("%s %s, %s, %s, %s" % (MFH, vr(OL + 4 * e, 4), ar(AF[5 + e], 2), vr(TA + 8 * e + 2, 2), vr(OL + 4 * e, 4)))
    L2 += ["s_mul_i32 s%d, s%d, %d" % (sA0, sRA, CROW), "s_lshl_b32 s%d, s%d, 11" % (sA1, sHP), "s_add_u32 s%d, s%d, s%d" % (sA0, sA0, sA1), "s_add_u32 s%d, s%d, 0x%x" % (sA0, sA0, OFF_C + 256 * 1024)]
    L2 += ["v_rcp_f32 v%d, v%d" % (MXl[n], OL + 16 + 4 * n) for n in range(4)]
    L2 += ["v_mul_f32 v%d, v%d, v%d" % (MXl[n], MXl[n], 246 + n % 2) for n in range(4)]
    for tq in range(2):
        for e in range(2): L2 += ["v_mul_f32 v%d, v%d, v%d" % (OL + 8 * tq + 4 * e + j, MXl[2 * e + tq], OL + 8 * tq + 4 * e + j) for j in range(4)]
        L2 += ["v_cvt_pk_bf16_f32 v%d, v%d, v%d" % (PA + 4 * tq + j, OL + 8 * tq + 2 * j, OL + 8 * tq + 2 * j + 1) for j in range(4)]
    LST = ["buffer_store_dwordx4 %s, v%d, s[%d:%d], s%d offen offset:%d sc1" % (vr(PA + 4 * tq, 4), vK, SV, SV + 3, sA0, tq * 1024) for tq in range(2)]
    for x in L1: a(x)
    SOUT = 4; sQ, sOUT = 26, 28
    vA, vW = (2, 3), (4, 5, 14, 15); ACC, FP = 16, 80
    srd(a, SOUT, 100, 2048 * 1024)
    a("s_lshr_b32 s%d, s%d, 3" % (sQ, sH))
    a("s_and_b32 s%d, s%d, 1\ns_lshl_b32 s%d, s%d, 1\ns_and_b32 s%d, s%d, 1\ns_add_u32 s%d, s%d, s%d\ns_lshl_b32 s%d, s%d, 12" % (sT0, sWV, sT0, sT0, sT1, sQ, sT2, sT0, sT1, sT0, sT2))
    a("v_add_u32 v%d, s%d, v%d\nv_xor_b32 v%d, 4096, v%d" % (vA[0], sT0, vK, vA[1], vA[0]))
    a("v_lshrrev_b32 v9, 2, v0\nv_and_b32 v8, 3, v9\nv_bfe_u32 v7, v0, 4, 1\nv_and_b32 v10, 2, v0\nv_or_b32 v7, v7, v10\nv_and_b32 v10, 1, v0\nv_lshlrev_b32 v10, 3, v10")
    a("s_and_b32 s%d, s%d, 2\ns_lshr_b32 s%d, s%d, 1\ns_add_u32 s%d, s%d, s%d\nv_xor_b32 v8, s%d, v8" % (sT0, sWV, sT1, sQ, sT0, sT0, sT1, sT0))
    a("v_lshl_or_b32 v8, v8, 2, v7\nv_lshlrev_b32 v8, 4, v8\nv_lshl_add_u32 v8, v9, 8, v8\nv_add_u32 v%d, v8, v10" % vW[0])
    a("v_xor_b32 v%d, 16, v%d\nv_xor_b32 v%d, 64, v%d\nv_xor_b32 v%d, 80, v%d" % (vW[1], vW[0], vW[2], vW[0], vW[3], vW[0]))
    a("s_and_b32 s%d, s%d, 3\ns_lshl_b32 s%d, s%d, 2\ns_add_u32 s%d, s%d, s%d\ns_lshl_b32 s%d, s%d, 6" % (sT1, sH, sT1, sT1, sT1, sT1, sT0, sOUT, sT1))
    a("s_lshl_b32 s%d, s%d, 2\ns_add_u32 s%d, s%d, s%d\ns_lshl_b32 s%d, s%d, 15\ns_add_u32 s%d, s%d, s%d" % (sT0, sRBK, sT0, sT0, sT2, sT0, sT0, sOUT, sOUT, sT0))
    a("v_and_b32 v6, 15, v0\nv_lshlrev_b32 v6, 10, v6\nv_lshrrev_b32 v7, 4, v0\nv_lshl_add_u32 v6, v7, 4, v6")
    a("v_min_u32 v9, 1, v0\nv_lshlrev_b32 v9, 29, v9\nv_mov_b32 v10, 1\nv_and_b32 v8, 7, v0\nv_lshlrev_b32 v8, 2, v8\nv_and_b32 v11, 12, v8")
    def signal_wait(sown, vo, pre):
        lp, lo_ = a.label("xpoll"), a.label("xok")
        a("s_waitcnt vmcnt(0)\ns_barrier\ns_cmp_lg_u32 s%d, 0\ns_cbranch_scc1 %s_s" % (sWV, lo_))
        a("buffer_store_dword v10, v9, s[%d:%d], s%d offen sc1\n%s_s:" % (SO, SO + 3, sown, lo_))
        for x in pre: a(x)
        a("s_cmp_lg_u32 s%d, 0\ns_cbranch_scc1 %s" % (sWV, lo_))
        a("s_and_b32 s%d, s%d, 0xffffff80\ns_mov_b32 s%d, 0x80000\n%s:" % (sT0, sown, sT1, lp))
        a("buffer_load_dword v12, v%d, s[%d:%d], s%d offen sc1\ns_waitcnt vmcnt(0)\nv_cmp_gt_u32 vcc, 1, v12\ns_cbranch_vccz %s" % (vo, SO, SO + 3, sT0, lo_))
        a("s_sleep %d\ns_sub_u32 s%d, s%d, 1\ns_cmp_lg_u32 s%d, 0\ns_cbranch_scc1 %s\n%s:" % (SLP, sT1, sT1, sT1, lp, lo_))
        a("s_waitcnt vmcnt(0)\ns_barrier")
    a("s_cmp_eq_u32 s%d, 0\ns_cselect_b32 s%d, 2, 0\ns_cselect_b32 s%d, 0, 0x20000000\nv_add_u32 v192, s%d, v8\nv_or_b32 v193, s%d, v9\nv_mov_b32 v194, 2\ns_and_b32 s%d, s%d, 0xffffff80" % (sWV, sG1, sT0, sT0, sT0, sG2, sFG))
    for x in L2[:LSPL]: a(x)
    signal_wait(sFG, 8, nt(a_dma(0) + a_dma(1)) + L2[LSPL:])
    st_("sync")
    for x in nt(a_dma(2) + a_dma(3)) + LST: a(x)
    curA, curW = [0], [0]
    def preads(u):
        st, us = u // 2, u % 2
        L = []
        def win(base, cur, regs_):
            w_ = base // 65536
            if w_ != cur[0]:
                d = (w_ - cur[0]) * 65536
                for r in regs_: L.append((("v_add_u32 v%d, 0x%x, v%d" % (r, d, r)) if d > 0 else ("v_subrev_u32 v%d, 0x%x, v%d" % (r, -d, r)), None))
                cur[0] = w_
            return base % 65536
        oa = win(ARING[st % 4], curA, vA); ow = win(WRING[st % 6], curW, vW)
        F = FP + 32 * (u % 2)
        tr = lambda n: [("ds_read_b64_tr_b16 %s, v%d offset:%d" % (vr(F + 16 + 4 * n + 2 * r_, 2), vW[n], ow + us * 8192 + r_ * 4096), 4 * n) for r_ in range(2)]
        ac = [("ds_read_b128 %s, v%d offset:%d" % (vr(F + 4 * n, 4), vA[n // 2], oa + us * 2048 + (n % 2) * 1024), n) for n in range(4)]
        return L + tr(0) + ac + tr(1) + tr(2) + tr(3)
    Mp = []
    for u in range(36):
        F = FP + 32 * (u % 2)
        for wn in range(4):
            for n in range(4):
                acc = vr(ACC + ((n // 2) + 2 * (wn // 2)) * 16 + (n % 2) * 8 + (wn % 2) * 4, 4)
                Mp.append("%s %s, %s, %s, %s" % (MF16, acc, vr(F + 16 + 4 * wn, 4), vr(F + 4 * n, 4), "0" if u == 0 else acc))
    SP_ = Sched(Mp); SP_.backlog = 99
    R0 = preads(0)
    for x, _ in R0: a(x)
    for u in range(1, 36):
        t0 = 16 * (u - 1) + (PB if u % 2 == 0 else 0)
        SP_.rq += [(x, t0, t0, None if us_ is None else 16 * u + us_) for x, us_ in preads(u)]
    for st in range(1, 18): SP_.bars[32 * st - 16 + PB] = st
    SP_.waitpts = [8 * k for k in range(72)]
    SP_.place_reads()
    for g_ in range(SP_.n):
        for u_ in SP_.use[g_].values():
            if u_ is not None: assert g_ < 32 * (u_ // 32 + 1) - 16 + PB, (g_, u_)
    for st in range(1, 18):
        b = 32 * st - 16 + PB
        G = []
        if st == 5: G.append("buffer_store_dword v194, v193, s[%d:%d], s%d offen sc1" % (SO, SO + 3, sFG))
        if st == 10: G.append(poll_load(4) + " ; need:13")
        if st + 3 < 18: G += a_dma(st + 3)
        if st + 5 < 18: G += w_dma(st + 5)
        SP_.place(G, b, b + 30, slack=30)
    nb_ = [0]
    def pbar(w):
        nb_[0] += 1
        a(w)
        if nb_[0] == 13: poll_check(4)
        a("s_barrier")
    SP_.emit(a, pbar, [u_ for _, u_ in R0], [2] * 4 + [3] * 4 + [5] * 2)
    if VERB: print("P over", SP_.over)
    st_("pm")
    a("s_nop 3")
    for j in range(1, 4):
        a("s_xor_b32 s%d, s%d, %d\ns_mul_i32 s%d, s%d, 49152\ns_add_u32 s%d, s%d, s%d\ns_add_u32 s%d, s%d, %d" % (sT0, sQ, j, sT0, sT0, sT0, sT0, sXO, sT0, sT0, (j - 1) * 16384))
        for r in range(8): a("v_cvt_pk_bf16_f32 v%d, v%d, v%d" % (FP + 8 * j + r, ACC + j * 16 + 2 * r, ACC + j * 16 + 2 * r + 1))
        for c in range(2): a("buffer_store_dwordx4 %s, v%d, s[%d:%d], s%d offen offset:%d sc1" % (vr(FP + 8 * j + 4 * c, 4), vK, SO, SO + 3, sT0, c * 1024))
    signal_wait(sFX, 11, [])
    st_("xs")
    a("s_mov_b32 s%d, s%d" % (sT0, sXR))
    for j in range(1, 4):
        for c in range(2): a("buffer_load_dwordx4 %s, v%d, s[%d:%d], s%d offen offset:%d sc1" % (vr(ACC + j * 16 + 4 * c, 4), vK, SO, SO + 3, sT0, c * 1024))
        if j < 3: a("s_add_u32 s%d, s%d, 16384" % (sT0, sT0))
    for j in range(1, 4):
        a("s_waitcnt vmcnt(%d)" % (2 * (3 - j)))
        for r in range(8):
            t = ACC + j * 16 + r
            a("v_lshlrev_b32 v12, 16, v%d\nv_and_b32 v13, 0xffff0000, v%d\nv_add_f32 v%d, v%d, v12\nv_add_f32 v%d, v%d, v13" % (t, t, ACC + 2 * r, ACC + 2 * r, ACC + 2 * r + 1, ACC + 2 * r + 1))
    for r in range(8): a("v_cvt_pk_bf16_f32 v%d, v%d, v%d" % (FP + r, ACC + 2 * r, ACC + 2 * r + 1))
    a("s_nop 1")
    for pr in range(2): a("v_permlane16_swap_b32 v%d, v%d\nv_permlane16_swap_b32 v%d, v%d" % (FP + 4 * pr, FP + 4 * pr + 2, FP + 4 * pr + 1, FP + 4 * pr + 3))
    a("buffer_store_dwordx4 %s, v6, s[%d:%d], s%d offen\ns_add_u32 s%d, s%d, 16384" % (vr(FP, 4), SOUT, SOUT + 3, sOUT, sOUT, sOUT))
    a("buffer_store_dwordx4 %s, v6, s[%d:%d], s%d offen" % (vr(FP + 4, 4), SOUT, SOUT + 3, sOUT))
    T.dump(SO, sWV, 4)
    a(done + ":\ns_endpgm")
    a(lRare + ":")
    for (ls, lb, kind) in spins:
        lp = a.label("sp")
        a(ls + ":\ns_mov_b32 s%d, 0x40000\n%s:" % (sT2, lp))
        a("s_sleep 8\n" + poll_load(kind) + "\ns_waitcnt vmcnt(0)\n%s\ns_cbranch_vccz %s" % (poll_cmp(kind), lb))
        a("s_sub_u32 s%d, s%d, 1\ns_cmp_lg_u32 s%d, 0\ns_cbranch_scc1 %s\ns_branch %s" % (sT2, sT2, sT2, lp, lb))
    for (ls, lb) in rels:
        a("%s:\nbuffer_wbl2 sc1\ns_waitcnt vmcnt(0)\ns_branch %s" % (ls, lb))
    sRET = 44
    for (p, sm, qk), (lr, users) in rare.items():
        for rid, (lj, lb) in enumerate(users): a("%s:\ns_mov_b32 s%d, %d\ns_branch %s" % (lj, sRET, rid, lr))
        a(lr + ":\ns_nop 7\ns_nop 7")
        for qb in range(4 // sm):
            cur = qregs(S[p], sm, qb); d, f = vX, vX + 2
            for x in maxtree(d, cur) + xlane("v_max_f32", [d], [d + 1]): a(x)
            a("v_max_f32 v%d, 0, v%d\nv_exp_f32 v%d, -v%d" % (d, d, f, d))
            nx = qregs(S[1 - p], qk, qb) if qb < 4 // qk else []
            for r in cur + [NM + 4 * qb + j for j in range(4)] + nx: a("v_sub_f32 v%d, v%d, v%d" % (r, r, d))
            a("v_mul_f32 v%d, v%d, v%d" % (vL[qb], vL[qb], f))
            for j in range(0, 32, 4):
                for q in range(4): a("v_accvgpr_read_b32 v%d, a%d" % (TM + q, O + qb * 32 + j + q))
                for q in range(4): a("v_mul_f32 v%d, v%d, v%d" % (TM + q, TM + q, f))
                for q in range(4): a("v_accvgpr_write_b32 a%d, v%d" % (O + qb * 32 + j + q, TM + q))
        for q in range(8):
            for n in range(8 * q, 8 * q + 8): a(ex(p, n))
            for j in range(4 * q, 4 * q + 4): a(cv(p, j))
        a("s_nop 1")
        for q in range(8): a(summ(p, sm, q))
        a("s_nop 7")
        for rid, (lj, lb) in enumerate(users):
            if rid < len(users) - 1: a("s_cmp_eq_u32 s%d, %d\ns_cbranch_scc1 %s" % (sRET, rid, lb))
            else: a("s_branch %s" % lb)
    a.add_kernel(name, 512, 102, 256)
    a.launch(name, 256, 256, 163840)
```

```python
from gen_common import *
from sched import Sched, isvm
from pack import Gaps, cost as gcost
import re as _re
MF16 = "v_mfma_f32_16x16x32_bf16"
MFH = "v_mfma_f32_16x16x16_bf16"
pX, pWQKV, pWO0, pC, pWQ, pWUK, pWUV, pBWO, pGATE, pDBG, pWS = 36, 38, 40, 44, 46, 48, 50, 52, 54, 58, 60
pWO = 58
NEG = "0xff800000"
THRESH = fbits(2.0 ** 48)
WSL = (98304, 131072)
LDS_G = WSL[0] + 24576
def aslot(g): return ((g + 2) % 3) * 32768
def flat(G): return [x for g in G for x in (g if isinstance(g, list) else [g])]
def soft(G):
    out = []
    for g in G:
        if any(x.startswith("s_cselect") for x in g):
            k = [j for j, x in enumerate(g) if x.startswith("s_cmp") or x.startswith("s_bitcmp")][0]
            out += g[:k] + [g[k:]]
        else: out += g
    return out

def gen2(a, name="p1_kernel", ts=False, PF=1, PD=8, WP=2, TS2=0, TS3=0, DFR=12, LSPL=110, SLP=4, QSL=(4, 6, 5), XSL=3, PDW=4, GPUB=11, VERB=0, NE=8, ST0=4, EXT=0, ND=10, OST="", PKV=1, XQ=0, XP=0, T15=1, WSP=(0, 4, 2), CR2=0, HOLD=None, CM=0, PB=2,
         STAMPS=("start", "q", "attn", "mid", "s17")):
    XL2 = 0; PRE0 = 0; endlabel = None; SENT = 0
    a.begin_kernel(name)
    T = TS(a, ts, 0, base=72)
    def st_(nm):
        if nm in STAMPS: T.stamp(STAMPS.index(nm))
    done = a.label("fdone")
    lAttn, lRare = a.label("attn"), a.label("rarecode")
    sWV = 3
    SA, SW, SX, SO, SD = 4, 8, 12, 16, 40
    sH, sI, sT0, sT1, sT2 = 20, 21, 22, 23, 24
    sAS, sAS2, sWS, sXS, sAM, sWM, sXM, sCNT, sOK, sDS, sSC = 25, 26, 27, 28, 29, 30, 31, 32, 33, 34, 35
    sQL, sQS, sU, sOA, sAD, sWD, sOJ, sVD, sFA, sGR = 92, 93, 94, 95, 96, 97, 56, 57, 63, 99
    sKO, sVO, sW4, sW8, sTH, sT = 48, 49, 50, 51, 54, 32
    vL16 = 1
    vAO, vWO, vXO = (2, 3, 4, 5), (6, 7, 8, 9), (10, 11)
    vAR, vWR, vXR = (12, 13), tuple(range(14, 22)), (22, 23, 24)
    vGR, vGA2, GC = 25, (26, 27), 92
    QS = (28, 44); WR, NWR = 60, 8; TT, PK = 96, 104
    KS = (128, 160)
    vFO, vONE, vPFD, vTS, vW12, vPL, vPLO = 120, 121, 122, 123, 124, 125, 126
    sWS2, sOK2, sHL = 62, 98, 55
    QA = 128
    t2 = [0]
    def bar(waitstr):
        if TS2:
            n = t2[0]; t2[0] += 1
            if n > 0: a("v_writelane_b32 v123, s72, %d\nv_writelane_b32 v123, s74, %d" % (2 * n - 2, 2 * n - 1))
            a("s_memtime s[72:73]")
        a(waitstr + "\ns_barrier")
        if TS2: a("s_memtime s[74:75]")
    a("s_cmp_ge_u32 s2, 256\ns_cbranch_scc1 %s" % done)
    st_("start")
    a("s_load_dwordx16 s[36:51], s[0:1], 0\ns_load_dwordx8 s[52:59], s[0:1], 64\ns_load_dwordx2 s[60:61], s[0:1], 96")
    a("v_lshrrev_b32 v30, 6, v0\nv_and_b32 v0, 63, v0\nv_readfirstlane_b32 s%d, v30" % sWV)
    a("s_and_b32 s%d, s2, 7\ns_lshl_b32 s%d, s%d, 2\ns_lshr_b32 s%d, s2, 3\ns_and_b32 s%d, s%d, 3\ns_add_u32 s%d, s%d, s%d" % (sH, sH, sH, sT0, sT0, sT0, sH, sH, sT0))
    a("s_lshr_b32 s%d, s2, 5" % sI)
    a("v_lshlrev_b32 v%d, 4, v0" % vL16)
    a("v_lshrrev_b32 v30, 3, v0\nv_lshrrev_b32 v31, 4, v0\nv_and_b32 v32, 7, v0")
    a("v_xor_b32 v33, v31, v32\nv_lshlrev_b32 v33, 4, v33\nv_lshl_add_u32 v%d, v30, 10, v33" % vAO[0])
    a("v_add_u32 v%d, %d, v%d\nv_xor_b32 v33, 64, v%d\nv_add_u32 v%d, %d, v33\nv_add_u32 v%d, %d, v33" % (vAO[2], 2 * 7168, vAO[0], vAO[0], vAO[1], 7168, vAO[3], 3 * 7168))
    a("v_and_b32 v33, 15, v0\nv_lshlrev_b32 v34, 2, v31\nv_xor_b32 v33, v33, v34\nv_lshlrev_b32 v33, 4, v33\nv_lshl_add_u32 v%d, v31, 13, v33" % vWO[0])
    a("v_add_u32 v%d, %d, v%d\nv_xor_b32 v33, 32, v%d\nv_add_u32 v%d, %d, v33\nv_add_u32 v%d, %d, v33" % (vWO[1], 31744, vWO[0], vWO[0], vWO[2], 2 * 31744, vWO[3], 3 * 31744))
    a("s_sub_u32 s%d, 15, s%d\ns_bitcmp1_b32 s%d, 0\ns_cselect_b32 s%d, s%d, s%d\ns_lshl_b32 s%d, s%d, 1\ns_lshr_b32 s%d, s%d, 1\ns_add_u32 s%d, s%d, s%d" % (sT0, sI, sWV, sT0, sT0, sI, sT0, sT0, sT1, sWV, sT0, sT0, sT1))
    a("s_lshl_b32 s%d, s%d, 16\ns_add_u32 s%d, s%d, 32768" % (sAS, sT0, sAS2, sAS))
    a("s_lshl_b32 s%d, s%d, 13\ns_mov_b32 s%d, s%d" % (sAM, sWV, sWM, sAM))
    a("s_and_b32 s%d, s%d, 1\ns_lshl_b32 s%d, s%d, 18\ns_lshl_b32 s%d, s%d, 8\ns_add_u32 s%d, s%d, s%d" % (sT0, sWV, sT0, sT0, sWS, sH, sWS, sWS, sT0))
    a("s_and_b32 s%d, s2, 31\ns_add_u32 s%d, s%d, 0x20000" % (sU, sWS2, sWS))
    a("v_and_b32 v33, 15, v0\nv_lshrrev_b32 v34, 1, v33\nv_xor_b32 v34, v34, v31\nv_lshlrev_b32 v34, 4, v34\nv_lshl_add_u32 v40, v33, 7, v34")
    a("s_and_b32 s%d, s%d, 1\ns_lshl_b32 s%d, s%d, 14\ns_add_u32 s%d, s%d, %d" % (sT0, sWV, sT0, sT0, sT0, sT0, aslot(0)))
    a("v_add_u32 v%d, s%d, v40\nv_xor_b32 v%d, 64, v%d" % (vAR[0], sT0, vAR[1], vAR[0]))
    a("v_lshrrev_b32 v35, 2, v0\nv_and_b32 v35, 3, v35\nv_lshl_add_u32 v36, v31, 3, v35")
    a("v_bfe_u32 v37, v0, 1, 1\nv_and_b32 v34, 1, v31\nv_lshl_add_u32 v37, v34, 1, v37\nv_and_b32 v38, 1, v0\nv_lshlrev_b32 v38, 3, v38")
    a("v_lshlrev_b32 v39, 2, v35\nv_xor_b32 v39, v39, v37\nv_lshlrev_b32 v39, 4, v39\nv_lshl_add_u32 v39, v36, 8, v39")
    a("s_lshr_b32 s%d, s%d, 1\ns_lshl_b32 s%d, s%d, 14\ns_add_u32 s%d, s%d, %d\nv_add3_u32 v39, v39, v38, s%d" % (sWD, sWV, sWD, sWD, sT0, sWD, WSL[0], sT0))
    for k in range(8): a("v_xor_b32 v%d, %d, v39" % (vWR[k], 32 * k))
    a("s_waitcnt lgkmcnt(0)")
    a("s_mov_b32 s100, s56\ns_mov_b32 s101, s57")
    srd(a, SA, pC, 0x200000)
    a("s_cmp_lt_u32 s%d, 2\ns_cselect_b32 s%d, s%d, s%d\ns_cselect_b32 s%d, s%d, s%d\ns_mov_b32 s%d, 0x400000\ns_mov_b32 s%d, 0x20000" % (sWV, SW, pWUK, pWUV, SW + 1, pWUK + 1, pWUV + 1, SW + 2, SW + 3))
    def dgrp(m0s, m0i, vo, srd_, so, stp, nd):
        G = ["s_add_u32 m0, s%d, %d" % (m0s, m0i)]
        G += ["buffer_load_dwordx4 v%d, s[%d:%d], s%d offen offset:%d lds ; need:%d" % (v, srd_, srd_ + 3, so, n * 1024, nd) for n, v in enumerate(vo)]
        G.append("s_add_u32 s%d, s%d, %d" % (so, so, stp))
        return G
    def fixm0(G):
        out = []
        for k, x in enumerate(G):
            out.append(x)
            if x.startswith("s_add_u32 m0"):
                if len(out) > 1 and out[-2].startswith("s_add_u32 s"): out[-1], out[-2] = out[-2], out[-1]
                else: out.append("s_nop 0")
        return out
    def dma_act(g): return fixm0(dgrp(sAM, aslot(g), vAO, SA, sAS, 128, g) + dgrp(sAM, aslot(g) + 4096, vAO, SA, sAS2, 128, g))
    def dma_w(g):
        G = dgrp(sWM, WSL[g % 2], vWO, SW, sWS, 0x80000, g)
        if g < 8: G += dgrp(sWM, WSL[g % 2] + 4096, vWO, SW, sWS2, 0x80000, g)
        else: G += dgrp(sXM, WSL[g % 2] + 16384, vXO, SX, sXS, 64 * 3072, g)
        return fixm0(G)
    st_("d0")
    D0 = [dgrp(sWM, WSL[0], vWO, SW, sWS, 0x80000, 0), dgrp(sAM, aslot(0), vAO, SA, sAS, 128, 0), dgrp(sWM, WSL[0] + 4096, vWO, SW, sWS2, 0x80000, 0), dgrp(sAM, aslot(0) + 4096, vAO, SA, sAS2, 128, 0)]
    for x in fixm0(flat(D0[:ST0])): a(x.split(";")[0])
    st_("d1")
    NSL = max(XL2 + 4 if XL2 else 0, max(QSL) + 1, XSL + 1)
    def preg(k): return 192 + 2 * k
    def pf(k): return "global_load_dword v122, %s, off" % vr(preg(k), 2)
    def pfa(k, base, vo, so, imm=0):
        r = preg(k)
        a("s_add_u32 s%d, s%d, %d\nv_mov_b32 v%d, s%d\nv_add_u32 v%d, s%d, v%d" % (sT2, so, imm, r + 1, base + 1, r, sT2, vo))
        a("v_add_co_u32 v%d, vcc, s%d, v%d\ns_nop 1\nv_addc_co_u32 v%d, vcc, 0, v%d, vcc" % (r, base, r, r + 1, r + 1))
    def pfnone(k): a("v_mov_b32 v%d, s%d\nv_mov_b32 v%d, s%d" % (preg(k), pGATE, preg(k) + 1, pGATE + 1))
    def pf0():
        if ST0 == 4: a(pf(0))
    if PF:
        l1, l3, le = a.label("pf1"), a.label("pf3"), a.label("pfe")
        a("s_cmp_eq_u32 s%d, 1\ns_cbranch_scc1 %s\ns_cmp_eq_u32 s%d, 3\ns_cbranch_scc1 %s" % (sWV, l1, sWV, l3))
        used = {0, XSL}
        if CM:
            a("s_lshr_b32 s%d, s2, 3\ns_lshl_b32 s%d, s%d, 16\ns_lshl_b32 s%d, s%d, 6\ns_add_u32 s%d, s%d, s%d\nv_lshlrev_b32 v26, 10, v0" % (sT0, sT0, sT0, sT1, sWV, sT1, sT0, sT1))
            pfa(0, pC, 26, sT1, 128); pf0(); used.add(1)
        a("v_and_b32 v26, 31, v0\nv_lshlrev_b32 v26, 7, v26\ns_lshl_b32 s%d, s2, 13\ns_lshl_b32 s%d, s%d, 11\ns_add_u32 s%d, s%d, s%d" % (sT0, sT1, sWV, sT0, sT0, sT1))
        pfa(CM, pC, 26, sT0, 0)
        if not CM: pf0()
        pfa(XSL, pX, 26, sT0, 0)
        for k in range(NSL):
            if k not in used: pfnone(k)
        a("s_branch %s\n%s:" % (le, l1))
        a("v_lshlrev_b32 v26, 13, v30\nv_lshl_add_u32 v26, v32, 7, v26")
        a("s_bitcmp1_b32 s2, 3\ns_cselect_b32 s98, s%d, s%d\ns_cselect_b32 s99, s%d, s%d" % (pWUV, pWUK, pWUV + 1, pWUK + 1))
        a("s_and_b32 s%d, s2, 7\ns_lshl_b32 s%d, s%d, 10\ns_lshr_b32 s%d, s2, 4\ns_and_b32 s%d, s%d, 7\ns_lshl_b32 s%d, s%d, 16\ns_lshl_b32 s%d, s%d, 16" % (sT1, sT1, sT1, sT0, sCNT, sT0, sT0, sT0, sCNT, sCNT))
        a("s_add_u32 s%d, s%d, s%d\ns_add_u32 s%d, s%d, s%d" % (sT0, sT0, sT1, sCNT, sCNT, sT1))
        if PRE0:
            pfnone(0); pf0(); pfa(1, 98, 26, sT0, 4 * 0x80000); pfa(2, 98, 26, sT0, 6 * 0x80000); pfnone(3)
        else:
            pfa(0, 98, 26, sT0, 1 * 0x80000); pf0()
            pfa(1, 98, 26, sT0, 3 * 0x80000); pfa(2, 98, 26, sT0, 5 * 0x80000); pfa(3, 98, 26, sCNT, 7 * 0x80000)
        for k in range(4, NSL): pfnone(k)
        a("s_branch %s\n%s:" % (le, l3))
        lpc = a.label("pc")
        a("s_getpc_b64 s[98:99]\n%s:" % lpc)
        a("s_lshr_b32 s%d, s2, 3\nv_lshlrev_b32 v26, 5, v0\nv_add_u32 v26, s%d, v26\nv_lshlrev_b32 v26, 7, v26\ns_mov_b32 s%d, 0" % (sT0, sT0, sT0))
        a("v_min_u32 v27, %s-%s, v26" % (lAttn, lpc))
        pfa(0, 98, 27, sT0, 0); pf0()
        a("v_lshlrev_b32 v26, 13, v30\nv_lshl_add_u32 v26, v32, 7, v26")
        a("s_lshr_b32 s%d, s2, 3\ns_lshl_b32 s%d, s%d, 16\ns_and_b32 s%d, s2, 7\ns_lshl_b32 s%d, s%d, 10\ns_add_u32 s%d, s%d, s%d" % (sT0, sT0, sT0, sT1, sT1, sT1, sT0, sT0, sT1))
        pfa(QSL[0], pWQ, 26, sT0, 0); pfa(QSL[1], pWQ, 26, sT0, 4 * 0x80000)
        a("s_min_u32 s%d, s%d, 23\ns_lshl_b32 s%d, s%d, 7\ns_mul_i32 s%d, s%d, %d\ns_add_u32 s%d, s%d, s%d\nv_mul_u32_u24 v26, 3072, v0" % (sT0, sU, sT0, sT0, sT1, sI, 64 * 3072, sT0, sT0, sT1))
        pfa(QSL[2], pWQKV, 26, sT0, 0)
        for k in range(1, NSL):
            if k not in QSL: pfnone(k)
        a(le + ":")
    def pfp(p): return [pf(p + 2)] if (PF and p + 2 < NSL) else []
    lpc2 = a.label("pc")
    a("s_getpc_b64 s[0:1]\n%s:" % lpc2)
    srd(a, SO, pWS, WS_SIZE); srd(a, SX, pGATE, 1024)
    a("s_mov_b32 s98, s%d\ns_mov_b32 s99, s%d" % (pWO0, pWO0 + 1))
    srd(a, SD, pDBG, 256)
    a("s_mov_b32 s%d, s98\ns_mov_b32 s%d, s99" % (pWO, pWO + 1))
    DF = []
    def d(t): DF.extend(t.split("\n"))
    d("s_lshl_b32 s%d, s%d, 6\nv_add_u32 v%d, s%d, v0\nv_lshlrev_b32 v%d, 12, v%d\nv_min_u32 v%d, 1, v%d\nv_lshlrev_b32 v%d, 29, v%d" % (sT0, sWV, vFO, sT0, vFO, vFO, vONE, vFO, vONE, vONE))
    d("s_getreg_b32 s%d, hwreg(HW_REG_XCC_ID, 0, 4)\ns_mul_i32 s%d, s%d, s%d\ns_lshl_b32 s%d, s%d, 8\ns_add_u32 s%d, s%d, s%d\ns_lshl_b32 s%d, s%d, 8\ns_add_u32 s%d, s%d, 1" % (sT0, sT1, sT0, sT0, sT1, sT1, sT1, sT1, sT0, sT1, sT1, sFA, sT1))
    d("v_mov_b32 v125, s%d\ns_lshl_b32 s%d, s%d, 3\ns_and_b32 s%d, s2, 7\ns_lshl_b32 s%d, s%d, 2\ns_lshl_b32 s%d, s%d, 2" % (sFA, sFA, sFA, sGR, sGR, sGR, sCNT, sH))
    d("v_and_b32 v126, 31, v0\ns_lshl_b32 s%d, s%d, 12\nv_lshl_add_u32 v126, v126, 2, s%d" % (sT0, sWV, sT0))
    d("s_min_u32 s%d, s%d, 1\ns_lshl_b32 s%d, s%d, 29\nv_and_b32 v124, 7, v0\nv_lshl_add_u32 v124, v124, 2, s%d" % (sT0, sWV, sT0, sT0, sT0))
    d("s_lshl_b32 s%d, s%d, 7\ns_add_u32 s%d, s%d, 0x%x\ns_lshl_b32 s%d, s%d, 2\ns_add_u32 s%d, s%d, s%d" % (sHL, sH, sHL, sHL, OFF_FL + 128 * 128, sU, sI, sU, sU, sHL))
    d("s_lshr_b32 s%d, s2, 3\ns_lshl_b32 s%d, s%d, 2\ns_add_u32 s%d, s%d, s%d\nv_and_b32 v127, 15, v0\nv_lshlrev_b32 v127, 7, v127\nv_add_lshl_u32 v127, v127, s%d, 7" % (sT0, sT0, sT0, sT0, sT0, sWV, sT0))
    d("v_min_u32 v127, %s-%s, v127" % (lRare, lpc2))
    d("v_lshrrev_b32 v39, 1, v35\nv_lshlrev_b32 v39, 2, v39\nv_xor_b32 v39, v39, v37\nv_lshlrev_b32 v39, 4, v39\nv_lshl_add_u32 v39, v36, 7, v39\nv_add_u32 v39, v39, v38\nv_add_u32 v39, %d, v39" % (WSL[0] + 16384))
    for k in range(3): d("v_xor_b32 v%d, %d, v39" % (vXR[k], 32 * k))
    d("s_and_b32 s%d, s%d, 3\ns_and_b32 s%d, s2, 7\ns_lshl_b32 s%d, s%d, 7" % (sT0, sH, sT1, sT1, sT1))
    d("s_lshl_b32 s%d, s%d, 5\ns_add_u32 s%d, s%d, s%d\ns_add_u32 s%d, s%d, %d" % (sT2, sT0, sT2, sT2, sT1, sT2, sT2, 2048 - 64))
    d("s_lshr_b32 s%d, s%d, 1\ns_lshl_b32 s%d, s%d, 10\ns_add_u32 s%d, s%d, s%d\ns_and_b32 s%d, s%d, 1\ns_lshl_b32 s%d, s%d, 6\ns_add_u32 s%d, s%d, s%d" % (sDS, sT0, sDS, sDS, sT1, sT1, sDS, sDS, sT0, sDS, sDS, sT1, sT1, sDS))
    d("v_and_b32 v33, 1, v31\nv_lshlrev_b32 v33, 2, v33\nv_xor_b32 v33, v33, v32\nv_mul_u32_u24 v34, 3072, v30\nv_mov_b32 v36, s%d\nv_mov_b32 v37, s%d\nv_mov_b32 v38, 0x1000000" % (sT1, sT2))
    for n in range(2):
        if n: d("v_xor_b32 v33, 2, v33\nv_add_u32 v34, %d, v34" % (24576 - 1024))
        d("v_cmp_gt_u32 vcc, 4, v33\nv_cmp_gt_u32 s[66:67], 6, v33\nv_lshl_add_u32 v35, v33, 4, v34\nv_cndmask_b32 v39, v37, v36, vcc\nv_cndmask_b32 v39, v38, v39, s[66:67]\nv_add_u32 v%d, v35, v39" % vXO[n])
    d("s_lshl_b32 s%d, s%d, 11\ns_lshl_b32 s%d, s%d, 13\ns_add_u32 s%d, s%d, s%d\ns_add_u32 s%d, s%d, %d" % (sT0, sT0, sT1, sWV, sT0, sT0, sT1, sT0, sT0, aslot(8)))
    d("v_add_u32 v%d, s%d, v40\nv_xor_b32 v%d, 64, v%d\nv_lshlrev_b32 v%d, 4, v31\nv_add_u32 v%d, %d, v%d" % (vGA2[0], sT0, vGA2[1], vGA2[0], vGR, vGR, LDS_G, vGR))
    d("s_lshl_b32 s%d, s%d, 2\ns_add_u32 s%d, s%d, s%d\ns_sub_u32 s%d, 60, s%d\ns_add_u32 s%d, s%d, s%d" % (sT1, sI, sQS, sT1, sWV, sQL, sT1, sQL, sQL, sWV))
    d("s_lshr_b32 s%d, s%d, 1\ns_lshl_b32 s%d, s%d, 5\ns_add_u32 s%d, s%d, s%d\ns_add_u32 s%d, s%d, 44\ns_lshl_b32 s%d, s%d, 19" % (sT0, sWV, sT0, sT0, sT0, sT0, sH, sT0, sT0, sOK, sT0))
    d("s_and_b32 s%d, s%d, 1\ns_lshl_b32 s%d, s%d, 1\ns_add_u32 s%d, s%d, s%d\ns_lshl_b32 s%d, s%d, 14\ns_add_u32 s%d, s%d, s%d" % (sT0, sWV, sT1, sI, sT0, sT0, sT1, sT0, sT0, sOK, sOK, sT0))
    d("s_lshl_b32 s%d, s%d, 16\ns_sub_u32 s%d, %d, s%d\ns_add_u32 s%d, s%d, 8192" % (sT0, sI, sOJ, 60 * 8192 - 4096, sT0, sOK2, sOK))
    d("s_lshl_b32 s%d, s%d, 13\ns_and_b32 s%d, s%d, 1\ns_lshl_b32 s%d, s%d, 14\ns_sub_u32 s%d, s%d, s%d\ns_add_u32 s%d, s%d, %d" % (sT0, sWV, sT1, sWV, sT1, sT1, sAD, sT0, sT1, sAD, sAD, aslot(8) - aslot(7)))
    PLA = "buffer_atomic_add v125, v%d, s[%d:%d], s%d offen sc1" % (vFO, SD, SD + 3, sCNT)

    def ub(j): return ((j + 24) % 32 if j < 8 else j + 8 if j < 16 else j - 16) * 8
    AA = 192
    def wofs(g): return (g % 2) * 32768
    def xa(g, ks, R=vAR):
        if g == 7: return "v_add_u32 v%d, s%d, v%d" % (R[ks], sAD, R[ks])
        d = aslot(g + 1) - aslot(g)
        return ("v_add_u32 v%d, 0x%x, v%d" % (R[ks], d, R[ks])) if d > 0 else ("v_subrev_u32 v%d, 0x%x, v%d" % (R[ks], -d, R[ks]))
    def rd_act(g, ks):
        F = (KS if g < 8 else QS)[ks]
        return ["ds_read_b128 %s, v%d offset:%d" % (vr(F + 4 * n, 4), vAR[ks], n * 2048) for n in range(8 if g < 8 else 4)]
    def rd_w(g, ks, wf, slot):
        r = WR + 4 * (slot % NWR)
        if wf < 8: return ["ds_read_b64_tr_b16 %s, v%d offset:%d" % (vr(r + 2 * rd_, 2), vWR[wf], wofs(g) + ks * 8192 + rd_ * 1024) for rd_ in range(2)]
        if wf < 11: return ["ds_read_b64_tr_b16 %s, v%d offset:%d" % (vr(r + 2 * rd_, 2), vXR[wf - 8], wofs(g) + ks * 4096 + rd_ * 512) for rd_ in range(2)]
        return ["ds_read_b128 %s, v%d offset:%d" % (vr(r, 4), vGR, ((g - 8) * 2 + ks) * 64), "ds_read_b128 %s, v%d" % (vr(GC, 4), vGA2[ks])] + ([xa(g, ks, vGA2)] if g < 15 else [])
    def mfs(g, ks, wf, slot, var):
        w = vr(WR + 4 * (slot % NWR), 4); F = (KS if g < 8 else QS)[ks]; first = (g % 8 == 0 and ks == 0)
        cb, tc = (wf % 8) // 2, wf % 2
        if wf == 11: return ["%s %s, %s, %s, %s" % (MF16, ar(AA + 48, 4), w, vr(GC, 4), "0" if first else ar(AA + 48, 4))]
        M = []
        for n in range(8 if g < 8 else 4):
            rb, tr = n // 2, n % 2
            x = vr(F + 4 * n, 4)
            sw = (var == "V") or wf == 10
            tb, ta = (tc, tr) if sw else (tr, tc)
            if g < 8: acc = ar(ub((rb // 2) * 16 + cb * 4 + (rb % 2) * 2 + tb) + ta * 4, 4)
            elif wf < 8: acc = vr(QA + ((rb * 4 + cb) * 2 + tr) * 8 + tc * 4, 4)
            elif wf < 10: acc = ar(AA + n * 8 + tc * 4, 4)
            else: acc = ar(AA + 32 + n * 4, 4)
            M.append("%s %s, %s, %s, %s" % (MF16, acc, x if sw else w, w if sw else x, "0" if first else acc))
        return M
    def order(g, var):
        nw = list(range(8 if g < 8 else 12))
        if g == 7: return [(ks, 2 * cb + t) for cb in range(4) for ks in range(2) for t in range(2)]
        if g == 15:
            return [(ks, wf) for ks in range(2) for wf in (8, 9, 10, 0, 1, 11)] + [(ks, 2 * cb + t) for cb in range(1, 4) for ks in range(2) for t in range(2)]
        return [(ks, wf) for ks in range(2) for wf in nw]
    def build(g0, var):
        fr = [(g, ks, wf) for g in range(g0, g0 + 8) for (ks, wf) in order(g, var)]
        M = []; fm = []
        for k, (g, ks, wf) in enumerate(fr):
            fm.append(len(M)); M += mfs(g, ks, wf, k, var)
        S_ = Sched(M); n = len(M)
        look = [(8, 0, wf) for wf in range(PDW)] if g0 == 0 else []
        allf = fr + look
        cs = {};
        for k, (g, ks, wf) in enumerate(allf): cs.setdefault(g, k)
        bar_m = {g: fm[cs[g] - PDW + 1] for g in cs if g > g0}
        for g, m in bar_m.items(): S_.bars[m] = g
        na = 8 if g0 == 0 else 4
        items = []
        for k in range(PDW, len(allf)):
            g, ks, wf = allf[k]
            t = fm[k - PDW]; e = bar_m.get(g, 0); use = fm[k] if k < len(fr) else n + 1 + (k - len(fr))
            if k == cs[g] and g == 8: items += [(max(t, e), 0, j, ("v_subrev_u32 v%d, s%d, v%d" % (r, sWD, r), t, e, None)) for j, r in enumerate(vWR)]
            items += [(max(t, e), 1 if k == cs[g] else 3, 4 * k + j, (x, t, e, use if x.startswith("ds_") else None)) for j, x in enumerate(rd_w(g, ks, wf, k))]
        for g in cs:
            for ks in range(2):
                if g == g0 and ks == 0: continue
                if g == 8 and g0 == 0 and ks == 1: continue
                R = rd_act(g, ks) + ([xa(g, ks)] if g < 15 else [])
                k1 = [k for k, f in enumerate(allf) if f[0] == g and f[1] == ks][0]
                u0 = fm[k1] if k1 < len(fr) else None
                for j, x in enumerate(R):
                    if ks == 0: t = e = bar_m[g]
                    else:
                        e = fm[cs[g]]; t = e + (j * min(u0 - e - 8, 40)) // len(R)
                    use = None if not x.startswith("ds_") else (u0 + j if u0 is not None else n)
                    items.append((max(t, e), 2, j, (x, t, e, use)))
        items.sort(key=lambda z: z[:3])
        S_.rq = [z[3] for z in items]
        S_.waitpts = [fm[k] for k in range(0, len(fr), 2)]
        S_.place_reads()
        return S_, {g: fm[cs[g]] for g in range(g0, g0 + 8)}, bar_m, fm
    def pack(areg, pk, scale=None):
        t = TT
        G = ["v_accvgpr_read_b32 v%d, a%d" % (t + j, areg + j) for j in range(8)]
        if scale is not None: G += ["v_mul_f32 v%d, s%d, v%d" % (t + j, scale, t + j) for j in range(8)]
        G += ["v_cvt_pk_bf16_f32 v%d, v%d, v%d" % (pk + j, t + 2 * j, t + 2 * j + 1) for j in range(4)]
        return G
    def kv_unit(j, nd=None):
        cb, rb, tb = (j % 16) // 4, (j // 2) % 2, j % 2
        pk = PK + 4 * (j % 4)
        G = pack(ub(j), pk) + ["buffer_store_dwordx4 %s, v%d, s[%d:%d], s%d offen offset:%d%s" % (vr(pk, 4), vL16, SO, SO + 3, (sOK, sOK2)[rb], (cb % 2) * 2048 + tb * 1024, " ; need:%d" % nd if nd else "")]
        if j == 15: G += ["s_add_u32 s%d, s%d, s%d" % (sOK, sOK, sOJ), "s_add_u32 s%d, s%d, s%d" % (sOK2, sOK2, sOJ)]
        elif j % 16 == 7: G += ["s_add_u32 s%d, s%d, 4096" % (sOK, sOK), "s_add_u32 s%d, s%d, 4096" % (sOK2, sOK2)]
        return G
    qa_setup = [["s_mov_b32 s%d, s%d" % (SA, pX), "s_mov_b32 s%d, s%d" % (SA + 1, pX + 1),
                 "s_lshl_b32 s%d, s%d, 14" % (sT0, sWV), "s_lshl_b32 s%d, s%d, 15" % (sAS, sQL), "s_lshl_b32 s%d, s%d, 15" % (sAS2, sQS),
                 "s_sub_u32 s%d, s%d, s%d" % (sAS, sAS, sT0), "s_sub_u32 s%d, s%d, s%d" % (sAS2, sAS2, sT0),
                 "s_lshl_b32 s%d, s%d, 1" % (sT0, sT0), "s_sub_u32 s%d, %d, s%d" % (sT0, 6 * 16384, sT0),
                 "v_add_u32 v%d, s%d, v%d" % (vAO[2], sT0, vAO[2]), "v_add_u32 v%d, s%d, v%d" % (vAO[3], sT0, vAO[3])]]
    qw_setup = [["s_mov_b32 m0, %d" % LDS_G, "s_mov_b32 s%d, s%d" % (SW, pWQ), "buffer_load_dwordx4 v%d, s[%d:%d], 0 offen lds ; need:8" % (vL16, SX, SX + 3), "s_mov_b32 s%d, s%d" % (SW + 1, pWQ + 1)],
                ["s_lshl_b32 s%d, s%d, 17" % (sT0, sWV), "s_lshl_b32 s%d, s%d, 8" % (sWS, sH), "s_add_u32 s%d, s%d, s%d" % (sWS, sWS, sT0), "s_lshl_b32 s%d, s%d, 12" % (sWM, sWV)],
                ["s_mov_b32 s%d, s%d" % (SX, pWQKV), "s_mov_b32 s%d, s%d" % (SX + 1, pWQKV + 1), "s_lshl_b32 s%d, s%d, 11" % (sXM, sWV), "s_mul_i32 s%d, s%d, %d" % (sXS, sWV, 16 * 3072)],
                ["s_mov_b32 s%d, 0x180000" % (SX + 2)]]
    at_setup = [["v_cmp_ne_u32 vcc, s%d, v125" % sFA, "v_mov_b32 v%d, 1" % vFO, "s_nop 0", "s_lshr_b32 s%d, vcc_lo, s%d" % (sT0, sGR), "s_and_b32 s%d, s%d, 15" % (sT0, sT0)],
                ["s_cmp_eq_u32 s%d, 0" % sT0, "s_cselect_b32 s%d, 1, s%d" % (sFA, sWV)],
                ["s_cmp_eq_u32 s%d, 0" % sWV, "s_cselect_b32 s46, 1, 0", "s_cselect_b32 s47, 2, 0"],
                ["s_lshl_b32 s%d, s%d, 12" % (sW4, sWV), "s_lshl_b32 s%d, s%d, 13" % (sW8, sWV), "s_lshl_b32 s%d, s%d, 19" % (sT0, sH)],
                ["s_lshl_b32 s%d, s%d, 15" % (sVD, sI), "s_add_u32 s%d, s%d, s%d" % (sT0, sT0, sVD)],
                ["s_add_u32 s%d, s%d, 0x%x" % (sKO, sT0, OFF_K), "s_add_u32 s%d, s%d, 0x%x" % (sVO, sT0, OFF_V), "s_mov_b32 s%d, %s" % (sTH, THRESH)]]
    sRA, sHP, sA0, sA1, sGB, sGA_, sGL_, sGS_, sP0, sP1_, sX0, sX1 = 36, 37, 38, 39, 64, 65, 66, 67, 68, 69, 70, 71
    sXO, sXR = 62, 95
    sFG, sFX, sRBK, sTIL = 96, 97, 60, 61
    late_setup = [["s_lshr_b32 s%d, s%d, 3" % (sX1, sH), "s_lshl_b32 s%d, s%d, 3" % (sFG, sX1), "s_add_u32 s%d, s%d, s%d" % (sFG, sFG, sI), "s_lshl_b32 s%d, s%d, 5" % (sFG, sFG),
                 "s_and_b32 s%d, s%d, 7" % (sX0, sH), "s_add_u32 s%d, s%d, s%d" % (sFG, sFG, sX0), "s_lshl_b32 s%d, s%d, 2" % (sFG, sFG), "s_add_u32 s%d, s%d, 0x%x" % (sFG, sFG, OFF_FL),
                 "s_sub_u32 s%d, 15, s%d" % (sX0, sI)], ["s_bitcmp1_b32 s2, 0", "s_cselect_b32 s%d, s%d, s%d" % (sRBK, sX0, sI)], ["s_lshl_b32 s%d, s%d, 2" % (sFX, sRBK),
                 "s_and_b32 s%d, s%d, 3" % (sX0, sH), "s_add_u32 s%d, s%d, s%d" % (sTIL, sFX, sX0), "s_lshl_b32 s%d, s%d, 5" % (sFX, sTIL), "s_add_u32 s%d, s%d, s%d" % (sFX, sFX, sX1),
                 "s_lshl_b32 s%d, s%d, 2" % (sFX, sFX), "s_add_u32 s%d, s%d, 0x%x" % (sFX, sFX, OFF_FL + 32 * 128)],
        ["s_bitcmp1_b32 s%d, 1" % sH, "s_cselect_b32 s%d, s%d, s%d" % (sRA, sQL, sQS)],
        ["s_and_b32 s%d, s%d, 1" % (sHP, sH), "s_lshr_b32 s%d, s%d, 1" % (sX0, sGR), "s_add_u32 s%d, s%d, s%d" % (sHP, sHP, sX0), "s_lshl_b32 s%d, s%d, 11" % (sGB, sGR), "s_add_u32 s%d, s%d, 0x%x" % (sGB, sGB, OFF_G)]]
    sTI = (sQL, sGS_, sQS, 45)
    late_setup.append(["s_lshl_b32 s%d, s%d, 7" % (sGA_, sRA), "s_add_u32 s%d, s%d, s%d" % (sGA_, sGA_, sGB), "s_mov_b32 s%d, s%d" % (sGL_, sGB)])
    for lo_, hi_ in ((sTI[0], sTI[1]), (sTI[2], sTI[3])):
        late_setup.append(["s_lshl_b32 s%d, s%d, 1" % (lo_, lo_), "s_sub_u32 s%d, s%d, s%d" % (lo_, lo_, sWV), "s_xor_b32 s%d, s%d, 7" % (hi_, lo_)])
    late_setup += [["s_lshr_b32 s%d, s%d, 2" % (sX0, sHP), "s_lshl_b32 s%d, s%d, 19" % (sX0, sX0), "s_and_b32 s%d, s%d, 3" % (sX1, sHP), "s_lshl_b32 s%d, s%d, 11" % (sX1, sX1),
         "s_add_u32 s%d, s%d, s%d" % (sX0, sX0, sX1), "s_lshl_b32 s%d, s%d, 13" % (sX1, sRA), "s_add_u32 s%d, s%d, s%d" % (sA0, sX0, sX1),
         "s_max_u32 s%d, s%d, 1" % (sX1, sRA), "s_sub_u32 s%d, s%d, 1" % (sX1, sX1), "s_lshl_b32 s%d, s%d, 13" % (sX1, sX1), "s_add_u32 s%d, s%d, s%d" % (sA1, sX0, sX1),
         "s_add_u32 s%d, s%d, %d" % (sA1, sA1, 4 * PH),
         "s_lshr_b32 s%d, s2, 3" % sX0, "s_lshl_b32 s%d, s%d, 2" % (sX0, sX0), "s_add_u32 s%d, s%d, s%d" % (sX0, sX0, sWV), "s_and_b32 s%d, s2, 6" % sX1,
         "s_lshl_b32 s%d, s%d, 6" % (sX1, sX1), "s_add_u32 s%d, s%d, s%d" % (sX0, sX0, sX1), "s_lshl_b32 s%d, s%d, 6" % (sP0, sX0), "s_lshl_b32 s%d, s%d, 3" % (sP1_, sX0),
         "s_mul_i32 s%d, s%d, %d" % (sXO, sTIL, 4 * 49152), "s_add_u32 s%d, s%d, s%d" % (sXO, sXO, sW4), "s_add_u32 s%d, s%d, 0x%x" % (sXO, sXO, OFF_X),
         "s_lshr_b32 s%d, s%d, 3" % (sXR, sH), "s_mul_i32 s%d, s%d, 49152" % (sXR, sXR), "s_add_u32 s%d, s%d, s%d" % (sXR, sXR, sXO),
         "s_add_u32 s%d, s%d, %d" % (sX0, sA0, 4 * PH), "s_add_u32 s%d, s%d, %d" % (sX1, sA0, 8 * PH), "s_add_u32 s%d, s%d, %d" % (sGB, sA1, 4 * PH)]]
    def ren(G, mp): return [[_re.sub(r"\bs(\d+)\b", lambda m_: "s%d" % mp.get(int(m_.group(1)), int(m_.group(1))), x) for x in g] for g in G]
    early = ren(late_setup[:3], {sFG: 64, sFX: 65})
    early += [["v_mov_b32 v28, 0"] + ["buffer_store_dword v28, v%d, s[%d:%d], s%d offen sc1 ; need:2" % (vONE, SO, SO + 3, r) for r in (64, 65, sU)]]
    SK, SV = SO, SO
    vK, vV = vL16, 2
    def dma(which, typ, par, srd_=None):
        so, sr_, base = (sKO, SK, 0) if which == "K" else (sVO, SV, 65536)
        if srd_ is not None: sr_ = srd_
        sw = sW4 if typ == 1 else sW8
        G = []
        for q in range(typ):
            g = ["s_add_u32 m0, s%d, %d" % (sw, base + par * 32768 + q * 4096)]
            g.append("s_add_u32 s%d, s%d, s%d" % (sDS, so, sw) if q == 0 else "s_add_u32 s%d, s%d, 4096" % (sDS, sDS))
            G.append(g)
            for o in range(4):
                G.append(["buffer_load_dwordx4 v%d, s[%d:%d], s%d offen offset:%d sc1 lds" % (vK, sr_, sr_ + 3, sDS, o * 1024)])
        return G
    def adv(which, typ):
        so = sKO if which == "K" else sVO
        return ["s_add_u32 s%d, s%d, %d" % (so, so, 16384 * typ)]
    spins = []
    vF1, vFA, vPO = 122, 251, 250
    sP1, sG1, sG2 = 45, 46, 47
    def poll_load(kind):
        if kind == 0: return "buffer_load_dword v125, v126, s[%d:%d], 0 offen sc1" % (SD, SD + 3)
        if kind == 1: return "buffer_load_dword v%d, v124, s[%d:%d], s%d offen sc1" % (vF1, SO, SO + 3, sHL)
        if kind == 4: return "buffer_load_dword v195, v192, s[%d:%d], s%d offen sc1" % (SO, SO + 3, sG2)
        return "buffer_load_dword v%d, v%d, s[%d:%d], s%d offen sc1" % (vFA, vPO, SO, SO + 3, sHL)
    def poll_cmp(kind):
        if kind == 0: return "v_and_b32 v%d, 0xff, v125\nv_cmp_gt_u32 vcc, s%d, v%d" % (vFO, sP1, vFO)
        return "v_cmp_gt_u32 vcc, s%d, v%d" % ((sG1, vF1) if kind == 1 else (sG2, vFA) if kind == 2 else (sG1, 195))
    def poll_check(kind):
        ls, lb = a.label("spin"), a.label("spun")
        a("%s\ns_cbranch_vccnz %s\n%s:" % (poll_cmp(kind), ls, lb))
        spins.append((ls, lb, kind))
    rels = []
    def release():
        ls, lb = a.label("rel"), a.label("reld")
        a("s_cmp_eq_u32 s%d, 0\ns_cbranch_scc1 %s\n%s:" % (sFA, ls, lb))
        rels.append((ls, lb))

    st_("setup")
    for x in fixm0(flat(D0[ST0:])): a(x.split(";")[0])
    if ST0 < 4: a(pf(0))
    bar("s_waitcnt vmcnt(1)")
    st_("bar0")

    pre0 = rd_w(0, 0, 0, 0) + rd_act(0, 0) + [x for k in range(1, PDW) for x in rd_w(0, 0, k, k)]
    use0 = [0, 0] + list(range(8)) + [8 * k for k in range(1, PDW) for _ in range(2)]
    for x in pre0: a(x)
    a(xa(0, 0))
    lV = a.label("kvV"); lQ = a.label("qphase")
    a("s_cmp_ge_u32 s%d, 2\ns_cbranch_scc1 %s" % (sWV, lV))
    NKV = 12
    CRL = "global_load_dword v122, v127, s[0:1]"
    for var in ("K", "V"):
        if var == "V": a(lV + ":")
        t2[0] = 1
        S_, cm, bm, fm = build(0, var)
        S_.place(dma_w(1) + dma_act(1), 0, 56)
        S_.place(dma_act(2) + pfp(-1), 56, bm[1] - 2)
        for g in range(1, 9):
            b = bm[g]; e = bm.get(g + 1, S_.n + 96)
            Wn = (soft(qw_setup) if g == 7 else []) + dma_w(g + 1) + pfp(g - 1)
            if g in (3, 5, 7): Wn = Wn + [CRL]
            if g == 2: Wn = Wn + [PLA]
            if g == 6: Wn = Wn + [poll_load(0) + " ; need:7", ["s_cmp_eq_u32 s%d, 0" % sWV, "s_cselect_b32 s%d, 8, 0" % sP1]]
            S_.place(Wn, b, b + (44 if g < 8 else 31))
            if g < 8: S_.place((flat(qa_setup) if g == 6 else []) + dma_act(g + 2) + (soft(at_setup) if g == 7 else []), b + 44, e - 8)
        S_.place(DF[:34] + soft(early), 2, bm[1] + 8)
        S_.place(DF[34:], bm[1] + 8, bm[3] - 4)
        S_.hooks[7] = lambda: poll_check(0)
        for cb in range(3):
            S_.place([x for j in range(4 * cb, 4 * cb + 4) for x in kv_unit(j, GPUB)], cm[7] + 32 * cb + 38, cm[7] + 32 * cb + 70 if cb < 2 else S_.n)
        vmh = S_.emit(a, bar, use0, [])
        left = S_.left; nkv = S_.n
        if VERB: print("KV over", S_.over)
        if var == "K": a("s_branch %s" % lQ)
    a(lQ + ":")
    st_("q")
    use8 = [0 if u == nkv else 4 * (u - nkv - 1) for u in left]
    t2[0] = 9
    S_, cm, bm, fm = build(8, "Q")
    per = cm[9] - cm[8]
    S_.place(dma_act(10), 0, bm[9] - 6)
    for g in range(9, 16):
        b = bm[g]; e = bm.get(g + 1, S_.n)
        Wn = dma_w(g + 1) if g < 15 else [x + " ; need:16" if isvm(x) else x for x in flat(dma("K", 1, 1) + [adv("K", 1)])]
        if g == GPUB:
            S_.hooks[g] = release
            Wn = Wn + ["buffer_store_dword v%d, v%d, s[%d:%d], s%d offen sc1" % (vFO, vONE, SO, SO + 3, sU)]
        if g in (9, 11, 13): Wn = Wn + [CRL]
        S_.place(Wn, b, b + 34)
        S_.place(dma_act(g + 2) if g + 2 < 16 else [poll_load(1) + " ; need:15"] + flat(dma("K", 1, 0)) + ["s_sub_u32 s%d, s%d, s%d" % (sKO, sKO, sVD), ["s_cmp_eq_u32 s%d, 0" % sI, "s_cselect_b32 s%d, 0x4000, 0" % sDS], "s_add_u32 s%d, s%d, s%d" % (sKO, sKO, sDS)] if g == 14 else [], b + 34, e - 6)
    S_.place(soft(late_setup), cm[10], cm[14] - 4)
    zero = lambda lo, hi: ["v_accvgpr_write_b32 a%d, 0" % r for r in range(lo, hi)]
    S_.place([x for j in range(NKV, 16) for x in kv_unit(j, GPUB)], 8, cm[9] + per // 2)
    S_.place([x for j in range(16, 32) for x in kv_unit(j) + zero(ub(j), ub(j) + 8)], cm[9] + per // 2, cm[15] + 20)
    hd = ["s_and_b32 s%d, s%d, 1" % (sT0, sH), "s_lshr_b32 s%d, s%d, 1" % (sT1, sGR), "s_add_u32 s%d, s%d, s%d" % (sT0, sT0, sT1),
          "s_and_b32 s%d, s%d, 2" % (sT2, sH), "s_lshl_b32 s%d, s%d, 20" % (sAS, sT2), "s_lshr_b32 s%d, s%d, 1" % (sT2, sT2), "s_add_u32 s%d, s%d, s%d" % (sT1, sT1, sT2),
          "s_lshr_b32 s%d, s%d, 2" % (sT2, sT0), "s_lshl_b32 s%d, s%d, 19" % (sT2, sT2), "s_add_u32 s%d, s%d, s%d" % (sAS, sAS, sT2), "s_and_b32 s%d, s%d, 3" % (sT0, sT0), "s_lshl_b32 s%d, s%d, 11" % (sT0, sT0),
          "s_add_u32 s%d, s%d, s%d" % (sAS, sAS, sT0),
          "s_lshr_b32 s%d, s%d, 2" % (sT2, sT1), "s_add_u32 s%d, s%d, 8" % (sT2, sT2), "s_lshl_b32 s%d, s%d, 19" % (sAS2, sT2), "s_and_b32 s%d, s%d, 3" % (sT1, sT1), "s_lshl_b32 s%d, s%d, 11" % (sT1, sT1),
          "s_add_u32 s%d, s%d, s%d" % (sAS2, sAS2, sT1), "s_and_b32 s%d, s%d, 1" % (sT0, sH), "s_lshl_b32 s%d, s%d, 10" % (sT0, sT0), "s_add_u32 s%d, s%d, s%d" % (sAS2, sAS2, sT0),
          ["s_bitcmp1_b32 s%d, 1" % sH, "s_cselect_b32 s%d, 1.0, %s" % (sSC, fbits(LOG2E * 0.25)), "s_cselect_b32 s%d, s%d, s%d" % (sXM, sTI[2], sTI[0])],
          "s_xor_b32 s%d, s%d, 7" % (sT0, sXM), ["s_bitcmp1_b32 s%d, 0" % sH, "s_cselect_b32 s%d, s%d, s%d" % (sXM, sT0, sXM)],
          "s_lshl_b32 s%d, s%d, 6" % (sXM, sXM), "s_add_u32 s%d, s%d, s%d" % (sXM, sXM, sGL_)]
    sQO, sVO_ = (sWS, sXS, sAM, sWM), (8, 9, 10, 12)
    for qb in range(4):
        hd += ["s_lshr_b32 s%d, s%d, 1" % (sT0, sTI[qb]), "s_lshl_b32 s%d, s%d, 13" % (sT0, sT0), "s_and_b32 s%d, s%d, 1" % (sT1, sTI[qb]), "s_lshl_b32 s%d, s%d, 10" % (sT2, sT1), "s_lshl_b32 s%d, s%d, 3" % (sT1, sT1),
               "s_add_u32 s%d, s%d, s%d" % (sT2, sT2, sT0), "s_add_u32 s%d, s%d, s%d" % (sT1, sT1, sT0), "s_add_u32 s%d, s%d, s%d" % (sQO[qb], sAS, sT2), "s_add_u32 s%d, s%d, s%d" % (sVO_[qb], sAS2, sT1)]
    AE = []
    for j in range(6):
        pk = PK + 4 * (j % 4)
        AE += pack(AA + j * 8, pk, sSC if j < 4 else None)
        if j < 4: AE.append("buffer_store_dwordx4 %s, v%d, s[%d:%d], s%d offen" % (vr(pk, 4), vL16, SO, SO + 3, sQO[j]))
        else: AE += ["buffer_store_dwordx2 %s, v%d, s[%d:%d], s%d offen" % (vr(pk + 2 * t, 2), vL16, SO, SO + 3, sVO_[2 * (j - 4) + t]) for t in range(2)]
    AE += ["v_accvgpr_read_b32 v%d, a%d" % (TT, AA + 48), "v_and_b32 v%d, 15, v0" % (TT + 1), "v_mul_f32 v%d, %s, v%d" % (TT, fbits(-LOG2E), TT), "v_exp_f32 v%d, v%d" % (TT, TT), "v_lshlrev_b32 v%d, 2, v%d" % (TT + 1, TT + 1),
           "v_add_f32 v%d, 1.0, v%d" % (TT, TT), "v_rcp_f32 v%d, v%d" % (TT, TT), "s_nop 0", "buffer_store_dword v%d, v%d, s[%d:%d], s%d offen" % (TT, TT + 1, SO, SO + 3, sXM)]
    S_.place(hd, bm[14] + 40, cm[15] + 38)
    room = S_.room(cm[15] + 40, S_.n) - 8
    S_.place(AE[:room], cm[15] + 40, S_.n); tail = AE[room:]
    if XQ:
        def drop(x):
            if XQ & 1 and x.startswith("buffer_load") and "s[4:7]" in x: return True
            if XQ & 2 and x.startswith("buffer_store_dwordx4"): return True
            if XQ & 4 and x.startswith("buffer_load") and "s[12:15]" in x: return True
            if XQ & 8 and x.startswith("buffer_load") and "s[8:11]" in x: return True
            return False
        S_.G.g = [[it for it in g if not drop(it[1])] for g in S_.G.g]
    nq_ = [0]
    def qbar(w):
        nq_[0] += 1
        if nq_[0] == 7:
            a(w); poll_check(1); bar("s_nop 0")
        else: bar(w)
    vm2 = S_.emit(a, qbar, use8, vmh)
    if VERB: print("Q over", S_.over, "tail", len(tail))
    for x in tail: a(x)
    a("s_waitcnt vmcnt(%d)" % (len(vm2) - 1 - max(k for k, nd in enumerate(vm2) if nd == 16) + sum(1 for x in tail if isvm(x))))
    a(lAttn + ":")
    st_("attn")
    vU = 3; vL = (4, 5, 6, 7); vG = (8, 9, 14, 15); vX = 10
    S = (16, 80); P = (144, 176); NM, LT, TM, ONES = 208, 224, 240, 252
    vT8, vNEG = 248, 249
    sW3 = 56
    def live(typ, half):
        if not half: return list(range(8))
        return [q for q in range(8) if q % 4 != 2] if typ == 1 else [0, 1, 2, 3, 5, 7]
    O, Q, FR, NFR = 0, 128, 192, 16
    ms = (26, 28, 30, 4)
    def kfrag(p, kb, s): return ("K", p * 32768 + (kb // 2) * 8192 + s * 2048 + (kb % 2) * 1024)
    def vfrag(p, kp, dt): return ("V", p * 32768 + kp * 8192 + dt * 1024)
    def rd(slot, fr): return "ds_read_b128 %s, v%d offset:%d" % (ar(FR + 4 * (slot % NFR), 4), vK if fr[0] == "K" else vV, fr[1])
    def pvm(Pp, nq, kp, dt, lv): return ["%s %s, {F}, %s, %s" % (MF16, ar(O + (qb * 8 + dt) * 4, 4), vr(Pp + (kp * nq + qb) * 4, 4), ar(O + (qb * 8 + dt) * 4, 4)) for qb in range(nq) if kp * nq + qb in lv]
    def mf_list(p, pv, qk, hp=0, hq=0):
        L = []; Pp = P[1 - p]; Sn = S[1 - p]
        if pv in (1, 2):
            nq = 4 // pv
            L += [(vfrag(1 - p, kp, dt), pvm(Pp, nq, kp, dt, live(pv, hp))) for kp in range(2 * pv) for dt in range(8)]
        elif pv == 3:
            L += [(("K", vfrag(1, kp, dt)[1]), pvm(Pp, 2, kp, dt, live(2, 1))) for dt in range(8) for kp in range(4)]
        if qk:
            nq = 4 // qk
            for kb in range(4 * qk):
                for s in range(4):
                    ms_ = []
                    for qb in range(nq):
                        if (kb // 2) * nq + qb not in live(qk, hq): continue
                        d = vr(Sn + ((kb // 2) * nq + qb) * 8 + (kb % 2) * 4, 4)
                        ms_.append("%s %s, {F}, %s, %s" % (MF16, d, ar(Q + (qb * 4 + s) * 4, 4), d if s else vr(NM + qb * 4, 4)))
                    L.append((kfrag(1 - p, kb, s), ms_))
        return L
    def ex(p, n): return "v_exp_f32 v%d, v%d" % (TM + n % 8, S[p] + n)
    def cv(p, j): return "v_cvt_pk_bf16_f32 v%d, v%d, v%d" % (P[p] + j, TM + (2 * j) % 8, TM + (2 * j) % 8 + 1)
    def summ(p, sm, q):
        nq = 4 // sm; d = vr(LT + (q % nq) * 4, 4)
        return "%s %s, %s, %s, %s" % (MF16, d, vr(ONES, 4), vr(P[p] + 4 * q, 4), d if q >= nq else "0")
    def chks(sm, hs):
        if sm == 1 and hs: return ["v_max3_f32 v%d, v%d, v%d, v%d" % (vX, LT, LT + 4, LT + 12), "v_cmp_lt_f32 vcc, s%d, v%d" % (sTH, vX)]
        c = ["v_max3_f32 v%d, v%d, v%d, v%d" % (vX, LT, LT + 4, LT + 8), "v_max_f32 v%d, v%d, v%d" % (vX, vX, LT + 12)] if sm == 1 else ["v_max_f32 v%d, v%d, v%d" % (vX, LT, LT + 4)]
        return c + ["v_cmp_lt_f32 vcc, s%d, v%d" % (sTH, vX)]
    rare = {}
    def step(p, pv, sm, qk, dK, dV, pre_in=True, pre_out=True, extra_vm=None, chk=0, last16=False, staged=None, trail=None, vm_first=False, flush=False, ctl=None, hp=0, hs=0, hq=0, kpre=None):
        L = mf_list(p, pv, qk, hp, hq); nf = len(L)
        lv = live(sm, hs) if sm else []; ng = len(lv)
        nxt = [x[0] for x in mf_list(1, 3, 0)][:PD] if last16 else [vfrag(p, kp, dt) for kp in range(2) for dt in range(8)][:PD]
        M0 = [(f, t) for f, (fr, ts_) in enumerate(L) for t in ts_]
        nb = len(M0); M = []; spos = []
        SLK = 6 if nb > 100 else 3
        endm = nb - 10 - SLK
        ins = {((k + 1) * endm) // ng + SLK: q for k, q in enumerate(lv)}
        for m, it in enumerate(M0):
            M.append(it)
            if m in ins: spos.append(len(M)); M.append((it[0], summ(p, sm, ins[m])))
        nm = len(M)
        G = []
        if dV: G += dma("V", dV, p) + [adv("V", dV)]
        if dK: G += (kpre or []) + dma("K", dK, p) + [adv("K", dK)]
        ntr = sum(1 for x in flat(trail or []) if isvm(x))
        G = ((extra_vm or []) + G if vm_first else G + (extra_vm or [])) + (trail or [])
        firstm = {}
        for m, (f, t) in enumerate(M): firstm.setdefault(f, m)
        barf = nf + 1 - PD
        if barf % WP: barf += WP - barf % WP
        if not pre_out or last16: barf = nf + 99
        Gp = Gaps([12] * (nm - 1) + [4])
        sR = Gp.newstream(); pre = None
        allfr = [x[0] for x in L] + (nxt if pre_out else [])
        nrd = PD
        for f in range(nf):
            m = firstm[f]; w_ = None
            if f == barf: w_ = ["s_BARW", "s_BAR"]
            elif f < barf and f % WP == 0: w_ = ["s_waitcnt lgkmcnt(%d)" % max(0, nrd - 1 - min(f + WP - 1, nf - 1))]
            if w_ and m == 0: pre = w_
            elif w_:
                for x in w_: Gp.add(m - 1, sR, x)
            want = min(f + PD, len(allfr) - 1)
            if f < barf and not last16: want = min(want, nf - 1)
            for k in range(2):
                if nrd <= want:
                    Gp.add(m + (k if len(L[f][1]) > 1 else 0), sR, rd(nrd, allfr[nrd])); nrd += 1
        assert nrd == len(allfr), (nrd, len(allfr))
        hiD = min(max(2 * len(G), (nm * DFR) // 16), firstm[barf] - 8 if barf < nf else nm)
        Gp.place(soft(G), 1, hiD, slack=40)
        if pv in (1, 2) and not last16: Gp.place(["v_add_f32 v%d, v%d, v%d" % (vL[qb], vL[qb], LT + 4 * qb) for qb in range(4 // pv) if not (hp and qb == 2)], 0, 10)
        if ctl: Gp.place([ctl], nm - 8, nm - 3)
        if sm:
            pe = []; lo = 0
            for k, q in enumerate(lv):
                hi = spos[k] - SLK
                sE = Gp.newstream(); tmp = {z: list(Gp.g[z]) for z in range(lo, hi)}; ch = []
                for _ in range(8):
                    def inc(z): return max(0, gcost(tmp[z] + [(sE, "v_exp_f32")]) - Gp.cap[z]) - max(0, gcost(tmp[z]) - Gp.cap[z])
                    z = min(range(lo, hi), key=lambda z: (inc(z), gcost(tmp[z]) > Gp.cap[z], (z - lo) % 4 == 2 if EXT else 0, z))
                    tmp[z].append((sE, "v_exp_f32")); ch.append(z)
                for n, z in zip(range(8 * q, 8 * q + 8), sorted(ch)): Gp.add(z, sE, ex(p, n))
                pe += sorted(ch); lo = hi
            sC = Gp.newstream(); k = 0
            for j in range(4 * ng):
                x = cv(p, 4 * lv[j // 4] + j % 4)
                k = max(k, pe[2 * j + 1] + 1)
                dl = min(pe[2 * j + 8] - 1 if 2 * j + 8 < 8 * ng else nm, spos[j // 4] - 3)
                if k > dl: k = dl = max(dl, pe[2 * j + 1])
                assert k <= spos[j // 4] - 3 and (2 * j + 8 >= 8 * ng or k < pe[2 * j + 8]), (j, k, dl)
                cand = [z for z in range(k, dl + 1) if gcost(Gp.g[z] + [(sC, x)]) <= Gp.cap[z]]
                k = cand[0] if cand else min(range(k, dl + 1), key=lambda z: gcost(Gp.g[z]))
                Gp.add(k, sC, x)
            Gp.place(chks(sm, hs), nm - 3, nm - 1)
        for (lst, lo, hi) in (staged or []): Gp.place(lst, lo, hi)
        if VERB: print("step", p, pv, sm, qk, "gaps", nm, "over", Gp.over())
        if not pre_in:
            for f in range(PD): a(rd(f, L[f][0]))
        for x in pre or []: a(x)
        for m, (f, t) in enumerate(M):
            a(t.replace("{F}", ar(FR + 4 * (f % NFR), 4)))
            for x in Gp.out(m):
                if x == "s_BARW": continue
                if x == "s_BAR":
                    if TS3: a("s_mov_b32 m0, s76\ns_add_u32 s76, s76, 1\nv_writelane_b32 v11, s72, m0\ns_mov_b32 m0, s76\ns_add_u32 s76, s76, 1\nv_writelane_b32 v11, s74, m0\ns_memtime s[72:73]")
                    a("s_waitcnt vmcnt(%d) lgkmcnt(0)" % ntr)
                    if chk: poll_check(chk)
                    a("s_barrier")
                    if TS3: a("s_memtime s[74:75]\ns_waitcnt lgkmcnt(0)")
                else: a(x)
        assert nf % NFR == 0
        if sm:
            key = (p, sm, qk if qk else sm, hs)
            if key not in rare: rare[key] = (a.label("rare"), [])
            lb = a.label("back"); lj = a.label("jr")
            rare[key][1].append((lj, lb))
            a("s_cbranch_vccnz %s\n%s:" % (lj, lb))
            if last16 or flush:
                for qb in range(4 // sm):
                    if not (hs and qb == 2): a("v_add_f32 v%d, v%d, v%d" % (vL[qb], vL[qb], LT + 4 * qb))
    def qregs(base, typ, qb, half=0):
        nq = 4 // typ
        return [base + (kp * nq + qb) * 8 + j for kp in range(2 * typ) for j in range(8) if kp * nq + qb in live(typ, half)]
    def maxtree(dst, R):
        L = ["v_max3_f32 v%d, v%d, v%d, v%d" % (dst, R[0], R[1], R[2])]; j = 3
        while j + 1 < len(R):
            L.append("v_max3_f32 v%d, v%d, v%d, v%d" % (dst, dst, R[j], R[j + 1])); j += 2
        if j < len(R): L.append("v_max_f32 v%d, v%d, v%d" % (dst, dst, R[j]))
        return L
    def xlane(op, D, Tm):
        L = []
        for sw in ("v_permlane16_swap_b32", "v_permlane32_swap_b32"):
            L += ["v_mov_b32 v%d, v%d" % (t, d) for d, t in zip(D, Tm)]
            if len(D) < 3: L.append("s_nop %d" % (2 - len(D)))
            L += ["%s v%d, v%d" % (sw, d, t) for d, t in zip(D, Tm)]
            L += ["%s v%d, v%d, v%d" % (op, d, d, t) for d, t in zip(D, Tm)]
        return L
    def mask(sets, pad=True):
        for r in range(4): a("v_cmp_gt_i32 s[%d:%d], %d, v%d" % (ms[r], ms[r] + 1, r, vU))
        if pad: a("s_nop 3")
        for (R, st) in sets:
            lab = [a.label("mk") for _ in range(4)]; full = [a.label("mf") for _ in range(5)]
            for t in range(1, 4): a("s_cmp_eq_u32 s%d, %d\ns_cbranch_scc1 %s" % (st, t, lab[t]))
            for t in range(4):
                if t:
                    a(full[t] + ":")
                    for r in range(4): a("v_mov_b32 v%d, v%d" % (R[4 * t + r], vNEG))
                    a("s_branch %s\n%s:" % (full[t + 1], lab[t]))
                for r in range(4): a("v_cndmask_b32 v%d, v%d, v%d, s[%d:%d]" % (R[4 * t + r], R[4 * t + r], vNEG, ms[r], ms[r] + 1))
            a(full[4] + ":")
    bar("s_nop 0")
    if TS2:
        a("s_waitcnt lgkmcnt(0)"); bar("s_nop 0")
        a("s_lshl_b32 s78, s2, 2\ns_add_u32 s78, s78, s%d\ns_lshl_b32 s78, s78, 8\ns_add_u32 s78, s78, 0x%x\nv_lshlrev_b32 v122, 2, v0" % (sWV, OFF_TS + 0x80000))
        a("buffer_store_dword v123, v122, s[%d:%d], s78 offen\ns_waitcnt vmcnt(0)" % (SO, SO + 3))
    a("s_mov_b32 s%d, %s" % (sSC, fbits(LOG2E / math.sqrt(128.0))))
    fr0 = [kfrag(0, kb, s) for s in range(4) for kb in range(4)]
    for f in range(12): a(rd(f, fr0[f]))
    def qepi(cb):
        G = []
        for qb in range(4):
            src = QA + (((qb // 2) * 4 + cb) * 2 + qb % 2) * 8
            if not PKV: G += ["v_mul_f32 v%d, s%d, v%d" % (src + j, sSC, src + j) for j in range(8)]
            G += ["v_cvt_pk_bf16_f32 v%d, v%d, v%d" % (src + j, src + 2 * j, src + 2 * j + 1) for j in range(4)]
            G += ["v_accvgpr_write_b32 a%d, v%d" % (Q + (qb * 4 + cb) * 4 + j, src + j) for j in range(4)]
        return G
    for x in flat(dma("V", 1, 0)): a(x)
    a("s_sub_u32 s%d, s%d, s%d\ns_sub_u32 s%d, 3, s%d" % (sVO, sVO, sVD, sW3, sWV))
    if PKV:
        a("s_mov_b32 s26, s%d\ns_mov_b32 s27, s%d" % (sSC, sSC))
        for r in range(QA, QA + 128, 2): a("v_pk_mul_f32 %s, %s, s[26:27]" % (vr(r, 2), vr(r, 2)))
    for x in qepi(0): a(x)
    for f in range(12, 16): a(rd(f, fr0[f]))
    misc = ["v_add_u32 v%d, 0x10000, v%d" % (vV, vK), "v_and_b32 v10, 15, v0", "v_lshrrev_b32 v11, 4, v0", "v_lshlrev_b32 v11, 2, v11", "v_sub_u32 v%d, v10, v11" % vU]
    misc += ["v_mov_b32 v%d, 0" % r for r in vL] + ["v_mov_b32 v%d, %s" % (vNEG, NEG), "v_bfe_u32 v%d, v0, 3, 2" % vPO, "v_lshl_add_u32 v%d, v%d, 7, v124" % (vPO, vPO), "s_and_b32 s%d, s%d, 0xfffffe00" % (sHL, sHL)]
    misc += ["v_mov_b32 v%d, 0x3f803f80" % r for r in range(ONES, ONES + 4)] + ["v_mov_b32 v14, v%d" % vONE, "v_mov_b32 v15, 2"]
    a("s_waitcnt lgkmcnt(0)\ns_barrier")
    K2 = flat(dma("K", 2, 0)) + [["s_cmp_eq_u32 s%d, 0" % sI, "s_cselect_b32 s%d, 2, 1" % sT0], "s_lshl_b32 s%d, s%d, 14" % (sT0, sT0), "s_add_u32 s%d, s%d, s%d" % (sKO, sKO, sT0)]
    Gp = Gaps([12] * 64)
    Gp.place(K2, 0, 40)
    for s in range(4): Gp.place(qepi(s + 1) if s < 3 else misc, 16 * s, 16 * s + 16, slack=4)
    for s in range(4):
        for n in range(16):
            qb, kb = n // 4, n % 4
            d = vr(S[0] + ((kb // 2) * 4 + qb) * 8 + (kb % 2) * 4, 4)
            a("%s %s, %s, %s, %s" % (MF16, d, ar(FR + 4 * (4 * s + kb), 4), ar(Q + (qb * 4 + s) * 4, 4), d if s else "0"))
            for x in Gp.out(16 * s + n): a(x)
    st_("m1")
    for f, x in enumerate(mf_list(0, 0, 1)[:PD]): a(rd(f, x[0]))
    mask([(qregs(S[0], 1, 2), sWV)], pad=False)
    MXr, MXt = (240, 241, 242, 243), (244, 245, 246, 247)
    for qb in range(4):
        for x in maxtree(MXr[qb], qregs(S[0], 1, qb)): a(x)
    for x in xlane("v_max_f32", MXr, MXt): a(x)
    for qb in range(4):
        for j in range(4): a("v_sub_f32 v%d, 0, v%d" % (NM + qb * 4 + j, MXr[qb]))
    for qb in range(4):
        if PKV:
            for r in qregs(S[0], 1, qb)[::2]: a("v_pk_add_f32 %s, %s, %s" % (vr(r, 2), vr(r, 2), vr(NM + qb * 4, 2)))
        else:
            for r in qregs(S[0], 1, qb): a("v_sub_f32 v%d, v%d, v%d" % (r, r, MXr[qb]))
    st_("first")
    if TS3: a("s_mov_b32 s76, 0\ns_mov_b32 s72, 0\ns_mov_b32 s74, 0")
    step(0, 0, 1, 1, 0, 0)
    release()
    a("buffer_store_dword v15, v14, s[%d:%d], s%d offen sc1" % (SO, SO + 3, sU))
    st_("s0")
    lT0, lT1, lT1b, lL1, lL2, lS15, lMid, lI7, lEn = [a.label(x) for x in ("T0", "T1", "T1b", "L1", "L2", "S15", "MID", "I7", "END")]
    PL = [[poll_load(2)]]
    AF = [Q + 4 * j for j in range(9)]
    def ld(dst, so, off): return "buffer_load_dwordx4 %s, v%d, s[%d:%d], s%d offen offset:%d sc1" % (ar(dst, 4), vK, SV, SV + 3, so, off)
    AOP = [ld(AF[0], sA0, 0), ld(AF[1], sA0, 1024), ld(AF[2], sX0, 0), ld(AF[3], sX0, 1024), ld(AF[4], sA1, 1024),
           ld(AF[5], sX1, 0), ld(AF[6], sX1, 1024), ld(AF[7], sGB, 0), ld(AF[8], sGB, 1024)]
    AOP += ["v_and_b32 v12, 15, v0", "v_lshlrev_b32 v12, 2, v12"] + ["buffer_load_dword a%d, v12, s[%d:%d], s%d offen offset:%d sc1" % (Q + 36 + t, SV, SV + 3, sGA_, 64 * t) for t in range(2)]
    ALD = [["v_and_b32 v12, 15, v0", "v_lshlrev_b32 v12, 2, v12"]]
    ALD += [["buffer_load_dword v%d, v12, s[%d:%d], s%d offen offset:%d sc1" % (vG[qb], SV, SV + 3, sT0, 0)] for qb in range(4)]
    for qb in range(4): ALD[1 + qb] = ["s_lshl_b32 s%d, s%d, 6" % (sT0, sTI[qb]), "s_add_u32 s%d, s%d, s%d" % (sT0, sT0, sGL_)] + ALD[1 + qb]
    def wpf(dst): return [["v_add_lshl_u32 v%d, v0, s%d, 7" % (vT8, sP0), "global_load_dword v%d, v%d, s[%d:%d]" % (dst, vT8, pBWO, pBWO + 1)],
                          ["v_and_b32 v12, 7, v0", "v_add_lshl_u32 v12, v12, s%d, 7" % sP1_, "global_load_dword v%d, v12, s[%d:%d]" % (dst, pWO, pWO + 1)]]
    TR0, TR15 = wpf(vG[0]), (wpf(vT8) if T15 else [])
    if CR2:
        TR15 = TR15 + [["s_lshr_b32 s%d, s%d, 3" % (sT0, sP1_), "s_and_b32 s%d, s%d, 127" % (sT0, sT0), "v_and_b32 v13, 15, v0", "v_lshlrev_b32 v13, 7, v13", "v_add_lshl_u32 v13, v13, s%d, 7" % sT0,
                        "v_min_u32 v13, %s-%s, v13" % (lRare, lpc2), "global_load_dword v%d, v13, s[0:1]" % vT8]]
    PW, PW2 = 8, 12
    sWB, sHW, sWC, sAB, sHA, sAC = 25, 32, 33, 98, 35, 57
    TL = ("s_mov_b32 s%d, s%d\ns_mov_b32 s%d, s%d\ns_mov_b32 s%d, 0x400000\ns_mov_b32 s%d, s%d\ns_mov_b32 s%d, s%d\ns_mov_b32 s%d, 0x80000\n" % (PW, pBWO, PW + 1, pBWO + 1, PW + 2, PW2, pWO, PW2 + 1, pWO + 1, PW2 + 2) +
          "s_lshr_b32 s%d, s%d, 3\ns_lshl_b32 s%d, s%d, 20\ns_and_b32 s%d, s%d, 3\ns_lshl_b32 s%d, s%d, 8\ns_add_u32 s%d, s%d, s%d\ns_lshl_b32 s%d, s%d, 14\ns_add_u32 s%d, s%d, s%d\n" % (sT2, sH, sWB, sT2, sT1, sH, sT1, sT1, sWB, sWB, sT1, sT1, sWV, sWB, sWB, sT1) +
          "s_and_b32 s%d, s%d, 7\ns_mov_b32 s%d, s%d\n" % (sHW, sH, sHA, sHW) +
          "s_lshl_b32 s%d, s%d, 2\ns_add_u32 s%d, s%d, s%d\ns_mul_i32 s%d, s%d, %d\ns_lshl_b32 s%d, s%d, 16\ns_add_u32 s%d, s%d, s%d\ns_add_u32 s%d, s%d, 0x%x\n" % (sT1, sRBK, sT1, sT1, sWV, sAB, sT1, CROW, sT2, sT2, sAB, sAB, sT2, sAB, sAB, OFF_C) +
          "s_lshl_b32 s%d, s%d, 13\ns_add_u32 s%d, s%d, 0x%x" % (sT1, sH, sT1, sT1, OFF_C)).split("\n")
    for t in sTI:
        TL += ["s_and_b32 s%d, s%d, 1" % (sT2, t), "s_lshl_b32 s%d, s%d, 10" % (sT2, sT2), "s_lshr_b32 s%d, s%d, 1" % (t, t), "s_mul_i32 s%d, s%d, %d" % (t, t, CROW),
               "s_add_u32 s%d, s%d, s%d" % (t, t, sT2), "s_add_u32 s%d, s%d, s%d" % (t, t, sT1)]
    STL = [(TL[:23], 2, 50), (TL[23:], 50, 114)]
    a("s_cmp_eq_u32 s%d, 0\ns_cbranch_scc1 %s" % (sI, lT1))
    a("s_mov_b32 s%d, s%d" % (sT, sI))
    a(".p2align 6\n" + lL1 + ":")
    step(1, 1, 1, 1, 1, 1, ctl=["s_sub_u32 s%d, s%d, 1" % (sT, sT)], kpre=[["s_cmp_eq_u32 s%d, 1" % sT, "s_cselect_b32 s%d, 0x4000, 0" % sT0], ["s_add_u32 s%d, s%d, s%d" % (sKO, sKO, sT0)]])
    a("s_cmp_eq_u32 s%d, 0\ns_cbranch_scc1 %s" % (sT, lT0))
    step(0, 1, 1, 1, 1, 1)
    a("s_branch %s" % lL1)
    a(lT0 + ":")
    step(0, 1, 1, 1, 2, 1, extra_vm=PL, chk=2, trail=TR0, hq=1)
    a(lT1 + ":")
    mask([(qregs(S[1], 1, 3), sW3)])
    a("s_add_u32 s%d, s%d, 0x4000\ns_cmp_eq_u32 s%d, 7\ns_cbranch_scc1 %s" % (sVO, sVO, sI, lT1b))
    step(1, 1, 1, 2, 2, 1, hs=1)
    step(0, 1, 2, 2, 2, 2, extra_vm=PL, chk=2, trail=TR0, hp=1)
    a("s_sub_u32 s%d, 6, s%d\ns_cmp_eq_u32 s%d, 0\ns_cbranch_scc1 %s" % (sT, sI, sT, lS15))
    a(".p2align 6\n" + lL2 + ":")
    step(1, 2, 2, 2, 2, 2)
    step(0, 2, 2, 2, 2, 2, ctl=["s_sub_u32 s%d, s%d, 1" % (sT, sT)])
    a("s_cmp_lg_u32 s%d, 0\ns_cbranch_scc1 %s" % (sT, lL2))
    a(lS15 + ":")
    a("s_add_u32 s%d, s%d, 0x8000" % (sKO, sVO))
    step(1, 2, 2, 2, 2, 2, extra_vm=ALD, trail=TR15, vm_first=True, staged=STL, flush=True, hq=1)
    a("s_branch %s" % lMid)
    a(lT1b + ":")
    a("s_add_u32 s%d, s%d, 0x4000" % (sKO, sVO))
    step(1, 1, 1, 2, 2, 1, extra_vm=ALD, trail=TR15, vm_first=True, staged=STL, flush=True, hs=1, hq=1)
    def fin_head(rb, so):
        q0, q1 = 2 * rb, 2 * rb + 1
        G = ["v_rcp_f32 v%d, v%d" % (vL[q0], vL[q0]), "v_rcp_f32 v%d, v%d" % (vL[q1], vL[q1]), "v_sub_f32 v%d, 1.0, v%d" % (vG[q0], vG[q0]), "v_sub_f32 v%d, 1.0, v%d" % (vG[q1], vG[q1]),
             "v_mul_f32 v%d, v%d, v%d" % (vL[q0], vL[q0], vG[q0]), "v_mul_f32 v%d, v%d, v%d" % (vL[q1], vL[q1], vG[q1])]
        return G
    def fin_part(rb, c, t, so, pk=False):
        u, tq = c // 2, c % 2; qb = 2 * rb + tq; so = sTI[qb]
        G = ["v_accvgpr_read_b32 v%d, a%d" % (t + j, O + qb * 32 + u * 8 + j) for j in range(8)]
        if pk and PKV: G += ["v_pk_mul_f32 %s, %s, %s op_sel:[0,%d] op_sel_hi:[1,%d]" % (vr(t + j, 2), vr(t + j, 2), vr(vL[2 * rb], 2), tq, tq) for j in range(0, 8, 2)]
        else: G += ["v_mul_f32 v%d, v%d, v%d" % (t + j, vL[qb], t + j) for j in range(8)]
        G += ["v_cvt_pk_bf16_f32 v%d, v%d, v%d" % (t + j, t + 2 * j, t + 2 * j + 1) for j in range(4)]
        if u == 2: G.append("s_add_u32 s%d, s%d, 4096" % (so, so))
        G.append("buffer_store_dwordx4 %s, v%d, s[%d:%d], s%d offen offset:%d sc1" % (vr(t, 4), vK, SV, SV + 3, so, (u % 2) * 2048))
        return G
    a(lMid + ":")
    st_("mid")
    if TS3:
        a("s_mov_b32 m0, s76\ns_add_u32 s76, s76, 1\nv_writelane_b32 v11, s72, m0\ns_mov_b32 m0, s76\ns_add_u32 s76, s76, 1\nv_writelane_b32 v11, s74, m0")
        a("s_lshl_b32 s78, s2, 2\ns_add_u32 s78, s78, s%d\ns_lshl_b32 s78, s78, 8\ns_add_u32 s78, s78, 0x%x\nv_lshlrev_b32 v10, 2, v0" % (sWV, OFF_TS + 0x80000))
        a("buffer_store_dword v11, v10, s[%d:%d], s78 offen\ns_nop 4" % (SO, SO + 3))
    for x in AOP: a(x)
    mask([(qregs(S[0], 2, 0)[:16], sWV), (qregs(S[0], 2, 1)[16:], sW3)], pad=False)
    vD = (232, 233, 234, 235)
    WRING = [0, 16384, 65536, 81920, 131072, 147456]; ARING = [32768, 49152, 98304, 114688]
    def w_dma(st):
        G = []
        if st < 16 and st % 2 == 0:
            G += ["s_lshl_b32 s%d, s%d, 17" % (sWC, sHW), "s_add_u32 s%d, s%d, s%d" % (sWC, sWC, sWB), "s_add_u32 s%d, s%d, 1" % (sHW, sHW)]
        if st == 16: G += ["s_and_b32 s%d, s%d, 0xffff" % (sWC, sWB), "s_lshr_b32 s%d, s%d, 20" % (sHW, sWB), "s_lshl_b32 s%d, s%d, 17" % (sHW, sHW), "s_add_u32 s%d, s%d, s%d" % (sWC, sWC, sHW)]
        G += ["s_add_u32 m0, s%d, %d" % (sW4, WRING[st % 6]), "s_and_b32 s%d, s%d, 7" % (sHW, sHW) if st % 2 == 0 else "s_add_u32 s%d, s%d, 65536" % (sWC, sWC)]
        sr_ = PW if st < 16 else PW2
        return G + ["buffer_load_dwordx4 v%d, s[%d:%d], s%d offen offset:%d lds ; need:%d" % (vD[o], sr_, sr_ + 3, sWC, o * 1024, st) for o in range(4)]
    def a_dma(st):
        G = []
        if st < 16 and st % 2 == 0:
            G += ["s_lshl_b32 s%d, s%d, 13" % (sAC, sHA), "s_add_u32 s%d, s%d, s%d" % (sAC, sAC, sAB), "s_add_u32 s%d, s%d, 1" % (sHA, sHA)]
        if st == 16: G += ["s_lshr_b32 s%d, s%d, 3" % (sHA, sH), "s_mul_i32 s%d, s%d, %d" % (sHA, sHA, 56 * 1024), "s_sub_u32 s%d, s%d, s%d" % (sAC, sAB, sHA), "s_add_u32 s%d, s%d, %d" % (sAC, sAC, 256 * 1024)]
        G += ["s_add_u32 m0, s%d, %d" % (sW4, ARING[st % 4]), "s_and_b32 s%d, s%d, 7" % (sHA, sHA) if st % 2 == 0 else "s_add_u32 s%d, s%d, 4096" % (sAC, sAC)]
        return G + ["buffer_load_dwordx4 v%d, s[%d:%d], s%d offen offset:%d sc1 lds ; need:%d" % (vK, SV, SV + 3, sAC, o * 1024, st) for o in range(4)]
    nt = lambda L: [x.split(";")[0].strip() for x in L]
    a("v_lshrrev_b32 v10, 4, v0\nv_and_b32 v11, 15, v0\nv_lshlrev_b32 v12, 2, v10\nv_xor_b32 v11, v11, v12\nv_lshlrev_b32 v11, 4, v11\nv_lshl_add_u32 v%d, v10, 10, v11" % vD[0])
    a("v_xor_b32 v11, 16, v%d\nv_add_u32 v%d, 6144, v%d\nv_add_u32 v%d, 3072, v11\nv_add_u32 v%d, 9216, v11" % (vD[0], vD[2], vD[0], vD[1], vD[3]))
    n0, n1, n2 = WSP
    for st in range(n0):
        for x in nt(w_dma(st)): a(x)
    W16_ = [[x] for st in range(n0, n0 + n1) for x in nt(w_dma(st))]; W17_ = [[x] for st in range(n0 + n1, n0 + n1 + n2) for x in nt(w_dma(st))]
    WRS = [x for st in range(n0 + n1 + n2, 6) for x in nt(w_dma(st))]
    a("s_cmp_eq_u32 s%d, 7\ns_cbranch_scc1 %s" % (sI, lI7))
    FT = lambda c: 80 + 8 * (c % 8)
    for x in fin_head(1, sA0): a(x)
    for c in range(NE):
        for x in fin_part(1, c, FT(c), sA0, True): a(x)
    step(0, 2, 2, 0, 0, 0, last16=True, extra_vm=W16_, hs=1)
    def final(first):
        stg = [(first + fin_head(0, sA1), 0, 17)]
        for u in range(3):
            stg.append((fin_part(0, 2 * u, 16 + 16 * u, sA1) + fin_part(0, 2 * u + 1, 24 + 16 * u, sA1), 12 * u + 17, min(12 * u + 29, 48)))
        step(1, 3, 0, 0, 0, 0, pre_out=False, staged=stg, extra_vm=W17_)
        a("s_nop 7")
        for x in fin_part(0, 6, 64, sA1, True) + fin_part(0, 7, 72, sA1, True): a(x)
    final([x for c in range(NE, 8) for x in fin_part(1, c, FT(c), sA0)])
    a("s_branch %s" % lEn)
    a(lI7 + ":")
    step(0, 1, 2, 0, 0, 0, last16=True, extra_vm=W16_, hs=1, hp=1)
    final(fin_head(1, sA0) + [x for c in range(8) for x in fin_part(1, c, FT(c), sA0)])
    a(lEn + ":")
    st_("s17")
    BS, BP, BP0 = 208, 212, 216
    SL = 144; TA = 176; PA = 196; MXl = (240, 241, 242, 243); vPM = 250; OL = 144
    L1 = ["v_add_u32 v246, 14, v%d" % vU, "v_mov_b32 v244, 0x5555", "v_mov_b32 v245, 0", "s_cmp_eq_u32 s%d, 0" % sRA, "s_cselect_b32 s%d, -1, 0" % sT2,
          "v_lshlrev_b64 v[244:245], v246, v[244:245]", "v_alignbit_b32 v244, v245, v244, 12", "v_not_b32 v244, v244"]
    L1 += ["v_bfe_i32 v%d, v244, %d, 1" % (BS + r, 16 + r) for r in range(4)] + ["v_bfe_i32 v%d, v244, %d, 1" % (BP + r, r) for r in range(4)]
    L1 += ["v_or_b32 v%d, s%d, v%d" % (BP0 + r, sT2, BP + r) for r in range(4)]
    L1 += ["v_and_b32 v%d, v%d, v%d" % (BS + r, vNEG, BS + r) for r in range(12)]
    L1 += ["v_and_b32 v244, 1, v0", "v_lshlrev_b32 v244, 4, v244", "v_mov_b32 v245, 0xffff", "v_lshlrev_b32 v%d, v244, v245" % vPM, "s_waitcnt vmcnt(40)"]
    for e in range(2):
        for tq in range(2):
            d = SL + (2 * e + tq) * 8
            L1.append("%s %s, %s, %s, %s" % (MFH, vr(d, 4), ar((AF[4], AF[2])[tq] + 2 * e, 2), ar(AF[tq] + 2 * e, 2), vr((BP0, BP)[tq], 4)))
            L1.append("%s %s, %s, %s, %s" % (MFH, vr(d + 4, 4), ar(AF[2 + tq] + 2 * e, 2), ar(AF[tq] + 2 * e, 2), vr(BS, 4)))
    L2 = ["v_max_f32 v%d, v%d, v%d" % (TA + j, SL + 2 * j, SL + 2 * j + 1) for j in range(16)]
    for n in range(4): L2 += maxtree(MXl[n], [TA + 4 * n + j for j in range(4)])
    L2 += xlane("v_max_f32", MXl, MXt)
    L2 += ["v_sub_f32 v%d, v%d, v%d" % (TA + j, TA + j, MXl[j // 4]) for j in range(16)]
    L2 += ["v_exp_f32 v%d, v%d" % (TA + j, TA + j) for j in range(16)]
    L2 += ["v_cvt_pk_bf16_f32 v%d, v%d, v%d" % (TA + j, TA + j, TA + j) for j in range(16)]
    L2 += ["v_and_b32 v%d, v%d, v%d" % (TA + j, vPM, TA + j) for j in range(16)]
    L2 += ["v_accvgpr_read_b32 v%d, a%d" % (246 + t, Q + 36 + t) for t in range(2)]
    for n in range(4): L2.append("%s %s, %s, %s, 0" % (MF16, vr(OL + 16 + 4 * n, 4), vr(ONES, 4), vr(TA + 4 * n, 4)))
    for e in range(2):
        L2.append("%s %s, %s, %s, 0" % (MFH, vr(OL + 4 * e, 4), ar(AF[7 + e] + 2, 2), vr(TA + 8 * e, 2)))
        L2.append("%s %s, %s, %s, 0" % (MF16, vr(OL + 8 + 4 * e, 4), ar(AF[5 + e], 4), vr(TA + 8 * e + 4, 4)))
    for e in range(2): L2.append("%s %s, %s, %s, %s" % (MFH, vr(OL + 4 * e, 4), ar(AF[5 + e], 2), vr(TA + 8 * e + 2, 2), vr(OL + 4 * e, 4)))
    L2 += ["s_mul_i32 s%d, s%d, %d" % (sA0, sRA, CROW), "s_lshl_b32 s%d, s%d, 11" % (sA1, sHP), "s_add_u32 s%d, s%d, s%d" % (sA0, sA0, sA1), "s_add_u32 s%d, s%d, 0x%x" % (sA0, sA0, OFF_C + 256 * 1024)]
    L2 += ["v_rcp_f32 v%d, v%d" % (MXl[n], OL + 16 + 4 * n) for n in range(4)]
    L2 += ["v_mul_f32 v%d, v%d, v%d" % (MXl[n], MXl[n], 246 + n % 2) for n in range(4)]
    for tq in range(2):
        for e in range(2): L2 += ["v_mul_f32 v%d, v%d, v%d" % (OL + 8 * tq + 4 * e + j, MXl[2 * e + tq], OL + 8 * tq + 4 * e + j) for j in range(4)]
        L2 += ["v_cvt_pk_bf16_f32 v%d, v%d, v%d" % (PA + 4 * tq + j, OL + 8 * tq + 2 * j, OL + 8 * tq + 2 * j + 1) for j in range(4)]
    LST = ["buffer_store_dwordx4 %s, v%d, s[%d:%d], s%d offen offset:%d sc1" % (vr(PA + 4 * tq, 4), vK, SV, SV + 3, sA0, tq * 1024) for tq in range(2)]
    for x in WRS + L1: a(x)
    SOUT = 4; sQ, sOUT = 26, 28
    vA, vW = (2, 3), (4, 5, 14, 15); ACC, FP = 16, 80
    srd(a, SOUT, 100, 2048 * 1024)
    a("s_lshr_b32 s%d, s%d, 3" % (sQ, sH))
    a("s_and_b32 s%d, s%d, 1\ns_lshl_b32 s%d, s%d, 1\ns_and_b32 s%d, s%d, 1\ns_add_u32 s%d, s%d, s%d\ns_lshl_b32 s%d, s%d, 12" % (sT0, sWV, sT0, sT0, sT1, sQ, sT2, sT0, sT1, sT0, sT2))
    a("v_add_u32 v%d, s%d, v%d\nv_xor_b32 v%d, 4096, v%d" % (vA[0], sT0, vK, vA[1], vA[0]))
    a("v_lshrrev_b32 v9, 2, v0\nv_and_b32 v8, 3, v9\nv_bfe_u32 v7, v0, 4, 1\nv_and_b32 v10, 2, v0\nv_or_b32 v7, v7, v10\nv_and_b32 v10, 1, v0\nv_lshlrev_b32 v10, 3, v10")
    a("s_and_b32 s%d, s%d, 2\ns_lshr_b32 s%d, s%d, 1\ns_add_u32 s%d, s%d, s%d\nv_xor_b32 v8, s%d, v8" % (sT0, sWV, sT1, sQ, sT0, sT0, sT1, sT0))
    a("v_lshl_or_b32 v8, v8, 2, v7\nv_lshlrev_b32 v8, 4, v8\nv_lshl_add_u32 v8, v9, 8, v8\nv_add_u32 v%d, v8, v10" % vW[0])
    a("v_xor_b32 v%d, 16, v%d\nv_xor_b32 v%d, 64, v%d\nv_xor_b32 v%d, 80, v%d" % (vW[1], vW[0], vW[2], vW[0], vW[3], vW[0]))
    a("s_and_b32 s%d, s%d, 3\ns_lshl_b32 s%d, s%d, 2\ns_add_u32 s%d, s%d, s%d\ns_lshl_b32 s%d, s%d, 6" % (sT1, sH, sT1, sT1, sT1, sT1, sT0, sOUT, sT1))
    a("s_lshl_b32 s%d, s%d, 2\ns_add_u32 s%d, s%d, s%d\ns_lshl_b32 s%d, s%d, 15\ns_add_u32 s%d, s%d, s%d" % (sT0, sRBK, sT0, sT0, sT2, sT0, sT0, sOUT, sOUT, sT0))
    a("v_and_b32 v6, 15, v0\nv_lshlrev_b32 v6, 10, v6\nv_lshrrev_b32 v7, 4, v0\nv_lshl_add_u32 v6, v7, 4, v6")
    a("v_min_u32 v9, 1, v0\nv_lshlrev_b32 v9, 29, v9\nv_mov_b32 v10, 1\nv_and_b32 v8, 7, v0\nv_lshlrev_b32 v8, 2, v8\nv_and_b32 v11, 12, v8")
    def signal_wait(sown, vo, pre):
        lp, lo_ = a.label("xpoll"), a.label("xok")
        a("s_waitcnt vmcnt(0)\ns_barrier\ns_cmp_lg_u32 s%d, 0\ns_cbranch_scc1 %s_s" % (sWV, lo_))
        a("buffer_store_dword v10, v9, s[%d:%d], s%d offen sc1\n%s_s:" % (SO, SO + 3, sown, lo_))
        for x in pre: a(x)
        a("s_cmp_lg_u32 s%d, 0\ns_cbranch_scc1 %s" % (sWV, lo_))
        a("s_and_b32 s%d, s%d, 0xffffff80\ns_mov_b32 s%d, 0x80000\n%s:" % (sT0, sown, sT1, lp))
        a("buffer_load_dword v12, v%d, s[%d:%d], s%d offen sc1\ns_waitcnt vmcnt(0)\nv_cmp_gt_u32 vcc, 1, v12\ns_cbranch_vccz %s" % (vo, SO, SO + 3, sT0, lo_))
        a("s_sleep %d\ns_sub_u32 s%d, s%d, 1\ns_cmp_lg_u32 s%d, 0\ns_cbranch_scc1 %s\n%s:" % (SLP, sT1, sT1, sT1, lp, lo_))
        a("s_waitcnt vmcnt(0)\ns_barrier")
    a("s_cmp_eq_u32 s%d, 0\ns_cselect_b32 s%d, 2, 0\ns_cselect_b32 s%d, 0, 0x20000000\nv_add_u32 v192, s%d, v8\nv_or_b32 v193, s%d, v9\nv_mov_b32 v194, 2\ns_and_b32 s%d, s%d, 0xffffff80" % (sWV, sG1, sT0, sT0, sT0, sG2, sFG))
    for x in L2[:LSPL]: a(x)
    signal_wait(sFG, 8, nt(a_dma(0) + a_dma(1)) + L2[LSPL:])
    st_("sync")
    for x in nt(a_dma(2) + a_dma(3)) + LST: a(x)
    curA, curW = [0], [0]
    def preads(u):
        st, us = u // 2, u % 2
        L = []
        def win(base, cur, regs_):
            w_ = base // 65536
            if w_ != cur[0]:
                d = (w_ - cur[0]) * 65536
                for r in regs_: L.append((("v_add_u32 v%d, 0x%x, v%d" % (r, d, r)) if d > 0 else ("v_subrev_u32 v%d, 0x%x, v%d" % (r, -d, r)), None))
                cur[0] = w_
            return base % 65536
        oa = win(ARING[st % 4], curA, vA); ow = win(WRING[st % 6], curW, vW)
        tr = lambda n: [("ds_read_b64_tr_b16 %s, v%d offset:%d" % (freg(u, 4 + n, 2 * r_, 2), vW[n], ow + us * 8192 + r_ * 4096), 4 + n) for r_ in range(2)]
        ac = [("ds_read_b128 %s, v%d offset:%d" % (freg(u, n), vA[n // 2], oa + us * 2048 + (n % 2) * 1024), n) for n in range(4)]
        if u >= 36 - ND: return L + tr(2) + ac + tr(3) + tr(0) + tr(1)
        return L + tr(0) + ac + tr(1) + tr(2) + tr(3)
    def freg(u, f, o=0, n=4):
        if u >= 36 - ND and f in (0, 1, 4, 5): return ar(16 * (u - 36 + ND) + 4 * (0, 1, 0, 0, 2, 3)[f] + o, n)
        return vr(FP + 32 * (u % 2) + 4 * f + o, n)
    def pm(u, wn, n):
        acc = vr(ACC + ((n // 2) + 2 * (wn // 2)) * 16 + (n % 2) * 8 + (wn % 2) * 4, 4)
        return "%s %s, %s, %s, %s" % (MF16, acc, freg(u, 4 + wn), freg(u, n), "0" if u == 0 else acc)
    Mp = []; u0 = []; fu = []; late = []; wpts = []
    for u in range(36):
        u0.append(len(Mp)); d_ = {}
        seq = [(wn, n) for wn in range(4) for n in range(4)]
        if u >= 36 - ND:
            late += [pm(u, wn, n) for wn, n in seq if wn < 2 and n < 2]
            seq = [(wn, n) for wn in (2, 3) for n in range(4)] + [(wn, n) for wn in (0, 1) for n in (2, 3)]
        for wn, n in seq:
            d_.setdefault(4 + wn, len(Mp)); d_.setdefault(n, len(Mp)); Mp.append(pm(u, wn, n))
        fu.append(d_); wpts += [u0[u], u0[u] + 8]
    SP_ = Sched(Mp); SP_.backlog = 10
    R0 = [(x, None if f is None else fu[0][f]) for x, f in preads(0)]
    for x, _ in R0: a(x)
    for u in range(1, 36):
        t0 = u0[u - 1] + (PB if u % 2 == 0 else 0)
        SP_.rq += [(x, t0, t0, None if f is None else fu[u][f]) for x, f in preads(u)]
    bpos = {st: u0[2 * st - 1] + PB for st in range(1, 18)}
    for st, b in bpos.items(): SP_.bars[b] = st
    SP_.waitpts = wpts
    SP_.place_reads()
    for g_ in range(SP_.n):
        for u_ in SP_.use[g_].values():
            if u_ is not None:
                st = max(k for k in range(36) if u0[k] <= u_) // 2
                assert g_ < bpos.get(st + 1, 9999), (g_, u_)
    for st in range(1, 18):
        b = bpos[st]
        G = []
        if st == 5: G.append("buffer_store_dword v194, v193, s[%d:%d], s%d offen sc1" % (SO, SO + 3, sFG))
        if st == 10: G.append(poll_load(4) + " ; need:13")
        if st + 3 < 18: G += a_dma(st + 3)
        if st + 5 < 18: G += w_dma(st + 5)
        SP_.place(G, b, bpos.get(st + 1, SP_.n) - 2, slack=30)
    nb_ = [0]
    def pbar(w):
        nb_[0] += 1
        a(w)
        if nb_[0] == 13: poll_check(4)
        if not XP & 4: a("s_barrier")
    SP_.emit(a, pbar, [u_ for _, u_ in R0], [2] * 4 + [3] * 4 + [5] * 2)
    if VERB: print("P over", SP_.over)
    st_("pm")
    a("s_nop 3")
    for j in (2, 3, 1):
        a("s_xor_b32 s%d, s%d, %d\ns_mul_i32 s%d, s%d, 49152\ns_add_u32 s%d, s%d, s%d\ns_add_u32 s%d, s%d, %d" % (sT0, sQ, j, sT0, sT0, sT0, sT0, sXO, sT0, sT0, (j - 1) * 16384))
        for r in range(8): a("v_cvt_pk_bf16_f32 v%d, v%d, v%d" % (FP + 8 * j + r, ACC + j * 16 + 2 * r, ACC + j * 16 + 2 * r + 1))
        for c in range(2): a("buffer_store_dwordx4 %s, v%d, s[%d:%d], s%d offen offset:%d sc1" % (vr(FP + 8 * j + 4 * c, 4), vK, SO, SO + 3, sT0, c * 1024))
    for x in late: a(x)
    signal_wait(sFX, 11, [])
    st_("xs")
    a("s_mov_b32 s%d, s%d" % (sT0, sXR))
    for j in range(1, 4):
        for c in range(2): a("buffer_load_dwordx4 %s, v%d, s[%d:%d], s%d offen offset:%d sc1" % (vr(ACC + j * 16 + 4 * c, 4), vK, SO, SO + 3, sT0, c * 1024))
        if j < 3: a("s_add_u32 s%d, s%d, 16384" % (sT0, sT0))
    for j in range(1, 4):
        a("s_waitcnt vmcnt(%d)" % (2 * (3 - j)))
        for r in range(8):
            t = ACC + j * 16 + r
            a("v_lshlrev_b32 v12, 16, v%d\nv_and_b32 v13, 0xffff0000, v%d\nv_add_f32 v%d, v%d, v12\nv_add_f32 v%d, v%d, v13" % (t, t, ACC + 2 * r, ACC + 2 * r, ACC + 2 * r + 1, ACC + 2 * r + 1))
    for r in range(8): a("v_cvt_pk_bf16_f32 v%d, v%d, v%d" % (FP + r, ACC + 2 * r, ACC + 2 * r + 1))
    a("s_nop 1")
    for pr in range(2): a("v_permlane16_swap_b32 v%d, v%d\nv_permlane16_swap_b32 v%d, v%d" % (FP + 4 * pr, FP + 4 * pr + 2, FP + 4 * pr + 1, FP + 4 * pr + 3))
    a("buffer_store_dwordx4 %s, v6, s[%d:%d], s%d offen %s\ns_add_u32 s%d, s%d, 16384" % (vr(FP, 4), SOUT, SOUT + 3, sOUT, OST, sOUT, sOUT))
    a("buffer_store_dwordx4 %s, v6, s[%d:%d], s%d offen %s" % (vr(FP + 4, 4), SOUT, SOUT + 3, sOUT, OST))
    if HOLD:
        ia, ib, wg = HOLD; lp = a.label("hold")
        a("s_waitcnt lgkmcnt(0)\ns_cmp_lg_u32 s2, %d\ns_cbranch_scc1 %s" % (wg, done))
        a("s_sub_u32 s22, s%d, s%d\ns_min_u32 s22, s22, 0x2000\ns_add_u32 s22, s22, 10000" % (74 + 4 * ib, 74 + 4 * ia))
        a("%s:\ns_memrealtime s[24:25]\ns_waitcnt lgkmcnt(0)\ns_sub_u32 s24, s24, s74\ns_cmp_lt_u32 s24, s22\ns_cbranch_scc1 %s" % (lp, lp))
    else: T.dump(SO, sWV, 4)
    a(done + ":\ns_endpgm")
    a(lRare + ":")
    for (ls, lb, kind) in spins:
        lp = a.label("sp")
        a(ls + ":\ns_mov_b32 s%d, 0x40000\n%s:" % (sT2, lp))
        a("s_sleep 8\n" + poll_load(kind) + "\ns_waitcnt vmcnt(0)\n%s\ns_cbranch_vccz %s" % (poll_cmp(kind), lb))
        a("s_sub_u32 s%d, s%d, 1\ns_cmp_lg_u32 s%d, 0\ns_cbranch_scc1 %s\ns_branch %s" % (sT2, sT2, sT2, lp, lb))
    for (ls, lb) in rels:
        a("%s:\nbuffer_wbl2 sc1\ns_waitcnt vmcnt(0)\ns_branch %s" % (ls, lb))
    sRET = 44
    for (p, sm, qk, hs), (lr, users) in rare.items():
        for rid, (lj, lb) in enumerate(users): a("%s:\ns_mov_b32 s%d, %d\ns_branch %s" % (lj, sRET, rid, lr))
        a(lr + ":\ns_nop 7\ns_nop 7")
        for qb in range(4 // sm):
            cur = qregs(S[p], sm, qb, hs); d, f = vX, vX + 2
            if not cur: continue
            for x in maxtree(d, cur) + xlane("v_max_f32", [d], [d + 1]): a(x)
            a("v_max_f32 v%d, 0, v%d\nv_exp_f32 v%d, -v%d" % (d, d, f, d))
            nx = qregs(S[1 - p], qk, qb) if qb < 4 // qk else []
            for r in cur + [NM + 4 * qb + j for j in range(4)] + nx: a("v_sub_f32 v%d, v%d, v%d" % (r, r, d))
            a("v_mul_f32 v%d, v%d, v%d" % (vL[qb], vL[qb], f))
            for j in range(0, 32, 4):
                for q in range(4): a("v_accvgpr_read_b32 v%d, a%d" % (TM + q, O + qb * 32 + j + q))
                for q in range(4): a("v_mul_f32 v%d, v%d, v%d" % (TM + q, TM + q, f))
                for q in range(4): a("v_accvgpr_write_b32 a%d, v%d" % (O + qb * 32 + j + q, TM + q))
        for q in live(sm, hs):
            for n in range(8 * q, 8 * q + 8): a(ex(p, n))
            for j in range(4 * q, 4 * q + 4): a(cv(p, j))
        a("s_nop 1")
        for q in live(sm, hs): a(summ(p, sm, q))
        a("s_nop 7")
        for rid, (lj, lb) in enumerate(users):
            if rid < len(users) - 1: a("s_cmp_eq_u32 s%d, %d\ns_cbranch_scc1 %s" % (sRET, rid, lb))
            else: a("s_branch %s" % lb)
    a.add_kernel(name, 512, 102, 256)
    a.launch(name, 256, 256, 163840)
```

```python
def kind(x):
    op = x.split()[0]
    if op.startswith("ds_"): return "ds"
    if op.startswith("buffer_store") or op.startswith("global_store"): return "st"
    if op.startswith("buffer_") or op.startswith("global_"): return "vm"
    if op.startswith("s_"): return "s"
    if op in ("v_exp_f32", "v_rcp_f32"): return "t"
    return "v"
C = dict(ds=8, st=24, vm=12, s=4, t=8, v=4)
def order(items):
    heads = {}
    for k, (s, x) in enumerate(items): heads.setdefault(s, k)
    best = None
    for pref in ("ds", "vm", "st", "s"):
        c = [k for k in heads.values() if kind(items[k][1]) == pref]
        if c: best = min(c); break
    if best is None: return list(items)
    return [items[best]] + [it for k, it in enumerate(items) if k != best]
def cost(items):
    if not items: return 0
    o = order(items)
    return sum(C[kind(x)] for _, x in o) + (4 if kind(o[0][1]) in "vt" else 0)
class Gaps:
    def __init__(self, caps):
        self.cap = caps; self.n = len(caps); self.g = [[] for _ in caps]; self.sid = 0
    def add(self, k, s, x): self.g[k].append((s, x))
    def newstream(self): self.sid += 1; return self.sid
    def room(self, k): return max(0, self.cap[k] - max(4, cost(self.g[k])))
    def place(self, stream, lo, hi, slack=16, ahead=0):
        st = [g if isinstance(g, list) else [g] for g in stream]
        if not st: return []
        hi = min(hi, self.n); lo = max(0, min(lo, hi - 1)); s = self.newstream()
        if all(kind(x) == "s" for g in st for x in g):
            i = 0; pos = []
            for k in range(lo, hi):
                tgt = len(st) * (k + 1 - lo) / (hi - lo)
                while i < len(st):
                    c0 = max(cost(self.g[k]), self.cap[k]); c1 = cost(self.g[k] + [(s, x) for x in st[i]])
                    if k == hi - 1 or (i < tgt + 3 and c1 <= c0) or i + 6 < tgt:
                        for x in st[i]: self.add(k, s, x)
                        i += 1; pos.append(k)
                    else: break
            return pos
        w = [sum(C[kind(x)] for x in g) for g in st]
        tot = sum(w); free = sum(self.room(k) for k in range(lo, hi)); seen = 0; done = 0; i = 0; pos = []
        for k in range(lo, hi):
            seen += self.room(k)
            tgt = tot * min(1.0, seen / max(free, 1))
            while i < len(st):
                fits = cost(self.g[k] + [(s, x) for x in st[i]]) <= self.cap[k]
                if k == hi - 1 or (done < tgt + ahead and fits) or done + slack < tgt:
                    for x in st[i]: self.add(k, s, x)
                    done += w[i]; i += 1; pos.append(k)
                else: break
        return pos
    def over(self): return sum(max(0, cost(self.g[k]) - self.cap[k]) for k in range(self.n))
    def out(self, k): return [x for _, x in order(self.g[k])]
```

```python
from gen_common import *
from sched import Sched, isvm
from pack import Gaps, cost as gcost
import re as _re
MF16 = "v_mfma_f32_16x16x32_bf16"
MFH = "v_mfma_f32_16x16x16_bf16"
pX, pWQKV, pWO0, pC, pWQ, pWUK, pWUV, pBWO, pGATE, pDBG, pWS = 36, 38, 40, 44, 46, 48, 50, 52, 54, 58, 60
pWO = 58
NEG = "0xff800000"
THRESH = fbits(2.0 ** 48)
WSL = (98304, 131072)
LDS_G = WSL[0] + 24576
def aslot(g): return ((g + 2) % 3) * 32768
def flat(G): return [x for g in G for x in (g if isinstance(g, list) else [g])]
def soft(G):
    out = []
    for g in G:
        if any(x.startswith("s_cselect") for x in g):
            k = [j for j, x in enumerate(g) if x.startswith("s_cmp") or x.startswith("s_bitcmp")][0]
            out += g[:k] + [g[k:]]
        else: out += g
    return out

def gen2(a, name="p1_kernel", ts=False, PF=1, PD=8, WP=2, TS2=0, TS3=0, DFR=12, LSPL=110, SLP=4, QSL=(4, 6, 5), XSL=3, PDW=4, GPUB=11, VERB=0, NE=8, AP=(("c", 1), "cu", None, "xu"), FORCE=0, ST0=4, EXT=0, ND=10, OST="", PKV=1, XQ=0, XP=0, T15=1, WSP=(0, 4, 2), CR2=0, HOLD=None, CM=1, PB=2,
         STAMPS=("start", "q", "attn", "mid", "s17")):
    XL2 = 0; PRE0 = 0; endlabel = None; SENT = 0
    a.begin_kernel(name)
    T = TS(a, ts, 0, base=72)
    def st_(nm):
        if nm in STAMPS: T.stamp(STAMPS.index(nm))
    done = a.label("fdone")
    lAttn, lRare = a.label("attn"), a.label("rarecode")
    sWV = 3
    SA, SW, SX, SO, SD = 4, 8, 12, 16, 40
    sH, sI, sT0, sT1, sT2 = 20, 21, 22, 23, 24
    sAS, sAS2, sWS, sXS, sAM, sWM, sXM, sCNT, sOK, sDS, sSC = 25, 26, 27, 28, 29, 30, 31, 32, 33, 34, 35
    sQL, sQS, sU, sOA, sAD, sWD, sOJ, sVD, sFA, sGR = 92, 93, 94, 95, 96, 97, 56, 57, 63, 99
    sKO, sVO, sW4, sW8, sTH, sT = 48, 49, 50, 51, 54, 32
    vL16 = 1
    vAO, vWO, vXO = (2, 3, 4, 5), (6, 7, 8, 9), (10, 11)
    vAR, vWR, vXR = (12, 13), tuple(range(14, 22)), (22, 23, 24)
    vGR, vGA2, GC = 25, (26, 27), 92
    QS = (28, 44); WR, NWR = 60, 8; TT, PK = 96, 104
    KS = (128, 160)
    vFO, vONE, vPFD, vTS, vW12, vPL, vPLO = 120, 121, 122, 123, 124, 125, 126
    sWS2, sOK2, sHL = 62, 98, 55
    QA = 128
    t2 = [0]
    def bar(waitstr):
        if TS2:
            n = t2[0]; t2[0] += 1
            if n > 0: a("v_writelane_b32 v123, s72, %d\nv_writelane_b32 v123, s74, %d" % (2 * n - 2, 2 * n - 1))
            a("s_memtime s[72:73]")
        a(waitstr + "\ns_barrier")
        if TS2: a("s_memtime s[74:75]")
    a("s_cmp_ge_u32 s2, 256\ns_cbranch_scc1 %s" % done)
    st_("start")
    a("s_load_dwordx16 s[36:51], s[0:1], 0\ns_load_dwordx8 s[52:59], s[0:1], 64\ns_load_dwordx2 s[60:61], s[0:1], 96")
    a("v_lshrrev_b32 v30, 6, v0\nv_and_b32 v0, 63, v0\nv_readfirstlane_b32 s%d, v30" % sWV)
    a("s_and_b32 s%d, s2, 7\ns_lshl_b32 s%d, s%d, 2\ns_lshr_b32 s%d, s2, 3\ns_and_b32 s%d, s%d, 3\ns_add_u32 s%d, s%d, s%d" % (sH, sH, sH, sT0, sT0, sT0, sH, sH, sT0))
    a("s_lshr_b32 s%d, s2, 5" % sI)
    a("v_lshlrev_b32 v%d, 4, v0" % vL16)
    a("v_lshrrev_b32 v30, 3, v0\nv_lshrrev_b32 v31, 4, v0\nv_and_b32 v32, 7, v0")
    a("v_xor_b32 v33, v31, v32\nv_lshlrev_b32 v33, 4, v33\nv_lshl_add_u32 v%d, v30, 10, v33" % vAO[0])
    a("v_add_u32 v%d, %d, v%d\nv_xor_b32 v33, 64, v%d\nv_add_u32 v%d, %d, v33\nv_add_u32 v%d, %d, v33" % (vAO[2], 2 * 7168, vAO[0], vAO[0], vAO[1], 7168, vAO[3], 3 * 7168))
    a("v_and_b32 v33, 15, v0\nv_lshlrev_b32 v34, 2, v31\nv_xor_b32 v33, v33, v34\nv_lshlrev_b32 v33, 4, v33\nv_lshl_add_u32 v%d, v31, 13, v33" % vWO[0])
    a("v_add_u32 v%d, %d, v%d\nv_xor_b32 v33, 32, v%d\nv_add_u32 v%d, %d, v33\nv_add_u32 v%d, %d, v33" % (vWO[1], 31744, vWO[0], vWO[0], vWO[2], 2 * 31744, vWO[3], 3 * 31744))
    a("s_sub_u32 s%d, 15, s%d\ns_bitcmp1_b32 s%d, 0\ns_cselect_b32 s%d, s%d, s%d\ns_lshl_b32 s%d, s%d, 1\ns_lshr_b32 s%d, s%d, 1\ns_add_u32 s%d, s%d, s%d" % (sT0, sI, sWV, sT0, sT0, sI, sT0, sT0, sT1, sWV, sT0, sT0, sT1))
    a("s_lshl_b32 s%d, s%d, 16\ns_add_u32 s%d, s%d, 32768" % (sAS, sT0, sAS2, sAS))
    a("s_lshl_b32 s%d, s%d, 13\ns_mov_b32 s%d, s%d" % (sAM, sWV, sWM, sAM))
    a("s_and_b32 s%d, s%d, 1\ns_lshl_b32 s%d, s%d, 18\ns_lshl_b32 s%d, s%d, 8\ns_add_u32 s%d, s%d, s%d" % (sT0, sWV, sT0, sT0, sWS, sH, sWS, sWS, sT0))
    a("s_and_b32 s%d, s2, 31\ns_add_u32 s%d, s%d, 0x20000" % (sU, sWS2, sWS))
    a("v_and_b32 v33, 15, v0\nv_lshrrev_b32 v34, 1, v33\nv_xor_b32 v34, v34, v31\nv_lshlrev_b32 v34, 4, v34\nv_lshl_add_u32 v40, v33, 7, v34")
    a("s_and_b32 s%d, s%d, 1\ns_lshl_b32 s%d, s%d, 14\ns_add_u32 s%d, s%d, %d" % (sT0, sWV, sT0, sT0, sT0, sT0, aslot(0)))
    a("v_add_u32 v%d, s%d, v40\nv_xor_b32 v%d, 64, v%d" % (vAR[0], sT0, vAR[1], vAR[0]))
    a("v_lshrrev_b32 v35, 2, v0\nv_and_b32 v35, 3, v35\nv_lshl_add_u32 v36, v31, 3, v35")
    a("v_bfe_u32 v37, v0, 1, 1\nv_and_b32 v34, 1, v31\nv_lshl_add_u32 v37, v34, 1, v37\nv_and_b32 v38, 1, v0\nv_lshlrev_b32 v38, 3, v38")
    a("v_lshlrev_b32 v39, 2, v35\nv_xor_b32 v39, v39, v37\nv_lshlrev_b32 v39, 4, v39\nv_lshl_add_u32 v39, v36, 8, v39")
    a("s_lshr_b32 s%d, s%d, 1\ns_lshl_b32 s%d, s%d, 14\ns_add_u32 s%d, s%d, %d\nv_add3_u32 v39, v39, v38, s%d" % (sWD, sWV, sWD, sWD, sT0, sWD, WSL[0], sT0))
    for k in range(8): a("v_xor_b32 v%d, %d, v39" % (vWR[k], 32 * k))
    a("s_waitcnt lgkmcnt(0)")
    a("s_mov_b32 s100, s56\ns_mov_b32 s101, s57")
    srd(a, SA, pC, 0x200000)
    a("s_cmp_lt_u32 s%d, 2\ns_cselect_b32 s%d, s%d, s%d\ns_cselect_b32 s%d, s%d, s%d\ns_mov_b32 s%d, 0x400000\ns_mov_b32 s%d, 0x20000" % (sWV, SW, pWUK, pWUV, SW + 1, pWUK + 1, pWUV + 1, SW + 2, SW + 3))
    def dgrp(m0s, m0i, vo, srd_, so, stp, nd):
        G = ["s_add_u32 m0, s%d, %d" % (m0s, m0i)]
        G += ["buffer_load_dwordx4 v%d, s[%d:%d], s%d offen offset:%d lds ; need:%d" % (v, srd_, srd_ + 3, so, n * 1024, nd) for n, v in enumerate(vo)]
        G.append("s_add_u32 s%d, s%d, %d" % (so, so, stp))
        return G
    def fixm0(G):
        out = []
        for k, x in enumerate(G):
            out.append(x)
            if x.startswith("s_add_u32 m0"):
                if len(out) > 1 and out[-2].startswith("s_add_u32 s"): out[-1], out[-2] = out[-2], out[-1]
                else: out.append("s_nop 0")
        return out
    def dma_act(g): return fixm0(dgrp(sAM, aslot(g), vAO, SA, sAS, 128, g) + dgrp(sAM, aslot(g) + 4096, vAO, SA, sAS2, 128, g))
    def dma_w(g):
        G = dgrp(sWM, WSL[g % 2], vWO, SW, sWS, 0x80000, g)
        if g < 8: G += dgrp(sWM, WSL[g % 2] + 4096, vWO, SW, sWS2, 0x80000, g)
        else: G += dgrp(sXM, WSL[g % 2] + 16384, vXO, SX, sXS, 64 * 3072, g)
        return fixm0(G)
    st_("d0")
    D0 = [dgrp(sWM, WSL[0], vWO, SW, sWS, 0x80000, 0), dgrp(sAM, aslot(0), vAO, SA, sAS, 128, 0), dgrp(sWM, WSL[0] + 4096, vWO, SW, sWS2, 0x80000, 0), dgrp(sAM, aslot(0) + 4096, vAO, SA, sAS2, 128, 0)]
    for x in fixm0(flat(D0[:ST0])): a(x.split(";")[0])
    st_("d1")
    NSL = max(len(AP), max(QSL) + 1)
    def preg(k): return 192 + 2 * k
    def pf(k): return "global_load_dword v122, %s, off" % vr(preg(k), 2)
    def pfa(k, base, vo, so, imm=0):
        r = preg(k)
        a("s_add_u32 s%d, s%d, %d\nv_mov_b32 v%d, s%d\nv_add_u32 v%d, s%d, v%d" % (sT2, so, imm, r + 1, base + 1, r, sT2, vo))
        a("v_add_co_u32 v%d, vcc, s%d, v%d\ns_nop 1\nv_addc_co_u32 v%d, vcc, 0, v%d, vcc" % (r, base, r, r + 1, r + 1))
    def pfnone(k): a("v_mov_b32 v%d, s%d\nv_mov_b32 v%d, s%d" % (preg(k), pGATE, preg(k) + 1, pGATE + 1))
    def pf0():
        if ST0 == 4: a(pf(0))
    if PF:
        l1, l3, le = a.label("pf1"), a.label("pf3"), a.label("pfe")
        a("s_cmp_eq_u32 s%d, 1\ns_cbranch_scc1 %s\ns_cmp_eq_u32 s%d, 3\ns_cbranch_scc1 %s" % (sWV, l1, sWV, l3))
        a("s_lshr_b32 s%d, s2, 3\ns_lshl_b32 s%d, s%d, 16\ns_lshl_b32 s%d, s%d, 6\ns_add_u32 s%d, s%d, s%d\nv_lshlrev_b32 v26, 10, v0" % (sT0, sT0, sT0, sT1, sWV, sT1, sT0, sT1))
        def one(k):
            e = AP[k] if k < len(AP) else None
            if e is None: pfnone(k)
            elif isinstance(e, tuple): pfa(k, pC if e[0] == "c" else pX, 26, sT1, 128 * e[1])
            else: pfa(k, pC if e == "cu" else pX, 27, sT0, 0)
        if not isinstance(AP[0], str): one(0); pf0()
        a("v_and_b32 v27, 31, v0\nv_lshlrev_b32 v27, 7, v27\ns_lshl_b32 s%d, s2, 13\ns_lshl_b32 s%d, s%d, 11\ns_add_u32 s%d, s%d, s%d" % (sT0, sCNT, sWV, sT0, sT0, sCNT))
        if isinstance(AP[0], str): one(0); pf0()
        for k in range(1, NSL): one(k)
        a("s_branch %s\n%s:" % (le, l1))
        a("v_lshlrev_b32 v26, 13, v30\nv_lshl_add_u32 v26, v32, 7, v26")
        a("s_bitcmp1_b32 s2, 3\ns_cselect_b32 s98, s%d, s%d\ns_cselect_b32 s99, s%d, s%d" % (pWUV, pWUK, pWUV + 1, pWUK + 1))
        a("s_and_b32 s%d, s2, 7\ns_lshl_b32 s%d, s%d, 10\ns_lshr_b32 s%d, s2, 4\ns_and_b32 s%d, s%d, 7\ns_lshl_b32 s%d, s%d, 16\ns_lshl_b32 s%d, s%d, 16" % (sT1, sT1, sT1, sT0, sCNT, sT0, sT0, sT0, sCNT, sCNT))
        a("s_add_u32 s%d, s%d, s%d\ns_add_u32 s%d, s%d, s%d" % (sT0, sT0, sT1, sCNT, sCNT, sT1))
        if PRE0:
            pfnone(0); pf0(); pfa(1, 98, 26, sT0, 4 * 0x80000); pfa(2, 98, 26, sT0, 6 * 0x80000); pfnone(3)
        else:
            pfa(0, 98, 26, sT0, 1 * 0x80000); pf0()
            pfa(1, 98, 26, sT0, 3 * 0x80000); pfa(2, 98, 26, sT0, 5 * 0x80000); pfa(3, 98, 26, sCNT, 7 * 0x80000)
        for k in range(4, NSL): pfnone(k)
        a("s_branch %s\n%s:" % (le, l3))
        lpc = a.label("pc")
        a("s_getpc_b64 s[98:99]\n%s:" % lpc)
        a("s_lshr_b32 s%d, s2, 3\nv_lshlrev_b32 v26, 5, v0\nv_add_u32 v26, s%d, v26\nv_lshlrev_b32 v26, 7, v26\ns_mov_b32 s%d, 0" % (sT0, sT0, sT0))
        a("v_min_u32 v27, %s-%s, v26" % (lAttn, lpc))
        pfa(0, 98, 27, sT0, 0); pf0()
        a("v_lshlrev_b32 v26, 13, v30\nv_lshl_add_u32 v26, v32, 7, v26")
        a("s_lshr_b32 s%d, s2, 3\ns_lshl_b32 s%d, s%d, 16\ns_and_b32 s%d, s2, 7\ns_lshl_b32 s%d, s%d, 10\ns_add_u32 s%d, s%d, s%d" % (sT0, sT0, sT0, sT1, sT1, sT1, sT0, sT0, sT1))
        pfa(QSL[0], pWQ, 26, sT0, 0); pfa(QSL[1], pWQ, 26, sT0, 4 * 0x80000)
        a("s_min_u32 s%d, s%d, 23\ns_lshl_b32 s%d, s%d, 7\ns_mul_i32 s%d, s%d, %d\ns_add_u32 s%d, s%d, s%d\nv_mul_u32_u24 v26, 3072, v0" % (sT0, sU, sT0, sT0, sT1, sI, 64 * 3072, sT0, sT0, sT1))
        pfa(QSL[2], pWQKV, 26, sT0, 0)
        for k in range(1, NSL):
            if k not in QSL: pfnone(k)
        a(le + ":")
    def pfp(p): return [pf(p + 2)] if (PF and p + 2 < NSL) else []
    lpc2 = a.label("pc")
    a("s_getpc_b64 s[0:1]\n%s:" % lpc2)
    srd(a, SO, pWS, WS_SIZE); srd(a, SX, pGATE, 1024)
    a("s_mov_b32 s98, s%d\ns_mov_b32 s99, s%d" % (pWO0, pWO0 + 1))
    srd(a, SD, pDBG, 256)
    a("s_mov_b32 s%d, s98\ns_mov_b32 s%d, s99" % (pWO, pWO + 1))
    DF = []
    def d(t): DF.extend(t.split("\n"))
    d("s_lshl_b32 s%d, s%d, 6\nv_add_u32 v%d, s%d, v0\nv_lshlrev_b32 v%d, 12, v%d\nv_min_u32 v%d, 1, v%d\nv_lshlrev_b32 v%d, 29, v%d" % (sT0, sWV, vFO, sT0, vFO, vFO, vONE, vFO, vONE, vONE))
    d("s_getreg_b32 s%d, hwreg(HW_REG_XCC_ID, 0, 4)\ns_mul_i32 s%d, s%d, s%d\ns_lshl_b32 s%d, s%d, 8\ns_add_u32 s%d, s%d, s%d\ns_lshl_b32 s%d, s%d, 8\ns_add_u32 s%d, s%d, 1" % (sT0, sT1, sT0, sT0, sT1, sT1, sT1, sT1, sT0, sT1, sT1, sFA, sT1))
    d("v_mov_b32 v125, s%d\ns_lshl_b32 s%d, s%d, 3\ns_and_b32 s%d, s2, 7\ns_lshl_b32 s%d, s%d, 2\ns_lshl_b32 s%d, s%d, 2" % (sFA, sFA, sFA, sGR, sGR, sGR, sCNT, sH))
    d("v_and_b32 v126, 31, v0\ns_lshl_b32 s%d, s%d, 12\nv_lshl_add_u32 v126, v126, 2, s%d" % (sT0, sWV, sT0))
    d("s_min_u32 s%d, s%d, 1\ns_lshl_b32 s%d, s%d, 29\nv_and_b32 v124, 7, v0\nv_lshl_add_u32 v124, v124, 2, s%d" % (sT0, sWV, sT0, sT0, sT0))
    d("s_lshl_b32 s%d, s%d, 7\ns_add_u32 s%d, s%d, 0x%x\ns_lshl_b32 s%d, s%d, 2\ns_add_u32 s%d, s%d, s%d" % (sHL, sH, sHL, sHL, OFF_FL + 128 * 128, sU, sI, sU, sU, sHL))
    d("s_lshr_b32 s%d, s2, 3\ns_lshl_b32 s%d, s%d, 2\ns_add_u32 s%d, s%d, s%d\nv_and_b32 v127, 15, v0\nv_lshlrev_b32 v127, 7, v127\nv_add_lshl_u32 v127, v127, s%d, 7" % (sT0, sT0, sT0, sT0, sT0, sWV, sT0))
    d("v_min_u32 v127, %s-%s, v127" % (lRare, lpc2))
    d("v_lshrrev_b32 v39, 1, v35\nv_lshlrev_b32 v39, 2, v39\nv_xor_b32 v39, v39, v37\nv_lshlrev_b32 v39, 4, v39\nv_lshl_add_u32 v39, v36, 7, v39\nv_add_u32 v39, v39, v38\nv_add_u32 v39, %d, v39" % (WSL[0] + 16384))
    for k in range(3): d("v_xor_b32 v%d, %d, v39" % (vXR[k], 32 * k))
    d("s_and_b32 s%d, s%d, 3\ns_and_b32 s%d, s2, 7\ns_lshl_b32 s%d, s%d, 7" % (sT0, sH, sT1, sT1, sT1))
    d("s_lshl_b32 s%d, s%d, 5\ns_add_u32 s%d, s%d, s%d\ns_add_u32 s%d, s%d, %d" % (sT2, sT0, sT2, sT2, sT1, sT2, sT2, 2048 - 64))
    d("s_lshr_b32 s%d, s%d, 1\ns_lshl_b32 s%d, s%d, 10\ns_add_u32 s%d, s%d, s%d\ns_and_b32 s%d, s%d, 1\ns_lshl_b32 s%d, s%d, 6\ns_add_u32 s%d, s%d, s%d" % (sDS, sT0, sDS, sDS, sT1, sT1, sDS, sDS, sT0, sDS, sDS, sT1, sT1, sDS))
    d("v_and_b32 v33, 1, v31\nv_lshlrev_b32 v33, 2, v33\nv_xor_b32 v33, v33, v32\nv_mul_u32_u24 v34, 3072, v30\nv_mov_b32 v36, s%d\nv_mov_b32 v37, s%d\nv_mov_b32 v38, 0x1000000" % (sT1, sT2))
    for n in range(2):
        if n: d("v_xor_b32 v33, 2, v33\nv_add_u32 v34, %d, v34" % (24576 - 1024))
        d("v_cmp_gt_u32 vcc, 4, v33\nv_cmp_gt_u32 s[66:67], 6, v33\nv_lshl_add_u32 v35, v33, 4, v34\nv_cndmask_b32 v39, v37, v36, vcc\nv_cndmask_b32 v39, v38, v39, s[66:67]\nv_add_u32 v%d, v35, v39" % vXO[n])
    d("s_lshl_b32 s%d, s%d, 11\ns_lshl_b32 s%d, s%d, 13\ns_add_u32 s%d, s%d, s%d\ns_add_u32 s%d, s%d, %d" % (sT0, sT0, sT1, sWV, sT0, sT0, sT1, sT0, sT0, aslot(8)))
    d("v_add_u32 v%d, s%d, v40\nv_xor_b32 v%d, 64, v%d\nv_lshlrev_b32 v%d, 4, v31\nv_add_u32 v%d, %d, v%d" % (vGA2[0], sT0, vGA2[1], vGA2[0], vGR, vGR, LDS_G, vGR))
    d("s_lshl_b32 s%d, s%d, 2\ns_add_u32 s%d, s%d, s%d\ns_sub_u32 s%d, 60, s%d\ns_add_u32 s%d, s%d, s%d" % (sT1, sI, sQS, sT1, sWV, sQL, sT1, sQL, sQL, sWV))
    d("s_lshr_b32 s%d, s%d, 1\ns_lshl_b32 s%d, s%d, 5\ns_add_u32 s%d, s%d, s%d\ns_add_u32 s%d, s%d, 44\ns_lshl_b32 s%d, s%d, 19" % (sT0, sWV, sT0, sT0, sT0, sT0, sH, sT0, sT0, sOK, sT0))
    d("s_and_b32 s%d, s%d, 1\ns_lshl_b32 s%d, s%d, 1\ns_add_u32 s%d, s%d, s%d\ns_lshl_b32 s%d, s%d, 14\ns_add_u32 s%d, s%d, s%d" % (sT0, sWV, sT1, sI, sT0, sT0, sT1, sT0, sT0, sOK, sOK, sT0))
    d("s_lshl_b32 s%d, s%d, 16\ns_sub_u32 s%d, %d, s%d\ns_add_u32 s%d, s%d, 8192" % (sT0, sI, sOJ, 60 * 8192 - 4096, sT0, sOK2, sOK))
    d("s_lshl_b32 s%d, s%d, 13\ns_and_b32 s%d, s%d, 1\ns_lshl_b32 s%d, s%d, 14\ns_sub_u32 s%d, s%d, s%d\ns_add_u32 s%d, s%d, %d" % (sT0, sWV, sT1, sWV, sT1, sT1, sAD, sT0, sT1, sAD, sAD, aslot(8) - aslot(7)))
    PLA = "buffer_atomic_add v125, v%d, s[%d:%d], s%d offen sc1" % (vFO, SD, SD + 3, sCNT)

    def ub(j): return ((j + 24) % 32 if j < 8 else j + 8 if j < 16 else j - 16) * 8
    AA = 192
    def wofs(g): return (g % 2) * 32768
    def xa(g, ks, R=vAR):
        if g == 7: return "v_add_u32 v%d, s%d, v%d" % (R[ks], sAD, R[ks])
        d = aslot(g + 1) - aslot(g)
        return ("v_add_u32 v%d, 0x%x, v%d" % (R[ks], d, R[ks])) if d > 0 else ("v_subrev_u32 v%d, 0x%x, v%d" % (R[ks], -d, R[ks]))
    def rd_act(g, ks):
        F = (KS if g < 8 else QS)[ks]
        return ["ds_read_b128 %s, v%d offset:%d" % (vr(F + 4 * n, 4), vAR[ks], n * 2048) for n in range(8 if g < 8 else 4)]
    def rd_w(g, ks, wf, slot):
        r = WR + 4 * (slot % NWR)
        if wf < 8: return ["ds_read_b64_tr_b16 %s, v%d offset:%d" % (vr(r + 2 * rd_, 2), vWR[wf], wofs(g) + ks * 8192 + rd_ * 1024) for rd_ in range(2)]
        if wf < 11: return ["ds_read_b64_tr_b16 %s, v%d offset:%d" % (vr(r + 2 * rd_, 2), vXR[wf - 8], wofs(g) + ks * 4096 + rd_ * 512) for rd_ in range(2)]
        return ["ds_read_b128 %s, v%d offset:%d" % (vr(r, 4), vGR, ((g - 8) * 2 + ks) * 64), "ds_read_b128 %s, v%d" % (vr(GC, 4), vGA2[ks])] + ([xa(g, ks, vGA2)] if g < 15 else [])
    def mfs(g, ks, wf, slot, var):
        w = vr(WR + 4 * (slot % NWR), 4); F = (KS if g < 8 else QS)[ks]; first = (g % 8 == 0 and ks == 0)
        cb, tc = (wf % 8) // 2, wf % 2
        if wf == 11: return ["%s %s, %s, %s, %s" % (MF16, ar(AA + 48, 4), w, vr(GC, 4), "0" if first else ar(AA + 48, 4))]
        M = []
        for n in range(8 if g < 8 else 4):
            rb, tr = n // 2, n % 2
            x = vr(F + 4 * n, 4)
            sw = (var == "V") or wf == 10
            tb, ta = (tc, tr) if sw else (tr, tc)
            if g < 8: acc = ar(ub((rb // 2) * 16 + cb * 4 + (rb % 2) * 2 + tb) + ta * 4, 4)
            elif wf < 8: acc = vr(QA + ((rb * 4 + cb) * 2 + tr) * 8 + tc * 4, 4)
            elif wf < 10: acc = ar(AA + n * 8 + tc * 4, 4)
            else: acc = ar(AA + 32 + n * 4, 4)
            M.append("%s %s, %s, %s, %s" % (MF16, acc, x if sw else w, w if sw else x, "0" if first else acc))
        return M
    def order(g, var):
        nw = list(range(8 if g < 8 else 12))
        if g == 7: return [(ks, 2 * cb + t) for cb in range(4) for ks in range(2) for t in range(2)]
        if g == 15:
            return [(ks, wf) for ks in range(2) for wf in (8, 9, 10, 0, 1, 11)] + [(ks, 2 * cb + t) for cb in range(1, 4) for ks in range(2) for t in range(2)]
        return [(ks, wf) for ks in range(2) for wf in nw]
    def build(g0, var):
        fr = [(g, ks, wf) for g in range(g0, g0 + 8) for (ks, wf) in order(g, var)]
        M = []; fm = []
        for k, (g, ks, wf) in enumerate(fr):
            fm.append(len(M)); M += mfs(g, ks, wf, k, var)
        S_ = Sched(M); n = len(M)
        look = [(8, 0, wf) for wf in range(PDW)] if g0 == 0 else []
        allf = fr + look
        cs = {};
        for k, (g, ks, wf) in enumerate(allf): cs.setdefault(g, k)
        bar_m = {g: fm[cs[g] - PDW + 1] for g in cs if g > g0}
        for g, m in bar_m.items(): S_.bars[m] = g
        na = 8 if g0 == 0 else 4
        items = []
        for k in range(PDW, len(allf)):
            g, ks, wf = allf[k]
            t = fm[k - PDW]; e = bar_m.get(g, 0); use = fm[k] if k < len(fr) else n + 1 + (k - len(fr))
            if k == cs[g] and g == 8: items += [(max(t, e), 0, j, ("v_subrev_u32 v%d, s%d, v%d" % (r, sWD, r), t, e, None)) for j, r in enumerate(vWR)]
            items += [(max(t, e), 1 if k == cs[g] else 3, 4 * k + j, (x, t, e, use if x.startswith("ds_") else None)) for j, x in enumerate(rd_w(g, ks, wf, k))]
        for g in cs:
            for ks in range(2):
                if g == g0 and ks == 0: continue
                if g == 8 and g0 == 0 and ks == 1: continue
                R = rd_act(g, ks) + ([xa(g, ks)] if g < 15 else [])
                k1 = [k for k, f in enumerate(allf) if f[0] == g and f[1] == ks][0]
                u0 = fm[k1] if k1 < len(fr) else None
                for j, x in enumerate(R):
                    if ks == 0: t = e = bar_m[g]
                    else:
                        e = fm[cs[g]]; t = e + (j * min(u0 - e - 8, 40)) // len(R)
                    use = None if not x.startswith("ds_") else (u0 + j if u0 is not None else n)
                    items.append((max(t, e), 2, j, (x, t, e, use)))
        items.sort(key=lambda z: z[:3])
        S_.rq = [z[3] for z in items]
        S_.waitpts = [fm[k] for k in range(0, len(fr), 2)]
        S_.place_reads()
        return S_, {g: fm[cs[g]] for g in range(g0, g0 + 8)}, bar_m, fm
    def pack(areg, pk, scale=None):
        t = TT
        G = ["v_accvgpr_read_b32 v%d, a%d" % (t + j, areg + j) for j in range(8)]
        if scale is not None: G += ["v_mul_f32 v%d, s%d, v%d" % (t + j, scale, t + j) for j in range(8)]
        G += ["v_cvt_pk_bf16_f32 v%d, v%d, v%d" % (pk + j, t + 2 * j, t + 2 * j + 1) for j in range(4)]
        return G
    def kv_unit(j, nd=None):
        cb, rb, tb = (j % 16) // 4, (j // 2) % 2, j % 2
        pk = PK + 4 * (j % 4)
        G = pack(ub(j), pk) + ["buffer_store_dwordx4 %s, v%d, s[%d:%d], s%d offen offset:%d%s" % (vr(pk, 4), vL16, SO, SO + 3, (sOK, sOK2)[rb], (cb % 2) * 2048 + tb * 1024, " ; need:%d" % nd if nd else "")]
        if j == 15: G += ["s_add_u32 s%d, s%d, s%d" % (sOK, sOK, sOJ), "s_add_u32 s%d, s%d, s%d" % (sOK2, sOK2, sOJ)]
        elif j % 16 == 7: G += ["s_add_u32 s%d, s%d, 4096" % (sOK, sOK), "s_add_u32 s%d, s%d, 4096" % (sOK2, sOK2)]
        return G
    qa_setup = [["s_mov_b32 s%d, s%d" % (SA, pX), "s_mov_b32 s%d, s%d" % (SA + 1, pX + 1),
                 "s_lshl_b32 s%d, s%d, 14" % (sT0, sWV), "s_lshl_b32 s%d, s%d, 15" % (sAS, sQL), "s_lshl_b32 s%d, s%d, 15" % (sAS2, sQS),
                 "s_sub_u32 s%d, s%d, s%d" % (sAS, sAS, sT0), "s_sub_u32 s%d, s%d, s%d" % (sAS2, sAS2, sT0),
                 "s_lshl_b32 s%d, s%d, 1" % (sT0, sT0), "s_sub_u32 s%d, %d, s%d" % (sT0, 6 * 16384, sT0),
                 "v_add_u32 v%d, s%d, v%d" % (vAO[2], sT0, vAO[2]), "v_add_u32 v%d, s%d, v%d" % (vAO[3], sT0, vAO[3])]]
    qw_setup = [["s_mov_b32 m0, %d" % LDS_G, "s_mov_b32 s%d, s%d" % (SW, pWQ), "buffer_load_dwordx4 v%d, s[%d:%d], 0 offen lds ; need:8" % (vL16, SX, SX + 3), "s_mov_b32 s%d, s%d" % (SW + 1, pWQ + 1)],
                ["s_lshl_b32 s%d, s%d, 17" % (sT0, sWV), "s_lshl_b32 s%d, s%d, 8" % (sWS, sH), "s_add_u32 s%d, s%d, s%d" % (sWS, sWS, sT0), "s_lshl_b32 s%d, s%d, 12" % (sWM, sWV)],
                ["s_mov_b32 s%d, s%d" % (SX, pWQKV), "s_mov_b32 s%d, s%d" % (SX + 1, pWQKV + 1), "s_lshl_b32 s%d, s%d, 11" % (sXM, sWV), "s_mul_i32 s%d, s%d, %d" % (sXS, sWV, 16 * 3072)],
                ["s_mov_b32 s%d, 0x180000" % (SX + 2)]]
    at_setup = [["v_cmp_ne_u32 vcc, s%d, v125" % sFA, "v_mov_b32 v%d, 1" % vFO, "s_nop 0", "s_lshr_b32 s%d, vcc_lo, s%d" % (sT0, sGR), "s_and_b32 s%d, s%d, 15" % (sT0, sT0)],
                ["s_cmp_eq_u32 s%d, 0" % sT0, "s_cselect_b32 s%d, 1, s%d" % (sFA, sWV)],
                ["s_cmp_eq_u32 s%d, 0" % sWV, "s_cselect_b32 s46, 1, 0", "s_cselect_b32 s47, 2, 0"],
                ["s_lshl_b32 s%d, s%d, 12" % (sW4, sWV), "s_lshl_b32 s%d, s%d, 13" % (sW8, sWV), "s_lshl_b32 s%d, s%d, 19" % (sT0, sH)],
                ["s_lshl_b32 s%d, s%d, 15" % (sVD, sI), "s_add_u32 s%d, s%d, s%d" % (sT0, sT0, sVD)],
                ["s_add_u32 s%d, s%d, 0x%x" % (sKO, sT0, OFF_K), "s_add_u32 s%d, s%d, 0x%x" % (sVO, sT0, OFF_V), "s_mov_b32 s%d, %s" % (sTH, THRESH)]]
    sRA, sHP, sA0, sA1, sGB, sGA_, sGL_, sGS_, sP0, sP1_, sX0, sX1 = 36, 37, 38, 39, 64, 65, 66, 67, 68, 69, 70, 71
    sXO, sXR = 62, 95
    sFG, sFX, sRBK, sTIL = 96, 97, 60, 61
    late_setup = [["s_lshr_b32 s%d, s%d, 3" % (sX1, sH), "s_lshl_b32 s%d, s%d, 3" % (sFG, sX1), "s_add_u32 s%d, s%d, s%d" % (sFG, sFG, sI), "s_lshl_b32 s%d, s%d, 5" % (sFG, sFG),
                 "s_and_b32 s%d, s%d, 7" % (sX0, sH), "s_add_u32 s%d, s%d, s%d" % (sFG, sFG, sX0), "s_lshl_b32 s%d, s%d, 2" % (sFG, sFG), "s_add_u32 s%d, s%d, 0x%x" % (sFG, sFG, OFF_FL),
                 "s_sub_u32 s%d, 15, s%d" % (sX0, sI)], ["s_bitcmp1_b32 s2, 0", "s_cselect_b32 s%d, s%d, s%d" % (sRBK, sX0, sI)], ["s_lshl_b32 s%d, s%d, 2" % (sFX, sRBK),
                 "s_and_b32 s%d, s%d, 3" % (sX0, sH), "s_add_u32 s%d, s%d, s%d" % (sTIL, sFX, sX0), "s_lshl_b32 s%d, s%d, 5" % (sFX, sTIL), "s_add_u32 s%d, s%d, s%d" % (sFX, sFX, sX1),
                 "s_lshl_b32 s%d, s%d, 2" % (sFX, sFX), "s_add_u32 s%d, s%d, 0x%x" % (sFX, sFX, OFF_FL + 32 * 128)],
        ["s_bitcmp1_b32 s%d, 1" % sH, "s_cselect_b32 s%d, s%d, s%d" % (sRA, sQL, sQS)],
        ["s_and_b32 s%d, s%d, 1" % (sHP, sH), "s_lshr_b32 s%d, s%d, 1" % (sX0, sGR), "s_add_u32 s%d, s%d, s%d" % (sHP, sHP, sX0), "s_lshl_b32 s%d, s%d, 11" % (sGB, sGR), "s_add_u32 s%d, s%d, 0x%x" % (sGB, sGB, OFF_G)]]
    sTI = (sQL, sGS_, sQS, 45)
    late_setup.append(["s_lshl_b32 s%d, s%d, 7" % (sGA_, sRA), "s_add_u32 s%d, s%d, s%d" % (sGA_, sGA_, sGB), "s_mov_b32 s%d, s%d" % (sGL_, sGB)])
    for lo_, hi_ in ((sTI[0], sTI[1]), (sTI[2], sTI[3])):
        late_setup.append(["s_lshl_b32 s%d, s%d, 1" % (lo_, lo_), "s_sub_u32 s%d, s%d, s%d" % (lo_, lo_, sWV), "s_xor_b32 s%d, s%d, 7" % (hi_, lo_)])
    late_setup += [["s_lshr_b32 s%d, s%d, 2" % (sX0, sHP), "s_lshl_b32 s%d, s%d, 19" % (sX0, sX0), "s_and_b32 s%d, s%d, 3" % (sX1, sHP), "s_lshl_b32 s%d, s%d, 11" % (sX1, sX1),
         "s_add_u32 s%d, s%d, s%d" % (sX0, sX0, sX1), "s_lshl_b32 s%d, s%d, 13" % (sX1, sRA), "s_add_u32 s%d, s%d, s%d" % (sA0, sX0, sX1),
         "s_max_u32 s%d, s%d, 1" % (sX1, sRA), "s_sub_u32 s%d, s%d, 1" % (sX1, sX1), "s_lshl_b32 s%d, s%d, 13" % (sX1, sX1), "s_add_u32 s%d, s%d, s%d" % (sA1, sX0, sX1),
         "s_add_u32 s%d, s%d, %d" % (sA1, sA1, 4 * PH),
         "s_lshr_b32 s%d, s2, 3" % sX0, "s_lshl_b32 s%d, s%d, 2" % (sX0, sX0), "s_add_u32 s%d, s%d, s%d" % (sX0, sX0, sWV), "s_and_b32 s%d, s2, 6" % sX1,
         "s_lshl_b32 s%d, s%d, 6" % (sX1, sX1), "s_add_u32 s%d, s%d, s%d" % (sX0, sX0, sX1), "s_lshl_b32 s%d, s%d, 6" % (sP0, sX0), "s_lshl_b32 s%d, s%d, 3" % (sP1_, sX0),
         "s_mul_i32 s%d, s%d, %d" % (sXO, sTIL, 4 * 49152), "s_add_u32 s%d, s%d, s%d" % (sXO, sXO, sW4), "s_add_u32 s%d, s%d, 0x%x" % (sXO, sXO, OFF_X),
         "s_lshr_b32 s%d, s%d, 3" % (sXR, sH), "s_mul_i32 s%d, s%d, 49152" % (sXR, sXR), "s_add_u32 s%d, s%d, s%d" % (sXR, sXR, sXO),
         "s_add_u32 s%d, s%d, %d" % (sX0, sA0, 4 * PH), "s_add_u32 s%d, s%d, %d" % (sX1, sA0, 8 * PH), "s_add_u32 s%d, s%d, %d" % (sGB, sA1, 4 * PH)]]
    def ren(G, mp): return [[_re.sub(r"\bs(\d+)\b", lambda m_: "s%d" % mp.get(int(m_.group(1)), int(m_.group(1))), x) for x in g] for g in G]
    early = ren(late_setup[:3], {sFG: 64, sFX: 65})
    early += [["v_mov_b32 v28, 0"] + ["buffer_store_dword v28, v%d, s[%d:%d], s%d offen sc1 ; need:2" % (vONE, SO, SO + 3, r) for r in (64, 65, sU)]]
    SK, SV = SO, SO
    vK, vV = vL16, 2
    def dma(which, typ, par, srd_=None):
        so, sr_, base = (sKO, SK, 0) if which == "K" else (sVO, SV, 65536)
        if srd_ is not None: sr_ = srd_
        sw = sW4 if typ == 1 else sW8
        G = []
        for q in range(typ):
            g = ["s_add_u32 m0, s%d, %d" % (sw, base + par * 32768 + q * 4096)]
            g.append("s_add_u32 s%d, s%d, s%d" % (sDS, so, sw) if q == 0 else "s_add_u32 s%d, s%d, 4096" % (sDS, sDS))
            G.append(g)
            for o in range(4):
                G.append(["buffer_load_dwordx4 v%d, s[%d:%d], s%d offen offset:%d sc1 lds" % (vK, sr_, sr_ + 3, sDS, o * 1024)])
        return G
    def adv(which, typ):
        so = sKO if which == "K" else sVO
        return ["s_add_u32 s%d, s%d, %d" % (so, so, 16384 * typ)]
    spins = []
    vF1, vFA, vPO = 122, 251, 250
    sP1, sG1, sG2 = 45, 46, 47
    def poll_load(kind):
        if kind == 0: return "buffer_load_dword v125, v126, s[%d:%d], 0 offen sc1" % (SD, SD + 3)
        if kind == 1: return "buffer_load_dword v%d, v124, s[%d:%d], s%d offen sc1" % (vF1, SO, SO + 3, sHL)
        if kind == 4: return "buffer_load_dword v195, v192, s[%d:%d], s%d offen sc1" % (SO, SO + 3, sG2)
        return "buffer_load_dword v%d, v%d, s[%d:%d], s%d offen sc1" % (vFA, vPO, SO, SO + 3, sHL)
    def poll_cmp(kind):
        if kind == 0: return "v_and_b32 v%d, 0xff, v125\nv_cmp_gt_u32 vcc, s%d, v%d" % (vFO, sP1, vFO)
        return "v_cmp_gt_u32 vcc, s%d, v%d" % ((sG1, vF1) if kind == 1 else (sG2, vFA) if kind == 2 else (sG1, 195))
    def poll_check(kind):
        ls, lb = a.label("spin"), a.label("spun")
        a("%s\n%s %s\n%s:" % (poll_cmp(kind), "s_branch" if FORCE else "s_cbranch_vccnz", ls, lb))
        spins.append((ls, lb, kind))
    rels = []
    def release():
        ls, lb = a.label("rel"), a.label("reld")
        a("s_cmp_eq_u32 s%d, 0\ns_cbranch_scc1 %s\n%s:" % (sFA, ls, lb))
        rels.append((ls, lb))

    st_("setup")
    for x in fixm0(flat(D0[ST0:])): a(x.split(";")[0])
    if ST0 < 4: a(pf(0))
    bar("s_waitcnt vmcnt(1)")
    st_("bar0")

    pre0 = rd_w(0, 0, 0, 0) + rd_act(0, 0) + [x for k in range(1, PDW) for x in rd_w(0, 0, k, k)]
    use0 = [0, 0] + list(range(8)) + [8 * k for k in range(1, PDW) for _ in range(2)]
    for x in pre0: a(x)
    a(xa(0, 0))
    lV = a.label("kvV"); lQ = a.label("qphase")
    a("s_cmp_ge_u32 s%d, 2\ns_cbranch_scc1 %s" % (sWV, lV))
    NKV = 12
    CRL = "global_load_dword v122, v127, s[0:1]"
    for var in ("K", "V"):
        if var == "V": a(lV + ":")
        t2[0] = 1
        S_, cm, bm, fm = build(0, var)
        S_.place(dma_w(1) + dma_act(1), 0, 56)
        S_.place(dma_act(2) + pfp(-1), 56, bm[1] - 2)
        for g in range(1, 9):
            b = bm[g]; e = bm.get(g + 1, S_.n + 96)
            Wn = (soft(qw_setup) if g == 7 else []) + dma_w(g + 1) + pfp(g - 1)
            if g in (3, 5, 7): Wn = Wn + [CRL]
            if g == 2: Wn = Wn + [PLA]
            if g == 6: Wn = Wn + [poll_load(0) + " ; need:7", ["s_cmp_eq_u32 s%d, 0" % sWV, "s_cselect_b32 s%d, 8, 0" % sP1]]
            S_.place(Wn, b, b + (44 if g < 8 else 31))
            if g < 8: S_.place((flat(qa_setup) if g == 6 else []) + dma_act(g + 2) + (soft(at_setup) if g == 7 else []), b + 44, e - 8)
        S_.place(DF[:34] + soft(early), 2, bm[1] + 8)
        S_.place(DF[34:], bm[1] + 8, bm[3] - 4)
        S_.hooks[7] = lambda: poll_check(0)
        for cb in range(3):
            S_.place([x for j in range(4 * cb, 4 * cb + 4) for x in kv_unit(j, GPUB)], cm[7] + 32 * cb + 38, cm[7] + 32 * cb + 70 if cb < 2 else S_.n)
        vmh = S_.emit(a, bar, use0, [])
        left = S_.left; nkv = S_.n
        if VERB: print("KV over", S_.over)
        if var == "K": a("s_branch %s" % lQ)
    a(lQ + ":")
    st_("q")
    use8 = [0 if u == nkv else 4 * (u - nkv - 1) for u in left]
    t2[0] = 9
    S_, cm, bm, fm = build(8, "Q")
    per = cm[9] - cm[8]
    S_.place(dma_act(10), 0, bm[9] - 6)
    for g in range(9, 16):
        b = bm[g]; e = bm.get(g + 1, S_.n)
        Wn = dma_w(g + 1) if g < 15 else [x + " ; need:16" if isvm(x) else x for x in flat(dma("K", 1, 1) + [adv("K", 1)])]
        if g == GPUB:
            S_.hooks[g] = release
            Wn = Wn + ["buffer_store_dword v%d, v%d, s[%d:%d], s%d offen sc1" % (vFO, vONE, SO, SO + 3, sU)]
        if g in (9, 11, 13): Wn = Wn + [CRL]
        S_.place(Wn, b, b + 34)
        S_.place(dma_act(g + 2) if g + 2 < 16 else [poll_load(1) + " ; need:15"] + flat(dma("K", 1, 0)) + ["s_sub_u32 s%d, s%d, s%d" % (sKO, sKO, sVD), ["s_cmp_eq_u32 s%d, 0" % sI, "s_cselect_b32 s%d, 0x4000, 0" % sDS], "s_add_u32 s%d, s%d, s%d" % (sKO, sKO, sDS)] if g == 14 else [], b + 34, e - 6)
    S_.place(soft(late_setup), cm[10], cm[14] - 4)
    zero = lambda lo, hi: ["v_accvgpr_write_b32 a%d, 0" % r for r in range(lo, hi)]
    S_.place([x for j in range(NKV, 16) for x in kv_unit(j, GPUB)], 8, cm[9] + per // 2)
    S_.place([x for j in range(16, 32) for x in kv_unit(j) + zero(ub(j), ub(j) + 8)], cm[9] + per // 2, cm[15] + 20)
    hd = ["s_and_b32 s%d, s%d, 1" % (sT0, sH), "s_lshr_b32 s%d, s%d, 1" % (sT1, sGR), "s_add_u32 s%d, s%d, s%d" % (sT0, sT0, sT1),
          "s_and_b32 s%d, s%d, 2" % (sT2, sH), "s_lshl_b32 s%d, s%d, 20" % (sAS, sT2), "s_lshr_b32 s%d, s%d, 1" % (sT2, sT2), "s_add_u32 s%d, s%d, s%d" % (sT1, sT1, sT2),
          "s_lshr_b32 s%d, s%d, 2" % (sT2, sT0), "s_lshl_b32 s%d, s%d, 19" % (sT2, sT2), "s_add_u32 s%d, s%d, s%d" % (sAS, sAS, sT2), "s_and_b32 s%d, s%d, 3" % (sT0, sT0), "s_lshl_b32 s%d, s%d, 11" % (sT0, sT0),
          "s_add_u32 s%d, s%d, s%d" % (sAS, sAS, sT0),
          "s_lshr_b32 s%d, s%d, 2" % (sT2, sT1), "s_add_u32 s%d, s%d, 8" % (sT2, sT2), "s_lshl_b32 s%d, s%d, 19" % (sAS2, sT2), "s_and_b32 s%d, s%d, 3" % (sT1, sT1), "s_lshl_b32 s%d, s%d, 11" % (sT1, sT1),
          "s_add_u32 s%d, s%d, s%d" % (sAS2, sAS2, sT1), "s_and_b32 s%d, s%d, 1" % (sT0, sH), "s_lshl_b32 s%d, s%d, 10" % (sT0, sT0), "s_add_u32 s%d, s%d, s%d" % (sAS2, sAS2, sT0),
          ["s_bitcmp1_b32 s%d, 1" % sH, "s_cselect_b32 s%d, 1.0, %s" % (sSC, fbits(LOG2E * 0.25)), "s_cselect_b32 s%d, s%d, s%d" % (sXM, sTI[2], sTI[0])],
          "s_xor_b32 s%d, s%d, 7" % (sT0, sXM), ["s_bitcmp1_b32 s%d, 0" % sH, "s_cselect_b32 s%d, s%d, s%d" % (sXM, sT0, sXM)],
          "s_lshl_b32 s%d, s%d, 6" % (sXM, sXM), "s_add_u32 s%d, s%d, s%d" % (sXM, sXM, sGL_)]
    sQO, sVO_ = (sWS, sXS, sAM, sWM), (8, 9, 10, 12)
    for qb in range(4):
        hd += ["s_lshr_b32 s%d, s%d, 1" % (sT0, sTI[qb]), "s_lshl_b32 s%d, s%d, 13" % (sT0, sT0), "s_and_b32 s%d, s%d, 1" % (sT1, sTI[qb]), "s_lshl_b32 s%d, s%d, 10" % (sT2, sT1), "s_lshl_b32 s%d, s%d, 3" % (sT1, sT1),
               "s_add_u32 s%d, s%d, s%d" % (sT2, sT2, sT0), "s_add_u32 s%d, s%d, s%d" % (sT1, sT1, sT0), "s_add_u32 s%d, s%d, s%d" % (sQO[qb], sAS, sT2), "s_add_u32 s%d, s%d, s%d" % (sVO_[qb], sAS2, sT1)]
    AE = []
    for j in range(6):
        pk = PK + 4 * (j % 4)
        AE += pack(AA + j * 8, pk, sSC if j < 4 else None)
        if j < 4: AE.append("buffer_store_dwordx4 %s, v%d, s[%d:%d], s%d offen" % (vr(pk, 4), vL16, SO, SO + 3, sQO[j]))
        else: AE += ["buffer_store_dwordx2 %s, v%d, s[%d:%d], s%d offen" % (vr(pk + 2 * t, 2), vL16, SO, SO + 3, sVO_[2 * (j - 4) + t]) for t in range(2)]
    AE += ["v_accvgpr_read_b32 v%d, a%d" % (TT, AA + 48), "v_and_b32 v%d, 15, v0" % (TT + 1), "v_mul_f32 v%d, %s, v%d" % (TT, fbits(-LOG2E), TT), "v_exp_f32 v%d, v%d" % (TT, TT), "v_lshlrev_b32 v%d, 2, v%d" % (TT + 1, TT + 1),
           "v_add_f32 v%d, 1.0, v%d" % (TT, TT), "v_rcp_f32 v%d, v%d" % (TT, TT), "s_nop 0", "buffer_store_dword v%d, v%d, s[%d:%d], s%d offen" % (TT, TT + 1, SO, SO + 3, sXM)]
    S_.place(hd, bm[14] + 40, cm[15] + 38)
    room = S_.room(cm[15] + 40, S_.n) - 8
    S_.place(AE[:room], cm[15] + 40, S_.n); tail = AE[room:]
    if XQ:
        def drop(x):
            if XQ & 1 and x.startswith("buffer_load") and "s[4:7]" in x: return True
            if XQ & 2 and x.startswith("buffer_store_dwordx4"): return True
            if XQ & 4 and x.startswith("buffer_load") and "s[12:15]" in x: return True
            if XQ & 8 and x.startswith("buffer_load") and "s[8:11]" in x: return True
            return False
        S_.G.g = [[it for it in g if not drop(it[1])] for g in S_.G.g]
    nq_ = [0]
    def qbar(w):
        nq_[0] += 1
        if nq_[0] == 7:
            a(w); poll_check(1); bar("s_nop 0")
        else: bar(w)
    vm2 = S_.emit(a, qbar, use8, vmh)
    if VERB: print("Q over", S_.over, "tail", len(tail))
    for x in tail: a(x)
    a("s_waitcnt vmcnt(%d)" % (len(vm2) - 1 - max(k for k, nd in enumerate(vm2) if nd == 16) + sum(1 for x in tail if isvm(x))))
    a(lAttn + ":")
    st_("attn")
    vU = 3; vL = (4, 5, 6, 7); vG = (8, 9, 14, 15); vX = 10
    S = (16, 80); P = (144, 176); NM, LT, TM, ONES = 208, 224, 240, 252
    vT8, vNEG = 248, 249
    sW3 = 56
    def live(typ, half):
        if not half: return list(range(8))
        return [q for q in range(8) if q % 4 != 2] if typ == 1 else [0, 1, 2, 3, 5, 7]
    O, Q, FR, NFR = 0, 128, 192, 16
    ms = (26, 28, 30, 4)
    def kfrag(p, kb, s): return ("K", p * 32768 + (kb // 2) * 8192 + s * 2048 + (kb % 2) * 1024)
    def vfrag(p, kp, dt): return ("V", p * 32768 + kp * 8192 + dt * 1024)
    def rd(slot, fr): return "ds_read_b128 %s, v%d offset:%d" % (ar(FR + 4 * (slot % NFR), 4), vK if fr[0] == "K" else vV, fr[1])
    def pvm(Pp, nq, kp, dt, lv): return ["%s %s, {F}, %s, %s" % (MF16, ar(O + (qb * 8 + dt) * 4, 4), vr(Pp + (kp * nq + qb) * 4, 4), ar(O + (qb * 8 + dt) * 4, 4)) for qb in range(nq) if kp * nq + qb in lv]
    def mf_list(p, pv, qk, hp=0, hq=0):
        L = []; Pp = P[1 - p]; Sn = S[1 - p]
        if pv in (1, 2):
            nq = 4 // pv
            L += [(vfrag(1 - p, kp, dt), pvm(Pp, nq, kp, dt, live(pv, hp))) for kp in range(2 * pv) for dt in range(8)]
        elif pv == 3:
            L += [(("K", vfrag(1, kp, dt)[1]), pvm(Pp, 2, kp, dt, live(2, 1))) for dt in range(8) for kp in range(4)]
        if qk:
            nq = 4 // qk
            for kb in range(4 * qk):
                for s in range(4):
                    ms_ = []
                    for qb in range(nq):
                        if (kb // 2) * nq + qb not in live(qk, hq): continue
                        d = vr(Sn + ((kb // 2) * nq + qb) * 8 + (kb % 2) * 4, 4)
                        ms_.append("%s %s, {F}, %s, %s" % (MF16, d, ar(Q + (qb * 4 + s) * 4, 4), d if s else vr(NM + qb * 4, 4)))
                    L.append((kfrag(1 - p, kb, s), ms_))
        return L
    def ex(p, n): return "v_exp_f32 v%d, v%d" % (TM + n % 8, S[p] + n)
    def cv(p, j): return "v_cvt_pk_bf16_f32 v%d, v%d, v%d" % (P[p] + j, TM + (2 * j) % 8, TM + (2 * j) % 8 + 1)
    def summ(p, sm, q):
        nq = 4 // sm; d = vr(LT + (q % nq) * 4, 4)
        return "%s %s, %s, %s, %s" % (MF16, d, vr(ONES, 4), vr(P[p] + 4 * q, 4), d if q >= nq else "0")
    def chks(sm, hs):
        if sm == 1 and hs: return ["v_max3_f32 v%d, v%d, v%d, v%d" % (vX, LT, LT + 4, LT + 12), "v_cmp_lt_f32 vcc, s%d, v%d" % (sTH, vX)]
        c = ["v_max3_f32 v%d, v%d, v%d, v%d" % (vX, LT, LT + 4, LT + 8), "v_max_f32 v%d, v%d, v%d" % (vX, vX, LT + 12)] if sm == 1 else ["v_max_f32 v%d, v%d, v%d" % (vX, LT, LT + 4)]
        return c + ["v_cmp_lt_f32 vcc, s%d, v%d" % (sTH, vX)]
    rare = {}
    def step(p, pv, sm, qk, dK, dV, pre_in=True, pre_out=True, extra_vm=None, chk=0, last16=False, staged=None, trail=None, vm_first=False, flush=False, ctl=None, hp=0, hs=0, hq=0, kpre=None):
        L = mf_list(p, pv, qk, hp, hq); nf = len(L)
        lv = live(sm, hs) if sm else []; ng = len(lv)
        nxt = [x[0] for x in mf_list(1, 3, 0)][:PD] if last16 else [vfrag(p, kp, dt) for kp in range(2) for dt in range(8)][:PD]
        M0 = [(f, t) for f, (fr, ts_) in enumerate(L) for t in ts_]
        nb = len(M0); M = []; spos = []
        SLK = 6 if nb > 100 else 3
        endm = nb - 10 - SLK
        ins = {((k + 1) * endm) // ng + SLK: q for k, q in enumerate(lv)}
        for m, it in enumerate(M0):
            M.append(it)
            if m in ins: spos.append(len(M)); M.append((it[0], summ(p, sm, ins[m])))
        nm = len(M)
        G = []
        if dV: G += dma("V", dV, p) + [adv("V", dV)]
        if dK: G += (kpre or []) + dma("K", dK, p) + [adv("K", dK)]
        ntr = sum(1 for x in flat(trail or []) if isvm(x))
        G = ((extra_vm or []) + G if vm_first else G + (extra_vm or [])) + (trail or [])
        firstm = {}
        for m, (f, t) in enumerate(M): firstm.setdefault(f, m)
        barf = nf + 1 - PD
        if barf % WP: barf += WP - barf % WP
        if not pre_out or last16: barf = nf + 99
        Gp = Gaps([12] * (nm - 1) + [4])
        sR = Gp.newstream(); pre = None
        allfr = [x[0] for x in L] + (nxt if pre_out else [])
        nrd = PD
        for f in range(nf):
            m = firstm[f]; w_ = None
            if f == barf: w_ = ["s_BARW", "s_BAR"]
            elif f < barf and f % WP == 0: w_ = ["s_waitcnt lgkmcnt(%d)" % max(0, nrd - 1 - min(f + WP - 1, nf - 1))]
            if w_ and m == 0: pre = w_
            elif w_:
                for x in w_: Gp.add(m - 1, sR, x)
            want = min(f + PD, len(allfr) - 1)
            if f < barf and not last16: want = min(want, nf - 1)
            for k in range(2):
                if nrd <= want:
                    Gp.add(m + (k if len(L[f][1]) > 1 else 0), sR, rd(nrd, allfr[nrd])); nrd += 1
        assert nrd == len(allfr), (nrd, len(allfr))
        hiD = min(max(2 * len(G), (nm * DFR) // 16), firstm[barf] - 8 if barf < nf else nm)
        Gp.place(soft(G), 1, hiD, slack=40)
        if pv in (1, 2) and not last16: Gp.place(["v_add_f32 v%d, v%d, v%d" % (vL[qb], vL[qb], LT + 4 * qb) for qb in range(4 // pv) if not (hp and qb == 2)], 0, 10)
        if ctl: Gp.place([ctl], nm - 8, nm - 3)
        if sm:
            pe = []; lo = 0
            for k, q in enumerate(lv):
                hi = spos[k] - SLK
                sE = Gp.newstream(); tmp = {z: list(Gp.g[z]) for z in range(lo, hi)}; ch = []
                for _ in range(8):
                    def inc(z): return max(0, gcost(tmp[z] + [(sE, "v_exp_f32")]) - Gp.cap[z]) - max(0, gcost(tmp[z]) - Gp.cap[z])
                    z = min(range(lo, hi), key=lambda z: (inc(z), gcost(tmp[z]) > Gp.cap[z], (z - lo) % 4 == 2 if EXT else 0, z))
                    tmp[z].append((sE, "v_exp_f32")); ch.append(z)
                for n, z in zip(range(8 * q, 8 * q + 8), sorted(ch)): Gp.add(z, sE, ex(p, n))
                pe += sorted(ch); lo = hi
            sC = Gp.newstream(); k = 0
            for j in range(4 * ng):
                x = cv(p, 4 * lv[j // 4] + j % 4)
                k = max(k, pe[2 * j + 1] + 1)
                dl = min(pe[2 * j + 8] - 1 if 2 * j + 8 < 8 * ng else nm, spos[j // 4] - 3)
                if k > dl: k = dl = max(dl, pe[2 * j + 1])
                assert k <= spos[j // 4] - 3 and (2 * j + 8 >= 8 * ng or k < pe[2 * j + 8]), (j, k, dl)
                cand = [z for z in range(k, dl + 1) if gcost(Gp.g[z] + [(sC, x)]) <= Gp.cap[z]]
                k = cand[0] if cand else min(range(k, dl + 1), key=lambda z: gcost(Gp.g[z]))
                Gp.add(k, sC, x)
            Gp.place(chks(sm, hs), nm - 3, nm - 1)
        for (lst, lo, hi) in (staged or []): Gp.place(lst, lo, hi)
        if VERB: print("step", p, pv, sm, qk, "gaps", nm, "over", Gp.over())
        if not pre_in:
            for f in range(PD): a(rd(f, L[f][0]))
        for x in pre or []: a(x)
        for m, (f, t) in enumerate(M):
            a(t.replace("{F}", ar(FR + 4 * (f % NFR), 4)))
            for x in Gp.out(m):
                if x == "s_BARW": continue
                if x == "s_BAR":
                    if TS3: a("s_mov_b32 m0, s76\ns_add_u32 s76, s76, 1\nv_writelane_b32 v11, s72, m0\ns_mov_b32 m0, s76\ns_add_u32 s76, s76, 1\nv_writelane_b32 v11, s74, m0\ns_memtime s[72:73]")
                    a("s_waitcnt vmcnt(%d) lgkmcnt(0)" % ntr)
                    if chk: poll_check(chk)
                    a("s_barrier")
                    if TS3: a("s_memtime s[74:75]\ns_waitcnt lgkmcnt(0)")
                else: a(x)
        assert nf % NFR == 0
        if sm:
            key = (p, sm, qk if qk else sm, hs)
            if key not in rare: rare[key] = (a.label("rare"), [])
            lb = a.label("back"); lj = a.label("jr")
            rare[key][1].append((lj, lb))
            a("s_cbranch_vccnz %s\n%s:" % (lj, lb))
            if last16 or flush:
                for qb in range(4 // sm):
                    if not (hs and qb == 2): a("v_add_f32 v%d, v%d, v%d" % (vL[qb], vL[qb], LT + 4 * qb))
    def qregs(base, typ, qb, half=0):
        nq = 4 // typ
        return [base + (kp * nq + qb) * 8 + j for kp in range(2 * typ) for j in range(8) if kp * nq + qb in live(typ, half)]
    def maxtree(dst, R):
        L = ["v_max3_f32 v%d, v%d, v%d, v%d" % (dst, R[0], R[1], R[2])]; j = 3
        while j + 1 < len(R):
            L.append("v_max3_f32 v%d, v%d, v%d, v%d" % (dst, dst, R[j], R[j + 1])); j += 2
        if j < len(R): L.append("v_max_f32 v%d, v%d, v%d" % (dst, dst, R[j]))
        return L
    def xlane(op, D, Tm):
        L = []
        for sw in ("v_permlane16_swap_b32", "v_permlane32_swap_b32"):
            L += ["v_mov_b32 v%d, v%d" % (t, d) for d, t in zip(D, Tm)]
            if len(D) < 3: L.append("s_nop %d" % (2 - len(D)))
            L += ["%s v%d, v%d" % (sw, d, t) for d, t in zip(D, Tm)]
            L += ["%s v%d, v%d, v%d" % (op, d, d, t) for d, t in zip(D, Tm)]
        return L
    def mask(sets, pad=True):
        for r in range(4): a("v_cmp_gt_i32 s[%d:%d], %d, v%d" % (ms[r], ms[r] + 1, r, vU))
        if pad: a("s_nop 3")
        for (R, st) in sets:
            lab = [a.label("mk") for _ in range(4)]; full = [a.label("mf") for _ in range(5)]
            for t in range(1, 4): a("s_cmp_eq_u32 s%d, %d\ns_cbranch_scc1 %s" % (st, t, lab[t]))
            for t in range(4):
                if t:
                    a(full[t] + ":")
                    for r in range(4): a("v_mov_b32 v%d, v%d" % (R[4 * t + r], vNEG))
                    a("s_branch %s\n%s:" % (full[t + 1], lab[t]))
                for r in range(4): a("v_cndmask_b32 v%d, v%d, v%d, s[%d:%d]" % (R[4 * t + r], R[4 * t + r], vNEG, ms[r], ms[r] + 1))
            a(full[4] + ":")
    bar("s_nop 0")
    if TS2:
        a("s_waitcnt lgkmcnt(0)"); bar("s_nop 0")
        a("s_lshl_b32 s78, s2, 2\ns_add_u32 s78, s78, s%d\ns_lshl_b32 s78, s78, 8\ns_add_u32 s78, s78, 0x%x\nv_lshlrev_b32 v122, 2, v0" % (sWV, OFF_TS + 0x80000))
        a("buffer_store_dword v123, v122, s[%d:%d], s78 offen\ns_waitcnt vmcnt(0)" % (SO, SO + 3))
    a("s_mov_b32 s%d, %s" % (sSC, fbits(LOG2E / math.sqrt(128.0))))
    fr0 = [kfrag(0, kb, s) for s in range(4) for kb in range(4)]
    for f in range(12): a(rd(f, fr0[f]))
    def qepi(cb):
        G = []
        for qb in range(4):
            src = QA + (((qb // 2) * 4 + cb) * 2 + qb % 2) * 8
            if not PKV: G += ["v_mul_f32 v%d, s%d, v%d" % (src + j, sSC, src + j) for j in range(8)]
            G += ["v_cvt_pk_bf16_f32 v%d, v%d, v%d" % (src + j, src + 2 * j, src + 2 * j + 1) for j in range(4)]
            G += ["v_accvgpr_write_b32 a%d, v%d" % (Q + (qb * 4 + cb) * 4 + j, src + j) for j in range(4)]
        return G
    for x in flat(dma("V", 1, 0)): a(x)
    a("s_sub_u32 s%d, s%d, s%d\ns_sub_u32 s%d, 3, s%d" % (sVO, sVO, sVD, sW3, sWV))
    if PKV:
        a("s_mov_b32 s26, s%d\ns_mov_b32 s27, s%d" % (sSC, sSC))
        for r in range(QA, QA + 128, 2): a("v_pk_mul_f32 %s, %s, s[26:27]" % (vr(r, 2), vr(r, 2)))
    for x in qepi(0): a(x)
    for f in range(12, 16): a(rd(f, fr0[f]))
    misc = ["v_add_u32 v%d, 0x10000, v%d" % (vV, vK), "v_and_b32 v10, 15, v0", "v_lshrrev_b32 v11, 4, v0", "v_lshlrev_b32 v11, 2, v11", "v_sub_u32 v%d, v10, v11" % vU]
    misc += ["v_mov_b32 v%d, 0" % r for r in vL] + ["v_mov_b32 v%d, %s" % (vNEG, NEG), "v_bfe_u32 v%d, v0, 3, 2" % vPO, "v_lshl_add_u32 v%d, v%d, 7, v124" % (vPO, vPO), "s_and_b32 s%d, s%d, 0xfffffe00" % (sHL, sHL)]
    misc += ["v_mov_b32 v%d, 0x3f803f80" % r for r in range(ONES, ONES + 4)] + ["v_mov_b32 v14, v%d" % vONE, "v_mov_b32 v15, 2"]
    a("s_waitcnt lgkmcnt(0)\ns_barrier")
    K2 = flat(dma("K", 2, 0)) + [["s_cmp_eq_u32 s%d, 0" % sI, "s_cselect_b32 s%d, 2, 1" % sT0], "s_lshl_b32 s%d, s%d, 14" % (sT0, sT0), "s_add_u32 s%d, s%d, s%d" % (sKO, sKO, sT0)]
    Gp = Gaps([12] * 64)
    Gp.place(K2, 0, 40)
    for s in range(4): Gp.place(qepi(s + 1) if s < 3 else misc, 16 * s, 16 * s + 16, slack=4)
    for s in range(4):
        for n in range(16):
            qb, kb = n // 4, n % 4
            d = vr(S[0] + ((kb // 2) * 4 + qb) * 8 + (kb % 2) * 4, 4)
            a("%s %s, %s, %s, %s" % (MF16, d, ar(FR + 4 * (4 * s + kb), 4), ar(Q + (qb * 4 + s) * 4, 4), d if s else "0"))
            for x in Gp.out(16 * s + n): a(x)
    st_("m1")
    for f, x in enumerate(mf_list(0, 0, 1)[:PD]): a(rd(f, x[0]))
    mask([(qregs(S[0], 1, 2), sWV)], pad=False)
    MXr, MXt = (240, 241, 242, 243), (244, 245, 246, 247)
    for qb in range(4):
        for x in maxtree(MXr[qb], qregs(S[0], 1, qb)): a(x)
    for x in xlane("v_max_f32", MXr, MXt): a(x)
    for qb in range(4):
        for j in range(4): a("v_sub_f32 v%d, 0, v%d" % (NM + qb * 4 + j, MXr[qb]))
    for qb in range(4):
        if PKV:
            for r in qregs(S[0], 1, qb)[::2]: a("v_pk_add_f32 %s, %s, %s" % (vr(r, 2), vr(r, 2), vr(NM + qb * 4, 2)))
        else:
            for r in qregs(S[0], 1, qb): a("v_sub_f32 v%d, v%d, v%d" % (r, r, MXr[qb]))
    st_("first")
    if TS3: a("s_mov_b32 s76, 0\ns_mov_b32 s72, 0\ns_mov_b32 s74, 0")
    step(0, 0, 1, 1, 0, 0)
    release()
    a("buffer_store_dword v15, v14, s[%d:%d], s%d offen sc1" % (SO, SO + 3, sU))
    st_("s0")
    lT0, lT1, lT1b, lL1, lL2, lS15, lMid, lI7, lEn = [a.label(x) for x in ("T0", "T1", "T1b", "L1", "L2", "S15", "MID", "I7", "END")]
    PL = [[poll_load(2)]]
    AF = [Q + 4 * j for j in range(9)]
    def ld(dst, so, off): return "buffer_load_dwordx4 %s, v%d, s[%d:%d], s%d offen offset:%d sc1" % (ar(dst, 4), vK, SV, SV + 3, so, off)
    AOP = [ld(AF[0], sA0, 0), ld(AF[1], sA0, 1024), ld(AF[2], sX0, 0), ld(AF[3], sX0, 1024), ld(AF[4], sA1, 1024),
           ld(AF[5], sX1, 0), ld(AF[6], sX1, 1024), ld(AF[7], sGB, 0), ld(AF[8], sGB, 1024)]
    AOP += ["v_and_b32 v12, 15, v0", "v_lshlrev_b32 v12, 2, v12"] + ["buffer_load_dword a%d, v12, s[%d:%d], s%d offen offset:%d sc1" % (Q + 36 + t, SV, SV + 3, sGA_, 64 * t) for t in range(2)]
    ALD = [["v_and_b32 v12, 15, v0", "v_lshlrev_b32 v12, 2, v12"]]
    ALD += [["buffer_load_dword v%d, v12, s[%d:%d], s%d offen offset:%d sc1" % (vG[qb], SV, SV + 3, sT0, 0)] for qb in range(4)]
    for qb in range(4): ALD[1 + qb] = ["s_lshl_b32 s%d, s%d, 6" % (sT0, sTI[qb]), "s_add_u32 s%d, s%d, s%d" % (sT0, sT0, sGL_)] + ALD[1 + qb]
    def wpf(dst): return [["v_add_lshl_u32 v%d, v0, s%d, 7" % (vT8, sP0), "global_load_dword v%d, v%d, s[%d:%d]" % (dst, vT8, pBWO, pBWO + 1)],
                          ["v_and_b32 v12, 7, v0", "v_add_lshl_u32 v12, v12, s%d, 7" % sP1_, "global_load_dword v%d, v12, s[%d:%d]" % (dst, pWO, pWO + 1)]]
    TR0, TR15 = wpf(vG[0]), (wpf(vT8) if T15 else [])
    if CR2:
        TR15 = TR15 + [["s_lshr_b32 s%d, s%d, 3" % (sT0, sP1_), "s_and_b32 s%d, s%d, 127" % (sT0, sT0), "v_and_b32 v13, 15, v0", "v_lshlrev_b32 v13, 7, v13", "v_add_lshl_u32 v13, v13, s%d, 7" % sT0,
                        "v_min_u32 v13, %s-%s, v13" % (lRare, lpc2), "global_load_dword v%d, v13, s[0:1]" % vT8]]
    PW, PW2 = 8, 12
    sWB, sHW, sWC, sAB, sHA, sAC = 25, 32, 33, 98, 35, 57
    TL = ("s_mov_b32 s%d, s%d\ns_mov_b32 s%d, s%d\ns_mov_b32 s%d, 0x400000\ns_mov_b32 s%d, s%d\ns_mov_b32 s%d, s%d\ns_mov_b32 s%d, 0x80000\n" % (PW, pBWO, PW + 1, pBWO + 1, PW + 2, PW2, pWO, PW2 + 1, pWO + 1, PW2 + 2) +
          "s_lshr_b32 s%d, s%d, 3\ns_lshl_b32 s%d, s%d, 20\ns_and_b32 s%d, s%d, 3\ns_lshl_b32 s%d, s%d, 8\ns_add_u32 s%d, s%d, s%d\ns_lshl_b32 s%d, s%d, 14\ns_add_u32 s%d, s%d, s%d\n" % (sT2, sH, sWB, sT2, sT1, sH, sT1, sT1, sWB, sWB, sT1, sT1, sWV, sWB, sWB, sT1) +
          "s_and_b32 s%d, s%d, 7\ns_mov_b32 s%d, s%d\n" % (sHW, sH, sHA, sHW) +
          "s_lshl_b32 s%d, s%d, 2\ns_add_u32 s%d, s%d, s%d\ns_mul_i32 s%d, s%d, %d\ns_lshl_b32 s%d, s%d, 16\ns_add_u32 s%d, s%d, s%d\ns_add_u32 s%d, s%d, 0x%x\n" % (sT1, sRBK, sT1, sT1, sWV, sAB, sT1, CROW, sT2, sT2, sAB, sAB, sT2, sAB, sAB, OFF_C) +
          "s_lshl_b32 s%d, s%d, 13\ns_add_u32 s%d, s%d, 0x%x" % (sT1, sH, sT1, sT1, OFF_C)).split("\n")
    for t in sTI:
        TL += ["s_and_b32 s%d, s%d, 1" % (sT2, t), "s_lshl_b32 s%d, s%d, 10" % (sT2, sT2), "s_lshr_b32 s%d, s%d, 1" % (t, t), "s_mul_i32 s%d, s%d, %d" % (t, t, CROW),
               "s_add_u32 s%d, s%d, s%d" % (t, t, sT2), "s_add_u32 s%d, s%d, s%d" % (t, t, sT1)]
    STL = [(TL[:23], 2, 50), (TL[23:], 50, 114)]
    a("s_cmp_eq_u32 s%d, 0\ns_cbranch_scc1 %s" % (sI, lT1))
    a("s_mov_b32 s%d, s%d" % (sT, sI))
    a(".p2align 6\n" + lL1 + ":")
    step(1, 1, 1, 1, 1, 1, ctl=["s_sub_u32 s%d, s%d, 1" % (sT, sT)], kpre=[["s_cmp_eq_u32 s%d, 1" % sT, "s_cselect_b32 s%d, 0x4000, 0" % sT0], ["s_add_u32 s%d, s%d, s%d" % (sKO, sKO, sT0)]])
    a("s_cmp_eq_u32 s%d, 0\ns_cbranch_scc1 %s" % (sT, lT0))
    step(0, 1, 1, 1, 1, 1)
    a("s_branch %s" % lL1)
    a(lT0 + ":")
    step(0, 1, 1, 1, 2, 1, extra_vm=PL, chk=2, trail=TR0, hq=1)
    a(lT1 + ":")
    mask([(qregs(S[1], 1, 3), sW3)])
    a("s_add_u32 s%d, s%d, 0x4000\ns_cmp_eq_u32 s%d, 7\ns_cbranch_scc1 %s" % (sVO, sVO, sI, lT1b))
    step(1, 1, 1, 2, 2, 1, hs=1)
    step(0, 1, 2, 2, 2, 2, extra_vm=PL, chk=2, trail=TR0, hp=1)
    a("s_sub_u32 s%d, 6, s%d\ns_cmp_eq_u32 s%d, 0\ns_cbranch_scc1 %s" % (sT, sI, sT, lS15))
    a(".p2align 6\n" + lL2 + ":")
    step(1, 2, 2, 2, 2, 2)
    step(0, 2, 2, 2, 2, 2, ctl=["s_sub_u32 s%d, s%d, 1" % (sT, sT)])
    a("s_cmp_lg_u32 s%d, 0\ns_cbranch_scc1 %s" % (sT, lL2))
    a(lS15 + ":")
    a("s_add_u32 s%d, s%d, 0x8000" % (sKO, sVO))
    step(1, 2, 2, 2, 2, 2, extra_vm=ALD, trail=TR15, vm_first=True, staged=STL, flush=True, hq=1)
    a("s_branch %s" % lMid)
    a(lT1b + ":")
    a("s_add_u32 s%d, s%d, 0x4000" % (sKO, sVO))
    step(1, 1, 1, 2, 2, 1, extra_vm=ALD, trail=TR15, vm_first=True, staged=STL, flush=True, hs=1, hq=1)
    def fin_head(rb, so):
        q0, q1 = 2 * rb, 2 * rb + 1
        G = ["v_rcp_f32 v%d, v%d" % (vL[q0], vL[q0]), "v_rcp_f32 v%d, v%d" % (vL[q1], vL[q1]), "v_sub_f32 v%d, 1.0, v%d" % (vG[q0], vG[q0]), "v_sub_f32 v%d, 1.0, v%d" % (vG[q1], vG[q1]),
             "v_mul_f32 v%d, v%d, v%d" % (vL[q0], vL[q0], vG[q0]), "v_mul_f32 v%d, v%d, v%d" % (vL[q1], vL[q1], vG[q1])]
        return G
    def fin_part(rb, c, t, so, pk=False):
        u, tq = c // 2, c % 2; qb = 2 * rb + tq; so = sTI[qb]
        G = ["v_accvgpr_read_b32 v%d, a%d" % (t + j, O + qb * 32 + u * 8 + j) for j in range(8)]
        if pk and PKV: G += ["v_pk_mul_f32 %s, %s, %s op_sel:[0,%d] op_sel_hi:[1,%d]" % (vr(t + j, 2), vr(t + j, 2), vr(vL[2 * rb], 2), tq, tq) for j in range(0, 8, 2)]
        else: G += ["v_mul_f32 v%d, v%d, v%d" % (t + j, vL[qb], t + j) for j in range(8)]
        G += ["v_cvt_pk_bf16_f32 v%d, v%d, v%d" % (t + j, t + 2 * j, t + 2 * j + 1) for j in range(4)]
        if u == 2: G.append("s_add_u32 s%d, s%d, 4096" % (so, so))
        G.append("buffer_store_dwordx4 %s, v%d, s[%d:%d], s%d offen offset:%d sc1" % (vr(t, 4), vK, SV, SV + 3, so, (u % 2) * 2048))
        return G
    a(lMid + ":")
    st_("mid")
    if TS3:
        a("s_mov_b32 m0, s76\ns_add_u32 s76, s76, 1\nv_writelane_b32 v11, s72, m0\ns_mov_b32 m0, s76\ns_add_u32 s76, s76, 1\nv_writelane_b32 v11, s74, m0")
        a("s_lshl_b32 s78, s2, 2\ns_add_u32 s78, s78, s%d\ns_lshl_b32 s78, s78, 8\ns_add_u32 s78, s78, 0x%x\nv_lshlrev_b32 v10, 2, v0" % (sWV, OFF_TS + 0x80000))
        a("buffer_store_dword v11, v10, s[%d:%d], s78 offen\ns_nop 4" % (SO, SO + 3))
    for x in AOP: a(x)
    mask([(qregs(S[0], 2, 0)[:16], sWV), (qregs(S[0], 2, 1)[16:], sW3)], pad=False)
    vD = (232, 233, 234, 235)
    WRING = [0, 16384, 65536, 81920, 131072, 147456]; ARING = [32768, 49152, 98304, 114688]
    def w_dma(st):
        G = []
        if st < 16 and st % 2 == 0:
            G += ["s_lshl_b32 s%d, s%d, 17" % (sWC, sHW), "s_add_u32 s%d, s%d, s%d" % (sWC, sWC, sWB), "s_add_u32 s%d, s%d, 1" % (sHW, sHW)]
        if st == 16: G += ["s_and_b32 s%d, s%d, 0xffff" % (sWC, sWB), "s_lshr_b32 s%d, s%d, 20" % (sHW, sWB), "s_lshl_b32 s%d, s%d, 17" % (sHW, sHW), "s_add_u32 s%d, s%d, s%d" % (sWC, sWC, sHW)]
        G += ["s_add_u32 m0, s%d, %d" % (sW4, WRING[st % 6]), "s_and_b32 s%d, s%d, 7" % (sHW, sHW) if st % 2 == 0 else "s_add_u32 s%d, s%d, 65536" % (sWC, sWC)]
        sr_ = PW if st < 16 else PW2
        return G + ["buffer_load_dwordx4 v%d, s[%d:%d], s%d offen offset:%d lds ; need:%d" % (vD[o], sr_, sr_ + 3, sWC, o * 1024, st) for o in range(4)]
    def a_dma(st):
        G = []
        if st < 16 and st % 2 == 0:
            G += ["s_lshl_b32 s%d, s%d, 13" % (sAC, sHA), "s_add_u32 s%d, s%d, s%d" % (sAC, sAC, sAB), "s_add_u32 s%d, s%d, 1" % (sHA, sHA)]
        if st == 16: G += ["s_lshr_b32 s%d, s%d, 3" % (sHA, sH), "s_mul_i32 s%d, s%d, %d" % (sHA, sHA, 56 * 1024), "s_sub_u32 s%d, s%d, s%d" % (sAC, sAB, sHA), "s_add_u32 s%d, s%d, %d" % (sAC, sAC, 256 * 1024)]
        G += ["s_add_u32 m0, s%d, %d" % (sW4, ARING[st % 4]), "s_and_b32 s%d, s%d, 7" % (sHA, sHA) if st % 2 == 0 else "s_add_u32 s%d, s%d, 4096" % (sAC, sAC)]
        return G + ["buffer_load_dwordx4 v%d, s[%d:%d], s%d offen offset:%d sc1 lds ; need:%d" % (vK, SV, SV + 3, sAC, o * 1024, st) for o in range(4)]
    nt = lambda L: [x.split(";")[0].strip() for x in L]
    a("v_lshrrev_b32 v10, 4, v0\nv_and_b32 v11, 15, v0\nv_lshlrev_b32 v12, 2, v10\nv_xor_b32 v11, v11, v12\nv_lshlrev_b32 v11, 4, v11\nv_lshl_add_u32 v%d, v10, 10, v11" % vD[0])
    a("v_xor_b32 v11, 16, v%d\nv_add_u32 v%d, 6144, v%d\nv_add_u32 v%d, 3072, v11\nv_add_u32 v%d, 9216, v11" % (vD[0], vD[2], vD[0], vD[1], vD[3]))
    n0, n1, n2 = WSP
    for st in range(n0):
        for x in nt(w_dma(st)): a(x)
    W16_ = [[x] for st in range(n0, n0 + n1) for x in nt(w_dma(st))]; W17_ = [[x] for st in range(n0 + n1, n0 + n1 + n2) for x in nt(w_dma(st))]
    WRS = [x for st in range(n0 + n1 + n2, 6) for x in nt(w_dma(st))]
    a("s_cmp_eq_u32 s%d, 7\ns_cbranch_scc1 %s" % (sI, lI7))
    FT = lambda c: 80 + 8 * (c % 8)
    for x in fin_head(1, sA0): a(x)
    for c in range(NE):
        for x in fin_part(1, c, FT(c), sA0, True): a(x)
    step(0, 2, 2, 0, 0, 0, last16=True, extra_vm=W16_, hs=1)
    def final(first):
        stg = [(first + fin_head(0, sA1), 0, 17)]
        for u in range(3):
            stg.append((fin_part(0, 2 * u, 16 + 16 * u, sA1) + fin_part(0, 2 * u + 1, 24 + 16 * u, sA1), 12 * u + 17, min(12 * u + 29, 48)))
        step(1, 3, 0, 0, 0, 0, pre_out=False, staged=stg, extra_vm=W17_)
        a("s_nop 7")
        for x in fin_part(0, 6, 64, sA1, True) + fin_part(0, 7, 72, sA1, True): a(x)
    final([x for c in range(NE, 8) for x in fin_part(1, c, FT(c), sA0)])
    a("s_branch %s" % lEn)
    a(lI7 + ":")
    step(0, 1, 2, 0, 0, 0, last16=True, extra_vm=W16_, hs=1, hp=1)
    final(fin_head(1, sA0) + [x for c in range(8) for x in fin_part(1, c, FT(c), sA0)])
    a(lEn + ":")
    st_("s17")
    BS, BP, BP0 = 208, 212, 216
    SL = 144; TA = 176; PA = 196; MXl = (240, 241, 242, 243); vPM = 250; OL = 144
    L1 = ["v_add_u32 v246, 14, v%d" % vU, "v_mov_b32 v244, 0x5555", "v_mov_b32 v245, 0", "s_cmp_eq_u32 s%d, 0" % sRA, "s_cselect_b32 s%d, -1, 0" % sT2,
          "v_lshlrev_b64 v[244:245], v246, v[244:245]", "v_alignbit_b32 v244, v245, v244, 12", "v_not_b32 v244, v244"]
    L1 += ["v_bfe_i32 v%d, v244, %d, 1" % (BS + r, 16 + r) for r in range(4)] + ["v_bfe_i32 v%d, v244, %d, 1" % (BP + r, r) for r in range(4)]
    L1 += ["v_or_b32 v%d, s%d, v%d" % (BP0 + r, sT2, BP + r) for r in range(4)]
    L1 += ["v_and_b32 v%d, v%d, v%d" % (BS + r, vNEG, BS + r) for r in range(12)]
    L1 += ["v_and_b32 v244, 1, v0", "v_lshlrev_b32 v244, 4, v244", "v_mov_b32 v245, 0xffff", "v_lshlrev_b32 v%d, v244, v245" % vPM, "s_waitcnt vmcnt(40)"]
    for e in range(2):
        for tq in range(2):
            d = SL + (2 * e + tq) * 8
            L1.append("%s %s, %s, %s, %s" % (MFH, vr(d, 4), ar((AF[4], AF[2])[tq] + 2 * e, 2), ar(AF[tq] + 2 * e, 2), vr((BP0, BP)[tq], 4)))
            L1.append("%s %s, %s, %s, %s" % (MFH, vr(d + 4, 4), ar(AF[2 + tq] + 2 * e, 2), ar(AF[tq] + 2 * e, 2), vr(BS, 4)))
    L2 = ["v_max_f32 v%d, v%d, v%d" % (TA + j, SL + 2 * j, SL + 2 * j + 1) for j in range(16)]
    for n in range(4): L2 += maxtree(MXl[n], [TA + 4 * n + j for j in range(4)])
    L2 += xlane("v_max_f32", MXl, MXt)
    L2 += ["v_sub_f32 v%d, v%d, v%d" % (TA + j, TA + j, MXl[j // 4]) for j in range(16)]
    L2 += ["v_exp_f32 v%d, v%d" % (TA + j, TA + j) for j in range(16)]
    L2 += ["v_cvt_pk_bf16_f32 v%d, v%d, v%d" % (TA + j, TA + j, TA + j) for j in range(16)]
    L2 += ["v_and_b32 v%d, v%d, v%d" % (TA + j, vPM, TA + j) for j in range(16)]
    L2 += ["v_accvgpr_read_b32 v%d, a%d" % (246 + t, Q + 36 + t) for t in range(2)]
    for n in range(4): L2.append("%s %s, %s, %s, 0" % (MF16, vr(OL + 16 + 4 * n, 4), vr(ONES, 4), vr(TA + 4 * n, 4)))
    for e in range(2):
        L2.append("%s %s, %s, %s, 0" % (MFH, vr(OL + 4 * e, 4), ar(AF[7 + e] + 2, 2), vr(TA + 8 * e, 2)))
        L2.append("%s %s, %s, %s, 0" % (MF16, vr(OL + 8 + 4 * e, 4), ar(AF[5 + e], 4), vr(TA + 8 * e + 4, 4)))
    for e in range(2): L2.append("%s %s, %s, %s, %s" % (MFH, vr(OL + 4 * e, 4), ar(AF[5 + e], 2), vr(TA + 8 * e + 2, 2), vr(OL + 4 * e, 4)))
    L2 += ["s_mul_i32 s%d, s%d, %d" % (sA0, sRA, CROW), "s_lshl_b32 s%d, s%d, 11" % (sA1, sHP), "s_add_u32 s%d, s%d, s%d" % (sA0, sA0, sA1), "s_add_u32 s%d, s%d, 0x%x" % (sA0, sA0, OFF_C + 256 * 1024)]
    L2 += ["v_rcp_f32 v%d, v%d" % (MXl[n], OL + 16 + 4 * n) for n in range(4)]
    L2 += ["v_mul_f32 v%d, v%d, v%d" % (MXl[n], MXl[n], 246 + n % 2) for n in range(4)]
    for tq in range(2):
        for e in range(2): L2 += ["v_mul_f32 v%d, v%d, v%d" % (OL + 8 * tq + 4 * e + j, MXl[2 * e + tq], OL + 8 * tq + 4 * e + j) for j in range(4)]
        L2 += ["v_cvt_pk_bf16_f32 v%d, v%d, v%d" % (PA + 4 * tq + j, OL + 8 * tq + 2 * j, OL + 8 * tq + 2 * j + 1) for j in range(4)]
    LST = ["buffer_store_dwordx4 %s, v%d, s[%d:%d], s%d offen offset:%d sc1" % (vr(PA + 4 * tq, 4), vK, SV, SV + 3, sA0, tq * 1024) for tq in range(2)]
    for x in WRS + L1: a(x)
    SOUT = 4; sQ, sOUT = 26, 28
    vA, vW = (2, 3), (4, 5, 14, 15); ACC, FP = 16, 80
    srd(a, SOUT, 100, 2048 * 1024)
    a("s_lshr_b32 s%d, s%d, 3" % (sQ, sH))
    a("s_and_b32 s%d, s%d, 1\ns_lshl_b32 s%d, s%d, 1\ns_and_b32 s%d, s%d, 1\ns_add_u32 s%d, s%d, s%d\ns_lshl_b32 s%d, s%d, 12" % (sT0, sWV, sT0, sT0, sT1, sQ, sT2, sT0, sT1, sT0, sT2))
    a("v_add_u32 v%d, s%d, v%d\nv_xor_b32 v%d, 4096, v%d" % (vA[0], sT0, vK, vA[1], vA[0]))
    a("v_lshrrev_b32 v9, 2, v0\nv_and_b32 v8, 3, v9\nv_bfe_u32 v7, v0, 4, 1\nv_and_b32 v10, 2, v0\nv_or_b32 v7, v7, v10\nv_and_b32 v10, 1, v0\nv_lshlrev_b32 v10, 3, v10")
    a("s_and_b32 s%d, s%d, 2\ns_lshr_b32 s%d, s%d, 1\ns_add_u32 s%d, s%d, s%d\nv_xor_b32 v8, s%d, v8" % (sT0, sWV, sT1, sQ, sT0, sT0, sT1, sT0))
    a("v_lshl_or_b32 v8, v8, 2, v7\nv_lshlrev_b32 v8, 4, v8\nv_lshl_add_u32 v8, v9, 8, v8\nv_add_u32 v%d, v8, v10" % vW[0])
    a("v_xor_b32 v%d, 16, v%d\nv_xor_b32 v%d, 64, v%d\nv_xor_b32 v%d, 80, v%d" % (vW[1], vW[0], vW[2], vW[0], vW[3], vW[0]))
    a("s_and_b32 s%d, s%d, 3\ns_lshl_b32 s%d, s%d, 2\ns_add_u32 s%d, s%d, s%d\ns_lshl_b32 s%d, s%d, 6" % (sT1, sH, sT1, sT1, sT1, sT1, sT0, sOUT, sT1))
    a("s_lshl_b32 s%d, s%d, 2\ns_add_u32 s%d, s%d, s%d\ns_lshl_b32 s%d, s%d, 15\ns_add_u32 s%d, s%d, s%d" % (sT0, sRBK, sT0, sT0, sT2, sT0, sT0, sOUT, sOUT, sT0))
    a("v_and_b32 v6, 15, v0\nv_lshlrev_b32 v6, 10, v6\nv_lshrrev_b32 v7, 4, v0\nv_lshl_add_u32 v6, v7, 4, v6")
    a("v_min_u32 v9, 1, v0\nv_lshlrev_b32 v9, 29, v9\nv_mov_b32 v10, 1\nv_and_b32 v8, 7, v0\nv_lshlrev_b32 v8, 2, v8\nv_and_b32 v11, 12, v8")
    def signal_wait(sown, vo, pre):
        lp, lo_ = a.label("xpoll"), a.label("xok")
        a("s_waitcnt vmcnt(0)\ns_barrier\ns_cmp_lg_u32 s%d, 0\ns_cbranch_scc1 %s_s" % (sWV, lo_))
        a("buffer_store_dword v10, v9, s[%d:%d], s%d offen sc1\n%s_s:" % (SO, SO + 3, sown, lo_))
        for x in pre: a(x)
        a("s_cmp_lg_u32 s%d, 0\ns_cbranch_scc1 %s" % (sWV, lo_))
        a("s_and_b32 s%d, s%d, 0xffffff80\ns_mov_b32 s%d, 0x80000\n%s:" % (sT0, sown, sT1, lp))
        a("buffer_load_dword v12, v%d, s[%d:%d], s%d offen sc1\ns_waitcnt vmcnt(0)\nv_cmp_gt_u32 vcc, 1, v12\ns_cbranch_vccz %s" % (vo, SO, SO + 3, sT0, lo_))
        a("s_sleep %d\ns_sub_u32 s%d, s%d, 1\ns_cmp_lg_u32 s%d, 0\ns_cbranch_scc1 %s\n%s:" % (SLP, sT1, sT1, sT1, lp, lo_))
        a("s_waitcnt vmcnt(0)\ns_barrier")
    a("s_cmp_eq_u32 s%d, 0\ns_cselect_b32 s%d, 2, 0\ns_cselect_b32 s%d, 0, 0x20000000\nv_add_u32 v192, s%d, v8\nv_or_b32 v193, s%d, v9\nv_mov_b32 v194, 2\ns_and_b32 s%d, s%d, 0xffffff80" % (sWV, sG1, sT0, sT0, sT0, sG2, sFG))
    for x in L2[:LSPL]: a(x)
    signal_wait(sFG, 8, nt(a_dma(0) + a_dma(1)) + L2[LSPL:])
    st_("sync")
    for x in nt(a_dma(2) + a_dma(3)) + LST: a(x)
    curA, curW = [0], [0]
    def preads(u):
        st, us = u // 2, u % 2
        L = []
        def win(base, cur, regs_):
            w_ = base // 65536
            if w_ != cur[0]:
                d = (w_ - cur[0]) * 65536
                for r in regs_: L.append((("v_add_u32 v%d, 0x%x, v%d" % (r, d, r)) if d > 0 else ("v_subrev_u32 v%d, 0x%x, v%d" % (r, -d, r)), None))
                cur[0] = w_
            return base % 65536
        oa = win(ARING[st % 4], curA, vA); ow = win(WRING[st % 6], curW, vW)
        tr = lambda n: [("ds_read_b64_tr_b16 %s, v%d offset:%d" % (freg(u, 4 + n, 2 * r_, 2), vW[n], ow + us * 8192 + r_ * 4096), 4 + n) for r_ in range(2)]
        ac = [("ds_read_b128 %s, v%d offset:%d" % (freg(u, n), vA[n // 2], oa + us * 2048 + (n % 2) * 1024), n) for n in range(4)]
        if u >= 36 - ND: return L + tr(2) + ac + tr(3) + tr(0) + tr(1)
        return L + tr(0) + ac + tr(1) + tr(2) + tr(3)
    def freg(u, f, o=0, n=4):
        if u >= 36 - ND and f in (0, 1, 4, 5): return ar(16 * (u - 36 + ND) + 4 * (0, 1, 0, 0, 2, 3)[f] + o, n)
        return vr(FP + 32 * (u % 2) + 4 * f + o, n)
    def pm(u, wn, n):
        acc = vr(ACC + ((n // 2) + 2 * (wn // 2)) * 16 + (n % 2) * 8 + (wn % 2) * 4, 4)
        return "%s %s, %s, %s, %s" % (MF16, acc, freg(u, 4 + wn), freg(u, n), "0" if u == 0 else acc)
    Mp = []; u0 = []; fu = []; late = []; wpts = []
    for u in range(36):
        u0.append(len(Mp)); d_ = {}
        seq = [(wn, n) for wn in range(4) for n in range(4)]
        if u >= 36 - ND:
            late += [pm(u, wn, n) for wn, n in seq if wn < 2 and n < 2]
            seq = [(wn, n) for wn in (2, 3) for n in range(4)] + [(wn, n) for wn in (0, 1) for n in (2, 3)]
        for wn, n in seq:
            d_.setdefault(4 + wn, len(Mp)); d_.setdefault(n, len(Mp)); Mp.append(pm(u, wn, n))
        fu.append(d_); wpts += [u0[u], u0[u] + 8]
    SP_ = Sched(Mp); SP_.backlog = 10
    R0 = [(x, None if f is None else fu[0][f]) for x, f in preads(0)]
    for x, _ in R0: a(x)
    for u in range(1, 36):
        t0 = u0[u - 1] + (PB if u % 2 == 0 else 0)
        SP_.rq += [(x, t0, t0, None if f is None else fu[u][f]) for x, f in preads(u)]
    bpos = {st: u0[2 * st - 1] + PB for st in range(1, 18)}
    for st, b in bpos.items(): SP_.bars[b] = st
    SP_.waitpts = wpts
    SP_.place_reads()
    for g_ in range(SP_.n):
        for u_ in SP_.use[g_].values():
            if u_ is not None:
                st = max(k for k in range(36) if u0[k] <= u_) // 2
                assert g_ < bpos.get(st + 1, 9999), (g_, u_)
    for st in range(1, 18):
        b = bpos[st]
        G = []
        if st == 5: G.append("buffer_store_dword v194, v193, s[%d:%d], s%d offen sc1" % (SO, SO + 3, sFG))
        if st == 10: G.append(poll_load(4) + " ; need:13")
        if st + 3 < 18: G += a_dma(st + 3)
        if st + 5 < 18: G += w_dma(st + 5)
        SP_.place(G, b, bpos.get(st + 1, SP_.n) - 2, slack=30)
    nb_ = [0]
    def pbar(w):
        nb_[0] += 1
        a(w)
        if nb_[0] == 13: poll_check(4)
        if not XP & 4: a("s_barrier")
    SP_.emit(a, pbar, [u_ for _, u_ in R0], [2] * 4 + [3] * 4 + [5] * 2)
    if VERB: print("P over", SP_.over)
    st_("pm")
    a("s_nop 3")
    for j in (2, 3, 1):
        a("s_xor_b32 s%d, s%d, %d\ns_mul_i32 s%d, s%d, 49152\ns_add_u32 s%d, s%d, s%d\ns_add_u32 s%d, s%d, %d" % (sT0, sQ, j, sT0, sT0, sT0, sT0, sXO, sT0, sT0, (j - 1) * 16384))
        for r in range(8): a("v_cvt_pk_bf16_f32 v%d, v%d, v%d" % (FP + 8 * j + r, ACC + j * 16 + 2 * r, ACC + j * 16 + 2 * r + 1))
        for c in range(2): a("buffer_store_dwordx4 %s, v%d, s[%d:%d], s%d offen offset:%d sc1" % (vr(FP + 8 * j + 4 * c, 4), vK, SO, SO + 3, sT0, c * 1024))
    for x in late: a(x)
    signal_wait(sFX, 11, [])
    st_("xs")
    a("s_mov_b32 s%d, s%d" % (sT0, sXR))
    for j in range(1, 4):
        for c in range(2): a("buffer_load_dwordx4 %s, v%d, s[%d:%d], s%d offen offset:%d sc1" % (vr(ACC + j * 16 + 4 * c, 4), vK, SO, SO + 3, sT0, c * 1024))
        if j < 3: a("s_add_u32 s%d, s%d, 16384" % (sT0, sT0))
    for j in range(1, 4):
        a("s_waitcnt vmcnt(%d)" % (2 * (3 - j)))
        for r in range(8):
            t = ACC + j * 16 + r
            a("v_lshlrev_b32 v12, 16, v%d\nv_and_b32 v13, 0xffff0000, v%d\nv_add_f32 v%d, v%d, v12\nv_add_f32 v%d, v%d, v13" % (t, t, ACC + 2 * r, ACC + 2 * r, ACC + 2 * r + 1, ACC + 2 * r + 1))
    for r in range(8): a("v_cvt_pk_bf16_f32 v%d, v%d, v%d" % (FP + r, ACC + 2 * r, ACC + 2 * r + 1))
    a("s_nop 1")
    for pr in range(2): a("v_permlane16_swap_b32 v%d, v%d\nv_permlane16_swap_b32 v%d, v%d" % (FP + 4 * pr, FP + 4 * pr + 2, FP + 4 * pr + 1, FP + 4 * pr + 3))
    a("buffer_store_dwordx4 %s, v6, s[%d:%d], s%d offen %s\ns_add_u32 s%d, s%d, 16384" % (vr(FP, 4), SOUT, SOUT + 3, sOUT, OST, sOUT, sOUT))
    a("buffer_store_dwordx4 %s, v6, s[%d:%d], s%d offen %s" % (vr(FP + 4, 4), SOUT, SOUT + 3, sOUT, OST))
    if HOLD:
        ia, ib, wg = HOLD; lp = a.label("hold")
        a("s_waitcnt lgkmcnt(0)\ns_cmp_lg_u32 s2, %d\ns_cbranch_scc1 %s" % (wg, done))
        a("s_sub_u32 s22, s%d, s%d\ns_min_u32 s22, s22, 0x2000\ns_add_u32 s22, s22, 10000" % (74 + 4 * ib, 74 + 4 * ia))
        a("%s:\ns_memrealtime s[24:25]\ns_waitcnt lgkmcnt(0)\ns_sub_u32 s24, s24, s74\ns_cmp_lt_u32 s24, s22\ns_cbranch_scc1 %s" % (lp, lp))
    else: T.dump(SO, sWV, 4)
    a(done + ":\ns_endpgm")
    a(lRare + ":")
    for (ls, lb, kind) in spins:
        lp = a.label("sp")
        a(ls + ":\ns_mov_b32 s44, 0x40000\n%s:" % lp)
        a("s_sleep 8\n" + poll_load(kind) + "\ns_waitcnt vmcnt(0)\n%s\ns_cbranch_vccz %s" % (poll_cmp(kind), lb))
        a("s_sub_u32 s44, s44, 1\ns_cmp_lg_u32 s44, 0\ns_cbranch_scc1 %s\ns_branch %s" % (lp, lb))
    for (ls, lb) in rels:
        a("%s:\nbuffer_wbl2 sc1\ns_waitcnt vmcnt(0)\ns_branch %s" % (ls, lb))
    sRET = 44
    for (p, sm, qk, hs), (lr, users) in rare.items():
        for rid, (lj, lb) in enumerate(users): a("%s:\ns_mov_b32 s%d, %d\ns_branch %s" % (lj, sRET, rid, lr))
        a(lr + ":\ns_nop 7\ns_nop 7")
        for qb in range(4 // sm):
            cur = qregs(S[p], sm, qb, hs); d, f = vX, vX + 2
            if not cur: continue
            for x in maxtree(d, cur) + xlane("v_max_f32", [d], [d + 1]): a(x)
            a("v_max_f32 v%d, 0, v%d\nv_exp_f32 v%d, -v%d" % (d, d, f, d))
            nx = qregs(S[1 - p], qk, qb) if qb < 4 // qk else []
            for r in cur + [NM + 4 * qb + j for j in range(4)] + nx: a("v_sub_f32 v%d, v%d, v%d" % (r, r, d))
            a("v_mul_f32 v%d, v%d, v%d" % (vL[qb], vL[qb], f))
            for j in range(0, 32, 4):
                for q in range(4): a("v_accvgpr_read_b32 v%d, a%d" % (TM + q, O + qb * 32 + j + q))
                for q in range(4): a("v_mul_f32 v%d, v%d, v%d" % (TM + q, TM + q, f))
                for q in range(4): a("v_accvgpr_write_b32 a%d, v%d" % (O + qb * 32 + j + q, TM + q))
        for q in live(sm, hs):
            for n in range(8 * q, 8 * q + 8): a(ex(p, n))
            for j in range(4 * q, 4 * q + 4): a(cv(p, j))
        a("s_nop 1")
        for q in live(sm, hs): a(summ(p, sm, q))
        a("s_nop 7")
        for rid, (lj, lb) in enumerate(users):
            if rid < len(users) - 1: a("s_cmp_eq_u32 s%d, %d\ns_cbranch_scc1 %s" % (sRET, rid, lb))
            else: a("s_branch %s" % lb)
    a.add_kernel(name, 512, 102, 256)
    a.launch(name, 256, 256, 163840)
```

```python
from gen_common import *
from sched import Sched, isvm
from pack import Gaps, cost as gcost
import re as _re
MF16 = "v_mfma_f32_16x16x32_bf16"
MFH = "v_mfma_f32_16x16x16_bf16"
pX, pWQKV, pWO0, pC, pWQ, pWUK, pWUV, pBWO, pGATE, pDBG, pWS = 36, 38, 40, 44, 46, 48, 50, 52, 54, 58, 60
pWO = 58
NEG = "0xff800000"
THRESH = fbits(2.0 ** 48)
WSL = (98304, 131072)
LDS_G = WSL[0] + 24576
def aslot(g): return ((g + 2) % 3) * 32768
def flat(G): return [x for g in G for x in (g if isinstance(g, list) else [g])]
def soft(G):
    out = []
    for g in G:
        if any(x.startswith("s_cselect") for x in g):
            k = [j for j, x in enumerate(g) if x.startswith("s_cmp") or x.startswith("s_bitcmp")][0]
            out += g[:k] + [g[k:]]
        else: out += g
    return out

def gen2(a, name="p1_kernel", ts=False, PF=1, PD=8, WP=2, TS2=0, TS3=0, DFR=12, LSPL=110, SLP=4, QSL=(4, 6, 5), XSL=3, PDW=4, GPUB=11, VERB=0, NE=8, WPG=(1, 3, 5, 7), QPF=1, AP=(("c", 1), "cu", None, "xu"), FORCE=0, ST0=4, EXT=0, ND=10, OST="", PKV=1, XQ=0, XP=0, T15=1, WSP=(0, 4, 2), CR2=0, HOLD=None, CM=1, PB=2,
         STAMPS=("start", "q", "attn", "mid", "s17")):
    XL2 = 0; PRE0 = 0; endlabel = None; SENT = 0
    a.begin_kernel(name)
    T = TS(a, ts, 0, base=72)
    def st_(nm):
        if nm in STAMPS: T.stamp(STAMPS.index(nm))
    done = a.label("fdone")
    lAttn, lRare = a.label("attn"), a.label("rarecode")
    sWV = 3
    SA, SW, SX, SO, SD = 4, 8, 12, 16, 40
    sH, sI, sT0, sT1, sT2 = 20, 21, 22, 23, 24
    sAS, sAS2, sWS, sXS, sAM, sWM, sXM, sCNT, sOK, sDS, sSC = 25, 26, 27, 28, 29, 30, 31, 32, 33, 34, 35
    sQL, sQS, sU, sOA, sAD, sWD, sOJ, sVD, sFA, sGR = 92, 93, 94, 95, 96, 97, 56, 57, 63, 99
    sKO, sVO, sW4, sW8, sTH, sT = 48, 49, 50, 51, 54, 32
    vL16 = 1
    vAO, vWO, vXO = (2, 3, 4, 5), (6, 7, 8, 9), (10, 11)
    vAR, vWR, vXR = (12, 13), tuple(range(14, 22)), (22, 23, 24)
    vGR, vGA2, GC = 25, (26, 27), 92
    QS = (28, 44); WR, NWR = 60, 8; TT, PK = 96, 104
    KS = (128, 160)
    vFO, vONE, vPFD, vTS, vW12, vPL, vPLO = 120, 121, 122, 123, 124, 125, 126
    sWS2, sOK2, sHL = 62, 98, 55
    QA = 128
    t2 = [0]
    def bar(waitstr):
        if TS2:
            n = t2[0]; t2[0] += 1
            if n > 0: a("v_writelane_b32 v123, s72, %d\nv_writelane_b32 v123, s74, %d" % (2 * n - 2, 2 * n - 1))
            a("s_memtime s[72:73]")
        a(waitstr + "\ns_barrier")
        if TS2: a("s_memtime s[74:75]")
    a("s_cmp_ge_u32 s2, 256\ns_cbranch_scc1 %s" % done)
    st_("start")
    a("s_load_dwordx16 s[36:51], s[0:1], 0\ns_load_dwordx8 s[52:59], s[0:1], 64\ns_load_dwordx2 s[60:61], s[0:1], 96")
    a("v_lshrrev_b32 v30, 6, v0\nv_and_b32 v0, 63, v0\nv_readfirstlane_b32 s%d, v30" % sWV)
    a("s_and_b32 s%d, s2, 7\ns_lshl_b32 s%d, s%d, 2\ns_lshr_b32 s%d, s2, 3\ns_and_b32 s%d, s%d, 3\ns_add_u32 s%d, s%d, s%d" % (sH, sH, sH, sT0, sT0, sT0, sH, sH, sT0))
    a("s_lshr_b32 s%d, s2, 5" % sI)
    a("v_lshlrev_b32 v%d, 4, v0" % vL16)
    a("v_lshrrev_b32 v30, 3, v0\nv_lshrrev_b32 v31, 4, v0\nv_and_b32 v32, 7, v0")
    a("v_xor_b32 v33, v31, v32\nv_lshlrev_b32 v33, 4, v33\nv_lshl_add_u32 v%d, v30, 10, v33" % vAO[0])
    a("v_add_u32 v%d, %d, v%d\nv_xor_b32 v33, 64, v%d\nv_add_u32 v%d, %d, v33\nv_add_u32 v%d, %d, v33" % (vAO[2], 2 * 7168, vAO[0], vAO[0], vAO[1], 7168, vAO[3], 3 * 7168))
    a("v_and_b32 v33, 15, v0\nv_lshlrev_b32 v34, 2, v31\nv_xor_b32 v33, v33, v34\nv_lshlrev_b32 v33, 4, v33\nv_lshl_add_u32 v%d, v31, 13, v33" % vWO[0])
    a("v_add_u32 v%d, %d, v%d\nv_xor_b32 v33, 32, v%d\nv_add_u32 v%d, %d, v33\nv_add_u32 v%d, %d, v33" % (vWO[1], 31744, vWO[0], vWO[0], vWO[2], 2 * 31744, vWO[3], 3 * 31744))
    a("s_sub_u32 s%d, 15, s%d\ns_bitcmp1_b32 s%d, 0\ns_cselect_b32 s%d, s%d, s%d\ns_lshl_b32 s%d, s%d, 1\ns_lshr_b32 s%d, s%d, 1\ns_add_u32 s%d, s%d, s%d" % (sT0, sI, sWV, sT0, sT0, sI, sT0, sT0, sT1, sWV, sT0, sT0, sT1))
    a("s_lshl_b32 s%d, s%d, 16\ns_add_u32 s%d, s%d, 32768" % (sAS, sT0, sAS2, sAS))
    a("s_lshl_b32 s%d, s%d, 13\ns_mov_b32 s%d, s%d" % (sAM, sWV, sWM, sAM))
    a("s_and_b32 s%d, s%d, 1\ns_lshl_b32 s%d, s%d, 18\ns_lshl_b32 s%d, s%d, 8\ns_add_u32 s%d, s%d, s%d" % (sT0, sWV, sT0, sT0, sWS, sH, sWS, sWS, sT0))
    a("s_and_b32 s%d, s2, 31\ns_add_u32 s%d, s%d, 0x20000" % (sU, sWS2, sWS))
    a("v_and_b32 v33, 15, v0\nv_lshrrev_b32 v34, 1, v33\nv_xor_b32 v34, v34, v31\nv_lshlrev_b32 v34, 4, v34\nv_lshl_add_u32 v40, v33, 7, v34")
    a("s_and_b32 s%d, s%d, 1\ns_lshl_b32 s%d, s%d, 14\ns_add_u32 s%d, s%d, %d" % (sT0, sWV, sT0, sT0, sT0, sT0, aslot(0)))
    a("v_add_u32 v%d, s%d, v40\nv_xor_b32 v%d, 64, v%d" % (vAR[0], sT0, vAR[1], vAR[0]))
    a("v_lshrrev_b32 v35, 2, v0\nv_and_b32 v35, 3, v35\nv_lshl_add_u32 v36, v31, 3, v35")
    a("v_bfe_u32 v37, v0, 1, 1\nv_and_b32 v34, 1, v31\nv_lshl_add_u32 v37, v34, 1, v37\nv_and_b32 v38, 1, v0\nv_lshlrev_b32 v38, 3, v38")
    a("v_lshlrev_b32 v39, 2, v35\nv_xor_b32 v39, v39, v37\nv_lshlrev_b32 v39, 4, v39\nv_lshl_add_u32 v39, v36, 8, v39")
    a("s_lshr_b32 s%d, s%d, 1\ns_lshl_b32 s%d, s%d, 14\ns_add_u32 s%d, s%d, %d\nv_add3_u32 v39, v39, v38, s%d" % (sWD, sWV, sWD, sWD, sT0, sWD, WSL[0], sT0))
    for k in range(8): a("v_xor_b32 v%d, %d, v39" % (vWR[k], 32 * k))
    a("s_waitcnt lgkmcnt(0)")
    a("s_mov_b32 s100, s56\ns_mov_b32 s101, s57")
    srd(a, SA, pC, 0x200000)
    a("s_cmp_lt_u32 s%d, 2\ns_cselect_b32 s%d, s%d, s%d\ns_cselect_b32 s%d, s%d, s%d\ns_mov_b32 s%d, 0x400000\ns_mov_b32 s%d, 0x20000" % (sWV, SW, pWUK, pWUV, SW + 1, pWUK + 1, pWUV + 1, SW + 2, SW + 3))
    def dgrp(m0s, m0i, vo, srd_, so, stp, nd):
        G = ["s_add_u32 m0, s%d, %d" % (m0s, m0i)]
        G += ["buffer_load_dwordx4 v%d, s[%d:%d], s%d offen offset:%d lds ; need:%d" % (v, srd_, srd_ + 3, so, n * 1024, nd) for n, v in enumerate(vo)]
        G.append("s_add_u32 s%d, s%d, %d" % (so, so, stp))
        return G
    def fixm0(G):
        out = []
        for k, x in enumerate(G):
            out.append(x)
            if x.startswith("s_add_u32 m0"):
                if len(out) > 1 and out[-2].startswith("s_add_u32 s"): out[-1], out[-2] = out[-2], out[-1]
                else: out.append("s_nop 0")
        return out
    def dma_act(g): return fixm0(dgrp(sAM, aslot(g), vAO, SA, sAS, 128, g) + dgrp(sAM, aslot(g) + 4096, vAO, SA, sAS2, 128, g))
    def dma_w(g):
        G = dgrp(sWM, WSL[g % 2], vWO, SW, sWS, 0x80000, g)
        if g < 8: G += dgrp(sWM, WSL[g % 2] + 4096, vWO, SW, sWS2, 0x80000, g)
        else: G += dgrp(sXM, WSL[g % 2] + 16384, vXO, SX, sXS, 64 * 3072, g)
        return fixm0(G)
    st_("d0")
    D0 = [dgrp(sWM, WSL[0], vWO, SW, sWS, 0x80000, 0), dgrp(sAM, aslot(0), vAO, SA, sAS, 128, 0), dgrp(sWM, WSL[0] + 4096, vWO, SW, sWS2, 0x80000, 0), dgrp(sAM, aslot(0) + 4096, vAO, SA, sAS2, 128, 0)]
    for x in fixm0(flat(D0[:ST0])): a(x.split(";")[0])
    st_("d1")
    NSL = max(len(AP), max(QSL) + 1)
    def preg(k): return 192 + 2 * k
    def pf(k): return "global_load_dword v122, %s, off" % vr(preg(k), 2)
    def pfa(k, base, vo, so, imm=0):
        r = preg(k)
        a("s_add_u32 s%d, s%d, %d\nv_mov_b32 v%d, s%d\nv_add_u32 v%d, s%d, v%d" % (sT2, so, imm, r + 1, base + 1, r, sT2, vo))
        a("v_add_co_u32 v%d, vcc, s%d, v%d\ns_nop 1\nv_addc_co_u32 v%d, vcc, 0, v%d, vcc" % (r, base, r, r + 1, r + 1))
    def pfnone(k): a("v_mov_b32 v%d, s%d\nv_mov_b32 v%d, s%d" % (preg(k), pGATE, preg(k) + 1, pGATE + 1))
    def pf0():
        if ST0 == 4: a(pf(0))
    if PF:
        l1, l3, le = a.label("pf1"), a.label("pf3"), a.label("pfe")
        a("s_cmp_eq_u32 s%d, 1\ns_cbranch_scc1 %s\ns_cmp_eq_u32 s%d, 3\ns_cbranch_scc1 %s" % (sWV, l1, sWV, l3))
        a("s_lshr_b32 s%d, s2, 3\ns_lshl_b32 s%d, s%d, 16\ns_lshl_b32 s%d, s%d, 6\ns_add_u32 s%d, s%d, s%d\nv_lshlrev_b32 v26, 10, v0" % (sT0, sT0, sT0, sT1, sWV, sT1, sT0, sT1))
        def one(k):
            e = AP[k] if k < len(AP) else None
            if e is None: pfnone(k)
            elif isinstance(e, tuple): pfa(k, pC if e[0] == "c" else pX, 26, sT1, 128 * e[1])
            else: pfa(k, pC if e == "cu" else pX, 27, sT0, 0)
        if not isinstance(AP[0], str): one(0); pf0()
        a("v_and_b32 v27, 31, v0\nv_lshlrev_b32 v27, 7, v27\ns_lshl_b32 s%d, s2, 13\ns_lshl_b32 s%d, s%d, 11\ns_add_u32 s%d, s%d, s%d" % (sT0, sCNT, sWV, sT0, sT0, sCNT))
        if isinstance(AP[0], str): one(0); pf0()
        for k in range(1, NSL): one(k)
        a("s_branch %s\n%s:" % (le, l1))
        a("v_lshlrev_b32 v26, 13, v30\nv_lshl_add_u32 v26, v32, 7, v26")
        a("s_bitcmp1_b32 s2, 3\ns_cselect_b32 s98, s%d, s%d\ns_cselect_b32 s99, s%d, s%d" % (pWUV, pWUK, pWUV + 1, pWUK + 1))
        a("s_and_b32 s%d, s2, 7\ns_lshl_b32 s%d, s%d, 10\ns_lshr_b32 s%d, s2, 4\ns_and_b32 s%d, s%d, 7\ns_lshl_b32 s%d, s%d, 16\ns_lshl_b32 s%d, s%d, 16" % (sT1, sT1, sT1, sT0, sCNT, sT0, sT0, sT0, sCNT, sCNT))
        a("s_add_u32 s%d, s%d, s%d\ns_add_u32 s%d, s%d, s%d" % (sT0, sT0, sT1, sCNT, sCNT, sT1))
        for k in range(NSL):
            c_ = WPG[k] if k < len(WPG) else None
            if c_ is None: pfnone(k)
            else: pfa(k, 98, 26, sT0 if c_ < 7 else sCNT, c_ * 0x80000)
            if k == 0: pf0()
        a("s_branch %s\n%s:" % (le, l3))
        lpc = a.label("pc")
        a("s_getpc_b64 s[98:99]\n%s:" % lpc)
        a("s_lshr_b32 s%d, s2, 3\nv_lshlrev_b32 v26, 5, v0\nv_add_u32 v26, s%d, v26\nv_lshlrev_b32 v26, 7, v26\ns_mov_b32 s%d, 0" % (sT0, sT0, sT0))
        a("v_min_u32 v27, %s-%s, v26" % (lAttn, lpc))
        pfa(0, 98, 27, sT0, 0); pf0()
        a("v_lshlrev_b32 v26, 13, v30\nv_lshl_add_u32 v26, v32, 7, v26")
        a("s_lshr_b32 s%d, s2, 3\ns_lshl_b32 s%d, s%d, 16\ns_and_b32 s%d, s2, 7\ns_lshl_b32 s%d, s%d, 10\ns_add_u32 s%d, s%d, s%d" % (sT0, sT0, sT0, sT1, sT1, sT1, sT0, sT0, sT1))
        pfa(QSL[0], pWQ, 26, sT0, 0); pfa(QSL[1], pWQ, 26, sT0, 4 * 0x80000)
        a("s_min_u32 s%d, s%d, 23\ns_lshl_b32 s%d, s%d, 7\ns_mul_i32 s%d, s%d, %d\ns_add_u32 s%d, s%d, s%d\nv_mul_u32_u24 v26, 3072, v0" % (sT0, sU, sT0, sT0, sT1, sI, 64 * 3072, sT0, sT0, sT1))
        pfa(QSL[2], pWQKV, 26, sT0, 0)
        for k in range(1, NSL):
            if k not in QSL or not QPF: pfnone(k)
        a(le + ":")
    def pfp(p): return [pf(p + 2)] if (PF and p + 2 < NSL) else []
    lpc2 = a.label("pc")
    a("s_getpc_b64 s[0:1]\n%s:" % lpc2)
    srd(a, SO, pWS, WS_SIZE); srd(a, SX, pGATE, 1024)
    a("s_mov_b32 s98, s%d\ns_mov_b32 s99, s%d" % (pWO0, pWO0 + 1))
    srd(a, SD, pDBG, 256)
    a("s_mov_b32 s%d, s98\ns_mov_b32 s%d, s99" % (pWO, pWO + 1))
    DF = []
    def d(t): DF.extend(t.split("\n"))
    d("s_lshl_b32 s%d, s%d, 6\nv_add_u32 v%d, s%d, v0\nv_lshlrev_b32 v%d, 12, v%d\nv_min_u32 v%d, 1, v%d\nv_lshlrev_b32 v%d, 29, v%d" % (sT0, sWV, vFO, sT0, vFO, vFO, vONE, vFO, vONE, vONE))
    d("s_getreg_b32 s%d, hwreg(HW_REG_XCC_ID, 0, 4)\ns_mul_i32 s%d, s%d, s%d\ns_lshl_b32 s%d, s%d, 8\ns_add_u32 s%d, s%d, s%d\ns_lshl_b32 s%d, s%d, 8\ns_add_u32 s%d, s%d, 1" % (sT0, sT1, sT0, sT0, sT1, sT1, sT1, sT1, sT0, sT1, sT1, sFA, sT1))
    d("v_mov_b32 v125, s%d\ns_lshl_b32 s%d, s%d, 3\ns_and_b32 s%d, s2, 7\ns_lshl_b32 s%d, s%d, 2\ns_lshl_b32 s%d, s%d, 2" % (sFA, sFA, sFA, sGR, sGR, sGR, sCNT, sH))
    d("v_and_b32 v126, 31, v0\ns_lshl_b32 s%d, s%d, 12\nv_lshl_add_u32 v126, v126, 2, s%d" % (sT0, sWV, sT0))
    d("s_min_u32 s%d, s%d, 1\ns_lshl_b32 s%d, s%d, 29\nv_and_b32 v124, 7, v0\nv_lshl_add_u32 v124, v124, 2, s%d" % (sT0, sWV, sT0, sT0, sT0))
    d("s_lshl_b32 s%d, s%d, 7\ns_add_u32 s%d, s%d, 0x%x\ns_lshl_b32 s%d, s%d, 2\ns_add_u32 s%d, s%d, s%d" % (sHL, sH, sHL, sHL, OFF_FL + 128 * 128, sU, sI, sU, sU, sHL))
    d("s_lshr_b32 s%d, s2, 3\ns_lshl_b32 s%d, s%d, 2\ns_add_u32 s%d, s%d, s%d\nv_and_b32 v127, 15, v0\nv_lshlrev_b32 v127, 7, v127\nv_add_lshl_u32 v127, v127, s%d, 7" % (sT0, sT0, sT0, sT0, sT0, sWV, sT0))
    d("v_min_u32 v127, %s-%s, v127" % (lRare, lpc2))
    d("v_lshrrev_b32 v39, 1, v35\nv_lshlrev_b32 v39, 2, v39\nv_xor_b32 v39, v39, v37\nv_lshlrev_b32 v39, 4, v39\nv_lshl_add_u32 v39, v36, 7, v39\nv_add_u32 v39, v39, v38\nv_add_u32 v39, %d, v39" % (WSL[0] + 16384))
    for k in range(3): d("v_xor_b32 v%d, %d, v39" % (vXR[k], 32 * k))
    d("s_and_b32 s%d, s%d, 3\ns_and_b32 s%d, s2, 7\ns_lshl_b32 s%d, s%d, 7" % (sT0, sH, sT1, sT1, sT1))
    d("s_lshl_b32 s%d, s%d, 5\ns_add_u32 s%d, s%d, s%d\ns_add_u32 s%d, s%d, %d" % (sT2, sT0, sT2, sT2, sT1, sT2, sT2, 2048 - 64))
    d("s_lshr_b32 s%d, s%d, 1\ns_lshl_b32 s%d, s%d, 10\ns_add_u32 s%d, s%d, s%d\ns_and_b32 s%d, s%d, 1\ns_lshl_b32 s%d, s%d, 6\ns_add_u32 s%d, s%d, s%d" % (sDS, sT0, sDS, sDS, sT1, sT1, sDS, sDS, sT0, sDS, sDS, sT1, sT1, sDS))
    d("v_and_b32 v33, 1, v31\nv_lshlrev_b32 v33, 2, v33\nv_xor_b32 v33, v33, v32\nv_mul_u32_u24 v34, 3072, v30\nv_mov_b32 v36, s%d\nv_mov_b32 v37, s%d\nv_mov_b32 v38, 0x1000000" % (sT1, sT2))
    for n in range(2):
        if n: d("v_xor_b32 v33, 2, v33\nv_add_u32 v34, %d, v34" % (24576 - 1024))
        d("v_cmp_gt_u32 vcc, 4, v33\nv_cmp_gt_u32 s[66:67], 6, v33\nv_lshl_add_u32 v35, v33, 4, v34\nv_cndmask_b32 v39, v37, v36, vcc\nv_cndmask_b32 v39, v38, v39, s[66:67]\nv_add_u32 v%d, v35, v39" % vXO[n])
    d("s_lshl_b32 s%d, s%d, 11\ns_lshl_b32 s%d, s%d, 13\ns_add_u32 s%d, s%d, s%d\ns_add_u32 s%d, s%d, %d" % (sT0, sT0, sT1, sWV, sT0, sT0, sT1, sT0, sT0, aslot(8)))
    d("v_add_u32 v%d, s%d, v40\nv_xor_b32 v%d, 64, v%d\nv_lshlrev_b32 v%d, 4, v31\nv_add_u32 v%d, %d, v%d" % (vGA2[0], sT0, vGA2[1], vGA2[0], vGR, vGR, LDS_G, vGR))
    d("s_lshl_b32 s%d, s%d, 2\ns_add_u32 s%d, s%d, s%d\ns_sub_u32 s%d, 60, s%d\ns_add_u32 s%d, s%d, s%d" % (sT1, sI, sQS, sT1, sWV, sQL, sT1, sQL, sQL, sWV))
    d("s_lshr_b32 s%d, s%d, 1\ns_lshl_b32 s%d, s%d, 5\ns_add_u32 s%d, s%d, s%d\ns_add_u32 s%d, s%d, 44\ns_lshl_b32 s%d, s%d, 19" % (sT0, sWV, sT0, sT0, sT0, sT0, sH, sT0, sT0, sOK, sT0))
    d("s_and_b32 s%d, s%d, 1\ns_lshl_b32 s%d, s%d, 1\ns_add_u32 s%d, s%d, s%d\ns_lshl_b32 s%d, s%d, 14\ns_add_u32 s%d, s%d, s%d" % (sT0, sWV, sT1, sI, sT0, sT0, sT1, sT0, sT0, sOK, sOK, sT0))
    d("s_lshl_b32 s%d, s%d, 16\ns_sub_u32 s%d, %d, s%d\ns_add_u32 s%d, s%d, 8192" % (sT0, sI, sOJ, 60 * 8192 - 4096, sT0, sOK2, sOK))
    d("s_lshl_b32 s%d, s%d, 13\ns_and_b32 s%d, s%d, 1\ns_lshl_b32 s%d, s%d, 14\ns_sub_u32 s%d, s%d, s%d\ns_add_u32 s%d, s%d, %d" % (sT0, sWV, sT1, sWV, sT1, sT1, sAD, sT0, sT1, sAD, sAD, aslot(8) - aslot(7)))
    PLA = "buffer_atomic_add v125, v%d, s[%d:%d], s%d offen sc1" % (vFO, SD, SD + 3, sCNT)

    def ub(j): return ((j + 24) % 32 if j < 8 else j + 8 if j < 16 else j - 16) * 8
    AA = 192
    def wofs(g): return (g % 2) * 32768
    def xa(g, ks, R=vAR):
        if g == 7: return "v_add_u32 v%d, s%d, v%d" % (R[ks], sAD, R[ks])
        d = aslot(g + 1) - aslot(g)
        return ("v_add_u32 v%d, 0x%x, v%d" % (R[ks], d, R[ks])) if d > 0 else ("v_subrev_u32 v%d, 0x%x, v%d" % (R[ks], -d, R[ks]))
    def rd_act(g, ks):
        F = (KS if g < 8 else QS)[ks]
        return ["ds_read_b128 %s, v%d offset:%d" % (vr(F + 4 * n, 4), vAR[ks], n * 2048) for n in range(8 if g < 8 else 4)]
    def rd_w(g, ks, wf, slot):
        r = WR + 4 * (slot % NWR)
        if wf < 8: return ["ds_read_b64_tr_b16 %s, v%d offset:%d" % (vr(r + 2 * rd_, 2), vWR[wf], wofs(g) + ks * 8192 + rd_ * 1024) for rd_ in range(2)]
        if wf < 11: return ["ds_read_b64_tr_b16 %s, v%d offset:%d" % (vr(r + 2 * rd_, 2), vXR[wf - 8], wofs(g) + ks * 4096 + rd_ * 512) for rd_ in range(2)]
        return ["ds_read_b128 %s, v%d offset:%d" % (vr(r, 4), vGR, ((g - 8) * 2 + ks) * 64), "ds_read_b128 %s, v%d" % (vr(GC, 4), vGA2[ks])] + ([xa(g, ks, vGA2)] if g < 15 else [])
    def mfs(g, ks, wf, slot, var):
        w = vr(WR + 4 * (slot % NWR), 4); F = (KS if g < 8 else QS)[ks]; first = (g % 8 == 0 and ks == 0)
        cb, tc = (wf % 8) // 2, wf % 2
        if wf == 11: return ["%s %s, %s, %s, %s" % (MF16, ar(AA + 48, 4), w, vr(GC, 4), "0" if first else ar(AA + 48, 4))]
        M = []
        for n in range(8 if g < 8 else 4):
            rb, tr = n // 2, n % 2
            x = vr(F + 4 * n, 4)
            sw = (var == "V") or wf == 10
            tb, ta = (tc, tr) if sw else (tr, tc)
            if g < 8: acc = ar(ub((rb // 2) * 16 + cb * 4 + (rb % 2) * 2 + tb) + ta * 4, 4)
            elif wf < 8: acc = vr(QA + ((rb * 4 + cb) * 2 + tr) * 8 + tc * 4, 4)
            elif wf < 10: acc = ar(AA + n * 8 + tc * 4, 4)
            else: acc = ar(AA + 32 + n * 4, 4)
            M.append("%s %s, %s, %s, %s" % (MF16, acc, x if sw else w, w if sw else x, "0" if first else acc))
        return M
    def order(g, var):
        nw = list(range(8 if g < 8 else 12))
        if g == 7: return [(ks, 2 * cb + t) for cb in range(4) for ks in range(2) for t in range(2)]
        if g == 15:
            return [(ks, wf) for ks in range(2) for wf in (8, 9, 10, 0, 1, 11)] + [(ks, 2 * cb + t) for cb in range(1, 4) for ks in range(2) for t in range(2)]
        return [(ks, wf) for ks in range(2) for wf in nw]
    def build(g0, var):
        fr = [(g, ks, wf) for g in range(g0, g0 + 8) for (ks, wf) in order(g, var)]
        M = []; fm = []
        for k, (g, ks, wf) in enumerate(fr):
            fm.append(len(M)); M += mfs(g, ks, wf, k, var)
        S_ = Sched(M); n = len(M)
        look = [(8, 0, wf) for wf in range(PDW)] if g0 == 0 else []
        allf = fr + look
        cs = {};
        for k, (g, ks, wf) in enumerate(allf): cs.setdefault(g, k)
        bar_m = {g: fm[cs[g] - PDW + 1] for g in cs if g > g0}
        for g, m in bar_m.items(): S_.bars[m] = g
        na = 8 if g0 == 0 else 4
        items = []
        for k in range(PDW, len(allf)):
            g, ks, wf = allf[k]
            t = fm[k - PDW]; e = bar_m.get(g, 0); use = fm[k] if k < len(fr) else n + 1 + (k - len(fr))
            if k == cs[g] and g == 8: items += [(max(t, e), 0, j, ("v_subrev_u32 v%d, s%d, v%d" % (r, sWD, r), t, e, None)) for j, r in enumerate(vWR)]
            items += [(max(t, e), 1 if k == cs[g] else 3, 4 * k + j, (x, t, e, use if x.startswith("ds_") else None)) for j, x in enumerate(rd_w(g, ks, wf, k))]
        for g in cs:
            for ks in range(2):
                if g == g0 and ks == 0: continue
                if g == 8 and g0 == 0 and ks == 1: continue
                R = rd_act(g, ks) + ([xa(g, ks)] if g < 15 else [])
                k1 = [k for k, f in enumerate(allf) if f[0] == g and f[1] == ks][0]
                u0 = fm[k1] if k1 < len(fr) else None
                for j, x in enumerate(R):
                    if ks == 0: t = e = bar_m[g]
                    else:
                        e = fm[cs[g]]; t = e + (j * min(u0 - e - 8, 40)) // len(R)
                    use = None if not x.startswith("ds_") else (u0 + j if u0 is not None else n)
                    items.append((max(t, e), 2, j, (x, t, e, use)))
        items.sort(key=lambda z: z[:3])
        S_.rq = [z[3] for z in items]
        S_.waitpts = [fm[k] for k in range(0, len(fr), 2)]
        S_.place_reads()
        return S_, {g: fm[cs[g]] for g in range(g0, g0 + 8)}, bar_m, fm
    def pack(areg, pk, scale=None):
        t = TT
        G = ["v_accvgpr_read_b32 v%d, a%d" % (t + j, areg + j) for j in range(8)]
        if scale is not None: G += ["v_mul_f32 v%d, s%d, v%d" % (t + j, scale, t + j) for j in range(8)]
        G += ["v_cvt_pk_bf16_f32 v%d, v%d, v%d" % (pk + j, t + 2 * j, t + 2 * j + 1) for j in range(4)]
        return G
    def kv_unit(j, nd=None):
        cb, rb, tb = (j % 16) // 4, (j // 2) % 2, j % 2
        pk = PK + 4 * (j % 4)
        G = pack(ub(j), pk) + ["buffer_store_dwordx4 %s, v%d, s[%d:%d], s%d offen offset:%d%s" % (vr(pk, 4), vL16, SO, SO + 3, (sOK, sOK2)[rb], (cb % 2) * 2048 + tb * 1024, " ; need:%d" % nd if nd else "")]
        if j == 15: G += ["s_add_u32 s%d, s%d, s%d" % (sOK, sOK, sOJ), "s_add_u32 s%d, s%d, s%d" % (sOK2, sOK2, sOJ)]
        elif j % 16 == 7: G += ["s_add_u32 s%d, s%d, 4096" % (sOK, sOK), "s_add_u32 s%d, s%d, 4096" % (sOK2, sOK2)]
        return G
    qa_setup = [["s_mov_b32 s%d, s%d" % (SA, pX), "s_mov_b32 s%d, s%d" % (SA + 1, pX + 1),
                 "s_lshl_b32 s%d, s%d, 14" % (sT0, sWV), "s_lshl_b32 s%d, s%d, 15" % (sAS, sQL), "s_lshl_b32 s%d, s%d, 15" % (sAS2, sQS),
                 "s_sub_u32 s%d, s%d, s%d" % (sAS, sAS, sT0), "s_sub_u32 s%d, s%d, s%d" % (sAS2, sAS2, sT0),
                 "s_lshl_b32 s%d, s%d, 1" % (sT0, sT0), "s_sub_u32 s%d, %d, s%d" % (sT0, 6 * 16384, sT0),
                 "v_add_u32 v%d, s%d, v%d" % (vAO[2], sT0, vAO[2]), "v_add_u32 v%d, s%d, v%d" % (vAO[3], sT0, vAO[3])]]
    qw_setup = [["s_mov_b32 m0, %d" % LDS_G, "s_mov_b32 s%d, s%d" % (SW, pWQ), "buffer_load_dwordx4 v%d, s[%d:%d], 0 offen lds ; need:8" % (vL16, SX, SX + 3), "s_mov_b32 s%d, s%d" % (SW + 1, pWQ + 1)],
                ["s_lshl_b32 s%d, s%d, 17" % (sT0, sWV), "s_lshl_b32 s%d, s%d, 8" % (sWS, sH), "s_add_u32 s%d, s%d, s%d" % (sWS, sWS, sT0), "s_lshl_b32 s%d, s%d, 12" % (sWM, sWV)],
                ["s_mov_b32 s%d, s%d" % (SX, pWQKV), "s_mov_b32 s%d, s%d" % (SX + 1, pWQKV + 1), "s_lshl_b32 s%d, s%d, 11" % (sXM, sWV), "s_mul_i32 s%d, s%d, %d" % (sXS, sWV, 16 * 3072)],
                ["s_mov_b32 s%d, 0x180000" % (SX + 2)]]
    at_setup = [["v_cmp_ne_u32 vcc, s%d, v125" % sFA, "v_mov_b32 v%d, 1" % vFO, "s_nop 0", "s_lshr_b32 s%d, vcc_lo, s%d" % (sT0, sGR), "s_and_b32 s%d, s%d, 15" % (sT0, sT0)],
                ["s_cmp_eq_u32 s%d, 0" % sT0, "s_cselect_b32 s%d, 1, s%d" % (sFA, sWV)],
                ["s_cmp_eq_u32 s%d, 0" % sWV, "s_cselect_b32 s46, 1, 0", "s_cselect_b32 s47, 2, 0"],
                ["s_lshl_b32 s%d, s%d, 12" % (sW4, sWV), "s_lshl_b32 s%d, s%d, 13" % (sW8, sWV), "s_lshl_b32 s%d, s%d, 19" % (sT0, sH)],
                ["s_lshl_b32 s%d, s%d, 15" % (sVD, sI), "s_add_u32 s%d, s%d, s%d" % (sT0, sT0, sVD)],
                ["s_add_u32 s%d, s%d, 0x%x" % (sKO, sT0, OFF_K), "s_add_u32 s%d, s%d, 0x%x" % (sVO, sT0, OFF_V), "s_mov_b32 s%d, %s" % (sTH, THRESH)]]
    sRA, sHP, sA0, sA1, sGB, sGA_, sGL_, sGS_, sP0, sP1_, sX0, sX1 = 36, 37, 38, 39, 64, 65, 66, 67, 68, 69, 70, 71
    sXO, sXR = 62, 95
    sFG, sFX, sRBK, sTIL = 96, 97, 60, 61
    late_setup = [["s_lshr_b32 s%d, s%d, 3" % (sX1, sH), "s_lshl_b32 s%d, s%d, 3" % (sFG, sX1), "s_add_u32 s%d, s%d, s%d" % (sFG, sFG, sI), "s_lshl_b32 s%d, s%d, 5" % (sFG, sFG),
                 "s_and_b32 s%d, s%d, 7" % (sX0, sH), "s_add_u32 s%d, s%d, s%d" % (sFG, sFG, sX0), "s_lshl_b32 s%d, s%d, 2" % (sFG, sFG), "s_add_u32 s%d, s%d, 0x%x" % (sFG, sFG, OFF_FL),
                 "s_sub_u32 s%d, 15, s%d" % (sX0, sI)], ["s_bitcmp1_b32 s2, 0", "s_cselect_b32 s%d, s%d, s%d" % (sRBK, sX0, sI)], ["s_lshl_b32 s%d, s%d, 2" % (sFX, sRBK),
                 "s_and_b32 s%d, s%d, 3" % (sX0, sH), "s_add_u32 s%d, s%d, s%d" % (sTIL, sFX, sX0), "s_lshl_b32 s%d, s%d, 5" % (sFX, sTIL), "s_add_u32 s%d, s%d, s%d" % (sFX, sFX, sX1),
                 "s_lshl_b32 s%d, s%d, 2" % (sFX, sFX), "s_add_u32 s%d, s%d, 0x%x" % (sFX, sFX, OFF_FL + 32 * 128)],
        ["s_bitcmp1_b32 s%d, 1" % sH, "s_cselect_b32 s%d, s%d, s%d" % (sRA, sQL, sQS)],
        ["s_and_b32 s%d, s%d, 1" % (sHP, sH), "s_lshr_b32 s%d, s%d, 1" % (sX0, sGR), "s_add_u32 s%d, s%d, s%d" % (sHP, sHP, sX0), "s_lshl_b32 s%d, s%d, 11" % (sGB, sGR), "s_add_u32 s%d, s%d, 0x%x" % (sGB, sGB, OFF_G)]]
    sTI = (sQL, sGS_, sQS, 45)
    late_setup.append(["s_lshl_b32 s%d, s%d, 7" % (sGA_, sRA), "s_add_u32 s%d, s%d, s%d" % (sGA_, sGA_, sGB), "s_mov_b32 s%d, s%d" % (sGL_, sGB)])
    for lo_, hi_ in ((sTI[0], sTI[1]), (sTI[2], sTI[3])):
        late_setup.append(["s_lshl_b32 s%d, s%d, 1" % (lo_, lo_), "s_sub_u32 s%d, s%d, s%d" % (lo_, lo_, sWV), "s_xor_b32 s%d, s%d, 7" % (hi_, lo_)])
    late_setup += [["s_lshr_b32 s%d, s%d, 2" % (sX0, sHP), "s_lshl_b32 s%d, s%d, 19" % (sX0, sX0), "s_and_b32 s%d, s%d, 3" % (sX1, sHP), "s_lshl_b32 s%d, s%d, 11" % (sX1, sX1),
         "s_add_u32 s%d, s%d, s%d" % (sX0, sX0, sX1), "s_lshl_b32 s%d, s%d, 13" % (sX1, sRA), "s_add_u32 s%d, s%d, s%d" % (sA0, sX0, sX1),
         "s_max_u32 s%d, s%d, 1" % (sX1, sRA), "s_sub_u32 s%d, s%d, 1" % (sX1, sX1), "s_lshl_b32 s%d, s%d, 13" % (sX1, sX1), "s_add_u32 s%d, s%d, s%d" % (sA1, sX0, sX1),
         "s_add_u32 s%d, s%d, %d" % (sA1, sA1, 4 * PH),
         "s_lshr_b32 s%d, s2, 3" % sX0, "s_lshl_b32 s%d, s%d, 2" % (sX0, sX0), "s_add_u32 s%d, s%d, s%d" % (sX0, sX0, sWV), "s_and_b32 s%d, s2, 6" % sX1,
         "s_lshl_b32 s%d, s%d, 6" % (sX1, sX1), "s_add_u32 s%d, s%d, s%d" % (sX0, sX0, sX1), "s_lshl_b32 s%d, s%d, 6" % (sP0, sX0), "s_lshl_b32 s%d, s%d, 3" % (sP1_, sX0),
         "s_mul_i32 s%d, s%d, %d" % (sXO, sTIL, 4 * 49152), "s_add_u32 s%d, s%d, s%d" % (sXO, sXO, sW4), "s_add_u32 s%d, s%d, 0x%x" % (sXO, sXO, OFF_X),
         "s_lshr_b32 s%d, s%d, 3" % (sXR, sH), "s_mul_i32 s%d, s%d, 49152" % (sXR, sXR), "s_add_u32 s%d, s%d, s%d" % (sXR, sXR, sXO),
         "s_add_u32 s%d, s%d, %d" % (sX0, sA0, 4 * PH), "s_add_u32 s%d, s%d, %d" % (sX1, sA0, 8 * PH), "s_add_u32 s%d, s%d, %d" % (sGB, sA1, 4 * PH)]]
    def ren(G, mp): return [[_re.sub(r"\bs(\d+)\b", lambda m_: "s%d" % mp.get(int(m_.group(1)), int(m_.group(1))), x) for x in g] for g in G]
    early = ren(late_setup[:3], {sFG: 64, sFX: 65})
    early += [["v_mov_b32 v28, 0"] + ["buffer_store_dword v28, v%d, s[%d:%d], s%d offen sc1 ; need:2" % (vONE, SO, SO + 3, r) for r in (64, 65, sU)]]
    SK, SV = SO, SO
    vK, vV = vL16, 2
    def dma(which, typ, par, srd_=None):
        so, sr_, base = (sKO, SK, 0) if which == "K" else (sVO, SV, 65536)
        if srd_ is not None: sr_ = srd_
        sw = sW4 if typ == 1 else sW8
        G = []
        for q in range(typ):
            g = ["s_add_u32 m0, s%d, %d" % (sw, base + par * 32768 + q * 4096)]
            g.append("s_add_u32 s%d, s%d, s%d" % (sDS, so, sw) if q == 0 else "s_add_u32 s%d, s%d, 4096" % (sDS, sDS))
            G.append(g)
            for o in range(4):
                G.append(["buffer_load_dwordx4 v%d, s[%d:%d], s%d offen offset:%d sc1 lds" % (vK, sr_, sr_ + 3, sDS, o * 1024)])
        return G
    def adv(which, typ):
        so = sKO if which == "K" else sVO
        return ["s_add_u32 s%d, s%d, %d" % (so, so, 16384 * typ)]
    spins = []
    vF1, vFA, vPO = 122, 251, 250
    sP1, sG1, sG2 = 45, 46, 47
    def poll_load(kind):
        if kind == 0: return "buffer_load_dword v125, v126, s[%d:%d], 0 offen sc1" % (SD, SD + 3)
        if kind == 1: return "buffer_load_dword v%d, v124, s[%d:%d], s%d offen sc1" % (vF1, SO, SO + 3, sHL)
        if kind == 4: return "buffer_load_dword v195, v192, s[%d:%d], s%d offen sc1" % (SO, SO + 3, sG2)
        return "buffer_load_dword v%d, v%d, s[%d:%d], s%d offen sc1" % (vFA, vPO, SO, SO + 3, sHL)
    def poll_cmp(kind):
        if kind == 0: return "v_and_b32 v%d, 0xff, v125\nv_cmp_gt_u32 vcc, s%d, v%d" % (vFO, sP1, vFO)
        return "v_cmp_gt_u32 vcc, s%d, v%d" % ((sG1, vF1) if kind == 1 else (sG2, vFA) if kind == 2 else (sG1, 195))
    def poll_check(kind):
        ls, lb = a.label("spin"), a.label("spun")
        a("%s\n%s %s\n%s:" % (poll_cmp(kind), "s_branch" if FORCE else "s_cbranch_vccnz", ls, lb))
        spins.append((ls, lb, kind))
    rels = []
    def release():
        ls, lb = a.label("rel"), a.label("reld")
        a("s_cmp_eq_u32 s%d, 0\ns_cbranch_scc1 %s\n%s:" % (sFA, ls, lb))
        rels.append((ls, lb))

    st_("setup")
    for x in fixm0(flat(D0[ST0:])): a(x.split(";")[0])
    if ST0 < 4: a(pf(0))
    bar("s_waitcnt vmcnt(1)")
    st_("bar0")

    pre0 = rd_w(0, 0, 0, 0) + rd_act(0, 0) + [x for k in range(1, PDW) for x in rd_w(0, 0, k, k)]
    use0 = [0, 0] + list(range(8)) + [8 * k for k in range(1, PDW) for _ in range(2)]
    for x in pre0: a(x)
    a(xa(0, 0))
    lV = a.label("kvV"); lQ = a.label("qphase")
    a("s_cmp_ge_u32 s%d, 2\ns_cbranch_scc1 %s" % (sWV, lV))
    NKV = 12
    CRL = "global_load_dword v122, v127, s[0:1]"
    for var in ("K", "V"):
        if var == "V": a(lV + ":")
        t2[0] = 1
        S_, cm, bm, fm = build(0, var)
        S_.place(dma_w(1) + dma_act(1), 0, 56)
        S_.place(dma_act(2) + pfp(-1), 56, bm[1] - 2)
        for g in range(1, 9):
            b = bm[g]; e = bm.get(g + 1, S_.n + 96)
            Wn = (soft(qw_setup) if g == 7 else []) + dma_w(g + 1) + pfp(g - 1)
            if g in (3, 5, 7): Wn = Wn + [CRL]
            if g == 2: Wn = Wn + [PLA]
            if g == 6: Wn = Wn + [poll_load(0) + " ; need:7", ["s_cmp_eq_u32 s%d, 0" % sWV, "s_cselect_b32 s%d, 8, 0" % sP1]]
            S_.place(Wn, b, b + (44 if g < 8 else 31))
            if g < 8: S_.place((flat(qa_setup) if g == 6 else []) + dma_act(g + 2) + (soft(at_setup) if g == 7 else []), b + 44, e - 8)
        S_.place(DF[:34] + soft(early), 2, bm[1] + 8)
        S_.place(DF[34:], bm[1] + 8, bm[3] - 4)
        S_.hooks[7] = lambda: poll_check(0)
        for cb in range(3):
            S_.place([x for j in range(4 * cb, 4 * cb + 4) for x in kv_unit(j, GPUB)], cm[7] + 32 * cb + 38, cm[7] + 32 * cb + 70 if cb < 2 else S_.n)
        vmh = S_.emit(a, bar, use0, [])
        left = S_.left; nkv = S_.n
        if VERB: print("KV over", S_.over)
        if var == "K": a("s_branch %s" % lQ)
    a(lQ + ":")
    st_("q")
    use8 = [0 if u == nkv else 4 * (u - nkv - 1) for u in left]
    t2[0] = 9
    S_, cm, bm, fm = build(8, "Q")
    per = cm[9] - cm[8]
    S_.place(dma_act(10), 0, bm[9] - 6)
    for g in range(9, 16):
        b = bm[g]; e = bm.get(g + 1, S_.n)
        Wn = dma_w(g + 1) if g < 15 else [x + " ; need:16" if isvm(x) else x for x in flat(dma("K", 1, 1) + [adv("K", 1)])]
        if g == GPUB:
            S_.hooks[g] = release
            Wn = Wn + ["buffer_store_dword v%d, v%d, s[%d:%d], s%d offen sc1" % (vFO, vONE, SO, SO + 3, sU)]
        if g in (9, 11, 13): Wn = Wn + [CRL]
        S_.place(Wn, b, b + 34)
        S_.place(dma_act(g + 2) if g + 2 < 16 else [poll_load(1) + " ; need:15"] + flat(dma("K", 1, 0)) + ["s_sub_u32 s%d, s%d, s%d" % (sKO, sKO, sVD), ["s_cmp_eq_u32 s%d, 0" % sI, "s_cselect_b32 s%d, 0x4000, 0" % sDS], "s_add_u32 s%d, s%d, s%d" % (sKO, sKO, sDS)] if g == 14 else [], b + 34, e - 6)
    S_.place(soft(late_setup), cm[10], cm[14] - 4)
    zero = lambda lo, hi: ["v_accvgpr_write_b32 a%d, 0" % r for r in range(lo, hi)]
    S_.place([x for j in range(NKV, 16) for x in kv_unit(j, GPUB)], 8, cm[9] + per // 2)
    S_.place([x for j in range(16, 32) for x in kv_unit(j) + zero(ub(j), ub(j) + 8)], cm[9] + per // 2, cm[15] + 20)
    hd = ["s_and_b32 s%d, s%d, 1" % (sT0, sH), "s_lshr_b32 s%d, s%d, 1" % (sT1, sGR), "s_add_u32 s%d, s%d, s%d" % (sT0, sT0, sT1),
          "s_and_b32 s%d, s%d, 2" % (sT2, sH), "s_lshl_b32 s%d, s%d, 20" % (sAS, sT2), "s_lshr_b32 s%d, s%d, 1" % (sT2, sT2), "s_add_u32 s%d, s%d, s%d" % (sT1, sT1, sT2),
          "s_lshr_b32 s%d, s%d, 2" % (sT2, sT0), "s_lshl_b32 s%d, s%d, 19" % (sT2, sT2), "s_add_u32 s%d, s%d, s%d" % (sAS, sAS, sT2), "s_and_b32 s%d, s%d, 3" % (sT0, sT0), "s_lshl_b32 s%d, s%d, 11" % (sT0, sT0),
          "s_add_u32 s%d, s%d, s%d" % (sAS, sAS, sT0),
          "s_lshr_b32 s%d, s%d, 2" % (sT2, sT1), "s_add_u32 s%d, s%d, 8" % (sT2, sT2), "s_lshl_b32 s%d, s%d, 19" % (sAS2, sT2), "s_and_b32 s%d, s%d, 3" % (sT1, sT1), "s_lshl_b32 s%d, s%d, 11" % (sT1, sT1),
          "s_add_u32 s%d, s%d, s%d" % (sAS2, sAS2, sT1), "s_and_b32 s%d, s%d, 1" % (sT0, sH), "s_lshl_b32 s%d, s%d, 10" % (sT0, sT0), "s_add_u32 s%d, s%d, s%d" % (sAS2, sAS2, sT0),
          ["s_bitcmp1_b32 s%d, 1" % sH, "s_cselect_b32 s%d, 1.0, %s" % (sSC, fbits(LOG2E * 0.25)), "s_cselect_b32 s%d, s%d, s%d" % (sXM, sTI[2], sTI[0])],
          "s_xor_b32 s%d, s%d, 7" % (sT0, sXM), ["s_bitcmp1_b32 s%d, 0" % sH, "s_cselect_b32 s%d, s%d, s%d" % (sXM, sT0, sXM)],
          "s_lshl_b32 s%d, s%d, 6" % (sXM, sXM), "s_add_u32 s%d, s%d, s%d" % (sXM, sXM, sGL_)]
    sQO, sVO_ = (sWS, sXS, sAM, sWM), (8, 9, 10, 12)
    for qb in range(4):
        hd += ["s_lshr_b32 s%d, s%d, 1" % (sT0, sTI[qb]), "s_lshl_b32 s%d, s%d, 13" % (sT0, sT0), "s_and_b32 s%d, s%d, 1" % (sT1, sTI[qb]), "s_lshl_b32 s%d, s%d, 10" % (sT2, sT1), "s_lshl_b32 s%d, s%d, 3" % (sT1, sT1),
               "s_add_u32 s%d, s%d, s%d" % (sT2, sT2, sT0), "s_add_u32 s%d, s%d, s%d" % (sT1, sT1, sT0), "s_add_u32 s%d, s%d, s%d" % (sQO[qb], sAS, sT2), "s_add_u32 s%d, s%d, s%d" % (sVO_[qb], sAS2, sT1)]
    AE = []
    for j in range(6):
        pk = PK + 4 * (j % 4)
        AE += pack(AA + j * 8, pk, sSC if j < 4 else None)
        if j < 4: AE.append("buffer_store_dwordx4 %s, v%d, s[%d:%d], s%d offen" % (vr(pk, 4), vL16, SO, SO + 3, sQO[j]))
        else: AE += ["buffer_store_dwordx2 %s, v%d, s[%d:%d], s%d offen" % (vr(pk + 2 * t, 2), vL16, SO, SO + 3, sVO_[2 * (j - 4) + t]) for t in range(2)]
    AE += ["v_accvgpr_read_b32 v%d, a%d" % (TT, AA + 48), "v_and_b32 v%d, 15, v0" % (TT + 1), "v_mul_f32 v%d, %s, v%d" % (TT, fbits(-LOG2E), TT), "v_exp_f32 v%d, v%d" % (TT, TT), "v_lshlrev_b32 v%d, 2, v%d" % (TT + 1, TT + 1),
           "v_add_f32 v%d, 1.0, v%d" % (TT, TT), "v_rcp_f32 v%d, v%d" % (TT, TT), "s_nop 0", "buffer_store_dword v%d, v%d, s[%d:%d], s%d offen" % (TT, TT + 1, SO, SO + 3, sXM)]
    S_.place(hd, bm[14] + 40, cm[15] + 38)
    room = S_.room(cm[15] + 40, S_.n) - 8
    S_.place(AE[:room], cm[15] + 40, S_.n); tail = AE[room:]
    if XQ:
        def drop(x):
            if XQ & 1 and x.startswith("buffer_load") and "s[4:7]" in x: return True
            if XQ & 2 and x.startswith("buffer_store_dwordx4"): return True
            if XQ & 4 and x.startswith("buffer_load") and "s[12:15]" in x: return True
            if XQ & 8 and x.startswith("buffer_load") and "s[8:11]" in x: return True
            return False
        S_.G.g = [[it for it in g if not drop(it[1])] for g in S_.G.g]
    nq_ = [0]
    def qbar(w):
        nq_[0] += 1
        if nq_[0] == 7:
            a(w); poll_check(1); bar("s_nop 0")
        else: bar(w)
    vm2 = S_.emit(a, qbar, use8, vmh)
    if VERB: print("Q over", S_.over, "tail", len(tail))
    for x in tail: a(x)
    a("s_waitcnt vmcnt(%d)" % (len(vm2) - 1 - max(k for k, nd in enumerate(vm2) if nd == 16) + sum(1 for x in tail if isvm(x))))
    a(lAttn + ":")
    st_("attn")
    vU = 3; vL = (4, 5, 6, 7); vG = (8, 9, 14, 15); vX = 10
    S = (16, 80); P = (144, 176); NM, LT, TM, ONES = 208, 224, 240, 252
    vT8, vNEG = 248, 249
    sW3 = 56
    def live(typ, half):
        if not half: return list(range(8))
        return [q for q in range(8) if q % 4 != 2] if typ == 1 else [0, 1, 2, 3, 5, 7]
    O, Q, FR, NFR = 0, 128, 192, 16
    ms = (26, 28, 30, 4)
    def kfrag(p, kb, s): return ("K", p * 32768 + (kb // 2) * 8192 + s * 2048 + (kb % 2) * 1024)
    def vfrag(p, kp, dt): return ("V", p * 32768 + kp * 8192 + dt * 1024)
    def rd(slot, fr): return "ds_read_b128 %s, v%d offset:%d" % (ar(FR + 4 * (slot % NFR), 4), vK if fr[0] == "K" else vV, fr[1])
    def pvm(Pp, nq, kp, dt, lv): return ["%s %s, {F}, %s, %s" % (MF16, ar(O + (qb * 8 + dt) * 4, 4), vr(Pp + (kp * nq + qb) * 4, 4), ar(O + (qb * 8 + dt) * 4, 4)) for qb in range(nq) if kp * nq + qb in lv]
    def mf_list(p, pv, qk, hp=0, hq=0):
        L = []; Pp = P[1 - p]; Sn = S[1 - p]
        if pv in (1, 2):
            nq = 4 // pv
            L += [(vfrag(1 - p, kp, dt), pvm(Pp, nq, kp, dt, live(pv, hp))) for kp in range(2 * pv) for dt in range(8)]
        elif pv == 3:
            L += [(("K", vfrag(1, kp, dt)[1]), pvm(Pp, 2, kp, dt, live(2, 1))) for dt in range(8) for kp in range(4)]
        if qk:
            nq = 4 // qk
            for kb in range(4 * qk):
                for s in range(4):
                    ms_ = []
                    for qb in range(nq):
                        if (kb // 2) * nq + qb not in live(qk, hq): continue
                        d = vr(Sn + ((kb // 2) * nq + qb) * 8 + (kb % 2) * 4, 4)
                        ms_.append("%s %s, {F}, %s, %s" % (MF16, d, ar(Q + (qb * 4 + s) * 4, 4), d if s else vr(NM + qb * 4, 4)))
                    L.append((kfrag(1 - p, kb, s), ms_))
        return L
    def ex(p, n): return "v_exp_f32 v%d, v%d" % (TM + n % 8, S[p] + n)
    def cv(p, j): return "v_cvt_pk_bf16_f32 v%d, v%d, v%d" % (P[p] + j, TM + (2 * j) % 8, TM + (2 * j) % 8 + 1)
    def summ(p, sm, q):
        nq = 4 // sm; d = vr(LT + (q % nq) * 4, 4)
        return "%s %s, %s, %s, %s" % (MF16, d, vr(ONES, 4), vr(P[p] + 4 * q, 4), d if q >= nq else "0")
    def chks(sm, hs):
        if sm == 1 and hs: return ["v_max3_f32 v%d, v%d, v%d, v%d" % (vX, LT, LT + 4, LT + 12), "v_cmp_lt_f32 vcc, s%d, v%d" % (sTH, vX)]
        c = ["v_max3_f32 v%d, v%d, v%d, v%d" % (vX, LT, LT + 4, LT + 8), "v_max_f32 v%d, v%d, v%d" % (vX, vX, LT + 12)] if sm == 1 else ["v_max_f32 v%d, v%d, v%d" % (vX, LT, LT + 4)]
        return c + ["v_cmp_lt_f32 vcc, s%d, v%d" % (sTH, vX)]
    rare = {}
    def step(p, pv, sm, qk, dK, dV, pre_in=True, pre_out=True, extra_vm=None, chk=0, last16=False, staged=None, trail=None, vm_first=False, flush=False, ctl=None, hp=0, hs=0, hq=0, kpre=None):
        L = mf_list(p, pv, qk, hp, hq); nf = len(L)
        lv = live(sm, hs) if sm else []; ng = len(lv)
        nxt = [x[0] for x in mf_list(1, 3, 0)][:PD] if last16 else [vfrag(p, kp, dt) for kp in range(2) for dt in range(8)][:PD]
        M0 = [(f, t) for f, (fr, ts_) in enumerate(L) for t in ts_]
        nb = len(M0); M = []; spos = []
        SLK = 6 if nb > 100 else 3
        endm = nb - 10 - SLK
        ins = {((k + 1) * endm) // ng + SLK: q for k, q in enumerate(lv)}
        for m, it in enumerate(M0):
            M.append(it)
            if m in ins: spos.append(len(M)); M.append((it[0], summ(p, sm, ins[m])))
        nm = len(M)
        G = []
        if dV: G += dma("V", dV, p) + [adv("V", dV)]
        if dK: G += (kpre or []) + dma("K", dK, p) + [adv("K", dK)]
        ntr = sum(1 for x in flat(trail or []) if isvm(x))
        G = ((extra_vm or []) + G if vm_first else G + (extra_vm or [])) + (trail or [])
        firstm = {}
        for m, (f, t) in enumerate(M): firstm.setdefault(f, m)
        barf = nf + 1 - PD
        if barf % WP: barf += WP - barf % WP
        if not pre_out or last16: barf = nf + 99
        Gp = Gaps([12] * (nm - 1) + [4])
        sR = Gp.newstream(); pre = None
        allfr = [x[0] for x in L] + (nxt if pre_out else [])
        nrd = PD
        for f in range(nf):
            m = firstm[f]; w_ = None
            if f == barf: w_ = ["s_BARW", "s_BAR"]
            elif f < barf and f % WP == 0: w_ = ["s_waitcnt lgkmcnt(%d)" % max(0, nrd - 1 - min(f + WP - 1, nf - 1))]
            if w_ and m == 0: pre = w_
            elif w_:
                for x in w_: Gp.add(m - 1, sR, x)
            want = min(f + PD, len(allfr) - 1)
            if f < barf and not last16: want = min(want, nf - 1)
            for k in range(2):
                if nrd <= want:
                    Gp.add(m + (k if len(L[f][1]) > 1 else 0), sR, rd(nrd, allfr[nrd])); nrd += 1
        assert nrd == len(allfr), (nrd, len(allfr))
        hiD = min(max(2 * len(G), (nm * DFR) // 16), firstm[barf] - 8 if barf < nf else nm)
        Gp.place(soft(G), 1, hiD, slack=40)
        if pv in (1, 2) and not last16: Gp.place(["v_add_f32 v%d, v%d, v%d" % (vL[qb], vL[qb], LT + 4 * qb) for qb in range(4 // pv) if not (hp and qb == 2)], 0, 10)
        if ctl: Gp.place([ctl], nm - 8, nm - 3)
        if sm:
            pe = []; lo = 0
            for k, q in enumerate(lv):
                hi = spos[k] - SLK
                sE = Gp.newstream(); tmp = {z: list(Gp.g[z]) for z in range(lo, hi)}; ch = []
                for _ in range(8):
                    def inc(z): return max(0, gcost(tmp[z] + [(sE, "v_exp_f32")]) - Gp.cap[z]) - max(0, gcost(tmp[z]) - Gp.cap[z])
                    z = min(range(lo, hi), key=lambda z: (inc(z), gcost(tmp[z]) > Gp.cap[z], (z - lo) % 4 == 2 if EXT else 0, z))
                    tmp[z].append((sE, "v_exp_f32")); ch.append(z)
                for n, z in zip(range(8 * q, 8 * q + 8), sorted(ch)): Gp.add(z, sE, ex(p, n))
                pe += sorted(ch); lo = hi
            sC = Gp.newstream(); k = 0
            for j in range(4 * ng):
                x = cv(p, 4 * lv[j // 4] + j % 4)
                k = max(k, pe[2 * j + 1] + 1)
                dl = min(pe[2 * j + 8] - 1 if 2 * j + 8 < 8 * ng else nm, spos[j // 4] - 3)
                if k > dl: k = dl = max(dl, pe[2 * j + 1])
                assert k <= spos[j // 4] - 3 and (2 * j + 8 >= 8 * ng or k < pe[2 * j + 8]), (j, k, dl)
                cand = [z for z in range(k, dl + 1) if gcost(Gp.g[z] + [(sC, x)]) <= Gp.cap[z]]
                k = cand[0] if cand else min(range(k, dl + 1), key=lambda z: gcost(Gp.g[z]))
                Gp.add(k, sC, x)
            Gp.place(chks(sm, hs), nm - 3, nm - 1)
        for (lst, lo, hi) in (staged or []): Gp.place(lst, lo, hi)
        if VERB: print("step", p, pv, sm, qk, "gaps", nm, "over", Gp.over())
        if not pre_in:
            for f in range(PD): a(rd(f, L[f][0]))
        for x in pre or []: a(x)
        for m, (f, t) in enumerate(M):
            a(t.replace("{F}", ar(FR + 4 * (f % NFR), 4)))
            for x in Gp.out(m):
                if x == "s_BARW": continue
                if x == "s_BAR":
                    if TS3: a("s_mov_b32 m0, s76\ns_add_u32 s76, s76, 1\nv_writelane_b32 v11, s72, m0\ns_mov_b32 m0, s76\ns_add_u32 s76, s76, 1\nv_writelane_b32 v11, s74, m0\ns_memtime s[72:73]")
                    a("s_waitcnt vmcnt(%d) lgkmcnt(0)" % ntr)
                    if chk: poll_check(chk)
                    a("s_barrier")
                    if TS3: a("s_memtime s[74:75]\ns_waitcnt lgkmcnt(0)")
                else: a(x)
        assert nf % NFR == 0
        if sm:
            key = (p, sm, qk if qk else sm, hs)
            if key not in rare: rare[key] = (a.label("rare"), [])
            lb = a.label("back"); lj = a.label("jr")
            rare[key][1].append((lj, lb))
            a("s_cbranch_vccnz %s\n%s:" % (lj, lb))
            if last16 or flush:
                for qb in range(4 // sm):
                    if not (hs and qb == 2): a("v_add_f32 v%d, v%d, v%d" % (vL[qb], vL[qb], LT + 4 * qb))
    def qregs(base, typ, qb, half=0):
        nq = 4 // typ
        return [base + (kp * nq + qb) * 8 + j for kp in range(2 * typ) for j in range(8) if kp * nq + qb in live(typ, half)]
    def maxtree(dst, R):
        L = ["v_max3_f32 v%d, v%d, v%d, v%d" % (dst, R[0], R[1], R[2])]; j = 3
        while j + 1 < len(R):
            L.append("v_max3_f32 v%d, v%d, v%d, v%d" % (dst, dst, R[j], R[j + 1])); j += 2
        if j < len(R): L.append("v_max_f32 v%d, v%d, v%d" % (dst, dst, R[j]))
        return L
    def xlane(op, D, Tm):
        L = []
        for sw in ("v_permlane16_swap_b32", "v_permlane32_swap_b32"):
            L += ["v_mov_b32 v%d, v%d" % (t, d) for d, t in zip(D, Tm)]
            if len(D) < 3: L.append("s_nop %d" % (2 - len(D)))
            L += ["%s v%d, v%d" % (sw, d, t) for d, t in zip(D, Tm)]
            L += ["%s v%d, v%d, v%d" % (op, d, d, t) for d, t in zip(D, Tm)]
        return L
    def mask(sets, pad=True):
        for r in range(4): a("v_cmp_gt_i32 s[%d:%d], %d, v%d" % (ms[r], ms[r] + 1, r, vU))
        if pad: a("s_nop 3")
        for (R, st) in sets:
            lab = [a.label("mk") for _ in range(4)]; full = [a.label("mf") for _ in range(5)]
            for t in range(1, 4): a("s_cmp_eq_u32 s%d, %d\ns_cbranch_scc1 %s" % (st, t, lab[t]))
            for t in range(4):
                if t:
                    a(full[t] + ":")
                    for r in range(4): a("v_mov_b32 v%d, v%d" % (R[4 * t + r], vNEG))
                    a("s_branch %s\n%s:" % (full[t + 1], lab[t]))
                for r in range(4): a("v_cndmask_b32 v%d, v%d, v%d, s[%d:%d]" % (R[4 * t + r], R[4 * t + r], vNEG, ms[r], ms[r] + 1))
            a(full[4] + ":")
    bar("s_nop 0")
    if TS2:
        a("s_waitcnt lgkmcnt(0)"); bar("s_nop 0")
        a("s_lshl_b32 s78, s2, 2\ns_add_u32 s78, s78, s%d\ns_lshl_b32 s78, s78, 8\ns_add_u32 s78, s78, 0x%x\nv_lshlrev_b32 v122, 2, v0" % (sWV, OFF_TS + 0x80000))
        a("buffer_store_dword v123, v122, s[%d:%d], s78 offen\ns_waitcnt vmcnt(0)" % (SO, SO + 3))
    a("s_mov_b32 s%d, %s" % (sSC, fbits(LOG2E / math.sqrt(128.0))))
    fr0 = [kfrag(0, kb, s) for s in range(4) for kb in range(4)]
    for f in range(12): a(rd(f, fr0[f]))
    def qepi(cb):
        G = []
        for qb in range(4):
            src = QA + (((qb // 2) * 4 + cb) * 2 + qb % 2) * 8
            if not PKV: G += ["v_mul_f32 v%d, s%d, v%d" % (src + j, sSC, src + j) for j in range(8)]
            G += ["v_cvt_pk_bf16_f32 v%d, v%d, v%d" % (src + j, src + 2 * j, src + 2 * j + 1) for j in range(4)]
            G += ["v_accvgpr_write_b32 a%d, v%d" % (Q + (qb * 4 + cb) * 4 + j, src + j) for j in range(4)]
        return G
    for x in flat(dma("V", 1, 0)): a(x)
    a("s_sub_u32 s%d, s%d, s%d\ns_sub_u32 s%d, 3, s%d" % (sVO, sVO, sVD, sW3, sWV))
    if PKV:
        a("s_mov_b32 s26, s%d\ns_mov_b32 s27, s%d" % (sSC, sSC))
        for r in range(QA, QA + 128, 2): a("v_pk_mul_f32 %s, %s, s[26:27]" % (vr(r, 2), vr(r, 2)))
    for x in qepi(0): a(x)
    for f in range(12, 16): a(rd(f, fr0[f]))
    misc = ["v_add_u32 v%d, 0x10000, v%d" % (vV, vK), "v_and_b32 v10, 15, v0", "v_lshrrev_b32 v11, 4, v0", "v_lshlrev_b32 v11, 2, v11", "v_sub_u32 v%d, v10, v11" % vU]
    misc += ["v_mov_b32 v%d, 0" % r for r in vL] + ["v_mov_b32 v%d, %s" % (vNEG, NEG), "v_bfe_u32 v%d, v0, 3, 2" % vPO, "v_lshl_add_u32 v%d, v%d, 7, v124" % (vPO, vPO), "s_and_b32 s%d, s%d, 0xfffffe00" % (sHL, sHL)]
    misc += ["v_mov_b32 v%d, 0x3f803f80" % r for r in range(ONES, ONES + 4)] + ["v_mov_b32 v14, v%d" % vONE, "v_mov_b32 v15, 2"]
    a("s_waitcnt lgkmcnt(0)\ns_barrier")
    K2 = flat(dma("K", 2, 0)) + [["s_cmp_eq_u32 s%d, 0" % sI, "s_cselect_b32 s%d, 2, 1" % sT0], "s_lshl_b32 s%d, s%d, 14" % (sT0, sT0), "s_add_u32 s%d, s%d, s%d" % (sKO, sKO, sT0)]
    Gp = Gaps([12] * 64)
    Gp.place(K2, 0, 40)
    for s in range(4): Gp.place(qepi(s + 1) if s < 3 else misc, 16 * s, 16 * s + 16, slack=4)
    for s in range(4):
        for n in range(16):
            qb, kb = n // 4, n % 4
            d = vr(S[0] + ((kb // 2) * 4 + qb) * 8 + (kb % 2) * 4, 4)
            a("%s %s, %s, %s, %s" % (MF16, d, ar(FR + 4 * (4 * s + kb), 4), ar(Q + (qb * 4 + s) * 4, 4), d if s else "0"))
            for x in Gp.out(16 * s + n): a(x)
    st_("m1")
    for f, x in enumerate(mf_list(0, 0, 1)[:PD]): a(rd(f, x[0]))
    mask([(qregs(S[0], 1, 2), sWV)], pad=False)
    MXr, MXt = (240, 241, 242, 243), (244, 245, 246, 247)
    for qb in range(4):
        for x in maxtree(MXr[qb], qregs(S[0], 1, qb)): a(x)
    for x in xlane("v_max_f32", MXr, MXt): a(x)
    for qb in range(4):
        for j in range(4): a("v_sub_f32 v%d, 0, v%d" % (NM + qb * 4 + j, MXr[qb]))
    for qb in range(4):
        if PKV:
            for r in qregs(S[0], 1, qb)[::2]: a("v_pk_add_f32 %s, %s, %s" % (vr(r, 2), vr(r, 2), vr(NM + qb * 4, 2)))
        else:
            for r in qregs(S[0], 1, qb): a("v_sub_f32 v%d, v%d, v%d" % (r, r, MXr[qb]))
    st_("first")
    if TS3: a("s_mov_b32 s76, 0\ns_mov_b32 s72, 0\ns_mov_b32 s74, 0")
    step(0, 0, 1, 1, 0, 0)
    release()
    a("buffer_store_dword v15, v14, s[%d:%d], s%d offen sc1" % (SO, SO + 3, sU))
    st_("s0")
    lT0, lT1, lT1b, lL1, lL2, lS15, lMid, lI7, lEn = [a.label(x) for x in ("T0", "T1", "T1b", "L1", "L2", "S15", "MID", "I7", "END")]
    PL = [[poll_load(2)]]
    AF = [Q + 4 * j for j in range(9)]
    def ld(dst, so, off): return "buffer_load_dwordx4 %s, v%d, s[%d:%d], s%d offen offset:%d sc1" % (ar(dst, 4), vK, SV, SV + 3, so, off)
    AOP = [ld(AF[0], sA0, 0), ld(AF[1], sA0, 1024), ld(AF[2], sX0, 0), ld(AF[3], sX0, 1024), ld(AF[4], sA1, 1024),
           ld(AF[5], sX1, 0), ld(AF[6], sX1, 1024), ld(AF[7], sGB, 0), ld(AF[8], sGB, 1024)]
    AOP += ["v_and_b32 v12, 15, v0", "v_lshlrev_b32 v12, 2, v12"] + ["buffer_load_dword a%d, v12, s[%d:%d], s%d offen offset:%d sc1" % (Q + 36 + t, SV, SV + 3, sGA_, 64 * t) for t in range(2)]
    ALD = [["v_and_b32 v12, 15, v0", "v_lshlrev_b32 v12, 2, v12"]]
    ALD += [["buffer_load_dword v%d, v12, s[%d:%d], s%d offen offset:%d sc1" % (vG[qb], SV, SV + 3, sT0, 0)] for qb in range(4)]
    for qb in range(4): ALD[1 + qb] = ["s_lshl_b32 s%d, s%d, 6" % (sT0, sTI[qb]), "s_add_u32 s%d, s%d, s%d" % (sT0, sT0, sGL_)] + ALD[1 + qb]
    def wpf(dst): return [["v_add_lshl_u32 v%d, v0, s%d, 7" % (vT8, sP0), "global_load_dword v%d, v%d, s[%d:%d]" % (dst, vT8, pBWO, pBWO + 1)],
                          ["v_and_b32 v12, 7, v0", "v_add_lshl_u32 v12, v12, s%d, 7" % sP1_, "global_load_dword v%d, v12, s[%d:%d]" % (dst, pWO, pWO + 1)]]
    TR0, TR15 = wpf(vG[0]), (wpf(vT8) if T15 else [])
    if CR2:
        TR15 = TR15 + [["s_lshr_b32 s%d, s%d, 3" % (sT0, sP1_), "s_and_b32 s%d, s%d, 127" % (sT0, sT0), "v_and_b32 v13, 15, v0", "v_lshlrev_b32 v13, 7, v13", "v_add_lshl_u32 v13, v13, s%d, 7" % sT0,
                        "v_min_u32 v13, %s-%s, v13" % (lRare, lpc2), "global_load_dword v%d, v13, s[0:1]" % vT8]]
    PW, PW2 = 8, 12
    sWB, sHW, sWC, sAB, sHA, sAC = 25, 32, 33, 98, 35, 57
    TL = ("s_mov_b32 s%d, s%d\ns_mov_b32 s%d, s%d\ns_mov_b32 s%d, 0x400000\ns_mov_b32 s%d, s%d\ns_mov_b32 s%d, s%d\ns_mov_b32 s%d, 0x80000\n" % (PW, pBWO, PW + 1, pBWO + 1, PW + 2, PW2, pWO, PW2 + 1, pWO + 1, PW2 + 2) +
          "s_lshr_b32 s%d, s%d, 3\ns_lshl_b32 s%d, s%d, 20\ns_and_b32 s%d, s%d, 3\ns_lshl_b32 s%d, s%d, 8\ns_add_u32 s%d, s%d, s%d\ns_lshl_b32 s%d, s%d, 14\ns_add_u32 s%d, s%d, s%d\n" % (sT2, sH, sWB, sT2, sT1, sH, sT1, sT1, sWB, sWB, sT1, sT1, sWV, sWB, sWB, sT1) +
          "s_and_b32 s%d, s%d, 7\ns_mov_b32 s%d, s%d\n" % (sHW, sH, sHA, sHW) +
          "s_lshl_b32 s%d, s%d, 2\ns_add_u32 s%d, s%d, s%d\ns_mul_i32 s%d, s%d, %d\ns_lshl_b32 s%d, s%d, 16\ns_add_u32 s%d, s%d, s%d\ns_add_u32 s%d, s%d, 0x%x\n" % (sT1, sRBK, sT1, sT1, sWV, sAB, sT1, CROW, sT2, sT2, sAB, sAB, sT2, sAB, sAB, OFF_C) +
          "s_lshl_b32 s%d, s%d, 13\ns_add_u32 s%d, s%d, 0x%x" % (sT1, sH, sT1, sT1, OFF_C)).split("\n")
    for t in sTI:
        TL += ["s_and_b32 s%d, s%d, 1" % (sT2, t), "s_lshl_b32 s%d, s%d, 10" % (sT2, sT2), "s_lshr_b32 s%d, s%d, 1" % (t, t), "s_mul_i32 s%d, s%d, %d" % (t, t, CROW),
               "s_add_u32 s%d, s%d, s%d" % (t, t, sT2), "s_add_u32 s%d, s%d, s%d" % (t, t, sT1)]
    STL = [(TL[:23], 2, 50), (TL[23:], 50, 114)]
    a("s_cmp_eq_u32 s%d, 0\ns_cbranch_scc1 %s" % (sI, lT1))
    a("s_mov_b32 s%d, s%d" % (sT, sI))
    a(".p2align 6\n" + lL1 + ":")
    step(1, 1, 1, 1, 1, 1, ctl=["s_sub_u32 s%d, s%d, 1" % (sT, sT)], kpre=[["s_cmp_eq_u32 s%d, 1" % sT, "s_cselect_b32 s%d, 0x4000, 0" % sT0], ["s_add_u32 s%d, s%d, s%d" % (sKO, sKO, sT0)]])
    a("s_cmp_eq_u32 s%d, 0\ns_cbranch_scc1 %s" % (sT, lT0))
    step(0, 1, 1, 1, 1, 1)
    a("s_branch %s" % lL1)
    a(lT0 + ":")
    step(0, 1, 1, 1, 2, 1, extra_vm=PL, chk=2, trail=TR0, hq=1)
    a(lT1 + ":")
    mask([(qregs(S[1], 1, 3), sW3)])
    a("s_add_u32 s%d, s%d, 0x4000\ns_cmp_eq_u32 s%d, 7\ns_cbranch_scc1 %s" % (sVO, sVO, sI, lT1b))
    step(1, 1, 1, 2, 2, 1, hs=1)
    step(0, 1, 2, 2, 2, 2, extra_vm=PL, chk=2, trail=TR0, hp=1)
    a("s_sub_u32 s%d, 6, s%d\ns_cmp_eq_u32 s%d, 0\ns_cbranch_scc1 %s" % (sT, sI, sT, lS15))
    a(".p2align 6\n" + lL2 + ":")
    step(1, 2, 2, 2, 2, 2)
    step(0, 2, 2, 2, 2, 2, ctl=["s_sub_u32 s%d, s%d, 1" % (sT, sT)])
    a("s_cmp_lg_u32 s%d, 0\ns_cbranch_scc1 %s" % (sT, lL2))
    a(lS15 + ":")
    a("s_add_u32 s%d, s%d, 0x8000" % (sKO, sVO))
    step(1, 2, 2, 2, 2, 2, extra_vm=ALD, trail=TR15, vm_first=True, staged=STL, flush=True, hq=1)
    a("s_branch %s" % lMid)
    a(lT1b + ":")
    a("s_add_u32 s%d, s%d, 0x4000" % (sKO, sVO))
    step(1, 1, 1, 2, 2, 1, extra_vm=ALD, trail=TR15, vm_first=True, staged=STL, flush=True, hs=1, hq=1)
    def fin_head(rb, so):
        q0, q1 = 2 * rb, 2 * rb + 1
        G = ["v_rcp_f32 v%d, v%d" % (vL[q0], vL[q0]), "v_rcp_f32 v%d, v%d" % (vL[q1], vL[q1]), "v_sub_f32 v%d, 1.0, v%d" % (vG[q0], vG[q0]), "v_sub_f32 v%d, 1.0, v%d" % (vG[q1], vG[q1]),
             "v_mul_f32 v%d, v%d, v%d" % (vL[q0], vL[q0], vG[q0]), "v_mul_f32 v%d, v%d, v%d" % (vL[q1], vL[q1], vG[q1])]
        return G
    def fin_part(rb, c, t, so, pk=False):
        u, tq = c // 2, c % 2; qb = 2 * rb + tq; so = sTI[qb]
        G = ["v_accvgpr_read_b32 v%d, a%d" % (t + j, O + qb * 32 + u * 8 + j) for j in range(8)]
        if pk and PKV: G += ["v_pk_mul_f32 %s, %s, %s op_sel:[0,%d] op_sel_hi:[1,%d]" % (vr(t + j, 2), vr(t + j, 2), vr(vL[2 * rb], 2), tq, tq) for j in range(0, 8, 2)]
        else: G += ["v_mul_f32 v%d, v%d, v%d" % (t + j, vL[qb], t + j) for j in range(8)]
        G += ["v_cvt_pk_bf16_f32 v%d, v%d, v%d" % (t + j, t + 2 * j, t + 2 * j + 1) for j in range(4)]
        if u == 2: G.append("s_add_u32 s%d, s%d, 4096" % (so, so))
        G.append("buffer_store_dwordx4 %s, v%d, s[%d:%d], s%d offen offset:%d sc1" % (vr(t, 4), vK, SV, SV + 3, so, (u % 2) * 2048))
        return G
    a(lMid + ":")
    st_("mid")
    if TS3:
        a("s_mov_b32 m0, s76\ns_add_u32 s76, s76, 1\nv_writelane_b32 v11, s72, m0\ns_mov_b32 m0, s76\ns_add_u32 s76, s76, 1\nv_writelane_b32 v11, s74, m0")
        a("s_lshl_b32 s78, s2, 2\ns_add_u32 s78, s78, s%d\ns_lshl_b32 s78, s78, 8\ns_add_u32 s78, s78, 0x%x\nv_lshlrev_b32 v10, 2, v0" % (sWV, OFF_TS + 0x80000))
        a("buffer_store_dword v11, v10, s[%d:%d], s78 offen\ns_nop 4" % (SO, SO + 3))
    for x in AOP: a(x)
    mask([(qregs(S[0], 2, 0)[:16], sWV), (qregs(S[0], 2, 1)[16:], sW3)], pad=False)
    vD = (232, 233, 234, 235)
    WRING = [0, 16384, 65536, 81920, 131072, 147456]; ARING = [32768, 49152, 98304, 114688]
    def w_dma(st):
        G = []
        if st < 16 and st % 2 == 0:
            G += ["s_lshl_b32 s%d, s%d, 17" % (sWC, sHW), "s_add_u32 s%d, s%d, s%d" % (sWC, sWC, sWB), "s_add_u32 s%d, s%d, 1" % (sHW, sHW)]
        if st == 16: G += ["s_and_b32 s%d, s%d, 0xffff" % (sWC, sWB), "s_lshr_b32 s%d, s%d, 20" % (sHW, sWB), "s_lshl_b32 s%d, s%d, 17" % (sHW, sHW), "s_add_u32 s%d, s%d, s%d" % (sWC, sWC, sHW)]
        G += ["s_add_u32 m0, s%d, %d" % (sW4, WRING[st % 6]), "s_and_b32 s%d, s%d, 7" % (sHW, sHW) if st % 2 == 0 else "s_add_u32 s%d, s%d, 65536" % (sWC, sWC)]
        sr_ = PW if st < 16 else PW2
        return G + ["buffer_load_dwordx4 v%d, s[%d:%d], s%d offen offset:%d lds ; need:%d" % (vD[o], sr_, sr_ + 3, sWC, o * 1024, st) for o in range(4)]
    def a_dma(st):
        G = []
        if st < 16 and st % 2 == 0:
            G += ["s_lshl_b32 s%d, s%d, 13" % (sAC, sHA), "s_add_u32 s%d, s%d, s%d" % (sAC, sAC, sAB), "s_add_u32 s%d, s%d, 1" % (sHA, sHA)]
        if st == 16: G += ["s_lshr_b32 s%d, s%d, 3" % (sHA, sH), "s_mul_i32 s%d, s%d, %d" % (sHA, sHA, 56 * 1024), "s_sub_u32 s%d, s%d, s%d" % (sAC, sAB, sHA), "s_add_u32 s%d, s%d, %d" % (sAC, sAC, 256 * 1024)]
        G += ["s_add_u32 m0, s%d, %d" % (sW4, ARING[st % 4]), "s_and_b32 s%d, s%d, 7" % (sHA, sHA) if st % 2 == 0 else "s_add_u32 s%d, s%d, 4096" % (sAC, sAC)]
        return G + ["buffer_load_dwordx4 v%d, s[%d:%d], s%d offen offset:%d sc1 lds ; need:%d" % (vK, SV, SV + 3, sAC, o * 1024, st) for o in range(4)]
    nt = lambda L: [x.split(";")[0].strip() for x in L]
    a("v_lshrrev_b32 v10, 4, v0\nv_and_b32 v11, 15, v0\nv_lshlrev_b32 v12, 2, v10\nv_xor_b32 v11, v11, v12\nv_lshlrev_b32 v11, 4, v11\nv_lshl_add_u32 v%d, v10, 10, v11" % vD[0])
    a("v_xor_b32 v11, 16, v%d\nv_add_u32 v%d, 6144, v%d\nv_add_u32 v%d, 3072, v11\nv_add_u32 v%d, 9216, v11" % (vD[0], vD[2], vD[0], vD[1], vD[3]))
    n0, n1, n2 = WSP
    for st in range(n0):
        for x in nt(w_dma(st)): a(x)
    W16_ = [[x] for st in range(n0, n0 + n1) for x in nt(w_dma(st))]; W17_ = [[x] for st in range(n0 + n1, n0 + n1 + n2) for x in nt(w_dma(st))]
    WRS = [x for st in range(n0 + n1 + n2, 6) for x in nt(w_dma(st))]
    a("s_cmp_eq_u32 s%d, 7\ns_cbranch_scc1 %s" % (sI, lI7))
    FT = lambda c: 80 + 8 * (c % 8)
    for x in fin_head(1, sA0): a(x)
    for c in range(NE):
        for x in fin_part(1, c, FT(c), sA0, True): a(x)
    step(0, 2, 2, 0, 0, 0, last16=True, extra_vm=W16_, hs=1)
    def final(first):
        stg = [(first + fin_head(0, sA1), 0, 17)]
        for u in range(3):
            stg.append((fin_part(0, 2 * u, 16 + 16 * u, sA1) + fin_part(0, 2 * u + 1, 24 + 16 * u, sA1), 12 * u + 17, min(12 * u + 29, 48)))
        step(1, 3, 0, 0, 0, 0, pre_out=False, staged=stg, extra_vm=W17_)
        a("s_nop 7")
        for x in fin_part(0, 6, 64, sA1, True) + fin_part(0, 7, 72, sA1, True): a(x)
    final([x for c in range(NE, 8) for x in fin_part(1, c, FT(c), sA0)])
    a("s_branch %s" % lEn)
    a(lI7 + ":")
    step(0, 1, 2, 0, 0, 0, last16=True, extra_vm=W16_, hs=1, hp=1)
    final(fin_head(1, sA0) + [x for c in range(8) for x in fin_part(1, c, FT(c), sA0)])
    a(lEn + ":")
    st_("s17")
    BS, BP, BP0 = 208, 212, 216
    SL = 144; TA = 176; PA = 196; MXl = (240, 241, 242, 243); vPM = 250; OL = 144
    L1 = ["v_add_u32 v246, 14, v%d" % vU, "v_mov_b32 v244, 0x5555", "v_mov_b32 v245, 0", "s_cmp_eq_u32 s%d, 0" % sRA, "s_cselect_b32 s%d, -1, 0" % sT2,
          "v_lshlrev_b64 v[244:245], v246, v[244:245]", "v_alignbit_b32 v244, v245, v244, 12", "v_not_b32 v244, v244"]
    L1 += ["v_bfe_i32 v%d, v244, %d, 1" % (BS + r, 16 + r) for r in range(4)] + ["v_bfe_i32 v%d, v244, %d, 1" % (BP + r, r) for r in range(4)]
    L1 += ["v_or_b32 v%d, s%d, v%d" % (BP0 + r, sT2, BP + r) for r in range(4)]
    L1 += ["v_and_b32 v%d, v%d, v%d" % (BS + r, vNEG, BS + r) for r in range(12)]
    L1 += ["v_and_b32 v244, 1, v0", "v_lshlrev_b32 v244, 4, v244", "v_mov_b32 v245, 0xffff", "v_lshlrev_b32 v%d, v244, v245" % vPM, "s_waitcnt vmcnt(40)"]
    for e in range(2):
        for tq in range(2):
            d = SL + (2 * e + tq) * 8
            L1.append("%s %s, %s, %s, %s" % (MFH, vr(d, 4), ar((AF[4], AF[2])[tq] + 2 * e, 2), ar(AF[tq] + 2 * e, 2), vr((BP0, BP)[tq], 4)))
            L1.append("%s %s, %s, %s, %s" % (MFH, vr(d + 4, 4), ar(AF[2 + tq] + 2 * e, 2), ar(AF[tq] + 2 * e, 2), vr(BS, 4)))
    L2 = ["v_max_f32 v%d, v%d, v%d" % (TA + j, SL + 2 * j, SL + 2 * j + 1) for j in range(16)]
    for n in range(4): L2 += maxtree(MXl[n], [TA + 4 * n + j for j in range(4)])
    L2 += xlane("v_max_f32", MXl, MXt)
    L2 += ["v_sub_f32 v%d, v%d, v%d" % (TA + j, TA + j, MXl[j // 4]) for j in range(16)]
    L2 += ["v_exp_f32 v%d, v%d" % (TA + j, TA + j) for j in range(16)]
    L2 += ["v_cvt_pk_bf16_f32 v%d, v%d, v%d" % (TA + j, TA + j, TA + j) for j in range(16)]
    L2 += ["v_and_b32 v%d, v%d, v%d" % (TA + j, vPM, TA + j) for j in range(16)]
    L2 += ["v_accvgpr_read_b32 v%d, a%d" % (246 + t, Q + 36 + t) for t in range(2)]
    for n in range(4): L2.append("%s %s, %s, %s, 0" % (MF16, vr(OL + 16 + 4 * n, 4), vr(ONES, 4), vr(TA + 4 * n, 4)))
    for e in range(2):
        L2.append("%s %s, %s, %s, 0" % (MFH, vr(OL + 4 * e, 4), ar(AF[7 + e] + 2, 2), vr(TA + 8 * e, 2)))
        L2.append("%s %s, %s, %s, 0" % (MF16, vr(OL + 8 + 4 * e, 4), ar(AF[5 + e], 4), vr(TA + 8 * e + 4, 4)))
    for e in range(2): L2.append("%s %s, %s, %s, %s" % (MFH, vr(OL + 4 * e, 4), ar(AF[5 + e], 2), vr(TA + 8 * e + 2, 2), vr(OL + 4 * e, 4)))
    L2 += ["s_mul_i32 s%d, s%d, %d" % (sA0, sRA, CROW), "s_lshl_b32 s%d, s%d, 11" % (sA1, sHP), "s_add_u32 s%d, s%d, s%d" % (sA0, sA0, sA1), "s_add_u32 s%d, s%d, 0x%x" % (sA0, sA0, OFF_C + 256 * 1024)]
    L2 += ["v_rcp_f32 v%d, v%d" % (MXl[n], OL + 16 + 4 * n) for n in range(4)]
    L2 += ["v_mul_f32 v%d, v%d, v%d" % (MXl[n], MXl[n], 246 + n % 2) for n in range(4)]
    for tq in range(2):
        for e in range(2): L2 += ["v_mul_f32 v%d, v%d, v%d" % (OL + 8 * tq + 4 * e + j, MXl[2 * e + tq], OL + 8 * tq + 4 * e + j) for j in range(4)]
        L2 += ["v_cvt_pk_bf16_f32 v%d, v%d, v%d" % (PA + 4 * tq + j, OL + 8 * tq + 2 * j, OL + 8 * tq + 2 * j + 1) for j in range(4)]
    LST = ["buffer_store_dwordx4 %s, v%d, s[%d:%d], s%d offen offset:%d sc1" % (vr(PA + 4 * tq, 4), vK, SV, SV + 3, sA0, tq * 1024) for tq in range(2)]
    for x in WRS + L1: a(x)
    SOUT = 4; sQ, sOUT = 26, 28
    vA, vW = (2, 3), (4, 5, 14, 15); ACC, FP = 16, 80
    srd(a, SOUT, 100, 2048 * 1024)
    a("s_lshr_b32 s%d, s%d, 3" % (sQ, sH))
    a("s_and_b32 s%d, s%d, 1\ns_lshl_b32 s%d, s%d, 1\ns_and_b32 s%d, s%d, 1\ns_add_u32 s%d, s%d, s%d\ns_lshl_b32 s%d, s%d, 12" % (sT0, sWV, sT0, sT0, sT1, sQ, sT2, sT0, sT1, sT0, sT2))
    a("v_add_u32 v%d, s%d, v%d\nv_xor_b32 v%d, 4096, v%d" % (vA[0], sT0, vK, vA[1], vA[0]))
    a("v_lshrrev_b32 v9, 2, v0\nv_and_b32 v8, 3, v9\nv_bfe_u32 v7, v0, 4, 1\nv_and_b32 v10, 2, v0\nv_or_b32 v7, v7, v10\nv_and_b32 v10, 1, v0\nv_lshlrev_b32 v10, 3, v10")
    a("s_and_b32 s%d, s%d, 2\ns_lshr_b32 s%d, s%d, 1\ns_add_u32 s%d, s%d, s%d\nv_xor_b32 v8, s%d, v8" % (sT0, sWV, sT1, sQ, sT0, sT0, sT1, sT0))
    a("v_lshl_or_b32 v8, v8, 2, v7\nv_lshlrev_b32 v8, 4, v8\nv_lshl_add_u32 v8, v9, 8, v8\nv_add_u32 v%d, v8, v10" % vW[0])
    a("v_xor_b32 v%d, 16, v%d\nv_xor_b32 v%d, 64, v%d\nv_xor_b32 v%d, 80, v%d" % (vW[1], vW[0], vW[2], vW[0], vW[3], vW[0]))
    a("s_and_b32 s%d, s%d, 3\ns_lshl_b32 s%d, s%d, 2\ns_add_u32 s%d, s%d, s%d\ns_lshl_b32 s%d, s%d, 6" % (sT1, sH, sT1, sT1, sT1, sT1, sT0, sOUT, sT1))
    a("s_lshl_b32 s%d, s%d, 2\ns_add_u32 s%d, s%d, s%d\ns_lshl_b32 s%d, s%d, 15\ns_add_u32 s%d, s%d, s%d" % (sT0, sRBK, sT0, sT0, sT2, sT0, sT0, sOUT, sOUT, sT0))
    a("v_and_b32 v6, 15, v0\nv_lshlrev_b32 v6, 10, v6\nv_lshrrev_b32 v7, 4, v0\nv_lshl_add_u32 v6, v7, 4, v6")
    a("v_min_u32 v9, 1, v0\nv_lshlrev_b32 v9, 29, v9\nv_mov_b32 v10, 1\nv_and_b32 v8, 7, v0\nv_lshlrev_b32 v8, 2, v8\nv_and_b32 v11, 12, v8")
    def signal_wait(sown, vo, pre):
        lp, lo_ = a.label("xpoll"), a.label("xok")
        a("s_waitcnt vmcnt(0)\ns_barrier\ns_cmp_lg_u32 s%d, 0\ns_cbranch_scc1 %s_s" % (sWV, lo_))
        a("buffer_store_dword v10, v9, s[%d:%d], s%d offen sc1\n%s_s:" % (SO, SO + 3, sown, lo_))
        for x in pre: a(x)
        a("s_cmp_lg_u32 s%d, 0\ns_cbranch_scc1 %s" % (sWV, lo_))
        a("s_and_b32 s%d, s%d, 0xffffff80\ns_mov_b32 s%d, 0x80000\n%s:" % (sT0, sown, sT1, lp))
        a("buffer_load_dword v12, v%d, s[%d:%d], s%d offen sc1\ns_waitcnt vmcnt(0)\nv_cmp_gt_u32 vcc, 1, v12\ns_cbranch_vccz %s" % (vo, SO, SO + 3, sT0, lo_))
        a("s_sleep %d\ns_sub_u32 s%d, s%d, 1\ns_cmp_lg_u32 s%d, 0\ns_cbranch_scc1 %s\n%s:" % (SLP, sT1, sT1, sT1, lp, lo_))
        a("s_waitcnt vmcnt(0)\ns_barrier")
    a("s_cmp_eq_u32 s%d, 0\ns_cselect_b32 s%d, 2, 0\ns_cselect_b32 s%d, 0, 0x20000000\nv_add_u32 v192, s%d, v8\nv_or_b32 v193, s%d, v9\nv_mov_b32 v194, 2\ns_and_b32 s%d, s%d, 0xffffff80" % (sWV, sG1, sT0, sT0, sT0, sG2, sFG))
    for x in L2[:LSPL]: a(x)
    signal_wait(sFG, 8, nt(a_dma(0) + a_dma(1)) + L2[LSPL:])
    st_("sync")
    for x in nt(a_dma(2) + a_dma(3)) + LST: a(x)
    curA, curW = [0], [0]
    def preads(u):
        st, us = u // 2, u % 2
        L = []
        def win(base, cur, regs_):
            w_ = base // 65536
            if w_ != cur[0]:
                d = (w_ - cur[0]) * 65536
                for r in regs_: L.append((("v_add_u32 v%d, 0x%x, v%d" % (r, d, r)) if d > 0 else ("v_subrev_u32 v%d, 0x%x, v%d" % (r, -d, r)), None))
                cur[0] = w_
            return base % 65536
        oa = win(ARING[st % 4], curA, vA); ow = win(WRING[st % 6], curW, vW)
        tr = lambda n: [("ds_read_b64_tr_b16 %s, v%d offset:%d" % (freg(u, 4 + n, 2 * r_, 2), vW[n], ow + us * 8192 + r_ * 4096), 4 + n) for r_ in range(2)]
        ac = [("ds_read_b128 %s, v%d offset:%d" % (freg(u, n), vA[n // 2], oa + us * 2048 + (n % 2) * 1024), n) for n in range(4)]
        if u >= 36 - ND: return L + tr(2) + ac + tr(3) + tr(0) + tr(1)
        return L + tr(0) + ac + tr(1) + tr(2) + tr(3)
    def freg(u, f, o=0, n=4):
        if u >= 36 - ND and f in (0, 1, 4, 5): return ar(16 * (u - 36 + ND) + 4 * (0, 1, 0, 0, 2, 3)[f] + o, n)
        return vr(FP + 32 * (u % 2) + 4 * f + o, n)
    def pm(u, wn, n):
        acc = vr(ACC + ((n // 2) + 2 * (wn // 2)) * 16 + (n % 2) * 8 + (wn % 2) * 4, 4)
        return "%s %s, %s, %s, %s" % (MF16, acc, freg(u, 4 + wn), freg(u, n), "0" if u == 0 else acc)
    Mp = []; u0 = []; fu = []; late = []; wpts = []
    for u in range(36):
        u0.append(len(Mp)); d_ = {}
        seq = [(wn, n) for wn in range(4) for n in range(4)]
        if u >= 36 - ND:
            late += [pm(u, wn, n) for wn, n in seq if wn < 2 and n < 2]
            seq = [(wn, n) for wn in (2, 3) for n in range(4)] + [(wn, n) for wn in (0, 1) for n in (2, 3)]
        for wn, n in seq:
            d_.setdefault(4 + wn, len(Mp)); d_.setdefault(n, len(Mp)); Mp.append(pm(u, wn, n))
        fu.append(d_); wpts += [u0[u], u0[u] + 8]
    SP_ = Sched(Mp); SP_.backlog = 10
    R0 = [(x, None if f is None else fu[0][f]) for x, f in preads(0)]
    for x, _ in R0: a(x)
    for u in range(1, 36):
        t0 = u0[u - 1] + (PB if u % 2 == 0 else 0)
        SP_.rq += [(x, t0, t0, None if f is None else fu[u][f]) for x, f in preads(u)]
    bpos = {st: u0[2 * st - 1] + PB for st in range(1, 18)}
    for st, b in bpos.items(): SP_.bars[b] = st
    SP_.waitpts = wpts
    SP_.place_reads()
    for g_ in range(SP_.n):
        for u_ in SP_.use[g_].values():
            if u_ is not None:
                st = max(k for k in range(36) if u0[k] <= u_) // 2
                assert g_ < bpos.get(st + 1, 9999), (g_, u_)
    for st in range(1, 18):
        b = bpos[st]
        G = []
        if st == 5: G.append("buffer_store_dword v194, v193, s[%d:%d], s%d offen sc1" % (SO, SO + 3, sFG))
        if st == 10: G.append(poll_load(4) + " ; need:13")
        if st + 3 < 18: G += a_dma(st + 3)
        if st + 5 < 18: G += w_dma(st + 5)
        SP_.place(G, b, bpos.get(st + 1, SP_.n) - 2, slack=30)
    nb_ = [0]
    def pbar(w):
        nb_[0] += 1
        a(w)
        if nb_[0] == 13: poll_check(4)
        if not XP & 4: a("s_barrier")
    SP_.emit(a, pbar, [u_ for _, u_ in R0], [2] * 4 + [3] * 4 + [5] * 2)
    if VERB: print("P over", SP_.over)
    st_("pm")
    a("s_nop 3")
    for j in (2, 3, 1):
        a("s_xor_b32 s%d, s%d, %d\ns_mul_i32 s%d, s%d, 49152\ns_add_u32 s%d, s%d, s%d\ns_add_u32 s%d, s%d, %d" % (sT0, sQ, j, sT0, sT0, sT0, sT0, sXO, sT0, sT0, (j - 1) * 16384))
        for r in range(8): a("v_cvt_pk_bf16_f32 v%d, v%d, v%d" % (FP + 8 * j + r, ACC + j * 16 + 2 * r, ACC + j * 16 + 2 * r + 1))
        for c in range(2): a("buffer_store_dwordx4 %s, v%d, s[%d:%d], s%d offen offset:%d sc1" % (vr(FP + 8 * j + 4 * c, 4), vK, SO, SO + 3, sT0, c * 1024))
    for x in late: a(x)
    signal_wait(sFX, 11, [])
    st_("xs")
    a("s_mov_b32 s%d, s%d" % (sT0, sXR))
    for j in range(1, 4):
        for c in range(2): a("buffer_load_dwordx4 %s, v%d, s[%d:%d], s%d offen offset:%d sc1" % (vr(ACC + j * 16 + 4 * c, 4), vK, SO, SO + 3, sT0, c * 1024))
        if j < 3: a("s_add_u32 s%d, s%d, 16384" % (sT0, sT0))
    for j in range(1, 4):
        a("s_waitcnt vmcnt(%d)" % (2 * (3 - j)))
        for r in range(8):
            t = ACC + j * 16 + r
            a("v_lshlrev_b32 v12, 16, v%d\nv_and_b32 v13, 0xffff0000, v%d\nv_add_f32 v%d, v%d, v12\nv_add_f32 v%d, v%d, v13" % (t, t, ACC + 2 * r, ACC + 2 * r, ACC + 2 * r + 1, ACC + 2 * r + 1))
    for r in range(8): a("v_cvt_pk_bf16_f32 v%d, v%d, v%d" % (FP + r, ACC + 2 * r, ACC + 2 * r + 1))
    a("s_nop 1")
    for pr in range(2): a("v_permlane16_swap_b32 v%d, v%d\nv_permlane16_swap_b32 v%d, v%d" % (FP + 4 * pr, FP + 4 * pr + 2, FP + 4 * pr + 1, FP + 4 * pr + 3))
    a("buffer_store_dwordx4 %s, v6, s[%d:%d], s%d offen %s\ns_add_u32 s%d, s%d, 16384" % (vr(FP, 4), SOUT, SOUT + 3, sOUT, OST, sOUT, sOUT))
    a("buffer_store_dwordx4 %s, v6, s[%d:%d], s%d offen %s" % (vr(FP + 4, 4), SOUT, SOUT + 3, sOUT, OST))
    if HOLD:
        ia, ib, wg = HOLD; lp = a.label("hold")
        a("s_waitcnt lgkmcnt(0)\ns_cmp_lg_u32 s2, %d\ns_cbranch_scc1 %s" % (wg, done))
        a("s_sub_u32 s22, s%d, s%d\ns_min_u32 s22, s22, 0x2000\ns_add_u32 s22, s22, 10000" % (74 + 4 * ib, 74 + 4 * ia))
        a("%s:\ns_memrealtime s[24:25]\ns_waitcnt lgkmcnt(0)\ns_sub_u32 s24, s24, s74\ns_cmp_lt_u32 s24, s22\ns_cbranch_scc1 %s" % (lp, lp))
    else: T.dump(SO, sWV, 4)
    a(done + ":\ns_endpgm")
    a(lRare + ":")
    for (ls, lb, kind) in spins:
        lp = a.label("sp")
        a(ls + ":\ns_mov_b32 s44, 0x40000\n%s:" % lp)
        a("s_sleep 8\n" + poll_load(kind) + "\ns_waitcnt vmcnt(0)\n%s\ns_cbranch_vccz %s" % (poll_cmp(kind), lb))
        a("s_sub_u32 s44, s44, 1\ns_cmp_lg_u32 s44, 0\ns_cbranch_scc1 %s\ns_branch %s" % (lp, lb))
    for (ls, lb) in rels:
        a("%s:\nbuffer_wbl2 sc1\ns_waitcnt vmcnt(0)\ns_branch %s" % (ls, lb))
    sRET = 44
    for (p, sm, qk, hs), (lr, users) in rare.items():
        for rid, (lj, lb) in enumerate(users): a("%s:\ns_mov_b32 s%d, %d\ns_branch %s" % (lj, sRET, rid, lr))
        a(lr + ":\ns_nop 7\ns_nop 7")
        for qb in range(4 // sm):
            cur = qregs(S[p], sm, qb, hs); d, f = vX, vX + 2
            if not cur: continue
            for x in maxtree(d, cur) + xlane("v_max_f32", [d], [d + 1]): a(x)
            a("v_max_f32 v%d, 0, v%d\nv_exp_f32 v%d, -v%d" % (d, d, f, d))
            nx = qregs(S[1 - p], qk, qb) if qb < 4 // qk else []
            for r in cur + [NM + 4 * qb + j for j in range(4)] + nx: a("v_sub_f32 v%d, v%d, v%d" % (r, r, d))
            a("v_mul_f32 v%d, v%d, v%d" % (vL[qb], vL[qb], f))
            for j in range(0, 32, 4):
                for q in range(4): a("v_accvgpr_read_b32 v%d, a%d" % (TM + q, O + qb * 32 + j + q))
                for q in range(4): a("v_mul_f32 v%d, v%d, v%d" % (TM + q, TM + q, f))
                for q in range(4): a("v_accvgpr_write_b32 a%d, v%d" % (O + qb * 32 + j + q, TM + q))
        for q in live(sm, hs):
            for n in range(8 * q, 8 * q + 8): a(ex(p, n))
            for j in range(4 * q, 4 * q + 4): a(cv(p, j))
        a("s_nop 1")
        for q in live(sm, hs): a(summ(p, sm, q))
        a("s_nop 7")
        for rid, (lj, lb) in enumerate(users):
            if rid < len(users) - 1: a("s_cmp_eq_u32 s%d, %d\ns_cbranch_scc1 %s" % (sRET, rid, lb))
            else: a("s_branch %s" % lb)
    a.add_kernel(name, 512, 102, 256)
    a.launch(name, 256, 256, 163840)
```

```python
from gen_common import *
from sched import Sched, isvm
from pack import Gaps, cost as gcost
import re as _re
MF16 = "v_mfma_f32_16x16x32_bf16"
MFH = "v_mfma_f32_16x16x16_bf16"
pX, pWQKV, pWO0, pC, pWQ, pWUK, pWUV, pBWO, pGATE, pDBG, pWS = 36, 38, 40, 44, 46, 48, 50, 52, 54, 58, 60
pWO = 58
NEG = "0xff800000"
THRESH = fbits(2.0 ** 48)
WSL = (98304, 131072)
LDS_G = WSL[0] + 24576
def aslot(g): return ((g + 2) % 3) * 32768
def flat(G): return [x for g in G for x in (g if isinstance(g, list) else [g])]
def soft(G):
    out = []
    for g in G:
        if any(x.startswith("s_cselect") for x in g):
            k = [j for j, x in enumerate(g) if x.startswith("s_cmp") or x.startswith("s_bitcmp")][0]
            out += g[:k] + [g[k:]]
        else: out += g
    return out

def gen2(a, name="p1_kernel", ts=False, PF=1, PD=8, WP=2, TS2=0, TS3=0, DFR=12, LSPL=110, SLP=4, QSL=(4, 6, 5), XSL=3, PDW=4, GPUB=11, VERB=0, NE=8, PFS=(2, 3, 5, 4), EARLY1=0, F1=56, WPG=(1, 3, 5, 7), QPF=1, AP=(("c", 1), "cu", None, "xu"), FORCE=0, ST0=4, EXT=0, ND=10, OST="", PKV=1, XQ=0, XP=0, T15=1, WSP=(0, 4, 2), CR2=0, HOLD=None, CM=1, PB=2,
         STAMPS=("start", "q", "attn", "mid", "s17")):
    XL2 = 0; PRE0 = 0; endlabel = None; SENT = 0
    a.begin_kernel(name)
    T = TS(a, ts, 0, base=72)
    def st_(nm):
        if nm in STAMPS: T.stamp(STAMPS.index(nm))
    done = a.label("fdone")
    lAttn, lRare = a.label("attn"), a.label("rarecode")
    sWV = 3
    SA, SW, SX, SO, SD = 4, 8, 12, 16, 40
    sH, sI, sT0, sT1, sT2 = 20, 21, 22, 23, 24
    sAS, sAS2, sWS, sXS, sAM, sWM, sXM, sCNT, sOK, sDS, sSC = 25, 26, 27, 28, 29, 30, 31, 32, 33, 34, 35
    sQL, sQS, sU, sOA, sAD, sWD, sOJ, sVD, sFA, sGR = 92, 93, 94, 95, 96, 97, 56, 57, 63, 99
    sKO, sVO, sW4, sW8, sTH, sT = 48, 49, 50, 51, 54, 32
    vL16 = 1
    vAO, vWO, vXO = (2, 3, 4, 5), (6, 7, 8, 9), (10, 11)
    vAR, vWR, vXR = (12, 13), tuple(range(14, 22)), (22, 23, 24)
    vGR, vGA2, GC = 25, (26, 27), 92
    QS = (28, 44); WR, NWR = 60, 8; TT, PK = 96, 104
    KS = (128, 160)
    vFO, vONE, vPFD, vTS, vW12, vPL, vPLO = 120, 121, 122, 123, 124, 125, 126
    sWS2, sOK2, sHL = 62, 98, 55
    QA = 128
    t2 = [0]
    def bar(waitstr):
        if TS2:
            n = t2[0]; t2[0] += 1
            if n > 0: a("v_writelane_b32 v123, s72, %d\nv_writelane_b32 v123, s74, %d" % (2 * n - 2, 2 * n - 1))
            a("s_memtime s[72:73]")
        a(waitstr + "\ns_barrier")
        if TS2: a("s_memtime s[74:75]")
    a("s_cmp_ge_u32 s2, 256\ns_cbranch_scc1 %s" % done)
    st_("start")
    a("s_load_dwordx16 s[36:51], s[0:1], 0\ns_load_dwordx8 s[52:59], s[0:1], 64\ns_load_dwordx2 s[60:61], s[0:1], 96")
    a("v_lshrrev_b32 v30, 6, v0\nv_and_b32 v0, 63, v0\nv_readfirstlane_b32 s%d, v30" % sWV)
    a("s_and_b32 s%d, s2, 7\ns_lshl_b32 s%d, s%d, 2\ns_lshr_b32 s%d, s2, 3\ns_and_b32 s%d, s%d, 3\ns_add_u32 s%d, s%d, s%d" % (sH, sH, sH, sT0, sT0, sT0, sH, sH, sT0))
    a("s_lshr_b32 s%d, s2, 5" % sI)
    a("v_lshlrev_b32 v%d, 4, v0" % vL16)
    a("v_lshrrev_b32 v30, 3, v0\nv_lshrrev_b32 v31, 4, v0\nv_and_b32 v32, 7, v0")
    a("v_xor_b32 v33, v31, v32\nv_lshlrev_b32 v33, 4, v33\nv_lshl_add_u32 v%d, v30, 10, v33" % vAO[0])
    a("v_add_u32 v%d, %d, v%d\nv_xor_b32 v33, 64, v%d\nv_add_u32 v%d, %d, v33\nv_add_u32 v%d, %d, v33" % (vAO[2], 2 * 7168, vAO[0], vAO[0], vAO[1], 7168, vAO[3], 3 * 7168))
    a("v_and_b32 v33, 15, v0\nv_lshlrev_b32 v34, 2, v31\nv_xor_b32 v33, v33, v34\nv_lshlrev_b32 v33, 4, v33\nv_lshl_add_u32 v%d, v31, 13, v33" % vWO[0])
    a("v_add_u32 v%d, %d, v%d\nv_xor_b32 v33, 32, v%d\nv_add_u32 v%d, %d, v33\nv_add_u32 v%d, %d, v33" % (vWO[1], 31744, vWO[0], vWO[0], vWO[2], 2 * 31744, vWO[3], 3 * 31744))
    a("s_sub_u32 s%d, 15, s%d\ns_bitcmp1_b32 s%d, 0\ns_cselect_b32 s%d, s%d, s%d\ns_lshl_b32 s%d, s%d, 1\ns_lshr_b32 s%d, s%d, 1\ns_add_u32 s%d, s%d, s%d" % (sT0, sI, sWV, sT0, sT0, sI, sT0, sT0, sT1, sWV, sT0, sT0, sT1))
    a("s_lshl_b32 s%d, s%d, 16\ns_add_u32 s%d, s%d, 32768" % (sAS, sT0, sAS2, sAS))
    a("s_lshl_b32 s%d, s%d, 13\ns_mov_b32 s%d, s%d" % (sAM, sWV, sWM, sAM))
    a("s_and_b32 s%d, s%d, 1\ns_lshl_b32 s%d, s%d, 18\ns_lshl_b32 s%d, s%d, 8\ns_add_u32 s%d, s%d, s%d" % (sT0, sWV, sT0, sT0, sWS, sH, sWS, sWS, sT0))
    a("s_and_b32 s%d, s2, 31\ns_add_u32 s%d, s%d, 0x20000" % (sU, sWS2, sWS))
    a("v_and_b32 v33, 15, v0\nv_lshrrev_b32 v34, 1, v33\nv_xor_b32 v34, v34, v31\nv_lshlrev_b32 v34, 4, v34\nv_lshl_add_u32 v40, v33, 7, v34")
    a("s_and_b32 s%d, s%d, 1\ns_lshl_b32 s%d, s%d, 14\ns_add_u32 s%d, s%d, %d" % (sT0, sWV, sT0, sT0, sT0, sT0, aslot(0)))
    a("v_add_u32 v%d, s%d, v40\nv_xor_b32 v%d, 64, v%d" % (vAR[0], sT0, vAR[1], vAR[0]))
    a("v_lshrrev_b32 v35, 2, v0\nv_and_b32 v35, 3, v35\nv_lshl_add_u32 v36, v31, 3, v35")
    a("v_bfe_u32 v37, v0, 1, 1\nv_and_b32 v34, 1, v31\nv_lshl_add_u32 v37, v34, 1, v37\nv_and_b32 v38, 1, v0\nv_lshlrev_b32 v38, 3, v38")
    a("v_lshlrev_b32 v39, 2, v35\nv_xor_b32 v39, v39, v37\nv_lshlrev_b32 v39, 4, v39\nv_lshl_add_u32 v39, v36, 8, v39")
    a("s_lshr_b32 s%d, s%d, 1\ns_lshl_b32 s%d, s%d, 14\ns_add_u32 s%d, s%d, %d\nv_add3_u32 v39, v39, v38, s%d" % (sWD, sWV, sWD, sWD, sT0, sWD, WSL[0], sT0))
    for k in range(8): a("v_xor_b32 v%d, %d, v39" % (vWR[k], 32 * k))
    a("s_lshr_b32 s%d, s2, 3\ns_lshl_b32 s%d, s%d, 2\ns_add_u32 s%d, s%d, s%d\nv_lshlrev_b32 v127, 7, v33\nv_add_lshl_u32 v127, v127, s%d, 7" % (sT0, sT0, sT0, sT0, sT0, sWV, sT0))
    a("s_waitcnt lgkmcnt(0)")
    a("s_mov_b32 s100, s56\ns_mov_b32 s101, s57")
    srd(a, SA, pC, 0x200000)
    a("s_cmp_lt_u32 s%d, 2\ns_cselect_b32 s%d, s%d, s%d\ns_cselect_b32 s%d, s%d, s%d\ns_mov_b32 s%d, 0x400000\ns_mov_b32 s%d, 0x20000" % (sWV, SW, pWUK, pWUV, SW + 1, pWUK + 1, pWUV + 1, SW + 2, SW + 3))
    def dgrp(m0s, m0i, vo, srd_, so, stp, nd):
        G = ["s_add_u32 m0, s%d, %d" % (m0s, m0i)]
        G += ["buffer_load_dwordx4 v%d, s[%d:%d], s%d offen offset:%d lds ; need:%d" % (v, srd_, srd_ + 3, so, n * 1024, nd) for n, v in enumerate(vo)]
        G.append("s_add_u32 s%d, s%d, %d" % (so, so, stp))
        return G
    def fixm0(G):
        out = []
        for k, x in enumerate(G):
            out.append(x)
            if x.startswith("s_add_u32 m0"):
                if len(out) > 1 and out[-2].startswith("s_add_u32 s"): out[-1], out[-2] = out[-2], out[-1]
                else: out.append("s_nop 0")
        return out
    def dma_act(g): return fixm0(dgrp(sAM, aslot(g), vAO, SA, sAS, 128, g) + dgrp(sAM, aslot(g) + 4096, vAO, SA, sAS2, 128, g))
    def dma_w(g):
        G = dgrp(sWM, WSL[g % 2], vWO, SW, sWS, 0x80000, g)
        if g < 8: G += dgrp(sWM, WSL[g % 2] + 4096, vWO, SW, sWS2, 0x80000, g)
        else: G += dgrp(sXM, WSL[g % 2] + 16384, vXO, SX, sXS, 64 * 3072, g)
        return fixm0(G)
    st_("d0")
    D0 = [dgrp(sWM, WSL[0], vWO, SW, sWS, 0x80000, 0), dgrp(sAM, aslot(0), vAO, SA, sAS, 128, 0), dgrp(sWM, WSL[0] + 4096, vWO, SW, sWS2, 0x80000, 0), dgrp(sAM, aslot(0) + 4096, vAO, SA, sAS2, 128, 0)]
    for x in fixm0(flat(D0[:ST0])): a(x.split(";")[0])
    st_("d1")
    def pfp(p):
        L = []
        for k, per_ in enumerate(PFS):
            if per_ == p: L.append("global_load_dword v122, v%d, s[%d:%d]" % (192 + k, ((pX, pWQ, pWQ, pWQKV)[k]), ((pX, pWQ, pWQ, pWQKV)[k]) + 1))
        return L
    lpc2 = a.label("pc")
    a("s_getpc_b64 s[0:1]\n%s:" % lpc2)
    a("v_min_u32 v127, %s-%s, v127\nglobal_load_dword v122, v127, s[0:1]" % (lRare, lpc2))
    srd(a, SO, pWS, WS_SIZE); srd(a, SX, pGATE, 1024)
    a("s_mov_b32 s98, s%d\ns_mov_b32 s99, s%d" % (pWO0, pWO0 + 1))
    srd(a, SD, pDBG, 256)
    a("s_mov_b32 s%d, s98\ns_mov_b32 s%d, s99" % (pWO, pWO + 1))
    DF = []
    def d(t): DF.extend(t.split("\n"))
    d("s_lshl_b32 s%d, s%d, 6\nv_add_u32 v%d, s%d, v0\nv_lshlrev_b32 v%d, 12, v%d\nv_min_u32 v%d, 1, v%d\nv_lshlrev_b32 v%d, 29, v%d" % (sT0, sWV, vFO, sT0, vFO, vFO, vONE, vFO, vONE, vONE))
    d("s_getreg_b32 s%d, hwreg(HW_REG_XCC_ID, 0, 4)\ns_mul_i32 s%d, s%d, s%d\ns_lshl_b32 s%d, s%d, 8\ns_add_u32 s%d, s%d, s%d\ns_lshl_b32 s%d, s%d, 8\ns_add_u32 s%d, s%d, 1" % (sT0, sT1, sT0, sT0, sT1, sT1, sT1, sT1, sT0, sT1, sT1, sFA, sT1))
    d("v_mov_b32 v125, s%d\ns_lshl_b32 s%d, s%d, 3\ns_and_b32 s%d, s2, 7\ns_lshl_b32 s%d, s%d, 2\ns_lshl_b32 s%d, s%d, 2" % (sFA, sFA, sFA, sGR, sGR, sGR, sCNT, sH))
    d("v_and_b32 v126, 31, v0\ns_lshl_b32 s%d, s%d, 12\nv_lshl_add_u32 v126, v126, 2, s%d" % (sT0, sWV, sT0))
    d("s_min_u32 s%d, s%d, 1\ns_lshl_b32 s%d, s%d, 29\nv_and_b32 v124, 7, v0\nv_lshl_add_u32 v124, v124, 2, s%d" % (sT0, sWV, sT0, sT0, sT0))
    d("s_lshl_b32 s%d, s%d, 7\ns_add_u32 s%d, s%d, 0x%x\ns_lshl_b32 s%d, s%d, 2\ns_add_u32 s%d, s%d, s%d" % (sHL, sH, sHL, sHL, OFF_FL + 128 * 128, sU, sI, sU, sU, sHL))
    NDF = len(DF)
    d("v_and_b32 v41, 15, v0\ns_lshl_b32 s%d, s2, 2\ns_add_u32 s%d, s%d, s%d\ns_lshl_b32 s%d, s%d, 4\nv_add_lshl_u32 v192, v41, s%d, 7" % (sT0, sT0, sT0, sWV, sT0, sT0, sT0))
    d("s_lshr_b32 s%d, s2, 3\ns_lshl_b32 s%d, s%d, 2\ns_add_u32 s%d, s%d, s%d\ns_lshl_b32 s%d, s%d, 14\ns_and_b32 s%d, s2, 7\ns_lshl_b32 s%d, s%d, 10\ns_add_u32 s%d, s%d, s%d" % (sT0, sT0, sT0, sT0, sT0, sWV, sT1, sT0, sT2, sT2, sT2, sT1, sT1, sT2))
    d("v_lshrrev_b32 v42, 3, v41\nv_lshlrev_b32 v42, 13, v42\nv_lshl_add_u32 v42, v32, 7, v42\nv_add_u32 v193, s%d, v42\nv_add_u32 v194, 0x200000, v193" % sT1)
    d("s_mul_i32 s%d, s%d, %d\ns_lshr_b32 s%d, s%d, 3\ns_add_u32 s%d, s%d, s%d\nv_min_u32 v41, 11, v41\nv_lshl_add_u32 v195, v41, 10, s%d" % (sT0, sT0, 4 * 3072, sT2, sT2, sT0, sT0, sT2, sT0))
    d("v_lshrrev_b32 v39, 1, v35\nv_lshlrev_b32 v39, 2, v39\nv_xor_b32 v39, v39, v37\nv_lshlrev_b32 v39, 4, v39\nv_lshl_add_u32 v39, v36, 7, v39\nv_add_u32 v39, v39, v38\nv_add_u32 v39, %d, v39" % (WSL[0] + 16384))
    for k in range(3): d("v_xor_b32 v%d, %d, v39" % (vXR[k], 32 * k))
    d("s_and_b32 s%d, s%d, 3\ns_and_b32 s%d, s2, 7\ns_lshl_b32 s%d, s%d, 7" % (sT0, sH, sT1, sT1, sT1))
    d("s_lshl_b32 s%d, s%d, 5\ns_add_u32 s%d, s%d, s%d\ns_add_u32 s%d, s%d, %d" % (sT2, sT0, sT2, sT2, sT1, sT2, sT2, 2048 - 64))
    d("s_lshr_b32 s%d, s%d, 1\ns_lshl_b32 s%d, s%d, 10\ns_add_u32 s%d, s%d, s%d\ns_and_b32 s%d, s%d, 1\ns_lshl_b32 s%d, s%d, 6\ns_add_u32 s%d, s%d, s%d" % (sDS, sT0, sDS, sDS, sT1, sT1, sDS, sDS, sT0, sDS, sDS, sT1, sT1, sDS))
    d("v_and_b32 v33, 1, v31\nv_lshlrev_b32 v33, 2, v33\nv_xor_b32 v33, v33, v32\nv_mul_u32_u24 v34, 3072, v30\nv_mov_b32 v36, s%d\nv_mov_b32 v37, s%d\nv_mov_b32 v38, 0x1000000" % (sT1, sT2))
    for n in range(2):
        if n: d("v_xor_b32 v33, 2, v33\nv_add_u32 v34, %d, v34" % (24576 - 1024))
        d("v_cmp_gt_u32 vcc, 4, v33\nv_cmp_gt_u32 s[66:67], 6, v33\nv_lshl_add_u32 v35, v33, 4, v34\nv_cndmask_b32 v39, v37, v36, vcc\nv_cndmask_b32 v39, v38, v39, s[66:67]\nv_add_u32 v%d, v35, v39" % vXO[n])
    d("s_lshl_b32 s%d, s%d, 11\ns_lshl_b32 s%d, s%d, 13\ns_add_u32 s%d, s%d, s%d\ns_add_u32 s%d, s%d, %d" % (sT0, sT0, sT1, sWV, sT0, sT0, sT1, sT0, sT0, aslot(8)))
    d("v_add_u32 v%d, s%d, v40\nv_xor_b32 v%d, 64, v%d\nv_lshlrev_b32 v%d, 4, v31\nv_add_u32 v%d, %d, v%d" % (vGA2[0], sT0, vGA2[1], vGA2[0], vGR, vGR, LDS_G, vGR))
    d("s_lshl_b32 s%d, s%d, 2\ns_add_u32 s%d, s%d, s%d\ns_sub_u32 s%d, 60, s%d\ns_add_u32 s%d, s%d, s%d" % (sT1, sI, sQS, sT1, sWV, sQL, sT1, sQL, sQL, sWV))
    d("s_lshr_b32 s%d, s%d, 1\ns_lshl_b32 s%d, s%d, 5\ns_add_u32 s%d, s%d, s%d\ns_add_u32 s%d, s%d, 44\ns_lshl_b32 s%d, s%d, 19" % (sT0, sWV, sT0, sT0, sT0, sT0, sH, sT0, sT0, sOK, sT0))
    d("s_and_b32 s%d, s%d, 1\ns_lshl_b32 s%d, s%d, 1\ns_add_u32 s%d, s%d, s%d\ns_lshl_b32 s%d, s%d, 14\ns_add_u32 s%d, s%d, s%d" % (sT0, sWV, sT1, sI, sT0, sT0, sT1, sT0, sT0, sOK, sOK, sT0))
    d("s_lshl_b32 s%d, s%d, 16\ns_sub_u32 s%d, %d, s%d\ns_add_u32 s%d, s%d, 8192" % (sT0, sI, sOJ, 60 * 8192 - 4096, sT0, sOK2, sOK))
    d("s_lshl_b32 s%d, s%d, 13\ns_and_b32 s%d, s%d, 1\ns_lshl_b32 s%d, s%d, 14\ns_sub_u32 s%d, s%d, s%d\ns_add_u32 s%d, s%d, %d" % (sT0, sWV, sT1, sWV, sT1, sT1, sAD, sT0, sT1, sAD, sAD, aslot(8) - aslot(7)))
    PLA = "buffer_atomic_add v125, v%d, s[%d:%d], s%d offen sc1" % (vFO, SD, SD + 3, sCNT)

    def ub(j): return ((j + 24) % 32 if j < 8 else j + 8 if j < 16 else j - 16) * 8
    AA = 192
    def wofs(g): return (g % 2) * 32768
    def xa(g, ks, R=vAR):
        if g == 7: return "v_add_u32 v%d, s%d, v%d" % (R[ks], sAD, R[ks])
        d = aslot(g + 1) - aslot(g)
        return ("v_add_u32 v%d, 0x%x, v%d" % (R[ks], d, R[ks])) if d > 0 else ("v_subrev_u32 v%d, 0x%x, v%d" % (R[ks], -d, R[ks]))
    def rd_act(g, ks):
        F = (KS if g < 8 else QS)[ks]
        return ["ds_read_b128 %s, v%d offset:%d" % (vr(F + 4 * n, 4), vAR[ks], n * 2048) for n in range(8 if g < 8 else 4)]
    def rd_w(g, ks, wf, slot):
        r = WR + 4 * (slot % NWR)
        if wf < 8: return ["ds_read_b64_tr_b16 %s, v%d offset:%d" % (vr(r + 2 * rd_, 2), vWR[wf], wofs(g) + ks * 8192 + rd_ * 1024) for rd_ in range(2)]
        if wf < 11: return ["ds_read_b64_tr_b16 %s, v%d offset:%d" % (vr(r + 2 * rd_, 2), vXR[wf - 8], wofs(g) + ks * 4096 + rd_ * 512) for rd_ in range(2)]
        return ["ds_read_b128 %s, v%d offset:%d" % (vr(r, 4), vGR, ((g - 8) * 2 + ks) * 64), "ds_read_b128 %s, v%d" % (vr(GC, 4), vGA2[ks])] + ([xa(g, ks, vGA2)] if g < 15 else [])
    def mfs(g, ks, wf, slot, var):
        w = vr(WR + 4 * (slot % NWR), 4); F = (KS if g < 8 else QS)[ks]; first = (g % 8 == 0 and ks == 0)
        cb, tc = (wf % 8) // 2, wf % 2
        if wf == 11: return ["%s %s, %s, %s, %s" % (MF16, ar(AA + 48, 4), w, vr(GC, 4), "0" if first else ar(AA + 48, 4))]
        M = []
        for n in range(8 if g < 8 else 4):
            rb, tr = n // 2, n % 2
            x = vr(F + 4 * n, 4)
            sw = (var == "V") or wf == 10
            tb, ta = (tc, tr) if sw else (tr, tc)
            if g < 8: acc = ar(ub((rb // 2) * 16 + cb * 4 + (rb % 2) * 2 + tb) + ta * 4, 4)
            elif wf < 8: acc = vr(QA + ((rb * 4 + cb) * 2 + tr) * 8 + tc * 4, 4)
            elif wf < 10: acc = ar(AA + n * 8 + tc * 4, 4)
            else: acc = ar(AA + 32 + n * 4, 4)
            M.append("%s %s, %s, %s, %s" % (MF16, acc, x if sw else w, w if sw else x, "0" if first else acc))
        return M
    def order(g, var):
        nw = list(range(8 if g < 8 else 12))
        if g == 7: return [(ks, 2 * cb + t) for cb in range(4) for ks in range(2) for t in range(2)]
        if g == 15:
            return [(ks, wf) for ks in range(2) for wf in (8, 9, 10, 0, 1, 11)] + [(ks, 2 * cb + t) for cb in range(1, 4) for ks in range(2) for t in range(2)]
        return [(ks, wf) for ks in range(2) for wf in nw]
    def build(g0, var):
        fr = [(g, ks, wf) for g in range(g0, g0 + 8) for (ks, wf) in order(g, var)]
        M = []; fm = []
        for k, (g, ks, wf) in enumerate(fr):
            fm.append(len(M)); M += mfs(g, ks, wf, k, var)
        S_ = Sched(M); n = len(M)
        look = [(8, 0, wf) for wf in range(PDW)] if g0 == 0 else []
        allf = fr + look
        cs = {};
        for k, (g, ks, wf) in enumerate(allf): cs.setdefault(g, k)
        bar_m = {g: fm[cs[g] - PDW + 1] for g in cs if g > g0}
        for g, m in bar_m.items(): S_.bars[m] = g
        na = 8 if g0 == 0 else 4
        items = []
        for k in range(PDW, len(allf)):
            g, ks, wf = allf[k]
            t = fm[k - PDW]; e = bar_m.get(g, 0); use = fm[k] if k < len(fr) else n + 1 + (k - len(fr))
            if k == cs[g] and g == 8: items += [(max(t, e), 0, j, ("v_subrev_u32 v%d, s%d, v%d" % (r, sWD, r), t, e, None)) for j, r in enumerate(vWR)]
            items += [(max(t, e), 1 if k == cs[g] else 3, 4 * k + j, (x, t, e, use if x.startswith("ds_") else None)) for j, x in enumerate(rd_w(g, ks, wf, k))]
        for g in cs:
            for ks in range(2):
                if g == g0 and ks == 0: continue
                if g == 8 and g0 == 0 and ks == 1: continue
                R = rd_act(g, ks) + ([xa(g, ks)] if g < 15 else [])
                k1 = [k for k, f in enumerate(allf) if f[0] == g and f[1] == ks][0]
                u0 = fm[k1] if k1 < len(fr) else None
                for j, x in enumerate(R):
                    if ks == 0: t = e = bar_m[g]
                    else:
                        e = fm[cs[g]]; t = e + (j * min(u0 - e - 8, 40)) // len(R)
                    use = None if not x.startswith("ds_") else (u0 + j if u0 is not None else n)
                    items.append((max(t, e), 2, j, (x, t, e, use)))
        items.sort(key=lambda z: z[:3])
        S_.rq = [z[3] for z in items]
        S_.waitpts = [fm[k] for k in range(0, len(fr), 2)]
        S_.place_reads()
        return S_, {g: fm[cs[g]] for g in range(g0, g0 + 8)}, bar_m, fm
    def pack(areg, pk, scale=None):
        t = TT
        G = ["v_accvgpr_read_b32 v%d, a%d" % (t + j, areg + j) for j in range(8)]
        if scale is not None: G += ["v_mul_f32 v%d, s%d, v%d" % (t + j, scale, t + j) for j in range(8)]
        G += ["v_cvt_pk_bf16_f32 v%d, v%d, v%d" % (pk + j, t + 2 * j, t + 2 * j + 1) for j in range(4)]
        return G
    def kv_unit(j, nd=None):
        cb, rb, tb = (j % 16) // 4, (j // 2) % 2, j % 2
        pk = PK + 4 * (j % 4)
        G = pack(ub(j), pk) + ["buffer_store_dwordx4 %s, v%d, s[%d:%d], s%d offen offset:%d%s" % (vr(pk, 4), vL16, SO, SO + 3, (sOK, sOK2)[rb], (cb % 2) * 2048 + tb * 1024, " ; need:%d" % nd if nd else "")]
        if j == 15: G += ["s_add_u32 s%d, s%d, s%d" % (sOK, sOK, sOJ), "s_add_u32 s%d, s%d, s%d" % (sOK2, sOK2, sOJ)]
        elif j % 16 == 7: G += ["s_add_u32 s%d, s%d, 4096" % (sOK, sOK), "s_add_u32 s%d, s%d, 4096" % (sOK2, sOK2)]
        return G
    qa_setup = [["s_mov_b32 s%d, s%d" % (SA, pX), "s_mov_b32 s%d, s%d" % (SA + 1, pX + 1),
                 "s_lshl_b32 s%d, s%d, 14" % (sT0, sWV), "s_lshl_b32 s%d, s%d, 15" % (sAS, sQL), "s_lshl_b32 s%d, s%d, 15" % (sAS2, sQS),
                 "s_sub_u32 s%d, s%d, s%d" % (sAS, sAS, sT0), "s_sub_u32 s%d, s%d, s%d" % (sAS2, sAS2, sT0),
                 "s_lshl_b32 s%d, s%d, 1" % (sT0, sT0), "s_sub_u32 s%d, %d, s%d" % (sT0, 6 * 16384, sT0),
                 "v_add_u32 v%d, s%d, v%d" % (vAO[2], sT0, vAO[2]), "v_add_u32 v%d, s%d, v%d" % (vAO[3], sT0, vAO[3])]]
    qw_setup = [["s_mov_b32 m0, %d" % LDS_G, "s_mov_b32 s%d, s%d" % (SW, pWQ), "buffer_load_dwordx4 v%d, s[%d:%d], 0 offen lds ; need:8" % (vL16, SX, SX + 3), "s_mov_b32 s%d, s%d" % (SW + 1, pWQ + 1)],
                ["s_lshl_b32 s%d, s%d, 17" % (sT0, sWV), "s_lshl_b32 s%d, s%d, 8" % (sWS, sH), "s_add_u32 s%d, s%d, s%d" % (sWS, sWS, sT0), "s_lshl_b32 s%d, s%d, 12" % (sWM, sWV)],
                ["s_mov_b32 s%d, s%d" % (SX, pWQKV), "s_mov_b32 s%d, s%d" % (SX + 1, pWQKV + 1), "s_lshl_b32 s%d, s%d, 11" % (sXM, sWV), "s_mul_i32 s%d, s%d, %d" % (sXS, sWV, 16 * 3072)],
                ["s_mov_b32 s%d, 0x180000" % (SX + 2)]]
    at_setup = [["v_cmp_ne_u32 vcc, s%d, v125" % sFA, "v_mov_b32 v%d, 1" % vFO, "s_nop 0", "s_lshr_b32 s%d, vcc_lo, s%d" % (sT0, sGR), "s_and_b32 s%d, s%d, 15" % (sT0, sT0)],
                ["s_cmp_eq_u32 s%d, 0" % sT0, "s_cselect_b32 s%d, 1, s%d" % (sFA, sWV)],
                ["s_cmp_eq_u32 s%d, 0" % sWV, "s_cselect_b32 s46, 1, 0", "s_cselect_b32 s47, 2, 0"],
                ["s_lshl_b32 s%d, s%d, 12" % (sW4, sWV), "s_lshl_b32 s%d, s%d, 13" % (sW8, sWV), "s_lshl_b32 s%d, s%d, 19" % (sT0, sH)],
                ["s_lshl_b32 s%d, s%d, 15" % (sVD, sI), "s_add_u32 s%d, s%d, s%d" % (sT0, sT0, sVD)],
                ["s_add_u32 s%d, s%d, 0x%x" % (sKO, sT0, OFF_K), "s_add_u32 s%d, s%d, 0x%x" % (sVO, sT0, OFF_V), "s_mov_b32 s%d, %s" % (sTH, THRESH)]]
    sRA, sHP, sA0, sA1, sGB, sGA_, sGL_, sGS_, sP0, sP1_, sX0, sX1 = 36, 37, 38, 39, 64, 65, 66, 67, 68, 69, 70, 71
    sXO, sXR = 62, 95
    sFG, sFX, sRBK, sTIL = 96, 97, 60, 61
    late_setup = [["s_lshr_b32 s%d, s%d, 3" % (sX1, sH), "s_lshl_b32 s%d, s%d, 3" % (sFG, sX1), "s_add_u32 s%d, s%d, s%d" % (sFG, sFG, sI), "s_lshl_b32 s%d, s%d, 5" % (sFG, sFG),
                 "s_and_b32 s%d, s%d, 7" % (sX0, sH), "s_add_u32 s%d, s%d, s%d" % (sFG, sFG, sX0), "s_lshl_b32 s%d, s%d, 2" % (sFG, sFG), "s_add_u32 s%d, s%d, 0x%x" % (sFG, sFG, OFF_FL),
                 "s_sub_u32 s%d, 15, s%d" % (sX0, sI)], ["s_bitcmp1_b32 s2, 0", "s_cselect_b32 s%d, s%d, s%d" % (sRBK, sX0, sI)], ["s_lshl_b32 s%d, s%d, 2" % (sFX, sRBK),
                 "s_and_b32 s%d, s%d, 3" % (sX0, sH), "s_add_u32 s%d, s%d, s%d" % (sTIL, sFX, sX0), "s_lshl_b32 s%d, s%d, 5" % (sFX, sTIL), "s_add_u32 s%d, s%d, s%d" % (sFX, sFX, sX1),
                 "s_lshl_b32 s%d, s%d, 2" % (sFX, sFX), "s_add_u32 s%d, s%d, 0x%x" % (sFX, sFX, OFF_FL + 32 * 128)],
        ["s_bitcmp1_b32 s%d, 1" % sH, "s_cselect_b32 s%d, s%d, s%d" % (sRA, sQL, sQS)],
        ["s_and_b32 s%d, s%d, 1" % (sHP, sH), "s_lshr_b32 s%d, s%d, 1" % (sX0, sGR), "s_add_u32 s%d, s%d, s%d" % (sHP, sHP, sX0), "s_lshl_b32 s%d, s%d, 11" % (sGB, sGR), "s_add_u32 s%d, s%d, 0x%x" % (sGB, sGB, OFF_G)]]
    sTI = (sQL, sGS_, sQS, 45)
    late_setup.append(["s_lshl_b32 s%d, s%d, 7" % (sGA_, sRA), "s_add_u32 s%d, s%d, s%d" % (sGA_, sGA_, sGB), "s_mov_b32 s%d, s%d" % (sGL_, sGB)])
    for lo_, hi_ in ((sTI[0], sTI[1]), (sTI[2], sTI[3])):
        late_setup.append(["s_lshl_b32 s%d, s%d, 1" % (lo_, lo_), "s_sub_u32 s%d, s%d, s%d" % (lo_, lo_, sWV), "s_xor_b32 s%d, s%d, 7" % (hi_, lo_)])
    late_setup += [["s_lshr_b32 s%d, s%d, 2" % (sX0, sHP), "s_lshl_b32 s%d, s%d, 19" % (sX0, sX0), "s_and_b32 s%d, s%d, 3" % (sX1, sHP), "s_lshl_b32 s%d, s%d, 11" % (sX1, sX1),
         "s_add_u32 s%d, s%d, s%d" % (sX0, sX0, sX1), "s_lshl_b32 s%d, s%d, 13" % (sX1, sRA), "s_add_u32 s%d, s%d, s%d" % (sA0, sX0, sX1),
         "s_max_u32 s%d, s%d, 1" % (sX1, sRA), "s_sub_u32 s%d, s%d, 1" % (sX1, sX1), "s_lshl_b32 s%d, s%d, 13" % (sX1, sX1), "s_add_u32 s%d, s%d, s%d" % (sA1, sX0, sX1),
         "s_add_u32 s%d, s%d, %d" % (sA1, sA1, 4 * PH),
         "s_lshr_b32 s%d, s2, 3" % sX0, "s_lshl_b32 s%d, s%d, 2" % (sX0, sX0), "s_add_u32 s%d, s%d, s%d" % (sX0, sX0, sWV), "s_and_b32 s%d, s2, 6" % sX1,
         "s_lshl_b32 s%d, s%d, 6" % (sX1, sX1), "s_add_u32 s%d, s%d, s%d" % (sX0, sX0, sX1), "s_lshl_b32 s%d, s%d, 6" % (sP0, sX0), "s_lshl_b32 s%d, s%d, 3" % (sP1_, sX0),
         "s_mul_i32 s%d, s%d, %d" % (sXO, sTIL, 4 * 49152), "s_add_u32 s%d, s%d, s%d" % (sXO, sXO, sW4), "s_add_u32 s%d, s%d, 0x%x" % (sXO, sXO, OFF_X),
         "s_lshr_b32 s%d, s%d, 3" % (sXR, sH), "s_mul_i32 s%d, s%d, 49152" % (sXR, sXR), "s_add_u32 s%d, s%d, s%d" % (sXR, sXR, sXO),
         "s_add_u32 s%d, s%d, %d" % (sX0, sA0, 4 * PH), "s_add_u32 s%d, s%d, %d" % (sX1, sA0, 8 * PH), "s_add_u32 s%d, s%d, %d" % (sGB, sA1, 4 * PH)]]
    def ren(G, mp): return [[_re.sub(r"\bs(\d+)\b", lambda m_: "s%d" % mp.get(int(m_.group(1)), int(m_.group(1))), x) for x in g] for g in G]
    early = ren(late_setup[:3], {sFG: 64, sFX: 65})
    early += [["v_mov_b32 v28, 0"] + ["buffer_store_dword v28, v%d, s[%d:%d], s%d offen sc1 ; need:2" % (vONE, SO, SO + 3, r) for r in (64, 65, sU)]]
    SK, SV = SO, SO
    vK, vV = vL16, 2
    def dma(which, typ, par, srd_=None):
        so, sr_, base = (sKO, SK, 0) if which == "K" else (sVO, SV, 65536)
        if srd_ is not None: sr_ = srd_
        sw = sW4 if typ == 1 else sW8
        G = []
        for q in range(typ):
            g = ["s_add_u32 m0, s%d, %d" % (sw, base + par * 32768 + q * 4096)]
            g.append("s_add_u32 s%d, s%d, s%d" % (sDS, so, sw) if q == 0 else "s_add_u32 s%d, s%d, 4096" % (sDS, sDS))
            G.append(g)
            for o in range(4):
                G.append(["buffer_load_dwordx4 v%d, s[%d:%d], s%d offen offset:%d sc1 lds" % (vK, sr_, sr_ + 3, sDS, o * 1024)])
        return G
    def adv(which, typ):
        so = sKO if which == "K" else sVO
        return ["s_add_u32 s%d, s%d, %d" % (so, so, 16384 * typ)]
    spins = []
    vF1, vFA, vPO = 122, 251, 250
    sP1, sG1, sG2 = 45, 46, 47
    def poll_load(kind):
        if kind == 0: return "buffer_load_dword v125, v126, s[%d:%d], 0 offen sc1" % (SD, SD + 3)
        if kind == 1: return "buffer_load_dword v%d, v124, s[%d:%d], s%d offen sc1" % (vF1, SO, SO + 3, sHL)
        if kind == 4: return "buffer_load_dword v195, v192, s[%d:%d], s%d offen sc1" % (SO, SO + 3, sG2)
        return "buffer_load_dword v%d, v%d, s[%d:%d], s%d offen sc1" % (vFA, vPO, SO, SO + 3, sHL)
    def poll_cmp(kind):
        if kind == 0: return "v_and_b32 v%d, 0xff, v125\nv_cmp_gt_u32 vcc, s%d, v%d" % (vFO, sP1, vFO)
        return "v_cmp_gt_u32 vcc, s%d, v%d" % ((sG1, vF1) if kind == 1 else (sG2, vFA) if kind == 2 else (sG1, 195))
    def poll_check(kind):
        ls, lb = a.label("spin"), a.label("spun")
        a("%s\n%s %s\n%s:" % (poll_cmp(kind), "s_branch" if FORCE else "s_cbranch_vccnz", ls, lb))
        spins.append((ls, lb, kind))
    rels = []
    def release():
        ls, lb = a.label("rel"), a.label("reld")
        a("s_cmp_eq_u32 s%d, 0\ns_cbranch_scc1 %s\n%s:" % (sFA, ls, lb))
        rels.append((ls, lb))

    st_("setup")
    if EARLY1:
        for x in dma_w(1) + dma_act(1): a(x.split(";")[0])
    bar("s_waitcnt vmcnt(%d)" % (17 if EARLY1 else 1))
    st_("bar0")

    pre0 = rd_w(0, 0, 0, 0) + rd_act(0, 0) + [x for k in range(1, PDW) for x in rd_w(0, 0, k, k)]
    use0 = [0, 0] + list(range(8)) + [8 * k for k in range(1, PDW) for _ in range(2)]
    for x in pre0: a(x)
    a(xa(0, 0))
    lV = a.label("kvV"); lQ = a.label("qphase")
    a("s_cmp_ge_u32 s%d, 2\ns_cbranch_scc1 %s" % (sWV, lV))
    NKV = 12
    CRL = "global_load_dword v122, v127, s[0:1]"
    for var in ("K", "V"):
        if var == "V": a(lV + ":")
        t2[0] = 1
        S_, cm, bm, fm = build(0, var)
        if EARLY1: S_.place(dma_act(2), 20, bm[1] - 2)
        else:
            S_.place(dma_w(1) + dma_act(1), 0, F1)
            S_.place(dma_act(2), F1, bm[1] - 2)
        for g in range(1, 9):
            b = bm[g]; e = bm.get(g + 1, S_.n + 96)
            Wn = (soft(qw_setup) if g == 7 else []) + dma_w(g + 1) + pfp(g)
            if g in (3, 5, 7): Wn = Wn + [CRL]
            if g == 2: Wn = Wn + [PLA]
            if g == 6: Wn = Wn + [poll_load(0) + " ; need:7", ["s_cmp_eq_u32 s%d, 0" % sWV, "s_cselect_b32 s%d, 8, 0" % sP1]]
            S_.place(Wn, b, b + (44 if g < 8 else 31))
            if g < 8: S_.place((flat(qa_setup) if g == 6 else []) + dma_act(g + 2) + (soft(at_setup) if g == 7 else []), b + 44, e - 8)
        S_.place(DF[:NDF] + soft(early), 2, bm[1] + 8)
        S_.place(DF[NDF:NDF + 22], bm[1] + 8, bm[2] - 4)
        S_.place(DF[NDF + 22:], bm[2], bm[4] - 4)
        S_.hooks[7] = lambda: poll_check(0)
        for cb in range(3):
            S_.place([x for j in range(4 * cb, 4 * cb + 4) for x in kv_unit(j, GPUB)], cm[7] + 32 * cb + 38, cm[7] + 32 * cb + 70 if cb < 2 else S_.n)
        vmh = S_.emit(a, bar, use0, [1] * 16 if EARLY1 else [])
        left = S_.left; nkv = S_.n
        if VERB: print("KV over", S_.over)
        if var == "K": a("s_branch %s" % lQ)
    a(lQ + ":")
    st_("q")
    use8 = [0 if u == nkv else 4 * (u - nkv - 1) for u in left]
    t2[0] = 9
    S_, cm, bm, fm = build(8, "Q")
    per = cm[9] - cm[8]
    S_.place(dma_act(10), 0, bm[9] - 6)
    for g in range(9, 16):
        b = bm[g]; e = bm.get(g + 1, S_.n)
        Wn = dma_w(g + 1) if g < 15 else [x + " ; need:16" if isvm(x) else x for x in flat(dma("K", 1, 1) + [adv("K", 1)])]
        if g == GPUB:
            S_.hooks[g] = release
            Wn = Wn + ["buffer_store_dword v%d, v%d, s[%d:%d], s%d offen sc1" % (vFO, vONE, SO, SO + 3, sU)]
        if g in (9, 11, 13): Wn = Wn + [CRL]
        S_.place(Wn, b, b + 34)
        S_.place(dma_act(g + 2) if g + 2 < 16 else [poll_load(1) + " ; need:15"] + flat(dma("K", 1, 0)) + ["s_sub_u32 s%d, s%d, s%d" % (sKO, sKO, sVD), ["s_cmp_eq_u32 s%d, 0" % sI, "s_cselect_b32 s%d, 0x4000, 0" % sDS], "s_add_u32 s%d, s%d, s%d" % (sKO, sKO, sDS)] if g == 14 else [], b + 34, e - 6)
    S_.place(soft(late_setup), cm[10], cm[14] - 4)
    zero = lambda lo, hi: ["v_accvgpr_write_b32 a%d, 0" % r for r in range(lo, hi)]
    S_.place([x for j in range(NKV, 16) for x in kv_unit(j, GPUB)], 8, cm[9] + per // 2)
    S_.place([x for j in range(16, 32) for x in kv_unit(j) + zero(ub(j), ub(j) + 8)], cm[9] + per // 2, cm[15] + 20)
    hd = ["s_and_b32 s%d, s%d, 1" % (sT0, sH), "s_lshr_b32 s%d, s%d, 1" % (sT1, sGR), "s_add_u32 s%d, s%d, s%d" % (sT0, sT0, sT1),
          "s_and_b32 s%d, s%d, 2" % (sT2, sH), "s_lshl_b32 s%d, s%d, 20" % (sAS, sT2), "s_lshr_b32 s%d, s%d, 1" % (sT2, sT2), "s_add_u32 s%d, s%d, s%d" % (sT1, sT1, sT2),
          "s_lshr_b32 s%d, s%d, 2" % (sT2, sT0), "s_lshl_b32 s%d, s%d, 19" % (sT2, sT2), "s_add_u32 s%d, s%d, s%d" % (sAS, sAS, sT2), "s_and_b32 s%d, s%d, 3" % (sT0, sT0), "s_lshl_b32 s%d, s%d, 11" % (sT0, sT0),
          "s_add_u32 s%d, s%d, s%d" % (sAS, sAS, sT0),
          "s_lshr_b32 s%d, s%d, 2" % (sT2, sT1), "s_add_u32 s%d, s%d, 8" % (sT2, sT2), "s_lshl_b32 s%d, s%d, 19" % (sAS2, sT2), "s_and_b32 s%d, s%d, 3" % (sT1, sT1), "s_lshl_b32 s%d, s%d, 11" % (sT1, sT1),
          "s_add_u32 s%d, s%d, s%d" % (sAS2, sAS2, sT1), "s_and_b32 s%d, s%d, 1" % (sT0, sH), "s_lshl_b32 s%d, s%d, 10" % (sT0, sT0), "s_add_u32 s%d, s%d, s%d" % (sAS2, sAS2, sT0),
          ["s_bitcmp1_b32 s%d, 1" % sH, "s_cselect_b32 s%d, 1.0, %s" % (sSC, fbits(LOG2E * 0.25)), "s_cselect_b32 s%d, s%d, s%d" % (sXM, sTI[2], sTI[0])],
          "s_xor_b32 s%d, s%d, 7" % (sT0, sXM), ["s_bitcmp1_b32 s%d, 0" % sH, "s_cselect_b32 s%d, s%d, s%d" % (sXM, sT0, sXM)],
          "s_lshl_b32 s%d, s%d, 6" % (sXM, sXM), "s_add_u32 s%d, s%d, s%d" % (sXM, sXM, sGL_)]
    sQO, sVO_ = (sWS, sXS, sAM, sWM), (8, 9, 10, 12)
    for qb in range(4):
        hd += ["s_lshr_b32 s%d, s%d, 1" % (sT0, sTI[qb]), "s_lshl_b32 s%d, s%d, 13" % (sT0, sT0), "s_and_b32 s%d, s%d, 1" % (sT1, sTI[qb]), "s_lshl_b32 s%d, s%d, 10" % (sT2, sT1), "s_lshl_b32 s%d, s%d, 3" % (sT1, sT1),
               "s_add_u32 s%d, s%d, s%d" % (sT2, sT2, sT0), "s_add_u32 s%d, s%d, s%d" % (sT1, sT1, sT0), "s_add_u32 s%d, s%d, s%d" % (sQO[qb], sAS, sT2), "s_add_u32 s%d, s%d, s%d" % (sVO_[qb], sAS2, sT1)]
    AE = []
    for j in range(6):
        pk = PK + 4 * (j % 4)
        AE += pack(AA + j * 8, pk, sSC if j < 4 else None)
        if j < 4: AE.append("buffer_store_dwordx4 %s, v%d, s[%d:%d], s%d offen" % (vr(pk, 4), vL16, SO, SO + 3, sQO[j]))
        else: AE += ["buffer_store_dwordx2 %s, v%d, s[%d:%d], s%d offen" % (vr(pk + 2 * t, 2), vL16, SO, SO + 3, sVO_[2 * (j - 4) + t]) for t in range(2)]
    AE += ["v_accvgpr_read_b32 v%d, a%d" % (TT, AA + 48), "v_and_b32 v%d, 15, v0" % (TT + 1), "v_mul_f32 v%d, %s, v%d" % (TT, fbits(-LOG2E), TT), "v_exp_f32 v%d, v%d" % (TT, TT), "v_lshlrev_b32 v%d, 2, v%d" % (TT + 1, TT + 1),
           "v_add_f32 v%d, 1.0, v%d" % (TT, TT), "v_rcp_f32 v%d, v%d" % (TT, TT), "s_nop 0", "buffer_store_dword v%d, v%d, s[%d:%d], s%d offen" % (TT, TT + 1, SO, SO + 3, sXM)]
    S_.place(hd, bm[14] + 40, cm[15] + 38)
    room = S_.room(cm[15] + 40, S_.n) - 8
    S_.place(AE[:room], cm[15] + 40, S_.n); tail = AE[room:]
    if XQ:
        def drop(x):
            if XQ & 1 and x.startswith("buffer_load") and "s[4:7]" in x: return True
            if XQ & 2 and x.startswith("buffer_store_dwordx4"): return True
            if XQ & 4 and x.startswith("buffer_load") and "s[12:15]" in x: return True
            if XQ & 8 and x.startswith("buffer_load") and "s[8:11]" in x: return True
            return False
        S_.G.g = [[it for it in g if not drop(it[1])] for g in S_.G.g]
    nq_ = [0]
    def qbar(w):
        nq_[0] += 1
        if nq_[0] == 7:
            a(w); poll_check(1); bar("s_nop 0")
        else: bar(w)
    vm2 = S_.emit(a, qbar, use8, vmh)
    if VERB: print("Q over", S_.over, "tail", len(tail))
    for x in tail: a(x)
    a("s_waitcnt vmcnt(%d)" % (len(vm2) - 1 - max(k for k, nd in enumerate(vm2) if nd == 16) + sum(1 for x in tail if isvm(x))))
    a(lAttn + ":")
    st_("attn")
    vU = 3; vL = (4, 5, 6, 7); vG = (8, 9, 14, 15); vX = 10
    S = (16, 80); P = (144, 176); NM, LT, TM, ONES = 208, 224, 240, 252
    vT8, vNEG = 248, 249
    sW3 = 56
    def live(typ, half):
        if not half: return list(range(8))
        return [q for q in range(8) if q % 4 != 2] if typ == 1 else [0, 1, 2, 3, 5, 7]
    O, Q, FR, NFR = 0, 128, 192, 16
    ms = (26, 28, 30, 4)
    def kfrag(p, kb, s): return ("K", p * 32768 + (kb // 2) * 8192 + s * 2048 + (kb % 2) * 1024)
    def vfrag(p, kp, dt): return ("V", p * 32768 + kp * 8192 + dt * 1024)
    def rd(slot, fr): return "ds_read_b128 %s, v%d offset:%d" % (ar(FR + 4 * (slot % NFR), 4), vK if fr[0] == "K" else vV, fr[1])
    def pvm(Pp, nq, kp, dt, lv): return ["%s %s, {F}, %s, %s" % (MF16, ar(O + (qb * 8 + dt) * 4, 4), vr(Pp + (kp * nq + qb) * 4, 4), ar(O + (qb * 8 + dt) * 4, 4)) for qb in range(nq) if kp * nq + qb in lv]
    def mf_list(p, pv, qk, hp=0, hq=0):
        L = []; Pp = P[1 - p]; Sn = S[1 - p]
        if pv in (1, 2):
            nq = 4 // pv
            L += [(vfrag(1 - p, kp, dt), pvm(Pp, nq, kp, dt, live(pv, hp))) for kp in range(2 * pv) for dt in range(8)]
        elif pv == 3:
            L += [(("K", vfrag(1, kp, dt)[1]), pvm(Pp, 2, kp, dt, live(2, 1))) for dt in range(8) for kp in range(4)]
        if qk:
            nq = 4 // qk
            for kb in range(4 * qk):
                for s in range(4):
                    ms_ = []
                    for qb in range(nq):
                        if (kb // 2) * nq + qb not in live(qk, hq): continue
                        d = vr(Sn + ((kb // 2) * nq + qb) * 8 + (kb % 2) * 4, 4)
                        ms_.append("%s %s, {F}, %s, %s" % (MF16, d, ar(Q + (qb * 4 + s) * 4, 4), d if s else vr(NM + qb * 4, 4)))
                    L.append((kfrag(1 - p, kb, s), ms_))
        return L
    def ex(p, n): return "v_exp_f32 v%d, v%d" % (TM + n % 8, S[p] + n)
    def cv(p, j): return "v_cvt_pk_bf16_f32 v%d, v%d, v%d" % (P[p] + j, TM + (2 * j) % 8, TM + (2 * j) % 8 + 1)
    def summ(p, sm, q):
        nq = 4 // sm; d = vr(LT + (q % nq) * 4, 4)
        return "%s %s, %s, %s, %s" % (MF16, d, vr(ONES, 4), vr(P[p] + 4 * q, 4), d if q >= nq else "0")
    def chks(sm, hs):
        if sm == 1 and hs: return ["v_max3_f32 v%d, v%d, v%d, v%d" % (vX, LT, LT + 4, LT + 12), "v_cmp_lt_f32 vcc, s%d, v%d" % (sTH, vX)]
        c = ["v_max3_f32 v%d, v%d, v%d, v%d" % (vX, LT, LT + 4, LT + 8), "v_max_f32 v%d, v%d, v%d" % (vX, vX, LT + 12)] if sm == 1 else ["v_max_f32 v%d, v%d, v%d" % (vX, LT, LT + 4)]
        return c + ["v_cmp_lt_f32 vcc, s%d, v%d" % (sTH, vX)]
    rare = {}
    def step(p, pv, sm, qk, dK, dV, pre_in=True, pre_out=True, extra_vm=None, chk=0, last16=False, staged=None, trail=None, vm_first=False, flush=False, ctl=None, hp=0, hs=0, hq=0, kpre=None):
        L = mf_list(p, pv, qk, hp, hq); nf = len(L)
        lv = live(sm, hs) if sm else []; ng = len(lv)
        nxt = [x[0] for x in mf_list(1, 3, 0)][:PD] if last16 else [vfrag(p, kp, dt) for kp in range(2) for dt in range(8)][:PD]
        M0 = [(f, t) for f, (fr, ts_) in enumerate(L) for t in ts_]
        nb = len(M0); M = []; spos = []
        SLK = 6 if nb > 100 else 3
        endm = nb - 10 - SLK
        ins = {((k + 1) * endm) // ng + SLK: q for k, q in enumerate(lv)}
        for m, it in enumerate(M0):
            M.append(it)
            if m in ins: spos.append(len(M)); M.append((it[0], summ(p, sm, ins[m])))
        nm = len(M)
        G = []
        if dV: G += dma("V", dV, p) + [adv("V", dV)]
        if dK: G += (kpre or []) + dma("K", dK, p) + [adv("K", dK)]
        ntr = sum(1 for x in flat(trail or []) if isvm(x))
        G = ((extra_vm or []) + G if vm_first else G + (extra_vm or [])) + (trail or [])
        firstm = {}
        for m, (f, t) in enumerate(M): firstm.setdefault(f, m)
        barf = nf + 1 - PD
        if barf % WP: barf += WP - barf % WP
        if not pre_out or last16: barf = nf + 99
        Gp = Gaps([12] * (nm - 1) + [4])
        sR = Gp.newstream(); pre = None
        allfr = [x[0] for x in L] + (nxt if pre_out else [])
        nrd = PD
        for f in range(nf):
            m = firstm[f]; w_ = None
            if f == barf: w_ = ["s_BARW", "s_BAR"]
            elif f < barf and f % WP == 0: w_ = ["s_waitcnt lgkmcnt(%d)" % max(0, nrd - 1 - min(f + WP - 1, nf - 1))]
            if w_ and m == 0: pre = w_
            elif w_:
                for x in w_: Gp.add(m - 1, sR, x)
            want = min(f + PD, len(allfr) - 1)
            if f < barf and not last16: want = min(want, nf - 1)
            for k in range(2):
                if nrd <= want:
                    Gp.add(m + (k if len(L[f][1]) > 1 else 0), sR, rd(nrd, allfr[nrd])); nrd += 1
        assert nrd == len(allfr), (nrd, len(allfr))
        hiD = min(max(2 * len(G), (nm * DFR) // 16), firstm[barf] - 8 if barf < nf else nm)
        Gp.place(soft(G), 1, hiD, slack=40)
        if pv in (1, 2) and not last16: Gp.place(["v_add_f32 v%d, v%d, v%d" % (vL[qb], vL[qb], LT + 4 * qb) for qb in range(4 // pv) if not (hp and qb == 2)], 0, 10)
        if ctl: Gp.place([ctl], nm - 8, nm - 3)
        if sm:
            pe = []; lo = 0
            for k, q in enumerate(lv):
                hi = spos[k] - SLK
                sE = Gp.newstream(); tmp = {z: list(Gp.g[z]) for z in range(lo, hi)}; ch = []
                for _ in range(8):
                    def inc(z): return max(0, gcost(tmp[z] + [(sE, "v_exp_f32")]) - Gp.cap[z]) - max(0, gcost(tmp[z]) - Gp.cap[z])
                    z = min(range(lo, hi), key=lambda z: (inc(z), gcost(tmp[z]) > Gp.cap[z], (z - lo) % 4 == 2 if EXT else 0, z))
                    tmp[z].append((sE, "v_exp_f32")); ch.append(z)
                for n, z in zip(range(8 * q, 8 * q + 8), sorted(ch)): Gp.add(z, sE, ex(p, n))
                pe += sorted(ch); lo = hi
            sC = Gp.newstream(); k = 0
            for j in range(4 * ng):
                x = cv(p, 4 * lv[j // 4] + j % 4)
                k = max(k, pe[2 * j + 1] + 1)
                dl = min(pe[2 * j + 8] - 1 if 2 * j + 8 < 8 * ng else nm, spos[j // 4] - 3)
                if k > dl: k = dl = max(dl, pe[2 * j + 1])
                assert k <= spos[j // 4] - 3 and (2 * j + 8 >= 8 * ng or k < pe[2 * j + 8]), (j, k, dl)
                cand = [z for z in range(k, dl + 1) if gcost(Gp.g[z] + [(sC, x)]) <= Gp.cap[z]]
                k = cand[0] if cand else min(range(k, dl + 1), key=lambda z: gcost(Gp.g[z]))
                Gp.add(k, sC, x)
            Gp.place(chks(sm, hs), nm - 3, nm - 1)
        for (lst, lo, hi) in (staged or []): Gp.place(lst, lo, hi)
        if VERB: print("step", p, pv, sm, qk, "gaps", nm, "over", Gp.over())
        if not pre_in:
            for f in range(PD): a(rd(f, L[f][0]))
        for x in pre or []: a(x)
        for m, (f, t) in enumerate(M):
            a(t.replace("{F}", ar(FR + 4 * (f % NFR), 4)))
            for x in Gp.out(m):
                if x == "s_BARW": continue
                if x == "s_BAR":
                    if TS3: a("s_mov_b32 m0, s76\ns_add_u32 s76, s76, 1\nv_writelane_b32 v11, s72, m0\ns_mov_b32 m0, s76\ns_add_u32 s76, s76, 1\nv_writelane_b32 v11, s74, m0\ns_memtime s[72:73]")
                    a("s_waitcnt vmcnt(%d) lgkmcnt(0)" % ntr)
                    if chk: poll_check(chk)
                    a("s_barrier")
                    if TS3: a("s_memtime s[74:75]\ns_waitcnt lgkmcnt(0)")
                else: a(x)
        assert nf % NFR == 0
        if sm:
            key = (p, sm, qk if qk else sm, hs)
            if key not in rare: rare[key] = (a.label("rare"), [])
            lb = a.label("back"); lj = a.label("jr")
            rare[key][1].append((lj, lb))
            a("s_cbranch_vccnz %s\n%s:" % (lj, lb))
            if last16 or flush:
                for qb in range(4 // sm):
                    if not (hs and qb == 2): a("v_add_f32 v%d, v%d, v%d" % (vL[qb], vL[qb], LT + 4 * qb))
    def qregs(base, typ, qb, half=0):
        nq = 4 // typ
        return [base + (kp * nq + qb) * 8 + j for kp in range(2 * typ) for j in range(8) if kp * nq + qb in live(typ, half)]
    def maxtree(dst, R):
        L = ["v_max3_f32 v%d, v%d, v%d, v%d" % (dst, R[0], R[1], R[2])]; j = 3
        while j + 1 < len(R):
            L.append("v_max3_f32 v%d, v%d, v%d, v%d" % (dst, dst, R[j], R[j + 1])); j += 2
        if j < len(R): L.append("v_max_f32 v%d, v%d, v%d" % (dst, dst, R[j]))
        return L
    def xlane(op, D, Tm):
        L = []
        for sw in ("v_permlane16_swap_b32", "v_permlane32_swap_b32"):
            L += ["v_mov_b32 v%d, v%d" % (t, d) for d, t in zip(D, Tm)]
            if len(D) < 3: L.append("s_nop %d" % (2 - len(D)))
            L += ["%s v%d, v%d" % (sw, d, t) for d, t in zip(D, Tm)]
            L += ["%s v%d, v%d, v%d" % (op, d, d, t) for d, t in zip(D, Tm)]
        return L
    def mask(sets, pad=True):
        for r in range(4): a("v_cmp_gt_i32 s[%d:%d], %d, v%d" % (ms[r], ms[r] + 1, r, vU))
        if pad: a("s_nop 3")
        for (R, st) in sets:
            lab = [a.label("mk") for _ in range(4)]; full = [a.label("mf") for _ in range(5)]
            for t in range(1, 4): a("s_cmp_eq_u32 s%d, %d\ns_cbranch_scc1 %s" % (st, t, lab[t]))
            for t in range(4):
                if t:
                    a(full[t] + ":")
                    for r in range(4): a("v_mov_b32 v%d, v%d" % (R[4 * t + r], vNEG))
                    a("s_branch %s\n%s:" % (full[t + 1], lab[t]))
                for r in range(4): a("v_cndmask_b32 v%d, v%d, v%d, s[%d:%d]" % (R[4 * t + r], R[4 * t + r], vNEG, ms[r], ms[r] + 1))
            a(full[4] + ":")
    bar("s_nop 0")
    if TS2:
        a("s_waitcnt lgkmcnt(0)"); bar("s_nop 0")
        a("s_lshl_b32 s78, s2, 2\ns_add_u32 s78, s78, s%d\ns_lshl_b32 s78, s78, 8\ns_add_u32 s78, s78, 0x%x\nv_lshlrev_b32 v122, 2, v0" % (sWV, OFF_TS + 0x80000))
        a("buffer_store_dword v123, v122, s[%d:%d], s78 offen\ns_waitcnt vmcnt(0)" % (SO, SO + 3))
    a("s_mov_b32 s%d, %s" % (sSC, fbits(LOG2E / math.sqrt(128.0))))
    fr0 = [kfrag(0, kb, s) for s in range(4) for kb in range(4)]
    for f in range(12): a(rd(f, fr0[f]))
    def qepi(cb):
        G = []
        for qb in range(4):
            src = QA + (((qb // 2) * 4 + cb) * 2 + qb % 2) * 8
            if not PKV: G += ["v_mul_f32 v%d, s%d, v%d" % (src + j, sSC, src + j) for j in range(8)]
            G += ["v_cvt_pk_bf16_f32 v%d, v%d, v%d" % (src + j, src + 2 * j, src + 2 * j + 1) for j in range(4)]
            G += ["v_accvgpr_write_b32 a%d, v%d" % (Q + (qb * 4 + cb) * 4 + j, src + j) for j in range(4)]
        return G
    for x in flat(dma("V", 1, 0)): a(x)
    a("s_sub_u32 s%d, s%d, s%d\ns_sub_u32 s%d, 3, s%d" % (sVO, sVO, sVD, sW3, sWV))
    if PKV:
        a("s_mov_b32 s26, s%d\ns_mov_b32 s27, s%d" % (sSC, sSC))
        for r in range(QA, QA + 128, 2): a("v_pk_mul_f32 %s, %s, s[26:27]" % (vr(r, 2), vr(r, 2)))
    for x in qepi(0): a(x)
    for f in range(12, 16): a(rd(f, fr0[f]))
    misc = ["v_add_u32 v%d, 0x10000, v%d" % (vV, vK), "v_and_b32 v10, 15, v0", "v_lshrrev_b32 v11, 4, v0", "v_lshlrev_b32 v11, 2, v11", "v_sub_u32 v%d, v10, v11" % vU]
    misc += ["v_mov_b32 v%d, 0" % r for r in vL] + ["v_mov_b32 v%d, %s" % (vNEG, NEG), "v_bfe_u32 v%d, v0, 3, 2" % vPO, "v_lshl_add_u32 v%d, v%d, 7, v124" % (vPO, vPO), "s_and_b32 s%d, s%d, 0xfffffe00" % (sHL, sHL)]
    misc += ["v_mov_b32 v%d, 0x3f803f80" % r for r in range(ONES, ONES + 4)] + ["v_mov_b32 v14, v%d" % vONE, "v_mov_b32 v15, 2"]
    a("s_waitcnt lgkmcnt(0)\ns_barrier")
    K2 = flat(dma("K", 2, 0)) + [["s_cmp_eq_u32 s%d, 0" % sI, "s_cselect_b32 s%d, 2, 1" % sT0], "s_lshl_b32 s%d, s%d, 14" % (sT0, sT0), "s_add_u32 s%d, s%d, s%d" % (sKO, sKO, sT0)]
    Gp = Gaps([12] * 64)
    Gp.place(K2, 0, 40)
    for s in range(4): Gp.place(qepi(s + 1) if s < 3 else misc, 16 * s, 16 * s + 16, slack=4)
    for s in range(4):
        for n in range(16):
            qb, kb = n // 4, n % 4
            d = vr(S[0] + ((kb // 2) * 4 + qb) * 8 + (kb % 2) * 4, 4)
            a("%s %s, %s, %s, %s" % (MF16, d, ar(FR + 4 * (4 * s + kb), 4), ar(Q + (qb * 4 + s) * 4, 4), d if s else "0"))
            for x in Gp.out(16 * s + n): a(x)
    st_("m1")
    for f, x in enumerate(mf_list(0, 0, 1)[:PD]): a(rd(f, x[0]))
    mask([(qregs(S[0], 1, 2), sWV)], pad=False)
    MXr, MXt = (240, 241, 242, 243), (244, 245, 246, 247)
    for qb in range(4):
        for x in maxtree(MXr[qb], qregs(S[0], 1, qb)): a(x)
    for x in xlane("v_max_f32", MXr, MXt): a(x)
    for qb in range(4):
        for j in range(4): a("v_sub_f32 v%d, 0, v%d" % (NM + qb * 4 + j, MXr[qb]))
    for qb in range(4):
        if PKV:
            for r in qregs(S[0], 1, qb)[::2]: a("v_pk_add_f32 %s, %s, %s" % (vr(r, 2), vr(r, 2), vr(NM + qb * 4, 2)))
        else:
            for r in qregs(S[0], 1, qb): a("v_sub_f32 v%d, v%d, v%d" % (r, r, MXr[qb]))
    st_("first")
    if TS3: a("s_mov_b32 s76, 0\ns_mov_b32 s72, 0\ns_mov_b32 s74, 0")
    step(0, 0, 1, 1, 0, 0)
    release()
    a("buffer_store_dword v15, v14, s[%d:%d], s%d offen sc1" % (SO, SO + 3, sU))
    st_("s0")
    lT0, lT1, lT1b, lL1, lL2, lS15, lMid, lI7, lEn = [a.label(x) for x in ("T0", "T1", "T1b", "L1", "L2", "S15", "MID", "I7", "END")]
    PL = [[poll_load(2)]]
    AF = [Q + 4 * j for j in range(9)]
    def ld(dst, so, off): return "buffer_load_dwordx4 %s, v%d, s[%d:%d], s%d offen offset:%d sc1" % (ar(dst, 4), vK, SV, SV + 3, so, off)
    AOP = [ld(AF[0], sA0, 0), ld(AF[1], sA0, 1024), ld(AF[2], sX0, 0), ld(AF[3], sX0, 1024), ld(AF[4], sA1, 1024),
           ld(AF[5], sX1, 0), ld(AF[6], sX1, 1024), ld(AF[7], sGB, 0), ld(AF[8], sGB, 1024)]
    AOP += ["v_and_b32 v12, 15, v0", "v_lshlrev_b32 v12, 2, v12"] + ["buffer_load_dword a%d, v12, s[%d:%d], s%d offen offset:%d sc1" % (Q + 36 + t, SV, SV + 3, sGA_, 64 * t) for t in range(2)]
    ALD = [["v_and_b32 v12, 15, v0", "v_lshlrev_b32 v12, 2, v12"]]
    ALD += [["buffer_load_dword v%d, v12, s[%d:%d], s%d offen offset:%d sc1" % (vG[qb], SV, SV + 3, sT0, 0)] for qb in range(4)]
    for qb in range(4): ALD[1 + qb] = ["s_lshl_b32 s%d, s%d, 6" % (sT0, sTI[qb]), "s_add_u32 s%d, s%d, s%d" % (sT0, sT0, sGL_)] + ALD[1 + qb]
    def wpf(dst): return [["v_add_lshl_u32 v%d, v0, s%d, 7" % (vT8, sP0), "global_load_dword v%d, v%d, s[%d:%d]" % (dst, vT8, pBWO, pBWO + 1)],
                          ["v_and_b32 v12, 7, v0", "v_add_lshl_u32 v12, v12, s%d, 7" % sP1_, "global_load_dword v%d, v12, s[%d:%d]" % (dst, pWO, pWO + 1)]]
    TR0, TR15 = wpf(vG[0]), (wpf(vT8) if T15 else [])
    if CR2:
        TR15 = TR15 + [["s_lshr_b32 s%d, s%d, 3" % (sT0, sP1_), "s_and_b32 s%d, s%d, 127" % (sT0, sT0), "v_and_b32 v13, 15, v0", "v_lshlrev_b32 v13, 7, v13", "v_add_lshl_u32 v13, v13, s%d, 7" % sT0,
                        "v_min_u32 v13, %s-%s, v13" % (lRare, lpc2), "global_load_dword v%d, v13, s[0:1]" % vT8]]
    PW, PW2 = 8, 12
    sWB, sHW, sWC, sAB, sHA, sAC = 25, 32, 33, 98, 35, 57
    TL = ("s_mov_b32 s%d, s%d\ns_mov_b32 s%d, s%d\ns_mov_b32 s%d, 0x400000\ns_mov_b32 s%d, s%d\ns_mov_b32 s%d, s%d\ns_mov_b32 s%d, 0x80000\n" % (PW, pBWO, PW + 1, pBWO + 1, PW + 2, PW2, pWO, PW2 + 1, pWO + 1, PW2 + 2) +
          "s_lshr_b32 s%d, s%d, 3\ns_lshl_b32 s%d, s%d, 20\ns_and_b32 s%d, s%d, 3\ns_lshl_b32 s%d, s%d, 8\ns_add_u32 s%d, s%d, s%d\ns_lshl_b32 s%d, s%d, 14\ns_add_u32 s%d, s%d, s%d\n" % (sT2, sH, sWB, sT2, sT1, sH, sT1, sT1, sWB, sWB, sT1, sT1, sWV, sWB, sWB, sT1) +
          "s_and_b32 s%d, s%d, 7\ns_mov_b32 s%d, s%d\n" % (sHW, sH, sHA, sHW) +
          "s_lshl_b32 s%d, s%d, 2\ns_add_u32 s%d, s%d, s%d\ns_mul_i32 s%d, s%d, %d\ns_lshl_b32 s%d, s%d, 16\ns_add_u32 s%d, s%d, s%d\ns_add_u32 s%d, s%d, 0x%x\n" % (sT1, sRBK, sT1, sT1, sWV, sAB, sT1, CROW, sT2, sT2, sAB, sAB, sT2, sAB, sAB, OFF_C) +
          "s_lshl_b32 s%d, s%d, 13\ns_add_u32 s%d, s%d, 0x%x" % (sT1, sH, sT1, sT1, OFF_C)).split("\n")
    for t in sTI:
        TL += ["s_and_b32 s%d, s%d, 1" % (sT2, t), "s_lshl_b32 s%d, s%d, 10" % (sT2, sT2), "s_lshr_b32 s%d, s%d, 1" % (t, t), "s_mul_i32 s%d, s%d, %d" % (t, t, CROW),
               "s_add_u32 s%d, s%d, s%d" % (t, t, sT2), "s_add_u32 s%d, s%d, s%d" % (t, t, sT1)]
    STL = [(TL[:23], 2, 50), (TL[23:], 50, 114)]
    a("s_cmp_eq_u32 s%d, 0\ns_cbranch_scc1 %s" % (sI, lT1))
    a("s_mov_b32 s%d, s%d" % (sT, sI))
    a(".p2align 6\n" + lL1 + ":")
    step(1, 1, 1, 1, 1, 1, ctl=["s_sub_u32 s%d, s%d, 1" % (sT, sT)], kpre=[["s_cmp_eq_u32 s%d, 1" % sT, "s_cselect_b32 s%d, 0x4000, 0" % sT0], ["s_add_u32 s%d, s%d, s%d" % (sKO, sKO, sT0)]])
    a("s_cmp_eq_u32 s%d, 0\ns_cbranch_scc1 %s" % (sT, lT0))
    step(0, 1, 1, 1, 1, 1)
    a("s_branch %s" % lL1)
    a(lT0 + ":")
    step(0, 1, 1, 1, 2, 1, extra_vm=PL, chk=2, trail=TR0, hq=1)
    a(lT1 + ":")
    mask([(qregs(S[1], 1, 3), sW3)])
    a("s_add_u32 s%d, s%d, 0x4000\ns_cmp_eq_u32 s%d, 7\ns_cbranch_scc1 %s" % (sVO, sVO, sI, lT1b))
    step(1, 1, 1, 2, 2, 1, hs=1)
    step(0, 1, 2, 2, 2, 2, extra_vm=PL, chk=2, trail=TR0, hp=1)
    a("s_sub_u32 s%d, 6, s%d\ns_cmp_eq_u32 s%d, 0\ns_cbranch_scc1 %s" % (sT, sI, sT, lS15))
    a(".p2align 6\n" + lL2 + ":")
    step(1, 2, 2, 2, 2, 2)
    step(0, 2, 2, 2, 2, 2, ctl=["s_sub_u32 s%d, s%d, 1" % (sT, sT)])
    a("s_cmp_lg_u32 s%d, 0\ns_cbranch_scc1 %s" % (sT, lL2))
    a(lS15 + ":")
    a("s_add_u32 s%d, s%d, 0x8000" % (sKO, sVO))
    step(1, 2, 2, 2, 2, 2, extra_vm=ALD, trail=TR15, vm_first=True, staged=STL, flush=True, hq=1)
    a("s_branch %s" % lMid)
    a(lT1b + ":")
    a("s_add_u32 s%d, s%d, 0x4000" % (sKO, sVO))
    step(1, 1, 1, 2, 2, 1, extra_vm=ALD, trail=TR15, vm_first=True, staged=STL, flush=True, hs=1, hq=1)
    def fin_head(rb, so):
        q0, q1 = 2 * rb, 2 * rb + 1
        G = ["v_rcp_f32 v%d, v%d" % (vL[q0], vL[q0]), "v_rcp_f32 v%d, v%d" % (vL[q1], vL[q1]), "v_sub_f32 v%d, 1.0, v%d" % (vG[q0], vG[q0]), "v_sub_f32 v%d, 1.0, v%d" % (vG[q1], vG[q1]),
             "v_mul_f32 v%d, v%d, v%d" % (vL[q0], vL[q0], vG[q0]), "v_mul_f32 v%d, v%d, v%d" % (vL[q1], vL[q1], vG[q1])]
        return G
    def fin_part(rb, c, t, so, pk=False):
        u, tq = c // 2, c % 2; qb = 2 * rb + tq; so = sTI[qb]
        G = ["v_accvgpr_read_b32 v%d, a%d" % (t + j, O + qb * 32 + u * 8 + j) for j in range(8)]
        if pk and PKV: G += ["v_pk_mul_f32 %s, %s, %s op_sel:[0,%d] op_sel_hi:[1,%d]" % (vr(t + j, 2), vr(t + j, 2), vr(vL[2 * rb], 2), tq, tq) for j in range(0, 8, 2)]
        else: G += ["v_mul_f32 v%d, v%d, v%d" % (t + j, vL[qb], t + j) for j in range(8)]
        G += ["v_cvt_pk_bf16_f32 v%d, v%d, v%d" % (t + j, t + 2 * j, t + 2 * j + 1) for j in range(4)]
        if u == 2: G.append("s_add_u32 s%d, s%d, 4096" % (so, so))
        G.append("buffer_store_dwordx4 %s, v%d, s[%d:%d], s%d offen offset:%d sc1" % (vr(t, 4), vK, SV, SV + 3, so, (u % 2) * 2048))
        return G
    a(lMid + ":")
    st_("mid")
    if TS3:
        a("s_mov_b32 m0, s76\ns_add_u32 s76, s76, 1\nv_writelane_b32 v11, s72, m0\ns_mov_b32 m0, s76\ns_add_u32 s76, s76, 1\nv_writelane_b32 v11, s74, m0")
        a("s_lshl_b32 s78, s2, 2\ns_add_u32 s78, s78, s%d\ns_lshl_b32 s78, s78, 8\ns_add_u32 s78, s78, 0x%x\nv_lshlrev_b32 v10, 2, v0" % (sWV, OFF_TS + 0x80000))
        a("buffer_store_dword v11, v10, s[%d:%d], s78 offen\ns_nop 4" % (SO, SO + 3))
    for x in AOP: a(x)
    mask([(qregs(S[0], 2, 0)[:16], sWV), (qregs(S[0], 2, 1)[16:], sW3)], pad=False)
    vD = (232, 233, 234, 235)
    WRING = [0, 16384, 65536, 81920, 131072, 147456]; ARING = [32768, 49152, 98304, 114688]
    def w_dma(st):
        G = []
        if st < 16 and st % 2 == 0:
            G += ["s_lshl_b32 s%d, s%d, 17" % (sWC, sHW), "s_add_u32 s%d, s%d, s%d" % (sWC, sWC, sWB), "s_add_u32 s%d, s%d, 1" % (sHW, sHW)]
        if st == 16: G += ["s_and_b32 s%d, s%d, 0xffff" % (sWC, sWB), "s_lshr_b32 s%d, s%d, 20" % (sHW, sWB), "s_lshl_b32 s%d, s%d, 17" % (sHW, sHW), "s_add_u32 s%d, s%d, s%d" % (sWC, sWC, sHW)]
        G += ["s_add_u32 m0, s%d, %d" % (sW4, WRING[st % 6]), "s_and_b32 s%d, s%d, 7" % (sHW, sHW) if st % 2 == 0 else "s_add_u32 s%d, s%d, 65536" % (sWC, sWC)]
        sr_ = PW if st < 16 else PW2
        return G + ["buffer_load_dwordx4 v%d, s[%d:%d], s%d offen offset:%d lds ; need:%d" % (vD[o], sr_, sr_ + 3, sWC, o * 1024, st) for o in range(4)]
    def a_dma(st):
        G = []
        if st < 16 and st % 2 == 0:
            G += ["s_lshl_b32 s%d, s%d, 13" % (sAC, sHA), "s_add_u32 s%d, s%d, s%d" % (sAC, sAC, sAB), "s_add_u32 s%d, s%d, 1" % (sHA, sHA)]
        if st == 16: G += ["s_lshr_b32 s%d, s%d, 3" % (sHA, sH), "s_mul_i32 s%d, s%d, %d" % (sHA, sHA, 56 * 1024), "s_sub_u32 s%d, s%d, s%d" % (sAC, sAB, sHA), "s_add_u32 s%d, s%d, %d" % (sAC, sAC, 256 * 1024)]
        G += ["s_add_u32 m0, s%d, %d" % (sW4, ARING[st % 4]), "s_and_b32 s%d, s%d, 7" % (sHA, sHA) if st % 2 == 0 else "s_add_u32 s%d, s%d, 4096" % (sAC, sAC)]
        return G + ["buffer_load_dwordx4 v%d, s[%d:%d], s%d offen offset:%d sc1 lds ; need:%d" % (vK, SV, SV + 3, sAC, o * 1024, st) for o in range(4)]
    nt = lambda L: [x.split(";")[0].strip() for x in L]
    a("v_lshrrev_b32 v10, 4, v0\nv_and_b32 v11, 15, v0\nv_lshlrev_b32 v12, 2, v10\nv_xor_b32 v11, v11, v12\nv_lshlrev_b32 v11, 4, v11\nv_lshl_add_u32 v%d, v10, 10, v11" % vD[0])
    a("v_xor_b32 v11, 16, v%d\nv_add_u32 v%d, 6144, v%d\nv_add_u32 v%d, 3072, v11\nv_add_u32 v%d, 9216, v11" % (vD[0], vD[2], vD[0], vD[1], vD[3]))
    n0, n1, n2 = WSP
    for st in range(n0):
        for x in nt(w_dma(st)): a(x)
    W16_ = [[x] for st in range(n0, n0 + n1) for x in nt(w_dma(st))]; W17_ = [[x] for st in range(n0 + n1, n0 + n1 + n2) for x in nt(w_dma(st))]
    WRS = [x for st in range(n0 + n1 + n2, 6) for x in nt(w_dma(st))]
    a("s_cmp_eq_u32 s%d, 7\ns_cbranch_scc1 %s" % (sI, lI7))
    FT = lambda c: 80 + 8 * (c % 8)
    for x in fin_head(1, sA0): a(x)
    for c in range(NE):
        for x in fin_part(1, c, FT(c), sA0, True): a(x)
    step(0, 2, 2, 0, 0, 0, last16=True, extra_vm=W16_, hs=1)
    def final(first):
        stg = [(first + fin_head(0, sA1), 0, 17)]
        for u in range(3):
            stg.append((fin_part(0, 2 * u, 16 + 16 * u, sA1) + fin_part(0, 2 * u + 1, 24 + 16 * u, sA1), 12 * u + 17, min(12 * u + 29, 48)))
        step(1, 3, 0, 0, 0, 0, pre_out=False, staged=stg, extra_vm=W17_)
        a("s_nop 7")
        for x in fin_part(0, 6, 64, sA1, True) + fin_part(0, 7, 72, sA1, True): a(x)
    final([x for c in range(NE, 8) for x in fin_part(1, c, FT(c), sA0)])
    a("s_branch %s" % lEn)
    a(lI7 + ":")
    step(0, 1, 2, 0, 0, 0, last16=True, extra_vm=W16_, hs=1, hp=1)
    final(fin_head(1, sA0) + [x for c in range(8) for x in fin_part(1, c, FT(c), sA0)])
    a(lEn + ":")
    st_("s17")
    BS, BP, BP0 = 208, 212, 216
    SL = 144; TA = 176; PA = 196; MXl = (240, 241, 242, 243); vPM = 250; OL = 144
    L1 = ["v_add_u32 v246, 14, v%d" % vU, "v_mov_b32 v244, 0x5555", "v_mov_b32 v245, 0", "s_cmp_eq_u32 s%d, 0" % sRA, "s_cselect_b32 s%d, -1, 0" % sT2,
          "v_lshlrev_b64 v[244:245], v246, v[244:245]", "v_alignbit_b32 v244, v245, v244, 12", "v_not_b32 v244, v244"]
    L1 += ["v_bfe_i32 v%d, v244, %d, 1" % (BS + r, 16 + r) for r in range(4)] + ["v_bfe_i32 v%d, v244, %d, 1" % (BP + r, r) for r in range(4)]
    L1 += ["v_or_b32 v%d, s%d, v%d" % (BP0 + r, sT2, BP + r) for r in range(4)]
    L1 += ["v_and_b32 v%d, v%d, v%d" % (BS + r, vNEG, BS + r) for r in range(12)]
    L1 += ["v_and_b32 v244, 1, v0", "v_lshlrev_b32 v244, 4, v244", "v_mov_b32 v245, 0xffff", "v_lshlrev_b32 v%d, v244, v245" % vPM, "s_waitcnt vmcnt(40)"]
    for e in range(2):
        for tq in range(2):
            d = SL + (2 * e + tq) * 8
            L1.append("%s %s, %s, %s, %s" % (MFH, vr(d, 4), ar((AF[4], AF[2])[tq] + 2 * e, 2), ar(AF[tq] + 2 * e, 2), vr((BP0, BP)[tq], 4)))
            L1.append("%s %s, %s, %s, %s" % (MFH, vr(d + 4, 4), ar(AF[2 + tq] + 2 * e, 2), ar(AF[tq] + 2 * e, 2), vr(BS, 4)))
    L2 = ["v_max_f32 v%d, v%d, v%d" % (TA + j, SL + 2 * j, SL + 2 * j + 1) for j in range(16)]
    for n in range(4): L2 += maxtree(MXl[n], [TA + 4 * n + j for j in range(4)])
    L2 += xlane("v_max_f32", MXl, MXt)
    L2 += ["v_sub_f32 v%d, v%d, v%d" % (TA + j, TA + j, MXl[j // 4]) for j in range(16)]
    L2 += ["v_exp_f32 v%d, v%d" % (TA + j, TA + j) for j in range(16)]
    L2 += ["v_cvt_pk_bf16_f32 v%d, v%d, v%d" % (TA + j, TA + j, TA + j) for j in range(16)]
    L2 += ["v_and_b32 v%d, v%d, v%d" % (TA + j, vPM, TA + j) for j in range(16)]
    L2 += ["v_accvgpr_read_b32 v%d, a%d" % (246 + t, Q + 36 + t) for t in range(2)]
    for n in range(4): L2.append("%s %s, %s, %s, 0" % (MF16, vr(OL + 16 + 4 * n, 4), vr(ONES, 4), vr(TA + 4 * n, 4)))
    for e in range(2):
        L2.append("%s %s, %s, %s, 0" % (MFH, vr(OL + 4 * e, 4), ar(AF[7 + e] + 2, 2), vr(TA + 8 * e, 2)))
        L2.append("%s %s, %s, %s, 0" % (MF16, vr(OL + 8 + 4 * e, 4), ar(AF[5 + e], 4), vr(TA + 8 * e + 4, 4)))
    for e in range(2): L2.append("%s %s, %s, %s, %s" % (MFH, vr(OL + 4 * e, 4), ar(AF[5 + e], 2), vr(TA + 8 * e + 2, 2), vr(OL + 4 * e, 4)))
    L2 += ["s_mul_i32 s%d, s%d, %d" % (sA0, sRA, CROW), "s_lshl_b32 s%d, s%d, 11" % (sA1, sHP), "s_add_u32 s%d, s%d, s%d" % (sA0, sA0, sA1), "s_add_u32 s%d, s%d, 0x%x" % (sA0, sA0, OFF_C + 256 * 1024)]
    L2 += ["v_rcp_f32 v%d, v%d" % (MXl[n], OL + 16 + 4 * n) for n in range(4)]
    L2 += ["v_mul_f32 v%d, v%d, v%d" % (MXl[n], MXl[n], 246 + n % 2) for n in range(4)]
    for tq in range(2):
        for e in range(2): L2 += ["v_mul_f32 v%d, v%d, v%d" % (OL + 8 * tq + 4 * e + j, MXl[2 * e + tq], OL + 8 * tq + 4 * e + j) for j in range(4)]
        L2 += ["v_cvt_pk_bf16_f32 v%d, v%d, v%d" % (PA + 4 * tq + j, OL + 8 * tq + 2 * j, OL + 8 * tq + 2 * j + 1) for j in range(4)]
    LST = ["buffer_store_dwordx4 %s, v%d, s[%d:%d], s%d offen offset:%d sc1" % (vr(PA + 4 * tq, 4), vK, SV, SV + 3, sA0, tq * 1024) for tq in range(2)]
    for x in WRS + L1: a(x)
    SOUT = 4; sQ, sOUT = 26, 28
    vA, vW = (2, 3), (4, 5, 14, 15); ACC, FP = 16, 80
    srd(a, SOUT, 100, 2048 * 1024)
    a("s_lshr_b32 s%d, s%d, 3" % (sQ, sH))
    a("s_and_b32 s%d, s%d, 1\ns_lshl_b32 s%d, s%d, 1\ns_and_b32 s%d, s%d, 1\ns_add_u32 s%d, s%d, s%d\ns_lshl_b32 s%d, s%d, 12" % (sT0, sWV, sT0, sT0, sT1, sQ, sT2, sT0, sT1, sT0, sT2))
    a("v_add_u32 v%d, s%d, v%d\nv_xor_b32 v%d, 4096, v%d" % (vA[0], sT0, vK, vA[1], vA[0]))
    a("v_lshrrev_b32 v9, 2, v0\nv_and_b32 v8, 3, v9\nv_bfe_u32 v7, v0, 4, 1\nv_and_b32 v10, 2, v0\nv_or_b32 v7, v7, v10\nv_and_b32 v10, 1, v0\nv_lshlrev_b32 v10, 3, v10")
    a("s_and_b32 s%d, s%d, 2\ns_lshr_b32 s%d, s%d, 1\ns_add_u32 s%d, s%d, s%d\nv_xor_b32 v8, s%d, v8" % (sT0, sWV, sT1, sQ, sT0, sT0, sT1, sT0))
    a("v_lshl_or_b32 v8, v8, 2, v7\nv_lshlrev_b32 v8, 4, v8\nv_lshl_add_u32 v8, v9, 8, v8\nv_add_u32 v%d, v8, v10" % vW[0])
    a("v_xor_b32 v%d, 16, v%d\nv_xor_b32 v%d, 64, v%d\nv_xor_b32 v%d, 80, v%d" % (vW[1], vW[0], vW[2], vW[0], vW[3], vW[0]))
    a("s_and_b32 s%d, s%d, 3\ns_lshl_b32 s%d, s%d, 2\ns_add_u32 s%d, s%d, s%d\ns_lshl_b32 s%d, s%d, 6" % (sT1, sH, sT1, sT1, sT1, sT1, sT0, sOUT, sT1))
    a("s_lshl_b32 s%d, s%d, 2\ns_add_u32 s%d, s%d, s%d\ns_lshl_b32 s%d, s%d, 15\ns_add_u32 s%d, s%d, s%d" % (sT0, sRBK, sT0, sT0, sT2, sT0, sT0, sOUT, sOUT, sT0))
    a("v_and_b32 v6, 15, v0\nv_lshlrev_b32 v6, 10, v6\nv_lshrrev_b32 v7, 4, v0\nv_lshl_add_u32 v6, v7, 4, v6")
    a("v_min_u32 v9, 1, v0\nv_lshlrev_b32 v9, 29, v9\nv_mov_b32 v10, 1\nv_and_b32 v8, 7, v0\nv_lshlrev_b32 v8, 2, v8\nv_and_b32 v11, 12, v8")
    def signal_wait(sown, vo, pre):
        lp, lo_ = a.label("xpoll"), a.label("xok")
        a("s_waitcnt vmcnt(0)\ns_barrier\ns_cmp_lg_u32 s%d, 0\ns_cbranch_scc1 %s_s" % (sWV, lo_))
        a("buffer_store_dword v10, v9, s[%d:%d], s%d offen sc1\n%s_s:" % (SO, SO + 3, sown, lo_))
        for x in pre: a(x)
        a("s_cmp_lg_u32 s%d, 0\ns_cbranch_scc1 %s" % (sWV, lo_))
        a("s_and_b32 s%d, s%d, 0xffffff80\ns_mov_b32 s%d, 0x80000\n%s:" % (sT0, sown, sT1, lp))
        a("buffer_load_dword v12, v%d, s[%d:%d], s%d offen sc1\ns_waitcnt vmcnt(0)\nv_cmp_gt_u32 vcc, 1, v12\ns_cbranch_vccz %s" % (vo, SO, SO + 3, sT0, lo_))
        a("s_sleep %d\ns_sub_u32 s%d, s%d, 1\ns_cmp_lg_u32 s%d, 0\ns_cbranch_scc1 %s\n%s:" % (SLP, sT1, sT1, sT1, lp, lo_))
        a("s_waitcnt vmcnt(0)\ns_barrier")
    a("s_cmp_eq_u32 s%d, 0\ns_cselect_b32 s%d, 2, 0\ns_cselect_b32 s%d, 0, 0x20000000\nv_add_u32 v192, s%d, v8\nv_or_b32 v193, s%d, v9\nv_mov_b32 v194, 2\ns_and_b32 s%d, s%d, 0xffffff80" % (sWV, sG1, sT0, sT0, sT0, sG2, sFG))
    for x in L2[:LSPL]: a(x)
    signal_wait(sFG, 8, nt(a_dma(0) + a_dma(1)) + L2[LSPL:])
    st_("sync")
    for x in nt(a_dma(2) + a_dma(3)) + LST: a(x)
    curA, curW = [0], [0]
    def preads(u):
        st, us = u // 2, u % 2
        L = []
        def win(base, cur, regs_):
            w_ = base // 65536
            if w_ != cur[0]:
                d = (w_ - cur[0]) * 65536
                for r in regs_: L.append((("v_add_u32 v%d, 0x%x, v%d" % (r, d, r)) if d > 0 else ("v_subrev_u32 v%d, 0x%x, v%d" % (r, -d, r)), None))
                cur[0] = w_
            return base % 65536
        oa = win(ARING[st % 4], curA, vA); ow = win(WRING[st % 6], curW, vW)
        tr = lambda n: [("ds_read_b64_tr_b16 %s, v%d offset:%d" % (freg(u, 4 + n, 2 * r_, 2), vW[n], ow + us * 8192 + r_ * 4096), 4 + n) for r_ in range(2)]
        ac = [("ds_read_b128 %s, v%d offset:%d" % (freg(u, n), vA[n // 2], oa + us * 2048 + (n % 2) * 1024), n) for n in range(4)]
        if u >= 36 - ND: return L + tr(2) + ac + tr(3) + tr(0) + tr(1)
        return L + tr(0) + ac + tr(1) + tr(2) + tr(3)
    def freg(u, f, o=0, n=4):
        if u >= 36 - ND and f in (0, 1, 4, 5): return ar(16 * (u - 36 + ND) + 4 * (0, 1, 0, 0, 2, 3)[f] + o, n)
        return vr(FP + 32 * (u % 2) + 4 * f + o, n)
    def pm(u, wn, n):
        acc = vr(ACC + ((n // 2) + 2 * (wn // 2)) * 16 + (n % 2) * 8 + (wn % 2) * 4, 4)
        return "%s %s, %s, %s, %s" % (MF16, acc, freg(u, 4 + wn), freg(u, n), "0" if u == 0 else acc)
    Mp = []; u0 = []; fu = []; late = []; wpts = []
    for u in range(36):
        u0.append(len(Mp)); d_ = {}
        seq = [(wn, n) for wn in range(4) for n in range(4)]
        if u >= 36 - ND:
            late += [pm(u, wn, n) for wn, n in seq if wn < 2 and n < 2]
            seq = [(wn, n) for wn in (2, 3) for n in range(4)] + [(wn, n) for wn in (0, 1) for n in (2, 3)]
        for wn, n in seq:
            d_.setdefault(4 + wn, len(Mp)); d_.setdefault(n, len(Mp)); Mp.append(pm(u, wn, n))
        fu.append(d_); wpts += [u0[u], u0[u] + 8]
    SP_ = Sched(Mp); SP_.backlog = 10
    R0 = [(x, None if f is None else fu[0][f]) for x, f in preads(0)]
    for x, _ in R0: a(x)
    for u in range(1, 36):
        t0 = u0[u - 1] + (PB if u % 2 == 0 else 0)
        SP_.rq += [(x, t0, t0, None if f is None else fu[u][f]) for x, f in preads(u)]
    bpos = {st: u0[2 * st - 1] + PB for st in range(1, 18)}
    for st, b in bpos.items(): SP_.bars[b] = st
    SP_.waitpts = wpts
    SP_.place_reads()
    for g_ in range(SP_.n):
        for u_ in SP_.use[g_].values():
            if u_ is not None:
                st = max(k for k in range(36) if u0[k] <= u_) // 2
                assert g_ < bpos.get(st + 1, 9999), (g_, u_)
    for st in range(1, 18):
        b = bpos[st]
        G = []
        if st == 5: G.append("buffer_store_dword v194, v193, s[%d:%d], s%d offen sc1" % (SO, SO + 3, sFG))
        if st == 10: G.append(poll_load(4) + " ; need:13")
        if st + 3 < 18: G += a_dma(st + 3)
        if st + 5 < 18: G += w_dma(st + 5)
        SP_.place(G, b, bpos.get(st + 1, SP_.n) - 2, slack=30)
    nb_ = [0]
    def pbar(w):
        nb_[0] += 1
        a(w)
        if nb_[0] == 13: poll_check(4)
        if not XP & 4: a("s_barrier")
    SP_.emit(a, pbar, [u_ for _, u_ in R0], [2] * 4 + [3] * 4 + [5] * 2)
    if VERB: print("P over", SP_.over)
    st_("pm")
    a("s_nop 3")
    for j in (2, 3, 1):
        a("s_xor_b32 s%d, s%d, %d\ns_mul_i32 s%d, s%d, 49152\ns_add_u32 s%d, s%d, s%d\ns_add_u32 s%d, s%d, %d" % (sT0, sQ, j, sT0, sT0, sT0, sT0, sXO, sT0, sT0, (j - 1) * 16384))
        for r in range(8): a("v_cvt_pk_bf16_f32 v%d, v%d, v%d" % (FP + 8 * j + r, ACC + j * 16 + 2 * r, ACC + j * 16 + 2 * r + 1))
        for c in range(2): a("buffer_store_dwordx4 %s, v%d, s[%d:%d], s%d offen offset:%d sc1" % (vr(FP + 8 * j + 4 * c, 4), vK, SO, SO + 3, sT0, c * 1024))
    for x in late: a(x)
    signal_wait(sFX, 11, [])
    st_("xs")
    a("s_mov_b32 s%d, s%d" % (sT0, sXR))
    for j in range(1, 4):
        for c in range(2): a("buffer_load_dwordx4 %s, v%d, s[%d:%d], s%d offen offset:%d sc1" % (vr(ACC + j * 16 + 4 * c, 4), vK, SO, SO + 3, sT0, c * 1024))
        if j < 3: a("s_add_u32 s%d, s%d, 16384" % (sT0, sT0))
    for j in range(1, 4):
        a("s_waitcnt vmcnt(%d)" % (2 * (3 - j)))
        for r in range(8):
            t = ACC + j * 16 + r
            a("v_lshlrev_b32 v12, 16, v%d\nv_and_b32 v13, 0xffff0000, v%d\nv_add_f32 v%d, v%d, v12\nv_add_f32 v%d, v%d, v13" % (t, t, ACC + 2 * r, ACC + 2 * r, ACC + 2 * r + 1, ACC + 2 * r + 1))
    for r in range(8): a("v_cvt_pk_bf16_f32 v%d, v%d, v%d" % (FP + r, ACC + 2 * r, ACC + 2 * r + 1))
    a("s_nop 1")
    for pr in range(2): a("v_permlane16_swap_b32 v%d, v%d\nv_permlane16_swap_b32 v%d, v%d" % (FP + 4 * pr, FP + 4 * pr + 2, FP + 4 * pr + 1, FP + 4 * pr + 3))
    a("buffer_store_dwordx4 %s, v6, s[%d:%d], s%d offen %s\ns_add_u32 s%d, s%d, 16384" % (vr(FP, 4), SOUT, SOUT + 3, sOUT, OST, sOUT, sOUT))
    a("buffer_store_dwordx4 %s, v6, s[%d:%d], s%d offen %s" % (vr(FP + 4, 4), SOUT, SOUT + 3, sOUT, OST))
    if HOLD:
        ia, ib, wg = HOLD; lp = a.label("hold")
        a("s_waitcnt lgkmcnt(0)\ns_cmp_lg_u32 s2, %d\ns_cbranch_scc1 %s" % (wg, done))
        a("s_sub_u32 s22, s%d, s%d\ns_min_u32 s22, s22, 0x2000\ns_add_u32 s22, s22, 10000" % (74 + 4 * ib, 74 + 4 * ia))
        a("%s:\ns_memrealtime s[24:25]\ns_waitcnt lgkmcnt(0)\ns_sub_u32 s24, s24, s74\ns_cmp_lt_u32 s24, s22\ns_cbranch_scc1 %s" % (lp, lp))
    else: T.dump(SO, sWV, 4)
    a(done + ":\ns_endpgm")
    a(lRare + ":")
    for (ls, lb, kind) in spins:
        lp = a.label("sp")
        a(ls + ":\ns_mov_b32 s44, 0x40000\n%s:" % lp)
        a("s_sleep 8\n" + poll_load(kind) + "\ns_waitcnt vmcnt(0)\n%s\ns_cbranch_vccz %s" % (poll_cmp(kind), lb))
        a("s_sub_u32 s44, s44, 1\ns_cmp_lg_u32 s44, 0\ns_cbranch_scc1 %s\ns_branch %s" % (lp, lb))
    for (ls, lb) in rels:
        a("%s:\nbuffer_wbl2 sc1\ns_waitcnt vmcnt(0)\ns_branch %s" % (ls, lb))
    sRET = 44
    for (p, sm, qk, hs), (lr, users) in rare.items():
        for rid, (lj, lb) in enumerate(users): a("%s:\ns_mov_b32 s%d, %d\ns_branch %s" % (lj, sRET, rid, lr))
        a(lr + ":\ns_nop 7\ns_nop 7")
        for qb in range(4 // sm):
            cur = qregs(S[p], sm, qb, hs); d, f = vX, vX + 2
            if not cur: continue
            for x in maxtree(d, cur) + xlane("v_max_f32", [d], [d + 1]): a(x)
            a("v_max_f32 v%d, 0, v%d\nv_exp_f32 v%d, -v%d" % (d, d, f, d))
            nx = qregs(S[1 - p], qk, qb) if qb < 4 // qk else []
            for r in cur + [NM + 4 * qb + j for j in range(4)] + nx: a("v_sub_f32 v%d, v%d, v%d" % (r, r, d))
            a("v_mul_f32 v%d, v%d, v%d" % (vL[qb], vL[qb], f))
            for j in range(0, 32, 4):
                for q in range(4): a("v_accvgpr_read_b32 v%d, a%d" % (TM + q, O + qb * 32 + j + q))
                for q in range(4): a("v_mul_f32 v%d, v%d, v%d" % (TM + q, TM + q, f))
                for q in range(4): a("v_accvgpr_write_b32 a%d, v%d" % (O + qb * 32 + j + q, TM + q))
        for q in live(sm, hs):
            for n in range(8 * q, 8 * q + 8): a(ex(p, n))
            for j in range(4 * q, 4 * q + 4): a(cv(p, j))
        a("s_nop 1")
        for q in live(sm, hs): a(summ(p, sm, q))
        a("s_nop 7")
        for rid, (lj, lb) in enumerate(users):
            if rid < len(users) - 1: a("s_cmp_eq_u32 s%d, %d\ns_cbranch_scc1 %s" % (sRET, rid, lb))
            else: a("s_branch %s" % lb)
    a.add_kernel(name, 512, 102, 256)
    a.launch(name, 256, 256, 163840)
```

```python
from gen_common import *
from sched import Sched, isvm
from pack import Gaps, cost as gcost
import re as _re
MF16 = "v_mfma_f32_16x16x32_bf16"
MFH = "v_mfma_f32_16x16x16_bf16"
pX, pWQKV, pWO0, pC, pWQ, pWUK, pWUV, pBWO, pGATE, pDBG, pWS = 36, 38, 40, 44, 46, 48, 50, 52, 54, 58, 60
pWO = 58
NEG = "0xff800000"
THRESH = fbits(2.0 ** 48)
WSL = (98304, 131072)
LDS_G = WSL[0] + 24576
def aslot(g): return ((g + 2) % 3) * 32768
def flat(G): return [x for g in G for x in (g if isinstance(g, list) else [g])]
def soft(G):
    out = []
    for g in G:
        if any(x.startswith("s_cselect") for x in g):
            k = [j for j, x in enumerate(g) if x.startswith("s_cmp") or x.startswith("s_bitcmp")][0]
            out += g[:k] + [g[k:]]
        else: out += g
    return out

def gen2(a, name="p1_kernel", ts=False, PF=1, PD=8, WP=2, TS2=0, TS3=0, DFR=12, LSPL=110, SLP=4, QSL=(4, 6, 5), XSL=3, PDW=4, GPUB=11, VERB=0, NE=8, KPF=((1, -1), (3, 0), (5, 1), (7, 2)), CU=0, XC=(), PFS=(2, 3, 5, 4), EARLY1=0, F1=56, WPG=(1, 3, 5, 7), QPF=1, AP=(("c", 1), "cu", None, "xu"), FORCE=0, ST0=4, EXT=0, ND=10, OST="", PKV=1, XQ=0, XP=0, T15=1, WSP=(0, 4, 2), CR2=0, HOLD=None, CM=1, PB=2,
         STAMPS=("start", "q", "attn", "mid", "s17")):
    XL2 = 0; PRE0 = 0; endlabel = None; SENT = 0
    a.begin_kernel(name)
    T = TS(a, ts, 0, base=72)
    def st_(nm):
        if nm in STAMPS: T.stamp(STAMPS.index(nm))
    done = a.label("fdone")
    lAttn, lRare = a.label("attn"), a.label("rarecode")
    sWV = 3
    SA, SW, SX, SO, SD = 4, 8, 12, 16, 40
    sH, sI, sT0, sT1, sT2 = 20, 21, 22, 23, 24
    sAS, sAS2, sWS, sXS, sAM, sWM, sXM, sCNT, sOK, sDS, sSC = 25, 26, 27, 28, 29, 30, 31, 32, 33, 34, 35
    sQL, sQS, sU, sOA, sAD, sWD, sOJ, sVD, sFA, sGR = 92, 93, 94, 95, 96, 97, 56, 57, 63, 99
    sKO, sVO, sW4, sW8, sTH, sT = 48, 49, 50, 51, 54, 32
    vL16 = 1
    vAO, vWO, vXO = (2, 3, 4, 5), (6, 7, 8, 9), (10, 11)
    vAR, vWR, vXR = (12, 13), tuple(range(14, 22)), (22, 23, 24)
    vGR, vGA2, GC = 25, (26, 27), 92
    QS = (28, 44); WR, NWR = 60, 8; TT, PK = 96, 104
    KS = (128, 160)
    vFO, vONE, vPFD, vTS, vW12, vPL, vPLO = 120, 121, 122, 123, 124, 125, 126
    sWS2, sOK2, sHL = 62, 98, 55
    QA = 128
    t2 = [0]
    def bar(waitstr):
        if TS2:
            n = t2[0]; t2[0] += 1
            if n > 0: a("v_writelane_b32 v123, s72, %d\nv_writelane_b32 v123, s74, %d" % (2 * n - 2, 2 * n - 1))
            a("s_memtime s[72:73]")
        a(waitstr + "\ns_barrier")
        if TS2: a("s_memtime s[74:75]")
    a("s_cmp_ge_u32 s2, 256\ns_cbranch_scc1 %s" % done)
    st_("start")
    a("s_load_dwordx16 s[36:51], s[0:1], 0\ns_load_dwordx8 s[52:59], s[0:1], 64\ns_load_dwordx2 s[60:61], s[0:1], 96")
    a("v_lshrrev_b32 v30, 6, v0\nv_and_b32 v0, 63, v0\nv_readfirstlane_b32 s%d, v30" % sWV)
    a("s_and_b32 s%d, s2, 7\ns_lshl_b32 s%d, s%d, 2\ns_lshr_b32 s%d, s2, 3\ns_and_b32 s%d, s%d, 3\ns_add_u32 s%d, s%d, s%d" % (sH, sH, sH, sT0, sT0, sT0, sH, sH, sT0))
    a("s_lshr_b32 s%d, s2, 5" % sI)
    a("v_lshlrev_b32 v%d, 4, v0" % vL16)
    a("v_lshrrev_b32 v30, 3, v0\nv_lshrrev_b32 v31, 4, v0\nv_and_b32 v32, 7, v0")
    a("v_xor_b32 v33, v31, v32\nv_lshlrev_b32 v33, 4, v33\nv_lshl_add_u32 v%d, v30, 10, v33" % vAO[0])
    a("v_add_u32 v%d, %d, v%d\nv_xor_b32 v33, 64, v%d\nv_add_u32 v%d, %d, v33\nv_add_u32 v%d, %d, v33" % (vAO[2], 2 * 7168, vAO[0], vAO[0], vAO[1], 7168, vAO[3], 3 * 7168))
    a("v_and_b32 v33, 15, v0\nv_lshlrev_b32 v34, 2, v31\nv_xor_b32 v33, v33, v34\nv_lshlrev_b32 v33, 4, v33\nv_lshl_add_u32 v%d, v31, 13, v33" % vWO[0])
    a("v_add_u32 v%d, %d, v%d\nv_xor_b32 v33, 32, v%d\nv_add_u32 v%d, %d, v33\nv_add_u32 v%d, %d, v33" % (vWO[1], 31744, vWO[0], vWO[0], vWO[2], 2 * 31744, vWO[3], 3 * 31744))
    a("s_sub_u32 s%d, 15, s%d\ns_bitcmp1_b32 s%d, 0\ns_cselect_b32 s%d, s%d, s%d\ns_lshl_b32 s%d, s%d, 1\ns_lshr_b32 s%d, s%d, 1\ns_add_u32 s%d, s%d, s%d" % (sT0, sI, sWV, sT0, sT0, sI, sT0, sT0, sT1, sWV, sT0, sT0, sT1))
    a("s_lshl_b32 s%d, s%d, 16\ns_add_u32 s%d, s%d, 32768" % (sAS, sT0, sAS2, sAS))
    a("s_lshl_b32 s%d, s%d, 13\ns_mov_b32 s%d, s%d" % (sAM, sWV, sWM, sAM))
    a("s_and_b32 s%d, s%d, 1\ns_lshl_b32 s%d, s%d, 18\ns_lshl_b32 s%d, s%d, 8\ns_add_u32 s%d, s%d, s%d" % (sT0, sWV, sT0, sT0, sWS, sH, sWS, sWS, sT0))
    a("s_and_b32 s%d, s2, 31\ns_add_u32 s%d, s%d, 0x20000" % (sU, sWS2, sWS))
    a("v_and_b32 v33, 15, v0\nv_lshrrev_b32 v34, 1, v33\nv_xor_b32 v34, v34, v31\nv_lshlrev_b32 v34, 4, v34\nv_lshl_add_u32 v40, v33, 7, v34")
    a("s_and_b32 s%d, s%d, 1\ns_lshl_b32 s%d, s%d, 14\ns_add_u32 s%d, s%d, %d" % (sT0, sWV, sT0, sT0, sT0, sT0, aslot(0)))
    a("v_add_u32 v%d, s%d, v40\nv_xor_b32 v%d, 64, v%d" % (vAR[0], sT0, vAR[1], vAR[0]))
    a("v_lshrrev_b32 v35, 2, v0\nv_and_b32 v35, 3, v35\nv_lshl_add_u32 v36, v31, 3, v35")
    a("v_bfe_u32 v37, v0, 1, 1\nv_and_b32 v34, 1, v31\nv_lshl_add_u32 v37, v34, 1, v37\nv_and_b32 v38, 1, v0\nv_lshlrev_b32 v38, 3, v38")
    a("v_lshlrev_b32 v39, 2, v35\nv_xor_b32 v39, v39, v37\nv_lshlrev_b32 v39, 4, v39\nv_lshl_add_u32 v39, v36, 8, v39")
    a("s_lshr_b32 s%d, s%d, 1\ns_lshl_b32 s%d, s%d, 14\ns_add_u32 s%d, s%d, %d\nv_add3_u32 v39, v39, v38, s%d" % (sWD, sWV, sWD, sWD, sT0, sWD, WSL[0], sT0))
    for k in range(8): a("v_xor_b32 v%d, %d, v39" % (vWR[k], 32 * k))
    a("s_lshr_b32 s%d, s2, 3\ns_lshl_b32 s%d, s%d, 2\ns_add_u32 s%d, s%d, s%d\nv_lshlrev_b32 v127, 7, v33\nv_add_lshl_u32 v127, v127, s%d, 7" % (sT0, sT0, sT0, sT0, sT0, sWV, sT0))
    a("s_lshr_b32 s%d, s2, 3\ns_lshl_b32 s%d, s%d, 1\ns_and_b32 s%d, s%d, 1\ns_add_u32 s%d, s%d, s%d\ns_lshl_b32 s%d, s%d, 14\ns_and_b32 s%d, s2, 7\ns_lshl_b32 s%d, s%d, 10\ns_add_u32 s%d, s%d, s%d" % (sT0, sT0, sT0, sT1, sWV, sT0, sT0, sT1, sT0, sT0, sT1, sT1, sT1, sT0, sT0, sT1))
    a("v_lshrrev_b32 v42, 3, v33\nv_lshlrev_b32 v42, 13, v42\nv_lshl_add_u32 v42, v32, 7, v42\nv_add_u32 v197, s%d, v42" % sT0)
    a("s_lshl_b32 s%d, s2, 2\ns_add_u32 s%d, s%d, s%d\ns_lshl_b32 s%d, s%d, 4\nv_add_lshl_u32 v192, v33, s%d, 7" % (sT0, sT0, sT0, sWV, sT0, sT0, sT0))
    a("s_waitcnt lgkmcnt(0)")
    a("s_mov_b32 s100, s56\ns_mov_b32 s101, s57")
    srd(a, SA, pC, 0x200000)
    a("s_cmp_lt_u32 s%d, 2\ns_cselect_b32 s%d, s%d, s%d\ns_cselect_b32 s%d, s%d, s%d\ns_mov_b32 s%d, 0x400000\ns_mov_b32 s%d, 0x20000" % (sWV, SW, pWUK, pWUV, SW + 1, pWUK + 1, pWUV + 1, SW + 2, SW + 3))
    def dgrp(m0s, m0i, vo, srd_, so, stp, nd):
        G = ["s_add_u32 m0, s%d, %d" % (m0s, m0i)]
        G += ["buffer_load_dwordx4 v%d, s[%d:%d], s%d offen offset:%d lds ; need:%d" % (v, srd_, srd_ + 3, so, n * 1024, nd) for n, v in enumerate(vo)]
        G.append("s_add_u32 s%d, s%d, %d" % (so, so, stp))
        return G
    def fixm0(G):
        out = []
        for k, x in enumerate(G):
            out.append(x)
            if x.startswith("s_add_u32 m0"):
                if len(out) > 1 and out[-2].startswith("s_add_u32 s"): out[-1], out[-2] = out[-2], out[-1]
                else: out.append("s_nop 0")
        return out
    def dma_act(g): return fixm0(dgrp(sAM, aslot(g), vAO, SA, sAS, 128, g) + dgrp(sAM, aslot(g) + 4096, vAO, SA, sAS2, 128, g))
    def dma_w(g):
        G = dgrp(sWM, WSL[g % 2], vWO, SW, sWS, 0x80000, g)
        if g < 8: G += dgrp(sWM, WSL[g % 2] + 4096, vWO, SW, sWS2, 0x80000, g)
        else: G += dgrp(sXM, WSL[g % 2] + 16384, vXO, SX, sXS, 64 * 3072, g)
        return fixm0(G)
    st_("d0")
    D0 = [dgrp(sWM, WSL[0], vWO, SW, sWS, 0x80000, 0), dgrp(sAM, aslot(0), vAO, SA, sAS, 128, 0), dgrp(sWM, WSL[0] + 4096, vWO, SW, sWS2, 0x80000, 0), dgrp(sAM, aslot(0) + 4096, vAO, SA, sAS2, 128, 0)]
    for x in fixm0(flat(D0[:ST0])): a(x.split(";")[0])
    st_("d1")
    def pfp(p):
        L = []
        for k, per_ in enumerate(PFS):
            if per_ == p: L.append("global_load_dword v122, v%d, s[%d:%d]" % (192 + k, ((pX, pWQ, pWQ, pWQKV)[k]), ((pX, pWQ, pWQ, pWQKV)[k]) + 1))
        for c_, per_ in KPF:
            if per_ == p: L += ["s_mov_b32 s%d, 0x%x" % (sSC, c_ * 0x80000), "buffer_load_dword v122, v197, s[%d:%d], s%d offen" % (SW, SW + 3, sSC)]
        if CU == p: L.append("buffer_load_dword v122, v192, s[%d:%d], 0 offen" % (SA, SA + 3))
        for k, per_ in enumerate(XC):
            if per_ == p: L.append("global_load_dword v122, v196, s[%d:%d] offset:%d" % (pX, pX + 1, 256 * k))
        return L
    lpc2 = a.label("pc")
    a("s_getpc_b64 s[0:1]\n%s:" % lpc2)
    a("v_min_u32 v127, %s-%s, v127\nglobal_load_dword v122, v127, s[0:1]" % (lRare, lpc2))
    for x in pfp(-1): a(x)
    n0_ = 1 + sum(1 for x in pfp(-1) if isvm(x))
    srd(a, SO, pWS, WS_SIZE); srd(a, SX, pGATE, 1024)
    a("s_mov_b32 s98, s%d\ns_mov_b32 s99, s%d" % (pWO0, pWO0 + 1))
    srd(a, SD, pDBG, 256)
    a("s_mov_b32 s%d, s98\ns_mov_b32 s%d, s99" % (pWO, pWO + 1))
    DF = []
    def d(t): DF.extend(t.split("\n"))
    d("s_lshl_b32 s%d, s%d, 6\nv_add_u32 v%d, s%d, v0\nv_lshlrev_b32 v%d, 12, v%d\nv_min_u32 v%d, 1, v%d\nv_lshlrev_b32 v%d, 29, v%d" % (sT0, sWV, vFO, sT0, vFO, vFO, vONE, vFO, vONE, vONE))
    d("s_getreg_b32 s%d, hwreg(HW_REG_XCC_ID, 0, 4)\ns_mul_i32 s%d, s%d, s%d\ns_lshl_b32 s%d, s%d, 8\ns_add_u32 s%d, s%d, s%d\ns_lshl_b32 s%d, s%d, 8\ns_add_u32 s%d, s%d, 1" % (sT0, sT1, sT0, sT0, sT1, sT1, sT1, sT1, sT0, sT1, sT1, sFA, sT1))
    d("v_mov_b32 v125, s%d\ns_lshl_b32 s%d, s%d, 3\ns_and_b32 s%d, s2, 7\ns_lshl_b32 s%d, s%d, 2\ns_lshl_b32 s%d, s%d, 2" % (sFA, sFA, sFA, sGR, sGR, sGR, sCNT, sH))
    d("v_and_b32 v126, 31, v0\ns_lshl_b32 s%d, s%d, 12\nv_lshl_add_u32 v126, v126, 2, s%d" % (sT0, sWV, sT0))
    d("s_min_u32 s%d, s%d, 1\ns_lshl_b32 s%d, s%d, 29\nv_and_b32 v124, 7, v0\nv_lshl_add_u32 v124, v124, 2, s%d" % (sT0, sWV, sT0, sT0, sT0))
    d("s_lshl_b32 s%d, s%d, 7\ns_add_u32 s%d, s%d, 0x%x\ns_lshl_b32 s%d, s%d, 2\ns_add_u32 s%d, s%d, s%d" % (sHL, sH, sHL, sHL, OFF_FL + 128 * 128, sU, sI, sU, sU, sHL))
    NDF = len(DF)
    d("v_and_b32 v41, 15, v0")
    d("s_lshr_b32 s%d, s2, 3\ns_lshl_b32 s%d, s%d, 2\ns_add_u32 s%d, s%d, s%d\ns_lshl_b32 s%d, s%d, 14\ns_and_b32 s%d, s2, 7\ns_lshl_b32 s%d, s%d, 10\ns_add_u32 s%d, s%d, s%d" % (sT0, sT0, sT0, sT0, sT0, sWV, sT1, sT0, sT2, sT2, sT2, sT1, sT1, sT2))
    d("v_lshrrev_b32 v42, 3, v41\nv_lshlrev_b32 v42, 13, v42\nv_lshl_add_u32 v42, v32, 7, v42\nv_add_u32 v193, s%d, v42\nv_add_u32 v194, 0x200000, v193" % sT1)
    d("s_lshl_b32 s%d, s%d, 14\nv_and_b32 v42, 1, v31\nv_lshlrev_b32 v42, 7, v42\nv_lshl_add_u32 v42, v41, 10, v42\nv_add_u32 v196, s%d, v42" % (sT1, sT0, sT1))
    d("s_mul_i32 s%d, s%d, %d\ns_lshr_b32 s%d, s%d, 3\ns_add_u32 s%d, s%d, s%d\nv_min_u32 v41, 11, v41\nv_lshl_add_u32 v195, v41, 10, s%d" % (sT0, sT0, 4 * 3072, sT2, sT2, sT0, sT0, sT2, sT0))
    d("v_lshrrev_b32 v39, 1, v35\nv_lshlrev_b32 v39, 2, v39\nv_xor_b32 v39, v39, v37\nv_lshlrev_b32 v39, 4, v39\nv_lshl_add_u32 v39, v36, 7, v39\nv_add_u32 v39, v39, v38\nv_add_u32 v39, %d, v39" % (WSL[0] + 16384))
    for k in range(3): d("v_xor_b32 v%d, %d, v39" % (vXR[k], 32 * k))
    d("s_and_b32 s%d, s%d, 3\ns_and_b32 s%d, s2, 7\ns_lshl_b32 s%d, s%d, 7" % (sT0, sH, sT1, sT1, sT1))
    d("s_lshl_b32 s%d, s%d, 5\ns_add_u32 s%d, s%d, s%d\ns_add_u32 s%d, s%d, %d" % (sT2, sT0, sT2, sT2, sT1, sT2, sT2, 2048 - 64))
    d("s_lshr_b32 s%d, s%d, 1\ns_lshl_b32 s%d, s%d, 10\ns_add_u32 s%d, s%d, s%d\ns_and_b32 s%d, s%d, 1\ns_lshl_b32 s%d, s%d, 6\ns_add_u32 s%d, s%d, s%d" % (sDS, sT0, sDS, sDS, sT1, sT1, sDS, sDS, sT0, sDS, sDS, sT1, sT1, sDS))
    d("v_and_b32 v33, 1, v31\nv_lshlrev_b32 v33, 2, v33\nv_xor_b32 v33, v33, v32\nv_mul_u32_u24 v34, 3072, v30\nv_mov_b32 v36, s%d\nv_mov_b32 v37, s%d\nv_mov_b32 v38, 0x1000000" % (sT1, sT2))
    for n in range(2):
        if n: d("v_xor_b32 v33, 2, v33\nv_add_u32 v34, %d, v34" % (24576 - 1024))
        d("v_cmp_gt_u32 vcc, 4, v33\nv_cmp_gt_u32 s[66:67], 6, v33\nv_lshl_add_u32 v35, v33, 4, v34\nv_cndmask_b32 v39, v37, v36, vcc\nv_cndmask_b32 v39, v38, v39, s[66:67]\nv_add_u32 v%d, v35, v39" % vXO[n])
    d("s_lshl_b32 s%d, s%d, 11\ns_lshl_b32 s%d, s%d, 13\ns_add_u32 s%d, s%d, s%d\ns_add_u32 s%d, s%d, %d" % (sT0, sT0, sT1, sWV, sT0, sT0, sT1, sT0, sT0, aslot(8)))
    d("v_add_u32 v%d, s%d, v40\nv_xor_b32 v%d, 64, v%d\nv_lshlrev_b32 v%d, 4, v31\nv_add_u32 v%d, %d, v%d" % (vGA2[0], sT0, vGA2[1], vGA2[0], vGR, vGR, LDS_G, vGR))
    d("s_lshl_b32 s%d, s%d, 2\ns_add_u32 s%d, s%d, s%d\ns_sub_u32 s%d, 60, s%d\ns_add_u32 s%d, s%d, s%d" % (sT1, sI, sQS, sT1, sWV, sQL, sT1, sQL, sQL, sWV))
    d("s_lshr_b32 s%d, s%d, 1\ns_lshl_b32 s%d, s%d, 5\ns_add_u32 s%d, s%d, s%d\ns_add_u32 s%d, s%d, 44\ns_lshl_b32 s%d, s%d, 19" % (sT0, sWV, sT0, sT0, sT0, sT0, sH, sT0, sT0, sOK, sT0))
    d("s_and_b32 s%d, s%d, 1\ns_lshl_b32 s%d, s%d, 1\ns_add_u32 s%d, s%d, s%d\ns_lshl_b32 s%d, s%d, 14\ns_add_u32 s%d, s%d, s%d" % (sT0, sWV, sT1, sI, sT0, sT0, sT1, sT0, sT0, sOK, sOK, sT0))
    d("s_lshl_b32 s%d, s%d, 16\ns_sub_u32 s%d, %d, s%d\ns_add_u32 s%d, s%d, 8192" % (sT0, sI, sOJ, 60 * 8192 - 4096, sT0, sOK2, sOK))
    d("s_lshl_b32 s%d, s%d, 13\ns_and_b32 s%d, s%d, 1\ns_lshl_b32 s%d, s%d, 14\ns_sub_u32 s%d, s%d, s%d\ns_add_u32 s%d, s%d, %d" % (sT0, sWV, sT1, sWV, sT1, sT1, sAD, sT0, sT1, sAD, sAD, aslot(8) - aslot(7)))
    PLA = "buffer_atomic_add v125, v%d, s[%d:%d], s%d offen sc1" % (vFO, SD, SD + 3, sCNT)

    def ub(j): return ((j + 24) % 32 if j < 8 else j + 8 if j < 16 else j - 16) * 8
    AA = 192
    def wofs(g): return (g % 2) * 32768
    def xa(g, ks, R=vAR):
        if g == 7: return "v_add_u32 v%d, s%d, v%d" % (R[ks], sAD, R[ks])
        d = aslot(g + 1) - aslot(g)
        return ("v_add_u32 v%d, 0x%x, v%d" % (R[ks], d, R[ks])) if d > 0 else ("v_subrev_u32 v%d, 0x%x, v%d" % (R[ks], -d, R[ks]))
    def rd_act(g, ks):
        F = (KS if g < 8 else QS)[ks]
        return ["ds_read_b128 %s, v%d offset:%d" % (vr(F + 4 * n, 4), vAR[ks], n * 2048) for n in range(8 if g < 8 else 4)]
    def rd_w(g, ks, wf, slot):
        r = WR + 4 * (slot % NWR)
        if wf < 8: return ["ds_read_b64_tr_b16 %s, v%d offset:%d" % (vr(r + 2 * rd_, 2), vWR[wf], wofs(g) + ks * 8192 + rd_ * 1024) for rd_ in range(2)]
        if wf < 11: return ["ds_read_b64_tr_b16 %s, v%d offset:%d" % (vr(r + 2 * rd_, 2), vXR[wf - 8], wofs(g) + ks * 4096 + rd_ * 512) for rd_ in range(2)]
        return ["ds_read_b128 %s, v%d offset:%d" % (vr(r, 4), vGR, ((g - 8) * 2 + ks) * 64), "ds_read_b128 %s, v%d" % (vr(GC, 4), vGA2[ks])] + ([xa(g, ks, vGA2)] if g < 15 else [])
    def mfs(g, ks, wf, slot, var):
        w = vr(WR + 4 * (slot % NWR), 4); F = (KS if g < 8 else QS)[ks]; first = (g % 8 == 0 and ks == 0)
        cb, tc = (wf % 8) // 2, wf % 2
        if wf == 11: return ["%s %s, %s, %s, %s" % (MF16, ar(AA + 48, 4), w, vr(GC, 4), "0" if first else ar(AA + 48, 4))]
        M = []
        for n in range(8 if g < 8 else 4):
            rb, tr = n // 2, n % 2
            x = vr(F + 4 * n, 4)
            sw = (var == "V") or wf == 10
            tb, ta = (tc, tr) if sw else (tr, tc)
            if g < 8: acc = ar(ub((rb // 2) * 16 + cb * 4 + (rb % 2) * 2 + tb) + ta * 4, 4)
            elif wf < 8: acc = vr(QA + ((rb * 4 + cb) * 2 + tr) * 8 + tc * 4, 4)
            elif wf < 10: acc = ar(AA + n * 8 + tc * 4, 4)
            else: acc = ar(AA + 32 + n * 4, 4)
            M.append("%s %s, %s, %s, %s" % (MF16, acc, x if sw else w, w if sw else x, "0" if first else acc))
        return M
    def order(g, var):
        nw = list(range(8 if g < 8 else 12))
        if g == 7: return [(ks, 2 * cb + t) for cb in range(4) for ks in range(2) for t in range(2)]
        if g == 15:
            return [(ks, wf) for ks in range(2) for wf in (8, 9, 10, 0, 1, 11)] + [(ks, 2 * cb + t) for cb in range(1, 4) for ks in range(2) for t in range(2)]
        return [(ks, wf) for ks in range(2) for wf in nw]
    def build(g0, var):
        fr = [(g, ks, wf) for g in range(g0, g0 + 8) for (ks, wf) in order(g, var)]
        M = []; fm = []
        for k, (g, ks, wf) in enumerate(fr):
            fm.append(len(M)); M += mfs(g, ks, wf, k, var)
        S_ = Sched(M); n = len(M)
        look = [(8, 0, wf) for wf in range(PDW)] if g0 == 0 else []
        allf = fr + look
        cs = {};
        for k, (g, ks, wf) in enumerate(allf): cs.setdefault(g, k)
        bar_m = {g: fm[cs[g] - PDW + 1] for g in cs if g > g0}
        for g, m in bar_m.items(): S_.bars[m] = g
        na = 8 if g0 == 0 else 4
        items = []
        for k in range(PDW, len(allf)):
            g, ks, wf = allf[k]
            t = fm[k - PDW]; e = bar_m.get(g, 0); use = fm[k] if k < len(fr) else n + 1 + (k - len(fr))
            if k == cs[g] and g == 8: items += [(max(t, e), 0, j, ("v_subrev_u32 v%d, s%d, v%d" % (r, sWD, r), t, e, None)) for j, r in enumerate(vWR)]
            items += [(max(t, e), 1 if k == cs[g] else 3, 4 * k + j, (x, t, e, use if x.startswith("ds_") else None)) for j, x in enumerate(rd_w(g, ks, wf, k))]
        for g in cs:
            for ks in range(2):
                if g == g0 and ks == 0: continue
                if g == 8 and g0 == 0 and ks == 1: continue
                R = rd_act(g, ks) + ([xa(g, ks)] if g < 15 else [])
                k1 = [k for k, f in enumerate(allf) if f[0] == g and f[1] == ks][0]
                u0 = fm[k1] if k1 < len(fr) else None
                for j, x in enumerate(R):
                    if ks == 0: t = e = bar_m[g]
                    else:
                        e = fm[cs[g]]; t = e + (j * min(u0 - e - 8, 40)) // len(R)
                    use = None if not x.startswith("ds_") else (u0 + j if u0 is not None else n)
                    items.append((max(t, e), 2, j, (x, t, e, use)))
        items.sort(key=lambda z: z[:3])
        S_.rq = [z[3] for z in items]
        S_.waitpts = [fm[k] for k in range(0, len(fr), 2)]
        S_.place_reads()
        return S_, {g: fm[cs[g]] for g in range(g0, g0 + 8)}, bar_m, fm
    def pack(areg, pk, scale=None):
        t = TT
        G = ["v_accvgpr_read_b32 v%d, a%d" % (t + j, areg + j) for j in range(8)]
        if scale is not None: G += ["v_mul_f32 v%d, s%d, v%d" % (t + j, scale, t + j) for j in range(8)]
        G += ["v_cvt_pk_bf16_f32 v%d, v%d, v%d" % (pk + j, t + 2 * j, t + 2 * j + 1) for j in range(4)]
        return G
    def kv_unit(j, nd=None):
        cb, rb, tb = (j % 16) // 4, (j // 2) % 2, j % 2
        pk = PK + 4 * (j % 4)
        G = pack(ub(j), pk) + ["buffer_store_dwordx4 %s, v%d, s[%d:%d], s%d offen offset:%d%s" % (vr(pk, 4), vL16, SO, SO + 3, (sOK, sOK2)[rb], (cb % 2) * 2048 + tb * 1024, " ; need:%d" % nd if nd else "")]
        if j == 15: G += ["s_add_u32 s%d, s%d, s%d" % (sOK, sOK, sOJ), "s_add_u32 s%d, s%d, s%d" % (sOK2, sOK2, sOJ)]
        elif j % 16 == 7: G += ["s_add_u32 s%d, s%d, 4096" % (sOK, sOK), "s_add_u32 s%d, s%d, 4096" % (sOK2, sOK2)]
        return G
    qa_setup = [["s_mov_b32 s%d, s%d" % (SA, pX), "s_mov_b32 s%d, s%d" % (SA + 1, pX + 1),
                 "s_lshl_b32 s%d, s%d, 14" % (sT0, sWV), "s_lshl_b32 s%d, s%d, 15" % (sAS, sQL), "s_lshl_b32 s%d, s%d, 15" % (sAS2, sQS),
                 "s_sub_u32 s%d, s%d, s%d" % (sAS, sAS, sT0), "s_sub_u32 s%d, s%d, s%d" % (sAS2, sAS2, sT0),
                 "s_lshl_b32 s%d, s%d, 1" % (sT0, sT0), "s_sub_u32 s%d, %d, s%d" % (sT0, 6 * 16384, sT0),
                 "v_add_u32 v%d, s%d, v%d" % (vAO[2], sT0, vAO[2]), "v_add_u32 v%d, s%d, v%d" % (vAO[3], sT0, vAO[3])]]
    qw_setup = [["s_mov_b32 m0, %d" % LDS_G, "s_mov_b32 s%d, s%d" % (SW, pWQ), "buffer_load_dwordx4 v%d, s[%d:%d], 0 offen lds ; need:8" % (vL16, SX, SX + 3), "s_mov_b32 s%d, s%d" % (SW + 1, pWQ + 1)],
                ["s_lshl_b32 s%d, s%d, 17" % (sT0, sWV), "s_lshl_b32 s%d, s%d, 8" % (sWS, sH), "s_add_u32 s%d, s%d, s%d" % (sWS, sWS, sT0), "s_lshl_b32 s%d, s%d, 12" % (sWM, sWV)],
                ["s_mov_b32 s%d, s%d" % (SX, pWQKV), "s_mov_b32 s%d, s%d" % (SX + 1, pWQKV + 1), "s_lshl_b32 s%d, s%d, 11" % (sXM, sWV), "s_mul_i32 s%d, s%d, %d" % (sXS, sWV, 16 * 3072)],
                ["s_mov_b32 s%d, 0x180000" % (SX + 2)]]
    at_setup = [["v_cmp_ne_u32 vcc, s%d, v125" % sFA, "v_mov_b32 v%d, 1" % vFO, "s_nop 0", "s_lshr_b32 s%d, vcc_lo, s%d" % (sT0, sGR), "s_and_b32 s%d, s%d, 15" % (sT0, sT0)],
                ["s_cmp_eq_u32 s%d, 0" % sT0, "s_cselect_b32 s%d, 1, s%d" % (sFA, sWV)],
                ["s_cmp_eq_u32 s%d, 0" % sWV, "s_cselect_b32 s46, 1, 0", "s_cselect_b32 s47, 2, 0"],
                ["s_lshl_b32 s%d, s%d, 12" % (sW4, sWV), "s_lshl_b32 s%d, s%d, 13" % (sW8, sWV), "s_lshl_b32 s%d, s%d, 19" % (sT0, sH)],
                ["s_lshl_b32 s%d, s%d, 15" % (sVD, sI), "s_add_u32 s%d, s%d, s%d" % (sT0, sT0, sVD)],
                ["s_add_u32 s%d, s%d, 0x%x" % (sKO, sT0, OFF_K), "s_add_u32 s%d, s%d, 0x%x" % (sVO, sT0, OFF_V), "s_mov_b32 s%d, %s" % (sTH, THRESH)]]
    sRA, sHP, sA0, sA1, sGB, sGA_, sGL_, sGS_, sP0, sP1_, sX0, sX1 = 36, 37, 38, 39, 64, 65, 66, 67, 68, 69, 70, 71
    sXO, sXR = 62, 95
    sFG, sFX, sRBK, sTIL = 96, 97, 60, 61
    late_setup = [["s_lshr_b32 s%d, s%d, 3" % (sX1, sH), "s_lshl_b32 s%d, s%d, 3" % (sFG, sX1), "s_add_u32 s%d, s%d, s%d" % (sFG, sFG, sI), "s_lshl_b32 s%d, s%d, 5" % (sFG, sFG),
                 "s_and_b32 s%d, s%d, 7" % (sX0, sH), "s_add_u32 s%d, s%d, s%d" % (sFG, sFG, sX0), "s_lshl_b32 s%d, s%d, 2" % (sFG, sFG), "s_add_u32 s%d, s%d, 0x%x" % (sFG, sFG, OFF_FL),
                 "s_sub_u32 s%d, 15, s%d" % (sX0, sI)], ["s_bitcmp1_b32 s2, 0", "s_cselect_b32 s%d, s%d, s%d" % (sRBK, sX0, sI)], ["s_lshl_b32 s%d, s%d, 2" % (sFX, sRBK),
                 "s_and_b32 s%d, s%d, 3" % (sX0, sH), "s_add_u32 s%d, s%d, s%d" % (sTIL, sFX, sX0), "s_lshl_b32 s%d, s%d, 5" % (sFX, sTIL), "s_add_u32 s%d, s%d, s%d" % (sFX, sFX, sX1),
                 "s_lshl_b32 s%d, s%d, 2" % (sFX, sFX), "s_add_u32 s%d, s%d, 0x%x" % (sFX, sFX, OFF_FL + 32 * 128)],
        ["s_bitcmp1_b32 s%d, 1" % sH, "s_cselect_b32 s%d, s%d, s%d" % (sRA, sQL, sQS)],
        ["s_and_b32 s%d, s%d, 1" % (sHP, sH), "s_lshr_b32 s%d, s%d, 1" % (sX0, sGR), "s_add_u32 s%d, s%d, s%d" % (sHP, sHP, sX0), "s_lshl_b32 s%d, s%d, 11" % (sGB, sGR), "s_add_u32 s%d, s%d, 0x%x" % (sGB, sGB, OFF_G)]]
    sTI = (sQL, sGS_, sQS, 45)
    late_setup.append(["s_lshl_b32 s%d, s%d, 7" % (sGA_, sRA), "s_add_u32 s%d, s%d, s%d" % (sGA_, sGA_, sGB), "s_mov_b32 s%d, s%d" % (sGL_, sGB)])
    for lo_, hi_ in ((sTI[0], sTI[1]), (sTI[2], sTI[3])):
        late_setup.append(["s_lshl_b32 s%d, s%d, 1" % (lo_, lo_), "s_sub_u32 s%d, s%d, s%d" % (lo_, lo_, sWV), "s_xor_b32 s%d, s%d, 7" % (hi_, lo_)])
    late_setup += [["s_lshr_b32 s%d, s%d, 2" % (sX0, sHP), "s_lshl_b32 s%d, s%d, 19" % (sX0, sX0), "s_and_b32 s%d, s%d, 3" % (sX1, sHP), "s_lshl_b32 s%d, s%d, 11" % (sX1, sX1),
         "s_add_u32 s%d, s%d, s%d" % (sX0, sX0, sX1), "s_lshl_b32 s%d, s%d, 13" % (sX1, sRA), "s_add_u32 s%d, s%d, s%d" % (sA0, sX0, sX1),
         "s_max_u32 s%d, s%d, 1" % (sX1, sRA), "s_sub_u32 s%d, s%d, 1" % (sX1, sX1), "s_lshl_b32 s%d, s%d, 13" % (sX1, sX1), "s_add_u32 s%d, s%d, s%d" % (sA1, sX0, sX1),
         "s_add_u32 s%d, s%d, %d" % (sA1, sA1, 4 * PH),
         "s_lshr_b32 s%d, s2, 3" % sX0, "s_lshl_b32 s%d, s%d, 2" % (sX0, sX0), "s_add_u32 s%d, s%d, s%d" % (sX0, sX0, sWV), "s_and_b32 s%d, s2, 6" % sX1,
         "s_lshl_b32 s%d, s%d, 6" % (sX1, sX1), "s_add_u32 s%d, s%d, s%d" % (sX0, sX0, sX1), "s_lshl_b32 s%d, s%d, 6" % (sP0, sX0), "s_lshl_b32 s%d, s%d, 3" % (sP1_, sX0),
         "s_mul_i32 s%d, s%d, %d" % (sXO, sTIL, 4 * 49152), "s_add_u32 s%d, s%d, s%d" % (sXO, sXO, sW4), "s_add_u32 s%d, s%d, 0x%x" % (sXO, sXO, OFF_X),
         "s_lshr_b32 s%d, s%d, 3" % (sXR, sH), "s_mul_i32 s%d, s%d, 49152" % (sXR, sXR), "s_add_u32 s%d, s%d, s%d" % (sXR, sXR, sXO),
         "s_add_u32 s%d, s%d, %d" % (sX0, sA0, 4 * PH), "s_add_u32 s%d, s%d, %d" % (sX1, sA0, 8 * PH), "s_add_u32 s%d, s%d, %d" % (sGB, sA1, 4 * PH)]]
    def ren(G, mp): return [[_re.sub(r"\bs(\d+)\b", lambda m_: "s%d" % mp.get(int(m_.group(1)), int(m_.group(1))), x) for x in g] for g in G]
    early = ren(late_setup[:3], {sFG: 64, sFX: 65})
    early += [["v_mov_b32 v28, 0"] + ["buffer_store_dword v28, v%d, s[%d:%d], s%d offen sc1 ; need:2" % (vONE, SO, SO + 3, r) for r in (64, 65, sU)]]
    SK, SV = SO, SO
    vK, vV = vL16, 2
    def dma(which, typ, par, srd_=None):
        so, sr_, base = (sKO, SK, 0) if which == "K" else (sVO, SV, 65536)
        if srd_ is not None: sr_ = srd_
        sw = sW4 if typ == 1 else sW8
        G = []
        for q in range(typ):
            g = ["s_add_u32 m0, s%d, %d" % (sw, base + par * 32768 + q * 4096)]
            g.append("s_add_u32 s%d, s%d, s%d" % (sDS, so, sw) if q == 0 else "s_add_u32 s%d, s%d, 4096" % (sDS, sDS))
            G.append(g)
            for o in range(4):
                G.append(["buffer_load_dwordx4 v%d, s[%d:%d], s%d offen offset:%d sc1 lds" % (vK, sr_, sr_ + 3, sDS, o * 1024)])
        return G
    def adv(which, typ):
        so = sKO if which == "K" else sVO
        return ["s_add_u32 s%d, s%d, %d" % (so, so, 16384 * typ)]
    spins = []
    vF1, vFA, vPO = 122, 251, 250
    sP1, sG1, sG2 = 45, 46, 47
    def poll_load(kind):
        if kind == 0: return "buffer_load_dword v125, v126, s[%d:%d], 0 offen sc1" % (SD, SD + 3)
        if kind == 1: return "buffer_load_dword v%d, v124, s[%d:%d], s%d offen sc1" % (vF1, SO, SO + 3, sHL)
        if kind == 4: return "buffer_load_dword v195, v192, s[%d:%d], s%d offen sc1" % (SO, SO + 3, sG2)
        return "buffer_load_dword v%d, v%d, s[%d:%d], s%d offen sc1" % (vFA, vPO, SO, SO + 3, sHL)
    def poll_cmp(kind):
        if kind == 0: return "v_and_b32 v%d, 0xff, v125\nv_cmp_gt_u32 vcc, s%d, v%d" % (vFO, sP1, vFO)
        return "v_cmp_gt_u32 vcc, s%d, v%d" % ((sG1, vF1) if kind == 1 else (sG2, vFA) if kind == 2 else (sG1, 195))
    def poll_check(kind):
        ls, lb = a.label("spin"), a.label("spun")
        a("%s\n%s %s\n%s:" % (poll_cmp(kind), "s_branch" if FORCE else "s_cbranch_vccnz", ls, lb))
        spins.append((ls, lb, kind))
    rels = []
    def release():
        ls, lb = a.label("rel"), a.label("reld")
        a("s_cmp_eq_u32 s%d, 0\ns_cbranch_scc1 %s\n%s:" % (sFA, ls, lb))
        rels.append((ls, lb))

    st_("setup")
    if EARLY1:
        for x in dma_w(1) + dma_act(1): a(x.split(";")[0])
    bar("s_waitcnt vmcnt(%d)" % (16 + n0_ if EARLY1 else n0_))
    st_("bar0")

    pre0 = rd_w(0, 0, 0, 0) + rd_act(0, 0) + [x for k in range(1, PDW) for x in rd_w(0, 0, k, k)]
    use0 = [0, 0] + list(range(8)) + [8 * k for k in range(1, PDW) for _ in range(2)]
    for x in pre0: a(x)
    a(xa(0, 0))
    lV = a.label("kvV"); lQ = a.label("qphase")
    a("s_cmp_ge_u32 s%d, 2\ns_cbranch_scc1 %s" % (sWV, lV))
    NKV = 12
    CRL = "global_load_dword v122, v127, s[0:1]"
    for var in ("K", "V"):
        if var == "V": a(lV + ":")
        t2[0] = 1
        S_, cm, bm, fm = build(0, var)
        if EARLY1: S_.place(dma_act(2), 20, bm[1] - 2)
        else:
            S_.place(dma_w(1) + dma_act(1), 0, F1)
            S_.place(dma_act(2) + pfp(0), F1, bm[1] - 2)
        for g in range(1, 9):
            b = bm[g]; e = bm.get(g + 1, S_.n + 96)
            Wn = (soft(qw_setup) if g == 7 else []) + dma_w(g + 1) + pfp(g)
            if g in (3, 5, 7): Wn = Wn + [CRL]
            if g == 2: Wn = Wn + [PLA]
            if g == 6: Wn = Wn + [poll_load(0) + " ; need:7", ["s_cmp_eq_u32 s%d, 0" % sWV, "s_cselect_b32 s%d, 8, 0" % sP1]]
            S_.place(Wn, b, b + (44 if g < 8 else 31))
            if g < 8: S_.place((flat(qa_setup) if g == 6 else []) + dma_act(g + 2) + (soft(at_setup) if g == 7 else []), b + 44, e - 8)
        S_.place(DF[:NDF] + soft(early), 2, bm[1] + 8)
        S_.place(DF[NDF:NDF + 23], bm[1] + 8, bm[2] - 4)
        S_.place(DF[NDF + 23:], bm[2], bm[4] - 4)
        S_.hooks[7] = lambda: poll_check(0)
        for cb in range(3):
            S_.place([x for j in range(4 * cb, 4 * cb + 4) for x in kv_unit(j, GPUB)], cm[7] + 32 * cb + 38, cm[7] + 32 * cb + 70 if cb < 2 else S_.n)
        vmh = S_.emit(a, bar, use0, [1] * 16 if EARLY1 else [])
        left = S_.left; nkv = S_.n
        if VERB: print("KV over", S_.over)
        if var == "K": a("s_branch %s" % lQ)
    a(lQ + ":")
    st_("q")
    use8 = [0 if u == nkv else 4 * (u - nkv - 1) for u in left]
    t2[0] = 9
    S_, cm, bm, fm = build(8, "Q")
    per = cm[9] - cm[8]
    S_.place(dma_act(10), 0, bm[9] - 6)
    for g in range(9, 16):
        b = bm[g]; e = bm.get(g + 1, S_.n)
        Wn = dma_w(g + 1) if g < 15 else [x + " ; need:16" if isvm(x) else x for x in flat(dma("K", 1, 1) + [adv("K", 1)])]
        if g == GPUB:
            S_.hooks[g] = release
            Wn = Wn + ["buffer_store_dword v%d, v%d, s[%d:%d], s%d offen sc1" % (vFO, vONE, SO, SO + 3, sU)]
        if g in (9, 11, 13): Wn = Wn + [CRL]
        S_.place(Wn, b, b + 34)
        S_.place(dma_act(g + 2) if g + 2 < 16 else [poll_load(1) + " ; need:15"] + flat(dma("K", 1, 0)) + ["s_sub_u32 s%d, s%d, s%d" % (sKO, sKO, sVD), ["s_cmp_eq_u32 s%d, 0" % sI, "s_cselect_b32 s%d, 0x4000, 0" % sDS], "s_add_u32 s%d, s%d, s%d" % (sKO, sKO, sDS)] if g == 14 else [], b + 34, e - 6)
    S_.place(soft(late_setup), cm[10], cm[14] - 4)
    zero = lambda lo, hi: ["v_accvgpr_write_b32 a%d, 0" % r for r in range(lo, hi)]
    S_.place([x for j in range(NKV, 16) for x in kv_unit(j, GPUB)], 8, cm[9] + per // 2)
    S_.place([x for j in range(16, 32) for x in kv_unit(j) + zero(ub(j), ub(j) + 8)], cm[9] + per // 2, cm[15] + 20)
    hd = ["s_and_b32 s%d, s%d, 1" % (sT0, sH), "s_lshr_b32 s%d, s%d, 1" % (sT1, sGR), "s_add_u32 s%d, s%d, s%d" % (sT0, sT0, sT1),
          "s_and_b32 s%d, s%d, 2" % (sT2, sH), "s_lshl_b32 s%d, s%d, 20" % (sAS, sT2), "s_lshr_b32 s%d, s%d, 1" % (sT2, sT2), "s_add_u32 s%d, s%d, s%d" % (sT1, sT1, sT2),
          "s_lshr_b32 s%d, s%d, 2" % (sT2, sT0), "s_lshl_b32 s%d, s%d, 19" % (sT2, sT2), "s_add_u32 s%d, s%d, s%d" % (sAS, sAS, sT2), "s_and_b32 s%d, s%d, 3" % (sT0, sT0), "s_lshl_b32 s%d, s%d, 11" % (sT0, sT0),
          "s_add_u32 s%d, s%d, s%d" % (sAS, sAS, sT0),
          "s_lshr_b32 s%d, s%d, 2" % (sT2, sT1), "s_add_u32 s%d, s%d, 8" % (sT2, sT2), "s_lshl_b32 s%d, s%d, 19" % (sAS2, sT2), "s_and_b32 s%d, s%d, 3" % (sT1, sT1), "s_lshl_b32 s%d, s%d, 11" % (sT1, sT1),
          "s_add_u32 s%d, s%d, s%d" % (sAS2, sAS2, sT1), "s_and_b32 s%d, s%d, 1" % (sT0, sH), "s_lshl_b32 s%d, s%d, 10" % (sT0, sT0), "s_add_u32 s%d, s%d, s%d" % (sAS2, sAS2, sT0),
          ["s_bitcmp1_b32 s%d, 1" % sH, "s_cselect_b32 s%d, 1.0, %s" % (sSC, fbits(LOG2E * 0.25)), "s_cselect_b32 s%d, s%d, s%d" % (sXM, sTI[2], sTI[0])],
          "s_xor_b32 s%d, s%d, 7" % (sT0, sXM), ["s_bitcmp1_b32 s%d, 0" % sH, "s_cselect_b32 s%d, s%d, s%d" % (sXM, sT0, sXM)],
          "s_lshl_b32 s%d, s%d, 6" % (sXM, sXM), "s_add_u32 s%d, s%d, s%d" % (sXM, sXM, sGL_)]
    sQO, sVO_ = (sWS, sXS, sAM, sWM), (8, 9, 10, 12)
    for qb in range(4):
        hd += ["s_lshr_b32 s%d, s%d, 1" % (sT0, sTI[qb]), "s_lshl_b32 s%d, s%d, 13" % (sT0, sT0), "s_and_b32 s%d, s%d, 1" % (sT1, sTI[qb]), "s_lshl_b32 s%d, s%d, 10" % (sT2, sT1), "s_lshl_b32 s%d, s%d, 3" % (sT1, sT1),
               "s_add_u32 s%d, s%d, s%d" % (sT2, sT2, sT0), "s_add_u32 s%d, s%d, s%d" % (sT1, sT1, sT0), "s_add_u32 s%d, s%d, s%d" % (sQO[qb], sAS, sT2), "s_add_u32 s%d, s%d, s%d" % (sVO_[qb], sAS2, sT1)]
    AE = []
    for j in range(6):
        pk = PK + 4 * (j % 4)
        AE += pack(AA + j * 8, pk, sSC if j < 4 else None)
        if j < 4: AE.append("buffer_store_dwordx4 %s, v%d, s[%d:%d], s%d offen" % (vr(pk, 4), vL16, SO, SO + 3, sQO[j]))
        else: AE += ["buffer_store_dwordx2 %s, v%d, s[%d:%d], s%d offen" % (vr(pk + 2 * t, 2), vL16, SO, SO + 3, sVO_[2 * (j - 4) + t]) for t in range(2)]
    AE += ["v_accvgpr_read_b32 v%d, a%d" % (TT, AA + 48), "v_and_b32 v%d, 15, v0" % (TT + 1), "v_mul_f32 v%d, %s, v%d" % (TT, fbits(-LOG2E), TT), "v_exp_f32 v%d, v%d" % (TT, TT), "v_lshlrev_b32 v%d, 2, v%d" % (TT + 1, TT + 1),
           "v_add_f32 v%d, 1.0, v%d" % (TT, TT), "v_rcp_f32 v%d, v%d" % (TT, TT), "s_nop 0", "buffer_store_dword v%d, v%d, s[%d:%d], s%d offen" % (TT, TT + 1, SO, SO + 3, sXM)]
    S_.place(hd, bm[14] + 40, cm[15] + 38)
    room = S_.room(cm[15] + 40, S_.n) - 8
    S_.place(AE[:room], cm[15] + 40, S_.n); tail = AE[room:]
    if XQ:
        def drop(x):
            if XQ & 1 and x.startswith("buffer_load") and "s[4:7]" in x: return True
            if XQ & 2 and x.startswith("buffer_store_dwordx4"): return True
            if XQ & 4 and x.startswith("buffer_load") and "s[12:15]" in x: return True
            if XQ & 8 and x.startswith("buffer_load") and "s[8:11]" in x: return True
            return False
        S_.G.g = [[it for it in g if not drop(it[1])] for g in S_.G.g]
    nq_ = [0]
    def qbar(w):
        nq_[0] += 1
        if nq_[0] == 7:
            a(w); poll_check(1); bar("s_nop 0")
        else: bar(w)
    vm2 = S_.emit(a, qbar, use8, vmh)
    if VERB: print("Q over", S_.over, "tail", len(tail))
    for x in tail: a(x)
    a("s_waitcnt vmcnt(%d)" % (len(vm2) - 1 - max(k for k, nd in enumerate(vm2) if nd == 16) + sum(1 for x in tail if isvm(x))))
    a(lAttn + ":")
    st_("attn")
    vU = 3; vL = (4, 5, 6, 7); vG = (8, 9, 14, 15); vX = 10
    S = (16, 80); P = (144, 176); NM, LT, TM, ONES = 208, 224, 240, 252
    vT8, vNEG = 248, 249
    sW3 = 56
    def live(typ, half):
        if not half: return list(range(8))
        return [q for q in range(8) if q % 4 != 2] if typ == 1 else [0, 1, 2, 3, 5, 7]
    O, Q, FR, NFR = 0, 128, 192, 16
    ms = (26, 28, 30, 4)
    def kfrag(p, kb, s): return ("K", p * 32768 + (kb // 2) * 8192 + s * 2048 + (kb % 2) * 1024)
    def vfrag(p, kp, dt): return ("V", p * 32768 + kp * 8192 + dt * 1024)
    def rd(slot, fr): return "ds_read_b128 %s, v%d offset:%d" % (ar(FR + 4 * (slot % NFR), 4), vK if fr[0] == "K" else vV, fr[1])
    def pvm(Pp, nq, kp, dt, lv): return ["%s %s, {F}, %s, %s" % (MF16, ar(O + (qb * 8 + dt) * 4, 4), vr(Pp + (kp * nq + qb) * 4, 4), ar(O + (qb * 8 + dt) * 4, 4)) for qb in range(nq) if kp * nq + qb in lv]
    def mf_list(p, pv, qk, hp=0, hq=0):
        L = []; Pp = P[1 - p]; Sn = S[1 - p]
        if pv in (1, 2):
            nq = 4 // pv
            L += [(vfrag(1 - p, kp, dt), pvm(Pp, nq, kp, dt, live(pv, hp))) for kp in range(2 * pv) for dt in range(8)]
        elif pv == 3:
            L += [(("K", vfrag(1, kp, dt)[1]), pvm(Pp, 2, kp, dt, live(2, 1))) for dt in range(8) for kp in range(4)]
        if qk:
            nq = 4 // qk
            for kb in range(4 * qk):
                for s in range(4):
                    ms_ = []
                    for qb in range(nq):
                        if (kb // 2) * nq + qb not in live(qk, hq): continue
                        d = vr(Sn + ((kb // 2) * nq + qb) * 8 + (kb % 2) * 4, 4)
                        ms_.append("%s %s, {F}, %s, %s" % (MF16, d, ar(Q + (qb * 4 + s) * 4, 4), d if s else vr(NM + qb * 4, 4)))
                    L.append((kfrag(1 - p, kb, s), ms_))
        return L
    def ex(p, n): return "v_exp_f32 v%d, v%d" % (TM + n % 8, S[p] + n)
    def cv(p, j): return "v_cvt_pk_bf16_f32 v%d, v%d, v%d" % (P[p] + j, TM + (2 * j) % 8, TM + (2 * j) % 8 + 1)
    def summ(p, sm, q):
        nq = 4 // sm; d = vr(LT + (q % nq) * 4, 4)
        return "%s %s, %s, %s, %s" % (MF16, d, vr(ONES, 4), vr(P[p] + 4 * q, 4), d if q >= nq else "0")
    def chks(sm, hs):
        if sm == 1 and hs: return ["v_max3_f32 v%d, v%d, v%d, v%d" % (vX, LT, LT + 4, LT + 12), "v_cmp_lt_f32 vcc, s%d, v%d" % (sTH, vX)]
        c = ["v_max3_f32 v%d, v%d, v%d, v%d" % (vX, LT, LT + 4, LT + 8), "v_max_f32 v%d, v%d, v%d" % (vX, vX, LT + 12)] if sm == 1 else ["v_max_f32 v%d, v%d, v%d" % (vX, LT, LT + 4)]
        return c + ["v_cmp_lt_f32 vcc, s%d, v%d" % (sTH, vX)]
    rare = {}
    def step(p, pv, sm, qk, dK, dV, pre_in=True, pre_out=True, extra_vm=None, chk=0, last16=False, staged=None, trail=None, vm_first=False, flush=False, ctl=None, hp=0, hs=0, hq=0, kpre=None):
        L = mf_list(p, pv, qk, hp, hq); nf = len(L)
        lv = live(sm, hs) if sm else []; ng = len(lv)
        nxt = [x[0] for x in mf_list(1, 3, 0)][:PD] if last16 else [vfrag(p, kp, dt) for kp in range(2) for dt in range(8)][:PD]
        M0 = [(f, t) for f, (fr, ts_) in enumerate(L) for t in ts_]
        nb = len(M0); M = []; spos = []
        SLK = 6 if nb > 100 else 3
        endm = nb - 10 - SLK
        ins = {((k + 1) * endm) // ng + SLK: q for k, q in enumerate(lv)}
        for m, it in enumerate(M0):
            M.append(it)
            if m in ins: spos.append(len(M)); M.append((it[0], summ(p, sm, ins[m])))
        nm = len(M)
        G = []
        if dV: G += dma("V", dV, p) + [adv("V", dV)]
        if dK: G += (kpre or []) + dma("K", dK, p) + [adv("K", dK)]
        ntr = sum(1 for x in flat(trail or []) if isvm(x))
        G = ((extra_vm or []) + G if vm_first else G + (extra_vm or [])) + (trail or [])
        firstm = {}
        for m, (f, t) in enumerate(M): firstm.setdefault(f, m)
        barf = nf + 1 - PD
        if barf % WP: barf += WP - barf % WP
        if not pre_out or last16: barf = nf + 99
        Gp = Gaps([12] * (nm - 1) + [4])
        sR = Gp.newstream(); pre = None
        allfr = [x[0] for x in L] + (nxt if pre_out else [])
        nrd = PD
        for f in range(nf):
            m = firstm[f]; w_ = None
            if f == barf: w_ = ["s_BARW", "s_BAR"]
            elif f < barf and f % WP == 0: w_ = ["s_waitcnt lgkmcnt(%d)" % max(0, nrd - 1 - min(f + WP - 1, nf - 1))]
            if w_ and m == 0: pre = w_
            elif w_:
                for x in w_: Gp.add(m - 1, sR, x)
            want = min(f + PD, len(allfr) - 1)
            if f < barf and not last16: want = min(want, nf - 1)
            for k in range(2):
                if nrd <= want:
                    Gp.add(m + (k if len(L[f][1]) > 1 else 0), sR, rd(nrd, allfr[nrd])); nrd += 1
        assert nrd == len(allfr), (nrd, len(allfr))
        hiD = min(max(2 * len(G), (nm * DFR) // 16), firstm[barf] - 8 if barf < nf else nm)
        Gp.place(soft(G), 1, hiD, slack=40)
        if pv in (1, 2) and not last16: Gp.place(["v_add_f32 v%d, v%d, v%d" % (vL[qb], vL[qb], LT + 4 * qb) for qb in range(4 // pv) if not (hp and qb == 2)], 0, 10)
        if ctl: Gp.place([ctl], nm - 8, nm - 3)
        if sm:
            pe = []; lo = 0
            for k, q in enumerate(lv):
                hi = spos[k] - SLK
                sE = Gp.newstream(); tmp = {z: list(Gp.g[z]) for z in range(lo, hi)}; ch = []
                for _ in range(8):
                    def inc(z): return max(0, gcost(tmp[z] + [(sE, "v_exp_f32")]) - Gp.cap[z]) - max(0, gcost(tmp[z]) - Gp.cap[z])
                    z = min(range(lo, hi), key=lambda z: (inc(z), gcost(tmp[z]) > Gp.cap[z], (z - lo) % 4 == 2 if EXT else 0, z))
                    tmp[z].append((sE, "v_exp_f32")); ch.append(z)
                for n, z in zip(range(8 * q, 8 * q + 8), sorted(ch)): Gp.add(z, sE, ex(p, n))
                pe += sorted(ch); lo = hi
            sC = Gp.newstream(); k = 0
            for j in range(4 * ng):
                x = cv(p, 4 * lv[j // 4] + j % 4)
                k = max(k, pe[2 * j + 1] + 1)
                dl = min(pe[2 * j + 8] - 1 if 2 * j + 8 < 8 * ng else nm, spos[j // 4] - 3)
                if k > dl: k = dl = max(dl, pe[2 * j + 1])
                assert k <= spos[j // 4] - 3 and (2 * j + 8 >= 8 * ng or k < pe[2 * j + 8]), (j, k, dl)
                cand = [z for z in range(k, dl + 1) if gcost(Gp.g[z] + [(sC, x)]) <= Gp.cap[z]]
                k = cand[0] if cand else min(range(k, dl + 1), key=lambda z: gcost(Gp.g[z]))
                Gp.add(k, sC, x)
            Gp.place(chks(sm, hs), nm - 3, nm - 1)
        for (lst, lo, hi) in (staged or []): Gp.place(lst, lo, hi)
        if VERB: print("step", p, pv, sm, qk, "gaps", nm, "over", Gp.over())
        if not pre_in:
            for f in range(PD): a(rd(f, L[f][0]))
        for x in pre or []: a(x)
        for m, (f, t) in enumerate(M):
            a(t.replace("{F}", ar(FR + 4 * (f % NFR), 4)))
            for x in Gp.out(m):
                if x == "s_BARW": continue
                if x == "s_BAR":
                    if TS3: a("s_mov_b32 m0, s76\ns_add_u32 s76, s76, 1\nv_writelane_b32 v11, s72, m0\ns_mov_b32 m0, s76\ns_add_u32 s76, s76, 1\nv_writelane_b32 v11, s74, m0\ns_memtime s[72:73]")
                    a("s_waitcnt vmcnt(%d) lgkmcnt(0)" % ntr)
                    if chk: poll_check(chk)
                    a("s_barrier")
                    if TS3: a("s_memtime s[74:75]\ns_waitcnt lgkmcnt(0)")
                else: a(x)
        assert nf % NFR == 0
        if sm:
            key = (p, sm, qk if qk else sm, hs)
            if key not in rare: rare[key] = (a.label("rare"), [])
            lb = a.label("back"); lj = a.label("jr")
            rare[key][1].append((lj, lb))
            a("s_cbranch_vccnz %s\n%s:" % (lj, lb))
            if last16 or flush:
                for qb in range(4 // sm):
                    if not (hs and qb == 2): a("v_add_f32 v%d, v%d, v%d" % (vL[qb], vL[qb], LT + 4 * qb))
    def qregs(base, typ, qb, half=0):
        nq = 4 // typ
        return [base + (kp * nq + qb) * 8 + j for kp in range(2 * typ) for j in range(8) if kp * nq + qb in live(typ, half)]
    def maxtree(dst, R):
        L = ["v_max3_f32 v%d, v%d, v%d, v%d" % (dst, R[0], R[1], R[2])]; j = 3
        while j + 1 < len(R):
            L.append("v_max3_f32 v%d, v%d, v%d, v%d" % (dst, dst, R[j], R[j + 1])); j += 2
        if j < len(R): L.append("v_max_f32 v%d, v%d, v%d" % (dst, dst, R[j]))
        return L
    def xlane(op, D, Tm):
        L = []
        for sw in ("v_permlane16_swap_b32", "v_permlane32_swap_b32"):
            L += ["v_mov_b32 v%d, v%d" % (t, d) for d, t in zip(D, Tm)]
            if len(D) < 3: L.append("s_nop %d" % (2 - len(D)))
            L += ["%s v%d, v%d" % (sw, d, t) for d, t in zip(D, Tm)]
            L += ["%s v%d, v%d, v%d" % (op, d, d, t) for d, t in zip(D, Tm)]
        return L
    def mask(sets, pad=True):
        for r in range(4): a("v_cmp_gt_i32 s[%d:%d], %d, v%d" % (ms[r], ms[r] + 1, r, vU))
        if pad: a("s_nop 3")
        for (R, st) in sets:
            lab = [a.label("mk") for _ in range(4)]; full = [a.label("mf") for _ in range(5)]
            for t in range(1, 4): a("s_cmp_eq_u32 s%d, %d\ns_cbranch_scc1 %s" % (st, t, lab[t]))
            for t in range(4):
                if t:
                    a(full[t] + ":")
                    for r in range(4): a("v_mov_b32 v%d, v%d" % (R[4 * t + r], vNEG))
                    a("s_branch %s\n%s:" % (full[t + 1], lab[t]))
                for r in range(4): a("v_cndmask_b32 v%d, v%d, v%d, s[%d:%d]" % (R[4 * t + r], R[4 * t + r], vNEG, ms[r], ms[r] + 1))
            a(full[4] + ":")
    bar("s_nop 0")
    if TS2:
        a("s_waitcnt lgkmcnt(0)"); bar("s_nop 0")
        a("s_lshl_b32 s78, s2, 2\ns_add_u32 s78, s78, s%d\ns_lshl_b32 s78, s78, 8\ns_add_u32 s78, s78, 0x%x\nv_lshlrev_b32 v122, 2, v0" % (sWV, OFF_TS + 0x80000))
        a("buffer_store_dword v123, v122, s[%d:%d], s78 offen\ns_waitcnt vmcnt(0)" % (SO, SO + 3))
    a("s_mov_b32 s%d, %s" % (sSC, fbits(LOG2E / math.sqrt(128.0))))
    fr0 = [kfrag(0, kb, s) for s in range(4) for kb in range(4)]
    for f in range(12): a(rd(f, fr0[f]))
    def qepi(cb):
        G = []
        for qb in range(4):
            src = QA + (((qb // 2) * 4 + cb) * 2 + qb % 2) * 8
            if not PKV: G += ["v_mul_f32 v%d, s%d, v%d" % (src + j, sSC, src + j) for j in range(8)]
            G += ["v_cvt_pk_bf16_f32 v%d, v%d, v%d" % (src + j, src + 2 * j, src + 2 * j + 1) for j in range(4)]
            G += ["v_accvgpr_write_b32 a%d, v%d" % (Q + (qb * 4 + cb) * 4 + j, src + j) for j in range(4)]
        return G
    for x in flat(dma("V", 1, 0)): a(x)
    a("s_sub_u32 s%d, s%d, s%d\ns_sub_u32 s%d, 3, s%d" % (sVO, sVO, sVD, sW3, sWV))
    if PKV:
        a("s_mov_b32 s26, s%d\ns_mov_b32 s27, s%d" % (sSC, sSC))
        for r in range(QA, QA + 128, 2): a("v_pk_mul_f32 %s, %s, s[26:27]" % (vr(r, 2), vr(r, 2)))
    for x in qepi(0): a(x)
    for f in range(12, 16): a(rd(f, fr0[f]))
    misc = ["v_add_u32 v%d, 0x10000, v%d" % (vV, vK), "v_and_b32 v10, 15, v0", "v_lshrrev_b32 v11, 4, v0", "v_lshlrev_b32 v11, 2, v11", "v_sub_u32 v%d, v10, v11" % vU]
    misc += ["v_mov_b32 v%d, 0" % r for r in vL] + ["v_mov_b32 v%d, %s" % (vNEG, NEG), "v_bfe_u32 v%d, v0, 3, 2" % vPO, "v_lshl_add_u32 v%d, v%d, 7, v124" % (vPO, vPO), "s_and_b32 s%d, s%d, 0xfffffe00" % (sHL, sHL)]
    misc += ["v_mov_b32 v%d, 0x3f803f80" % r for r in range(ONES, ONES + 4)] + ["v_mov_b32 v14, v%d" % vONE, "v_mov_b32 v15, 2"]
    a("s_waitcnt lgkmcnt(0)\ns_barrier")
    K2 = flat(dma("K", 2, 0)) + [["s_cmp_eq_u32 s%d, 0" % sI, "s_cselect_b32 s%d, 2, 1" % sT0], "s_lshl_b32 s%d, s%d, 14" % (sT0, sT0), "s_add_u32 s%d, s%d, s%d" % (sKO, sKO, sT0)]
    Gp = Gaps([12] * 64)
    Gp.place(K2, 0, 40)
    for s in range(4): Gp.place(qepi(s + 1) if s < 3 else misc, 16 * s, 16 * s + 16, slack=4)
    for s in range(4):
        for n in range(16):
            qb, kb = n // 4, n % 4
            d = vr(S[0] + ((kb // 2) * 4 + qb) * 8 + (kb % 2) * 4, 4)
            a("%s %s, %s, %s, %s" % (MF16, d, ar(FR + 4 * (4 * s + kb), 4), ar(Q + (qb * 4 + s) * 4, 4), d if s else "0"))
            for x in Gp.out(16 * s + n): a(x)
    st_("m1")
    for f, x in enumerate(mf_list(0, 0, 1)[:PD]): a(rd(f, x[0]))
    mask([(qregs(S[0], 1, 2), sWV)], pad=False)
    MXr, MXt = (240, 241, 242, 243), (244, 245, 246, 247)
    for qb in range(4):
        for x in maxtree(MXr[qb], qregs(S[0], 1, qb)): a(x)
    for x in xlane("v_max_f32", MXr, MXt): a(x)
    for qb in range(4):
        for j in range(4): a("v_sub_f32 v%d, 0, v%d" % (NM + qb * 4 + j, MXr[qb]))
    for qb in range(4):
        if PKV:
            for r in qregs(S[0], 1, qb)[::2]: a("v_pk_add_f32 %s, %s, %s" % (vr(r, 2), vr(r, 2), vr(NM + qb * 4, 2)))
        else:
            for r in qregs(S[0], 1, qb): a("v_sub_f32 v%d, v%d, v%d" % (r, r, MXr[qb]))
    st_("first")
    if TS3: a("s_mov_b32 s76, 0\ns_mov_b32 s72, 0\ns_mov_b32 s74, 0")
    step(0, 0, 1, 1, 0, 0)
    release()
    a("buffer_store_dword v15, v14, s[%d:%d], s%d offen sc1" % (SO, SO + 3, sU))
    st_("s0")
    lT0, lT1, lT1b, lL1, lL2, lS15, lMid, lI7, lEn = [a.label(x) for x in ("T0", "T1", "T1b", "L1", "L2", "S15", "MID", "I7", "END")]
    PL = [[poll_load(2)]]
    AF = [Q + 4 * j for j in range(9)]
    def ld(dst, so, off): return "buffer_load_dwordx4 %s, v%d, s[%d:%d], s%d offen offset:%d sc1" % (ar(dst, 4), vK, SV, SV + 3, so, off)
    AOP = [ld(AF[0], sA0, 0), ld(AF[1], sA0, 1024), ld(AF[2], sX0, 0), ld(AF[3], sX0, 1024), ld(AF[4], sA1, 1024),
           ld(AF[5], sX1, 0), ld(AF[6], sX1, 1024), ld(AF[7], sGB, 0), ld(AF[8], sGB, 1024)]
    AOP += ["v_and_b32 v12, 15, v0", "v_lshlrev_b32 v12, 2, v12"] + ["buffer_load_dword a%d, v12, s[%d:%d], s%d offen offset:%d sc1" % (Q + 36 + t, SV, SV + 3, sGA_, 64 * t) for t in range(2)]
    ALD = [["v_and_b32 v12, 15, v0", "v_lshlrev_b32 v12, 2, v12"]]
    ALD += [["buffer_load_dword v%d, v12, s[%d:%d], s%d offen offset:%d sc1" % (vG[qb], SV, SV + 3, sT0, 0)] for qb in range(4)]
    for qb in range(4): ALD[1 + qb] = ["s_lshl_b32 s%d, s%d, 6" % (sT0, sTI[qb]), "s_add_u32 s%d, s%d, s%d" % (sT0, sT0, sGL_)] + ALD[1 + qb]
    def wpf(dst): return [["v_add_lshl_u32 v%d, v0, s%d, 7" % (vT8, sP0), "global_load_dword v%d, v%d, s[%d:%d]" % (dst, vT8, pBWO, pBWO + 1)],
                          ["v_and_b32 v12, 7, v0", "v_add_lshl_u32 v12, v12, s%d, 7" % sP1_, "global_load_dword v%d, v12, s[%d:%d]" % (dst, pWO, pWO + 1)]]
    TR0, TR15 = wpf(vG[0]), (wpf(vT8) if T15 else [])
    if CR2:
        TR15 = TR15 + [["s_lshr_b32 s%d, s%d, 3" % (sT0, sP1_), "s_and_b32 s%d, s%d, 127" % (sT0, sT0), "v_and_b32 v13, 15, v0", "v_lshlrev_b32 v13, 7, v13", "v_add_lshl_u32 v13, v13, s%d, 7" % sT0,
                        "v_min_u32 v13, %s-%s, v13" % (lRare, lpc2), "global_load_dword v%d, v13, s[0:1]" % vT8]]
    PW, PW2 = 8, 12
    sWB, sHW, sWC, sAB, sHA, sAC = 25, 32, 33, 98, 35, 57
    TL = ("s_mov_b32 s%d, s%d\ns_mov_b32 s%d, s%d\ns_mov_b32 s%d, 0x400000\ns_mov_b32 s%d, s%d\ns_mov_b32 s%d, s%d\ns_mov_b32 s%d, 0x80000\n" % (PW, pBWO, PW + 1, pBWO + 1, PW + 2, PW2, pWO, PW2 + 1, pWO + 1, PW2 + 2) +
          "s_lshr_b32 s%d, s%d, 3\ns_lshl_b32 s%d, s%d, 20\ns_and_b32 s%d, s%d, 3\ns_lshl_b32 s%d, s%d, 8\ns_add_u32 s%d, s%d, s%d\ns_lshl_b32 s%d, s%d, 14\ns_add_u32 s%d, s%d, s%d\n" % (sT2, sH, sWB, sT2, sT1, sH, sT1, sT1, sWB, sWB, sT1, sT1, sWV, sWB, sWB, sT1) +
          "s_and_b32 s%d, s%d, 7\ns_mov_b32 s%d, s%d\n" % (sHW, sH, sHA, sHW) +
          "s_lshl_b32 s%d, s%d, 2\ns_add_u32 s%d, s%d, s%d\ns_mul_i32 s%d, s%d, %d\ns_lshl_b32 s%d, s%d, 16\ns_add_u32 s%d, s%d, s%d\ns_add_u32 s%d, s%d, 0x%x\n" % (sT1, sRBK, sT1, sT1, sWV, sAB, sT1, CROW, sT2, sT2, sAB, sAB, sT2, sAB, sAB, OFF_C) +
          "s_lshl_b32 s%d, s%d, 13\ns_add_u32 s%d, s%d, 0x%x" % (sT1, sH, sT1, sT1, OFF_C)).split("\n")
    for t in sTI:
        TL += ["s_and_b32 s%d, s%d, 1" % (sT2, t), "s_lshl_b32 s%d, s%d, 10" % (sT2, sT2), "s_lshr_b32 s%d, s%d, 1" % (t, t), "s_mul_i32 s%d, s%d, %d" % (t, t, CROW),
               "s_add_u32 s%d, s%d, s%d" % (t, t, sT2), "s_add_u32 s%d, s%d, s%d" % (t, t, sT1)]
    STL = [(TL[:23], 2, 50), (TL[23:], 50, 114)]
    a("s_cmp_eq_u32 s%d, 0\ns_cbranch_scc1 %s" % (sI, lT1))
    a("s_mov_b32 s%d, s%d" % (sT, sI))
    a(".p2align 6\n" + lL1 + ":")
    step(1, 1, 1, 1, 1, 1, ctl=["s_sub_u32 s%d, s%d, 1" % (sT, sT)], kpre=[["s_cmp_eq_u32 s%d, 1" % sT, "s_cselect_b32 s%d, 0x4000, 0" % sT0], ["s_add_u32 s%d, s%d, s%d" % (sKO, sKO, sT0)]])
    a("s_cmp_eq_u32 s%d, 0\ns_cbranch_scc1 %s" % (sT, lT0))
    step(0, 1, 1, 1, 1, 1)
    a("s_branch %s" % lL1)
    a(lT0 + ":")
    step(0, 1, 1, 1, 2, 1, extra_vm=PL, chk=2, trail=TR0, hq=1)
    a(lT1 + ":")
    mask([(qregs(S[1], 1, 3), sW3)])
    a("s_add_u32 s%d, s%d, 0x4000\ns_cmp_eq_u32 s%d, 7\ns_cbranch_scc1 %s" % (sVO, sVO, sI, lT1b))
    step(1, 1, 1, 2, 2, 1, hs=1)
    step(0, 1, 2, 2, 2, 2, extra_vm=PL, chk=2, trail=TR0, hp=1)
    a("s_sub_u32 s%d, 6, s%d\ns_cmp_eq_u32 s%d, 0\ns_cbranch_scc1 %s" % (sT, sI, sT, lS15))
    a(".p2align 6\n" + lL2 + ":")
    step(1, 2, 2, 2, 2, 2)
    step(0, 2, 2, 2, 2, 2, ctl=["s_sub_u32 s%d, s%d, 1" % (sT, sT)])
    a("s_cmp_lg_u32 s%d, 0\ns_cbranch_scc1 %s" % (sT, lL2))
    a(lS15 + ":")
    a("s_add_u32 s%d, s%d, 0x8000" % (sKO, sVO))
    step(1, 2, 2, 2, 2, 2, extra_vm=ALD, trail=TR15, vm_first=True, staged=STL, flush=True, hq=1)
    a("s_branch %s" % lMid)
    a(lT1b + ":")
    a("s_add_u32 s%d, s%d, 0x4000" % (sKO, sVO))
    step(1, 1, 1, 2, 2, 1, extra_vm=ALD, trail=TR15, vm_first=True, staged=STL, flush=True, hs=1, hq=1)
    def fin_head(rb, so):
        q0, q1 = 2 * rb, 2 * rb + 1
        G = ["v_rcp_f32 v%d, v%d" % (vL[q0], vL[q0]), "v_rcp_f32 v%d, v%d" % (vL[q1], vL[q1]), "v_sub_f32 v%d, 1.0, v%d" % (vG[q0], vG[q0]), "v_sub_f32 v%d, 1.0, v%d" % (vG[q1], vG[q1]),
             "v_mul_f32 v%d, v%d, v%d" % (vL[q0], vL[q0], vG[q0]), "v_mul_f32 v%d, v%d, v%d" % (vL[q1], vL[q1], vG[q1])]
        return G
    def fin_part(rb, c, t, so, pk=False):
        u, tq = c // 2, c % 2; qb = 2 * rb + tq; so = sTI[qb]
        G = ["v_accvgpr_read_b32 v%d, a%d" % (t + j, O + qb * 32 + u * 8 + j) for j in range(8)]
        if pk and PKV: G += ["v_pk_mul_f32 %s, %s, %s op_sel:[0,%d] op_sel_hi:[1,%d]" % (vr(t + j, 2), vr(t + j, 2), vr(vL[2 * rb], 2), tq, tq) for j in range(0, 8, 2)]
        else: G += ["v_mul_f32 v%d, v%d, v%d" % (t + j, vL[qb], t + j) for j in range(8)]
        G += ["v_cvt_pk_bf16_f32 v%d, v%d, v%d" % (t + j, t + 2 * j, t + 2 * j + 1) for j in range(4)]
        if u == 2: G.append("s_add_u32 s%d, s%d, 4096" % (so, so))
        G.append("buffer_store_dwordx4 %s, v%d, s[%d:%d], s%d offen offset:%d sc1" % (vr(t, 4), vK, SV, SV + 3, so, (u % 2) * 2048))
        return G
    a(lMid + ":")
    st_("mid")
    if TS3:
        a("s_mov_b32 m0, s76\ns_add_u32 s76, s76, 1\nv_writelane_b32 v11, s72, m0\ns_mov_b32 m0, s76\ns_add_u32 s76, s76, 1\nv_writelane_b32 v11, s74, m0")
        a("s_lshl_b32 s78, s2, 2\ns_add_u32 s78, s78, s%d\ns_lshl_b32 s78, s78, 8\ns_add_u32 s78, s78, 0x%x\nv_lshlrev_b32 v10, 2, v0" % (sWV, OFF_TS + 0x80000))
        a("buffer_store_dword v11, v10, s[%d:%d], s78 offen\ns_nop 4" % (SO, SO + 3))
    for x in AOP: a(x)
    mask([(qregs(S[0], 2, 0)[:16], sWV), (qregs(S[0], 2, 1)[16:], sW3)], pad=False)
    vD = (232, 233, 234, 235)
    WRING = [0, 16384, 65536, 81920, 131072, 147456]; ARING = [32768, 49152, 98304, 114688]
    def w_dma(st):
        G = []
        if st < 16 and st % 2 == 0:
            G += ["s_lshl_b32 s%d, s%d, 17" % (sWC, sHW), "s_add_u32 s%d, s%d, s%d" % (sWC, sWC, sWB), "s_add_u32 s%d, s%d, 1" % (sHW, sHW)]
        if st == 16: G += ["s_and_b32 s%d, s%d, 0xffff" % (sWC, sWB), "s_lshr_b32 s%d, s%d, 20" % (sHW, sWB), "s_lshl_b32 s%d, s%d, 17" % (sHW, sHW), "s_add_u32 s%d, s%d, s%d" % (sWC, sWC, sHW)]
        G += ["s_add_u32 m0, s%d, %d" % (sW4, WRING[st % 6]), "s_and_b32 s%d, s%d, 7" % (sHW, sHW) if st % 2 == 0 else "s_add_u32 s%d, s%d, 65536" % (sWC, sWC)]
        sr_ = PW if st < 16 else PW2
        return G + ["buffer_load_dwordx4 v%d, s[%d:%d], s%d offen offset:%d lds ; need:%d" % (vD[o], sr_, sr_ + 3, sWC, o * 1024, st) for o in range(4)]
    def a_dma(st):
        G = []
        if st < 16 and st % 2 == 0:
            G += ["s_lshl_b32 s%d, s%d, 13" % (sAC, sHA), "s_add_u32 s%d, s%d, s%d" % (sAC, sAC, sAB), "s_add_u32 s%d, s%d, 1" % (sHA, sHA)]
        if st == 16: G += ["s_lshr_b32 s%d, s%d, 3" % (sHA, sH), "s_mul_i32 s%d, s%d, %d" % (sHA, sHA, 56 * 1024), "s_sub_u32 s%d, s%d, s%d" % (sAC, sAB, sHA), "s_add_u32 s%d, s%d, %d" % (sAC, sAC, 256 * 1024)]
        G += ["s_add_u32 m0, s%d, %d" % (sW4, ARING[st % 4]), "s_and_b32 s%d, s%d, 7" % (sHA, sHA) if st % 2 == 0 else "s_add_u32 s%d, s%d, 4096" % (sAC, sAC)]
        return G + ["buffer_load_dwordx4 v%d, s[%d:%d], s%d offen offset:%d sc1 lds ; need:%d" % (vK, SV, SV + 3, sAC, o * 1024, st) for o in range(4)]
    nt = lambda L: [x.split(";")[0].strip() for x in L]
    a("v_lshrrev_b32 v10, 4, v0\nv_and_b32 v11, 15, v0\nv_lshlrev_b32 v12, 2, v10\nv_xor_b32 v11, v11, v12\nv_lshlrev_b32 v11, 4, v11\nv_lshl_add_u32 v%d, v10, 10, v11" % vD[0])
    a("v_xor_b32 v11, 16, v%d\nv_add_u32 v%d, 6144, v%d\nv_add_u32 v%d, 3072, v11\nv_add_u32 v%d, 9216, v11" % (vD[0], vD[2], vD[0], vD[1], vD[3]))
    n0, n1, n2 = WSP
    for st in range(n0):
        for x in nt(w_dma(st)): a(x)
    W16_ = [[x] for st in range(n0, n0 + n1) for x in nt(w_dma(st))]; W17_ = [[x] for st in range(n0 + n1, n0 + n1 + n2) for x in nt(w_dma(st))]
    WRS = [x for st in range(n0 + n1 + n2, 6) for x in nt(w_dma(st))]
    a("s_cmp_eq_u32 s%d, 7\ns_cbranch_scc1 %s" % (sI, lI7))
    FT = lambda c: 80 + 8 * (c % 8)
    for x in fin_head(1, sA0): a(x)
    for c in range(NE):
        for x in fin_part(1, c, FT(c), sA0, True): a(x)
    step(0, 2, 2, 0, 0, 0, last16=True, extra_vm=W16_, hs=1)
    def final(first):
        stg = [(first + fin_head(0, sA1), 0, 17)]
        for u in range(3):
            stg.append((fin_part(0, 2 * u, 16 + 16 * u, sA1) + fin_part(0, 2 * u + 1, 24 + 16 * u, sA1), 12 * u + 17, min(12 * u + 29, 48)))
        step(1, 3, 0, 0, 0, 0, pre_out=False, staged=stg, extra_vm=W17_)
        a("s_nop 7")
        for x in fin_part(0, 6, 64, sA1, True) + fin_part(0, 7, 72, sA1, True): a(x)
    final([x for c in range(NE, 8) for x in fin_part(1, c, FT(c), sA0)])
    a("s_branch %s" % lEn)
    a(lI7 + ":")
    step(0, 1, 2, 0, 0, 0, last16=True, extra_vm=W16_, hs=1, hp=1)
    final(fin_head(1, sA0) + [x for c in range(8) for x in fin_part(1, c, FT(c), sA0)])
    a(lEn + ":")
    st_("s17")
    BS, BP, BP0 = 208, 212, 216
    SL = 144; TA = 176; PA = 196; MXl = (240, 241, 242, 243); vPM = 250; OL = 144
    L1 = ["v_add_u32 v246, 14, v%d" % vU, "v_mov_b32 v244, 0x5555", "v_mov_b32 v245, 0", "s_cmp_eq_u32 s%d, 0" % sRA, "s_cselect_b32 s%d, -1, 0" % sT2,
          "v_lshlrev_b64 v[244:245], v246, v[244:245]", "v_alignbit_b32 v244, v245, v244, 12", "v_not_b32 v244, v244"]
    L1 += ["v_bfe_i32 v%d, v244, %d, 1" % (BS + r, 16 + r) for r in range(4)] + ["v_bfe_i32 v%d, v244, %d, 1" % (BP + r, r) for r in range(4)]
    L1 += ["v_or_b32 v%d, s%d, v%d" % (BP0 + r, sT2, BP + r) for r in range(4)]
    L1 += ["v_and_b32 v%d, v%d, v%d" % (BS + r, vNEG, BS + r) for r in range(12)]
    L1 += ["v_and_b32 v244, 1, v0", "v_lshlrev_b32 v244, 4, v244", "v_mov_b32 v245, 0xffff", "v_lshlrev_b32 v%d, v244, v245" % vPM, "s_waitcnt vmcnt(40)"]
    for e in range(2):
        for tq in range(2):
            d = SL + (2 * e + tq) * 8
            L1.append("%s %s, %s, %s, %s" % (MFH, vr(d, 4), ar((AF[4], AF[2])[tq] + 2 * e, 2), ar(AF[tq] + 2 * e, 2), vr((BP0, BP)[tq], 4)))
            L1.append("%s %s, %s, %s, %s" % (MFH, vr(d + 4, 4), ar(AF[2 + tq] + 2 * e, 2), ar(AF[tq] + 2 * e, 2), vr(BS, 4)))
    L2 = ["v_max_f32 v%d, v%d, v%d" % (TA + j, SL + 2 * j, SL + 2 * j + 1) for j in range(16)]
    for n in range(4): L2 += maxtree(MXl[n], [TA + 4 * n + j for j in range(4)])
    L2 += xlane("v_max_f32", MXl, MXt)
    L2 += ["v_sub_f32 v%d, v%d, v%d" % (TA + j, TA + j, MXl[j // 4]) for j in range(16)]
    L2 += ["v_exp_f32 v%d, v%d" % (TA + j, TA + j) for j in range(16)]
    L2 += ["v_cvt_pk_bf16_f32 v%d, v%d, v%d" % (TA + j, TA + j, TA + j) for j in range(16)]
    L2 += ["v_and_b32 v%d, v%d, v%d" % (TA + j, vPM, TA + j) for j in range(16)]
    L2 += ["v_accvgpr_read_b32 v%d, a%d" % (246 + t, Q + 36 + t) for t in range(2)]
    for n in range(4): L2.append("%s %s, %s, %s, 0" % (MF16, vr(OL + 16 + 4 * n, 4), vr(ONES, 4), vr(TA + 4 * n, 4)))
    for e in range(2):
        L2.append("%s %s, %s, %s, 0" % (MFH, vr(OL + 4 * e, 4), ar(AF[7 + e] + 2, 2), vr(TA + 8 * e, 2)))
        L2.append("%s %s, %s, %s, 0" % (MF16, vr(OL + 8 + 4 * e, 4), ar(AF[5 + e], 4), vr(TA + 8 * e + 4, 4)))
    for e in range(2): L2.append("%s %s, %s, %s, %s" % (MFH, vr(OL + 4 * e, 4), ar(AF[5 + e], 2), vr(TA + 8 * e + 2, 2), vr(OL + 4 * e, 4)))
    L2 += ["s_mul_i32 s%d, s%d, %d" % (sA0, sRA, CROW), "s_lshl_b32 s%d, s%d, 11" % (sA1, sHP), "s_add_u32 s%d, s%d, s%d" % (sA0, sA0, sA1), "s_add_u32 s%d, s%d, 0x%x" % (sA0, sA0, OFF_C + 256 * 1024)]
    L2 += ["v_rcp_f32 v%d, v%d" % (MXl[n], OL + 16 + 4 * n) for n in range(4)]
    L2 += ["v_mul_f32 v%d, v%d, v%d" % (MXl[n], MXl[n], 246 + n % 2) for n in range(4)]
    for tq in range(2):
        for e in range(2): L2 += ["v_mul_f32 v%d, v%d, v%d" % (OL + 8 * tq + 4 * e + j, MXl[2 * e + tq], OL + 8 * tq + 4 * e + j) for j in range(4)]
        L2 += ["v_cvt_pk_bf16_f32 v%d, v%d, v%d" % (PA + 4 * tq + j, OL + 8 * tq + 2 * j, OL + 8 * tq + 2 * j + 1) for j in range(4)]
    LST = ["buffer_store_dwordx4 %s, v%d, s[%d:%d], s%d offen offset:%d sc1" % (vr(PA + 4 * tq, 4), vK, SV, SV + 3, sA0, tq * 1024) for tq in range(2)]
    for x in WRS + L1: a(x)
    SOUT = 4; sQ, sOUT = 26, 28
    vA, vW = (2, 3), (4, 5, 14, 15); ACC, FP = 16, 80
    srd(a, SOUT, 100, 2048 * 1024)
    a("s_lshr_b32 s%d, s%d, 3" % (sQ, sH))
    a("s_and_b32 s%d, s%d, 1\ns_lshl_b32 s%d, s%d, 1\ns_and_b32 s%d, s%d, 1\ns_add_u32 s%d, s%d, s%d\ns_lshl_b32 s%d, s%d, 12" % (sT0, sWV, sT0, sT0, sT1, sQ, sT2, sT0, sT1, sT0, sT2))
    a("v_add_u32 v%d, s%d, v%d\nv_xor_b32 v%d, 4096, v%d" % (vA[0], sT0, vK, vA[1], vA[0]))
    a("v_lshrrev_b32 v9, 2, v0\nv_and_b32 v8, 3, v9\nv_bfe_u32 v7, v0, 4, 1\nv_and_b32 v10, 2, v0\nv_or_b32 v7, v7, v10\nv_and_b32 v10, 1, v0\nv_lshlrev_b32 v10, 3, v10")
    a("s_and_b32 s%d, s%d, 2\ns_lshr_b32 s%d, s%d, 1\ns_add_u32 s%d, s%d, s%d\nv_xor_b32 v8, s%d, v8" % (sT0, sWV, sT1, sQ, sT0, sT0, sT1, sT0))
    a("v_lshl_or_b32 v8, v8, 2, v7\nv_lshlrev_b32 v8, 4, v8\nv_lshl_add_u32 v8, v9, 8, v8\nv_add_u32 v%d, v8, v10" % vW[0])
    a("v_xor_b32 v%d, 16, v%d\nv_xor_b32 v%d, 64, v%d\nv_xor_b32 v%d, 80, v%d" % (vW[1], vW[0], vW[2], vW[0], vW[3], vW[0]))
    a("s_and_b32 s%d, s%d, 3\ns_lshl_b32 s%d, s%d, 2\ns_add_u32 s%d, s%d, s%d\ns_lshl_b32 s%d, s%d, 6" % (sT1, sH, sT1, sT1, sT1, sT1, sT0, sOUT, sT1))
    a("s_lshl_b32 s%d, s%d, 2\ns_add_u32 s%d, s%d, s%d\ns_lshl_b32 s%d, s%d, 15\ns_add_u32 s%d, s%d, s%d" % (sT0, sRBK, sT0, sT0, sT2, sT0, sT0, sOUT, sOUT, sT0))
    a("v_and_b32 v6, 15, v0\nv_lshlrev_b32 v6, 10, v6\nv_lshrrev_b32 v7, 4, v0\nv_lshl_add_u32 v6, v7, 4, v6")
    a("v_min_u32 v9, 1, v0\nv_lshlrev_b32 v9, 29, v9\nv_mov_b32 v10, 1\nv_and_b32 v8, 7, v0\nv_lshlrev_b32 v8, 2, v8\nv_and_b32 v11, 12, v8")
    def signal_wait(sown, vo, pre):
        lp, lo_ = a.label("xpoll"), a.label("xok")
        a("s_waitcnt vmcnt(0)\ns_barrier\ns_cmp_lg_u32 s%d, 0\ns_cbranch_scc1 %s_s" % (sWV, lo_))
        a("buffer_store_dword v10, v9, s[%d:%d], s%d offen sc1\n%s_s:" % (SO, SO + 3, sown, lo_))
        for x in pre: a(x)
        a("s_cmp_lg_u32 s%d, 0\ns_cbranch_scc1 %s" % (sWV, lo_))
        a("s_and_b32 s%d, s%d, 0xffffff80\ns_mov_b32 s%d, 0x80000\n%s:" % (sT0, sown, sT1, lp))
        a("buffer_load_dword v12, v%d, s[%d:%d], s%d offen sc1\ns_waitcnt vmcnt(0)\nv_cmp_gt_u32 vcc, 1, v12\ns_cbranch_vccz %s" % (vo, SO, SO + 3, sT0, lo_))
        a("s_sleep %d\ns_sub_u32 s%d, s%d, 1\ns_cmp_lg_u32 s%d, 0\ns_cbranch_scc1 %s\n%s:" % (SLP, sT1, sT1, sT1, lp, lo_))
        a("s_waitcnt vmcnt(0)\ns_barrier")
    a("s_cmp_eq_u32 s%d, 0\ns_cselect_b32 s%d, 2, 0\ns_cselect_b32 s%d, 0, 0x20000000\nv_add_u32 v192, s%d, v8\nv_or_b32 v193, s%d, v9\nv_mov_b32 v194, 2\ns_and_b32 s%d, s%d, 0xffffff80" % (sWV, sG1, sT0, sT0, sT0, sG2, sFG))
    for x in L2[:LSPL]: a(x)
    signal_wait(sFG, 8, nt(a_dma(0) + a_dma(1)) + L2[LSPL:])
    st_("sync")
    for x in nt(a_dma(2) + a_dma(3)) + LST: a(x)
    curA, curW = [0], [0]
    def preads(u):
        st, us = u // 2, u % 2
        L = []
        def win(base, cur, regs_):
            w_ = base // 65536
            if w_ != cur[0]:
                d = (w_ - cur[0]) * 65536
                for r in regs_: L.append((("v_add_u32 v%d, 0x%x, v%d" % (r, d, r)) if d > 0 else ("v_subrev_u32 v%d, 0x%x, v%d" % (r, -d, r)), None))
                cur[0] = w_
            return base % 65536
        oa = win(ARING[st % 4], curA, vA); ow = win(WRING[st % 6], curW, vW)
        tr = lambda n: [("ds_read_b64_tr_b16 %s, v%d offset:%d" % (freg(u, 4 + n, 2 * r_, 2), vW[n], ow + us * 8192 + r_ * 4096), 4 + n) for r_ in range(2)]
        ac = [("ds_read_b128 %s, v%d offset:%d" % (freg(u, n), vA[n // 2], oa + us * 2048 + (n % 2) * 1024), n) for n in range(4)]
        if u >= 36 - ND: return L + tr(2) + ac + tr(3) + tr(0) + tr(1)
        return L + tr(0) + ac + tr(1) + tr(2) + tr(3)
    def freg(u, f, o=0, n=4):
        if u >= 36 - ND and f in (0, 1, 4, 5): return ar(16 * (u - 36 + ND) + 4 * (0, 1, 0, 0, 2, 3)[f] + o, n)
        return vr(FP + 32 * (u % 2) + 4 * f + o, n)
    def pm(u, wn, n):
        acc = vr(ACC + ((n // 2) + 2 * (wn // 2)) * 16 + (n % 2) * 8 + (wn % 2) * 4, 4)
        return "%s %s, %s, %s, %s" % (MF16, acc, freg(u, 4 + wn), freg(u, n), "0" if u == 0 else acc)
    Mp = []; u0 = []; fu = []; late = []; wpts = []
    for u in range(36):
        u0.append(len(Mp)); d_ = {}
        seq = [(wn, n) for wn in range(4) for n in range(4)]
        if u >= 36 - ND:
            late += [pm(u, wn, n) for wn, n in seq if wn < 2 and n < 2]
            seq = [(wn, n) for wn in (2, 3) for n in range(4)] + [(wn, n) for wn in (0, 1) for n in (2, 3)]
        for wn, n in seq:
            d_.setdefault(4 + wn, len(Mp)); d_.setdefault(n, len(Mp)); Mp.append(pm(u, wn, n))
        fu.append(d_); wpts += [u0[u], u0[u] + 8]
    SP_ = Sched(Mp); SP_.backlog = 10
    R0 = [(x, None if f is None else fu[0][f]) for x, f in preads(0)]
    for x, _ in R0: a(x)
    for u in range(1, 36):
        t0 = u0[u - 1] + (PB if u % 2 == 0 else 0)
        SP_.rq += [(x, t0, t0, None if f is None else fu[u][f]) for x, f in preads(u)]
    bpos = {st: u0[2 * st - 1] + PB for st in range(1, 18)}
    for st, b in bpos.items(): SP_.bars[b] = st
    SP_.waitpts = wpts
    SP_.place_reads()
    for g_ in range(SP_.n):
        for u_ in SP_.use[g_].values():
            if u_ is not None:
                st = max(k for k in range(36) if u0[k] <= u_) // 2
                assert g_ < bpos.get(st + 1, 9999), (g_, u_)
    for st in range(1, 18):
        b = bpos[st]
        G = []
        if st == 5: G.append("buffer_store_dword v194, v193, s[%d:%d], s%d offen sc1" % (SO, SO + 3, sFG))
        if st == 10: G.append(poll_load(4) + " ; need:13")
        if st + 3 < 18: G += a_dma(st + 3)
        if st + 5 < 18: G += w_dma(st + 5)
        SP_.place(G, b, bpos.get(st + 1, SP_.n) - 2, slack=30)
    nb_ = [0]
    def pbar(w):
        nb_[0] += 1
        a(w)
        if nb_[0] == 13: poll_check(4)
        if not XP & 4: a("s_barrier")
    SP_.emit(a, pbar, [u_ for _, u_ in R0], [2] * 4 + [3] * 4 + [5] * 2)
    if VERB: print("P over", SP_.over)
    st_("pm")
    a("s_nop 3")
    for j in (2, 3, 1):
        a("s_xor_b32 s%d, s%d, %d\ns_mul_i32 s%d, s%d, 49152\ns_add_u32 s%d, s%d, s%d\ns_add_u32 s%d, s%d, %d" % (sT0, sQ, j, sT0, sT0, sT0, sT0, sXO, sT0, sT0, (j - 1) * 16384))
        for r in range(8): a("v_cvt_pk_bf16_f32 v%d, v%d, v%d" % (FP + 8 * j + r, ACC + j * 16 + 2 * r, ACC + j * 16 + 2 * r + 1))
        for c in range(2): a("buffer_store_dwordx4 %s, v%d, s[%d:%d], s%d offen offset:%d sc1" % (vr(FP + 8 * j + 4 * c, 4), vK, SO, SO + 3, sT0, c * 1024))
    for x in late: a(x)
    signal_wait(sFX, 11, [])
    st_("xs")
    a("s_mov_b32 s%d, s%d" % (sT0, sXR))
    for j in range(1, 4):
        for c in range(2): a("buffer_load_dwordx4 %s, v%d, s[%d:%d], s%d offen offset:%d sc1" % (vr(ACC + j * 16 + 4 * c, 4), vK, SO, SO + 3, sT0, c * 1024))
        if j < 3: a("s_add_u32 s%d, s%d, 16384" % (sT0, sT0))
    for j in range(1, 4):
        a("s_waitcnt vmcnt(%d)" % (2 * (3 - j)))
        for r in range(8):
            t = ACC + j * 16 + r
            a("v_lshlrev_b32 v12, 16, v%d\nv_and_b32 v13, 0xffff0000, v%d\nv_add_f32 v%d, v%d, v12\nv_add_f32 v%d, v%d, v13" % (t, t, ACC + 2 * r, ACC + 2 * r, ACC + 2 * r + 1, ACC + 2 * r + 1))
    for r in range(8): a("v_cvt_pk_bf16_f32 v%d, v%d, v%d" % (FP + r, ACC + 2 * r, ACC + 2 * r + 1))
    a("s_nop 1")
    for pr in range(2): a("v_permlane16_swap_b32 v%d, v%d\nv_permlane16_swap_b32 v%d, v%d" % (FP + 4 * pr, FP + 4 * pr + 2, FP + 4 * pr + 1, FP + 4 * pr + 3))
    a("buffer_store_dwordx4 %s, v6, s[%d:%d], s%d offen %s\ns_add_u32 s%d, s%d, 16384" % (vr(FP, 4), SOUT, SOUT + 3, sOUT, OST, sOUT, sOUT))
    a("buffer_store_dwordx4 %s, v6, s[%d:%d], s%d offen %s" % (vr(FP + 4, 4), SOUT, SOUT + 3, sOUT, OST))
    if HOLD:
        ia, ib, wg = HOLD; lp = a.label("hold")
        a("s_waitcnt lgkmcnt(0)\ns_cmp_lg_u32 s2, %d\ns_cbranch_scc1 %s" % (wg, done))
        a("s_sub_u32 s22, s%d, s%d\ns_min_u32 s22, s22, 0x2000\ns_add_u32 s22, s22, 10000" % (74 + 4 * ib, 74 + 4 * ia))
        a("%s:\ns_memrealtime s[24:25]\ns_waitcnt lgkmcnt(0)\ns_sub_u32 s24, s24, s74\ns_cmp_lt_u32 s24, s22\ns_cbranch_scc1 %s" % (lp, lp))
    else: T.dump(SO, sWV, 4)
    a(done + ":\ns_endpgm")
    a(lRare + ":")
    for (ls, lb, kind) in spins:
        lp = a.label("sp")
        a(ls + ":\ns_mov_b32 s44, 0x40000\n%s:" % lp)
        a("s_sleep 8\n" + poll_load(kind) + "\ns_waitcnt vmcnt(0)\n%s\ns_cbranch_vccz %s" % (poll_cmp(kind), lb))
        a("s_sub_u32 s44, s44, 1\ns_cmp_lg_u32 s44, 0\ns_cbranch_scc1 %s\ns_branch %s" % (lp, lb))
    for (ls, lb) in rels:
        a("%s:\nbuffer_wbl2 sc1\ns_waitcnt vmcnt(0)\ns_branch %s" % (ls, lb))
    sRET = 44
    for (p, sm, qk, hs), (lr, users) in rare.items():
        for rid, (lj, lb) in enumerate(users): a("%s:\ns_mov_b32 s%d, %d\ns_branch %s" % (lj, sRET, rid, lr))
        a(lr + ":\ns_nop 7\ns_nop 7")
        for qb in range(4 // sm):
            cur = qregs(S[p], sm, qb, hs); d, f = vX, vX + 2
            if not cur: continue
            for x in maxtree(d, cur) + xlane("v_max_f32", [d], [d + 1]): a(x)
            a("v_max_f32 v%d, 0, v%d\nv_exp_f32 v%d, -v%d" % (d, d, f, d))
            nx = qregs(S[1 - p], qk, qb) if qb < 4 // qk else []
            for r in cur + [NM + 4 * qb + j for j in range(4)] + nx: a("v_sub_f32 v%d, v%d, v%d" % (r, r, d))
            a("v_mul_f32 v%d, v%d, v%d" % (vL[qb], vL[qb], f))
            for j in range(0, 32, 4):
                for q in range(4): a("v_accvgpr_read_b32 v%d, a%d" % (TM + q, O + qb * 32 + j + q))
                for q in range(4): a("v_mul_f32 v%d, v%d, v%d" % (TM + q, TM + q, f))
                for q in range(4): a("v_accvgpr_write_b32 a%d, v%d" % (O + qb * 32 + j + q, TM + q))
        for q in live(sm, hs):
            for n in range(8 * q, 8 * q + 8): a(ex(p, n))
            for j in range(4 * q, 4 * q + 4): a(cv(p, j))
        a("s_nop 1")
        for q in live(sm, hs): a(summ(p, sm, q))
        a("s_nop 7")
        for rid, (lj, lb) in enumerate(users):
            if rid < len(users) - 1: a("s_cmp_eq_u32 s%d, %d\ns_cbranch_scc1 %s" % (sRET, rid, lb))
            else: a("s_branch %s" % lb)
    a.add_kernel(name, 512, 102, 256)
    a.launch(name, 256, 256, 163840)
```

```python
from gen_common import *
from sched import Sched, isvm
from pack import Gaps, cost as gcost
import re as _re
MF16 = "v_mfma_f32_16x16x32_bf16"
MFH = "v_mfma_f32_16x16x16_bf16"
pX, pWQKV, pWO0, pC, pWQ, pWUK, pWUV, pBWO, pGATE, pDBG, pWS = 36, 38, 40, 44, 46, 48, 50, 52, 54, 58, 60
pWO = 58
NEG = "0xff800000"
THRESH = fbits(2.0 ** 48)
WSL = (98304, 131072)
LDS_G = WSL[0] + 24576
def aslot(g): return ((g + 2) % 3) * 32768
def flat(G): return [x for g in G for x in (g if isinstance(g, list) else [g])]
def soft(G):
    out = []
    for g in G:
        if any(x.startswith("s_cselect") for x in g):
            k = [j for j, x in enumerate(g) if x.startswith("s_cmp") or x.startswith("s_bitcmp")][0]
            out += g[:k] + [g[k:]]
        else: out += g
    return out

def gen2(a, name="p1_kernel", ts=False, PF=1, PD=8, WP=2, TS2=0, TS3=0, DFR=12, LSPL=110, SLP=4, QSL=(4, 6, 5), XSL=3, PDW=6, GPUB=12, VERB=0, NE=8, GL="", PBL=2, PSP=28, QBL=5, PDK=6, NKV=8, SE=2.4, ST1="", ST2="", WW=44, QW=34, KPF=((1, -1), (3, 0), (5, 1), (7, 2)), CU=0, XC=(), PFS=(2, 3, 5, 4), EARLY1=0, F1=56, WPG=(1, 3, 5, 7), QPF=1, AP=(("c", 1), "cu", None, "xu"), FORCE=0, ST0=4, EXT=0, ND=10, OST="", PKV=1, XQ=0, XP=0, T15=1, WSP=(0, 4, 2), CR2=0, HOLD=None, CM=1, PB=0,
         STAMPS=("start", "q", "attn", "mid", "s17")):
    XL2 = 0; PRE0 = 0; endlabel = None; SENT = 0
    a.begin_kernel(name)
    T = TS(a, ts, 0, base=72)
    def st_(nm):
        if nm in STAMPS: T.stamp(STAMPS.index(nm))
    done = a.label("fdone")
    lAttn, lRare = a.label("attn"), a.label("rarecode")
    sWV = 3
    SA, SW, SX, SO, SD = 4, 8, 12, 16, 40
    sH, sI, sT0, sT1, sT2 = 20, 21, 22, 23, 24
    sAS, sAS2, sWS, sXS, sAM, sWM, sXM, sCNT, sOK, sDS, sSC = 25, 26, 27, 28, 29, 30, 31, 32, 33, 34, 35
    sQL, sQS, sU, sOA, sAD, sWD, sOJ, sVD, sFA, sGR = 92, 93, 94, 95, 96, 97, 56, 57, 63, 99
    sKO, sVO, sW4, sW8, sTH, sT = 48, 49, 50, 51, 54, 32
    vL16 = 1
    vAO, vWO, vXO = (2, 3, 4, 5), (6, 7, 8, 9), (10, 11)
    vAR, vWR, vXR = (12, 13), tuple(range(14, 22)), (22, 23, 24)
    vGR, vGA2, GC = 25, (26, 27), 92
    QS = (28, 44); WR, NWR = 60, 8; TT, PK = 96, 104
    KS = (128, 160)
    vFO, vONE, vPFD, vTS, vW12, vPL, vPLO = 120, 121, 122, 123, 124, 125, 126
    sWS2, sOK2, sHL = 62, 98, 55
    QA = 128
    t2 = [0]
    def bar(waitstr):
        if TS2:
            n = t2[0]; t2[0] += 1
            if n > 0: a("v_writelane_b32 v123, s72, %d\nv_writelane_b32 v123, s74, %d" % (2 * n - 2, 2 * n - 1))
            a("s_memtime s[72:73]")
        a(waitstr + "\ns_barrier")
        if TS2: a("s_memtime s[74:75]")
    a("s_cmp_ge_u32 s2, 256\ns_cbranch_scc1 %s" % done)
    st_("start")
    a("s_load_dwordx16 s[36:51], s[0:1], 0\ns_load_dwordx8 s[52:59], s[0:1], 64\ns_load_dwordx2 s[60:61], s[0:1], 96")
    a("v_lshrrev_b32 v30, 6, v0\nv_and_b32 v0, 63, v0\nv_readfirstlane_b32 s%d, v30" % sWV)
    a("s_and_b32 s%d, s2, 7\ns_lshl_b32 s%d, s%d, 2\ns_lshr_b32 s%d, s2, 3\ns_and_b32 s%d, s%d, 3\ns_add_u32 s%d, s%d, s%d" % (sH, sH, sH, sT0, sT0, sT0, sH, sH, sT0))
    a("s_lshr_b32 s%d, s2, 5" % sI)
    a("v_lshlrev_b32 v%d, 4, v0" % vL16)
    a("v_lshrrev_b32 v30, 3, v0\nv_lshrrev_b32 v31, 4, v0\nv_and_b32 v32, 7, v0")
    a("v_xor_b32 v33, v31, v32\nv_lshlrev_b32 v33, 4, v33\nv_lshl_add_u32 v%d, v30, 10, v33" % vAO[0])
    a("v_add_u32 v%d, %d, v%d\nv_xor_b32 v33, 64, v%d\nv_add_u32 v%d, %d, v33\nv_add_u32 v%d, %d, v33" % (vAO[2], 2 * 7168, vAO[0], vAO[0], vAO[1], 7168, vAO[3], 3 * 7168))
    a("v_and_b32 v33, 15, v0\nv_lshlrev_b32 v34, 2, v31\nv_xor_b32 v33, v33, v34\nv_lshlrev_b32 v33, 4, v33\nv_lshl_add_u32 v%d, v31, 13, v33" % vWO[0])
    a("v_add_u32 v%d, %d, v%d\nv_xor_b32 v33, 32, v%d\nv_add_u32 v%d, %d, v33\nv_add_u32 v%d, %d, v33" % (vWO[1], 31744, vWO[0], vWO[0], vWO[2], 2 * 31744, vWO[3], 3 * 31744))
    a("s_sub_u32 s%d, 15, s%d\ns_bitcmp1_b32 s%d, 0\ns_cselect_b32 s%d, s%d, s%d\ns_lshl_b32 s%d, s%d, 1\ns_lshr_b32 s%d, s%d, 1\ns_add_u32 s%d, s%d, s%d" % (sT0, sI, sWV, sT0, sT0, sI, sT0, sT0, sT1, sWV, sT0, sT0, sT1))
    a("s_lshl_b32 s%d, s%d, 16\ns_add_u32 s%d, s%d, 32768" % (sAS, sT0, sAS2, sAS))
    a("s_lshl_b32 s%d, s%d, 13\ns_mov_b32 s%d, s%d" % (sAM, sWV, sWM, sAM))
    a("s_and_b32 s%d, s%d, 1\ns_lshl_b32 s%d, s%d, 18\ns_lshl_b32 s%d, s%d, 8\ns_add_u32 s%d, s%d, s%d" % (sT0, sWV, sT0, sT0, sWS, sH, sWS, sWS, sT0))
    a("s_and_b32 s%d, s2, 31\ns_add_u32 s%d, s%d, 0x20000" % (sU, sWS2, sWS))
    a("v_and_b32 v33, 15, v0\nv_lshrrev_b32 v34, 1, v33\nv_xor_b32 v34, v34, v31\nv_lshlrev_b32 v34, 4, v34\nv_lshl_add_u32 v40, v33, 7, v34")
    a("s_and_b32 s%d, s%d, 1\ns_lshl_b32 s%d, s%d, 14\ns_add_u32 s%d, s%d, %d" % (sT0, sWV, sT0, sT0, sT0, sT0, aslot(0)))
    a("v_add_u32 v%d, s%d, v40\nv_xor_b32 v%d, 64, v%d" % (vAR[0], sT0, vAR[1], vAR[0]))
    a("v_lshrrev_b32 v35, 2, v0\nv_and_b32 v35, 3, v35\nv_lshl_add_u32 v36, v31, 3, v35")
    a("v_bfe_u32 v37, v0, 1, 1\nv_and_b32 v34, 1, v31\nv_lshl_add_u32 v37, v34, 1, v37\nv_and_b32 v38, 1, v0\nv_lshlrev_b32 v38, 3, v38")
    a("v_lshlrev_b32 v39, 2, v35\nv_xor_b32 v39, v39, v37\nv_lshlrev_b32 v39, 4, v39\nv_lshl_add_u32 v39, v36, 8, v39")
    a("s_lshr_b32 s%d, s%d, 1\ns_lshl_b32 s%d, s%d, 14\ns_add_u32 s%d, s%d, %d\nv_add3_u32 v39, v39, v38, s%d" % (sWD, sWV, sWD, sWD, sT0, sWD, WSL[0], sT0))
    for k in range(8): a("v_xor_b32 v%d, %d, v39" % (vWR[k], 32 * k))
    a("s_lshr_b32 s%d, s2, 3\ns_lshl_b32 s%d, s%d, 2\ns_add_u32 s%d, s%d, s%d\nv_lshlrev_b32 v127, 7, v33\nv_add_lshl_u32 v127, v127, s%d, 7" % (sT0, sT0, sT0, sT0, sT0, sWV, sT0))
    a("s_lshr_b32 s%d, s2, 3\ns_lshl_b32 s%d, s%d, 1\ns_and_b32 s%d, s%d, 1\ns_add_u32 s%d, s%d, s%d\ns_lshl_b32 s%d, s%d, 14\ns_and_b32 s%d, s2, 7\ns_lshl_b32 s%d, s%d, 10\ns_add_u32 s%d, s%d, s%d" % (sT0, sT0, sT0, sT1, sWV, sT0, sT0, sT1, sT0, sT0, sT1, sT1, sT1, sT0, sT0, sT1))
    a("v_lshrrev_b32 v42, 3, v33\nv_lshlrev_b32 v42, 13, v42\nv_lshl_add_u32 v42, v32, 7, v42\nv_add_u32 v55, s%d, v42" % sT0)
    a("s_lshl_b32 s%d, s2, 2\ns_add_u32 s%d, s%d, s%d\ns_lshl_b32 s%d, s%d, 4\nv_add_lshl_u32 v50, v33, s%d, 7" % (sT0, sT0, sT0, sWV, sT0, sT0, sT0))
    a("s_waitcnt lgkmcnt(0)")
    a("s_mov_b32 s100, s56\ns_mov_b32 s101, s57")
    srd(a, SA, pC, 0x200000)
    a("s_cmp_lt_u32 s%d, 2\ns_cselect_b32 s%d, s%d, s%d\ns_cselect_b32 s%d, s%d, s%d\ns_mov_b32 s%d, 0x400000\ns_mov_b32 s%d, 0x20000" % (sWV, SW, pWUK, pWUV, SW + 1, pWUK + 1, pWUV + 1, SW + 2, SW + 3))
    def dgrp(m0s, m0i, vo, srd_, so, stp, nd):
        G = ["s_add_u32 m0, s%d, %d" % (m0s, m0i)]
        G += ["buffer_load_dwordx4 v%d, s[%d:%d], s%d offen offset:%d %s lds ; need:%d" % (v, srd_, srd_ + 3, so, n * 1024, GL, nd) for n, v in enumerate(vo)]
        G.append("s_add_u32 s%d, s%d, %d" % (so, so, stp))
        return G
    def fixm0(G):
        out = []
        for k, x in enumerate(G):
            out.append(x)
            if x.startswith("s_add_u32 m0"):
                if len(out) > 1 and out[-2].startswith("s_add_u32 s"): out[-1], out[-2] = out[-2], out[-1]
                else: out.append("s_nop 0")
        return out
    def dma_act(g): return fixm0(dgrp(sAM, aslot(g), vAO, SA, sAS, 128, g) + dgrp(sAM, aslot(g) + 4096, vAO, SA, sAS2, 128, g))
    def dma_w(g):
        G = dgrp(sWM, WSL[g % 2], vWO, SW, sWS, 0x80000, g)
        if g < 8: G += dgrp(sWM, WSL[g % 2] + 4096, vWO, SW, sWS2, 0x80000, g)
        else: G += dgrp(sXM, WSL[g % 2] + 16384, vXO, SX, sXS, 64 * 3072, g)
        return fixm0(G)
    st_("d0")
    D0 = [dgrp(sWM, WSL[0], vWO, SW, sWS, 0x80000, 0), dgrp(sAM, aslot(0), vAO, SA, sAS, 128, 0), dgrp(sWM, WSL[0] + 4096, vWO, SW, sWS2, 0x80000, 0), dgrp(sAM, aslot(0) + 4096, vAO, SA, sAS2, 128, 0)]
    for x in fixm0(flat(D0[:ST0])): a(x.split(";")[0])
    st_("d1")
    def pfp(p):
        L = []
        for k, per_ in enumerate(PFS):
            if per_ == p: L.append("global_load_dword v122, v%d, s[%d:%d]" % (50 + k, ((pX, pWQ, pWQ, pWQKV)[k]), ((pX, pWQ, pWQ, pWQKV)[k]) + 1))
        for c_, per_ in KPF:
            if per_ == p: L += ["s_mov_b32 s%d, 0x%x" % (sSC, c_ * 0x80000), "buffer_load_dword v122, v55, s[%d:%d], s%d offen" % (SW, SW + 3, sSC)]
        if CU == p: L.append("buffer_load_dword v122, v50, s[%d:%d], 0 offen" % (SA, SA + 3))
        for k, per_ in enumerate(XC):
            if per_ == p: L.append("global_load_dword v122, v54, s[%d:%d] offset:%d" % (pX, pX + 1, 256 * k))
        return L
    lpc2 = a.label("pc")
    a("s_getpc_b64 s[0:1]\n%s:" % lpc2)
    a("v_min_u32 v127, %s-%s, v127\nglobal_load_dword v122, v127, s[0:1]" % (lRare, lpc2))
    for x in pfp(-1): a(x)
    n0_ = 1 + sum(1 for x in pfp(-1) if isvm(x))
    srd(a, SO, pWS, WS_SIZE); srd(a, SX, pGATE, 1024)
    a("s_mov_b32 s98, s%d\ns_mov_b32 s99, s%d" % (pWO0, pWO0 + 1))
    srd(a, SD, pDBG, 256)
    a("s_mov_b32 s%d, s98\ns_mov_b32 s%d, s99" % (pWO, pWO + 1))
    DF = []
    def d(t): DF.extend(t.split("\n"))
    d("s_lshl_b32 s%d, s%d, 6\nv_add_u32 v%d, s%d, v0\nv_lshlrev_b32 v%d, 12, v%d\nv_min_u32 v%d, 1, v%d\nv_lshlrev_b32 v%d, 29, v%d" % (sT0, sWV, vFO, sT0, vFO, vFO, vONE, vFO, vONE, vONE))
    d("s_getreg_b32 s%d, hwreg(HW_REG_XCC_ID, 0, 4)\ns_mul_i32 s%d, s%d, s%d\ns_lshl_b32 s%d, s%d, 8\ns_add_u32 s%d, s%d, s%d\ns_lshl_b32 s%d, s%d, 8\ns_add_u32 s%d, s%d, 1" % (sT0, sT1, sT0, sT0, sT1, sT1, sT1, sT1, sT0, sT1, sT1, sFA, sT1))
    d("v_mov_b32 v125, s%d\ns_lshl_b32 s%d, s%d, 3\ns_and_b32 s%d, s2, 7\ns_lshl_b32 s%d, s%d, 2\ns_lshl_b32 s%d, s%d, 2" % (sFA, sFA, sFA, sGR, sGR, sGR, sCNT, sH))
    d("v_and_b32 v126, 31, v0\ns_lshl_b32 s%d, s%d, 12\nv_lshl_add_u32 v126, v126, 2, s%d" % (sT0, sWV, sT0))
    d("s_min_u32 s%d, s%d, 1\ns_lshl_b32 s%d, s%d, 29\nv_and_b32 v124, 7, v0\nv_lshl_add_u32 v124, v124, 2, s%d" % (sT0, sWV, sT0, sT0, sT0))
    d("s_lshl_b32 s%d, s%d, 7\ns_add_u32 s%d, s%d, 0x%x\ns_lshl_b32 s%d, s%d, 2\ns_add_u32 s%d, s%d, s%d" % (sHL, sH, sHL, sHL, OFF_FL + 128 * 128, sU, sI, sU, sU, sHL))
    NDF = len(DF)
    d("v_and_b32 v41, 15, v0")
    d("s_lshr_b32 s%d, s2, 3\ns_lshl_b32 s%d, s%d, 2\ns_add_u32 s%d, s%d, s%d\ns_lshl_b32 s%d, s%d, 14\ns_and_b32 s%d, s2, 7\ns_lshl_b32 s%d, s%d, 10\ns_add_u32 s%d, s%d, s%d" % (sT0, sT0, sT0, sT0, sT0, sWV, sT1, sT0, sT2, sT2, sT2, sT1, sT1, sT2))
    d("v_lshrrev_b32 v42, 3, v41\nv_lshlrev_b32 v42, 13, v42\nv_lshl_add_u32 v42, v32, 7, v42\nv_add_u32 v51, s%d, v42\nv_add_u32 v52, 0x200000, v51" % sT1)
    d("s_lshl_b32 s%d, s%d, 14\nv_and_b32 v42, 1, v31\nv_lshlrev_b32 v42, 7, v42\nv_lshl_add_u32 v42, v41, 10, v42\nv_add_u32 v54, s%d, v42" % (sT1, sT0, sT1))
    d("s_mul_i32 s%d, s%d, %d\ns_lshr_b32 s%d, s%d, 3\ns_add_u32 s%d, s%d, s%d\nv_min_u32 v41, 11, v41\nv_lshl_add_u32 v53, v41, 10, s%d" % (sT0, sT0, 4 * 3072, sT2, sT2, sT0, sT0, sT2, sT0))
    d("v_lshrrev_b32 v39, 1, v35\nv_lshlrev_b32 v39, 2, v39\nv_xor_b32 v39, v39, v37\nv_lshlrev_b32 v39, 4, v39\nv_lshl_add_u32 v39, v36, 7, v39\nv_add_u32 v39, v39, v38\nv_add_u32 v39, %d, v39" % (WSL[0] + 16384))
    for k in range(3): d("v_xor_b32 v%d, %d, v39" % (vXR[k], 32 * k))
    d("s_and_b32 s%d, s%d, 3\ns_and_b32 s%d, s2, 7\ns_lshl_b32 s%d, s%d, 7" % (sT0, sH, sT1, sT1, sT1))
    d("s_lshl_b32 s%d, s%d, 5\ns_add_u32 s%d, s%d, s%d\ns_add_u32 s%d, s%d, %d" % (sT2, sT0, sT2, sT2, sT1, sT2, sT2, 2048 - 64))
    d("s_lshr_b32 s%d, s%d, 1\ns_lshl_b32 s%d, s%d, 10\ns_add_u32 s%d, s%d, s%d\ns_and_b32 s%d, s%d, 1\ns_lshl_b32 s%d, s%d, 6\ns_add_u32 s%d, s%d, s%d" % (sDS, sT0, sDS, sDS, sT1, sT1, sDS, sDS, sT0, sDS, sDS, sT1, sT1, sDS))
    d("v_and_b32 v33, 1, v31\nv_lshlrev_b32 v33, 2, v33\nv_xor_b32 v33, v33, v32\nv_mul_u32_u24 v34, 3072, v30\nv_mov_b32 v36, s%d\nv_mov_b32 v37, s%d\nv_mov_b32 v38, 0x1000000" % (sT1, sT2))
    for n in range(2):
        if n: d("v_xor_b32 v33, 2, v33\nv_add_u32 v34, %d, v34" % (24576 - 1024))
        d("v_cmp_gt_u32 vcc, 4, v33\nv_cmp_gt_u32 s[66:67], 6, v33\nv_lshl_add_u32 v35, v33, 4, v34\nv_cndmask_b32 v39, v37, v36, vcc\nv_cndmask_b32 v39, v38, v39, s[66:67]\nv_add_u32 v%d, v35, v39" % vXO[n])
    d("s_lshl_b32 s%d, s%d, 11\ns_lshl_b32 s%d, s%d, 13\ns_add_u32 s%d, s%d, s%d\ns_add_u32 s%d, s%d, %d" % (sT0, sT0, sT1, sWV, sT0, sT0, sT1, sT0, sT0, aslot(8)))
    d("v_add_u32 v%d, s%d, v40\nv_xor_b32 v%d, 64, v%d\nv_lshlrev_b32 v%d, 4, v31\nv_add_u32 v%d, %d, v%d" % (vGA2[0], sT0, vGA2[1], vGA2[0], vGR, vGR, LDS_G, vGR))
    d("s_lshl_b32 s%d, s%d, 2\ns_add_u32 s%d, s%d, s%d\ns_sub_u32 s%d, 60, s%d\ns_add_u32 s%d, s%d, s%d" % (sT1, sI, sQS, sT1, sWV, sQL, sT1, sQL, sQL, sWV))
    d("s_lshr_b32 s%d, s%d, 1\ns_lshl_b32 s%d, s%d, 5\ns_add_u32 s%d, s%d, s%d\ns_add_u32 s%d, s%d, 44\ns_lshl_b32 s%d, s%d, 19" % (sT0, sWV, sT0, sT0, sT0, sT0, sH, sT0, sT0, sOK, sT0))
    d("s_and_b32 s%d, s%d, 1\ns_lshl_b32 s%d, s%d, 1\ns_add_u32 s%d, s%d, s%d\ns_lshl_b32 s%d, s%d, 14\ns_add_u32 s%d, s%d, s%d" % (sT0, sWV, sT1, sI, sT0, sT0, sT1, sT0, sT0, sOK, sOK, sT0))
    d("s_lshl_b32 s%d, s%d, 16\ns_sub_u32 s%d, %d, s%d\ns_add_u32 s%d, s%d, 8192" % (sT0, sI, sOJ, 60 * 8192 - 4096, sT0, sOK2, sOK))
    d("s_lshl_b32 s%d, s%d, 13\ns_and_b32 s%d, s%d, 1\ns_lshl_b32 s%d, s%d, 14\ns_sub_u32 s%d, s%d, s%d\ns_add_u32 s%d, s%d, %d" % (sT0, sWV, sT1, sWV, sT1, sT1, sAD, sT0, sT1, sAD, sAD, aslot(8) - aslot(7)))
    PLA = "buffer_atomic_add v125, v%d, s[%d:%d], s%d offen sc1" % (vFO, SD, SD + 3, sCNT)

    def ub(j): return ((j + 24) % 32 if j < 8 else j + 8 if j < 16 else j - 16) * 8
    AA = 192
    def areg(g, ks, n):
        if g < 8: return vr(128 + (g % 2) * 64 + ks * 32 + 4 * n, 4)
        return vr(QS[ks] + 4 * n, 4) if g % 2 == 0 else ar(128 + ks * 16 + 4 * n, 4)
    def gcr(ks): return vr(GC, 4) if ks == 0 else ar(244, 4)
    def wofs(g): return (g % 2) * 32768
    def xa(g, ks, R=vAR):
        if g == 7: return "v_add_u32 v%d, s%d, v%d" % (R[ks], sAD, R[ks])
        d = aslot(g + 1) - aslot(g)
        return ("v_add_u32 v%d, 0x%x, v%d" % (R[ks], d, R[ks])) if d > 0 else ("v_subrev_u32 v%d, 0x%x, v%d" % (R[ks], -d, R[ks]))
    def rd_act(g, ks):
        return ["ds_read_b128 %s, v%d offset:%d" % (areg(g, ks, n), vAR[ks], n * 2048) for n in range(8 if g < 8 else 4)]
    def rd_w(g, ks, wf, slot):
        r = WR + 4 * (slot % NWR)
        if wf < 8: return ["ds_read_b64_tr_b16 %s, v%d offset:%d" % (vr(r + 2 * rd_, 2), vWR[wf], wofs(g) + ks * 8192 + rd_ * 1024) for rd_ in range(2)]
        if wf < 11: return ["ds_read_b64_tr_b16 %s, v%d offset:%d" % (vr(r + 2 * rd_, 2), vXR[wf - 8], wofs(g) + ks * 4096 + rd_ * 512) for rd_ in range(2)]
        return ["ds_read_b128 %s, v%d offset:%d" % (vr(r, 4), vGR, ((g - 8) * 2 + ks) * 64), "ds_read_b128 %s, v%d" % (gcr(ks), vGA2[ks])] + ([xa(g, ks, vGA2)] if g < 15 else [])
    def mfs(g, ks, wf, slot, var):
        w = vr(WR + 4 * (slot % NWR), 4); first = (g % 8 == 0 and ks == 0)
        cb, tc = (wf % 8) // 2, wf % 2
        if wf == 11: return ["%s %s, %s, %s, %s" % (MF16, ar(AA + 48, 4), w, gcr(ks), "0" if first else ar(AA + 48, 4))]
        M = []
        for n in range(8 if g < 8 else 4):
            rb, tr = n // 2, n % 2
            x = areg(g, ks, n)
            sw = (var == "V") or wf == 10
            tb, ta = (tc, tr) if sw else (tr, tc)
            if g < 8: acc = ar(ub((rb // 2) * 16 + cb * 4 + (rb % 2) * 2 + tb) + ta * 4, 4)
            elif wf < 8: acc = vr(QA + ((rb * 4 + cb) * 2 + tr) * 8 + tc * 4, 4)
            elif wf < 10: acc = ar(AA + n * 8 + tc * 4, 4)
            else: acc = ar(AA + 32 + n * 4, 4)
            M.append("%s %s, %s, %s, %s" % (MF16, acc, x if sw else w, w if sw else x, "0" if first else acc))
        return M
    def order(g, var):
        nw = range(8) if g < 8 else (8, 9, 10, 0, 11, 1, 2, 3, 4, 5, 6, 7) if g == 15 else (0, 1, 2, 3, 4, 5, 11, 6, 7, 8, 9, 10)
        return [(ks, wf) for wf in nw for ks in range(2)]
    def build(g0, var):
        fr = [(g, ks, wf) for g in range(g0, g0 + 8) for (ks, wf) in order(g, var)]
        M = []; fm = []; tg = []; PD_ = PDK if g0 == 0 else PDW
        for k, (g, ks, wf) in enumerate(fr):
            if ks == 0:
                m0_ = mfs(g, 0, wf, k, var)
                fm += [len(M), len(M)]; tg += [len(M), len(M) + len(m0_)]
                for n, (x, y) in enumerate(zip(m0_, mfs(g, 1, wf, k + 1, var))): M += [x, y] if (n % 2 == 0 or g == g0) else [y, x]
        S_ = Sched(M); n = len(M)
        look = [(8, k % 2, k // 2) for k in range(PDW)] if g0 == 0 else []
        allf = fr + look
        cs = {}
        for k, (g, ks, wf) in enumerate(allf): cs.setdefault(g, k)
        bar_m = {g: tg[cs[g] - PD_ + 1] for g in cs if g > g0}
        for g, m in bar_m.items(): S_.bars[m] = g
        items = []
        for k in range(PD_, len(allf)):
            g, ks, wf = allf[k]
            t = tg[k - PD_]; e = bar_m.get(g, 0); use = fm[k] if k < len(fr) else n + 1 + (k - len(fr))
            if k == cs[g] and g == 8: items += [(max(t, e), 0, j, ("v_subrev_u32 v%d, s%d, v%d" % (r, sWD, r), t, e, None)) for j, r in enumerate(vWR)]
            items += [(max(t, e), 1 if k == cs[g] else 3, 4 * k + j, (x, t, e, use if x.startswith("ds_") else None)) for j, x in enumerate(rd_w(g, ks, wf, k))]
        for g in cs:
            for ks in range(2):
                if g == g0: continue
                R = rd_act(g, ks) + ([xa(g, ks)] if g < 15 else [])
                u0 = fm[cs[g]] if cs[g] < len(fr) else n
                for j, x in enumerate(R):
                    e = bar_m[g]; t = e + 2 + (3 if g0 == 0 else 2) * j + ks + (8 if g == 8 else 0)
                    use = u0 if x.startswith("ds_") else None
                    items.append((max(t, e), 2, j, (x, t, e, use)))
        items.sort(key=lambda z: z[:3])
        S_.rq = [z[3] for z in items]
        S_.waitpts = [fm[k] for k in range(0, len(fr), 2)]
        if g0: S_.backlog = QBL
        S_.place_reads()
        for g_ in range(n):
            for u_ in S_.use[g_].values():
                if u_ is not None and u_ < n:
                    gg = max(g for g in range(g0, g0 + 8) if fm[cs[g]] <= u_)
                    assert g_ < bar_m.get(gg + 1, 99999), (g_, u_)
        return S_, {g: fm[cs[g]] for g in range(g0, g0 + 8)}, bar_m, fm
    def pack(areg, pk, scale=None):
        t = TT
        G = ["v_accvgpr_read_b32 v%d, a%d" % (t + j, areg + j) for j in range(8)]
        if scale is not None: G += ["v_mul_f32 v%d, s%d, v%d" % (t + j, scale, t + j) for j in range(8)]
        G += ["v_cvt_pk_bf16_f32 v%d, v%d, v%d" % (pk + j, t + 2 * j, t + 2 * j + 1) for j in range(4)]
        return G
    def kv_unit(j, nd=None):
        cb, rb, tb = (j % 16) // 4, (j // 2) % 2, j % 2
        pk = PK + 4 * (j % 4)
        G = pack(ub(j), pk) + ["buffer_store_dwordx4 %s, v%d, s[%d:%d], s%d offen offset:%d%s" % (vr(pk, 4), vL16, SO, SO + 3, (sOK, sOK2)[rb], (cb % 2) * 2048 + tb * 1024, " %s ; need:%d" % (ST1, nd) if nd else " " + ST2)]
        if j == 15: G += ["s_add_u32 s%d, s%d, s%d" % (sOK, sOK, sOJ), "s_add_u32 s%d, s%d, s%d" % (sOK2, sOK2, sOJ)]
        elif j % 16 == 7: G += ["s_add_u32 s%d, s%d, 4096" % (sOK, sOK), "s_add_u32 s%d, s%d, 4096" % (sOK2, sOK2)]
        return G
    qa_setup = [["s_mov_b32 s%d, s%d" % (SA, pX), "s_mov_b32 s%d, s%d" % (SA + 1, pX + 1),
                 "s_lshl_b32 s%d, s%d, 14" % (sT0, sWV), "s_lshl_b32 s%d, s%d, 15" % (sAS, sQL), "s_lshl_b32 s%d, s%d, 15" % (sAS2, sQS),
                 "s_sub_u32 s%d, s%d, s%d" % (sAS, sAS, sT0), "s_sub_u32 s%d, s%d, s%d" % (sAS2, sAS2, sT0),
                 "s_lshl_b32 s%d, s%d, 1" % (sT0, sT0), "s_sub_u32 s%d, %d, s%d" % (sT0, 6 * 16384, sT0),
                 "v_add_u32 v%d, s%d, v%d" % (vAO[2], sT0, vAO[2]), "v_add_u32 v%d, s%d, v%d" % (vAO[3], sT0, vAO[3])]]
    qw_setup = [["s_mov_b32 m0, %d" % LDS_G, "s_mov_b32 s%d, s%d" % (SW, pWQ), "buffer_load_dwordx4 v%d, s[%d:%d], 0 offen lds ; need:8" % (vL16, SX, SX + 3), "s_mov_b32 s%d, s%d" % (SW + 1, pWQ + 1)],
                ["s_lshl_b32 s%d, s%d, 17" % (sT0, sWV), "s_lshl_b32 s%d, s%d, 8" % (sWS, sH), "s_add_u32 s%d, s%d, s%d" % (sWS, sWS, sT0), "s_lshl_b32 s%d, s%d, 12" % (sWM, sWV)],
                ["s_mov_b32 s%d, s%d" % (SX, pWQKV), "s_mov_b32 s%d, s%d" % (SX + 1, pWQKV + 1), "s_lshl_b32 s%d, s%d, 11" % (sXM, sWV), "s_mul_i32 s%d, s%d, %d" % (sXS, sWV, 16 * 3072)],
                ["s_mov_b32 s%d, 0x180000" % (SX + 2)]]
    at_setup = [["v_cmp_ne_u32 vcc, s%d, v125" % sFA, "v_mov_b32 v%d, 1" % vFO, "s_nop 0", "s_lshr_b32 s%d, vcc_lo, s%d" % (sT0, sGR), "s_and_b32 s%d, s%d, 15" % (sT0, sT0)],
                ["s_cmp_eq_u32 s%d, 0" % sT0, "s_cselect_b32 s%d, 1, s%d" % (sFA, sWV)],
                ["s_cmp_eq_u32 s%d, 0" % sWV, "s_cselect_b32 s46, 1, 0", "s_cselect_b32 s47, 2, 0"],
                ["s_lshl_b32 s%d, s%d, 12" % (sW4, sWV), "s_lshl_b32 s%d, s%d, 13" % (sW8, sWV), "s_lshl_b32 s%d, s%d, 19" % (sT0, sH)],
                ["s_lshl_b32 s%d, s%d, 15" % (sVD, sI), "s_add_u32 s%d, s%d, s%d" % (sT0, sT0, sVD)],
                ["s_add_u32 s%d, s%d, 0x%x" % (sKO, sT0, OFF_K), "s_add_u32 s%d, s%d, 0x%x" % (sVO, sT0, OFF_V), "s_mov_b32 s%d, %s" % (sTH, THRESH)]]
    sRA, sHP, sA0, sA1, sGB, sGA_, sGL_, sGS_, sP0, sP1_, sX0, sX1 = 36, 37, 38, 39, 64, 65, 66, 67, 68, 69, 70, 71
    sXO, sXR = 62, 95
    sFG, sFX, sRBK, sTIL = 96, 97, 60, 61
    late_setup = [["s_lshr_b32 s%d, s%d, 3" % (sX1, sH), "s_lshl_b32 s%d, s%d, 3" % (sFG, sX1), "s_add_u32 s%d, s%d, s%d" % (sFG, sFG, sI), "s_lshl_b32 s%d, s%d, 5" % (sFG, sFG),
                 "s_and_b32 s%d, s%d, 7" % (sX0, sH), "s_add_u32 s%d, s%d, s%d" % (sFG, sFG, sX0), "s_lshl_b32 s%d, s%d, 2" % (sFG, sFG), "s_add_u32 s%d, s%d, 0x%x" % (sFG, sFG, OFF_FL),
                 "s_sub_u32 s%d, 15, s%d" % (sX0, sI)], ["s_bitcmp1_b32 s2, 0", "s_cselect_b32 s%d, s%d, s%d" % (sRBK, sX0, sI)], ["s_lshl_b32 s%d, s%d, 2" % (sFX, sRBK),
                 "s_and_b32 s%d, s%d, 3" % (sX0, sH), "s_add_u32 s%d, s%d, s%d" % (sTIL, sFX, sX0), "s_lshl_b32 s%d, s%d, 5" % (sFX, sTIL), "s_add_u32 s%d, s%d, s%d" % (sFX, sFX, sX1),
                 "s_lshl_b32 s%d, s%d, 2" % (sFX, sFX), "s_add_u32 s%d, s%d, 0x%x" % (sFX, sFX, OFF_FL + 32 * 128)],
        ["s_bitcmp1_b32 s%d, 1" % sH, "s_cselect_b32 s%d, s%d, s%d" % (sRA, sQL, sQS)],
        ["s_and_b32 s%d, s%d, 1" % (sHP, sH), "s_lshr_b32 s%d, s%d, 1" % (sX0, sGR), "s_add_u32 s%d, s%d, s%d" % (sHP, sHP, sX0), "s_lshl_b32 s%d, s%d, 11" % (sGB, sGR), "s_add_u32 s%d, s%d, 0x%x" % (sGB, sGB, OFF_G)]]
    sTI = (sQL, sGS_, sQS, 45)
    late_setup.append(["s_lshl_b32 s%d, s%d, 7" % (sGA_, sRA), "s_add_u32 s%d, s%d, s%d" % (sGA_, sGA_, sGB), "s_mov_b32 s%d, s%d" % (sGL_, sGB)])
    for lo_, hi_ in ((sTI[0], sTI[1]), (sTI[2], sTI[3])):
        late_setup.append(["s_lshl_b32 s%d, s%d, 1" % (lo_, lo_), "s_sub_u32 s%d, s%d, s%d" % (lo_, lo_, sWV), "s_xor_b32 s%d, s%d, 7" % (hi_, lo_)])
    late_setup += [["s_lshr_b32 s%d, s%d, 2" % (sX0, sHP), "s_lshl_b32 s%d, s%d, 19" % (sX0, sX0), "s_and_b32 s%d, s%d, 3" % (sX1, sHP), "s_lshl_b32 s%d, s%d, 11" % (sX1, sX1),
         "s_add_u32 s%d, s%d, s%d" % (sX0, sX0, sX1), "s_lshl_b32 s%d, s%d, 13" % (sX1, sRA), "s_add_u32 s%d, s%d, s%d" % (sA0, sX0, sX1),
         "s_max_u32 s%d, s%d, 1" % (sX1, sRA), "s_sub_u32 s%d, s%d, 1" % (sX1, sX1), "s_lshl_b32 s%d, s%d, 13" % (sX1, sX1), "s_add_u32 s%d, s%d, s%d" % (sA1, sX0, sX1),
         "s_add_u32 s%d, s%d, %d" % (sA1, sA1, 4 * PH),
         "s_lshr_b32 s%d, s2, 3" % sX0, "s_lshl_b32 s%d, s%d, 2" % (sX0, sX0), "s_add_u32 s%d, s%d, s%d" % (sX0, sX0, sWV), "s_and_b32 s%d, s2, 6" % sX1,
         "s_lshl_b32 s%d, s%d, 6" % (sX1, sX1), "s_add_u32 s%d, s%d, s%d" % (sX0, sX0, sX1), "s_lshl_b32 s%d, s%d, 6" % (sP0, sX0), "s_lshl_b32 s%d, s%d, 3" % (sP1_, sX0),
         "s_mul_i32 s%d, s%d, %d" % (sXO, sTIL, 4 * 49152), "s_add_u32 s%d, s%d, s%d" % (sXO, sXO, sW4), "s_add_u32 s%d, s%d, 0x%x" % (sXO, sXO, OFF_X),
         "s_lshr_b32 s%d, s%d, 3" % (sXR, sH), "s_mul_i32 s%d, s%d, 49152" % (sXR, sXR), "s_add_u32 s%d, s%d, s%d" % (sXR, sXR, sXO),
         "s_add_u32 s%d, s%d, %d" % (sX0, sA0, 4 * PH), "s_add_u32 s%d, s%d, %d" % (sX1, sA0, 8 * PH), "s_add_u32 s%d, s%d, %d" % (sGB, sA1, 4 * PH)]]
    def ren(G, mp): return [[_re.sub(r"\bs(\d+)\b", lambda m_: "s%d" % mp.get(int(m_.group(1)), int(m_.group(1))), x) for x in g] for g in G]
    early = ren(late_setup[:3], {sFG: 64, sFX: 65})
    early += [["v_mov_b32 v28, 0"] + ["buffer_store_dword v28, v%d, s[%d:%d], s%d offen sc1 ; need:2" % (vONE, SO, SO + 3, r) for r in (64, 65, sU)]]
    SK, SV = SO, SO
    vK, vV = vL16, 2
    def dma(which, typ, par, srd_=None):
        so, sr_, base = (sKO, SK, 0) if which == "K" else (sVO, SV, 65536)
        if srd_ is not None: sr_ = srd_
        sw = sW4 if typ == 1 else sW8
        G = []
        for q in range(typ):
            g = ["s_add_u32 m0, s%d, %d" % (sw, base + par * 32768 + q * 4096)]
            g.append("s_add_u32 s%d, s%d, s%d" % (sDS, so, sw) if q == 0 else "s_add_u32 s%d, s%d, 4096" % (sDS, sDS))
            G.append(g)
            for o in range(4):
                G.append(["buffer_load_dwordx4 v%d, s[%d:%d], s%d offen offset:%d sc1 lds" % (vK, sr_, sr_ + 3, sDS, o * 1024)])
        return G
    def adv(which, typ):
        so = sKO if which == "K" else sVO
        return ["s_add_u32 s%d, s%d, %d" % (so, so, 16384 * typ)]
    spins = []
    vF1, vFA, vPO = 122, 251, 250
    sP1, sG1, sG2 = 45, 46, 47
    def poll_load(kind):
        if kind == 0: return "buffer_load_dword v125, v126, s[%d:%d], 0 offen sc1" % (SD, SD + 3)
        if kind == 1: return "buffer_load_dword v%d, v124, s[%d:%d], s%d offen sc1" % (vF1, SO, SO + 3, sHL)
        if kind == 4: return "buffer_load_dword v223, v220, s[%d:%d], s%d offen sc1" % (SO, SO + 3, sG2)
        return "buffer_load_dword v%d, v%d, s[%d:%d], s%d offen sc1" % (vFA, vPO, SO, SO + 3, sHL)
    def poll_cmp(kind):
        if kind == 0: return "v_and_b32 v%d, 0xff, v125\nv_cmp_gt_u32 vcc, s%d, v%d" % (vFO, sP1, vFO)
        return "v_cmp_gt_u32 vcc, s%d, v%d" % ((sG1, vF1) if kind == 1 else (sG2, vFA) if kind == 2 else (sG1, 223))
    def poll_check(kind):
        ls, lb = a.label("spin"), a.label("spun")
        a("%s\n%s %s\n%s:" % (poll_cmp(kind), "s_branch" if FORCE else "s_cbranch_vccnz", ls, lb))
        spins.append((ls, lb, kind))
    rels = []
    def release():
        ls, lb = a.label("rel"), a.label("reld")
        a("s_cmp_eq_u32 s%d, 0\ns_cbranch_scc1 %s\n%s:" % (sFA, ls, lb))
        rels.append((ls, lb))

    st_("setup")
    if EARLY1:
        for x in dma_w(1) + dma_act(1): a(x.split(";")[0])
    bar("s_waitcnt vmcnt(%d)" % (16 + n0_ if EARLY1 else n0_))
    st_("bar0")

    pre0 = rd_w(0, 0, 0, 0) + rd_w(0, 1, 0, 1) + rd_act(0, 0) + rd_act(0, 1) + [x for k in range(2, PDK) for x in rd_w(0, k % 2, k // 2, k)]
    use0 = [0] * 20 + [16 * (k // 2) for k in range(2, PDK) for _ in range(2)]
    for x in pre0: a(x)
    a(xa(0, 0)); a(xa(0, 1))
    lV = a.label("kvV"); lQ = a.label("qphase")
    a("s_cmp_ge_u32 s%d, 2\ns_cbranch_scc1 %s" % (sWV, lV))
    CRL = "global_load_dword v122, v127, s[0:1]"
    for var in ("K", "V"):
        if var == "V": a(lV + ":")
        t2[0] = 1
        S_, cm, bm, fm = build(0, var)
        if EARLY1: S_.place(dma_act(2), 20, bm[1] - 2)
        else:
            S_.place(dma_w(1) + dma_act(1), 0, F1)
            S_.place(dma_act(2) + pfp(0), F1, bm[1] - 2)
        for g in range(1, 9):
            b = bm[g]; e = bm.get(g + 1, S_.n + 96)
            Wn = (soft(qw_setup) if g == 7 else []) + dma_w(g + 1) + pfp(g)
            if g in (3, 5, 7): Wn = Wn + [CRL]
            if g == 2: Wn = Wn + [PLA]
            if g == 6: Wn = Wn + [poll_load(0) + " ; need:7", ["s_cmp_eq_u32 s%d, 0" % sWV, "s_cselect_b32 s%d, 8, 0" % sP1]]
            S_.place(Wn, b, b + (WW if g < 8 else 31))
            if g < 8: S_.place((flat(qa_setup) if g == 6 else []) + dma_act(g + 2) + (soft(at_setup) if g == 7 else []), b + WW, e - 8)
        S_.place(DF[:NDF] + soft(early), 2, bm[1] + 8)
        S_.place(DF[NDF:NDF + 23], bm[1] + 8, bm[2] - 4)
        S_.place(DF[NDF + 23:], bm[2], bm[4] - 4)
        S_.hooks[7] = lambda: poll_check(0)
        if NKV == 12:
            for cb in range(3):
                S_.place([x for j in range(4 * cb, 4 * cb + 4) for x in kv_unit(j, GPUB)], cm[7] + 32 * cb + 38, cm[7] + 32 * cb + 70 if cb < 2 else S_.n)
        else:
            mid_ = cm[7] + 38 + (90 * 4) // NKV
            S_.place([x for j in range(4) for x in kv_unit(j, GPUB)], cm[7] + 38, mid_)
            S_.place([x for j in range(4, NKV) for x in kv_unit(j, GPUB)], mid_, S_.n)
        vmh = S_.emit(a, bar, use0, [1] * 16 if EARLY1 else [])
        left = S_.left; nkv = S_.n
        if VERB: print("KV over", S_.over)
        if var == "K": a("s_branch %s" % lQ)
    a(lQ + ":")
    st_("q")
    use8 = [0 if u == nkv else 8 * ((u - nkv - 1) // 2) for u in left]
    t2[0] = 9
    S_, cm, bm, fm = build(8, "Q")
    per = cm[9] - cm[8]
    S_.place(dma_act(10), 0, bm[9] - 6)
    for g in range(9, 16):
        b = bm[g]; e = bm.get(g + 1, S_.n)
        Wn = dma_w(g + 1) if g < 15 else [x + " ; need:16" if isvm(x) else x for x in flat(dma("K", 1, 1) + [adv("K", 1)])]
        if g == GPUB:
            S_.hooks[g] = release
            Wn = Wn + ["buffer_store_dword v%d, v%d, s[%d:%d], s%d offen sc1" % (vFO, vONE, SO, SO + 3, sU)]
        if g in (9, 11, 13): Wn = Wn + [CRL]
        S_.place(Wn, b, b + QW)
        S_.place(dma_act(g + 2) if g + 2 < 16 else [poll_load(1) + " ; need:15"] + flat(dma("K", 1, 0)) + ["s_sub_u32 s%d, s%d, s%d" % (sKO, sKO, sVD), ["s_cmp_eq_u32 s%d, 0" % sI, "s_cselect_b32 s%d, 0x4000, 0" % sDS], "s_add_u32 s%d, s%d, s%d" % (sKO, sKO, sDS)] if g == 14 else [], b + QW, e - 6)
    S_.place(soft(late_setup), cm[10], cm[14] - 4)
    zero = lambda lo, hi: ["v_accvgpr_write_b32 a%d, 0" % r for r in range(lo, hi)]
    S_.place([x for j in range(NKV, 12) for x in kv_unit(j, GPUB)], 4, bm[9] - 1)
    S_.place([x for j in range(max(NKV, 12), 16) for x in kv_unit(j, GPUB)], bm[9] if NKV < 12 else 8, cm[8] + int(per * SE))
    S_.place([x for j in range(16, 32) for x in kv_unit(j) + zero(ub(j), ub(j) + 8)], cm[8] + int(per * SE), cm[15] + 12)
    hd = ["s_and_b32 s%d, s%d, 1" % (sT0, sH), "s_lshr_b32 s%d, s%d, 1" % (sT1, sGR), "s_add_u32 s%d, s%d, s%d" % (sT0, sT0, sT1),
          "s_and_b32 s%d, s%d, 2" % (sT2, sH), "s_lshl_b32 s%d, s%d, 20" % (sAS, sT2), "s_lshr_b32 s%d, s%d, 1" % (sT2, sT2), "s_add_u32 s%d, s%d, s%d" % (sT1, sT1, sT2),
          "s_lshr_b32 s%d, s%d, 2" % (sT2, sT0), "s_lshl_b32 s%d, s%d, 19" % (sT2, sT2), "s_add_u32 s%d, s%d, s%d" % (sAS, sAS, sT2), "s_and_b32 s%d, s%d, 3" % (sT0, sT0), "s_lshl_b32 s%d, s%d, 11" % (sT0, sT0),
          "s_add_u32 s%d, s%d, s%d" % (sAS, sAS, sT0),
          "s_lshr_b32 s%d, s%d, 2" % (sT2, sT1), "s_add_u32 s%d, s%d, 8" % (sT2, sT2), "s_lshl_b32 s%d, s%d, 19" % (sAS2, sT2), "s_and_b32 s%d, s%d, 3" % (sT1, sT1), "s_lshl_b32 s%d, s%d, 11" % (sT1, sT1),
          "s_add_u32 s%d, s%d, s%d" % (sAS2, sAS2, sT1), "s_and_b32 s%d, s%d, 1" % (sT0, sH), "s_lshl_b32 s%d, s%d, 10" % (sT0, sT0), "s_add_u32 s%d, s%d, s%d" % (sAS2, sAS2, sT0),
          ["s_bitcmp1_b32 s%d, 1" % sH, "s_cselect_b32 s%d, 1.0, %s" % (sSC, fbits(LOG2E * 0.25)), "s_cselect_b32 s%d, s%d, s%d" % (sXM, sTI[2], sTI[0])],
          "s_xor_b32 s%d, s%d, 7" % (sT0, sXM), ["s_bitcmp1_b32 s%d, 0" % sH, "s_cselect_b32 s%d, s%d, s%d" % (sXM, sT0, sXM)],
          "s_lshl_b32 s%d, s%d, 6" % (sXM, sXM), "s_add_u32 s%d, s%d, s%d" % (sXM, sXM, sGL_)]
    sQO, sVO_ = (sWS, sXS, sAM, sWM), (8, 9, 10, 12)
    for qb in range(4):
        hd += ["s_lshr_b32 s%d, s%d, 1" % (sT0, sTI[qb]), "s_lshl_b32 s%d, s%d, 13" % (sT0, sT0), "s_and_b32 s%d, s%d, 1" % (sT1, sTI[qb]), "s_lshl_b32 s%d, s%d, 10" % (sT2, sT1), "s_lshl_b32 s%d, s%d, 3" % (sT1, sT1),
               "s_add_u32 s%d, s%d, s%d" % (sT2, sT2, sT0), "s_add_u32 s%d, s%d, s%d" % (sT1, sT1, sT0), "s_add_u32 s%d, s%d, s%d" % (sQO[qb], sAS, sT2), "s_add_u32 s%d, s%d, s%d" % (sVO_[qb], sAS2, sT1)]
    AE = []
    for j in range(6):
        pk = PK + 4 * (j % 4)
        AE += pack(AA + j * 8, pk, sSC if j < 4 else None)
        if j < 4: AE.append("buffer_store_dwordx4 %s, v%d, s[%d:%d], s%d offen" % (vr(pk, 4), vL16, SO, SO + 3, sQO[j]))
        else: AE += ["buffer_store_dwordx2 %s, v%d, s[%d:%d], s%d offen" % (vr(pk + 2 * t, 2), vL16, SO, SO + 3, sVO_[2 * (j - 4) + t]) for t in range(2)]
    AE += ["v_accvgpr_read_b32 v%d, a%d" % (TT, AA + 48), "v_and_b32 v%d, 15, v0" % (TT + 1), "v_mul_f32 v%d, %s, v%d" % (TT, fbits(-LOG2E), TT), "v_exp_f32 v%d, v%d" % (TT, TT), "v_lshlrev_b32 v%d, 2, v%d" % (TT + 1, TT + 1),
           "v_add_f32 v%d, 1.0, v%d" % (TT, TT), "v_rcp_f32 v%d, v%d" % (TT, TT), "s_nop 0", "buffer_store_dword v%d, v%d, s[%d:%d], s%d offen" % (TT, TT + 1, SO, SO + 3, sXM)]
    S_.place(hd, bm[14] + QW + 6, cm[15] + 28)
    room = S_.room(cm[15] + 30, S_.n) - 8
    S_.place(AE[:room], cm[15] + 30, S_.n); tail = AE[room:]
    if XQ:
        def drop(x):
            if XQ & 1 and x.startswith("buffer_load") and "s[4:7]" in x: return True
            if XQ & 2 and x.startswith("buffer_store_dwordx4"): return True
            if XQ & 4 and x.startswith("buffer_load") and "s[12:15]" in x: return True
            if XQ & 8 and x.startswith("buffer_load") and "s[8:11]" in x: return True
            return False
        S_.G.g = [[it for it in g if not drop(it[1])] for g in S_.G.g]
    nq_ = [0]
    def qbar(w):
        nq_[0] += 1
        if nq_[0] == 7:
            a(w); poll_check(1); bar("s_nop 0")
        else: bar(w)
    vm2 = S_.emit(a, qbar, use8, vmh)
    if VERB: print("Q over", S_.over, "tail", len(tail))
    for x in tail: a(x)
    a("s_waitcnt vmcnt(%d)" % (len(vm2) - 1 - max(k for k, nd in enumerate(vm2) if nd == 16) + sum(1 for x in tail if isvm(x))))
    a(lAttn + ":")
    st_("attn")
    vU = 3; vL = (4, 5, 6, 7); vG = (8, 9, 14, 15); vX = 10
    S = (16, 80); P = (144, 176); NM, LT, TM, ONES = 208, 224, 240, 252
    vT8, vNEG = 248, 249
    sW3 = 56
    def live(typ, half):
        if not half: return list(range(8))
        return [q for q in range(8) if q % 4 != 2] if typ == 1 else [0, 1, 2, 3, 5, 7]
    O, Q, FR, NFR = 0, 128, 192, 16
    ms = (26, 28, 30, 4)
    def kfrag(p, kb, s): return ("K", p * 32768 + (kb // 2) * 8192 + s * 2048 + (kb % 2) * 1024)
    def vfrag(p, kp, dt): return ("V", p * 32768 + kp * 8192 + dt * 1024)
    def rd(slot, fr): return "ds_read_b128 %s, v%d offset:%d" % (ar(FR + 4 * (slot % NFR), 4), vK if fr[0] == "K" else vV, fr[1])
    def snake(chains):
        out = []
        for k, c in enumerate(chains): out += c if k % 2 == 0 else c[::-1]
        return out
    def mf_list(p, pv, qk, hp=0, hq=0):
        B = []; Pp = P[1 - p]; Sn = S[1 - p]
        if pv:
            typ = 2 if pv == 3 else pv; nq = 4 // typ; nk = 2 * typ; lv = live(typ, hp or pv == 3)
            for d0 in range(0, 8, 4 // nk):
                fr = [(kp, dt) for dt in range(d0, d0 + 4 // nk) for kp in range(nk)]
                ch = []
                for dt in range(d0, d0 + 4 // nk):
                    for qb in range(nq):
                        acc = ar(O + (qb * 8 + dt) * 4, 4)
                        c = [(fr.index((kp, dt)), "%s %s, {F}, %s, %s" % (MF16, acc, vr(Pp + (kp * nq + qb) * 4, 4), acc)) for kp in range(nk) if kp * nq + qb in lv]
                        if c: ch.append(c)
                B.append(([("K", vfrag(1, kp, dt)[1]) if pv == 3 else vfrag(1 - p, kp, dt) for kp, dt in fr], snake(ch)))
        if qk:
            nq = 4 // qk
            for kb in range(4 * qk):
                M = []; k = 0
                for qb in range(nq):
                    if (kb // 2) * nq + qb not in live(qk, hq): continue
                    d = vr(Sn + ((kb // 2) * nq + qb) * 8 + (kb % 2) * 4, 4)
                    so = range(4) if k % 2 == 0 else range(3, -1, -1); k += 1
                    M += [(s_, "%s %s, {F}, %s, %s" % (MF16, d, ar(Q + (qb * 4 + s_) * 4, 4), d if n else vr(NM + qb * 4, 4))) for n, s_ in enumerate(so)]
                B.append(([kfrag(1 - p, kb, s_) for s_ in range(4)], M))
        return B
    def frs(B): return [f for b in B for f in b[0]]
    def ex(p, n): return "v_exp_f32 v%d, v%d" % (TM + n % 8, S[p] + n)
    def cv(p, j): return "v_cvt_pk_bf16_f32 v%d, v%d, v%d" % (P[p] + j, TM + (2 * j) % 8, TM + (2 * j) % 8 + 1)
    def summ(p, sm, q):
        nq = 4 // sm; d = vr(LT + (q % nq) * 4, 4)
        return "%s %s, %s, %s, %s" % (MF16, d, vr(ONES, 4), vr(P[p] + 4 * q, 4), d if q >= nq else "0")
    def chks(sm, hs):
        if sm == 1 and hs: return ["v_max3_f32 v%d, v%d, v%d, v%d" % (vX, LT, LT + 4, LT + 12), "v_cmp_lt_f32 vcc, s%d, v%d" % (sTH, vX)]
        c = ["v_max3_f32 v%d, v%d, v%d, v%d" % (vX, LT, LT + 4, LT + 8), "v_max_f32 v%d, v%d, v%d" % (vX, vX, LT + 12)] if sm == 1 else ["v_max_f32 v%d, v%d, v%d" % (vX, LT, LT + 4)]
        return c + ["v_cmp_lt_f32 vcc, s%d, v%d" % (sTH, vX)]
    rare = {}
    def step(p, pv, sm, qk, dK, dV, pre_in=True, pre_out=True, extra_vm=None, chk=0, last16=False, staged=None, trail=None, vm_first=False, flush=False, ctl=None, hp=0, hs=0, hq=0, kpre=None):
        B = mf_list(p, pv, qk, hp, hq); nf = 4 * len(B)
        lv = live(sm, hs) if sm else []; ng = len(lv)
        nxt = frs(mf_list(1, 3, 0) if last16 else mf_list(1 - p, sm or 1, 0))[:PD]
        M0 = [(4 * b + f, t) for b, (fr, ms_) in enumerate(B) for f, t in ms_]
        nb = len(M0); M = []; spos = []
        SLK = 6 if nb > 100 else 3
        endm = nb - 10 - SLK
        dst = lambda t: t.split()[1]
        ins = {}
        for k, q in enumerate(lv):
            m = ((k + 1) * endm) // ng + SLK
            while dst(M0[m][1]) == dst(M0[m + 1][1]): m -= 1
            ins[m] = q
        bs = {}
        for m, it in enumerate(M0):
            bs.setdefault(it[0] // 4, len(M)); M.append(it)
            if m in ins: spos.append(len(M)); M.append((it[0], summ(p, sm, ins[m])))
        nm = len(M)
        G = []
        if dV: G += dma("V", dV, p) + [adv("V", dV)]
        if dK: G += (kpre or []) + dma("K", dK, p) + [adv("K", dK)]
        ntr = sum(1 for x in flat(trail or []) if isvm(x))
        G = ((extra_vm or []) + G if vm_first else G + (extra_vm or [])) + (trail or [])
        nB = len(B); bs[nB] = nm
        hasbar = pre_out and not last16
        Gp = Gaps([12] * (nm - 1) + [4])
        sR = Gp.newstream()
        allfr = frs(B) + (nxt if pre_out else [])
        barm = bs[nB - 2] + min(4, bs[nB - 1] - bs[nB - 2] - 1)
        pre = ["s_waitcnt lgkmcnt(4)"]
        for b in range(nB):
            lo, hi = bs[b], bs[b + 1]
            rds = [k for k in range(4 * b + PD, 4 * b + PD + 4) if k < len(allfr)]
            if hasbar and b == nB - 2:
                Gp.add(barm - 1, sR, "s_BARW"); Gp.add(barm - 1, sR, "s_BAR")
                rds = list(range(nf, nf + PD)); lo, hi = barm, nm - 1
            elif hasbar and b == nB - 1: rds = []
            for j, k in enumerate(rds): Gp.add(lo + (j * (hi - lo)) // len(rds), sR, rd(k, allfr[k]))
            if b + 1 < nB and not (hasbar and b >= nB - 2): Gp.add(bs[b + 1] - 1, sR, "s_waitcnt lgkmcnt(%d)" % len(rds))
        hiD = min(max(2 * len(G), (nm * DFR) // 16), barm - 8 if hasbar else nm)
        Gp.place(soft(G), 1, hiD, slack=40)
        if pv in (1, 2) and not last16: Gp.place(["v_add_f32 v%d, v%d, v%d" % (vL[qb], vL[qb], LT + 4 * qb) for qb in range(4 // pv) if not (hp and qb == 2)], 0, 10)
        if ctl: Gp.place([ctl], nm - 8, nm - 3)
        if sm:
            pe = []; lo = 0
            for k, q in enumerate(lv):
                hi = spos[k] - SLK
                sE = Gp.newstream(); tmp = {z: list(Gp.g[z]) for z in range(lo, hi)}; ch = []
                for _ in range(8):
                    def inc(z): return max(0, gcost(tmp[z] + [(sE, "v_exp_f32")]) - Gp.cap[z]) - max(0, gcost(tmp[z]) - Gp.cap[z])
                    z = min(range(lo, hi), key=lambda z: (inc(z), gcost(tmp[z]) > Gp.cap[z], (z - lo) % 4 == 2 if EXT else 0, z))
                    tmp[z].append((sE, "v_exp_f32")); ch.append(z)
                for n, z in zip(range(8 * q, 8 * q + 8), sorted(ch)): Gp.add(z, sE, ex(p, n))
                pe += sorted(ch); lo = hi
            sC = Gp.newstream(); k = 0
            for j in range(4 * ng):
                x = cv(p, 4 * lv[j // 4] + j % 4)
                k = max(k, pe[2 * j + 1] + 1)
                dl = min(pe[2 * j + 8] - 1 if 2 * j + 8 < 8 * ng else nm, spos[j // 4] - 3)
                if k > dl: k = dl = max(dl, pe[2 * j + 1])
                assert k <= spos[j // 4] - 3 and (2 * j + 8 >= 8 * ng or k < pe[2 * j + 8]), (j, k, dl)
                cand = [z for z in range(k, dl + 1) if gcost(Gp.g[z] + [(sC, x)]) <= Gp.cap[z]]
                k = cand[0] if cand else min(range(k, dl + 1), key=lambda z: gcost(Gp.g[z]))
                Gp.add(k, sC, x)
            Gp.place(chks(sm, hs), nm - 3, nm - 1)
        for (lst, lo, hi) in (staged or []): Gp.place(lst, lo, hi)
        if VERB: print("step", p, pv, sm, qk, "gaps", nm, "over", Gp.over())
        for x in pre or []: a(x)
        for m, (f, t) in enumerate(M):
            a(t.replace("{F}", ar(FR + 4 * (f % NFR), 4)))
            for x in Gp.out(m):
                if x == "s_BARW": continue
                if x == "s_BAR":
                    if TS3: a("s_mov_b32 m0, s76\ns_add_u32 s76, s76, 1\nv_writelane_b32 v11, s72, m0\ns_mov_b32 m0, s76\ns_add_u32 s76, s76, 1\nv_writelane_b32 v11, s74, m0\ns_memtime s[72:73]")
                    a("s_waitcnt vmcnt(%d) lgkmcnt(0)" % ntr)
                    if chk: poll_check(chk)
                    a("s_barrier")
                    if TS3: a("s_memtime s[74:75]\ns_waitcnt lgkmcnt(0)")
                else: a(x)
        assert nf % NFR == 0
        if sm:
            key = (p, sm, qk if qk else sm, hs)
            if key not in rare: rare[key] = (a.label("rare"), [])
            lb = a.label("back"); lj = a.label("jr")
            rare[key][1].append((lj, lb))
            a("s_cbranch_vccnz %s\n%s:" % (lj, lb))
            if last16 or flush:
                for qb in range(4 // sm):
                    if not (hs and qb == 2): a("v_add_f32 v%d, v%d, v%d" % (vL[qb], vL[qb], LT + 4 * qb))
    def qregs(base, typ, qb, half=0):
        nq = 4 // typ
        return [base + (kp * nq + qb) * 8 + j for kp in range(2 * typ) for j in range(8) if kp * nq + qb in live(typ, half)]
    def maxtree(dst, R):
        L = ["v_max3_f32 v%d, v%d, v%d, v%d" % (dst, R[0], R[1], R[2])]; j = 3
        while j + 1 < len(R):
            L.append("v_max3_f32 v%d, v%d, v%d, v%d" % (dst, dst, R[j], R[j + 1])); j += 2
        if j < len(R): L.append("v_max_f32 v%d, v%d, v%d" % (dst, dst, R[j]))
        return L
    def xlane(op, D, Tm):
        L = []
        for sw in ("v_permlane16_swap_b32", "v_permlane32_swap_b32"):
            L += ["v_mov_b32 v%d, v%d" % (t, d) for d, t in zip(D, Tm)]
            if len(D) < 3: L.append("s_nop %d" % (2 - len(D)))
            L += ["%s v%d, v%d" % (sw, d, t) for d, t in zip(D, Tm)]
            L += ["%s v%d, v%d, v%d" % (op, d, d, t) for d, t in zip(D, Tm)]
        return L
    def mask(sets, pad=True):
        for r in range(4): a("v_cmp_gt_i32 s[%d:%d], %d, v%d" % (ms[r], ms[r] + 1, r, vU))
        if pad: a("s_nop 3")
        for (R, st) in sets:
            lab = [a.label("mk") for _ in range(4)]; full = [a.label("mf") for _ in range(5)]
            for t in range(1, 4): a("s_cmp_eq_u32 s%d, %d\ns_cbranch_scc1 %s" % (st, t, lab[t]))
            for t in range(4):
                if t:
                    a(full[t] + ":")
                    for r in range(4): a("v_mov_b32 v%d, v%d" % (R[4 * t + r], vNEG))
                    a("s_branch %s\n%s:" % (full[t + 1], lab[t]))
                for r in range(4): a("v_cndmask_b32 v%d, v%d, v%d, s[%d:%d]" % (R[4 * t + r], R[4 * t + r], vNEG, ms[r], ms[r] + 1))
            a(full[4] + ":")
    bar("s_nop 0")
    if TS2:
        a("s_waitcnt lgkmcnt(0)"); bar("s_nop 0")
        a("s_lshl_b32 s78, s2, 2\ns_add_u32 s78, s78, s%d\ns_lshl_b32 s78, s78, 8\ns_add_u32 s78, s78, 0x%x\nv_lshlrev_b32 v122, 2, v0" % (sWV, OFF_TS + 0x80000))
        a("buffer_store_dword v123, v122, s[%d:%d], s78 offen\ns_waitcnt vmcnt(0)" % (SO, SO + 3))
    a("s_mov_b32 s%d, %s" % (sSC, fbits(LOG2E / math.sqrt(128.0))))
    fr0 = [kfrag(0, kb, s) for s in range(4) for kb in range(4)]
    for f in range(12): a(rd(f, fr0[f]))
    def qepi(cb):
        G = []
        for qb in range(4):
            src = QA + (((qb // 2) * 4 + cb) * 2 + qb % 2) * 8
            if not PKV: G += ["v_mul_f32 v%d, s%d, v%d" % (src + j, sSC, src + j) for j in range(8)]
            G += ["v_cvt_pk_bf16_f32 v%d, v%d, v%d" % (src + j, src + 2 * j, src + 2 * j + 1) for j in range(4)]
            G += ["v_accvgpr_write_b32 a%d, v%d" % (Q + (qb * 4 + cb) * 4 + j, src + j) for j in range(4)]
        return G
    for x in flat(dma("V", 1, 0)): a(x)
    a("s_sub_u32 s%d, s%d, s%d\ns_sub_u32 s%d, 3, s%d" % (sVO, sVO, sVD, sW3, sWV))
    if PKV:
        a("s_mov_b32 s26, s%d\ns_mov_b32 s27, s%d" % (sSC, sSC))
        for r in range(QA, QA + 128, 2): a("v_pk_mul_f32 %s, %s, s[26:27]" % (vr(r, 2), vr(r, 2)))
    for x in qepi(0): a(x)
    for f in range(12, 16): a(rd(f, fr0[f]))
    misc = ["v_add_u32 v%d, 0x10000, v%d" % (vV, vK), "v_and_b32 v10, 15, v0", "v_lshrrev_b32 v11, 4, v0", "v_lshlrev_b32 v11, 2, v11", "v_sub_u32 v%d, v10, v11" % vU]
    misc += ["v_mov_b32 v%d, 0" % r for r in vL] + ["v_mov_b32 v%d, %s" % (vNEG, NEG), "v_bfe_u32 v%d, v0, 3, 2" % vPO, "v_lshl_add_u32 v%d, v%d, 7, v124" % (vPO, vPO), "s_and_b32 s%d, s%d, 0xfffffe00" % (sHL, sHL)]
    misc += ["v_mov_b32 v%d, 0x3f803f80" % r for r in range(ONES, ONES + 4)] + ["v_mov_b32 v14, v%d" % vONE, "v_mov_b32 v15, 2"]
    a("s_waitcnt lgkmcnt(0)\ns_barrier")
    K2 = flat(dma("K", 2, 0)) + [["s_cmp_eq_u32 s%d, 0" % sI, "s_cselect_b32 s%d, 2, 1" % sT0], "s_lshl_b32 s%d, s%d, 14" % (sT0, sT0), "s_add_u32 s%d, s%d, s%d" % (sKO, sKO, sT0)]
    Gp = Gaps([12] * 64)
    Gp.place(K2, 0, 40)
    for s in range(4): Gp.place(qepi(s + 1) if s < 3 else misc, 16 * s, 16 * s + 16, slack=4)
    for s in range(4):
        for n in range(16):
            qb, kb = n // 4, n % 4
            d = vr(S[0] + ((kb // 2) * 4 + qb) * 8 + (kb % 2) * 4, 4)
            a("%s %s, %s, %s, %s" % (MF16, d, ar(FR + 4 * (4 * s + kb), 4), ar(Q + (qb * 4 + s) * 4, 4), d if s else "0"))
            for x in Gp.out(16 * s + n): a(x)
    st_("m1")
    for f, x in enumerate(frs(mf_list(0, 0, 1))[:PD]): a(rd(f, x))
    mask([(qregs(S[0], 1, 2), sWV)], pad=False)
    MXr, MXt = (240, 241, 242, 243), (244, 245, 246, 247)
    for qb in range(4):
        for x in maxtree(MXr[qb], qregs(S[0], 1, qb)): a(x)
    for x in xlane("v_max_f32", MXr, MXt): a(x)
    for qb in range(4):
        for j in range(4): a("v_sub_f32 v%d, 0, v%d" % (NM + qb * 4 + j, MXr[qb]))
    for qb in range(4):
        if PKV:
            for r in qregs(S[0], 1, qb)[::2]: a("v_pk_add_f32 %s, %s, %s" % (vr(r, 2), vr(r, 2), vr(NM + qb * 4, 2)))
        else:
            for r in qregs(S[0], 1, qb): a("v_sub_f32 v%d, v%d, v%d" % (r, r, MXr[qb]))
    st_("first")
    if TS3: a("s_mov_b32 s76, 0\ns_mov_b32 s72, 0\ns_mov_b32 s74, 0")
    step(0, 0, 1, 1, 0, 0)
    release()
    a("buffer_store_dword v15, v14, s[%d:%d], s%d offen sc1" % (SO, SO + 3, sU))
    st_("s0")
    lT0, lT1, lT1b, lL1, lL2, lS15, lMid, lI7, lEn = [a.label(x) for x in ("T0", "T1", "T1b", "L1", "L2", "S15", "MID", "I7", "END")]
    PL = [[poll_load(2)]]
    AF = [Q + 4 * j for j in range(9)]
    def ld(dst, so, off): return "buffer_load_dwordx4 %s, v%d, s[%d:%d], s%d offen offset:%d sc1" % (ar(dst, 4), vK, SV, SV + 3, so, off)
    AOP = [ld(AF[0], sA0, 0), ld(AF[1], sA0, 1024), ld(AF[2], sX0, 0), ld(AF[3], sX0, 1024), ld(AF[4], sA1, 1024),
           ld(AF[5], sX1, 0), ld(AF[6], sX1, 1024), ld(AF[7], sGB, 0), ld(AF[8], sGB, 1024)]
    AOP += ["v_and_b32 v12, 15, v0", "v_lshlrev_b32 v12, 2, v12"] + ["buffer_load_dword a%d, v12, s[%d:%d], s%d offen offset:%d sc1" % (Q + 36 + t, SV, SV + 3, sGA_, 64 * t) for t in range(2)]
    ALD = [["v_and_b32 v12, 15, v0", "v_lshlrev_b32 v12, 2, v12"]]
    ALD += [["buffer_load_dword v%d, v12, s[%d:%d], s%d offen offset:%d sc1" % (vG[qb], SV, SV + 3, sT0, 0)] for qb in range(4)]
    for qb in range(4): ALD[1 + qb] = ["s_lshl_b32 s%d, s%d, 6" % (sT0, sTI[qb]), "s_add_u32 s%d, s%d, s%d" % (sT0, sT0, sGL_)] + ALD[1 + qb]
    def wpf(dst): return [["v_add_lshl_u32 v%d, v0, s%d, 7" % (vT8, sP0), "global_load_dword v%d, v%d, s[%d:%d]" % (dst, vT8, pBWO, pBWO + 1)],
                          ["v_and_b32 v12, 7, v0", "v_add_lshl_u32 v12, v12, s%d, 7" % sP1_, "global_load_dword v%d, v12, s[%d:%d]" % (dst, pWO, pWO + 1)]]
    TR0, TR15 = wpf(vG[0]), (wpf(vT8) if T15 else [])
    if CR2:
        TR15 = TR15 + [["s_lshr_b32 s%d, s%d, 3" % (sT0, sP1_), "s_and_b32 s%d, s%d, 127" % (sT0, sT0), "v_and_b32 v13, 15, v0", "v_lshlrev_b32 v13, 7, v13", "v_add_lshl_u32 v13, v13, s%d, 7" % sT0,
                        "v_min_u32 v13, %s-%s, v13" % (lRare, lpc2), "global_load_dword v%d, v13, s[0:1]" % vT8]]
    PW, PW2 = 8, 12
    sWB, sHW, sWC, sAB, sHA, sAC = 25, 32, 33, 98, 35, 57
    TL = ("s_mov_b32 s%d, s%d\ns_mov_b32 s%d, s%d\ns_mov_b32 s%d, 0x400000\ns_mov_b32 s%d, s%d\ns_mov_b32 s%d, s%d\ns_mov_b32 s%d, 0x80000\n" % (PW, pBWO, PW + 1, pBWO + 1, PW + 2, PW2, pWO, PW2 + 1, pWO + 1, PW2 + 2) +
          "s_lshr_b32 s%d, s%d, 3\ns_lshl_b32 s%d, s%d, 20\ns_and_b32 s%d, s%d, 3\ns_lshl_b32 s%d, s%d, 8\ns_add_u32 s%d, s%d, s%d\ns_lshl_b32 s%d, s%d, 14\ns_add_u32 s%d, s%d, s%d\n" % (sT2, sH, sWB, sT2, sT1, sH, sT1, sT1, sWB, sWB, sT1, sT1, sWV, sWB, sWB, sT1) +
          "s_and_b32 s%d, s%d, 7\ns_mov_b32 s%d, s%d\n" % (sHW, sH, sHA, sHW) +
          "s_lshl_b32 s%d, s%d, 2\ns_add_u32 s%d, s%d, s%d\ns_mul_i32 s%d, s%d, %d\ns_lshl_b32 s%d, s%d, 16\ns_add_u32 s%d, s%d, s%d\ns_add_u32 s%d, s%d, 0x%x\n" % (sT1, sRBK, sT1, sT1, sWV, sAB, sT1, CROW, sT2, sT2, sAB, sAB, sT2, sAB, sAB, OFF_C) +
          "s_lshl_b32 s%d, s%d, 13\ns_add_u32 s%d, s%d, 0x%x" % (sT1, sH, sT1, sT1, OFF_C)).split("\n")
    for t in sTI:
        TL += ["s_and_b32 s%d, s%d, 1" % (sT2, t), "s_lshl_b32 s%d, s%d, 10" % (sT2, sT2), "s_lshr_b32 s%d, s%d, 1" % (t, t), "s_mul_i32 s%d, s%d, %d" % (t, t, CROW),
               "s_add_u32 s%d, s%d, s%d" % (t, t, sT2), "s_add_u32 s%d, s%d, s%d" % (t, t, sT1)]
    STL = [(TL[:23], 2, 50), (TL[23:], 50, 114)]
    a("s_cmp_eq_u32 s%d, 0\ns_cbranch_scc1 %s" % (sI, lT1))
    a("s_mov_b32 s%d, s%d" % (sT, sI))
    a(".p2align 6\n" + lL1 + ":")
    step(1, 1, 1, 1, 1, 1, ctl=["s_sub_u32 s%d, s%d, 1" % (sT, sT)], kpre=[["s_cmp_eq_u32 s%d, 1" % sT, "s_cselect_b32 s%d, 0x4000, 0" % sT0], ["s_add_u32 s%d, s%d, s%d" % (sKO, sKO, sT0)]])
    a("s_cmp_eq_u32 s%d, 0\ns_cbranch_scc1 %s" % (sT, lT0))
    step(0, 1, 1, 1, 1, 1)
    a("s_branch %s" % lL1)
    a(lT0 + ":")
    step(0, 1, 1, 1, 2, 1, extra_vm=PL, chk=2, trail=TR0, hq=1)
    a(lT1 + ":")
    mask([(qregs(S[1], 1, 3), sW3)])
    a("s_add_u32 s%d, s%d, 0x4000\ns_cmp_eq_u32 s%d, 7\ns_cbranch_scc1 %s" % (sVO, sVO, sI, lT1b))
    step(1, 1, 1, 2, 2, 1, hs=1)
    step(0, 1, 2, 2, 2, 2, extra_vm=PL, chk=2, trail=TR0, hp=1)
    a("s_sub_u32 s%d, 6, s%d\ns_cmp_eq_u32 s%d, 0\ns_cbranch_scc1 %s" % (sT, sI, sT, lS15))
    a(".p2align 6\n" + lL2 + ":")
    step(1, 2, 2, 2, 2, 2)
    step(0, 2, 2, 2, 2, 2, ctl=["s_sub_u32 s%d, s%d, 1" % (sT, sT)])
    a("s_cmp_lg_u32 s%d, 0\ns_cbranch_scc1 %s" % (sT, lL2))
    a(lS15 + ":")
    a("s_add_u32 s%d, s%d, 0x8000" % (sKO, sVO))
    step(1, 2, 2, 2, 2, 2, extra_vm=ALD, trail=TR15, vm_first=True, staged=STL, flush=True, hq=1)
    a("s_branch %s" % lMid)
    a(lT1b + ":")
    a("s_add_u32 s%d, s%d, 0x4000" % (sKO, sVO))
    step(1, 1, 1, 2, 2, 1, extra_vm=ALD, trail=TR15, vm_first=True, staged=STL, flush=True, hs=1, hq=1)
    def fin_head(rb, so):
        q0, q1 = 2 * rb, 2 * rb + 1
        G = ["v_rcp_f32 v%d, v%d" % (vL[q0], vL[q0]), "v_rcp_f32 v%d, v%d" % (vL[q1], vL[q1]), "v_sub_f32 v%d, 1.0, v%d" % (vG[q0], vG[q0]), "v_sub_f32 v%d, 1.0, v%d" % (vG[q1], vG[q1]),
             "v_mul_f32 v%d, v%d, v%d" % (vL[q0], vL[q0], vG[q0]), "v_mul_f32 v%d, v%d, v%d" % (vL[q1], vL[q1], vG[q1])]
        return G
    def fin_part(rb, c, t, so, pk=False):
        u, tq = c // 2, c % 2; qb = 2 * rb + tq; so = sTI[qb]
        G = ["v_accvgpr_read_b32 v%d, a%d" % (t + j, O + qb * 32 + u * 8 + j) for j in range(8)]
        if pk and PKV: G += ["v_pk_mul_f32 %s, %s, %s op_sel:[0,%d] op_sel_hi:[1,%d]" % (vr(t + j, 2), vr(t + j, 2), vr(vL[2 * rb], 2), tq, tq) for j in range(0, 8, 2)]
        else: G += ["v_mul_f32 v%d, v%d, v%d" % (t + j, vL[qb], t + j) for j in range(8)]
        G += ["v_cvt_pk_bf16_f32 v%d, v%d, v%d" % (t + j, t + 2 * j, t + 2 * j + 1) for j in range(4)]
        if u == 2: G.append("s_add_u32 s%d, s%d, 4096" % (so, so))
        G.append("buffer_store_dwordx4 %s, v%d, s[%d:%d], s%d offen offset:%d sc1" % (vr(t, 4), vK, SV, SV + 3, so, (u % 2) * 2048))
        return G
    a(lMid + ":")
    st_("mid")
    if TS3:
        a("s_mov_b32 m0, s76\ns_add_u32 s76, s76, 1\nv_writelane_b32 v11, s72, m0\ns_mov_b32 m0, s76\ns_add_u32 s76, s76, 1\nv_writelane_b32 v11, s74, m0")
        a("s_lshl_b32 s78, s2, 2\ns_add_u32 s78, s78, s%d\ns_lshl_b32 s78, s78, 8\ns_add_u32 s78, s78, 0x%x\nv_lshlrev_b32 v10, 2, v0" % (sWV, OFF_TS + 0x80000))
        a("buffer_store_dword v11, v10, s[%d:%d], s78 offen\ns_nop 4" % (SO, SO + 3))
    for x in AOP: a(x)
    mask([(qregs(S[0], 2, 0)[:16], sWV), (qregs(S[0], 2, 1)[16:], sW3)], pad=False)
    vD = (232, 233, 234, 235)
    WRING = [0, 16384, 65536, 81920, 131072, 147456]; ARING = [32768, 49152, 98304, 114688]
    def w_dma(st):
        G = []
        if st < 16 and st % 2 == 0:
            G += ["s_lshl_b32 s%d, s%d, 17" % (sWC, sHW), "s_add_u32 s%d, s%d, s%d" % (sWC, sWC, sWB), "s_add_u32 s%d, s%d, 1" % (sHW, sHW)]
        if st == 16: G += ["s_and_b32 s%d, s%d, 0xffff" % (sWC, sWB), "s_lshr_b32 s%d, s%d, 20" % (sHW, sWB), "s_lshl_b32 s%d, s%d, 17" % (sHW, sHW), "s_add_u32 s%d, s%d, s%d" % (sWC, sWC, sHW)]
        G += ["s_add_u32 m0, s%d, %d" % (sW4, WRING[st % 6]), "s_and_b32 s%d, s%d, 7" % (sHW, sHW) if st % 2 == 0 else "s_add_u32 s%d, s%d, 65536" % (sWC, sWC)]
        sr_ = PW if st < 16 else PW2
        return G + ["buffer_load_dwordx4 v%d, s[%d:%d], s%d offen offset:%d %s lds ; need:%d" % (vD[o], sr_, sr_ + 3, sWC, o * 1024, GL, st) for o in range(4)]
    def a_dma(st):
        G = []
        if st < 16 and st % 2 == 0:
            G += ["s_lshl_b32 s%d, s%d, 13" % (sAC, sHA), "s_add_u32 s%d, s%d, s%d" % (sAC, sAC, sAB), "s_add_u32 s%d, s%d, 1" % (sHA, sHA)]
        if st == 16: G += ["s_lshr_b32 s%d, s%d, 3" % (sHA, sH), "s_mul_i32 s%d, s%d, %d" % (sHA, sHA, 56 * 1024), "s_sub_u32 s%d, s%d, s%d" % (sAC, sAB, sHA), "s_add_u32 s%d, s%d, %d" % (sAC, sAC, 256 * 1024)]
        G += ["s_add_u32 m0, s%d, %d" % (sW4, ARING[st % 4]), "s_and_b32 s%d, s%d, 7" % (sHA, sHA) if st % 2 == 0 else "s_add_u32 s%d, s%d, 4096" % (sAC, sAC)]
        return G + ["buffer_load_dwordx4 v%d, s[%d:%d], s%d offen offset:%d sc1 lds ; need:%d" % (vK, SV, SV + 3, sAC, o * 1024, st) for o in range(4)]
    nt = lambda L: [x.split(";")[0].strip() for x in L]
    a("v_lshrrev_b32 v10, 4, v0\nv_and_b32 v11, 15, v0\nv_lshlrev_b32 v12, 2, v10\nv_xor_b32 v11, v11, v12\nv_lshlrev_b32 v11, 4, v11\nv_lshl_add_u32 v%d, v10, 10, v11" % vD[0])
    a("v_xor_b32 v11, 16, v%d\nv_add_u32 v%d, 6144, v%d\nv_add_u32 v%d, 3072, v11\nv_add_u32 v%d, 9216, v11" % (vD[0], vD[2], vD[0], vD[1], vD[3]))
    n0, n1, n2 = WSP
    for st in range(n0):
        for x in nt(w_dma(st)): a(x)
    W16_ = [[x] for st in range(n0, n0 + n1) for x in nt(w_dma(st))]; W17_ = [[x] for st in range(n0 + n1, n0 + n1 + n2) for x in nt(w_dma(st))]
    WRS = [x for st in range(n0 + n1 + n2, 6) for x in nt(w_dma(st))]
    a("s_cmp_eq_u32 s%d, 7\ns_cbranch_scc1 %s" % (sI, lI7))
    FT = lambda c: 80 + 8 * (c % 8)
    for x in fin_head(1, sA0): a(x)
    for c in range(NE):
        for x in fin_part(1, c, FT(c), sA0, True): a(x)
    step(0, 2, 2, 0, 0, 0, last16=True, extra_vm=W16_, hs=1)
    def final(first):
        stg = [(first + fin_head(0, sA1), 0, 17)]
        for u in range(3):
            stg.append((fin_part(0, 2 * u, 16 + 16 * u, sA1) + fin_part(0, 2 * u + 1, 24 + 16 * u, sA1), 12 * u + 17, min(12 * u + 29, 48)))
        step(1, 3, 0, 0, 0, 0, pre_out=False, staged=stg, extra_vm=W17_)
        a("s_nop 7")
        for x in fin_part(0, 6, 64, sA1, True) + fin_part(0, 7, 72, sA1, True): a(x)
    final([x for c in range(NE, 8) for x in fin_part(1, c, FT(c), sA0)])
    a("s_branch %s" % lEn)
    a(lI7 + ":")
    step(0, 1, 2, 0, 0, 0, last16=True, extra_vm=W16_, hs=1, hp=1)
    final(fin_head(1, sA0) + [x for c in range(8) for x in fin_part(1, c, FT(c), sA0)])
    a(lEn + ":")
    st_("s17")
    BS, BP, BP0 = 208, 212, 216
    SL = 144; TA = 176; PA = 212; MXl = (240, 241, 242, 243); vPM = 250; OL = 144
    L1 = ["v_add_u32 v246, 14, v%d" % vU, "v_mov_b32 v244, 0x5555", "v_mov_b32 v245, 0", "s_cmp_eq_u32 s%d, 0" % sRA, "s_cselect_b32 s%d, -1, 0" % sT2,
          "v_lshlrev_b64 v[244:245], v246, v[244:245]", "v_alignbit_b32 v244, v245, v244, 12", "v_not_b32 v244, v244"]
    L1 += ["v_bfe_i32 v%d, v244, %d, 1" % (BS + r, 16 + r) for r in range(4)] + ["v_bfe_i32 v%d, v244, %d, 1" % (BP + r, r) for r in range(4)]
    L1 += ["v_or_b32 v%d, s%d, v%d" % (BP0 + r, sT2, BP + r) for r in range(4)]
    L1 += ["v_and_b32 v%d, v%d, v%d" % (BS + r, vNEG, BS + r) for r in range(12)]
    L1 += ["v_and_b32 v244, 1, v0", "v_lshlrev_b32 v244, 4, v244", "v_mov_b32 v245, 0xffff", "v_lshlrev_b32 v%d, v244, v245" % vPM, "s_waitcnt vmcnt(40)"]
    for e in range(2):
        for tq in range(2):
            d = SL + (2 * e + tq) * 8
            L1.append("%s %s, %s, %s, %s" % (MFH, vr(d, 4), ar((AF[4], AF[2])[tq] + 2 * e, 2), ar(AF[tq] + 2 * e, 2), vr((BP0, BP)[tq], 4)))
            L1.append("%s %s, %s, %s, %s" % (MFH, vr(d + 4, 4), ar(AF[2 + tq] + 2 * e, 2), ar(AF[tq] + 2 * e, 2), vr(BS, 4)))
    L2 = ["v_max_f32 v%d, v%d, v%d" % (TA + j, SL + 2 * j, SL + 2 * j + 1) for j in range(16)]
    for n in range(4): L2 += maxtree(MXl[n], [TA + 4 * n + j for j in range(4)])
    L2 += xlane("v_max_f32", MXl, MXt)
    L2 += ["v_sub_f32 v%d, v%d, v%d" % (TA + j, TA + j, MXl[j // 4]) for j in range(16)]
    L2 += ["v_exp_f32 v%d, v%d" % (TA + j, TA + j) for j in range(16)]
    L2 += ["v_cvt_pk_bf16_f32 v%d, v%d, v%d" % (TA + j, TA + j, TA + j) for j in range(16)]
    L2 += ["v_and_b32 v%d, v%d, v%d" % (TA + j, vPM, TA + j) for j in range(16)]
    L2 += ["v_accvgpr_read_b32 v%d, a%d" % (246 + t, Q + 36 + t) for t in range(2)]
    for n in range(4): L2.append("%s %s, %s, %s, 0" % (MF16, vr(OL + 16 + 4 * n, 4), vr(ONES, 4), vr(TA + 4 * n, 4)))
    for e in range(2):
        L2.append("%s %s, %s, %s, 0" % (MFH, vr(OL + 4 * e, 4), ar(AF[7 + e] + 2, 2), vr(TA + 8 * e, 2)))
        L2.append("%s %s, %s, %s, 0" % (MF16, vr(OL + 8 + 4 * e, 4), ar(AF[5 + e], 4), vr(TA + 8 * e + 4, 4)))
    for e in range(2): L2.append("%s %s, %s, %s, %s" % (MFH, vr(OL + 4 * e, 4), ar(AF[5 + e], 2), vr(TA + 8 * e + 2, 2), vr(OL + 4 * e, 4)))
    L2 += ["s_mul_i32 s%d, s%d, %d" % (sA0, sRA, CROW), "s_lshl_b32 s%d, s%d, 11" % (sA1, sHP), "s_add_u32 s%d, s%d, s%d" % (sA0, sA0, sA1), "s_add_u32 s%d, s%d, 0x%x" % (sA0, sA0, OFF_C + 256 * 1024)]
    L2 += ["v_rcp_f32 v%d, v%d" % (MXl[n], OL + 16 + 4 * n) for n in range(4)]
    L2 += ["v_mul_f32 v%d, v%d, v%d" % (MXl[n], MXl[n], 246 + n % 2) for n in range(4)]
    for tq in range(2):
        for e in range(2): L2 += ["v_mul_f32 v%d, v%d, v%d" % (OL + 8 * tq + 4 * e + j, MXl[2 * e + tq], OL + 8 * tq + 4 * e + j) for j in range(4)]
        L2 += ["v_cvt_pk_bf16_f32 v%d, v%d, v%d" % (PA + 4 * tq + j, OL + 8 * tq + 2 * j, OL + 8 * tq + 2 * j + 1) for j in range(4)]
    LST = ["buffer_store_dwordx4 %s, v%d, s[%d:%d], s%d offen offset:%d sc1" % (vr(PA + 4 * tq, 4), vK, SV, SV + 3, sA0, tq * 1024) for tq in range(2)]
    for x in WRS + L1: a(x)
    SOUT = 4; sQ, sOUT = 26, 28
    vA, vW = (2, 3), (4, 5, 14, 15); ACC, FP = 16, 80
    srd(a, SOUT, 100, 2048 * 1024)
    a("s_lshr_b32 s%d, s%d, 3" % (sQ, sH))
    a("s_and_b32 s%d, s%d, 1\ns_lshl_b32 s%d, s%d, 1\ns_and_b32 s%d, s%d, 1\ns_add_u32 s%d, s%d, s%d\ns_lshl_b32 s%d, s%d, 12" % (sT0, sWV, sT0, sT0, sT1, sQ, sT2, sT0, sT1, sT0, sT2))
    a("v_add_u32 v%d, s%d, v%d\nv_xor_b32 v%d, 4096, v%d" % (vA[0], sT0, vK, vA[1], vA[0]))
    a("v_lshrrev_b32 v9, 2, v0\nv_and_b32 v8, 3, v9\nv_bfe_u32 v7, v0, 4, 1\nv_and_b32 v10, 2, v0\nv_or_b32 v7, v7, v10\nv_and_b32 v10, 1, v0\nv_lshlrev_b32 v10, 3, v10")
    a("s_and_b32 s%d, s%d, 2\ns_lshr_b32 s%d, s%d, 1\ns_add_u32 s%d, s%d, s%d\nv_xor_b32 v8, s%d, v8" % (sT0, sWV, sT1, sQ, sT0, sT0, sT1, sT0))
    a("v_lshl_or_b32 v8, v8, 2, v7\nv_lshlrev_b32 v8, 4, v8\nv_lshl_add_u32 v8, v9, 8, v8\nv_add_u32 v%d, v8, v10" % vW[0])
    a("v_xor_b32 v%d, 16, v%d\nv_xor_b32 v%d, 64, v%d\nv_xor_b32 v%d, 80, v%d" % (vW[1], vW[0], vW[2], vW[0], vW[3], vW[0]))
    a("s_and_b32 s%d, s%d, 3\ns_lshl_b32 s%d, s%d, 2\ns_add_u32 s%d, s%d, s%d\ns_lshl_b32 s%d, s%d, 6" % (sT1, sH, sT1, sT1, sT1, sT1, sT0, sOUT, sT1))
    a("s_lshl_b32 s%d, s%d, 2\ns_add_u32 s%d, s%d, s%d\ns_lshl_b32 s%d, s%d, 15\ns_add_u32 s%d, s%d, s%d" % (sT0, sRBK, sT0, sT0, sT2, sT0, sT0, sOUT, sOUT, sT0))
    a("v_and_b32 v6, 15, v0\nv_lshlrev_b32 v6, 10, v6\nv_lshrrev_b32 v7, 4, v0\nv_lshl_add_u32 v6, v7, 4, v6")
    a("v_min_u32 v9, 1, v0\nv_lshlrev_b32 v9, 29, v9\nv_mov_b32 v10, 1\nv_and_b32 v8, 7, v0\nv_lshlrev_b32 v8, 2, v8\nv_and_b32 v11, 12, v8")
    def signal_wait(sown, vo, pre):
        lp, lo_ = a.label("xpoll"), a.label("xok")
        a("s_waitcnt vmcnt(0)\ns_barrier\ns_cmp_lg_u32 s%d, 0\ns_cbranch_scc1 %s_s" % (sWV, lo_))
        a("buffer_store_dword v10, v9, s[%d:%d], s%d offen sc1\n%s_s:" % (SO, SO + 3, sown, lo_))
        for x in pre: a(x)
        a("s_cmp_lg_u32 s%d, 0\ns_cbranch_scc1 %s" % (sWV, lo_))
        a("s_and_b32 s%d, s%d, 0xffffff80\ns_mov_b32 s%d, 0x80000\n%s:" % (sT0, sown, sT1, lp))
        a("buffer_load_dword v12, v%d, s[%d:%d], s%d offen sc1\ns_waitcnt vmcnt(0)\nv_cmp_gt_u32 vcc, 1, v12\ns_cbranch_vccz %s" % (vo, SO, SO + 3, sT0, lo_))
        a("s_sleep %d\ns_sub_u32 s%d, s%d, 1\ns_cmp_lg_u32 s%d, 0\ns_cbranch_scc1 %s\n%s:" % (SLP, sT1, sT1, sT1, lp, lo_))
        a("s_waitcnt vmcnt(0)\ns_barrier")
    a("s_cmp_eq_u32 s%d, 0\ns_cselect_b32 s%d, 2, 0\ns_cselect_b32 s%d, 0, 0x20000000\nv_add_u32 v220, s%d, v8\nv_or_b32 v221, s%d, v9\nv_mov_b32 v222, 2\ns_and_b32 s%d, s%d, 0xffffff80" % (sWV, sG1, sT0, sT0, sT0, sG2, sFG))
    for x in L2[:LSPL]: a(x)
    signal_wait(sFG, 8, nt(a_dma(0) + a_dma(1)) + L2[LSPL:])
    st_("sync")
    for x in nt(a_dma(2) + a_dma(3)) + LST: a(x)
    curA, curW = [0], [0]
    NDS = ND // 2
    def freg(st, us, f, o=0, n=4):
        if st >= 18 - NDS and f in (0, 1, 4, 5): return ar(32 * (st - 18 + NDS) + 16 * us + 4 * (0, 1, 0, 0, 2, 3)[f] + o, n)
        return vr(FP + 64 * (st % 2) + 32 * us + 4 * f + o, n)
    def preads(st):
        L = []
        def win(base, cur, regs_):
            w_ = base // 65536
            if w_ != cur[0]:
                d = (w_ - cur[0]) * 65536
                for r in regs_: L.append((("v_add_u32 v%d, 0x%x, v%d" % (r, d, r)) if d > 0 else ("v_subrev_u32 v%d, 0x%x, v%d" % (r, -d, r)), None))
                cur[0] = w_
            return base % 65536
        oa = win(ARING[st % 4], curA, vA); ow = win(WRING[st % 6], curW, vW)
        tr = lambda n: [("ds_read_b64_tr_b16 %s, v%d offset:%d" % (freg(st, us, 4 + n, 2 * r_, 2), vW[n], ow + us * 8192 + r_ * 4096), 4 + n) for us in range(2) for r_ in range(2)]
        ac = [("ds_read_b128 %s, v%d offset:%d" % (freg(st, us, n), vA[n // 2], oa + us * 2048 + (n % 2) * 1024), n) for n in range(4) for us in range(2)]
        wo_ = (2, 3, 0, 1) if st >= 18 - NDS else (0, 1, 2, 3)
        return L + tr(wo_[0]) + ac + tr(wo_[1]) + tr(wo_[2]) + tr(wo_[3])
    def pm(st, wn, n):
        acc = vr(ACC + ((n // 2) + 2 * (wn // 2)) * 16 + (n % 2) * 8 + (wn % 2) * 4, 4)
        c = ["%s %s, %s, %s, %s" % (MF16, acc, freg(st, us, 4 + wn), freg(st, us, n), "0" if st == 0 and us == 0 else acc) for us in range(2)]
        return c if n % 2 == 0 or st == 0 else c[::-1]
    Mp = []; u0 = []; fu = []; wpts = []
    for st in range(18):
        u0.append(len(Mp)); d_ = {}
        seq = [(wn, n) for wn in range(4) for n in range(4)]
        if st >= 18 - NDS: seq = [(wn, n) for wn in (2, 3) for n in range(4)] + [(wn, n) for wn in (0, 1) for n in (2, 3)]
        for wn, n in seq:
            d_.setdefault(4 + wn, len(Mp)); d_.setdefault(n, len(Mp)); Mp += pm(st, wn, n)
        fu.append(d_); wpts += [u0[st], u0[st] + 4, u0[st] + 8, u0[st] + 16]
    late = [x for wn in range(2) for n in range(2) for st in range(18 - NDS, 18) for x in pm(st, wn, n)]
    SP_ = Sched(Mp); SP_.backlog = PBL
    u0.append(len(Mp))
    bpos = {st: u0[st] - (16 - PB if u0[st] - u0[st - 1] == 32 else 11) for st in range(1, 18)}
    R = preads(0)
    R0 = [(x, fu[0][f]) for x, f in R[:12]]
    for x, _ in R0: a(x)
    SP_.rq += [(x, 0, 0, fu[0][f]) for x, f in R[12:]]
    for st in range(1, 18):
        R = preads(st); nv = len(R) - 24; span = min(PSP, bpos.get(st + 1, 9999) - bpos[st] - 3)
        SP_.rq += [(x, bpos[st] + (max(0, j - nv) * span) // 24, bpos[st], None if f is None else fu[st][f]) for j, (x, f) in enumerate(R)]
    for st, b in bpos.items(): SP_.bars[b] = st
    SP_.waitpts = wpts
    SP_.place_reads()
    for g_ in range(SP_.n):
        for u_ in SP_.use[g_].values():
            if u_ is not None:
                st = max(k for k in range(18) if u0[k] <= u_)
                assert g_ < bpos.get(st + 1, 9999), (g_, u_)
    for st in range(1, 18):
        b = bpos[st]
        G = []
        if st == 5: G.append("buffer_store_dword v222, v221, s[%d:%d], s%d offen sc1" % (SO, SO + 3, sFG))
        if st == 10: G.append(poll_load(4) + " ; need:13")
        if st + 3 < 18: G += a_dma(st + 3)
        if st + 5 < 18: G += w_dma(st + 5)
        SP_.place(G, b, bpos.get(st + 1, SP_.n) - 2, slack=30)
    nb_ = [0]
    def pbar(w):
        nb_[0] += 1
        a(w)
        if nb_[0] == 13: poll_check(4)
        if not XP & 4: a("s_barrier")
    SP_.emit(a, pbar, [u_ for _, u_ in R0], [2] * 4 + [3] * 4 + [5] * 2)
    if VERB: print("P over", SP_.over)
    st_("pm")
    a("s_nop 3")
    for j in (2, 3, 1):
        a("s_xor_b32 s%d, s%d, %d\ns_mul_i32 s%d, s%d, 49152\ns_add_u32 s%d, s%d, s%d\ns_add_u32 s%d, s%d, %d" % (sT0, sQ, j, sT0, sT0, sT0, sT0, sXO, sT0, sT0, (j - 1) * 16384))
        for r in range(8): a("v_cvt_pk_bf16_f32 v%d, v%d, v%d" % (FP + 8 * j + r, ACC + j * 16 + 2 * r, ACC + j * 16 + 2 * r + 1))
        for c in range(2): a("buffer_store_dwordx4 %s, v%d, s[%d:%d], s%d offen offset:%d sc1" % (vr(FP + 8 * j + 4 * c, 4), vK, SO, SO + 3, sT0, c * 1024))
    for x in late: a(x)
    signal_wait(sFX, 11, [])
    st_("xs")
    a("s_mov_b32 s%d, s%d" % (sT0, sXR))
    for j in range(1, 4):
        for c in range(2): a("buffer_load_dwordx4 %s, v%d, s[%d:%d], s%d offen offset:%d sc1" % (vr(ACC + j * 16 + 4 * c, 4), vK, SO, SO + 3, sT0, c * 1024))
        if j < 3: a("s_add_u32 s%d, s%d, 16384" % (sT0, sT0))
    for j in range(1, 4):
        a("s_waitcnt vmcnt(%d)" % (2 * (3 - j)))
        for r in range(8):
            t = ACC + j * 16 + r
            a("v_lshlrev_b32 v12, 16, v%d\nv_and_b32 v13, 0xffff0000, v%d\nv_add_f32 v%d, v%d, v12\nv_add_f32 v%d, v%d, v13" % (t, t, ACC + 2 * r, ACC + 2 * r, ACC + 2 * r + 1, ACC + 2 * r + 1))
    for r in range(8): a("v_cvt_pk_bf16_f32 v%d, v%d, v%d" % (FP + r, ACC + 2 * r, ACC + 2 * r + 1))
    a("s_nop 1")
    for pr in range(2): a("v_permlane16_swap_b32 v%d, v%d\nv_permlane16_swap_b32 v%d, v%d" % (FP + 4 * pr, FP + 4 * pr + 2, FP + 4 * pr + 1, FP + 4 * pr + 3))
    a("buffer_store_dwordx4 %s, v6, s[%d:%d], s%d offen %s\ns_add_u32 s%d, s%d, 16384" % (vr(FP, 4), SOUT, SOUT + 3, sOUT, OST, sOUT, sOUT))
    a("buffer_store_dwordx4 %s, v6, s[%d:%d], s%d offen %s" % (vr(FP + 4, 4), SOUT, SOUT + 3, sOUT, OST))
    if HOLD:
        ia, ib, wg = HOLD; lp = a.label("hold")
        a("s_waitcnt lgkmcnt(0)\ns_cmp_lg_u32 s2, %d\ns_cbranch_scc1 %s" % (wg, done))
        a("s_sub_u32 s22, s%d, s%d\ns_min_u32 s22, s22, 0x2000\ns_add_u32 s22, s22, 10000" % (74 + 4 * ib, 74 + 4 * ia))
        a("%s:\ns_memrealtime s[24:25]\ns_waitcnt lgkmcnt(0)\ns_sub_u32 s24, s24, s74\ns_cmp_lt_u32 s24, s22\ns_cbranch_scc1 %s" % (lp, lp))
    else: T.dump(SO, sWV, 4)
    a(done + ":\ns_endpgm")
    a(lRare + ":")
    for (ls, lb, kind) in spins:
        lp = a.label("sp")
        a(ls + ":\ns_mov_b32 s44, 0x40000\n%s:" % lp)
        a("s_sleep 8\n" + poll_load(kind) + "\ns_waitcnt vmcnt(0)\n%s\ns_cbranch_vccz %s" % (poll_cmp(kind), lb))
        a("s_sub_u32 s44, s44, 1\ns_cmp_lg_u32 s44, 0\ns_cbranch_scc1 %s\ns_branch %s" % (lp, lb))
    for (ls, lb) in rels:
        a("%s:\nbuffer_wbl2 sc1\ns_waitcnt vmcnt(0)\ns_branch %s" % (ls, lb))
    sRET = 44
    for (p, sm, qk, hs), (lr, users) in rare.items():
        for rid, (lj, lb) in enumerate(users): a("%s:\ns_mov_b32 s%d, %d\ns_branch %s" % (lj, sRET, rid, lr))
        a(lr + ":\ns_nop 7\ns_nop 7")
        for qb in range(4 // sm):
            cur = qregs(S[p], sm, qb, hs); d, f = vX, vX + 2
            if not cur: continue
            for x in maxtree(d, cur) + xlane("v_max_f32", [d], [d + 1]): a(x)
            a("v_max_f32 v%d, 0, v%d\nv_exp_f32 v%d, -v%d" % (d, d, f, d))
            nx = qregs(S[1 - p], qk, qb) if qb < 4 // qk else []
            for r in cur + [NM + 4 * qb + j for j in range(4)] + nx: a("v_sub_f32 v%d, v%d, v%d" % (r, r, d))
            a("v_mul_f32 v%d, v%d, v%d" % (vL[qb], vL[qb], f))
            for j in range(0, 32, 4):
                for q in range(4): a("v_accvgpr_read_b32 v%d, a%d" % (TM + q, O + qb * 32 + j + q))
                for q in range(4): a("v_mul_f32 v%d, v%d, v%d" % (TM + q, TM + q, f))
                for q in range(4): a("v_accvgpr_write_b32 a%d, v%d" % (O + qb * 32 + j + q, TM + q))
        for q in live(sm, hs):
            for n in range(8 * q, 8 * q + 8): a(ex(p, n))
            for j in range(4 * q, 4 * q + 4): a(cv(p, j))
        a("s_nop 1")
        for q in live(sm, hs): a(summ(p, sm, q))
        a("s_nop 7")
        for rid, (lj, lb) in enumerate(users):
            if rid < len(users) - 1: a("s_cmp_eq_u32 s%d, %d\ns_cbranch_scc1 %s" % (sRET, rid, lb))
            else: a("s_branch %s" % lb)
    a.add_kernel(name, 512, 102, 256)
    a.launch(name, 256, 256, 163840)
```
